```python
import torch

def _softmax(x, axis=-1):
    return torch.softmax(x, dim=axis)

def _gelu(x):
    return torch.nn.functional.gelu(x, approximate='tanh')

def _silu(x):
    return torch.nn.functional.silu(x)

def _sigmoid(x):
    return torch.sigmoid(x)

def _layernorm(x, axis=-1, eps=1e-05):
    m = x.mean(dim=axis, keepdim=True)
    v = x.var(dim=axis, keepdim=True, unbiased=False)
    return (x - m) / torch.sqrt(v + eps)

def _scatter_add(tgt, idx, src, axis=0):
    return tgt.clone().index_add_(axis, idx, src)

def _segment_sum(src, seg, n):
    out = torch.zeros((n,) + src.shape[1:], dtype=src.dtype)
    return out.index_add_(0, seg, src)

def _pad(x, pw):
    flat = tuple((v for pair in reversed(pw) for v in pair))
    return torch.nn.functional.pad(x, flat)
kernel_name = 'adaLN_cond__sliding_block_cached__glu_gated_reglu__prompt'

def setup_inputs():

    _w = lambda a: (lambda t: t.to(torch.bfloat16) if t.is_floating_point() else t)(torch.as_tensor(a))

    def _A_setup():
        B, Sq, D = (1, 2048, 640)
        Hq, Hkv, Sk, Dh = (32, 32, 2048, 192)
        assert Hq % Hkv == 0, (Hq, Hkv)
        return {'x': _w((lambda *s: torch.randn(*s, dtype=torch.bfloat16) * 0.05)(B, Sq, D)), 'k_cache': _w((lambda *s: torch.randn(*s, dtype=torch.bfloat16) * 1.6)(B, Hkv, Sk, Dh)), 'v_cache': _w((lambda *s: torch.randn(*s, dtype=torch.bfloat16) * 0.8)(B, Hkv, Sk, Dh)), 'wq': _w((lambda *s: torch.randn(*s, dtype=torch.bfloat16) * 1.6)(D, Hq * Dh) * D ** (-0.5)), 'wo': _w((lambda *s: torch.randn(*s, dtype=torch.bfloat16) * 0.8)(Hq * Dh, D) * (Hq * Dh) ** (-0.5))}
    _A_in = _A_setup()

    def _B_setup():
        B, S, D, F = (1, 2048, 640, 1536)
        return {'x': _w((lambda *s: torch.randn(*s, dtype=torch.bfloat16) * 0.05)(B, S, D)), 'W_gate': _w((lambda *s: torch.randn(*s, dtype=torch.bfloat16) * 0.4)(D, F) * (2.0 / D) ** 0.5), 'W_up': _w((lambda *s: torch.randn(*s, dtype=torch.bfloat16) * 0.4)(D, F) * (2.0 / D) ** 0.5), 'W_down': _w((lambda *s: torch.randn(*s, dtype=torch.bfloat16) * 0.4)(F, D) * (1.0 / F) ** 0.5)}
    _B_in = _B_setup()
    return {'A_x': _A_in['x'], 'A_k_cache': _A_in['k_cache'], 'A_v_cache': _A_in['v_cache'], 'A_wq': _A_in['wq'], 'A_wo': _A_in['wo'], 'B_x': _B_in['x'], 'B_W_gate': _B_in['W_gate'], 'B_W_up': _B_in['W_up'], 'B_W_down': _B_in['W_down'], 'c': _w((lambda *s: torch.randn(*s, dtype=torch.bfloat16) * 0.2)(1, 640) * 8.0), 'w_mod': _w((lambda *s: torch.randn(*s, dtype=torch.bfloat16) * 0.2)(640, 6 * 640) * 640 ** (-0.5) * 8.0)}

def reference(A_x, A_k_cache, A_v_cache, A_wq, A_wo, B_x, B_W_gate, B_W_up, B_W_down, c, w_mod):

    def _A_ref(x, k_cache, v_cache, wq, wo):
        B, Sq, D = x.shape
        Hq, Dh = (32, 192)
        Hkv, Sk = (k_cache.shape[1], k_cache.shape[2])
        W = min(4096, max(256, Sk // 4))
        rep = Hq // Hkv
        q = (lambda x, *d: x.permute(*d))((x @ wq).reshape(B, Sq, Hq, Dh), 0, 2, 1, 3)
        k = (lambda x, n, axis: torch.repeat_interleave(x, n, dim=axis))(k_cache[:, :, Sk - W:, :], rep, axis=1)
        v = (lambda x, n, axis: torch.repeat_interleave(x, n, dim=axis))(v_cache[:, :, Sk - W:, :], rep, axis=1)
        scores = torch.einsum('bhqd,bhkd->bhqk', q, k) * Dh ** (-0.5)
        p = _softmax(scores, axis=-1)
        o = torch.einsum('bhqk,bhkd->bhqd', p, v)
        return (lambda x, *d: x.permute(*d))(o, 0, 2, 1, 3).reshape(B, Sq, Hq * Dh) @ wo

    def _B_ref(x, W_gate, W_up, W_down):
        gate = torch.einsum('bsd,df->bsf', x, W_gate)
        up = torch.einsum('bsd,df->bsf', x, W_up)
        gate = gate * (lambda x, dt: x.to(dt))(gate > 0, gate.dtype)
        h = gate * up
        return torch.einsum('bsf,fd->bsd', h, W_down)
    x = A_x
    mod = (_silu(c) @ w_mod).reshape(c.shape[0], 6, 1, -1)
    sa, ca, ga, sb, cb, gb = (mod[:, 0].clone(), mod[:, 1].clone(), mod[:, 2].clone(), mod[:, 3].clone(), mod[:, 4].clone(), mod[:, 5].clone())
    h = _layernorm(x, axis=-1) * (1 + ca) + sa
    x = x + ga * _A_ref(h, A_k_cache, A_v_cache, A_wq, A_wo)
    h = _layernorm(x, axis=-1) * (1 + cb) + sb
    x = x + gb * _B_ref(h, B_W_gate, B_W_up, B_W_down)
    return x
```

```python
import re

REG_RE = re.compile(r'^(-|\|)?([vas])(\d+)\|?$')
RNG_RE = re.compile(r'^(-)?([vas])\[(\d+):(\d+)\]$')


def parse_regs(tok):
    tok = tok.strip()
    m = REG_RE.match(tok)
    if m:
        return [(m.group(2), int(m.group(3)))]
    m = RNG_RE.match(tok)
    if m:
        return [(m.group(2), i) for i in range(int(m.group(3)), int(m.group(4)) + 1)]
    if tok in ('vcc', 'exec', 'm0', 'scc'):
        return [(tok, 0)]
    if tok in ('vcc_lo', 'vcc_hi'):
        return [('vcc', 0)]
    if tok in ('exec_lo', 'exec_hi'):
        return [('exec', 0)]
    return []


def V(i, n=1):
    return f"v{i}" if n == 1 else f"v[{i}:{i+n-1}]"


def A(i, n=1):
    return f"a{i}" if n == 1 else f"a[{i}:{i+n-1}]"


def S(i, n=1):
    return f"s{i}" if n == 1 else f"s[{i}:{i+n-1}]"


def R(r, n=1):
    return V(r[1], n) if r[0] == 'v' else A(r[1], n)


TRANS = ('v_exp_f32', 'v_log_f32', 'v_rcp_f32', 'v_rsq_f32', 'v_sqrt_f32', 'v_sin_f32', 'v_cos_f32')


class Ins:
    __slots__ = ('text', 'op', 'kind', 'rd', 'wr', 'meta', 'srcc', 'srcab', 'tag')

    def __init__(self, text, tag=None):
        self.text = text
        self.tag = tag
        self.meta = {}
        self.srcc = []
        self.srcab = []
        t = text.split(';')[0].strip()
        if t.endswith(':'):
            self.op = 'label'; self.kind = 'label'; self.rd = []; self.wr = []
            return
        parts = t.split(None, 1)
        op = parts[0]
        self.op = op
        rest = parts[1] if len(parts) > 1 else ''
        ops = []
        cur = ''
        depth = 0
        for ch in rest:
            if ch == '[': depth += 1
            if ch == ']': depth -= 1
            if ch == ',' and depth == 0:
                ops.append(cur.strip()); cur = ''
            else:
                cur += ch
        if cur.strip():
            ops.append(cur.strip())
        mods = ''
        if ops:
            sp = ops[-1].split(None, 1)
            ops[-1] = sp[0]
            mods = sp[1] if len(sp) > 1 else ''
        regs = [parse_regs(o) for o in ops]
        rd, wr = [], []
        kind = None
        if op.startswith('v_mfma'):
            kind = 'mfma32' if '32x32' in op else 'mfma16'
            wr = regs[0]
            self.srcab = regs[1] + regs[2]
            self.srcc = regs[3] if len(regs) > 3 else []
            rd = self.srcab + self.srcc
        elif op.startswith('v_cmp'):
            kind = 'valu'
            wr = regs[0]
            for r in regs[1:]: rd += r
            if op.startswith('v_cmpx'): wr = wr + [('exec', 0)]
        elif op.startswith('v_permlane') and 'swap' in op:
            kind = 'perm'
            wr = regs[0] + regs[1]; rd = regs[0] + regs[1]
        elif op.startswith('v_readfirstlane') or op.startswith('v_readlane'):
            kind = 'valu'; wr = regs[0]
            for r in regs[1:]: rd += r
            self.meta['readlane'] = True
        elif op.startswith('v_'):
            kind = 'trans' if op.replace('_e32', '').replace('_e64', '') in TRANS else 'valu'
            wr = list(regs[0])
            for r in regs[1:]: rd += r
            base = op.replace('_e32', '').replace('_e64', '')
            if base in ('v_fmac_f32', 'v_dot2c_f32_bf16', 'v_pk_fmac_f16', 'v_writelane_b32'):
                rd += regs[0]
            if base in ('v_add_co_u32', 'v_sub_co_u32', 'v_addc_co_u32', 'v_subb_co_u32'):
                wr = regs[0] + regs[1]
                rd = []
                for r in regs[2:]: rd += r
            if base == 'v_cndmask_b32' and len(regs) == 3:
                rd += [('vcc', 0)]
            if 'dpp' in op or 'row_' in mods or 'quad_perm' in mods:
                self.meta['dpp'] = True
                rd += regs[0]
        elif op.startswith('ds_read') or op.startswith('ds_bpermute') or op.startswith('ds_swizzle'):
            kind = 'ds_read'; wr = regs[0]
            for r in regs[1:]: rd += r
        elif op.startswith('ds_write'):
            kind = 'ds_write'
            for r in regs: rd += r
        elif op.startswith('buffer_load') or op.startswith('global_load'):
            if ' lds' in (' ' + mods) or op.startswith('global_load_lds'):
                kind = 'dma'
                for r in regs: rd += r
                rd += [('m0', 0)]
            else:
                kind = 'vload'; wr = regs[0]
                for r in regs[1:]: rd += r
        elif op.startswith('buffer_store') or op.startswith('global_store'):
            kind = 'vstore'
            for r in regs: rd += r
            if op.startswith('buffer_store'):
                self.meta['data'] = regs[0]
            else:
                self.meta['data'] = regs[1]
            self.meta['wide'] = op.endswith('x4') or op.endswith('x3')
        elif op.startswith('buffer_atomic') or op.startswith('global_atomic'):
            kind = 'vstore'
            for r in regs: rd += r
            self.meta['data'] = []
            self.meta['wide'] = False
            if 'sc0' in mods:
                kind = 'vload'; wr = regs[0]
        elif op.startswith('buffer_inv') or op.startswith('buffer_wbl2'):
            kind = 'vstore'; self.meta['data'] = []; self.meta['wide'] = False
        elif op.startswith('s_load') or op.startswith('s_memtime') or op.startswith('s_memrealtime') or op.startswith('s_buffer_load'):
            kind = 'smem'; wr = regs[0]
            for r in regs[1:]: rd += r
        elif op == 's_waitcnt':
            kind = 'wait'
        elif op == 's_barrier':
            kind = 'barrier'
        elif op == 's_nop':
            kind = 'nop'; self.meta['n'] = int(ops[0], 0) + 1
        elif op.startswith('s_cbranch') or op == 's_branch' or op == 's_endpgm' or op.startswith('s_setpc'):
            kind = 'branch'
        elif op.startswith('s_cmp'):
            kind = 'salu'; wr = [('scc', 0)]
            for r in regs: rd += r
        elif op in ('s_setprio', 's_sleep'):
            kind = 'salu'
        elif op.startswith('s_'):
            kind = 'salu'; wr = list(regs[0]) if regs else []
            for r in regs[1:]: rd += r
            if 'saveexec' in op:
                wr += [('exec', 0)]; rd += [('exec', 0)]
            if op in ('s_addk_i32', 's_mulk_i32'):
                rd += regs[0]
        else:
            raise ValueError("unknown op " + text)
        self.kind = kind
        self.rd = rd
        self.wr = wr

    def cost(self):
        k = self.kind
        if k in ('label',): return 0
        if k in ('trans', 'perm'): return 8
        if k in ('mfma16', 'mfma32'): return 8
        if k == 'nop': return 4 * self.meta['n']
        return 4


class WaitVM:
    def __init__(self, h): self.h = h
    kind = 'waitvm'


class WaitLGKM:
    def __init__(self, h): self.h = h
    kind = 'waitlgkm'


class Prog:
    def __init__(self):
        self.items = []

    def e(self, text, tag=None):
        if isinstance(text, (Ins, WaitVM, WaitLGKM)):
            self.items.append(text); return text
        i = Ins(text, tag)
        self.items.append(i)
        return i

    def many(self, lst):
        for x in lst: self.e(x)

    def wait_vm(self, h):
        self.items.append(WaitVM(h))

    def finalize(self, auto_wait=True, verbose=False, report_nops=True):
        out = []
        vm = []
        lg = []
        smem_out = False
        pend = {}
        nwait = 0

        def emit_wait(vmn=None, lgn=None):
            nonlocal nwait
            s = []
            if vmn is not None: s.append(f"vmcnt({vmn})")
            if lgn is not None: s.append(f"lgkmcnt({lgn})")
            if not s: return
            out.append(Ins("s_waitcnt " + " ".join(s)))
            nwait += 1

        def retire_vm(n):
            while len(vm) > n:
                o = vm.pop(0)
                for r in o.wr:
                    if pend.get(r, (None, None))[1] is o: del pend[r]

        def retire_lg(n):
            while len(lg) > n:
                o = lg.pop(0)
                for r in o.wr:
                    if pend.get(r, (None, None))[1] is o: del pend[r]

        for it in self.items:
            if isinstance(it, WaitVM):
                h = it.h
                if h in vm:
                    n = len(vm) - 1 - vm.index(h)
                    assert n <= 63, "vmcnt overflow"
                    emit_wait(vmn=n); retire_vm(n)
                continue
            if isinstance(it, WaitLGKM):
                h = it.h
                if h in lg:
                    n = len(lg) - 1 - lg.index(h)
                    emit_wait(lgn=min(n, 15)); retire_lg(min(n, 15))
                continue
            k = it.kind
            if k == 'label' or k == 'branch':
                if it.meta.get('keep'):
                    out.append(it); continue
                if pend and it.op != 's_endpgm':
                    needv = any(p[0] == 'vm' for p in pend.values())
                    needl = any(p[0] in ('lg', 'sm') for p in pend.values())
                    emit_wait(vmn=0 if needv else None, lgn=0 if needl else None)
                    if needv: retire_vm(0)
                    if needl: retire_lg(0)
                out.append(it)
                continue
            if k == 'wait':
                m = re.search(r'vmcnt\((\d+)\)', it.text)
                if m: retire_vm(int(m.group(1)))
                m = re.search(r'lgkmcnt\((\d+)\)', it.text)
                if m:
                    retire_lg(int(m.group(1)))
                    if int(m.group(1)) == 0: smem_out = False
                out.append(it)
                continue
            if auto_wait:
                vmn = None; lgn = None
                for r in list(it.rd) + list(it.wr):
                    p = pend.get(r)
                    if p is None: continue
                    if p[0] == 'vm':
                        n = len(vm) - 1 - vm.index(p[1])
                        vmn = n if vmn is None else min(vmn, n)
                    elif p[0] == 'lg':
                        n = len(lg) - 1 - lg.index(p[1])
                        lgn = n if lgn is None else min(lgn, n)
                    elif p[0] == 'sm':
                        lgn = 0
                if vmn is not None or lgn is not None:
                    if vmn is not None: vmn = min(vmn, 63)
                    if lgn is not None:
                        lgn = min(lgn, 15)
                        if smem_out: lgn = 0
                    emit_wait(vmn, lgn)
                    if vmn is not None: retire_vm(vmn)
                    if lgn is not None:
                        retire_lg(lgn)
                        if lgn == 0:
                            smem_out = False
                            for r in [r for r, p in pend.items() if p[0] == 'sm']: del pend[r]
            out.append(it)
            if k in ('vload', 'dma', 'vstore'):
                vm.append(it)
                assert len(vm) <= 63 or True
                for r in it.wr: pend[r] = ('vm', it)
            elif k in ('ds_read', 'ds_write'):
                lg.append(it)
                for r in it.wr: pend[r] = ('lg', it)
            elif k == 'smem':
                smem_out = True
                for r in it.wr: pend[r] = ('sm', it)
        out = self._hazards(out, report_nops)
        self.final = out
        return out

    def _hazards(self, ins, report):
        out = []
        pos = 0
        last_valu_w = {}
        last_trans_w = {}
        last_mfma_w = {}
        last_mfma_c = {}
        last_salu_m0 = -100
        last_valu_sg = {}
        last_store_data = {}
        last_valu_exec = -100
        nops = 0
        for it in ins:
            k = it.kind
            if k == 'label':
                out.append(it); continue
            need = 0

            def req(p, n):
                nonlocal need
                need = max(need, p + n + 1)

            isvalu = k in ('valu', 'trans', 'perm')
            ismfma = k in ('mfma16', 'mfma32')
            ismem = k in ('ds_read', 'ds_write', 'vload', 'dma', 'vstore')
            if ismfma:
                for r in it.rd:
                    if r in last_valu_w: req(last_valu_w[r], 2)
                for r in it.srcab:
                    if r in last_mfma_w:
                        p, ps, d = last_mfma_w[r]; req(p, {4: 8, 8: 12}[ps])
                for r in it.srcc:
                    if r in last_mfma_w:
                        p, ps, d = last_mfma_w[r]
                        mine = 4 if k == 'mfma16' else 8
                        if tuple(it.srcc) == d and ps == mine: pass
                        else: req(p, {4: 6, 8: 10}[ps])
                for r in it.wr:
                    if r in last_mfma_w and r not in it.srcc:
                        p, ps, d = last_mfma_w[r]; req(p, {4: 6, 8: 10}[ps])
                req(last_valu_exec, 4)
            if isvalu or ismem:
                regs = list(it.rd) + list(it.wr)
                for r in regs:
                    if r in last_mfma_w:
                        p, ps, d = last_mfma_w[r]; req(p, {4: 8, 8: 12}[ps])
            if isvalu:
                for r in it.wr:
                    if r in last_mfma_c:
                        p, ps = last_mfma_c[r]; req(p, {4: 3, 8: 7}[ps])
                    if r in last_store_data: req(last_store_data[r], 2)
                if k != 'trans':
                    for r in it.rd:
                        if r in last_trans_w: req(last_trans_w[r], 1)
                if k == 'perm' or it.meta.get('dpp'):
                    for r in it.rd:
                        if r in last_valu_w: req(last_valu_w[r], 2)
                    if it.meta.get('dpp'): req(last_valu_exec, 5)
                if it.meta.get('readlane'):
                    for r in it.rd:
                        if r in last_valu_w: req(last_valu_w[r], 1)
                        if r in last_valu_sg: req(last_valu_sg[r], 4)
                for r in it.rd:
                    if r in last_valu_sg: req(last_valu_sg[r], 2)
            if k in ('vload', 'ds_read'):
                for r in it.wr:
                    if r in last_store_data: req(last_store_data[r], 1)
            if k in ('vload', 'dma', 'vstore'):
                for r in it.rd:
                    if r in last_valu_sg: req(last_valu_sg[r], 5)
                if k == 'dma': req(last_salu_m0, 1)
            if k in ('salu', 'branch'):
                for r in it.rd:
                    if r in last_valu_sg: req(last_valu_sg[r], 4)
                if k == 'branch' and 'vcc' in it.op and ('vcc', 0) in last_valu_sg:
                    req(last_valu_sg[('vcc', 0)], 5)
                if k == 'branch' and 'exec' in it.op:
                    req(last_valu_exec, 5)
            if need > pos:
                n = need - pos
                nops += n
                if report:
                    print(f"  [hazard] inserting {n} nop states before: {it.text}")
                while n > 0:
                    q = min(n, 16)
                    out.append(Ins(f"s_nop {q-1}"))
                    n -= q
                pos = need
            out.append(it)
            if isvalu:
                for r in it.wr:
                    if r[0] in ('v', 'a'):
                        last_valu_w[r] = pos
                        if k == 'trans': last_trans_w[r] = pos
                        else: last_trans_w.pop(r, None)
                        last_mfma_w.pop(r, None)
                    elif r[0] in ('s', 'vcc'):
                        last_valu_sg[r] = pos
                    elif r[0] == 'exec':
                        last_valu_exec = pos
            if ismfma:
                ps = 4 if k == 'mfma16' else 8
                d = tuple(it.wr)
                for r in it.wr:
                    last_mfma_w[r] = (pos, ps, d)
                    last_valu_w.pop(r, None); last_trans_w.pop(r, None)
                for r in it.srcc: last_mfma_c[r] = (pos, ps)
            if k in ('vload', 'ds_read'):
                for r in it.wr:
                    last_valu_w.pop(r, None); last_trans_w.pop(r, None); last_mfma_w.pop(r, None)
            if k == 'salu':
                if ('m0', 0) in it.wr: last_salu_m0 = pos
                for r in it.wr:
                    last_valu_sg.pop(r, None)
            if k == 'smem':
                for r in it.wr: last_valu_sg.pop(r, None)
            if k == 'vstore' and it.meta.get('wide'):
                for r in it.meta['data']: last_store_data[r] = pos
            pos += it.meta['n'] if k == 'nop' else 1
        self.nops = nops
        return out

    def text(self):
        lines = []
        for it in self.final:
            lines.append(it.text if it.kind == 'label' else "  " + it.text)
        return "\n".join(lines) + "\n"

    def estimate(self, lo=0, hi=None):
        t = 0; pipe = 0; nm = 0; busy = 0
        for it in self.final[lo:hi]:
            k = it.kind
            if k in ('mfma16', 'mfma32'):
                d = 16 if k == 'mfma16' else 32
                st = max(t, pipe)
                pipe = st + d; t = st + 8; nm += 1; busy += d
            else:
                t += it.cost()
        return max(t, pipe), busy


def cls(ins):
    if not isinstance(ins, Ins): return 'salu'
    k = ins.kind
    if k in ('ds_read', 'ds_write', 'vload', 'vstore', 'dma'): return 'mem'
    if k in ('valu', 'trans', 'perm'): return 'valu'
    return 'salu'


def weave(backbone, streams, budget, max_mem=1, reserve=None):
    res = []
    ptr = [0] * len(streams)
    n = len(backbone)
    for i in range(-1, n):
        if i >= 0: res.append(backbone[i])
        used = 0; nmem = 0; free_salu = 1 if i >= 0 else 0
        bud = budget - (reserve.get(i, 0) if reserve else 0)
        for phase in (0, 1):
            while True:
                best = None
                for si, st in enumerate(streams):
                    if ptr[si] >= len(st): continue
                    ins, e, l = st[ptr[si]]
                    if e > i: continue
                    c = cls(ins)
                    must = l <= i
                    if phase == 0 and c == 'valu': continue
                    if phase == 1 and c != 'valu' and not must: continue
                    cost = ins.cost() if isinstance(ins, Ins) else 4
                    if c == 'salu' and free_salu > 0 and used == 0: cost = 0
                    if not must:
                        if used + cost > bud: continue
                        if c == 'mem' and nmem >= max_mem: continue
                    key = (l, si)
                    if best is None or key < best[0]: best = (key, si, cost, c)
                if best is None: break
                _, si, cost, c = best
                res.append(streams[si][ptr[si]][0]); ptr[si] += 1; used += cost
                if c == 'mem': nmem += 1
                if c == 'salu' and cost == 0: free_salu -= 1
    for si, st in enumerate(streams):
        while ptr[si] < len(st):
            res.append(st[ptr[si]][0]); ptr[si] += 1
    return res
```

```python
from asmgen import *

WS_MOD  = 0x0
WS_HF   = 0x40000
WS_OF   = 0x400000
WS_PART = 0x2000000
WS_X1   = 0x3800000
WS_H2F  = 0x4000000
WS_ACT  = 0x4400000
WS_STAMP= 0x5000000
WS_DBG  = 0x6000000
WS_BYTES = 268435456

WQ_BASE = 0;      WQ_NS = 5;  WQ_ST = 12288
K_BASE  = 36864;  K_NS = 5;   K_ST = 12288
V_BASE  = 98304;  V_NS = 4;   V_ST = 16384
LDS_BYTES = 163840
BIAS = 4096

sWQ, sK, sV, sWS = 8, 12, 16, 20
sHEAD, sRB, sW = 24, 25, 26
sM0WQ, sM0K, sM0V = 27, 28, 29
sOFF = 30
sOFH = 31
sT0, sT1, sT2, sT3 = 32, 33, 34, 35
sSLOW = 36
sTS = 40

vWQD = 1
vKD  = 4
vVD  = 7
vWQT = 11
vKF  = 15
vVT  = 19
vHO  = 23
vT0, vT1, vT2, vT3 = 60, 61, 62, 63
QACC = 64
QF = 64
SB = [160, 192]
RING = 192
OACC = [64, 160]
LACC = 128
RINV = 144

def P_reg(kt, ct):
    if kt < 12: return ('a', kt*16 + ct*4)
    if kt < 14: return ('v', 28 + (kt-12)*16 + ct*4)
    return ('v', 224 + (kt-14)*16 + ct*4)

def prologue(P, stamps=False):
    e = P.e
    e("s_cmp_ge_u32 s2, 256")
    e("s_cbranch_scc1 K2_END")
    e("s_load_dwordx2 s[4:5], s[0:1], 24")
    e("s_load_dwordx4 s[44:47], s[0:1], 8")
    e("s_load_dwordx2 s[6:7], s[0:1], 104")
    if stamps:
        e(f"s_memrealtime s[{sTS}:{sTS+1}]")
    e("s_and_b32 s24, s2, 7"); e("s_lshl_b32 s24, s24, 2")
    e("s_lshr_b32 s3, s2, 3"); e("s_and_b32 s3, s3, 3"); e("s_add_u32 s24, s24, s3")
    e("s_lshr_b32 s25, s2, 5")
    e("v_lshrrev_b32 v2, 6, v0")
    e("v_and_b32 v0, 63, v0")
    e("v_readfirstlane_b32 s26, v2")
    e(f"v_lshrrev_b32 v{vT0}, 3, v0")
    e(f"v_and_b32 v{vT1}, 7, v0")
    e(f"v_lshrrev_b32 v{vT2}, 4, v0")
    e(f"v_lshlrev_b32 v{vT3}, 1, v{vT2}")
    e(f"v_xor_b32 v{vT3}, v{vT3}, v{vT1}")
    e(f"v_lshlrev_b32 v{vT3}, 4, v{vT3}")
    e("s_lshl_b32 s3, s26, 3")
    e(f"v_add_u32 v{vWQD}, s3, v{vT0}")
    e(f"s_mov_b32 s4{0}, 12288") if False else None
    e("s_mov_b32 s37, 12288")
    e(f"v_mul_lo_u32 v{vWQD}, v{vWQD}, s37")
    e(f"v_add_u32 v{vWQD}, v{vWQD}, v{vT3}")
    e(f"v_add_u32 v{vWQD}, {BIAS}, v{vWQD}")
    e(f"v_add_u32 v{vWQD+1}, {128-1024}, v{vWQD}")
    e(f"v_add_u32 v{vWQD+2}, {256-2048}, v{vWQD}")
    e(f"v_add_u32 v{vKD}, s3, v{vT0}")
    e(f"v_lshrrev_b32 v{vT3}, 1, v{vKD}")
    e(f"v_and_b32 v{vT3}, 7, v{vT3}")
    e(f"v_xor_b32 v{vT3}, v{vT3}, v{vT1}")
    e(f"v_lshlrev_b32 v{vT3}, 4, v{vT3}")
    e(f"v_mul_u32_u24 v{vKD}, 384, v{vKD}")
    e(f"v_add_u32 v{vKD}, v{vKD}, v{vT3}")
    e(f"v_add_u32 v{vKD}, {BIAS}, v{vKD}")
    e(f"v_add_u32 v{vKD+1}, {128-1024}, v{vKD}")
    e(f"v_add_u32 v{vKD+2}, {256-2048}, v{vKD}")
    e(f"v_and_b32 v{vT3}, 1, v{vT2}")
    e(f"v_lshlrev_b32 v{vT3}, 1, v{vT3}")
    e(f"v_xor_b32 v{vT3}, v{vT3}, v{vT1}")
    e("s_lshl_b32 s3, s26, 5")
    e(f"v_add_u32 v{vVD}, s3, v{vT0}")
    e(f"v_mul_u32_u24 v{vVD}, 384, v{vVD}")
    e(f"v_add_u32 v{vVD}, {BIAS}, v{vVD}")
    e(f"v_xor_b32 v{vVD+1}, 4, v{vT3}")
    e(f"v_lshlrev_b32 v{vVD+1}, 4, v{vVD+1}")
    e(f"v_lshlrev_b32 v{vT3}, 4, v{vT3}")
    e(f"v_add_u32 v{vVD+1}, v{vVD+1}, v{vVD}")
    e(f"v_add_u32 v{vVD}, v{vVD}, v{vT3}")
    e(f"v_add_u32 v{vVD+2}, {2*3072-2*1024}, v{vVD}")
    e(f"v_add_u32 v{vVD+3}, {3*3072-3*1024}, v{vVD+1}")
    e(f"v_add_u32 v{vVD+1}, {1*3072-1*1024}, v{vVD+1}")
    e(f"v_lshrrev_b32 v{vT0}, 2, v0"); e(f"v_and_b32 v{vT0}, 3, v{vT0}")
    e(f"v_and_b32 v{vT1}, 3, v0"); e(f"v_lshlrev_b32 v{vT1}, 3, v{vT1}")
    e(f"v_and_b32 v{vWQT}, 1, v{vT2}"); e(f"v_lshlrev_b32 v{vWQT}, 2, v{vWQT}")
    e(f"v_add_u32 v{vWQT}, v{vWQT}, v{vT0}")
    e(f"v_lshrrev_b32 v{vWQT+1}, 1, v{vWQT}")
    e(f"v_lshlrev_b32 v{vWQT}, 7, v{vWQT}")
    e(f"v_lshrrev_b32 v{vWQT+2}, 1, v{vT2}")
    e(f"v_mul_u32_u24 v{vWQT+2}, 3072, v{vWQT+2}")
    e(f"v_add_u32 v{vWQT}, v{vWQT}, v{vWQT+2}")
    e(f"v_add_u32 v{vWQT}, v{vWQT}, v{vT1}")
    e(f"v_lshlrev_b32 v{vWQT+1}, 5, v{vWQT+1}")
    for tp in (3, 2, 1):
        e(f"v_xor_b32 v{vT3}, {tp<<5}, v{vWQT+1}")
        e(f"v_add_u32 v{vWQT+tp if tp!=1 else vT3}, v{vWQT}, v{vT3}") if tp != 1 else None
    e(f"v_xor_b32 v{vT3}, {1<<5}, v{vWQT+1}")
    e(f"v_add_u32 v{vT3}, v{vWQT}, v{vT3}")
    e(f"v_add_u32 v{vWQT}, v{vWQT}, v{vWQT+1}")
    e(f"v_mov_b32 v{vWQT+1}, v{vT3}")
    e(f"v_lshrrev_b32 v{vVT}, 1, v{vT2}"); e(f"v_lshlrev_b32 v{vVT}, 2, v{vVT}")
    e(f"v_add_u32 v{vVT}, v{vVT}, v{vT0}")
    e(f"v_lshrrev_b32 v{vVT+1}, 1, v{vVT}"); e(f"v_and_b32 v{vVT+1}, 1, v{vVT+1}")
    e(f"v_and_b32 v{vVT+2}, 1, v{vT2}")
    e(f"v_lshlrev_b32 v{vVT+3}, 1, v{vVT+2}")
    e(f"v_or_b32 v{vVT+1}, v{vVT+1}, v{vVT+3}")
    e(f"v_lshlrev_b32 v{vVT+1}, 5, v{vVT+1}")
    e(f"v_lshlrev_b32 v{vVT}, 7, v{vVT}")
    e(f"v_lshlrev_b32 v{vVT+2}, 10, v{vVT+2}")
    e(f"v_add_u32 v{vVT}, v{vVT}, v{vVT+2}")
    e(f"v_add_u32 v{vVT}, v{vVT}, v{vT1}")
    e(f"v_add_u32 v{vVT}, {V_BASE}, v{vVT}")
    for tp in (3, 2):
        e(f"v_xor_b32 v{vT3}, {tp<<5}, v{vVT+1}")
        e(f"v_add_u32 v{vVT+tp}, v{vVT}, v{vT3}")
    e(f"v_xor_b32 v{vT3}, {1<<5}, v{vVT+1}")
    e(f"v_add_u32 v{vT3}, v{vVT}, v{vT3}")
    e(f"v_add_u32 v{vVT}, v{vVT}, v{vVT+1}")
    e(f"v_mov_b32 v{vVT+1}, v{vT3}")
    e(f"v_and_b32 v{vT0}, 31, v0")
    e(f"v_lshrrev_b32 v{vT1}, 3, v{vT0}"); e(f"v_mul_u32_u24 v{vT1}, 3072, v{vT1}")
    e(f"v_and_b32 v{vT3}, 7, v{vT0}"); e(f"v_lshlrev_b32 v{vT3}, 7, v{vT3}")
    e(f"v_add_u32 v{vT1}, v{vT1}, v{vT3}"); e(f"v_add_u32 v{vT1}, {K_BASE}, v{vT1}")
    e(f"v_lshrrev_b32 v{vT0}, 1, v{vT0}"); e(f"v_and_b32 v{vT0}, 7, v{vT0}")
    e(f"v_lshrrev_b32 v{vT3}, 5, v0")
    e(f"v_xor_b32 v{vT0}, v{vT0}, v{vT3}")
    for s4 in range(4):
        e(f"v_xor_b32 v{vT3}, {2*s4}, v{vT0}")
        e(f"v_lshlrev_b32 v{vT3}, 4, v{vT3}")
        e(f"v_add_u32 v{vKF+s4}, v{vT1}, v{vT3}")
    e("s_lshl_b32 s3, s25, 4"); e("s_lshl_b32 s37, s26, 2"); e("s_add_u32 s38, s3, s37")
    e("s_mul_i32 s3, s38, 20480"); e(f"s_add_u32 s3, s3, {WS_HF}")
    e(f"v_lshlrev_b32 v{vT0}, 4, v0")
    e(f"v_add_u32 v{vHO}, s3, v{vT0}")
    for ct in range(1, 4):
        e(f"v_add_u32 v{vHO+ct}, {ct*20480}, v{vHO}")
    e(f"s_mul_i32 s{sM0WQ}, s26, 3072")
    e(f"s_add_u32 s{sM0K}, s{sM0WQ}, {K_BASE}")
    e(f"s_lshl_b32 s{sM0V}, s26, 12"); e(f"s_add_u32 s{sM0V}, s{sM0V}, {V_BASE}")
    e("s_waitcnt lgkmcnt(0)")
    e("s_mul_i32 s3, s24, 384")
    e(f"s_add_u32 s{sWQ}, s4, s3"); e(f"s_addc_u32 s{sWQ+1}, s5, 0")
    e(f"s_sub_u32 s{sWQ}, s{sWQ}, {BIAS}"); e(f"s_subb_u32 s{sWQ+1}, s{sWQ+1}, 0")
    e(f"s_sub_u32 s{sWQ+2}, {7864320+BIAS}, s3"); e(f"s_mov_b32 s{sWQ+3}, 0x20000")
    e("s_mul_i32 s3, s24, 786432"); e(f"s_add_u32 s3, s3, {1536*384-BIAS}")
    e(f"s_add_u32 s{sK}, s44, s3"); e(f"s_addc_u32 s{sK+1}, s45, 0")
    e(f"s_mov_b32 s{sK+2}, {512*384+BIAS}"); e(f"s_mov_b32 s{sK+3}, 0x20000")
    e(f"s_add_u32 s{sV}, s46, s3"); e(f"s_addc_u32 s{sV+1}, s47, 0")
    e(f"s_mov_b32 s{sV+2}, {512*384+BIAS}"); e(f"s_mov_b32 s{sV+3}, 0x20000")
    e(f"s_mov_b32 s{sWS}, s6"); e(f"s_mov_b32 s{sWS+1}, s7")
    e(f"s_mov_b32 s{sWS+2}, {WS_BYTES}"); e(f"s_mov_b32 s{sWS+3}, 0x20000")

def dma_wq(ks):
    slot = ks % WQ_NS
    L = [Ins(f"s_add_u32 m0, s{sM0WQ}, {WQ_BASE + slot*WQ_ST}"),
         Ins(f"s_mov_b32 s{sOFF}, {ks*32*12288}")]
    D = [Ins(f"buffer_load_dwordx4 v{vWQD+q}, s[{sWQ}:{sWQ+3}], s{sOFF} offen offset:{q*1024} lds") for q in range(3)]
    return L, D

def k_slot(kt): return (kt + 2) % K_NS
def dma_k(kt):
    L = [Ins(f"s_add_u32 m0, s{sM0K}, {k_slot(kt)*K_ST}"),
         Ins(f"s_mov_b32 s{sOFF}, {kt*12288}")]
    D = [Ins(f"buffer_load_dwordx4 v{vKD+q}, s[{sK}:{sK+3}], s{sOFF} offen offset:{q*1024} lds") for q in range(3)]
    return L, D

def dma_v(st):
    G, kb = st // 4, st % 4
    L = [Ins(f"s_add_u32 m0, s{sM0V}, {(st % V_NS)*V_ST}"),
         Ins(f"s_mov_b32 s{sOFF}, {kb*128*384 + G*128}")]
    D = [Ins(f"buffer_load_dwordx4 v{vVD+i}, s[{sV}:{sV+3}], s{sOFF} offen offset:{i*1024} lds") for i in range(4)]
    return L, D

def load_h(ks):
    L = [Ins(f"s_mov_b32 s{sOFH}, {ks*1024}")]
    base = (ks % 4)*16
    D = [Ins(f"buffer_load_dwordx4 a[{base+4*ct}:{base+4*ct+3}], v{vHO+ct}, s[{sWS}:{sWS+3}], s{sOFH} offen") for ct in range(4)]
    return L, D

def tr_wq(n):
    ks, t = divmod(n, 12)
    slot = n % 16
    q, tp = t >> 2, t & 3
    off = WQ_BASE + (ks % WQ_NS)*WQ_ST + q*1024
    r = RING + slot*4
    return [Ins(f"ds_read_b64_tr_b16 a[{r}:{r+1}], v{vWQT+tp} offset:{off}"),
            Ins(f"ds_read_b64_tr_b16 a[{r+2}:{r+3}], v{vWQT+tp} offset:{off+6144}")]

OPT = dict(dma=True, hload=True, barrier=True, tr=True, pfcode=False)
def k_frag(n):
    kt, s_ = divmod(n, 12)
    r = RING + (n % 16)*4
    off = k_slot(kt)*K_ST + (s_ >> 2)*1024
    return Ins(f"ds_read_b128 a[{r}:{r+3}], v{vKF + (s_ & 3)} offset:{off}")

def softmax_stream(kt, mode='exp'):
    L = []
    buf = SB[kt & 1]
    toA = P_reg(kt, 0)[0] == 'a'
    for cb in range(2):
        Sx = buf + 16*cb
        if toA:
            A_ = [Sx+0, Sx+2, Sx+8, Sx+10]; B_ = [Sx+4, Sx+6, Sx+12, Sx+14]
        else:
            pa = P_reg(kt, 2*cb)[1]; pb = P_reg(kt, 2*cb+1)[1]
            A_ = [pa+i for i in range(4)]; B_ = [pb+i for i in range(4)]
        E = lambda i: Ins(f"v_exp_f32 v{Sx+i}, v{Sx+i}")
        C = lambda d, i: Ins(f"v_cvt_pk_bf16_f32 v{d}, v{Sx+i}, v{Sx+i+1}")
        SW = lambda i: Ins(f"v_permlane16_swap_b32 v{A_[i]}, v{B_[i]}")
        def W(i):
            if not toA: return []
            pa = P_reg(kt, 2*cb)[1]; pb = P_reg(kt, 2*cb+1)[1]
            return [Ins(f"v_accvgpr_write_b32 a{pa+i}, v{A_[i]}"), Ins(f"v_accvgpr_write_b32 a{pb+i}, v{B_[i]}")]
        L += [E(0), E(1), E(2), E(3), E(4), E(5), C(A_[0], 0), C(A_[1], 2), E(6), E(7), C(B_[0], 4), E(8), E(9), C(B_[1], 6),
              E(10), E(11), SW(0), C(A_[2], 8), SW(1), E(12), E(13), C(A_[3], 10), E(14), E(15)]
        L += W(0) + [C(B_[2], 12), C(B_[3], 14)] + W(1) + [SW(2), SW(3)]
        L += W(2) + W(3)
    return L

def phase2(P, handles):
    PF = 4
    for kt in range(16):
        bb = []
        buf = SB[kt & 1]
        for s_ in range(12):
            n = 12*kt + s_
            ar = RING + (n % 16)*4
            for cb in range(2):
                d = buf + 16*cb
                q = QF + 8*s_ + 4*cb
                c = f"v[{d}:{d+15}]" if s_ > 0 else "0"
                bb.append(Ins(f"v_mfma_f32_32x32x16_bf16 v[{d}:{d+15}], a[{ar}:{ar+3}], v[{q}:{q+3}], {c}"))
        s_rd, s_dma, s_sm = [], [], []
        for s_ in range(12):
            n = 12*kt + s_ + PF
            lo = 2*s_
            if n < 12*16:
                if s_ == 8:
                    s_rd.append((WaitVM(handles['k'][kt+1]), lo-1, lo-1))
                    s_rd.append((Ins("s_barrier"), lo-1, lo-1))
                s_rd.append((k_frag(n), lo, lo+1))
            else:
                m = n - 192
                if m == 0:
                    s_rd.append((WaitVM(handles['v'][0]), lo-1, lo-1))
                    s_rd.append((Ins("s_barrier"), lo-1, lo-1))
                a, b = tr_v(m)
                s_rd.append((a, lo, lo+1)); s_rd.append((b, lo, lo+1))
        if kt + 4 < 16:
            L, D = dma_k(kt+4)
            handles['k'][kt+4] = D[-1]
            s_dma += [(L[0], 16, 18), (L[1], 16, 18)] + [(d, 17+2*i, 19+2*i) for i, d in enumerate(D)]
        elif kt >= 12 and kt <= 14:
            L, D = dma_v(kt-12)
            handles['v'][kt-12] = D[-1]
            s_dma += [(L[0], 2, 18), (L[1], 2, 18)] + [(d, 4+4*i, 22) for i, d in enumerate(D)]
        if kt > 0:
            sm = softmax_stream(kt-1)
            n = len(sm)
            for i, x in enumerate(sm):
                s_sm.append((x, 2, 23))
        P.many(weave(bb, [s_rd, s_dma, s_sm], 24, max_mem=1))

def tr_v(m):
    G, rem = divmod(m, 64)
    kt, tp = divmod(rem, 4)
    st = 4*G + (kt >> 2)
    off = (st % V_NS)*V_ST + (kt & 3)*4096
    r = RING + ((192 + m) % 16)*4
    return [Ins(f"ds_read_b64_tr_b16 a[{r}:{r+1}], v{vVT+tp} offset:{off}"),
            Ins(f"ds_read_b64_tr_b16 a[{r+2}:{r+3}], v{vVT+tp} offset:{off+2048}")]

ONES = 60

def o_epilogue(G):
    L = []
    ob = OACC[G & 1]
    for u in range(2):
        L.append(Ins(f"s_mov_b32 s{sOFH}, {(2*G+u)*1024}"))
        for ct in range(4):
            x = ob + ((2*u)*4 + ct)*4; y = ob + ((2*u+1)*4 + ct)*4
            for i in range(4): L.append(Ins(f"v_mul_f32 v{x+i}, v{RINV+ct}, v{x+i}"))
            for i in range(4): L.append(Ins(f"v_mul_f32 v{y+i}, v{RINV+ct}, v{y+i}"))
            L.append(Ins(f"v_cvt_pk_bf16_f32 v{x}, v{x}, v{x+1}"))
            L.append(Ins(f"v_cvt_pk_bf16_f32 v{x+1}, v{x+2}, v{x+3}"))
            L.append(Ins(f"v_cvt_pk_bf16_f32 v{x+2}, v{y}, v{y+1}"))
            L.append(Ins(f"v_cvt_pk_bf16_f32 v{x+3}, v{y+2}, v{y+3}"))
            L.append(Ins(f"buffer_store_dwordx4 v[{x}:{x+3}], v{vHO+ct}, s[{sWS}:{sWS+3}], s{sOFH} offen sc1"))
    return L

def phase3(P, handles):
    PF = 4
    for G in range(3):
        ob = OACC[G & 1]
        pre = []
        epi = []
        if G == 1:
            for ct in range(4): epi.append(Ins(f"v_rcp_f32 v{RINV+ct}, v{LACC+4*ct}"))
        if G >= 1: epi += o_epilogue(G-1)
        nslots_total = 16*16
        epi_ptr = 0
        for kt in range(16):
            bb = []
            for tp in range(4):
                m = 64*G + 4*kt + tp
                ar = RING + ((192 + m) % 16)*4
                for ct in range(4):
                    d = ob + (tp*4 + ct)*4
                    p = P_reg(kt, ct)
                    c = f"v[{d}:{d+3}]" if kt > 0 else "0"
                    bb.append(Ins(f"v_mfma_f32_16x16x32_bf16 v[{d}:{d+3}], a[{ar}:{ar+3}], {R(p,4)}, {c}"))
            if G == 0:
                for ct in range(4):
                    d = LACC + 4*ct
                    p = P_reg(kt, ct)
                    c = f"v[{d}:{d+3}]" if kt > 0 else "0"
                    bb.append(Ins(f"v_mfma_f32_16x16x32_bf16 v[{d}:{d+3}], v[{ONES}:{ONES+3}], {R(p,4)}, {c}"))
            s_rd, s_dma, s_x = [], [], []
            st = 4*G + (kt >> 2)
            for tp in range(4):
                m = 64*G + 4*kt + tp + PF
                if m >= 192: continue
                lo = 4*tp
                if tp == 0 and (kt & 3) == 3:
                    s_rd.append((WaitVM(handles['v'][st+1]), -1, -1))
                    s_rd.append((Ins("s_barrier"), -1, -1))
                a, b = tr_v(m)
                s_rd.append((a, lo, lo+1)); s_rd.append((b, lo+1, lo+2))
            if (kt & 3) == 3 and st + 3 < 12:
                L, D = dma_v(st+3)
                handles['v'][st+3] = D[-1]
                s_dma += [(L[0], 0, 2), (L[1], 0, 3)] + [(d, 2+3*i, 4+3*i) for i, d in enumerate(D)]
            if G == 0 and kt < 2:
                sm = softmax_stream(15)
                half = len(sm)//2
                part = sm[:half] if kt == 0 else sm[half:]
                s_x = [(x, 0 if kt else 2, 19) for x in part]
            elif epi and kt >= 1:
                per = -(-len(epi) // 13)
                part = epi[epi_ptr:epi_ptr+per]; epi_ptr += len(part)
                s_x = [(x, 0, len(bb)-1) for x in part]
            P.many(weave(bb, [s_rd, s_dma, s_x], 8))
        assert epi_ptr >= len(epi)
    P.many(o_epilogue(2))

def phase3_setup():
    L = [Ins(f"v_mov_b32 v{ONES+i}, 0x3f803f80") for i in range(4)]
    L.append(Ins(f"s_mul_i32 s{sT0}, s38, {196608-20480}"))
    L.append(Ins(f"s_mul_i32 s{sT1}, s24, 6144"))
    L.append(Ins(f"s_add_u32 s{sT0}, s{sT0}, s{sT1}"))
    L.append(Ins(f"s_add_u32 s{sT0}, s{sT0}, {WS_OF-WS_HF}"))
    for ct in range(4):
        L.append(Ins(f"v_add_u32 v{vHO+ct}, s{sT0}, v{vHO+ct}"))
        if ct: L.append(Ins(f"v_add_u32 v{vHO+ct}, {ct*(196608-20480)}, v{vHO+ct}"))
    return L

def phase1(P, handles):
    NK = 20
    PF = 4
    dmah = handles['wq']
    for ks in range(NK):
        bb = []
        for t in range(12):
            n = 12*ks + t
            ar = RING + (n % 16)*4
            for ct in range(4):
                acc = QACC + (4*t + ct)*4
                b = (ks % 4)*16 + 4*ct
                c = f"v[{acc}:{acc+3}]" if ks > 0 else "0"
                bb.append(Ins(f"v_mfma_f32_16x16x32_bf16 v[{acc}:{acc+3}], a[{ar}:{ar+3}], a[{b}:{b+3}], {c}"))
        s_tr, s_h, s_dma = [], [], []
        for t in range(12):
            n = 12*ks + t + PF
            if n >= 12*NK:
                if OPT.get('p2', False):
                    lo = 4*t
                    if t == 8:
                        s_tr.append((WaitVM(handles['k'][0]), lo-1, lo-1))
                        s_tr.append((Ins("s_barrier"), lo-1, lo-1))
                    s_tr.append((k_frag(n - 12*NK), lo, lo+2))
                continue
            a, b = tr_wq(n)
            lo = 4*t
            if t == 8:
                if OPT['dma'] or ks+1 < 4: s_tr.append((WaitVM(dmah[ks+1]), lo-1, lo-1))
                if OPT['barrier']: s_tr.append((Ins("s_barrier"), lo-1, lo-1))
            if OPT['tr']:
                s_tr.append((a, lo, lo+1)); s_tr.append((b, lo+1, lo+2))
        if ks + 3 < NK and OPT['hload']:
            L, D = load_h(ks+3)
            s_h.append((L[0], 0, 1))
            for i, d in enumerate(D): s_h.append((d, 4*i+2, 4*i+3))
        if not OPT['dma']: pass
        elif ks + 4 < NK:
            L, D = dma_wq(ks+4)
            dmah[ks+4] = D[-1]
            s_dma.append((L[0], 33, 35)); s_dma.append((L[1], 34, 36))
            for i, d in enumerate(D): s_dma.append((d, 36+4*i, 38+4*i))
        elif ks >= 16:
            kt = ks - 16
            L, D = dma_k(kt)
            handles['k'][kt] = D[-1]
            s_dma.append((L[0], 33, 35)); s_dma.append((L[1], 34, 36))
            for i, d in enumerate(D): s_dma.append((d, 36+4*i, 38+4*i))
        P.many(weave(bb, [s_tr, s_h, s_dma], 8))

def phase1_pro(P, handles):
    for ks in range(4):
        L, D = dma_wq(ks)
        P.many(L); P.many(D)
        handles['wq'][ks] = D[-1]
        if ks < 3:
            L, D = load_h(ks)
            P.many(L); P.many(D)
    P.wait_vm(handles['wq'][0])
    P.e("s_barrier")
    for n in range(4):
        P.many(tr_wq(n))

def q_convert(P):
    for t in range(12):
        for cb in range(2):
            x = QACC + (4*t + 2*cb)*4; y = x + 4
            d = QF + 8*t + 4*cb
            P.e(f"v_cvt_pk_bf16_f32 v{d}, v{x}, v{x+1}")
            P.e(f"v_cvt_pk_bf16_f32 v{d+1}, v{x+2}, v{x+3}")
            P.e(f"v_cvt_pk_bf16_f32 v{d+2}, v{y}, v{y+1}")
            P.e(f"v_cvt_pk_bf16_f32 v{d+3}, v{y+2}, v{y+3}")
        for cb in range(2):
            d = QF + 8*t + 4*cb
            P.e(f"v_permlane16_swap_b32 v{d}, v{d+2}")
            P.e(f"v_permlane16_swap_b32 v{d+1}, v{d+3}")

def dump_regs(P, regs, base_off):
    n = len(regs)
    P.e(f"s_lshl_b32 s3, s2, 2"); P.e("s_add_u32 s3, s3, s26")
    P.e(f"s_mul_i32 s3, s3, {n*256}"); P.e(f"s_add_u32 s3, s3, {base_off}")
    P.e(f"v_lshlrev_b32 v{vT0}, 2, v0"); P.e(f"v_add_u32 v{vT0}, s3, v{vT0}")
    for i, r in enumerate(regs):
        if r[0] == 'a':
            P.e(f"v_accvgpr_read_b32 v{vT1}, a{r[1]}")
            src = vT1
        else:
            src = r[1]
        P.e(f"s_mov_b32 s3, {i*256}")
        P.e(f"buffer_store_dword v{src}, v{vT0}, s[{sWS}:{sWS+3}], s3 offen")
        if r[0] == 'a': P.e("s_waitcnt vmcnt(0)")

def stamp(P, idx):
    P.e(f"s_memtime s[{sTS+2*idx}:{sTS+2*idx+1}]")

def write_stamps(P, n):
    P.e("s_waitcnt lgkmcnt(0)")
    P.e(f"s_lshl_b32 s3, s2, 2"); P.e("s_add_u32 s3, s3, s26"); P.e("s_lshl_b32 s3, s3, 6"); P.e(f"s_add_u32 s3, s3, {WS_STAMP}")
    for i in range(n):
        P.e(f"v_mov_b32 v{vT1}, s{sTS+2*i}")
        P.e(f"v_mov_b32 v{vT0}, s3")
        P.e(f"buffer_store_dword v{vT1}, v{vT0}, s[{sWS}:{sWS+3}], 0 offen offset:{4*i}")
        P.e("s_waitcnt vmcnt(0)")

KD = """.section .rodata,"a"
.p2align 6
.amdhsa_kernel {name}
  .amdhsa_next_free_vgpr {vgpr}
  .amdhsa_next_free_sgpr 102
  .amdhsa_accum_offset {acc}
  .amdhsa_group_segment_fixed_size 0
  .amdhsa_kernarg_size 112
  .amdhsa_user_sgpr_count 2
  .amdhsa_user_sgpr_kernarg_segment_ptr 1
  .amdhsa_system_sgpr_workgroup_id_x 1
.end_amdhsa_kernel
"""

def wrap(kernels, launches):
    s = ""
    for nm, g, b, l in launches:
        s += f"; @launch kernel={nm} grid=({g},1,1) block=({b},1,1) lds={l}\n"
    s += '.amdgcn_target "amdgcn-amd-amdhsa--gfx950"\n.text\n'
    for nm, txt, vg, ac in kernels:
        s += f".globl {nm}\n.p2align 8\n.type {nm},@function\n{nm}:\n{txt}"
    for nm, txt, vg, ac in kernels:
        s += KD.format(name=nm, vgpr=vg, acc=ac)
    return s

def code_prefetch(P, nbytes):
    P.e("s_getpc_b64 s[48:49]")
    P.e(f"v_lshlrev_b32 v{vT0}, 2, v0")
    P.e(f"s_lshl_b32 s3, s26, 8"); P.e(f"v_add_u32 v{vT0}, s3, v{vT0}")
    P.e(f"v_lshlrev_b32 v{vT0}, 4, v{vT0}")
    for off in range(0, nbytes, 16384):
        P.e(f"global_load_dword v{vT1}, v{vT0}, s[48:49]")
        P.e(f"v_add_u32 v{vT0}, 16384, v{vT0}")

def build_p1(fname):
    P = Prog()
    H = {'wq': {}, 'k': {}, 'v': {}}
    prologue(P, stamps=False)
    if OPT['pfcode']: code_prefetch(P, 16384)
    stamp(P, 0)
    phase1_pro(P, H)
    stamp(P, 1)
    phase1(P, H)
    stamp(P, 2)
    q_convert(P)
    stamp(P, 3)
    P.e("s_waitcnt vmcnt(0)")
    dump_regs(P, [('v', QF+i) for i in range(96)], WS_DBG)
    write_stamps(P, 4)
    P.e("K2_END:")
    P.e("s_endpgm")
    P.finalize()
    print("estimate", P.estimate(), "nops", P.nops, "ninstr", len(P.final))
    open(fname, "w").write(wrap([("k2_kernel", P.text(), 512, 256)], [("k2_kernel", 256, 256, LDS_BYTES)]))

def build_full(fname, dump_p=False):
    OPT.update(dict(dma=True, hload=True, barrier=True, tr=True, pfcode=True, p2=True))
    P = Prog()
    H = {'wq': {}, 'k': {}, 'v': {}}
    prologue(P, stamps=False)
    code_prefetch(P, 49152)
    stamp(P, 0)
    phase1_pro(P, H)
    stamp(P, 1)
    phase1(P, H)
    stamp(P, 2)
    q_convert(P)
    P.many(phase3_setup())
    stamp(P, 3)
    phase2(P, H)
    stamp(P, 4)
    phase3(P, H)
    stamp(P, 5)
    P.e("s_waitcnt vmcnt(0)")
    stamp(P, 6)
    if dump_p:
        regs = []
        for kt in range(16):
            for ct in range(4):
                p = P_reg(kt, ct)
                regs += [(p[0], p[1]+i) for i in range(4)]
        regs += [('v', LACC+i) for i in range(16)]
        dump_regs(P, regs, WS_DBG)
    write_stamps(P, 7)
    P.e("K2_END:")
    P.e("s_endpgm")
    P.finalize()
    print("estimate", P.estimate(), "nops", P.nops, "ninstr", len(P.final))
    open(fname, "w").write(wrap([("k2_kernel", P.text(), 512, 256)], [("k2_kernel", 256, 256, LDS_BYTES)]))

if __name__ == "__main__":
    import sys
    if len(sys.argv) > 1 and sys.argv[1] == "full":
        build_full("k2_full.s", dump_p=True)
        build_full("k2_fast.s", dump_p=False)
        sys.exit(0)
    build_p1("k2_p1.s")
    for nm, o in [("a", dict(dma=False, hload=False, barrier=False)), ("b", dict(dma=False, hload=True, barrier=False)),
                  ("c", dict(dma=True, hload=False, barrier=False)), ("d", dict(dma=True, hload=True, barrier=False)),
                  ("e", dict(dma=False, hload=False, barrier=True)), ("f", dict(dma=True, hload=True, barrier=True, pfcode=True)),
                  ("g", dict(dma=False, hload=False, barrier=False, tr=False))]:
        OPT.update(dict(dma=True, hload=True, barrier=True, tr=True, pfcode=False)); OPT.update(o)
        build_p1(f"k2_p1{nm}.s")
```

```python
from asmgen import *
from k2gen import WS_MOD, WS_HF, WS_OF, WS_PART, WS_X1, WS_H2F, WS_ACT, WS_BYTES, WS_STAMP
from ksmall import srd, f2u, NSPLIT
BIAS = 8192

GOPT = dict(dma=True, bload=True, tr=True, barrier=True, waits=True)
def gemm_stream(P, NK, nA, nB, kps, acc_reg, a_ring, a_slots, b_ring, b_sets, tr_fn, bload_fn, dma_fn, H,
                PF, BPF, DPF, nstages, WG=2, extra=None, a_is_agpr=False, b_is_agpr=False, zero_init=True):
    TRH = H.setdefault('tr', {}); BH = H.setdefault('b', {})
    spk = nA*nB
    bb = []
    for ks in range(NK):
        for t in range(nA):
            n = nA*ks + t
            ar = a_ring + (n % a_slots)*4
            for ct in range(nB):
                acc = acc_reg(t, ct)
                b = b_ring + (ks % b_sets)*4*nB + 4*ct
                c = f"v[{acc}:{acc+3}]" if (ks > 0 or not zero_init) else "0"
                ra = f"a[{ar}:{ar+3}]" if a_is_agpr else f"v[{ar}:{ar+3}]"
                rb = f"a[{b}:{b+3}]" if b_is_agpr else f"v[{b}:{b+3}]"
                bb.append(Ins(f"v_mfma_f32_16x16x32_bf16 v[{acc}:{acc+3}], {ra}, {rb}, {c}"))
    s_tr, s_w, vm = [], [], []
    bar_at = {}
    dmas = {}
    for st in range(nstages):
        if st not in H and GOPT['dma']:
            L, D = dma_fn(st); dmas[st] = (L, D); H[st] = D[-1]
    loads = {}
    for ks in range(NK):
        if ks not in BH and GOPT['bload']:
            L, D = bload_fn(ks); loads[ks] = (L, D); BH[ks] = D[-1]
    for n in range(PF, nA*NK):
        lo = nB*(n - PF)
        nks = n // nA
        if n % nA == 0 and nks % kps == 0:
            stg = nks // kps
            if stg in H and GOPT['waits']: s_tr.append((WaitVM(H[stg]), lo-1, lo-1))
            if GOPT['barrier']: s_tr.append((Ins("s_barrier"), lo-1, lo-1))
            bar_at[stg-1] = lo
        a, b = tr_fn(n)
        TRH[n] = b
        if GOPT['tr']:
            s2 = lo+1 if nB > 1 else lo
            s_tr.append((a, lo, lo)); s_tr.append((b, s2, s2))
    for n in range(0, nA*NK, WG):
        tgt = min(n + WG - 1, nA*NK - 1)
        if GOPT['tr']: s_w.append((WaitLGKM(TRH[tgt]), nB*n-1, nB*n-1))
    s_wb = [(WaitVM(BH[ks]), spk*ks-1, spk*ks-1) for ks in range(NK) if ks in BH and GOPT['waits']]
    items = []
    for st, (L, D) in dmas.items():
        lo = bar_at.get(st - DPF, 0)
        hi = bar_at.get(st - DPF + 1, lo + spk*kps) - 1
        items.append((lo, hi, L, D))
    for ks, (L, D) in loads.items():
        lo = spk*(ks - BPF); hi = lo + spk - 1
        items.append((lo, hi, L, D))
    ops = []
    for gi, (lo, hi, L, D) in enumerate(items):
        pre = list(L)
        for d in D:
            if cls(d) != 'mem': pre.append(d); continue
            ops.append([lo, hi, gi, pre, d]); pre = []
    nslots = len(bb)
    gap = max(1, int(GAP))
    placed = []
    t = 0
    remaining = ops[:]
    cur = 0
    while remaining:
        cand = [o for o in remaining if o[0] <= cur]
        if not cand:
            cur = min(o[0] for o in remaining); continue
        o = min(cand, key=lambda o: (o[1], ops.index(o)))
        placed.append((cur, o)); remaining.remove(o)
        nxt = cur + gap
        if remaining:
            dl = sorted(x[1] for x in remaining)
            for idx, dd in enumerate(dl):
                if nxt + idx*gap > dd:
                    nxt = max(cur + 1, min(nxt, dd - idx*gap))
        cur = nxt
    per_group = {}
    for slot, o in placed:
        st_ = per_group.setdefault(o[2] % 2 if False else ('d' if o[4].kind == 'dma' else 'b'), [])
        for x in o[3]: st_.append((x, slot-2, slot))
        st_.append((o[4], slot, slot))
    streams = [s_w, s_wb, s_tr] + list(per_group.values())
    if extra: streams.append(extra)
    P.many(weave(bb, streams, 8, max_mem=2))

GAP = 4
def gen_k3(stamps=False, auto=True):
    P = Prog(); e = P.e
    NS = 6; ST = 20480
    e("s_cmp_ge_u32 s2, 256"); e("s_cbranch_scc1 K3_END")
    e("s_load_dwordx2 s[4:5], s[0:1], 32")
    e("s_load_dwordx2 s[6:7], s[0:1], 104")
    if stamps: e("s_memtime s[40:41]")
    e("s_and_b32 s20, s2, 3")
    e("s_lshr_b32 s3, s2, 2"); e("s_and_b32 s3, s3, 1"); e("s_lshl_b32 s3, s3, 3")
    e("s_lshr_b32 s21, s2, 5"); e("s_add_u32 s21, s21, s3")
    e("s_lshr_b32 s22, s2, 3"); e("s_and_b32 s22, s22, 3")
    e("v_lshrrev_b32 v1, 6, v0"); e("v_and_b32 v0, 63, v0")
    e("v_readfirstlane_b32 s23, v1")
    for i in range(5):
        e(f"v_add_u32 v10, {i*64}, v0")
        e("v_mul_u32_u24 v11, 3277, v10"); e("v_lshrrev_b32 v11, 16, v11")
        e("v_mul_u32_u24 v12, 20, v11"); e("v_sub_u32 v12, v10, v12")
        e("v_lshrrev_b32 v13, 2, v11"); e("v_and_b32 v13, 1, v13"); e("v_lshlrev_b32 v13, 1, v13")
        e("v_xor_b32 v12, v12, v13")
        e("v_lshlrev_b32 v12, 4, v12")
        e("v_mul_u32_u24 v11, 1280, v11")
        e("v_add_u32 v11, v11, v12")
        e(f"v_add_u32 v{2+i}, {BIAS - i*1024}, v11")
    e("s_mul_i32 s3, s23, 20480")
    for i in range(5): e(f"v_add_u32 v{2+i}, s3, v{2+i}")
    e("v_lshrrev_b32 v10, 4, v0")
    e("v_lshrrev_b32 v11, 2, v0"); e("v_and_b32 v11, 3, v11")
    e("v_lshlrev_b32 v12, 2, v10"); e("v_add_u32 v11, v11, v12")
    e("v_mul_u32_u24 v11, 320, v11")
    e("v_and_b32 v12, 3, v0"); e("v_lshlrev_b32 v12, 3, v12"); e("v_add_u32 v11, v11, v12")
    e("v_and_b32 v12, 1, v10"); e("v_lshlrev_b32 v12, 5, v12")
    e("v_add_u32 v7, v11, v12")
    e("v_xor_b32 v12, 32, v12"); e("v_add_u32 v8, v11, v12")
    e(f"v_add_u32 v9, {3*ST}, v7"); e(f"v_add_u32 v14, {3*ST}, v8")
    e("s_lshl_b32 s3, s21, 3"); e("s_lshl_b32 s24, s23, 1"); e("s_add_u32 s24, s24, s3")
    e("s_mul_i32 s3, s24, 196608"); e("s_mul_i32 s25, s20, 49152"); e("s_add_u32 s3, s3, s25"); e(f"s_add_u32 s3, s3, {WS_OF}")
    e("v_lshlrev_b32 v10, 4, v0"); e("v_add_u32 v15, s3, v10"); e("v_add_u32 v16, 196608, v15")
    e("s_lshl_b32 s3, s20, 7"); e("s_add_u32 s3, s3, s24"); e("s_mul_i32 s3, s3, 40960")
    e("s_mul_i32 s25, s22, 10240"); e("s_add_u32 s3, s3, s25"); e(f"s_add_u32 s3, s3, {WS_PART}")
    e("v_add_u32 v17, s3, v10"); e("v_add_u32 v18, 40960, v17")
    e("s_mul_i32 s26, s23, 5120")
    e("s_mul_i32 s27, s20, 1966080")
    e("s_waitcnt lgkmcnt(0)")
    e("s_mul_i32 s3, s22, 320")
    e("s_add_u32 s8, s4, s3"); e("s_addc_u32 s9, s5, 0"); e(f"s_sub_u32 s8, s8, {BIAS}"); e("s_subb_u32 s9, s9, 0")
    e(f"s_sub_u32 s10, {7864320+BIAS}, s3"); e("s_mov_b32 s11, 0x20000")
    srd(P, 12, 6, 7, WS_BYTES)
    ACC = 176
    AR = 20; ASL = 12
    BR = 68; BS = 6
    def acc_reg(t, ct): return ACC + (t*2 + ct)*4
    def tr_fn(n):
        ks, t = divmod(n, 10)
        st, kk = divmod(ks, 2)
        slot = st % NS
        sett, so = divmod(slot, 3)
        areg = [7, 8, 9, 14][sett*2 + (t & 1)]
        off = so*ST + kk*10240 + (t >> 1)*64
        r = AR + (n % ASL)*4
        return [Ins(f"ds_read_b64_tr_b16 v[{r}:{r+1}], v{areg} offset:{off}"),
                Ins(f"ds_read_b64_tr_b16 v[{r+2}:{r+3}], v{areg} offset:{off+5120}")]
    def bload_fn(ks):
        b = BR + (ks % BS)*8
        return ([Ins(f"s_mov_b32 s28, {ks*1024}")],
                [Ins(f"buffer_load_dwordx4 v[{b+4*ct}:{b+4*ct+3}], v{15+ct}, s[12:15], s28 offen") for ct in range(2)])
    def dma_fn(st):
        return ([Ins(f"s_add_u32 m0, s26, {(st % NS)*ST}"), Ins(f"s_add_u32 s29, s27, {st*81920}")],
                [Ins(f"buffer_load_dwordx4 v{2+i}, s[8:11], s29 offen offset:{i*1024} lds") if i < 4 else None for i in range(5)])
    def dma_fn2(st):
        L = [Ins(f"s_add_u32 m0, s26, {(st % NS)*ST}"), Ins(f"s_add_u32 s29, s27, {st*81920}")]
        D = [Ins(f"buffer_load_dwordx4 v{2+i}, s[8:11], s29 offen offset:{i*1024} lds") for i in range(4)]
        D.append(Ins(f"s_add_u32 m0, s26, {(st % NS)*ST + 4096}"))
        D.append(Ins(f"buffer_load_dwordx4 v6, s[8:11], s29 offen lds"))
        return L, D
    H = {}
    e("v_add_u32 v6, 4096, v6")
    if stamps: e("s_memtime s[42:43]")
    BPF = 5; DPF = 5
    for st in range(DPF):
        L, D = dma_fn2(st); P.many(L); P.many(D); H[st] = D[-1]
        L, D = bload_fn(st); P.many(L); P.many(D); H.setdefault('b', {})[st] = D[-1]
    P.wait_vm(H[0]); e("s_barrier")
    PF = 6
    for n in range(PF):
        rr = tr_fn(n); P.many(rr); H.setdefault('tr', {})[n] = rr[-1]
    if stamps: e("s_memtime s[44:45]"); e("s_waitcnt lgkmcnt(0)")
    gemm_stream(P, 48, 10, 2, 2, acc_reg, AR, ASL, BR, BS, tr_fn, bload_fn, dma_fn2, H, PF, BPF, DPF, 24)
    if stamps: e("s_memtime s[46:47]")
    for t in range(10):
        e(f"s_mov_b32 s28, {t*1024}")
        for ct in range(2):
            a = acc_reg(t, ct)
            e(f"buffer_store_dwordx4 v[{a}:{a+3}], v{17+ct}, s[12:15], s28 offen sc1")
    if stamps:
        e("s_waitcnt vmcnt(0)"); e("s_memtime s[48:49]")
        write_stamps(P, 5, 23, 12)
    e("K3_END:")
    e("s_endpgm")
    P.finalize(auto_wait=auto)
    return P

WS_GB = WS_MOD + 0x20000

def gen_k5(stamps=False):
    P = Prog(); e = P.e
    NS = 5; ST = 12288
    e("s_cmp_ge_u32 s2, 256"); e("s_cbranch_scc1 K5_END")
    e("s_load_dwordx4 s[4:7], s[0:1], 48")
    e("s_load_dwordx2 s[16:17], s[0:1], 104")
    if stamps: e("s_memtime s[40:41]")
    e("s_and_b32 s20, s2, 7"); e("s_lshl_b32 s20, s20, 1"); e("s_lshr_b32 s3, s2, 3"); e("s_and_b32 s21, s3, 1"); e("s_add_u32 s20, s20, s21")
    e("s_lshr_b32 s21, s2, 4")
    e("v_lshrrev_b32 v1, 6, v0"); e("v_and_b32 v0, 63, v0")
    e("v_readfirstlane_b32 s23, v1")
    e("v_lshrrev_b32 v10, 2, v0")
    e("s_lshr_b32 s3, s23, 1"); e("s_lshl_b32 s3, s3, 4"); e("v_add_u32 v10, s3, v10")
    e("v_lshrrev_b32 v11, 2, v10"); e("v_and_b32 v11, 1, v11"); e("v_lshlrev_b32 v11, 1, v11")
    e("v_and_b32 v12, 3, v0"); e("v_xor_b32 v11, v11, v12"); e("v_lshlrev_b32 v11, 4, v11")
    e("v_mul_u32_u24 v10, 3072, v10"); e("v_add_u32 v10, v10, v11")
    e(f"v_add_u32 v2, {BIAS}, v10"); e(f"v_add_u32 v3, {BIAS + 64 - 1024}, v10"); e(f"v_add_u32 v4, {BIAS + 128 - 2048}, v10")
    e("v_lshrrev_b32 v10, 4, v0")
    e("v_lshrrev_b32 v11, 2, v0")
    e("v_lshlrev_b32 v11, 6, v11")
    e("v_and_b32 v12, 3, v0"); e("v_lshlrev_b32 v12, 3, v12"); e("v_add_u32 v11, v11, v12")
    e("v_and_b32 v12, 1, v10"); e("v_lshlrev_b32 v12, 5, v12")
    e("v_add_u32 v7, v11, v12"); e("v_xor_b32 v12, 32, v12"); e("v_add_u32 v8, v11, v12")
    e("s_lshl_b32 s3, s21, 3"); e("s_lshl_b32 s24, s23, 1"); e("s_add_u32 s24, s24, s3")
    e("s_mul_i32 s3, s24, 20480"); e(f"s_add_u32 s3, s3, {WS_H2F}")
    e("v_lshlrev_b32 v10, 4, v0"); e("v_add_u32 v15, s3, v10"); e("v_add_u32 v16, 20480, v15")
    e("s_mul_i32 s3, s24, 49152"); e("s_mul_i32 s25, s20, 3072"); e("s_add_u32 s3, s3, s25"); e(f"s_add_u32 s3, s3, {WS_ACT}")
    e("v_add_u32 v17, s3, v10"); e("v_add_u32 v18, 49152, v17")
    e("s_mul_i32 s26, s23, 3072")
    e("s_waitcnt lgkmcnt(0)")
    e("s_and_b32 s3, s23, 1"); e("s_cmp_eq_u32 s3, 0")
    e("s_cselect_b32 s8, s4, s6"); e("s_cselect_b32 s9, s5, s7")
    e("s_mul_i32 s3, s20, 192")
    e("s_add_u32 s8, s8, s3"); e("s_addc_u32 s9, s9, 0"); e(f"s_sub_u32 s8, s8, {BIAS}"); e("s_subb_u32 s9, s9, 0")
    e(f"s_sub_u32 s10, {640*3072+BIAS}, s3"); e("s_mov_b32 s11, 0x20000")
    srd(P, 12, 16, 17, WS_BYTES)
    ACC = 160
    AR = 20; ASL = 12
    BR = 68; BS = 6
    def acc_reg(t, ct): return ACC + (t*2 + ct)*4
    def tr_fn(n):
        ks, t = divmod(n, 12)
        p = 3*(t // 6) + ((t % 6) >> 1)
        off = (ks % NS)*ST + p*1024
        r = AR + (n % ASL)*4
        return [Ins(f"ds_read_b64_tr_b16 v[{r}:{r+1}], v{7 + (t & 1)} offset:{off}"),
                Ins(f"ds_read_b64_tr_b16 v[{r+2}:{r+3}], v{7 + (t & 1)} offset:{off+6144}")]
    def bload_fn(ks):
        b = BR + (ks % BS)*8
        return ([Ins(f"s_mov_b32 s28, {ks*1024}")],
                [Ins(f"buffer_load_dwordx4 v[{b+4*ct}:{b+4*ct+3}], v{15+ct}, s[12:15], s28 offen") for ct in range(2)])
    def dma_fn(st):
        return ([Ins(f"s_add_u32 m0, s26, {(st % NS)*ST}"), Ins(f"s_mov_b32 s29, {st*32*3072}")],
                [Ins(f"buffer_load_dwordx4 v{2+i}, s[8:11], s29 offen offset:{i*1024} lds") for i in range(3)])
    H = {}
    if stamps: e("s_memtime s[42:43]")
    BPF = 4; DPF = 4
    for st in range(DPF):
        L, D = dma_fn(st); P.many(L); P.many(D); H[st] = D[-1]
        L, D = bload_fn(st); P.many(L); P.many(D); H.setdefault('b', {})[st] = D[-1]
    P.wait_vm(H[0]); e("s_barrier")
    PF = 6
    for n in range(PF):
        rr = tr_fn(n); P.many(rr); H.setdefault('tr', {})[n] = rr[-1]
    if stamps: e("s_memtime s[44:45]"); e("s_waitcnt lgkmcnt(0)")
    gemm_stream(P, 20, 12, 2, 1, acc_reg, AR, ASL, BR, BS, tr_fn, bload_fn, dma_fn, H, PF, BPF, DPF, 20)
    if stamps: e("s_memtime s[46:47]")
    for u in range(3):
        e(f"s_mov_b32 s28, {u*1024}")
        for ct in range(2):
            dst = 20 + (u*2 + ct)*4
            for hh in range(2):
                j = 2*u + hh
                g = acc_reg(j, ct); up = acc_reg(6+j, ct)
                for i in range(4): e(f"v_max_f32 v{g+i}, 0, v{g+i}")
                for i in range(4): e(f"v_mul_f32 v{g+i}, v{g+i}, v{up+i}")
                e(f"v_cvt_pk_bf16_f32 v{dst+2*hh}, v{g}, v{g+1}")
                e(f"v_cvt_pk_bf16_f32 v{dst+2*hh+1}, v{g+2}, v{g+3}")
            e(f"buffer_store_dwordx4 v[{dst}:{dst+3}], v{17+ct}, s[12:15], s28 offen sc1")
    if stamps:
        e("s_waitcnt vmcnt(0)"); e("s_memtime s[48:49]")
        write_stamps(P, 5, 23, 12)
    e("K5_END:")
    e("s_endpgm")
    P.finalize()
    return P

def gen_k6(stamps=False):
    P = Prog(); e = P.e
    NS = 6; ST = 5120
    e("s_cmp_ge_u32 s2, 256"); e("s_cbranch_scc1 K6_END")
    e("s_load_dwordx2 s[4:5], s[0:1], 64")
    e("s_load_dwordx2 s[6:7], s[0:1], 88")
    e("s_load_dwordx2 s[16:17], s[0:1], 104")
    if stamps: e("s_memtime s[40:41]")
    e("s_and_b32 s20, s2, 7"); e("s_lshl_b32 s20, s20, 2"); e("s_lshr_b32 s3, s2, 6"); e("s_add_u32 s20, s20, s3")
    e("s_lshr_b32 s21, s2, 3"); e("s_and_b32 s21, s21, 7")
    e("v_lshrrev_b32 v1, 6, v0"); e("v_and_b32 v0, 63, v0")
    e("v_readfirstlane_b32 s23, v1")
    for i in range(5):
        e(f"v_add_u32 v10, {i*64}, v0")
        e("v_mul_u32_u24 v11, 6554, v10"); e("v_lshrrev_b32 v11, 16, v11")
        e("v_mul_u32_u24 v12, 10, v11"); e("v_sub_u32 v12, v10, v12")
        e("v_lshlrev_b32 v12, 4, v12"); e("v_mul_u32_u24 v11, 1280, v11"); e("v_add_u32 v11, v11, v12")
        e(f"v_add_u32 v{2+i}, {BIAS - (i*1024 if i < 4 else 0)}, v11")
    e("v_lshrrev_b32 v11, 2, v0"); e("v_mul_u32_u24 v11, 160, v11")
    e("v_and_b32 v12, 3, v0"); e("v_lshlrev_b32 v12, 3, v12"); e("v_add_u32 v7, v11, v12")
    e(f"s_mul_i32 s26, s23, {NS*ST}"); e("v_add_u32 v7, s26, v7")
    e("s_lshl_b32 s24, s20, 2")
    e("s_mul_i32 s3, s24, 49152"); e("s_mul_i32 s25, s23, 12288"); e("s_add_u32 s3, s3, s25"); e(f"s_add_u32 s3, s3, {WS_ACT}")
    e("v_lshlrev_b32 v10, 4, v0"); e("v_add_u32 v15, s3, v10")
    for ct in range(1, 4): e(f"v_add_u32 v{15+ct}, {ct*49152}, v15")
    e("s_mul_i32 s27, s23, 491520")
    e("s_add_u32 s3, s24, s23"); e("s_mul_i32 s30, s3, 20480"); e(f"s_add_u32 s30, s30, {WS_X1}")
    e("v_add_u32 v8, s30, v10")
    e("v_lshrrev_b32 v11, 4, v0"); e("v_lshlrev_b32 v11, 4, v11"); e("s_mul_i32 s3, s21, 320"); e(f"s_add_u32 s3, s3, {WS_GB}"); e("v_add_u32 v9, s3, v11")
    e("v_and_b32 v12, 15, v0"); e("s_lshl_b32 s3, s20, 6"); e("s_lshl_b32 s25, s23, 4"); e("s_add_u32 s3, s3, s25"); e("v_add_u32 v12, s3, v12")
    e("v_mul_u32_u24 v12, 1280, v12"); e("v_lshrrev_b32 v11, 4, v0"); e("v_lshlrev_b32 v11, 3, v11"); e("v_add_u32 v12, v12, v11")
    e("s_mul_i32 s3, s21, 160"); e("v_add_u32 v14, s3, v12")
    e("s_waitcnt lgkmcnt(0)")
    e("s_mul_i32 s3, s21, 160")
    e("s_add_u32 s8, s4, s3"); e("s_addc_u32 s9, s5, 0"); e(f"s_sub_u32 s8, s8, {BIAS}"); e("s_subb_u32 s9, s9, 0")
    e(f"s_sub_u32 s10, {1536*1280+BIAS}, s3"); e("s_mov_b32 s11, 0x20000")
    srd(P, 12, 16, 17, WS_BYTES); srd(P, 32, 6, 7, 2048*1280)
    ACC = 176
    AR = 20; ASL = 8
    BR = 52; BS = 4
    XR = 116
    def acc_reg(t, ct): return ACC + (t*4 + ct)*4
    def tr_fn(n):
        ks, t = divmod(n, 5)
        off = (ks % NS)*ST + t*32
        r = AR + (n % ASL)*4
        return [Ins(f"ds_read_b64_tr_b16 v[{r}:{r+1}], v7 offset:{off}"),
                Ins(f"ds_read_b64_tr_b16 v[{r+2}:{r+3}], v7 offset:{off+2560}")]
    def bload_fn(ks):
        b = BR + (ks % BS)*16
        return ([Ins(f"s_mov_b32 s28, {ks*1024}")],
                [Ins(f"buffer_load_dwordx4 v[{b+4*ct}:{b+4*ct+3}], v{15+ct}, s[12:15], s28 offen") for ct in range(4)])
    def dma_fn(st):
        L = [Ins(f"s_add_u32 m0, s26, {(st % NS)*ST}"), Ins(f"s_add_u32 s29, s27, {st*32*1280}")]
        D = [Ins(f"buffer_load_dwordx4 v{2+i}, s[8:11], s29 offen offset:{i*1024} lds") for i in range(4)]
        D.append(Ins(f"s_add_u32 m0, s26, {(st % NS)*ST + 4096}"))
        D.append(Ins(f"buffer_load_dwordx4 v6, s[8:11], s29 offen lds"))
        return L, D
    H = {}
    if stamps: e("s_memtime s[42:43]")
    NK = 12; DPF = 4; BPF = 3
    bh = {}
    for st in range(DPF):
        L, D = dma_fn(st); P.many(L); P.many(D); H[st] = D[-1]
        if st < BPF:
            L, D = bload_fn(st); P.many(L); P.many(D); bh[st] = D[-1]
    for t in range(5):
        e(f"s_mul_i32 s3, s21, 5"); e(f"s_add_u32 s3, s3, {t}"); e("s_lshr_b32 s31, s3, 1"); e("s_lshl_b32 s31, s31, 10")
        e("s_and_b32 s3, s3, 1"); e("s_lshl_b32 s3, s3, 3"); e("s_add_u32 s31, s31, s3")
        e(f"buffer_load_dwordx2 v[{XR+2*t}:{XR+2*t+1}], v8, s[12:15], s31 offen")
        e(f"buffer_load_dwordx4 v[{128+4*t}:{131+4*t}], v9, s[12:15], 0 offen offset:{t*64}")
    GOPT_b = GOPT['barrier']; GOPT['barrier'] = False
    H['b'] = bh
    P.wait_vm(H[0])
    PF = 4
    for n in range(PF):
        rr = tr_fn(n); P.many(rr); H.setdefault('tr', {})[n] = rr[-1]
    if stamps: e("s_memtime s[44:45]"); e("s_waitcnt lgkmcnt(0)")
    global GAP
    g0 = GAP; GAP = 2
    gemm_stream(P, NK, 5, 4, 1, acc_reg, AR, ASL, BR, BS, tr_fn, bload_fn, dma_fn, H, PF, BPF, DPF, NK, WG=1)
    GAP = g0; GOPT['barrier'] = GOPT_b
    if stamps: e("s_memtime s[46:47]")
    e("s_barrier")
    e("v_lshlrev_b32 v10, 4, v0")
    e("s_mul_i32 s3, s23, 20480"); e("v_add_u32 v11, s3, v10")
    for ct in range(4):
        for t in range(5):
            a = acc_reg(t, ct)
            e(f"ds_write_b128 v11, v[{a}:{a+3}] offset:{(ct*5+t)*1024}")
    e("s_waitcnt lgkmcnt(0)"); e("s_barrier")
    e("s_mul_i32 s3, s23, 5120"); e("v_add_u32 v11, s3, v10")
    e("v_add_u32 v13, 40960, v11")
    for sw in range(4):
        for t in range(5):
            r = 20 + (sw*5 + t)*4
            e(f"ds_read_b128 v[{r}:{r+3}], v{11 if sw < 2 else 13} offset:{(sw & 1)*20480 + t*1024}")
    for t in range(5):
        y = 20 + t*4
        for sw in range(1, 4):
            for i in range(4): e(f"v_add_f32 v{y+i}, v{y+i}, v{20+(sw*5+t)*4+i}")
        x = XR + 2*t
        e(f"v_lshlrev_b32 v148, 16, v{x}"); e(f"v_and_b32 v149, 0xffff0000, v{x}")
        e(f"v_lshlrev_b32 v150, 16, v{x+1}"); e(f"v_and_b32 v151, 0xffff0000, v{x+1}")
        for i in range(4): e(f"v_fma_f32 v{y+i}, v{y+i}, v{128+4*t+i}, v{148+i}")
        e(f"v_cvt_pk_bf16_f32 v{y}, v{y}, v{y+1}"); e(f"v_cvt_pk_bf16_f32 v{y+1}, v{y+2}, v{y+3}")
        e(f"buffer_store_dwordx2 v[{y}:{y+1}], v14, s[32:35], 0 offen offset:{t*32}")
    if stamps:
        e("s_waitcnt vmcnt(0)"); e("s_memtime s[48:49]")
        write_stamps(P, 5, 23, 12)
    e("K6_END:")
    e("s_endpgm")
    P.finalize()
    return P

def write_stamps(P, n, sw, sws):
    P.e("s_waitcnt lgkmcnt(0)")
    P.e(f"s_lshl_b32 s3, s2, 2"); P.e(f"s_add_u32 s3, s3, s{sw}"); P.e("s_lshl_b32 s3, s3, 6"); P.e(f"s_add_u32 s3, s3, {WS_STAMP}")
    for i in range(n):
        P.e(f"v_mov_b32 v1, s{40+2*i}")
        P.e(f"v_mov_b32 v2, s3")
        P.e(f"buffer_store_dword v1, v2, s[{sws}:{sws+3}], 0 offen offset:{4*i}")
        P.e("s_waitcnt vmcnt(0)")

if __name__ == "__main__":
    from k2gen import wrap
    k3 = gen_k3(stamps=True)
    print("k3 est", k3.estimate(), len(k3.final))
    open("k3.s", "w").write(wrap([("k3_kernel", k3.text(), 256, 256)], [("k3_kernel", 256, 256, 122880)]))
    k5 = gen_k5(stamps=True); print("k5 est", k5.estimate(), len(k5.final))
    open("k5.s", "w").write(wrap([("k5_kernel", k5.text(), 256, 256)], [("k5_kernel", 256, 256, 61440)]))
    k6 = gen_k6(stamps=True); print("k6 est", k6.estimate(), len(k6.final))
    open("k6.s", "w").write(wrap([("k6_kernel", k6.text(), 256, 256)], [("k6_kernel", 256, 256, 122880)]))
    for nm, o in [] and [("a", dict(dma=False, waits=False)), ("b", dict(bload=False, waits=False)), ("c", dict(waits=False)), ("d", dict(waits=False, barrier=False)), ("e", dict(waits=False, tr=False))]:
        GOPT.update(dict(dma=True, bload=True, tr=True, barrier=True, waits=True)); GOPT.update(o)
        k = gen_k3(stamps=True, auto=GOPT['waits'])
        open(f"k3{nm}.s", "w").write(wrap([("k3_kernel", k.text(), 256, 256)], [("k3_kernel", 256, 256, 122880)]))
```

```python
from asmgen import *
from k2gen import WS_MOD, WS_HF, WS_OF, WS_PART, WS_X1, WS_H2F, WS_ACT, WS_BYTES
C_SCALE = 192**-0.5 * 1.4426950408889634
import struct
def f2u(x): return struct.unpack('<I', struct.pack('<f', x))[0]

NSPLIT = 4

def srd(P, s, lo, hi, nbytes):
    P.e(f"s_mov_b32 s{s}, s{lo}"); P.e(f"s_mov_b32 s{s+1}, s{hi}")
    P.e(f"s_mov_b32 s{s+2}, {nbytes}"); P.e(f"s_mov_b32 s{s+3}, 0x20000")

def gen_k0(prefetch=True):
    P = Prog(); e = P.e
    NWG = 30*NSPLIT
    e(f"s_cmp_ge_u32 s2, {NWG}"); e("s_cbranch_scc1 K0_END")
    e("s_load_dwordx4 s[4:7], s[0:1], 72")
    e("s_load_dwordx2 s[16:17], s[0:1], 104")
    e("s_load_dwordx2 s[18:19], s[0:1], 24")
    e(f"s_mul_i32 s3, s2, {(65536+29)//30}"); e("s_lshr_b32 s20, s3, 16")
    e("s_mul_i32 s3, s20, 30"); e("s_sub_u32 s21, s2, s3")
    e("v_and_b32 v1, 15, v0")
    e("v_lshrrev_b32 v2, 4, v0")
    e(f"s_mul_i32 s3, s20, {640//NSPLIT}")
    e("v_add_u32 v3, s3, v2")
    e("v_lshlrev_b32 v4, 1, v3")
    e("s_mov_b32 s22, 7680")
    e("v_mul_lo_u32 v5, v3, s22")
    e("v_lshlrev_b32 v6, 4, v1")
    e("v_add_u32 v5, v5, v6")
    e("s_lshl_b32 s3, s21, 8"); e("v_add_u32 v5, s3, v5")
    e("s_waitcnt lgkmcnt(0)")
    srd(P, 8, 4, 5, 1280); srd(P, 12, 6, 7, 640*3840*2); srd(P, 24, 16, 17, WS_BYTES); srd(P, 28, 18, 19, 7864320)
    NR = 160//16
    for i in range(NR):
        e(f"buffer_load_ushort v{10+i}, v4, s[8:11], 0 offen offset:{32*i}")
    e(f"s_mov_b32 s23, 0")
    for i in range(NR):
        e(f"s_mov_b32 s23, {16*7680*i}")
        e(f"buffer_load_dwordx4 v[{24+4*i}:{27+4*i}], v5, s[12:15], s23 offen")
    if prefetch:
        per = 7864320 // NWG
        e(f"s_mul_i32 s3, s2, {per}")
        e("v_lshlrev_b32 v7, 6, v0"); e("v_add_u32 v7, s3, v7")
        for off in range(0, per, 16384):
            e(f"s_mov_b32 s23, {off}")
            e(f"buffer_load_dword v8, v7, s[28:31], s23 offen")
    for i in range(NR):
        r = 10+i
        e(f"v_lshlrev_b32 v{r}, 16, v{r}")
        e(f"v_mul_f32 v9, {f2u(-1.4426950408889634)}, v{r}")
        e("v_exp_f32 v9, v9")
        e("v_add_f32 v9, 1.0, v9")
        e("v_rcp_f32 v9, v9")
        e(f"v_mul_f32 v{r}, v{r}, v9")
        e(f"v_cvt_pk_bf16_f32 v{r}, v{r}, v{r}")
        e(f"v_and_b32 v{r}, 0xffff0000, v{r}")
    for j in range(8): e(f"v_mov_b32 v{70+j}, 0")
    for i in range(NR):
        for q in range(4):
            w = 24+4*i+q
            e(f"v_lshlrev_b32 v68, 16, v{w}")
            e(f"v_and_b32 v69, 0xffff0000, v{w}")
            e(f"v_fmac_f32 v{70+2*q}, v{10+i}, v68")
            e(f"v_fmac_f32 v{71+2*q}, v{10+i}, v69")
    e("v_lshlrev_b32 v6, 5, v1")
    e("v_lshlrev_b32 v7, 9, v2")
    e("v_add_u32 v6, v6, v7")
    e("ds_write_b128 v6, v[70:73]"); e("ds_write_b128 v6, v[74:77] offset:16")
    e("s_waitcnt lgkmcnt(0)"); e("s_barrier")
    e("v_cmp_gt_u32 vcc, 128, v0")
    e("s_and_saveexec_b64 s[32:33], vcc")
    e("s_cbranch_execz K0_END")
    e("v_lshlrev_b32 v6, 2, v0")
    for r in range(16): e(f"ds_read_b32 v{30+r}, v6 offset:{512*r}")
    for r in range(1, 16): e(f"v_add_f32 v30, v30, v{30+r}")
    e("s_mul_i32 s3, s20, 15360"); e("s_lshl_b32 s23, s21, 9"); e("s_add_u32 s3, s3, s23"); e(f"s_add_u32 s3, s3, {WS_MOD}")
    e("v_add_u32 v6, s3, v6")
    e("buffer_store_dword v30, v6, s[24:27], 0 offen")
    e("K0_END:")
    e("s_endpgm")
    P.finalize()
    return P

def load_mod_to_lds(P, idx_list, scale_fn, tid='v0', tbase=20, lds_base=0, store_idx={}):
    e = P.e
    e(f"v_lshlrev_b32 v{tbase}, 4, {tid}")
    r = tbase+4
    for n, idx in enumerate(idx_list):
        for p in range(NSPLIT):
            off = WS_MOD + (p*3840 + idx*640)*4
            e(f"s_mov_b32 s34, {off}")
            e(f"buffer_load_dwordx4 v[{r+(n*NSPLIT+p)*4}:{r+(n*NSPLIT+p)*4+3}], v{tbase}, s[24:27], s34 offen")
    for n, idx in enumerate(idx_list):
        b = r + n*NSPLIT*4
        for p in range(1, NSPLIT):
            for i in range(4): e(f"v_add_f32 v{b+i}, v{b+i}, v{b+4*p+i}")
        for i in range(4):
            e(f"v_cvt_pk_bf16_f32 v{b+i}, v{b+i}, v{b+i}")
            e(f"v_and_b32 v{b+i}, 0xffff0000, v{b+i}")
            scale_fn(P, n, b+i)
        if n in store_idx:
            e(f"s_mov_b32 s34, {store_idx[n]}")
            e(f"buffer_store_dwordx4 v[{b}:{b+3}], v{tbase}, s[24:27], s34 offen")
        else:
            e(f"ds_write_b128 v{tbase}, v[{b}:{b+3}] offset:{lds_base + n*4096}")

def row_reduce(P, val, red_base, tmp, addr_w, addr_r):
    e = P.e
    e(f"ds_write_b32 v{addr_w}, v{val} offset:{red_base}")
    e("s_waitcnt lgkmcnt(0)"); e("s_barrier")
    for q in range(4): e(f"ds_read_b128 v[{tmp+4*q}:{tmp+4*q+3}], v{addr_r} offset:{red_base+16*q}")
    e(f"v_add_f32 v{val}, v{tmp}, v{tmp+1}")
    for i in range(2, 16): e(f"v_add_f32 v{val}, v{val}, v{tmp+i}")

def ln_common(P, X, n, a1_lds, a0_lds, out_regs, w_sgpr, eps=1e-5):
    e = P.e
    RED0, RED1 = 12288, 13312
    e("v_lshlrev_b32 v4, 6, v2"); e("v_lshlrev_b32 v5, 2, v3"); e("v_add_u32 v5, v4, v5")
    e(f"s_lshl_b32 s3, s{w_sgpr}, 4"); e("v_add_u32 v5, s3, v5")
    e(f"v_add_f32 v6, v{X}, v{X+1}")
    for i in range(2, n): e(f"v_add_f32 v6, v6, v{X+i}")
    T = 200
    row_reduce(P, 6, RED0, T, 5, 4)
    e(f"v_mul_f32 v6, {f2u(1/640)}, v6")
    for i in range(n): e(f"v_sub_f32 v{X+i}, v{X+i}, v6")
    e(f"v_mul_f32 v7, v{X}, v{X}")
    for i in range(1, n): e(f"v_fmac_f32 v7, v{X+i}, v{X+i}")
    row_reduce(P, 7, RED1, T, 5, 4)
    e(f"v_mul_f32 v7, {f2u(1/640)}, v7")
    e(f"v_add_f32 v7, {f2u(eps)}, v7")
    e("v_rsq_f32 v7, v7")
    e(f"s_mul_i32 s3, s{w_sgpr}, {5*32*4}")
    e("v_lshlrev_b32 v8, 4, v3"); e("v_add_u32 v8, s3, v8")
    for j in range(5):
        for hh in range(2):
            off = j*128 + hh*64
            e(f"ds_read_b128 v[{T}:{T+3}], v8 offset:{a1_lds+off}")
            e(f"ds_read_b128 v[{T+4}:{T+7}], v8 offset:{a0_lds+off}")
            b = X + j*8 + hh*4
            for i in range(4):
                e(f"v_mul_f32 v{b+i}, v{b+i}, v7")
                e(f"v_fma_f32 v{b+i}, v{b+i}, v{T+i}, v{T+4+i}")
            e(f"v_cvt_pk_bf16_f32 v{out_regs+j*4+hh*2}, v{b}, v{b+1}")
            e(f"v_cvt_pk_bf16_f32 v{out_regs+j*4+hh*2+1}, v{b+2}, v{b+3}")

def load_x_pieces(P, X, raw, srd_x):
    e = P.e
    for j in range(5):
        for hh in range(2):
            e(f"buffer_load_dwordx2 v[{raw+(j*2+hh)*2}:{raw+(j*2+hh)*2+1}], v9, s[{srd_x}:{srd_x+3}], 0 offen offset:{j*64+hh*32}")

def unpack_x(P, X, raw):
    e = P.e
    for j in range(10):
        for q in range(2):
            e(f"v_lshlrev_b32 v{X+j*4+q*2}, 16, v{raw+j*2+q}")
            e(f"v_and_b32 v{X+j*4+q*2+1}, 0xffff0000, v{raw+j*2+q}")

def gen_k1(prefetch=True):
    P = Prog(); e = P.e
    e("s_cmp_ge_u32 s2, 128"); e("s_cbranch_scc1 K1_END")
    e("s_load_dwordx2 s[4:5], s[0:1], 0")
    e("s_load_dwordx2 s[16:17], s[0:1], 104")
    e("v_lshrrev_b32 v1, 6, v0"); e("v_and_b32 v10, 63, v0")
    e("v_readfirstlane_b32 s20, v1")
    e("v_and_b32 v2, 15, v10"); e("v_lshrrev_b32 v3, 4, v10")
    e("s_lshl_b32 s3, s2, 4"); e("v_add_u32 v9, s3, v2"); e("v_mul_u32_u24 v9, 1280, v9")
    e("v_lshlrev_b32 v11, 3, v3"); e("v_add_u32 v9, v9, v11")
    e("s_mul_i32 s3, s20, 320"); e("v_add_u32 v9, s3, v9")
    e("s_waitcnt lgkmcnt(0)")
    srd(P, 8, 4, 5, 2048*1280); srd(P, 24, 16, 17, WS_BYTES)
    X = 100; RAW = 60
    load_x_pieces(P, X, RAW, 8)
    def sc(P, n, r):
        if n == 0:
            P.e(f"v_mul_f32 v{r}, {f2u(C_SCALE)}, v{r}")
        else:
            P.e(f"v_add_f32 v{r}, 1.0, v{r}")
            P.e(f"v_mul_f32 v{r}, {f2u(C_SCALE)}, v{r}")
    load_mod_to_lds(P, [0, 1], sc)
    unpack_x(P, X, RAW)
    OUT = 160
    ln_common(P, X, 40, 4096, 0, OUT, 20)
    e("s_mul_i32 s3, s2, 20480"); e("s_mul_i32 s21, s20, 5120"); e("s_add_u32 s3, s3, s21"); e(f"s_add_u32 s3, s3, {WS_HF}")
    e("v_lshlrev_b32 v11, 4, v10"); e("v_add_u32 v11, s3, v11")
    for j in range(5):
        e(f"buffer_store_dwordx4 v[{OUT+4*j}:{OUT+4*j+3}], v11, s[24:27], 0 offen offset:{j*1024 if j<4 else 0}" if j < 4 else f"s_mov_b32 s21, 4096")
    e(f"buffer_store_dwordx4 v[{OUT+16}:{OUT+19}], v11, s[24:27], s21 offen")
    e("K1_END:")
    e("s_endpgm")
    P.finalize()
    return P

def gen_k4(part_bf16=False, nsplit=4):
    P = Prog(); e = P.e
    e("s_cmp_ge_u32 s2, 128"); e("s_cbranch_scc1 K4_END")
    e("s_load_dwordx2 s[4:5], s[0:1], 0")
    e("s_load_dwordx2 s[16:17], s[0:1], 104")
    e("v_lshrrev_b32 v1, 6, v0"); e("v_and_b32 v10, 63, v0")
    e("v_readfirstlane_b32 s20, v1")
    e("v_and_b32 v2, 15, v10"); e("v_lshrrev_b32 v3, 4, v10")
    e("s_lshl_b32 s3, s2, 4"); e("v_add_u32 v9, s3, v2"); e("v_mul_u32_u24 v9, 1280, v9")
    e("v_lshlrev_b32 v11, 3, v3"); e("v_add_u32 v9, v9, v11")
    e("s_mul_i32 s3, s20, 320"); e("v_add_u32 v9, s3, v9")
    e("s_mul_i32 s3, s2, 40960"); e("s_mul_i32 s21, s20, 10240"); e("s_add_u32 s3, s3, s21"); e(f"s_add_u32 s3, s3, {WS_PART}")
    e("v_lshlrev_b32 v12, 4, v10"); e("v_add_u32 v12, s3, v12")
    e("s_waitcnt lgkmcnt(0)")
    srd(P, 8, 4, 5, 2048*1280); srd(P, 24, 16, 17, WS_BYTES)
    X = 100; RAW = 60
    load_x_pieces(P, X, RAW, 8)
    def sc(P, n, r):
        if n == 2: P.e(f"v_add_f32 v{r}, 1.0, v{r}")
    load_mod_to_lds(P, [2, 3, 4, 5], sc, tbase=160, store_idx={3: WS_MOD + 0x20000})
    ACC = 20
    for p in range(nsplit):
        dst = ACC if p == 0 else 210
        for j in range(10):
            o = p*128*40960 + j*1024
            e(f"s_mov_b32 s21, {o}")
            e(f"buffer_load_dwordx4 v[{dst+4*j}:{dst+4*j+3}], v12, s[24:27], s21 offen")
        if p > 0:
            for i in range(40): e(f"v_add_f32 v{ACC+i}, v{ACC+i}, v{210+i}")
    unpack_x(P, X, RAW)
    e("s_waitcnt lgkmcnt(0)"); e("s_barrier")
    e(f"s_mul_i32 s3, s20, 640"); e("v_lshlrev_b32 v8, 4, v3"); e("v_add_u32 v8, s3, v8")
    T = 200
    OUTX = 160
    for j in range(10):
        e(f"ds_read_b128 v[{T}:{T+3}], v8 offset:{j*64}")
        for i in range(4):
            e(f"v_fma_f32 v{X+j*4+i}, v{ACC+j*4+i}, v{T+i}, v{X+j*4+i}")
        e(f"v_cvt_pk_bf16_f32 v{OUTX+j*2}, v{X+j*4}, v{X+j*4+1}")
        e(f"v_cvt_pk_bf16_f32 v{OUTX+j*2+1}, v{X+j*4+2}, v{X+j*4+3}")
        for q in range(2):
            e(f"v_lshlrev_b32 v{X+j*4+q*2}, 16, v{OUTX+j*2+q}")
            e(f"v_and_b32 v{X+j*4+q*2+1}, 0xffff0000, v{OUTX+j*2+q}")
    e("s_mul_i32 s3, s2, 20480"); e("s_mul_i32 s21, s20, 5120"); e("s_add_u32 s3, s3, s21")
    e("v_lshlrev_b32 v11, 4, v10"); e("v_add_u32 v11, s3, v11")
    for j in range(5):
        e(f"s_mov_b32 s21, {WS_X1 + j*1024}")
        e(f"buffer_store_dwordx4 v[{OUTX+4*j}:{OUTX+4*j+3}], v11, s[24:27], s21 offen")
    OUT = 20
    ln_common(P, X, 40, 2*4096, 1*4096, OUT, 20)
    for j in range(5):
        e(f"s_mov_b32 s21, {WS_H2F + j*1024}")
        e(f"buffer_store_dwordx4 v[{OUT+4*j}:{OUT+4*j+3}], v11, s[24:27], s21 offen")
    e("K4_END:")
    e("s_endpgm")
    P.finalize()
    return P

if __name__ == "__main__":
    from k2gen import wrap
    k0 = gen_k0(); k1 = gen_k1(); k4 = gen_k4()
    open("k01.s", "w").write(wrap([("k0_kernel", k0.text(), 256, 256), ("k1_kernel", k1.text(), 256, 256)],
                                  [("k0_kernel", 120, 256, 16384), ("k1_kernel", 128, 256, 16384)]))
    open("k4.s", "w").write(wrap([("k4_kernel", k4.text(), 256, 256)], [("k4_kernel", 128, 256, 16384)]))
```

```python
import sys, io, contextlib
import k2gen, ksmall, kgemm
from asmgen import *
from k2gen import *

HDR = open('adaLN_cond__sliding_block_cached__glu_gated_reglu__prompt.s.ref').read().split('; Override launch')[0]

def gen_k2(stamps=False):
    k2gen.OPT.update(dict(dma=True, hload=True, barrier=True, tr=True, pfcode=True, p2=True))
    P = Prog()
    H = {'wq': {}, 'k': {}, 'v': {}}
    prologue(P, stamps=False)
    code_prefetch(P, 49152)
    if stamps: stamp(P, 0)
    phase1_pro(P, H)
    if stamps: stamp(P, 1)
    phase1(P, H)
    if stamps: stamp(P, 2)
    q_convert(P)
    P.many(phase3_setup())
    if stamps: stamp(P, 3)
    phase2(P, H)
    if stamps: stamp(P, 4)
    phase3(P, H)
    if stamps:
        stamp(P, 5); P.e("s_waitcnt vmcnt(0)"); stamp(P, 6); write_stamps(P, 7)
    P.e("K2_END:")
    P.e("s_endpgm")
    P.finalize(report_nops=False)
    return P

def build(fname):
    with contextlib.redirect_stdout(io.StringIO()):
        k0 = ksmall.gen_k0(); k1 = ksmall.gen_k1(); k2 = gen_k2(); k3 = kgemm.gen_k3(); k4 = ksmall.gen_k4(); k5 = kgemm.gen_k5(); k6 = kgemm.gen_k6()
    ks = [("k0_kernel", k0.text(), 256, 256), ("k1_kernel", k1.text(), 256, 256), ("k2_kernel", k2.text(), 512, 256),
          ("k3_kernel", k3.text(), 256, 256), ("k4_kernel", k4.text(), 256, 256), ("k5_kernel", k5.text(), 256, 256), ("k6_kernel", k6.text(), 256, 256)]
    ls = [("k0_kernel", 120, 256, 16384), ("k1_kernel", 128, 256, 16384), ("k2_kernel", 256, 256, LDS_BYTES),
          ("k3_kernel", 256, 256, 122880), ("k4_kernel", 128, 256, 16384), ("k5_kernel", 256, 256, 61440), ("k6_kernel", 256, 256, 122880)]
    s = HDR + wrap(ks, ls)
    open(fname, "w").write(s)
    print(fname, len(s), "bytes")

if __name__ == "__main__":
    build(sys.argv[1] if len(sys.argv) > 1 else "adaLN_cond__sliding_block_cached__glu_gated_reglu__prompt.s")
```

```python
import re

REG_RE = re.compile(r'^(-|\|)?([vas])(\d+)\|?$')
RNG_RE = re.compile(r'^(-)?([vas])\[(\d+):(\d+)\]$')


def parse_regs(tok):
    tok = tok.strip()
    m = REG_RE.match(tok)
    if m:
        return [(m.group(2), int(m.group(3)))]
    m = RNG_RE.match(tok)
    if m:
        return [(m.group(2), i) for i in range(int(m.group(3)), int(m.group(4)) + 1)]
    if tok in ('vcc', 'exec', 'm0', 'scc'):
        return [(tok, 0)]
    if tok in ('vcc_lo', 'vcc_hi'):
        return [('vcc', 0)]
    if tok in ('exec_lo', 'exec_hi'):
        return [('exec', 0)]
    return []


def V(i, n=1):
    return f"v{i}" if n == 1 else f"v[{i}:{i+n-1}]"


def A(i, n=1):
    return f"a{i}" if n == 1 else f"a[{i}:{i+n-1}]"


def S(i, n=1):
    return f"s{i}" if n == 1 else f"s[{i}:{i+n-1}]"


def R(r, n=1):
    return V(r[1], n) if r[0] == 'v' else A(r[1], n)


TRANS = ('v_exp_f32', 'v_log_f32', 'v_rcp_f32', 'v_rsq_f32', 'v_sqrt_f32', 'v_sin_f32', 'v_cos_f32')


class Ins:
    __slots__ = ('text', 'op', 'kind', 'rd', 'wr', 'meta', 'srcc', 'srcab', 'tag')

    def __init__(self, text, tag=None):
        self.text = text
        self.tag = tag
        self.meta = {}
        self.srcc = []
        self.srcab = []
        t = text.split(';')[0].strip()
        if t.endswith(':'):
            self.op = 'label'; self.kind = 'label'; self.rd = []; self.wr = []
            return
        parts = t.split(None, 1)
        op = parts[0]
        self.op = op
        rest = parts[1] if len(parts) > 1 else ''
        ops = []
        cur = ''
        depth = 0
        for ch in rest:
            if ch == '[': depth += 1
            if ch == ']': depth -= 1
            if ch == ',' and depth == 0:
                ops.append(cur.strip()); cur = ''
            else:
                cur += ch
        if cur.strip():
            ops.append(cur.strip())
        mods = ''
        if ops:
            sp = ops[-1].split(None, 1)
            ops[-1] = sp[0]
            mods = sp[1] if len(sp) > 1 else ''
        regs = [parse_regs(o) for o in ops]
        rd, wr = [], []
        kind = None
        if op.startswith('v_mfma'):
            kind = 'mfma32' if '32x32' in op else 'mfma16'
            wr = regs[0]
            self.srcab = regs[1] + regs[2]
            self.srcc = regs[3] if len(regs) > 3 else []
            rd = self.srcab + self.srcc
        elif op.startswith('v_cmp'):
            kind = 'valu'
            wr = regs[0]
            for r in regs[1:]: rd += r
            if op.startswith('v_cmpx'): wr = wr + [('exec', 0)]
        elif op.startswith('v_permlane') and 'swap' in op:
            kind = 'perm'
            wr = regs[0] + regs[1]; rd = regs[0] + regs[1]
        elif op.startswith('v_readfirstlane') or op.startswith('v_readlane'):
            kind = 'valu'; wr = regs[0]
            for r in regs[1:]: rd += r
            self.meta['readlane'] = True
        elif op.startswith('v_'):
            kind = 'trans' if op.replace('_e32', '').replace('_e64', '') in TRANS else 'valu'
            wr = list(regs[0])
            for r in regs[1:]: rd += r
            base = op.replace('_e32', '').replace('_e64', '')
            if base in ('v_fmac_f32', 'v_dot2c_f32_bf16', 'v_pk_fmac_f16', 'v_writelane_b32'):
                rd += regs[0]
            if base in ('v_add_co_u32', 'v_sub_co_u32', 'v_addc_co_u32', 'v_subb_co_u32'):
                wr = regs[0] + regs[1]
                rd = []
                for r in regs[2:]: rd += r
            if base == 'v_cndmask_b32' and len(regs) == 3:
                rd += [('vcc', 0)]
            if 'dpp' in op or 'row_' in mods or 'quad_perm' in mods:
                self.meta['dpp'] = True
                rd += regs[0]
        elif op.startswith('ds_read') or op.startswith('ds_bpermute') or op.startswith('ds_swizzle'):
            kind = 'ds_read'; wr = regs[0]
            for r in regs[1:]: rd += r
        elif op.startswith('ds_write'):
            kind = 'ds_write'
            for r in regs: rd += r
        elif op.startswith('buffer_load') or op.startswith('global_load'):
            if ' lds' in (' ' + mods) or op.startswith('global_load_lds'):
                kind = 'dma'
                for r in regs: rd += r
                rd += [('m0', 0)]
            else:
                kind = 'vload'; wr = regs[0]
                for r in regs[1:]: rd += r
        elif op.startswith('buffer_store') or op.startswith('global_store'):
            kind = 'vstore'
            for r in regs: rd += r
            if op.startswith('buffer_store'):
                self.meta['data'] = regs[0]
            else:
                self.meta['data'] = regs[1]
            self.meta['wide'] = op.endswith('x4') or op.endswith('x3')
        elif op.startswith('buffer_atomic') or op.startswith('global_atomic'):
            kind = 'vstore'
            for r in regs: rd += r
            self.meta['data'] = []
            self.meta['wide'] = False
            if 'sc0' in mods:
                kind = 'vload'; wr = regs[0]
        elif op.startswith('buffer_inv') or op.startswith('buffer_wbl2'):
            kind = 'vstore'; self.meta['data'] = []; self.meta['wide'] = False
        elif op.startswith('s_load') or op.startswith('s_memtime') or op.startswith('s_memrealtime') or op.startswith('s_buffer_load'):
            kind = 'smem'; wr = regs[0]
            for r in regs[1:]: rd += r
        elif op == 's_waitcnt':
            kind = 'wait'
        elif op == 's_barrier':
            kind = 'barrier'
        elif op == 's_nop':
            kind = 'nop'; self.meta['n'] = int(ops[0], 0) + 1
        elif op.startswith('s_cbranch') or op == 's_branch' or op == 's_endpgm' or op.startswith('s_setpc'):
            kind = 'branch'
        elif op.startswith('s_cmp'):
            kind = 'salu'; wr = [('scc', 0)]
            for r in regs: rd += r
        elif op in ('s_setprio', 's_sleep'):
            kind = 'salu'
        elif op.startswith('s_'):
            kind = 'salu'; wr = list(regs[0]) if regs else []
            for r in regs[1:]: rd += r
            if 'saveexec' in op:
                wr += [('exec', 0)]; rd += [('exec', 0)]
            if op in ('s_addk_i32', 's_mulk_i32'):
                rd += regs[0]
        else:
            raise ValueError("unknown op " + text)
        self.kind = kind
        self.rd = rd
        self.wr = wr

    def cost(self):
        k = self.kind
        if k in ('label',): return 0
        if k in ('trans', 'perm'): return 8
        if k in ('mfma16', 'mfma32'): return 8
        if k == 'nop': return 4 * self.meta['n']
        return 4


def NT(text):
    i = Ins(text); i.meta['notrack'] = True
    return i


class WaitVM:
    def __init__(self, h): self.h = h
    kind = 'waitvm'


class WaitLGKM:
    def __init__(self, h): self.h = h
    kind = 'waitlgkm'


class Prog:
    def __init__(self):
        self.items = []

    def e(self, text, tag=None):
        if isinstance(text, (Ins, WaitVM, WaitLGKM)):
            self.items.append(text); return text
        i = Ins(text, tag)
        self.items.append(i)
        return i

    def many(self, lst):
        for x in lst: self.e(x)

    def wait_vm(self, h):
        self.items.append(WaitVM(h))

    def finalize(self, auto_wait=True, verbose=False, report_nops=True):
        out = []
        vm = []
        lg = []
        smem_out = False
        pend = {}
        nwait = 0

        def emit_wait(vmn=None, lgn=None):
            nonlocal nwait
            s = []
            if vmn is not None: s.append(f"vmcnt({vmn})")
            if lgn is not None: s.append(f"lgkmcnt({lgn})")
            if not s: return
            out.append(Ins("s_waitcnt " + " ".join(s)))
            nwait += 1

        def retire_vm(n):
            while len(vm) > n:
                o = vm.pop(0)
                for r in o.wr:
                    if pend.get(r, (None, None))[1] is o: del pend[r]

        def retire_lg(n):
            while len(lg) > n:
                o = lg.pop(0)
                for r in o.wr:
                    if pend.get(r, (None, None))[1] is o: del pend[r]

        for it in self.items:
            if isinstance(it, WaitVM):
                h = it.h
                if h in vm:
                    n = len(vm) - 1 - vm.index(h)
                    assert n <= 63, "vmcnt overflow"
                    emit_wait(vmn=n); retire_vm(n)
                continue
            if isinstance(it, WaitLGKM):
                h = it.h
                if h in lg:
                    n = len(lg) - 1 - lg.index(h)
                    emit_wait(lgn=min(n, 15)); retire_lg(min(n, 15))
                continue
            k = it.kind
            if k == 'label' or k == 'branch':
                if it.meta.get('keep'):
                    out.append(it); continue
                if pend and it.op != 's_endpgm':
                    needv = any(p[0] == 'vm' for p in pend.values())
                    needl = any(p[0] in ('lg', 'sm') for p in pend.values())
                    emit_wait(vmn=0 if needv else None, lgn=0 if needl else None)
                    if needv: retire_vm(0)
                    if needl: retire_lg(0)
                out.append(it)
                continue
            if k == 'wait':
                m = re.search(r'vmcnt\((\d+)\)', it.text)
                if m: retire_vm(int(m.group(1)))
                m = re.search(r'lgkmcnt\((\d+)\)', it.text)
                if m:
                    retire_lg(int(m.group(1)))
                    if int(m.group(1)) == 0: smem_out = False
                out.append(it)
                continue
            if auto_wait and not it.meta.get('notrack'):
                vmn = None; lgn = None
                for r in list(it.rd) + list(it.wr):
                    p = pend.get(r)
                    if p is None: continue
                    if p[0] == 'vm':
                        n = len(vm) - 1 - vm.index(p[1])
                        vmn = n if vmn is None else min(vmn, n)
                    elif p[0] == 'lg':
                        n = len(lg) - 1 - lg.index(p[1])
                        lgn = n if lgn is None else min(lgn, n)
                    elif p[0] == 'sm':
                        lgn = 0
                if vmn is not None or lgn is not None:
                    if vmn is not None: vmn = min(vmn, 63)
                    if lgn is not None:
                        lgn = min(lgn, 15)
                        if smem_out: lgn = 0
                    emit_wait(vmn, lgn)
                    if vmn is not None: retire_vm(vmn)
                    if lgn is not None:
                        retire_lg(lgn)
                        if lgn == 0:
                            smem_out = False
                            for r in [r for r, p in pend.items() if p[0] == 'sm']: del pend[r]
            out.append(it)
            if k in ('vload', 'dma', 'vstore'):
                vm.append(it)
                if not it.meta.get('notrack'):
                    for r in it.wr: pend[r] = ('vm', it)
            elif k in ('ds_read', 'ds_write'):
                lg.append(it)
                for r in it.wr: pend[r] = ('lg', it)
            elif k == 'smem':
                smem_out = True
                for r in it.wr: pend[r] = ('sm', it)
        out = self._hazards(out, report_nops)
        self.final = out
        return out

    def _hazards(self, ins, report):
        out = []
        pos = 0
        last_valu_w = {}
        last_trans_w = {}
        last_mfma_w = {}
        last_mfma_c = {}
        last_salu_m0 = -100
        last_valu_sg = {}
        last_store_data = {}
        last_valu_exec = -100
        nops = 0
        for it in ins:
            k = it.kind
            if k == 'label':
                out.append(it); continue
            need = 0

            def req(p, n):
                nonlocal need
                need = max(need, p + n + 1)

            isvalu = k in ('valu', 'trans', 'perm')
            ismfma = k in ('mfma16', 'mfma32')
            ismem = k in ('ds_read', 'ds_write', 'vload', 'dma', 'vstore')
            if ismfma:
                for r in it.rd:
                    if r in last_valu_w: req(last_valu_w[r], 2)
                for r in it.srcab:
                    if r in last_mfma_w:
                        p, ps, d = last_mfma_w[r]; req(p, {4: 8, 8: 12}[ps])
                for r in it.srcc:
                    if r in last_mfma_w:
                        p, ps, d = last_mfma_w[r]
                        mine = 4 if k == 'mfma16' else 8
                        if tuple(it.srcc) == d and ps == mine: pass
                        else: req(p, {4: 6, 8: 10}[ps])
                for r in it.wr:
                    if r in last_mfma_w and r not in it.srcc:
                        p, ps, d = last_mfma_w[r]; req(p, {4: 6, 8: 10}[ps])
                req(last_valu_exec, 4)
            if isvalu or ismem:
                regs = list(it.rd) + list(it.wr)
                for r in regs:
                    if r in last_mfma_w:
                        p, ps, d = last_mfma_w[r]; req(p, {4: 8, 8: 12}[ps])
            if isvalu:
                for r in it.wr:
                    if r in last_mfma_c:
                        p, ps = last_mfma_c[r]; req(p, {4: 3, 8: 7}[ps])
                    if r in last_store_data: req(last_store_data[r], 2)
                if k != 'trans':
                    for r in it.rd:
                        if r in last_trans_w: req(last_trans_w[r], 1)
                if k == 'perm' or it.meta.get('dpp'):
                    for r in it.rd:
                        if r in last_valu_w: req(last_valu_w[r], 2)
                    if it.meta.get('dpp'): req(last_valu_exec, 5)
                if it.meta.get('readlane'):
                    for r in it.rd:
                        if r in last_valu_w: req(last_valu_w[r], 1)
                        if r in last_valu_sg: req(last_valu_sg[r], 4)
                for r in it.rd:
                    if r in last_valu_sg: req(last_valu_sg[r], 2)
            if k in ('vload', 'ds_read'):
                for r in it.wr:
                    if r in last_store_data: req(last_store_data[r], 1)
            if k in ('vload', 'dma', 'vstore'):
                for r in it.rd:
                    if r in last_valu_sg: req(last_valu_sg[r], 5)
                if k == 'dma': req(last_salu_m0, 1)
            if k in ('salu', 'branch'):
                for r in it.rd:
                    if r in last_valu_sg: req(last_valu_sg[r], 4)
                if k == 'branch' and 'vcc' in it.op and ('vcc', 0) in last_valu_sg:
                    req(last_valu_sg[('vcc', 0)], 5)
                if k == 'branch' and 'exec' in it.op:
                    req(last_valu_exec, 5)
            if need > pos:
                n = need - pos
                nops += n
                if report:
                    print(f"  [hazard] inserting {n} nop states before: {it.text}")
                while n > 0:
                    q = min(n, 16)
                    out.append(Ins(f"s_nop {q-1}"))
                    n -= q
                pos = need
            out.append(it)
            if isvalu:
                for r in it.wr:
                    if r[0] in ('v', 'a'):
                        last_valu_w[r] = pos
                        if k == 'trans': last_trans_w[r] = pos
                        else: last_trans_w.pop(r, None)
                        last_mfma_w.pop(r, None)
                    elif r[0] in ('s', 'vcc'):
                        last_valu_sg[r] = pos
                    elif r[0] == 'exec':
                        last_valu_exec = pos
            if ismfma:
                ps = 4 if k == 'mfma16' else 8
                d = tuple(it.wr)
                for r in it.wr:
                    last_mfma_w[r] = (pos, ps, d)
                    last_valu_w.pop(r, None); last_trans_w.pop(r, None)
                for r in it.srcc: last_mfma_c[r] = (pos, ps)
            if k in ('vload', 'ds_read'):
                for r in it.wr:
                    last_valu_w.pop(r, None); last_trans_w.pop(r, None); last_mfma_w.pop(r, None)
            if k == 'salu':
                if ('m0', 0) in it.wr: last_salu_m0 = pos
                for r in it.wr:
                    last_valu_sg.pop(r, None)
            if k == 'smem':
                for r in it.wr: last_valu_sg.pop(r, None)
            if k == 'vstore' and it.meta.get('wide'):
                for r in it.meta['data']: last_store_data[r] = pos
            pos += it.meta['n'] if k == 'nop' else 1
        self.nops = nops
        return out

    def text(self):
        lines = []
        for it in self.final:
            lines.append(it.text if it.kind == 'label' else "  " + it.text)
        return "\n".join(lines) + "\n"

    def estimate(self, lo=0, hi=None):
        t = 0; pipe = 0; nm = 0; busy = 0
        for it in self.final[lo:hi]:
            k = it.kind
            if k in ('mfma16', 'mfma32'):
                d = 16 if k == 'mfma16' else 32
                st = max(t, pipe)
                pipe = st + d; t = st + 8; nm += 1; busy += d
            else:
                t += it.cost()
        return max(t, pipe), busy


def cls(ins):
    if not isinstance(ins, Ins): return 'salu'
    k = ins.kind
    if k in ('ds_read', 'ds_write', 'vload', 'vstore', 'dma'): return 'mem'
    if k in ('valu', 'trans', 'perm'): return 'valu'
    return 'salu'


def weave(backbone, streams, budget, max_mem=1, reserve=None):
    res = []
    ptr = [0] * len(streams)
    n = len(backbone)
    for i in range(-1, n):
        if i >= 0: res.append(backbone[i])
        used = 0; nmem = 0; free_salu = 1 if i >= 0 else 0
        bud = budget - (reserve.get(i, 0) if reserve else 0)
        for phase in (0, 1):
            while True:
                best = None
                for si, st in enumerate(streams):
                    if ptr[si] >= len(st): continue
                    ins, e, l = st[ptr[si]]
                    if e > i: continue
                    c = cls(ins)
                    must = l <= i
                    if phase == 0 and c == 'valu': continue
                    if phase == 1 and c != 'valu' and not must: continue
                    cost = ins.cost() if isinstance(ins, Ins) else 4
                    if c == 'salu' and free_salu > 0 and used == 0: cost = 0
                    if not must:
                        if used + cost > bud: continue
                        if c == 'mem' and nmem >= max_mem: continue
                    key = (l, si)
                    if best is None or key < best[0]: best = (key, si, cost, c)
                if best is None: break
                _, si, cost, c = best
                res.append(streams[si][ptr[si]][0]); ptr[si] += 1; used += cost
                if c == 'mem': nmem += 1
                if c == 'salu' and cost == 0: free_salu -= 1
    for si, st in enumerate(streams):
        while ptr[si] < len(st):
            res.append(st[ptr[si]][0]); ptr[si] += 1
    return res
```

```python
from asmgen import *

WS_MOD  = 0x0
WS_HF   = 0x40000
WS_OF   = 0x400000
WS_PART = 0x2000000
WS_X1   = 0x3800000
WS_H2F  = 0x4000000
WS_ACT  = 0x4400000
WS_STAMP= 0x5000000
WS_DBG  = 0x6000000
WS_BYTES = 268435456

WQ_BASE = 0;      WQ_NS = 5;  WQ_ST = 12288
K_BASE  = 36864;  K_NS = 5;   K_ST = 12288
V_BASE  = 98304;  V_NS = 4;   V_ST = 16384
LDS_BYTES = 163840
BIAS = 4096

sWQ, sK, sV, sWS = 8, 12, 16, 20
sHEAD, sRB, sW = 24, 25, 26
sM0WQ, sM0K, sM0V = 27, 28, 29
sOFF = 30
sOFH = 31
sT0, sT1, sT2, sT3 = 32, 33, 34, 35
sSLOW = 36
sTS = 40

vWQD = 1
vKD  = 4
vVD  = 7
vWQT = 11
vKF  = 15
vVT  = 19
vHO  = 23
vT0, vT1, vT2, vT3 = 60, 61, 62, 63
QACC = 64
QF = 64
SB = [160, 192]
RING = 192
OACC = [64, 160]
LACC = 128
RINV = 144

def P_reg(kt, ct):
    if kt < 12: return ('a', kt*16 + ct*4)
    if kt < 14: return ('v', 28 + (kt-12)*16 + ct*4)
    return ('v', 224 + (kt-14)*16 + ct*4)

def prologue(P, stamps=False):
    e = P.e
    e("s_cmp_ge_u32 s2, 256")
    e("s_cbranch_scc1 K2_END")
    e("s_load_dwordx2 s[4:5], s[0:1], 24")
    e("s_load_dwordx4 s[44:47], s[0:1], 8")
    e("s_load_dwordx2 s[6:7], s[0:1], 104")
    e("s_load_dwordx2 s[68:69], s[0:1], 32")
    e("s_load_dwordx4 s[72:75], s[0:1], 48")
    e("s_load_dwordx2 s[70:71], s[0:1], 64")
    if stamps:
        e(f"s_memrealtime s[{sTS}:{sTS+1}]")
    e("s_and_b32 s24, s2, 7"); e("s_lshl_b32 s24, s24, 2")
    e("s_lshr_b32 s3, s2, 3"); e("s_and_b32 s3, s3, 3"); e("s_add_u32 s24, s24, s3")
    e("s_lshr_b32 s25, s2, 5")
    e("v_lshrrev_b32 v2, 6, v0")
    e("v_and_b32 v0, 63, v0")
    e("v_readfirstlane_b32 s26, v2")
    e(f"v_lshrrev_b32 v{vT0}, 3, v0")
    e(f"v_and_b32 v{vT1}, 7, v0")
    e(f"v_lshrrev_b32 v{vT2}, 4, v0")
    e(f"v_lshlrev_b32 v{vT3}, 1, v{vT2}")
    e(f"v_xor_b32 v{vT3}, v{vT3}, v{vT1}")
    e(f"v_lshlrev_b32 v{vT3}, 4, v{vT3}")
    e("s_lshl_b32 s3, s26, 3")
    e(f"v_add_u32 v{vWQD}, s3, v{vT0}")
    e(f"s_mov_b32 s4{0}, 12288") if False else None
    e("s_mov_b32 s37, 12288")
    e(f"v_mul_lo_u32 v{vWQD}, v{vWQD}, s37")
    e(f"v_add_u32 v{vWQD}, v{vWQD}, v{vT3}")
    e(f"v_add_u32 v{vWQD}, {BIAS}, v{vWQD}")
    e(f"v_add_u32 v{vWQD+1}, {128-1024}, v{vWQD}")
    e(f"v_add_u32 v{vWQD+2}, {256-2048}, v{vWQD}")
    e(f"v_add_u32 v{vKD}, s3, v{vT0}")
    e(f"v_lshrrev_b32 v{vT3}, 1, v{vKD}")
    e(f"v_and_b32 v{vT3}, 7, v{vT3}")
    e(f"v_xor_b32 v{vT3}, v{vT3}, v{vT1}")
    e(f"v_lshlrev_b32 v{vT3}, 4, v{vT3}")
    e(f"v_mul_u32_u24 v{vKD}, 384, v{vKD}")
    e(f"v_add_u32 v{vKD}, v{vKD}, v{vT3}")
    e(f"v_add_u32 v{vKD}, {BIAS}, v{vKD}")
    e(f"v_add_u32 v{vKD+1}, {128-1024}, v{vKD}")
    e(f"v_add_u32 v{vKD+2}, {256-2048}, v{vKD}")
    e(f"v_and_b32 v{vT3}, 1, v{vT2}")
    e(f"v_lshlrev_b32 v{vT3}, 1, v{vT3}")
    e(f"v_xor_b32 v{vT3}, v{vT3}, v{vT1}")
    e("s_lshl_b32 s3, s26, 5")
    e(f"v_add_u32 v{vVD}, s3, v{vT0}")
    e(f"v_mul_u32_u24 v{vVD}, 384, v{vVD}")
    e(f"v_add_u32 v{vVD}, {BIAS}, v{vVD}")
    e(f"v_xor_b32 v{vVD+1}, 4, v{vT3}")
    e(f"v_lshlrev_b32 v{vVD+1}, 4, v{vVD+1}")
    e(f"v_lshlrev_b32 v{vT3}, 4, v{vT3}")
    e(f"v_add_u32 v{vVD+1}, v{vVD+1}, v{vVD}")
    e(f"v_add_u32 v{vVD}, v{vVD}, v{vT3}")
    e(f"v_add_u32 v{vVD+2}, {2*3072-2*1024}, v{vVD}")
    e(f"v_add_u32 v{vVD+3}, {3*3072-3*1024}, v{vVD+1}")
    e(f"v_add_u32 v{vVD+1}, {1*3072-1*1024}, v{vVD+1}")
    e(f"v_lshrrev_b32 v{vT0}, 2, v0"); e(f"v_and_b32 v{vT0}, 3, v{vT0}")
    e(f"v_and_b32 v{vT1}, 3, v0"); e(f"v_lshlrev_b32 v{vT1}, 3, v{vT1}")
    e(f"v_and_b32 v{vWQT}, 1, v{vT2}"); e(f"v_lshlrev_b32 v{vWQT}, 2, v{vWQT}")
    e(f"v_add_u32 v{vWQT}, v{vWQT}, v{vT0}")
    e(f"v_lshrrev_b32 v{vWQT+1}, 1, v{vWQT}")
    e(f"v_lshlrev_b32 v{vWQT}, 7, v{vWQT}")
    e(f"v_lshrrev_b32 v{vWQT+2}, 1, v{vT2}")
    e(f"v_mul_u32_u24 v{vWQT+2}, 3072, v{vWQT+2}")
    e(f"v_add_u32 v{vWQT}, v{vWQT}, v{vWQT+2}")
    e(f"v_add_u32 v{vWQT}, v{vWQT}, v{vT1}")
    e(f"v_lshlrev_b32 v{vWQT+1}, 5, v{vWQT+1}")
    for tp in (3, 2, 1):
        e(f"v_xor_b32 v{vT3}, {tp<<5}, v{vWQT+1}")
        e(f"v_add_u32 v{vWQT+tp if tp!=1 else vT3}, v{vWQT}, v{vT3}") if tp != 1 else None
    e(f"v_xor_b32 v{vT3}, {1<<5}, v{vWQT+1}")
    e(f"v_add_u32 v{vT3}, v{vWQT}, v{vT3}")
    e(f"v_add_u32 v{vWQT}, v{vWQT}, v{vWQT+1}")
    e(f"v_mov_b32 v{vWQT+1}, v{vT3}")
    e(f"v_lshrrev_b32 v{vVT}, 1, v{vT2}"); e(f"v_lshlrev_b32 v{vVT}, 2, v{vVT}")
    e(f"v_add_u32 v{vVT}, v{vVT}, v{vT0}")
    e(f"v_lshrrev_b32 v{vVT+1}, 1, v{vVT}"); e(f"v_and_b32 v{vVT+1}, 1, v{vVT+1}")
    e(f"v_and_b32 v{vVT+2}, 1, v{vT2}")
    e(f"v_lshlrev_b32 v{vVT+3}, 1, v{vVT+2}")
    e(f"v_or_b32 v{vVT+1}, v{vVT+1}, v{vVT+3}")
    e(f"v_lshlrev_b32 v{vVT+1}, 5, v{vVT+1}")
    e(f"v_lshlrev_b32 v{vVT}, 7, v{vVT}")
    e(f"v_lshlrev_b32 v{vVT+2}, 10, v{vVT+2}")
    e(f"v_add_u32 v{vVT}, v{vVT}, v{vVT+2}")
    e(f"v_add_u32 v{vVT}, v{vVT}, v{vT1}")
    e(f"v_add_u32 v{vVT}, {V_BASE}, v{vVT}")
    for tp in (3, 2):
        e(f"v_xor_b32 v{vT3}, {tp<<5}, v{vVT+1}")
        e(f"v_add_u32 v{vVT+tp}, v{vVT}, v{vT3}")
    e(f"v_xor_b32 v{vT3}, {1<<5}, v{vVT+1}")
    e(f"v_add_u32 v{vT3}, v{vVT}, v{vT3}")
    e(f"v_add_u32 v{vVT}, v{vVT}, v{vVT+1}")
    e(f"v_mov_b32 v{vVT+1}, v{vT3}")
    e(f"v_and_b32 v{vT0}, 31, v0")
    e(f"v_lshrrev_b32 v{vT1}, 3, v{vT0}"); e(f"v_mul_u32_u24 v{vT1}, 3072, v{vT1}")
    e(f"v_and_b32 v{vT3}, 7, v{vT0}"); e(f"v_lshlrev_b32 v{vT3}, 7, v{vT3}")
    e(f"v_add_u32 v{vT1}, v{vT1}, v{vT3}"); e(f"v_add_u32 v{vT1}, {K_BASE}, v{vT1}")
    e(f"v_lshrrev_b32 v{vT0}, 1, v{vT0}"); e(f"v_and_b32 v{vT0}, 7, v{vT0}")
    e(f"v_lshrrev_b32 v{vT3}, 5, v0")
    e(f"v_xor_b32 v{vT0}, v{vT0}, v{vT3}")
    for s4 in range(4):
        e(f"v_xor_b32 v{vT3}, {2*s4}, v{vT0}")
        e(f"v_lshlrev_b32 v{vT3}, 4, v{vT3}")
        e(f"v_add_u32 v{vKF+s4}, v{vT1}, v{vT3}")
    e("s_lshl_b32 s3, s25, 4"); e("s_lshl_b32 s37, s26, 2"); e("s_add_u32 s38, s3, s37")
    e("s_mul_i32 s3, s38, 20480"); e(f"s_add_u32 s3, s3, {WS_HF}")
    e(f"v_lshlrev_b32 v{vT0}, 4, v0")
    e(f"v_add_u32 v{vHO}, s3, v{vT0}")
    for ct in range(1, 4):
        e(f"v_add_u32 v{vHO+ct}, {ct*20480}, v{vHO}")
    e(f"s_mul_i32 s{sM0WQ}, s26, 3072")
    e(f"s_add_u32 s{sM0K}, s{sM0WQ}, {K_BASE}")
    e(f"s_lshl_b32 s{sM0V}, s26, 12"); e(f"s_add_u32 s{sM0V}, s{sM0V}, {V_BASE}")
    e("s_waitcnt lgkmcnt(0)")
    e("s_mul_i32 s3, s24, 384")
    e(f"s_add_u32 s{sWQ}, s4, s3"); e(f"s_addc_u32 s{sWQ+1}, s5, 0")
    e(f"s_sub_u32 s{sWQ}, s{sWQ}, {BIAS}"); e(f"s_subb_u32 s{sWQ+1}, s{sWQ+1}, 0")
    e(f"s_sub_u32 s{sWQ+2}, {7864320+BIAS}, s3"); e(f"s_mov_b32 s{sWQ+3}, 0x20000")
    e("s_mul_i32 s3, s24, 786432"); e(f"s_add_u32 s3, s3, {1536*384-BIAS}")
    e(f"s_add_u32 s{sK}, s44, s3"); e(f"s_addc_u32 s{sK+1}, s45, 0")
    e(f"s_mov_b32 s{sK+2}, {512*384+BIAS}"); e(f"s_mov_b32 s{sK+3}, 0x20000")
    e(f"s_add_u32 s{sV}, s46, s3"); e(f"s_addc_u32 s{sV+1}, s47, 0")
    e(f"s_mov_b32 s{sV+2}, {512*384+BIAS}"); e(f"s_mov_b32 s{sV+3}, 0x20000")
    e(f"s_mov_b32 s{sWS}, s6"); e(f"s_mov_b32 s{sWS+1}, s7")
    e(f"s_mov_b32 s{sWS+2}, {WS_BYTES}"); e(f"s_mov_b32 s{sWS+3}, 0x20000")
    for base, lo, n in ((52, 68, 7864320), (56, 72, 1966080), (60, 74, 1966080), (64, 70, 1966080)):
        e(f"s_mov_b32 s{base}, s{lo}"); e(f"s_mov_b32 s{base+1}, s{lo+1}"); e(f"s_mov_b32 s{base+2}, {n}"); e(f"s_mov_b32 s{base+3}, 0x20000")

PFS = 64
def pf_kv():
    L = [Ins(f"s_mul_i32 s{sT0}, s25, 24576"), Ins(f"s_mul_i32 s{sT1}, s26, 6144"), Ins(f"s_add_u32 s{sT0}, s{sT0}, s{sT1}"),
         Ins(f"s_add_u32 s{sT0}, s{sT0}, {BIAS}"), Ins(f"v_mul_u32_u24 v29, {PFS}, v0"), Ins(f"v_add_u32 v29, s{sT0}, v29")]
    n = -(-6144 // (64*PFS))
    D = []
    for srd_ in (sK, sV):
        for i in range(n):
            D.append(Ins(f"v_add_u32 v30, {i*64*PFS}, v29"))
            D.append(Ins(f"buffer_load_dword v28, v30, s[{srd_}:{srd_+3}], 0 offen"))
    return L + D

def pf_wo():
    return [Ins(f"s_lshl_b32 s{sT0}, s2, 2"), Ins(f"s_add_u32 s{sT0}, s{sT0}, s26"), Ins(f"s_mul_i32 s{sT1}, s{sT0}, 7680"),
            Ins(f"v_lshlrev_b32 v31, {OPT.get('pfshift', 7)}, v0"), Ins(f"v_add_u32 v31, s{sT1}, v31"),
            NT(f"buffer_load_dword v28, v31, s[52:55], 0 offen")] + ([Ins("v_add_u32 v31, 4096, v31"), NT(f"buffer_load_dword v28, v31, s[52:55], 0 offen")] if OPT.get('pfshift', 7) == 6 else [])

def pf_weights():
    L = [Ins(f"s_lshl_b32 s{sT0}, s2, 2"), Ins(f"s_add_u32 s{sT0}, s{sT0}, s26"),
         Ins(f"v_mul_u32_u24 v31, {PFS}, v0"),
         Ins(f"s_mul_i32 s{sT1}, s{sT0}, 7680"), Ins(f"v_add_u32 v32, s{sT1}, v31")]
    for i in range(-(-7680 // (64*PFS))):
        L.append(Ins(f"v_add_u32 v30, {i*64*PFS}, v32"))
        L.append(Ins(f"buffer_load_dword v28, v30, s[52:55], 0 offen"))
    L += [Ins(f"s_mul_i32 s{sT1}, s{sT0}, 1920"), Ins(f"v_add_u32 v32, s{sT1}, v31")]
    for srd_ in (56, 60, 64):
        L.append(Ins(f"buffer_load_dword v28, v32, s[{srd_}:{srd_+3}], 0 offen"))
    return L

def dma_wq(ks):
    slot = ks % WQ_NS
    L = [Ins(f"s_add_u32 m0, s{sM0WQ}, {WQ_BASE + slot*WQ_ST}"),
         Ins(f"s_mov_b32 s{sOFF}, {ks*32*12288}")]
    D = [Ins(f"buffer_load_dwordx4 v{vWQD+q}, s[{sWQ}:{sWQ+3}], s{sOFF} offen offset:{q*1024} lds") for q in range(3)]
    return L, D

def k_slot(kt): return (kt + 2) % K_NS
def dma_k(kt):
    L = [Ins(f"s_add_u32 m0, s{sM0K}, {k_slot(kt)*K_ST}"),
         Ins(f"s_mov_b32 s{sOFF}, {kt*12288}")]
    D = [Ins(f"buffer_load_dwordx4 v{vKD+q}, s[{sK}:{sK+3}], s{sOFF} offen offset:{q*1024} lds") for q in range(3)]
    return L, D

def dma_v(st):
    G, kb = st // 4, st % 4
    L = [Ins(f"s_add_u32 m0, s{sM0V}, {(st % V_NS)*V_ST}"),
         Ins(f"s_mov_b32 s{sOFF}, {kb*128*384 + G*128}")]
    D = [Ins(f"buffer_load_dwordx4 v{vVD+i}, s[{sV}:{sV+3}], s{sOFF} offen offset:{i*1024} lds") for i in range(4)]
    return L, D

def load_h(ks):
    L = [Ins(f"s_mov_b32 s{sOFH}, {ks*1024}")]
    base = (ks % 4)*16
    D = [Ins(f"buffer_load_dwordx4 a[{base+4*ct}:{base+4*ct+3}], v{vHO+ct}, s[{sWS}:{sWS+3}], s{sOFH} offen") for ct in range(4)]
    return L, D

def tr_wq(n):
    ks, t = divmod(n, 12)
    slot = n % 16
    q, tp = t >> 2, t & 3
    off = WQ_BASE + (ks % WQ_NS)*WQ_ST + q*1024
    r = RING + slot*4
    return [Ins(f"ds_read_b64_tr_b16 a[{r}:{r+1}], v{vWQT+tp} offset:{off}"),
            Ins(f"ds_read_b64_tr_b16 a[{r+2}:{r+3}], v{vWQT+tp} offset:{off+6144}")]

OPT = dict(dma=True, hload=True, barrier=True, tr=True, pfcode=False)
def k_frag(n):
    kt, s_ = divmod(n, 12)
    r = RING + (n % 16)*4
    off = k_slot(kt)*K_ST + (s_ >> 2)*1024
    return Ins(f"ds_read_b128 a[{r}:{r+3}], v{vKF + (s_ & 3)} offset:{off}")

def softmax_stream(kt, mode='exp'):
    L = []
    buf = SB[kt & 1]
    toA = P_reg(kt, 0)[0] == 'a'
    for cb in range(2):
        Sx = buf + 16*cb
        if toA:
            A_ = [Sx+0, Sx+2, Sx+8, Sx+10]; B_ = [Sx+4, Sx+6, Sx+12, Sx+14]
        else:
            pa = P_reg(kt, 2*cb)[1]; pb = P_reg(kt, 2*cb+1)[1]
            A_ = [pa+i for i in range(4)]; B_ = [pb+i for i in range(4)]
        E = lambda i: Ins(f"v_exp_f32 v{Sx+i}, v{Sx+i}")
        C = lambda d, i: Ins(f"v_cvt_pk_bf16_f32 v{d}, v{Sx+i}, v{Sx+i+1}")
        SW = lambda i: Ins(f"v_permlane16_swap_b32 v{A_[i]}, v{B_[i]}")
        def W(i):
            if not toA: return []
            pa = P_reg(kt, 2*cb)[1]; pb = P_reg(kt, 2*cb+1)[1]
            return [Ins(f"v_accvgpr_write_b32 a{pa+i}, v{A_[i]}"), Ins(f"v_accvgpr_write_b32 a{pb+i}, v{B_[i]}")]
        L += [E(0), E(1), E(2), E(3), E(4), E(5), C(A_[0], 0), C(A_[1], 2), E(6), E(7), C(B_[0], 4), E(8), E(9), C(B_[1], 6),
              E(10), E(11), SW(0), C(A_[2], 8), SW(1), E(12), E(13), C(A_[3], 10), E(14), E(15)]
        L += W(0) + [C(B_[2], 12), C(B_[3], 14)] + W(1) + [SW(2), SW(3)]
        L += W(2) + W(3)
    return L

def phase2(P, handles):
    PF = 4
    for kt in range(16):
        bb = []
        buf = SB[kt & 1]
        for s_ in range(12):
            n = 12*kt + s_
            ar = RING + (n % 16)*4
            for cb in range(2):
                d = buf + 16*cb
                q = QF + 8*s_ + 4*cb
                c = f"v[{d}:{d+15}]" if s_ > 0 else "0"
                bb.append(Ins(f"v_mfma_f32_32x32x16_bf16 v[{d}:{d+15}], a[{ar}:{ar+3}], v[{q}:{q+3}], {c}"))
        s_rd, s_dma, s_sm = [], [], []
        for s_ in range(12):
            n = 12*kt + s_ + PF
            lo = 2*s_
            if n < 12*16:
                if s_ == 8:
                    s_rd.append((WaitVM(handles['k'][kt+1]), lo-1, lo-1))
                    s_rd.append((Ins("s_barrier"), lo-1, lo-1))
                s_rd.append((k_frag(n), lo, lo+1))
            else:
                m = n - 192
                if m == 0:
                    s_rd.append((WaitVM(handles['v'][0]), lo-1, lo-1))
                    s_rd.append((Ins("s_barrier"), lo-1, lo-1))
                a, b = tr_v(m)
                s_rd.append((a, lo, lo+1)); s_rd.append((b, lo, lo+1))
        if kt + 4 < 16:
            L, D = dma_k(kt+4)
            handles['k'][kt+4] = D[-1]
            s_dma += [(L[0], 16, 18), (L[1], 16, 18)] + [(d, 17+2*i, 19+2*i) for i, d in enumerate(D)]
        elif kt >= 12 and kt <= 14:
            L, D = dma_v(kt-12)
            handles['v'][kt-12] = D[-1]
            s_dma += [(L[0], 2, 18), (L[1], 2, 18)] + [(d, 4+4*i, 22) for i, d in enumerate(D)]
        if kt > 0:
            sm = softmax_stream(kt-1)
            if kt == 2 and OPT.get('pf') == 'wo': sm = pf_wo() + sm
            n = len(sm)
            for i, x in enumerate(sm):
                s_sm.append((x, 2, 23))
        P.many(weave(bb, [s_rd, s_dma, s_sm], 24, max_mem=1))

def tr_v(m):
    G, rem = divmod(m, 64)
    kt, tp = divmod(rem, 4)
    st = 4*G + (kt >> 2)
    off = (st % V_NS)*V_ST + (kt & 3)*4096
    r = RING + ((192 + m) % 16)*4
    return [Ins(f"ds_read_b64_tr_b16 a[{r}:{r+1}], v{vVT+tp} offset:{off}"),
            Ins(f"ds_read_b64_tr_b16 a[{r+2}:{r+3}], v{vVT+tp} offset:{off+2048}")]

ONES = 60

def o_epilogue(G):
    L = []
    ob = OACC[G & 1]
    for u in range(2):
        L.append(Ins(f"s_mov_b32 s{sOFH}, {(2*G+u)*1024}"))
        for ct in range(4):
            x = ob + ((2*u)*4 + ct)*4; y = ob + ((2*u+1)*4 + ct)*4
            for i in range(4): L.append(Ins(f"v_mul_f32 v{x+i}, v{RINV+ct}, v{x+i}"))
            for i in range(4): L.append(Ins(f"v_mul_f32 v{y+i}, v{RINV+ct}, v{y+i}"))
            L.append(Ins(f"v_cvt_pk_bf16_f32 v{x}, v{x}, v{x+1}"))
            L.append(Ins(f"v_cvt_pk_bf16_f32 v{x+1}, v{x+2}, v{x+3}"))
            L.append(Ins(f"v_cvt_pk_bf16_f32 v{x+2}, v{y}, v{y+1}"))
            L.append(Ins(f"v_cvt_pk_bf16_f32 v{x+3}, v{y+2}, v{y+3}"))
            L.append(Ins(f"buffer_store_dwordx4 v[{x}:{x+3}], v{vHO+ct}, s[{sWS}:{sWS+3}], s{sOFH} offen sc1"))
    return L

def phase3(P, handles):
    PF = 4
    for G in range(3):
        ob = OACC[G & 1]
        pre = []
        epi = []
        if G == 1:
            for ct in range(4): epi.append(Ins(f"v_rcp_f32 v{RINV+ct}, v{LACC+4*ct}"))
        if G >= 1: epi += o_epilogue(G-1)
        nslots_total = 16*16
        epi_ptr = 0
        for kt in range(16):
            bb = []
            for tp in range(4):
                m = 64*G + 4*kt + tp
                ar = RING + ((192 + m) % 16)*4
                for ct in range(4):
                    d = ob + (tp*4 + ct)*4
                    p = P_reg(kt, ct)
                    c = f"v[{d}:{d+3}]" if kt > 0 else "0"
                    bb.append(Ins(f"v_mfma_f32_16x16x32_bf16 v[{d}:{d+3}], a[{ar}:{ar+3}], {R(p,4)}, {c}"))
            if G == 0:
                for ct in range(4):
                    d = LACC + 4*ct
                    p = P_reg(kt, ct)
                    c = f"v[{d}:{d+3}]" if kt > 0 else "0"
                    bb.append(Ins(f"v_mfma_f32_16x16x32_bf16 v[{d}:{d+3}], v[{ONES}:{ONES+3}], {R(p,4)}, {c}"))
            s_rd, s_dma, s_x = [], [], []
            st = 4*G + (kt >> 2)
            for tp in range(4):
                m = 64*G + 4*kt + tp + PF
                if m >= 192: continue
                lo = 4*tp
                if tp == 0 and (kt & 3) == 3:
                    s_rd.append((WaitVM(handles['v'][st+1]), -1, -1))
                    s_rd.append((Ins("s_barrier"), -1, -1))
                a, b = tr_v(m)
                s_rd.append((a, lo, lo+1)); s_rd.append((b, lo+1, lo+2))
            if (kt & 3) == 3 and st + 3 < 12:
                L, D = dma_v(st+3)
                handles['v'][st+3] = D[-1]
                s_dma += [(L[0], 0, 2), (L[1], 0, 3)] + [(d, 2+3*i, 4+3*i) for i, d in enumerate(D)]
            if G == 0 and kt < 2:
                sm = softmax_stream(15)
                half = len(sm)//2
                part = sm[:half] if kt == 0 else sm[half:]
                s_x = [(x, 0 if kt else 2, 19) for x in part]
            elif epi and kt >= 1:
                per = -(-len(epi) // 13)
                part = epi[epi_ptr:epi_ptr+per]; epi_ptr += len(part)
                s_x = [(x, 0, len(bb)-1) for x in part]
            P.many(weave(bb, [s_rd, s_dma, s_x], 8))
        assert epi_ptr >= len(epi)
    P.many(o_epilogue(2))

def phase3_setup():
    L = [Ins(f"v_mov_b32 v{ONES+i}, 0x3f803f80") for i in range(4)]
    L.append(Ins(f"s_mul_i32 s{sT0}, s38, {196608-20480}"))
    L.append(Ins(f"s_mul_i32 s{sT1}, s24, 6144"))
    L.append(Ins(f"s_add_u32 s{sT0}, s{sT0}, s{sT1}"))
    L.append(Ins(f"s_add_u32 s{sT0}, s{sT0}, {WS_OF-WS_HF}"))
    for ct in range(4):
        L.append(Ins(f"v_add_u32 v{vHO+ct}, s{sT0}, v{vHO+ct}"))
        if ct: L.append(Ins(f"v_add_u32 v{vHO+ct}, {ct*(196608-20480)}, v{vHO+ct}"))
    return L

def phase1(P, handles):
    NK = 20
    PF = 4
    dmah = handles['wq']
    for ks in range(NK):
        bb = []
        for t in range(12):
            n = 12*ks + t
            ar = RING + (n % 16)*4
            for ct in range(4):
                acc = QACC + (4*t + ct)*4
                b = (ks % 4)*16 + 4*ct
                c = f"v[{acc}:{acc+3}]" if ks > 0 else "0"
                bb.append(Ins(f"v_mfma_f32_16x16x32_bf16 v[{acc}:{acc+3}], a[{ar}:{ar+3}], a[{b}:{b+3}], {c}"))
        s_tr, s_h, s_dma = [], [], []
        for t in range(12):
            n = 12*ks + t + PF
            if n >= 12*NK:
                if OPT.get('p2', False):
                    lo = 4*t
                    if t == 8:
                        s_tr.append((WaitVM(handles['k'][0]), lo-1, lo-1))
                        s_tr.append((Ins("s_barrier"), lo-1, lo-1))
                    s_tr.append((k_frag(n - 12*NK), lo, lo+2))
                continue
            a, b = tr_wq(n)
            lo = 4*t
            if t == 8:
                if OPT['dma'] or ks+1 < 4: s_tr.append((WaitVM(dmah[ks+1]), lo-1, lo-1))
                if OPT['barrier']: s_tr.append((Ins("s_barrier"), lo-1, lo-1))
            if OPT['tr']:
                s_tr.append((a, lo, lo+1)); s_tr.append((b, lo+1, lo+2))
        if ks + 3 < NK and OPT['hload']:
            L, D = load_h(ks+3)
            s_h.append((L[0], 0, 1))
            for i, d in enumerate(D): s_h.append((d, 4*i+2, 4*i+3))
        if not OPT['dma']: pass
        elif ks + 4 < NK:
            L, D = dma_wq(ks+4)
            dmah[ks+4] = D[-1]
            s_dma.append((L[0], 33, 35)); s_dma.append((L[1], 34, 36))
            for i, d in enumerate(D): s_dma.append((d, 36+4*i, 38+4*i))
        elif ks >= 16:
            kt = ks - 16
            L, D = dma_k(kt)
            handles['k'][kt] = D[-1]
            s_dma.append((L[0], 33, 35)); s_dma.append((L[1], 34, 36))
            for i, d in enumerate(D): s_dma.append((d, 36+4*i, 38+4*i))
        s_pf = []
        if OPT.get('pf', 'loop') == 'loop':
            if ks == 1: s_pf = [(x, 2, 47) for x in pf_kv()]
            if ks == 8: s_pf = [(x, 2, 47) for x in pf_weights()]
        P.many(weave(bb, [s_tr, s_h, s_dma, s_pf], 8))

def phase1_pro(P, handles):
    for ks in range(4):
        L, D = dma_wq(ks)
        P.many(L); P.many(D)
        handles['wq'][ks] = D[-1]
        if ks < 3:
            L, D = load_h(ks)
            P.many(L); P.many(D)
    if OPT.get('pf', 'loop') == 'pro':
        P.many(pf_kv()); P.many(pf_weights())
    P.wait_vm(handles['wq'][0])
    P.e("s_barrier")
    for n in range(4):
        P.many(tr_wq(n))

def q_convert(P):
    for t in range(12):
        for cb in range(2):
            x = QACC + (4*t + 2*cb)*4; y = x + 4
            d = QF + 8*t + 4*cb
            P.e(f"v_cvt_pk_bf16_f32 v{d}, v{x}, v{x+1}")
            P.e(f"v_cvt_pk_bf16_f32 v{d+1}, v{x+2}, v{x+3}")
            P.e(f"v_cvt_pk_bf16_f32 v{d+2}, v{y}, v{y+1}")
            P.e(f"v_cvt_pk_bf16_f32 v{d+3}, v{y+2}, v{y+3}")
        for cb in range(2):
            d = QF + 8*t + 4*cb
            P.e(f"v_permlane16_swap_b32 v{d}, v{d+2}")
            P.e(f"v_permlane16_swap_b32 v{d+1}, v{d+3}")

def dump_regs(P, regs, base_off):
    n = len(regs)
    P.e(f"s_lshl_b32 s3, s2, 2"); P.e("s_add_u32 s3, s3, s26")
    P.e(f"s_mul_i32 s3, s3, {n*256}"); P.e(f"s_add_u32 s3, s3, {base_off}")
    P.e(f"v_lshlrev_b32 v{vT0}, 2, v0"); P.e(f"v_add_u32 v{vT0}, s3, v{vT0}")
    for i, r in enumerate(regs):
        if r[0] == 'a':
            P.e(f"v_accvgpr_read_b32 v{vT1}, a{r[1]}")
            src = vT1
        else:
            src = r[1]
        P.e(f"s_mov_b32 s3, {i*256}")
        P.e(f"buffer_store_dword v{src}, v{vT0}, s[{sWS}:{sWS+3}], s3 offen")
        if r[0] == 'a': P.e("s_waitcnt vmcnt(0)")

def stamp(P, idx):
    P.e(f"s_memtime s[{sTS+2*idx}:{sTS+2*idx+1}]")

def write_stamps(P, n):
    P.e("s_waitcnt lgkmcnt(0)")
    P.e(f"s_lshl_b32 s3, s2, 2"); P.e("s_add_u32 s3, s3, s26"); P.e("s_lshl_b32 s3, s3, 6"); P.e(f"s_add_u32 s3, s3, {WS_STAMP}")
    for i in range(n):
        P.e(f"v_mov_b32 v{vT1}, s{sTS+2*i}")
        P.e(f"v_mov_b32 v{vT0}, s3")
        P.e(f"buffer_store_dword v{vT1}, v{vT0}, s[{sWS}:{sWS+3}], 0 offen offset:{4*i}")
        P.e("s_waitcnt vmcnt(0)")

KD = """.section .rodata,"a"
.p2align 6
.amdhsa_kernel {name}
  .amdhsa_next_free_vgpr {vgpr}
  .amdhsa_next_free_sgpr 102
  .amdhsa_accum_offset {acc}
  .amdhsa_group_segment_fixed_size 0
  .amdhsa_kernarg_size 112
  .amdhsa_user_sgpr_count 2
  .amdhsa_user_sgpr_kernarg_segment_ptr 1
  .amdhsa_system_sgpr_workgroup_id_x 1
.end_amdhsa_kernel
"""

def wrap(kernels, launches):
    s = ""
    for nm, g, b, l in launches:
        s += f"; @launch kernel={nm} grid=({g},1,1) block=({b},1,1) lds={l}\n"
    s += '.amdgcn_target "amdgcn-amd-amdhsa--gfx950"\n.text\n'
    for nm, txt, vg, ac in kernels:
        s += f".globl {nm}\n.p2align 8\n.type {nm},@function\n{nm}:\n{txt}"
    for nm, txt, vg, ac in kernels:
        s += KD.format(name=nm, vgpr=vg, acc=ac)
    return s

def code_prefetch(P, nbytes):
    P.e("s_getpc_b64 s[48:49]")
    P.e(f"v_lshlrev_b32 v{vT0}, 2, v0")
    P.e(f"s_lshl_b32 s3, s26, 8"); P.e(f"v_add_u32 v{vT0}, s3, v{vT0}")
    P.e(f"v_lshlrev_b32 v{vT0}, 4, v{vT0}")
    for off in range(0, nbytes, 16384):
        P.e(f"global_load_dword v{vT1}, v{vT0}, s[48:49]")
        P.e(f"v_add_u32 v{vT0}, 16384, v{vT0}")

def build_p1(fname):
    P = Prog()
    H = {'wq': {}, 'k': {}, 'v': {}}
    prologue(P, stamps=False)
    if OPT['pfcode']: code_prefetch(P, 16384)
    stamp(P, 0)
    phase1_pro(P, H)
    stamp(P, 1)
    phase1(P, H)
    stamp(P, 2)
    q_convert(P)
    stamp(P, 3)
    P.e("s_waitcnt vmcnt(0)")
    dump_regs(P, [('v', QF+i) for i in range(96)], WS_DBG)
    write_stamps(P, 4)
    P.e("K2_END:")
    P.e("s_endpgm")
    P.finalize()
    print("estimate", P.estimate(), "nops", P.nops, "ninstr", len(P.final))
    open(fname, "w").write(wrap([("k2_kernel", P.text(), 512, 256)], [("k2_kernel", 256, 256, LDS_BYTES)]))

def build_full(fname, dump_p=False):
    OPT.update(dict(dma=True, hload=True, barrier=True, tr=True, pfcode=True, p2=True))
    P = Prog()
    H = {'wq': {}, 'k': {}, 'v': {}}
    prologue(P, stamps=False)
    code_prefetch(P, 49152)
    stamp(P, 0)
    phase1_pro(P, H)
    stamp(P, 1)
    phase1(P, H)
    stamp(P, 2)
    q_convert(P)
    P.many(phase3_setup())
    stamp(P, 3)
    phase2(P, H)
    stamp(P, 4)
    phase3(P, H)
    stamp(P, 5)
    P.e("s_waitcnt vmcnt(0)")
    stamp(P, 6)
    if dump_p:
        regs = []
        for kt in range(16):
            for ct in range(4):
                p = P_reg(kt, ct)
                regs += [(p[0], p[1]+i) for i in range(4)]
        regs += [('v', LACC+i) for i in range(16)]
        dump_regs(P, regs, WS_DBG)
    write_stamps(P, 7)
    P.e("K2_END:")
    P.e("s_endpgm")
    P.finalize()
    print("estimate", P.estimate(), "nops", P.nops, "ninstr", len(P.final))
    open(fname, "w").write(wrap([("k2_kernel", P.text(), 512, 256)], [("k2_kernel", 256, 256, LDS_BYTES)]))

if __name__ == "__main__":
    import sys
    if len(sys.argv) > 1 and sys.argv[1] == "full":
        build_full("k2_full.s", dump_p=True)
        build_full("k2_fast.s", dump_p=False)
        sys.exit(0)
    build_p1("k2_p1.s")
    for nm, o in [("a", dict(dma=False, hload=False, barrier=False)), ("b", dict(dma=False, hload=True, barrier=False)),
                  ("c", dict(dma=True, hload=False, barrier=False)), ("d", dict(dma=True, hload=True, barrier=False)),
                  ("e", dict(dma=False, hload=False, barrier=True)), ("f", dict(dma=True, hload=True, barrier=True, pfcode=True)),
                  ("g", dict(dma=False, hload=False, barrier=False, tr=False))]:
        OPT.update(dict(dma=True, hload=True, barrier=True, tr=True, pfcode=False)); OPT.update(o)
        build_p1(f"k2_p1{nm}.s")
```

```python
from asmgen import *
from k2gen import WS_MOD, WS_HF, WS_OF, WS_PART, WS_X1, WS_H2F, WS_ACT, WS_BYTES, WS_STAMP
from ksmall import srd, f2u, NSPLIT
BIAS = 8192

GOPT = dict(dma=True, bload=True, tr=True, barrier=True, waits=True)
def gemm_stream(P, NK, nA, nB, kps, acc_reg, a_ring, a_slots, b_ring, b_sets, tr_fn, bload_fn, dma_fn, H,
                PF, BPF, DPF, nstages, WG=2, extra=None, a_is_agpr=False, b_is_agpr=False, zero_init=True):
    TRH = H.setdefault('tr', {}); BH = H.setdefault('b', {})
    spk = nA*nB
    bb = []
    for ks in range(NK):
        for t in range(nA):
            n = nA*ks + t
            ar = a_ring + (n % a_slots)*4
            for ct in range(nB):
                acc = acc_reg(t, ct)
                b = b_ring + (ks % b_sets)*4*nB + 4*ct
                c = f"v[{acc}:{acc+3}]" if (ks > 0 or not zero_init) else "0"
                ra = f"a[{ar}:{ar+3}]" if a_is_agpr else f"v[{ar}:{ar+3}]"
                rb = f"a[{b}:{b+3}]" if b_is_agpr else f"v[{b}:{b+3}]"
                bb.append(Ins(f"v_mfma_f32_16x16x32_bf16 v[{acc}:{acc+3}], {ra}, {rb}, {c}"))
    s_tr, s_w, vm = [], [], []
    bar_at = {}
    dmas = {}
    for st in range(nstages):
        if st not in H and GOPT['dma']:
            L, D = dma_fn(st); dmas[st] = (L, D); H[st] = D[-1]
    loads = {}
    for ks in range(NK):
        if ks not in BH and GOPT['bload']:
            L, D = bload_fn(ks); loads[ks] = (L, D); BH[ks] = D[-1]
    for n in range(PF, nA*NK):
        lo = nB*(n - PF)
        nks = n // nA
        if n % nA == 0 and nks % kps == 0:
            stg = nks // kps
            if stg in H and GOPT['waits']: s_tr.append((WaitVM(H[stg]), lo-1, lo-1))
            if GOPT['barrier']: s_tr.append((Ins("s_barrier"), lo-1, lo-1))
            bar_at[stg-1] = lo
        a, b = tr_fn(n)
        TRH[n] = b
        if GOPT['tr']:
            s2 = lo+1 if nB > 1 else lo
            s_tr.append((a, lo, lo)); s_tr.append((b, s2, s2))
    for n in range(0, nA*NK, WG):
        tgt = min(n + WG - 1, nA*NK - 1)
        if GOPT['tr']: s_w.append((WaitLGKM(TRH[tgt]), nB*n-1, nB*n-1))
    s_wb = [(WaitVM(BH[ks]), spk*ks-1, spk*ks-1) for ks in range(NK) if ks in BH and GOPT['waits']]
    items = []
    for st, (L, D) in dmas.items():
        lo = bar_at.get(st - DPF, 0)
        hi = bar_at.get(st - DPF + 1, lo + spk*kps) - 1
        items.append((lo, hi, L, D))
    for ks, (L, D) in loads.items():
        lo = spk*(ks - BPF); hi = lo + spk - 1
        items.append((lo, hi, L, D))
    ops = []
    for gi, (lo, hi, L, D) in enumerate(items):
        pre = list(L)
        for d in D:
            if cls(d) != 'mem': pre.append(d); continue
            ops.append([lo, hi, gi, pre, d]); pre = []
    nslots = len(bb)
    gap = max(1, int(GAP))
    placed = []
    t = 0
    remaining = ops[:]
    cur = 0
    while remaining:
        cand = [o for o in remaining if o[0] <= cur]
        if not cand:
            cur = min(o[0] for o in remaining); continue
        o = min(cand, key=lambda o: (o[1], ops.index(o)))
        placed.append((cur, o)); remaining.remove(o)
        nxt = cur + gap
        if remaining:
            dl = sorted(x[1] for x in remaining)
            for idx, dd in enumerate(dl):
                if nxt + idx*gap > dd:
                    nxt = max(cur + 1, min(nxt, dd - idx*gap))
        cur = nxt
    per_group = {}
    for slot, o in placed:
        st_ = per_group.setdefault(o[2] % 2 if False else ('d' if o[4].kind == 'dma' else 'b'), [])
        for x in o[3]: st_.append((x, slot-2, slot))
        st_.append((o[4], slot, slot))
    streams = [s_w, s_wb, s_tr] + list(per_group.values())
    if extra: streams.append(extra)
    P.many(weave(bb, streams, 8, max_mem=2))

GAP = 4
def gen_k3(stamps=False, auto=True):
    P = Prog(); e = P.e
    NS = 6; ST = 20480
    e("s_cmp_ge_u32 s2, 256"); e("s_cbranch_scc1 K3_END")
    e("s_load_dwordx2 s[4:5], s[0:1], 32")
    e("s_load_dwordx2 s[6:7], s[0:1], 104")
    if stamps: e("s_memtime s[40:41]")
    e("s_and_b32 s20, s2, 3")
    e("s_lshr_b32 s3, s2, 2"); e("s_and_b32 s3, s3, 1"); e("s_lshl_b32 s3, s3, 3")
    e("s_lshr_b32 s21, s2, 5"); e("s_add_u32 s21, s21, s3")
    e("s_lshr_b32 s22, s2, 3"); e("s_and_b32 s22, s22, 3")
    e("v_lshrrev_b32 v1, 6, v0"); e("v_and_b32 v0, 63, v0")
    e("v_readfirstlane_b32 s23, v1")
    for i in range(5):
        e(f"v_add_u32 v10, {i*64}, v0")
        e("v_mul_u32_u24 v11, 3277, v10"); e("v_lshrrev_b32 v11, 16, v11")
        e("v_mul_u32_u24 v12, 20, v11"); e("v_sub_u32 v12, v10, v12")
        e("v_lshrrev_b32 v13, 2, v11"); e("v_and_b32 v13, 1, v13"); e("v_lshlrev_b32 v13, 1, v13")
        e("v_xor_b32 v12, v12, v13")
        e("v_lshlrev_b32 v12, 4, v12")
        e("v_mul_u32_u24 v11, 1280, v11")
        e("v_add_u32 v11, v11, v12")
        e(f"v_add_u32 v{2+i}, {BIAS - i*1024}, v11")
    e("s_mul_i32 s3, s23, 20480")
    for i in range(5): e(f"v_add_u32 v{2+i}, s3, v{2+i}")
    e("v_lshrrev_b32 v10, 4, v0")
    e("v_lshrrev_b32 v11, 2, v0"); e("v_and_b32 v11, 3, v11")
    e("v_lshlrev_b32 v12, 2, v10"); e("v_add_u32 v11, v11, v12")
    e("v_mul_u32_u24 v11, 320, v11")
    e("v_and_b32 v12, 3, v0"); e("v_lshlrev_b32 v12, 3, v12"); e("v_add_u32 v11, v11, v12")
    e("v_and_b32 v12, 1, v10"); e("v_lshlrev_b32 v12, 5, v12")
    e("v_add_u32 v7, v11, v12")
    e("v_xor_b32 v12, 32, v12"); e("v_add_u32 v8, v11, v12")
    e(f"v_add_u32 v9, {3*ST}, v7"); e(f"v_add_u32 v14, {3*ST}, v8")
    e("s_lshl_b32 s3, s21, 3"); e("s_lshl_b32 s24, s23, 1"); e("s_add_u32 s24, s24, s3")
    e("s_mul_i32 s3, s24, 196608"); e("s_mul_i32 s25, s20, 49152"); e("s_add_u32 s3, s3, s25"); e(f"s_add_u32 s3, s3, {WS_OF}")
    e("v_lshlrev_b32 v10, 4, v0"); e("v_add_u32 v15, s3, v10"); e("v_add_u32 v16, 196608, v15")
    e("s_lshl_b32 s3, s20, 7"); e("s_add_u32 s3, s3, s24"); e("s_mul_i32 s3, s3, 40960")
    e("s_mul_i32 s25, s22, 10240"); e("s_add_u32 s3, s3, s25"); e(f"s_add_u32 s3, s3, {WS_PART}")
    e("v_add_u32 v17, s3, v10"); e("v_add_u32 v18, 40960, v17")
    e("s_mul_i32 s26, s23, 5120")
    e("s_mul_i32 s27, s20, 1966080")
    e("s_waitcnt lgkmcnt(0)")
    e("s_mul_i32 s3, s22, 320")
    e("s_add_u32 s8, s4, s3"); e("s_addc_u32 s9, s5, 0"); e(f"s_sub_u32 s8, s8, {BIAS}"); e("s_subb_u32 s9, s9, 0")
    e(f"s_sub_u32 s10, {7864320+BIAS}, s3"); e("s_mov_b32 s11, 0x20000")
    srd(P, 12, 6, 7, WS_BYTES)
    ACC = 176
    AR = 20; ASL = 12
    BR = 68; BS = 6
    def acc_reg(t, ct): return ACC + (t*2 + ct)*4
    def tr_fn(n):
        ks, t = divmod(n, 10)
        st, kk = divmod(ks, 2)
        slot = st % NS
        sett, so = divmod(slot, 3)
        areg = [7, 8, 9, 14][sett*2 + (t & 1)]
        off = so*ST + kk*10240 + (t >> 1)*64
        r = AR + (n % ASL)*4
        return [Ins(f"ds_read_b64_tr_b16 v[{r}:{r+1}], v{areg} offset:{off}"),
                Ins(f"ds_read_b64_tr_b16 v[{r+2}:{r+3}], v{areg} offset:{off+5120}")]
    def bload_fn(ks):
        b = BR + (ks % BS)*8
        return ([Ins(f"s_mov_b32 s28, {ks*1024}")],
                [Ins(f"buffer_load_dwordx4 v[{b+4*ct}:{b+4*ct+3}], v{15+ct}, s[12:15], s28 offen") for ct in range(2)])
    def dma_fn(st):
        return ([Ins(f"s_add_u32 m0, s26, {(st % NS)*ST}"), Ins(f"s_add_u32 s29, s27, {st*81920}")],
                [Ins(f"buffer_load_dwordx4 v{2+i}, s[8:11], s29 offen offset:{i*1024} lds") if i < 4 else None for i in range(5)])
    def dma_fn2(st):
        L = [Ins(f"s_add_u32 m0, s26, {(st % NS)*ST}"), Ins(f"s_add_u32 s29, s27, {st*81920}")]
        D = [Ins(f"buffer_load_dwordx4 v{2+i}, s[8:11], s29 offen offset:{i*1024} lds") for i in range(4)]
        D.append(Ins(f"s_add_u32 m0, s26, {(st % NS)*ST + 4096}"))
        D.append(Ins(f"buffer_load_dwordx4 v6, s[8:11], s29 offen lds"))
        return L, D
    H = {}
    e("v_add_u32 v6, 4096, v6")
    if stamps: e("s_memtime s[42:43]")
    BPF = 5; DPF = 5
    for st in range(DPF):
        L, D = dma_fn2(st); P.many(L); P.many(D); H[st] = D[-1]
        L, D = bload_fn(st); P.many(L); P.many(D); H.setdefault('b', {})[st] = D[-1]
    P.wait_vm(H[0]); e("s_barrier")
    PF = 6
    for n in range(PF):
        rr = tr_fn(n); P.many(rr); H.setdefault('tr', {})[n] = rr[-1]
    if stamps: e("s_memtime s[44:45]"); e("s_waitcnt lgkmcnt(0)")
    gemm_stream(P, 48, 10, 2, 2, acc_reg, AR, ASL, BR, BS, tr_fn, bload_fn, dma_fn2, H, PF, BPF, DPF, 24)
    if stamps: e("s_memtime s[46:47]")
    for t in range(10):
        e(f"s_mov_b32 s28, {t*1024}")
        for ct in range(2):
            a = acc_reg(t, ct)
            e(f"buffer_store_dwordx4 v[{a}:{a+3}], v{17+ct}, s[12:15], s28 offen sc1")
    if stamps:
        e("s_waitcnt vmcnt(0)"); e("s_memtime s[48:49]")
        write_stamps(P, 5, 23, 12)
    e("K3_END:")
    e("s_endpgm")
    P.finalize(auto_wait=auto)
    return P

WS_GB = WS_MOD + 0x10000 + 5*4096

def gen_k5(stamps=False):
    P = Prog(); e = P.e
    NS = 5; ST = 12288
    e("s_cmp_ge_u32 s2, 256"); e("s_cbranch_scc1 K5_END")
    e("s_load_dwordx4 s[4:7], s[0:1], 48")
    e("s_load_dwordx2 s[16:17], s[0:1], 104")
    if stamps: e("s_memtime s[40:41]")
    e("s_and_b32 s20, s2, 7"); e("s_lshl_b32 s20, s20, 1"); e("s_lshr_b32 s3, s2, 3"); e("s_and_b32 s21, s3, 1"); e("s_add_u32 s20, s20, s21")
    e("s_lshr_b32 s21, s2, 4")
    e("v_lshrrev_b32 v1, 6, v0"); e("v_and_b32 v0, 63, v0")
    e("v_readfirstlane_b32 s23, v1")
    e("v_lshrrev_b32 v10, 2, v0")
    e("s_lshr_b32 s3, s23, 1"); e("s_lshl_b32 s3, s3, 4"); e("v_add_u32 v10, s3, v10")
    e("v_lshrrev_b32 v11, 2, v10"); e("v_and_b32 v11, 1, v11"); e("v_lshlrev_b32 v11, 1, v11")
    e("v_and_b32 v12, 3, v0"); e("v_xor_b32 v11, v11, v12"); e("v_lshlrev_b32 v11, 4, v11")
    e("v_mul_u32_u24 v10, 3072, v10"); e("v_add_u32 v10, v10, v11")
    e(f"v_add_u32 v2, {BIAS}, v10"); e(f"v_add_u32 v3, {BIAS + 64 - 1024}, v10"); e(f"v_add_u32 v4, {BIAS + 128 - 2048}, v10")
    e("v_lshrrev_b32 v10, 4, v0")
    e("v_lshrrev_b32 v11, 2, v0")
    e("v_lshlrev_b32 v11, 6, v11")
    e("v_and_b32 v12, 3, v0"); e("v_lshlrev_b32 v12, 3, v12"); e("v_add_u32 v11, v11, v12")
    e("v_and_b32 v12, 1, v10"); e("v_lshlrev_b32 v12, 5, v12")
    e("v_add_u32 v7, v11, v12"); e("v_xor_b32 v12, 32, v12"); e("v_add_u32 v8, v11, v12")
    e("s_lshl_b32 s3, s21, 3"); e("s_lshl_b32 s24, s23, 1"); e("s_add_u32 s24, s24, s3")
    e("s_mul_i32 s3, s24, 20480"); e(f"s_add_u32 s3, s3, {WS_H2F}")
    e("v_lshlrev_b32 v10, 4, v0"); e("v_add_u32 v15, s3, v10"); e("v_add_u32 v16, 20480, v15")
    e("s_mul_i32 s3, s24, 49152"); e("s_mul_i32 s25, s20, 3072"); e("s_add_u32 s3, s3, s25"); e(f"s_add_u32 s3, s3, {WS_ACT}")
    e("v_add_u32 v17, s3, v10"); e("v_add_u32 v18, 49152, v17")
    e("s_mul_i32 s26, s23, 3072")
    e("s_waitcnt lgkmcnt(0)")
    e("s_and_b32 s3, s23, 1"); e("s_cmp_eq_u32 s3, 0")
    e("s_cselect_b32 s8, s4, s6"); e("s_cselect_b32 s9, s5, s7")
    e("s_mul_i32 s3, s20, 192")
    e("s_add_u32 s8, s8, s3"); e("s_addc_u32 s9, s9, 0"); e(f"s_sub_u32 s8, s8, {BIAS}"); e("s_subb_u32 s9, s9, 0")
    e(f"s_sub_u32 s10, {640*3072+BIAS}, s3"); e("s_mov_b32 s11, 0x20000")
    srd(P, 12, 16, 17, WS_BYTES)
    ACC = 160
    AR = 20; ASL = 12
    BR = 68; BS = 6
    def acc_reg(t, ct): return ACC + (t*2 + ct)*4
    def tr_fn(n):
        ks, t = divmod(n, 12)
        p = 3*(t // 6) + ((t % 6) >> 1)
        off = (ks % NS)*ST + p*1024
        r = AR + (n % ASL)*4
        return [Ins(f"ds_read_b64_tr_b16 v[{r}:{r+1}], v{7 + (t & 1)} offset:{off}"),
                Ins(f"ds_read_b64_tr_b16 v[{r+2}:{r+3}], v{7 + (t & 1)} offset:{off+6144}")]
    def bload_fn(ks):
        b = BR + (ks % BS)*8
        return ([Ins(f"s_mov_b32 s28, {ks*1024}")],
                [Ins(f"buffer_load_dwordx4 v[{b+4*ct}:{b+4*ct+3}], v{15+ct}, s[12:15], s28 offen") for ct in range(2)])
    def dma_fn(st):
        return ([Ins(f"s_add_u32 m0, s26, {(st % NS)*ST}"), Ins(f"s_mov_b32 s29, {st*32*3072}")],
                [Ins(f"buffer_load_dwordx4 v{2+i}, s[8:11], s29 offen offset:{i*1024} lds") for i in range(3)])
    H = {}
    if stamps: e("s_memtime s[42:43]")
    BPF = 4; DPF = 4
    for st in range(DPF):
        L, D = dma_fn(st); P.many(L); P.many(D); H[st] = D[-1]
        L, D = bload_fn(st); P.many(L); P.many(D); H.setdefault('b', {})[st] = D[-1]
    P.wait_vm(H[0]); e("s_barrier")
    PF = 6
    for n in range(PF):
        rr = tr_fn(n); P.many(rr); H.setdefault('tr', {})[n] = rr[-1]
    if stamps: e("s_memtime s[44:45]"); e("s_waitcnt lgkmcnt(0)")
    gemm_stream(P, 20, 12, 2, 1, acc_reg, AR, ASL, BR, BS, tr_fn, bload_fn, dma_fn, H, PF, BPF, DPF, 20)
    if stamps: e("s_memtime s[46:47]")
    for u in range(3):
        e(f"s_mov_b32 s28, {u*1024}")
        for ct in range(2):
            dst = 20 + (u*2 + ct)*4
            for hh in range(2):
                j = 2*u + hh
                g = acc_reg(j, ct); up = acc_reg(6+j, ct)
                for i in range(4): e(f"v_max_f32 v{g+i}, 0, v{g+i}")
                for i in range(4): e(f"v_mul_f32 v{g+i}, v{g+i}, v{up+i}")
                e(f"v_cvt_pk_bf16_f32 v{dst+2*hh}, v{g}, v{g+1}")
                e(f"v_cvt_pk_bf16_f32 v{dst+2*hh+1}, v{g+2}, v{g+3}")
            e(f"buffer_store_dwordx4 v[{dst}:{dst+3}], v{17+ct}, s[12:15], s28 offen sc1")
    if stamps:
        e("s_waitcnt vmcnt(0)"); e("s_memtime s[48:49]")
        write_stamps(P, 5, 23, 12)
    e("K5_END:")
    e("s_endpgm")
    P.finalize()
    return P

def gen_k6(stamps=False):
    P = Prog(); e = P.e
    NS = 6; ST = 5120
    e("s_cmp_ge_u32 s2, 256"); e("s_cbranch_scc1 K6_END")
    e("s_load_dwordx2 s[4:5], s[0:1], 64")
    e("s_load_dwordx2 s[6:7], s[0:1], 88")
    e("s_load_dwordx2 s[16:17], s[0:1], 104")
    if stamps: e("s_memtime s[40:41]")
    e("s_and_b32 s20, s2, 7"); e("s_lshl_b32 s20, s20, 2"); e("s_lshr_b32 s3, s2, 6"); e("s_add_u32 s20, s20, s3")
    e("s_lshr_b32 s21, s2, 3"); e("s_and_b32 s21, s21, 7")
    e("v_lshrrev_b32 v1, 6, v0"); e("v_and_b32 v0, 63, v0")
    e("v_readfirstlane_b32 s23, v1")
    for i in range(5):
        e(f"v_add_u32 v10, {i*64}, v0")
        e("v_mul_u32_u24 v11, 6554, v10"); e("v_lshrrev_b32 v11, 16, v11")
        e("v_mul_u32_u24 v12, 10, v11"); e("v_sub_u32 v12, v10, v12")
        e("v_lshlrev_b32 v12, 4, v12"); e("v_mul_u32_u24 v11, 1280, v11"); e("v_add_u32 v11, v11, v12")
        e(f"v_add_u32 v{2+i}, {BIAS - (i*1024 if i < 4 else 0)}, v11")
    e("v_lshrrev_b32 v11, 2, v0"); e("v_mul_u32_u24 v11, 160, v11")
    e("v_and_b32 v12, 3, v0"); e("v_lshlrev_b32 v12, 3, v12"); e("v_add_u32 v7, v11, v12")
    e(f"s_mul_i32 s26, s23, {NS*ST}"); e("v_add_u32 v7, s26, v7")
    e("s_lshl_b32 s24, s20, 2")
    e("s_mul_i32 s3, s24, 49152"); e("s_mul_i32 s25, s23, 12288"); e("s_add_u32 s3, s3, s25"); e(f"s_add_u32 s3, s3, {WS_ACT}")
    e("v_lshlrev_b32 v10, 4, v0"); e("v_add_u32 v15, s3, v10")
    for ct in range(1, 4): e(f"v_add_u32 v{15+ct}, {ct*49152}, v15")
    e("s_mul_i32 s27, s23, 491520")
    e("s_add_u32 s3, s24, s23"); e("s_mul_i32 s30, s3, 20480"); e(f"s_add_u32 s30, s30, {WS_X1}")
    e("v_add_u32 v8, s30, v10")
    e("v_lshrrev_b32 v11, 4, v0"); e("v_lshlrev_b32 v11, 4, v11"); e("s_mul_i32 s3, s21, 320"); e(f"s_add_u32 s3, s3, {WS_GB}"); e("v_add_u32 v9, s3, v11")
    e("v_and_b32 v12, 15, v0"); e("s_lshl_b32 s3, s20, 6"); e("s_lshl_b32 s25, s23, 4"); e("s_add_u32 s3, s3, s25"); e("v_add_u32 v12, s3, v12")
    e("v_mul_u32_u24 v12, 1280, v12"); e("v_lshrrev_b32 v11, 4, v0"); e("v_lshlrev_b32 v11, 3, v11"); e("v_add_u32 v12, v12, v11")
    e("s_mul_i32 s3, s21, 160"); e("v_add_u32 v14, s3, v12")
    e("s_waitcnt lgkmcnt(0)")
    e("s_mul_i32 s3, s21, 160")
    e("s_add_u32 s8, s4, s3"); e("s_addc_u32 s9, s5, 0"); e(f"s_sub_u32 s8, s8, {BIAS}"); e("s_subb_u32 s9, s9, 0")
    e(f"s_sub_u32 s10, {1536*1280+BIAS}, s3"); e("s_mov_b32 s11, 0x20000")
    srd(P, 12, 16, 17, WS_BYTES); srd(P, 32, 6, 7, 2048*1280)
    ACC = 176
    AR = 20; ASL = 8
    BR = 52; BS = 4
    XR = 116
    def acc_reg(t, ct): return ACC + (t*4 + ct)*4
    def tr_fn(n):
        ks, t = divmod(n, 5)
        off = (ks % NS)*ST + t*32
        r = AR + (n % ASL)*4
        return [Ins(f"ds_read_b64_tr_b16 v[{r}:{r+1}], v7 offset:{off}"),
                Ins(f"ds_read_b64_tr_b16 v[{r+2}:{r+3}], v7 offset:{off+2560}")]
    def bload_fn(ks):
        b = BR + (ks % BS)*16
        return ([Ins(f"s_mov_b32 s28, {ks*1024}")],
                [Ins(f"buffer_load_dwordx4 v[{b+4*ct}:{b+4*ct+3}], v{15+ct}, s[12:15], s28 offen") for ct in range(4)])
    def dma_fn(st):
        L = [Ins(f"s_add_u32 m0, s26, {(st % NS)*ST}"), Ins(f"s_add_u32 s29, s27, {st*32*1280}")]
        D = [Ins(f"buffer_load_dwordx4 v{2+i}, s[8:11], s29 offen offset:{i*1024} lds") for i in range(4)]
        D.append(Ins(f"s_add_u32 m0, s26, {(st % NS)*ST + 4096}"))
        D.append(Ins(f"buffer_load_dwordx4 v6, s[8:11], s29 offen lds"))
        return L, D
    H = {}
    if stamps: e("s_memtime s[42:43]")
    NK = 12; DPF = 4; BPF = 3
    bh = {}
    for st in range(DPF):
        L, D = dma_fn(st); P.many(L); P.many(D); H[st] = D[-1]
        if st < BPF:
            L, D = bload_fn(st); P.many(L); P.many(D); bh[st] = D[-1]
    for t in range(5):
        e(f"s_mul_i32 s3, s21, 5"); e(f"s_add_u32 s3, s3, {t}"); e("s_lshr_b32 s31, s3, 1"); e("s_lshl_b32 s31, s31, 10")
        e("s_and_b32 s3, s3, 1"); e("s_lshl_b32 s3, s3, 3"); e("s_add_u32 s31, s31, s3")
        e(f"buffer_load_dwordx2 v[{XR+2*t}:{XR+2*t+1}], v8, s[12:15], s31 offen")
        e(f"buffer_load_dwordx4 v[{128+4*t}:{131+4*t}], v9, s[12:15], 0 offen offset:{t*64}")
    GOPT_b = GOPT['barrier']; GOPT['barrier'] = False
    H['b'] = bh
    P.wait_vm(H[0])
    PF = 4
    for n in range(PF):
        rr = tr_fn(n); P.many(rr); H.setdefault('tr', {})[n] = rr[-1]
    if stamps: e("s_memtime s[44:45]"); e("s_waitcnt lgkmcnt(0)")
    global GAP
    g0 = GAP; GAP = 2
    gemm_stream(P, NK, 5, 4, 1, acc_reg, AR, ASL, BR, BS, tr_fn, bload_fn, dma_fn, H, PF, BPF, DPF, NK, WG=1)
    GAP = g0; GOPT['barrier'] = GOPT_b
    if stamps: e("s_memtime s[46:47]")
    e("s_barrier")
    e("v_lshlrev_b32 v10, 4, v0")
    e("s_mul_i32 s3, s23, 20480"); e("v_add_u32 v11, s3, v10")
    for ct in range(4):
        for t in range(5):
            a = acc_reg(t, ct)
            e(f"ds_write_b128 v11, v[{a}:{a+3}] offset:{(ct*5+t)*1024}")
    e("s_waitcnt lgkmcnt(0)"); e("s_barrier")
    e("s_mul_i32 s3, s23, 5120"); e("v_add_u32 v11, s3, v10")
    e("v_add_u32 v13, 40960, v11")
    for sw in range(4):
        for t in range(5):
            r = 20 + (sw*5 + t)*4
            e(f"ds_read_b128 v[{r}:{r+3}], v{11 if sw < 2 else 13} offset:{(sw & 1)*20480 + t*1024}")
    for t in range(5):
        y = 20 + t*4
        for sw in range(1, 4):
            for i in range(4): e(f"v_add_f32 v{y+i}, v{y+i}, v{20+(sw*5+t)*4+i}")
        x = XR + 2*t
        e(f"v_lshlrev_b32 v148, 16, v{x}"); e(f"v_and_b32 v149, 0xffff0000, v{x}")
        e(f"v_lshlrev_b32 v150, 16, v{x+1}"); e(f"v_and_b32 v151, 0xffff0000, v{x+1}")
        for i in range(4): e(f"v_fma_f32 v{y+i}, v{y+i}, v{128+4*t+i}, v{148+i}")
        e(f"v_cvt_pk_bf16_f32 v{y}, v{y}, v{y+1}"); e(f"v_cvt_pk_bf16_f32 v{y+1}, v{y+2}, v{y+3}")
        e(f"buffer_store_dwordx2 v[{y}:{y+1}], v14, s[32:35], 0 offen offset:{t*32}")
    if stamps:
        e("s_waitcnt vmcnt(0)"); e("s_memtime s[48:49]")
        write_stamps(P, 5, 23, 12)
    e("K6_END:")
    e("s_endpgm")
    P.finalize()
    return P

def gen_k3b(stamps=False, auto=True):
    P = Prog(); e = P.e
    NS = 5; ST = 24576
    e("s_cmp_ge_u32 s2, 256"); e("s_cbranch_scc1 K3_END")
    e("s_load_dwordx2 s[4:5], s[0:1], 32")
    e("s_load_dwordx2 s[6:7], s[0:1], 104")
    if stamps: e("s_memtime s[40:41]")
    e("s_and_b32 s20, s2, 3")
    e("s_lshr_b32 s3, s2, 2"); e("s_and_b32 s3, s3, 1"); e("s_lshl_b32 s3, s3, 3")
    e("s_lshr_b32 s21, s2, 5"); e("s_add_u32 s21, s21, s3")
    e("s_lshr_b32 s22, s2, 3"); e("s_and_b32 s22, s22, 3")
    e("v_lshrrev_b32 v1, 6, v0"); e("v_and_b32 v0, 63, v0")
    e("v_readfirstlane_b32 s23, v1")
    e("s_and_b32 s30, s23, 3"); e("s_lshr_b32 s31, s23, 2")
    for i in range(3):
        e(f"v_add_u32 v10, {i*64}, v0")
        e("v_mul_u32_u24 v11, 3277, v10"); e("v_lshrrev_b32 v11, 16, v11")
        e("v_mul_u32_u24 v12, 20, v11"); e("v_sub_u32 v12, v10, v12")
        e("v_lshrrev_b32 v13, 2, v11"); e("v_and_b32 v13, 1, v13"); e("v_lshlrev_b32 v13, 1, v13")
        e("v_xor_b32 v12, v12, v13")
        e("v_lshlrev_b32 v12, 4, v12")
        e("v_mul_u32_u24 v11, 1280, v11")
        e("v_add_u32 v11, v11, v12")
        e(f"v_add_u32 v{2+i}, {BIAS - i*1024}, v11")
    e("s_mul_i32 s3, s23, 10240")
    for i in range(3): e(f"v_add_u32 v{2+i}, s3, v{2+i}")
    e("v_cmp_lt_u32 vcc, 31, v0"); e("v_mov_b32 v10, 0x7ff00000")
    e("s_nop 1")
    e("v_cndmask_b32 v4, v4, v10, vcc")
    e("v_lshrrev_b32 v10, 4, v0")
    e("v_lshrrev_b32 v11, 2, v0"); e("v_and_b32 v11, 7, v11")
    e("v_mul_u32_u24 v11, 320, v11")
    e("v_lshrrev_b32 v12, 1, v10"); e("v_mul_u32_u24 v12, 3072, v12"); e("v_add_u32 v11, v11, v12")
    e("v_and_b32 v12, 3, v0"); e("v_lshlrev_b32 v12, 3, v12"); e("v_add_u32 v11, v11, v12")
    e("s_mul_i32 s3, s31, 12288"); e("v_add_u32 v11, s3, v11")
    e("v_and_b32 v12, 1, v10"); e("v_lshlrev_b32 v12, 5, v12")
    e("v_add_u32 v7, v11, v12")
    e("v_xor_b32 v12, 32, v12"); e("v_add_u32 v8, v11, v12")
    e(f"v_add_u32 v9, {2*ST}, v7"); e(f"v_add_u32 v14, {2*ST}, v8")
    e(f"v_add_u32 v5, {4*ST}, v7"); e(f"v_add_u32 v6, {4*ST}, v8")
    e("s_lshl_b32 s3, s21, 3"); e("s_lshl_b32 s24, s30, 1"); e("s_add_u32 s24, s24, s3")
    e("s_mul_i32 s3, s24, 196608"); e("s_mul_i32 s25, s20, 49152"); e("s_add_u32 s3, s3, s25")
    e("s_lshl_b32 s25, s31, 10"); e("s_add_u32 s3, s3, s25"); e(f"s_add_u32 s3, s3, {WS_OF}")
    e("v_lshlrev_b32 v10, 4, v0"); e("v_add_u32 v15, s3, v10"); e("v_add_u32 v16, 196608, v15")
    e("s_lshl_b32 s3, s20, 7"); e("s_add_u32 s3, s3, s24"); e("s_add_u32 s3, s3, s31"); e("s_mul_i32 s3, s3, 20480")
    e("s_mul_i32 s25, s22, 5120"); e("s_add_u32 s3, s3, s25"); e(f"s_add_u32 s3, s3, {WS_PART}")
    e("v_add_u32 v17, s3, v10")
    e("s_mul_i32 s26, s23, 3072")
    e("s_mul_i32 s27, s20, 1966080")
    e("s_waitcnt lgkmcnt(0)")
    e("s_mul_i32 s3, s22, 320")
    e("s_add_u32 s8, s4, s3"); e("s_addc_u32 s9, s5, 0"); e(f"s_sub_u32 s8, s8, {BIAS}"); e("s_subb_u32 s9, s9, 0")
    e(f"s_sub_u32 s10, {7864320+BIAS}, s3"); e("s_mov_b32 s11, 0x20000")
    srd(P, 12, 6, 7, WS_BYTES)
    ACC = 176; AR = 20; ASL = 12; BR = 68; BS = 5
    def acc_reg(t, ct): return ACC + (t*2 + ct)*4
    def tr_fn(n):
        st, t = divmod(n, 10)
        slot = st % NS
        sett, so = divmod(slot, 2)
        areg = [[7, 8], [9, 14], [5, 6]][sett][t & 1]
        off = so*ST + (t >> 1)*64
        r = AR + (n % ASL)*4
        return [Ins(f"ds_read_b64_tr_b16 v[{r}:{r+1}], v{areg} offset:{off}"),
                Ins(f"ds_read_b64_tr_b16 v[{r+2}:{r+3}], v{areg} offset:{off+6144}")]
    def bload_fn(ks):
        b = BR + (ks % BS)*8
        return ([Ins(f"s_mov_b32 s28, {ks*2048}")],
                [Ins(f"buffer_load_dwordx4 v[{b+4*ct}:{b+4*ct+3}], v{15+ct}, s[12:15], s28 offen") for ct in range(2)])
    def dma_fn(st):
        return ([Ins(f"s_add_u32 m0, s26, {(st % NS)*ST}"), Ins(f"s_add_u32 s29, s27, {st*81920}")],
                [Ins(f"buffer_load_dwordx4 v{2+i}, s[8:11], s29 offen offset:{i*1024} lds") for i in range(3)])
    H = {}
    if stamps: e("s_memtime s[42:43]")
    BPF = 4; DPF = 4
    for st in range(DPF):
        L, D = dma_fn(st); P.many(L); P.many(D); H[st] = D[-1]
        L, D = bload_fn(st); P.many(L); P.many(D); H.setdefault('b', {})[st] = D[-1]
        if st == 0: first = H[0]
    P.wait_vm(H[0]); e("s_barrier")
    PF = 6
    for n in range(PF):
        rr = tr_fn(n); P.many(rr); H.setdefault('tr', {})[n] = rr[-1]
    if stamps: e("s_memtime s[44:45]"); e("s_waitcnt lgkmcnt(0)")
    gemm_stream(P, 24, 10, 2, 1, acc_reg, AR, ASL, BR, BS, tr_fn, bload_fn, dma_fn, H, PF, BPF, DPF, 24)
    if stamps: e("s_memtime s[46:47]")
    e("s_barrier")
    e("v_lshlrev_b32 v10, 4, v0")
    e("s_mul_i32 s3, s23, 10240"); e("v_add_u32 v11, s3, v10")
    e("s_xor_b32 s3, s23, 4"); e("s_mul_i32 s3, s3, 10240"); e("v_add_u32 v12, s3, v10")
    e("s_cmp_eq_u32 s31, 0"); e("s_cbranch_scc0 K3_KG1")
    for kg in range(2):
        if kg == 1: e("K3_KG1:")
        for t in range(10):
            a = acc_reg(t, 1-kg)
            e(f"ds_write_b128 v11, v[{a}:{a+3}] offset:{t*1024}")
        e("s_waitcnt lgkmcnt(0)"); e("s_barrier")
        for t in range(10):
            e(f"ds_read_b128 v[{20+4*t}:{23+4*t}], v12 offset:{t*1024}")
        for u in range(5):
            for hh in range(2):
                t = 2*u + hh; a = acc_reg(t, kg)
                for i in range(4): e(f"v_add_f32 v{a+i}, v{a+i}, v{20+4*t+i}")
                e(f"v_cvt_pk_bf16_f32 v{64+4*u+2*hh}, v{a}, v{a+1}")
                e(f"v_cvt_pk_bf16_f32 v{64+4*u+2*hh+1}, v{a+2}, v{a+3}")
            e(f"s_mov_b32 s28, {u*1024}")
            e(f"buffer_store_dwordx4 v[{64+4*u}:{67+4*u}], v17, s[12:15], s28 offen sc1")
        if kg == 0: e("s_branch K3_FIN")
    e("K3_FIN:")
    if stamps:
        e("s_waitcnt vmcnt(0)"); e("s_memtime s[48:49]")
        write_stamps(P, 5, 23, 12, 3)
    e("K3_END:")
    e("s_endpgm")
    P.finalize(auto_wait=auto)
    return P

def gen_k5b(stamps=False):
    P = Prog(); e = P.e
    NS = 5; ST = 24576
    e("s_cmp_ge_u32 s2, 256"); e("s_cbranch_scc1 K5_END")
    e("s_load_dwordx4 s[4:7], s[0:1], 48")
    e("s_load_dwordx2 s[16:17], s[0:1], 104")
    if stamps: e("s_memtime s[40:41]")
    e("s_and_b32 s20, s2, 7"); e("s_lshl_b32 s20, s20, 1"); e("s_lshr_b32 s3, s2, 3"); e("s_and_b32 s21, s3, 1"); e("s_add_u32 s20, s20, s21")
    e("s_lshr_b32 s21, s2, 4")
    e("v_lshrrev_b32 v1, 6, v0"); e("v_and_b32 v0, 63, v0")
    e("v_readfirstlane_b32 s23, v1")
    e("s_and_b32 s30, s23, 3"); e("s_lshr_b32 s31, s23, 2")
    e("v_lshrrev_b32 v10, 2, v0")
    e("s_lshr_b32 s3, s23, 1"); e("s_lshl_b32 s3, s3, 4"); e("v_add_u32 v10, s3, v10")
    e("v_lshrrev_b32 v11, 2, v10"); e("v_and_b32 v11, 1, v11"); e("v_lshlrev_b32 v11, 1, v11")
    e("v_and_b32 v12, 3, v0"); e("v_xor_b32 v11, v11, v12"); e("v_lshlrev_b32 v11, 4, v11")
    e("v_mul_u32_u24 v10, 3072, v10"); e("v_add_u32 v10, v10, v11")
    e(f"v_add_u32 v2, {BIAS}, v10"); e(f"v_add_u32 v3, {BIAS + 64 - 1024}, v10"); e(f"v_add_u32 v4, {BIAS + 128 - 2048}, v10")
    e("v_lshrrev_b32 v10, 4, v0")
    e("v_lshrrev_b32 v11, 2, v0"); e("v_lshlrev_b32 v11, 6, v11")
    e("v_and_b32 v12, 3, v0"); e("v_lshlrev_b32 v12, 3, v12"); e("v_add_u32 v11, v11, v12")
    e("s_mul_i32 s3, s31, 12288"); e("v_add_u32 v11, s3, v11")
    e("v_and_b32 v12, 1, v10"); e("v_lshlrev_b32 v12, 5, v12")
    e("v_add_u32 v7, v11, v12"); e("v_xor_b32 v12, 32, v12"); e("v_add_u32 v8, v11, v12")
    e(f"v_add_u32 v9, {2*ST}, v7"); e(f"v_add_u32 v14, {2*ST}, v8")
    e(f"v_add_u32 v5, {4*ST}, v7"); e(f"v_add_u32 v6, {4*ST}, v8")
    e("s_lshl_b32 s3, s21, 3"); e("s_lshl_b32 s24, s30, 1"); e("s_add_u32 s24, s24, s3")
    e("s_mul_i32 s3, s24, 20480"); e("s_lshl_b32 s25, s31, 10"); e("s_add_u32 s3, s3, s25"); e(f"s_add_u32 s3, s3, {WS_H2F}")
    e("v_lshlrev_b32 v10, 4, v0"); e("v_add_u32 v15, s3, v10"); e("v_add_u32 v16, 20480, v15")
    e("s_add_u32 s3, s24, s31"); e("s_mul_i32 s3, s3, 49152"); e("s_mul_i32 s25, s20, 3072"); e("s_add_u32 s3, s3, s25"); e(f"s_add_u32 s3, s3, {WS_ACT}")
    e("v_add_u32 v17, s3, v10")
    e("s_mul_i32 s26, s23, 3072")
    e("s_waitcnt lgkmcnt(0)")
    e("s_and_b32 s3, s23, 1"); e("s_cmp_eq_u32 s3, 0")
    e("s_cselect_b32 s8, s4, s6"); e("s_cselect_b32 s9, s5, s7")
    e("s_mul_i32 s3, s20, 192")
    e("s_add_u32 s8, s8, s3"); e("s_addc_u32 s9, s9, 0"); e(f"s_sub_u32 s8, s8, {BIAS}"); e("s_subb_u32 s9, s9, 0")
    e(f"s_sub_u32 s10, {640*3072+BIAS}, s3"); e("s_mov_b32 s11, 0x20000")
    srd(P, 12, 16, 17, WS_BYTES)
    ACC = 160; AR = 20; ASL = 12; BR = 68; BS = 5
    def acc_reg(t, ct): return ACC + (t*2 + ct)*4
    def tr_fn(n):
        st, t = divmod(n, 12)
        p = 3*(t // 6) + ((t % 6) >> 1)
        sett, so = divmod(st % NS, 2)
        areg = [[7, 8], [9, 14], [5, 6]][sett][t & 1]
        off = so*ST + p*1024
        r = AR + (n % ASL)*4
        return [Ins(f"ds_read_b64_tr_b16 v[{r}:{r+1}], v{areg} offset:{off}"),
                Ins(f"ds_read_b64_tr_b16 v[{r+2}:{r+3}], v{areg} offset:{off+6144}")]
    def bload_fn(ks):
        b = BR + (ks % BS)*8
        return ([Ins(f"s_mov_b32 s28, {ks*2048}")],
                [Ins(f"buffer_load_dwordx4 v[{b+4*ct}:{b+4*ct+3}], v{15+ct}, s[12:15], s28 offen") for ct in range(2)])
    def dma_fn(st):
        return ([Ins(f"s_add_u32 m0, s26, {(st % NS)*ST}"), Ins(f"s_mov_b32 s29, {st*64*3072}")],
                [Ins(f"buffer_load_dwordx4 v{2+i}, s[8:11], s29 offen offset:{i*1024} lds") for i in range(3)])
    H = {}
    if stamps: e("s_memtime s[42:43]")
    BPF = 4; DPF = 4
    for st in range(DPF):
        L, D = dma_fn(st); P.many(L); P.many(D); H[st] = D[-1]
        L, D = bload_fn(st); P.many(L); P.many(D); H.setdefault('b', {})[st] = D[-1]
    P.wait_vm(H[0]); e("s_barrier")
    PF = 6
    for n in range(PF):
        rr = tr_fn(n); P.many(rr); H.setdefault('tr', {})[n] = rr[-1]
    if stamps: e("s_memtime s[44:45]"); e("s_waitcnt lgkmcnt(0)")
    gemm_stream(P, 10, 12, 2, 1, acc_reg, AR, ASL, BR, BS, tr_fn, bload_fn, dma_fn, H, PF, BPF, DPF, 10)
    if stamps: e("s_memtime s[46:47]")
    e("s_barrier")
    e("v_lshlrev_b32 v10, 4, v0")
    e("s_mul_i32 s3, s23, 12288"); e("v_add_u32 v11, s3, v10")
    e("s_xor_b32 s3, s23, 4"); e("s_mul_i32 s3, s3, 12288"); e("v_add_u32 v12, s3, v10")
    e("s_cmp_eq_u32 s31, 0"); e("s_cbranch_scc0 K5_KG1")
    for kg in range(2):
        if kg == 1: e("K5_KG1:")
        for t in range(12):
            a = acc_reg(t, 1-kg)
            e(f"ds_write_b128 v11, v[{a}:{a+3}] offset:{t*1024}")
        e("s_waitcnt lgkmcnt(0)"); e("s_barrier")
        for t in range(12):
            e(f"ds_read_b128 v[{20+4*t}:{23+4*t}], v12 offset:{t*1024}")
        for t in range(12):
            a = acc_reg(t, kg)
            for i in range(4): e(f"v_add_f32 v{a+i}, v{a+i}, v{20+4*t+i}")
        for u in range(3):
            dst = 80 + u*4
            for hh in range(2):
                j = 2*u + hh
                g = acc_reg(j, kg); up = acc_reg(6+j, kg)
                for i in range(4): e(f"v_max_f32 v{g+i}, 0, v{g+i}")
                for i in range(4): e(f"v_mul_f32 v{g+i}, v{g+i}, v{up+i}")
                e(f"v_cvt_pk_bf16_f32 v{dst+2*hh}, v{g}, v{g+1}")
                e(f"v_cvt_pk_bf16_f32 v{dst+2*hh+1}, v{g+2}, v{g+3}")
            e(f"s_mov_b32 s28, {u*1024}")
            e(f"buffer_store_dwordx4 v[{dst}:{dst+3}], v17, s[12:15], s28 offen sc1")
        if kg == 0: e("s_branch K5_FIN")
    e("K5_FIN:")
    if stamps:
        e("s_waitcnt vmcnt(0)"); e("s_memtime s[48:49]")
        write_stamps(P, 5, 23, 12, 3)
    e("K5_END:")
    e("s_endpgm")
    P.finalize()
    return P

def gen_k6b(stamps=False):
    P = Prog(); e = P.e
    NS = 3; ST = 5120
    e("s_cmp_ge_u32 s2, 256"); e("s_cbranch_scc1 K6_END")
    e("s_load_dwordx2 s[4:5], s[0:1], 64")
    e("s_load_dwordx2 s[6:7], s[0:1], 88")
    e("s_load_dwordx2 s[16:17], s[0:1], 104")
    if stamps: e("s_memtime s[40:41]")
    e("s_and_b32 s20, s2, 7"); e("s_lshl_b32 s20, s20, 2"); e("s_lshr_b32 s3, s2, 6"); e("s_add_u32 s20, s20, s3")
    e("s_lshr_b32 s21, s2, 3"); e("s_and_b32 s21, s21, 7")
    e("v_lshrrev_b32 v1, 6, v0"); e("v_and_b32 v0, 63, v0")
    e("v_readfirstlane_b32 s23, v1")
    for i in range(5):
        e(f"v_add_u32 v10, {i*64}, v0")
        e("v_mul_u32_u24 v11, 6554, v10"); e("v_lshrrev_b32 v11, 16, v11")
        e("v_mul_u32_u24 v12, 10, v11"); e("v_sub_u32 v12, v10, v12")
        e("v_lshlrev_b32 v12, 4, v12"); e("v_mul_u32_u24 v11, 1280, v11"); e("v_add_u32 v11, v11, v12")
        e(f"v_add_u32 v{2+i}, {BIAS - (i*1024 if i < 4 else 0)}, v11")
    e("v_lshrrev_b32 v11, 2, v0"); e("v_mul_u32_u24 v11, 160, v11")
    e("v_and_b32 v12, 3, v0"); e("v_lshlrev_b32 v12, 3, v12"); e("v_add_u32 v7, v11, v12")
    e(f"s_mul_i32 s26, s23, {NS*ST}"); e("v_add_u32 v7, s26, v7")
    e("s_lshl_b32 s24, s20, 2")
    e("s_mul_i32 s3, s24, 49152"); e("s_mul_i32 s25, s23, 6144"); e("s_add_u32 s3, s3, s25"); e(f"s_add_u32 s3, s3, {WS_ACT}")
    e("v_lshlrev_b32 v10, 4, v0"); e("v_add_u32 v15, s3, v10")
    for ct in range(1, 4): e(f"v_add_u32 v{15+ct}, {ct*49152}, v15")
    e("s_mul_i32 s27, s23, 245760")
    e("s_lshr_b32 s36, s23, 1"); e("s_and_b32 s37, s23, 1")
    e("s_add_u32 s3, s24, s36"); e("s_mul_i32 s30, s3, 20480"); e(f"s_add_u32 s30, s30, {WS_X1}")
    e("v_add_u32 v8, s30, v10")
    e("v_lshrrev_b32 v11, 4, v0"); e("v_lshlrev_b32 v11, 4, v11"); e("s_mul_i32 s3, s21, 320"); e(f"s_add_u32 s3, s3, {WS_GB}")
    e("s_mul_i32 s25, s37, 192"); e("s_add_u32 s3, s3, s25"); e("v_add_u32 v9, s3, v11")
    e("v_and_b32 v12, 15, v0"); e("s_lshl_b32 s3, s20, 6"); e("s_lshl_b32 s25, s36, 4"); e("s_add_u32 s3, s3, s25"); e("v_add_u32 v12, s3, v12")
    e("v_mul_u32_u24 v12, 1280, v12"); e("v_lshrrev_b32 v11, 4, v0"); e("v_lshlrev_b32 v11, 3, v11"); e("v_add_u32 v12, v12, v11")
    e("s_mul_i32 s3, s21, 160"); e("s_mul_i32 s25, s37, 96"); e("s_add_u32 s3, s3, s25"); e("v_add_u32 v14, s3, v12")
    e("s_waitcnt lgkmcnt(0)")
    e("s_mul_i32 s3, s21, 160")
    e("s_add_u32 s8, s4, s3"); e("s_addc_u32 s9, s5, 0"); e(f"s_sub_u32 s8, s8, {BIAS}"); e("s_subb_u32 s9, s9, 0")
    e(f"s_sub_u32 s10, {1536*1280+BIAS}, s3"); e("s_mov_b32 s11, 0x20000")
    srd(P, 12, 16, 17, WS_BYTES); srd(P, 32, 6, 7, 2048*1280)
    ACC = 176; AR = 20; ASL = 8; BR = 52; BS = 6
    XR = 148; GBR = 156
    def acc_reg(t, ct): return ACC + (t*4 + ct)*4
    def tr_fn(n):
        ks, t = divmod(n, 5)
        off = (ks % NS)*ST + t*32
        r = AR + (n % ASL)*4
        return [Ins(f"ds_read_b64_tr_b16 v[{r}:{r+1}], v7 offset:{off}"),
                Ins(f"ds_read_b64_tr_b16 v[{r+2}:{r+3}], v7 offset:{off+2560}")]
    def bload_fn(ks):
        b = BR + (ks % BS)*16
        return ([Ins(f"s_mov_b32 s28, {ks*1024}")],
                [Ins(f"buffer_load_dwordx4 v[{b+4*ct}:{b+4*ct+3}], v{15+ct}, s[12:15], s28 offen") for ct in range(4)])
    def dma_fn(st):
        L = [Ins(f"s_add_u32 m0, s26, {(st % NS)*ST}"), Ins(f"s_add_u32 s29, s27, {st*32*1280}")]
        D = [Ins(f"buffer_load_dwordx4 v{2+i}, s[8:11], s29 offen offset:{i*1024} lds") for i in range(4)]
        D.append(Ins(f"s_add_u32 m0, s26, {(st % NS)*ST + 4096}"))
        D.append(Ins(f"buffer_load_dwordx4 v6, s[8:11], s29 offen lds"))
        return L, D
    H = {}; bh = {}
    if stamps: e("s_memtime s[42:43]")
    NK = 6
    for st in range(NS):
        L, D = dma_fn(st); P.many(L); P.many(D); H[st] = D[-1]
        L, D = bload_fn(st); P.many(L); P.many(D); bh[st] = D[-1]
    for st in range(NS, NK):
        L, D = bload_fn(st); P.many(L); P.many(D); bh[st] = D[-1]
    for j in range(3):
        e(f"s_mul_i32 s3, s21, 5"); e("s_mul_i32 s38, s37, 3"); e("s_add_u32 s3, s3, s38"); e(f"s_add_u32 s3, s3, {j}")
        e("s_lshr_b32 s31, s3, 1"); e("s_lshl_b32 s31, s31, 10"); e("s_and_b32 s3, s3, 1"); e("s_lshl_b32 s3, s3, 3"); e("s_add_u32 s31, s31, s3")
        e(f"buffer_load_dwordx2 v[{XR+2*j}:{XR+2*j+1}], v8, s[12:15], s31 offen")
        e(f"buffer_load_dwordx4 v[{GBR+4*j}:{GBR+4*j+3}], v9, s[12:15], 0 offen offset:{j*64}")
    H['b'] = bh
    bar0 = GOPT['barrier']; GOPT['barrier'] = False
    P.wait_vm(H[0])
    PF = 4
    for n in range(PF):
        rr = tr_fn(n); P.many(rr); H.setdefault('tr', {})[n] = rr[-1]
    if stamps: e("s_memtime s[44:45]"); e("s_waitcnt lgkmcnt(0)")
    global GAP
    g0 = GAP; GAP = 1
    gemm_stream(P, NK, 5, 4, 1, acc_reg, AR, ASL, BR, BS, tr_fn, bload_fn, dma_fn, H, PF, NK, 2, NK, WG=1)
    GAP = g0; GOPT['barrier'] = bar0
    if stamps: e("s_memtime s[46:47]")
    e("s_barrier")
    e("v_lshlrev_b32 v10, 4, v0")
    e("s_mul_i32 s3, s23, 20480"); e("v_add_u32 v11, s3, v10")
    for ct in range(4):
        for t in range(5):
            a = acc_reg(t, ct)
            e(f"ds_write_b128 v11, v[{a}:{a+3}] offset:{(ct*5+t)*1024}")
    e("s_waitcnt lgkmcnt(0)"); e("s_barrier")
    e("s_mul_i32 s3, s36, 5120"); e("s_mul_i32 s25, s37, 3072"); e("s_add_u32 s3, s3, s25"); e("v_add_u32 v11, s3, v10")
    for q in range(1, 4): e(f"v_add_u32 v{168+q}, {q*40960}, v11")
    def fin(j):
        y = 20 + j*32
        for sw in range(8):
            areg = 11 if sw < 2 else 168 + (sw >> 1)
            e(f"ds_read_b128 v[{y+4*sw}:{y+4*sw+3}], v{areg} offset:{(sw & 1)*20480 + j*1024}")
        for sw in range(1, 8):
            for i in range(4): e(f"v_add_f32 v{y+i}, v{y+i}, v{y+4*sw+i}")
        x = XR + 2*j
        e(f"v_lshlrev_b32 v172, 16, v{x}"); e(f"v_and_b32 v173, 0xffff0000, v{x}")
        e(f"v_lshlrev_b32 v174, 16, v{x+1}"); e(f"v_and_b32 v175, 0xffff0000, v{x+1}")
        for i in range(4): e(f"v_fma_f32 v{y+i}, v{y+i}, v{GBR+4*j+i}, v{172+i}")
        e(f"v_cvt_pk_bf16_f32 v{y}, v{y}, v{y+1}"); e(f"v_cvt_pk_bf16_f32 v{y+1}, v{y+2}, v{y+3}")
        e(f"buffer_store_dwordx2 v[{y}:{y+1}], v14, s[32:35], 0 offen offset:{j*32}")
    fin(0); fin(1)
    e("s_cmp_eq_u32 s37, 0"); e("s_cbranch_scc0 K6_FIN")
    fin(2)
    e("K6_FIN:")
    if stamps:
        e("s_waitcnt vmcnt(0)"); e("s_memtime s[48:49]")
        write_stamps(P, 5, 23, 12, 3)
    e("K6_END:")
    e("s_endpgm")
    P.finalize()
    return P

def write_stamps(P, n, sw, sws, sh=2):
    P.e("s_waitcnt lgkmcnt(0)")
    P.e(f"s_lshl_b32 s3, s2, {sh}"); P.e(f"s_add_u32 s3, s3, s{sw}"); P.e("s_lshl_b32 s3, s3, 6"); P.e(f"s_add_u32 s3, s3, {WS_STAMP}")
    for i in range(n):
        P.e(f"v_mov_b32 v1, s{40+2*i}")
        P.e(f"v_mov_b32 v2, s3")
        P.e(f"buffer_store_dword v1, v2, s[{sws}:{sws+3}], 0 offen offset:{4*i}")
        P.e("s_waitcnt vmcnt(0)")

if __name__ == "__main__":
    from k2gen import wrap
    k3 = gen_k3(stamps=True)
    print("k3 est", k3.estimate(), len(k3.final))
    open("k3.s", "w").write(wrap([("k3_kernel", k3.text(), 256, 256)], [("k3_kernel", 256, 256, 122880)]))
    for nm, fn, lds in (("k3", gen_k3b, 122880), ("k5", gen_k5b, 122880), ("k6", gen_k6b, 163840)):
        k = fn(stamps=True); print(nm, "b est", k.estimate(), len(k.final))
        open(nm + "b.s", "w").write(wrap([(nm + "_kernel", k.text(), 256, 256)], [(nm + "_kernel", 256, 512, lds)]))
    for nm, o in [("a", dict(dma=False, waits=False)), ("b", dict(bload=False, waits=False)), ("c", dict(waits=False)), ("d", dict(dma=False, bload=False, waits=False)), ("e", dict(waits=False, tr=False))]:
        GOPT.update(dict(dma=True, bload=True, tr=True, barrier=True, waits=True)); GOPT.update(o)
        k = gen_k3b(stamps=True, auto=False)
        open(f"k3b{nm}.s", "w").write(wrap([("k3_kernel", k.text(), 256, 256)], [("k3_kernel", 256, 512, 122880)]))
    GOPT.update(dict(dma=True, bload=True, tr=True, barrier=True, waits=True))
    k5 = gen_k5(stamps=True); print("k5 est", k5.estimate(), len(k5.final))
    open("k5.s", "w").write(wrap([("k5_kernel", k5.text(), 256, 256)], [("k5_kernel", 256, 256, 61440)]))
    k6 = gen_k6(stamps=True); print("k6 est", k6.estimate(), len(k6.final))
    open("k6.s", "w").write(wrap([("k6_kernel", k6.text(), 256, 256)], [("k6_kernel", 256, 256, 122880)]))
    for nm, o in [] and [("a", dict(dma=False, waits=False)), ("b", dict(bload=False, waits=False)), ("c", dict(waits=False)), ("d", dict(waits=False, barrier=False)), ("e", dict(waits=False, tr=False))]:
        GOPT.update(dict(dma=True, bload=True, tr=True, barrier=True, waits=True)); GOPT.update(o)
        k = gen_k3(stamps=True, auto=GOPT['waits'])
        open(f"k3{nm}.s", "w").write(wrap([("k3_kernel", k.text(), 256, 256)], [("k3_kernel", 256, 256, 122880)]))
```

```python
from asmgen import *
from k2gen import WS_MOD, WS_HF, WS_OF, WS_PART, WS_X1, WS_H2F, WS_ACT, WS_BYTES
C_SCALE = 192**-0.5 * 1.4426950408889634
import struct
def f2u(x): return struct.unpack('<I', struct.pack('<f', x))[0]

NSPLIT = 4

def srd(P, s, lo, hi, nbytes):
    P.e(f"s_mov_b32 s{s}, s{lo}"); P.e(f"s_mov_b32 s{s+1}, s{hi}")
    P.e(f"s_mov_b32 s{s+2}, {nbytes}"); P.e(f"s_mov_b32 s{s+3}, 0x20000")

def pf_role(P, name, nmain, npf, ranges):
    e = P.e
    e(f"{name}_PF:")
    e(f"s_cmp_ge_u32 s2, {nmain+npf}"); e(f"s_cbranch_scc1 {name}_END")
    e(f"s_sub_u32 s20, s2, {nmain}")
    e("v_lshlrev_b32 v1, 4, v0")
    for ri, (ko, boff, nbytes, total) in enumerate(ranges):
        per = -(-nbytes // (npf*4096))*4096
        e(f"s_load_dwordx2 s[4:5], s[0:1], {ko}")
        e("s_waitcnt lgkmcnt(0)")
        e("s_mov_b32 s8, s4"); e("s_mov_b32 s9, s5"); e(f"s_mov_b32 s10, {min(total, boff+nbytes)}"); e("s_mov_b32 s11, 0x20000")
        e(f"s_mul_i32 s21, s20, {per}"); e(f"s_add_u32 s21, s21, {boff}")
        for i in range(per // 4096):
            e(NT(f"buffer_load_dwordx4 v[4:7], v1, s[8:11], s21 offen"))
            e("s_add_u32 s21, s21, 4096")
    e("s_endpgm")

def pf_role_kv(P, name, nmain, npf, kos):
    e = P.e
    parts = npf // 32
    per = 196608 // parts
    e(f"s_sub_u32 s20, s2, {nmain}")
    e("s_and_b32 s22, s20, 31"); e("s_lshr_b32 s23, s20, 5")
    e(f"s_mul_i32 s22, s22, 786432"); e(f"s_mul_i32 s23, s23, {per}"); e("s_add_u32 s22, s22, s23"); e("s_add_u32 s22, s22, 589824")
    for ko in kos:
        e(f"s_load_dwordx2 s[4:5], s[0:1], {ko}")
        e("s_waitcnt lgkmcnt(0)")
        e("s_mov_b32 s8, s4"); e("s_mov_b32 s9, s5"); e(f"s_mov_b32 s10, 25165824"); e("s_mov_b32 s11, 0x20000")
        e("s_mov_b32 s21, s22")
        for i in range(per // 4096):
            e(NT(f"buffer_load_dwordx4 v[4:7], v1, s[8:11], s21 offen"))
            e("s_add_u32 s21, s21, 4096")

def gen_k0(prefetch=True):
    P = Prog(); e = P.e
    NWG = 30*NSPLIT
    e(f"s_cmp_ge_u32 s2, {NWG}"); e("s_cbranch_scc1 K0_PF")
    e("s_load_dwordx4 s[4:7], s[0:1], 72")
    e("s_load_dwordx2 s[16:17], s[0:1], 104")
    e("s_load_dwordx2 s[18:19], s[0:1], 24")
    e(f"s_mul_i32 s3, s2, {(65536+29)//30}"); e("s_lshr_b32 s20, s3, 16")
    e("s_mul_i32 s3, s20, 30"); e("s_sub_u32 s21, s2, s3")
    e("v_and_b32 v1, 15, v0")
    e("v_lshrrev_b32 v2, 4, v0")
    e(f"s_mul_i32 s3, s20, {640//NSPLIT}")
    e("v_add_u32 v3, s3, v2")
    e("v_lshlrev_b32 v4, 1, v3")
    e("s_mov_b32 s22, 7680")
    e("v_mul_lo_u32 v5, v3, s22")
    e("v_lshlrev_b32 v6, 4, v1")
    e("v_add_u32 v5, v5, v6")
    e("s_lshl_b32 s3, s21, 8"); e("v_add_u32 v5, s3, v5")
    e("s_waitcnt lgkmcnt(0)")
    srd(P, 8, 4, 5, 1280); srd(P, 12, 6, 7, 640*3840*2); srd(P, 24, 16, 17, WS_BYTES); srd(P, 28, 18, 19, 7864320)
    NR = 160//16
    for i in range(NR):
        e(f"buffer_load_ushort v{10+i}, v4, s[8:11], 0 offen offset:{32*i}")
    e(f"s_mov_b32 s23, 0")
    for i in range(NR):
        e(f"s_mov_b32 s23, {16*7680*i}")
        e(f"buffer_load_dwordx4 v[{24+4*i}:{27+4*i}], v5, s[12:15], s23 offen")
    for i in range(NR):
        r = 10+i
        e(f"v_lshlrev_b32 v{r}, 16, v{r}")
        e(f"v_mul_f32 v9, {f2u(-1.4426950408889634)}, v{r}")
        e("v_exp_f32 v9, v9")
        e("v_add_f32 v9, 1.0, v9")
        e("v_rcp_f32 v9, v9")
        e(f"v_mul_f32 v{r}, v{r}, v9")
        e(f"v_cvt_pk_bf16_f32 v{r}, v{r}, v{r}")
        e(f"v_and_b32 v{r}, 0xffff0000, v{r}")
    for j in range(8): e(f"v_mov_b32 v{70+j}, 0")
    for i in range(NR):
        for q in range(4):
            w = 24+4*i+q
            e(f"v_lshlrev_b32 v68, 16, v{w}")
            e(f"v_and_b32 v69, 0xffff0000, v{w}")
            e(f"v_fmac_f32 v{70+2*q}, v{10+i}, v68")
            e(f"v_fmac_f32 v{71+2*q}, v{10+i}, v69")
    e("v_lshlrev_b32 v6, 5, v1")
    e("v_lshlrev_b32 v7, 9, v2")
    e("v_add_u32 v6, v6, v7")
    e("ds_write_b128 v6, v[70:73]"); e("ds_write_b128 v6, v[74:77] offset:16")
    e("s_waitcnt lgkmcnt(0)"); e("s_barrier")
    e("v_cmp_gt_u32 vcc, 128, v0")
    e("s_and_saveexec_b64 s[32:33], vcc")
    e("s_cbranch_execz K0_END")
    e("v_lshlrev_b32 v6, 2, v0")
    for r in range(16): e(f"ds_read_b32 v{30+r}, v6 offset:{512*r}")
    for r in range(1, 16): e(f"v_add_f32 v30, v30, v{30+r}")
    e("s_mul_i32 s3, s20, 15360"); e("s_lshl_b32 s23, s21, 9"); e("s_add_u32 s3, s3, s23"); e(f"s_add_u32 s3, s3, {WS_MOD}")
    e("v_add_u32 v6, s3, v6")
    e("buffer_store_dword v30, v6, s[24:27], 0 offen")
    e("K0_END:")
    e("s_endpgm")
    pf_role(P, "K0", NWG, 128, [(24, 0, 7864320, 7864320)])
    P.finalize()
    return P

def load_mod_to_lds(P, idx_list, scale_fn, tid='v0', tbase=20, lds_base=0, store_idx={}):
    e = P.e
    e(f"v_lshlrev_b32 v{tbase}, 4, {tid}")
    r = tbase+4
    for n, idx in enumerate(idx_list):
        for p in range(NSPLIT):
            off = WS_MOD + (p*3840 + idx*640)*4
            e(f"s_mov_b32 s34, {off}")
            e(f"buffer_load_dwordx4 v[{r+(n*NSPLIT+p)*4}:{r+(n*NSPLIT+p)*4+3}], v{tbase}, s[24:27], s34 offen")
    for n, idx in enumerate(idx_list):
        b = r + n*NSPLIT*4
        for p in range(1, NSPLIT):
            for i in range(4): e(f"v_add_f32 v{b+i}, v{b+i}, v{b+4*p+i}")
        for i in range(4):
            e(f"v_cvt_pk_bf16_f32 v{b+i}, v{b+i}, v{b+i}")
            e(f"v_and_b32 v{b+i}, 0xffff0000, v{b+i}")
            scale_fn(P, n, b+i)
        if n in store_idx:
            e(f"s_mov_b32 s34, {store_idx[n]}")
            e(f"buffer_store_dwordx4 v[{b}:{b+3}], v{tbase}, s[24:27], s34 offen")
        else:
            e(f"ds_write_b128 v{tbase}, v[{b}:{b+3}] offset:{lds_base + n*4096}")

def row_reduce(P, val, red_base, tmp, addr_w, addr_r):
    e = P.e
    e(f"ds_write_b32 v{addr_w}, v{val} offset:{red_base}")
    e("s_waitcnt lgkmcnt(0)"); e("s_barrier")
    for q in range(4): e(f"ds_read_b128 v[{tmp+4*q}:{tmp+4*q+3}], v{addr_r} offset:{red_base+16*q}")
    e(f"v_add_f32 v{val}, v{tmp}, v{tmp+1}")
    for i in range(2, 16): e(f"v_add_f32 v{val}, v{val}, v{tmp+i}")

def ln_common(P, X, n, a1_lds, a0_lds, out_regs, w_sgpr, eps=1e-5):
    e = P.e
    RED0, RED1 = 12288, 13312
    e("v_lshlrev_b32 v4, 6, v2"); e("v_lshlrev_b32 v5, 2, v3"); e("v_add_u32 v5, v4, v5")
    e(f"s_lshl_b32 s3, s{w_sgpr}, 4"); e("v_add_u32 v5, s3, v5")
    e(f"v_add_f32 v6, v{X}, v{X+1}")
    for i in range(2, n): e(f"v_add_f32 v6, v6, v{X+i}")
    T = 200
    row_reduce(P, 6, RED0, T, 5, 4)
    e(f"v_mul_f32 v6, {f2u(1/640)}, v6")
    for i in range(n): e(f"v_sub_f32 v{X+i}, v{X+i}, v6")
    e(f"v_mul_f32 v7, v{X}, v{X}")
    for i in range(1, n): e(f"v_fmac_f32 v7, v{X+i}, v{X+i}")
    row_reduce(P, 7, RED1, T, 5, 4)
    e(f"v_mul_f32 v7, {f2u(1/640)}, v7")
    e(f"v_add_f32 v7, {f2u(eps)}, v7")
    e("v_rsq_f32 v7, v7")
    e(f"s_mul_i32 s3, s{w_sgpr}, {5*32*4}")
    e("v_lshlrev_b32 v8, 4, v3"); e("v_add_u32 v8, s3, v8")
    for j in range(5):
        for hh in range(2):
            off = j*128 + hh*64
            e(f"ds_read_b128 v[{T}:{T+3}], v8 offset:{a1_lds+off}")
            e(f"ds_read_b128 v[{T+4}:{T+7}], v8 offset:{a0_lds+off}")
            b = X + j*8 + hh*4
            for i in range(4):
                e(f"v_mul_f32 v{b+i}, v{b+i}, v7")
                e(f"v_fma_f32 v{b+i}, v{b+i}, v{T+i}, v{T+4+i}")
            e(f"v_cvt_pk_bf16_f32 v{out_regs+j*4+hh*2}, v{b}, v{b+1}")
            e(f"v_cvt_pk_bf16_f32 v{out_regs+j*4+hh*2+1}, v{b+2}, v{b+3}")

def load_x_pieces(P, X, raw, srd_x):
    e = P.e
    for j in range(5):
        for hh in range(2):
            e(f"buffer_load_dwordx2 v[{raw+(j*2+hh)*2}:{raw+(j*2+hh)*2+1}], v9, s[{srd_x}:{srd_x+3}], 0 offen offset:{j*64+hh*32}")

def unpack_x(P, X, raw):
    e = P.e
    for j in range(10):
        for q in range(2):
            e(f"v_lshlrev_b32 v{X+j*4+q*2}, 16, v{raw+j*2+q}")
            e(f"v_and_b32 v{X+j*4+q*2+1}, 0xffff0000, v{raw+j*2+q}")

def gen_k1(prefetch=True):
    P = Prog(); e = P.e
    e("s_cmp_ge_u32 s2, 128"); e("s_cbranch_scc1 K1_PF")
    e("s_load_dwordx2 s[4:5], s[0:1], 0")
    e("s_load_dwordx2 s[16:17], s[0:1], 104")
    e("v_lshrrev_b32 v1, 6, v0"); e("v_and_b32 v10, 63, v0")
    e("v_readfirstlane_b32 s20, v1")
    e("v_and_b32 v2, 15, v10"); e("v_lshrrev_b32 v3, 4, v10")
    e("s_lshl_b32 s3, s2, 4"); e("v_add_u32 v9, s3, v2"); e("v_mul_u32_u24 v9, 1280, v9")
    e("v_lshlrev_b32 v11, 3, v3"); e("v_add_u32 v9, v9, v11")
    e("s_mul_i32 s3, s20, 320"); e("v_add_u32 v9, s3, v9")
    e("s_waitcnt lgkmcnt(0)")
    srd(P, 8, 4, 5, 2048*1280); srd(P, 24, 16, 17, WS_BYTES)
    X = 100; RAW = 60
    load_x_pieces(P, X, RAW, 8)
    def sc(P, n, r):
        if n == 0:
            P.e(f"v_mul_f32 v{r}, {f2u(C_SCALE)}, v{r}")
        else:
            P.e(f"v_add_f32 v{r}, 1.0, v{r}")
            P.e(f"v_mul_f32 v{r}, {f2u(C_SCALE)}, v{r}")
    load_mod_to_lds(P, [0, 1], sc)
    unpack_x(P, X, RAW)
    OUT = 160
    ln_common(P, X, 40, 4096, 0, OUT, 20)
    e("s_mul_i32 s3, s2, 20480"); e("s_mul_i32 s21, s20, 5120"); e("s_add_u32 s3, s3, s21"); e(f"s_add_u32 s3, s3, {WS_HF}")
    e("v_lshlrev_b32 v11, 4, v10"); e("v_add_u32 v11, s3, v11")
    for j in range(5):
        e(f"buffer_store_dwordx4 v[{OUT+4*j}:{OUT+4*j+3}], v11, s[24:27], 0 offen offset:{j*1024 if j<4 else 0}" if j < 4 else f"s_mov_b32 s21, 4096")
    e(f"buffer_store_dwordx4 v[{OUT+16}:{OUT+19}], v11, s[24:27], s21 offen")
    e("K1_END:")
    e("s_endpgm")
    e("K1_PF:")
    e("s_cmp_ge_u32 s2, 256"); e("s_cbranch_scc1 K1_END")
    e("v_lshlrev_b32 v1, 4, v0")
    pf_role_kv(P, "K1", 128, 128, [8, 16])
    e("s_endpgm")
    P.finalize()
    return P

def gen_k4(part_bf16=False, nsplit=4):
    P = Prog(); e = P.e
    e("s_cmp_ge_u32 s2, 128"); e("s_cbranch_scc1 K4_PF")
    e("s_load_dwordx2 s[4:5], s[0:1], 0")
    e("s_load_dwordx2 s[16:17], s[0:1], 104")
    e("v_lshrrev_b32 v1, 6, v0"); e("v_and_b32 v10, 63, v0")
    e("v_readfirstlane_b32 s20, v1")
    e("v_and_b32 v2, 15, v10"); e("v_lshrrev_b32 v3, 4, v10")
    e("s_lshl_b32 s3, s2, 4"); e("v_add_u32 v9, s3, v2"); e("v_mul_u32_u24 v9, 1280, v9")
    e("v_lshlrev_b32 v11, 3, v3"); e("v_add_u32 v9, v9, v11")
    e("s_mul_i32 s3, s20, 320"); e("v_add_u32 v9, s3, v9")
    e("s_mul_i32 s3, s2, 20480"); e("s_mul_i32 s21, s20, 5120"); e("s_add_u32 s3, s3, s21"); e(f"s_add_u32 s3, s3, {WS_PART}")
    e("v_lshlrev_b32 v12, 4, v10"); e("v_add_u32 v12, s3, v12")
    e("s_waitcnt lgkmcnt(0)")
    srd(P, 8, 4, 5, 2048*1280); srd(P, 24, 16, 17, WS_BYTES)
    X = 100; RAW = 60; PRAW = 140
    load_x_pieces(P, X, RAW, 8)
    def sc(P, n, r):
        if n == 2: P.e(f"v_add_f32 v{r}, 1.0, v{r}")
    load_mod_to_lds(P, [2, 3, 4, 5], sc, tbase=160, store_idx={3: WS_MOD + 0x20000})
    ACC = 20
    PR = 232 - 80
    for p in range(nsplit):
        for j in range(5):
            o = p*128*20480 + j*1024
            e(f"s_mov_b32 s21, {o}")
            e(f"buffer_load_dwordx4 v[{PRAW+p*20+4*j}:{PRAW+p*20+4*j+3}], v12, s[24:27], s21 offen")
    for p in range(nsplit):
        for q in range(20):
            r = PRAW + p*20 + q
            if p == 0:
                e(f"v_lshlrev_b32 v{ACC+2*q}, 16, v{r}"); e(f"v_and_b32 v{ACC+2*q+1}, 0xffff0000, v{r}")
            else:
                e(f"v_lshlrev_b32 v14, 16, v{r}"); e(f"v_and_b32 v15, 0xffff0000, v{r}")
                e(f"v_add_f32 v{ACC+2*q}, v{ACC+2*q}, v14"); e(f"v_add_f32 v{ACC+2*q+1}, v{ACC+2*q+1}, v15")
    unpack_x(P, X, RAW)
    e("s_waitcnt lgkmcnt(0)"); e("s_barrier")
    e(f"s_mul_i32 s3, s20, 640"); e("v_lshlrev_b32 v8, 4, v3"); e("v_add_u32 v8, s3, v8")
    T = 200
    OUTX = 160
    for j in range(10):
        e(f"ds_read_b128 v[{T}:{T+3}], v8 offset:{j*64}")
        for i in range(4):
            e(f"v_fma_f32 v{X+j*4+i}, v{ACC+j*4+i}, v{T+i}, v{X+j*4+i}")
        e(f"v_cvt_pk_bf16_f32 v{OUTX+j*2}, v{X+j*4}, v{X+j*4+1}")
        e(f"v_cvt_pk_bf16_f32 v{OUTX+j*2+1}, v{X+j*4+2}, v{X+j*4+3}")
        for q in range(2):
            e(f"v_lshlrev_b32 v{X+j*4+q*2}, 16, v{OUTX+j*2+q}")
            e(f"v_and_b32 v{X+j*4+q*2+1}, 0xffff0000, v{OUTX+j*2+q}")
    e("s_mul_i32 s3, s2, 20480"); e("s_mul_i32 s21, s20, 5120"); e("s_add_u32 s3, s3, s21")
    e("v_lshlrev_b32 v11, 4, v10"); e("v_add_u32 v11, s3, v11")
    for j in range(5):
        e(f"s_mov_b32 s21, {WS_X1 + j*1024}")
        e(f"buffer_store_dwordx4 v[{OUTX+4*j}:{OUTX+4*j+3}], v11, s[24:27], s21 offen")
    OUT = 20
    ln_common(P, X, 40, 2*4096, 1*4096, OUT, 20)
    for j in range(5):
        e(f"s_mov_b32 s21, {WS_H2F + j*1024}")
        e(f"buffer_store_dwordx4 v[{OUT+4*j}:{OUT+4*j+3}], v11, s[24:27], s21 offen")
    e("K4_END:")
    e("s_endpgm")
    pf_role(P, "K4", 128, 128, [(48, 0, 1966080, 1966080), (56, 0, 1966080, 1966080), (64, 0, 1966080, 1966080)])
    P.finalize()
    return P

WS_MODF = WS_MOD + 0x10000
NGEMV = 30*NSPLIT
NLN = 128
N01 = NGEMV + NLN

SLEEP = 6
def gen_k01(pf=('wq',), npf=256):
    P = Prog(); e = P.e
    e(f"s_cmp_ge_u32 s2, {NGEMV}"); e("s_cbranch_scc1 K01_LN")
    e("s_load_dwordx4 s[4:7], s[0:1], 72")
    e("s_load_dwordx4 s[16:19], s[0:1], 96")
    e(f"s_mul_i32 s3, s2, {(65536+29)//30}"); e("s_lshr_b32 s20, s3, 16")
    e("s_mul_i32 s3, s20, 30"); e("s_sub_u32 s21, s2, s3")
    e("v_and_b32 v1, 15, v0"); e("v_lshrrev_b32 v2, 4, v0")
    e(f"s_mul_i32 s3, s20, {640//NSPLIT}")
    e("v_add_u32 v3, s3, v2"); e("v_lshlrev_b32 v4, 1, v3")
    e("s_mov_b32 s22, 7680"); e("v_mul_lo_u32 v5, v3, s22")
    e("v_lshlrev_b32 v6, 4, v1"); e("v_add_u32 v5, v5, v6")
    e("s_lshl_b32 s3, s21, 8"); e("v_add_u32 v5, s3, v5")
    e("s_waitcnt lgkmcnt(0)")
    srd(P, 8, 4, 5, 1280); srd(P, 12, 6, 7, 640*3840*2); srd(P, 24, 18, 19, WS_BYTES); srd(P, 28, 16, 17, 256)
    NR = 160//16
    for i in range(NR):
        e(f"s_mov_b32 s23, {16*7680*i}")
        e(f"buffer_load_dwordx4 v[{24+4*i}:{27+4*i}], v5, s[12:15], s23 offen")
    for i in range(NR):
        e(f"buffer_load_ushort v{10+i}, v4, s[8:11], 0 offen offset:{32*i}")
    for i in range(NR): e(f"v_lshlrev_b32 v{10+i}, 16, v{10+i}")
    for i in range(NR): e(f"v_mul_f32 v{80+i}, {f2u(-1.4426950408889634)}, v{10+i}")
    for i in range(NR): e(f"v_exp_f32 v{80+i}, v{80+i}")
    for i in range(NR): e(f"v_add_f32 v{80+i}, 1.0, v{80+i}")
    for i in range(NR): e(f"v_rcp_f32 v{80+i}, v{80+i}")
    for i in range(NR): e(f"v_mul_f32 v{10+i}, v{10+i}, v{80+i}")
    for i in range(NR): e(f"v_cvt_pk_bf16_f32 v{10+i}, v{10+i}, v{10+i}")
    for i in range(NR): e(f"v_and_b32 v{10+i}, 0xffff0000, v{10+i}")
    for j in range(8): e(f"v_mov_b32 v{70+j}, 0")
    for i in range(NR):
        for q in range(4):
            w = 24+4*i+q
            e(f"v_lshlrev_b32 v68, 16, v{w}"); e(f"v_and_b32 v69, 0xffff0000, v{w}")
            e(f"v_fmac_f32 v{70+2*q}, v{10+i}, v68"); e(f"v_fmac_f32 v{71+2*q}, v{10+i}, v69")
    e("v_lshlrev_b32 v6, 5, v1"); e("v_lshlrev_b32 v7, 9, v2"); e("v_add_u32 v6, v6, v7")
    e("ds_write_b128 v6, v[70:73]"); e("ds_write_b128 v6, v[74:77] offset:16")
    e("s_waitcnt lgkmcnt(0)"); e("s_barrier")
    e("v_cmp_gt_u32 vcc, 128, v0")
    e("s_and_saveexec_b64 s[32:33], vcc")
    e("s_cbranch_execz K01_END")
    e("v_lshlrev_b32 v6, 2, v0")
    for r in range(16): e(f"ds_read_b32 v{30+r}, v6 offset:{512*r}")
    for r in range(1, 16): e(f"v_add_f32 v30, v30, v{30+r}")
    e("s_mul_i32 s3, s20, 15360"); e("s_lshl_b32 s23, s21, 9"); e("s_add_u32 s3, s3, s23"); e(f"s_add_u32 s3, s3, {WS_MOD}")
    e("v_add_u32 v6, s3, v6")
    e("buffer_store_dword v30, v6, s[24:27], 0 offen sc1")
    e("s_waitcnt vmcnt(0)")
    e("s_cmp_ge_u32 s21, 10"); e("s_cbranch_scc1 K01_END")
    e("s_barrier")
    e("v_cmp_eq_u32 vcc, 0, v0")
    e("s_and_saveexec_b64 s[32:33], vcc")
    e("s_cbranch_execz K01_END")
    e("v_mov_b32 v7, 1"); e("v_mov_b32 v8, 0")
    e("buffer_atomic_add v7, v8, s[28:31], 0 offen sc1")
    e("K01_END:")
    e("s_endpgm")
    e("K01_LN:")
    e(f"s_cmp_ge_u32 s2, {N01}"); e("s_cbranch_scc1 K01_PF")
    e(f"s_sub_u32 s2, s2, {NGEMV}")
    e("s_load_dwordx2 s[4:5], s[0:1], 0")
    e("s_load_dwordx4 s[16:19], s[0:1], 96")
    e("v_lshrrev_b32 v1, 6, v0"); e("v_and_b32 v10, 63, v0")
    e("v_readfirstlane_b32 s20, v1")
    e("v_and_b32 v2, 15, v10"); e("v_lshrrev_b32 v3, 4, v10")
    e("s_lshl_b32 s3, s2, 4"); e("v_add_u32 v9, s3, v2"); e("v_mul_u32_u24 v9, 1280, v9")
    e("v_lshlrev_b32 v11, 3, v3"); e("v_add_u32 v9, v9, v11")
    e("s_mul_i32 s3, s20, 320"); e("v_add_u32 v9, s3, v9")
    e("s_waitcnt lgkmcnt(0)")
    srd(P, 8, 4, 5, 2048*1280); srd(P, 24, 18, 19, WS_BYTES); srd(P, 28, 16, 17, 256)
    X = 100; RAW = 60; T = 200
    load_x_pieces(P, X, RAW, 8)
    unpack_x(P, X, RAW)
    RED0, RED1 = 12288, 13312
    e("v_lshlrev_b32 v4, 6, v2"); e("v_lshlrev_b32 v5, 2, v3"); e("v_add_u32 v5, v4, v5")
    e(f"s_lshl_b32 s3, s20, 4"); e("v_add_u32 v5, s3, v5")
    e(f"v_add_f32 v6, v{X}, v{X+1}")
    for i in range(2, 40): e(f"v_add_f32 v6, v6, v{X+i}")
    row_reduce(P, 6, RED0, T, 5, 4)
    e(f"v_mul_f32 v6, {f2u(1/640)}, v6")
    for i in range(40): e(f"v_sub_f32 v{X+i}, v{X+i}, v6")
    e(f"v_mul_f32 v7, v{X}, v{X}")
    for i in range(1, 40): e(f"v_fmac_f32 v7, v{X+i}, v{X+i}")
    row_reduce(P, 7, RED1, T, 5, 4)
    e(f"v_mul_f32 v7, {f2u(1/640)}, v7"); e(f"v_add_f32 v7, {f2u(1e-5)}, v7"); e("v_rsq_f32 v7, v7")
    e("s_nop 0")
    for i in range(40): e(f"v_mul_f32 v{X+i}, v{X+i}, v7")
    e("s_cmp_lg_u32 s20, 0"); e("s_cbranch_scc1 K01_GO")
    e("s_cmp_eq_u32 s2, 0"); e("s_cselect_b32 s23, 0, 128"); e(f"s_cselect_b32 s35, {10*NSPLIT}, 1")
    e("v_mov_b32 v12, s23"); e("s_mov_b32 s21, 0")
    e("K01_POLL:")
    e("buffer_load_dword v13, v12, s[28:31], 0 offen sc1")
    e("s_waitcnt vmcnt(0)")
    e("v_readfirstlane_b32 s22, v13")
    e("s_add_u32 s21, s21, 1")
    e(f"s_cmp_ge_u32 s22, s35"); e("s_cbranch_scc1 K01_SEEN")
    e(f"s_sleep {SLEEP}")
    e("s_cmp_lt_u32 s21, 0x4000"); e("s_cbranch_scc1 K01_POLL")
    e("K01_SEEN:")
    e("s_cmp_lg_u32 s2, 0"); e("s_cbranch_scc1 K01_GO")
    e("v_mov_b32 v12, 128"); e("v_mov_b32 v13, 1")
    e("buffer_store_dword v13, v12, s[28:31], 0 offen sc1")
    e("K01_GO:")
    e("s_barrier")
    tb = 20
    e(f"v_lshlrev_b32 v{tb}, 4, v0")
    r = 24
    for n, idx in enumerate([0, 1]):
        for p in range(NSPLIT):
            e(f"s_mov_b32 s34, {WS_MOD + (p*3840 + idx*640)*4}")
            e(f"buffer_load_dwordx4 v[{r+(n*NSPLIT+p)*4}:{r+(n*NSPLIT+p)*4+3}], v{tb}, s[24:27], s34 offen sc1")
    for n in range(2):
        b = r + n*NSPLIT*4
        for p in range(1, NSPLIT):
            for i in range(4): e(f"v_add_f32 v{b+i}, v{b+i}, v{b+4*p+i}")
        for i in range(4):
            e(f"v_cvt_pk_bf16_f32 v{b+i}, v{b+i}, v{b+i}"); e(f"v_and_b32 v{b+i}, 0xffff0000, v{b+i}")
            if n == 1: e(f"v_add_f32 v{b+i}, 1.0, v{b+i}")
            e(f"v_mul_f32 v{b+i}, {f2u(C_SCALE)}, v{b+i}")
        e(f"ds_write_b128 v{tb}, v[{b}:{b+3}] offset:{n*4096}")
    e("s_waitcnt lgkmcnt(0)"); e("s_barrier")
    e(f"s_mul_i32 s3, s20, {5*32*4}")
    e("v_lshlrev_b32 v8, 4, v3"); e("v_add_u32 v8, s3, v8")
    OUT = 160
    for j in range(5):
        for hh in range(2):
            off = j*128 + hh*64; k = (j*2+hh) % 2
            t = T + 8*k
            e(f"ds_read_b128 v[{t}:{t+3}], v8 offset:{4096+off}")
            e(f"ds_read_b128 v[{t+4}:{t+7}], v8 offset:{off}")
            b = X + j*8 + hh*4
            for i in range(4): e(f"v_fma_f32 v{b+i}, v{b+i}, v{t+i}, v{t+4+i}")
            e(f"v_cvt_pk_bf16_f32 v{OUT+j*4+hh*2}, v{b}, v{b+1}")
            e(f"v_cvt_pk_bf16_f32 v{OUT+j*4+hh*2+1}, v{b+2}, v{b+3}")
    e("s_mul_i32 s3, s2, 20480"); e("s_mul_i32 s21, s20, 5120"); e("s_add_u32 s3, s3, s21"); e(f"s_add_u32 s3, s3, {WS_HF}")
    e("v_lshlrev_b32 v11, 4, v10"); e("v_add_u32 v11, s3, v11")
    for j in range(5):
        e(f"s_mov_b32 s21, {j*1024}")
        e(f"buffer_store_dwordx4 v[{OUT+4*j}:{OUT+4*j+3}], v11, s[24:27], s21 offen sc1")
    e("s_endpgm")
    e("K01_PF:")
    e(f"s_cmp_ge_u32 s2, {N01+npf}"); e("s_cbranch_scc1 K01_END")
    e(f"s_sub_u32 s20, s2, {N01}")
    e("s_and_b32 s21, s20, 7"); e("s_lshr_b32 s22, s20, 3")
    per_x = npf // 8
    if 'wq' in pf:
        e("s_load_dwordx2 s[4:5], s[0:1], 24"); e("s_waitcnt lgkmcnt(0)")
        srd(P, 8, 4, 5, 7864320)
        rounds = -(-61440 // 256 // per_x)
        e(f"s_mul_i32 s3, s22, {rounds*256}"); e("v_add_u32 v1, s3, v0"); e("s_mul_i32 s23, s21, 1536")
        for r_ in range(rounds):
            e("v_mul_u32_u24 v2, 683, v1"); e("v_lshrrev_b32 v2, 16, v2")
            e("v_mul_u32_u24 v3, 96, v2"); e("v_sub_u32 v3, v1, v3")
            e("v_cmp_le_i32 vcc, 96, v3"); e("s_nop 1")
            e("v_addc_co_u32 v2, vcc, 0, v2, vcc")
            e("v_mul_u32_u24 v3, 96, v2"); e("v_sub_u32 v3, v1, v3"); e("v_lshlrev_b32 v3, 4, v3")
            e("v_mul_u32_u24 v2, 12288, v2"); e("v_add_u32 v2, v2, v3")
            e(NT("buffer_load_dwordx4 v[4:7], v2, s[8:11], s23 offen"))
            e("v_add_u32 v1, 256, v1")
    for nm, ko in (('k', 8), ('v', 16)):
        if nm not in pf: continue
        e(f"s_load_dwordx2 s[4:5], s[0:1], {ko}"); e("s_waitcnt lgkmcnt(0)")
        srd(P, 8, 4, 5, 25165824)
        parts = per_x // 4; per = 196608 // parts
        e("s_and_b32 s3, s22, 3"); e("s_lshl_b32 s23, s21, 2"); e("s_add_u32 s3, s3, s23"); e("s_mul_i32 s23, s3, 786432")
        e("s_lshr_b32 s3, s22, 2"); e(f"s_mul_i32 s3, s3, {per}"); e("s_add_u32 s23, s23, s3"); e("s_add_u32 s23, s23, 589824")
        e("v_lshlrev_b32 v1, 4, v0")
        for i in range(per // 4096):
            e(NT("buffer_load_dwordx4 v[4:7], v1, s[8:11], s23 offen")); e("s_add_u32 s23, s23, 4096")
    e("s_endpgm")
    P.finalize(report_nops=False)
    return P

def gen_k4b(pf=True, npf=128):
    P = Prog(); e = P.e
    e("s_cmp_ge_u32 s2, 256"); e("s_cbranch_scc1 K4_PF")
    e("s_load_dwordx2 s[4:5], s[0:1], 0")
    e("s_load_dwordx2 s[16:17], s[0:1], 104")
    e("v_lshrrev_b32 v1, 6, v0"); e("v_and_b32 v10, 63, v0")
    e("v_readfirstlane_b32 s20, v1")
    e("v_and_b32 v2, 7, v10")
    e("v_lshrrev_b32 v3, 4, v10")
    e("v_lshrrev_b32 v4, 3, v10"); e("v_and_b32 v4, 1, v4")
    e("s_lshr_b32 s21, s2, 1"); e("s_and_b32 s22, s2, 1")
    e("s_mul_i32 s3, s21, 20480"); e("s_lshl_b32 s23, s20, 12"); e("s_add_u32 s3, s3, s23"); e("s_lshl_b32 s23, s22, 7"); e("s_add_u32 s3, s3, s23")
    e("v_lshlrev_b32 v5, 10, v4"); e("v_lshlrev_b32 v6, 8, v3"); e("v_add_u32 v5, v5, v6"); e("v_lshlrev_b32 v6, 4, v2"); e("v_add_u32 v5, v5, v6")
    e("v_add_u32 v12, s3, v5")
    e("s_lshl_b32 s3, s21, 4"); e("s_lshl_b32 s23, s22, 3"); e("s_add_u32 s3, s3, s23"); e("v_add_u32 v9, s3, v2"); e("v_mul_u32_u24 v9, 1280, v9")
    e("v_lshlrev_b32 v6, 6, v4"); e("v_add_u32 v9, v9, v6"); e("v_lshlrev_b32 v6, 3, v3"); e("v_add_u32 v9, v9, v6")
    e("s_lshl_b32 s3, s20, 8"); e("v_add_u32 v9, s3, v9")
    e("s_waitcnt lgkmcnt(0)")
    srd(P, 8, 4, 5, 2048*1280); srd(P, 24, 16, 17, WS_BYTES)
    PR = 40
    for p in range(4):
        for jj in range(2):
            e(f"s_mov_b32 s21, {WS_PART + p*128*20480 + jj*2048}")
            e(f"buffer_load_dwordx4 v[{PR+p*8+jj*4}:{PR+p*8+jj*4+3}], v12, s[24:27], s21 offen")
    XR = 72
    for jj in range(2):
        for hh in range(2):
            e(f"buffer_load_dwordx2 v[{XR+jj*4+hh*2}:{XR+jj*4+hh*2+1}], v9, s[8:11], 0 offen offset:{jj*128+hh*32}")
    e("v_lshlrev_b32 v13, 4, v0")
    M = 184
    for n in range(4):
        for p in range(NSPLIT):
            e(f"s_mov_b32 s21, {WS_MOD + (p*3840 + (2+n)*640)*4}")
            e(f"buffer_load_dwordx4 v[{M+(n*4+p)*4}:{M+(n*4+p)*4+3}], v13, s[24:27], s21 offen")
    for n in range(4):
        b = M + n*16
        for p in range(1, NSPLIT):
            for i in range(4): e(f"v_add_f32 v{b+i}, v{b+i}, v{b+4*p+i}")
        for i in range(4):
            e(f"v_cvt_pk_bf16_f32 v{b+i}, v{b+i}, v{b+i}"); e(f"v_and_b32 v{b+i}, 0xffff0000, v{b+i}")
            if n == 2: e(f"v_add_f32 v{b+i}, 1.0, v{b+i}")
        if n < 3: e(f"ds_write_b128 v13, v[{b}:{b+3}] offset:{n*5120}")
        else:
            e(f"s_mov_b32 s21, {WS_MODF + 5*4096}")
            e(f"buffer_store_dwordx4 v[{b}:{b+3}], v13, s[24:27], s21 offen")
    A_ = 100
    for p in range(4):
        for q in range(8):
            r = PR + p*8 + q
            if p == 0:
                e(f"v_lshlrev_b32 v{A_+2*q}, 16, v{r}"); e(f"v_and_b32 v{A_+2*q+1}, 0xffff0000, v{r}")
            else:
                e(f"v_lshlrev_b32 v14, 16, v{r}"); e(f"v_and_b32 v15, 0xffff0000, v{r}")
                e(f"v_add_f32 v{A_+2*q}, v{A_+2*q}, v14"); e(f"v_add_f32 v{A_+2*q+1}, v{A_+2*q+1}, v15")
    X = 120
    for q in range(8):
        e(f"v_lshlrev_b32 v{X+2*q}, 16, v{XR+q}"); e(f"v_and_b32 v{X+2*q+1}, 0xffff0000, v{XR+q}")
    e("s_waitcnt lgkmcnt(0)"); e("s_barrier")
    e("v_lshlrev_b32 v8, 7, v4"); e("v_lshlrev_b32 v6, 4, v3"); e("v_add_u32 v8, v8, v6"); e("s_lshl_b32 s3, s20, 9"); e("v_add_u32 v8, s3, v8")
    T = 140; OX = 180
    for jj in range(2):
        for hh in range(2):
            k = jj*2 + hh
            e(f"ds_read_b128 v[{T+4*k}:{T+4*k+3}], v8 offset:{jj*256 + hh*64}")
    for k in range(4):
        for i in range(4): e(f"v_fma_f32 v{X+4*k+i}, v{A_+4*k+i}, v{T+4*k+i}, v{X+4*k+i}")
        e(f"v_cvt_pk_bf16_f32 v{OX+2*k}, v{X+4*k}, v{X+4*k+1}"); e(f"v_cvt_pk_bf16_f32 v{OX+2*k+1}, v{X+4*k+2}, v{X+4*k+3}")
    for q in range(8):
        e(f"v_lshlrev_b32 v{X+2*q}, 16, v{OX+q}"); e(f"v_and_b32 v{X+2*q+1}, 0xffff0000, v{OX+q}")
    for jj in range(2):
        e(f"s_mov_b32 s21, {WS_X1 + jj*2048}")
        e(f"buffer_store_dwordx4 v[{OX+4*jj}:{OX+4*jj+3}], v12, s[24:27], s21 offen sc1")
    for jj in range(2):
        for hh in range(2):
            k = jj*2 + hh
            e(f"ds_read_b128 v[{T+4*k}:{T+4*k+3}], v8 offset:{2*5120 + jj*256 + hh*64}")
            e(f"ds_read_b128 v[{T+16+4*k}:{T+16+4*k+3}], v8 offset:{1*5120 + jj*256 + hh*64}")
    RED0, RED1 = 16384, 18432
    e("v_mul_u32_u24 v16, 192, v2"); e("v_lshlrev_b32 v17, 3, v3"); e("v_lshlrev_b32 v18, 2, v4"); e("v_add_u32 v17, v17, v18")
    e("s_lshl_b32 s3, s20, 5"); e("v_add_u32 v17, s3, v17"); e("v_add_u32 v17, v17, v16")
    def red(val, base):
        e(f"ds_write_b32 v17, v{val} offset:{base}")
        e("s_waitcnt lgkmcnt(0)"); e("s_barrier")
        for q in range(10): e(f"ds_read_b128 v[{200+4*q}:{203+4*q}], v16 offset:{base+16*q}")
        e(f"v_add_f32 v{val}, v200, v201")
        for i in range(2, 40): e(f"v_add_f32 v{val}, v{val}, v{200+i}")
    e(f"v_add_f32 v6, v{X}, v{X+1}")
    for i in range(2, 16): e(f"v_add_f32 v6, v6, v{X+i}")
    red(6, RED0)
    e(f"v_mul_f32 v6, {f2u(1/640)}, v6")
    for i in range(16): e(f"v_sub_f32 v{X+i}, v{X+i}, v6")
    e(f"v_mul_f32 v7, v{X}, v{X}")
    for i in range(1, 16): e(f"v_fmac_f32 v7, v{X+i}, v{X+i}")
    red(7, RED1)
    e(f"v_mul_f32 v7, {f2u(1/640)}, v7"); e(f"v_add_f32 v7, {f2u(1e-5)}, v7"); e("v_rsq_f32 v7, v7"); e("s_nop 0")
    for i in range(16):
        e(f"v_mul_f32 v{X+i}, v{X+i}, v7")
        e(f"v_fma_f32 v{X+i}, v{X+i}, v{T+i}, v{T+16+i}")
    for k in range(4):
        e(f"v_cvt_pk_bf16_f32 v{OX+2*k}, v{X+4*k}, v{X+4*k+1}"); e(f"v_cvt_pk_bf16_f32 v{OX+2*k+1}, v{X+4*k+2}, v{X+4*k+3}")
    for jj in range(2):
        e(f"s_mov_b32 s21, {WS_H2F + jj*2048}")
        e(f"buffer_store_dwordx4 v[{OX+4*jj}:{OX+4*jj+3}], v12, s[24:27], s21 offen sc1")
    e("K4_END:")
    e("s_endpgm")
    e("K4_PF:")
    e(f"s_cmp_ge_u32 s2, {256+npf}"); e("s_cbranch_scc1 K4_END")
    e("s_sub_u32 s20, s2, 256"); e("s_and_b32 s21, s20, 7"); e("s_lshr_b32 s22, s20, 3")
    per_x = npf // 8
    tot = 640*24
    rounds = -(-tot // 320 // per_x)
    for ko in (48, 56):
        e(f"s_load_dwordx2 s[4:5], s[0:1], {ko}"); e("s_waitcnt lgkmcnt(0)")
        srd(P, 8, 4, 5, 1966080)
        e(f"s_mul_i32 s3, s22, {rounds*320}"); e("v_add_u32 v1, s3, v0"); e("s_mul_i32 s23, s21, 384")
        for r_ in range(rounds):
            e("v_mul_u32_u24 v2, 2731, v1"); e("v_lshrrev_b32 v2, 16, v2")
            e("v_mul_u32_u24 v3, 24, v2"); e("v_sub_u32 v3, v1, v3"); e("v_lshlrev_b32 v3, 4, v3")
            e("v_mul_u32_u24 v2, 3072, v2"); e("v_add_u32 v2, v2, v3")
            e(NT("buffer_load_dwordx4 v[4:7], v2, s[8:11], s23 offen"))
            e("v_add_u32 v1, 320, v1")
    e("s_endpgm")
    P.finalize(report_nops=False)
    return P

if __name__ == "__main__":
    from k2gen import wrap
    k0 = gen_k0(); k1 = gen_k1(); k4 = gen_k4()
    open("k01.s", "w").write(wrap([("k0_kernel", k0.text(), 256, 256), ("k1_kernel", k1.text(), 256, 256)],
                                  [("k0_kernel", 120, 256, 16384), ("k1_kernel", 128, 256, 16384)]))
    open("k4.s", "w").write(wrap([("k4_kernel", k4.text(), 256, 256)], [("k4_kernel", 128, 256, 16384)]))
```

```python
import sys, io, contextlib
import k2gen, ksmall, kgemm
from asmgen import *
from k2gen import *

HDR = open('adaLN_cond__sliding_block_cached__glu_gated_reglu__prompt.s.ref').read().split('; Override launch')[0]

K2OPT = {}
BOPT = {}
def gen_k2(stamps=False):
    k2gen.OPT.update(dict(dma=True, hload=True, barrier=True, tr=True, pfcode=True, p2=True, pf='wo'))
    k2gen.OPT.update(K2OPT)
    P = Prog()
    H = {'wq': {}, 'k': {}, 'v': {}}
    prologue(P, stamps=False)
    code_prefetch(P, 49152)
    if stamps: stamp(P, 0)
    phase1_pro(P, H)
    if stamps: stamp(P, 1)
    phase1(P, H)
    if stamps: stamp(P, 2)
    q_convert(P)
    P.many(phase3_setup())
    if stamps: stamp(P, 3)
    phase2(P, H)
    if stamps: stamp(P, 4)
    phase3(P, H)
    if stamps:
        stamp(P, 5); P.e("s_waitcnt vmcnt(0)"); stamp(P, 6); write_stamps(P, 7)
    P.e("K2_END:")
    P.e("s_endpgm")
    P.finalize(report_nops=False)
    return P

def add_rt(P, kidx):
    start = [Ins("s_mov_b32 s83, s2"), Ins("s_memrealtime s[92:93]"), Ins("s_memtime s[90:91]")]
    def end():
        return [Ins("s_mov_b64 exec, 1"), Ins("s_waitcnt vmcnt(0)"), Ins("s_memrealtime s[94:95]"), Ins("s_memtime s[88:89]"), Ins("s_load_dwordx2 s[96:97], s[0:1], 104"), Ins("s_waitcnt lgkmcnt(0)"),
           Ins("s_mov_b32 s84, s96"), Ins("s_mov_b32 s85, s97"), Ins(f"s_mov_b32 s86, {WS_BYTES}"), Ins("s_mov_b32 s87, 0x20000"),
           Ins("s_lshl_b32 s3, s83, 4"), Ins(f"s_add_u32 s3, s3, {WS_STAMP + 0x10000*(kidx+1)}"),
           Ins("v_mov_b32 v4, s92"), Ins("v_mov_b32 v5, s94"), Ins("v_mov_b32 v6, s90"), Ins("v_mov_b32 v7, s88"), Ins("v_mov_b32 v8, s3"),
           Ins("buffer_store_dwordx4 v[4:7], v8, s[84:87], 0 offen"), Ins("s_waitcnt vmcnt(0)")]
    items = list(start)
    for x in P.items:
        if isinstance(x, Ins) and x.op == 's_endpgm': items += end()
        items.append(x)
    P.items = items
    P.finalize(report_nops=False)

def build(fname, rt=False):
    with contextlib.redirect_stdout(io.StringIO()):
        k01 = ksmall.gen_k01(pf=BOPT.get('pf01', ('wq', 'k'))); k2 = gen_k2(); k3 = kgemm.gen_k3b(); k4 = ksmall.gen_k4b(); k5 = kgemm.gen_k5b(); k6 = kgemm.gen_k6b()
    if rt:
        for i, k in enumerate([k01, k2, k3, k4, k5, k6]): add_rt(k, i)
    ks = [("k01_kernel", k01.text(), 256, 256), ("k2_kernel", k2.text(), 512, 256),
          ("k3_kernel", k3.text(), 256, 256), ("k4_kernel", k4.text(), 256, 256), ("k5_kernel", k5.text(), 256, 256), ("k6_kernel", k6.text(), 256, 256)]
    ls = [("k01_kernel", 248+256, 256, 16384), ("k2_kernel", 256, 256, LDS_BYTES),
          ("k3_kernel", 256, 512, 122880), ("k4_kernel", 256+128, 320, 20480), ("k5_kernel", 256, 512, 122880), ("k6_kernel", 256, 512, 163840)]
    s = HDR + wrap(ks, ls)
    open(fname, "w").write(s)
    print(fname, len(s), "bytes")

if __name__ == "__main__":
    build("adaLN_cond__sliding_block_cached__glu_gated_reglu__prompt.s")
    build("all_rt.s", rt=True)
```

```python
import re

REG_RE = re.compile(r'^(-|\|)?([vas])(\d+)\|?$')
RNG_RE = re.compile(r'^(-)?([vas])\[(\d+):(\d+)\]$')


def parse_regs(tok):
    tok = tok.strip()
    m = REG_RE.match(tok)
    if m:
        return [(m.group(2), int(m.group(3)))]
    m = RNG_RE.match(tok)
    if m:
        return [(m.group(2), i) for i in range(int(m.group(3)), int(m.group(4)) + 1)]
    if tok in ('vcc', 'exec', 'm0', 'scc'):
        return [(tok, 0)]
    if tok in ('vcc_lo', 'vcc_hi'):
        return [('vcc', 0)]
    if tok in ('exec_lo', 'exec_hi'):
        return [('exec', 0)]
    return []


def V(i, n=1):
    return f"v{i}" if n == 1 else f"v[{i}:{i+n-1}]"


def A(i, n=1):
    return f"a{i}" if n == 1 else f"a[{i}:{i+n-1}]"


def S(i, n=1):
    return f"s{i}" if n == 1 else f"s[{i}:{i+n-1}]"


def R(r, n=1):
    return V(r[1], n) if r[0] == 'v' else A(r[1], n)


TRANS = ('v_exp_f32', 'v_log_f32', 'v_rcp_f32', 'v_rsq_f32', 'v_sqrt_f32', 'v_sin_f32', 'v_cos_f32')


class Ins:
    __slots__ = ('text', 'op', 'kind', 'rd', 'wr', 'meta', 'srcc', 'srcab', 'tag')

    def __init__(self, text, tag=None):
        self.text = text
        self.tag = tag
        self.meta = {}
        self.srcc = []
        self.srcab = []
        t = text.split(';')[0].strip()
        if t.endswith(':'):
            self.op = 'label'; self.kind = 'label'; self.rd = []; self.wr = []
            return
        parts = t.split(None, 1)
        op = parts[0]
        self.op = op
        rest = parts[1] if len(parts) > 1 else ''
        ops = []
        cur = ''
        depth = 0
        for ch in rest:
            if ch == '[': depth += 1
            if ch == ']': depth -= 1
            if ch == ',' and depth == 0:
                ops.append(cur.strip()); cur = ''
            else:
                cur += ch
        if cur.strip():
            ops.append(cur.strip())
        mods = ''
        if ops:
            sp = ops[-1].split(None, 1)
            ops[-1] = sp[0]
            mods = sp[1] if len(sp) > 1 else ''
        regs = [parse_regs(o) for o in ops]
        rd, wr = [], []
        kind = None
        if op.startswith('v_mfma'):
            kind = 'mfma32' if '32x32' in op else 'mfma16'
            wr = regs[0]
            self.srcab = regs[1] + regs[2]
            self.srcc = regs[3] if len(regs) > 3 else []
            rd = self.srcab + self.srcc
        elif op.startswith('v_cmp'):
            kind = 'valu'
            wr = regs[0]
            for r in regs[1:]: rd += r
            if op.startswith('v_cmpx'): wr = wr + [('exec', 0)]
        elif op.startswith('v_permlane') and 'swap' in op:
            kind = 'perm'
            wr = regs[0] + regs[1]; rd = regs[0] + regs[1]
        elif op.startswith('v_readfirstlane') or op.startswith('v_readlane'):
            kind = 'valu'; wr = regs[0]
            for r in regs[1:]: rd += r
            self.meta['readlane'] = True
        elif op.startswith('v_'):
            kind = 'trans' if op.replace('_e32', '').replace('_e64', '') in TRANS else 'valu'
            wr = list(regs[0])
            for r in regs[1:]: rd += r
            base = op.replace('_e32', '').replace('_e64', '')
            if base in ('v_fmac_f32', 'v_dot2c_f32_bf16', 'v_pk_fmac_f16', 'v_writelane_b32'):
                rd += regs[0]
            if base in ('v_add_co_u32', 'v_sub_co_u32', 'v_addc_co_u32', 'v_subb_co_u32'):
                wr = regs[0] + regs[1]
                rd = []
                for r in regs[2:]: rd += r
            if base == 'v_cndmask_b32' and len(regs) == 3:
                rd += [('vcc', 0)]
            if 'dpp' in op or 'row_' in mods or 'quad_perm' in mods:
                self.meta['dpp'] = True
                rd += regs[0]
        elif op.startswith('ds_read') or op.startswith('ds_bpermute') or op.startswith('ds_swizzle'):
            kind = 'ds_read'; wr = regs[0]
            for r in regs[1:]: rd += r
        elif op.startswith('ds_write'):
            kind = 'ds_write'
            for r in regs: rd += r
        elif op.startswith('buffer_load') or op.startswith('global_load'):
            if ' lds' in (' ' + mods) or op.startswith('global_load_lds'):
                kind = 'dma'
                for r in regs: rd += r
                rd += [('m0', 0)]
            else:
                kind = 'vload'; wr = regs[0]
                for r in regs[1:]: rd += r
        elif op.startswith('buffer_store') or op.startswith('global_store'):
            kind = 'vstore'
            for r in regs: rd += r
            if op.startswith('buffer_store'):
                self.meta['data'] = regs[0]
            else:
                self.meta['data'] = regs[1]
            self.meta['wide'] = op.endswith('x4') or op.endswith('x3')
        elif op.startswith('buffer_atomic') or op.startswith('global_atomic'):
            kind = 'vstore'
            for r in regs: rd += r
            self.meta['data'] = []
            self.meta['wide'] = False
            if 'sc0' in mods:
                kind = 'vload'; wr = regs[0]
        elif op.startswith('buffer_inv') or op.startswith('buffer_wbl2'):
            kind = 'vstore'; self.meta['data'] = []; self.meta['wide'] = False
        elif op.startswith('s_load') or op.startswith('s_memtime') or op.startswith('s_memrealtime') or op.startswith('s_buffer_load'):
            kind = 'smem'; wr = regs[0]
            for r in regs[1:]: rd += r
        elif op == 's_waitcnt':
            kind = 'wait'
        elif op == 's_barrier':
            kind = 'barrier'
        elif op == 's_nop':
            kind = 'nop'; self.meta['n'] = int(ops[0], 0) + 1
        elif op.startswith('s_cbranch') or op == 's_branch' or op == 's_endpgm' or op.startswith('s_setpc'):
            kind = 'branch'
        elif op.startswith('s_cmp'):
            kind = 'salu'; wr = [('scc', 0)]
            for r in regs: rd += r
        elif op in ('s_setprio', 's_sleep'):
            kind = 'salu'
        elif op.startswith('s_'):
            kind = 'salu'; wr = list(regs[0]) if regs else []
            for r in regs[1:]: rd += r
            if 'saveexec' in op:
                wr += [('exec', 0)]; rd += [('exec', 0)]
            if op in ('s_addk_i32', 's_mulk_i32'):
                rd += regs[0]
        else:
            raise ValueError("unknown op " + text)
        self.kind = kind
        self.rd = rd
        self.wr = wr

    def cost(self):
        k = self.kind
        if k in ('label',): return 0
        if k in ('trans', 'perm'): return 8
        if k in ('mfma16', 'mfma32'): return 8
        if k == 'nop': return 4 * self.meta['n']
        return 4


def NT(text):
    i = Ins(text); i.meta['notrack'] = True
    return i


class WaitVM:
    def __init__(self, h): self.h = h
    kind = 'waitvm'


class WaitLGKM:
    def __init__(self, h): self.h = h
    kind = 'waitlgkm'


class Prog:
    def __init__(self):
        self.items = []

    def e(self, text, tag=None):
        if isinstance(text, (Ins, WaitVM, WaitLGKM)):
            self.items.append(text); return text
        i = Ins(text, tag)
        self.items.append(i)
        return i

    def many(self, lst):
        for x in lst: self.e(x)

    def wait_vm(self, h):
        self.items.append(WaitVM(h))

    def finalize(self, auto_wait=True, verbose=False, report_nops=True):
        out = []
        vm = []
        lg = []
        smem_out = False
        pend = {}
        nwait = 0

        def emit_wait(vmn=None, lgn=None):
            nonlocal nwait
            s = []
            if vmn is not None: s.append(f"vmcnt({vmn})")
            if lgn is not None: s.append(f"lgkmcnt({lgn})")
            if not s: return
            out.append(Ins("s_waitcnt " + " ".join(s)))
            nwait += 1

        def retire_vm(n):
            while len(vm) > n:
                o = vm.pop(0)
                for r in o.wr:
                    if pend.get(r, (None, None))[1] is o: del pend[r]

        def retire_lg(n):
            while len(lg) > n:
                o = lg.pop(0)
                for r in o.wr:
                    if pend.get(r, (None, None))[1] is o: del pend[r]

        for it in self.items:
            if isinstance(it, WaitVM):
                h = it.h
                if h in vm:
                    n = len(vm) - 1 - vm.index(h)
                    assert n <= 63, "vmcnt overflow"
                    emit_wait(vmn=n); retire_vm(n)
                continue
            if isinstance(it, WaitLGKM):
                h = it.h
                if h in lg:
                    n = len(lg) - 1 - lg.index(h)
                    emit_wait(lgn=min(n, 15)); retire_lg(min(n, 15))
                continue
            k = it.kind
            if k == 'label' or k == 'branch':
                if it.meta.get('keep'):
                    out.append(it); continue
                if pend and it.op != 's_endpgm':
                    needv = any(p[0] == 'vm' for p in pend.values())
                    needl = any(p[0] in ('lg', 'sm') for p in pend.values())
                    emit_wait(vmn=0 if needv else None, lgn=0 if needl else None)
                    if needv: retire_vm(0)
                    if needl: retire_lg(0)
                out.append(it)
                continue
            if k == 'wait':
                m = re.search(r'vmcnt\((\d+)\)', it.text)
                if m: retire_vm(int(m.group(1)))
                m = re.search(r'lgkmcnt\((\d+)\)', it.text)
                if m:
                    retire_lg(int(m.group(1)))
                    if int(m.group(1)) == 0: smem_out = False
                out.append(it)
                continue
            if auto_wait and not it.meta.get('notrack'):
                vmn = None; lgn = None
                for r in list(it.rd) + list(it.wr):
                    p = pend.get(r)
                    if p is None: continue
                    if p[0] == 'vm':
                        n = len(vm) - 1 - vm.index(p[1])
                        vmn = n if vmn is None else min(vmn, n)
                    elif p[0] == 'lg':
                        n = len(lg) - 1 - lg.index(p[1])
                        lgn = n if lgn is None else min(lgn, n)
                    elif p[0] == 'sm':
                        lgn = 0
                if vmn is not None or lgn is not None:
                    if vmn is not None: vmn = min(vmn, 63)
                    if lgn is not None:
                        lgn = min(lgn, 15)
                        if smem_out: lgn = 0
                    emit_wait(vmn, lgn)
                    if vmn is not None: retire_vm(vmn)
                    if lgn is not None:
                        retire_lg(lgn)
                        if lgn == 0:
                            smem_out = False
                            for r in [r for r, p in pend.items() if p[0] == 'sm']: del pend[r]
            out.append(it)
            if k in ('vload', 'dma', 'vstore'):
                vm.append(it)
                if not it.meta.get('notrack'):
                    for r in it.wr: pend[r] = ('vm', it)
            elif k in ('ds_read', 'ds_write'):
                lg.append(it)
                for r in it.wr: pend[r] = ('lg', it)
            elif k == 'smem':
                smem_out = True
                for r in it.wr: pend[r] = ('sm', it)
        out = self._hazards(out, report_nops)
        self.final = out
        return out

    def _hazards(self, ins, report):
        out = []
        pos = 0
        last_valu_w = {}
        last_trans_w = {}
        last_mfma_w = {}
        last_mfma_c = {}
        last_salu_m0 = -100
        last_valu_sg = {}
        last_store_data = {}
        last_valu_exec = -100
        nops = 0
        for it in ins:
            k = it.kind
            if k == 'label':
                out.append(it); continue
            need = 0

            def req(p, n):
                nonlocal need
                need = max(need, p + n + 1)

            isvalu = k in ('valu', 'trans', 'perm')
            ismfma = k in ('mfma16', 'mfma32')
            ismem = k in ('ds_read', 'ds_write', 'vload', 'dma', 'vstore')
            if ismfma:
                for r in it.rd:
                    if r in last_valu_w: req(last_valu_w[r], 2)
                for r in it.srcab:
                    if r in last_mfma_w:
                        p, ps, d = last_mfma_w[r]; req(p, {4: 8, 8: 12}[ps])
                for r in it.srcc:
                    if r in last_mfma_w:
                        p, ps, d = last_mfma_w[r]
                        mine = 4 if k == 'mfma16' else 8
                        if tuple(it.srcc) == d and ps == mine: pass
                        else: req(p, {4: 6, 8: 10}[ps])
                for r in it.wr:
                    if r in last_mfma_w and r not in it.srcc:
                        p, ps, d = last_mfma_w[r]; req(p, {4: 6, 8: 10}[ps])
                req(last_valu_exec, 4)
            if isvalu or ismem:
                regs = list(it.rd) + list(it.wr)
                for r in regs:
                    if r in last_mfma_w:
                        p, ps, d = last_mfma_w[r]; req(p, {4: 8, 8: 12}[ps])
            if isvalu:
                for r in it.wr:
                    if r in last_mfma_c:
                        p, ps = last_mfma_c[r]; req(p, {4: 3, 8: 7}[ps])
                    if r in last_store_data: req(last_store_data[r], 2)
                if k != 'trans':
                    for r in it.rd:
                        if r in last_trans_w: req(last_trans_w[r], 1)
                if k == 'perm' or it.meta.get('dpp'):
                    for r in it.rd:
                        if r in last_valu_w: req(last_valu_w[r], 2)
                    if it.meta.get('dpp'): req(last_valu_exec, 5)
                if it.meta.get('readlane'):
                    for r in it.rd:
                        if r in last_valu_w: req(last_valu_w[r], 1)
                        if r in last_valu_sg: req(last_valu_sg[r], 4)
                for r in it.rd:
                    if r in last_valu_sg: req(last_valu_sg[r], 2)
            if k in ('vload', 'ds_read'):
                for r in it.wr:
                    if r in last_store_data: req(last_store_data[r], 1)
            if k in ('vload', 'dma', 'vstore'):
                for r in it.rd:
                    if r in last_valu_sg: req(last_valu_sg[r], 5)
                if k == 'dma': req(last_salu_m0, 1)
            if k in ('salu', 'branch'):
                for r in it.rd:
                    if r in last_valu_sg: req(last_valu_sg[r], 4)
                if k == 'branch' and 'vcc' in it.op and ('vcc', 0) in last_valu_sg:
                    req(last_valu_sg[('vcc', 0)], 5)
                if k == 'branch' and 'exec' in it.op:
                    req(last_valu_exec, 5)
            if need > pos:
                n = need - pos
                nops += n
                if report:
                    print(f"  [hazard] inserting {n} nop states before: {it.text}")
                while n > 0:
                    q = min(n, 16)
                    out.append(Ins(f"s_nop {q-1}"))
                    n -= q
                pos = need
            out.append(it)
            if isvalu:
                for r in it.wr:
                    if r[0] in ('v', 'a'):
                        last_valu_w[r] = pos
                        if k == 'trans': last_trans_w[r] = pos
                        else: last_trans_w.pop(r, None)
                        last_mfma_w.pop(r, None)
                    elif r[0] in ('s', 'vcc'):
                        last_valu_sg[r] = pos
                    elif r[0] == 'exec':
                        last_valu_exec = pos
            if ismfma:
                ps = 4 if k == 'mfma16' else 8
                d = tuple(it.wr)
                for r in it.wr:
                    last_mfma_w[r] = (pos, ps, d)
                    last_valu_w.pop(r, None); last_trans_w.pop(r, None)
                for r in it.srcc: last_mfma_c[r] = (pos, ps)
            if k in ('vload', 'ds_read'):
                for r in it.wr:
                    last_valu_w.pop(r, None); last_trans_w.pop(r, None); last_mfma_w.pop(r, None)
            if k == 'salu':
                if ('m0', 0) in it.wr: last_salu_m0 = pos
                for r in it.wr:
                    last_valu_sg.pop(r, None)
            if k == 'smem':
                for r in it.wr: last_valu_sg.pop(r, None)
            if k == 'vstore' and it.meta.get('wide'):
                for r in it.meta['data']: last_store_data[r] = pos
            pos += it.meta['n'] if k == 'nop' else 1
        self.nops = nops
        return out

    def text(self):
        lines = []
        for it in self.final:
            lines.append(it.text if it.kind == 'label' else "  " + it.text)
        return "\n".join(lines) + "\n"

    def estimate(self, lo=0, hi=None):
        t = 0; pipe = 0; nm = 0; busy = 0
        for it in self.final[lo:hi]:
            k = it.kind
            if k in ('mfma16', 'mfma32'):
                d = 16 if k == 'mfma16' else 32
                st = max(t, pipe)
                pipe = st + d; t = st + 8; nm += 1; busy += d
            else:
                t += it.cost()
        return max(t, pipe), busy


def cls(ins):
    if not isinstance(ins, Ins): return 'salu'
    k = ins.kind
    if k in ('ds_read', 'ds_write', 'vload', 'vstore', 'dma'): return 'mem'
    if k in ('valu', 'trans', 'perm'): return 'valu'
    return 'salu'


def weave(backbone, streams, budget=None, max_mem=1, reserve=None):
    res = []
    ptr = [0] * len(streams)
    n = len(backbone)
    for i in range(-1, n):
        if i >= 0: res.append(backbone[i])
        if budget is None:
            bud = 8 if (i < 0 or backbone[i].kind == 'mfma16') else 24
            mm = max_mem if (i < 0 or backbone[i].kind == 'mfma16') else max(2, max_mem)
        else:
            bud = budget; mm = max_mem
        if reserve: bud -= reserve.get(i, 0)
        used = 0; nmem = 0; nds = 0; free_salu = 1 if i >= 0 else 0; first = True
        for phase in (0, 1):
            while True:
                best = None
                for si, st in enumerate(streams):
                    if ptr[si] >= len(st): continue
                    ins, e, l = st[ptr[si]]
                    if e > i: continue
                    c = cls(ins)
                    must = l <= i
                    if phase == 0 and c == 'valu': continue
                    if phase == 1 and c != 'valu' and not must: continue
                    cost = ins.cost() if isinstance(ins, Ins) else 4
                    if c == 'salu' and free_salu > 0 and first: cost = 0
                    isds = isinstance(ins, Ins) and ins.kind in ('ds_read', 'ds_write')
                    if not must:
                        if used + cost > bud: continue
                        if c == 'mem' and nmem >= mm: continue
                        if isds and nds >= (1 if bud <= 8 else 2): continue
                    key = (l, 0 if (c == 'salu' and first) else 1, si)
                    if best is None or key < best[0]: best = (key, si, cost, c, isds)
                if best is None: break
                _, si, cost, c, isds = best
                res.append(streams[si][ptr[si]][0]); ptr[si] += 1; used += cost
                if c == 'mem': nmem += 1
                if isds: nds += 1
                if c == 'salu' and cost == 0: free_salu -= 1
                first = False
    for si, st in enumerate(streams):
        while ptr[si] < len(st):
            res.append(st[ptr[si]][0]); ptr[si] += 1
    return res


def space_vm(groups, gap, nslots):
    ops = []
    for gi, (lo, hi, L, D) in enumerate(groups):
        pre = list(L)
        for d in D:
            if cls(d) != 'mem': pre.append(d); continue
            ops.append([lo, hi, gi, pre, d, len(ops)]); pre = []
    placed = []
    remaining = ops[:]
    cur = min((o[0] for o in ops), default=0)
    started = set()
    while remaining:
        cand = [o for o in remaining if o[0] <= cur]
        open_ = {}
        for o in remaining:
            if o[2] in started: open_[o[4].kind] = o[2]
        cand = [o for o in cand if open_.get(o[4].kind, o[2]) == o[2]]
        if not cand:
            cur = max(cur + 1, min(o[0] for o in remaining)); continue
        o = min(cand, key=lambda o: (o[1], o[5]))
        placed.append((cur, o[3], o[4], o[2])); remaining.remove(o); started.add(o[2])
        nxt = cur + gap
        if remaining:
            dl = sorted(x[1] for x in remaining)
            for idx, dd in enumerate(dl[:12]):
                if nxt + idx*gap > dd:
                    nxt = max(cur + 1, min(nxt, dd - idx*gap))
        cur = nxt
    return placed
```

```python
from asmgen import *

WS_MOD  = 0x0
WS_HF   = 0x40000
WS_OF   = 0x400000
WS_PART = 0x2000000
WS_X1   = 0x3800000
WS_H2F  = 0x4000000
WS_ACT  = 0x4400000
WS_WD   = 0x4C00000
WS_STAMP= 0x5000000
WS_DBG  = 0x6000000
WS_BYTES = 268435456

WQ_BASE = 0;      WQ_NS = 5;  WQ_ST = 12288
K_BASE  = 36864;  K_NS = 5;   K_ST = 12288
V_BASE  = 98304;  V_NS = 4;   V_ST = 16384
LDS_BYTES = 163840
BIAS = 4096

sWQ, sK, sV, sWS = 8, 12, 16, 20
sHEAD, sRB, sW = 24, 25, 26
sM0WQ, sM0K, sM0V = 27, 28, 29
sOFF = 30
sOFH = 31
sT0, sT1, sT2, sT3 = 32, 33, 34, 35
sSLOW = 36
sTS = 76

vWQD = 1
vKD  = 4
vVD  = 7
vWQT = 11
vKF  = 15
vVT  = 19
vHO  = 23
vT0, vT1, vT2, vT3 = 60, 61, 62, 63
QACC = 64
QF = 64
SB = [160, 192]
RING = 192
OACC = [64, 160]
LACC = 128
RINV = 144

def P_reg(kt, ct):
    if kt < 12: return ('a', kt*16 + ct*4)
    if kt < 14: return ('v', 28 + (kt-12)*16 + ct*4)
    return ('v', 224 + (kt-14)*16 + ct*4)

def prologue(P, stamps=False):
    e = P.e
    e("s_cmp_ge_u32 s2, 256")
    e("s_cbranch_scc1 K2_END")
    e("s_load_dwordx2 s[4:5], s[0:1], 24")
    e("s_load_dwordx4 s[44:47], s[0:1], 8")
    e("s_load_dwordx2 s[6:7], s[0:1], 104")
    e("s_load_dwordx2 s[68:69], s[0:1], 32")
    e("s_load_dwordx4 s[72:75], s[0:1], 48")
    e("s_load_dwordx2 s[70:71], s[0:1], 64")
    if stamps:
        e(f"s_memrealtime s[{sTS}:{sTS+1}]")
    e("s_and_b32 s24, s2, 7"); e("s_lshl_b32 s24, s24, 2")
    e("s_lshr_b32 s3, s2, 3"); e("s_and_b32 s3, s3, 3"); e("s_add_u32 s24, s24, s3")
    e("s_lshr_b32 s25, s2, 5")
    e("v_lshrrev_b32 v2, 6, v0")
    e("v_and_b32 v0, 63, v0")
    e("v_readfirstlane_b32 s26, v2")
    e(f"v_lshrrev_b32 v{vT0}, 3, v0")
    e(f"v_and_b32 v{vT1}, 7, v0")
    e(f"v_lshrrev_b32 v{vT2}, 4, v0")
    e(f"v_lshlrev_b32 v{vT3}, 1, v{vT2}")
    e(f"v_xor_b32 v{vT3}, v{vT3}, v{vT1}")
    e(f"v_lshlrev_b32 v{vT3}, 4, v{vT3}")
    e("s_lshl_b32 s3, s26, 3")
    e(f"v_add_u32 v{vWQD}, s3, v{vT0}")
    e(f"s_mov_b32 s4{0}, 12288") if False else None
    e("s_mov_b32 s37, 12288")
    e(f"v_mul_lo_u32 v{vWQD}, v{vWQD}, s37")
    e(f"v_add_u32 v{vWQD}, v{vWQD}, v{vT3}")
    e(f"v_add_u32 v{vWQD}, {BIAS}, v{vWQD}")
    e(f"v_add_u32 v{vWQD+1}, {128-1024}, v{vWQD}")
    e(f"v_add_u32 v{vWQD+2}, {256-2048}, v{vWQD}")
    e(f"v_add_u32 v{vKD}, s3, v{vT0}")
    e(f"v_lshrrev_b32 v{vT3}, 1, v{vKD}")
    e(f"v_and_b32 v{vT3}, 7, v{vT3}")
    e(f"v_xor_b32 v{vT3}, v{vT3}, v{vT1}")
    e(f"v_lshlrev_b32 v{vT3}, 4, v{vT3}")
    e(f"v_mul_u32_u24 v{vKD}, 384, v{vKD}")
    e(f"v_add_u32 v{vKD}, v{vKD}, v{vT3}")
    e(f"v_add_u32 v{vKD}, {BIAS}, v{vKD}")
    e(f"v_add_u32 v{vKD+1}, {128-1024}, v{vKD}")
    e(f"v_add_u32 v{vKD+2}, {256-2048}, v{vKD}")
    e(f"v_and_b32 v{vT3}, 1, v{vT2}")
    e(f"v_lshlrev_b32 v{vT3}, 1, v{vT3}")
    e(f"v_xor_b32 v{vT3}, v{vT3}, v{vT1}")
    e("s_lshl_b32 s3, s26, 5")
    e(f"v_add_u32 v{vVD}, s3, v{vT0}")
    e(f"v_mul_u32_u24 v{vVD}, 384, v{vVD}")
    e(f"v_add_u32 v{vVD}, {BIAS}, v{vVD}")
    e(f"v_xor_b32 v{vVD+1}, 4, v{vT3}")
    e(f"v_lshlrev_b32 v{vVD+1}, 4, v{vVD+1}")
    e(f"v_lshlrev_b32 v{vT3}, 4, v{vT3}")
    e(f"v_add_u32 v{vVD+1}, v{vVD+1}, v{vVD}")
    e(f"v_add_u32 v{vVD}, v{vVD}, v{vT3}")
    e(f"v_add_u32 v{vVD+2}, {2*3072-2*1024}, v{vVD}")
    e(f"v_add_u32 v{vVD+3}, {3*3072-3*1024}, v{vVD+1}")
    e(f"v_add_u32 v{vVD+1}, {1*3072-1*1024}, v{vVD+1}")
    e(f"v_lshrrev_b32 v{vT0}, 2, v0"); e(f"v_and_b32 v{vT0}, 3, v{vT0}")
    e(f"v_and_b32 v{vT1}, 3, v0"); e(f"v_lshlrev_b32 v{vT1}, 3, v{vT1}")
    e(f"v_and_b32 v{vWQT}, 1, v{vT2}"); e(f"v_lshlrev_b32 v{vWQT}, 2, v{vWQT}")
    e(f"v_add_u32 v{vWQT}, v{vWQT}, v{vT0}")
    e(f"v_lshrrev_b32 v{vWQT+1}, 1, v{vWQT}")
    e(f"v_lshlrev_b32 v{vWQT}, 7, v{vWQT}")
    e(f"v_lshrrev_b32 v{vWQT+2}, 1, v{vT2}")
    e(f"v_mul_u32_u24 v{vWQT+2}, 3072, v{vWQT+2}")
    e(f"v_add_u32 v{vWQT}, v{vWQT}, v{vWQT+2}")
    e(f"v_add_u32 v{vWQT}, v{vWQT}, v{vT1}")
    e(f"v_lshlrev_b32 v{vWQT+1}, 5, v{vWQT+1}")
    for tp in (3, 2, 1):
        e(f"v_xor_b32 v{vT3}, {tp<<5}, v{vWQT+1}")
        e(f"v_add_u32 v{vWQT+tp if tp!=1 else vT3}, v{vWQT}, v{vT3}") if tp != 1 else None
    e(f"v_xor_b32 v{vT3}, {1<<5}, v{vWQT+1}")
    e(f"v_add_u32 v{vT3}, v{vWQT}, v{vT3}")
    e(f"v_add_u32 v{vWQT}, v{vWQT}, v{vWQT+1}")
    e(f"v_mov_b32 v{vWQT+1}, v{vT3}")
    e(f"v_lshrrev_b32 v{vVT}, 1, v{vT2}"); e(f"v_lshlrev_b32 v{vVT}, 2, v{vVT}")
    e(f"v_add_u32 v{vVT}, v{vVT}, v{vT0}")
    e(f"v_lshrrev_b32 v{vVT+1}, 1, v{vVT}"); e(f"v_and_b32 v{vVT+1}, 1, v{vVT+1}")
    e(f"v_and_b32 v{vVT+2}, 1, v{vT2}")
    e(f"v_lshlrev_b32 v{vVT+3}, 1, v{vVT+2}")
    e(f"v_or_b32 v{vVT+1}, v{vVT+1}, v{vVT+3}")
    e(f"v_lshlrev_b32 v{vVT+1}, 5, v{vVT+1}")
    e(f"v_lshlrev_b32 v{vVT}, 7, v{vVT}")
    e(f"v_lshlrev_b32 v{vVT+2}, 10, v{vVT+2}")
    e(f"v_add_u32 v{vVT}, v{vVT}, v{vVT+2}")
    e(f"v_add_u32 v{vVT}, v{vVT}, v{vT1}")
    e(f"v_add_u32 v{vVT}, {V_BASE}, v{vVT}")
    for tp in (3, 2):
        e(f"v_xor_b32 v{vT3}, {tp<<5}, v{vVT+1}")
        e(f"v_add_u32 v{vVT+tp}, v{vVT}, v{vT3}")
    e(f"v_xor_b32 v{vT3}, {1<<5}, v{vVT+1}")
    e(f"v_add_u32 v{vT3}, v{vVT}, v{vT3}")
    e(f"v_add_u32 v{vVT}, v{vVT}, v{vVT+1}")
    e(f"v_mov_b32 v{vVT+1}, v{vT3}")
    e(f"v_and_b32 v{vT0}, 31, v0")
    e(f"v_lshrrev_b32 v{vT1}, 3, v{vT0}"); e(f"v_mul_u32_u24 v{vT1}, 3072, v{vT1}")
    e(f"v_and_b32 v{vT3}, 7, v{vT0}"); e(f"v_lshlrev_b32 v{vT3}, 7, v{vT3}")
    e(f"v_add_u32 v{vT1}, v{vT1}, v{vT3}"); e(f"v_add_u32 v{vT1}, {K_BASE}, v{vT1}")
    e(f"v_lshrrev_b32 v{vT0}, 1, v{vT0}"); e(f"v_and_b32 v{vT0}, 7, v{vT0}")
    e(f"v_lshrrev_b32 v{vT3}, 5, v0")
    e(f"v_xor_b32 v{vT0}, v{vT0}, v{vT3}")
    for s4 in range(4):
        e(f"v_xor_b32 v{vT3}, {2*s4}, v{vT0}")
        e(f"v_lshlrev_b32 v{vT3}, 4, v{vT3}")
        e(f"v_add_u32 v{vKF+s4}, v{vT1}, v{vT3}")
    e("s_lshl_b32 s3, s25, 4"); e("s_lshl_b32 s37, s26, 2"); e("s_add_u32 s38, s3, s37")
    e("s_mul_i32 s3, s38, 20480"); e(f"s_add_u32 s3, s3, {WS_HF}")
    e(f"v_lshlrev_b32 v{vT0}, 4, v0")
    e(f"v_add_u32 v{vHO}, s3, v{vT0}")
    for ct in range(1, 4):
        e(f"v_add_u32 v{vHO+ct}, {ct*20480}, v{vHO}")
    e(f"s_mul_i32 s{sM0WQ}, s26, 3072")
    e(f"s_add_u32 s{sM0K}, s{sM0WQ}, {K_BASE}")
    e(f"s_lshl_b32 s{sM0V}, s26, 12"); e(f"s_add_u32 s{sM0V}, s{sM0V}, {V_BASE}")
    e("s_waitcnt lgkmcnt(0)")
    e("s_mul_i32 s3, s24, 384")
    e(f"s_add_u32 s{sWQ}, s4, s3"); e(f"s_addc_u32 s{sWQ+1}, s5, 0")
    e(f"s_sub_u32 s{sWQ}, s{sWQ}, {BIAS}"); e(f"s_subb_u32 s{sWQ+1}, s{sWQ+1}, 0")
    e(f"s_sub_u32 s{sWQ+2}, {7864320+BIAS}, s3"); e(f"s_mov_b32 s{sWQ+3}, 0x20000")
    e("s_mul_i32 s3, s24, 786432"); e(f"s_add_u32 s3, s3, {1536*384-BIAS}")
    e(f"s_add_u32 s{sK}, s44, s3"); e(f"s_addc_u32 s{sK+1}, s45, 0")
    e(f"s_mov_b32 s{sK+2}, {512*384+BIAS}"); e(f"s_mov_b32 s{sK+3}, 0x20000")
    e(f"s_add_u32 s{sV}, s46, s3"); e(f"s_addc_u32 s{sV+1}, s47, 0")
    e(f"s_mov_b32 s{sV+2}, {512*384+BIAS}"); e(f"s_mov_b32 s{sV+3}, 0x20000")
    e(f"s_mov_b32 s{sWS}, s6"); e(f"s_mov_b32 s{sWS+1}, s7")
    e(f"s_mov_b32 s{sWS+2}, {WS_BYTES}"); e(f"s_mov_b32 s{sWS+3}, 0x20000")
    for base, lo, n in ((52, 68, 7864320), (56, 72, 1966080), (60, 74, 1966080), (64, 70, 1966080)):
        e(f"s_mov_b32 s{base}, s{lo}"); e(f"s_mov_b32 s{base+1}, s{lo+1}"); e(f"s_mov_b32 s{base+2}, {n}"); e(f"s_mov_b32 s{base+3}, 0x20000")

PFS = 64
def pf_kv():
    L = [Ins(f"s_mul_i32 s{sT0}, s25, 24576"), Ins(f"s_mul_i32 s{sT1}, s26, 6144"), Ins(f"s_add_u32 s{sT0}, s{sT0}, s{sT1}"),
         Ins(f"s_add_u32 s{sT0}, s{sT0}, {BIAS}"), Ins(f"v_mul_u32_u24 v29, {PFS}, v0"), Ins(f"v_add_u32 v29, s{sT0}, v29")]
    n = -(-6144 // (64*PFS))
    D = []
    for srd_ in (sK, sV):
        for i in range(n):
            D.append(Ins(f"v_add_u32 v30, {i*64*PFS}, v29"))
            D.append(Ins(f"buffer_load_dword v28, v30, s[{srd_}:{srd_+3}], 0 offen"))
    return L + D

def pf_wo():
    return [Ins(f"s_lshl_b32 s{sT0}, s2, 2"), Ins(f"s_add_u32 s{sT0}, s{sT0}, s26"), Ins(f"s_mul_i32 s{sT1}, s{sT0}, 7680"),
            Ins(f"v_lshlrev_b32 v31, {OPT.get('pfshift', 7)}, v0"), Ins(f"v_add_u32 v31, s{sT1}, v31"),
            NT(f"buffer_load_dword v28, v31, s[52:55], 0 offen")] + ([Ins("v_add_u32 v31, 4096, v31"), NT(f"buffer_load_dword v28, v31, s[52:55], 0 offen")] if OPT.get('pfshift', 7) == 6 else [])

def pf_weights():
    L = [Ins(f"s_lshl_b32 s{sT0}, s2, 2"), Ins(f"s_add_u32 s{sT0}, s{sT0}, s26"),
         Ins(f"v_mul_u32_u24 v31, {PFS}, v0"),
         Ins(f"s_mul_i32 s{sT1}, s{sT0}, 7680"), Ins(f"v_add_u32 v32, s{sT1}, v31")]
    for i in range(-(-7680 // (64*PFS))):
        L.append(Ins(f"v_add_u32 v30, {i*64*PFS}, v32"))
        L.append(Ins(f"buffer_load_dword v28, v30, s[52:55], 0 offen"))
    L += [Ins(f"s_mul_i32 s{sT1}, s{sT0}, 1920"), Ins(f"v_add_u32 v32, s{sT1}, v31")]
    for srd_ in (56, 60, 64):
        L.append(Ins(f"buffer_load_dword v28, v32, s[{srd_}:{srd_+3}], 0 offen"))
    return L

def dma_wq(ks):
    slot = ks % WQ_NS
    L = [Ins(f"s_add_u32 m0, s{sM0WQ}, {WQ_BASE + slot*WQ_ST}"),
         Ins(f"s_mov_b32 s{sOFF}, {ks*32*12288}")]
    D = [Ins(f"buffer_load_dwordx4 v{vWQD+q}, s[{sWQ}:{sWQ+3}], s{sOFF} offen offset:{q*1024} lds") for q in range(3)]
    return L, D

def k_slot(kt): return (kt + 2) % K_NS
def dma_k(kt):
    L = [Ins(f"s_add_u32 m0, s{sM0K}, {k_slot(kt)*K_ST}"),
         Ins(f"s_mov_b32 s{sOFF}, {kt*12288}")]
    D = [Ins(f"buffer_load_dwordx4 v{vKD+q}, s[{sK}:{sK+3}], s{sOFF} offen offset:{q*1024} lds") for q in range(3)]
    return L, D

def dma_v(st):
    G, kb = st // 4, st % 4
    L = [Ins(f"s_add_u32 m0, s{sM0V}, {(st % V_NS)*V_ST}"),
         Ins(f"s_mov_b32 s{sOFF}, {kb*128*384 + G*128}")]
    D = [Ins(f"buffer_load_dwordx4 v{vVD+i}, s[{sV}:{sV+3}], s{sOFF} offen offset:{i*1024} lds") for i in range(4)]
    return L, D

def load_h(ks):
    L = [Ins(f"s_mov_b32 s{sOFH}, {ks*1024}")]
    base = (ks % 4)*16
    D = [Ins(f"buffer_load_dwordx4 a[{base+4*ct}:{base+4*ct+3}], v{vHO+ct}, s[{sWS}:{sWS+3}], s{sOFH} offen") for ct in range(4)]
    return L, D

def tr_wq(n):
    ks, t = divmod(n, 12)
    slot = n % 16
    q, tp = t >> 2, t & 3
    off = WQ_BASE + (ks % WQ_NS)*WQ_ST + q*1024
    r = RING + slot*4
    return [Ins(f"ds_read_b64_tr_b16 a[{r}:{r+1}], v{vWQT+tp} offset:{off}"),
            Ins(f"ds_read_b64_tr_b16 a[{r+2}:{r+3}], v{vWQT+tp} offset:{off+6144}")]

OPT = dict(dma=True, hload=True, barrier=True, tr=True, pfcode=False)
def k_frag(n):
    kt, s_ = divmod(n, 12)
    r = RING + (n % 16)*4
    off = k_slot(kt)*K_ST + (s_ >> 2)*1024
    return Ins(f"ds_read_b128 a[{r}:{r+3}], v{vKF + (s_ & 3)} offset:{off}")

def softmax_stream(kt, mode='exp'):
    L = []
    buf = SB[kt & 1]
    toA = P_reg(kt, 0)[0] == 'a'
    for cb in range(2):
        Sx = buf + 16*cb
        if toA:
            A_ = [Sx+0, Sx+2, Sx+8, Sx+10]; B_ = [Sx+4, Sx+6, Sx+12, Sx+14]
        else:
            pa = P_reg(kt, 2*cb)[1]; pb = P_reg(kt, 2*cb+1)[1]
            A_ = [pa+i for i in range(4)]; B_ = [pb+i for i in range(4)]
        E = lambda i: Ins(f"v_exp_f32 v{Sx+i}, v{Sx+i}")
        C = lambda d, i: Ins(f"v_cvt_pk_bf16_f32 v{d}, v{Sx+i}, v{Sx+i+1}")
        SW = lambda i: Ins(f"v_permlane16_swap_b32 v{A_[i]}, v{B_[i]}")
        def W(i):
            if not toA: return []
            pa = P_reg(kt, 2*cb)[1]; pb = P_reg(kt, 2*cb+1)[1]
            return [Ins(f"v_accvgpr_write_b32 a{pa+i}, v{A_[i]}"), Ins(f"v_accvgpr_write_b32 a{pb+i}, v{B_[i]}")]
        L += [E(0), E(1), E(2), E(3), E(4), E(5), C(A_[0], 0), C(A_[1], 2), E(6), E(7), C(B_[0], 4), E(8), E(9), C(B_[1], 6),
              E(10), E(11), SW(0), C(A_[2], 8), SW(1), E(12), E(13), C(A_[3], 10), E(14), E(15)]
        L += W(0) + [C(B_[2], 12), C(B_[3], 14)] + W(1) + [SW(2), SW(3)]
        L += W(2) + W(3)
    return L

def phase2(P, handles):
    PF = 4
    for kt in range(16):
        bb = []
        buf = SB[kt & 1]
        for s_ in range(12):
            n = 12*kt + s_
            ar = RING + (n % 16)*4
            for cb in range(2):
                d = buf + 16*cb
                q = QF + 8*s_ + 4*cb
                c = f"v[{d}:{d+15}]" if s_ > 0 else "0"
                bb.append(Ins(f"v_mfma_f32_32x32x16_bf16 v[{d}:{d+15}], a[{ar}:{ar+3}], v[{q}:{q+3}], {c}"))
        s_rd, s_dma, s_sm = [], [], []
        for s_ in range(12):
            n = 12*kt + s_ + PF
            lo = 2*s_
            if n < 12*16:
                if s_ == 8:
                    s_rd.append((WaitVM(handles['k'][kt+1]), lo-1, lo-1))
                    s_rd.append((Ins("s_barrier"), lo-1, lo-1))
                s_rd.append((k_frag(n), lo, lo+1))
            else:
                m = n - 192
                if m == 0:
                    s_rd.append((WaitVM(handles['v'][0]), lo-1, lo-1))
                    s_rd.append((Ins("s_barrier"), lo-1, lo-1))
                a, b = tr_v(m)
                s_rd.append((a, lo, lo+1)); s_rd.append((b, lo, lo+1))
        if kt + 4 < 16:
            L, D = dma_k(kt+4)
            handles['k'][kt+4] = D[-1]
            s_dma += [(L[0], 16, 18), (L[1], 16, 18)] + [(d, 17+2*i, 19+2*i) for i, d in enumerate(D)]
        elif kt >= 12 and kt <= 14:
            L, D = dma_v(kt-12)
            handles['v'][kt-12] = D[-1]
            s_dma += [(L[0], 2, 18), (L[1], 2, 18)] + [(d, 4+4*i, 22) for i, d in enumerate(D)]
        if kt > 0:
            sm = softmax_stream(kt-1)
            if kt == 2 and OPT.get('pf') == 'wo': sm = pf_wo() + sm
            n = len(sm)
            for i, x in enumerate(sm):
                s_sm.append((x, 2, 23))
        P.many(weave(bb, [s_rd, s_dma, s_sm], 24, max_mem=1))

def tr_v(m):
    G, rem = divmod(m, 64)
    kt, tp = divmod(rem, 4)
    st = 4*G + (kt >> 2)
    off = (st % V_NS)*V_ST + (kt & 3)*4096
    r = RING + ((192 + m) % 16)*4
    return [Ins(f"ds_read_b64_tr_b16 a[{r}:{r+1}], v{vVT+tp} offset:{off}"),
            Ins(f"ds_read_b64_tr_b16 a[{r+2}:{r+3}], v{vVT+tp} offset:{off+2048}")]

ONES = 60

def o_epilogue(G):
    L = []
    ob = OACC[G & 1]
    for u in range(2):
        L.append(Ins(f"s_mov_b32 s{sOFH}, {(2*G+u)*1024}"))
        for ct in range(4):
            x = ob + ((2*u)*4 + ct)*4; y = ob + ((2*u+1)*4 + ct)*4
            for i in range(4): L.append(Ins(f"v_mul_f32 v{x+i}, v{RINV+ct}, v{x+i}"))
            for i in range(4): L.append(Ins(f"v_mul_f32 v{y+i}, v{RINV+ct}, v{y+i}"))
            L.append(Ins(f"v_cvt_pk_bf16_f32 v{x}, v{x}, v{x+1}"))
            L.append(Ins(f"v_cvt_pk_bf16_f32 v{x+1}, v{x+2}, v{x+3}"))
            L.append(Ins(f"v_cvt_pk_bf16_f32 v{x+2}, v{y}, v{y+1}"))
            L.append(Ins(f"v_cvt_pk_bf16_f32 v{x+3}, v{y+2}, v{y+3}"))
            L.append(Ins(f"buffer_store_dwordx4 v[{x}:{x+3}], v{vHO+ct}, s[{sWS}:{sWS+3}], s{sOFH} offen sc1"))
    return L

def phase3(P, handles):
    PF = 4
    for G in range(3):
        ob = OACC[G & 1]
        pre = []
        epi = []
        if G == 1:
            for ct in range(4): epi.append(Ins(f"v_rcp_f32 v{RINV+ct}, v{LACC+4*ct}"))
        if G >= 1: epi += o_epilogue(G-1)
        nslots_total = 16*16
        epi_ptr = 0
        for kt in range(16):
            bb = []
            for tp in range(4):
                m = 64*G + 4*kt + tp
                ar = RING + ((192 + m) % 16)*4
                for ct in range(4):
                    d = ob + (tp*4 + ct)*4
                    p = P_reg(kt, ct)
                    c = f"v[{d}:{d+3}]" if kt > 0 else "0"
                    bb.append(Ins(f"v_mfma_f32_16x16x32_bf16 v[{d}:{d+3}], a[{ar}:{ar+3}], {R(p,4)}, {c}"))
            if G == 0:
                for ct in range(4):
                    d = LACC + 4*ct
                    p = P_reg(kt, ct)
                    c = f"v[{d}:{d+3}]" if kt > 0 else "0"
                    bb.append(Ins(f"v_mfma_f32_16x16x32_bf16 v[{d}:{d+3}], v[{ONES}:{ONES+3}], {R(p,4)}, {c}"))
            s_rd, s_dma, s_x = [], [], []
            st = 4*G + (kt >> 2)
            for tp in range(4):
                m = 64*G + 4*kt + tp + PF
                if m >= 192: continue
                lo = 4*tp
                if tp == 0 and (kt & 3) == 3:
                    s_rd.append((WaitVM(handles['v'][st+1]), -1, -1))
                    s_rd.append((Ins("s_barrier"), -1, -1))
                a, b = tr_v(m)
                s_rd.append((a, lo, lo+1)); s_rd.append((b, lo+1, lo+2))
            if (kt & 3) == 3 and st + 3 < 12:
                L, D = dma_v(st+3)
                handles['v'][st+3] = D[-1]
                s_dma += [(L[0], 0, 2), (L[1], 0, 3)] + [(d, 2+3*i, 4+3*i) for i, d in enumerate(D)]
            if G == 0 and kt < 2:
                sm = softmax_stream(15)
                half = len(sm)//2
                part = sm[:half] if kt == 0 else sm[half:]
                s_x = [(x, 0 if kt else 2, 19) for x in part]
            elif epi and kt >= 1:
                per = -(-len(epi) // 13)
                part = epi[epi_ptr:epi_ptr+per]; epi_ptr += len(part)
                s_x = [(x, 0, len(bb)-1) for x in part]
            P.many(weave(bb, [s_rd, s_dma, s_x], 8))
        assert epi_ptr >= len(epi)
    P.many(o_epilogue(2))

def phase3_setup():
    L = [Ins(f"v_mov_b32 v{ONES+i}, 0x3f803f80") for i in range(4)]
    L.append(Ins(f"s_mul_i32 s{sT0}, s38, {196608-20480}"))
    L.append(Ins(f"s_mul_i32 s{sT1}, s24, 6144"))
    L.append(Ins(f"s_add_u32 s{sT0}, s{sT0}, s{sT1}"))
    L.append(Ins(f"s_add_u32 s{sT0}, s{sT0}, {WS_OF-WS_HF}"))
    for ct in range(4):
        L.append(Ins(f"v_add_u32 v{vHO+ct}, s{sT0}, v{vHO+ct}"))
        if ct: L.append(Ins(f"v_add_u32 v{vHO+ct}, {ct*(196608-20480)}, v{vHO+ct}"))
    return L

def phase1(P, handles):
    NK = 20
    PF = 4
    dmah = handles['wq']
    for ks in range(NK):
        bb = []
        for t in range(12):
            n = 12*ks + t
            ar = RING + (n % 16)*4
            for ct in range(4):
                acc = QACC + (4*t + ct)*4
                b = (ks % 4)*16 + 4*ct
                c = f"v[{acc}:{acc+3}]" if ks > 0 else "0"
                bb.append(Ins(f"v_mfma_f32_16x16x32_bf16 v[{acc}:{acc+3}], a[{ar}:{ar+3}], a[{b}:{b+3}], {c}"))
        s_tr, s_h, s_dma = [], [], []
        for t in range(12):
            n = 12*ks + t + PF
            if n >= 12*NK:
                if OPT.get('p2', False):
                    lo = 4*t
                    if t == 8:
                        s_tr.append((WaitVM(handles['k'][0]), lo-1, lo-1))
                        s_tr.append((Ins("s_barrier"), lo-1, lo-1))
                    s_tr.append((k_frag(n - 12*NK), lo, lo+2))
                continue
            a, b = tr_wq(n)
            lo = 4*t
            if t == 8:
                if OPT['dma'] or ks+1 < 4: s_tr.append((WaitVM(dmah[ks+1]), lo-1, lo-1))
                if OPT['barrier']: s_tr.append((Ins("s_barrier"), lo-1, lo-1))
            if OPT['tr']:
                s_tr.append((a, lo, lo+1)); s_tr.append((b, lo+1, lo+2))
        if ks + 3 < NK and OPT['hload']:
            L, D = load_h(ks+3)
            s_h.append((L[0], 0, 1))
            for i, d in enumerate(D): s_h.append((d, 4*i+2, 4*i+3))
        if not OPT['dma']: pass
        elif ks + 4 < NK:
            L, D = dma_wq(ks+4)
            dmah[ks+4] = D[-1]
            s_dma.append((L[0], 33, 35)); s_dma.append((L[1], 34, 36))
            for i, d in enumerate(D): s_dma.append((d, 36+4*i, 38+4*i))
        elif ks >= 16:
            kt = ks - 16
            L, D = dma_k(kt)
            handles['k'][kt] = D[-1]
            s_dma.append((L[0], 33, 35)); s_dma.append((L[1], 34, 36))
            for i, d in enumerate(D): s_dma.append((d, 36+4*i, 38+4*i))
        s_pf = []
        if OPT.get('pf', 'loop') == 'loop':
            if ks == 1: s_pf = [(x, 2, 47) for x in pf_kv()]
            if ks == 8: s_pf = [(x, 2, 47) for x in pf_weights()]
        P.many(weave(bb, [s_tr, s_h, s_dma, s_pf], 8))

SX = 28
def s_buf(kt): return SX if kt == 0 else SB[kt & 1]

def softmax_stream2(kt):
    global SB
    L = []
    buf = s_buf(kt)
    toA = P_reg(kt, 0)[0] == 'a'
    for cb in range(2):
        Sx = buf + 16*cb
        if toA:
            A_ = [Sx+0, Sx+2, Sx+8, Sx+10]; B_ = [Sx+4, Sx+6, Sx+12, Sx+14]
        else:
            pa = P_reg(kt, 2*cb)[1]; pb = P_reg(kt, 2*cb+1)[1]
            A_ = [pa+i for i in range(4)]; B_ = [pb+i for i in range(4)]
        sub = OPT.get('mode', 'exp')
        def E(i):
            if sub == 'sub':
                return [Ins(f"v_sub_f32 v{Sx+i}, v{Sx+i}, v{NEGM+cb}"), Ins(f"v_exp_f32 v{Sx+i}, v{Sx+i}")]
            return [Ins(f"v_exp_f32 v{Sx+i}, v{Sx+i}")]
        C = lambda d, i: [Ins(f"v_cvt_pk_bf16_f32 v{d}, v{Sx+i}, v{Sx+i+1}")]
        SW = lambda i: [Ins(f"v_permlane16_swap_b32 v{A_[i]}, v{B_[i]}")]
        def W(i):
            if not toA: return []
            pa = P_reg(kt, 2*cb)[1]; pb = P_reg(kt, 2*cb+1)[1]
            return [Ins(f"v_accvgpr_write_b32 a{pa+i}, v{A_[i]}"), Ins(f"v_accvgpr_write_b32 a{pb+i}, v{B_[i]}")]
        for x in (E(0), E(1), E(2), E(3), E(4), E(5), C(A_[0], 0), C(A_[1], 2), E(6), E(7), C(B_[0], 4), E(8), E(9), C(B_[1], 6),
                  E(10), E(11), C(A_[2], 8), SW(0), E(12), E(13), SW(1), C(A_[3], 10), E(14), E(15), W(0), C(B_[2], 12), C(B_[3], 14), W(1),
                  SW(2), SW(3)): L += x
        L += W(2) + W(3)
    return L
NEGM = 62

def q_convert_tile(t):
    L = []
    for cb in range(2):
        x = QACC + (4*t + 2*cb)*4; y = x + 4
        d = QF + 8*t + 4*cb
        L += [Ins(f"v_cvt_pk_bf16_f32 v{d}, v{x}, v{x+1}"), Ins(f"v_cvt_pk_bf16_f32 v{d+1}, v{x+2}, v{x+3}"),
              Ins(f"v_cvt_pk_bf16_f32 v{d+2}, v{y}, v{y+1}"), Ins(f"v_cvt_pk_bf16_f32 v{d+3}, v{y+2}, v{y+3}")]
    for cb in range(2):
        d = QF + 8*t + 4*cb
        L += [Ins(f"v_permlane16_swap_b32 v{d}, v{d+2}"), Ins(f"v_permlane16_swap_b32 v{d+1}, v{d+3}")]
    return L

def main_schedule(P, H):
    NK = 20; PF = 4
    bb = []
    p1_0 = 0
    for ks in range(NK):
        for t in range(12):
            n = 12*ks + t
            ar = RING + (n % 16)*4
            for ct in range(4):
                acc = QACC + (4*t + ct)*4
                b = (ks % 4)*16 + 4*ct
                c = f"v[{acc}:{acc+3}]" if ks > 0 else "0"
                bb.append(Ins(f"v_mfma_f32_16x16x32_bf16 v[{acc}:{acc+3}], a[{ar}:{ar+3}], a[{b}:{b+3}], {c}"))
    p2_0 = len(bb)
    for kt in range(16):
        buf = s_buf(kt)
        for s_ in range(12):
            n = 12*kt + s_
            ar = RING + (n % 16)*4
            for cb in range(2):
                d = buf + 16*cb; q = QF + 8*s_ + 4*cb
                c = f"v[{d}:{d+15}]" if s_ > 0 else "0"
                bb.append(Ins(f"v_mfma_f32_32x32x16_bf16 v[{d}:{d+15}], a[{ar}:{ar+3}], v[{q}:{q+3}], {c}"))
    p3_0 = len(bb)
    kstart = {}
    fslot = {}
    for G in range(3):
        ob = OACC[G & 1]
        for kt in range(16):
            kstart[(G, kt)] = len(bb)
            for tp in range(4):
                m = 64*G + 4*kt + tp
                ar = RING + ((192 + m) % 16)*4
                fslot[m] = len(bb)
                for ct in range(4):
                    d = ob + (tp*4 + ct)*4; p = P_reg(kt, ct)
                    c = f"v[{d}:{d+3}]" if kt > 0 else "0"
                    bb.append(Ins(f"v_mfma_f32_16x16x32_bf16 v[{d}:{d+3}], a[{ar}:{ar+3}], {R(p,4)}, {c}"))
            if G == 0:
                for ct in range(4):
                    d = LACC + 4*ct; p = P_reg(kt, ct)
                    c = f"v[{d}:{d+3}]" if kt > 0 else "0"
                    bb.append(Ins(f"v_mfma_f32_16x16x32_bf16 v[{d}:{d+3}], v[{ONES}:{ONES+3}], {R(p,4)}, {c}"))
    nslots = len(bb)
    def use_slot(f):
        if f < 240: return 4*f
        if f < 432: return p2_0 + 2*(f-240)
        return fslot[f-432]
    def reads(f):
        if f < 240: return tr_wq(f)
        if f < 432: return [k_frag(f-240)]
        return tr_v(f-432)
    grp = []; wq_h = dict(H['wq']); k_h = {}; v_h = {}; h_h = dict(H['h'])
    bar = {}
    def first_read_slot(f): return use_slot(f - PF)
    for ks in range(1, NK): bar[('wq', ks)] = first_read_slot(12*ks) - 1
    for kt in range(16): bar[('k', kt)] = first_read_slot(240 + 12*kt) - 1
    for st in range(12): bar[('v', st)] = first_read_slot(432 + 16*st) - 1
    for ks in range(4, NK):
        L, D = dma_wq(ks); wq_h[ks] = D[-1]
        lo = bar[('wq', ks-3)] + 1 if ks-3 >= 1 else 0
        grp.append((lo, lo + 44, L, D))
    for ks in range(3, NK):
        L, D = load_h(ks); h_h[ks] = D[-1]
        lo = 48*(ks-3)
        grp.append((lo, lo + 44, L, D))
    for kt in range(16):
        L, D = dma_k(kt); k_h[kt] = D[-1]
        if kt < 3: lo = 48*(16+kt) + 8; hi = lo + 38
        elif kt == 3: lo = bar[('k', 0)] + 1; hi = lo + 12
        else: lo = bar[('k', kt-3)] + 1; hi = lo + 20
        grp.append((lo, hi, L, D))
    for st in range(12):
        L, D = dma_v(st); v_h[st] = D[-1]
        if st < 3: lo = p2_0 + 24*(12+st) + 1; hi = lo + 20
        else: lo = bar[('v', st-2)] + 1; hi = lo + 40
        grp.append((lo, hi, L, D))
    placed = space_vm(grp, 4, nslots)
    streams_vm = {}
    seen = {}
    for slot, pre, op, gi in placed:
        key = 'h' if op.kind == 'vload' else 'dma'
        if seen.get(key) != gi:
            assert (key, gi) not in seen, "groups interleave"
            seen[(key, gi)] = True; seen[key] = gi
    for slot, pre, op, gi in placed:
        key = 'h' if op.kind == 'vload' else 'dma'
        st_ = streams_vm.setdefault(key, [])
        if OPT.get('novm'): continue
        for x in pre: st_.append((x, slot-3, slot))
        st_.append((op, slot, slot+int(OPT.get('vmslack', 1))))
    s_rd, s_w = [], []
    last_read = dict(H['tr'])
    for f in range(PF, 624):
        lo = use_slot(f - PF)
        key = None
        if f < 240 and f % 12 == 0: key = ('wq', f // 12); hh = wq_h[f // 12]
        elif 240 <= f < 432 and (f-240) % 12 == 0: key = ('k', (f-240)//12); hh = k_h[(f-240)//12]
        elif f >= 432 and (f-432) % 16 == 0: key = ('v', (f-432)//16); hh = v_h[(f-432)//16]
        if key:
            if not OPT.get('novm'): s_rd.append((WaitVM(hh), lo-1, lo-1))
            if not OPT.get('nobar'): s_rd.append((Ins("s_barrier"), lo-1, lo-1))
        rr = reads(f)
        nxt = use_slot(f - PF + 1) if f - PF + 1 < 624 else lo + 4
        if len(rr) == 2:
            s2 = lo + 1 if nxt - lo >= 2 else lo
            s_rd.append((rr[0], lo, lo)); s_rd.append((rr[1], s2, s2))
        else:
            s_rd.append((rr[0], lo, lo))
        last_read[f] = rr[-1]
    for f in range(624):
        u = use_slot(f)
        s_w.append((WaitLGKM(last_read[f]), u-1, u-1))
    s_wh = [(WaitVM(h_h[ks]), 48*ks-1, 48*ks-1) for ks in range(NK)] if not OPT.get('novm') else []
    s_v = []
    for t in range(12):
        e_ = 48*19 + 4*t + 5
        dl = p2_0 + 2*t - 2
        for x in q_convert_tile(t): s_v.append((x, e_, max(e_, dl)))
    for x in phase3_setup(): s_v.append((x, p2_0 + 4, p2_0 + 20))
    for kt in range(16):
        e_ = p2_0 + 24*(kt+1) + 1
        dl = e_ + 22 if kt < 15 else kstart[(0, 2)]
        for x in softmax_stream2(kt): s_v.append((x, e_, dl))
    for G in range(3):
        if G == 0:
            epi = [Ins(f"v_rcp_f32 v{RINV+ct}, v{LACC+4*ct}") for ct in range(4)] + o_epilogue(0)
        elif G == 1: epi = o_epilogue(1)
        else: break
        e0 = kstart[(G+1, 0)] + 3; e1 = kstart[(G+1, 15)]
        for j, x in enumerate(epi):
            ee = e0 + (j*(e1-e0))//len(epi)
            s_v.append((x, ee, e1 + 12))
    s_pf = []
    for name, slot in OPT.get('touch', []):
        for x in TOUCH[name](): s_pf.append((x, slot(p2_0, p3_0), nslots))
    s_st = []
    if OPT.get('stamps_in'):
        pts = [48*10, p2_0, p2_0 + 24*8, p3_0, kstart[(1, 0)], kstart[(2, 0)]]
        for i, sl in enumerate(pts): s_st.append((Ins(f"s_memtime s[{sTS+2*(i+2)}:{sTS+2*(i+2)+1}]"), sl-1, sl-1))
    streams = [s_w, s_wh, s_rd] + list(streams_vm.values()) + [s_v, s_pf, s_st]
    P.many(weave(bb, streams))
    P.many(o_epilogue(2))
    return p2_0, p3_0

def pf_v():
    return [Ins(f"s_mul_i32 s{sT0}, s25, 24576"), Ins(f"s_mul_i32 s{sT1}, s26, 6144"), Ins(f"s_add_u32 s{sT0}, s{sT0}, s{sT1}"),
            Ins(f"s_add_u32 s{sT0}, s{sT0}, {BIAS}"), Ins(f"v_lshlrev_b32 v{PFA}, 7, v0"), Ins(f"v_add_u32 v{PFA}, s{sT0}, v{PFA}"),
            NT(f"buffer_load_dword a191, v{PFA}, s[{sV}:{sV+3}], 0 offen")]
def pf_k():
    return [Ins(f"s_mul_i32 s{sT0}, s25, 24576"), Ins(f"s_mul_i32 s{sT1}, s26, 6144"), Ins(f"s_add_u32 s{sT0}, s{sT0}, s{sT1}"),
            Ins(f"s_add_u32 s{sT0}, s{sT0}, {BIAS}"), Ins(f"v_lshlrev_b32 v{PFA}, 7, v0"), Ins(f"v_add_u32 v{PFA}, s{sT0}, v{PFA}"),
            NT(f"buffer_load_dword a191, v{PFA}, s[{sK}:{sK+3}], 0 offen")]
def pf_wo2():
    return [Ins(f"s_lshl_b32 s{sT0}, s2, 2"), Ins(f"s_add_u32 s{sT0}, s{sT0}, s26"), Ins(f"s_mul_i32 s{sT1}, s{sT0}, 7680"),
            Ins(f"v_lshlrev_b32 v{PFA}, 7, v0"), Ins(f"v_add_u32 v{PFA}, s{sT1}, v{PFA}"),
            NT(f"buffer_load_dword a191, v{PFA}, s[52:55], 0 offen")]
def pf_w3():
    L = [Ins(f"s_lshl_b32 s{sT0}, s2, 2"), Ins(f"s_add_u32 s{sT0}, s{sT0}, s26"), Ins(f"s_mul_i32 s{sT1}, s{sT0}, 1920"),
         Ins(f"v_lshlrev_b32 v{PFA}, 7, v0"), Ins(f"v_add_u32 v{PFA}, s{sT1}, v{PFA}"),
         Ins(f"v_cmp_gt_u32 vcc, 15, v0"), Ins(f"v_mov_b32 v59, 0x7ff00000"), Ins("s_nop 0"), Ins(f"v_cndmask_b32 v{PFA}, v59, v{PFA}, vcc")]
    for srd_ in (56, 60, 64): L.append(NT(f"buffer_load_dword a191, v{PFA}, s[{srd_}:{srd_+3}], 0 offen"))
    return L
PFA = 27
TOUCH = dict(v=pf_v, k=pf_k, wo=pf_wo2, w3=pf_w3)

def main_pro(P, H):
    H['wq'] = {}; H['h'] = {}; H['tr'] = {}
    for ks in range(4):
        L, D = dma_wq(ks)
        P.many(L); P.many(D); H['wq'][ks] = D[-1]
        if ks < 3:
            L, D = load_h(ks)
            P.many(L); P.many(D); H['h'][ks] = D[-1]
    P.wait_vm(H['wq'][0])
    P.e("s_barrier")
    for n in range(4):
        rr = tr_wq(n); P.many(rr); H['tr'][n] = rr[-1]

def phase1_pro(P, handles):
    for ks in range(4):
        L, D = dma_wq(ks)
        P.many(L); P.many(D)
        handles['wq'][ks] = D[-1]
        if ks < 3:
            L, D = load_h(ks)
            P.many(L); P.many(D)
    if OPT.get('pf', 'loop') == 'pro':
        P.many(pf_kv()); P.many(pf_weights())
    P.wait_vm(handles['wq'][0])
    P.e("s_barrier")
    for n in range(4):
        P.many(tr_wq(n))

def q_convert(P):
    for t in range(12):
        for cb in range(2):
            x = QACC + (4*t + 2*cb)*4; y = x + 4
            d = QF + 8*t + 4*cb
            P.e(f"v_cvt_pk_bf16_f32 v{d}, v{x}, v{x+1}")
            P.e(f"v_cvt_pk_bf16_f32 v{d+1}, v{x+2}, v{x+3}")
            P.e(f"v_cvt_pk_bf16_f32 v{d+2}, v{y}, v{y+1}")
            P.e(f"v_cvt_pk_bf16_f32 v{d+3}, v{y+2}, v{y+3}")
        for cb in range(2):
            d = QF + 8*t + 4*cb
            P.e(f"v_permlane16_swap_b32 v{d}, v{d+2}")
            P.e(f"v_permlane16_swap_b32 v{d+1}, v{d+3}")

def dump_regs(P, regs, base_off):
    n = len(regs)
    P.e(f"s_lshl_b32 s3, s2, 2"); P.e("s_add_u32 s3, s3, s26")
    P.e(f"s_mul_i32 s3, s3, {n*256}"); P.e(f"s_add_u32 s3, s3, {base_off}")
    P.e(f"v_lshlrev_b32 v{vT0}, 2, v0"); P.e(f"v_add_u32 v{vT0}, s3, v{vT0}")
    for i, r in enumerate(regs):
        if r[0] == 'a':
            P.e(f"v_accvgpr_read_b32 v{vT1}, a{r[1]}")
            src = vT1
        else:
            src = r[1]
        P.e(f"s_mov_b32 s3, {i*256}")
        P.e(f"buffer_store_dword v{src}, v{vT0}, s[{sWS}:{sWS+3}], s3 offen")
        if r[0] == 'a': P.e("s_waitcnt vmcnt(0)")

def stamp(P, idx):
    P.e(f"s_memtime s[{sTS+2*idx}:{sTS+2*idx+1}]")

def write_stamps(P, n):
    P.e("s_waitcnt lgkmcnt(0)")
    P.e(f"s_lshl_b32 s3, s2, 2"); P.e("s_add_u32 s3, s3, s26"); P.e("s_lshl_b32 s3, s3, 6"); P.e(f"s_add_u32 s3, s3, {WS_STAMP}")
    for i in range(n):
        P.e(f"v_mov_b32 v{vT1}, s{sTS+2*i}")
        P.e(f"v_mov_b32 v{vT0}, s3")
        P.e(f"buffer_store_dword v{vT1}, v{vT0}, s[{sWS}:{sWS+3}], 0 offen offset:{4*i}")
        P.e("s_waitcnt vmcnt(0)")

KD = """.section .rodata,"a"
.p2align 6
.amdhsa_kernel {name}
  .amdhsa_next_free_vgpr {vgpr}
  .amdhsa_next_free_sgpr 102
  .amdhsa_accum_offset {acc}
  .amdhsa_group_segment_fixed_size 0
  .amdhsa_kernarg_size 112
  .amdhsa_user_sgpr_count 2
  .amdhsa_user_sgpr_kernarg_segment_ptr 1
  .amdhsa_system_sgpr_workgroup_id_x 1
.end_amdhsa_kernel
"""

def wrap(kernels, launches):
    s = ""
    for nm, g, b, l in launches:
        s += f"; @launch kernel={nm} grid=({g},1,1) block=({b},1,1) lds={l}\n"
    s += '.amdgcn_target "amdgcn-amd-amdhsa--gfx950"\n.text\n'
    for nm, txt, vg, ac in kernels:
        s += f".globl {nm}\n.p2align 8\n.type {nm},@function\n{nm}:\n{txt}"
    for nm, txt, vg, ac in kernels:
        s += KD.format(name=nm, vgpr=vg, acc=ac)
    return s

def code_prefetch(P, nbytes):
    P.e("s_getpc_b64 s[48:49]")
    P.e(f"v_lshlrev_b32 v{vT0}, 2, v0")
    P.e(f"s_lshl_b32 s3, s26, 8"); P.e(f"v_add_u32 v{vT0}, s3, v{vT0}")
    P.e(f"v_lshlrev_b32 v{vT0}, 4, v{vT0}")
    for off in range(0, nbytes, 16384):
        P.e(f"global_load_dword v{vT1}, v{vT0}, s[48:49]")
        P.e(f"v_add_u32 v{vT0}, 16384, v{vT0}")

def build_p1(fname):
    P = Prog()
    H = {'wq': {}, 'k': {}, 'v': {}}
    prologue(P, stamps=False)
    if OPT['pfcode']: code_prefetch(P, 16384)
    stamp(P, 0)
    phase1_pro(P, H)
    stamp(P, 1)
    phase1(P, H)
    stamp(P, 2)
    q_convert(P)
    stamp(P, 3)
    P.e("s_waitcnt vmcnt(0)")
    dump_regs(P, [('v', QF+i) for i in range(96)], WS_DBG)
    write_stamps(P, 4)
    P.e("K2_END:")
    P.e("s_endpgm")
    P.finalize()
    print("estimate", P.estimate(), "nops", P.nops, "ninstr", len(P.final))
    open(fname, "w").write(wrap([("k2_kernel", P.text(), 512, 256)], [("k2_kernel", 256, 256, LDS_BYTES)]))

def build_full(fname, dump_p=False):
    OPT.update(dict(dma=True, hload=True, barrier=True, tr=True, pfcode=True, p2=True))
    P = Prog()
    H = {'wq': {}, 'k': {}, 'v': {}}
    prologue(P, stamps=False)
    code_prefetch(P, 49152)
    stamp(P, 0)
    phase1_pro(P, H)
    stamp(P, 1)
    phase1(P, H)
    stamp(P, 2)
    q_convert(P)
    P.many(phase3_setup())
    stamp(P, 3)
    phase2(P, H)
    stamp(P, 4)
    phase3(P, H)
    stamp(P, 5)
    P.e("s_waitcnt vmcnt(0)")
    stamp(P, 6)
    if dump_p:
        regs = []
        for kt in range(16):
            for ct in range(4):
                p = P_reg(kt, ct)
                regs += [(p[0], p[1]+i) for i in range(4)]
        regs += [('v', LACC+i) for i in range(16)]
        dump_regs(P, regs, WS_DBG)
    write_stamps(P, 7)
    P.e("K2_END:")
    P.e("s_endpgm")
    P.finalize()
    print("estimate", P.estimate(), "nops", P.nops, "ninstr", len(P.final))
    open(fname, "w").write(wrap([("k2_kernel", P.text(), 512, 256)], [("k2_kernel", 256, 256, LDS_BYTES)]))

if __name__ == "__main__":
    import sys
    if len(sys.argv) > 1 and sys.argv[1] == "full":
        build_full("k2_full.s", dump_p=True)
        build_full("k2_fast.s", dump_p=False)
        sys.exit(0)
    build_p1("k2_p1.s")
    for nm, o in [("a", dict(dma=False, hload=False, barrier=False)), ("b", dict(dma=False, hload=True, barrier=False)),
                  ("c", dict(dma=True, hload=False, barrier=False)), ("d", dict(dma=True, hload=True, barrier=False)),
                  ("e", dict(dma=False, hload=False, barrier=True)), ("f", dict(dma=True, hload=True, barrier=True, pfcode=True)),
                  ("g", dict(dma=False, hload=False, barrier=False, tr=False))]:
        OPT.update(dict(dma=True, hload=True, barrier=True, tr=True, pfcode=False)); OPT.update(o)
        build_p1(f"k2_p1{nm}.s")
```

```python
from asmgen import *
from k2gen import WS_MOD, WS_HF, WS_OF, WS_PART, WS_X1, WS_H2F, WS_ACT, WS_BYTES, WS_STAMP, WS_WD
from ksmall import srd, f2u, NSPLIT
BIAS = 8192

GOPT = dict(dma=True, bload=True, tr=True, barrier=True, waits=True)
def gemm_stream(P, NK, nA, nB, kps, acc_reg, a_ring, a_slots, b_ring, b_sets, tr_fn, bload_fn, dma_fn, H,
                PF, BPF, DPF, nstages, WG=2, extra=None, a_is_agpr=False, b_is_agpr=False, zero_init=True, early=False):
    TRH = H.setdefault('tr', {}); BH = H.setdefault('b', {})
    spk = nA*nB
    bb = []
    for ks in range(NK):
        for t in range(nA):
            n = nA*ks + t
            ar = a_ring + (n % a_slots)*4
            for ct in range(nB):
                acc = acc_reg(t, ct)
                b = b_ring + (ks % b_sets)*4*nB + 4*ct
                c = f"v[{acc}:{acc+3}]" if (ks > 0 or not zero_init) else "0"
                ra = f"a[{ar}:{ar+3}]" if a_is_agpr else f"v[{ar}:{ar+3}]"
                rb = f"a[{b}:{b+3}]" if b_is_agpr else f"v[{b}:{b+3}]"
                bb.append(Ins(f"v_mfma_f32_16x16x32_bf16 v[{acc}:{acc+3}], {ra}, {rb}, {c}"))
    s_tr, s_w, vm = [], [], []
    bar_at = {}
    dmas = {}
    for st in range(nstages):
        if st not in H and GOPT['dma']:
            L, D = dma_fn(st); dmas[st] = (L, D); H[st] = D[-1]
    loads = {}
    for ks in range(NK):
        if ks not in BH and GOPT['bload']:
            L, D = bload_fn(ks); loads[ks] = (L, D); BH[ks] = D[-1]
    for n in range(PF, nA*NK):
        lo = nB*(n - PF)
        nks = n // nA
        if n % nA == 0 and nks % kps == 0:
            stg = nks // kps
            if stg in H and GOPT['waits']: s_tr.append((WaitVM(H[stg]), lo-1, lo-1))
            if GOPT['barrier']: s_tr.append((Ins("s_barrier"), lo-1, lo-1))
            bar_at[stg-1] = lo
        a, b = tr_fn(n)
        TRH[n] = b
        if GOPT['tr']:
            s2 = lo+1 if nB > 1 else lo
            s_tr.append((a, lo, lo)); s_tr.append((b, s2, s2))
    for n in range(0, nA*NK, WG):
        tgt = min(n + WG - 1, nA*NK - 1)
        if GOPT['tr']: s_w.append((WaitLGKM(TRH[tgt]), nB*n-1, nB*n-1))
    s_wb = [(WaitVM(BH[ks]), spk*ks-1, spk*ks-1) for ks in range(NK) if ks in BH and GOPT['waits']]
    items = []
    for st, (L, D) in dmas.items():
        if st - DPF < 0:
            lo = 0; hi = max(bar_at.get(st - 2, spk), spk) - 1
        else:
            lo = bar_at.get(st - DPF, 0)
            hi = bar_at.get(st - DPF + 1, lo + spk*kps) - 1
        items.append((lo, hi, L, D))
    for ks, (L, D) in loads.items():
        lo = max(0, spk*(ks - BPF)); hi = max(lo + spk - 1, 0)
        if ks - BPF < 0: hi = max(spk*(ks - 2), spk) - 1
        items.append((lo, hi, L, D))
    items.sort(key=lambda x: (x[1], x[0]))
    ops = []
    for gi, (lo, hi, L, D) in enumerate(items):
        pre = list(L)
        for d in D:
            if cls(d) != 'mem': pre.append(d); continue
            ops.append([lo, hi, gi, pre, d]); pre = []
    nslots = len(bb)
    gap = max(1, int(GAP))
    placed = []
    t = 0
    remaining = ops[:]
    cur = 0
    started = set()
    while remaining:
        cand = [o for o in remaining if o[0] <= cur]
        open_ = {}
        for o in remaining:
            if o[2] in started: open_[o[4].kind] = o[2]
        cand = [o for o in cand if open_.get(o[4].kind, o[2]) == o[2]]
        if not cand:
            cur = max(cur + 1, min(o[0] for o in remaining)); continue
        o = min(cand, key=lambda o: (o[1], ops.index(o)))
        placed.append((cur, o)); remaining.remove(o); started.add(o[2])
        nxt = cur + gap
        if remaining:
            dl = sorted(x[1] for x in remaining)
            for idx, dd in enumerate(dl):
                if nxt + idx*gap > dd:
                    nxt = max(cur + 1, min(nxt, dd - idx*gap))
        cur = nxt
    per_group = {}
    seen = {}
    for slot, o in placed:
        key = 'd' if o[4].kind == 'dma' else 'b'
        if seen.get(key) != o[2]:
            assert (key, o[2]) not in seen, "groups interleave"
            seen[(key, o[2])] = True; seen[key] = o[2]
    for slot, o in placed:
        st_ = per_group.setdefault(o[2] % 2 if False else ('d' if o[4].kind == 'dma' else 'b'), [])
        for x in o[3]: st_.append((x, slot-2, slot))
        st_.append((o[4], slot, slot))
    streams = [s_w, s_wb, s_tr] + list(per_group.values())
    if extra: streams.append(extra)
    P.many(weave(bb, streams, 8, max_mem=2))

GAP = 4
def gen_k3(stamps=False, auto=True):
    P = Prog(); e = P.e
    NS = 6; ST = 20480
    e("s_cmp_ge_u32 s2, 256"); e("s_cbranch_scc1 K3_END")
    e("s_load_dwordx2 s[4:5], s[0:1], 32")
    e("s_load_dwordx2 s[6:7], s[0:1], 104")
    if stamps: e("s_memtime s[40:41]")
    e("s_and_b32 s20, s2, 3")
    e("s_lshr_b32 s3, s2, 2"); e("s_and_b32 s3, s3, 1"); e("s_lshl_b32 s3, s3, 3")
    e("s_lshr_b32 s21, s2, 5"); e("s_add_u32 s21, s21, s3")
    e("s_lshr_b32 s22, s2, 3"); e("s_and_b32 s22, s22, 3")
    e("v_lshrrev_b32 v1, 6, v0"); e("v_and_b32 v0, 63, v0")
    e("v_readfirstlane_b32 s23, v1")
    for i in range(5):
        e(f"v_add_u32 v10, {i*64}, v0")
        e("v_mul_u32_u24 v11, 3277, v10"); e("v_lshrrev_b32 v11, 16, v11")
        e("v_mul_u32_u24 v12, 20, v11"); e("v_sub_u32 v12, v10, v12")
        e("v_lshrrev_b32 v13, 2, v11"); e("v_and_b32 v13, 1, v13"); e("v_lshlrev_b32 v13, 1, v13")
        e("v_xor_b32 v12, v12, v13")
        e("v_lshlrev_b32 v12, 4, v12")
        e("v_mul_u32_u24 v11, 1280, v11")
        e("v_add_u32 v11, v11, v12")
        e(f"v_add_u32 v{2+i}, {BIAS - i*1024}, v11")
    e("s_mul_i32 s3, s23, 20480")
    for i in range(5): e(f"v_add_u32 v{2+i}, s3, v{2+i}")
    e("v_lshrrev_b32 v10, 4, v0")
    e("v_lshrrev_b32 v11, 2, v0"); e("v_and_b32 v11, 3, v11")
    e("v_lshlrev_b32 v12, 2, v10"); e("v_add_u32 v11, v11, v12")
    e("v_mul_u32_u24 v11, 320, v11")
    e("v_and_b32 v12, 3, v0"); e("v_lshlrev_b32 v12, 3, v12"); e("v_add_u32 v11, v11, v12")
    e("v_and_b32 v12, 1, v10"); e("v_lshlrev_b32 v12, 5, v12")
    e("v_add_u32 v7, v11, v12")
    e("v_xor_b32 v12, 32, v12"); e("v_add_u32 v8, v11, v12")
    e(f"v_add_u32 v9, {3*ST}, v7"); e(f"v_add_u32 v14, {3*ST}, v8")
    e("s_lshl_b32 s3, s21, 3"); e("s_lshl_b32 s24, s23, 1"); e("s_add_u32 s24, s24, s3")
    e("s_mul_i32 s3, s24, 196608"); e("s_mul_i32 s25, s20, 49152"); e("s_add_u32 s3, s3, s25"); e(f"s_add_u32 s3, s3, {WS_OF}")
    e("v_lshlrev_b32 v10, 4, v0"); e("v_add_u32 v15, s3, v10"); e("v_add_u32 v16, 196608, v15")
    e("s_lshl_b32 s3, s20, 7"); e("s_add_u32 s3, s3, s24"); e("s_mul_i32 s3, s3, 20480")
    e("s_mul_i32 s25, s22, 5120"); e("s_add_u32 s3, s3, s25"); e(f"s_add_u32 s3, s3, {WS_PART}")
    e("v_add_u32 v17, s3, v10"); e("v_add_u32 v18, 20480, v17")
    e("s_mul_i32 s26, s23, 5120")
    e("s_mul_i32 s27, s20, 1966080")
    e("s_waitcnt lgkmcnt(0)")
    e("s_mul_i32 s3, s22, 320")
    e("s_add_u32 s8, s4, s3"); e("s_addc_u32 s9, s5, 0"); e(f"s_sub_u32 s8, s8, {BIAS}"); e("s_subb_u32 s9, s9, 0")
    e(f"s_sub_u32 s10, {7864320+BIAS}, s3"); e("s_mov_b32 s11, 0x20000")
    srd(P, 12, 6, 7, WS_BYTES)
    ACC = 176
    AR = 20; ASL = 12
    BR = 68; BS = 6
    def acc_reg(t, ct): return ACC + (t*2 + ct)*4
    def tr_fn(n):
        ks, t = divmod(n, 10)
        st, kk = divmod(ks, 2)
        slot = st % NS
        sett, so = divmod(slot, 3)
        areg = [7, 8, 9, 14][sett*2 + (t & 1)]
        off = so*ST + kk*10240 + (t >> 1)*64
        r = AR + (n % ASL)*4
        return [Ins(f"ds_read_b64_tr_b16 v[{r}:{r+1}], v{areg} offset:{off}"),
                Ins(f"ds_read_b64_tr_b16 v[{r+2}:{r+3}], v{areg} offset:{off+5120}")]
    def bload_fn(ks):
        b = BR + (ks % BS)*8
        return ([Ins(f"s_mov_b32 s28, {ks*1024}")],
                [Ins(f"buffer_load_dwordx4 v[{b+4*ct}:{b+4*ct+3}], v{15+ct}, s[12:15], s28 offen") for ct in range(2)])
    def dma_fn(st):
        return ([Ins(f"s_add_u32 m0, s26, {(st % NS)*ST}"), Ins(f"s_add_u32 s29, s27, {st*81920}")],
                [Ins(f"buffer_load_dwordx4 v{2+i}, s[8:11], s29 offen offset:{i*1024} lds") if i < 4 else None for i in range(5)])
    def dma_fn2(st):
        L = [Ins(f"s_add_u32 m0, s26, {(st % NS)*ST}"), Ins(f"s_add_u32 s29, s27, {st*81920}")]
        D = [Ins(f"buffer_load_dwordx4 v{2+i}, s[8:11], s29 offen offset:{i*1024} lds") for i in range(4)]
        D.append(Ins(f"s_add_u32 m0, s26, {(st % NS)*ST + 4096}"))
        D.append(Ins(f"buffer_load_dwordx4 v6, s[8:11], s29 offen lds"))
        return L, D
    H = {}
    e("v_add_u32 v6, 4096, v6")
    if stamps: e("s_memtime s[42:43]")
    BPF = 5; DPF = 5
    for st in range(DPF):
        L, D = dma_fn2(st); P.many(L); P.many(D); H[st] = D[-1]
        L, D = bload_fn(st); P.many(L); P.many(D); H.setdefault('b', {})[st] = D[-1]
    P.wait_vm(H[0]); e("s_barrier")
    PF = 6
    for n in range(PF):
        rr = tr_fn(n); P.many(rr); H.setdefault('tr', {})[n] = rr[-1]
    if stamps: e("s_memtime s[44:45]"); e("s_waitcnt lgkmcnt(0)")
    gemm_stream(P, 48, 10, 2, 2, acc_reg, AR, ASL, BR, BS, tr_fn, bload_fn, dma_fn2, H, PF, BPF, DPF, 24)
    if stamps: e("s_memtime s[46:47]")
    for u in range(5):
        e(f"s_mov_b32 s28, {u*1024}")
        for ct in range(2):
            a = acc_reg(2*u, ct); b = acc_reg(2*u+1, ct); d = 20 + (u*2+ct)*4
            e(f"v_cvt_pk_bf16_f32 v{d}, v{a}, v{a+1}"); e(f"v_cvt_pk_bf16_f32 v{d+1}, v{a+2}, v{a+3}")
            e(f"v_cvt_pk_bf16_f32 v{d+2}, v{b}, v{b+1}"); e(f"v_cvt_pk_bf16_f32 v{d+3}, v{b+2}, v{b+3}")
            e(f"buffer_store_dwordx4 v[{d}:{d+3}], v{17+ct}, s[12:15], s28 offen sc1")
    if stamps:
        e("s_waitcnt vmcnt(0)"); e("s_memtime s[48:49]")
        write_stamps(P, 5, 23, 12)
    e("K3_END:")
    e("s_endpgm")
    P.finalize(auto_wait=auto)
    return P

WS_GB = WS_MOD + 0x10000 + 5*4096

def gen_k5(stamps=False):
    P = Prog(); e = P.e
    NS = 5; ST = 12288
    e("s_cmp_ge_u32 s2, 256"); e("s_cbranch_scc1 K5_END")
    e("s_load_dwordx4 s[4:7], s[0:1], 48")
    e("s_load_dwordx2 s[16:17], s[0:1], 104")
    if stamps: e("s_memtime s[40:41]")
    e("s_and_b32 s20, s2, 7"); e("s_lshl_b32 s20, s20, 1"); e("s_lshr_b32 s3, s2, 3"); e("s_and_b32 s21, s3, 1"); e("s_add_u32 s20, s20, s21")
    e("s_lshr_b32 s21, s2, 4")
    e("v_lshrrev_b32 v1, 6, v0"); e("v_and_b32 v0, 63, v0")
    e("v_readfirstlane_b32 s23, v1")
    e("v_lshrrev_b32 v10, 2, v0")
    e("s_lshr_b32 s3, s23, 1"); e("s_lshl_b32 s3, s3, 4"); e("v_add_u32 v10, s3, v10")
    e("v_lshrrev_b32 v11, 2, v10"); e("v_and_b32 v11, 1, v11"); e("v_lshlrev_b32 v11, 1, v11")
    e("v_and_b32 v12, 3, v0"); e("v_xor_b32 v11, v11, v12"); e("v_lshlrev_b32 v11, 4, v11")
    e("v_mul_u32_u24 v10, 3072, v10"); e("v_add_u32 v10, v10, v11")
    e(f"v_add_u32 v2, {BIAS}, v10"); e(f"v_add_u32 v3, {BIAS + 64 - 1024}, v10"); e(f"v_add_u32 v4, {BIAS + 128 - 2048}, v10")
    e("v_lshrrev_b32 v10, 4, v0")
    e("v_lshrrev_b32 v11, 2, v0")
    e("v_lshlrev_b32 v11, 6, v11")
    e("v_and_b32 v12, 3, v0"); e("v_lshlrev_b32 v12, 3, v12"); e("v_add_u32 v11, v11, v12")
    e("v_and_b32 v12, 1, v10"); e("v_lshlrev_b32 v12, 5, v12")
    e("v_add_u32 v7, v11, v12"); e("v_xor_b32 v12, 32, v12"); e("v_add_u32 v8, v11, v12")
    e("s_lshl_b32 s3, s21, 3"); e("s_lshl_b32 s24, s23, 1"); e("s_add_u32 s24, s24, s3")
    e("s_mul_i32 s3, s24, 20480"); e(f"s_add_u32 s3, s3, {WS_H2F}")
    e("v_lshlrev_b32 v10, 4, v0"); e("v_add_u32 v15, s3, v10"); e("v_add_u32 v16, 20480, v15")
    e("s_mul_i32 s3, s24, 49152"); e("s_mul_i32 s25, s20, 3072"); e("s_add_u32 s3, s3, s25"); e(f"s_add_u32 s3, s3, {WS_ACT}")
    e("v_add_u32 v17, s3, v10"); e("v_add_u32 v18, 49152, v17")
    e("s_mul_i32 s26, s23, 3072")
    e("s_waitcnt lgkmcnt(0)")
    e("s_and_b32 s3, s23, 1"); e("s_cmp_eq_u32 s3, 0")
    e("s_cselect_b32 s8, s4, s6"); e("s_cselect_b32 s9, s5, s7")
    e("s_mul_i32 s3, s20, 192")
    e("s_add_u32 s8, s8, s3"); e("s_addc_u32 s9, s9, 0"); e(f"s_sub_u32 s8, s8, {BIAS}"); e("s_subb_u32 s9, s9, 0")
    e(f"s_sub_u32 s10, {640*3072+BIAS}, s3"); e("s_mov_b32 s11, 0x20000")
    srd(P, 12, 16, 17, WS_BYTES)
    ACC = 160
    AR = 20; ASL = 12
    BR = 68; BS = 6
    def acc_reg(t, ct): return ACC + (t*2 + ct)*4
    def tr_fn(n):
        ks, t = divmod(n, 12)
        p = 3*(t // 6) + ((t % 6) >> 1)
        off = (ks % NS)*ST + p*1024
        r = AR + (n % ASL)*4
        return [Ins(f"ds_read_b64_tr_b16 v[{r}:{r+1}], v{7 + (t & 1)} offset:{off}"),
                Ins(f"ds_read_b64_tr_b16 v[{r+2}:{r+3}], v{7 + (t & 1)} offset:{off+6144}")]
    def bload_fn(ks):
        b = BR + (ks % BS)*8
        return ([Ins(f"s_mov_b32 s28, {ks*1024}")],
                [Ins(f"buffer_load_dwordx4 v[{b+4*ct}:{b+4*ct+3}], v{15+ct}, s[12:15], s28 offen") for ct in range(2)])
    def dma_fn(st):
        return ([Ins(f"s_add_u32 m0, s26, {(st % NS)*ST}"), Ins(f"s_mov_b32 s29, {st*32*3072}")],
                [Ins(f"buffer_load_dwordx4 v{2+i}, s[8:11], s29 offen offset:{i*1024} lds") for i in range(3)])
    H = {}
    if stamps: e("s_memtime s[42:43]")
    BPF = 4; DPF = 4
    for st in range(DPF):
        L, D = dma_fn(st); P.many(L); P.many(D); H[st] = D[-1]
        L, D = bload_fn(st); P.many(L); P.many(D); H.setdefault('b', {})[st] = D[-1]
    P.wait_vm(H[0]); e("s_barrier")
    PF = 6
    for n in range(PF):
        rr = tr_fn(n); P.many(rr); H.setdefault('tr', {})[n] = rr[-1]
    if stamps: e("s_memtime s[44:45]"); e("s_waitcnt lgkmcnt(0)")
    gemm_stream(P, 20, 12, 2, 1, acc_reg, AR, ASL, BR, BS, tr_fn, bload_fn, dma_fn, H, PF, BPF, DPF, 20)
    if stamps: e("s_memtime s[46:47]")
    for u in range(3):
        e(f"s_mov_b32 s28, {u*1024}")
        for ct in range(2):
            dst = 20 + (u*2 + ct)*4
            for hh in range(2):
                j = 2*u + hh
                g = acc_reg(j, ct); up = acc_reg(6+j, ct)
                for i in range(4): e(f"v_max_f32 v{g+i}, 0, v{g+i}")
                for i in range(4): e(f"v_mul_f32 v{g+i}, v{g+i}, v{up+i}")
                e(f"v_cvt_pk_bf16_f32 v{dst+2*hh}, v{g}, v{g+1}")
                e(f"v_cvt_pk_bf16_f32 v{dst+2*hh+1}, v{g+2}, v{g+3}")
            e(f"buffer_store_dwordx4 v[{dst}:{dst+3}], v{17+ct}, s[12:15], s28 offen sc1")
    if stamps:
        e("s_waitcnt vmcnt(0)"); e("s_memtime s[48:49]")
        write_stamps(P, 5, 23, 12)
    e("K5_END:")
    e("s_endpgm")
    P.finalize()
    return P

def gen_k6(stamps=False):
    P = Prog(); e = P.e
    NS = 6; ST = 5120
    e("s_cmp_ge_u32 s2, 256"); e("s_cbranch_scc1 K6_END")
    e("s_load_dwordx2 s[4:5], s[0:1], 64")
    e("s_load_dwordx2 s[6:7], s[0:1], 88")
    e("s_load_dwordx2 s[16:17], s[0:1], 104")
    if stamps: e("s_memtime s[40:41]")
    e("s_and_b32 s20, s2, 7"); e("s_lshl_b32 s20, s20, 2"); e("s_lshr_b32 s3, s2, 6"); e("s_add_u32 s20, s20, s3")
    e("s_lshr_b32 s21, s2, 3"); e("s_and_b32 s21, s21, 7")
    e("v_lshrrev_b32 v1, 6, v0"); e("v_and_b32 v0, 63, v0")
    e("v_readfirstlane_b32 s23, v1")
    for i in range(5):
        e(f"v_add_u32 v10, {i*64}, v0")
        e("v_mul_u32_u24 v11, 6554, v10"); e("v_lshrrev_b32 v11, 16, v11")
        e("v_mul_u32_u24 v12, 10, v11"); e("v_sub_u32 v12, v10, v12")
        e("v_lshlrev_b32 v12, 4, v12"); e("v_mul_u32_u24 v11, 1280, v11"); e("v_add_u32 v11, v11, v12")
        e(f"v_add_u32 v{2+i}, {BIAS - (i*1024 if i < 4 else 0)}, v11")
    e("v_lshrrev_b32 v11, 2, v0"); e("v_mul_u32_u24 v11, 160, v11")
    e("v_and_b32 v12, 3, v0"); e("v_lshlrev_b32 v12, 3, v12"); e("v_add_u32 v7, v11, v12")
    e(f"s_mul_i32 s26, s23, {NS*ST}"); e("v_add_u32 v7, s26, v7")
    e("s_lshl_b32 s24, s20, 2")
    e("s_mul_i32 s3, s24, 49152"); e("s_mul_i32 s25, s23, 12288"); e("s_add_u32 s3, s3, s25"); e(f"s_add_u32 s3, s3, {WS_ACT}")
    e("v_lshlrev_b32 v10, 4, v0"); e("v_add_u32 v15, s3, v10")
    for ct in range(1, 4): e(f"v_add_u32 v{15+ct}, {ct*49152}, v15")
    e("s_mul_i32 s27, s23, 491520")
    e("s_add_u32 s3, s24, s23"); e("s_mul_i32 s30, s3, 20480"); e(f"s_add_u32 s30, s30, {WS_X1}")
    e("v_add_u32 v8, s30, v10")
    e("v_lshrrev_b32 v11, 4, v0"); e("v_lshlrev_b32 v11, 4, v11"); e("s_mul_i32 s3, s21, 320"); e(f"s_add_u32 s3, s3, {WS_GB}"); e("v_add_u32 v9, s3, v11")
    e("v_and_b32 v12, 15, v0"); e("s_lshl_b32 s3, s20, 6"); e("s_lshl_b32 s25, s23, 4"); e("s_add_u32 s3, s3, s25"); e("v_add_u32 v12, s3, v12")
    e("v_mul_u32_u24 v12, 1280, v12"); e("v_lshrrev_b32 v11, 4, v0"); e("v_lshlrev_b32 v11, 3, v11"); e("v_add_u32 v12, v12, v11")
    e("s_mul_i32 s3, s21, 160"); e("v_add_u32 v14, s3, v12")
    e("s_waitcnt lgkmcnt(0)")
    e("s_mul_i32 s3, s21, 160")
    e("s_add_u32 s8, s4, s3"); e("s_addc_u32 s9, s5, 0"); e(f"s_sub_u32 s8, s8, {BIAS}"); e("s_subb_u32 s9, s9, 0")
    e(f"s_sub_u32 s10, {1536*1280+BIAS}, s3"); e("s_mov_b32 s11, 0x20000")
    srd(P, 12, 16, 17, WS_BYTES); srd(P, 32, 6, 7, 2048*1280)
    ACC = 176
    AR = 20; ASL = 8
    BR = 52; BS = 4
    XR = 116
    def acc_reg(t, ct): return ACC + (t*4 + ct)*4
    def tr_fn(n):
        ks, t = divmod(n, 5)
        off = (ks % NS)*ST + t*32
        r = AR + (n % ASL)*4
        return [Ins(f"ds_read_b64_tr_b16 v[{r}:{r+1}], v7 offset:{off}"),
                Ins(f"ds_read_b64_tr_b16 v[{r+2}:{r+3}], v7 offset:{off+2560}")]
    def bload_fn(ks):
        b = BR + (ks % BS)*16
        return ([Ins(f"s_mov_b32 s28, {ks*1024}")],
                [Ins(f"buffer_load_dwordx4 v[{b+4*ct}:{b+4*ct+3}], v{15+ct}, s[12:15], s28 offen") for ct in range(4)])
    def dma_fn(st):
        L = [Ins(f"s_add_u32 m0, s26, {(st % NS)*ST}"), Ins(f"s_add_u32 s29, s27, {st*32*1280}")]
        D = [Ins(f"buffer_load_dwordx4 v{2+i}, s[8:11], s29 offen offset:{i*1024} lds") for i in range(4)]
        D.append(Ins(f"s_add_u32 m0, s26, {(st % NS)*ST + 4096}"))
        D.append(Ins(f"buffer_load_dwordx4 v6, s[8:11], s29 offen lds"))
        return L, D
    H = {}
    if stamps: e("s_memtime s[42:43]")
    NK = 12; DPF = 4; BPF = 3
    bh = {}
    for st in range(DPF):
        L, D = dma_fn(st); P.many(L); P.many(D); H[st] = D[-1]
        if st < BPF:
            L, D = bload_fn(st); P.many(L); P.many(D); bh[st] = D[-1]
    for t in range(5):
        e(f"s_mul_i32 s3, s21, 5"); e(f"s_add_u32 s3, s3, {t}"); e("s_lshr_b32 s31, s3, 1"); e("s_lshl_b32 s31, s31, 10")
        e("s_and_b32 s3, s3, 1"); e("s_lshl_b32 s3, s3, 3"); e("s_add_u32 s31, s31, s3")
        e(f"buffer_load_dwordx2 v[{XR+2*t}:{XR+2*t+1}], v8, s[12:15], s31 offen")
        e(f"buffer_load_dwordx4 v[{128+4*t}:{131+4*t}], v9, s[12:15], 0 offen offset:{t*64}")
    GOPT_b = GOPT['barrier']; GOPT['barrier'] = False
    H['b'] = bh
    P.wait_vm(H[0])
    PF = 4
    for n in range(PF):
        rr = tr_fn(n); P.many(rr); H.setdefault('tr', {})[n] = rr[-1]
    if stamps: e("s_memtime s[44:45]"); e("s_waitcnt lgkmcnt(0)")
    global GAP
    g0 = GAP; GAP = 2
    gemm_stream(P, NK, 5, 4, 1, acc_reg, AR, ASL, BR, BS, tr_fn, bload_fn, dma_fn, H, PF, BPF, DPF, NK, WG=1)
    GAP = g0; GOPT['barrier'] = GOPT_b
    if stamps: e("s_memtime s[46:47]")
    e("s_barrier")
    e("v_lshlrev_b32 v10, 4, v0")
    e("s_mul_i32 s3, s23, 20480"); e("v_add_u32 v11, s3, v10")
    for ct in range(4):
        for t in range(5):
            a = acc_reg(t, ct)
            e(f"ds_write_b128 v11, v[{a}:{a+3}] offset:{(ct*5+t)*1024}")
    e("s_waitcnt lgkmcnt(0)"); e("s_barrier")
    e("s_mul_i32 s3, s23, 5120"); e("v_add_u32 v11, s3, v10")
    e("v_add_u32 v13, 40960, v11")
    for sw in range(4):
        for t in range(5):
            r = 20 + (sw*5 + t)*4
            e(f"ds_read_b128 v[{r}:{r+3}], v{11 if sw < 2 else 13} offset:{(sw & 1)*20480 + t*1024}")
    for t in range(5):
        y = 20 + t*4
        for sw in range(1, 4):
            for i in range(4): e(f"v_add_f32 v{y+i}, v{y+i}, v{20+(sw*5+t)*4+i}")
        x = XR + 2*t
        e(f"v_lshlrev_b32 v148, 16, v{x}"); e(f"v_and_b32 v149, 0xffff0000, v{x}")
        e(f"v_lshlrev_b32 v150, 16, v{x+1}"); e(f"v_and_b32 v151, 0xffff0000, v{x+1}")
        for i in range(4): e(f"v_fma_f32 v{y+i}, v{y+i}, v{128+4*t+i}, v{148+i}")
        e(f"v_cvt_pk_bf16_f32 v{y}, v{y}, v{y+1}"); e(f"v_cvt_pk_bf16_f32 v{y+1}, v{y+2}, v{y+3}")
        e(f"buffer_store_dwordx2 v[{y}:{y+1}], v14, s[32:35], 0 offen offset:{t*32}")
    if stamps:
        e("s_waitcnt vmcnt(0)"); e("s_memtime s[48:49]")
        write_stamps(P, 5, 23, 12)
    e("K6_END:")
    e("s_endpgm")
    P.finalize()
    return P

def gen_k3b(stamps=False, auto=True):
    P = Prog(); e = P.e
    NS = 5; ST = 24576
    e("s_cmp_ge_u32 s2, 256"); e("s_cbranch_scc1 K3_END")
    e("s_load_dwordx2 s[4:5], s[0:1], 32")
    e("s_load_dwordx2 s[6:7], s[0:1], 104")
    if stamps: e("s_memtime s[40:41]")
    e("s_and_b32 s20, s2, 3")
    e("s_lshr_b32 s3, s2, 2"); e("s_and_b32 s3, s3, 1"); e("s_lshl_b32 s3, s3, 3")
    e("s_lshr_b32 s21, s2, 5"); e("s_add_u32 s21, s21, s3")
    e("s_lshr_b32 s22, s2, 3"); e("s_and_b32 s22, s22, 3")
    e("v_lshrrev_b32 v1, 6, v0"); e("v_and_b32 v0, 63, v0")
    e("v_readfirstlane_b32 s23, v1")
    e("s_and_b32 s30, s23, 3"); e("s_lshr_b32 s31, s23, 2")
    for i in range(3):
        e(f"v_add_u32 v10, {i*64}, v0")
        e("v_mul_u32_u24 v11, 3277, v10"); e("v_lshrrev_b32 v11, 16, v11")
        e("v_mul_u32_u24 v12, 20, v11"); e("v_sub_u32 v12, v10, v12")
        e("v_lshrrev_b32 v13, 2, v11"); e("v_and_b32 v13, 1, v13"); e("v_lshlrev_b32 v13, 1, v13")
        e("v_xor_b32 v12, v12, v13")
        e("v_lshlrev_b32 v12, 4, v12")
        e("v_mul_u32_u24 v11, 1280, v11")
        e("v_add_u32 v11, v11, v12")
        e(f"v_add_u32 v{2+i}, {BIAS - i*1024}, v11")
    e("s_mul_i32 s3, s23, 10240")
    for i in range(3): e(f"v_add_u32 v{2+i}, s3, v{2+i}")
    e("v_cmp_lt_u32 vcc, 31, v0"); e("v_mov_b32 v10, 0x7ff00000")
    e("s_nop 1")
    e("v_cndmask_b32 v4, v4, v10, vcc")
    e("v_lshrrev_b32 v10, 4, v0")
    e("v_lshrrev_b32 v11, 2, v0"); e("v_and_b32 v11, 7, v11")
    e("v_mul_u32_u24 v11, 320, v11")
    e("v_lshrrev_b32 v12, 1, v10"); e("v_mul_u32_u24 v12, 3072, v12"); e("v_add_u32 v11, v11, v12")
    e("v_and_b32 v12, 3, v0"); e("v_lshlrev_b32 v12, 3, v12"); e("v_add_u32 v11, v11, v12")
    e("s_mul_i32 s3, s31, 12288"); e("v_add_u32 v11, s3, v11")
    e("v_and_b32 v12, 1, v10"); e("v_lshlrev_b32 v12, 5, v12")
    e("v_add_u32 v7, v11, v12")
    e("v_xor_b32 v12, 32, v12"); e("v_add_u32 v8, v11, v12")
    e(f"v_add_u32 v9, {2*ST}, v7"); e(f"v_add_u32 v14, {2*ST}, v8")
    e(f"v_add_u32 v5, {4*ST}, v7"); e(f"v_add_u32 v6, {4*ST}, v8")
    e("s_lshl_b32 s3, s21, 3"); e("s_lshl_b32 s24, s30, 1"); e("s_add_u32 s24, s24, s3")
    e("s_mul_i32 s3, s24, 196608"); e("s_mul_i32 s25, s20, 49152"); e("s_add_u32 s3, s3, s25")
    e("s_lshl_b32 s25, s31, 10"); e("s_add_u32 s3, s3, s25"); e(f"s_add_u32 s3, s3, {WS_OF}")
    e("v_lshlrev_b32 v10, 4, v0"); e("v_add_u32 v15, s3, v10"); e("v_add_u32 v16, 196608, v15")
    e("s_lshl_b32 s3, s20, 7"); e("s_add_u32 s3, s3, s24"); e("s_add_u32 s3, s3, s31"); e("s_mul_i32 s3, s3, 20480")
    e("s_mul_i32 s25, s22, 5120"); e("s_add_u32 s3, s3, s25"); e(f"s_add_u32 s3, s3, {WS_PART}")
    e("v_add_u32 v17, s3, v10")
    e("s_mul_i32 s26, s23, 3072")
    e("s_mul_i32 s27, s20, 1966080")
    e("s_waitcnt lgkmcnt(0)")
    e("s_mul_i32 s3, s22, 320")
    e("s_add_u32 s8, s4, s3"); e("s_addc_u32 s9, s5, 0"); e(f"s_sub_u32 s8, s8, {BIAS}"); e("s_subb_u32 s9, s9, 0")
    e(f"s_sub_u32 s10, {7864320+BIAS}, s3"); e("s_mov_b32 s11, 0x20000")
    srd(P, 12, 6, 7, WS_BYTES)
    ACC = 176; AR = 20; ASL = 12; BR = 68; BS = 5
    def acc_reg(t, ct): return ACC + (t*2 + ct)*4
    def tr_fn(n):
        st, t = divmod(n, 10)
        slot = st % NS
        sett, so = divmod(slot, 2)
        areg = [[7, 8], [9, 14], [5, 6]][sett][t & 1]
        off = so*ST + (t >> 1)*64
        r = AR + (n % ASL)*4
        return [Ins(f"ds_read_b64_tr_b16 v[{r}:{r+1}], v{areg} offset:{off}"),
                Ins(f"ds_read_b64_tr_b16 v[{r+2}:{r+3}], v{areg} offset:{off+6144}")]
    def bload_fn(ks):
        b = BR + (ks % BS)*8
        return ([Ins(f"s_mov_b32 s28, {ks*2048}")],
                [Ins(f"buffer_load_dwordx4 v[{b+4*ct}:{b+4*ct+3}], v{15+ct}, s[12:15], s28 offen") for ct in range(2)])
    def dma_fn(st):
        return ([Ins(f"s_add_u32 m0, s26, {(st % NS)*ST}"), Ins(f"s_add_u32 s29, s27, {st*81920}")],
                [Ins(f"buffer_load_dwordx4 v{2+i}, s[8:11], s29 offen offset:{i*1024} lds") for i in range(3)])
    H = {}
    if stamps: e("s_memtime s[42:43]")
    BPF = 4; DPF = 4
    for st in range(2):
        L, D = dma_fn(st); P.many(L); P.many(D); H[st] = D[-1]
        L, D = bload_fn(st); P.many(L); P.many(D); H.setdefault('b', {})[st] = D[-1]
    P.wait_vm(H[0]); e("s_barrier")
    PF = 6
    for n in range(PF):
        rr = tr_fn(n); P.many(rr); H.setdefault('tr', {})[n] = rr[-1]
    if stamps: e("s_memtime s[44:45]"); e("s_waitcnt lgkmcnt(0)")
    gemm_stream(P, 24, 10, 2, 1, acc_reg, AR, ASL, BR, BS, tr_fn, bload_fn, dma_fn, H, PF, BPF, DPF, 24)
    if stamps: e("s_memtime s[46:47]")
    e("s_barrier")
    e("v_lshlrev_b32 v10, 4, v0")
    e("s_mul_i32 s3, s23, 10240"); e("v_add_u32 v11, s3, v10")
    e("s_xor_b32 s3, s23, 4"); e("s_mul_i32 s3, s3, 10240"); e("v_add_u32 v12, s3, v10")
    e("s_cmp_eq_u32 s31, 0"); e("s_cbranch_scc0 K3_KG1")
    for kg in range(2):
        if kg == 1: e("K3_KG1:")
        for t in range(10):
            a = acc_reg(t, 1-kg)
            e(f"ds_write_b128 v11, v[{a}:{a+3}] offset:{t*1024}")
        e("s_waitcnt lgkmcnt(0)"); e("s_barrier")
        for t in range(10):
            e(f"ds_read_b128 v[{20+4*t}:{23+4*t}], v12 offset:{t*1024}")
        for u in range(5):
            for hh in range(2):
                t = 2*u + hh; a = acc_reg(t, kg)
                for i in range(4): e(f"v_add_f32 v{a+i}, v{a+i}, v{20+4*t+i}")
                e(f"v_cvt_pk_bf16_f32 v{64+4*u+2*hh}, v{a}, v{a+1}")
                e(f"v_cvt_pk_bf16_f32 v{64+4*u+2*hh+1}, v{a+2}, v{a+3}")
            e(f"s_mov_b32 s28, {u*1024}")
            e(f"buffer_store_dwordx4 v[{64+4*u}:{67+4*u}], v17, s[12:15], s28 offen sc1")
        if kg == 0: e("s_branch K3_FIN")
    e("K3_FIN:")
    if stamps:
        e("s_waitcnt vmcnt(0)"); e("s_memtime s[48:49]")
        write_stamps(P, 5, 23, 12, 3)
    e("K3_END:")
    e("s_endpgm")
    P.finalize(auto_wait=auto)
    return P

def gen_k5b(stamps=False):
    P = Prog(); e = P.e
    NS = 5; ST = 24576
    e("s_cmp_ge_u32 s2, 256"); e("s_cbranch_scc1 K5_END")
    e("s_load_dwordx4 s[4:7], s[0:1], 48")
    e("s_load_dwordx2 s[16:17], s[0:1], 104")
    if stamps: e("s_memtime s[40:41]")
    e("s_and_b32 s20, s2, 7"); e("s_lshl_b32 s20, s20, 1"); e("s_lshr_b32 s3, s2, 3"); e("s_and_b32 s21, s3, 1"); e("s_add_u32 s20, s20, s21")
    e("s_lshr_b32 s21, s2, 4")
    e("v_lshrrev_b32 v1, 6, v0"); e("v_and_b32 v0, 63, v0")
    e("v_readfirstlane_b32 s23, v1")
    e("s_and_b32 s30, s23, 3"); e("s_lshr_b32 s31, s23, 2")
    e("v_lshrrev_b32 v10, 2, v0")
    e("s_lshr_b32 s3, s23, 1"); e("s_lshl_b32 s3, s3, 4"); e("v_add_u32 v10, s3, v10")
    e("v_lshrrev_b32 v11, 2, v10"); e("v_and_b32 v11, 1, v11"); e("v_lshlrev_b32 v11, 1, v11")
    e("v_and_b32 v12, 3, v0"); e("v_xor_b32 v11, v11, v12"); e("v_lshlrev_b32 v11, 4, v11")
    e("v_mul_u32_u24 v10, 3072, v10"); e("v_add_u32 v10, v10, v11")
    e(f"v_add_u32 v2, {BIAS}, v10"); e(f"v_add_u32 v3, {BIAS + 64 - 1024}, v10"); e(f"v_add_u32 v4, {BIAS + 128 - 2048}, v10")
    e("v_lshrrev_b32 v10, 4, v0")
    e("v_lshrrev_b32 v11, 2, v0"); e("v_lshlrev_b32 v11, 6, v11")
    e("v_and_b32 v12, 3, v0"); e("v_lshlrev_b32 v12, 3, v12"); e("v_add_u32 v11, v11, v12")
    e("s_mul_i32 s3, s31, 12288"); e("v_add_u32 v11, s3, v11")
    e("v_and_b32 v12, 1, v10"); e("v_lshlrev_b32 v12, 5, v12")
    e("v_add_u32 v7, v11, v12"); e("v_xor_b32 v12, 32, v12"); e("v_add_u32 v8, v11, v12")
    e(f"v_add_u32 v9, {2*ST}, v7"); e(f"v_add_u32 v14, {2*ST}, v8")
    e(f"v_add_u32 v5, {4*ST}, v7"); e(f"v_add_u32 v6, {4*ST}, v8")
    e("s_lshl_b32 s3, s21, 3"); e("s_lshl_b32 s24, s30, 1"); e("s_add_u32 s24, s24, s3")
    e("s_mul_i32 s3, s24, 20480"); e("s_lshl_b32 s25, s31, 10"); e("s_add_u32 s3, s3, s25"); e(f"s_add_u32 s3, s3, {WS_H2F}")
    e("v_lshlrev_b32 v10, 4, v0"); e("v_add_u32 v15, s3, v10"); e("v_add_u32 v16, 20480, v15")
    e("s_add_u32 s3, s24, s31"); e("s_mul_i32 s3, s3, 49152"); e("s_mul_i32 s25, s20, 3072"); e("s_add_u32 s3, s3, s25"); e(f"s_add_u32 s3, s3, {WS_ACT}")
    e("v_add_u32 v17, s3, v10")
    e("s_mul_i32 s26, s23, 3072")
    e("s_waitcnt lgkmcnt(0)")
    e("s_and_b32 s3, s23, 1"); e("s_cmp_eq_u32 s3, 0")
    e("s_cselect_b32 s8, s4, s6"); e("s_cselect_b32 s9, s5, s7")
    e("s_mul_i32 s3, s20, 192")
    e("s_add_u32 s8, s8, s3"); e("s_addc_u32 s9, s9, 0"); e(f"s_sub_u32 s8, s8, {BIAS}"); e("s_subb_u32 s9, s9, 0")
    e(f"s_sub_u32 s10, {640*3072+BIAS}, s3"); e("s_mov_b32 s11, 0x20000")
    srd(P, 12, 16, 17, WS_BYTES)
    ACC = 160; AR = 20; ASL = 12; BR = 68; BS = 5
    def acc_reg(t, ct): return ACC + (t*2 + ct)*4
    def tr_fn(n):
        st, t = divmod(n, 12)
        p = 3*(t // 6) + ((t % 6) >> 1)
        sett, so = divmod(st % NS, 2)
        areg = [[7, 8], [9, 14], [5, 6]][sett][t & 1]
        off = so*ST + p*1024
        r = AR + (n % ASL)*4
        return [Ins(f"ds_read_b64_tr_b16 v[{r}:{r+1}], v{areg} offset:{off}"),
                Ins(f"ds_read_b64_tr_b16 v[{r+2}:{r+3}], v{areg} offset:{off+6144}")]
    def bload_fn(ks):
        b = BR + (ks % BS)*8
        return ([Ins(f"s_mov_b32 s28, {ks*2048}")],
                [Ins(f"buffer_load_dwordx4 v[{b+4*ct}:{b+4*ct+3}], v{15+ct}, s[12:15], s28 offen") for ct in range(2)])
    def dma_fn(st):
        return ([Ins(f"s_add_u32 m0, s26, {(st % NS)*ST}"), Ins(f"s_mov_b32 s29, {st*64*3072}")],
                [Ins(f"buffer_load_dwordx4 v{2+i}, s[8:11], s29 offen offset:{i*1024} lds") for i in range(3)])
    H = {}
    if stamps: e("s_memtime s[42:43]")
    BPF = 4; DPF = 4
    for st in range(DPF):
        L, D = dma_fn(st); P.many(L); P.many(D); H[st] = D[-1]
        L, D = bload_fn(st); P.many(L); P.many(D); H.setdefault('b', {})[st] = D[-1]
    P.wait_vm(H[0]); e("s_barrier")
    PF = 6
    for n in range(PF):
        rr = tr_fn(n); P.many(rr); H.setdefault('tr', {})[n] = rr[-1]
    if stamps: e("s_memtime s[44:45]"); e("s_waitcnt lgkmcnt(0)")
    gemm_stream(P, 10, 12, 2, 1, acc_reg, AR, ASL, BR, BS, tr_fn, bload_fn, dma_fn, H, PF, BPF, DPF, 10)
    if stamps: e("s_memtime s[46:47]")
    e("s_barrier")
    e("v_lshlrev_b32 v10, 4, v0")
    e("s_mul_i32 s3, s23, 12288"); e("v_add_u32 v11, s3, v10")
    e("s_xor_b32 s3, s23, 4"); e("s_mul_i32 s3, s3, 12288"); e("v_add_u32 v12, s3, v10")
    e("s_cmp_eq_u32 s31, 0"); e("s_cbranch_scc0 K5_KG1")
    for kg in range(2):
        if kg == 1: e("K5_KG1:")
        for t in range(12):
            a = acc_reg(t, 1-kg)
            e(f"ds_write_b128 v11, v[{a}:{a+3}] offset:{t*1024}")
        e("s_waitcnt lgkmcnt(0)"); e("s_barrier")
        for t in range(12):
            e(f"ds_read_b128 v[{20+4*t}:{23+4*t}], v12 offset:{t*1024}")
        for t in range(12):
            a = acc_reg(t, kg)
            for i in range(4): e(f"v_add_f32 v{a+i}, v{a+i}, v{20+4*t+i}")
        for u in range(3):
            dst = 80 + u*4
            for hh in range(2):
                j = 2*u + hh
                g = acc_reg(j, kg); up = acc_reg(6+j, kg)
                for i in range(4): e(f"v_max_f32 v{g+i}, 0, v{g+i}")
                for i in range(4): e(f"v_mul_f32 v{g+i}, v{g+i}, v{up+i}")
                e(f"v_cvt_pk_bf16_f32 v{dst+2*hh}, v{g}, v{g+1}")
                e(f"v_cvt_pk_bf16_f32 v{dst+2*hh+1}, v{g+2}, v{g+3}")
            e(f"s_mov_b32 s28, {u*1024}")
            e(f"buffer_store_dwordx4 v[{dst}:{dst+3}], v17, s[12:15], s28 offen sc1")
        if kg == 0: e("s_branch K5_FIN")
    e("K5_FIN:")
    if stamps:
        e("s_waitcnt vmcnt(0)"); e("s_memtime s[48:49]")
        write_stamps(P, 5, 23, 12, 3)
    e("K5_END:")
    e("s_endpgm")
    P.finalize()
    return P

def gen_k6b(stamps=False):
    P = Prog(); e = P.e
    NS = 3; ST = 5120
    e("s_cmp_ge_u32 s2, 256"); e("s_cbranch_scc1 K6_END")
    e("s_load_dwordx2 s[4:5], s[0:1], 64")
    e("s_load_dwordx2 s[6:7], s[0:1], 88")
    e("s_load_dwordx2 s[16:17], s[0:1], 104")
    if stamps: e("s_memtime s[40:41]")
    e("s_and_b32 s20, s2, 7"); e("s_lshl_b32 s20, s20, 2"); e("s_lshr_b32 s3, s2, 6"); e("s_add_u32 s20, s20, s3")
    e("s_lshr_b32 s21, s2, 3"); e("s_and_b32 s21, s21, 7")
    e("v_lshrrev_b32 v1, 6, v0"); e("v_and_b32 v0, 63, v0")
    e("v_readfirstlane_b32 s23, v1")
    for i in range(5):
        e(f"v_add_u32 v10, {i*64}, v0")
        e("v_mul_u32_u24 v11, 6554, v10"); e("v_lshrrev_b32 v11, 16, v11")
        e("v_mul_u32_u24 v12, 10, v11"); e("v_sub_u32 v12, v10, v12")
        e("v_lshlrev_b32 v12, 4, v12"); e("v_mul_u32_u24 v11, 1280, v11"); e("v_add_u32 v11, v11, v12")
        e(f"v_add_u32 v{2+i}, {BIAS - (i*1024 if i < 4 else 0)}, v11")
    e("v_lshrrev_b32 v11, 2, v0"); e("v_mul_u32_u24 v11, 160, v11")
    e("v_and_b32 v12, 3, v0"); e("v_lshlrev_b32 v12, 3, v12"); e("v_add_u32 v7, v11, v12")
    e(f"s_mul_i32 s26, s23, {NS*ST}"); e("v_add_u32 v7, s26, v7")
    e("s_lshl_b32 s24, s20, 2")
    e("s_mul_i32 s3, s24, 49152"); e("s_mul_i32 s25, s23, 6144"); e("s_add_u32 s3, s3, s25"); e(f"s_add_u32 s3, s3, {WS_ACT}")
    e("v_lshlrev_b32 v10, 4, v0"); e("v_add_u32 v15, s3, v10")
    for ct in range(1, 4): e(f"v_add_u32 v{15+ct}, {ct*49152}, v15")
    e("s_mul_i32 s27, s23, 245760")
    e("s_lshr_b32 s36, s23, 1"); e("s_and_b32 s37, s23, 1")
    e("s_add_u32 s3, s24, s36"); e("s_mul_i32 s30, s3, 20480"); e(f"s_add_u32 s30, s30, {WS_X1}")
    e("v_add_u32 v8, s30, v10")
    e("v_lshrrev_b32 v11, 4, v0"); e("v_lshlrev_b32 v11, 4, v11"); e("s_mul_i32 s3, s21, 320"); e(f"s_add_u32 s3, s3, {WS_GB}")
    e("s_mul_i32 s25, s37, 192"); e("s_add_u32 s3, s3, s25"); e("v_add_u32 v9, s3, v11")
    e("v_and_b32 v12, 15, v0"); e("s_lshl_b32 s3, s20, 6"); e("s_lshl_b32 s25, s36, 4"); e("s_add_u32 s3, s3, s25"); e("v_add_u32 v12, s3, v12")
    e("v_mul_u32_u24 v12, 1280, v12"); e("v_lshrrev_b32 v11, 4, v0"); e("v_lshlrev_b32 v11, 3, v11"); e("v_add_u32 v12, v12, v11")
    e("s_mul_i32 s3, s21, 160"); e("s_mul_i32 s25, s37, 96"); e("s_add_u32 s3, s3, s25"); e("v_add_u32 v14, s3, v12")
    e("s_waitcnt lgkmcnt(0)")
    e("s_mul_i32 s3, s21, 160")
    e("s_add_u32 s8, s4, s3"); e("s_addc_u32 s9, s5, 0"); e(f"s_sub_u32 s8, s8, {BIAS}"); e("s_subb_u32 s9, s9, 0")
    e(f"s_sub_u32 s10, {1536*1280+BIAS}, s3"); e("s_mov_b32 s11, 0x20000")
    srd(P, 12, 16, 17, WS_BYTES); srd(P, 32, 6, 7, 2048*1280)
    ACC = 176; AR = 20; ASL = 8; BR = 52; BS = 6
    XR = 148; GBR = 156
    def acc_reg(t, ct): return ACC + (t*4 + ct)*4
    def tr_fn(n):
        ks, t = divmod(n, 5)
        off = (ks % NS)*ST + t*32
        r = AR + (n % ASL)*4
        return [Ins(f"ds_read_b64_tr_b16 v[{r}:{r+1}], v7 offset:{off}"),
                Ins(f"ds_read_b64_tr_b16 v[{r+2}:{r+3}], v7 offset:{off+2560}")]
    def bload_fn(ks):
        b = BR + (ks % BS)*16
        return ([Ins(f"s_mov_b32 s28, {ks*1024}")],
                [Ins(f"buffer_load_dwordx4 v[{b+4*ct}:{b+4*ct+3}], v{15+ct}, s[12:15], s28 offen") for ct in range(4)])
    def dma_fn(st):
        L = [Ins(f"s_add_u32 m0, s26, {(st % NS)*ST}"), Ins(f"s_add_u32 s29, s27, {st*32*1280}")]
        D = [Ins(f"buffer_load_dwordx4 v{2+i}, s[8:11], s29 offen offset:{i*1024} lds") for i in range(4)]
        D.append(Ins(f"s_add_u32 m0, s26, {(st % NS)*ST + 4096}"))
        D.append(Ins(f"buffer_load_dwordx4 v6, s[8:11], s29 offen lds"))
        return L, D
    H = {}; bh = {}
    if stamps: e("s_memtime s[42:43]")
    NK = 6
    for st in range(NS):
        L, D = dma_fn(st); P.many(L); P.many(D); H[st] = D[-1]
        L, D = bload_fn(st); P.many(L); P.many(D); bh[st] = D[-1]
    for st in range(NS, NK):
        L, D = bload_fn(st); P.many(L); P.many(D); bh[st] = D[-1]
    for j in range(3):
        e(f"s_mul_i32 s3, s21, 5"); e("s_mul_i32 s38, s37, 3"); e("s_add_u32 s3, s3, s38"); e(f"s_add_u32 s3, s3, {j}")
        e("s_lshr_b32 s31, s3, 1"); e("s_lshl_b32 s31, s31, 10"); e("s_and_b32 s3, s3, 1"); e("s_lshl_b32 s3, s3, 3"); e("s_add_u32 s31, s31, s3")
        e(f"buffer_load_dwordx2 v[{XR+2*j}:{XR+2*j+1}], v8, s[12:15], s31 offen")
        e(f"buffer_load_dwordx4 v[{GBR+4*j}:{GBR+4*j+3}], v9, s[12:15], 0 offen offset:{j*64}")
    H['b'] = bh
    bar0 = GOPT['barrier']; GOPT['barrier'] = False
    P.wait_vm(H[0])
    PF = 4
    for n in range(PF):
        rr = tr_fn(n); P.many(rr); H.setdefault('tr', {})[n] = rr[-1]
    if stamps: e("s_memtime s[44:45]"); e("s_waitcnt lgkmcnt(0)")
    global GAP
    g0 = GAP; GAP = 1
    gemm_stream(P, NK, 5, 4, 1, acc_reg, AR, ASL, BR, BS, tr_fn, bload_fn, dma_fn, H, PF, NK, 2, NK, WG=1)
    GAP = g0; GOPT['barrier'] = bar0
    if stamps: e("s_memtime s[46:47]")
    e("s_barrier")
    e("v_lshlrev_b32 v10, 4, v0")
    e("s_mul_i32 s3, s23, 20480"); e("v_add_u32 v11, s3, v10")
    for ct in range(4):
        for t in range(5):
            a = acc_reg(t, ct)
            e(f"ds_write_b128 v11, v[{a}:{a+3}] offset:{(ct*5+t)*1024}")
    e("s_waitcnt lgkmcnt(0)"); e("s_barrier")
    e("s_mul_i32 s3, s36, 5120"); e("s_mul_i32 s25, s37, 3072"); e("s_add_u32 s3, s3, s25"); e("v_add_u32 v11, s3, v10")
    for q in range(1, 4): e(f"v_add_u32 v{168+q}, {q*40960}, v11")
    def fin(j):
        y = 20 + j*32
        for sw in range(8):
            areg = 11 if sw < 2 else 168 + (sw >> 1)
            e(f"ds_read_b128 v[{y+4*sw}:{y+4*sw+3}], v{areg} offset:{(sw & 1)*20480 + j*1024}")
        for sw in range(1, 8):
            for i in range(4): e(f"v_add_f32 v{y+i}, v{y+i}, v{y+4*sw+i}")
        x = XR + 2*j
        e(f"v_lshlrev_b32 v172, 16, v{x}"); e(f"v_and_b32 v173, 0xffff0000, v{x}")
        e(f"v_lshlrev_b32 v174, 16, v{x+1}"); e(f"v_and_b32 v175, 0xffff0000, v{x+1}")
        for i in range(4): e(f"v_fma_f32 v{y+i}, v{y+i}, v{GBR+4*j+i}, v{172+i}")
        e(f"v_cvt_pk_bf16_f32 v{y}, v{y}, v{y+1}"); e(f"v_cvt_pk_bf16_f32 v{y+1}, v{y+2}, v{y+3}")
        e(f"buffer_store_dwordx2 v[{y}:{y+1}], v14, s[32:35], 0 offen offset:{j*32}")
    fin(0); fin(1)
    e("s_cmp_eq_u32 s37, 0"); e("s_cbranch_scc0 K6_FIN")
    fin(2)
    e("K6_FIN:")
    if stamps:
        e("s_waitcnt vmcnt(0)"); e("s_memtime s[48:49]")
        write_stamps(P, 5, 23, 12, 3)
    e("K6_END:")
    e("s_endpgm")
    P.finalize()
    return P

def gen_k5c(stamps=False, pf_down=True, auto=True):
    P = Prog(); e = P.e
    NS = 5; ST = 24576
    e("s_cmp_ge_u32 s2, 256"); e("s_cbranch_scc1 K5_END")
    e("s_load_dwordx4 s[4:7], s[0:1], 48")
    e("s_load_dwordx2 s[16:17], s[0:1], 104")
    e("s_load_dwordx2 s[18:19], s[0:1], 64")
    if stamps: e("s_memtime s[40:41]")
    e("s_and_b32 s20, s2, 7"); e("s_lshl_b32 s20, s20, 1"); e("s_lshr_b32 s3, s2, 3"); e("s_and_b32 s21, s3, 1"); e("s_add_u32 s20, s20, s21")
    e("s_lshr_b32 s21, s2, 4")
    e("v_lshrrev_b32 v1, 6, v0"); e("v_and_b32 v0, 63, v0")
    e("v_readfirstlane_b32 s23, v1")
    e("v_lshrrev_b32 v10, 2, v0")
    e("s_and_b32 s30, s23, 3"); e("s_lshr_b32 s31, s23, 2")
    e("s_lshr_b32 s3, s23, 1"); e("s_lshl_b32 s3, s3, 4"); e("v_add_u32 v10, s3, v10")
    e("v_lshrrev_b32 v11, 2, v10"); e("v_and_b32 v11, 1, v11"); e("v_lshlrev_b32 v11, 1, v11")
    e("v_and_b32 v12, 3, v0"); e("v_xor_b32 v11, v11, v12"); e("v_lshlrev_b32 v11, 4, v11")
    e("v_mul_u32_u24 v10, 3072, v10"); e("v_add_u32 v10, v10, v11")
    e(f"v_add_u32 v2, {BIAS}, v10"); e(f"v_add_u32 v3, {BIAS + 64 - 1024}, v10"); e(f"v_add_u32 v4, {BIAS + 128 - 2048}, v10")
    e("s_lshl_b32 s3, s21, 3"); e("s_lshl_b32 s24, s30, 1"); e("s_add_u32 s24, s24, s3")
    e("s_mul_i32 s3, s24, 20480"); e(f"s_add_u32 s3, s3, {WS_H2F}")
    e("v_lshlrev_b32 v13, 4, v0"); e("v_add_u32 v15, s3, v13"); e("v_add_u32 v16, 20480, v15")
    e("s_mul_i32 s26, s23, 3072")
    e("s_waitcnt lgkmcnt(0)")
    e("s_and_b32 s3, s23, 1"); e("s_cmp_eq_u32 s3, 0")
    e("s_cselect_b32 s8, s4, s6"); e("s_cselect_b32 s9, s5, s7")
    e("s_mul_i32 s3, s20, 192")
    e("s_add_u32 s8, s8, s3"); e("s_addc_u32 s9, s9, 0"); e(f"s_sub_u32 s8, s8, {BIAS}"); e("s_subb_u32 s9, s9, 0")
    e(f"s_sub_u32 s10, {640*3072+BIAS}, s3"); e("s_mov_b32 s11, 0x20000")
    srd(P, 12, 16, 17, WS_BYTES)
    srd(P, 36, 18, 19, 1966080)
    ACC = 200; AR = 40; ASL = 12; BR = 88; BS = 9
    TA = [[20, 21, 22], [23, 24, 25], [26, 27, 28]]
    def acc_reg(t, ct): return ACC + (t*2 + ct)*4
    def tr_fn(n):
        ks, t = divmod(n, 6)
        st, kk = divmod(ks, 2)
        sett, so = divmod(st % NS, 2)
        off = so*ST + kk*12288 + (3072 if t >= 3 else 0)
        r = AR + (n % ASL)*4; a = TA[sett][t % 3]
        return [Ins(f"ds_read_b64_tr_b16 v[{r}:{r+1}], v{a} offset:{off}"),
                Ins(f"ds_read_b64_tr_b16 v[{r+2}:{r+3}], v{a} offset:{off+6144}")]
    def bload_fn(ks):
        b = BR + (ks % BS)*8
        return ([Ins(f"s_mov_b32 s28, {ks*1024}")],
                [Ins(f"buffer_load_dwordx4 v[{b+4*ct}:{b+4*ct+3}], v{15+ct}, s[12:15], s28 offen") for ct in range(2)])
    def dma_fn(st):
        return ([Ins(f"s_add_u32 m0, s26, {(st % NS)*ST}"), Ins(f"s_mov_b32 s29, {st*64*3072}")],
                [Ins(f"buffer_load_dwordx4 v{2+i}, s[8:11], s29 offen offset:{i*1024} lds") for i in range(3)])
    H = {'b': {}}
    if stamps: e("s_memtime s[42:43]")
    BPF = 8; DPF = 4
    L, D = dma_fn(0); P.many(L); P.many(D); H[0] = D[-1]
    for ks in range(2):
        L, D = bload_fn(ks); P.many(L); P.many(D); H['b'][ks] = D[-1]
    L, D = dma_fn(1); P.many(L); P.many(D); H[1] = D[-1]
    e("v_lshrrev_b32 v10, 4, v0")
    e("v_lshrrev_b32 v11, 2, v0"); e("v_lshlrev_b32 v11, 6, v11")
    e("v_and_b32 v12, 3, v0"); e("v_lshlrev_b32 v12, 3, v12"); e("v_add_u32 v11, v11, v12")
    e("v_and_b32 v12, 1, v10"); e("v_lshlrev_b32 v12, 5, v12")
    e("v_add_u32 v5, v11, v12"); e("v_xor_b32 v12, 32, v12"); e("v_add_u32 v6, v11, v12")
    e("s_lshl_b32 s3, s31, 11"); e("v_add_u32 v20, s3, v5"); e("v_add_u32 v21, s3, v6")
    e("s_cmp_eq_u32 s31, 0"); e("s_cselect_b64 vcc, -1, 0")
    e("v_cndmask_b32 v22, v6, v5, vcc"); e("v_add_u32 v22, 1024, v22")
    for sett in (1, 2):
        for tp in range(3): e(f"v_add_u32 v{TA[sett][tp]}, {2*sett*ST}, v{TA[0][tp]}")
    e("s_mul_i32 s3, s24, 49152"); e("s_mul_i32 s25, s20, 3072"); e("s_add_u32 s3, s3, s25"); e(f"s_add_u32 s3, s3, {WS_ACT}")
    e("v_add_u32 v7, s3, v13"); e("s_lshl_b32 s25, s31, 11"); e("v_add_u32 v17, s25, v7"); e("v_add_u32 v18, 49152, v17")
    e("s_lshl_b32 s25, s31, 3"); e("s_add_u32 s25, s25, 1024"); e("v_add_u32 v7, s25, v7"); e("v_add_u32 v8, 49152, v7")
    P.wait_vm(H[0]); e("s_barrier")
    PF = 6
    for n in range(PF):
        rr = tr_fn(n); P.many(rr); H.setdefault('tr', {})[n] = rr[-1]
    if stamps: e("s_memtime s[44:45]"); e("s_waitcnt lgkmcnt(0)")
    extra = []
    if pf_down:
        extra = [(Ins("s_lshr_b32 s33, s2, 3"), 150, 200), (Ins("s_lshl_b32 s33, s33, 3"), 150, 200), (Ins("s_add_u32 s33, s33, s23"), 150, 200),
                 (Ins("s_mul_i32 s33, s33, 7680"), 150, 200), (Ins("v_lshlrev_b32 v9, 7, v0"), 150, 200), (Ins("v_add_u32 v9, s33, v9"), 150, 200),
                 (NT("buffer_load_dword v14, v9, s[36:39], 0 offen"), 150, 200)]
    gemm_stream(P, 20, 6, 2, 2, acc_reg, AR, ASL, BR, BS, tr_fn, bload_fn, dma_fn, H, PF, BPF, DPF, 10, extra=extra)
    if stamps: e("s_memtime s[46:47]")
    for ct in range(2):
        for tp in range(3):
            g = acc_reg(tp, ct); up = acc_reg(3+tp, ct)
            for i in range(4): e(f"v_max_f32 v{g+i}, 0, v{g+i}")
            for i in range(4): e(f"v_mul_f32 v{g+i}, v{g+i}, v{up+i}")
            d = 40 + ct*8 + 2*tp
            e(f"v_cvt_pk_bf16_f32 v{d}, v{g}, v{g+1}"); e(f"v_cvt_pk_bf16_f32 v{d+1}, v{g+2}, v{g+3}")
        d = 40 + ct*8
        e(f"buffer_store_dwordx4 v[{d}:{d+3}], v{17+ct}, s[12:15], 0 offen sc1")
        e(f"buffer_store_dwordx2 v[{d+4}:{d+5}], v{7+ct}, s[12:15], 0 offen sc1")
    if stamps:
        e("s_waitcnt vmcnt(0)"); e("s_memtime s[48:49]")
        write_stamps(P, 5, 23, 12, 3)
    e("K5_END:")
    e("s_endpgm")
    P.finalize(auto_wait=auto)
    return P

def gen_k6c(stamps=False, auto=True):
    P = Prog(); e = P.e
    NS = 4; ST = 10240
    e("s_cmp_ge_u32 s2, 256"); e("s_cbranch_scc1 K6_END")
    e("s_load_dwordx2 s[4:5], s[0:1], 64")
    e("s_load_dwordx2 s[6:7], s[0:1], 88")
    e("s_load_dwordx2 s[16:17], s[0:1], 104")
    if stamps: e("s_memtime s[40:41]")
    e("s_and_b32 s20, s2, 7"); e("s_lshl_b32 s20, s20, 2"); e("s_lshr_b32 s3, s2, 6"); e("s_add_u32 s20, s20, s3")
    e("s_lshr_b32 s21, s2, 3"); e("s_and_b32 s21, s21, 7")
    e("v_lshrrev_b32 v1, 6, v0"); e("v_and_b32 v0, 63, v0")
    e("v_readfirstlane_b32 s23, v1")
    e("v_lshlrev_b32 v2, 4, v0"); e("v_add_u32 v6, 4096, v2")
    e("s_and_b32 s36, s23, 1"); e("s_lshr_b32 s37, s23, 1")
    e(f"s_mul_i32 s26, s37, {NS*ST}"); e("s_mul_i32 s3, s36, 5120"); e("s_add_u32 s39, s26, s3")
    e("s_mul_i32 s27, s37, 61440"); e("s_mul_i32 s3, s36, 5120"); e("s_add_u32 s27, s27, s3")
    e("s_mul_i32 s3, s21, 245760"); e("s_add_u32 s27, s27, s3"); e(f"s_add_u32 s27, s27, {WS_WD}")
    e("s_lshl_b32 s24, s20, 2"); e("s_lshl_b32 s3, s36, 1"); e("s_add_u32 s24, s24, s3")
    e("s_mul_i32 s3, s24, 49152"); e("s_mul_i32 s25, s37, 12288"); e("s_add_u32 s3, s3, s25"); e(f"s_add_u32 s3, s3, {WS_ACT}")
    e("v_lshlrev_b32 v10, 4, v0"); e("v_add_u32 v15, s3, v10"); e("v_add_u32 v16, 49152, v15")
    e("s_waitcnt lgkmcnt(0)")
    srd(P, 12, 16, 17, WS_BYTES); srd(P, 32, 6, 7, 2048*1280)
    ACC = 200; AR = 20; ASL = 10; BR = 60; BS = 12
    XR = 156; GBR = 164
    def acc_reg(t, ct): return ACC + (t*2 + ct)*4
    def tr_fn(n):
        ks, t = divmod(n, 5)
        st, kk = divmod(ks, 2)
        off = (st % NS)*ST + kk*5120 + t*32
        r = AR + (n % ASL)*4
        return [Ins(f"ds_read_b64_tr_b16 v[{r}:{r+1}], v7 offset:{off}"),
                Ins(f"ds_read_b64_tr_b16 v[{r+2}:{r+3}], v7 offset:{off+2560}")]
    def bload_fn(ks):
        b = BR + (ks % BS)*8
        return ([Ins(f"s_mov_b32 s28, {ks*1024}")],
                [Ins(f"buffer_load_dwordx4 v[{b+4*ct}:{b+4*ct+3}], v{15+ct}, s[12:15], s28 offen") for ct in range(2)])
    def dma_fn(st):
        L = [Ins(f"s_add_u32 m0, s39, {(st % NS)*ST}"), Ins(f"s_add_u32 s29, s27, {st*10240}")]
        D = [Ins(f"buffer_load_dwordx4 v2, s[12:15], s29 offen offset:{i*1024} lds") for i in range(4)]
        D.append(Ins(f"s_add_u32 m0, s39, {(st % NS)*ST + 4096}"))
        D.append(Ins(f"buffer_load_dwordx4 v6, s[12:15], s29 offen lds"))
        return L, D
    H = {'b': {}}
    if stamps: e("s_memtime s[42:43]")
    L, D = dma_fn(0); P.many(L); P.many(D); H[0] = D[-1]
    for ks in range(2):
        L, D = bload_fn(ks); P.many(L); P.many(D); H['b'][ks] = D[-1]
    L, D = dma_fn(1); P.many(L); P.many(D); H[1] = D[-1]
    for ks in range(2, 4):
        L, D = bload_fn(ks); P.many(L); P.many(D); H['b'][ks] = D[-1]
    e("v_lshrrev_b32 v11, 2, v0"); e("v_mul_u32_u24 v11, 160, v11")
    e("v_and_b32 v12, 3, v0"); e("v_lshlrev_b32 v12, 3, v12"); e("v_add_u32 v7, v11, v12"); e("v_add_u32 v7, s26, v7")
    e("s_mul_i32 s38, s37, 3"); e("s_cmp_eq_u32 s37, 3"); e("s_cselect_b32 s38, 8, s38")
    e("v_lshrrev_b32 v11, 4, v0"); e("v_lshlrev_b32 v13, 4, v11")
    e("v_and_b32 v12, 15, v0"); e("v_mul_u32_u24 v12, 1280, v12"); e("v_lshlrev_b32 v11, 3, v11"); e("v_add_u32 v12, v12, v11")
    for j in range(3):
        e(f"s_add_u32 s44, s38, {j}"); e("s_min_u32 s44, s44, 9")
        e("s_lshr_b32 s45, s44, 1"); e("s_and_b32 s46, s44, 1")
        e("s_mul_i32 s3, s21, 5"); e("s_add_u32 s3, s3, s45")
        e("s_add_u32 s47, s24, s46")
        e("s_mul_i32 s48, s47, 20480"); e("s_lshr_b32 s49, s3, 1"); e("s_lshl_b32 s49, s49, 10"); e("s_add_u32 s48, s48, s49")
        e("s_and_b32 s49, s3, 1"); e("s_lshl_b32 s49, s49, 3"); e("s_add_u32 s48, s48, s49"); e(f"s_add_u32 s48, s48, {WS_X1}")
        e(f"buffer_load_dwordx2 v[{XR+2*j}:{XR+2*j+1}], v10, s[12:15], s48 offen")
        e("s_lshl_b32 s49, s3, 6"); e(f"s_add_u32 s49, s49, {WS_GB}")
        e(f"buffer_load_dwordx4 v[{GBR+4*j}:{GBR+4*j+3}], v13, s[12:15], s49 offen")
        e("s_mul_i32 s48, s47, 20480"); e("s_lshl_b32 s49, s3, 5"); e(f"s_add_u32 s{50+j}, s48, s49")
    P.wait_vm(H[0]); e("s_barrier")
    PF = 5
    for n in range(PF):
        rr = tr_fn(n); P.many(rr); H.setdefault('tr', {})[n] = rr[-1]
    if stamps: e("s_memtime s[54:55]"); e("s_waitcnt lgkmcnt(0)"); e("s_mov_b32 s44, s54"); e("s_mov_b32 s45, s55")
    global GAP
    g0 = GAP; GAP = 2
    gemm_stream(P, 12, 5, 2, 2, acc_reg, AR, ASL, BR, BS, tr_fn, bload_fn, dma_fn, H, PF, 8, 3, 6, WG=1, early=True)
    GAP = g0
    if stamps: e("s_memtime s[46:47]")
    e("s_barrier")
    e("s_mul_i32 s3, s23, 10240"); e("v_add_u32 v11, s3, v10")
    for idx in range(10):
        a = ACC + idx*4
        e(f"ds_write_b128 v11, v[{a}:{a+3}] offset:{idx*1024}")
    e("s_waitcnt lgkmcnt(0)"); e("s_barrier")
    e("s_mul_i32 s3, s36, 10240"); e("s_lshl_b32 s25, s38, 10"); e("s_add_u32 s3, s3, s25"); e("v_add_u32 v11, s3, v10"); e("v_add_u32 v14, 40960, v11")
    def fin(j):
        y = 20 + j*16
        for q in range(4):
            e(f"ds_read_b128 v[{y+4*q}:{y+4*q+3}], v{11 if q < 2 else 14} offset:{(q & 1)*20480 + j*1024}")
        for q in range(1, 4):
            for i in range(4): e(f"v_add_f32 v{y+i}, v{y+i}, v{y+4*q+i}")
        x = XR + 2*j
        e(f"v_lshlrev_b32 v176, 16, v{x}"); e(f"v_and_b32 v177, 0xffff0000, v{x}")
        e(f"v_lshlrev_b32 v178, 16, v{x+1}"); e(f"v_and_b32 v179, 0xffff0000, v{x+1}")
        for i in range(4): e(f"v_fma_f32 v{y+i}, v{y+i}, v{GBR+4*j+i}, v{176+i}")
        e(f"v_cvt_pk_bf16_f32 v{y}, v{y}, v{y+1}"); e(f"v_cvt_pk_bf16_f32 v{y+1}, v{y+2}, v{y+3}")
        e(f"buffer_store_dwordx2 v[{y}:{y+1}], v12, s[32:35], s{50+j} offen")
    fin(0); fin(1)
    e("s_cmp_ge_u32 s37, 2"); e("s_cbranch_scc1 K6_FIN")
    fin(2)
    e("K6_FIN:")
    if stamps:
        e("s_waitcnt vmcnt(0)"); e("s_memtime s[48:49]")
        write_stamps(P, 5, 23, 12, 3)
    e("K6_END:")
    e("s_endpgm")
    P.finalize(auto_wait=auto)
    return P


def gen_k5e(stamps=False):
    P = Prog(); e = P.e
    NS = 5; ST = 12288
    e("s_cmp_ge_u32 s2, 256"); e("s_cbranch_scc1 K5_END")
    e("s_load_dwordx4 s[4:7], s[0:1], 48")
    e("s_load_dwordx2 s[16:17], s[0:1], 104")
    if stamps: e("s_memtime s[40:41]")
    e("s_and_b32 s20, s2, 7"); e("s_lshl_b32 s20, s20, 1"); e("s_lshr_b32 s3, s2, 3"); e("s_and_b32 s21, s3, 1"); e("s_add_u32 s20, s20, s21")
    e("s_lshr_b32 s21, s2, 4")
    e("v_lshrrev_b32 v1, 6, v0"); e("v_and_b32 v0, 63, v0")
    e("v_readfirstlane_b32 s23, v1")
    for i in range(3):
        e(f"v_add_u32 v10, {i*64}, v0")
        e("v_mul_u32_u24 v11, 5462, v10"); e("v_lshrrev_b32 v11, 16, v11")
        e("v_mul_u32_u24 v12, 12, v11"); e("v_sub_u32 v12, v10, v12")
        e("v_lshrrev_b32 v13, 2, v11"); e("v_and_b32 v13, 1, v13"); e("v_lshlrev_b32 v13, 1, v13")
        e("v_xor_b32 v12, v12, v13"); e("v_lshlrev_b32 v12, 4, v12")
        e("v_mul_u32_u24 v11, 3072, v11"); e("v_add_u32 v11, v11, v12")
        e(f"v_add_u32 v{2+i}, {BIAS - i*1024}, v11")
    e("s_lshr_b32 s3, s23, 1"); e("s_mul_i32 s3, s3, 49152")
    for i in range(3): e(f"v_add_u32 v{2+i}, s3, v{2+i}")
    e("s_lshl_b32 s3, s21, 3"); e("s_lshl_b32 s24, s23, 1"); e("s_add_u32 s24, s24, s3")
    e("s_mul_i32 s3, s24, 20480"); e(f"s_add_u32 s3, s3, {WS_H2F}")
    e("v_lshlrev_b32 v10, 4, v0"); e("v_add_u32 v15, s3, v10"); e("v_add_u32 v16, 20480, v15")
    e("s_mul_i32 s26, s23, 3072")
    e("s_waitcnt lgkmcnt(0)")
    e("s_and_b32 s3, s23, 1"); e("s_cmp_eq_u32 s3, 0")
    e("s_cselect_b32 s8, s4, s6"); e("s_cselect_b32 s9, s5, s7")
    e("s_mul_i32 s3, s20, 192")
    e("s_add_u32 s8, s8, s3"); e("s_addc_u32 s9, s9, 0"); e(f"s_sub_u32 s8, s8, {BIAS}"); e("s_subb_u32 s9, s9, 0")
    e(f"s_sub_u32 s10, {640*3072+BIAS}, s3"); e("s_mov_b32 s11, 0x20000")
    srd(P, 12, 16, 17, WS_BYTES)
    ACC = 160; AR = 20; ASL = 12; BR = 68; BS = 6
    def acc_reg(t, ct): return ACC + (t*2 + ct)*4
    def tr_fn(n):
        ks, t = divmod(n, 12)
        m, j = divmod(t, 6)
        off = (ks % NS)*ST + m*3072 + (j >> 1)*64
        r = AR + (n % ASL)*4
        return [Ins(f"ds_read_b64_tr_b16 v[{r}:{r+1}], v{7 + (j & 1)} offset:{off}"),
                Ins(f"ds_read_b64_tr_b16 v[{r+2}:{r+3}], v{7 + (j & 1)} offset:{off+6144}")]
    def bload_fn(ks):
        b = BR + (ks % BS)*8
        return ([Ins(f"s_mov_b32 s28, {ks*1024}")],
                [Ins(f"buffer_load_dwordx4 v[{b+4*ct}:{b+4*ct+3}], v{15+ct}, s[12:15], s28 offen") for ct in range(2)])
    def dma_fn(st):
        return ([Ins(f"s_add_u32 m0, s26, {(st % NS)*ST}"), Ins(f"s_mov_b32 s29, {st*32*3072}")],
                [Ins(f"buffer_load_dwordx4 v{2+i}, s[8:11], s29 offen offset:{i*1024} lds") for i in range(3)])
    H = {'b': {}}
    if stamps: e("s_memtime s[42:43]")
    BPF = 5; DPF = 4
    for st in range(2):
        L, D = dma_fn(st); P.many(L); P.many(D); H[st] = D[-1]
        L, D = bload_fn(st); P.many(L); P.many(D); H['b'][st] = D[-1]
    e("v_lshrrev_b32 v10, 4, v0")
    e("v_lshrrev_b32 v11, 2, v0"); e("v_mul_u32_u24 v11, 192, v11")
    e("v_and_b32 v12, 3, v0"); e("v_lshlrev_b32 v12, 3, v12"); e("v_add_u32 v11, v11, v12")
    e("v_and_b32 v12, 1, v10"); e("v_lshlrev_b32 v12, 5, v12")
    e("v_add_u32 v7, v11, v12"); e("v_xor_b32 v12, 32, v12"); e("v_add_u32 v8, v11, v12")
    e("v_lshlrev_b32 v10, 4, v0")
    e("s_mul_i32 s3, s24, 49152"); e("s_mul_i32 s25, s20, 3072"); e("s_add_u32 s3, s3, s25"); e(f"s_add_u32 s3, s3, {WS_ACT}")
    e("v_add_u32 v17, s3, v10"); e("v_add_u32 v18, 49152, v17")
    P.wait_vm(H[0]); e("s_barrier")
    PF = 6
    for n in range(PF):
        rr = tr_fn(n); P.many(rr); H.setdefault('tr', {})[n] = rr[-1]
    if stamps: e("s_memtime s[44:45]"); e("s_waitcnt lgkmcnt(0)")
    gemm_stream(P, 20, 12, 2, 1, acc_reg, AR, ASL, BR, BS, tr_fn, bload_fn, dma_fn, H, PF, BPF, DPF, 20)
    if stamps: e("s_memtime s[46:47]")
    for u in range(3):
        e(f"s_mov_b32 s28, {u*1024}")
        for ct in range(2):
            dst = 20 + (u*2 + ct)*4
            for hh in range(2):
                j = 2*u + hh
                g = acc_reg(j, ct); up = acc_reg(6+j, ct)
                for i in range(4): e(f"v_max_f32 v{g+i}, 0, v{g+i}")
                for i in range(4): e(f"v_mul_f32 v{g+i}, v{g+i}, v{up+i}")
                e(f"v_cvt_pk_bf16_f32 v{dst+2*hh}, v{g}, v{g+1}")
                e(f"v_cvt_pk_bf16_f32 v{dst+2*hh+1}, v{g+2}, v{g+3}")
            e(f"buffer_store_dwordx4 v[{dst}:{dst+3}], v{17+ct}, s[12:15], s28 offen sc1")
    if stamps:
        e("s_waitcnt vmcnt(0)"); e("s_memtime s[48:49]")
        write_stamps(P, 5, 23, 12)
    e("K5_END:")
    e("s_endpgm")
    P.finalize()
    return P

def write_stamps(P, n, sw, sws, sh=2):
    P.e("s_waitcnt lgkmcnt(0)")
    P.e(f"s_lshl_b32 s3, s2, {sh}"); P.e(f"s_add_u32 s3, s3, s{sw}"); P.e("s_lshl_b32 s3, s3, 6"); P.e(f"s_add_u32 s3, s3, {WS_STAMP}")
    for i in range(n):
        P.e(f"v_mov_b32 v1, s{40+2*i}")
        P.e(f"v_mov_b32 v2, s3")
        P.e(f"buffer_store_dword v1, v2, s[{sws}:{sws+3}], 0 offen offset:{4*i}")
        P.e("s_waitcnt vmcnt(0)")

if __name__ == "__main__":
    from k2gen import wrap
    k3 = gen_k3(stamps=True)
    print("k3 est", k3.estimate(), len(k3.final))
    open("k3.s", "w").write(wrap([("k3_kernel", k3.text(), 256, 256)], [("k3_kernel", 256, 256, 122880)]))
    for nm, fn, lds in (("k3", gen_k3b, 122880), ("k5", gen_k5b, 122880), ("k6", gen_k6b, 163840)):
        k = fn(stamps=True); print(nm, "b est", k.estimate(), len(k.final))
        open(nm + "b.s", "w").write(wrap([(nm + "_kernel", k.text(), 256, 256)], [(nm + "_kernel", 256, 512, lds)]))
    k = gen_k5e(stamps=True); print("k5e est", k.estimate(), len(k.final))
    open("k5e.s", "w").write(wrap([("k5_kernel", k.text(), 256, 256)], [("k5_kernel", 256, 256, 61440)]))
    for nm, fn, lds in (("k5", gen_k5c, 122880), ("k6", gen_k6c, 163840)):
        k = fn(stamps=True); print(nm, "c est", k.estimate(), len(k.final))
        open(nm + "c.s", "w").write(wrap([(nm + "_kernel", k.text(), 256, 256)], [(nm + "_kernel", 256, 512, lds)]))
    for nm, o in [("a", dict(dma=False, waits=False)), ("b", dict(bload=False, waits=False)), ("c", dict(waits=False)), ("d", dict(dma=False, bload=False, waits=False))]:
        GOPT.update(dict(dma=True, bload=True, tr=True, barrier=True, waits=True)); GOPT.update(o)
        k = gen_k6c(stamps=True, auto=False)
        open(f"k6c{nm}.s", "w").write(wrap([("k6_kernel", k.text(), 256, 256)], [("k6_kernel", 256, 512, 163840)]))
        k = gen_k5c(stamps=True, auto=False)
        open(f"k5c{nm}.s", "w").write(wrap([("k5_kernel", k.text(), 256, 256)], [("k5_kernel", 256, 512, 122880)]))
    GOPT.update(dict(dma=True, bload=True, tr=True, barrier=True, waits=True))
    k5 = gen_k5(stamps=True); print("k5 est", k5.estimate(), len(k5.final))
    open("k5.s", "w").write(wrap([("k5_kernel", k5.text(), 256, 256)], [("k5_kernel", 256, 256, 61440)]))
    k6 = gen_k6(stamps=True); print("k6 est", k6.estimate(), len(k6.final))
    open("k6.s", "w").write(wrap([("k6_kernel", k6.text(), 256, 256)], [("k6_kernel", 256, 256, 122880)]))
    for nm, o in [] and [("a", dict(dma=False, waits=False)), ("b", dict(bload=False, waits=False)), ("c", dict(waits=False)), ("d", dict(waits=False, barrier=False)), ("e", dict(waits=False, tr=False))]:
        GOPT.update(dict(dma=True, bload=True, tr=True, barrier=True, waits=True)); GOPT.update(o)
        k = gen_k3(stamps=True, auto=GOPT['waits'])
        open(f"k3{nm}.s", "w").write(wrap([("k3_kernel", k.text(), 256, 256)], [("k3_kernel", 256, 256, 122880)]))
```

```python
from asmgen import *
from k2gen import WS_MOD, WS_HF, WS_OF, WS_PART, WS_X1, WS_H2F, WS_ACT, WS_BYTES, WS_WD
C_SCALE = 192**-0.5 * 1.4426950408889634
import struct
def f2u(x): return struct.unpack('<I', struct.pack('<f', x))[0]

NSPLIT = 4

def srd(P, s, lo, hi, nbytes):
    P.e(f"s_mov_b32 s{s}, s{lo}"); P.e(f"s_mov_b32 s{s+1}, s{hi}")
    P.e(f"s_mov_b32 s{s+2}, {nbytes}"); P.e(f"s_mov_b32 s{s+3}, 0x20000")

def pf_role(P, name, nmain, npf, ranges):
    e = P.e
    e(f"{name}_PF:")
    e(f"s_cmp_ge_u32 s2, {nmain+npf}"); e(f"s_cbranch_scc1 {name}_END")
    e(f"s_sub_u32 s20, s2, {nmain}")
    e("v_lshlrev_b32 v1, 4, v0")
    for ri, (ko, boff, nbytes, total) in enumerate(ranges):
        per = -(-nbytes // (npf*4096))*4096
        e(f"s_load_dwordx2 s[4:5], s[0:1], {ko}")
        e("s_waitcnt lgkmcnt(0)")
        e("s_mov_b32 s8, s4"); e("s_mov_b32 s9, s5"); e(f"s_mov_b32 s10, {min(total, boff+nbytes)}"); e("s_mov_b32 s11, 0x20000")
        e(f"s_mul_i32 s21, s20, {per}"); e(f"s_add_u32 s21, s21, {boff}")
        for i in range(per // 4096):
            e(NT(f"buffer_load_dwordx4 v[4:7], v1, s[8:11], s21 offen"))
            e("s_add_u32 s21, s21, 4096")
    e("s_endpgm")

def pf_role_kv(P, name, nmain, npf, kos):
    e = P.e
    parts = npf // 32
    per = 196608 // parts
    e(f"s_sub_u32 s20, s2, {nmain}")
    e("s_and_b32 s22, s20, 31"); e("s_lshr_b32 s23, s20, 5")
    e(f"s_mul_i32 s22, s22, 786432"); e(f"s_mul_i32 s23, s23, {per}"); e("s_add_u32 s22, s22, s23"); e("s_add_u32 s22, s22, 589824")
    for ko in kos:
        e(f"s_load_dwordx2 s[4:5], s[0:1], {ko}")
        e("s_waitcnt lgkmcnt(0)")
        e("s_mov_b32 s8, s4"); e("s_mov_b32 s9, s5"); e(f"s_mov_b32 s10, 25165824"); e("s_mov_b32 s11, 0x20000")
        e("s_mov_b32 s21, s22")
        for i in range(per // 4096):
            e(NT(f"buffer_load_dwordx4 v[4:7], v1, s[8:11], s21 offen"))
            e("s_add_u32 s21, s21, 4096")

def gen_k0(prefetch=True):
    P = Prog(); e = P.e
    NWG = 30*NSPLIT
    e(f"s_cmp_ge_u32 s2, {NWG}"); e("s_cbranch_scc1 K0_PF")
    e("s_load_dwordx4 s[4:7], s[0:1], 72")
    e("s_load_dwordx2 s[16:17], s[0:1], 104")
    e("s_load_dwordx2 s[18:19], s[0:1], 24")
    e(f"s_mul_i32 s3, s2, {(65536+29)//30}"); e("s_lshr_b32 s20, s3, 16")
    e("s_mul_i32 s3, s20, 30"); e("s_sub_u32 s21, s2, s3")
    e("v_and_b32 v1, 15, v0")
    e("v_lshrrev_b32 v2, 4, v0")
    e(f"s_mul_i32 s3, s20, {640//NSPLIT}")
    e("v_add_u32 v3, s3, v2")
    e("v_lshlrev_b32 v4, 1, v3")
    e("s_mov_b32 s22, 7680")
    e("v_mul_lo_u32 v5, v3, s22")
    e("v_lshlrev_b32 v6, 4, v1")
    e("v_add_u32 v5, v5, v6")
    e("s_lshl_b32 s3, s21, 8"); e("v_add_u32 v5, s3, v5")
    e("s_waitcnt lgkmcnt(0)")
    srd(P, 8, 4, 5, 1280); srd(P, 12, 6, 7, 640*3840*2); srd(P, 24, 16, 17, WS_BYTES); srd(P, 28, 18, 19, 7864320)
    NR = 160//16
    for i in range(NR):
        e(f"buffer_load_ushort v{10+i}, v4, s[8:11], 0 offen offset:{32*i}")
    e(f"s_mov_b32 s23, 0")
    for i in range(NR):
        e(f"s_mov_b32 s23, {16*7680*i}")
        e(f"buffer_load_dwordx4 v[{24+4*i}:{27+4*i}], v5, s[12:15], s23 offen")
    for i in range(NR):
        r = 10+i
        e(f"v_lshlrev_b32 v{r}, 16, v{r}")
        e(f"v_mul_f32 v9, {f2u(-1.4426950408889634)}, v{r}")
        e("v_exp_f32 v9, v9")
        e("v_add_f32 v9, 1.0, v9")
        e("v_rcp_f32 v9, v9")
        e(f"v_mul_f32 v{r}, v{r}, v9")
        e(f"v_cvt_pk_bf16_f32 v{r}, v{r}, v{r}")
        e(f"v_and_b32 v{r}, 0xffff0000, v{r}")
    for j in range(8): e(f"v_mov_b32 v{70+j}, 0")
    for i in range(NR):
        for q in range(4):
            w = 24+4*i+q
            e(f"v_lshlrev_b32 v68, 16, v{w}")
            e(f"v_and_b32 v69, 0xffff0000, v{w}")
            e(f"v_fmac_f32 v{70+2*q}, v{10+i}, v68")
            e(f"v_fmac_f32 v{71+2*q}, v{10+i}, v69")
    e("v_lshlrev_b32 v6, 5, v1")
    e("v_lshlrev_b32 v7, 9, v2")
    e("v_add_u32 v6, v6, v7")
    e("ds_write_b128 v6, v[70:73]"); e("ds_write_b128 v6, v[74:77] offset:16")
    e("s_waitcnt lgkmcnt(0)"); e("s_barrier")
    e("v_cmp_gt_u32 vcc, 128, v0")
    e("s_and_saveexec_b64 s[32:33], vcc")
    e("s_cbranch_execz K0_END")
    e("v_lshlrev_b32 v6, 2, v0")
    for r in range(16): e(f"ds_read_b32 v{30+r}, v6 offset:{512*r}")
    for r in range(1, 16): e(f"v_add_f32 v30, v30, v{30+r}")
    e("s_mul_i32 s3, s20, 15360"); e("s_lshl_b32 s23, s21, 9"); e("s_add_u32 s3, s3, s23"); e(f"s_add_u32 s3, s3, {WS_MOD}")
    e("v_add_u32 v6, s3, v6")
    e("buffer_store_dword v30, v6, s[24:27], 0 offen")
    e("K0_END:")
    e("s_endpgm")
    pf_role(P, "K0", NWG, 128, [(24, 0, 7864320, 7864320)])
    P.finalize()
    return P

def load_mod_to_lds(P, idx_list, scale_fn, tid='v0', tbase=20, lds_base=0, store_idx={}):
    e = P.e
    e(f"v_lshlrev_b32 v{tbase}, 4, {tid}")
    r = tbase+4
    for n, idx in enumerate(idx_list):
        for p in range(NSPLIT):
            off = WS_MOD + (p*3840 + idx*640)*4
            e(f"s_mov_b32 s34, {off}")
            e(f"buffer_load_dwordx4 v[{r+(n*NSPLIT+p)*4}:{r+(n*NSPLIT+p)*4+3}], v{tbase}, s[24:27], s34 offen")
    for n, idx in enumerate(idx_list):
        b = r + n*NSPLIT*4
        for p in range(1, NSPLIT):
            for i in range(4): e(f"v_add_f32 v{b+i}, v{b+i}, v{b+4*p+i}")
        for i in range(4):
            e(f"v_cvt_pk_bf16_f32 v{b+i}, v{b+i}, v{b+i}")
            e(f"v_and_b32 v{b+i}, 0xffff0000, v{b+i}")
            scale_fn(P, n, b+i)
        if n in store_idx:
            e(f"s_mov_b32 s34, {store_idx[n]}")
            e(f"buffer_store_dwordx4 v[{b}:{b+3}], v{tbase}, s[24:27], s34 offen")
        else:
            e(f"ds_write_b128 v{tbase}, v[{b}:{b+3}] offset:{lds_base + n*4096}")

def row_reduce(P, val, red_base, tmp, addr_w, addr_r):
    e = P.e
    e(f"ds_write_b32 v{addr_w}, v{val} offset:{red_base}")
    e("s_waitcnt lgkmcnt(0)"); e("s_barrier")
    for q in range(4): e(f"ds_read_b128 v[{tmp+4*q}:{tmp+4*q+3}], v{addr_r} offset:{red_base+16*q}")
    e(f"v_add_f32 v{val}, v{tmp}, v{tmp+1}")
    for i in range(2, 16): e(f"v_add_f32 v{val}, v{val}, v{tmp+i}")

def ln_common(P, X, n, a1_lds, a0_lds, out_regs, w_sgpr, eps=1e-5):
    e = P.e
    RED0, RED1 = 12288, 13312
    e("v_lshlrev_b32 v4, 6, v2"); e("v_lshlrev_b32 v5, 2, v3"); e("v_add_u32 v5, v4, v5")
    e(f"s_lshl_b32 s3, s{w_sgpr}, 4"); e("v_add_u32 v5, s3, v5")
    e(f"v_add_f32 v6, v{X}, v{X+1}")
    for i in range(2, n): e(f"v_add_f32 v6, v6, v{X+i}")
    T = 200
    row_reduce(P, 6, RED0, T, 5, 4)
    e(f"v_mul_f32 v6, {f2u(1/640)}, v6")
    for i in range(n): e(f"v_sub_f32 v{X+i}, v{X+i}, v6")
    e(f"v_mul_f32 v7, v{X}, v{X}")
    for i in range(1, n): e(f"v_fmac_f32 v7, v{X+i}, v{X+i}")
    row_reduce(P, 7, RED1, T, 5, 4)
    e(f"v_mul_f32 v7, {f2u(1/640)}, v7")
    e(f"v_add_f32 v7, {f2u(eps)}, v7")
    e("v_rsq_f32 v7, v7")
    e(f"s_mul_i32 s3, s{w_sgpr}, {5*32*4}")
    e("v_lshlrev_b32 v8, 4, v3"); e("v_add_u32 v8, s3, v8")
    for j in range(5):
        for hh in range(2):
            off = j*128 + hh*64
            e(f"ds_read_b128 v[{T}:{T+3}], v8 offset:{a1_lds+off}")
            e(f"ds_read_b128 v[{T+4}:{T+7}], v8 offset:{a0_lds+off}")
            b = X + j*8 + hh*4
            for i in range(4):
                e(f"v_mul_f32 v{b+i}, v{b+i}, v7")
                e(f"v_fma_f32 v{b+i}, v{b+i}, v{T+i}, v{T+4+i}")
            e(f"v_cvt_pk_bf16_f32 v{out_regs+j*4+hh*2}, v{b}, v{b+1}")
            e(f"v_cvt_pk_bf16_f32 v{out_regs+j*4+hh*2+1}, v{b+2}, v{b+3}")

def load_x_pieces(P, X, raw, srd_x):
    e = P.e
    for j in range(5):
        for hh in range(2):
            e(f"buffer_load_dwordx2 v[{raw+(j*2+hh)*2}:{raw+(j*2+hh)*2+1}], v9, s[{srd_x}:{srd_x+3}], 0 offen offset:{j*64+hh*32}")

def unpack_x(P, X, raw):
    e = P.e
    for j in range(10):
        for q in range(2):
            e(f"v_lshlrev_b32 v{X+j*4+q*2}, 16, v{raw+j*2+q}")
            e(f"v_and_b32 v{X+j*4+q*2+1}, 0xffff0000, v{raw+j*2+q}")

def gen_k1(prefetch=True):
    P = Prog(); e = P.e
    e("s_cmp_ge_u32 s2, 128"); e("s_cbranch_scc1 K1_PF")
    e("s_load_dwordx2 s[4:5], s[0:1], 0")
    e("s_load_dwordx2 s[16:17], s[0:1], 104")
    e("v_lshrrev_b32 v1, 6, v0"); e("v_and_b32 v10, 63, v0")
    e("v_readfirstlane_b32 s20, v1")
    e("v_and_b32 v2, 15, v10"); e("v_lshrrev_b32 v3, 4, v10")
    e("s_lshl_b32 s3, s2, 4"); e("v_add_u32 v9, s3, v2"); e("v_mul_u32_u24 v9, 1280, v9")
    e("v_lshlrev_b32 v11, 3, v3"); e("v_add_u32 v9, v9, v11")
    e("s_mul_i32 s3, s20, 320"); e("v_add_u32 v9, s3, v9")
    e("s_waitcnt lgkmcnt(0)")
    srd(P, 8, 4, 5, 2048*1280); srd(P, 24, 16, 17, WS_BYTES)
    X = 100; RAW = 60
    load_x_pieces(P, X, RAW, 8)
    def sc(P, n, r):
        if n == 0:
            P.e(f"v_mul_f32 v{r}, {f2u(C_SCALE)}, v{r}")
        else:
            P.e(f"v_add_f32 v{r}, 1.0, v{r}")
            P.e(f"v_mul_f32 v{r}, {f2u(C_SCALE)}, v{r}")
    load_mod_to_lds(P, [0, 1], sc)
    unpack_x(P, X, RAW)
    OUT = 160
    ln_common(P, X, 40, 4096, 0, OUT, 20)
    e("s_mul_i32 s3, s2, 20480"); e("s_mul_i32 s21, s20, 5120"); e("s_add_u32 s3, s3, s21"); e(f"s_add_u32 s3, s3, {WS_HF}")
    e("v_lshlrev_b32 v11, 4, v10"); e("v_add_u32 v11, s3, v11")
    for j in range(5):
        e(f"buffer_store_dwordx4 v[{OUT+4*j}:{OUT+4*j+3}], v11, s[24:27], 0 offen offset:{j*1024 if j<4 else 0}" if j < 4 else f"s_mov_b32 s21, 4096")
    e(f"buffer_store_dwordx4 v[{OUT+16}:{OUT+19}], v11, s[24:27], s21 offen")
    e("K1_END:")
    e("s_endpgm")
    e("K1_PF:")
    e("s_cmp_ge_u32 s2, 256"); e("s_cbranch_scc1 K1_END")
    e("v_lshlrev_b32 v1, 4, v0")
    pf_role_kv(P, "K1", 128, 128, [8, 16])
    e("s_endpgm")
    P.finalize()
    return P

def gen_k4(part_bf16=False, nsplit=4):
    P = Prog(); e = P.e
    e("s_cmp_ge_u32 s2, 128"); e("s_cbranch_scc1 K4_PF")
    e("s_load_dwordx2 s[4:5], s[0:1], 0")
    e("s_load_dwordx2 s[16:17], s[0:1], 104")
    e("v_lshrrev_b32 v1, 6, v0"); e("v_and_b32 v10, 63, v0")
    e("v_readfirstlane_b32 s20, v1")
    e("v_and_b32 v2, 15, v10"); e("v_lshrrev_b32 v3, 4, v10")
    e("s_lshl_b32 s3, s2, 4"); e("v_add_u32 v9, s3, v2"); e("v_mul_u32_u24 v9, 1280, v9")
    e("v_lshlrev_b32 v11, 3, v3"); e("v_add_u32 v9, v9, v11")
    e("s_mul_i32 s3, s20, 320"); e("v_add_u32 v9, s3, v9")
    e("s_mul_i32 s3, s2, 20480"); e("s_mul_i32 s21, s20, 5120"); e("s_add_u32 s3, s3, s21"); e(f"s_add_u32 s3, s3, {WS_PART}")
    e("v_lshlrev_b32 v12, 4, v10"); e("v_add_u32 v12, s3, v12")
    e("s_waitcnt lgkmcnt(0)")
    srd(P, 8, 4, 5, 2048*1280); srd(P, 24, 16, 17, WS_BYTES)
    X = 100; RAW = 60; PRAW = 140
    load_x_pieces(P, X, RAW, 8)
    def sc(P, n, r):
        if n == 2: P.e(f"v_add_f32 v{r}, 1.0, v{r}")
    load_mod_to_lds(P, [2, 3, 4, 5], sc, tbase=160, store_idx={3: WS_MOD + 0x20000})
    ACC = 20
    PR = 232 - 80
    for p in range(nsplit):
        for j in range(5):
            o = p*128*20480 + j*1024
            e(f"s_mov_b32 s21, {o}")
            e(f"buffer_load_dwordx4 v[{PRAW+p*20+4*j}:{PRAW+p*20+4*j+3}], v12, s[24:27], s21 offen")
    for p in range(nsplit):
        for q in range(20):
            r = PRAW + p*20 + q
            if p == 0:
                e(f"v_lshlrev_b32 v{ACC+2*q}, 16, v{r}"); e(f"v_and_b32 v{ACC+2*q+1}, 0xffff0000, v{r}")
            else:
                e(f"v_lshlrev_b32 v14, 16, v{r}"); e(f"v_and_b32 v15, 0xffff0000, v{r}")
                e(f"v_add_f32 v{ACC+2*q}, v{ACC+2*q}, v14"); e(f"v_add_f32 v{ACC+2*q+1}, v{ACC+2*q+1}, v15")
    unpack_x(P, X, RAW)
    e("s_waitcnt lgkmcnt(0)"); e("s_barrier")
    e(f"s_mul_i32 s3, s20, 640"); e("v_lshlrev_b32 v8, 4, v3"); e("v_add_u32 v8, s3, v8")
    T = 200
    OUTX = 160
    for j in range(10):
        e(f"ds_read_b128 v[{T}:{T+3}], v8 offset:{j*64}")
        for i in range(4):
            e(f"v_fma_f32 v{X+j*4+i}, v{ACC+j*4+i}, v{T+i}, v{X+j*4+i}")
        e(f"v_cvt_pk_bf16_f32 v{OUTX+j*2}, v{X+j*4}, v{X+j*4+1}")
        e(f"v_cvt_pk_bf16_f32 v{OUTX+j*2+1}, v{X+j*4+2}, v{X+j*4+3}")
        for q in range(2):
            e(f"v_lshlrev_b32 v{X+j*4+q*2}, 16, v{OUTX+j*2+q}")
            e(f"v_and_b32 v{X+j*4+q*2+1}, 0xffff0000, v{OUTX+j*2+q}")
    e("s_mul_i32 s3, s2, 20480"); e("s_mul_i32 s21, s20, 5120"); e("s_add_u32 s3, s3, s21")
    e("v_lshlrev_b32 v11, 4, v10"); e("v_add_u32 v11, s3, v11")
    for j in range(5):
        e(f"s_mov_b32 s21, {WS_X1 + j*1024}")
        e(f"buffer_store_dwordx4 v[{OUTX+4*j}:{OUTX+4*j+3}], v11, s[24:27], s21 offen")
    OUT = 20
    ln_common(P, X, 40, 2*4096, 1*4096, OUT, 20)
    for j in range(5):
        e(f"s_mov_b32 s21, {WS_H2F + j*1024}")
        e(f"buffer_store_dwordx4 v[{OUT+4*j}:{OUT+4*j+3}], v11, s[24:27], s21 offen")
    e("K4_END:")
    e("s_endpgm")
    pf_role(P, "K4", 128, 128, [(48, 0, 1966080, 1966080), (56, 0, 1966080, 1966080), (64, 0, 1966080, 1966080)])
    P.finalize()
    return P

WS_MODF = WS_MOD + 0x10000
NGEMV = 30*NSPLIT
NLN = 128
N01 = NGEMV + NLN

SLEEP = 6
def gen_k01(pf=('wq',), npf=256):
    P = Prog(); e = P.e
    e(f"s_cmp_ge_u32 s2, {NGEMV}"); e("s_cbranch_scc1 K01_LN")
    e("s_load_dwordx4 s[4:7], s[0:1], 72")
    e("s_load_dwordx4 s[16:19], s[0:1], 96")
    e(f"s_mul_i32 s3, s2, {(65536+29)//30}"); e("s_lshr_b32 s20, s3, 16")
    e("s_mul_i32 s3, s20, 30"); e("s_sub_u32 s21, s2, s3")
    e("v_and_b32 v1, 15, v0"); e("v_lshrrev_b32 v2, 4, v0")
    e(f"s_mul_i32 s3, s20, {640//NSPLIT}")
    e("v_add_u32 v3, s3, v2"); e("v_lshlrev_b32 v4, 1, v3")
    e("s_mov_b32 s22, 7680"); e("v_mul_lo_u32 v5, v3, s22")
    e("v_lshlrev_b32 v6, 4, v1"); e("v_add_u32 v5, v5, v6")
    e("s_lshl_b32 s3, s21, 8"); e("v_add_u32 v5, s3, v5")
    e("s_waitcnt lgkmcnt(0)")
    srd(P, 8, 4, 5, 1280); srd(P, 12, 6, 7, 640*3840*2); srd(P, 24, 18, 19, WS_BYTES); srd(P, 28, 16, 17, 256)
    NR = 160//16
    for i in range(NR):
        e(f"s_mov_b32 s23, {16*7680*i}")
        e(f"buffer_load_dwordx4 v[{24+4*i}:{27+4*i}], v5, s[12:15], s23 offen")
    for i in range(NR):
        e(f"buffer_load_ushort v{10+i}, v4, s[8:11], 0 offen offset:{32*i}")
    for i in range(NR): e(f"v_lshlrev_b32 v{10+i}, 16, v{10+i}")
    for i in range(NR): e(f"v_mul_f32 v{80+i}, {f2u(-1.4426950408889634)}, v{10+i}")
    for i in range(NR): e(f"v_exp_f32 v{80+i}, v{80+i}")
    for i in range(NR): e(f"v_add_f32 v{80+i}, 1.0, v{80+i}")
    for i in range(NR): e(f"v_rcp_f32 v{80+i}, v{80+i}")
    for i in range(NR): e(f"v_mul_f32 v{10+i}, v{10+i}, v{80+i}")
    for i in range(NR): e(f"v_cvt_pk_bf16_f32 v{10+i}, v{10+i}, v{10+i}")
    for i in range(NR): e(f"v_and_b32 v{10+i}, 0xffff0000, v{10+i}")
    for j in range(8): e(f"v_mov_b32 v{70+j}, 0")
    for i in range(NR):
        for q in range(4):
            w = 24+4*i+q
            e(f"v_lshlrev_b32 v68, 16, v{w}"); e(f"v_and_b32 v69, 0xffff0000, v{w}")
            e(f"v_fmac_f32 v{70+2*q}, v{10+i}, v68"); e(f"v_fmac_f32 v{71+2*q}, v{10+i}, v69")
    e("v_lshlrev_b32 v6, 5, v1"); e("v_lshlrev_b32 v7, 9, v2"); e("v_add_u32 v6, v6, v7")
    e("ds_write_b128 v6, v[70:73]"); e("ds_write_b128 v6, v[74:77] offset:16")
    e("s_waitcnt lgkmcnt(0)"); e("s_barrier")
    e("v_cmp_gt_u32 vcc, 128, v0")
    e("s_and_saveexec_b64 s[32:33], vcc")
    e("s_cbranch_execz K01_END")
    e("v_lshlrev_b32 v6, 2, v0")
    for r in range(16): e(f"ds_read_b32 v{30+r}, v6 offset:{512*r}")
    for r in range(1, 16): e(f"v_add_f32 v30, v30, v{30+r}")
    e("s_mul_i32 s3, s20, 15360"); e("s_lshl_b32 s23, s21, 9"); e("s_add_u32 s3, s3, s23"); e(f"s_add_u32 s3, s3, {WS_MOD}")
    e("v_add_u32 v6, s3, v6")
    e("buffer_store_dword v30, v6, s[24:27], 0 offen sc1")
    e("s_waitcnt vmcnt(0)")
    e("s_cmp_ge_u32 s21, 10"); e("s_cbranch_scc1 K01_END")
    e("s_barrier")
    e("v_cmp_eq_u32 vcc, 0, v0")
    e("s_and_saveexec_b64 s[32:33], vcc")
    e("s_cbranch_execz K01_END")
    e("v_mov_b32 v7, 1"); e("v_mov_b32 v8, 0")
    e("buffer_atomic_add v7, v8, s[28:31], 0 offen sc1")
    e("K01_END:")
    e("s_endpgm")
    e("K01_LN:")
    e(f"s_cmp_ge_u32 s2, {N01}"); e("s_cbranch_scc1 K01_PF")
    e(f"s_sub_u32 s2, s2, {NGEMV}")
    e("s_load_dwordx2 s[4:5], s[0:1], 0")
    e("s_load_dwordx4 s[16:19], s[0:1], 96")
    e("v_lshrrev_b32 v1, 6, v0"); e("v_and_b32 v10, 63, v0")
    e("v_readfirstlane_b32 s20, v1")
    e("v_and_b32 v2, 15, v10"); e("v_lshrrev_b32 v3, 4, v10")
    e("s_lshl_b32 s3, s2, 4"); e("v_add_u32 v9, s3, v2"); e("v_mul_u32_u24 v9, 1280, v9")
    e("v_lshlrev_b32 v11, 3, v3"); e("v_add_u32 v9, v9, v11")
    e("s_mul_i32 s3, s20, 320"); e("v_add_u32 v9, s3, v9")
    e("s_waitcnt lgkmcnt(0)")
    srd(P, 8, 4, 5, 2048*1280); srd(P, 24, 18, 19, WS_BYTES); srd(P, 28, 16, 17, 256)
    X = 100; RAW = 60; T = 200
    load_x_pieces(P, X, RAW, 8)
    unpack_x(P, X, RAW)
    RED0, RED1 = 12288, 13312
    e("v_lshlrev_b32 v4, 6, v2"); e("v_lshlrev_b32 v5, 2, v3"); e("v_add_u32 v5, v4, v5")
    e(f"s_lshl_b32 s3, s20, 4"); e("v_add_u32 v5, s3, v5")
    e(f"v_add_f32 v6, v{X}, v{X+1}")
    for i in range(2, 40): e(f"v_add_f32 v6, v6, v{X+i}")
    row_reduce(P, 6, RED0, T, 5, 4)
    e(f"v_mul_f32 v6, {f2u(1/640)}, v6")
    for i in range(40): e(f"v_sub_f32 v{X+i}, v{X+i}, v6")
    e(f"v_mul_f32 v7, v{X}, v{X}")
    for i in range(1, 40): e(f"v_fmac_f32 v7, v{X+i}, v{X+i}")
    row_reduce(P, 7, RED1, T, 5, 4)
    e(f"v_mul_f32 v7, {f2u(1/640)}, v7"); e(f"v_add_f32 v7, {f2u(1e-5)}, v7"); e("v_rsq_f32 v7, v7")
    e("s_nop 0")
    for i in range(40): e(f"v_mul_f32 v{X+i}, v{X+i}, v7")
    e("s_cmp_lg_u32 s20, 0"); e("s_cbranch_scc1 K01_GO")
    e("s_cmp_eq_u32 s2, 0"); e("s_cselect_b32 s23, 0, 128"); e(f"s_cselect_b32 s35, {10*NSPLIT}, 1")
    e("v_mov_b32 v12, s23"); e("s_mov_b32 s21, 0")
    e("K01_POLL:")
    e("buffer_load_dword v13, v12, s[28:31], 0 offen sc1")
    e("s_waitcnt vmcnt(0)")
    e("v_readfirstlane_b32 s22, v13")
    e("s_add_u32 s21, s21, 1")
    e(f"s_cmp_ge_u32 s22, s35"); e("s_cbranch_scc1 K01_SEEN")
    e(f"s_sleep {SLEEP}")
    e("s_cmp_lt_u32 s21, 0x4000"); e("s_cbranch_scc1 K01_POLL")
    e("K01_SEEN:")
    e("s_cmp_lg_u32 s2, 0"); e("s_cbranch_scc1 K01_GO")
    e("v_mov_b32 v12, 128"); e("v_mov_b32 v13, 1")
    e("buffer_store_dword v13, v12, s[28:31], 0 offen sc1")
    e("K01_GO:")
    e("s_barrier")
    tb = 20
    e(f"v_lshlrev_b32 v{tb}, 4, v0")
    r = 24
    for n, idx in enumerate([0, 1]):
        for p in range(NSPLIT):
            e(f"s_mov_b32 s34, {WS_MOD + (p*3840 + idx*640)*4}")
            e(f"buffer_load_dwordx4 v[{r+(n*NSPLIT+p)*4}:{r+(n*NSPLIT+p)*4+3}], v{tb}, s[24:27], s34 offen sc1")
    for n in range(2):
        b = r + n*NSPLIT*4
        for p in range(1, NSPLIT):
            for i in range(4): e(f"v_add_f32 v{b+i}, v{b+i}, v{b+4*p+i}")
        for i in range(4):
            e(f"v_cvt_pk_bf16_f32 v{b+i}, v{b+i}, v{b+i}"); e(f"v_and_b32 v{b+i}, 0xffff0000, v{b+i}")
            if n == 1: e(f"v_add_f32 v{b+i}, 1.0, v{b+i}")
            e(f"v_mul_f32 v{b+i}, {f2u(C_SCALE)}, v{b+i}")
        e(f"ds_write_b128 v{tb}, v[{b}:{b+3}] offset:{n*4096}")
    e("s_waitcnt lgkmcnt(0)"); e("s_barrier")
    e(f"s_mul_i32 s3, s20, {5*32*4}")
    e("v_lshlrev_b32 v8, 4, v3"); e("v_add_u32 v8, s3, v8")
    OUT = 160
    for j in range(5):
        for hh in range(2):
            off = j*128 + hh*64; k = (j*2+hh) % 2
            t = T + 8*k
            e(f"ds_read_b128 v[{t}:{t+3}], v8 offset:{4096+off}")
            e(f"ds_read_b128 v[{t+4}:{t+7}], v8 offset:{off}")
            b = X + j*8 + hh*4
            for i in range(4): e(f"v_fma_f32 v{b+i}, v{b+i}, v{t+i}, v{t+4+i}")
            e(f"v_cvt_pk_bf16_f32 v{OUT+j*4+hh*2}, v{b}, v{b+1}")
            e(f"v_cvt_pk_bf16_f32 v{OUT+j*4+hh*2+1}, v{b+2}, v{b+3}")
    e("s_mul_i32 s3, s2, 20480"); e("s_mul_i32 s21, s20, 5120"); e("s_add_u32 s3, s3, s21"); e(f"s_add_u32 s3, s3, {WS_HF}")
    e("v_lshlrev_b32 v11, 4, v10"); e("v_add_u32 v11, s3, v11")
    for j in range(5):
        e(f"s_mov_b32 s21, {j*1024}")
        e(f"buffer_store_dwordx4 v[{OUT+4*j}:{OUT+4*j+3}], v11, s[24:27], s21 offen sc1")
    e("s_endpgm")
    e("K01_PF:")
    e(f"s_cmp_ge_u32 s2, {N01+npf}"); e("s_cbranch_scc1 K01_END")
    e(f"s_sub_u32 s20, s2, {N01}")
    e("s_and_b32 s21, s20, 7"); e("s_lshr_b32 s22, s20, 3")
    per_x = npf // 8
    if 'wq' in pf:
        e("s_load_dwordx2 s[4:5], s[0:1], 24"); e("s_waitcnt lgkmcnt(0)")
        srd(P, 8, 4, 5, 7864320)
        rounds = -(-61440 // 256 // per_x)
        e(f"s_mul_i32 s3, s22, {rounds*256}"); e("v_add_u32 v1, s3, v0"); e("s_mul_i32 s23, s21, 1536")
        for r_ in range(rounds):
            e("v_mul_u32_u24 v2, 683, v1"); e("v_lshrrev_b32 v2, 16, v2")
            e("v_mul_u32_u24 v3, 96, v2"); e("v_sub_u32 v3, v1, v3")
            e("v_cmp_le_i32 vcc, 96, v3"); e("s_nop 1")
            e("v_addc_co_u32 v2, vcc, 0, v2, vcc")
            e("v_mul_u32_u24 v3, 96, v2"); e("v_sub_u32 v3, v1, v3"); e("v_lshlrev_b32 v3, 4, v3")
            e("v_mul_u32_u24 v2, 12288, v2"); e("v_add_u32 v2, v2, v3")
            e(NT("buffer_load_dwordx4 v[4:7], v2, s[8:11], s23 offen"))
            e("v_add_u32 v1, 256, v1")
    for nm, ko in (('k', 8), ('v', 16)):
        if nm not in pf: continue
        e(f"s_load_dwordx2 s[4:5], s[0:1], {ko}"); e("s_waitcnt lgkmcnt(0)")
        srd(P, 8, 4, 5, 25165824)
        parts = per_x // 4; per = 196608 // parts
        e("s_and_b32 s3, s22, 3"); e("s_lshl_b32 s23, s21, 2"); e("s_add_u32 s3, s3, s23"); e("s_mul_i32 s23, s3, 786432")
        e("s_lshr_b32 s3, s22, 2"); e(f"s_mul_i32 s3, s3, {per}"); e("s_add_u32 s23, s23, s3"); e("s_add_u32 s23, s23, 589824")
        e("v_lshlrev_b32 v1, 4, v0")
        for i in range(per // 4096):
            e(NT("buffer_load_dwordx4 v[4:7], v1, s[8:11], s23 offen")); e("s_add_u32 s23, s23, 4096")
    e("s_endpgm")
    P.finalize(report_nops=False)
    return P

def gen_k4b(pf=True, npf=128):
    P = Prog(); e = P.e
    e("s_cmp_ge_u32 s2, 256"); e("s_cbranch_scc1 K4_PF")
    e("s_load_dwordx2 s[4:5], s[0:1], 0")
    e("s_load_dwordx2 s[16:17], s[0:1], 104")
    e("v_lshrrev_b32 v1, 6, v0"); e("v_and_b32 v10, 63, v0")
    e("v_readfirstlane_b32 s20, v1")
    e("v_and_b32 v2, 7, v10")
    e("v_lshrrev_b32 v3, 4, v10")
    e("v_lshrrev_b32 v4, 3, v10"); e("v_and_b32 v4, 1, v4")
    e("s_lshr_b32 s21, s2, 1"); e("s_and_b32 s22, s2, 1")
    e("s_mul_i32 s3, s21, 20480"); e("s_lshl_b32 s23, s20, 12"); e("s_add_u32 s3, s3, s23"); e("s_lshl_b32 s23, s22, 7"); e("s_add_u32 s3, s3, s23")
    e("v_lshlrev_b32 v5, 10, v4"); e("v_lshlrev_b32 v6, 8, v3"); e("v_add_u32 v5, v5, v6"); e("v_lshlrev_b32 v6, 4, v2"); e("v_add_u32 v5, v5, v6")
    e("v_add_u32 v12, s3, v5")
    e("s_lshl_b32 s3, s21, 4"); e("s_lshl_b32 s23, s22, 3"); e("s_add_u32 s3, s3, s23"); e("v_add_u32 v9, s3, v2"); e("v_mul_u32_u24 v9, 1280, v9")
    e("v_lshlrev_b32 v6, 6, v4"); e("v_add_u32 v9, v9, v6"); e("v_lshlrev_b32 v6, 3, v3"); e("v_add_u32 v9, v9, v6")
    e("s_lshl_b32 s3, s20, 8"); e("v_add_u32 v9, s3, v9")
    e("s_waitcnt lgkmcnt(0)")
    srd(P, 8, 4, 5, 2048*1280); srd(P, 24, 16, 17, WS_BYTES)
    PR = 20
    for p in range(4):
        for jj in range(2):
            e(f"s_mov_b32 s21, {WS_PART + p*128*20480 + jj*2048}")
            e(f"buffer_load_dwordx4 v[{PR+p*8+jj*4}:{PR+p*8+jj*4+3}], v12, s[24:27], s21 offen")
    XR = 52
    for jj in range(2):
        for hh in range(2):
            e(f"buffer_load_dwordx2 v[{XR+jj*4+hh*2}:{XR+jj*4+hh*2+1}], v9, s[8:11], 0 offen offset:{jj*128+hh*32}")
    MP = 60
    for i in range(2):
        e(f"v_add_u32 v13, {320*i}, v0")
        e("v_mul_u32_u24 v14, 410, v13"); e("v_lshrrev_b32 v14, 16, v14")
        e("v_mul_u32_u24 v15, 160, v14"); e("v_sub_u32 v15, v13, v15")
        e(f"v_lshlrev_b32 v{18+i}, 4, v15")
        e("v_mul_u32_u24 v15, 2560, v14"); e(f"v_add_u32 v15, v15, v{18+i}")
        for p in range(NSPLIT):
            e(f"s_mov_b32 s21, {WS_MOD + (p*3840 + 2*640)*4}")
            e(f"buffer_load_dwordx4 v[{MP+(i*4+p)*4}:{MP+(i*4+p)*4+3}], v15, s[24:27], s21 offen")
        e(f"v_mul_u32_u24 v14, 5120, v14"); e(f"v_add_u32 v{18+i}, v{18+i}, v14")
    A_ = 92
    for p in range(4):
        for q in range(8):
            r = PR + p*8 + q
            if p == 0:
                e(f"v_lshlrev_b32 v{A_+2*q}, 16, v{r}"); e(f"v_and_b32 v{A_+2*q+1}, 0xffff0000, v{r}")
            else:
                e(f"v_lshlrev_b32 v14, 16, v{r}"); e(f"v_and_b32 v15, 0xffff0000, v{r}")
                e(f"v_add_f32 v{A_+2*q}, v{A_+2*q}, v14"); e(f"v_add_f32 v{A_+2*q+1}, v{A_+2*q+1}, v15")
    X = 108
    for q in range(8):
        e(f"v_lshlrev_b32 v{X+2*q}, 16, v{XR+q}"); e(f"v_and_b32 v{X+2*q+1}, 0xffff0000, v{XR+q}")
    for i in range(2):
        b = MP + i*16
        for p in range(1, NSPLIT):
            for k in range(4): e(f"v_add_f32 v{b+k}, v{b+k}, v{b+4*p+k}")
        e(f"v_subrev_u32 v14, {2*5120}, v{18+i}"); e(f"v_cmp_gt_u32 vcc, 5120, v14"); e("s_nop 1")
        e("v_cndmask_b32 v14, 0, 1.0, vcc")
        for k in range(4):
            e(f"v_cvt_pk_bf16_f32 v{b+k}, v{b+k}, v{b+k}"); e(f"v_and_b32 v{b+k}, 0xffff0000, v{b+k}"); e(f"v_add_f32 v{b+k}, v{b+k}, v14")
        e(f"ds_write_b128 v{18+i}, v[{b}:{b+3}]")
    e("s_cmp_lg_u32 s2, 0"); e("s_cbranch_scc1 K4_NOGB")
    e(f"v_cmp_le_u32 vcc, {3*5120}, v19"); e("s_and_saveexec_b64 s[30:31], vcc"); e("s_cbranch_execz K4_NOGB2")
    e(f"v_subrev_u32 v14, {3*5120}, v19"); e(f"s_mov_b32 s21, {WS_MODF + 5*4096}")
    e(f"buffer_store_dwordx4 v[{MP+16}:{MP+19}], v14, s[24:27], s21 offen")
    e("K4_NOGB2:"); e("s_mov_b64 exec, s[30:31]")
    e("K4_NOGB:")
    e("s_waitcnt lgkmcnt(0)"); e("s_barrier")
    e("v_lshlrev_b32 v8, 7, v4"); e("v_lshlrev_b32 v6, 4, v3"); e("v_add_u32 v8, v8, v6"); e("s_lshl_b32 s3, s20, 9"); e("v_add_u32 v8, s3, v8")
    T = 20; OX = 52
    for jj in range(2):
        for hh in range(2):
            k = jj*2 + hh
            e(f"ds_read_b128 v[{T+4*k}:{T+4*k+3}], v8 offset:{jj*256 + hh*64}")
    for k in range(4):
        for i in range(4): e(f"v_fma_f32 v{X+4*k+i}, v{A_+4*k+i}, v{T+4*k+i}, v{X+4*k+i}")
        e(f"v_cvt_pk_bf16_f32 v{OX+2*k}, v{X+4*k}, v{X+4*k+1}"); e(f"v_cvt_pk_bf16_f32 v{OX+2*k+1}, v{X+4*k+2}, v{X+4*k+3}")
    for q in range(8):
        e(f"v_lshlrev_b32 v{X+2*q}, 16, v{OX+q}"); e(f"v_and_b32 v{X+2*q+1}, 0xffff0000, v{OX+q}")
    for jj in range(2):
        e(f"s_mov_b32 s21, {WS_X1 + jj*2048}")
        e(f"buffer_store_dwordx4 v[{OX+4*jj}:{OX+4*jj+3}], v12, s[24:27], s21 offen sc1")
    for jj in range(2):
        for hh in range(2):
            k = jj*2 + hh
            e(f"ds_read_b128 v[{T+4*k}:{T+4*k+3}], v8 offset:{2*5120 + jj*256 + hh*64}")
            e(f"ds_read_b128 v[{T+16+4*k}:{T+16+4*k+3}], v8 offset:{1*5120 + jj*256 + hh*64}")
    RED0, RED1 = 20480, 22528
    e("v_mul_u32_u24 v16, 192, v2"); e("v_lshlrev_b32 v17, 3, v3"); e("v_lshlrev_b32 v18, 2, v4"); e("v_add_u32 v17, v17, v18")
    e("s_lshl_b32 s3, s20, 5"); e("v_add_u32 v17, s3, v17"); e("v_add_u32 v17, v17, v16")
    def red(val, base):
        e(f"ds_write_b32 v17, v{val} offset:{base}")
        e("s_waitcnt lgkmcnt(0)"); e("s_barrier")
        for q in range(10): e(f"ds_read_b128 v[{60+4*q}:{63+4*q}], v16 offset:{base+16*q}")
        for q in range(5):
            e(f"v_pk_add_f32 v[{60+4*q}:{61+4*q}], v[{60+4*q}:{61+4*q}], v[{80+4*q}:{81+4*q}]")
            e(f"v_pk_add_f32 v[{62+4*q}:{63+4*q}], v[{62+4*q}:{63+4*q}], v[{82+4*q}:{83+4*q}]")
        for q in range(5): e(f"v_pk_add_f32 v[{60+2*q}:{61+2*q}], v[{60+2*q}:{61+2*q}], v[{70+2*q}:{71+2*q}]")
        e("v_pk_add_f32 v[60:61], v[60:61], v[62:63]"); e("v_pk_add_f32 v[64:65], v[64:65], v[66:67]")
        e("v_pk_add_f32 v[60:61], v[60:61], v[64:65]"); e("v_pk_add_f32 v[60:61], v[60:61], v[68:69]")
        e(f"v_add_f32 v{val}, v60, v61")
    e(f"v_pk_add_f32 v[6:7], v[{X}:{X+1}], v[{X+2}:{X+3}]")
    for i in range(2, 8): e(f"v_pk_add_f32 v[6:7], v[6:7], v[{X+2*i}:{X+2*i+1}]")
    e("v_add_f32 v6, v6, v7")
    red(6, RED0)
    e(f"v_mul_f32 v6, {f2u(1/640)}, v6")
    for i in range(16): e(f"v_sub_f32 v{X+i}, v{X+i}, v6")
    e(f"v_mul_f32 v7, v{X}, v{X}")
    for i in range(1, 16): e(f"v_fmac_f32 v7, v{X+i}, v{X+i}")
    red(7, RED1)
    e(f"v_mul_f32 v7, {f2u(1/640)}, v7"); e(f"v_add_f32 v7, {f2u(1e-5)}, v7"); e("v_rsq_f32 v7, v7"); e("s_nop 0")
    for i in range(16):
        e(f"v_mul_f32 v{X+i}, v{X+i}, v7")
        e(f"v_fma_f32 v{X+i}, v{X+i}, v{T+i}, v{T+16+i}")
    for k in range(4):
        e(f"v_cvt_pk_bf16_f32 v{OX+2*k}, v{X+4*k}, v{X+4*k+1}"); e(f"v_cvt_pk_bf16_f32 v{OX+2*k+1}, v{X+4*k+2}, v{X+4*k+3}")
    for jj in range(2):
        e(f"s_mov_b32 s21, {WS_H2F + jj*2048}")
        e(f"buffer_store_dwordx4 v[{OX+4*jj}:{OX+4*jj+3}], v12, s[24:27], s21 offen sc1")
    e("K4_END:")
    e("s_endpgm")
    e("K4_PF:")
    e(f"s_cmp_ge_u32 s2, {256+npf}"); e("s_cbranch_scc1 K4_END")
    e("s_sub_u32 s20, s2, 256")
    e("s_load_dwordx2 s[4:5], s[0:1], 64"); e("s_load_dwordx2 s[16:17], s[0:1], 104"); e("s_waitcnt lgkmcnt(0)")
    srd(P, 8, 4, 5, 1966080); srd(P, 24, 16, 17, WS_BYTES)
    assert npf == 128
    e("s_mul_i32 s21, s20, 15360")
    for r_ in range(3):
        e(f"v_add_u32 v1, {r_*320}, v0")
        e(f"v_lshlrev_b32 v{10+r_}, 4, v1")
        e(f"buffer_load_dwordx4 v[{20+4*r_}:{23+4*r_}], v{10+r_}, s[8:11], s21 offen")
        e("v_mul_u32_u24 v2, 820, v1"); e("v_lshrrev_b32 v2, 16, v2")
        e("v_mul_u32_u24 v3, 80, v2"); e("v_sub_u32 v3, v1, v3")
        e("v_mul_u32_u24 v4, 6554, v3"); e("v_lshrrev_b32 v4, 16, v4")
        e("v_mul_u32_u24 v5, 10, v4"); e("v_sub_u32 v5, v3, v5")
        e("v_mul_u32_u24 v4, 245760, v4"); e("v_mul_u32_u24 v2, 160, v2"); e("v_lshlrev_b32 v5, 4, v5")
        e(f"v_add_u32 v{14+r_}, v4, v2"); e(f"v_add_u32 v{14+r_}, v{14+r_}, v5")
    e("s_mul_i32 s21, s20, 1920"); e(f"s_add_u32 s21, s21, {WS_WD}")
    for r_ in range(3):
        e(f"buffer_store_dwordx4 v[{20+4*r_}:{23+4*r_}], v{14+r_}, s[24:27], s21 offen sc1")
    e("s_and_b32 s21, s20, 7"); e("s_lshr_b32 s22, s20, 3")
    per_x = npf // 8
    tot = 640*24
    rounds = -(-tot // 320 // per_x)
    for ko in (48, 56):
        e(f"s_load_dwordx2 s[4:5], s[0:1], {ko}"); e("s_waitcnt lgkmcnt(0)")
        srd(P, 8, 4, 5, 1966080)
        e(f"s_mul_i32 s3, s22, {rounds*320}"); e("v_add_u32 v1, s3, v0"); e("s_mul_i32 s23, s21, 384")
        for r_ in range(rounds):
            e("v_mul_u32_u24 v2, 2731, v1"); e("v_lshrrev_b32 v2, 16, v2")
            e("v_mul_u32_u24 v3, 24, v2"); e("v_sub_u32 v3, v1, v3"); e("v_lshlrev_b32 v3, 4, v3")
            e("v_mul_u32_u24 v2, 3072, v2"); e("v_add_u32 v2, v2, v3")
            e(NT("buffer_load_dwordx4 v[4:7], v2, s[8:11], s23 offen"))
            e("v_add_u32 v1, 320, v1")
    e("s_endpgm")
    P.finalize(report_nops=False)
    return P

if __name__ == "__main__":
    from k2gen import wrap
    k0 = gen_k0(); k1 = gen_k1(); k4 = gen_k4()
    open("k01.s", "w").write(wrap([("k0_kernel", k0.text(), 256, 256), ("k1_kernel", k1.text(), 256, 256)],
                                  [("k0_kernel", 120, 256, 16384), ("k1_kernel", 128, 256, 16384)]))
    open("k4.s", "w").write(wrap([("k4_kernel", k4.text(), 256, 256)], [("k4_kernel", 128, 256, 16384)]))
```

```python
import sys, io, contextlib
import k2gen, ksmall, kgemm
from asmgen import *
from k2gen import *

HDR = open('adaLN_cond__sliding_block_cached__glu_gated_reglu__prompt.s.ref').read().split('; Override launch')[0]

K2OPT = {}
BOPT = {}
def gen_k2(stamps=False):
    k2gen.OPT.update(dict(touch=[('v', lambda p2, p3: 48*6), ('w3', lambda p2, p3: 48*12), ('wo', lambda p2, p3: p2 + 24*2)]))
    k2gen.OPT.update(K2OPT)
    P = Prog()
    H = {}
    prologue(P, stamps=False)
    code_prefetch(P, 49152)
    if stamps: stamp(P, 0)
    main_pro(P, H)
    if stamps: stamp(P, 1)
    main_schedule(P, H)
    if stamps:
        n = 8 if K2OPT.get('stamps_in') else 2
        stamp(P, n); P.e("s_waitcnt vmcnt(0)"); stamp(P, n+1); write_stamps(P, n+2)
    P.e("K2_END:")
    P.e("s_endpgm")
    P.finalize(report_nops=K2OPT.get('report', False))
    return P

def add_rt(P, kidx):
    start = [Ins("s_mov_b32 s83, s2"), Ins("s_memrealtime s[92:93]"), Ins("s_memtime s[90:91]")]
    def end():
        return [Ins("s_mov_b64 exec, 1"), Ins("s_waitcnt vmcnt(0)"), Ins("s_memrealtime s[94:95]"), Ins("s_memtime s[88:89]"), Ins("s_load_dwordx2 s[96:97], s[0:1], 104"), Ins("s_waitcnt lgkmcnt(0)"),
           Ins("s_mov_b32 s84, s96"), Ins("s_mov_b32 s85, s97"), Ins(f"s_mov_b32 s86, {WS_BYTES}"), Ins("s_mov_b32 s87, 0x20000"),
           Ins("s_lshl_b32 s3, s83, 4"), Ins(f"s_add_u32 s3, s3, {WS_STAMP + 0x10000*(kidx+1)}"),
           Ins("v_mov_b32 v4, s92"), Ins("v_mov_b32 v5, s94"), Ins("v_mov_b32 v6, s90"), Ins("v_mov_b32 v7, s88"), Ins("v_mov_b32 v8, s3"),
           Ins("buffer_store_dwordx4 v[4:7], v8, s[84:87], 0 offen"), Ins("s_waitcnt vmcnt(0)")]
    items = list(start)
    for x in P.items:
        if isinstance(x, Ins) and x.op == 's_endpgm': items += end()
        items.append(x)
    P.items = items
    P.finalize(report_nops=False)

def build(fname, rt=False):
    with contextlib.redirect_stdout(io.StringIO()):
        k01 = ksmall.gen_k01(pf=BOPT.get('pf01', ('wq', 'k'))); k2 = gen_k2(); k3 = kgemm.gen_k3(); k4 = ksmall.gen_k4b(); k5 = kgemm.gen_k5e(); k6 = kgemm.gen_k6c()
    if rt:
        for i, k in enumerate([k01, k2, k3, k4, k5, k6]): add_rt(k, i)
    ks = [("k01_kernel", k01.text(), 256, 256), ("k2_kernel", k2.text(), 512, 256),
          ("k3_kernel", k3.text(), 256, 256), ("k4_kernel", k4.text(), 128, 128), ("k5_kernel", k5.text(), 256, 256), ("k6_kernel", k6.text(), 256, 256)]
    ls = [("k01_kernel", 248+256, 256, 16384), ("k2_kernel", 256, 256, LDS_BYTES),
          ("k3_kernel", 256, 256, 122880), ("k4_kernel", 256+128, 320, 24576), ("k5_kernel", 256, 256, 61440), ("k6_kernel", 256, 512, 163840)]
    s = HDR + wrap(ks, ls)
    open(fname, "w").write(s)
    print(fname, len(s), "bytes")

if __name__ == "__main__":
    build("adaLN_cond__sliding_block_cached__glu_gated_reglu__prompt.s")
    build("all_rt.s", rt=True)
```

```python
import re

REG_RE = re.compile(r'^(-|\|)?([vas])(\d+)\|?$')
RNG_RE = re.compile(r'^(-)?([vas])\[(\d+):(\d+)\]$')


def parse_regs(tok):
    tok = tok.strip()
    m = REG_RE.match(tok)
    if m:
        return [(m.group(2), int(m.group(3)))]
    m = RNG_RE.match(tok)
    if m:
        return [(m.group(2), i) for i in range(int(m.group(3)), int(m.group(4)) + 1)]
    if tok in ('vcc', 'exec', 'm0', 'scc'):
        return [(tok, 0)]
    if tok in ('vcc_lo', 'vcc_hi'):
        return [('vcc', 0)]
    if tok in ('exec_lo', 'exec_hi'):
        return [('exec', 0)]
    return []


def V(i, n=1):
    return f"v{i}" if n == 1 else f"v[{i}:{i+n-1}]"


def A(i, n=1):
    return f"a{i}" if n == 1 else f"a[{i}:{i+n-1}]"


def S(i, n=1):
    return f"s{i}" if n == 1 else f"s[{i}:{i+n-1}]"


def R(r, n=1):
    return V(r[1], n) if r[0] == 'v' else A(r[1], n)


TRANS = ('v_exp_f32', 'v_log_f32', 'v_rcp_f32', 'v_rsq_f32', 'v_sqrt_f32', 'v_sin_f32', 'v_cos_f32')


class Ins:
    __slots__ = ('text', 'op', 'kind', 'rd', 'wr', 'meta', 'srcc', 'srcab', 'tag')

    def __init__(self, text, tag=None):
        self.text = text
        self.tag = tag
        self.meta = {}
        self.srcc = []
        self.srcab = []
        t = text.split(';')[0].strip()
        if t.endswith(':'):
            self.op = 'label'; self.kind = 'label'; self.rd = []; self.wr = []
            return
        parts = t.split(None, 1)
        op = parts[0]
        self.op = op
        rest = parts[1] if len(parts) > 1 else ''
        ops = []
        cur = ''
        depth = 0
        for ch in rest:
            if ch == '[': depth += 1
            if ch == ']': depth -= 1
            if ch == ',' and depth == 0:
                ops.append(cur.strip()); cur = ''
            else:
                cur += ch
        if cur.strip():
            ops.append(cur.strip())
        mods = ''
        if ops:
            sp = ops[-1].split(None, 1)
            ops[-1] = sp[0]
            mods = sp[1] if len(sp) > 1 else ''
        regs = [parse_regs(o) for o in ops]
        rd, wr = [], []
        kind = None
        if op.startswith('v_mfma'):
            kind = 'mfma32' if '32x32' in op else 'mfma16'
            wr = regs[0]
            self.srcab = regs[1] + regs[2]
            self.srcc = regs[3] if len(regs) > 3 else []
            rd = self.srcab + self.srcc
        elif op.startswith('v_cmp'):
            kind = 'valu'
            wr = regs[0]
            for r in regs[1:]: rd += r
            if op.startswith('v_cmpx'): wr = wr + [('exec', 0)]
        elif op.startswith('v_permlane') and 'swap' in op:
            kind = 'perm'
            wr = regs[0] + regs[1]; rd = regs[0] + regs[1]
        elif op.startswith('v_readfirstlane') or op.startswith('v_readlane'):
            kind = 'valu'; wr = regs[0]
            for r in regs[1:]: rd += r
            self.meta['readlane'] = True
        elif op.startswith('v_'):
            kind = 'trans' if op.replace('_e32', '').replace('_e64', '') in TRANS else 'valu'
            wr = list(regs[0])
            for r in regs[1:]: rd += r
            base = op.replace('_e32', '').replace('_e64', '')
            if base in ('v_fmac_f32', 'v_dot2c_f32_bf16', 'v_pk_fmac_f16', 'v_writelane_b32'):
                rd += regs[0]
            if base in ('v_add_co_u32', 'v_sub_co_u32', 'v_addc_co_u32', 'v_subb_co_u32'):
                wr = regs[0] + regs[1]
                rd = []
                for r in regs[2:]: rd += r
            if base == 'v_cndmask_b32' and len(regs) == 3:
                rd += [('vcc', 0)]
            if 'dpp' in op or 'row_' in mods or 'quad_perm' in mods:
                self.meta['dpp'] = True
                rd += regs[0]
        elif op.startswith('ds_read') or op.startswith('ds_bpermute') or op.startswith('ds_swizzle'):
            kind = 'ds_read'; wr = regs[0]
            for r in regs[1:]: rd += r
        elif op.startswith('ds_write'):
            kind = 'ds_write'
            for r in regs: rd += r
        elif op.startswith('buffer_load') or op.startswith('global_load'):
            if ' lds' in (' ' + mods) or op.startswith('global_load_lds'):
                kind = 'dma'
                for r in regs: rd += r
                rd += [('m0', 0)]
            else:
                kind = 'vload'; wr = regs[0]
                for r in regs[1:]: rd += r
        elif op.startswith('buffer_store') or op.startswith('global_store'):
            kind = 'vstore'
            for r in regs: rd += r
            if op.startswith('buffer_store'):
                self.meta['data'] = regs[0]
            else:
                self.meta['data'] = regs[1]
            self.meta['wide'] = op.endswith('x4') or op.endswith('x3')
        elif op.startswith('buffer_atomic') or op.startswith('global_atomic'):
            kind = 'vstore'
            for r in regs: rd += r
            self.meta['data'] = []
            self.meta['wide'] = False
            if 'sc0' in mods:
                kind = 'vload'; wr = regs[0]
        elif op.startswith('buffer_inv') or op.startswith('buffer_wbl2'):
            kind = 'vstore'; self.meta['data'] = []; self.meta['wide'] = False
        elif op.startswith('s_load') or op.startswith('s_memtime') or op.startswith('s_memrealtime') or op.startswith('s_buffer_load'):
            kind = 'smem'; wr = regs[0]
            for r in regs[1:]: rd += r
        elif op == 's_waitcnt':
            kind = 'wait'
        elif op == 's_barrier':
            kind = 'barrier'
        elif op == 's_nop':
            kind = 'nop'; self.meta['n'] = int(ops[0], 0) + 1
        elif op.startswith('s_cbranch') or op == 's_branch' or op == 's_endpgm' or op.startswith('s_setpc'):
            kind = 'branch'
        elif op.startswith('s_cmp'):
            kind = 'salu'; wr = [('scc', 0)]
            for r in regs: rd += r
        elif op in ('s_setprio', 's_sleep'):
            kind = 'salu'
        elif op.startswith('s_'):
            kind = 'salu'; wr = list(regs[0]) if regs else []
            for r in regs[1:]: rd += r
            if 'saveexec' in op:
                wr += [('exec', 0)]; rd += [('exec', 0)]
            if op in ('s_addk_i32', 's_mulk_i32'):
                rd += regs[0]
        else:
            raise ValueError("unknown op " + text)
        self.kind = kind
        self.rd = rd
        self.wr = wr

    def cost(self):
        k = self.kind
        if k in ('label',): return 0
        if k in ('trans', 'perm'): return 8
        if k in ('mfma16', 'mfma32'): return 8
        if k == 'nop': return 4 * self.meta['n']
        return 4


def RAW(text):
    i = Ins(text); i.meta['raw'] = True
    return i


def NT(text):
    i = Ins(text); i.meta['notrack'] = True
    return i


class WaitVM:
    def __init__(self, h): self.h = h
    kind = 'waitvm'


class WaitLGKM:
    def __init__(self, h): self.h = h
    kind = 'waitlgkm'


class Prog:
    def __init__(self):
        self.items = []

    def e(self, text, tag=None):
        if isinstance(text, (Ins, WaitVM, WaitLGKM)):
            self.items.append(text); return text
        i = Ins(text, tag)
        self.items.append(i)
        return i

    def many(self, lst):
        for x in lst: self.e(x)

    def wait_vm(self, h):
        self.items.append(WaitVM(h))

    def finalize(self, auto_wait=True, verbose=False, report_nops=True):
        out = []
        vm = []
        lg = []
        smem_out = False
        pend = {}
        nwait = 0

        def emit_wait(vmn=None, lgn=None):
            nonlocal nwait
            s = []
            if vmn is not None: s.append(f"vmcnt({vmn})")
            if lgn is not None: s.append(f"lgkmcnt({lgn})")
            if not s: return
            out.append(Ins("s_waitcnt " + " ".join(s)))
            nwait += 1

        def retire_vm(n):
            while len(vm) > n:
                o = vm.pop(0)
                for r in o.wr:
                    if pend.get(r, (None, None))[1] is o: del pend[r]

        def retire_lg(n):
            while len(lg) > n:
                o = lg.pop(0)
                for r in o.wr:
                    if pend.get(r, (None, None))[1] is o: del pend[r]

        for it in self.items:
            if isinstance(it, WaitVM):
                h = it.h
                if h in vm:
                    n = len(vm) - 1 - vm.index(h)
                    assert n <= 63, "vmcnt overflow"
                    emit_wait(vmn=n); retire_vm(n)
                continue
            if isinstance(it, WaitLGKM):
                h = it.h
                if h in lg:
                    n = len(lg) - 1 - lg.index(h)
                    emit_wait(lgn=min(n, 15)); retire_lg(min(n, 15))
                continue
            k = it.kind
            if it.meta.get('raw'):
                out.append(it); continue
            if k == 'label' or k == 'branch':
                if it.meta.get('keep'):
                    out.append(it); continue
                if pend and it.op != 's_endpgm':
                    needv = any(p[0] == 'vm' for p in pend.values())
                    needl = any(p[0] in ('lg', 'sm') for p in pend.values())
                    emit_wait(vmn=0 if needv else None, lgn=0 if needl else None)
                    if needv: retire_vm(0)
                    if needl: retire_lg(0)
                out.append(it)
                continue
            if k == 'wait':
                m = re.search(r'vmcnt\((\d+)\)', it.text)
                if m: retire_vm(int(m.group(1)))
                m = re.search(r'lgkmcnt\((\d+)\)', it.text)
                if m:
                    retire_lg(int(m.group(1)))
                    if int(m.group(1)) == 0: smem_out = False
                out.append(it)
                continue
            if auto_wait and not it.meta.get('notrack'):
                vmn = None; lgn = None
                for r in list(it.rd) + list(it.wr):
                    p = pend.get(r)
                    if p is None: continue
                    if p[0] == 'vm':
                        n = len(vm) - 1 - vm.index(p[1])
                        vmn = n if vmn is None else min(vmn, n)
                    elif p[0] == 'lg':
                        n = len(lg) - 1 - lg.index(p[1])
                        lgn = n if lgn is None else min(lgn, n)
                    elif p[0] == 'sm':
                        lgn = 0
                if vmn is not None or lgn is not None:
                    if vmn is not None: vmn = min(vmn, 63)
                    if lgn is not None:
                        lgn = min(lgn, 15)
                        if smem_out: lgn = 0
                    emit_wait(vmn, lgn)
                    if vmn is not None: retire_vm(vmn)
                    if lgn is not None:
                        retire_lg(lgn)
                        if lgn == 0:
                            smem_out = False
                            for r in [r for r, p in pend.items() if p[0] == 'sm']: del pend[r]
            out.append(it)
            if k in ('vload', 'dma', 'vstore'):
                vm.append(it)
                if not it.meta.get('notrack'):
                    for r in it.wr: pend[r] = ('vm', it)
            elif k in ('ds_read', 'ds_write'):
                lg.append(it)
                for r in it.wr: pend[r] = ('lg', it)
            elif k == 'smem':
                smem_out = True
                for r in it.wr: pend[r] = ('sm', it)
        out = self._hazards(out, report_nops)
        self.final = out
        return out

    def _hazards(self, ins, report):
        out = []
        pos = 0
        last_valu_w = {}
        last_trans_w = {}
        last_mfma_w = {}
        last_mfma_c = {}
        last_salu_m0 = -100
        last_valu_sg = {}
        last_store_data = {}
        last_valu_exec = -100
        nops = 0
        for it in ins:
            k = it.kind
            if k == 'label':
                out.append(it); continue
            need = 0

            def req(p, n):
                nonlocal need
                need = max(need, p + n + 1)

            isvalu = k in ('valu', 'trans', 'perm')
            ismfma = k in ('mfma16', 'mfma32')
            ismem = k in ('ds_read', 'ds_write', 'vload', 'dma', 'vstore')
            if ismfma:
                for r in it.rd:
                    if r in last_valu_w: req(last_valu_w[r], 2)
                for r in it.srcab:
                    if r in last_mfma_w:
                        p, ps, d = last_mfma_w[r]; req(p, {4: 8, 8: 12}[ps])
                for r in it.srcc:
                    if r in last_mfma_w:
                        p, ps, d = last_mfma_w[r]
                        mine = 4 if k == 'mfma16' else 8
                        if tuple(it.srcc) == d and ps == mine: pass
                        else: req(p, {4: 6, 8: 10}[ps])
                for r in it.wr:
                    if r in last_mfma_w and r not in it.srcc:
                        p, ps, d = last_mfma_w[r]; req(p, {4: 6, 8: 10}[ps])
                req(last_valu_exec, 4)
            if isvalu or ismem:
                regs = list(it.rd) + list(it.wr)
                for r in regs:
                    if r in last_mfma_w:
                        p, ps, d = last_mfma_w[r]; req(p, {4: 8, 8: 12}[ps])
            if isvalu:
                for r in it.wr:
                    if r in last_mfma_c:
                        p, ps = last_mfma_c[r]; req(p, {4: 3, 8: 7}[ps])
                    if r in last_store_data: req(last_store_data[r], 2)
                if k != 'trans':
                    for r in it.rd:
                        if r in last_trans_w: req(last_trans_w[r], 1)
                if k == 'perm' or it.meta.get('dpp'):
                    for r in it.rd:
                        if r in last_valu_w: req(last_valu_w[r], 2)
                    if it.meta.get('dpp'): req(last_valu_exec, 5)
                if it.meta.get('readlane'):
                    for r in it.rd:
                        if r in last_valu_w: req(last_valu_w[r], 1)
                        if r in last_valu_sg: req(last_valu_sg[r], 4)
                for r in it.rd:
                    if r in last_valu_sg: req(last_valu_sg[r], 2)
            if k in ('vload', 'ds_read'):
                for r in it.wr:
                    if r in last_store_data: req(last_store_data[r], 1)
            if k in ('vload', 'dma', 'vstore'):
                for r in it.rd:
                    if r in last_valu_sg: req(last_valu_sg[r], 5)
                if k == 'dma': req(last_salu_m0, 1)
            if k in ('salu', 'branch'):
                for r in it.rd:
                    if r in last_valu_sg: req(last_valu_sg[r], 4)
                if k == 'branch' and 'vcc' in it.op and ('vcc', 0) in last_valu_sg:
                    req(last_valu_sg[('vcc', 0)], 5)
                if k == 'branch' and 'exec' in it.op:
                    req(last_valu_exec, 5)
            if need > pos:
                n = need - pos
                nops += n
                if report:
                    print(f"  [hazard] inserting {n} nop states before: {it.text}")
                while n > 0:
                    q = min(n, 16)
                    out.append(Ins(f"s_nop {q-1}"))
                    n -= q
                pos = need
            out.append(it)
            if isvalu:
                for r in it.wr:
                    if r[0] in ('v', 'a'):
                        last_valu_w[r] = pos
                        if k == 'trans': last_trans_w[r] = pos
                        else: last_trans_w.pop(r, None)
                        last_mfma_w.pop(r, None)
                    elif r[0] in ('s', 'vcc'):
                        last_valu_sg[r] = pos
                    elif r[0] == 'exec':
                        last_valu_exec = pos
            if ismfma:
                ps = 4 if k == 'mfma16' else 8
                d = tuple(it.wr)
                for r in it.wr:
                    last_mfma_w[r] = (pos, ps, d)
                    last_valu_w.pop(r, None); last_trans_w.pop(r, None)
                for r in it.srcc: last_mfma_c[r] = (pos, ps)
            if k in ('vload', 'ds_read'):
                for r in it.wr:
                    last_valu_w.pop(r, None); last_trans_w.pop(r, None); last_mfma_w.pop(r, None)
            if k == 'salu':
                if ('m0', 0) in it.wr: last_salu_m0 = pos
                for r in it.wr:
                    last_valu_sg.pop(r, None)
            if k == 'smem':
                for r in it.wr: last_valu_sg.pop(r, None)
            if k == 'vstore' and it.meta.get('wide'):
                for r in it.meta['data']: last_store_data[r] = pos
            pos += it.meta['n'] if k == 'nop' else 1
        self.nops = nops
        return out

    def text(self):
        lines = []
        for it in self.final:
            lines.append(it.text if it.kind == 'label' else "  " + it.text)
        return "\n".join(lines) + "\n"

    def estimate(self, lo=0, hi=None):
        t = 0; pipe = 0; nm = 0; busy = 0
        for it in self.final[lo:hi]:
            k = it.kind
            if k in ('mfma16', 'mfma32'):
                d = 16 if k == 'mfma16' else 32
                st = max(t, pipe)
                pipe = st + d; t = st + 8; nm += 1; busy += d
            else:
                t += it.cost()
        return max(t, pipe), busy


def cls(ins):
    if not isinstance(ins, Ins): return 'salu'
    k = ins.kind
    if k in ('ds_read', 'ds_write', 'vload', 'vstore', 'dma'): return 'mem'
    if k in ('valu', 'trans', 'perm'): return 'valu'
    return 'salu'


def weave(backbone, streams, budget=None, max_mem=1, reserve=None):
    res = []
    ptr = [0] * len(streams)
    n = len(backbone)
    for i in range(-1, n):
        if i >= 0: res.append(backbone[i])
        if budget is None:
            bud = 8 if (i < 0 or backbone[i].kind == 'mfma16') else 24
            mm = max_mem if (i < 0 or backbone[i].kind == 'mfma16') else max(2, max_mem)
        else:
            bud = budget; mm = max_mem
        if reserve: bud -= reserve.get(i, 0)
        used = 0; nmem = 0; nds = 0; free_salu = 1 if i >= 0 else 0; first = True
        for phase in (0, 1):
            while True:
                best = None
                for si, st in enumerate(streams):
                    if ptr[si] >= len(st): continue
                    ins, e, l = st[ptr[si]]
                    if e > i: continue
                    c = cls(ins)
                    must = l <= i
                    if phase == 0 and c == 'valu': continue
                    if phase == 1 and c != 'valu' and not must: continue
                    cost = ins.cost() if isinstance(ins, Ins) else 4
                    if c == 'salu' and free_salu > 0 and first: cost = 0
                    isds = isinstance(ins, Ins) and ins.kind in ('ds_read', 'ds_write')
                    if not must:
                        if used + cost > bud: continue
                        if c == 'mem' and nmem >= mm: continue
                        if isds and nds >= (1 if bud <= 8 else 2): continue
                    key = (l, 0 if (c == 'salu' and first) else 1, si)
                    if best is None or key < best[0]: best = (key, si, cost, c, isds)
                if best is None: break
                _, si, cost, c, isds = best
                res.append(streams[si][ptr[si]][0]); ptr[si] += 1; used += cost
                if c == 'mem': nmem += 1
                if isds: nds += 1
                if c == 'salu' and cost == 0: free_salu -= 1
                first = False
    for si, st in enumerate(streams):
        while ptr[si] < len(st):
            res.append(st[ptr[si]][0]); ptr[si] += 1
    return res


def space_vm(groups, gap, nslots):
    ops = []
    for gi, (lo, hi, L, D) in enumerate(groups):
        pre = list(L)
        for d in D:
            if cls(d) != 'mem': pre.append(d); continue
            ops.append([lo, hi, gi, pre, d, len(ops)]); pre = []
    placed = []
    remaining = ops[:]
    cur = min((o[0] for o in ops), default=0)
    started = set()
    while remaining:
        cand = [o for o in remaining if o[0] <= cur]
        open_ = {}
        for o in remaining:
            if o[2] in started: open_[o[4].kind] = o[2]
        cand = [o for o in cand if open_.get(o[4].kind, o[2]) == o[2]]
        if not cand:
            cur = max(cur + 1, min(o[0] for o in remaining)); continue
        o = min(cand, key=lambda o: (o[1], o[5]))
        placed.append((cur, o[3], o[4], o[2])); remaining.remove(o); started.add(o[2])
        nxt = cur + gap
        if remaining:
            dl = sorted(x[1] for x in remaining)
            for idx, dd in enumerate(dl[:12]):
                if nxt + idx*gap > dd:
                    nxt = max(cur + 1, min(nxt, dd - idx*gap))
        cur = nxt
    return placed
```

```python
from asmgen import *

WS_MOD  = 0x0
WS_HF   = 0x40000
WS_OF   = 0x400000
WS_PART = 0x2000000
WS_X1   = 0x3800000
WS_H2F  = 0x4000000
WS_ACT  = 0x4400000
WS_WD   = 0x4C00000
WS_WGU  = 0x4700000
WS_CNT  = 0x30000
WS_STAMP= 0x5000000
WS_DBG  = 0x6000000
WS_BYTES = 268435456

WQ_BASE = 0;      WQ_NS = 5;  WQ_ST = 12288
K_BASE  = 36864;  K_NS = 5;   K_ST = 12288
V_BASE  = 98304;  V_NS = 4;   V_ST = 16384
LDS_BYTES = 163840
BIAS = 4096

sWQ, sK, sV, sWS = 8, 12, 16, 20
sHEAD, sRB, sW = 24, 25, 26
sM0WQ, sM0K, sM0V = 27, 28, 29
sOFF = 30
sOFH = 31
sT0, sT1, sT2, sT3 = 32, 33, 34, 35
sSLOW = 36
sTS = 76

vWQD = 1
vKD  = 4
vVD  = 7
vWQT = 11
vKF  = 15
vVT  = 19
vHO  = 23
vT0, vT1, vT2, vT3 = 60, 61, 62, 63
QACC = 64
QF = 64
SB = [160, 192]
RING = 192
OACC = [64, 160]
LACC = 128
RINV = 144

def P_reg(kt, ct):
    if kt < 12: return ('a', kt*16 + ct*4)
    if kt < 14: return ('v', 28 + (kt-12)*16 + ct*4)
    return ('v', 224 + (kt-14)*16 + ct*4)

def prologue(P, stamps=False):
    e = P.e
    e("s_cmp_ge_u32 s2, 256")
    e("s_cbranch_scc1 K2_END")
    e("s_load_dwordx2 s[4:5], s[0:1], 24")
    e("s_load_dwordx2 s[6:7], s[0:1], 104")
    e("s_load_dwordx4 s[44:47], s[0:1], 8")
    e("s_load_dwordx2 s[68:69], s[0:1], 32")
    e("s_load_dwordx4 s[72:75], s[0:1], 48")
    e("s_load_dwordx2 s[70:71], s[0:1], 64")
    e("v_lshrrev_b32 v2, 6, v0")
    e("v_and_b32 v0, 63, v0")
    e("v_readfirstlane_b32 s26, v2")
    e("s_and_b32 s24, s2, 7"); e("s_lshl_b32 s24, s24, 2")
    e("s_lshr_b32 s3, s2, 3"); e("s_and_b32 s3, s3, 3"); e("s_add_u32 s24, s24, s3")
    e("s_lshr_b32 s25, s2, 5")
    e(f"v_lshrrev_b32 v{vT0}, 3, v0")
    e(f"v_and_b32 v{vT1}, 7, v0")
    e(f"v_lshrrev_b32 v{vT2}, 4, v0")
    e(f"v_lshlrev_b32 v{vT3}, 1, v{vT2}")
    e(f"v_xor_b32 v{vT3}, v{vT3}, v{vT1}")
    e(f"v_lshlrev_b32 v{vT3}, 4, v{vT3}")
    e("s_lshl_b32 s3, s26, 3")
    e(f"v_add_u32 v{vWQD}, s3, v{vT0}")
    e("s_mov_b32 s37, 12288")
    e(f"v_mul_lo_u32 v{vWQD}, v{vWQD}, s37")
    e(f"v_add_u32 v{vWQD}, v{vWQD}, v{vT3}")
    e(f"v_add_u32 v{vWQD}, {BIAS}, v{vWQD}")
    e(f"v_add_u32 v{vWQD+1}, {128-1024}, v{vWQD}")
    e(f"v_add_u32 v{vWQD+2}, {256-2048}, v{vWQD}")
    e("s_lshl_b32 s3, s25, 4"); e("s_lshl_b32 s37, s26, 2"); e("s_add_u32 s38, s3, s37")
    e("s_mul_i32 s3, s38, 20480"); e(f"s_add_u32 s3, s3, {WS_HF}")
    e(f"v_lshlrev_b32 v{vHO}, 4, v0")
    e(f"v_add_u32 v{vHO}, s3, v{vHO}")
    for ct in range(1, 4):
        e(f"v_add_u32 v{vHO+ct}, {ct*20480}, v{vHO}")
    e(f"s_mul_i32 s{sM0WQ}, s26, 3072")
    e("s_mul_i32 s3, s24, 384")
    e("s_waitcnt lgkmcnt(0)")
    e(f"s_add_u32 s{sWQ}, s4, s3"); e(f"s_addc_u32 s{sWQ+1}, s5, 0")
    e(f"s_sub_u32 s{sWQ}, s{sWQ}, {BIAS}"); e(f"s_subb_u32 s{sWQ+1}, s{sWQ+1}, 0")
    e(f"s_sub_u32 s{sWQ+2}, {7864320+BIAS}, s3"); e(f"s_mov_b32 s{sWQ+3}, 0x20000")
    e(f"s_mov_b32 s{sWS}, s6"); e(f"s_mov_b32 s{sWS+1}, s7")
    e(f"s_mov_b32 s{sWS+2}, {WS_BYTES}"); e(f"s_mov_b32 s{sWS+3}, 0x20000")

def prologue2(P):
    e = P.e
    e(f"v_lshrrev_b32 v{vT0}, 2, v0"); e(f"v_and_b32 v{vT0}, 3, v{vT0}")
    e(f"v_and_b32 v{vT1}, 3, v0"); e(f"v_lshlrev_b32 v{vT1}, 3, v{vT1}")
    e(f"v_and_b32 v{vWQT}, 1, v{vT2}"); e(f"v_lshlrev_b32 v{vWQT}, 2, v{vWQT}")
    e(f"v_add_u32 v{vWQT}, v{vWQT}, v{vT0}")
    e(f"v_lshrrev_b32 v{vWQT+1}, 1, v{vWQT}")
    e(f"v_lshlrev_b32 v{vWQT}, 7, v{vWQT}")
    e(f"v_lshrrev_b32 v{vWQT+2}, 1, v{vT2}")
    e(f"v_mul_u32_u24 v{vWQT+2}, 3072, v{vWQT+2}")
    e(f"v_add_u32 v{vWQT}, v{vWQT}, v{vWQT+2}")
    e(f"v_add_u32 v{vWQT}, v{vWQT}, v{vT1}")
    e(f"v_lshlrev_b32 v{vWQT+1}, 5, v{vWQT+1}")
    for tp in (3, 2):
        e(f"v_xor_b32 v{vT3}, {tp<<5}, v{vWQT+1}")
        e(f"v_add_u32 v{vWQT+tp}, v{vWQT}, v{vT3}")
    e(f"v_xor_b32 v{vT3}, {1<<5}, v{vWQT+1}")
    e(f"v_add_u32 v{vT3}, v{vWQT}, v{vT3}")
    e(f"v_add_u32 v{vWQT}, v{vWQT}, v{vWQT+1}")
    e(f"v_mov_b32 v{vWQT+1}, v{vT3}")
    e(f"v_lshrrev_b32 v{vVT}, 1, v{vT2}"); e(f"v_lshlrev_b32 v{vVT}, 2, v{vVT}")
    e(f"v_add_u32 v{vVT}, v{vVT}, v{vT0}")
    e(f"v_lshrrev_b32 v{vVT+1}, 1, v{vVT}"); e(f"v_and_b32 v{vVT+1}, 1, v{vVT+1}")
    e(f"v_and_b32 v{vVT+2}, 1, v{vT2}")
    e(f"v_lshlrev_b32 v{vVT+3}, 1, v{vVT+2}")
    e(f"v_or_b32 v{vVT+1}, v{vVT+1}, v{vVT+3}")
    e(f"v_lshlrev_b32 v{vVT+1}, 5, v{vVT+1}")
    e(f"v_lshlrev_b32 v{vVT}, 7, v{vVT}")
    e(f"v_lshlrev_b32 v{vVT+2}, 10, v{vVT+2}")
    e(f"v_add_u32 v{vVT}, v{vVT}, v{vVT+2}")
    e(f"v_add_u32 v{vVT}, v{vVT}, v{vT1}")
    e(f"v_add_u32 v{vVT}, {V_BASE}, v{vVT}")
    for tp in (3, 2):
        e(f"v_xor_b32 v{vT3}, {tp<<5}, v{vVT+1}")
        e(f"v_add_u32 v{vVT+tp}, v{vVT}, v{vT3}")
    e(f"v_xor_b32 v{vT3}, {1<<5}, v{vVT+1}")
    e(f"v_add_u32 v{vT3}, v{vVT}, v{vT3}")
    e(f"v_add_u32 v{vVT}, v{vVT}, v{vVT+1}")
    e(f"v_mov_b32 v{vVT+1}, v{vT3}")

def prologue3():
    L = []
    e = lambda t: L.append(Ins(t))
    T0, T1, T2, T3 = 56, 57, 58, 59
    e(f"v_lshrrev_b32 v{T0}, 3, v0"); e(f"v_and_b32 v{T1}, 7, v0"); e(f"v_lshrrev_b32 v{T2}, 4, v0")
    e("s_lshl_b32 s3, s26, 3")
    e(f"v_add_u32 v{vKD}, s3, v{T0}")
    e(f"v_lshrrev_b32 v{T3}, 1, v{vKD}"); e(f"v_and_b32 v{T3}, 7, v{T3}"); e(f"v_xor_b32 v{T3}, v{T3}, v{T1}"); e(f"v_lshlrev_b32 v{T3}, 4, v{T3}")
    e(f"v_mul_u32_u24 v{vKD}, 384, v{vKD}"); e(f"v_add_u32 v{vKD}, v{vKD}, v{T3}"); e(f"v_add_u32 v{vKD}, {BIAS}, v{vKD}")
    e(f"v_add_u32 v{vKD+1}, {128-1024}, v{vKD}"); e(f"v_add_u32 v{vKD+2}, {256-2048}, v{vKD}")
    e(f"v_and_b32 v{T3}, 1, v{T2}"); e(f"v_lshlrev_b32 v{T3}, 1, v{T3}"); e(f"v_xor_b32 v{T3}, v{T3}, v{T1}")
    e("s_lshl_b32 s3, s26, 5")
    e(f"v_add_u32 v{vVD}, s3, v{T0}"); e(f"v_mul_u32_u24 v{vVD}, 384, v{vVD}"); e(f"v_add_u32 v{vVD}, {BIAS}, v{vVD}")
    e(f"v_xor_b32 v{vVD+1}, 4, v{T3}"); e(f"v_lshlrev_b32 v{vVD+1}, 4, v{vVD+1}"); e(f"v_lshlrev_b32 v{T3}, 4, v{T3}")
    e(f"v_add_u32 v{vVD+1}, v{vVD+1}, v{vVD}"); e(f"v_add_u32 v{vVD}, v{vVD}, v{T3}")
    e(f"v_add_u32 v{vVD+2}, {2*3072-2*1024}, v{vVD}"); e(f"v_add_u32 v{vVD+3}, {3*3072-3*1024}, v{vVD+1}"); e(f"v_add_u32 v{vVD+1}, {1*3072-1*1024}, v{vVD+1}")
    e(f"v_and_b32 v{T0}, 31, v0")
    e(f"v_lshrrev_b32 v{T1}, 3, v{T0}"); e(f"v_mul_u32_u24 v{T1}, 3072, v{T1}")
    e(f"v_and_b32 v{T3}, 7, v{T0}"); e(f"v_lshlrev_b32 v{T3}, 7, v{T3}")
    e(f"v_add_u32 v{T1}, v{T1}, v{T3}"); e(f"v_add_u32 v{T1}, {K_BASE}, v{T1}")
    e(f"v_lshrrev_b32 v{T0}, 1, v{T0}"); e(f"v_and_b32 v{T0}, 7, v{T0}")
    e(f"v_lshrrev_b32 v{T3}, 5, v0"); e(f"v_xor_b32 v{T0}, v{T0}, v{T3}")
    for s4 in range(4):
        e(f"v_xor_b32 v{T3}, {2*s4}, v{T0}"); e(f"v_lshlrev_b32 v{T3}, 4, v{T3}"); e(f"v_add_u32 v{vKF+s4}, v{T1}, v{T3}")
    e(f"s_add_u32 s{sM0K}, s{sM0WQ}, {K_BASE}")
    e(f"s_lshl_b32 s{sM0V}, s26, 12"); e(f"s_add_u32 s{sM0V}, s{sM0V}, {V_BASE}")
    e("s_mul_i32 s3, s24, 786432"); e(f"s_add_u32 s3, s3, {1536*384-BIAS}")
    e(f"s_add_u32 s{sK}, s44, s3"); e(f"s_addc_u32 s{sK+1}, s45, 0")
    e(f"s_mov_b32 s{sK+2}, {512*384+BIAS}"); e(f"s_mov_b32 s{sK+3}, 0x20000")
    e(f"s_add_u32 s{sV}, s46, s3"); e(f"s_addc_u32 s{sV+1}, s47, 0")
    e(f"s_mov_b32 s{sV+2}, {512*384+BIAS}"); e(f"s_mov_b32 s{sV+3}, 0x20000")
    for base, lo, n in ((52, 68, 7864320), (56, 72, 1966080), (60, 74, 1966080), (64, 70, 1966080)):
        e(f"s_mov_b32 s{base}, s{lo}"); e(f"s_mov_b32 s{base+1}, s{lo+1}"); e(f"s_mov_b32 s{base+2}, {n}"); e(f"s_mov_b32 s{base+3}, 0x20000")
    return L

sPFV, sPFO, sPFW, sPFT = 96, 97, 98, 99
def touch_setup():
    return [Ins("v_lshlrev_b32 v27, 7, v0"), Ins("v_mov_b32 v59, 0x7ff00000"), Ins("v_cmp_gt_u32 vcc, 16, v0"), Ins("s_nop 1"),
            Ins("v_cndmask_b32 v27, v59, v27, vcc"),
            Ins(f"s_mul_i32 s{sPFV}, s25, 24576"), Ins(f"s_mul_i32 s{sPFT}, s26, 6144"), Ins(f"s_add_u32 s{sPFV}, s{sPFV}, s{sPFT}"), Ins(f"s_add_u32 s{sPFV}, s{sPFV}, {BIAS}"),
            Ins(f"s_lshl_b32 s{sPFT}, s2, 2"), Ins(f"s_add_u32 s{sPFT}, s{sPFT}, s26"),
            Ins(f"s_mul_i32 s{sPFO}, s{sPFT}, 7680"), Ins(f"s_mul_i32 s{sPFW}, s{sPFT}, 1920")]
def touch16(kind, i, dst='a191'):
    if kind == 'v': base, srd_ = sPFV, sV
    elif kind == 'k': base, srd_ = sPFV, sK
    elif kind == 'wo': base, srd_ = sPFO, 52
    else: base, srd_ = sPFW, {'wg': 56, 'wu': 60, 'wd': 64}[kind]
    return [Ins(f"s_add_u32 s{sPFT}, s{base}, {i*2048}"), NT(f"buffer_load_dword {dst}, v27, s[{srd_}:{srd_+3}], s{sPFT} offen")]

PFS = 64
def pf_kv():
    L = [Ins(f"s_mul_i32 s{sT0}, s25, 24576"), Ins(f"s_mul_i32 s{sT1}, s26, 6144"), Ins(f"s_add_u32 s{sT0}, s{sT0}, s{sT1}"),
         Ins(f"s_add_u32 s{sT0}, s{sT0}, {BIAS}"), Ins(f"v_mul_u32_u24 v29, {PFS}, v0"), Ins(f"v_add_u32 v29, s{sT0}, v29")]
    n = -(-6144 // (64*PFS))
    D = []
    for srd_ in (sK, sV):
        for i in range(n):
            D.append(Ins(f"v_add_u32 v30, {i*64*PFS}, v29"))
            D.append(Ins(f"buffer_load_dword v28, v30, s[{srd_}:{srd_+3}], 0 offen"))
    return L + D

def pf_wo():
    return [Ins(f"s_lshl_b32 s{sT0}, s2, 2"), Ins(f"s_add_u32 s{sT0}, s{sT0}, s26"), Ins(f"s_mul_i32 s{sT1}, s{sT0}, 7680"),
            Ins(f"v_lshlrev_b32 v31, {OPT.get('pfshift', 7)}, v0"), Ins(f"v_add_u32 v31, s{sT1}, v31"),
            NT(f"buffer_load_dword v28, v31, s[52:55], 0 offen")] + ([Ins("v_add_u32 v31, 4096, v31"), NT(f"buffer_load_dword v28, v31, s[52:55], 0 offen")] if OPT.get('pfshift', 7) == 6 else [])

def pf_weights():
    L = [Ins(f"s_lshl_b32 s{sT0}, s2, 2"), Ins(f"s_add_u32 s{sT0}, s{sT0}, s26"),
         Ins(f"v_mul_u32_u24 v31, {PFS}, v0"),
         Ins(f"s_mul_i32 s{sT1}, s{sT0}, 7680"), Ins(f"v_add_u32 v32, s{sT1}, v31")]
    for i in range(-(-7680 // (64*PFS))):
        L.append(Ins(f"v_add_u32 v30, {i*64*PFS}, v32"))
        L.append(Ins(f"buffer_load_dword v28, v30, s[52:55], 0 offen"))
    L += [Ins(f"s_mul_i32 s{sT1}, s{sT0}, 1920"), Ins(f"v_add_u32 v32, s{sT1}, v31")]
    for srd_ in (56, 60, 64):
        L.append(Ins(f"buffer_load_dword v28, v32, s[{srd_}:{srd_+3}], 0 offen"))
    return L

def dma_wq(ks):
    slot = ks % WQ_NS
    L = [Ins(f"s_add_u32 m0, s{sM0WQ}, {WQ_BASE + slot*WQ_ST}"),
         Ins(f"s_mov_b32 s{sOFF}, {ks*32*12288}")]
    D = [Ins(f"buffer_load_dwordx4 v{vWQD+q}, s[{sWQ}:{sWQ+3}], s{sOFF} offen offset:{q*1024} lds") for q in range(3)]
    return L, D

def k_slot(kt): return (kt + 2) % K_NS
def dma_k(kt):
    L = [Ins(f"s_add_u32 m0, s{sM0K}, {k_slot(kt)*K_ST}"),
         Ins(f"s_mov_b32 s{sOFF}, {kt*12288}")]
    D = [Ins(f"buffer_load_dwordx4 v{vKD+q}, s[{sK}:{sK+3}], s{sOFF} offen offset:{q*1024} lds") for q in range(3)]
    return L, D

def dma_v(st):
    G, kb = st // 4, st % 4
    L = [Ins(f"s_add_u32 m0, s{sM0V}, {(st % V_NS)*V_ST}"),
         Ins(f"s_mov_b32 s{sOFF}, {kb*128*384 + G*128}")]
    D = [Ins(f"buffer_load_dwordx4 v{vVD+i}, s[{sV}:{sV+3}], s{sOFF} offen offset:{i*1024} lds") for i in range(4)]
    return L, D

def HS(): return int(OPT.get('hsets', 4))
def load_h(ks):
    L = [Ins(f"s_mov_b32 s{sOFH}, {ks*1024}")]
    base = (ks % HS())*16
    D = [Ins(f"buffer_load_dwordx4 a[{base+4*ct}:{base+4*ct+3}], v{vHO+ct}, s[{sWS}:{sWS+3}], s{sOFH} offen") for ct in range(4)]
    return L, D

def tr_wq(n):
    ks, t = divmod(n, 12)
    slot = n % 16
    q, tp = t >> 2, t & 3
    off = WQ_BASE + (ks % WQ_NS)*WQ_ST + q*1024
    r = RING + slot*4
    return [Ins(f"ds_read_b64_tr_b16 a[{r}:{r+1}], v{vWQT+tp} offset:{off}"),
            Ins(f"ds_read_b64_tr_b16 a[{r+2}:{r+3}], v{vWQT+tp} offset:{off+6144}")]

OPT = dict(dma=True, hload=True, barrier=True, tr=True, pfcode=False)
def k_frag(n):
    kt, s_ = divmod(n, 12)
    r = RING + (n % 16)*4
    off = k_slot(kt)*K_ST + (s_ >> 2)*1024
    return Ins(f"ds_read_b128 a[{r}:{r+3}], v{vKF + (s_ & 3)} offset:{off}")

def softmax_stream(kt, mode='exp'):
    L = []
    buf = SB[kt & 1]
    toA = P_reg(kt, 0)[0] == 'a'
    for cb in range(2):
        Sx = buf + 16*cb
        if toA:
            A_ = [Sx+0, Sx+2, Sx+8, Sx+10]; B_ = [Sx+4, Sx+6, Sx+12, Sx+14]
        else:
            pa = P_reg(kt, 2*cb)[1]; pb = P_reg(kt, 2*cb+1)[1]
            A_ = [pa+i for i in range(4)]; B_ = [pb+i for i in range(4)]
        E = lambda i: Ins(f"v_exp_f32 v{Sx+i}, v{Sx+i}")
        C = lambda d, i: Ins(f"v_cvt_pk_bf16_f32 v{d}, v{Sx+i}, v{Sx+i+1}")
        SW = lambda i: Ins(f"v_permlane16_swap_b32 v{A_[i]}, v{B_[i]}")
        def W(i):
            if not toA: return []
            pa = P_reg(kt, 2*cb)[1]; pb = P_reg(kt, 2*cb+1)[1]
            return [Ins(f"v_accvgpr_write_b32 a{pa+i}, v{A_[i]}"), Ins(f"v_accvgpr_write_b32 a{pb+i}, v{B_[i]}")]
        L += [E(0), E(1), E(2), E(3), E(4), E(5), C(A_[0], 0), C(A_[1], 2), E(6), E(7), C(B_[0], 4), E(8), E(9), C(B_[1], 6),
              E(10), E(11), SW(0), C(A_[2], 8), SW(1), E(12), E(13), C(A_[3], 10), E(14), E(15)]
        L += W(0) + [C(B_[2], 12), C(B_[3], 14)] + W(1) + [SW(2), SW(3)]
        L += W(2) + W(3)
    return L

def phase2(P, handles):
    PF = 4
    for kt in range(16):
        bb = []
        buf = SB[kt & 1]
        for s_ in range(12):
            n = 12*kt + s_
            ar = RING + (n % 16)*4
            for cb in range(2):
                d = buf + 16*cb
                q = QF + 8*s_ + 4*cb
                c = f"v[{d}:{d+15}]" if s_ > 0 else "0"
                bb.append(Ins(f"v_mfma_f32_32x32x16_bf16 v[{d}:{d+15}], a[{ar}:{ar+3}], v[{q}:{q+3}], {c}"))
        s_rd, s_dma, s_sm = [], [], []
        for s_ in range(12):
            n = 12*kt + s_ + PF
            lo = 2*s_
            if n < 12*16:
                if s_ == 8:
                    s_rd.append((WaitVM(handles['k'][kt+1]), lo-1, lo-1))
                    s_rd.append((Ins("s_barrier"), lo-1, lo-1))
                s_rd.append((k_frag(n), lo, lo+1))
            else:
                m = n - 192
                if m == 0:
                    s_rd.append((WaitVM(handles['v'][0]), lo-1, lo-1))
                    s_rd.append((Ins("s_barrier"), lo-1, lo-1))
                a, b = tr_v(m)
                s_rd.append((a, lo, lo+1)); s_rd.append((b, lo, lo+1))
        if kt + 4 < 16:
            L, D = dma_k(kt+4)
            handles['k'][kt+4] = D[-1]
            s_dma += [(L[0], 16, 18), (L[1], 16, 18)] + [(d, 17+2*i, 19+2*i) for i, d in enumerate(D)]
        elif kt >= 12 and kt <= 14:
            L, D = dma_v(kt-12)
            handles['v'][kt-12] = D[-1]
            s_dma += [(L[0], 2, 18), (L[1], 2, 18)] + [(d, 4+4*i, 22) for i, d in enumerate(D)]
        if kt > 0:
            sm = softmax_stream(kt-1)
            if kt == 2 and OPT.get('pf') == 'wo': sm = pf_wo() + sm
            n = len(sm)
            for i, x in enumerate(sm):
                s_sm.append((x, 2, 23))
        P.many(weave(bb, [s_rd, s_dma, s_sm], 24, max_mem=1))

def tr_v(m):
    G, rem = divmod(m, 64)
    kt, tp = divmod(rem, 4)
    st = 4*G + (kt >> 2)
    off = (st % V_NS)*V_ST + (kt & 3)*4096
    r = RING + ((192 + m) % 16)*4
    return [Ins(f"ds_read_b64_tr_b16 a[{r}:{r+1}], v{vVT+tp} offset:{off}"),
            Ins(f"ds_read_b64_tr_b16 a[{r+2}:{r+3}], v{vVT+tp} offset:{off+2048}")]

ONES = 60

def o_epilogue(G):
    L = []
    ob = OACC[G & 1]
    for u in range(2):
        L.append(Ins(f"s_mov_b32 s{sOFH}, {(2*G+u)*1024}"))
        for ct in range(4):
            x = ob + ((2*u)*4 + ct)*4; y = ob + ((2*u+1)*4 + ct)*4
            for i in range(4): L.append(Ins(f"v_mul_f32 v{x+i}, v{RINV+ct}, v{x+i}"))
            for i in range(4): L.append(Ins(f"v_mul_f32 v{y+i}, v{RINV+ct}, v{y+i}"))
            L.append(Ins(f"v_cvt_pk_bf16_f32 v{x}, v{x}, v{x+1}"))
            L.append(Ins(f"v_cvt_pk_bf16_f32 v{x+1}, v{x+2}, v{x+3}"))
            L.append(Ins(f"v_cvt_pk_bf16_f32 v{x+2}, v{y}, v{y+1}"))
            L.append(Ins(f"v_cvt_pk_bf16_f32 v{x+3}, v{y+2}, v{y+3}"))
            L.append(Ins(f"buffer_store_dwordx4 v[{x}:{x+3}], v{vHO+ct}, s[{sWS}:{sWS+3}], s{sOFH} offen sc1"))
    return L

def phase3(P, handles):
    PF = 4
    for G in range(3):
        ob = OACC[G & 1]
        pre = []
        epi = []
        if G == 1:
            for ct in range(4): epi.append(Ins(f"v_rcp_f32 v{RINV+ct}, v{LACC+4*ct}"))
        if G >= 1: epi += o_epilogue(G-1)
        nslots_total = 16*16
        epi_ptr = 0
        for kt in range(16):
            bb = []
            for tp in range(4):
                m = 64*G + 4*kt + tp
                ar = RING + ((192 + m) % 16)*4
                for ct in range(4):
                    d = ob + (tp*4 + ct)*4
                    p = P_reg(kt, ct)
                    c = f"v[{d}:{d+3}]" if kt > 0 else "0"
                    bb.append(Ins(f"v_mfma_f32_16x16x32_bf16 v[{d}:{d+3}], a[{ar}:{ar+3}], {R(p,4)}, {c}"))
            if G == 0:
                for ct in range(4):
                    d = LACC + 4*ct
                    p = P_reg(kt, ct)
                    c = f"v[{d}:{d+3}]" if kt > 0 else "0"
                    bb.append(Ins(f"v_mfma_f32_16x16x32_bf16 v[{d}:{d+3}], v[{ONES}:{ONES+3}], {R(p,4)}, {c}"))
            s_rd, s_dma, s_x = [], [], []
            st = 4*G + (kt >> 2)
            for tp in range(4):
                m = 64*G + 4*kt + tp + PF
                if m >= 192: continue
                lo = 4*tp
                if tp == 0 and (kt & 3) == 3:
                    s_rd.append((WaitVM(handles['v'][st+1]), -1, -1))
                    s_rd.append((Ins("s_barrier"), -1, -1))
                a, b = tr_v(m)
                s_rd.append((a, lo, lo+1)); s_rd.append((b, lo+1, lo+2))
            if (kt & 3) == 3 and st + 3 < 12:
                L, D = dma_v(st+3)
                handles['v'][st+3] = D[-1]
                s_dma += [(L[0], 0, 2), (L[1], 0, 3)] + [(d, 2+3*i, 4+3*i) for i, d in enumerate(D)]
            if G == 0 and kt < 2:
                sm = softmax_stream(15)
                half = len(sm)//2
                part = sm[:half] if kt == 0 else sm[half:]
                s_x = [(x, 0 if kt else 2, 19) for x in part]
            elif epi and kt >= 1:
                per = -(-len(epi) // 13)
                part = epi[epi_ptr:epi_ptr+per]; epi_ptr += len(part)
                s_x = [(x, 0, len(bb)-1) for x in part]
            P.many(weave(bb, [s_rd, s_dma, s_x], 8))
        assert epi_ptr >= len(epi)
    P.many(o_epilogue(2))

def phase3_setup():
    L = [Ins(f"v_mov_b32 v{ONES+i}, 0x3f803f80") for i in range(4)]
    L.append(Ins(f"s_mul_i32 s{sT0}, s38, {196608-20480}"))
    L.append(Ins(f"s_mul_i32 s{sT1}, s24, 6144"))
    L.append(Ins(f"s_add_u32 s{sT0}, s{sT0}, s{sT1}"))
    L.append(Ins(f"s_add_u32 s{sT0}, s{sT0}, {WS_OF-WS_HF}"))
    for ct in range(4):
        L.append(Ins(f"v_add_u32 v{vHO+ct}, s{sT0}, v{vHO+ct}"))
        if ct: L.append(Ins(f"v_add_u32 v{vHO+ct}, {ct*(196608-20480)}, v{vHO+ct}"))
    return L

def phase1(P, handles):
    NK = 20
    PF = 4
    dmah = handles['wq']
    for ks in range(NK):
        bb = []
        for t in range(12):
            n = 12*ks + t
            ar = RING + (n % 16)*4
            for ct in range(4):
                acc = QACC + (4*t + ct)*4
                b = (ks % 4)*16 + 4*ct
                c = f"v[{acc}:{acc+3}]" if ks > 0 else "0"
                bb.append(Ins(f"v_mfma_f32_16x16x32_bf16 v[{acc}:{acc+3}], a[{ar}:{ar+3}], a[{b}:{b+3}], {c}"))
        s_tr, s_h, s_dma = [], [], []
        for t in range(12):
            n = 12*ks + t + PF
            if n >= 12*NK:
                if OPT.get('p2', False):
                    lo = 4*t
                    if t == 8:
                        s_tr.append((WaitVM(handles['k'][0]), lo-1, lo-1))
                        s_tr.append((Ins("s_barrier"), lo-1, lo-1))
                    s_tr.append((k_frag(n - 12*NK), lo, lo+2))
                continue
            a, b = tr_wq(n)
            lo = 4*t
            if t == 8:
                if OPT['dma'] or ks+1 < 4: s_tr.append((WaitVM(dmah[ks+1]), lo-1, lo-1))
                if OPT['barrier']: s_tr.append((Ins("s_barrier"), lo-1, lo-1))
            if OPT['tr']:
                s_tr.append((a, lo, lo+1)); s_tr.append((b, lo+1, lo+2))
        if ks + 3 < NK and OPT['hload']:
            L, D = load_h(ks+3)
            s_h.append((L[0], 0, 1))
            for i, d in enumerate(D): s_h.append((d, 4*i+2, 4*i+3))
        if not OPT['dma']: pass
        elif ks + 4 < NK:
            L, D = dma_wq(ks+4)
            dmah[ks+4] = D[-1]
            s_dma.append((L[0], 33, 35)); s_dma.append((L[1], 34, 36))
            for i, d in enumerate(D): s_dma.append((d, 36+4*i, 38+4*i))
        elif ks >= 16:
            kt = ks - 16
            L, D = dma_k(kt)
            handles['k'][kt] = D[-1]
            s_dma.append((L[0], 33, 35)); s_dma.append((L[1], 34, 36))
            for i, d in enumerate(D): s_dma.append((d, 36+4*i, 38+4*i))
        s_pf = []
        if OPT.get('pf', 'loop') == 'loop':
            if ks == 1: s_pf = [(x, 2, 47) for x in pf_kv()]
            if ks == 8: s_pf = [(x, 2, 47) for x in pf_weights()]
        P.many(weave(bb, [s_tr, s_h, s_dma, s_pf], 8))

SX = 28
def s_buf(kt): return SX if kt == 0 else SB[kt & 1]

def softmax_stream2(kt):
    global SB
    L = []
    buf = s_buf(kt)
    toA = P_reg(kt, 0)[0] == 'a'
    for cb in range(2):
        Sx = buf + 16*cb
        if toA:
            A_ = [Sx+0, Sx+2, Sx+8, Sx+10]; B_ = [Sx+4, Sx+6, Sx+12, Sx+14]
        else:
            pa = P_reg(kt, 2*cb)[1]; pb = P_reg(kt, 2*cb+1)[1]
            A_ = [pa+i for i in range(4)]; B_ = [pb+i for i in range(4)]
        sub = OPT.get('mode', 'exp')
        def E(i):
            if sub == 'sub':
                return [Ins(f"v_sub_f32 v{Sx+i}, v{Sx+i}, v{NEGM+cb}"), Ins(f"v_exp_f32 v{Sx+i}, v{Sx+i}")]
            return [Ins(f"v_exp_f32 v{Sx+i}, v{Sx+i}")]
        C = lambda d, i: [Ins(f"v_cvt_pk_bf16_f32 v{d}, v{Sx+i}, v{Sx+i+1}")]
        SW = lambda i: [Ins(f"v_permlane16_swap_b32 v{A_[i]}, v{B_[i]}")]
        def W(i):
            if not toA: return []
            pa = P_reg(kt, 2*cb)[1]; pb = P_reg(kt, 2*cb+1)[1]
            return [Ins(f"v_accvgpr_write_b32 a{pa+i}, v{A_[i]}"), Ins(f"v_accvgpr_write_b32 a{pb+i}, v{B_[i]}")]
        for x in (E(0), E(1), E(2), E(3), E(4), E(5), C(A_[0], 0), C(A_[1], 2), E(6), E(7), C(B_[0], 4), E(8), E(9), C(B_[1], 6),
                  E(10), E(11), C(A_[2], 8), SW(0), E(12), E(13), SW(1), C(A_[3], 10), E(14), E(15), W(0), C(B_[2], 12), C(B_[3], 14), W(1),
                  SW(2), SW(3)): L += x
        L += W(2) + W(3)
    return L
NEGM = 62

def q_convert_tile(t):
    L = []
    for cb in range(2):
        x = QACC + (4*t + 2*cb)*4; y = x + 4
        d = QF + 8*t + 4*cb
        L += [Ins(f"v_cvt_pk_bf16_f32 v{d}, v{x}, v{x+1}"), Ins(f"v_cvt_pk_bf16_f32 v{d+1}, v{x+2}, v{x+3}"),
              Ins(f"v_cvt_pk_bf16_f32 v{d+2}, v{y}, v{y+1}"), Ins(f"v_cvt_pk_bf16_f32 v{d+3}, v{y+2}, v{y+3}")]
    for cb in range(2):
        d = QF + 8*t + 4*cb
        L += [Ins(f"v_permlane16_swap_b32 v{d}, v{d+2}"), Ins(f"v_permlane16_swap_b32 v{d+1}, v{d+3}")]
    return L

def main_schedule(P, H):
    NK = 20; PF = 4
    bb = []
    p1_0 = 0
    for ks in range(NK):
        for t in range(12):
            n = 12*ks + t
            ar = RING + (n % 16)*4
            for ct in range(4):
                acc = QACC + (4*t + ct)*4
                b = (ks % HS())*16 + 4*ct
                c = f"v[{acc}:{acc+3}]" if ks > 0 else "0"
                bb.append(Ins(f"v_mfma_f32_16x16x32_bf16 v[{acc}:{acc+3}], a[{ar}:{ar+3}], a[{b}:{b+3}], {c}"))
    p2_0 = len(bb)
    for kt in range(16):
        buf = s_buf(kt)
        for s_ in range(12):
            n = 12*kt + s_
            ar = RING + (n % 16)*4
            for cb in range(2):
                d = buf + 16*cb; q = QF + 8*s_ + 4*cb
                c = f"v[{d}:{d+15}]" if s_ > 0 else "0"
                bb.append(Ins(f"v_mfma_f32_32x32x16_bf16 v[{d}:{d+15}], a[{ar}:{ar+3}], v[{q}:{q+3}], {c}"))
    p3_0 = len(bb)
    kstart = {}
    fslot = {}
    for G in range(3):
        ob = OACC[G & 1]
        for kt in range(16):
            kstart[(G, kt)] = len(bb)
            for tp in range(4):
                m = 64*G + 4*kt + tp
                ar = RING + ((192 + m) % 16)*4
                fslot[m] = len(bb)
                for ct in range(4):
                    d = ob + (tp*4 + ct)*4; p = P_reg(kt, ct)
                    c = f"v[{d}:{d+3}]" if kt > 0 else "0"
                    bb.append(Ins(f"v_mfma_f32_16x16x32_bf16 v[{d}:{d+3}], a[{ar}:{ar+3}], {R(p,4)}, {c}"))
            if G == 0:
                for ct in range(4):
                    d = LACC + 4*ct; p = P_reg(kt, ct)
                    c = f"v[{d}:{d+3}]" if kt > 0 else "0"
                    bb.append(Ins(f"v_mfma_f32_16x16x32_bf16 v[{d}:{d+3}], v[{ONES}:{ONES+3}], {R(p,4)}, {c}"))
    nslots = len(bb)
    def use_slot(f):
        if f < 240: return 4*f
        if f < 432: return p2_0 + 2*(f-240)
        return fslot[f-432]
    def reads(f):
        if f < 240: return tr_wq(f)
        if f < 432: return [k_frag(f-240)]
        return tr_v(f-432)
    grp = []; wq_h = dict(H['wq']); k_h = {}; v_h = {}; h_h = dict(H['h'])
    bar = {}
    def first_read_slot(f): return use_slot(f - PF)
    for ks in range(1, NK): bar[('wq', ks)] = first_read_slot(12*ks) - 1
    for kt in range(16): bar[('k', kt)] = first_read_slot(240 + 12*kt) - 1
    for st in range(12): bar[('v', st)] = first_read_slot(432 + 16*st) - 1
    for ks in range(4, NK):
        L, D = dma_wq(ks); wq_h[ks] = D[-1]
        lo = bar[('wq', ks-3)] + 1 if ks-3 >= 1 else 0
        grp.append((lo, lo + 44, L, D))
    HB = HS() - 1
    for ks in range(3, NK):
        L, D = load_h(ks); h_h[ks] = D[-1]
        lo = max(0, 48*(ks-HB))
        hi = lo + 44 if ks - HB >= 0 else 48*max(ks-3, 0) + 44
        grp.append((lo, hi, L, D))
    for kt in range(16):
        L, D = dma_k(kt); k_h[kt] = D[-1]
        if kt < 3: lo = 48*(16+kt) + 8; hi = lo + 38
        elif kt == 3: lo = bar[('k', 0)] + 1; hi = lo + 12
        else: lo = bar[('k', kt-3)] + 1; hi = lo + 20
        grp.append((lo, hi, L, D))
    for st in range(12):
        L, D = dma_v(st); v_h[st] = D[-1]
        if st < 3: lo = p2_0 + 24*(12+st) + 1; hi = lo + 20
        else: lo = bar[('v', st-2)] + 1; hi = lo + 40
        grp.append((lo, hi, L, D))
    placed = space_vm(grp, 4, nslots)
    streams_vm = {}
    seen = {}
    for slot, pre, op, gi in placed:
        key = 'h' if op.kind == 'vload' else 'dma'
        if seen.get(key) != gi:
            assert (key, gi) not in seen, "groups interleave"
            seen[(key, gi)] = True; seen[key] = gi
    for slot, pre, op, gi in placed:
        key = 'h' if op.kind == 'vload' else 'dma'
        st_ = streams_vm.setdefault(key, [])
        if OPT.get('novm'): continue
        for x in pre: st_.append((x, slot-3, slot))
        st_.append((op, slot, slot+int(OPT.get('vmslack', 1))))
    s_rd, s_w = [], []
    last_read = dict(H['tr'])
    for f in range(PF, 624):
        lo = use_slot(f - PF)
        key = None
        if f < 240 and f % 12 == 0: key = ('wq', f // 12); hh = wq_h[f // 12]
        elif 240 <= f < 432 and (f-240) % 12 == 0: key = ('k', (f-240)//12); hh = k_h[(f-240)//12]
        elif f >= 432 and (f-432) % 16 == 0: key = ('v', (f-432)//16); hh = v_h[(f-432)//16]
        if key:
            if not OPT.get('novm'): s_rd.append((WaitVM(hh), lo-1, lo-1))
            if not OPT.get('nobar'): s_rd.append((Ins("s_barrier"), lo-1, lo-1))
        rr = reads(f)
        nxt = use_slot(f - PF + 1) if f - PF + 1 < 624 else lo + 4
        if len(rr) == 2:
            s2 = lo + 1 if nxt - lo >= 2 else lo
            s_rd.append((rr[0], lo, lo)); s_rd.append((rr[1], s2, s2))
        else:
            s_rd.append((rr[0], lo, lo))
        last_read[f] = rr[-1]
    for f in range(624):
        u = use_slot(f)
        s_w.append((WaitLGKM(last_read[f]), u-1, u-1))
    s_wh = [(WaitVM(h_h[ks]), 48*ks-1, 48*ks-1) for ks in range(NK)] if not OPT.get('novm') else []
    s_v = []
    s_p3 = [(x, 0, 80) for x in prologue3() + touch_setup()]
    for t in range(12):
        e_ = 48*19 + 4*t + 5
        dl = p2_0 + 2*t - 2
        for x in q_convert_tile(t): s_v.append((x, e_, max(e_, dl)))
    for x in phase3_setup(): s_v.append((x, p2_0 + 4, p2_0 + 20))
    for kt in range(16):
        e_ = p2_0 + 24*(kt+1) + 1
        dl = e_ + 22 if kt < 15 else kstart[(0, 2)]
        for x in softmax_stream2(kt): s_v.append((x, e_, dl))
    for G in range(3):
        if G == 0:
            epi = [Ins(f"v_rcp_f32 v{RINV+ct}, v{LACC+4*ct}") for ct in range(4)] + o_epilogue(0)
        elif G == 1: epi = o_epilogue(1)
        else: break
        e0 = kstart[(G+1, 0)] + 3; e1 = kstart[(G+1, 15)]
        for j, x in enumerate(epi):
            ee = e0 + (j*(e1-e0))//len(epi)
            s_v.append((x, ee, e1 + 12))
    s_pf = []
    plan = OPT.get('touchplan')
    if plan is None:
        plan = [('k', 0, 48*2), ('k', 1, 48*4), ('k', 2, 48*6), ('v', 0, 48*8), ('v', 1, 48*10), ('v', 2, 48*12),
                ('wo', 0, 48*14), ('wo', 1, p2_0 + 24*1), ('wo', 2, p2_0 + 24*3), ('wo', 3, p2_0 + 24*5),
                ('wg', 0, p2_0 + 24*7), ('wu', 0, p2_0 + 24*9), ('wd', 0, p2_0 + 24*10)]
    if OPT.get('notouch'): plan = []
    for kind, i, slot in plan:
        for x in touch16(kind, i, 'a191' if slot < p2_0 else 'v1'): s_pf.append((x, slot + 20, slot + 40))
    s_st = []
    if OPT.get('stamps_in'):
        pts = [48*10, p2_0, p2_0 + 24*8, p3_0, kstart[(1, 0)], kstart[(2, 0)]]
        for i, sl in enumerate(pts): s_st.append((Ins(f"s_memtime s[{sTS+2*(i+2)}:{sTS+2*(i+2)+1}]"), sl-1, sl-1))
    streams = [s_w, s_wh, s_rd] + list(streams_vm.values()) + [s_p3, s_v, s_pf, s_st]
    P.many(weave(bb, streams))
    P.many(o_epilogue(2))
    return p2_0, p3_0

def pf_v():
    return [Ins(f"s_mul_i32 s{sT0}, s25, 24576"), Ins(f"s_mul_i32 s{sT1}, s26, 6144"), Ins(f"s_add_u32 s{sT0}, s{sT0}, s{sT1}"),
            Ins(f"s_add_u32 s{sT0}, s{sT0}, {BIAS}"), Ins(f"v_lshlrev_b32 v{PFA}, 7, v0"), Ins(f"v_add_u32 v{PFA}, s{sT0}, v{PFA}"),
            NT(f"buffer_load_dword a191, v{PFA}, s[{sV}:{sV+3}], 0 offen")]
def pf_k():
    return [Ins(f"s_mul_i32 s{sT0}, s25, 24576"), Ins(f"s_mul_i32 s{sT1}, s26, 6144"), Ins(f"s_add_u32 s{sT0}, s{sT0}, s{sT1}"),
            Ins(f"s_add_u32 s{sT0}, s{sT0}, {BIAS}"), Ins(f"v_lshlrev_b32 v{PFA}, 7, v0"), Ins(f"v_add_u32 v{PFA}, s{sT0}, v{PFA}"),
            NT(f"buffer_load_dword a191, v{PFA}, s[{sK}:{sK+3}], 0 offen")]
def pf_wo2():
    return [Ins(f"s_lshl_b32 s{sT0}, s2, 2"), Ins(f"s_add_u32 s{sT0}, s{sT0}, s26"), Ins(f"s_mul_i32 s{sT1}, s{sT0}, 7680"),
            Ins(f"v_lshlrev_b32 v{PFA}, 7, v0"), Ins(f"v_add_u32 v{PFA}, s{sT1}, v{PFA}"),
            NT(f"buffer_load_dword a191, v{PFA}, s[52:55], 0 offen")]
def pf_w3():
    L = [Ins(f"s_lshl_b32 s{sT0}, s2, 2"), Ins(f"s_add_u32 s{sT0}, s{sT0}, s26"), Ins(f"s_mul_i32 s{sT1}, s{sT0}, 1920"),
         Ins(f"v_lshlrev_b32 v{PFA}, 7, v0"), Ins(f"v_add_u32 v{PFA}, s{sT1}, v{PFA}"),
         Ins(f"v_cmp_gt_u32 vcc, 15, v0"), Ins(f"v_mov_b32 v59, 0x7ff00000"), Ins("s_nop 0"), Ins(f"v_cndmask_b32 v{PFA}, v59, v{PFA}, vcc")]
    for srd_ in (56, 60, 64): L.append(NT(f"buffer_load_dword a191, v{PFA}, s[{srd_}:{srd_+3}], 0 offen"))
    return L
PFA = 27
TOUCH = dict(v=pf_v, k=pf_k, wo=pf_wo2, w3=pf_w3)

def main_pro(P, H):
    H['wq'] = {}; H['h'] = {}; H['tr'] = {}
    for ks in range(4):
        L, D = dma_wq(ks)
        P.many(L); P.many(D); H['wq'][ks] = D[-1]
        if ks < 3:
            L, D = load_h(ks)
            P.many(L); P.many(D); H['h'][ks] = D[-1]
        if ks == 0: prologue2(P)
    code_prefetch(P, 49152)
    P.wait_vm(H['wq'][0])
    P.e("s_barrier")
    for n in range(4):
        rr = tr_wq(n); P.many(rr); H['tr'][n] = rr[-1]

def phase1_pro(P, handles):
    for ks in range(4):
        L, D = dma_wq(ks)
        P.many(L); P.many(D)
        handles['wq'][ks] = D[-1]
        if ks < 3:
            L, D = load_h(ks)
            P.many(L); P.many(D)
    if OPT.get('pf', 'loop') == 'pro':
        P.many(pf_kv()); P.many(pf_weights())
    P.wait_vm(handles['wq'][0])
    P.e("s_barrier")
    for n in range(4):
        P.many(tr_wq(n))

def q_convert(P):
    for t in range(12):
        for cb in range(2):
            x = QACC + (4*t + 2*cb)*4; y = x + 4
            d = QF + 8*t + 4*cb
            P.e(f"v_cvt_pk_bf16_f32 v{d}, v{x}, v{x+1}")
            P.e(f"v_cvt_pk_bf16_f32 v{d+1}, v{x+2}, v{x+3}")
            P.e(f"v_cvt_pk_bf16_f32 v{d+2}, v{y}, v{y+1}")
            P.e(f"v_cvt_pk_bf16_f32 v{d+3}, v{y+2}, v{y+3}")
        for cb in range(2):
            d = QF + 8*t + 4*cb
            P.e(f"v_permlane16_swap_b32 v{d}, v{d+2}")
            P.e(f"v_permlane16_swap_b32 v{d+1}, v{d+3}")

def dump_regs(P, regs, base_off):
    n = len(regs)
    P.e(f"s_lshl_b32 s3, s2, 2"); P.e("s_add_u32 s3, s3, s26")
    P.e(f"s_mul_i32 s3, s3, {n*256}"); P.e(f"s_add_u32 s3, s3, {base_off}")
    P.e(f"v_lshlrev_b32 v{vT0}, 2, v0"); P.e(f"v_add_u32 v{vT0}, s3, v{vT0}")
    for i, r in enumerate(regs):
        if r[0] == 'a':
            P.e(f"v_accvgpr_read_b32 v{vT1}, a{r[1]}")
            src = vT1
        else:
            src = r[1]
        P.e(f"s_mov_b32 s3, {i*256}")
        P.e(f"buffer_store_dword v{src}, v{vT0}, s[{sWS}:{sWS+3}], s3 offen")
        if r[0] == 'a': P.e("s_waitcnt vmcnt(0)")

def stamp(P, idx):
    P.e(f"s_memtime s[{sTS+2*idx}:{sTS+2*idx+1}]")

def write_stamps(P, n):
    P.e("s_waitcnt lgkmcnt(0)")
    P.e(f"s_lshl_b32 s3, s2, 2"); P.e("s_add_u32 s3, s3, s26"); P.e("s_lshl_b32 s3, s3, 6"); P.e(f"s_add_u32 s3, s3, {WS_STAMP}")
    for i in range(n):
        P.e(f"v_mov_b32 v{vT1}, s{sTS+2*i}")
        P.e(f"v_mov_b32 v{vT0}, s3")
        P.e(f"buffer_store_dword v{vT1}, v{vT0}, s[{sWS}:{sWS+3}], 0 offen offset:{4*i}")
        P.e("s_waitcnt vmcnt(0)")

KD = """.section .rodata,"a"
.p2align 6
.amdhsa_kernel {name}
  .amdhsa_next_free_vgpr {vgpr}
  .amdhsa_next_free_sgpr 102
  .amdhsa_accum_offset {acc}
  .amdhsa_group_segment_fixed_size 0
  .amdhsa_kernarg_size 112
  .amdhsa_user_sgpr_count 2
  .amdhsa_user_sgpr_kernarg_segment_ptr 1
  .amdhsa_system_sgpr_workgroup_id_x 1
.end_amdhsa_kernel
"""

def wrap(kernels, launches):
    s = ""
    for nm, g, b, l in launches:
        s += f"; @launch kernel={nm} grid=({g},1,1) block=({b},1,1) lds={l}\n"
    s += '.amdgcn_target "amdgcn-amd-amdhsa--gfx950"\n.text\n'
    for nm, txt, vg, ac in kernels:
        s += f".globl {nm}\n.p2align 8\n.type {nm},@function\n{nm}:\n{txt}"
    s += "K_TEXT_END:\n"
    for nm, txt, vg, ac in kernels:
        s += KD.format(name=nm, vgpr=vg, acc=ac)
    return s

def code_prefetch(P, nbytes):
    P.e("s_getpc_b64 s[48:49]")
    P.e(f"v_lshlrev_b32 v{vT0}, 2, v0")
    P.e(f"s_lshl_b32 s3, s26, 8"); P.e(f"v_add_u32 v{vT0}, s3, v{vT0}")
    P.e(f"v_lshlrev_b32 v{vT0}, 4, v{vT0}")
    for off in range(0, nbytes, 16384):
        P.e(NT(f"global_load_dword v{vT1}, v{vT0}, s[48:49]"))
        P.e(f"v_add_u32 v{vT0}, 16384, v{vT0}")

def build_p1(fname):
    P = Prog()
    H = {'wq': {}, 'k': {}, 'v': {}}
    prologue(P, stamps=False)
    if OPT['pfcode']: code_prefetch(P, 16384)
    stamp(P, 0)
    phase1_pro(P, H)
    stamp(P, 1)
    phase1(P, H)
    stamp(P, 2)
    q_convert(P)
    stamp(P, 3)
    P.e("s_waitcnt vmcnt(0)")
    dump_regs(P, [('v', QF+i) for i in range(96)], WS_DBG)
    write_stamps(P, 4)
    P.e("K2_END:")
    P.e("s_endpgm")
    P.finalize()
    print("estimate", P.estimate(), "nops", P.nops, "ninstr", len(P.final))
    open(fname, "w").write(wrap([("k2_kernel", P.text(), 512, 256)], [("k2_kernel", 256, 256, LDS_BYTES)]))

def build_full(fname, dump_p=False):
    OPT.update(dict(dma=True, hload=True, barrier=True, tr=True, pfcode=True, p2=True))
    P = Prog()
    H = {'wq': {}, 'k': {}, 'v': {}}
    prologue(P, stamps=False)
    code_prefetch(P, 49152)
    stamp(P, 0)
    phase1_pro(P, H)
    stamp(P, 1)
    phase1(P, H)
    stamp(P, 2)
    q_convert(P)
    P.many(phase3_setup())
    stamp(P, 3)
    phase2(P, H)
    stamp(P, 4)
    phase3(P, H)
    stamp(P, 5)
    P.e("s_waitcnt vmcnt(0)")
    stamp(P, 6)
    if dump_p:
        regs = []
        for kt in range(16):
            for ct in range(4):
                p = P_reg(kt, ct)
                regs += [(p[0], p[1]+i) for i in range(4)]
        regs += [('v', LACC+i) for i in range(16)]
        dump_regs(P, regs, WS_DBG)
    write_stamps(P, 7)
    P.e("K2_END:")
    P.e("s_endpgm")
    P.finalize()
    print("estimate", P.estimate(), "nops", P.nops, "ninstr", len(P.final))
    open(fname, "w").write(wrap([("k2_kernel", P.text(), 512, 256)], [("k2_kernel", 256, 256, LDS_BYTES)]))

if __name__ == "__main__":
    import sys
    if len(sys.argv) > 1 and sys.argv[1] == "full":
        build_full("k2_full.s", dump_p=True)
        build_full("k2_fast.s", dump_p=False)
        sys.exit(0)
    build_p1("k2_p1.s")
    for nm, o in [("a", dict(dma=False, hload=False, barrier=False)), ("b", dict(dma=False, hload=True, barrier=False)),
                  ("c", dict(dma=True, hload=False, barrier=False)), ("d", dict(dma=True, hload=True, barrier=False)),
                  ("e", dict(dma=False, hload=False, barrier=True)), ("f", dict(dma=True, hload=True, barrier=True, pfcode=True)),
                  ("g", dict(dma=False, hload=False, barrier=False, tr=False))]:
        OPT.update(dict(dma=True, hload=True, barrier=True, tr=True, pfcode=False)); OPT.update(o)
        build_p1(f"k2_p1{nm}.s")
```

```python
from asmgen import *
from k2gen import WS_MOD, WS_HF, WS_OF, WS_PART, WS_X1, WS_H2F, WS_ACT, WS_BYTES, WS_STAMP, WS_WD, WS_WGU
from ksmall import srd, f2u, NSPLIT
BIAS = 8192

GOPT = dict(dma=True, bload=True, tr=True, barrier=True, waits=True)
def gemm_stream(P, NK, nA, nB, kps, acc_reg, a_ring, a_slots, b_ring, b_sets, tr_fn, bload_fn, dma_fn, H,
                PF, BPF, DPF, nstages, WG=2, extra=None, a_is_agpr=False, b_is_agpr=False, zero_init=True, early=False):
    TRH = H.setdefault('tr', {}); BH = H.setdefault('b', {})
    spk = nA*nB
    bb = []
    for ks in range(NK):
        for t in range(nA):
            n = nA*ks + t
            ar = a_ring + (n % a_slots)*4
            for ct in range(nB):
                acc = acc_reg(t, ct)
                b = b_ring + (ks % b_sets)*4*nB + 4*ct
                c = f"v[{acc}:{acc+3}]" if (ks > 0 or not zero_init) else "0"
                ra = f"a[{ar}:{ar+3}]" if a_is_agpr else f"v[{ar}:{ar+3}]"
                rb = f"a[{b}:{b+3}]" if b_is_agpr else f"v[{b}:{b+3}]"
                bb.append(Ins(f"v_mfma_f32_16x16x32_bf16 v[{acc}:{acc+3}], {ra}, {rb}, {c}"))
    s_tr, s_w, vm = [], [], []
    bar_at = {}
    dmas = {}
    for st in range(nstages):
        if st not in H and GOPT['dma']:
            L, D = dma_fn(st); dmas[st] = (L, D); H[st] = D[-1]
    loads = {}
    for ks in range(NK):
        if ks not in BH and GOPT['bload']:
            L, D = bload_fn(ks); loads[ks] = (L, D); BH[ks] = D[-1]
    for n in range(PF, nA*NK):
        lo = nB*(n - PF)
        nks = n // nA
        if n % nA == 0 and nks % kps == 0:
            stg = nks // kps
            if stg in H and GOPT['waits']: s_tr.append((WaitVM(H[stg]), lo-1, lo-1))
            if GOPT['barrier']: s_tr.append((Ins("s_barrier"), lo-1, lo-1))
            bar_at[stg-1] = lo
        a, b = tr_fn(n)
        TRH[n] = b
        if GOPT['tr']:
            s2 = lo+1 if nB > 1 else lo
            s_tr.append((a, lo, lo)); s_tr.append((b, s2, s2))
    for n in range(0, nA*NK, WG):
        tgt = min(n + WG - 1, nA*NK - 1)
        if GOPT['tr']: s_w.append((WaitLGKM(TRH[tgt]), nB*n-1, nB*n-1))
    s_wb = [(WaitVM(BH[ks]), spk*ks-1, spk*ks-1) for ks in range(NK) if ks in BH and GOPT['waits']]
    items = []
    for st, (L, D) in dmas.items():
        if st - DPF < 0:
            lo = 0; hi = max(bar_at.get(st - 2, spk), spk) - 1
        else:
            lo = bar_at.get(st - DPF, 0)
            hi = bar_at.get(st - DPF + 1, lo + spk*kps) - 1
        items.append((lo, hi, L, D))
    for ks, (L, D) in loads.items():
        lo = max(0, spk*(ks - BPF)); hi = max(lo + spk - 1, 0)
        if ks - BPF < 0: hi = max(spk*(ks - 2), spk) - 1
        items.append((lo, hi, L, D))
    items.sort(key=lambda x: (x[1], x[0]))
    ops = []
    for gi, (lo, hi, L, D) in enumerate(items):
        pre = list(L)
        for d in D:
            if cls(d) != 'mem': pre.append(d); continue
            ops.append([lo, hi, gi, pre, d]); pre = []
    nslots = len(bb)
    gap = max(1, int(GAP))
    placed = []
    t = 0
    remaining = ops[:]
    cur = 0
    started = set()
    while remaining:
        cand = [o for o in remaining if o[0] <= cur]
        open_ = {}
        for o in remaining:
            if o[2] in started: open_[o[4].kind] = o[2]
        cand = [o for o in cand if open_.get(o[4].kind, o[2]) == o[2]]
        if not cand:
            cur = max(cur + 1, min(o[0] for o in remaining)); continue
        o = min(cand, key=lambda o: (o[1], ops.index(o)))
        placed.append((cur, o)); remaining.remove(o); started.add(o[2])
        nxt = cur + gap
        if remaining:
            dl = sorted(x[1] for x in remaining)
            for idx, dd in enumerate(dl):
                if nxt + idx*gap > dd:
                    nxt = max(cur + 1, min(nxt, dd - idx*gap))
        cur = nxt
    per_group = {}
    seen = {}
    for slot, o in placed:
        key = 'd' if o[4].kind == 'dma' else 'b'
        if seen.get(key) != o[2]:
            assert (key, o[2]) not in seen, "groups interleave"
            seen[(key, o[2])] = True; seen[key] = o[2]
    for slot, o in placed:
        st_ = per_group.setdefault(o[2] % 2 if False else ('d' if o[4].kind == 'dma' else 'b'), [])
        for x in o[3]: st_.append((x, slot-2, slot))
        st_.append((o[4], slot, slot))
    streams = [s_w, s_wb, s_tr] + list(per_group.values())
    if extra: streams.append(extra)
    P.many(weave(bb, streams, 8, max_mem=2))

GAP = 4
def gen_k3(stamps=False, auto=True):
    P = Prog(); e = P.e
    NS = 6; ST = 20480
    e("s_cmp_ge_u32 s2, 256"); e("s_cbranch_scc1 K3_END")
    e("s_load_dwordx2 s[4:5], s[0:1], 32")
    e("s_load_dwordx2 s[6:7], s[0:1], 104")
    if stamps: e("s_memtime s[40:41]")
    e("s_and_b32 s20, s2, 3")
    e("s_lshr_b32 s3, s2, 2"); e("s_and_b32 s3, s3, 1"); e("s_lshl_b32 s3, s3, 3")
    e("s_lshr_b32 s21, s2, 5"); e("s_add_u32 s21, s21, s3")
    e("s_lshr_b32 s22, s2, 3"); e("s_and_b32 s22, s22, 3")
    e("v_lshrrev_b32 v1, 6, v0"); e("v_and_b32 v0, 63, v0")
    e("v_readfirstlane_b32 s23, v1")
    for i in range(5):
        e(f"v_add_u32 v10, {i*64}, v0")
        e("v_mul_u32_u24 v11, 3277, v10"); e("v_lshrrev_b32 v11, 16, v11")
        e("v_mul_u32_u24 v12, 20, v11"); e("v_sub_u32 v12, v10, v12")
        e("v_lshrrev_b32 v13, 2, v11"); e("v_and_b32 v13, 1, v13"); e("v_lshlrev_b32 v13, 1, v13")
        e("v_xor_b32 v12, v12, v13")
        e("v_lshlrev_b32 v12, 4, v12")
        e("v_mul_u32_u24 v11, 1280, v11")
        e("v_add_u32 v11, v11, v12")
        e(f"v_add_u32 v{2+i}, {BIAS - i*1024}, v11")
    e("s_mul_i32 s3, s23, 20480")
    for i in range(5): e(f"v_add_u32 v{2+i}, s3, v{2+i}")
    e("v_lshrrev_b32 v10, 4, v0")
    e("v_lshrrev_b32 v11, 2, v0"); e("v_and_b32 v11, 3, v11")
    e("v_lshlrev_b32 v12, 2, v10"); e("v_add_u32 v11, v11, v12")
    e("v_mul_u32_u24 v11, 320, v11")
    e("v_and_b32 v12, 3, v0"); e("v_lshlrev_b32 v12, 3, v12"); e("v_add_u32 v11, v11, v12")
    e("v_and_b32 v12, 1, v10"); e("v_lshlrev_b32 v12, 5, v12")
    e("v_add_u32 v7, v11, v12")
    e("v_xor_b32 v12, 32, v12"); e("v_add_u32 v8, v11, v12")
    e(f"v_add_u32 v9, {3*ST}, v7"); e(f"v_add_u32 v14, {3*ST}, v8")
    e("s_lshl_b32 s3, s21, 3"); e("s_lshl_b32 s24, s23, 1"); e("s_add_u32 s24, s24, s3")
    e("s_mul_i32 s3, s24, 196608"); e("s_mul_i32 s25, s20, 49152"); e("s_add_u32 s3, s3, s25"); e(f"s_add_u32 s3, s3, {WS_OF}")
    e("v_lshlrev_b32 v10, 4, v0"); e("v_add_u32 v15, s3, v10"); e("v_add_u32 v16, 196608, v15")
    e("s_lshl_b32 s3, s20, 7"); e("s_add_u32 s3, s3, s24"); e("s_mul_i32 s3, s3, 20480")
    e("s_mul_i32 s25, s22, 5120"); e("s_add_u32 s3, s3, s25"); e(f"s_add_u32 s3, s3, {WS_PART}")
    e("v_add_u32 v17, s3, v10"); e("v_add_u32 v18, 20480, v17")
    e("s_mul_i32 s26, s23, 5120")
    e("s_mul_i32 s27, s20, 1966080")
    e("s_waitcnt lgkmcnt(0)")
    e("s_mul_i32 s3, s22, 320")
    e("s_add_u32 s8, s4, s3"); e("s_addc_u32 s9, s5, 0"); e(f"s_sub_u32 s8, s8, {BIAS}"); e("s_subb_u32 s9, s9, 0")
    e(f"s_sub_u32 s10, {7864320+BIAS}, s3"); e("s_mov_b32 s11, 0x20000")
    srd(P, 12, 6, 7, WS_BYTES)
    ACC = 176
    AR = 20; ASL = 12
    BR = 68; BS = 6
    def acc_reg(t, ct): return ACC + (t*2 + ct)*4
    def tr_fn(n):
        ks, t = divmod(n, 10)
        st, kk = divmod(ks, 2)
        slot = st % NS
        sett, so = divmod(slot, 3)
        areg = [7, 8, 9, 14][sett*2 + (t & 1)]
        off = so*ST + kk*10240 + (t >> 1)*64
        r = AR + (n % ASL)*4
        return [Ins(f"ds_read_b64_tr_b16 v[{r}:{r+1}], v{areg} offset:{off}"),
                Ins(f"ds_read_b64_tr_b16 v[{r+2}:{r+3}], v{areg} offset:{off+5120}")]
    def bload_fn(ks):
        b = BR + (ks % BS)*8
        return ([Ins(f"s_mov_b32 s28, {ks*1024}")],
                [Ins(f"buffer_load_dwordx4 v[{b+4*ct}:{b+4*ct+3}], v{15+ct}, s[12:15], s28 offen") for ct in range(2)])
    def dma_fn(st):
        return ([Ins(f"s_add_u32 m0, s26, {(st % NS)*ST}"), Ins(f"s_add_u32 s29, s27, {st*81920}")],
                [Ins(f"buffer_load_dwordx4 v{2+i}, s[8:11], s29 offen offset:{i*1024} lds") if i < 4 else None for i in range(5)])
    def dma_fn2(st):
        L = [Ins(f"s_add_u32 m0, s26, {(st % NS)*ST}"), Ins(f"s_add_u32 s29, s27, {st*81920}")]
        D = [Ins(f"buffer_load_dwordx4 v{2+i}, s[8:11], s29 offen offset:{i*1024} lds") for i in range(4)]
        D.append(Ins(f"s_add_u32 m0, s26, {(st % NS)*ST + 4096}"))
        D.append(Ins(f"buffer_load_dwordx4 v6, s[8:11], s29 offen lds"))
        return L, D
    H = {}
    e("v_add_u32 v6, 4096, v6")
    if stamps: e("s_memtime s[42:43]")
    BPF = 5; DPF = 5
    for st in range(DPF):
        L, D = dma_fn2(st); P.many(L); P.many(D); H[st] = D[-1]
        L, D = bload_fn(st); P.many(L); P.many(D); H.setdefault('b', {})[st] = D[-1]
    P.wait_vm(H[0]); e("s_barrier")
    PF = 6
    for n in range(PF):
        rr = tr_fn(n); P.many(rr); H.setdefault('tr', {})[n] = rr[-1]
    if stamps: e("s_memtime s[44:45]"); e("s_waitcnt lgkmcnt(0)")
    gemm_stream(P, 48, 10, 2, 2, acc_reg, AR, ASL, BR, BS, tr_fn, bload_fn, dma_fn2, H, PF, BPF, DPF, 24)
    if stamps: e("s_memtime s[46:47]")
    for u in range(5):
        e(f"s_mov_b32 s28, {u*1024}")
        for ct in range(2):
            a = acc_reg(2*u, ct); b = acc_reg(2*u+1, ct); d = 20 + (u*2+ct)*4
            e(f"v_cvt_pk_bf16_f32 v{d}, v{a}, v{a+1}"); e(f"v_cvt_pk_bf16_f32 v{d+1}, v{a+2}, v{a+3}")
            e(f"v_cvt_pk_bf16_f32 v{d+2}, v{b}, v{b+1}"); e(f"v_cvt_pk_bf16_f32 v{d+3}, v{b+2}, v{b+3}")
            e(f"buffer_store_dwordx4 v[{d}:{d+3}], v{17+ct}, s[12:15], s28 offen sc1")
    if stamps:
        e("s_waitcnt vmcnt(0)"); e("s_memtime s[48:49]")
        write_stamps(P, 5, 23, 12)
    e("K3_END:")
    e("s_endpgm")
    P.finalize(auto_wait=auto)
    return P

WS_GB = WS_MOD + 0x10000 + 5*4096

def gen_k5(stamps=False):
    P = Prog(); e = P.e
    NS = 5; ST = 12288
    e("s_cmp_ge_u32 s2, 256"); e("s_cbranch_scc1 K5_END")
    e("s_load_dwordx4 s[4:7], s[0:1], 48")
    e("s_load_dwordx2 s[16:17], s[0:1], 104")
    if stamps: e("s_memtime s[40:41]")
    e("s_and_b32 s20, s2, 7"); e("s_lshl_b32 s20, s20, 1"); e("s_lshr_b32 s3, s2, 3"); e("s_and_b32 s21, s3, 1"); e("s_add_u32 s20, s20, s21")
    e("s_lshr_b32 s21, s2, 4")
    e("v_lshrrev_b32 v1, 6, v0"); e("v_and_b32 v0, 63, v0")
    e("v_readfirstlane_b32 s23, v1")
    e("v_lshrrev_b32 v10, 2, v0")
    e("s_lshr_b32 s3, s23, 1"); e("s_lshl_b32 s3, s3, 4"); e("v_add_u32 v10, s3, v10")
    e("v_lshrrev_b32 v11, 2, v10"); e("v_and_b32 v11, 1, v11"); e("v_lshlrev_b32 v11, 1, v11")
    e("v_and_b32 v12, 3, v0"); e("v_xor_b32 v11, v11, v12"); e("v_lshlrev_b32 v11, 4, v11")
    e("v_mul_u32_u24 v10, 3072, v10"); e("v_add_u32 v10, v10, v11")
    e(f"v_add_u32 v2, {BIAS}, v10"); e(f"v_add_u32 v3, {BIAS + 64 - 1024}, v10"); e(f"v_add_u32 v4, {BIAS + 128 - 2048}, v10")
    e("v_lshrrev_b32 v10, 4, v0")
    e("v_lshrrev_b32 v11, 2, v0")
    e("v_lshlrev_b32 v11, 6, v11")
    e("v_and_b32 v12, 3, v0"); e("v_lshlrev_b32 v12, 3, v12"); e("v_add_u32 v11, v11, v12")
    e("v_and_b32 v12, 1, v10"); e("v_lshlrev_b32 v12, 5, v12")
    e("v_add_u32 v7, v11, v12"); e("v_xor_b32 v12, 32, v12"); e("v_add_u32 v8, v11, v12")
    e("s_lshl_b32 s3, s21, 3"); e("s_lshl_b32 s24, s23, 1"); e("s_add_u32 s24, s24, s3")
    e("s_mul_i32 s3, s24, 20480"); e(f"s_add_u32 s3, s3, {WS_H2F}")
    e("v_lshlrev_b32 v10, 4, v0"); e("v_add_u32 v15, s3, v10"); e("v_add_u32 v16, 20480, v15")
    e("s_mul_i32 s3, s24, 49152"); e("s_mul_i32 s25, s20, 3072"); e("s_add_u32 s3, s3, s25"); e(f"s_add_u32 s3, s3, {WS_ACT}")
    e("v_add_u32 v17, s3, v10"); e("v_add_u32 v18, 49152, v17")
    e("s_mul_i32 s26, s23, 3072")
    e("s_waitcnt lgkmcnt(0)")
    e("s_and_b32 s3, s23, 1"); e("s_cmp_eq_u32 s3, 0")
    e("s_cselect_b32 s8, s4, s6"); e("s_cselect_b32 s9, s5, s7")
    e("s_mul_i32 s3, s20, 192")
    e("s_add_u32 s8, s8, s3"); e("s_addc_u32 s9, s9, 0"); e(f"s_sub_u32 s8, s8, {BIAS}"); e("s_subb_u32 s9, s9, 0")
    e(f"s_sub_u32 s10, {640*3072+BIAS}, s3"); e("s_mov_b32 s11, 0x20000")
    srd(P, 12, 16, 17, WS_BYTES)
    ACC = 160
    AR = 20; ASL = 12
    BR = 68; BS = 6
    def acc_reg(t, ct): return ACC + (t*2 + ct)*4
    def tr_fn(n):
        ks, t = divmod(n, 12)
        p = 3*(t // 6) + ((t % 6) >> 1)
        off = (ks % NS)*ST + p*1024
        r = AR + (n % ASL)*4
        return [Ins(f"ds_read_b64_tr_b16 v[{r}:{r+1}], v{7 + (t & 1)} offset:{off}"),
                Ins(f"ds_read_b64_tr_b16 v[{r+2}:{r+3}], v{7 + (t & 1)} offset:{off+6144}")]
    def bload_fn(ks):
        b = BR + (ks % BS)*8
        return ([Ins(f"s_mov_b32 s28, {ks*1024}")],
                [Ins(f"buffer_load_dwordx4 v[{b+4*ct}:{b+4*ct+3}], v{15+ct}, s[12:15], s28 offen") for ct in range(2)])
    def dma_fn(st):
        return ([Ins(f"s_add_u32 m0, s26, {(st % NS)*ST}"), Ins(f"s_mov_b32 s29, {st*32*3072}")],
                [Ins(f"buffer_load_dwordx4 v{2+i}, s[8:11], s29 offen offset:{i*1024} lds") for i in range(3)])
    H = {}
    if stamps: e("s_memtime s[42:43]")
    BPF = 4; DPF = 4
    for st in range(DPF):
        L, D = dma_fn(st); P.many(L); P.many(D); H[st] = D[-1]
        L, D = bload_fn(st); P.many(L); P.many(D); H.setdefault('b', {})[st] = D[-1]
    P.wait_vm(H[0]); e("s_barrier")
    PF = 6
    for n in range(PF):
        rr = tr_fn(n); P.many(rr); H.setdefault('tr', {})[n] = rr[-1]
    if stamps: e("s_memtime s[44:45]"); e("s_waitcnt lgkmcnt(0)")
    gemm_stream(P, 20, 12, 2, 1, acc_reg, AR, ASL, BR, BS, tr_fn, bload_fn, dma_fn, H, PF, BPF, DPF, 20)
    if stamps: e("s_memtime s[46:47]")
    for u in range(3):
        e(f"s_mov_b32 s28, {u*1024}")
        for ct in range(2):
            dst = 20 + (u*2 + ct)*4
            for hh in range(2):
                j = 2*u + hh
                g = acc_reg(j, ct); up = acc_reg(6+j, ct)
                for i in range(4): e(f"v_max_f32 v{g+i}, 0, v{g+i}")
                for i in range(4): e(f"v_mul_f32 v{g+i}, v{g+i}, v{up+i}")
                e(f"v_cvt_pk_bf16_f32 v{dst+2*hh}, v{g}, v{g+1}")
                e(f"v_cvt_pk_bf16_f32 v{dst+2*hh+1}, v{g+2}, v{g+3}")
            e(f"buffer_store_dwordx4 v[{dst}:{dst+3}], v{17+ct}, s[12:15], s28 offen sc1")
    if stamps:
        e("s_waitcnt vmcnt(0)"); e("s_memtime s[48:49]")
        write_stamps(P, 5, 23, 12)
    e("K5_END:")
    e("s_endpgm")
    P.finalize()
    return P

def gen_k6(stamps=False):
    P = Prog(); e = P.e
    NS = 6; ST = 5120
    e("s_cmp_ge_u32 s2, 256"); e("s_cbranch_scc1 K6_END")
    e("s_load_dwordx2 s[4:5], s[0:1], 64")
    e("s_load_dwordx2 s[6:7], s[0:1], 88")
    e("s_load_dwordx2 s[16:17], s[0:1], 104")
    if stamps: e("s_memtime s[40:41]")
    e("s_and_b32 s20, s2, 7"); e("s_lshl_b32 s20, s20, 2"); e("s_lshr_b32 s3, s2, 6"); e("s_add_u32 s20, s20, s3")
    e("s_lshr_b32 s21, s2, 3"); e("s_and_b32 s21, s21, 7")
    e("v_lshrrev_b32 v1, 6, v0"); e("v_and_b32 v0, 63, v0")
    e("v_readfirstlane_b32 s23, v1")
    for i in range(5):
        e(f"v_add_u32 v10, {i*64}, v0")
        e("v_mul_u32_u24 v11, 6554, v10"); e("v_lshrrev_b32 v11, 16, v11")
        e("v_mul_u32_u24 v12, 10, v11"); e("v_sub_u32 v12, v10, v12")
        e("v_lshlrev_b32 v12, 4, v12"); e("v_mul_u32_u24 v11, 1280, v11"); e("v_add_u32 v11, v11, v12")
        e(f"v_add_u32 v{2+i}, {BIAS - (i*1024 if i < 4 else 0)}, v11")
    e("v_lshrrev_b32 v11, 2, v0"); e("v_mul_u32_u24 v11, 160, v11")
    e("v_and_b32 v12, 3, v0"); e("v_lshlrev_b32 v12, 3, v12"); e("v_add_u32 v7, v11, v12")
    e(f"s_mul_i32 s26, s23, {NS*ST}"); e("v_add_u32 v7, s26, v7")
    e("s_lshl_b32 s24, s20, 2")
    e("s_mul_i32 s3, s24, 49152"); e("s_mul_i32 s25, s23, 12288"); e("s_add_u32 s3, s3, s25"); e(f"s_add_u32 s3, s3, {WS_ACT}")
    e("v_lshlrev_b32 v10, 4, v0"); e("v_add_u32 v15, s3, v10")
    for ct in range(1, 4): e(f"v_add_u32 v{15+ct}, {ct*49152}, v15")
    e("s_mul_i32 s27, s23, 491520")
    e("s_add_u32 s3, s24, s23"); e("s_mul_i32 s30, s3, 20480"); e(f"s_add_u32 s30, s30, {WS_X1}")
    e("v_add_u32 v8, s30, v10")
    e("v_lshrrev_b32 v11, 4, v0"); e("v_lshlrev_b32 v11, 4, v11"); e("s_mul_i32 s3, s21, 320"); e(f"s_add_u32 s3, s3, {WS_GB}"); e("v_add_u32 v9, s3, v11")
    e("v_and_b32 v12, 15, v0"); e("s_lshl_b32 s3, s20, 6"); e("s_lshl_b32 s25, s23, 4"); e("s_add_u32 s3, s3, s25"); e("v_add_u32 v12, s3, v12")
    e("v_mul_u32_u24 v12, 1280, v12"); e("v_lshrrev_b32 v11, 4, v0"); e("v_lshlrev_b32 v11, 3, v11"); e("v_add_u32 v12, v12, v11")
    e("s_mul_i32 s3, s21, 160"); e("v_add_u32 v14, s3, v12")
    e("s_waitcnt lgkmcnt(0)")
    e("s_mul_i32 s3, s21, 160")
    e("s_add_u32 s8, s4, s3"); e("s_addc_u32 s9, s5, 0"); e(f"s_sub_u32 s8, s8, {BIAS}"); e("s_subb_u32 s9, s9, 0")
    e(f"s_sub_u32 s10, {1536*1280+BIAS}, s3"); e("s_mov_b32 s11, 0x20000")
    srd(P, 12, 16, 17, WS_BYTES); srd(P, 32, 6, 7, 2048*1280)
    ACC = 176
    AR = 20; ASL = 8
    BR = 52; BS = 4
    XR = 116
    def acc_reg(t, ct): return ACC + (t*4 + ct)*4
    def tr_fn(n):
        ks, t = divmod(n, 5)
        off = (ks % NS)*ST + t*32
        r = AR + (n % ASL)*4
        return [Ins(f"ds_read_b64_tr_b16 v[{r}:{r+1}], v7 offset:{off}"),
                Ins(f"ds_read_b64_tr_b16 v[{r+2}:{r+3}], v7 offset:{off+2560}")]
    def bload_fn(ks):
        b = BR + (ks % BS)*16
        return ([Ins(f"s_mov_b32 s28, {ks*1024}")],
                [Ins(f"buffer_load_dwordx4 v[{b+4*ct}:{b+4*ct+3}], v{15+ct}, s[12:15], s28 offen") for ct in range(4)])
    def dma_fn(st):
        L = [Ins(f"s_add_u32 m0, s26, {(st % NS)*ST}"), Ins(f"s_add_u32 s29, s27, {st*32*1280}")]
        D = [Ins(f"buffer_load_dwordx4 v{2+i}, s[8:11], s29 offen offset:{i*1024} lds") for i in range(4)]
        D.append(Ins(f"s_add_u32 m0, s26, {(st % NS)*ST + 4096}"))
        D.append(Ins(f"buffer_load_dwordx4 v6, s[8:11], s29 offen lds"))
        return L, D
    H = {}
    if stamps: e("s_memtime s[42:43]")
    NK = 12; DPF = 4; BPF = 3
    bh = {}
    for st in range(DPF):
        L, D = dma_fn(st); P.many(L); P.many(D); H[st] = D[-1]
        if st < BPF:
            L, D = bload_fn(st); P.many(L); P.many(D); bh[st] = D[-1]
    for t in range(5):
        e(f"s_mul_i32 s3, s21, 5"); e(f"s_add_u32 s3, s3, {t}"); e("s_lshr_b32 s31, s3, 1"); e("s_lshl_b32 s31, s31, 10")
        e("s_and_b32 s3, s3, 1"); e("s_lshl_b32 s3, s3, 3"); e("s_add_u32 s31, s31, s3")
        e(f"buffer_load_dwordx2 v[{XR+2*t}:{XR+2*t+1}], v8, s[12:15], s31 offen")
        e(f"buffer_load_dwordx4 v[{128+4*t}:{131+4*t}], v9, s[12:15], 0 offen offset:{t*64}")
    GOPT_b = GOPT['barrier']; GOPT['barrier'] = False
    H['b'] = bh
    P.wait_vm(H[0])
    PF = 4
    for n in range(PF):
        rr = tr_fn(n); P.many(rr); H.setdefault('tr', {})[n] = rr[-1]
    if stamps: e("s_memtime s[44:45]"); e("s_waitcnt lgkmcnt(0)")
    global GAP
    g0 = GAP; GAP = 2
    gemm_stream(P, NK, 5, 4, 1, acc_reg, AR, ASL, BR, BS, tr_fn, bload_fn, dma_fn, H, PF, BPF, DPF, NK, WG=1)
    GAP = g0; GOPT['barrier'] = GOPT_b
    if stamps: e("s_memtime s[46:47]")
    e("s_barrier")
    e("v_lshlrev_b32 v10, 4, v0")
    e("s_mul_i32 s3, s23, 20480"); e("v_add_u32 v11, s3, v10")
    for ct in range(4):
        for t in range(5):
            a = acc_reg(t, ct)
            e(f"ds_write_b128 v11, v[{a}:{a+3}] offset:{(ct*5+t)*1024}")
    e("s_waitcnt lgkmcnt(0)"); e("s_barrier")
    e("s_mul_i32 s3, s23, 5120"); e("v_add_u32 v11, s3, v10")
    e("v_add_u32 v13, 40960, v11")
    for sw in range(4):
        for t in range(5):
            r = 20 + (sw*5 + t)*4
            e(f"ds_read_b128 v[{r}:{r+3}], v{11 if sw < 2 else 13} offset:{(sw & 1)*20480 + t*1024}")
    for t in range(5):
        y = 20 + t*4
        for sw in range(1, 4):
            for i in range(4): e(f"v_add_f32 v{y+i}, v{y+i}, v{20+(sw*5+t)*4+i}")
        x = XR + 2*t
        e(f"v_lshlrev_b32 v148, 16, v{x}"); e(f"v_and_b32 v149, 0xffff0000, v{x}")
        e(f"v_lshlrev_b32 v150, 16, v{x+1}"); e(f"v_and_b32 v151, 0xffff0000, v{x+1}")
        for i in range(4): e(f"v_fma_f32 v{y+i}, v{y+i}, v{128+4*t+i}, v{148+i}")
        e(f"v_cvt_pk_bf16_f32 v{y}, v{y}, v{y+1}"); e(f"v_cvt_pk_bf16_f32 v{y+1}, v{y+2}, v{y+3}")
        e(f"buffer_store_dwordx2 v[{y}:{y+1}], v14, s[32:35], 0 offen offset:{t*32}")
    if stamps:
        e("s_waitcnt vmcnt(0)"); e("s_memtime s[48:49]")
        write_stamps(P, 5, 23, 12)
    e("K6_END:")
    e("s_endpgm")
    P.finalize()
    return P

def gen_k3b(stamps=False, auto=True):
    P = Prog(); e = P.e
    NS = 5; ST = 24576
    e("s_cmp_ge_u32 s2, 256"); e("s_cbranch_scc1 K3_END")
    e("s_load_dwordx2 s[4:5], s[0:1], 32")
    e("s_load_dwordx2 s[6:7], s[0:1], 104")
    if stamps: e("s_memtime s[40:41]")
    e("s_and_b32 s20, s2, 3")
    e("s_lshr_b32 s3, s2, 2"); e("s_and_b32 s3, s3, 1"); e("s_lshl_b32 s3, s3, 3")
    e("s_lshr_b32 s21, s2, 5"); e("s_add_u32 s21, s21, s3")
    e("s_lshr_b32 s22, s2, 3"); e("s_and_b32 s22, s22, 3")
    e("v_lshrrev_b32 v1, 6, v0"); e("v_and_b32 v0, 63, v0")
    e("v_readfirstlane_b32 s23, v1")
    e("s_and_b32 s30, s23, 3"); e("s_lshr_b32 s31, s23, 2")
    for i in range(3):
        e(f"v_add_u32 v10, {i*64}, v0")
        e("v_mul_u32_u24 v11, 3277, v10"); e("v_lshrrev_b32 v11, 16, v11")
        e("v_mul_u32_u24 v12, 20, v11"); e("v_sub_u32 v12, v10, v12")
        e("v_lshrrev_b32 v13, 2, v11"); e("v_and_b32 v13, 1, v13"); e("v_lshlrev_b32 v13, 1, v13")
        e("v_xor_b32 v12, v12, v13")
        e("v_lshlrev_b32 v12, 4, v12")
        e("v_mul_u32_u24 v11, 1280, v11")
        e("v_add_u32 v11, v11, v12")
        e(f"v_add_u32 v{2+i}, {BIAS - i*1024}, v11")
    e("s_mul_i32 s3, s23, 10240")
    for i in range(3): e(f"v_add_u32 v{2+i}, s3, v{2+i}")
    e("v_cmp_lt_u32 vcc, 31, v0"); e("v_mov_b32 v10, 0x7ff00000")
    e("s_nop 1")
    e("v_cndmask_b32 v4, v4, v10, vcc")
    e("v_lshrrev_b32 v10, 4, v0")
    e("v_lshrrev_b32 v11, 2, v0"); e("v_and_b32 v11, 7, v11")
    e("v_mul_u32_u24 v11, 320, v11")
    e("v_lshrrev_b32 v12, 1, v10"); e("v_mul_u32_u24 v12, 3072, v12"); e("v_add_u32 v11, v11, v12")
    e("v_and_b32 v12, 3, v0"); e("v_lshlrev_b32 v12, 3, v12"); e("v_add_u32 v11, v11, v12")
    e("s_mul_i32 s3, s31, 12288"); e("v_add_u32 v11, s3, v11")
    e("v_and_b32 v12, 1, v10"); e("v_lshlrev_b32 v12, 5, v12")
    e("v_add_u32 v7, v11, v12")
    e("v_xor_b32 v12, 32, v12"); e("v_add_u32 v8, v11, v12")
    e(f"v_add_u32 v9, {2*ST}, v7"); e(f"v_add_u32 v14, {2*ST}, v8")
    e(f"v_add_u32 v5, {4*ST}, v7"); e(f"v_add_u32 v6, {4*ST}, v8")
    e("s_lshl_b32 s3, s21, 3"); e("s_lshl_b32 s24, s30, 1"); e("s_add_u32 s24, s24, s3")
    e("s_mul_i32 s3, s24, 196608"); e("s_mul_i32 s25, s20, 49152"); e("s_add_u32 s3, s3, s25")
    e("s_lshl_b32 s25, s31, 10"); e("s_add_u32 s3, s3, s25"); e(f"s_add_u32 s3, s3, {WS_OF}")
    e("v_lshlrev_b32 v10, 4, v0"); e("v_add_u32 v15, s3, v10"); e("v_add_u32 v16, 196608, v15")
    e("s_lshl_b32 s3, s20, 7"); e("s_add_u32 s3, s3, s24"); e("s_add_u32 s3, s3, s31"); e("s_mul_i32 s3, s3, 20480")
    e("s_mul_i32 s25, s22, 5120"); e("s_add_u32 s3, s3, s25"); e(f"s_add_u32 s3, s3, {WS_PART}")
    e("v_add_u32 v17, s3, v10")
    e("s_mul_i32 s26, s23, 3072")
    e("s_mul_i32 s27, s20, 1966080")
    e("s_waitcnt lgkmcnt(0)")
    e("s_mul_i32 s3, s22, 320")
    e("s_add_u32 s8, s4, s3"); e("s_addc_u32 s9, s5, 0"); e(f"s_sub_u32 s8, s8, {BIAS}"); e("s_subb_u32 s9, s9, 0")
    e(f"s_sub_u32 s10, {7864320+BIAS}, s3"); e("s_mov_b32 s11, 0x20000")
    srd(P, 12, 6, 7, WS_BYTES)
    ACC = 176; AR = 20; ASL = 12; BR = 68; BS = 5
    def acc_reg(t, ct): return ACC + (t*2 + ct)*4
    def tr_fn(n):
        st, t = divmod(n, 10)
        slot = st % NS
        sett, so = divmod(slot, 2)
        areg = [[7, 8], [9, 14], [5, 6]][sett][t & 1]
        off = so*ST + (t >> 1)*64
        r = AR + (n % ASL)*4
        return [Ins(f"ds_read_b64_tr_b16 v[{r}:{r+1}], v{areg} offset:{off}"),
                Ins(f"ds_read_b64_tr_b16 v[{r+2}:{r+3}], v{areg} offset:{off+6144}")]
    def bload_fn(ks):
        b = BR + (ks % BS)*8
        return ([Ins(f"s_mov_b32 s28, {ks*2048}")],
                [Ins(f"buffer_load_dwordx4 v[{b+4*ct}:{b+4*ct+3}], v{15+ct}, s[12:15], s28 offen") for ct in range(2)])
    def dma_fn(st):
        return ([Ins(f"s_add_u32 m0, s26, {(st % NS)*ST}"), Ins(f"s_add_u32 s29, s27, {st*81920}")],
                [Ins(f"buffer_load_dwordx4 v{2+i}, s[8:11], s29 offen offset:{i*1024} lds") for i in range(3)])
    H = {}
    if stamps: e("s_memtime s[42:43]")
    BPF = 4; DPF = 4
    for st in range(2):
        L, D = dma_fn(st); P.many(L); P.many(D); H[st] = D[-1]
        L, D = bload_fn(st); P.many(L); P.many(D); H.setdefault('b', {})[st] = D[-1]
    P.wait_vm(H[0]); e("s_barrier")
    PF = 6
    for n in range(PF):
        rr = tr_fn(n); P.many(rr); H.setdefault('tr', {})[n] = rr[-1]
    if stamps: e("s_memtime s[44:45]"); e("s_waitcnt lgkmcnt(0)")
    gemm_stream(P, 24, 10, 2, 1, acc_reg, AR, ASL, BR, BS, tr_fn, bload_fn, dma_fn, H, PF, BPF, DPF, 24)
    if stamps: e("s_memtime s[46:47]")
    e("s_barrier")
    e("v_lshlrev_b32 v10, 4, v0")
    e("s_mul_i32 s3, s23, 10240"); e("v_add_u32 v11, s3, v10")
    e("s_xor_b32 s3, s23, 4"); e("s_mul_i32 s3, s3, 10240"); e("v_add_u32 v12, s3, v10")
    e("s_cmp_eq_u32 s31, 0"); e("s_cbranch_scc0 K3_KG1")
    for kg in range(2):
        if kg == 1: e("K3_KG1:")
        for t in range(10):
            a = acc_reg(t, 1-kg)
            e(f"ds_write_b128 v11, v[{a}:{a+3}] offset:{t*1024}")
        e("s_waitcnt lgkmcnt(0)"); e("s_barrier")
        for t in range(10):
            e(f"ds_read_b128 v[{20+4*t}:{23+4*t}], v12 offset:{t*1024}")
        for u in range(5):
            for hh in range(2):
                t = 2*u + hh; a = acc_reg(t, kg)
                for i in range(4): e(f"v_add_f32 v{a+i}, v{a+i}, v{20+4*t+i}")
                e(f"v_cvt_pk_bf16_f32 v{64+4*u+2*hh}, v{a}, v{a+1}")
                e(f"v_cvt_pk_bf16_f32 v{64+4*u+2*hh+1}, v{a+2}, v{a+3}")
            e(f"s_mov_b32 s28, {u*1024}")
            e(f"buffer_store_dwordx4 v[{64+4*u}:{67+4*u}], v17, s[12:15], s28 offen sc1")
        if kg == 0: e("s_branch K3_FIN")
    e("K3_FIN:")
    if stamps:
        e("s_waitcnt vmcnt(0)"); e("s_memtime s[48:49]")
        write_stamps(P, 5, 23, 12, 3)
    e("K3_END:")
    e("s_endpgm")
    P.finalize(auto_wait=auto)
    return P

def gen_k5b(stamps=False):
    P = Prog(); e = P.e
    NS = 5; ST = 24576
    e("s_cmp_ge_u32 s2, 256"); e("s_cbranch_scc1 K5_END")
    e("s_load_dwordx4 s[4:7], s[0:1], 48")
    e("s_load_dwordx2 s[16:17], s[0:1], 104")
    if stamps: e("s_memtime s[40:41]")
    e("s_and_b32 s20, s2, 7"); e("s_lshl_b32 s20, s20, 1"); e("s_lshr_b32 s3, s2, 3"); e("s_and_b32 s21, s3, 1"); e("s_add_u32 s20, s20, s21")
    e("s_lshr_b32 s21, s2, 4")
    e("v_lshrrev_b32 v1, 6, v0"); e("v_and_b32 v0, 63, v0")
    e("v_readfirstlane_b32 s23, v1")
    e("s_and_b32 s30, s23, 3"); e("s_lshr_b32 s31, s23, 2")
    e("v_lshrrev_b32 v10, 2, v0")
    e("s_lshr_b32 s3, s23, 1"); e("s_lshl_b32 s3, s3, 4"); e("v_add_u32 v10, s3, v10")
    e("v_lshrrev_b32 v11, 2, v10"); e("v_and_b32 v11, 1, v11"); e("v_lshlrev_b32 v11, 1, v11")
    e("v_and_b32 v12, 3, v0"); e("v_xor_b32 v11, v11, v12"); e("v_lshlrev_b32 v11, 4, v11")
    e("v_mul_u32_u24 v10, 3072, v10"); e("v_add_u32 v10, v10, v11")
    e(f"v_add_u32 v2, {BIAS}, v10"); e(f"v_add_u32 v3, {BIAS + 64 - 1024}, v10"); e(f"v_add_u32 v4, {BIAS + 128 - 2048}, v10")
    e("v_lshrrev_b32 v10, 4, v0")
    e("v_lshrrev_b32 v11, 2, v0"); e("v_lshlrev_b32 v11, 6, v11")
    e("v_and_b32 v12, 3, v0"); e("v_lshlrev_b32 v12, 3, v12"); e("v_add_u32 v11, v11, v12")
    e("s_mul_i32 s3, s31, 12288"); e("v_add_u32 v11, s3, v11")
    e("v_and_b32 v12, 1, v10"); e("v_lshlrev_b32 v12, 5, v12")
    e("v_add_u32 v7, v11, v12"); e("v_xor_b32 v12, 32, v12"); e("v_add_u32 v8, v11, v12")
    e(f"v_add_u32 v9, {2*ST}, v7"); e(f"v_add_u32 v14, {2*ST}, v8")
    e(f"v_add_u32 v5, {4*ST}, v7"); e(f"v_add_u32 v6, {4*ST}, v8")
    e("s_lshl_b32 s3, s21, 3"); e("s_lshl_b32 s24, s30, 1"); e("s_add_u32 s24, s24, s3")
    e("s_mul_i32 s3, s24, 20480"); e("s_lshl_b32 s25, s31, 10"); e("s_add_u32 s3, s3, s25"); e(f"s_add_u32 s3, s3, {WS_H2F}")
    e("v_lshlrev_b32 v10, 4, v0"); e("v_add_u32 v15, s3, v10"); e("v_add_u32 v16, 20480, v15")
    e("s_add_u32 s3, s24, s31"); e("s_mul_i32 s3, s3, 49152"); e("s_mul_i32 s25, s20, 3072"); e("s_add_u32 s3, s3, s25"); e(f"s_add_u32 s3, s3, {WS_ACT}")
    e("v_add_u32 v17, s3, v10")
    e("s_mul_i32 s26, s23, 3072")
    e("s_waitcnt lgkmcnt(0)")
    e("s_and_b32 s3, s23, 1"); e("s_cmp_eq_u32 s3, 0")
    e("s_cselect_b32 s8, s4, s6"); e("s_cselect_b32 s9, s5, s7")
    e("s_mul_i32 s3, s20, 192")
    e("s_add_u32 s8, s8, s3"); e("s_addc_u32 s9, s9, 0"); e(f"s_sub_u32 s8, s8, {BIAS}"); e("s_subb_u32 s9, s9, 0")
    e(f"s_sub_u32 s10, {640*3072+BIAS}, s3"); e("s_mov_b32 s11, 0x20000")
    srd(P, 12, 16, 17, WS_BYTES)
    ACC = 160; AR = 20; ASL = 12; BR = 68; BS = 5
    def acc_reg(t, ct): return ACC + (t*2 + ct)*4
    def tr_fn(n):
        st, t = divmod(n, 12)
        p = 3*(t // 6) + ((t % 6) >> 1)
        sett, so = divmod(st % NS, 2)
        areg = [[7, 8], [9, 14], [5, 6]][sett][t & 1]
        off = so*ST + p*1024
        r = AR + (n % ASL)*4
        return [Ins(f"ds_read_b64_tr_b16 v[{r}:{r+1}], v{areg} offset:{off}"),
                Ins(f"ds_read_b64_tr_b16 v[{r+2}:{r+3}], v{areg} offset:{off+6144}")]
    def bload_fn(ks):
        b = BR + (ks % BS)*8
        return ([Ins(f"s_mov_b32 s28, {ks*2048}")],
                [Ins(f"buffer_load_dwordx4 v[{b+4*ct}:{b+4*ct+3}], v{15+ct}, s[12:15], s28 offen") for ct in range(2)])
    def dma_fn(st):
        return ([Ins(f"s_add_u32 m0, s26, {(st % NS)*ST}"), Ins(f"s_mov_b32 s29, {st*64*3072}")],
                [Ins(f"buffer_load_dwordx4 v{2+i}, s[8:11], s29 offen offset:{i*1024} lds") for i in range(3)])
    H = {}
    if stamps: e("s_memtime s[42:43]")
    BPF = 4; DPF = 4
    for st in range(DPF):
        L, D = dma_fn(st); P.many(L); P.many(D); H[st] = D[-1]
        L, D = bload_fn(st); P.many(L); P.many(D); H.setdefault('b', {})[st] = D[-1]
    P.wait_vm(H[0]); e("s_barrier")
    PF = 6
    for n in range(PF):
        rr = tr_fn(n); P.many(rr); H.setdefault('tr', {})[n] = rr[-1]
    if stamps: e("s_memtime s[44:45]"); e("s_waitcnt lgkmcnt(0)")
    gemm_stream(P, 10, 12, 2, 1, acc_reg, AR, ASL, BR, BS, tr_fn, bload_fn, dma_fn, H, PF, BPF, DPF, 10)
    if stamps: e("s_memtime s[46:47]")
    e("s_barrier")
    e("v_lshlrev_b32 v10, 4, v0")
    e("s_mul_i32 s3, s23, 12288"); e("v_add_u32 v11, s3, v10")
    e("s_xor_b32 s3, s23, 4"); e("s_mul_i32 s3, s3, 12288"); e("v_add_u32 v12, s3, v10")
    e("s_cmp_eq_u32 s31, 0"); e("s_cbranch_scc0 K5_KG1")
    for kg in range(2):
        if kg == 1: e("K5_KG1:")
        for t in range(12):
            a = acc_reg(t, 1-kg)
            e(f"ds_write_b128 v11, v[{a}:{a+3}] offset:{t*1024}")
        e("s_waitcnt lgkmcnt(0)"); e("s_barrier")
        for t in range(12):
            e(f"ds_read_b128 v[{20+4*t}:{23+4*t}], v12 offset:{t*1024}")
        for t in range(12):
            a = acc_reg(t, kg)
            for i in range(4): e(f"v_add_f32 v{a+i}, v{a+i}, v{20+4*t+i}")
        for u in range(3):
            dst = 80 + u*4
            for hh in range(2):
                j = 2*u + hh
                g = acc_reg(j, kg); up = acc_reg(6+j, kg)
                for i in range(4): e(f"v_max_f32 v{g+i}, 0, v{g+i}")
                for i in range(4): e(f"v_mul_f32 v{g+i}, v{g+i}, v{up+i}")
                e(f"v_cvt_pk_bf16_f32 v{dst+2*hh}, v{g}, v{g+1}")
                e(f"v_cvt_pk_bf16_f32 v{dst+2*hh+1}, v{g+2}, v{g+3}")
            e(f"s_mov_b32 s28, {u*1024}")
            e(f"buffer_store_dwordx4 v[{dst}:{dst+3}], v17, s[12:15], s28 offen sc1")
        if kg == 0: e("s_branch K5_FIN")
    e("K5_FIN:")
    if stamps:
        e("s_waitcnt vmcnt(0)"); e("s_memtime s[48:49]")
        write_stamps(P, 5, 23, 12, 3)
    e("K5_END:")
    e("s_endpgm")
    P.finalize()
    return P

def gen_k6b(stamps=False):
    P = Prog(); e = P.e
    NS = 3; ST = 5120
    e("s_cmp_ge_u32 s2, 256"); e("s_cbranch_scc1 K6_END")
    e("s_load_dwordx2 s[4:5], s[0:1], 64")
    e("s_load_dwordx2 s[6:7], s[0:1], 88")
    e("s_load_dwordx2 s[16:17], s[0:1], 104")
    if stamps: e("s_memtime s[40:41]")
    e("s_and_b32 s20, s2, 7"); e("s_lshl_b32 s20, s20, 2"); e("s_lshr_b32 s3, s2, 6"); e("s_add_u32 s20, s20, s3")
    e("s_lshr_b32 s21, s2, 3"); e("s_and_b32 s21, s21, 7")
    e("v_lshrrev_b32 v1, 6, v0"); e("v_and_b32 v0, 63, v0")
    e("v_readfirstlane_b32 s23, v1")
    for i in range(5):
        e(f"v_add_u32 v10, {i*64}, v0")
        e("v_mul_u32_u24 v11, 6554, v10"); e("v_lshrrev_b32 v11, 16, v11")
        e("v_mul_u32_u24 v12, 10, v11"); e("v_sub_u32 v12, v10, v12")
        e("v_lshlrev_b32 v12, 4, v12"); e("v_mul_u32_u24 v11, 1280, v11"); e("v_add_u32 v11, v11, v12")
        e(f"v_add_u32 v{2+i}, {BIAS - (i*1024 if i < 4 else 0)}, v11")
    e("v_lshrrev_b32 v11, 2, v0"); e("v_mul_u32_u24 v11, 160, v11")
    e("v_and_b32 v12, 3, v0"); e("v_lshlrev_b32 v12, 3, v12"); e("v_add_u32 v7, v11, v12")
    e(f"s_mul_i32 s26, s23, {NS*ST}"); e("v_add_u32 v7, s26, v7")
    e("s_lshl_b32 s24, s20, 2")
    e("s_mul_i32 s3, s24, 49152"); e("s_mul_i32 s25, s23, 6144"); e("s_add_u32 s3, s3, s25"); e(f"s_add_u32 s3, s3, {WS_ACT}")
    e("v_lshlrev_b32 v10, 4, v0"); e("v_add_u32 v15, s3, v10")
    for ct in range(1, 4): e(f"v_add_u32 v{15+ct}, {ct*49152}, v15")
    e("s_mul_i32 s27, s23, 245760")
    e("s_lshr_b32 s36, s23, 1"); e("s_and_b32 s37, s23, 1")
    e("s_add_u32 s3, s24, s36"); e("s_mul_i32 s30, s3, 20480"); e(f"s_add_u32 s30, s30, {WS_X1}")
    e("v_add_u32 v8, s30, v10")
    e("v_lshrrev_b32 v11, 4, v0"); e("v_lshlrev_b32 v11, 4, v11"); e("s_mul_i32 s3, s21, 320"); e(f"s_add_u32 s3, s3, {WS_GB}")
    e("s_mul_i32 s25, s37, 192"); e("s_add_u32 s3, s3, s25"); e("v_add_u32 v9, s3, v11")
    e("v_and_b32 v12, 15, v0"); e("s_lshl_b32 s3, s20, 6"); e("s_lshl_b32 s25, s36, 4"); e("s_add_u32 s3, s3, s25"); e("v_add_u32 v12, s3, v12")
    e("v_mul_u32_u24 v12, 1280, v12"); e("v_lshrrev_b32 v11, 4, v0"); e("v_lshlrev_b32 v11, 3, v11"); e("v_add_u32 v12, v12, v11")
    e("s_mul_i32 s3, s21, 160"); e("s_mul_i32 s25, s37, 96"); e("s_add_u32 s3, s3, s25"); e("v_add_u32 v14, s3, v12")
    e("s_waitcnt lgkmcnt(0)")
    e("s_mul_i32 s3, s21, 160")
    e("s_add_u32 s8, s4, s3"); e("s_addc_u32 s9, s5, 0"); e(f"s_sub_u32 s8, s8, {BIAS}"); e("s_subb_u32 s9, s9, 0")
    e(f"s_sub_u32 s10, {1536*1280+BIAS}, s3"); e("s_mov_b32 s11, 0x20000")
    srd(P, 12, 16, 17, WS_BYTES); srd(P, 32, 6, 7, 2048*1280)
    ACC = 176; AR = 20; ASL = 8; BR = 52; BS = 6
    XR = 148; GBR = 156
    def acc_reg(t, ct): return ACC + (t*4 + ct)*4
    def tr_fn(n):
        ks, t = divmod(n, 5)
        off = (ks % NS)*ST + t*32
        r = AR + (n % ASL)*4
        return [Ins(f"ds_read_b64_tr_b16 v[{r}:{r+1}], v7 offset:{off}"),
                Ins(f"ds_read_b64_tr_b16 v[{r+2}:{r+3}], v7 offset:{off+2560}")]
    def bload_fn(ks):
        b = BR + (ks % BS)*16
        return ([Ins(f"s_mov_b32 s28, {ks*1024}")],
                [Ins(f"buffer_load_dwordx4 v[{b+4*ct}:{b+4*ct+3}], v{15+ct}, s[12:15], s28 offen") for ct in range(4)])
    def dma_fn(st):
        L = [Ins(f"s_add_u32 m0, s26, {(st % NS)*ST}"), Ins(f"s_add_u32 s29, s27, {st*32*1280}")]
        D = [Ins(f"buffer_load_dwordx4 v{2+i}, s[8:11], s29 offen offset:{i*1024} lds") for i in range(4)]
        D.append(Ins(f"s_add_u32 m0, s26, {(st % NS)*ST + 4096}"))
        D.append(Ins(f"buffer_load_dwordx4 v6, s[8:11], s29 offen lds"))
        return L, D
    H = {}; bh = {}
    if stamps: e("s_memtime s[42:43]")
    NK = 6
    for st in range(NS):
        L, D = dma_fn(st); P.many(L); P.many(D); H[st] = D[-1]
        L, D = bload_fn(st); P.many(L); P.many(D); bh[st] = D[-1]
    for st in range(NS, NK):
        L, D = bload_fn(st); P.many(L); P.many(D); bh[st] = D[-1]
    for j in range(3):
        e(f"s_mul_i32 s3, s21, 5"); e("s_mul_i32 s38, s37, 3"); e("s_add_u32 s3, s3, s38"); e(f"s_add_u32 s3, s3, {j}")
        e("s_lshr_b32 s31, s3, 1"); e("s_lshl_b32 s31, s31, 10"); e("s_and_b32 s3, s3, 1"); e("s_lshl_b32 s3, s3, 3"); e("s_add_u32 s31, s31, s3")
        e(f"buffer_load_dwordx2 v[{XR+2*j}:{XR+2*j+1}], v8, s[12:15], s31 offen")
        e(f"buffer_load_dwordx4 v[{GBR+4*j}:{GBR+4*j+3}], v9, s[12:15], 0 offen offset:{j*64}")
    H['b'] = bh
    bar0 = GOPT['barrier']; GOPT['barrier'] = False
    P.wait_vm(H[0])
    PF = 4
    for n in range(PF):
        rr = tr_fn(n); P.many(rr); H.setdefault('tr', {})[n] = rr[-1]
    if stamps: e("s_memtime s[44:45]"); e("s_waitcnt lgkmcnt(0)")
    global GAP
    g0 = GAP; GAP = 1
    gemm_stream(P, NK, 5, 4, 1, acc_reg, AR, ASL, BR, BS, tr_fn, bload_fn, dma_fn, H, PF, NK, 2, NK, WG=1)
    GAP = g0; GOPT['barrier'] = bar0
    if stamps: e("s_memtime s[46:47]")
    e("s_barrier")
    e("v_lshlrev_b32 v10, 4, v0")
    e("s_mul_i32 s3, s23, 20480"); e("v_add_u32 v11, s3, v10")
    for ct in range(4):
        for t in range(5):
            a = acc_reg(t, ct)
            e(f"ds_write_b128 v11, v[{a}:{a+3}] offset:{(ct*5+t)*1024}")
    e("s_waitcnt lgkmcnt(0)"); e("s_barrier")
    e("s_mul_i32 s3, s36, 5120"); e("s_mul_i32 s25, s37, 3072"); e("s_add_u32 s3, s3, s25"); e("v_add_u32 v11, s3, v10")
    for q in range(1, 4): e(f"v_add_u32 v{168+q}, {q*40960}, v11")
    def fin(j):
        y = 20 + j*32
        for sw in range(8):
            areg = 11 if sw < 2 else 168 + (sw >> 1)
            e(f"ds_read_b128 v[{y+4*sw}:{y+4*sw+3}], v{areg} offset:{(sw & 1)*20480 + j*1024}")
        for sw in range(1, 8):
            for i in range(4): e(f"v_add_f32 v{y+i}, v{y+i}, v{y+4*sw+i}")
        x = XR + 2*j
        e(f"v_lshlrev_b32 v172, 16, v{x}"); e(f"v_and_b32 v173, 0xffff0000, v{x}")
        e(f"v_lshlrev_b32 v174, 16, v{x+1}"); e(f"v_and_b32 v175, 0xffff0000, v{x+1}")
        for i in range(4): e(f"v_fma_f32 v{y+i}, v{y+i}, v{GBR+4*j+i}, v{172+i}")
        e(f"v_cvt_pk_bf16_f32 v{y}, v{y}, v{y+1}"); e(f"v_cvt_pk_bf16_f32 v{y+1}, v{y+2}, v{y+3}")
        e(f"buffer_store_dwordx2 v[{y}:{y+1}], v14, s[32:35], 0 offen offset:{j*32}")
    fin(0); fin(1)
    e("s_cmp_eq_u32 s37, 0"); e("s_cbranch_scc0 K6_FIN")
    fin(2)
    e("K6_FIN:")
    if stamps:
        e("s_waitcnt vmcnt(0)"); e("s_memtime s[48:49]")
        write_stamps(P, 5, 23, 12, 3)
    e("K6_END:")
    e("s_endpgm")
    P.finalize()
    return P

def gen_k5c(stamps=False, pf_down=True, auto=True):
    P = Prog(); e = P.e
    NS = 5; ST = 24576
    e("s_cmp_ge_u32 s2, 256"); e("s_cbranch_scc1 K5_END")
    e("s_load_dwordx4 s[4:7], s[0:1], 48")
    e("s_load_dwordx2 s[16:17], s[0:1], 104")
    e("s_load_dwordx2 s[18:19], s[0:1], 64")
    if stamps: e("s_memtime s[40:41]")
    e("s_and_b32 s20, s2, 7"); e("s_lshl_b32 s20, s20, 1"); e("s_lshr_b32 s3, s2, 3"); e("s_and_b32 s21, s3, 1"); e("s_add_u32 s20, s20, s21")
    e("s_lshr_b32 s21, s2, 4")
    e("v_lshrrev_b32 v1, 6, v0"); e("v_and_b32 v0, 63, v0")
    e("v_readfirstlane_b32 s23, v1")
    e("v_lshrrev_b32 v10, 2, v0")
    e("s_and_b32 s30, s23, 3"); e("s_lshr_b32 s31, s23, 2")
    e("s_lshr_b32 s3, s23, 1"); e("s_lshl_b32 s3, s3, 4"); e("v_add_u32 v10, s3, v10")
    e("v_lshrrev_b32 v11, 2, v10"); e("v_and_b32 v11, 1, v11"); e("v_lshlrev_b32 v11, 1, v11")
    e("v_and_b32 v12, 3, v0"); e("v_xor_b32 v11, v11, v12"); e("v_lshlrev_b32 v11, 4, v11")
    e("v_mul_u32_u24 v10, 3072, v10"); e("v_add_u32 v10, v10, v11")
    e(f"v_add_u32 v2, {BIAS}, v10"); e(f"v_add_u32 v3, {BIAS + 64 - 1024}, v10"); e(f"v_add_u32 v4, {BIAS + 128 - 2048}, v10")
    e("s_lshl_b32 s3, s21, 3"); e("s_lshl_b32 s24, s30, 1"); e("s_add_u32 s24, s24, s3")
    e("s_mul_i32 s3, s24, 20480"); e(f"s_add_u32 s3, s3, {WS_H2F}")
    e("v_lshlrev_b32 v13, 4, v0"); e("v_add_u32 v15, s3, v13"); e("v_add_u32 v16, 20480, v15")
    e("s_mul_i32 s26, s23, 3072")
    e("s_waitcnt lgkmcnt(0)")
    e("s_and_b32 s3, s23, 1"); e("s_cmp_eq_u32 s3, 0")
    e("s_cselect_b32 s8, s4, s6"); e("s_cselect_b32 s9, s5, s7")
    e("s_mul_i32 s3, s20, 192")
    e("s_add_u32 s8, s8, s3"); e("s_addc_u32 s9, s9, 0"); e(f"s_sub_u32 s8, s8, {BIAS}"); e("s_subb_u32 s9, s9, 0")
    e(f"s_sub_u32 s10, {640*3072+BIAS}, s3"); e("s_mov_b32 s11, 0x20000")
    srd(P, 12, 16, 17, WS_BYTES)
    srd(P, 36, 18, 19, 1966080)
    ACC = 200; AR = 40; ASL = 12; BR = 88; BS = 9
    TA = [[20, 21, 22], [23, 24, 25], [26, 27, 28]]
    def acc_reg(t, ct): return ACC + (t*2 + ct)*4
    def tr_fn(n):
        ks, t = divmod(n, 6)
        st, kk = divmod(ks, 2)
        sett, so = divmod(st % NS, 2)
        off = so*ST + kk*12288 + (3072 if t >= 3 else 0)
        r = AR + (n % ASL)*4; a = TA[sett][t % 3]
        return [Ins(f"ds_read_b64_tr_b16 v[{r}:{r+1}], v{a} offset:{off}"),
                Ins(f"ds_read_b64_tr_b16 v[{r+2}:{r+3}], v{a} offset:{off+6144}")]
    def bload_fn(ks):
        b = BR + (ks % BS)*8
        return ([Ins(f"s_mov_b32 s28, {ks*1024}")],
                [Ins(f"buffer_load_dwordx4 v[{b+4*ct}:{b+4*ct+3}], v{15+ct}, s[12:15], s28 offen") for ct in range(2)])
    def dma_fn(st):
        return ([Ins(f"s_add_u32 m0, s26, {(st % NS)*ST}"), Ins(f"s_mov_b32 s29, {st*64*3072}")],
                [Ins(f"buffer_load_dwordx4 v{2+i}, s[8:11], s29 offen offset:{i*1024} lds") for i in range(3)])
    H = {'b': {}}
    if stamps: e("s_memtime s[42:43]")
    BPF = 8; DPF = 4
    L, D = dma_fn(0); P.many(L); P.many(D); H[0] = D[-1]
    for ks in range(2):
        L, D = bload_fn(ks); P.many(L); P.many(D); H['b'][ks] = D[-1]
    L, D = dma_fn(1); P.many(L); P.many(D); H[1] = D[-1]
    e("v_lshrrev_b32 v10, 4, v0")
    e("v_lshrrev_b32 v11, 2, v0"); e("v_lshlrev_b32 v11, 6, v11")
    e("v_and_b32 v12, 3, v0"); e("v_lshlrev_b32 v12, 3, v12"); e("v_add_u32 v11, v11, v12")
    e("v_and_b32 v12, 1, v10"); e("v_lshlrev_b32 v12, 5, v12")
    e("v_add_u32 v5, v11, v12"); e("v_xor_b32 v12, 32, v12"); e("v_add_u32 v6, v11, v12")
    e("s_lshl_b32 s3, s31, 11"); e("v_add_u32 v20, s3, v5"); e("v_add_u32 v21, s3, v6")
    e("s_cmp_eq_u32 s31, 0"); e("s_cselect_b64 vcc, -1, 0")
    e("v_cndmask_b32 v22, v6, v5, vcc"); e("v_add_u32 v22, 1024, v22")
    for sett in (1, 2):
        for tp in range(3): e(f"v_add_u32 v{TA[sett][tp]}, {2*sett*ST}, v{TA[0][tp]}")
    e("s_mul_i32 s3, s24, 49152"); e("s_mul_i32 s25, s20, 3072"); e("s_add_u32 s3, s3, s25"); e(f"s_add_u32 s3, s3, {WS_ACT}")
    e("v_add_u32 v7, s3, v13"); e("s_lshl_b32 s25, s31, 11"); e("v_add_u32 v17, s25, v7"); e("v_add_u32 v18, 49152, v17")
    e("s_lshl_b32 s25, s31, 3"); e("s_add_u32 s25, s25, 1024"); e("v_add_u32 v7, s25, v7"); e("v_add_u32 v8, 49152, v7")
    P.wait_vm(H[0]); e("s_barrier")
    PF = 6
    for n in range(PF):
        rr = tr_fn(n); P.many(rr); H.setdefault('tr', {})[n] = rr[-1]
    if stamps: e("s_memtime s[44:45]"); e("s_waitcnt lgkmcnt(0)")
    extra = []
    if pf_down:
        extra = [(Ins("s_lshr_b32 s33, s2, 3"), 150, 200), (Ins("s_lshl_b32 s33, s33, 3"), 150, 200), (Ins("s_add_u32 s33, s33, s23"), 150, 200),
                 (Ins("s_mul_i32 s33, s33, 7680"), 150, 200), (Ins("v_lshlrev_b32 v9, 7, v0"), 150, 200), (Ins("v_add_u32 v9, s33, v9"), 150, 200),
                 (NT("buffer_load_dword v14, v9, s[36:39], 0 offen"), 150, 200)]
    gemm_stream(P, 20, 6, 2, 2, acc_reg, AR, ASL, BR, BS, tr_fn, bload_fn, dma_fn, H, PF, BPF, DPF, 10, extra=extra)
    if stamps: e("s_memtime s[46:47]")
    for ct in range(2):
        for tp in range(3):
            g = acc_reg(tp, ct); up = acc_reg(3+tp, ct)
            for i in range(4): e(f"v_max_f32 v{g+i}, 0, v{g+i}")
            for i in range(4): e(f"v_mul_f32 v{g+i}, v{g+i}, v{up+i}")
            d = 40 + ct*8 + 2*tp
            e(f"v_cvt_pk_bf16_f32 v{d}, v{g}, v{g+1}"); e(f"v_cvt_pk_bf16_f32 v{d+1}, v{g+2}, v{g+3}")
        d = 40 + ct*8
        e(f"buffer_store_dwordx4 v[{d}:{d+3}], v{17+ct}, s[12:15], 0 offen sc1")
        e(f"buffer_store_dwordx2 v[{d+4}:{d+5}], v{7+ct}, s[12:15], 0 offen sc1")
    if stamps:
        e("s_waitcnt vmcnt(0)"); e("s_memtime s[48:49]")
        write_stamps(P, 5, 23, 12, 3)
    e("K5_END:")
    e("s_endpgm")
    P.finalize(auto_wait=auto)
    return P

def gen_k6c(stamps=False, auto=True):
    P = Prog(); e = P.e
    NS = 4; ST = 10240
    e("s_cmp_ge_u32 s2, 256"); e("s_cbranch_scc1 K6_END")
    e("s_load_dwordx2 s[4:5], s[0:1], 64")
    e("s_load_dwordx2 s[6:7], s[0:1], 88")
    e("s_load_dwordx2 s[16:17], s[0:1], 104")
    if stamps: e("s_memtime s[40:41]")
    e("s_and_b32 s20, s2, 7"); e("s_lshl_b32 s20, s20, 2"); e("s_lshr_b32 s3, s2, 6"); e("s_add_u32 s20, s20, s3")
    e("s_lshr_b32 s21, s2, 3"); e("s_and_b32 s21, s21, 7")
    e("v_lshrrev_b32 v1, 6, v0"); e("v_and_b32 v0, 63, v0")
    e("v_readfirstlane_b32 s23, v1")
    e("v_lshlrev_b32 v2, 4, v0"); e("v_add_u32 v6, 4096, v2")
    e("s_and_b32 s36, s23, 1"); e("s_lshr_b32 s37, s23, 1")
    e(f"s_mul_i32 s26, s37, {NS*ST}"); e("s_mul_i32 s3, s36, 5120"); e("s_add_u32 s39, s26, s3")
    e("s_mul_i32 s27, s37, 61440"); e("s_mul_i32 s3, s36, 5120"); e("s_add_u32 s27, s27, s3")
    e("s_mul_i32 s3, s21, 245760"); e("s_add_u32 s27, s27, s3"); e(f"s_add_u32 s27, s27, {WS_WD}")
    e("s_lshl_b32 s24, s20, 2"); e("s_lshl_b32 s3, s36, 1"); e("s_add_u32 s24, s24, s3")
    e("s_mul_i32 s3, s24, 49152"); e("s_mul_i32 s25, s37, 12288"); e("s_add_u32 s3, s3, s25"); e(f"s_add_u32 s3, s3, {WS_ACT}")
    e("v_lshlrev_b32 v10, 4, v0"); e("v_add_u32 v15, s3, v10"); e("v_add_u32 v16, 49152, v15")
    e("s_waitcnt lgkmcnt(0)")
    srd(P, 12, 16, 17, WS_BYTES); srd(P, 32, 6, 7, 2048*1280)
    ACC = 200; AR = 20; ASL = 10; BR = 60; BS = 12
    XR = 156; GBR = 164
    def acc_reg(t, ct): return ACC + (t*2 + ct)*4
    def tr_fn(n):
        ks, t = divmod(n, 5)
        st, kk = divmod(ks, 2)
        off = (st % NS)*ST + kk*5120 + t*32
        r = AR + (n % ASL)*4
        return [Ins(f"ds_read_b64_tr_b16 v[{r}:{r+1}], v7 offset:{off}"),
                Ins(f"ds_read_b64_tr_b16 v[{r+2}:{r+3}], v7 offset:{off+2560}")]
    def bload_fn(ks):
        b = BR + (ks % BS)*8
        return ([Ins(f"s_mov_b32 s28, {ks*1024}")],
                [Ins(f"buffer_load_dwordx4 v[{b+4*ct}:{b+4*ct+3}], v{15+ct}, s[12:15], s28 offen") for ct in range(2)])
    def dma_fn(st):
        L = [Ins(f"s_add_u32 m0, s39, {(st % NS)*ST}"), Ins(f"s_add_u32 s29, s27, {st*10240}")]
        D = [Ins(f"buffer_load_dwordx4 v2, s[12:15], s29 offen offset:{i*1024} lds") for i in range(4)]
        D.append(Ins(f"s_add_u32 m0, s39, {(st % NS)*ST + 4096}"))
        D.append(Ins(f"buffer_load_dwordx4 v6, s[12:15], s29 offen lds"))
        return L, D
    H = {'b': {}}
    if stamps: e("s_memtime s[42:43]")
    L, D = dma_fn(0); P.many(L); P.many(D); H[0] = D[-1]
    for ks in range(2):
        L, D = bload_fn(ks); P.many(L); P.many(D); H['b'][ks] = D[-1]
    L, D = dma_fn(1); P.many(L); P.many(D); H[1] = D[-1]
    for ks in range(2, 4):
        L, D = bload_fn(ks); P.many(L); P.many(D); H['b'][ks] = D[-1]
    e("v_lshrrev_b32 v11, 2, v0"); e("v_mul_u32_u24 v11, 160, v11")
    e("v_and_b32 v12, 3, v0"); e("v_lshlrev_b32 v12, 3, v12"); e("v_add_u32 v7, v11, v12"); e("v_add_u32 v7, s26, v7")
    e("s_mul_i32 s38, s37, 3"); e("s_cmp_eq_u32 s37, 3"); e("s_cselect_b32 s38, 8, s38")
    e("v_lshrrev_b32 v11, 4, v0"); e("v_lshlrev_b32 v13, 4, v11")
    e("v_and_b32 v12, 15, v0"); e("v_mul_u32_u24 v12, 1280, v12"); e("v_lshlrev_b32 v11, 3, v11"); e("v_add_u32 v12, v12, v11")
    for j in range(3):
        e(f"s_add_u32 s44, s38, {j}"); e("s_min_u32 s44, s44, 9")
        e("s_lshr_b32 s45, s44, 1"); e("s_and_b32 s46, s44, 1")
        e("s_mul_i32 s3, s21, 5"); e("s_add_u32 s3, s3, s45")
        e("s_add_u32 s47, s24, s46")
        e("s_mul_i32 s48, s47, 20480"); e("s_lshr_b32 s49, s3, 1"); e("s_lshl_b32 s49, s49, 10"); e("s_add_u32 s48, s48, s49")
        e("s_and_b32 s49, s3, 1"); e("s_lshl_b32 s49, s49, 3"); e("s_add_u32 s48, s48, s49"); e(f"s_add_u32 s48, s48, {WS_X1}")
        e(f"buffer_load_dwordx2 v[{XR+2*j}:{XR+2*j+1}], v10, s[12:15], s48 offen")
        e("s_lshl_b32 s49, s3, 6"); e(f"s_add_u32 s49, s49, {WS_GB}")
        e(f"buffer_load_dwordx4 v[{GBR+4*j}:{GBR+4*j+3}], v13, s[12:15], s49 offen")
        e("s_mul_i32 s48, s47, 20480"); e("s_lshl_b32 s49, s3, 5"); e(f"s_add_u32 s{50+j}, s48, s49")
    P.wait_vm(H[0]); e("s_barrier")
    PF = 5
    for n in range(PF):
        rr = tr_fn(n); P.many(rr); H.setdefault('tr', {})[n] = rr[-1]
    if stamps: e("s_memtime s[54:55]"); e("s_waitcnt lgkmcnt(0)"); e("s_mov_b32 s44, s54"); e("s_mov_b32 s45, s55")
    global GAP
    g0 = GAP; GAP = 2
    gemm_stream(P, 12, 5, 2, 2, acc_reg, AR, ASL, BR, BS, tr_fn, bload_fn, dma_fn, H, PF, 8, 3, 6, WG=1, early=True)
    GAP = g0
    if stamps: e("s_memtime s[46:47]")
    e("s_barrier")
    e("s_mul_i32 s3, s23, 10240"); e("v_add_u32 v11, s3, v10")
    for idx in range(10):
        a = ACC + idx*4
        e(f"ds_write_b128 v11, v[{a}:{a+3}] offset:{idx*1024}")
    e("s_waitcnt lgkmcnt(0)"); e("s_barrier")
    e("s_mul_i32 s3, s36, 10240"); e("s_lshl_b32 s25, s38, 10"); e("s_add_u32 s3, s3, s25"); e("v_add_u32 v11, s3, v10"); e("v_add_u32 v14, 40960, v11")
    def fin(j):
        y = 20 + j*16
        for q in range(4):
            e(f"ds_read_b128 v[{y+4*q}:{y+4*q+3}], v{11 if q < 2 else 14} offset:{(q & 1)*20480 + j*1024}")
        for q in range(1, 4):
            for i in range(4): e(f"v_add_f32 v{y+i}, v{y+i}, v{y+4*q+i}")
        x = XR + 2*j
        e(f"v_lshlrev_b32 v176, 16, v{x}"); e(f"v_and_b32 v177, 0xffff0000, v{x}")
        e(f"v_lshlrev_b32 v178, 16, v{x+1}"); e(f"v_and_b32 v179, 0xffff0000, v{x+1}")
        for i in range(4): e(f"v_fma_f32 v{y+i}, v{y+i}, v{GBR+4*j+i}, v{176+i}")
        e(f"v_cvt_pk_bf16_f32 v{y}, v{y}, v{y+1}"); e(f"v_cvt_pk_bf16_f32 v{y+1}, v{y+2}, v{y+3}")
        e(f"buffer_store_dwordx2 v[{y}:{y+1}], v12, s[32:35], s{50+j} offen")
    fin(0); fin(1)
    e("s_cmp_ge_u32 s37, 2"); e("s_cbranch_scc1 K6_FIN")
    fin(2)
    e("K6_FIN:")
    if stamps:
        e("s_waitcnt vmcnt(0)"); e("s_memtime s[48:49]")
        write_stamps(P, 5, 23, 12, 3)
    e("K6_END:")
    e("s_endpgm")
    P.finalize(auto_wait=auto)
    return P


def gen_k5e(stamps=False, auto=True):
    P = Prog(); e = P.e
    NS = 5; ST = 12288
    e("s_cmp_ge_u32 s2, 256"); e("s_cbranch_scc1 K5_END")
    e("s_load_dwordx2 s[16:17], s[0:1], 104")
    if stamps: e("s_memtime s[40:41]")
    e("s_and_b32 s20, s2, 7"); e("s_lshl_b32 s20, s20, 1"); e("s_lshr_b32 s3, s2, 3"); e("s_and_b32 s21, s3, 1"); e("s_add_u32 s20, s20, s21")
    e("s_lshr_b32 s21, s2, 4")
    e("v_lshrrev_b32 v1, 6, v0"); e("v_and_b32 v0, 63, v0")
    e("v_readfirstlane_b32 s23, v1")
    for i in range(3):
        e(f"v_add_u32 v10, {i*64}, v0")
        e("v_mul_u32_u24 v11, 2731, v10"); e("v_lshrrev_b32 v11, 16, v11")
        e("v_lshrrev_b32 v13, 1, v11"); e("v_and_b32 v13, 3, v13"); e("v_lshlrev_b32 v13, 1, v13")
        e("v_mul_u32_u24 v11, 24, v11"); e("v_sub_u32 v12, v10, v11")
        e("v_xor_b32 v12, v12, v13"); e("v_add_u32 v12, v12, v11"); e("v_lshlrev_b32 v12, 4, v12")
        e(f"v_add_u32 v{2+i}, {BIAS - i*1024}, v12")
    e("s_mul_i32 s3, s23, 3072")
    for i in range(3): e(f"v_add_u32 v{2+i}, s3, v{2+i}")
    e("s_lshl_b32 s3, s21, 3"); e("s_lshl_b32 s24, s23, 1"); e("s_add_u32 s24, s24, s3")
    e("s_mul_i32 s3, s24, 20480"); e(f"s_add_u32 s3, s3, {WS_H2F}")
    e("v_lshlrev_b32 v10, 4, v0"); e("v_add_u32 v15, s3, v10"); e("v_add_u32 v16, 20480, v15")
    e("s_mul_i32 s26, s23, 3072")
    e("s_waitcnt lgkmcnt(0)")
    e("s_mul_i32 s27, s20, 245760"); e(f"s_add_u32 s27, s27, {WS_WGU - BIAS}")
    srd(P, 12, 16, 17, WS_BYTES)
    ACC = 160; AR = 20; ASL = 12; BR = 68; BS = 6
    TAD = [5, 6, 7, 8]
    def acc_reg(t, ct): return ACC + (t*2 + ct)*4
    def tr_fn(n):
        ks, t = divmod(n, 12)
        pair = t
        off = (ks % NS)*ST + (pair >> 2)*128
        r = AR + (n % ASL)*4; a = TAD[pair & 3]
        return [Ins(f"ds_read_b64_tr_b16 v[{r}:{r+1}], v{a} offset:{off}"),
                Ins(f"ds_read_b64_tr_b16 v[{r+2}:{r+3}], v{a} offset:{off+6144}")]
    def bload_fn(ks):
        b = BR + (ks % BS)*8
        return ([Ins(f"s_mov_b32 s28, {ks*1024}")],
                [Ins(f"buffer_load_dwordx4 v[{b+4*ct}:{b+4*ct+3}], v{15+ct}, s[12:15], s28 offen") for ct in range(2)])
    def dma_fn(st):
        return ([Ins(f"s_add_u32 m0, s26, {(st % NS)*ST}"), Ins(f"s_add_u32 s29, s27, {st*12288}")],
                [Ins(f"buffer_load_dwordx4 v{2+i}, s[12:15], s29 offen offset:{i*1024} lds") for i in range(3)])
    H = {'b': {}}
    if stamps: e("s_memtime s[42:43]")
    BPF = 5; DPF = 4
    for st in range(2):
        L, D = dma_fn(st); P.many(L); P.many(D); H[st] = D[-1]
        L, D = bload_fn(st); P.many(L); P.many(D); H['b'][st] = D[-1]
    e("v_lshrrev_b32 v11, 2, v0")
    e("v_lshrrev_b32 v12, 1, v11"); e("v_and_b32 v12, 3, v12"); e("v_lshlrev_b32 v12, 5, v12")
    e("v_mul_u32_u24 v11, 384, v11")
    e("v_and_b32 v13, 3, v0"); e("v_lshlrev_b32 v13, 3, v13"); e("v_add_u32 v11, v11, v13")
    for q in range(4):
        e(f"v_xor_b32 v13, {q*32}, v12"); e(f"v_add_u32 v{5+q}, v11, v13")
    e("v_lshlrev_b32 v10, 4, v0")
    e("s_mul_i32 s3, s24, 49152"); e("s_mul_i32 s25, s20, 3072"); e("s_add_u32 s3, s3, s25"); e(f"s_add_u32 s3, s3, {WS_ACT}")
    e("v_add_u32 v17, s3, v10"); e("v_add_u32 v18, 49152, v17")
    P.wait_vm(H[0]); e("s_barrier")
    PF = 6
    for n in range(PF):
        rr = tr_fn(n); P.many(rr); H.setdefault('tr', {})[n] = rr[-1]
    if stamps: e("s_memtime s[44:45]"); e("s_waitcnt lgkmcnt(0)")
    gemm_stream(P, 20, 12, 2, 1, acc_reg, AR, ASL, BR, BS, tr_fn, bload_fn, dma_fn, H, PF, BPF, DPF, 20)
    if stamps: e("s_memtime s[46:47]")
    for u in range(3):
        e(f"s_mov_b32 s28, {u*1024}")
        for ct in range(2):
            dst = 20 + (u*2 + ct)*4
            for hh in range(2):
                j = 2*u + hh
                g = acc_reg(j, ct); up = acc_reg(6+j, ct)
                for i in range(4): e(f"v_max_f32 v{g+i}, 0, v{g+i}")
                for i in range(4): e(f"v_mul_f32 v{g+i}, v{g+i}, v{up+i}")
                e(f"v_cvt_pk_bf16_f32 v{dst+2*hh}, v{g}, v{g+1}")
                e(f"v_cvt_pk_bf16_f32 v{dst+2*hh+1}, v{g+2}, v{g+3}")
            e(f"buffer_store_dwordx4 v[{dst}:{dst+3}], v{17+ct}, s[12:15], s28 offen sc1")
    if stamps:
        e("s_waitcnt vmcnt(0)"); e("s_memtime s[48:49]")
        write_stamps(P, 5, 23, 12)
    e("K5_END:")
    e("s_endpgm")
    P.finalize(auto_wait=auto)
    return P

def write_stamps(P, n, sw, sws, sh=2):
    P.e("s_waitcnt lgkmcnt(0)")
    P.e(f"s_lshl_b32 s3, s2, {sh}"); P.e(f"s_add_u32 s3, s3, s{sw}"); P.e("s_lshl_b32 s3, s3, 6"); P.e(f"s_add_u32 s3, s3, {WS_STAMP}")
    for i in range(n):
        P.e(f"v_mov_b32 v1, s{40+2*i}")
        P.e(f"v_mov_b32 v2, s3")
        P.e(f"buffer_store_dword v1, v2, s[{sws}:{sws+3}], 0 offen offset:{4*i}")
        P.e("s_waitcnt vmcnt(0)")

if __name__ == "__main__":
    from k2gen import wrap
    k3 = gen_k3(stamps=True)
    print("k3 est", k3.estimate(), len(k3.final))
    open("k3.s", "w").write(wrap([("k3_kernel", k3.text(), 256, 256)], [("k3_kernel", 256, 256, 122880)]))
    for nm, fn, lds in (("k3", gen_k3b, 122880), ("k5", gen_k5b, 122880), ("k6", gen_k6b, 163840)):
        k = fn(stamps=True); print(nm, "b est", k.estimate(), len(k.final))
        open(nm + "b.s", "w").write(wrap([(nm + "_kernel", k.text(), 256, 256)], [(nm + "_kernel", 256, 512, lds)]))
    k = gen_k5e(stamps=True); print("k5e est", k.estimate(), len(k.final))
    open("k5e.s", "w").write(wrap([("k5_kernel", k.text(), 256, 256)], [("k5_kernel", 256, 256, 61440)]))
    for nm, fn, lds in (("k5", gen_k5c, 122880), ("k6", gen_k6c, 163840)):
        k = fn(stamps=True); print(nm, "c est", k.estimate(), len(k.final))
        open(nm + "c.s", "w").write(wrap([(nm + "_kernel", k.text(), 256, 256)], [(nm + "_kernel", 256, 512, lds)]))
    for nm, o in [("a", dict(dma=False, waits=False)), ("b", dict(bload=False, waits=False)), ("c", dict(waits=False)), ("d", dict(dma=False, bload=False, waits=False))]:
        GOPT.update(dict(dma=True, bload=True, tr=True, barrier=True, waits=True)); GOPT.update(o)
        k = gen_k6c(stamps=True, auto=False)
        open(f"k6c{nm}.s", "w").write(wrap([("k6_kernel", k.text(), 256, 256)], [("k6_kernel", 256, 512, 163840)]))
        k = gen_k5c(stamps=True, auto=False)
        open(f"k5c{nm}.s", "w").write(wrap([("k5_kernel", k.text(), 256, 256)], [("k5_kernel", 256, 512, 122880)]))
    GOPT.update(dict(dma=True, bload=True, tr=True, barrier=True, waits=True))
    k5 = gen_k5(stamps=True); print("k5 est", k5.estimate(), len(k5.final))
    open("k5.s", "w").write(wrap([("k5_kernel", k5.text(), 256, 256)], [("k5_kernel", 256, 256, 61440)]))
    k6 = gen_k6(stamps=True); print("k6 est", k6.estimate(), len(k6.final))
    open("k6.s", "w").write(wrap([("k6_kernel", k6.text(), 256, 256)], [("k6_kernel", 256, 256, 122880)]))
    for nm, o in [] and [("a", dict(dma=False, waits=False)), ("b", dict(bload=False, waits=False)), ("c", dict(waits=False)), ("d", dict(waits=False, barrier=False)), ("e", dict(waits=False, tr=False))]:
        GOPT.update(dict(dma=True, bload=True, tr=True, barrier=True, waits=True)); GOPT.update(o)
        k = gen_k3(stamps=True, auto=GOPT['waits'])
        open(f"k3{nm}.s", "w").write(wrap([("k3_kernel", k.text(), 256, 256)], [("k3_kernel", 256, 256, 122880)]))
```

```python
from asmgen import *
from k2gen import WS_MOD, WS_HF, WS_OF, WS_PART, WS_X1, WS_H2F, WS_ACT, WS_BYTES, WS_WD, WS_WGU, WS_CNT
C_SCALE = 192**-0.5 * 1.4426950408889634
import struct
def f2u(x): return struct.unpack('<I', struct.pack('<f', x))[0]

NSPLIT = 4

def srd(P, s, lo, hi, nbytes):
    P.e(f"s_mov_b32 s{s}, s{lo}"); P.e(f"s_mov_b32 s{s+1}, s{hi}")
    P.e(f"s_mov_b32 s{s+2}, {nbytes}"); P.e(f"s_mov_b32 s{s+3}, 0x20000")

def pf_role(P, name, nmain, npf, ranges):
    e = P.e
    e(f"{name}_PF:")
    e(f"s_cmp_ge_u32 s2, {nmain+npf}"); e(f"s_cbranch_scc1 {name}_END")
    e(f"s_sub_u32 s20, s2, {nmain}")
    e("v_lshlrev_b32 v1, 4, v0")
    for ri, (ko, boff, nbytes, total) in enumerate(ranges):
        per = -(-nbytes // (npf*4096))*4096
        e(f"s_load_dwordx2 s[4:5], s[0:1], {ko}")
        e("s_waitcnt lgkmcnt(0)")
        e("s_mov_b32 s8, s4"); e("s_mov_b32 s9, s5"); e(f"s_mov_b32 s10, {min(total, boff+nbytes)}"); e("s_mov_b32 s11, 0x20000")
        e(f"s_mul_i32 s21, s20, {per}"); e(f"s_add_u32 s21, s21, {boff}")
        for i in range(per // 4096):
            e(NT(f"buffer_load_dwordx4 v[4:7], v1, s[8:11], s21 offen"))
            e("s_add_u32 s21, s21, 4096")
    e("s_endpgm")

def pf_role_kv(P, name, nmain, npf, kos):
    e = P.e
    parts = npf // 32
    per = 196608 // parts
    e(f"s_sub_u32 s20, s2, {nmain}")
    e("s_and_b32 s22, s20, 31"); e("s_lshr_b32 s23, s20, 5")
    e(f"s_mul_i32 s22, s22, 786432"); e(f"s_mul_i32 s23, s23, {per}"); e("s_add_u32 s22, s22, s23"); e("s_add_u32 s22, s22, 589824")
    for ko in kos:
        e(f"s_load_dwordx2 s[4:5], s[0:1], {ko}")
        e("s_waitcnt lgkmcnt(0)")
        e("s_mov_b32 s8, s4"); e("s_mov_b32 s9, s5"); e(f"s_mov_b32 s10, 25165824"); e("s_mov_b32 s11, 0x20000")
        e("s_mov_b32 s21, s22")
        for i in range(per // 4096):
            e(NT(f"buffer_load_dwordx4 v[4:7], v1, s[8:11], s21 offen"))
            e("s_add_u32 s21, s21, 4096")

def gen_k0(prefetch=True):
    P = Prog(); e = P.e
    NWG = 30*NSPLIT
    e(f"s_cmp_ge_u32 s2, {NWG}"); e("s_cbranch_scc1 K0_PF")
    e("s_load_dwordx4 s[4:7], s[0:1], 72")
    e("s_load_dwordx2 s[16:17], s[0:1], 104")
    e("s_load_dwordx2 s[18:19], s[0:1], 24")
    e(f"s_mul_i32 s3, s2, {(65536+29)//30}"); e("s_lshr_b32 s20, s3, 16")
    e("s_mul_i32 s3, s20, 30"); e("s_sub_u32 s21, s2, s3")
    e("v_and_b32 v1, 15, v0")
    e("v_lshrrev_b32 v2, 4, v0")
    e(f"s_mul_i32 s3, s20, {640//NSPLIT}")
    e("v_add_u32 v3, s3, v2")
    e("v_lshlrev_b32 v4, 1, v3")
    e("s_mov_b32 s22, 7680")
    e("v_mul_lo_u32 v5, v3, s22")
    e("v_lshlrev_b32 v6, 4, v1")
    e("v_add_u32 v5, v5, v6")
    e("s_lshl_b32 s3, s21, 8"); e("v_add_u32 v5, s3, v5")
    e("s_waitcnt lgkmcnt(0)")
    srd(P, 8, 4, 5, 1280); srd(P, 12, 6, 7, 640*3840*2); srd(P, 24, 16, 17, WS_BYTES); srd(P, 28, 18, 19, 7864320)
    NR = 160//16
    for i in range(NR):
        e(f"buffer_load_ushort v{10+i}, v4, s[8:11], 0 offen offset:{32*i}")
    e(f"s_mov_b32 s23, 0")
    for i in range(NR):
        e(f"s_mov_b32 s23, {16*7680*i}")
        e(f"buffer_load_dwordx4 v[{24+4*i}:{27+4*i}], v5, s[12:15], s23 offen")
    for i in range(NR):
        r = 10+i
        e(f"v_lshlrev_b32 v{r}, 16, v{r}")
        e(f"v_mul_f32 v9, {f2u(-1.4426950408889634)}, v{r}")
        e("v_exp_f32 v9, v9")
        e("v_add_f32 v9, 1.0, v9")
        e("v_rcp_f32 v9, v9")
        e(f"v_mul_f32 v{r}, v{r}, v9")
        e(f"v_cvt_pk_bf16_f32 v{r}, v{r}, v{r}")
        e(f"v_and_b32 v{r}, 0xffff0000, v{r}")
    for j in range(8): e(f"v_mov_b32 v{70+j}, 0")
    for i in range(NR):
        for q in range(4):
            w = 24+4*i+q
            e(f"v_lshlrev_b32 v68, 16, v{w}")
            e(f"v_and_b32 v69, 0xffff0000, v{w}")
            e(f"v_fmac_f32 v{70+2*q}, v{10+i}, v68")
            e(f"v_fmac_f32 v{71+2*q}, v{10+i}, v69")
    e("v_lshlrev_b32 v6, 5, v1")
    e("v_lshlrev_b32 v7, 9, v2")
    e("v_add_u32 v6, v6, v7")
    e("ds_write_b128 v6, v[70:73]"); e("ds_write_b128 v6, v[74:77] offset:16")
    e("s_waitcnt lgkmcnt(0)"); e("s_barrier")
    e("v_cmp_gt_u32 vcc, 128, v0")
    e("s_and_saveexec_b64 s[32:33], vcc")
    e("s_cbranch_execz K0_END")
    e("v_lshlrev_b32 v6, 2, v0")
    for r in range(16): e(f"ds_read_b32 v{30+r}, v6 offset:{512*r}")
    for r in range(1, 16): e(f"v_add_f32 v30, v30, v{30+r}")
    e("s_mul_i32 s3, s20, 15360"); e("s_lshl_b32 s23, s21, 9"); e("s_add_u32 s3, s3, s23"); e(f"s_add_u32 s3, s3, {WS_MOD}")
    e("v_add_u32 v6, s3, v6")
    e("buffer_store_dword v30, v6, s[24:27], 0 offen")
    e("K0_END:")
    e("s_endpgm")
    pf_role(P, "K0", NWG, 128, [(24, 0, 7864320, 7864320)])
    P.finalize()
    return P

def load_mod_to_lds(P, idx_list, scale_fn, tid='v0', tbase=20, lds_base=0, store_idx={}):
    e = P.e
    e(f"v_lshlrev_b32 v{tbase}, 4, {tid}")
    r = tbase+4
    for n, idx in enumerate(idx_list):
        for p in range(NSPLIT):
            off = WS_MOD + (p*3840 + idx*640)*4
            e(f"s_mov_b32 s34, {off}")
            e(f"buffer_load_dwordx4 v[{r+(n*NSPLIT+p)*4}:{r+(n*NSPLIT+p)*4+3}], v{tbase}, s[24:27], s34 offen")
    for n, idx in enumerate(idx_list):
        b = r + n*NSPLIT*4
        for p in range(1, NSPLIT):
            for i in range(4): e(f"v_add_f32 v{b+i}, v{b+i}, v{b+4*p+i}")
        for i in range(4):
            e(f"v_cvt_pk_bf16_f32 v{b+i}, v{b+i}, v{b+i}")
            e(f"v_and_b32 v{b+i}, 0xffff0000, v{b+i}")
            scale_fn(P, n, b+i)
        if n in store_idx:
            e(f"s_mov_b32 s34, {store_idx[n]}")
            e(f"buffer_store_dwordx4 v[{b}:{b+3}], v{tbase}, s[24:27], s34 offen")
        else:
            e(f"ds_write_b128 v{tbase}, v[{b}:{b+3}] offset:{lds_base + n*4096}")

def row_reduce(P, val, red_base, tmp, addr_w, addr_r):
    e = P.e
    e(f"ds_write_b32 v{addr_w}, v{val} offset:{red_base}")
    e("s_waitcnt lgkmcnt(0)"); e("s_barrier")
    for q in range(4): e(f"ds_read_b128 v[{tmp+4*q}:{tmp+4*q+3}], v{addr_r} offset:{red_base+16*q}")
    e(f"v_add_f32 v{val}, v{tmp}, v{tmp+1}")
    for i in range(2, 16): e(f"v_add_f32 v{val}, v{val}, v{tmp+i}")

def ln_common(P, X, n, a1_lds, a0_lds, out_regs, w_sgpr, eps=1e-5):
    e = P.e
    RED0, RED1 = 12288, 13312
    e("v_lshlrev_b32 v4, 6, v2"); e("v_lshlrev_b32 v5, 2, v3"); e("v_add_u32 v5, v4, v5")
    e(f"s_lshl_b32 s3, s{w_sgpr}, 4"); e("v_add_u32 v5, s3, v5")
    e(f"v_add_f32 v6, v{X}, v{X+1}")
    for i in range(2, n): e(f"v_add_f32 v6, v6, v{X+i}")
    T = 200
    row_reduce(P, 6, RED0, T, 5, 4)
    e(f"v_mul_f32 v6, {f2u(1/640)}, v6")
    for i in range(n): e(f"v_sub_f32 v{X+i}, v{X+i}, v6")
    e(f"v_mul_f32 v7, v{X}, v{X}")
    for i in range(1, n): e(f"v_fmac_f32 v7, v{X+i}, v{X+i}")
    row_reduce(P, 7, RED1, T, 5, 4)
    e(f"v_mul_f32 v7, {f2u(1/640)}, v7")
    e(f"v_add_f32 v7, {f2u(eps)}, v7")
    e("v_rsq_f32 v7, v7")
    e(f"s_mul_i32 s3, s{w_sgpr}, {5*32*4}")
    e("v_lshlrev_b32 v8, 4, v3"); e("v_add_u32 v8, s3, v8")
    for j in range(5):
        for hh in range(2):
            off = j*128 + hh*64
            e(f"ds_read_b128 v[{T}:{T+3}], v8 offset:{a1_lds+off}")
            e(f"ds_read_b128 v[{T+4}:{T+7}], v8 offset:{a0_lds+off}")
            b = X + j*8 + hh*4
            for i in range(4):
                e(f"v_mul_f32 v{b+i}, v{b+i}, v7")
                e(f"v_fma_f32 v{b+i}, v{b+i}, v{T+i}, v{T+4+i}")
            e(f"v_cvt_pk_bf16_f32 v{out_regs+j*4+hh*2}, v{b}, v{b+1}")
            e(f"v_cvt_pk_bf16_f32 v{out_regs+j*4+hh*2+1}, v{b+2}, v{b+3}")

def load_x_pieces(P, X, raw, srd_x):
    e = P.e
    for j in range(5):
        for hh in range(2):
            e(f"buffer_load_dwordx2 v[{raw+(j*2+hh)*2}:{raw+(j*2+hh)*2+1}], v9, s[{srd_x}:{srd_x+3}], 0 offen offset:{j*64+hh*32}")

def unpack_x(P, X, raw):
    e = P.e
    for j in range(10):
        for q in range(2):
            e(f"v_lshlrev_b32 v{X+j*4+q*2}, 16, v{raw+j*2+q}")
            e(f"v_and_b32 v{X+j*4+q*2+1}, 0xffff0000, v{raw+j*2+q}")

def gen_k1(prefetch=True):
    P = Prog(); e = P.e
    e("s_cmp_ge_u32 s2, 128"); e("s_cbranch_scc1 K1_PF")
    e("s_load_dwordx2 s[4:5], s[0:1], 0")
    e("s_load_dwordx2 s[16:17], s[0:1], 104")
    e("v_lshrrev_b32 v1, 6, v0"); e("v_and_b32 v10, 63, v0")
    e("v_readfirstlane_b32 s20, v1")
    e("v_and_b32 v2, 15, v10"); e("v_lshrrev_b32 v3, 4, v10")
    e("s_lshl_b32 s3, s2, 4"); e("v_add_u32 v9, s3, v2"); e("v_mul_u32_u24 v9, 1280, v9")
    e("v_lshlrev_b32 v11, 3, v3"); e("v_add_u32 v9, v9, v11")
    e("s_mul_i32 s3, s20, 320"); e("v_add_u32 v9, s3, v9")
    e("s_waitcnt lgkmcnt(0)")
    srd(P, 8, 4, 5, 2048*1280); srd(P, 24, 16, 17, WS_BYTES)
    X = 100; RAW = 60
    load_x_pieces(P, X, RAW, 8)
    def sc(P, n, r):
        if n == 0:
            P.e(f"v_mul_f32 v{r}, {f2u(C_SCALE)}, v{r}")
        else:
            P.e(f"v_add_f32 v{r}, 1.0, v{r}")
            P.e(f"v_mul_f32 v{r}, {f2u(C_SCALE)}, v{r}")
    load_mod_to_lds(P, [0, 1], sc)
    unpack_x(P, X, RAW)
    OUT = 160
    ln_common(P, X, 40, 4096, 0, OUT, 20)
    e("s_mul_i32 s3, s2, 20480"); e("s_mul_i32 s21, s20, 5120"); e("s_add_u32 s3, s3, s21"); e(f"s_add_u32 s3, s3, {WS_HF}")
    e("v_lshlrev_b32 v11, 4, v10"); e("v_add_u32 v11, s3, v11")
    for j in range(5):
        e(f"buffer_store_dwordx4 v[{OUT+4*j}:{OUT+4*j+3}], v11, s[24:27], 0 offen offset:{j*1024 if j<4 else 0}" if j < 4 else f"s_mov_b32 s21, 4096")
    e(f"buffer_store_dwordx4 v[{OUT+16}:{OUT+19}], v11, s[24:27], s21 offen")
    e("K1_END:")
    e("s_endpgm")
    e("K1_PF:")
    e("s_cmp_ge_u32 s2, 256"); e("s_cbranch_scc1 K1_END")
    e("v_lshlrev_b32 v1, 4, v0")
    pf_role_kv(P, "K1", 128, 128, [8, 16])
    e("s_endpgm")
    P.finalize()
    return P

def gen_k4(part_bf16=False, nsplit=4):
    P = Prog(); e = P.e
    e("s_cmp_ge_u32 s2, 128"); e("s_cbranch_scc1 K4_PF")
    e("s_load_dwordx2 s[4:5], s[0:1], 0")
    e("s_load_dwordx2 s[16:17], s[0:1], 104")
    e("v_lshrrev_b32 v1, 6, v0"); e("v_and_b32 v10, 63, v0")
    e("v_readfirstlane_b32 s20, v1")
    e("v_and_b32 v2, 15, v10"); e("v_lshrrev_b32 v3, 4, v10")
    e("s_lshl_b32 s3, s2, 4"); e("v_add_u32 v9, s3, v2"); e("v_mul_u32_u24 v9, 1280, v9")
    e("v_lshlrev_b32 v11, 3, v3"); e("v_add_u32 v9, v9, v11")
    e("s_mul_i32 s3, s20, 320"); e("v_add_u32 v9, s3, v9")
    e("s_mul_i32 s3, s2, 20480"); e("s_mul_i32 s21, s20, 5120"); e("s_add_u32 s3, s3, s21"); e(f"s_add_u32 s3, s3, {WS_PART}")
    e("v_lshlrev_b32 v12, 4, v10"); e("v_add_u32 v12, s3, v12")
    e("s_waitcnt lgkmcnt(0)")
    srd(P, 8, 4, 5, 2048*1280); srd(P, 24, 16, 17, WS_BYTES)
    X = 100; RAW = 60; PRAW = 140
    load_x_pieces(P, X, RAW, 8)
    def sc(P, n, r):
        if n == 2: P.e(f"v_add_f32 v{r}, 1.0, v{r}")
    load_mod_to_lds(P, [2, 3, 4, 5], sc, tbase=160, store_idx={3: WS_MOD + 0x20000})
    ACC = 20
    PR = 232 - 80
    for p in range(nsplit):
        for j in range(5):
            o = p*128*20480 + j*1024
            e(f"s_mov_b32 s21, {o}")
            e(f"buffer_load_dwordx4 v[{PRAW+p*20+4*j}:{PRAW+p*20+4*j+3}], v12, s[24:27], s21 offen")
    for p in range(nsplit):
        for q in range(20):
            r = PRAW + p*20 + q
            if p == 0:
                e(f"v_lshlrev_b32 v{ACC+2*q}, 16, v{r}"); e(f"v_and_b32 v{ACC+2*q+1}, 0xffff0000, v{r}")
            else:
                e(f"v_lshlrev_b32 v14, 16, v{r}"); e(f"v_and_b32 v15, 0xffff0000, v{r}")
                e(f"v_add_f32 v{ACC+2*q}, v{ACC+2*q}, v14"); e(f"v_add_f32 v{ACC+2*q+1}, v{ACC+2*q+1}, v15")
    unpack_x(P, X, RAW)
    e("s_waitcnt lgkmcnt(0)"); e("s_barrier")
    e(f"s_mul_i32 s3, s20, 640"); e("v_lshlrev_b32 v8, 4, v3"); e("v_add_u32 v8, s3, v8")
    T = 200
    OUTX = 160
    for j in range(10):
        e(f"ds_read_b128 v[{T}:{T+3}], v8 offset:{j*64}")
        for i in range(4):
            e(f"v_fma_f32 v{X+j*4+i}, v{ACC+j*4+i}, v{T+i}, v{X+j*4+i}")
        e(f"v_cvt_pk_bf16_f32 v{OUTX+j*2}, v{X+j*4}, v{X+j*4+1}")
        e(f"v_cvt_pk_bf16_f32 v{OUTX+j*2+1}, v{X+j*4+2}, v{X+j*4+3}")
        for q in range(2):
            e(f"v_lshlrev_b32 v{X+j*4+q*2}, 16, v{OUTX+j*2+q}")
            e(f"v_and_b32 v{X+j*4+q*2+1}, 0xffff0000, v{OUTX+j*2+q}")
    e("s_mul_i32 s3, s2, 20480"); e("s_mul_i32 s21, s20, 5120"); e("s_add_u32 s3, s3, s21")
    e("v_lshlrev_b32 v11, 4, v10"); e("v_add_u32 v11, s3, v11")
    for j in range(5):
        e(f"s_mov_b32 s21, {WS_X1 + j*1024}")
        e(f"buffer_store_dwordx4 v[{OUTX+4*j}:{OUTX+4*j+3}], v11, s[24:27], s21 offen")
    OUT = 20
    ln_common(P, X, 40, 2*4096, 1*4096, OUT, 20)
    for j in range(5):
        e(f"s_mov_b32 s21, {WS_H2F + j*1024}")
        e(f"buffer_store_dwordx4 v[{OUT+4*j}:{OUT+4*j+3}], v11, s[24:27], s21 offen")
    e("K4_END:")
    e("s_endpgm")
    pf_role(P, "K4", 128, 128, [(48, 0, 1966080, 1966080), (56, 0, 1966080, 1966080), (64, 0, 1966080, 1966080)])
    P.finalize()
    return P

WS_MODF = WS_MOD + 0x10000
NGEMV = 30*NSPLIT
NLN = 128
N01 = NGEMV + NLN

SLEEP = 6
CODE_BYTES = 131072
DIAG = False
def gen_k01(pf=('wq',), npf=256):
    P = Prog(); e = P.e
    e("s_load_dwordx4 s[4:7], s[0:1], 72")
    e("s_load_dwordx4 s[16:19], s[0:1], 96")
    e("s_load_dwordx2 s[38:39], s[0:1], 0")
    e("s_load_dwordx2 s[40:41], s[0:1], 24")
    e("s_cmp_lt_u32 s2, 40"); e("s_cbranch_scc1 K01_GA")
    e("s_cmp_lt_u32 s2, 168"); e("s_cbranch_scc1 K01_LN")
    e("s_cmp_ge_u32 s2, 248"); e("s_cbranch_scc1 K01_END")
    e("s_sub_u32 s3, s2, 168"); e(f"s_mul_i32 s20, s3, {(65536+19)//20}"); e("s_lshr_b32 s20, s20, 16")
    e("s_mul_i32 s21, s20, 20"); e("s_sub_u32 s21, s3, s21"); e("s_add_u32 s21, s21, 10")
    e("s_branch K01_G")
    e("K01_GA:")
    e("s_and_b32 s20, s2, 3"); e("s_lshr_b32 s21, s2, 2")
    e("K01_G:")
    if DIAG: e("s_memrealtime s[60:61]")
    e("v_and_b32 v1, 15, v0"); e("v_lshrrev_b32 v2, 4, v0")
    e(f"s_mul_i32 s3, s20, {640//NSPLIT}")
    e("v_add_u32 v3, s3, v2"); e("v_lshlrev_b32 v4, 1, v3")
    e("s_mov_b32 s22, 7680"); e("v_mul_lo_u32 v5, v3, s22")
    e("v_lshlrev_b32 v6, 4, v1"); e("v_add_u32 v5, v5, v6")
    e("s_lshl_b32 s3, s21, 8"); e("v_add_u32 v5, s3, v5")
    e("s_waitcnt lgkmcnt(0)")
    srd(P, 8, 4, 5, 1280); srd(P, 12, 6, 7, 640*3840*2); srd(P, 24, 18, 19, WS_BYTES); srd(P, 28, 16, 17, 256)
    if DIAG: e("s_memrealtime s[62:63]")
    NR = 160//16
    for i in range(NR):
        e(f"s_mov_b32 s23, {16*7680*i}")
        e(f"buffer_load_dwordx4 v[{24+4*i}:{27+4*i}], v5, s[12:15], s23 offen")
    for i in range(NR):
        e(f"buffer_load_ushort v{10+i}, v4, s[8:11], 0 offen offset:{32*i}")
    for i in range(NR): e(f"v_lshlrev_b32 v{10+i}, 16, v{10+i}")
    for i in range(NR): e(f"v_mul_f32 v{80+i}, {f2u(-1.4426950408889634)}, v{10+i}")
    for i in range(NR): e(f"v_exp_f32 v{80+i}, v{80+i}")
    for i in range(NR): e(f"v_add_f32 v{80+i}, 1.0, v{80+i}")
    for i in range(NR): e(f"v_rcp_f32 v{80+i}, v{80+i}")
    for i in range(NR): e(f"v_mul_f32 v{10+i}, v{10+i}, v{80+i}")
    for i in range(NR): e(f"v_cvt_pk_bf16_f32 v{10+i}, v{10+i}, v{10+i}")
    for i in range(NR): e(f"v_and_b32 v{10+i}, 0xffff0000, v{10+i}")
    for j in range(8): e(f"v_mov_b32 v{70+j}, 0")
    for i in range(NR):
        for q in range(4):
            w = 24+4*i+q
            e(f"v_lshlrev_b32 v68, 16, v{w}"); e(f"v_and_b32 v69, 0xffff0000, v{w}")
            e(f"v_fmac_f32 v{70+2*q}, v{10+i}, v68"); e(f"v_fmac_f32 v{71+2*q}, v{10+i}, v69")
    if DIAG: e("s_memrealtime s[64:65]")
    e("v_lshlrev_b32 v6, 5, v1"); e("v_lshlrev_b32 v7, 9, v2"); e("v_add_u32 v6, v6, v7")
    e("ds_write_b128 v6, v[70:73]"); e("ds_write_b128 v6, v[74:77] offset:16")
    e("s_waitcnt lgkmcnt(0)"); e("s_barrier")
    e("v_cmp_gt_u32 vcc, 64, v0")
    e("s_and_saveexec_b64 s[32:33], vcc")
    e("s_cbranch_execz K01_PF")
    e("v_lshlrev_b32 v6, 3, v0")
    for r in range(16): e(f"ds_read_b64 v[{30+2*r}:{31+2*r}], v6 offset:{512*r}")
    for r in (8, 4, 2, 1):
        for q in range(r): e(f"v_pk_add_f32 v[{30+2*q}:{31+2*q}], v[{30+2*q}:{31+2*q}], v[{30+2*(q+r)}:{31+2*(q+r)}]")
    e("s_mul_i32 s3, s20, 15360"); e("s_lshl_b32 s23, s21, 9"); e("s_add_u32 s3, s3, s23"); e(f"s_add_u32 s3, s3, {WS_MOD}")
    e("v_add_u32 v6, s3, v6")
    e("buffer_store_dwordx2 v[30:31], v6, s[24:27], 0 offen sc1")
    e("s_waitcnt vmcnt(0)")
    if DIAG: e("s_memrealtime s[66:67]")
    e("s_cmp_ge_u32 s21, 10"); e("s_cbranch_scc1 K01_END")
    e("v_cmp_eq_u32 vcc, 0, v0")
    e("s_and_saveexec_b64 s[32:33], vcc")
    e("s_cbranch_execz K01_END")
    e("v_mov_b32 v7, 1"); e("v_mov_b32 v8, 0")
    e("buffer_atomic_add v7, v8, s[28:31], 0 offen sc0 sc1")
    e("s_waitcnt vmcnt(0)")
    if DIAG:
        e("s_memrealtime s[68:69]"); e("s_waitcnt lgkmcnt(0)")
        e("s_lshl_b32 s3, s2, 5"); e(f"s_add_u32 s3, s3, {0x5000000 + 0x80000}")
        for q in range(5): e(f"v_mov_b32 v{40+q}, s{60+2*q}")
        e("v_mov_b32 v46, s3")
        e("buffer_store_dwordx4 v[40:43], v46, s[24:27], 0 offen"); e("buffer_store_dword v44, v46, s[24:27], 0 offen offset:16")
    e("v_readfirstlane_b32 s22, v7"); e("s_nop 3")
    e(f"s_cmp_lg_u32 s22, {10*NSPLIT-1}"); e("s_cbranch_scc1 K01_END")
    e("v_mov_b32 v8, 128"); e("v_mov_b32 v7, 1")
    e("buffer_store_dword v7, v8, s[28:31], 0 offen sc1")
    e("K01_END:")
    e("s_endpgm")
    e("K01_LN:")
    e(f"s_sub_u32 s2, s2, 40")
    e("v_lshrrev_b32 v1, 6, v0"); e("v_and_b32 v10, 63, v0")
    e("v_readfirstlane_b32 s20, v1")
    e("v_and_b32 v2, 15, v10"); e("v_lshrrev_b32 v3, 4, v10")
    e("s_lshl_b32 s3, s2, 4"); e("v_add_u32 v9, s3, v2"); e("v_mul_u32_u24 v9, 1280, v9")
    e("v_lshlrev_b32 v11, 3, v3"); e("v_add_u32 v9, v9, v11")
    e("s_mul_i32 s3, s20, 320"); e("v_add_u32 v9, s3, v9")
    e("s_waitcnt lgkmcnt(0)")
    srd(P, 8, 38, 39, 2048*1280); srd(P, 24, 18, 19, WS_BYTES); srd(P, 28, 16, 17, 256)
    if DIAG: e("s_memrealtime s[60:61]")
    X = 100; RAW = 60; T = 200
    load_x_pieces(P, X, RAW, 8)
    e("s_cmp_lg_u32 s2, 0"); e("s_cbranch_scc1 K01_NOZ")
    e("v_min_u32 v12, 63, v0"); e("v_lshlrev_b32 v12, 7, v12"); e("v_mov_b32 v13, 0"); e(f"s_mov_b32 s21, {WS_CNT}")
    e("buffer_store_dword v13, v12, s[24:27], s21 offen sc1")
    e("K01_NOZ:")
    unpack_x(P, X, RAW)
    RED0, RED1 = 12288, 13312
    e("v_lshlrev_b32 v4, 6, v2"); e("v_lshlrev_b32 v5, 2, v3"); e("v_add_u32 v5, v4, v5")
    e(f"s_lshl_b32 s3, s20, 4"); e("v_add_u32 v5, s3, v5")
    e(f"v_add_f32 v6, v{X}, v{X+1}")
    for i in range(2, 40): e(f"v_add_f32 v6, v6, v{X+i}")
    row_reduce(P, 6, RED0, T, 5, 4)
    e(f"v_mul_f32 v6, {f2u(1/640)}, v6")
    for i in range(40): e(f"v_sub_f32 v{X+i}, v{X+i}, v6")
    e(f"v_mul_f32 v7, v{X}, v{X}")
    for i in range(1, 40): e(f"v_fmac_f32 v7, v{X+i}, v{X+i}")
    row_reduce(P, 7, RED1, T, 5, 4)
    e(f"v_mul_f32 v7, {f2u(1/640)}, v7"); e(f"v_add_f32 v7, {f2u(1e-5)}, v7"); e("v_rsq_f32 v7, v7")
    e("s_nop 0")
    for i in range(40): e(f"v_mul_f32 v{X+i}, v{X+i}, v7")
    if DIAG: e("s_memrealtime s[62:63]")
    e("s_cmp_lg_u32 s20, 0"); e("s_cbranch_scc1 K01_GO")
    e("s_mov_b32 s35, 1")
    e("v_mov_b32 v12, 128"); e("s_mov_b32 s21, 0")
    e("K01_POLL:")
    e("buffer_load_dword v13, v12, s[28:31], 0 offen sc1")
    e("s_waitcnt vmcnt(0)")
    e("v_readfirstlane_b32 s22, v13")
    e("s_add_u32 s21, s21, 1")
    e(f"s_cmp_ge_u32 s22, s35"); e("s_cbranch_scc1 K01_GO")
    e(f"s_sleep {SLEEP}")
    e("s_cmp_lt_u32 s21, 0x4000"); e("s_cbranch_scc1 K01_POLL")
    e("K01_GO:")
    e("s_barrier")
    if DIAG: e("s_memrealtime s[64:65]")
    tb = 20
    e(f"v_lshlrev_b32 v{tb}, 4, v0")
    r = 24
    for n, idx in enumerate([0, 1]):
        for p in range(NSPLIT):
            e(f"s_mov_b32 s34, {WS_MOD + (p*3840 + idx*640)*4}")
            e(f"buffer_load_dwordx4 v[{r+(n*NSPLIT+p)*4}:{r+(n*NSPLIT+p)*4+3}], v{tb}, s[24:27], s34 offen sc1")
    for n in range(2):
        b = r + n*NSPLIT*4
        for p in range(1, NSPLIT):
            for i in range(4): e(f"v_add_f32 v{b+i}, v{b+i}, v{b+4*p+i}")
        for i in range(4):
            e(f"v_cvt_pk_bf16_f32 v{b+i}, v{b+i}, v{b+i}"); e(f"v_and_b32 v{b+i}, 0xffff0000, v{b+i}")
            if n == 1: e(f"v_add_f32 v{b+i}, 1.0, v{b+i}")
            e(f"v_mul_f32 v{b+i}, {f2u(C_SCALE)}, v{b+i}")
        e(f"ds_write_b128 v{tb}, v[{b}:{b+3}] offset:{n*4096}")
    e("s_waitcnt lgkmcnt(0)"); e("s_barrier")
    if DIAG: e("s_memrealtime s[66:67]")
    e(f"s_mul_i32 s3, s20, {5*32*4}")
    e("v_lshlrev_b32 v8, 4, v3"); e("v_add_u32 v8, s3, v8")
    OUT = 160
    for j in range(5):
        for hh in range(2):
            off = j*128 + hh*64; k = (j*2+hh) % 2
            t = T + 8*k
            e(f"ds_read_b128 v[{t}:{t+3}], v8 offset:{4096+off}")
            e(f"ds_read_b128 v[{t+4}:{t+7}], v8 offset:{off}")
            b = X + j*8 + hh*4
            for i in range(4): e(f"v_fma_f32 v{b+i}, v{b+i}, v{t+i}, v{t+4+i}")
            e(f"v_cvt_pk_bf16_f32 v{OUT+j*4+hh*2}, v{b}, v{b+1}")
            e(f"v_cvt_pk_bf16_f32 v{OUT+j*4+hh*2+1}, v{b+2}, v{b+3}")
    e("s_mul_i32 s3, s2, 20480"); e("s_mul_i32 s21, s20, 5120"); e("s_add_u32 s3, s3, s21"); e(f"s_add_u32 s3, s3, {WS_HF}")
    e("v_lshlrev_b32 v11, 4, v10"); e("v_add_u32 v11, s3, v11")
    for j in range(5):
        e(f"s_mov_b32 s21, {j*1024}")
        e(f"buffer_store_dwordx4 v[{OUT+4*j}:{OUT+4*j+3}], v11, s[24:27], s21 offen sc1")
    if DIAG:
        e("s_waitcnt vmcnt(0)"); e("s_memrealtime s[68:69]"); e("s_waitcnt lgkmcnt(0)")
        e("s_add_u32 s3, s2, 40"); e("s_lshl_b32 s3, s3, 5"); e(f"s_add_u32 s3, s3, {0x5000000 + 0x80000}")
        for q in range(5): e(f"v_mov_b32 v{40+q}, s{60+2*q}")
        e("v_mov_b32 v46, s3"); e("s_mov_b64 exec, 1")
        e("buffer_store_dwordx4 v[40:43], v46, s[24:27], 0 offen"); e("buffer_store_dword v44, v46, s[24:27], 0 offen offset:16")
    e("s_endpgm")
    e("K01_PF:")
    e("s_mov_b64 exec, -1")
    e("s_and_b32 s21, s2, 7")
    e("s_lshr_b32 s22, s2, 3"); e("s_cmp_lt_u32 s2, 40"); e("s_cselect_b32 s3, 0, 16"); e("s_sub_u32 s22, s22, s3")
    e("v_subrev_u32 v1, 64, v0")
    if 'code' in pf:
        e("s_getpc_b64 s[4:5]")
        e("K01_PC:")
        e("s_add_u32 s4, s4, k2_kernel-K01_PC"); e("s_addc_u32 s5, s5, 0")
        e("s_mul_i32 s3, s22, 9216"); e("v_lshlrev_b32 v2, 4, v1"); e("v_add_u32 v2, s3, v2")
        e("s_mov_b32 s23, K_TEXT_END-k2_kernel-16")
        for r_ in range(3):
            e("v_min_u32 v3, s23, v2")
            e(NT("global_load_dwordx4 v[4:7], v3, s[4:5]"))
            e(f"v_add_u32 v2, 3072, v2")
    if 'repack' in pf:
        e("s_cmp_lt_u32 s2, 40"); e("s_cselect_b32 s3, 0, 128"); e("s_sub_u32 s36, s2, s3")
        e("s_load_dwordx4 s[44:47], s[0:1], 48"); e("s_load_dwordx2 s[48:49], s[0:1], 64"); e("s_waitcnt lgkmcnt(0)")
        e("s_lshl_b32 s37, s36, 10")
        for m, (lo, kind) in enumerate(((48, 'd'), (44, 'g'), (46, 'u'))):
            srd(P, 8, lo, lo+1, 1966080)
            for r_ in range(6):
                e(f"v_add_u32 v10, {r_*192}, v1")
                e("v_cmp_gt_u32 vcc, 1024, v10"); e("v_add_u32 v10, s37, v10")
                e("v_lshlrev_b32 v11, 4, v10"); e("v_mov_b32 v12, 0x7ff00000"); e("v_cndmask_b32 v11, v12, v11, vcc")
                e(f"buffer_load_dwordx4 v[{60+m*24+4*r_}:{63+m*24+4*r_}], v11, s[8:11], 0 offen")
                if kind == 'd':
                    e("s_mov_b32 s3, 53687092"); e("v_mul_hi_u32 v13, v10, s3")
                    e("v_mul_u32_u24 v14, 80, v13"); e("v_sub_u32 v14, v10, v14")
                    e("v_mul_u32_u24 v15, 6554, v14"); e("v_lshrrev_b32 v15, 16, v15")
                    e("v_mul_u32_u24 v16, 10, v15"); e("v_sub_u32 v16, v14, v16")
                    e("v_mul_u32_u24 v15, 245760, v15"); e("v_mul_u32_u24 v13, 160, v13")
                else:
                    e("s_mov_b32 s3, 22369622"); e("v_mul_hi_u32 v13, v10, s3")
                    e("v_mul_u32_u24 v14, 192, v13"); e("v_sub_u32 v14, v10, v14")
                    e("v_mul_u32_u24 v15, 5462, v14"); e("v_lshrrev_b32 v15, 16, v15")
                    e("v_mul_u32_u24 v16, 12, v15"); e("v_sub_u32 v16, v14, v16")
                    e("v_mul_u32_u24 v15, 245760, v15"); e("v_mul_u32_u24 v13, 384, v13")
                e("v_lshlrev_b32 v16, 4, v16"); e("v_add_u32 v15, v15, v13"); e("v_add_u32 v15, v15, v16")
                e(f"v_cndmask_b32 v{20+m*6+r_}, v12, v15, vcc")
        for m, kind in enumerate('dgu'):
            e(f"s_mov_b32 s3, {WS_WD if kind == 'd' else WS_WGU + (192 if kind == 'u' else 0)}")
            for r_ in range(6):
                e(f"buffer_store_dwordx4 v[{60+m*24+4*r_}:{63+m*24+4*r_}], v{20+m*6+r_}, s[24:27], s3 offen sc1")
    if 'wq' in pf:
        srd(P, 8, 40, 41, 7864320)
        e("s_mul_i32 s3, s22, 4224"); e("v_add_u32 v1, s3, v1"); e("s_mul_i32 s23, s21, 1536"); e("s_mov_b32 s24, 22")
        e("K01_PFL:")
        e("v_mul_u32_u24 v2, 682, v1"); e("v_lshrrev_b32 v2, 16, v2")
        e("v_mul_u32_u24 v3, 96, v2"); e("v_sub_u32 v3, v1, v3")
        e("v_cmp_le_i32 vcc, 96, v3"); e("s_nop 1")
        e("v_addc_co_u32 v2, vcc, 0, v2, vcc")
        e("v_mul_u32_u24 v3, 96, v2"); e("v_sub_u32 v3, v1, v3"); e("v_lshlrev_b32 v3, 4, v3")
        e("v_mul_u32_u24 v2, 12288, v2"); e("v_add_u32 v2, v2, v3")
        e(NT("buffer_load_dwordx4 v[4:7], v2, s[8:11], s23 offen"))
        e("v_add_u32 v1, 192, v1")
        e("s_sub_u32 s24, s24, 1"); e("s_cmp_lg_u32 s24, 0"); e("s_cbranch_scc1 K01_PFL")
    e("s_endpgm")
    P.finalize(report_nops=False)
    return P

def gen_k4b(pf=True, npf=128):
    P = Prog(); e = P.e
    e("s_cmp_ge_u32 s2, 256"); e("s_cbranch_scc1 K4_PF")
    e("s_load_dwordx2 s[4:5], s[0:1], 0")
    e("s_load_dwordx2 s[16:17], s[0:1], 104")
    e("v_lshrrev_b32 v1, 6, v0"); e("v_and_b32 v10, 63, v0")
    e("v_readfirstlane_b32 s20, v1")
    e("v_and_b32 v2, 7, v10")
    e("v_lshrrev_b32 v3, 4, v10")
    e("v_lshrrev_b32 v4, 3, v10"); e("v_and_b32 v4, 1, v4")
    e("s_lshr_b32 s21, s2, 1"); e("s_and_b32 s22, s2, 1")
    e("s_mul_i32 s3, s21, 20480"); e("s_lshl_b32 s23, s20, 12"); e("s_add_u32 s3, s3, s23"); e("s_lshl_b32 s23, s22, 7"); e("s_add_u32 s3, s3, s23")
    e("v_lshlrev_b32 v5, 10, v4"); e("v_lshlrev_b32 v6, 8, v3"); e("v_add_u32 v5, v5, v6"); e("v_lshlrev_b32 v6, 4, v2"); e("v_add_u32 v5, v5, v6")
    e("v_add_u32 v12, s3, v5")
    e("s_lshl_b32 s3, s21, 4"); e("s_lshl_b32 s23, s22, 3"); e("s_add_u32 s3, s3, s23"); e("v_add_u32 v9, s3, v2"); e("v_mul_u32_u24 v9, 1280, v9")
    e("v_lshlrev_b32 v6, 6, v4"); e("v_add_u32 v9, v9, v6"); e("v_lshlrev_b32 v6, 3, v3"); e("v_add_u32 v9, v9, v6")
    e("s_lshl_b32 s3, s20, 8"); e("v_add_u32 v9, s3, v9")
    e("s_waitcnt lgkmcnt(0)")
    srd(P, 8, 4, 5, 2048*1280); srd(P, 24, 16, 17, WS_BYTES)
    PR = 20
    for p in range(4):
        for jj in range(2):
            e(f"s_mov_b32 s21, {WS_PART + p*128*20480 + jj*2048}")
            e(f"buffer_load_dwordx4 v[{PR+p*8+jj*4}:{PR+p*8+jj*4+3}], v12, s[24:27], s21 offen")
    XR = 52
    for jj in range(2):
        for hh in range(2):
            e(f"buffer_load_dwordx2 v[{XR+jj*4+hh*2}:{XR+jj*4+hh*2+1}], v9, s[8:11], 0 offen offset:{jj*128+hh*32}")
    MP = 60
    for i in range(2):
        e(f"v_add_u32 v13, {320*i}, v0")
        e("v_mul_u32_u24 v14, 410, v13"); e("v_lshrrev_b32 v14, 16, v14")
        e("v_mul_u32_u24 v15, 160, v14"); e("v_sub_u32 v15, v13, v15")
        e(f"v_lshlrev_b32 v{18+i}, 4, v15")
        e("v_mul_u32_u24 v15, 2560, v14"); e(f"v_add_u32 v15, v15, v{18+i}")
        for p in range(NSPLIT):
            e(f"s_mov_b32 s21, {WS_MOD + (p*3840 + 2*640)*4}")
            e(f"buffer_load_dwordx4 v[{MP+(i*4+p)*4}:{MP+(i*4+p)*4+3}], v15, s[24:27], s21 offen")
        e(f"v_mul_u32_u24 v14, 5120, v14"); e(f"v_add_u32 v{18+i}, v{18+i}, v14")
    A_ = 92
    for p in range(4):
        for q in range(8):
            r = PR + p*8 + q
            if p == 0:
                e(f"v_lshlrev_b32 v{A_+2*q}, 16, v{r}"); e(f"v_and_b32 v{A_+2*q+1}, 0xffff0000, v{r}")
            else:
                e(f"v_lshlrev_b32 v14, 16, v{r}"); e(f"v_and_b32 v15, 0xffff0000, v{r}")
                e(f"v_add_f32 v{A_+2*q}, v{A_+2*q}, v14"); e(f"v_add_f32 v{A_+2*q+1}, v{A_+2*q+1}, v15")
    X = 108
    for q in range(8):
        e(f"v_lshlrev_b32 v{X+2*q}, 16, v{XR+q}"); e(f"v_and_b32 v{X+2*q+1}, 0xffff0000, v{XR+q}")
    for i in range(2):
        b = MP + i*16
        for p in range(1, NSPLIT):
            for k in range(4): e(f"v_add_f32 v{b+k}, v{b+k}, v{b+4*p+k}")
        e(f"v_subrev_u32 v14, {2*5120}, v{18+i}"); e(f"v_cmp_gt_u32 vcc, 5120, v14"); e("s_nop 1")
        e("v_cndmask_b32 v14, 0, 1.0, vcc")
        for k in range(4):
            e(f"v_cvt_pk_bf16_f32 v{b+k}, v{b+k}, v{b+k}"); e(f"v_and_b32 v{b+k}, 0xffff0000, v{b+k}"); e(f"v_add_f32 v{b+k}, v{b+k}, v14")
        e(f"ds_write_b128 v{18+i}, v[{b}:{b+3}]")
    e("s_cmp_lg_u32 s2, 0"); e("s_cbranch_scc1 K4_NOGB")
    e(f"v_cmp_le_u32 vcc, {3*5120}, v19"); e("s_and_saveexec_b64 s[30:31], vcc"); e("s_cbranch_execz K4_NOGB2")
    e(f"v_subrev_u32 v14, {3*5120}, v19"); e(f"s_mov_b32 s21, {WS_MODF + 5*4096}")
    e(f"buffer_store_dwordx4 v[{MP+16}:{MP+19}], v14, s[24:27], s21 offen")
    e("K4_NOGB2:"); e("s_mov_b64 exec, s[30:31]")
    e("K4_NOGB:")
    e("s_waitcnt lgkmcnt(0)"); e("s_barrier")
    e("v_lshlrev_b32 v8, 7, v4"); e("v_lshlrev_b32 v6, 4, v3"); e("v_add_u32 v8, v8, v6"); e("s_lshl_b32 s3, s20, 9"); e("v_add_u32 v8, s3, v8")
    T = 20; OX = 52
    for jj in range(2):
        for hh in range(2):
            k = jj*2 + hh
            e(f"ds_read_b128 v[{T+4*k}:{T+4*k+3}], v8 offset:{jj*256 + hh*64}")
    for k in range(4):
        for i in range(4): e(f"v_fma_f32 v{X+4*k+i}, v{A_+4*k+i}, v{T+4*k+i}, v{X+4*k+i}")
        e(f"v_cvt_pk_bf16_f32 v{OX+2*k}, v{X+4*k}, v{X+4*k+1}"); e(f"v_cvt_pk_bf16_f32 v{OX+2*k+1}, v{X+4*k+2}, v{X+4*k+3}")
    for q in range(8):
        e(f"v_lshlrev_b32 v{X+2*q}, 16, v{OX+q}"); e(f"v_and_b32 v{X+2*q+1}, 0xffff0000, v{OX+q}")
    for jj in range(2):
        e(f"s_mov_b32 s21, {WS_X1 + jj*2048}")
        e(f"buffer_store_dwordx4 v[{OX+4*jj}:{OX+4*jj+3}], v12, s[24:27], s21 offen sc1")
    for jj in range(2):
        for hh in range(2):
            k = jj*2 + hh
            e(f"ds_read_b128 v[{T+4*k}:{T+4*k+3}], v8 offset:{2*5120 + jj*256 + hh*64}")
            e(f"ds_read_b128 v[{T+16+4*k}:{T+16+4*k+3}], v8 offset:{1*5120 + jj*256 + hh*64}")
    RED0, RED1 = 20480, 22528
    e("v_mul_u32_u24 v16, 192, v2"); e("v_lshlrev_b32 v17, 3, v3"); e("v_lshlrev_b32 v18, 2, v4"); e("v_add_u32 v17, v17, v18")
    e("s_lshl_b32 s3, s20, 5"); e("v_add_u32 v17, s3, v17"); e("v_add_u32 v17, v17, v16")
    def red(val, base):
        e(f"ds_write_b32 v17, v{val} offset:{base}")
        e("s_waitcnt lgkmcnt(0)"); e("s_barrier")
        for q in range(10): e(f"ds_read_b128 v[{60+4*q}:{63+4*q}], v16 offset:{base+16*q}")
        for q in range(5):
            e(f"v_pk_add_f32 v[{60+4*q}:{61+4*q}], v[{60+4*q}:{61+4*q}], v[{80+4*q}:{81+4*q}]")
            e(f"v_pk_add_f32 v[{62+4*q}:{63+4*q}], v[{62+4*q}:{63+4*q}], v[{82+4*q}:{83+4*q}]")
        for q in range(5): e(f"v_pk_add_f32 v[{60+2*q}:{61+2*q}], v[{60+2*q}:{61+2*q}], v[{70+2*q}:{71+2*q}]")
        e("v_pk_add_f32 v[60:61], v[60:61], v[62:63]"); e("v_pk_add_f32 v[64:65], v[64:65], v[66:67]")
        e("v_pk_add_f32 v[60:61], v[60:61], v[64:65]"); e("v_pk_add_f32 v[60:61], v[60:61], v[68:69]")
        e(f"v_add_f32 v{val}, v60, v61")
    e(f"v_pk_add_f32 v[6:7], v[{X}:{X+1}], v[{X+2}:{X+3}]")
    for i in range(2, 8): e(f"v_pk_add_f32 v[6:7], v[6:7], v[{X+2*i}:{X+2*i+1}]")
    e("v_add_f32 v6, v6, v7")
    red(6, RED0)
    e(f"v_mul_f32 v6, {f2u(1/640)}, v6")
    for i in range(16): e(f"v_sub_f32 v{X+i}, v{X+i}, v6")
    e(f"v_mul_f32 v7, v{X}, v{X}")
    for i in range(1, 16): e(f"v_fmac_f32 v7, v{X+i}, v{X+i}")
    red(7, RED1)
    e(f"v_mul_f32 v7, {f2u(1/640)}, v7"); e(f"v_add_f32 v7, {f2u(1e-5)}, v7"); e("v_rsq_f32 v7, v7"); e("s_nop 0")
    for i in range(16):
        e(f"v_mul_f32 v{X+i}, v{X+i}, v7")
        e(f"v_fma_f32 v{X+i}, v{X+i}, v{T+i}, v{T+16+i}")
    for k in range(4):
        e(f"v_cvt_pk_bf16_f32 v{OX+2*k}, v{X+4*k}, v{X+4*k+1}"); e(f"v_cvt_pk_bf16_f32 v{OX+2*k+1}, v{X+4*k+2}, v{X+4*k+3}")
    for jj in range(2):
        e(f"s_mov_b32 s21, {WS_H2F + jj*2048}")
        e(f"buffer_store_dwordx4 v[{OX+4*jj}:{OX+4*jj+3}], v12, s[24:27], s21 offen sc1")
    e("K4_END:")
    e("s_endpgm")
    e("K4_PF:")
    e(f"s_cmp_ge_u32 s2, {256+npf}"); e("s_cbranch_scc1 K4_END")
    e("s_sub_u32 s20, s2, 256")
    e("s_load_dwordx2 s[4:5], s[0:1], 64"); e("s_load_dwordx2 s[16:17], s[0:1], 104"); e("s_waitcnt lgkmcnt(0)")
    srd(P, 8, 4, 5, 1966080); srd(P, 24, 16, 17, WS_BYTES)
    assert npf == 128
    e("s_mul_i32 s21, s20, 15360")
    for r_ in range(3):
        e(f"v_add_u32 v1, {r_*320}, v0")
        e(f"v_lshlrev_b32 v{10+r_}, 4, v1")
        e(f"buffer_load_dwordx4 v[{20+4*r_}:{23+4*r_}], v{10+r_}, s[8:11], s21 offen")
        e("v_mul_u32_u24 v2, 820, v1"); e("v_lshrrev_b32 v2, 16, v2")
        e("v_mul_u32_u24 v3, 80, v2"); e("v_sub_u32 v3, v1, v3")
        e("v_mul_u32_u24 v4, 6554, v3"); e("v_lshrrev_b32 v4, 16, v4")
        e("v_mul_u32_u24 v5, 10, v4"); e("v_sub_u32 v5, v3, v5")
        e("v_mul_u32_u24 v4, 245760, v4"); e("v_mul_u32_u24 v2, 160, v2"); e("v_lshlrev_b32 v5, 4, v5")
        e(f"v_add_u32 v{14+r_}, v4, v2"); e(f"v_add_u32 v{14+r_}, v{14+r_}, v5")
    e("s_mul_i32 s21, s20, 1920"); e(f"s_add_u32 s21, s21, {WS_WD}")
    for r_ in range(3):
        e(f"buffer_store_dwordx4 v[{20+4*r_}:{23+4*r_}], v{14+r_}, s[24:27], s21 offen sc1")
    for m, ko in enumerate((48, 56)):
        e(f"s_load_dwordx2 s[4:5], s[0:1], {ko}"); e("s_waitcnt lgkmcnt(0)")
        srd(P, 8, 4, 5, 1966080)
        e("s_mul_i32 s21, s20, 15360")
        for r_ in range(3):
            e(f"v_add_u32 v1, {r_*320}, v0")
            e(f"v_lshlrev_b32 v{10+r_}, 4, v1")
            e(f"buffer_load_dwordx4 v[{32+m*12+4*r_}:{35+m*12+4*r_}], v{10+r_}, s[8:11], s21 offen")
            e("v_lshrrev_b32 v2, 6, v1"); e("v_mul_u32_u24 v2, 21846, v2"); e("v_lshrrev_b32 v2, 16, v2")
            e("v_mul_u32_u24 v3, 192, v2"); e("v_sub_u32 v3, v1, v3")
            e("v_mul_u32_u24 v4, 5462, v3"); e("v_lshrrev_b32 v4, 16, v4")
            e("v_mul_u32_u24 v5, 12, v4"); e("v_sub_u32 v5, v3, v5")
            e("v_mul_u32_u24 v4, 245760, v4"); e("v_mul_u32_u24 v2, 384, v2"); e("v_lshlrev_b32 v5, 4, v5")
            e(f"v_add_u32 v{56+m*3+r_}, v4, v2"); e(f"v_add_u32 v{56+m*3+r_}, v{56+m*3+r_}, v5")
    for m in range(2):
        e("s_mul_i32 s21, s20, 1920"); e(f"s_add_u32 s21, s21, {WS_WGU + m*192}")
        for r_ in range(3):
            e(f"buffer_store_dwordx4 v[{32+m*12+4*r_}:{35+m*12+4*r_}], v{56+m*3+r_}, s[24:27], s21 offen sc1")
    e("s_endpgm")
    P.finalize(report_nops=False)
    return P

def gen_diag_touch(name, ko, chunk_bytes, xcd_to_off, nwg=256):
    P = Prog(); e = P.e
    e(f"s_cmp_ge_u32 s2, {nwg}"); e(f"s_cbranch_scc1 {name}_END")
    e(f"s_load_dwordx2 s[4:5], s[0:1], {ko}"); e("s_waitcnt lgkmcnt(0)")
    srd(P, 8, 4, 5, 0x7fffffff)
    e("s_and_b32 s21, s2, 7"); e("s_lshr_b32 s22, s2, 3")
    xcd_to_off(e)
    per = chunk_bytes // (nwg // 8)
    e(f"s_mul_i32 s3, s22, {per}"); e("s_add_u32 s23, s23, s3"); e("v_lshlrev_b32 v1, 4, v0")
    for i in range(per // 4096):
        e(NT("buffer_load_dwordx4 v[4:7], v1, s[8:11], s23 offen")); e("s_add_u32 s23, s23, 4096")
    e(f"{name}_END:"); e("s_endpgm")
    P.finalize(report_nops=False)
    return P

if __name__ == "__main__":
    from k2gen import wrap
    k0 = gen_k0(); k1 = gen_k1(); k4 = gen_k4()
    open("k01.s", "w").write(wrap([("k0_kernel", k0.text(), 256, 256), ("k1_kernel", k1.text(), 256, 256)],
                                  [("k0_kernel", 120, 256, 16384), ("k1_kernel", 128, 256, 16384)]))
    open("k4.s", "w").write(wrap([("k4_kernel", k4.text(), 256, 256)], [("k4_kernel", 128, 256, 16384)]))
```

```python
from asmgen import *
import kgemm
from kgemm import gemm_stream, BIAS
from ksmall import srd, f2u, NSPLIT
from k2gen import WS_MOD, WS_HF, WS_OF, WS_PART, WS_X1, WS_H2F, WS_ACT, WS_BYTES, WS_STAMP, WS_CNT, WS_WD, WS_WGU

LDS_V = 122880
LDS_R = LDS_V + 4*5120
LDS_TAIL = LDS_R + 2*1280
SPIN = 0x4000

def gbar(P, idx, hook=None, also=None):
    e = P.e
    r = lambda t: P.e(RAW(t))
    e("s_waitcnt vmcnt(0)")
    e("s_barrier")
    r("s_cmp_lg_u32 s23, 0"); r(f"s_cbranch_scc1 KT_A{idx}")
    r(f"s_lshl_b32 s3, s21, 7"); r(f"s_add_u32 s3, s3, {WS_CNT + idx*2048}")
    r("v_mov_b32 v250, s3"); r("v_mov_b32 v251, 1")
    r("s_mov_b64 exec, 1")
    r("buffer_atomic_add v251, v250, s[12:15], 0 offen sc1")
    r("s_mov_b64 exec, -1")
    r(f"KT_A{idx}:")
    if hook: hook()
    r("s_cmp_lg_u32 s23, 0"); r(f"s_cbranch_scc1 KT_B{idx}")
    if also is not None:
        r("v_lshlrev_b32 v251, 7, v0"); r(f"v_add_u32 v251, {WS_CNT + also*2048}, v251")
        r("v_cmp_eq_u32 vcc, 16, v0"); r("s_nop 1"); r("v_cndmask_b32 v250, v251, v250, vcc")
        r("s_mov_b64 exec, 0x1ffff")
    else:
        r("s_mov_b64 exec, 1")
    r("s_mov_b32 s25, 0")
    r(f"KT_P{idx}:")
    r("buffer_load_dword v251, v250, s[12:15], 0 offen sc1")
    r("s_waitcnt vmcnt(0)")
    r("v_cmp_gt_u32 vcc, 16, v251")
    r("s_add_u32 s25, s25, 1"); r("s_nop 3")
    r("s_and_b64 vcc, vcc, exec")
    r(f"s_cbranch_scc0 KT_D{idx}")
    r("s_sleep 1")
    r(f"s_cmp_lt_u32 s25, {SPIN}"); r(f"s_cbranch_scc1 KT_P{idx}")
    r(f"KT_D{idx}:")
    r("s_mov_b64 exec, -1")
    r(f"KT_B{idx}:")
    e("s_waitcnt lgkmcnt(0)")
    e("s_barrier")

def gen_kt(stamps=False, detail=None):
    P = Prog(); e = P.e
    st_i = [0]
    def dstamp(tag):
        if detail == tag:
            e(f"s_memtime s[{60+2*st_i[0]}:{61+2*st_i[0]}]"); st_i[0] += 1
    def stamp():
        if stamps and detail is None:
            e(f"s_memtime s[{60+2*st_i[0]}:{61+2*st_i[0]}]"); st_i[0] += 1
    e("s_cmp_ge_u32 s2, 256"); e("s_cbranch_scc1 KT_END")
    e("s_load_dwordx2 s[40:41], s[0:1], 32")
    e("s_load_dwordx2 s[42:43], s[0:1], 104")
    e("s_load_dwordx2 s[44:45], s[0:1], 0")
    e("s_load_dwordx4 s[48:51], s[0:1], 48")
    e("s_load_dwordx2 s[52:53], s[0:1], 64")
    e("s_load_dwordx2 s[54:55], s[0:1], 88")
    stamp()
    e("s_and_b32 s20, s2, 3")
    e("s_lshr_b32 s3, s2, 2"); e("s_and_b32 s3, s3, 1"); e("s_lshl_b32 s3, s3, 3")
    e("s_lshr_b32 s21, s2, 5"); e("s_add_u32 s21, s21, s3")
    e("s_lshr_b32 s22, s2, 3"); e("s_and_b32 s22, s22, 3")
    e("s_lshl_b32 s56, s20, 2"); e("s_add_u32 s56, s56, s22")
    e("v_lshrrev_b32 v1, 6, v0"); e("v_and_b32 v0, 63, v0")
    e("v_readfirstlane_b32 s23, v1")
    NS = 6; ST = 20480
    for i in range(5):
        e(f"v_add_u32 v10, {i*64}, v0")
        e("v_mul_u32_u24 v11, 3277, v10"); e("v_lshrrev_b32 v11, 16, v11")
        e("v_mul_u32_u24 v12, 20, v11"); e("v_sub_u32 v12, v10, v12")
        e("v_lshrrev_b32 v13, 2, v11"); e("v_and_b32 v13, 1, v13"); e("v_lshlrev_b32 v13, 1, v13")
        e("v_xor_b32 v12, v12, v13"); e("v_lshlrev_b32 v12, 4, v12")
        e("v_mul_u32_u24 v11, 1280, v11"); e("v_add_u32 v11, v11, v12")
        e(f"v_add_u32 v{2+i}, {BIAS - (i*1024 if i < 4 else 0)}, v11")
    e("s_mul_i32 s3, s23, 20480")
    for i in range(5): e(f"v_add_u32 v{2+i}, s3, v{2+i}")
    e("s_lshl_b32 s3, s21, 3"); e("s_lshl_b32 s24, s23, 1"); e("s_add_u32 s24, s24, s3")
    e("s_mul_i32 s3, s24, 196608"); e("s_mul_i32 s25, s20, 49152"); e("s_add_u32 s3, s3, s25"); e(f"s_add_u32 s3, s3, {WS_OF}")
    e("v_lshlrev_b32 v10, 4, v0"); e("v_add_u32 v15, s3, v10"); e("v_add_u32 v16, 196608, v15")
    e("s_mul_i32 s26, s23, 5120"); e("s_mul_i32 s27, s20, 1966080")
    e("s_waitcnt lgkmcnt(0)")
    e("s_mul_i32 s3, s22, 320")
    e("s_add_u32 s8, s40, s3"); e("s_addc_u32 s9, s41, 0"); e(f"s_sub_u32 s8, s8, {BIAS}"); e("s_subb_u32 s9, s9, 0")
    e(f"s_sub_u32 s10, {7864320+BIAS}, s3"); e("s_mov_b32 s11, 0x20000")
    srd(P, 12, 42, 43, WS_BYTES)
    ACC = 176; AR = 20; ASL = 12; BR = 68; BS = 6
    def acc3(t, ct): return ACC + (t*2 + ct)*4
    def tr3(n):
        ks, t = divmod(n, 10); st, kk = divmod(ks, 2)
        sett, so = divmod(st % NS, 3)
        areg = [7, 8, 9, 14][sett*2 + (t & 1)]
        off = so*ST + kk*10240 + (t >> 1)*64
        r = AR + (n % ASL)*4
        return [Ins(f"ds_read_b64_tr_b16 v[{r}:{r+1}], v{areg} offset:{off}"),
                Ins(f"ds_read_b64_tr_b16 v[{r+2}:{r+3}], v{areg} offset:{off+5120}")]
    def bl3(ks):
        b = BR + (ks % BS)*8
        return ([Ins(f"s_mov_b32 s28, {ks*1024}")],
                [Ins(f"buffer_load_dwordx4 v[{b+4*ct}:{b+4*ct+3}], v{15+ct}, s[12:15], s28 offen") for ct in range(2)])
    def dma3(st):
        L = [Ins(f"s_add_u32 m0, s26, {(st % NS)*ST}"), Ins(f"s_add_u32 s29, s27, {st*81920}")]
        D = [Ins(f"buffer_load_dwordx4 v{2+i}, s[8:11], s29 offen offset:{i*1024} lds") for i in range(4)]
        D.append(Ins(f"s_add_u32 m0, s26, {(st % NS)*ST + 4096}"))
        D.append(Ins(f"buffer_load_dwordx4 v6, s[8:11], s29 offen lds"))
        return L, D
    H = {'b': {}}
    for st in range(3):
        L, D = dma3(st); P.many(L); P.many(D); H[st] = D[-1]
        for ks in (2*st, 2*st+1) if st < 2 else (4,):
            L, D = bl3(ks); P.many(L); P.many(D); H['b'][ks] = D[-1]
        if st == 0:
            e("v_lshrrev_b32 v10, 4, v0")
            e("v_lshrrev_b32 v11, 2, v0"); e("v_and_b32 v11, 3, v11")
            e("v_lshlrev_b32 v12, 2, v10"); e("v_add_u32 v11, v11, v12"); e("v_mul_u32_u24 v11, 320, v11")
            e("v_and_b32 v12, 3, v0"); e("v_lshlrev_b32 v12, 3, v12"); e("v_add_u32 v11, v11, v12")
            e("v_and_b32 v12, 1, v10"); e("v_lshlrev_b32 v12, 5, v12")
            e("v_add_u32 v7, v11, v12"); e("v_xor_b32 v12, 32, v12"); e("v_add_u32 v8, v11, v12")
            e(f"v_add_u32 v9, {3*ST}, v7"); e(f"v_add_u32 v14, {3*ST}, v8")
            e("s_lshl_b32 s3, s20, 7"); e("s_add_u32 s3, s3, s24"); e("s_mul_i32 s3, s3, 20480")
            e("s_mul_i32 s25, s22, 5120"); e("s_add_u32 s3, s3, s25"); e(f"s_add_u32 s3, s3, {WS_PART}")
            e("v_lshlrev_b32 v10, 4, v0"); e("v_add_u32 v17, s3, v10"); e("v_add_u32 v18, 20480, v17")
    srd(P, 16, 44, 45, 2048*1280)
    e("v_and_b32 v120, 7, v0"); e("v_lshrrev_b32 v121, 4, v0"); e("v_lshrrev_b32 v122, 3, v0"); e("v_and_b32 v122, 1, v122")
    e("s_lshl_b32 s30, s21, 3"); e("s_lshr_b32 s3, s56, 1"); e("s_add_u32 s30, s30, s3"); e("s_and_b32 s31, s56, 1")
    e("s_mul_i32 s3, s30, 20480"); e("s_lshl_b32 s25, s31, 7"); e("s_add_u32 s3, s3, s25")
    e("v_lshlrev_b32 v123, 10, v122"); e("v_lshlrev_b32 v124, 8, v121"); e("v_add_u32 v123, v123, v124"); e("v_lshlrev_b32 v124, 4, v120"); e("v_add_u32 v123, v123, v124")
    e("v_add_u32 v123, s3, v123")
    e("s_lshl_b32 s36, s23, 11"); e("s_add_u32 s37, s36, 8192"); e("s_and_b32 s38, s23, 1"); e("s_lshl_b32 s38, s38, 11"); e("s_add_u32 s38, s38, 16384")
    PAIR = [36, 37, 38]
    for j in range(3): e(f"v_add_u32 v{125+j}, s{PAIR[j]}, v123")
    e("s_lshl_b32 s3, s30, 4"); e("s_lshl_b32 s25, s31, 3"); e("s_add_u32 s3, s3, s25"); e("v_add_u32 v128, s3, v120"); e("v_mul_u32_u24 v128, 1280, v128")
    e("v_lshlrev_b32 v124, 6, v122"); e("v_add_u32 v128, v128, v124"); e("v_lshlrev_b32 v124, 3, v121"); e("v_add_u32 v128, v128, v124")
    for j in range(3):
        e(f"s_lshr_b32 s3, s{PAIR[j]}, 4"); e(f"v_add_u32 v{129+j}, s3, v128")
    XR = 132; MP = 160
    for j in range(3):
        for hh in range(2):
            e(f"buffer_load_dwordx2 v[{XR+j*4+hh*2}:{XR+j*4+hh*2+1}], v{129+j}, s[16:19], 0 offen offset:{hh*32}")
    P.wait_vm(H[0]); e("s_barrier")
    PF = 6
    for n in range(PF):
        rr = tr3(n); P.many(rr); H.setdefault('tr', {})[n] = rr[-1]
    stamp()
    gemm_stream(P, 48, 10, 2, 2, acc3, AR, ASL, BR, BS, tr3, bl3, dma3, H, PF, 5, 5, 24)
    stamp()
    for u in range(5):
        e(f"s_mov_b32 s28, {u*1024}")
        for ct in range(2):
            a = acc3(2*u, ct); b = acc3(2*u+1, ct); d = 20 + (u*2+ct)*4
            e(f"v_cvt_pk_bf16_f32 v{d}, v{a}, v{a+1}"); e(f"v_cvt_pk_bf16_f32 v{d+1}, v{a+2}, v{a+3}")
            e(f"v_cvt_pk_bf16_f32 v{d+2}, v{b}, v{b+1}"); e(f"v_cvt_pk_bf16_f32 v{d+3}, v{b+2}, v{b+3}")
            e(f"buffer_store_dwordx4 v[{d}:{d+3}], v{17+ct}, s[12:15], s28 offen sc1")
    def s5_setup():
        for i in range(3):
            e(f"v_add_u32 v110, {i*64}, v0")
            e("v_mul_u32_u24 v111, 5462, v110"); e("v_lshrrev_b32 v111, 16, v111")
            e("v_mul_u32_u24 v112, 12, v111"); e("v_sub_u32 v112, v110, v112")
            e("v_lshrrev_b32 v113, 2, v111"); e("v_and_b32 v113, 1, v113"); e("v_lshlrev_b32 v113, 1, v113")
            e("v_xor_b32 v112, v112, v113"); e("v_lshlrev_b32 v112, 4, v112")
            e("v_mul_u32_u24 v111, 3072, v111"); e("v_add_u32 v111, v111, v112")
            e(f"v_add_u32 v{2+i}, {BIAS - i*1024}, v111")
        e("s_lshr_b32 s3, s23, 1"); e("s_mul_i32 s3, s3, 49152")
        for i in range(3): e(f"v_add_u32 v{2+i}, s3, v{2+i}")
        e("s_and_b32 s3, s23, 1"); e("s_cmp_eq_u32 s3, 0")
        e("s_cselect_b32 s8, s48, s50"); e("s_cselect_b32 s9, s49, s51")
        e("s_mul_i32 s3, s56, 192")
        e("s_add_u32 s8, s8, s3"); e("s_addc_u32 s9, s9, 0"); e(f"s_sub_u32 s8, s8, {BIAS}"); e("s_subb_u32 s9, s9, 0")
        e(f"s_sub_u32 s10, {640*3072+BIAS}, s3"); e("s_mov_b32 s11, 0x20000")
        e("s_mul_i32 s26, s23, 3072")
        e("v_lshrrev_b32 v10, 4, v0")
        e("v_lshrrev_b32 v11, 2, v0"); e("v_mul_u32_u24 v11, 192, v11")
        e("v_and_b32 v12, 3, v0"); e("v_lshlrev_b32 v12, 3, v12"); e("v_add_u32 v11, v11, v12")
        e("v_and_b32 v12, 1, v10"); e("v_lshlrev_b32 v12, 5, v12")
        e("v_add_u32 v7, v11, v12"); e("v_xor_b32 v12, 32, v12"); e("v_add_u32 v8, v11, v12")
        e("v_lshlrev_b32 v10, 4, v0")
        e("s_mul_i32 s3, s24, 20480"); e(f"s_add_u32 s3, s3, {WS_H2F}"); e("v_add_u32 v15, s3, v10"); e("v_add_u32 v16, 20480, v15")
        e("s_mul_i32 s3, s24, 49152"); e("s_mul_i32 s25, s56, 3072"); e("s_add_u32 s3, s3, s25"); e(f"s_add_u32 s3, s3, {WS_ACT}")
        e("v_add_u32 v17, s3, v10"); e("v_add_u32 v18, 49152, v17")
    NS5 = 5; ST5 = 12288
    def dma5(st):
        return ([Ins(f"s_add_u32 m0, s26, {(st % NS5)*ST5}"), Ins(f"s_mov_b32 s29, {st*32*3072}")],
                [Ins(f"buffer_load_dwordx4 v{2+i}, s[8:11], s29 offen offset:{i*1024} lds") for i in range(3)])
    H5 = {'b': {}}
    e("s_lshl_b32 s3, s23, 6"); e("v_add_u32 v144, s3, v0")
    for i in range(3):
        e(f"v_add_u32 v145, {256*i}, v144"); e("v_min_u32 v145, 639, v145")
        e("v_mul_u32_u24 v146, 410, v145"); e("v_lshrrev_b32 v146, 16, v146")
        e("v_mul_u32_u24 v147, 160, v146"); e("v_sub_u32 v147, v145, v147")
        e(f"v_lshlrev_b32 v{148+i}, 4, v147")
        e("v_mul_u32_u24 v147, 2560, v146"); e(f"v_add_u32 v147, v147, v{148+i}")
        for p in range(NSPLIT):
            e(f"s_mov_b32 s25, {WS_MOD + (p*3840 + 2*640)*4}")
            e(f"buffer_load_dwordx4 v[{MP+(i*4+p)*4}:{MP+(i*4+p)*4+3}], v147, s[12:15], s25 offen")
        e(f"v_mul_u32_u24 v146, 5120, v146"); e(f"v_add_u32 v{148+i}, v{148+i}, v146"); e(f"v_add_u32 v{148+i}, {LDS_V}, v{148+i}")
    srd(P, 32, 52, 53, 1966080)
    e("s_mul_i32 s25, s2, 480")
    for r_ in range(2):
        e(f"v_add_u32 v145, {r_*256}, v144")
        e("v_cmp_gt_u32 vcc, 480, v145"); e("v_add_u32 v145, s25, v145")
        e("v_lshlrev_b32 v146, 4, v145"); e("v_mov_b32 v147, 0x7ff00000"); e("v_cndmask_b32 v146, v147, v146, vcc")
        e(f"buffer_load_dwordx4 v[{232+4*r_}:{235+4*r_}], v146, s[32:35], 0 offen")
        e("s_mov_b32 s3, 53687092"); e("v_mul_hi_u32 v146, v145, s3")
        e("v_mul_u32_u24 v157, 80, v146"); e("v_sub_u32 v157, v145, v157")
        e("v_mul_u32_u24 v158, 6554, v157"); e("v_lshrrev_b32 v158, 16, v158")
        e("v_mul_u32_u24 v159, 10, v158"); e("v_sub_u32 v159, v157, v159")
        e("v_mul_u32_u24 v158, 245760, v158"); e("v_mul_u32_u24 v146, 160, v146")
        e("v_lshlrev_b32 v159, 4, v159"); e("v_add_u32 v158, v158, v146"); e("v_add_u32 v158, v158, v159")
        e(f"v_cndmask_b32 v{240+r_}, v147, v158, vcc")
    X = 208
    def hook1():
        s5_setup()
        for i in range(3):
            b = MP + i*16
            for p in range(1, NSPLIT):
                for k in range(4): e(f"v_add_f32 v{b+k}, v{b+k}, v{b+4*p+k}")
            e(f"v_subrev_u32 v146, {LDS_V + 2*5120}, v{148+i}"); e("v_cmp_gt_u32 vcc, 5120, v146"); e("s_nop 1")
            e("v_cndmask_b32 v146, 0, 1.0, vcc")
            for k in range(4):
                e(f"v_cvt_pk_bf16_f32 v{b+k}, v{b+k}, v{b+k}"); e(f"v_and_b32 v{b+k}, 0xffff0000, v{b+k}"); e(f"v_add_f32 v{b+k}, v{b+k}, v146")
            e(f"ds_write_b128 v{148+i}, v[{b}:{b+3}]")
        for q in range(12):
            e(f"v_lshlrev_b32 v{X+2*q}, 16, v{XR+q}"); e(f"v_and_b32 v{X+2*q+1}, 0xffff0000, v{XR+q}")
        e("v_lshlrev_b32 v151, 7, v122"); e("v_lshlrev_b32 v146, 4, v121"); e("v_add_u32 v151, v151, v146"); e(f"v_add_u32 v151, {LDS_V}, v151")
        for j in range(3):
            e(f"s_lshr_b32 s3, s{PAIR[j]}, 3"); e(f"v_add_u32 v{152+j}, s3, v151")
        e("s_cmp_lt_u32 s23, 2"); e("s_cselect_b32 s39, 1.0, 0")
        e("v_mul_u32_u24 v155, 144, v120"); e(f"v_add_u32 v155, {LDS_R}, v155")
        e("v_lshlrev_b32 v156, 3, v121"); e("v_lshlrev_b32 v146, 2, v122"); e("v_add_u32 v156, v156, v146"); e("s_lshl_b32 s3, s23, 5"); e("v_add_u32 v156, s3, v156"); e("v_add_u32 v156, v156, v155")
    stamp()
    gbar(P, 0, hook1)
    stamp()
    dstamp('s4')
    PR = 20
    for p in range(4):
        for j in range(3):
            e(f"s_mov_b32 s25, {WS_PART + p*128*20480}")
            e(f"buffer_load_dwordx4 v[{PR+(p*3+j)*4}:{PR+(p*3+j)*4+3}], v{125+j}, s[12:15], s25 offen sc1")
    e(f"s_mov_b32 s25, {WS_WD}")
    for r_ in range(2): e(f"buffer_store_dwordx4 v[{232+4*r_}:{235+4*r_}], v{240+r_}, s[12:15], s25 offen sc1")
    T = 20; OX = 100; GA = 160
    for j in range(3):
        for hh in range(2):
            k = j*2 + hh
            e(f"ds_read_b128 v[{GA+4*k}:{GA+4*k+3}], v{152+j} offset:{hh*64}")
    for st in range(4):
        L, D = dma5(st); P.many(L); P.many(D); H5[st] = D[-1]
    dstamp('s4')
    A_ = 72
    e("v_mov_b32 v146, 0x3f80"); e("v_mov_b32 v147, 0x3f800000")
    for q in range(12):
        e(f"v_lshlrev_b32 v{A_+2*q}, 16, v{PR+q}"); e(f"v_and_b32 v{A_+2*q+1}, 0xffff0000, v{PR+q}")
    for p in range(1, 4):
        for q in range(12):
            r = PR + p*12 + q
            e(f"v_dot2c_f32_bf16 v{A_+2*q}, v{r}, v146"); e(f"v_dot2c_f32_bf16 v{A_+2*q+1}, v{r}, v147")
    dstamp('s4')
    for k in range(6):
        for i in (0, 2): e(f"v_pk_fma_f32 v[{X+4*k+i}:{X+4*k+i+1}], v[{A_+4*k+i}:{A_+4*k+i+1}], v[{GA+4*k+i}:{GA+4*k+i+1}], v[{X+4*k+i}:{X+4*k+i+1}]")
        e(f"v_cvt_pk_bf16_f32 v{OX+2*k}, v{X+4*k}, v{X+4*k+1}"); e(f"v_cvt_pk_bf16_f32 v{OX+2*k+1}, v{X+4*k+2}, v{X+4*k+3}")
    for q in range(12):
        e(f"v_lshlrev_b32 v{X+2*q}, 16, v{OX+q}"); e(f"v_and_b32 v{X+2*q+1}, 0xffff0000, v{OX+q}")
    e(f"s_mov_b32 s25, {WS_X1}")
    for j in range(3): e(f"buffer_store_dwordx4 v[{OX+4*j}:{OX+4*j+3}], v{125+j}, s[12:15], s25 offen sc1")
    dstamp('s4')
    for j in range(3):
        for hh in range(2):
            k = j*2 + hh
            e(f"ds_read_b128 v[{T+4*k}:{T+4*k+3}], v{152+j} offset:{2*5120 + hh*64}")
            e(f"ds_read_b128 v[{T+24+4*k}:{T+24+4*k+3}], v{152+j} offset:{1*5120 + hh*64}")
    dstamp('s4')
    def red(val, base):
        e(f"ds_write_b32 v156, v{val} offset:{base}")
        e("s_waitcnt lgkmcnt(0)"); e("s_barrier")
        for q in range(8): e(f"ds_read_b128 v[{160+4*q}:{163+4*q}], v155 offset:{base+16*q}")
        for n in (16, 8, 4, 2):
            for q in range(0, n, 2): e(f"v_pk_add_f32 v[{160+q}:{161+q}], v[{160+q}:{161+q}], v[{160+n+q}:{161+n+q}]")
        e(f"v_add_f32 v{val}, v160, v161")
    e(f"v_pk_add_f32 v[158:159], v[{X}:{X+1}], v[{X+2}:{X+3}]")
    for i in range(2, 8): e(f"v_pk_add_f32 v[158:159], v[158:159], v[{X+2*i}:{X+2*i+1}]")
    e(f"v_pk_add_f32 v[96:97], v[{X+16}:{X+17}], v[{X+18}:{X+19}]")
    for i in range(10, 12): e(f"v_pk_add_f32 v[96:97], v[96:97], v[{X+2*i}:{X+2*i+1}]")
    e("v_add_f32 v158, v158, v159"); e("v_add_f32 v96, v96, v97"); e("v_fma_f32 v158, v96, s39, v158")
    dstamp('s4')
    red(158, 0)
    dstamp('s4')
    e(f"v_mul_f32 v158, {f2u(-1/640)}, v158"); e("v_mov_b32 v159, v158")
    for i in range(0, 24, 2): e(f"v_pk_add_f32 v[{X+i}:{X+i+1}], v[{X+i}:{X+i+1}], v[158:159]")
    e(f"v_pk_mul_f32 v[98:99], v[{X}:{X+1}], v[{X}:{X+1}]")
    for i in range(2, 16, 2): e(f"v_pk_fma_f32 v[98:99], v[{X+i}:{X+i+1}], v[{X+i}:{X+i+1}], v[98:99]")
    e(f"v_pk_mul_f32 v[96:97], v[{X+16}:{X+17}], v[{X+16}:{X+17}]")
    for i in range(18, 24, 2): e(f"v_pk_fma_f32 v[96:97], v[{X+i}:{X+i+1}], v[{X+i}:{X+i+1}], v[96:97]")
    e("v_add_f32 v159, v98, v99"); e("v_add_f32 v96, v96, v97")
    e("v_fma_f32 v159, v96, s39, v159")
    red(159, 1280)
    dstamp('s4')
    e(f"v_mul_f32 v159, {f2u(1/640)}, v159"); e(f"v_add_f32 v159, {f2u(1e-5)}, v159"); e("v_rsq_f32 v159, v159"); e("s_nop 0")
    e("v_mov_b32 v158, v159")
    for i in range(0, 24, 2):
        e(f"v_pk_mul_f32 v[{X+i}:{X+i+1}], v[{X+i}:{X+i+1}], v[158:159]")
    for i in range(0, 24, 2):
        e(f"v_pk_fma_f32 v[{X+i}:{X+i+1}], v[{X+i}:{X+i+1}], v[{T+i}:{T+i+1}], v[{T+24+i}:{T+24+i+1}]")
    for k in range(6):
        e(f"v_cvt_pk_bf16_f32 v{OX+2*k}, v{X+4*k}, v{X+4*k+1}"); e(f"v_cvt_pk_bf16_f32 v{OX+2*k+1}, v{X+4*k+2}, v{X+4*k+3}")
    e(f"s_mov_b32 s25, {WS_H2F}")
    for j in range(3): e(f"buffer_store_dwordx4 v[{OX+4*j}:{OX+4*j+3}], v{125+j}, s[12:15], s25 offen sc1")
    dstamp('s4')
    stamp()
    gbar(P, 1)
    dstamp('s4')
    stamp()
    ACC5 = 160
    def acc5(t, ct): return ACC5 + (t*2 + ct)*4
    def tr5(n):
        ks, t = divmod(n, 12); m_, j = divmod(t, 6)
        off = (ks % NS5)*ST5 + m_*3072 + (j >> 1)*64
        r = AR + (n % ASL)*4
        return [Ins(f"ds_read_b64_tr_b16 v[{r}:{r+1}], v{7 + (j & 1)} offset:{off}"),
                Ins(f"ds_read_b64_tr_b16 v[{r+2}:{r+3}], v{7 + (j & 1)} offset:{off+6144}")]
    def bl5(ks):
        b = BR + (ks % BS)*8
        return ([Ins(f"s_mov_b32 s28, {ks*1024}")],
                [Ins(f"buffer_load_dwordx4 v[{b+4*ct}:{b+4*ct+3}], v{15+ct}, s[12:15], s28 offen sc1") for ct in range(2)])
    for ks in range(5):
        L, D = bl5(ks); P.many(L); P.many(D); H5['b'][ks] = D[-1]
    for n in range(PF):
        rr = tr5(n); P.many(rr); H5.setdefault('tr', {})[n] = rr[-1]
    gemm_stream(P, 20, 12, 2, 1, acc5, AR, ASL, BR, BS, tr5, bl5, dma5, H5, PF, 5, 4, 20)
    stamp()
    for u in range(3):
        e(f"s_mov_b32 s28, {u*1024}")
        for ct in range(2):
            dst = 20 + (u*2 + ct)*4
            for hh in range(2):
                j = 2*u + hh
                g = acc5(j, ct); up = acc5(6+j, ct)
                for i in range(4): e(f"v_max_f32 v{g+i}, 0, v{g+i}")
                for i in range(4): e(f"v_mul_f32 v{g+i}, v{g+i}, v{up+i}")
                e(f"v_cvt_pk_bf16_f32 v{dst+2*hh}, v{g}, v{g+1}"); e(f"v_cvt_pk_bf16_f32 v{dst+2*hh+1}, v{g+2}, v{g+3}")
            e(f"buffer_store_dwordx4 v[{dst}:{dst+3}], v{17+ct}, s[12:15], s28 offen sc1")
    NS6 = 6; ST6 = 5120
    e("s_lshr_b32 s30, s20, 1"); e("s_lshl_b32 s30, s30, 2"); e("s_add_u32 s30, s30, s22")
    e("s_lshl_b32 s31, s21, 1"); e("s_and_b32 s3, s20, 1"); e("s_add_u32 s31, s31, s3")
    e("v_lshlrev_b32 v2, 4, v0"); e("v_add_u32 v6, 4096, v2")
    e("v_lshrrev_b32 v111, 2, v0"); e("v_mul_u32_u24 v111, 160, v111")
    e("v_and_b32 v112, 3, v0"); e("v_lshlrev_b32 v112, 3, v112"); e("v_add_u32 v7, v111, v112")
    e(f"s_mul_i32 s26, s23, {NS6*ST6}"); e("v_add_u32 v7, s26, v7")
    e("s_lshl_b32 s24, s31, 2")
    e("s_mul_i32 s3, s24, 49152"); e("s_mul_i32 s25, s23, 12288"); e("s_add_u32 s3, s3, s25"); e(f"s_add_u32 s3, s3, {WS_ACT}")
    e("v_lshlrev_b32 v10, 4, v0"); e("v_add_u32 v112, s3, v10")
    e("s_mul_i32 s27, s23, 61440"); e("s_mul_i32 s3, s30, 245760"); e("s_add_u32 s27, s27, s3"); e(f"s_add_u32 s27, s27, {WS_WD}")
    srd(P, 32, 54, 55, 2048*1280)
    def dma6(st):
        L = [Ins(f"s_add_u32 m0, s26, {(st % NS6)*ST6}"), Ins(f"s_add_u32 s29, s27, {st*5120}")]
        D = [Ins(f"buffer_load_dwordx4 v2, s[12:15], s29 offen offset:{i*1024} lds") for i in range(4)]
        D.append(Ins(f"s_add_u32 m0, s26, {(st % NS6)*ST6 + 4096}"))
        D.append(Ins(f"buffer_load_dwordx4 v6, s[12:15], s29 offen lds"))
        return L, D
    H6 = {'b': {}}
    stamp()
    gbar(P, 2, None, also=1)
    stamp()
    for ct in range(4): e(f"v_add_u32 v{15+ct}, {ct*49152}, v112")
    ACC6 = 176; AR6 = 20; ASL6 = 8; BR6 = 52; BS6 = 4; XR6 = 116; GB6 = 128
    def acc6(t, ct): return ACC6 + (t*4 + ct)*4
    def tr6(n):
        ks, t = divmod(n, 5)
        off = (ks % NS6)*ST6 + t*32
        r = AR6 + (n % ASL6)*4
        return [Ins(f"ds_read_b64_tr_b16 v[{r}:{r+1}], v7 offset:{off}"),
                Ins(f"ds_read_b64_tr_b16 v[{r+2}:{r+3}], v7 offset:{off+2560}")]
    def bl6(ks):
        b = BR6 + (ks % BS6)*16
        return ([Ins(f"s_mov_b32 s28, {ks*1024}")],
                [Ins(f"buffer_load_dwordx4 v[{b+4*ct}:{b+4*ct+3}], v{15+ct}, s[12:15], s28 offen sc1") for ct in range(4)])
    for ks in range(3):
        L, D = dma6(ks); P.many(L); P.many(D); H6[ks] = D[-1]
        L, D = bl6(ks); P.many(L); P.many(D); H6['b'][ks] = D[-1]
    e("s_add_u32 s3, s24, s23"); e("s_mul_i32 s36, s3, 20480"); e(f"s_add_u32 s36, s36, {WS_X1}")
    for t in range(5):
        e(f"s_mul_i32 s3, s30, 5"); e(f"s_add_u32 s3, s3, {t}"); e("s_lshr_b32 s37, s3, 1"); e("s_lshl_b32 s37, s37, 10")
        e("s_and_b32 s3, s3, 1"); e("s_lshl_b32 s3, s3, 3"); e("s_add_u32 s37, s37, s3"); e("s_add_u32 s37, s37, s36")
        e(f"buffer_load_dwordx2 v[{XR6+2*t}:{XR6+2*t+1}], v10, s[12:15], s37 offen sc1")
    e("v_lshrrev_b32 v11, 4, v0"); e("v_lshlrev_b32 v13, 4, v11"); e("s_mul_i32 s3, s30, 320"); e(f"s_add_u32 s3, s3, {LDS_V + 3*5120}"); e("v_add_u32 v13, s3, v13")
    for t in range(5): e(f"ds_read_b128 v[{GB6+4*t}:{GB6+4*t+3}], v13 offset:{t*64}")
    e("v_and_b32 v12, 15, v0"); e("s_lshl_b32 s3, s31, 6"); e("s_lshl_b32 s25, s23, 4"); e("s_add_u32 s3, s3, s25"); e("v_add_u32 v12, s3, v12")
    e("v_mul_u32_u24 v12, 1280, v12"); e("v_lshlrev_b32 v11, 3, v11"); e("v_add_u32 v12, v12, v11")
    e("s_mul_i32 s3, s30, 160"); e("v_add_u32 v14, s3, v12")
    PF6 = 4
    P.wait_vm(H6[0])
    for n in range(PF6):
        rr = tr6(n); P.many(rr); H6.setdefault('tr', {})[n] = rr[-1]
    bar0 = kgemm.GOPT['barrier']; kgemm.GOPT['barrier'] = False
    g0 = kgemm.GAP; kgemm.GAP = 2
    gemm_stream(P, 12, 5, 4, 1, acc6, AR6, ASL6, BR6, BS6, tr6, bl6, dma6, H6, PF6, 3, 4, 12, WG=1)
    kgemm.GAP = g0; kgemm.GOPT['barrier'] = bar0
    stamp()
    e("s_barrier")
    e("s_mul_i32 s3, s23, 20480"); e("v_add_u32 v11, s3, v10")
    for ct in range(4):
        for t in range(5):
            a = acc6(t, ct)
            e(f"ds_write_b128 v11, v[{a}:{a+3}] offset:{(ct*5+t)*1024}")
    e("s_waitcnt lgkmcnt(0)"); e("s_barrier")
    e("s_mul_i32 s3, s23, 5120"); e("v_add_u32 v11, s3, v10"); e("v_add_u32 v13, 40960, v11")
    for sw in range(4):
        for t in range(5):
            r = 20 + (sw*5 + t)*4
            e(f"ds_read_b128 v[{r}:{r+3}], v{11 if sw < 2 else 13} offset:{(sw & 1)*20480 + t*1024}")
    for t in range(5):
        y = 20 + t*4
        for sw in range(1, 4):
            for i in range(4): e(f"v_add_f32 v{y+i}, v{y+i}, v{20+(sw*5+t)*4+i}")
        x = XR6 + 2*t
        e(f"v_lshlrev_b32 v148, 16, v{x}"); e(f"v_and_b32 v149, 0xffff0000, v{x}")
        e(f"v_lshlrev_b32 v150, 16, v{x+1}"); e(f"v_and_b32 v151, 0xffff0000, v{x+1}")
        for i in range(4): e(f"v_fma_f32 v{y+i}, v{y+i}, v{GB6+4*t+i}, v{148+i}")
        e(f"v_cvt_pk_bf16_f32 v{y}, v{y}, v{y+1}"); e(f"v_cvt_pk_bf16_f32 v{y+1}, v{y+2}, v{y+3}")
        e(f"buffer_store_dwordx2 v[{y}:{y+1}], v14, s[32:35], 0 offen offset:{t*32}")
    if stamps:
        e("s_waitcnt vmcnt(0)"); stamp()
        while st_i[0] < 12:
            e(f"s_memtime s[{60+2*st_i[0]}:{61+2*st_i[0]}]"); st_i[0] += 1
        e("s_waitcnt lgkmcnt(0)")
        e(f"s_lshl_b32 s3, s2, 2"); e(f"s_add_u32 s3, s3, s23"); e("s_lshl_b32 s3, s3, 6"); e(f"s_add_u32 s3, s3, {WS_STAMP}")
        for i in range(st_i[0]):
            e(f"v_mov_b32 v1, s{60+2*i}"); e("v_mov_b32 v2, s3")
            e(f"buffer_store_dword v1, v2, s[12:15], 0 offen offset:{4*i}"); e("s_waitcnt vmcnt(0)")
    e("KT_END:")
    e("s_endpgm")
    P.finalize(report_nops=False)
    P.nstamps = st_i[0]
    return P

if __name__ == "__main__":
    k = gen_kt(stamps=True)
    print(k.estimate(), len(k.final), k.nstamps)
```

```python
import sys, io, contextlib
import k2gen, ksmall, kgemm, ktail
from asmgen import *
from k2gen import *

HDR = open('adaLN_cond__sliding_block_cached__glu_gated_reglu__prompt.s.ref').read().split('; Override launch')[0]

K2OPT = {}
BOPT = {}
def gen_k2(stamps=False):
    k2gen.OPT.update(K2OPT)
    P = Prog()
    H = {}
    if stamps: stamp(P, 0); P.e("s_waitcnt lgkmcnt(0)")
    prologue(P, stamps=False)
    main_pro(P, H)
    if stamps: stamp(P, 1)
    main_schedule(P, H)
    if stamps:
        n = 8 if K2OPT.get('stamps_in') else 2
        stamp(P, n); P.e("s_waitcnt vmcnt(0)"); stamp(P, n+1); write_stamps(P, n+2)
    P.e("K2_END:")
    P.e("s_endpgm")
    P.finalize(report_nops=K2OPT.get('report', False))
    return P

def add_rt(P, kidx):
    start = [Ins("s_mov_b32 s83, s2"), Ins("s_memrealtime s[92:93]"), Ins("s_memtime s[90:91]")]
    def end():
        return [Ins("s_mov_b64 exec, 1"), Ins("s_waitcnt vmcnt(0)"), Ins("s_memrealtime s[94:95]"), Ins("s_memtime s[88:89]"), Ins("s_load_dwordx2 s[96:97], s[0:1], 104"), Ins("s_waitcnt lgkmcnt(0)"),
           Ins("s_mov_b32 s84, s96"), Ins("s_mov_b32 s85, s97"), Ins(f"s_mov_b32 s86, {WS_BYTES}"), Ins("s_mov_b32 s87, 0x20000"),
           Ins("s_lshl_b32 s3, s83, 4"), Ins(f"s_add_u32 s3, s3, {WS_STAMP + 0x10000*(kidx+1)}"),
           Ins("v_mov_b32 v4, s92"), Ins("v_mov_b32 v5, s94"), Ins("v_mov_b32 v6, s90"), Ins("v_mov_b32 v7, s88"), Ins("v_mov_b32 v8, s3"),
           Ins("buffer_store_dwordx4 v[4:7], v8, s[84:87], 0 offen"), Ins("s_waitcnt vmcnt(0)")]
    items = list(start)
    for x in P.items:
        if isinstance(x, Ins) and x.op == 's_endpgm': items += end()
        items.append(x)
    P.items = items
    P.finalize(report_nops=False)

def build(fname, rt=False, k2stamps=False, stk=None, diag=None, fused=True):
    with contextlib.redirect_stdout(io.StringIO()):
        k01 = ksmall.gen_k01(pf=BOPT.get('pf01', ('code', 'wq'))); k2 = gen_k2(stamps=k2stamps); k3 = kgemm.gen_k3(stamps=(stk == 'k3')); k4 = ksmall.gen_k4b(); k5 = kgemm.gen_k5e(stamps=(stk == 'k5')); k6 = kgemm.gen_k6c(stamps=(stk == 'k6'))
        kt = ktail.gen_kt(stamps=(stk is not None and stk.startswith('kt')), detail=(stk[3:] if stk and len(stk) > 2 else None))
    if fused:
        if rt:
            for i, k in enumerate([k01, k2, kt]): add_rt(k, i)
        ks = [("k01_kernel", k01.text(), 256, 256), ("k2_kernel", k2.text(), 512, 256), ("kt_kernel", kt.text(), 256, 256)]
        ls = [("k01_kernel", 248, 256, 16384), ("k2_kernel", 256, 256, LDS_BYTES), ("kt_kernel", 256, 256, ktail.LDS_TAIL)]
        s = HDR + wrap(ks, ls)
        open(fname, "w").write(s); print(fname, len(s), "bytes"); return
    if rt:
        for i, k in enumerate([k01, k2, k3, k4, k5, k6]): add_rt(k, i)
    ks = [("k01_kernel", k01.text(), 256, 256), ("k2_kernel", k2.text(), 512, 256),
          ("k3_kernel", k3.text(), 256, 256), ("k4_kernel", k4.text(), 128, 128), ("k5_kernel", k5.text(), 256, 256), ("k6_kernel", k6.text(), 256, 256)]
    ls = [("k01_kernel", 248, 256, 16384), ("k2_kernel", 256, 256, LDS_BYTES),
          ("k3_kernel", 256, 256, 122880), ("k4_kernel", 256+128, 320, 24576), ("k5_kernel", 256, 256, 61440), ("k6_kernel", 256, 512, 163840)]
    if diag == 'wo':
        d = ksmall.gen_diag_touch("KD", 32, 1966080, lambda e: (e("s_and_b32 s23, s21, 3"), e("s_mul_i32 s23, s23, 1966080")))
        ks.append(("kd_kernel", d.text(), 64, 64)); ls.insert(2, ("kd_kernel", 256, 256, 0))
    if diag == 'wd':
        d = ksmall.gen_diag_touch("KD", 104, 1966080, lambda e: e(f"s_mov_b32 s23, {WS_WD}"))
        ks.append(("kd_kernel", d.text(), 64, 64)); ls.insert(5, ("kd_kernel", 256, 256, 0))
    if diag == 'act':
        d = ksmall.gen_diag_touch("KD", 104, 786432, lambda e: (e("s_mul_i32 s23, s21, 786432"), e(f"s_add_u32 s23, s23, {WS_ACT}")))
        d2 = ksmall.gen_diag_touch("KE", 104, 1966080, lambda e: e(f"s_mov_b32 s23, {WS_WD}"))
        ks.append(("kd_kernel", d.text(), 64, 64)); ls.insert(5, ("kd_kernel", 256, 256, 0))
        ks.append(("ke_kernel", d2.text(), 64, 64)); ls.insert(5, ("ke_kernel", 256, 256, 0))
    if diag == 'h2':
        d = ksmall.gen_diag_touch("KD", 104, 2621440, lambda e: e(f"s_mov_b32 s23, {WS_H2F}"))
        ks.append(("kd_kernel", d.text(), 64, 64)); ls.insert(4, ("kd_kernel", 256, 256, 0))
    s = HDR + wrap(ks, ls)
    open(fname, "w").write(s)
    print(fname, len(s), "bytes")

if __name__ == "__main__":
    import os
    build("adaLN_cond__sliding_block_cached__glu_gated_reglu__prompt.s")
    build("all_rt.s", rt=True)
    build("all_skt.s", stk='kt')
    build("all_skts4.s", stk='kt_s4')
    build("all_unf.s", rt=True, fused=False)
    for kv in os.environ.get("K2V", "").split(";"):
        if not kv: continue
        nm, _, o = kv.partition(':')
        opt = dict(x.split('=') for x in o.split(',') if x)
        K2OPT.update(opt); K2OPT['stamps_in'] = 1
        build(f"all_{nm}.s", rt=False, k2stamps=True)
        for k in list(K2OPT): K2OPT.pop(k); k2gen.OPT.pop(k, None)
```

```python
import re

REG_RE = re.compile(r'^(-|\|)?([vas])(\d+)\|?$')
RNG_RE = re.compile(r'^(-)?([vas])\[(\d+):(\d+)\]$')


def parse_regs(tok):
    tok = tok.strip()
    m = REG_RE.match(tok)
    if m:
        return [(m.group(2), int(m.group(3)))]
    m = RNG_RE.match(tok)
    if m:
        return [(m.group(2), i) for i in range(int(m.group(3)), int(m.group(4)) + 1)]
    if tok in ('vcc', 'exec', 'm0', 'scc'):
        return [(tok, 0)]
    if tok in ('vcc_lo', 'vcc_hi'):
        return [('vcc', 0)]
    if tok in ('exec_lo', 'exec_hi'):
        return [('exec', 0)]
    return []


def V(i, n=1):
    return f"v{i}" if n == 1 else f"v[{i}:{i+n-1}]"


def A(i, n=1):
    return f"a{i}" if n == 1 else f"a[{i}:{i+n-1}]"


def S(i, n=1):
    return f"s{i}" if n == 1 else f"s[{i}:{i+n-1}]"


def R(r, n=1):
    return V(r[1], n) if r[0] == 'v' else A(r[1], n)


TRANS = ('v_exp_f32', 'v_log_f32', 'v_rcp_f32', 'v_rsq_f32', 'v_sqrt_f32', 'v_sin_f32', 'v_cos_f32')


class Ins:
    __slots__ = ('text', 'op', 'kind', 'rd', 'wr', 'meta', 'srcc', 'srcab', 'tag')

    def __init__(self, text, tag=None):
        self.text = text
        self.tag = tag
        self.meta = {}
        self.srcc = []
        self.srcab = []
        t = text.split(';')[0].strip()
        if t.endswith(':'):
            self.op = 'label'; self.kind = 'label'; self.rd = []; self.wr = []
            return
        parts = t.split(None, 1)
        op = parts[0]
        self.op = op
        rest = parts[1] if len(parts) > 1 else ''
        ops = []
        cur = ''
        depth = 0
        for ch in rest:
            if ch == '[': depth += 1
            if ch == ']': depth -= 1
            if ch == ',' and depth == 0:
                ops.append(cur.strip()); cur = ''
            else:
                cur += ch
        if cur.strip():
            ops.append(cur.strip())
        mods = ''
        if ops:
            sp = ops[-1].split(None, 1)
            ops[-1] = sp[0]
            mods = sp[1] if len(sp) > 1 else ''
        regs = [parse_regs(o) for o in ops]
        rd, wr = [], []
        kind = None
        if op.startswith('v_mfma'):
            kind = 'mfma32' if '32x32' in op else 'mfma16'
            wr = regs[0]
            self.srcab = regs[1] + regs[2]
            self.srcc = regs[3] if len(regs) > 3 else []
            rd = self.srcab + self.srcc
        elif op.startswith('v_cmp'):
            kind = 'valu'
            wr = regs[0]
            for r in regs[1:]: rd += r
            if op.startswith('v_cmpx'): wr = wr + [('exec', 0)]
        elif op.startswith('v_permlane') and 'swap' in op:
            kind = 'perm'
            wr = regs[0] + regs[1]; rd = regs[0] + regs[1]
        elif op.startswith('v_readfirstlane') or op.startswith('v_readlane'):
            kind = 'valu'; wr = regs[0]
            for r in regs[1:]: rd += r
            self.meta['readlane'] = True
        elif op.startswith('v_'):
            kind = 'trans' if op.replace('_e32', '').replace('_e64', '') in TRANS else 'valu'
            wr = list(regs[0])
            for r in regs[1:]: rd += r
            base = op.replace('_e32', '').replace('_e64', '')
            if base in ('v_fmac_f32', 'v_dot2c_f32_bf16', 'v_pk_fmac_f16', 'v_writelane_b32'):
                rd += regs[0]
            if base in ('v_add_co_u32', 'v_sub_co_u32', 'v_addc_co_u32', 'v_subb_co_u32'):
                wr = regs[0] + regs[1]
                rd = []
                for r in regs[2:]: rd += r
            if base == 'v_cndmask_b32' and len(regs) == 3:
                rd += [('vcc', 0)]
            if 'dpp' in op or 'row_' in mods or 'quad_perm' in mods:
                self.meta['dpp'] = True
                rd += regs[0]
        elif op.startswith('ds_read') or op.startswith('ds_bpermute') or op.startswith('ds_swizzle'):
            kind = 'ds_read'; wr = regs[0]
            for r in regs[1:]: rd += r
        elif op.startswith('ds_write'):
            kind = 'ds_write'
            for r in regs: rd += r
        elif op.startswith('buffer_load') or op.startswith('global_load'):
            if ' lds' in (' ' + mods) or op.startswith('global_load_lds'):
                kind = 'dma'
                for r in regs: rd += r
                rd += [('m0', 0)]
            else:
                kind = 'vload'; wr = regs[0]
                for r in regs[1:]: rd += r
        elif op.startswith('buffer_store') or op.startswith('global_store'):
            kind = 'vstore'
            for r in regs: rd += r
            if op.startswith('buffer_store'):
                self.meta['data'] = regs[0]
            else:
                self.meta['data'] = regs[1]
            self.meta['wide'] = op.endswith('x4') or op.endswith('x3')
        elif op.startswith('buffer_atomic') or op.startswith('global_atomic'):
            kind = 'vstore'
            for r in regs: rd += r
            self.meta['data'] = []
            self.meta['wide'] = False
            if 'sc0' in mods:
                kind = 'vload'; wr = regs[0]
        elif op.startswith('buffer_inv') or op.startswith('buffer_wbl2'):
            kind = 'vstore'; self.meta['data'] = []; self.meta['wide'] = False
        elif op.startswith('s_load') or op.startswith('s_memtime') or op.startswith('s_memrealtime') or op.startswith('s_buffer_load'):
            kind = 'smem'; wr = regs[0]
            for r in regs[1:]: rd += r
        elif op == 's_waitcnt':
            kind = 'wait'
        elif op == 's_barrier':
            kind = 'barrier'
        elif op == 's_nop':
            kind = 'nop'; self.meta['n'] = int(ops[0], 0) + 1
        elif op.startswith('s_cbranch') or op == 's_branch' or op == 's_endpgm' or op.startswith('s_setpc'):
            kind = 'branch'
        elif op.startswith('s_cmp'):
            kind = 'salu'; wr = [('scc', 0)]
            for r in regs: rd += r
        elif op in ('s_setprio', 's_sleep'):
            kind = 'salu'
        elif op.startswith('s_'):
            kind = 'salu'; wr = list(regs[0]) if regs else []
            for r in regs[1:]: rd += r
            if 'saveexec' in op:
                wr += [('exec', 0)]; rd += [('exec', 0)]
            if op in ('s_addk_i32', 's_mulk_i32'):
                rd += regs[0]
        else:
            raise ValueError("unknown op " + text)
        self.kind = kind
        self.rd = rd
        self.wr = wr

    def cost(self):
        k = self.kind
        if k in ('label',): return 0
        if k in ('trans', 'perm'): return 8
        if k in ('mfma16', 'mfma32'): return 8
        if k == 'nop': return 4 * self.meta['n']
        return 4


def RAW(text):
    i = Ins(text); i.meta['raw'] = True
    return i


def NT(text):
    i = Ins(text); i.meta['notrack'] = True
    return i


class WaitVM:
    def __init__(self, h): self.h = h
    kind = 'waitvm'


class WaitLGKM:
    def __init__(self, h): self.h = h
    kind = 'waitlgkm'


MACROS = r"""
.macro xm d,a,b,c
v_mfma_f32_16x16x32_bf16 v[\d:\d+3], \a, \b, \c
.endm
.macro xaa d,a,b
v_mfma_f32_16x16x32_bf16 v[\d:\d+3], a[\a:\a+3], a[\b:\b+3], v[\d:\d+3]
.endm
.macro xav d,a,b
v_mfma_f32_16x16x32_bf16 v[\d:\d+3], a[\a:\a+3], v[\b:\b+3], v[\d:\d+3]
.endm
.macro xvv d,a,b
v_mfma_f32_16x16x32_bf16 v[\d:\d+3], v[\a:\a+3], v[\b:\b+3], v[\d:\d+3]
.endm
.macro xva d,a,b
v_mfma_f32_16x16x32_bf16 v[\d:\d+3], v[\a:\a+3], a[\b:\b+3], v[\d:\d+3]
.endm
.macro yav d,a,b
v_mfma_f32_32x32x16_bf16 v[\d:\d+15], a[\a:\a+3], v[\b:\b+3], v[\d:\d+15]
.endm
.macro ta d,a,o
ds_read_b64_tr_b16 a[\d:\d+1], v\a offset:\o
.endm
.macro tv d,a,o
ds_read_b64_tr_b16 v[\d:\d+1], v\a offset:\o
.endm
.macro ra d,a,o
ds_read_b128 a[\d:\d+3], v\a offset:\o
.endm
.macro ex r
v_exp_f32 v\r, v\r
.endm
.macro cv d,a,b
v_cvt_pk_bf16_f32 v\d, v\a, v\b
.endm
.macro aw d,a
v_accvgpr_write_b32 a\d, v\a
.endm
.macro sw a,b
v_permlane16_swap_b32 v\a, v\b
.endm
.macro wl n
s_waitcnt lgkmcnt(\n)
.endm
.macro wv n
s_waitcnt vmcnt(\n)
.endm
.macro dm v,s,t,o
buffer_load_dwordx4 v\v, s[\s:\s+3], s\t offen offset:\o lds
.endm
"""
_PATS = [
    (re.compile(r'^v_mfma_f32_16x16x32_bf16 v\[(\d+):\d+\], a\[(\d+):\d+\], a\[(\d+):\d+\], v\[(\d+):\d+\]$'), lambda m: f"xaa {m.group(1)},{m.group(2)},{m.group(3)}" if m.group(1) == m.group(4) else None),
    (re.compile(r'^v_mfma_f32_16x16x32_bf16 v\[(\d+):\d+\], a\[(\d+):\d+\], v\[(\d+):\d+\], v\[(\d+):\d+\]$'), lambda m: f"xav {m.group(1)},{m.group(2)},{m.group(3)}" if m.group(1) == m.group(4) else None),
    (re.compile(r'^v_mfma_f32_16x16x32_bf16 v\[(\d+):\d+\], v\[(\d+):\d+\], v\[(\d+):\d+\], v\[(\d+):\d+\]$'), lambda m: f"xvv {m.group(1)},{m.group(2)},{m.group(3)}" if m.group(1) == m.group(4) else None),
    (re.compile(r'^v_mfma_f32_16x16x32_bf16 v\[(\d+):\d+\], v\[(\d+):\d+\], a\[(\d+):\d+\], v\[(\d+):\d+\]$'), lambda m: f"xva {m.group(1)},{m.group(2)},{m.group(3)}" if m.group(1) == m.group(4) else None),
    (re.compile(r'^v_mfma_f32_32x32x16_bf16 v\[(\d+):\d+\], a\[(\d+):\d+\], v\[(\d+):\d+\], v\[(\d+):\d+\]$'), lambda m: f"yav {m.group(1)},{m.group(2)},{m.group(3)}" if m.group(1) == m.group(4) else None),
    (re.compile(r'^ds_read_b64_tr_b16 a\[(\d+):\d+\], v(\d+) offset:(\d+)$'), lambda m: f"ta {m.group(1)},{m.group(2)},{m.group(3)}"),
    (re.compile(r'^ds_read_b64_tr_b16 v\[(\d+):\d+\], v(\d+) offset:(\d+)$'), lambda m: f"tv {m.group(1)},{m.group(2)},{m.group(3)}"),
    (re.compile(r'^ds_read_b128 a\[(\d+):\d+\], v(\d+) offset:(\d+)$'), lambda m: f"ra {m.group(1)},{m.group(2)},{m.group(3)}"),
    (re.compile(r'^v_exp_f32 v(\d+), v(\d+)$'), lambda m: f"ex {m.group(1)}" if m.group(1) == m.group(2) else None),
    (re.compile(r'^v_cvt_pk_bf16_f32 v(\d+), v(\d+), v(\d+)$'), lambda m: f"cv {m.group(1)},{m.group(2)},{m.group(3)}"),
    (re.compile(r'^v_accvgpr_write_b32 a(\d+), v(\d+)$'), lambda m: f"aw {m.group(1)},{m.group(2)}"),
    (re.compile(r'^v_permlane16_swap_b32 v(\d+), v(\d+)$'), lambda m: f"sw {m.group(1)},{m.group(2)}"),
    (re.compile(r'^s_waitcnt lgkmcnt\((\d+)\)$'), lambda m: f"wl {m.group(1)}"),
    (re.compile(r'^s_waitcnt vmcnt\((\d+)\)$'), lambda m: f"wv {m.group(1)}"),
    (re.compile(r'^buffer_load_dwordx4 v(\d+), s\[(\d+):\d+\], s(\d+) offen offset:(\d+) lds$'), lambda m: f"dm {m.group(1)},{m.group(2)},{m.group(3)},{m.group(4)}"),
]


def compress(t):
    for rx, fn in _PATS:
        m = rx.match(t)
        if m:
            r = fn(m)
            if r: return r
    return t


class Prog:
    def __init__(self):
        self.items = []

    def e(self, text, tag=None):
        if isinstance(text, (Ins, WaitVM, WaitLGKM)):
            self.items.append(text); return text
        i = Ins(text, tag)
        self.items.append(i)
        return i

    def many(self, lst):
        for x in lst: self.e(x)

    def wait_vm(self, h):
        self.items.append(WaitVM(h))

    def finalize(self, auto_wait=True, verbose=False, report_nops=True):
        out = []
        vm = []
        lg = []
        smem_out = False
        pend = {}
        nwait = 0
        issued = set()

        def emit_wait(vmn=None, lgn=None):
            nonlocal nwait
            s = []
            if vmn is not None: s.append(f"vmcnt({vmn})")
            if lgn is not None: s.append(f"lgkmcnt({lgn})")
            if not s: return
            out.append(Ins("s_waitcnt " + " ".join(s)))
            nwait += 1

        def retire_vm(n):
            while len(vm) > n:
                o = vm.pop(0)
                for r in o.wr:
                    if pend.get(r, (None, None))[1] is o: del pend[r]

        def retire_lg(n):
            while len(lg) > n:
                o = lg.pop(0)
                for r in o.wr:
                    if pend.get(r, (None, None))[1] is o: del pend[r]

        for it in self.items:
            if isinstance(it, WaitVM):
                h = it.h
                assert id(h) in issued, "WaitVM before its operation was issued: " + h.text
                if h in vm:
                    n = len(vm) - 1 - vm.index(h)
                    assert n <= 63, "vmcnt overflow"
                    emit_wait(vmn=n); retire_vm(n)
                continue
            if isinstance(it, WaitLGKM):
                h = it.h
                assert id(h) in issued, "WaitLGKM before its operation was issued: " + h.text
                if h in lg:
                    n = len(lg) - 1 - lg.index(h)
                    emit_wait(lgn=min(n, 15)); retire_lg(min(n, 15))
                continue
            k = it.kind
            if it.meta.get('raw'):
                out.append(it); continue
            if k == 'label' or k == 'branch':
                if it.meta.get('keep'):
                    out.append(it); continue
                if pend and it.op != 's_endpgm':
                    needv = any(p[0] == 'vm' for p in pend.values())
                    needl = any(p[0] in ('lg', 'sm') for p in pend.values())
                    emit_wait(vmn=0 if needv else None, lgn=0 if needl else None)
                    if needv: retire_vm(0)
                    if needl: retire_lg(0)
                out.append(it)
                continue
            if k == 'wait':
                m = re.search(r'vmcnt\((\d+)\)', it.text)
                if m: retire_vm(int(m.group(1)))
                m = re.search(r'lgkmcnt\((\d+)\)', it.text)
                if m:
                    retire_lg(int(m.group(1)))
                    if int(m.group(1)) == 0: smem_out = False
                out.append(it)
                continue
            if auto_wait and not it.meta.get('notrack'):
                vmn = None; lgn = None
                for r in list(it.rd) + list(it.wr):
                    p = pend.get(r)
                    if p is None: continue
                    if p[0] == 'vm':
                        n = len(vm) - 1 - vm.index(p[1])
                        vmn = n if vmn is None else min(vmn, n)
                    elif p[0] == 'lg':
                        n = len(lg) - 1 - lg.index(p[1])
                        lgn = n if lgn is None else min(lgn, n)
                    elif p[0] == 'sm':
                        lgn = 0
                if vmn is not None or lgn is not None:
                    if vmn is not None: vmn = min(vmn, 63)
                    if lgn is not None:
                        lgn = min(lgn, 15)
                        if smem_out: lgn = 0
                    emit_wait(vmn, lgn)
                    if vmn is not None: retire_vm(vmn)
                    if lgn is not None:
                        retire_lg(lgn)
                        if lgn == 0:
                            smem_out = False
                            for r in [r for r, p in pend.items() if p[0] == 'sm']: del pend[r]
            out.append(it)
            issued.add(id(it))
            if k in ('vload', 'dma', 'vstore'):
                vm.append(it)
                if not it.meta.get('notrack'):
                    for r in it.wr: pend[r] = ('vm', it)
            elif k in ('ds_read', 'ds_write'):
                lg.append(it)
                for r in it.wr: pend[r] = ('lg', it)
            elif k == 'smem':
                smem_out = True
                for r in it.wr: pend[r] = ('sm', it)
        out = self._hazards(out, report_nops)
        self.final = out
        return out

    def _hazards(self, ins, report):
        out = []
        pos = 0
        last_valu_w = {}
        last_trans_w = {}
        last_mfma_w = {}
        last_mfma_c = {}
        last_salu_m0 = -100
        last_valu_sg = {}
        last_store_data = {}
        last_valu_exec = -100
        nops = 0
        for it in ins:
            k = it.kind
            if k == 'label':
                out.append(it); continue
            need = 0

            def req(p, n):
                nonlocal need
                need = max(need, p + n + 1)

            isvalu = k in ('valu', 'trans', 'perm')
            ismfma = k in ('mfma16', 'mfma32')
            ismem = k in ('ds_read', 'ds_write', 'vload', 'dma', 'vstore')
            if ismfma:
                for r in it.rd:
                    if r in last_valu_w: req(last_valu_w[r], 2)
                for r in it.srcab:
                    if r in last_mfma_w:
                        p, ps, d = last_mfma_w[r]; req(p, {4: 8, 8: 12}[ps])
                for r in it.srcc:
                    if r in last_mfma_w:
                        p, ps, d = last_mfma_w[r]
                        mine = 4 if k == 'mfma16' else 8
                        if tuple(it.srcc) == d and ps == mine: pass
                        else: req(p, {4: 6, 8: 10}[ps])
                for r in it.wr:
                    if r in last_mfma_w and r not in it.srcc:
                        p, ps, d = last_mfma_w[r]; req(p, {4: 6, 8: 10}[ps])
                req(last_valu_exec, 4)
            if isvalu or ismem:
                regs = list(it.rd) + list(it.wr)
                for r in regs:
                    if r in last_mfma_w:
                        p, ps, d = last_mfma_w[r]; req(p, {4: 8, 8: 12}[ps])
            if isvalu:
                for r in it.wr:
                    if r in last_mfma_c:
                        p, ps = last_mfma_c[r]; req(p, {4: 3, 8: 7}[ps])
                    if r in last_store_data: req(last_store_data[r], 2)
                if k != 'trans':
                    for r in it.rd:
                        if r in last_trans_w: req(last_trans_w[r], 1)
                if k == 'perm' or it.meta.get('dpp'):
                    for r in it.rd:
                        if r in last_valu_w: req(last_valu_w[r], 2)
                    if it.meta.get('dpp'): req(last_valu_exec, 5)
                if it.meta.get('readlane'):
                    for r in it.rd:
                        if r in last_valu_w: req(last_valu_w[r], 1)
                        if r in last_valu_sg: req(last_valu_sg[r], 4)
                for r in it.rd:
                    if r in last_valu_sg: req(last_valu_sg[r], 2)
            if k in ('vload', 'ds_read'):
                for r in it.wr:
                    if r in last_store_data: req(last_store_data[r], 1)
            if k in ('vload', 'dma', 'vstore'):
                for r in it.rd:
                    if r in last_valu_sg: req(last_valu_sg[r], 5)
                if k == 'dma': req(last_salu_m0, 1)
            if k in ('salu', 'branch'):
                for r in it.rd:
                    if r in last_valu_sg: req(last_valu_sg[r], 4)
                if k == 'branch' and 'vcc' in it.op and ('vcc', 0) in last_valu_sg:
                    req(last_valu_sg[('vcc', 0)], 5)
                if k == 'branch' and 'exec' in it.op:
                    req(last_valu_exec, 5)
            if need > pos:
                n = need - pos
                nops += n
                if report:
                    print(f"  [hazard] inserting {n} nop states before: {it.text}")
                while n > 0:
                    q = min(n, 16)
                    out.append(Ins(f"s_nop {q-1}"))
                    n -= q
                pos = need
            out.append(it)
            if isvalu:
                for r in it.wr:
                    if r[0] in ('v', 'a'):
                        last_valu_w[r] = pos
                        if k == 'trans': last_trans_w[r] = pos
                        else: last_trans_w.pop(r, None)
                        last_mfma_w.pop(r, None)
                    elif r[0] in ('s', 'vcc'):
                        last_valu_sg[r] = pos
                    elif r[0] == 'exec':
                        last_valu_exec = pos
            if ismfma:
                ps = 4 if k == 'mfma16' else 8
                d = tuple(it.wr)
                for r in it.wr:
                    last_mfma_w[r] = (pos, ps, d)
                    last_valu_w.pop(r, None); last_trans_w.pop(r, None)
                for r in it.srcc: last_mfma_c[r] = (pos, ps)
            if k in ('vload', 'ds_read'):
                for r in it.wr:
                    last_valu_w.pop(r, None); last_trans_w.pop(r, None); last_mfma_w.pop(r, None)
            if k == 'salu':
                if ('m0', 0) in it.wr: last_salu_m0 = pos
                for r in it.wr:
                    last_valu_sg.pop(r, None)
            if k == 'smem':
                for r in it.wr: last_valu_sg.pop(r, None)
            if k == 'vstore' and it.meta.get('wide'):
                for r in it.meta['data']: last_store_data[r] = pos
            pos += it.meta['n'] if k == 'nop' else 1
        self.nops = nops
        return out

    def text(self):
        lines = []
        for it in self.final:
            lines.append(it.text if it.kind == 'label' else compress(it.text))
        return "\n".join(lines) + "\n"

    def estimate(self, lo=0, hi=None):
        t = 0; pipe = 0; nm = 0; busy = 0
        for it in self.final[lo:hi]:
            k = it.kind
            if k in ('mfma16', 'mfma32'):
                d = 16 if k == 'mfma16' else 32
                st = max(t, pipe)
                pipe = st + d; t = st + 8; nm += 1; busy += d
            else:
                t += it.cost()
        return max(t, pipe), busy


def cls(ins):
    if not isinstance(ins, Ins): return 'salu'
    k = ins.kind
    if k in ('ds_read', 'ds_write', 'vload', 'vstore', 'dma'): return 'mem'
    if k in ('valu', 'trans', 'perm'): return 'valu'
    return 'salu'


def weave(backbone, streams, budget=None, max_mem=1, reserve=None):
    res = []
    ptr = [0] * len(streams)
    n = len(backbone)
    for i in range(-1, n):
        if i >= 0: res.append(backbone[i])
        if budget is None:
            bud = 8 if (i < 0 or backbone[i].kind == 'mfma16') else 24
            mm = max_mem if (i < 0 or backbone[i].kind == 'mfma16') else max(2, max_mem)
        else:
            bud = budget; mm = max_mem
        if reserve: bud -= reserve.get(i, 0)
        used = 0; nmem = 0; nds = 0; free_salu = 1 if i >= 0 else 0; first = True
        for phase in (0, 1):
            while True:
                best = None
                for si, st in enumerate(streams):
                    if ptr[si] >= len(st): continue
                    ins, e, l = st[ptr[si]]
                    if e > i: continue
                    c = cls(ins)
                    must = l <= i
                    if phase == 0 and c == 'valu': continue
                    if phase == 1 and c != 'valu' and not must: continue
                    cost = ins.cost() if isinstance(ins, Ins) else 4
                    if c == 'salu' and free_salu > 0 and first: cost = 0
                    isds = isinstance(ins, Ins) and ins.kind in ('ds_read', 'ds_write')
                    if not must:
                        if used + cost > bud: continue
                        if c == 'mem' and nmem >= mm: continue
                        if isds and nds >= (1 if bud <= 8 else 2): continue
                    key = (l, 0 if (c == 'salu' and first) else 1, si)
                    if best is None or key < best[0]: best = (key, si, cost, c, isds)
                if best is None: break
                _, si, cost, c, isds = best
                res.append(streams[si][ptr[si]][0]); ptr[si] += 1; used += cost
                if c == 'mem': nmem += 1
                if isds: nds += 1
                if c == 'salu' and cost == 0: free_salu -= 1
                first = False
    for si, st in enumerate(streams):
        while ptr[si] < len(st):
            res.append(st[ptr[si]][0]); ptr[si] += 1
    return res


def space_vm(groups, gap, nslots):
    ops = []
    for gi, (lo, hi, L, D) in enumerate(groups):
        pre = list(L)
        for d in D:
            if cls(d) != 'mem': pre.append(d); continue
            ops.append([lo, hi, gi, pre, d, len(ops)]); pre = []
    placed = []
    remaining = ops[:]
    cur = min((o[0] for o in ops), default=0)
    started = set()
    while remaining:
        cand = [o for o in remaining if o[0] <= cur]
        open_ = {}
        for o in remaining:
            if o[2] in started: open_[o[4].kind] = o[2]
        cand = [o for o in cand if open_.get(o[4].kind, o[2]) == o[2]]
        if not cand:
            cur = max(cur + 1, min(o[0] for o in remaining)); continue
        o = min(cand, key=lambda o: (o[1], o[5]))
        placed.append((cur, o[3], o[4], o[2])); remaining.remove(o); started.add(o[2])
        nxt = cur + gap
        if remaining:
            dl = sorted(x[1] for x in remaining)
            for idx, dd in enumerate(dl[:12]):
                if nxt + idx*gap > dd:
                    nxt = max(cur + 1, min(nxt, dd - idx*gap))
        cur = nxt
    return placed
```

```python
from asmgen import *

WS_MOD  = 0x0
WS_HF   = 0x40000
WS_OF   = 0x400000
WS_PART = 0x2000000
WS_X1   = 0x3800000
WS_H2F  = 0x4000000
WS_ACT  = 0x4400000
WS_WD   = 0x4C00000
WS_WGU  = 0x5800000
WS_CNT  = 0x30000
WS_STAMP= 0x5000000
WS_DBG  = 0x6000000
WS_BYTES = 268435456

WQ_BASE = 0;      WQ_NS = 5;  WQ_ST = 12288
K_BASE  = 36864;  K_NS = 5;   K_ST = 12288
V_BASE  = 98304;  V_NS = 4;   V_ST = 16384
LDS_BYTES = 163840
BIAS = 4096

sWQ, sK, sV, sWS = 8, 12, 16, 20
sHEAD, sRB, sW = 24, 25, 26
sM0WQ, sM0K, sM0V = 27, 28, 29
sOFF = 30
sOFH = 31
sT0, sT1, sT2, sT3 = 32, 33, 34, 35
sSLOW = 36
sTS = 76

vWQD = 1
vKD  = 4
vVD  = 7
vWQT = 11
vKF  = 15
vVT  = 19
vHO  = 23
vT0, vT1, vT2, vT3 = 60, 61, 62, 63
QACC = 64
QF = 64
SB = [160, 192]
RING = 192
OACC = [64, 160]
LACC = 128
RINV = 144

def P_reg(kt, ct):
    if kt < 12: return ('a', kt*16 + ct*4)
    if kt < 14: return ('v', 28 + (kt-12)*16 + ct*4)
    return ('v', 224 + (kt-14)*16 + ct*4)

def prologue(P, stamps=False, check=True):
    e = P.e
    if check:
        e("s_cmp_ge_u32 s2, 256")
        e("s_cbranch_scc1 K2_END")
    e("s_load_dwordx2 s[4:5], s[0:1], 24")
    e("s_load_dwordx2 s[6:7], s[0:1], 104")
    e("s_load_dwordx4 s[44:47], s[0:1], 8")
    e("s_load_dwordx2 s[68:69], s[0:1], 32")
    e("s_load_dwordx4 s[72:75], s[0:1], 48")
    e("s_load_dwordx2 s[70:71], s[0:1], 64")
    e("v_lshrrev_b32 v2, 6, v0")
    e("v_and_b32 v0, 63, v0")
    e("v_readfirstlane_b32 s26, v2")
    e("s_and_b32 s24, s2, 7"); e("s_lshl_b32 s24, s24, 2")
    e("s_lshr_b32 s3, s2, 3"); e("s_and_b32 s3, s3, 3"); e("s_add_u32 s24, s24, s3")
    e("s_lshr_b32 s25, s2, 5")
    e(f"v_lshrrev_b32 v{vT0}, 3, v0")
    e(f"v_and_b32 v{vT1}, 7, v0")
    e(f"v_lshrrev_b32 v{vT2}, 4, v0")
    e(f"v_lshlrev_b32 v{vT3}, 1, v{vT2}")
    e(f"v_xor_b32 v{vT3}, v{vT3}, v{vT1}")
    e(f"v_lshlrev_b32 v{vT3}, 4, v{vT3}")
    e("s_lshl_b32 s3, s26, 3")
    e(f"v_add_u32 v{vWQD}, s3, v{vT0}")
    e("s_mov_b32 s37, 12288")
    e(f"v_mul_lo_u32 v{vWQD}, v{vWQD}, s37")
    e(f"v_add_u32 v{vWQD}, v{vWQD}, v{vT3}")
    e(f"v_add_u32 v{vWQD}, {BIAS}, v{vWQD}")
    e(f"v_add_u32 v{vWQD+1}, {128-1024}, v{vWQD}")
    e(f"v_add_u32 v{vWQD+2}, {256-2048}, v{vWQD}")
    e("s_lshl_b32 s3, s25, 4"); e("s_lshl_b32 s37, s26, 2"); e("s_add_u32 s38, s3, s37")
    e("s_mul_i32 s3, s38, 20480"); e(f"s_add_u32 s3, s3, {WS_HF}")
    e(f"v_lshlrev_b32 v{vHO}, 4, v0")
    e(f"v_add_u32 v{vHO}, s3, v{vHO}")
    for ct in range(1, 4):
        e(f"v_add_u32 v{vHO+ct}, {ct*20480}, v{vHO}")
    e(f"s_mul_i32 s{sM0WQ}, s26, 3072")
    e("s_mul_i32 s3, s24, 384")
    e("s_waitcnt lgkmcnt(0)")
    e(f"s_add_u32 s{sWQ}, s4, s3"); e(f"s_addc_u32 s{sWQ+1}, s5, 0")
    e(f"s_sub_u32 s{sWQ}, s{sWQ}, {BIAS}"); e(f"s_subb_u32 s{sWQ+1}, s{sWQ+1}, 0")
    e(f"s_sub_u32 s{sWQ+2}, {7864320+BIAS}, s3"); e(f"s_mov_b32 s{sWQ+3}, 0x20000")
    e(f"s_mov_b32 s{sWS}, s6"); e(f"s_mov_b32 s{sWS+1}, s7")
    e(f"s_mov_b32 s{sWS+2}, {WS_BYTES}"); e(f"s_mov_b32 s{sWS+3}, 0x20000")

def prologue2(P):
    e = P.e
    e(f"v_lshrrev_b32 v{vT0}, 2, v0"); e(f"v_and_b32 v{vT0}, 3, v{vT0}")
    e(f"v_and_b32 v{vT1}, 3, v0"); e(f"v_lshlrev_b32 v{vT1}, 3, v{vT1}")
    e(f"v_and_b32 v{vWQT}, 1, v{vT2}"); e(f"v_lshlrev_b32 v{vWQT}, 2, v{vWQT}")
    e(f"v_add_u32 v{vWQT}, v{vWQT}, v{vT0}")
    e(f"v_lshrrev_b32 v{vWQT+1}, 1, v{vWQT}")
    e(f"v_lshlrev_b32 v{vWQT}, 7, v{vWQT}")
    e(f"v_lshrrev_b32 v{vWQT+2}, 1, v{vT2}")
    e(f"v_mul_u32_u24 v{vWQT+2}, 3072, v{vWQT+2}")
    e(f"v_add_u32 v{vWQT}, v{vWQT}, v{vWQT+2}")
    e(f"v_add_u32 v{vWQT}, v{vWQT}, v{vT1}")
    e(f"v_lshlrev_b32 v{vWQT+1}, 5, v{vWQT+1}")
    for tp in (3, 2):
        e(f"v_xor_b32 v{vT3}, {tp<<5}, v{vWQT+1}")
        e(f"v_add_u32 v{vWQT+tp}, v{vWQT}, v{vT3}")
    e(f"v_xor_b32 v{vT3}, {1<<5}, v{vWQT+1}")
    e(f"v_add_u32 v{vT3}, v{vWQT}, v{vT3}")
    e(f"v_add_u32 v{vWQT}, v{vWQT}, v{vWQT+1}")
    e(f"v_mov_b32 v{vWQT+1}, v{vT3}")
    e(f"v_lshrrev_b32 v{vVT}, 1, v{vT2}"); e(f"v_lshlrev_b32 v{vVT}, 2, v{vVT}")
    e(f"v_add_u32 v{vVT}, v{vVT}, v{vT0}")
    e(f"v_lshrrev_b32 v{vVT+1}, 1, v{vVT}"); e(f"v_and_b32 v{vVT+1}, 1, v{vVT+1}")
    e(f"v_and_b32 v{vVT+2}, 1, v{vT2}")
    e(f"v_lshlrev_b32 v{vVT+3}, 1, v{vVT+2}")
    e(f"v_or_b32 v{vVT+1}, v{vVT+1}, v{vVT+3}")
    e(f"v_lshlrev_b32 v{vVT+1}, 5, v{vVT+1}")
    e(f"v_lshlrev_b32 v{vVT}, 7, v{vVT}")
    e(f"v_lshlrev_b32 v{vVT+2}, 10, v{vVT+2}")
    e(f"v_add_u32 v{vVT}, v{vVT}, v{vVT+2}")
    e(f"v_add_u32 v{vVT}, v{vVT}, v{vT1}")
    e(f"v_add_u32 v{vVT}, {V_BASE}, v{vVT}")
    for tp in (3, 2):
        e(f"v_xor_b32 v{vT3}, {tp<<5}, v{vVT+1}")
        e(f"v_add_u32 v{vVT+tp}, v{vVT}, v{vT3}")
    e(f"v_xor_b32 v{vT3}, {1<<5}, v{vVT+1}")
    e(f"v_add_u32 v{vT3}, v{vVT}, v{vT3}")
    e(f"v_add_u32 v{vVT}, v{vVT}, v{vVT+1}")
    e(f"v_mov_b32 v{vVT+1}, v{vT3}")
    e(f"s_add_u32 s{sM0K}, s{sM0WQ}, {K_BASE}")
    e(f"s_lshl_b32 s{sM0V}, s26, 12"); e(f"s_add_u32 s{sM0V}, s{sM0V}, {V_BASE}")
    e("s_mul_i32 s3, s24, 786432"); e(f"s_add_u32 s3, s3, {1536*384-BIAS}")
    e(f"s_add_u32 s{sK}, s44, s3"); e(f"s_addc_u32 s{sK+1}, s45, 0")
    e(f"s_mov_b32 s{sK+2}, {512*384+BIAS}"); e(f"s_mov_b32 s{sK+3}, 0x20000")
    e(f"s_add_u32 s{sV}, s46, s3"); e(f"s_addc_u32 s{sV+1}, s47, 0")
    e(f"s_mov_b32 s{sV+2}, {512*384+BIAS}"); e(f"s_mov_b32 s{sV+3}, 0x20000")
    for base, lo, n in ((52, 68, 7864320), (56, 72, 1966080), (60, 74, 1966080), (64, 70, 1966080)):
        e(f"s_mov_b32 s{base}, s{lo}"); e(f"s_mov_b32 s{base+1}, s{lo+1}"); e(f"s_mov_b32 s{base+2}, {n}"); e(f"s_mov_b32 s{base+3}, 0x20000")

def prologue3():
    L = []
    e = lambda t: L.append(Ins(t))
    T0, T1, T2, T3 = 56, 57, 58, 59
    e(f"v_lshrrev_b32 v{T0}, 3, v0"); e(f"v_and_b32 v{T1}, 7, v0"); e(f"v_lshrrev_b32 v{T2}, 4, v0")
    e("s_lshl_b32 s3, s26, 3")
    e(f"v_add_u32 v{vKD}, s3, v{T0}")
    e(f"v_lshrrev_b32 v{T3}, 1, v{vKD}"); e(f"v_and_b32 v{T3}, 7, v{T3}"); e(f"v_xor_b32 v{T3}, v{T3}, v{T1}"); e(f"v_lshlrev_b32 v{T3}, 4, v{T3}")
    e(f"v_mul_u32_u24 v{vKD}, 384, v{vKD}"); e(f"v_add_u32 v{vKD}, v{vKD}, v{T3}"); e(f"v_add_u32 v{vKD}, {BIAS}, v{vKD}")
    e(f"v_add_u32 v{vKD+1}, {128-1024}, v{vKD}"); e(f"v_add_u32 v{vKD+2}, {256-2048}, v{vKD}")
    e(f"v_and_b32 v{T3}, 1, v{T2}"); e(f"v_lshlrev_b32 v{T3}, 1, v{T3}"); e(f"v_xor_b32 v{T3}, v{T3}, v{T1}")
    e("s_lshl_b32 s3, s26, 5")
    e(f"v_add_u32 v{vVD}, s3, v{T0}"); e(f"v_mul_u32_u24 v{vVD}, 384, v{vVD}"); e(f"v_add_u32 v{vVD}, {BIAS}, v{vVD}")
    e(f"v_xor_b32 v{vVD+1}, 4, v{T3}"); e(f"v_lshlrev_b32 v{vVD+1}, 4, v{vVD+1}"); e(f"v_lshlrev_b32 v{T3}, 4, v{T3}")
    e(f"v_add_u32 v{vVD+1}, v{vVD+1}, v{vVD}"); e(f"v_add_u32 v{vVD}, v{vVD}, v{T3}")
    e(f"v_add_u32 v{vVD+2}, {2*3072-2*1024}, v{vVD}"); e(f"v_add_u32 v{vVD+3}, {3*3072-3*1024}, v{vVD+1}"); e(f"v_add_u32 v{vVD+1}, {1*3072-1*1024}, v{vVD+1}")
    e(f"v_and_b32 v{T0}, 31, v0")
    e(f"v_lshrrev_b32 v{T1}, 3, v{T0}"); e(f"v_mul_u32_u24 v{T1}, 3072, v{T1}")
    e(f"v_and_b32 v{T3}, 7, v{T0}"); e(f"v_lshlrev_b32 v{T3}, 7, v{T3}")
    e(f"v_add_u32 v{T1}, v{T1}, v{T3}"); e(f"v_add_u32 v{T1}, {K_BASE}, v{T1}")
    e(f"v_lshrrev_b32 v{T0}, 1, v{T0}"); e(f"v_and_b32 v{T0}, 7, v{T0}")
    e(f"v_lshrrev_b32 v{T3}, 5, v0"); e(f"v_xor_b32 v{T0}, v{T0}, v{T3}")
    for s4 in range(4):
        e(f"v_xor_b32 v{T3}, {2*s4}, v{T0}"); e(f"v_lshlrev_b32 v{T3}, 4, v{T3}"); e(f"v_add_u32 v{vKF+s4}, v{T1}, v{T3}")
    return L

sPFV, sPFO, sPFW, sPFT = 96, 97, 98, 99
def touch_setup():
    return [Ins("v_lshlrev_b32 v27, 7, v0"), Ins("v_mov_b32 v59, 0x7ff00000"), Ins("v_cmp_gt_u32 vcc, 16, v0"), Ins("s_nop 1"),
            Ins("v_cndmask_b32 v27, v59, v27, vcc"),
            Ins(f"s_mul_i32 s{sPFV}, s25, 24576"), Ins(f"s_mul_i32 s{sPFT}, s26, 6144"), Ins(f"s_add_u32 s{sPFV}, s{sPFV}, s{sPFT}"), Ins(f"s_add_u32 s{sPFV}, s{sPFV}, {BIAS}"),
            Ins(f"s_lshl_b32 s{sPFT}, s2, 2"), Ins(f"s_add_u32 s{sPFT}, s{sPFT}, s26"),
            Ins(f"s_mul_i32 s{sPFO}, s{sPFT}, 7680"), Ins(f"s_mul_i32 s{sPFW}, s{sPFT}, 1920")]
def touch16(kind, i, dst='a191'):
    if kind == 'v': base, srd_ = sPFV, sV
    elif kind == 'k': base, srd_ = sPFV, sK
    elif kind == 'wo': base, srd_ = sPFO, 52
    else: base, srd_ = sPFW, {'wg': 56, 'wu': 60, 'wd': 64}[kind]
    return [Ins(f"s_add_u32 s{sPFT}, s{base}, {i*2048}"), NT(f"buffer_load_dword {dst}, v27, s[{srd_}:{srd_+3}], s{sPFT} offen")]

PFS = 64
def pf_kv():
    L = [Ins(f"s_mul_i32 s{sT0}, s25, 24576"), Ins(f"s_mul_i32 s{sT1}, s26, 6144"), Ins(f"s_add_u32 s{sT0}, s{sT0}, s{sT1}"),
         Ins(f"s_add_u32 s{sT0}, s{sT0}, {BIAS}"), Ins(f"v_mul_u32_u24 v29, {PFS}, v0"), Ins(f"v_add_u32 v29, s{sT0}, v29")]
    n = -(-6144 // (64*PFS))
    D = []
    for srd_ in (sK, sV):
        for i in range(n):
            D.append(Ins(f"v_add_u32 v30, {i*64*PFS}, v29"))
            D.append(Ins(f"buffer_load_dword v28, v30, s[{srd_}:{srd_+3}], 0 offen"))
    return L + D

def pf_wo():
    return [Ins(f"s_lshl_b32 s{sT0}, s2, 2"), Ins(f"s_add_u32 s{sT0}, s{sT0}, s26"), Ins(f"s_mul_i32 s{sT1}, s{sT0}, 7680"),
            Ins(f"v_lshlrev_b32 v31, {OPT.get('pfshift', 7)}, v0"), Ins(f"v_add_u32 v31, s{sT1}, v31"),
            NT(f"buffer_load_dword v28, v31, s[52:55], 0 offen")] + ([Ins("v_add_u32 v31, 4096, v31"), NT(f"buffer_load_dword v28, v31, s[52:55], 0 offen")] if OPT.get('pfshift', 7) == 6 else [])

def pf_weights():
    L = [Ins(f"s_lshl_b32 s{sT0}, s2, 2"), Ins(f"s_add_u32 s{sT0}, s{sT0}, s26"),
         Ins(f"v_mul_u32_u24 v31, {PFS}, v0"),
         Ins(f"s_mul_i32 s{sT1}, s{sT0}, 7680"), Ins(f"v_add_u32 v32, s{sT1}, v31")]
    for i in range(-(-7680 // (64*PFS))):
        L.append(Ins(f"v_add_u32 v30, {i*64*PFS}, v32"))
        L.append(Ins(f"buffer_load_dword v28, v30, s[52:55], 0 offen"))
    L += [Ins(f"s_mul_i32 s{sT1}, s{sT0}, 1920"), Ins(f"v_add_u32 v32, s{sT1}, v31")]
    for srd_ in (56, 60, 64):
        L.append(Ins(f"buffer_load_dword v28, v32, s[{srd_}:{srd_+3}], 0 offen"))
    return L

def dma_wq(ks):
    slot = ks % WQ_NS
    L = [Ins(f"s_add_u32 m0, s{sM0WQ}, {WQ_BASE + slot*WQ_ST}"),
         Ins(f"s_mov_b32 s{sOFF}, {ks*32*12288}")]
    D = [Ins(f"buffer_load_dwordx4 v{vWQD+q}, s[{sWQ}:{sWQ+3}], s{sOFF} offen offset:{q*1024} lds") for q in range(3)]
    return L, D

def k_slot(kt): return (kt + 2) % K_NS
def dma_k(kt):
    L = [Ins(f"s_add_u32 m0, s{sM0K}, {k_slot(kt)*K_ST}"),
         Ins(f"s_mov_b32 s{sOFF}, {(kt % 16)*12288}")]
    D = [Ins(f"buffer_load_dwordx4 v{vKD+q}, s[{sK}:{sK+3}], s{sOFF} offen offset:{q*1024} lds") for q in range(3)]
    return L, D

def dma_v(st):
    G, kb = st // 4, st % 4
    L = [Ins(f"s_add_u32 m0, s{sM0V}, {(st % V_NS)*V_ST}"),
         Ins(f"s_mov_b32 s{sOFF}, {kb*128*384 + G*128}")]
    D = [Ins(f"buffer_load_dwordx4 v{vVD+i}, s[{sV}:{sV+3}], s{sOFF} offen offset:{i*1024} lds") for i in range(4)]
    return L, D

def HS(): return int(OPT.get('hsets', 4))
def load_h(ks):
    L = [Ins(f"s_mov_b32 s{sOFH}, {ks*1024}")]
    base = (ks % HS())*16
    D = [Ins(f"buffer_load_dwordx4 a[{base+4*ct}:{base+4*ct+3}], v{vHO+ct}, s[{sWS}:{sWS+3}], s{sOFH} offen") for ct in range(4)]
    return L, D

def tr_wq(n):
    ks, t = divmod(n, 12)
    slot = n % 16
    q, tp = t >> 2, t & 3
    off = WQ_BASE + (ks % WQ_NS)*WQ_ST + q*1024
    r = RING + slot*4
    return [Ins(f"ds_read_b64_tr_b16 a[{r}:{r+1}], v{vWQT+tp} offset:{off}"),
            Ins(f"ds_read_b64_tr_b16 a[{r+2}:{r+3}], v{vWQT+tp} offset:{off+6144}")]

OPT = dict(dma=True, hload=True, barrier=True, tr=True, pfcode=False)
def k_frag(n):
    kt, s_ = divmod(n, 12)
    r = RING + (n % 16)*4
    off = k_slot(kt)*K_ST + (s_ >> 2)*1024
    return Ins(f"ds_read_b128 a[{r}:{r+3}], v{vKF + (s_ & 3)} offset:{off}")

def softmax_stream(kt, mode='exp'):
    L = []
    buf = SB[kt & 1]
    toA = P_reg(kt, 0)[0] == 'a'
    for cb in range(2):
        Sx = buf + 16*cb
        if toA:
            A_ = [Sx+0, Sx+2, Sx+8, Sx+10]; B_ = [Sx+4, Sx+6, Sx+12, Sx+14]
        else:
            pa = P_reg(kt, 2*cb)[1]; pb = P_reg(kt, 2*cb+1)[1]
            A_ = [pa+i for i in range(4)]; B_ = [pb+i for i in range(4)]
        E = lambda i: Ins(f"v_exp_f32 v{Sx+i}, v{Sx+i}")
        C = lambda d, i: Ins(f"v_cvt_pk_bf16_f32 v{d}, v{Sx+i}, v{Sx+i+1}")
        SW = lambda i: Ins(f"v_permlane16_swap_b32 v{A_[i]}, v{B_[i]}")
        def W(i):
            if not toA: return []
            pa = P_reg(kt, 2*cb)[1]; pb = P_reg(kt, 2*cb+1)[1]
            return [Ins(f"v_accvgpr_write_b32 a{pa+i}, v{A_[i]}"), Ins(f"v_accvgpr_write_b32 a{pb+i}, v{B_[i]}")]
        L += [E(0), E(1), E(2), E(3), E(4), E(5), C(A_[0], 0), C(A_[1], 2), E(6), E(7), C(B_[0], 4), E(8), E(9), C(B_[1], 6),
              E(10), E(11), SW(0), C(A_[2], 8), SW(1), E(12), E(13), C(A_[3], 10), E(14), E(15)]
        L += W(0) + [C(B_[2], 12), C(B_[3], 14)] + W(1) + [SW(2), SW(3)]
        L += W(2) + W(3)
    return L

def phase2(P, handles):
    PF = 4
    for kt in range(16):
        bb = []
        buf = SB[kt & 1]
        for s_ in range(12):
            n = 12*kt + s_
            ar = RING + (n % 16)*4
            for cb in range(2):
                d = buf + 16*cb
                q = QF + 8*s_ + 4*cb
                c = f"v[{d}:{d+15}]" if s_ > 0 else "0"
                bb.append(Ins(f"v_mfma_f32_32x32x16_bf16 v[{d}:{d+15}], a[{ar}:{ar+3}], v[{q}:{q+3}], {c}"))
        s_rd, s_dma, s_sm = [], [], []
        for s_ in range(12):
            n = 12*kt + s_ + PF
            lo = 2*s_
            if n < 12*16:
                if s_ == 8:
                    s_rd.append((WaitVM(handles['k'][kt+1]), lo-1, lo-1))
                    s_rd.append((Ins("s_barrier"), lo-1, lo-1))
                s_rd.append((k_frag(n), lo, lo+1))
            else:
                m = n - 192
                if m == 0:
                    s_rd.append((WaitVM(handles['v'][0]), lo-1, lo-1))
                    s_rd.append((Ins("s_barrier"), lo-1, lo-1))
                a, b = tr_v(m)
                s_rd.append((a, lo, lo+1)); s_rd.append((b, lo, lo+1))
        if kt + 4 < 16:
            L, D = dma_k(kt+4)
            handles['k'][kt+4] = D[-1]
            s_dma += [(L[0], 16, 18), (L[1], 16, 18)] + [(d, 17+2*i, 19+2*i) for i, d in enumerate(D)]
        elif kt >= 12 and kt <= 14:
            L, D = dma_v(kt-12)
            handles['v'][kt-12] = D[-1]
            s_dma += [(L[0], 2, 18), (L[1], 2, 18)] + [(d, 4+4*i, 22) for i, d in enumerate(D)]
        if kt > 0:
            sm = softmax_stream(kt-1)
            if kt == 2 and OPT.get('pf') == 'wo': sm = pf_wo() + sm
            n = len(sm)
            for i, x in enumerate(sm):
                s_sm.append((x, 2, 23))
        P.many(weave(bb, [s_rd, s_dma, s_sm], 24, max_mem=1))

def tr_v(m):
    G, rem = divmod(m, 64)
    kt, tp = divmod(rem, 4)
    st = 4*G + (kt >> 2)
    off = (st % V_NS)*V_ST + (kt & 3)*4096
    r = RING + ((192 + m) % 16)*4
    return [Ins(f"ds_read_b64_tr_b16 a[{r}:{r+1}], v{vVT+tp} offset:{off}"),
            Ins(f"ds_read_b64_tr_b16 a[{r+2}:{r+3}], v{vVT+tp} offset:{off+2048}")]

ONES = 60

def o_epilogue(G):
    L = []
    ob = OACC[G & 1]
    for u in range(2):
        L.append(Ins(f"s_mov_b32 s{sOFH}, {(2*G+u)*1024}"))
        for ct in range(4):
            x = ob + ((2*u)*4 + ct)*4; y = ob + ((2*u+1)*4 + ct)*4
            for i in range(4): L.append(Ins(f"v_mul_f32 v{x+i}, v{RINV+ct}, v{x+i}"))
            for i in range(4): L.append(Ins(f"v_mul_f32 v{y+i}, v{RINV+ct}, v{y+i}"))
            L.append(Ins(f"v_cvt_pk_bf16_f32 v{x}, v{x}, v{x+1}"))
            L.append(Ins(f"v_cvt_pk_bf16_f32 v{x+1}, v{x+2}, v{x+3}"))
            L.append(Ins(f"v_cvt_pk_bf16_f32 v{x+2}, v{y}, v{y+1}"))
            L.append(Ins(f"v_cvt_pk_bf16_f32 v{x+3}, v{y+2}, v{y+3}"))
            L.append(Ins(f"buffer_store_dwordx4 v[{x}:{x+3}], v{vHO+ct}, s[{sWS}:{sWS+3}], s{sOFH} offen sc1"))
    return L

def phase3(P, handles):
    PF = 4
    for G in range(3):
        ob = OACC[G & 1]
        pre = []
        epi = []
        if G == 1:
            for ct in range(4): epi.append(Ins(f"v_rcp_f32 v{RINV+ct}, v{LACC+4*ct}"))
        if G >= 1: epi += o_epilogue(G-1)
        nslots_total = 16*16
        epi_ptr = 0
        for kt in range(16):
            bb = []
            for tp in range(4):
                m = 64*G + 4*kt + tp
                ar = RING + ((192 + m) % 16)*4
                for ct in range(4):
                    d = ob + (tp*4 + ct)*4
                    p = P_reg(kt, ct)
                    c = f"v[{d}:{d+3}]" if kt > 0 else "0"
                    bb.append(Ins(f"v_mfma_f32_16x16x32_bf16 v[{d}:{d+3}], a[{ar}:{ar+3}], {R(p,4)}, {c}"))
            if G == 0:
                for ct in range(4):
                    d = LACC + 4*ct
                    p = P_reg(kt, ct)
                    c = f"v[{d}:{d+3}]" if kt > 0 else "0"
                    bb.append(Ins(f"v_mfma_f32_16x16x32_bf16 v[{d}:{d+3}], v[{ONES}:{ONES+3}], {R(p,4)}, {c}"))
            s_rd, s_dma, s_x = [], [], []
            st = 4*G + (kt >> 2)
            for tp in range(4):
                m = 64*G + 4*kt + tp + PF
                if m >= 192: continue
                lo = 4*tp
                if tp == 0 and (kt & 3) == 3:
                    s_rd.append((WaitVM(handles['v'][st+1]), -1, -1))
                    s_rd.append((Ins("s_barrier"), -1, -1))
                a, b = tr_v(m)
                s_rd.append((a, lo, lo+1)); s_rd.append((b, lo+1, lo+2))
            if (kt & 3) == 3 and st + 3 < 12:
                L, D = dma_v(st+3)
                handles['v'][st+3] = D[-1]
                s_dma += [(L[0], 0, 2), (L[1], 0, 3)] + [(d, 2+3*i, 4+3*i) for i, d in enumerate(D)]
            if G == 0 and kt < 2:
                sm = softmax_stream(15)
                half = len(sm)//2
                part = sm[:half] if kt == 0 else sm[half:]
                s_x = [(x, 0 if kt else 2, 19) for x in part]
            elif epi and kt >= 1:
                per = -(-len(epi) // 13)
                part = epi[epi_ptr:epi_ptr+per]; epi_ptr += len(part)
                s_x = [(x, 0, len(bb)-1) for x in part]
            P.many(weave(bb, [s_rd, s_dma, s_x], 8))
        assert epi_ptr >= len(epi)
    P.many(o_epilogue(2))

def phase3_setup():
    L = [Ins(f"v_mov_b32 v{ONES+i}, 0x3f803f80") for i in range(4)]
    L.append(Ins(f"s_mul_i32 s{sT0}, s38, {196608-20480}"))
    L.append(Ins(f"s_mul_i32 s{sT1}, s24, 6144"))
    L.append(Ins(f"s_add_u32 s{sT0}, s{sT0}, s{sT1}"))
    L.append(Ins(f"s_add_u32 s{sT0}, s{sT0}, {WS_OF-WS_HF}"))
    for ct in range(4):
        L.append(Ins(f"v_add_u32 v{vHO+ct}, s{sT0}, v{vHO+ct}"))
        if ct: L.append(Ins(f"v_add_u32 v{vHO+ct}, {ct*(196608-20480)}, v{vHO+ct}"))
    return L

def phase1(P, handles):
    NK = 20
    PF = 4
    dmah = handles['wq']
    for ks in range(NK):
        bb = []
        for t in range(12):
            n = 12*ks + t
            ar = RING + (n % 16)*4
            for ct in range(4):
                acc = QACC + (4*t + ct)*4
                b = (ks % 4)*16 + 4*ct
                c = f"v[{acc}:{acc+3}]" if ks > 0 else "0"
                bb.append(Ins(f"v_mfma_f32_16x16x32_bf16 v[{acc}:{acc+3}], a[{ar}:{ar+3}], a[{b}:{b+3}], {c}"))
        s_tr, s_h, s_dma = [], [], []
        for t in range(12):
            n = 12*ks + t + PF
            if n >= 12*NK:
                if OPT.get('p2', False):
                    lo = 4*t
                    if t == 8:
                        s_tr.append((WaitVM(handles['k'][0]), lo-1, lo-1))
                        s_tr.append((Ins("s_barrier"), lo-1, lo-1))
                    s_tr.append((k_frag(n - 12*NK), lo, lo+2))
                continue
            a, b = tr_wq(n)
            lo = 4*t
            if t == 8:
                if OPT['dma'] or ks+1 < 4: s_tr.append((WaitVM(dmah[ks+1]), lo-1, lo-1))
                if OPT['barrier']: s_tr.append((Ins("s_barrier"), lo-1, lo-1))
            if OPT['tr']:
                s_tr.append((a, lo, lo+1)); s_tr.append((b, lo+1, lo+2))
        if ks + 3 < NK and OPT['hload']:
            L, D = load_h(ks+3)
            s_h.append((L[0], 0, 1))
            for i, d in enumerate(D): s_h.append((d, 4*i+2, 4*i+3))
        if not OPT['dma']: pass
        elif ks + 4 < NK:
            L, D = dma_wq(ks+4)
            dmah[ks+4] = D[-1]
            s_dma.append((L[0], 33, 35)); s_dma.append((L[1], 34, 36))
            for i, d in enumerate(D): s_dma.append((d, 36+4*i, 38+4*i))
        elif ks >= 16:
            kt = ks - 16
            L, D = dma_k(kt)
            handles['k'][kt] = D[-1]
            s_dma.append((L[0], 33, 35)); s_dma.append((L[1], 34, 36))
            for i, d in enumerate(D): s_dma.append((d, 36+4*i, 38+4*i))
        s_pf = []
        if OPT.get('pf', 'loop') == 'loop':
            if ks == 1: s_pf = [(x, 2, 47) for x in pf_kv()]
            if ks == 8: s_pf = [(x, 2, 47) for x in pf_weights()]
        P.many(weave(bb, [s_tr, s_h, s_dma, s_pf], 8))

SX = 28
def s_buf(kt): return SX if kt == 0 else SB[kt & 1]

MREG = [2, 3]
def max_stream(vt):
    L = []
    buf = s_buf(vt)
    for cb in range(2):
        Sx = buf + 16*cb; m = MREG[cb]
        if vt == 0:
            L.append(Ins(f"v_max_f32 v{m}, v{Sx}, v{Sx+1}")); rest = range(2, 16, 2)
        else:
            rest = range(0, 16, 2)
        for i in rest: L.append(Ins(f"v_max3_f32 v{m}, v{m}, v{Sx+i}, v{Sx+i+1}"))
    if vt == 15:
        for cb in range(2):
            m = MREG[cb]
            L += [Ins(f"v_mov_b32 v1, v{m}"), Ins("s_nop 1"), Ins(f"v_permlane32_swap_b32 v{m}, v1"), Ins("s_nop 1"), Ins(f"v_max_f32 v{m}, v{m}, v1")]
    return L

def softmax_stream2(kt, vt=None, sub=False):
    global SB
    L = []
    buf = s_buf(kt if vt is None else vt)
    toA = P_reg(kt, 0)[0] == 'a'
    for cb in range(2):
        Sx = buf + 16*cb
        if toA:
            A_ = [Sx+0, Sx+2, Sx+8, Sx+10]; B_ = [Sx+4, Sx+6, Sx+12, Sx+14]
        else:
            pa = P_reg(kt, 2*cb)[1]; pb = P_reg(kt, 2*cb+1)[1]
            A_ = [pa+i for i in range(4)]; B_ = [pb+i for i in range(4)]
        def E(i):
            if sub:
                return [Ins(f"v_sub_f32 v{Sx+i}, v{Sx+i}, v{MREG[cb]}"), Ins(f"v_exp_f32 v{Sx+i}, v{Sx+i}")]
            return [Ins(f"v_exp_f32 v{Sx+i}, v{Sx+i}")]
        C = lambda d, i: [Ins(f"v_cvt_pk_bf16_f32 v{d}, v{Sx+i}, v{Sx+i+1}")]
        SW = lambda i: [Ins(f"v_permlane16_swap_b32 v{A_[i]}, v{B_[i]}")]
        def W(i):
            if not toA: return []
            pa = P_reg(kt, 2*cb)[1]; pb = P_reg(kt, 2*cb+1)[1]
            return [Ins(f"v_accvgpr_write_b32 a{pa+i}, v{A_[i]}"), Ins(f"v_accvgpr_write_b32 a{pb+i}, v{B_[i]}")]
        for x in (E(0), E(1), E(2), E(3), E(4), E(5), C(A_[0], 0), C(A_[1], 2), E(6), E(7), C(B_[0], 4), E(8), E(9), C(B_[1], 6),
                  E(10), E(11), C(A_[2], 8), SW(0), E(12), E(13), SW(1), C(A_[3], 10), E(14), E(15), W(0), C(B_[2], 12), C(B_[3], 14), W(1),
                  SW(2), SW(3)): L += x
        L += W(2) + W(3)
    return L
NEGM = 62

def q_convert_tile(t):
    L = []
    for cb in range(2):
        x = QACC + (4*t + 2*cb)*4; y = x + 4
        d = QF + 8*t + 4*cb
        L += [Ins(f"v_cvt_pk_bf16_f32 v{d}, v{x}, v{x+1}"), Ins(f"v_cvt_pk_bf16_f32 v{d+1}, v{x+2}, v{x+3}"),
              Ins(f"v_cvt_pk_bf16_f32 v{d+2}, v{y}, v{y+1}"), Ins(f"v_cvt_pk_bf16_f32 v{d+3}, v{y+2}, v{y+3}")]
    for cb in range(2):
        d = QF + 8*t + 4*cb
        L += [Ins(f"v_permlane16_swap_b32 v{d}, v{d+2}"), Ins(f"v_permlane16_swap_b32 v{d+1}, v{d+3}")]
    return L

sOK = 100
def main_schedule(P, H, safe=False):
    NK = 20; PF = 4
    NT = 32 if safe else 16
    F_K = 240; F_V = 240 + 12*NT; F_END = F_V + 192
    bb = []
    p1_0 = 0
    for ks in range(NK):
        for t in range(12):
            n = 12*ks + t
            ar = RING + (n % 16)*4
            for ct in range(4):
                acc = QACC + (4*t + ct)*4
                b = (ks % HS())*16 + 4*ct
                c = f"v[{acc}:{acc+3}]" if ks > 0 else "0"
                bb.append(Ins(f"v_mfma_f32_16x16x32_bf16 v[{acc}:{acc+3}], a[{ar}:{ar+3}], a[{b}:{b+3}], {c}"))
    p2_0 = len(bb)
    for kt in range(NT):
        buf = s_buf(kt)
        for s_ in range(12):
            n = 12*kt + s_
            ar = RING + (n % 16)*4
            for cb in range(2):
                d = buf + 16*cb; q = QF + 8*s_ + 4*cb
                c = f"v[{d}:{d+15}]" if s_ > 0 else "0"
                bb.append(Ins(f"v_mfma_f32_32x32x16_bf16 v[{d}:{d+15}], a[{ar}:{ar+3}], v[{q}:{q+3}], {c}"))
    p3_0 = len(bb)
    kstart = {}
    fslot = {}
    for G in range(3):
        ob = OACC[G & 1]
        for kt in range(16):
            kstart[(G, kt)] = len(bb)
            for tp in range(4):
                m = 64*G + 4*kt + tp
                ar = RING + ((192 + m) % 16)*4
                fslot[m] = len(bb)
                for ct in range(4):
                    d = ob + (tp*4 + ct)*4; p = P_reg(kt, ct)
                    c = f"v[{d}:{d+3}]" if kt > 0 else "0"
                    bb.append(Ins(f"v_mfma_f32_16x16x32_bf16 v[{d}:{d+3}], a[{ar}:{ar+3}], {R(p,4)}, {c}"))
            if G == 0:
                for ct in range(4):
                    d = LACC + 4*ct; p = P_reg(kt, ct)
                    c = f"v[{d}:{d+3}]" if kt > 0 else "0"
                    bb.append(Ins(f"v_mfma_f32_16x16x32_bf16 v[{d}:{d+3}], v[{ONES}:{ONES+3}], {R(p,4)}, {c}"))
    nslots = len(bb)
    def use_slot(f):
        if f < 240: return 4*f
        if f < F_V: return p2_0 + 2*(f-240)
        return fslot[f-F_V]
    def reads(f):
        if f < 240: return tr_wq(f)
        if f < F_V: return [k_frag(f-240)]
        return tr_v(f-F_V)
    grp = []; wq_h = dict(H['wq']); k_h = {}; v_h = {}; h_h = dict(H['h'])
    bar = {}
    def first_read_slot(f): return use_slot(f - PF)
    for ks in range(1, NK): bar[('wq', ks)] = first_read_slot(12*ks) - 1
    for kt in range(NT): bar[('k', kt)] = first_read_slot(240 + 12*kt) - 1
    for st in range(12): bar[('v', st)] = first_read_slot(F_V + 16*st) - 1
    for ks in range(4, NK):
        L, D = dma_wq(ks); wq_h[ks] = D[-1]
        lo = bar[('wq', ks-3)] + 1 if ks-3 >= 1 else 0
        grp.append((lo, lo + 44, L, D))
    HB = HS() - 1
    for ks in range(3, NK):
        L, D = load_h(ks); h_h[ks] = D[-1]
        lo = max(0, 48*(ks-HB))
        hi = lo + 44 if ks - HB >= 0 else 48*max(ks-3, 0) + 44
        grp.append((lo, hi, L, D))
    for kt in range(NT):
        L, D = dma_k(kt); k_h[kt] = D[-1]
        if kt < 3: lo = 48*(16+kt) + 8; hi = lo + 38
        elif kt == 3: lo = bar[('k', 0)] + 1; hi = lo + 12
        else: lo = bar[('k', kt-3)] + 1; hi = lo + 20
        grp.append((lo, hi, L, D))
    for st in range(12):
        L, D = dma_v(st); v_h[st] = D[-1]
        if st < 3: lo = p2_0 + 24*(NT-4+st) + 1; hi = lo + 20
        else: lo = bar[('v', st-2)] + 1; hi = lo + 40
        grp.append((lo, hi, L, D))
    placed = space_vm(grp, 4, nslots)
    streams_vm = {}
    seen = {}
    for slot, pre, op, gi in placed:
        key = 'h' if op.kind == 'vload' else 'dma'
        if seen.get(key) != gi:
            assert (key, gi) not in seen, "groups interleave"
            seen[(key, gi)] = True; seen[key] = gi
    for slot, pre, op, gi in placed:
        key = 'h' if op.kind == 'vload' else 'dma'
        st_ = streams_vm.setdefault(key, [])
        if OPT.get('novm'): continue
        for x in pre: st_.append((x, slot-3, slot))
        st_.append((op, slot, slot+int(OPT.get('vmslack', 1))))
    s_rd, s_w = [], []
    last_read = dict(H['tr'])
    for f in range(PF, F_END):
        lo = use_slot(f - PF)
        key = None
        if f < 240 and f % 12 == 0: key = ('wq', f // 12); hh = wq_h[f // 12]
        elif 240 <= f < F_V and (f-240) % 12 == 0: key = ('k', (f-240)//12); hh = k_h[(f-240)//12]
        elif f >= F_V and (f-F_V) % 16 == 0: key = ('v', (f-F_V)//16); hh = v_h[(f-F_V)//16]
        if key:
            if not OPT.get('novm'): s_rd.append((WaitVM(hh), lo-1, lo-1))
            if not OPT.get('nobar'): s_rd.append((Ins("s_barrier"), lo-1, lo-1))
        rr = reads(f)
        nxt = use_slot(f - PF + 1) if f - PF + 1 < F_END else lo + 4
        if len(rr) == 2:
            s2 = lo + 1 if nxt - lo >= 2 else lo
            s_rd.append((rr[0], lo, lo)); s_rd.append((rr[1], s2, s2))
        else:
            s_rd.append((rr[0], lo, lo))
        last_read[f] = rr[-1]
    for f in range(F_END):
        u = use_slot(f)
        s_w.append((WaitLGKM(last_read[f]), u-1, u-1))
    s_wh = [(WaitVM(h_h[ks]), 48*ks-1, 48*ks-1) for ks in range(NK)] if not OPT.get('novm') else []
    s_v = []
    s_p3 = [(x, 0, 80) for x in prologue3() + touch_setup()]
    for t in range(12):
        e_ = 48*19 + 4*t + 5
        dl = p2_0 + 2*t - 2
        for x in q_convert_tile(t): s_v.append((x, e_, max(e_, dl)))
    for x in phase3_setup(): s_v.append((x, p2_0 + 4, p2_0 + 20))
    for vt in range(NT):
        e_ = p2_0 + 24*(vt+1) + 1
        dl = e_ + 22 if vt < NT-1 else kstart[(0, 2)]
        if safe and vt < 16: work = max_stream(vt)
        elif safe: work = softmax_stream2(vt-16, vt, sub=True)
        else: work = softmax_stream2(vt)
        for x in work: s_v.append((x, e_, dl))
    for G in range(3):
        if G == 0:
            epi = [Ins(f"v_rcp_f32 v{RINV+ct}, v{LACC+4*ct}") for ct in range(4)]
            if not safe:
                epi.append(Ins(f"s_mov_b64 s[{sOK}:{sOK+1}], -1"))
                for ct in range(4):
                    epi += [Ins(f"v_cmp_le_f32 vcc, 0x1f800000, v{LACC+4*ct}"), Ins(f"s_and_b64 s[{sOK}:{sOK+1}], s[{sOK}:{sOK+1}], vcc"),
                            Ins(f"v_cmp_ge_f32 vcc, 0x62800000, v{LACC+4*ct}"), Ins(f"s_and_b64 s[{sOK}:{sOK+1}], s[{sOK}:{sOK+1}], vcc")]
            epi += o_epilogue(0)
        elif G == 1: epi = o_epilogue(1)
        else: break
        e0 = kstart[(G+1, 0)] + 3; e1 = kstart[(G+1, 15)]
        for j, x in enumerate(epi):
            ee = e0 + (j*(e1-e0))//len(epi)
            s_v.append((x, ee, e1 + 12))
    s_pf = []
    plan = OPT.get('touchplan')
    if plan is None:
        plan = [('k', 0, 48*2), ('k', 1, 48*4), ('k', 2, 48*6), ('v', 0, 48*8), ('v', 1, 48*10), ('v', 2, 48*12),
                ('wo', 0, 48*14), ('wo', 1, p2_0 + 24*1), ('wo', 2, p2_0 + 24*3), ('wo', 3, p2_0 + 24*5),
                ('wg', 0, p2_0 + 24*7), ('wu', 0, p2_0 + 24*9), ('wd', 0, p2_0 + 24*10)]
    if OPT.get('notouch') or safe: plan = []
    for kind, i, slot in plan:
        for x in touch16(kind, i, 'a191' if slot < p2_0 else 'v1'): s_pf.append((x, slot + 20, slot + 40))
    s_st = []
    if OPT.get('stamps_in') and not safe:
        pts = [48*10, p2_0, p2_0 + 24*8, p3_0, kstart[(1, 0)], kstart[(2, 0)]]
        for i, sl in enumerate(pts): s_st.append((Ins(f"s_memtime s[{sTS+2*(i+2)}:{sTS+2*(i+2)+1}]"), sl-1, sl-1))
    streams = [s_w, s_wh, s_rd] + list(streams_vm.values()) + [s_p3, s_v, s_pf, s_st]
    P.many(weave(bb, streams))
    P.many(o_epilogue(2))
    return p2_0, p3_0

def pf_v():
    return [Ins(f"s_mul_i32 s{sT0}, s25, 24576"), Ins(f"s_mul_i32 s{sT1}, s26, 6144"), Ins(f"s_add_u32 s{sT0}, s{sT0}, s{sT1}"),
            Ins(f"s_add_u32 s{sT0}, s{sT0}, {BIAS}"), Ins(f"v_lshlrev_b32 v{PFA}, 7, v0"), Ins(f"v_add_u32 v{PFA}, s{sT0}, v{PFA}"),
            NT(f"buffer_load_dword a191, v{PFA}, s[{sV}:{sV+3}], 0 offen")]
def pf_k():
    return [Ins(f"s_mul_i32 s{sT0}, s25, 24576"), Ins(f"s_mul_i32 s{sT1}, s26, 6144"), Ins(f"s_add_u32 s{sT0}, s{sT0}, s{sT1}"),
            Ins(f"s_add_u32 s{sT0}, s{sT0}, {BIAS}"), Ins(f"v_lshlrev_b32 v{PFA}, 7, v0"), Ins(f"v_add_u32 v{PFA}, s{sT0}, v{PFA}"),
            NT(f"buffer_load_dword a191, v{PFA}, s[{sK}:{sK+3}], 0 offen")]
def pf_wo2():
    return [Ins(f"s_lshl_b32 s{sT0}, s2, 2"), Ins(f"s_add_u32 s{sT0}, s{sT0}, s26"), Ins(f"s_mul_i32 s{sT1}, s{sT0}, 7680"),
            Ins(f"v_lshlrev_b32 v{PFA}, 7, v0"), Ins(f"v_add_u32 v{PFA}, s{sT1}, v{PFA}"),
            NT(f"buffer_load_dword a191, v{PFA}, s[52:55], 0 offen")]
def pf_w3():
    L = [Ins(f"s_lshl_b32 s{sT0}, s2, 2"), Ins(f"s_add_u32 s{sT0}, s{sT0}, s26"), Ins(f"s_mul_i32 s{sT1}, s{sT0}, 1920"),
         Ins(f"v_lshlrev_b32 v{PFA}, 7, v0"), Ins(f"v_add_u32 v{PFA}, s{sT1}, v{PFA}"),
         Ins(f"v_cmp_gt_u32 vcc, 15, v0"), Ins(f"v_mov_b32 v59, 0x7ff00000"), Ins("s_nop 0"), Ins(f"v_cndmask_b32 v{PFA}, v59, v{PFA}, vcc")]
    for srd_ in (56, 60, 64): L.append(NT(f"buffer_load_dword a191, v{PFA}, s[{srd_}:{srd_+3}], 0 offen"))
    return L
PFA = 27
TOUCH = dict(v=pf_v, k=pf_k, wo=pf_wo2, w3=pf_w3)

def guard_branch(P):
    e = P.e
    e(f"s_cmp_eq_u64 s[{sOK}:{sOK+1}], -1"); e("s_cselect_b32 s3, 0, 1")
    e("s_barrier")
    e("v_mov_b32 v28, s3"); e("s_lshl_b32 s3, s26, 2"); e("v_mov_b32 v29, s3")
    e("ds_write_b32 v29, v28")
    e("s_waitcnt lgkmcnt(0)"); e("s_barrier")
    e("v_mov_b32 v29, 0")
    e("ds_read_b128 v[32:35], v29")
    e("v_or3_b32 v32, v32, v33, v34"); e("v_or_b32 v32, v32, v35")
    e("v_readfirstlane_b32 s3, v32")
    e("s_cmp_eq_u32 s3, 0"); e("s_cbranch_scc0 K2_SAFE")

def safe_entry(P):
    e = P.e
    e("K2_SAFE:")
    e("s_waitcnt vmcnt(0)"); e("s_barrier")
    e("s_lshl_b32 s3, s26, 6"); e("v_add_u32 v0, s3, v0")

def main_pro(P, H, safe=False):
    H['wq'] = {}; H['h'] = {}; H['tr'] = {}
    for ks in range(4):
        L, D = dma_wq(ks)
        P.many(L); P.many(D); H['wq'][ks] = D[-1]
        if ks < 3:
            L, D = load_h(ks)
            P.many(L); P.many(D); H['h'][ks] = D[-1]
        if ks == 0: prologue2(P)
    if not safe: code_prefetch(P, 49152)
    P.wait_vm(H['wq'][0])
    P.e("s_barrier")
    for n in range(4):
        rr = tr_wq(n); P.many(rr); H['tr'][n] = rr[-1]

def phase1_pro(P, handles):
    for ks in range(4):
        L, D = dma_wq(ks)
        P.many(L); P.many(D)
        handles['wq'][ks] = D[-1]
        if ks < 3:
            L, D = load_h(ks)
            P.many(L); P.many(D)
    if OPT.get('pf', 'loop') == 'pro':
        P.many(pf_kv()); P.many(pf_weights())
    P.wait_vm(handles['wq'][0])
    P.e("s_barrier")
    for n in range(4):
        P.many(tr_wq(n))

def q_convert(P):
    for t in range(12):
        for cb in range(2):
            x = QACC + (4*t + 2*cb)*4; y = x + 4
            d = QF + 8*t + 4*cb
            P.e(f"v_cvt_pk_bf16_f32 v{d}, v{x}, v{x+1}")
            P.e(f"v_cvt_pk_bf16_f32 v{d+1}, v{x+2}, v{x+3}")
            P.e(f"v_cvt_pk_bf16_f32 v{d+2}, v{y}, v{y+1}")
            P.e(f"v_cvt_pk_bf16_f32 v{d+3}, v{y+2}, v{y+3}")
        for cb in range(2):
            d = QF + 8*t + 4*cb
            P.e(f"v_permlane16_swap_b32 v{d}, v{d+2}")
            P.e(f"v_permlane16_swap_b32 v{d+1}, v{d+3}")

def dump_regs(P, regs, base_off):
    n = len(regs)
    P.e(f"s_lshl_b32 s3, s2, 2"); P.e("s_add_u32 s3, s3, s26")
    P.e(f"s_mul_i32 s3, s3, {n*256}"); P.e(f"s_add_u32 s3, s3, {base_off}")
    P.e(f"v_lshlrev_b32 v{vT0}, 2, v0"); P.e(f"v_add_u32 v{vT0}, s3, v{vT0}")
    for i, r in enumerate(regs):
        if r[0] == 'a':
            P.e(f"v_accvgpr_read_b32 v{vT1}, a{r[1]}")
            src = vT1
        else:
            src = r[1]
        P.e(f"s_mov_b32 s3, {i*256}")
        P.e(f"buffer_store_dword v{src}, v{vT0}, s[{sWS}:{sWS+3}], s3 offen")
        if r[0] == 'a': P.e("s_waitcnt vmcnt(0)")

def stamp(P, idx):
    P.e(f"s_memtime s[{sTS+2*idx}:{sTS+2*idx+1}]")

def write_stamps(P, n):
    P.e("s_waitcnt lgkmcnt(0)")
    P.e(f"s_lshl_b32 s3, s2, 2"); P.e("s_add_u32 s3, s3, s26"); P.e("s_lshl_b32 s3, s3, 6"); P.e(f"s_add_u32 s3, s3, {WS_STAMP}")
    for i in range(n):
        P.e(f"v_mov_b32 v{vT1}, s{sTS+2*i}")
        P.e(f"v_mov_b32 v{vT0}, s3")
        P.e(f"buffer_store_dword v{vT1}, v{vT0}, s[{sWS}:{sWS+3}], 0 offen offset:{4*i}")
        P.e("s_waitcnt vmcnt(0)")

KD = """.section .rodata,"a"
.p2align 6
.amdhsa_kernel {name}
  .amdhsa_next_free_vgpr {vgpr}
  .amdhsa_next_free_sgpr 102
  .amdhsa_accum_offset {acc}
  .amdhsa_group_segment_fixed_size 0
  .amdhsa_kernarg_size 112
  .amdhsa_user_sgpr_count 2
  .amdhsa_user_sgpr_kernarg_segment_ptr 1
  .amdhsa_system_sgpr_workgroup_id_x 1
.end_amdhsa_kernel
"""

def wrap(kernels, launches, tail_text=""):
    s = ""
    for nm, g, b, l in launches:
        s += f"; @launch kernel={nm} grid=({g},1,1) block=({b},1,1) lds={l}\n"
    s += '.amdgcn_target "amdgcn-amd-amdhsa--gfx950"\n.text\n' + MACROS
    for nm, txt, vg, ac in kernels:
        s += f".globl {nm}\n.p2align 8\n.type {nm},@function\n{nm}:\n{txt}"
    s += "K_TEXT_END:\n" + tail_text
    for nm, txt, vg, ac in kernels:
        s += KD.format(name=nm, vgpr=vg, acc=ac)
    return s

def code_prefetch(P, nbytes):
    P.e("s_getpc_b64 s[48:49]")
    P.e(f"v_lshlrev_b32 v{vT0}, 2, v0")
    P.e(f"s_lshl_b32 s3, s26, 8"); P.e(f"v_add_u32 v{vT0}, s3, v{vT0}")
    P.e(f"v_lshlrev_b32 v{vT0}, 4, v{vT0}")
    for off in range(0, nbytes, 16384):
        P.e(NT(f"global_load_dword v{vT1}, v{vT0}, s[48:49]"))
        P.e(f"v_add_u32 v{vT0}, 16384, v{vT0}")

def build_p1(fname):
    P = Prog()
    H = {'wq': {}, 'k': {}, 'v': {}}
    prologue(P, stamps=False)
    if OPT['pfcode']: code_prefetch(P, 16384)
    stamp(P, 0)
    phase1_pro(P, H)
    stamp(P, 1)
    phase1(P, H)
    stamp(P, 2)
    q_convert(P)
    stamp(P, 3)
    P.e("s_waitcnt vmcnt(0)")
    dump_regs(P, [('v', QF+i) for i in range(96)], WS_DBG)
    write_stamps(P, 4)
    P.e("K2_END:")
    P.e("s_endpgm")
    P.finalize()
    print("estimate", P.estimate(), "nops", P.nops, "ninstr", len(P.final))
    open(fname, "w").write(wrap([("k2_kernel", P.text(), 512, 256)], [("k2_kernel", 256, 256, LDS_BYTES)]))

def build_full(fname, dump_p=False):
    OPT.update(dict(dma=True, hload=True, barrier=True, tr=True, pfcode=True, p2=True))
    P = Prog()
    H = {'wq': {}, 'k': {}, 'v': {}}
    prologue(P, stamps=False)
    code_prefetch(P, 49152)
    stamp(P, 0)
    phase1_pro(P, H)
    stamp(P, 1)
    phase1(P, H)
    stamp(P, 2)
    q_convert(P)
    P.many(phase3_setup())
    stamp(P, 3)
    phase2(P, H)
    stamp(P, 4)
    phase3(P, H)
    stamp(P, 5)
    P.e("s_waitcnt vmcnt(0)")
    stamp(P, 6)
    if dump_p:
        regs = []
        for kt in range(16):
            for ct in range(4):
                p = P_reg(kt, ct)
                regs += [(p[0], p[1]+i) for i in range(4)]
        regs += [('v', LACC+i) for i in range(16)]
        dump_regs(P, regs, WS_DBG)
    write_stamps(P, 7)
    P.e("K2_END:")
    P.e("s_endpgm")
    P.finalize()
    print("estimate", P.estimate(), "nops", P.nops, "ninstr", len(P.final))
    open(fname, "w").write(wrap([("k2_kernel", P.text(), 512, 256)], [("k2_kernel", 256, 256, LDS_BYTES)]))

if __name__ == "__main__":
    import sys
    if len(sys.argv) > 1 and sys.argv[1] == "full":
        build_full("k2_full.s", dump_p=True)
        build_full("k2_fast.s", dump_p=False)
        sys.exit(0)
    build_p1("k2_p1.s")
    for nm, o in [("a", dict(dma=False, hload=False, barrier=False)), ("b", dict(dma=False, hload=True, barrier=False)),
                  ("c", dict(dma=True, hload=False, barrier=False)), ("d", dict(dma=True, hload=True, barrier=False)),
                  ("e", dict(dma=False, hload=False, barrier=True)), ("f", dict(dma=True, hload=True, barrier=True, pfcode=True)),
                  ("g", dict(dma=False, hload=False, barrier=False, tr=False))]:
        OPT.update(dict(dma=True, hload=True, barrier=True, tr=True, pfcode=False)); OPT.update(o)
        build_p1(f"k2_p1{nm}.s")
```

```python
import sys, io, contextlib
import k2gen, ksmall, kgemm, ktail
from asmgen import *
from k2gen import *

HDR = open('adaLN_cond__sliding_block_cached__glu_gated_reglu__prompt.s.ref').read().split('; Override launch')[0]

K2OPT = {}
BOPT = {}
def gen_k2(stamps=False):
    k2gen.OPT.update(K2OPT)
    P = Prog()
    H = {}
    if stamps: stamp(P, 0); P.e("s_waitcnt lgkmcnt(0)")
    prologue(P, stamps=False)
    main_pro(P, H)
    if stamps: stamp(P, 1)
    main_schedule(P, H)
    if stamps:
        n = 8 if K2OPT.get('stamps_in') else 2
        stamp(P, n); P.e("s_waitcnt vmcnt(0)"); stamp(P, n+1); write_stamps(P, n+2)
    guard_branch(P)
    P.e("K2_END:")
    P.e("s_endpgm")
    P.finalize(report_nops=K2OPT.get('report', False))
    P2 = Prog(); H2 = {}
    safe_entry(P2)
    prologue(P2, stamps=False, check=False)
    main_pro(P2, H2, safe=True)
    main_schedule(P2, H2, safe=True)
    P2.e("s_endpgm")
    P2.finalize(report_nops=False)
    P.safe = P2
    return P

def add_rt(P, kidx):
    start = [Ins("s_mov_b32 s83, s2"), Ins("s_memrealtime s[92:93]"), Ins("s_memtime s[90:91]")]
    def end():
        return [Ins("s_mov_b64 exec, 1"), Ins("s_waitcnt vmcnt(0)"), Ins("s_memrealtime s[94:95]"), Ins("s_memtime s[88:89]"), Ins("s_load_dwordx2 s[96:97], s[0:1], 104"), Ins("s_waitcnt lgkmcnt(0)"),
           Ins("s_mov_b32 s84, s96"), Ins("s_mov_b32 s85, s97"), Ins(f"s_mov_b32 s86, {WS_BYTES}"), Ins("s_mov_b32 s87, 0x20000"),
           Ins("s_lshl_b32 s3, s83, 4"), Ins(f"s_add_u32 s3, s3, {WS_STAMP + 0x10000*(kidx+1)}"),
           Ins("v_mov_b32 v4, s92"), Ins("v_mov_b32 v5, s94"), Ins("v_mov_b32 v6, s90"), Ins("v_mov_b32 v7, s88"), Ins("v_mov_b32 v8, s3"),
           Ins("buffer_store_dwordx4 v[4:7], v8, s[84:87], 0 offen"), Ins("s_waitcnt vmcnt(0)")]
    items = list(start)
    for x in P.items:
        if isinstance(x, Ins) and x.op == 's_endpgm': items += end()
        items.append(x)
    P.items = items
    P.finalize(report_nops=False)

def build(fname, rt=False, k2stamps=False, stk=None, diag=None, fused=True):
    with contextlib.redirect_stdout(io.StringIO()):
        k01 = ksmall.gen_k01(pf=BOPT.get('pf01', ('code', 'wq'))); k2 = gen_k2(stamps=k2stamps); k3 = kgemm.gen_k3(stamps=(stk == 'k3')); k4 = ksmall.gen_k4b(); k5 = kgemm.gen_k5e(stamps=(stk == 'k5')); k6 = kgemm.gen_k6c(stamps=(stk == 'k6'))
        kt = ktail.gen_kt(stamps=(stk is not None and stk.startswith('kt')), detail=(stk[3:] if stk and len(stk) > 2 else None))
    if fused:
        if rt:
            for i, k in enumerate([k01, k2, kt]): add_rt(k, i)
        ks = [("k01_kernel", k01.text(), 256, 256), ("k2_kernel", k2.text(), 512, 256), ("kt_kernel", kt.text(), 256, 256)]
        ls = [("k01_kernel", 248, 256, 16384), ("k2_kernel", 256, 256, LDS_BYTES), ("kt_kernel", 256, 256, ktail.LDS_TAIL)]
        s = HDR + wrap(ks, ls, k2.safe.text())
        open(fname, "w").write(s); print(fname, len(s), "bytes"); return
    if rt:
        for i, k in enumerate([k01, k2, k3, k4, k5, k6]): add_rt(k, i)
    ks = [("k01_kernel", k01.text(), 256, 256), ("k2_kernel", k2.text(), 512, 256),
          ("k3_kernel", k3.text(), 256, 256), ("k4_kernel", k4.text(), 128, 128), ("k5_kernel", k5.text(), 256, 256), ("k6_kernel", k6.text(), 256, 256)]
    ls = [("k01_kernel", 248, 256, 16384), ("k2_kernel", 256, 256, LDS_BYTES),
          ("k3_kernel", 256, 256, 122880), ("k4_kernel", 256+128, 320, 24576), ("k5_kernel", 256, 256, 61440), ("k6_kernel", 256, 512, 163840)]
    if diag == 'wo':
        d = ksmall.gen_diag_touch("KD", 32, 1966080, lambda e: (e("s_and_b32 s23, s21, 3"), e("s_mul_i32 s23, s23, 1966080")))
        ks.append(("kd_kernel", d.text(), 64, 64)); ls.insert(2, ("kd_kernel", 256, 256, 0))
    if diag == 'wd':
        d = ksmall.gen_diag_touch("KD", 104, 1966080, lambda e: e(f"s_mov_b32 s23, {WS_WD}"))
        ks.append(("kd_kernel", d.text(), 64, 64)); ls.insert(5, ("kd_kernel", 256, 256, 0))
    if diag == 'act':
        d = ksmall.gen_diag_touch("KD", 104, 786432, lambda e: (e("s_mul_i32 s23, s21, 786432"), e(f"s_add_u32 s23, s23, {WS_ACT}")))
        d2 = ksmall.gen_diag_touch("KE", 104, 1966080, lambda e: e(f"s_mov_b32 s23, {WS_WD}"))
        ks.append(("kd_kernel", d.text(), 64, 64)); ls.insert(5, ("kd_kernel", 256, 256, 0))
        ks.append(("ke_kernel", d2.text(), 64, 64)); ls.insert(5, ("ke_kernel", 256, 256, 0))
    if diag == 'h2':
        d = ksmall.gen_diag_touch("KD", 104, 2621440, lambda e: e(f"s_mov_b32 s23, {WS_H2F}"))
        ks.append(("kd_kernel", d.text(), 64, 64)); ls.insert(4, ("kd_kernel", 256, 256, 0))
    s = HDR + wrap(ks, ls, k2.safe.text())
    open(fname, "w").write(s)
    print(fname, len(s), "bytes")

if __name__ == "__main__":
    import os
    build("adaLN_cond__sliding_block_cached__glu_gated_reglu__prompt.s")
    build("all_rt.s", rt=True)
    build("all_skt.s", stk='kt')
    build("all_skts4.s", stk='kt_s4')
    build("all_unf.s", rt=True, fused=False)
    for kv in os.environ.get("K2V", "").split(";"):
        if not kv: continue
        nm, _, o = kv.partition(':')
        opt = dict(x.split('=') for x in o.split(',') if x)
        K2OPT.update(opt); K2OPT['stamps_in'] = 1
        build(f"all_{nm}.s", rt=False, k2stamps=True)
        for k in list(K2OPT): K2OPT.pop(k); k2gen.OPT.pop(k, None)
```

```python
from asmgen import *

WS_MOD  = 0x0
WS_HF   = 0x40000
WS_OF   = 0x400000
WS_PART = 0x2000000
WS_X1   = 0x3800000
WS_H2F  = 0x4000000
WS_ACT  = 0x4400000
WS_WD   = 0x4C00000
WS_WGU  = 0x5800000
WS_CNT  = 0x30000
WS_STAMP= 0x5000000
WS_DBG  = 0x6000000
WS_BYTES = 268435456

WQ_BASE = 0;      WQ_NS = 5;  WQ_ST = 12288
K_BASE  = 36864;  K_NS = 5;   K_ST = 12288
V_BASE  = 98304;  V_NS = 4;   V_ST = 16384
LDS_BYTES = 163840
BIAS = 4096

sWQ, sK, sV, sWS = 8, 12, 16, 20
sHEAD, sRB, sW = 24, 25, 26
sM0WQ, sM0K, sM0V = 27, 28, 29
sOFF = 30
sOFH = 31
sT0, sT1, sT2, sT3 = 32, 33, 34, 35
sSLOW = 36
sTS = 76

vWQD = 1
vKD  = 4
vVD  = 7
vWQT = 11
vKF  = 15
vVT  = 19
vHO  = 23
vT0, vT1, vT2, vT3 = 60, 61, 62, 63
QACC = 64
QF = 64
SB = [160, 192]
RING = 192
OACC = [64, 160]
LACC = 128
RINV = 144

def P_reg(kt, ct):
    if kt < 12: return ('a', kt*16 + ct*4)
    if kt < 14: return ('v', 28 + (kt-12)*16 + ct*4)
    return ('v', 224 + (kt-14)*16 + ct*4)

def prologue(P, stamps=False, check=True):
    e = P.e
    if check:
        e("s_cmp_ge_u32 s2, 256")
        e("s_cbranch_scc1 K2_END")
    e("s_load_dwordx2 s[4:5], s[0:1], 24")
    e("s_load_dwordx2 s[6:7], s[0:1], 104")
    e("s_load_dwordx4 s[44:47], s[0:1], 8")
    e("s_load_dwordx2 s[68:69], s[0:1], 32")
    e("s_load_dwordx4 s[72:75], s[0:1], 48")
    e("s_load_dwordx2 s[70:71], s[0:1], 64")
    e("v_lshrrev_b32 v2, 6, v0")
    e("v_and_b32 v0, 63, v0")
    e("v_readfirstlane_b32 s26, v2")
    e("s_and_b32 s24, s2, 7"); e("s_lshl_b32 s24, s24, 2")
    e("s_lshr_b32 s3, s2, 3"); e("s_and_b32 s3, s3, 3"); e("s_add_u32 s24, s24, s3")
    e("s_lshr_b32 s25, s2, 5")
    e(f"v_lshrrev_b32 v{vT0}, 3, v0")
    e(f"v_and_b32 v{vT1}, 7, v0")
    e(f"v_lshrrev_b32 v{vT2}, 4, v0")
    e(f"v_lshlrev_b32 v{vT3}, 1, v{vT2}")
    e(f"v_xor_b32 v{vT3}, v{vT3}, v{vT1}")
    e(f"v_lshlrev_b32 v{vT3}, 4, v{vT3}")
    e("s_lshl_b32 s3, s26, 3")
    e(f"v_add_u32 v{vWQD}, s3, v{vT0}")
    e("s_mov_b32 s37, 12288")
    e(f"v_mul_lo_u32 v{vWQD}, v{vWQD}, s37")
    e(f"v_add_u32 v{vWQD}, v{vWQD}, v{vT3}")
    e(f"v_add_u32 v{vWQD}, {BIAS}, v{vWQD}")
    e(f"v_add_u32 v{vWQD+1}, {128-1024}, v{vWQD}")
    e(f"v_add_u32 v{vWQD+2}, {256-2048}, v{vWQD}")
    e("s_lshl_b32 s3, s25, 4"); e("s_lshl_b32 s37, s26, 2"); e("s_add_u32 s38, s3, s37")
    e("s_mul_i32 s3, s38, 20480"); e(f"s_add_u32 s3, s3, {WS_HF}")
    e(f"v_lshlrev_b32 v{vHO}, 4, v0")
    e(f"v_add_u32 v{vHO}, s3, v{vHO}")
    for ct in range(1, 4):
        e(f"v_add_u32 v{vHO+ct}, {ct*20480}, v{vHO}")
    e(f"s_mul_i32 s{sM0WQ}, s26, 3072")
    e("s_mul_i32 s3, s24, 384")
    e("s_waitcnt lgkmcnt(0)")
    e(f"s_add_u32 s{sWQ}, s4, s3"); e(f"s_addc_u32 s{sWQ+1}, s5, 0")
    e(f"s_sub_u32 s{sWQ}, s{sWQ}, {BIAS}"); e(f"s_subb_u32 s{sWQ+1}, s{sWQ+1}, 0")
    e(f"s_sub_u32 s{sWQ+2}, {7864320+BIAS}, s3"); e(f"s_mov_b32 s{sWQ+3}, 0x20000")
    e(f"s_mov_b32 s{sWS}, s6"); e(f"s_mov_b32 s{sWS+1}, s7")
    e(f"s_mov_b32 s{sWS+2}, {WS_BYTES}"); e(f"s_mov_b32 s{sWS+3}, 0x20000")

def prologue2(P):
    e = P.e
    e(f"v_lshrrev_b32 v{vT0}, 2, v0"); e(f"v_and_b32 v{vT0}, 3, v{vT0}")
    e(f"v_and_b32 v{vT1}, 3, v0"); e(f"v_lshlrev_b32 v{vT1}, 3, v{vT1}")
    e(f"v_and_b32 v{vWQT}, 1, v{vT2}"); e(f"v_lshlrev_b32 v{vWQT}, 2, v{vWQT}")
    e(f"v_add_u32 v{vWQT}, v{vWQT}, v{vT0}")
    e(f"v_lshrrev_b32 v{vWQT+1}, 1, v{vWQT}")
    e(f"v_lshlrev_b32 v{vWQT}, 7, v{vWQT}")
    e(f"v_lshrrev_b32 v{vWQT+2}, 1, v{vT2}")
    e(f"v_mul_u32_u24 v{vWQT+2}, 3072, v{vWQT+2}")
    e(f"v_add_u32 v{vWQT}, v{vWQT}, v{vWQT+2}")
    e(f"v_add_u32 v{vWQT}, v{vWQT}, v{vT1}")
    e(f"v_lshlrev_b32 v{vWQT+1}, 5, v{vWQT+1}")
    for tp in (3, 2):
        e(f"v_xor_b32 v{vT3}, {tp<<5}, v{vWQT+1}")
        e(f"v_add_u32 v{vWQT+tp}, v{vWQT}, v{vT3}")
    e(f"v_xor_b32 v{vT3}, {1<<5}, v{vWQT+1}")
    e(f"v_add_u32 v{vT3}, v{vWQT}, v{vT3}")
    e(f"v_add_u32 v{vWQT}, v{vWQT}, v{vWQT+1}")
    e(f"v_mov_b32 v{vWQT+1}, v{vT3}")
    e(f"v_lshrrev_b32 v{vVT}, 1, v{vT2}"); e(f"v_lshlrev_b32 v{vVT}, 2, v{vVT}")
    e(f"v_add_u32 v{vVT}, v{vVT}, v{vT0}")
    e(f"v_lshrrev_b32 v{vVT+1}, 1, v{vVT}"); e(f"v_and_b32 v{vVT+1}, 1, v{vVT+1}")
    e(f"v_and_b32 v{vVT+2}, 1, v{vT2}")
    e(f"v_lshlrev_b32 v{vVT+3}, 1, v{vVT+2}")
    e(f"v_or_b32 v{vVT+1}, v{vVT+1}, v{vVT+3}")
    e(f"v_lshlrev_b32 v{vVT+1}, 5, v{vVT+1}")
    e(f"v_lshlrev_b32 v{vVT}, 7, v{vVT}")
    e(f"v_lshlrev_b32 v{vVT+2}, 10, v{vVT+2}")
    e(f"v_add_u32 v{vVT}, v{vVT}, v{vVT+2}")
    e(f"v_add_u32 v{vVT}, v{vVT}, v{vT1}")
    e(f"v_add_u32 v{vVT}, {V_BASE}, v{vVT}")
    for tp in (3, 2):
        e(f"v_xor_b32 v{vT3}, {tp<<5}, v{vVT+1}")
        e(f"v_add_u32 v{vVT+tp}, v{vVT}, v{vT3}")
    e(f"v_xor_b32 v{vT3}, {1<<5}, v{vVT+1}")
    e(f"v_add_u32 v{vT3}, v{vVT}, v{vT3}")
    e(f"v_add_u32 v{vVT}, v{vVT}, v{vVT+1}")
    e(f"v_mov_b32 v{vVT+1}, v{vT3}")
    e(f"s_add_u32 s{sM0K}, s{sM0WQ}, {K_BASE}")
    e(f"s_lshl_b32 s{sM0V}, s26, 12"); e(f"s_add_u32 s{sM0V}, s{sM0V}, {V_BASE}")
    e("s_mul_i32 s3, s24, 786432"); e(f"s_add_u32 s3, s3, {1536*384-BIAS}")
    e(f"s_add_u32 s{sK}, s44, s3"); e(f"s_addc_u32 s{sK+1}, s45, 0")
    e(f"s_mov_b32 s{sK+2}, {512*384+BIAS}"); e(f"s_mov_b32 s{sK+3}, 0x20000")
    e(f"s_add_u32 s{sV}, s46, s3"); e(f"s_addc_u32 s{sV+1}, s47, 0")
    e(f"s_mov_b32 s{sV+2}, {512*384+BIAS}"); e(f"s_mov_b32 s{sV+3}, 0x20000")
    for base, lo, n in ((52, 68, 7864320), (56, 72, 1966080), (60, 74, 1966080), (64, 70, 1966080)):
        e(f"s_mov_b32 s{base}, s{lo}"); e(f"s_mov_b32 s{base+1}, s{lo+1}"); e(f"s_mov_b32 s{base+2}, {n}"); e(f"s_mov_b32 s{base+3}, 0x20000")

def prologue3():
    L = []
    e = lambda t: L.append(Ins(t))
    T0, T1, T2, T3 = 56, 57, 58, 59
    e(f"v_lshrrev_b32 v{T0}, 3, v0"); e(f"v_and_b32 v{T1}, 7, v0"); e(f"v_lshrrev_b32 v{T2}, 4, v0")
    e("s_lshl_b32 s3, s26, 3")
    e(f"v_add_u32 v{vKD}, s3, v{T0}")
    e(f"v_lshrrev_b32 v{T3}, 1, v{vKD}"); e(f"v_and_b32 v{T3}, 7, v{T3}"); e(f"v_xor_b32 v{T3}, v{T3}, v{T1}"); e(f"v_lshlrev_b32 v{T3}, 4, v{T3}")
    e(f"v_mul_u32_u24 v{vKD}, 384, v{vKD}"); e(f"v_add_u32 v{vKD}, v{vKD}, v{T3}"); e(f"v_add_u32 v{vKD}, {BIAS}, v{vKD}")
    e(f"v_add_u32 v{vKD+1}, {128-1024}, v{vKD}"); e(f"v_add_u32 v{vKD+2}, {256-2048}, v{vKD}")
    e(f"v_and_b32 v{T3}, 1, v{T2}"); e(f"v_lshlrev_b32 v{T3}, 1, v{T3}"); e(f"v_xor_b32 v{T3}, v{T3}, v{T1}")
    e("s_lshl_b32 s3, s26, 5")
    e(f"v_add_u32 v{vVD}, s3, v{T0}"); e(f"v_mul_u32_u24 v{vVD}, 384, v{vVD}"); e(f"v_add_u32 v{vVD}, {BIAS}, v{vVD}")
    e(f"v_xor_b32 v{vVD+1}, 4, v{T3}"); e(f"v_lshlrev_b32 v{vVD+1}, 4, v{vVD+1}"); e(f"v_lshlrev_b32 v{T3}, 4, v{T3}")
    e(f"v_add_u32 v{vVD+1}, v{vVD+1}, v{vVD}"); e(f"v_add_u32 v{vVD}, v{vVD}, v{T3}")
    e(f"v_add_u32 v{vVD+2}, {2*3072-2*1024}, v{vVD}"); e(f"v_add_u32 v{vVD+3}, {3*3072-3*1024}, v{vVD+1}"); e(f"v_add_u32 v{vVD+1}, {1*3072-1*1024}, v{vVD+1}")
    e(f"v_and_b32 v{T0}, 31, v0")
    e(f"v_lshrrev_b32 v{T1}, 3, v{T0}"); e(f"v_mul_u32_u24 v{T1}, 3072, v{T1}")
    e(f"v_and_b32 v{T3}, 7, v{T0}"); e(f"v_lshlrev_b32 v{T3}, 7, v{T3}")
    e(f"v_add_u32 v{T1}, v{T1}, v{T3}"); e(f"v_add_u32 v{T1}, {K_BASE}, v{T1}")
    e(f"v_lshrrev_b32 v{T0}, 1, v{T0}"); e(f"v_and_b32 v{T0}, 7, v{T0}")
    e(f"v_lshrrev_b32 v{T3}, 5, v0"); e(f"v_xor_b32 v{T0}, v{T0}, v{T3}")
    for s4 in range(4):
        e(f"v_xor_b32 v{T3}, {2*s4}, v{T0}"); e(f"v_lshlrev_b32 v{T3}, 4, v{T3}"); e(f"v_add_u32 v{vKF+s4}, v{T1}, v{T3}")
    return L

sPFV, sPFO, sPFW, sPFT = 96, 97, 98, 99
def touch_setup():
    return [Ins("v_lshlrev_b32 v27, 7, v0"), Ins("v_mov_b32 v59, 0x7ff00000"), Ins("v_cmp_gt_u32 vcc, 16, v0"), Ins("s_nop 1"),
            Ins("v_cndmask_b32 v27, v59, v27, vcc"),
            Ins(f"s_mul_i32 s{sPFV}, s25, 24576"), Ins(f"s_mul_i32 s{sPFT}, s26, 6144"), Ins(f"s_add_u32 s{sPFV}, s{sPFV}, s{sPFT}"), Ins(f"s_add_u32 s{sPFV}, s{sPFV}, {BIAS}"),
            Ins(f"s_lshl_b32 s{sPFT}, s2, 2"), Ins(f"s_add_u32 s{sPFT}, s{sPFT}, s26"),
            Ins(f"s_mul_i32 s{sPFW}, s{sPFT}, 1920"),
            Ins(f"s_and_b32 s{sPFO}, s2, 3"), Ins(f"s_mul_i32 s{sPFO}, s{sPFO}, 1966080"), Ins(f"s_lshr_b32 s{sPFT}, s2, 3"), Ins(f"s_lshl_b32 s{sPFT}, s{sPFT}, 2"),
            Ins(f"s_add_u32 s{sPFT}, s{sPFT}, s26"), Ins(f"s_mul_i32 s{sPFT}, s{sPFT}, 15360"), Ins(f"s_add_u32 s{sPFO}, s{sPFO}, s{sPFT}")]
def touch16(kind, i, dst='a191'):
    if kind == 'v': base, srd_ = sPFV, sV
    elif kind == 'k': base, srd_ = sPFV, sK
    elif kind == 'wo': base, srd_ = sPFO, 52
    else: base, srd_ = sPFW, {'wg': 56, 'wu': 60, 'wd': 64}[kind]
    return [Ins(f"s_add_u32 s{sPFT}, s{base}, {i*2048}"), NT(f"buffer_load_dword {dst}, v27, s[{srd_}:{srd_+3}], s{sPFT} offen")]

PFS = 64
def pf_kv():
    L = [Ins(f"s_mul_i32 s{sT0}, s25, 24576"), Ins(f"s_mul_i32 s{sT1}, s26, 6144"), Ins(f"s_add_u32 s{sT0}, s{sT0}, s{sT1}"),
         Ins(f"s_add_u32 s{sT0}, s{sT0}, {BIAS}"), Ins(f"v_mul_u32_u24 v29, {PFS}, v0"), Ins(f"v_add_u32 v29, s{sT0}, v29")]
    n = -(-6144 // (64*PFS))
    D = []
    for srd_ in (sK, sV):
        for i in range(n):
            D.append(Ins(f"v_add_u32 v30, {i*64*PFS}, v29"))
            D.append(Ins(f"buffer_load_dword v28, v30, s[{srd_}:{srd_+3}], 0 offen"))
    return L + D

def pf_wo():
    return [Ins(f"s_lshl_b32 s{sT0}, s2, 2"), Ins(f"s_add_u32 s{sT0}, s{sT0}, s26"), Ins(f"s_mul_i32 s{sT1}, s{sT0}, 7680"),
            Ins(f"v_lshlrev_b32 v31, {OPT.get('pfshift', 7)}, v0"), Ins(f"v_add_u32 v31, s{sT1}, v31"),
            NT(f"buffer_load_dword v28, v31, s[52:55], 0 offen")] + ([Ins("v_add_u32 v31, 4096, v31"), NT(f"buffer_load_dword v28, v31, s[52:55], 0 offen")] if OPT.get('pfshift', 7) == 6 else [])

def pf_weights():
    L = [Ins(f"s_lshl_b32 s{sT0}, s2, 2"), Ins(f"s_add_u32 s{sT0}, s{sT0}, s26"),
         Ins(f"v_mul_u32_u24 v31, {PFS}, v0"),
         Ins(f"s_mul_i32 s{sT1}, s{sT0}, 7680"), Ins(f"v_add_u32 v32, s{sT1}, v31")]
    for i in range(-(-7680 // (64*PFS))):
        L.append(Ins(f"v_add_u32 v30, {i*64*PFS}, v32"))
        L.append(Ins(f"buffer_load_dword v28, v30, s[52:55], 0 offen"))
    L += [Ins(f"s_mul_i32 s{sT1}, s{sT0}, 1920"), Ins(f"v_add_u32 v32, s{sT1}, v31")]
    for srd_ in (56, 60, 64):
        L.append(Ins(f"buffer_load_dword v28, v32, s[{srd_}:{srd_+3}], 0 offen"))
    return L

def dma_wq(ks):
    slot = ks % WQ_NS
    L = [Ins(f"s_add_u32 m0, s{sM0WQ}, {WQ_BASE + slot*WQ_ST}"),
         Ins(f"s_mov_b32 s{sOFF}, {ks*32*12288}")]
    D = [Ins(f"buffer_load_dwordx4 v{vWQD+q}, s[{sWQ}:{sWQ+3}], s{sOFF} offen offset:{q*1024} lds") for q in range(3)]
    return L, D

def k_slot(kt): return (kt + 2) % K_NS
def dma_k(kt):
    L = [Ins(f"s_add_u32 m0, s{sM0K}, {k_slot(kt)*K_ST}"),
         Ins(f"s_mov_b32 s{sOFF}, {(kt % 16)*12288}")]
    D = [Ins(f"buffer_load_dwordx4 v{vKD+q}, s[{sK}:{sK+3}], s{sOFF} offen offset:{q*1024} lds") for q in range(3)]
    return L, D

def dma_v(st):
    G, kb = st // 4, st % 4
    L = [Ins(f"s_add_u32 m0, s{sM0V}, {(st % V_NS)*V_ST}"),
         Ins(f"s_mov_b32 s{sOFF}, {kb*128*384 + G*128}")]
    D = [Ins(f"buffer_load_dwordx4 v{vVD+i}, s[{sV}:{sV+3}], s{sOFF} offen offset:{i*1024} lds") for i in range(4)]
    return L, D

def HS(): return int(OPT.get('hsets', 4))
def load_h(ks):
    L = [Ins(f"s_mov_b32 s{sOFH}, {ks*1024}")]
    base = (ks % HS())*16
    D = [Ins(f"buffer_load_dwordx4 a[{base+4*ct}:{base+4*ct+3}], v{vHO+ct}, s[{sWS}:{sWS+3}], s{sOFH} offen" + (" sc1" if OPT.get('mono') else "")) for ct in range(4)]
    return L, D

def tr_wq(n):
    ks, t = divmod(n, 12)
    slot = n % 16
    q, tp = t >> 2, t & 3
    off = WQ_BASE + (ks % WQ_NS)*WQ_ST + q*1024
    r = RING + slot*4
    return [Ins(f"ds_read_b64_tr_b16 a[{r}:{r+1}], v{vWQT+tp} offset:{off}"),
            Ins(f"ds_read_b64_tr_b16 a[{r+2}:{r+3}], v{vWQT+tp} offset:{off+6144}")]

OPT = dict(dma=True, hload=True, barrier=True, tr=True, pfcode=False)
def k_frag(n):
    kt, s_ = divmod(n, 12)
    r = RING + (n % 16)*4
    off = k_slot(kt)*K_ST + (s_ >> 2)*1024
    return Ins(f"ds_read_b128 a[{r}:{r+3}], v{vKF + (s_ & 3)} offset:{off}")

def softmax_stream(kt, mode='exp'):
    L = []
    buf = SB[kt & 1]
    toA = P_reg(kt, 0)[0] == 'a'
    for cb in range(2):
        Sx = buf + 16*cb
        if toA:
            A_ = [Sx+0, Sx+2, Sx+8, Sx+10]; B_ = [Sx+4, Sx+6, Sx+12, Sx+14]
        else:
            pa = P_reg(kt, 2*cb)[1]; pb = P_reg(kt, 2*cb+1)[1]
            A_ = [pa+i for i in range(4)]; B_ = [pb+i for i in range(4)]
        E = lambda i: Ins(f"v_exp_f32 v{Sx+i}, v{Sx+i}")
        C = lambda d, i: Ins(f"v_cvt_pk_bf16_f32 v{d}, v{Sx+i}, v{Sx+i+1}")
        SW = lambda i: Ins(f"v_permlane16_swap_b32 v{A_[i]}, v{B_[i]}")
        def W(i):
            if not toA: return []
            pa = P_reg(kt, 2*cb)[1]; pb = P_reg(kt, 2*cb+1)[1]
            return [Ins(f"v_accvgpr_write_b32 a{pa+i}, v{A_[i]}"), Ins(f"v_accvgpr_write_b32 a{pb+i}, v{B_[i]}")]
        L += [E(0), E(1), E(2), E(3), E(4), E(5), C(A_[0], 0), C(A_[1], 2), E(6), E(7), C(B_[0], 4), E(8), E(9), C(B_[1], 6),
              E(10), E(11), SW(0), C(A_[2], 8), SW(1), E(12), E(13), C(A_[3], 10), E(14), E(15)]
        L += W(0) + [C(B_[2], 12), C(B_[3], 14)] + W(1) + [SW(2), SW(3)]
        L += W(2) + W(3)
    return L

def phase2(P, handles):
    PF = 4
    for kt in range(16):
        bb = []
        buf = SB[kt & 1]
        for s_ in range(12):
            n = 12*kt + s_
            ar = RING + (n % 16)*4
            for cb in range(2):
                d = buf + 16*cb
                q = QF + 8*s_ + 4*cb
                c = f"v[{d}:{d+15}]" if s_ > 0 else "0"
                bb.append(Ins(f"v_mfma_f32_32x32x16_bf16 v[{d}:{d+15}], a[{ar}:{ar+3}], v[{q}:{q+3}], {c}"))
        s_rd, s_dma, s_sm = [], [], []
        for s_ in range(12):
            n = 12*kt + s_ + PF
            lo = 2*s_
            if n < 12*16:
                if s_ == 8:
                    s_rd.append((WaitVM(handles['k'][kt+1]), lo-1, lo-1))
                    s_rd.append((Ins("s_barrier"), lo-1, lo-1))
                s_rd.append((k_frag(n), lo, lo+1))
            else:
                m = n - 192
                if m == 0:
                    s_rd.append((WaitVM(handles['v'][0]), lo-1, lo-1))
                    s_rd.append((Ins("s_barrier"), lo-1, lo-1))
                a, b = tr_v(m)
                s_rd.append((a, lo, lo+1)); s_rd.append((b, lo, lo+1))
        if kt + 4 < 16:
            L, D = dma_k(kt+4)
            handles['k'][kt+4] = D[-1]
            s_dma += [(L[0], 16, 18), (L[1], 16, 18)] + [(d, 17+2*i, 19+2*i) for i, d in enumerate(D)]
        elif kt >= 12 and kt <= 14:
            L, D = dma_v(kt-12)
            handles['v'][kt-12] = D[-1]
            s_dma += [(L[0], 2, 18), (L[1], 2, 18)] + [(d, 4+4*i, 22) for i, d in enumerate(D)]
        if kt > 0:
            sm = softmax_stream(kt-1)
            if kt == 2 and OPT.get('pf') == 'wo': sm = pf_wo() + sm
            n = len(sm)
            for i, x in enumerate(sm):
                s_sm.append((x, 2, 23))
        P.many(weave(bb, [s_rd, s_dma, s_sm], 24, max_mem=1))

def v_seq():
    L = [(G, kt, tp) for G in range(2) for kt in range(16) for tp in range(4)]
    L += [(2, kt, tp) for kt in range(8) for tp in range(4)]
    L += [(2, kt, tp) for kt in range(8, 16) for tp in (0, 1)]
    L += [(2, kt, tp) for kt in range(8, 16) for tp in (2, 3)]
    return L
VSEQ = v_seq()

def tr_v(m):
    G, kt, tp = VSEQ[m]
    st = 4*G + (kt >> 2)
    off = (st % V_NS)*V_ST + (kt & 3)*4096
    r = RING + ((192 + m) % 16)*4
    return [Ins(f"ds_read_b64_tr_b16 a[{r}:{r+1}], v{vVT+tp} offset:{off}"),
            Ins(f"ds_read_b64_tr_b16 a[{r+2}:{r+3}], v{vVT+tp} offset:{off+2048}")]

ONES = 60

def o_epilogue(G):
    L = []
    ob = OACC[G & 1]
    for u in range(2):
        L.append(Ins(f"s_mov_b32 s{sOFH}, {(2*G+u)*1024}"))
        for ct in range(4):
            x = ob + ((2*u)*4 + ct)*4; y = ob + ((2*u+1)*4 + ct)*4
            for i in range(4): L.append(Ins(f"v_mul_f32 v{x+i}, v{RINV+ct}, v{x+i}"))
            for i in range(4): L.append(Ins(f"v_mul_f32 v{y+i}, v{RINV+ct}, v{y+i}"))
            L.append(Ins(f"v_cvt_pk_bf16_f32 v{x}, v{x}, v{x+1}"))
            L.append(Ins(f"v_cvt_pk_bf16_f32 v{x+1}, v{x+2}, v{x+3}"))
            L.append(Ins(f"v_cvt_pk_bf16_f32 v{x+2}, v{y}, v{y+1}"))
            L.append(Ins(f"v_cvt_pk_bf16_f32 v{x+3}, v{y+2}, v{y+3}"))
            L.append(Ins(f"buffer_store_dwordx4 v[{x}:{x+3}], v{vHO+ct}, s[{sWS}:{sWS+3}], s{sOFH} offen sc1"))
    return L

def phase3(P, handles):
    PF = 4
    for G in range(3):
        ob = OACC[G & 1]
        pre = []
        epi = []
        if G == 1:
            for ct in range(4): epi.append(Ins(f"v_rcp_f32 v{RINV+ct}, v{LACC+4*ct}"))
        if G >= 1: epi += o_epilogue(G-1)
        nslots_total = 16*16
        epi_ptr = 0
        for kt in range(16):
            bb = []
            for tp in range(4):
                m = 64*G + 4*kt + tp
                ar = RING + ((192 + m) % 16)*4
                for ct in range(4):
                    d = ob + (tp*4 + ct)*4
                    p = P_reg(kt, ct)
                    c = f"v[{d}:{d+3}]" if kt > 0 else "0"
                    bb.append(Ins(f"v_mfma_f32_16x16x32_bf16 v[{d}:{d+3}], a[{ar}:{ar+3}], {R(p,4)}, {c}"))
            if G == 0:
                for ct in range(4):
                    d = LACC + 4*ct
                    p = P_reg(kt, ct)
                    c = f"v[{d}:{d+3}]" if kt > 0 else "0"
                    bb.append(Ins(f"v_mfma_f32_16x16x32_bf16 v[{d}:{d+3}], v[{ONES}:{ONES+3}], {R(p,4)}, {c}"))
            s_rd, s_dma, s_x = [], [], []
            st = 4*G + (kt >> 2)
            for tp in range(4):
                m = 64*G + 4*kt + tp + PF
                if m >= 192: continue
                lo = 4*tp
                if tp == 0 and (kt & 3) == 3:
                    s_rd.append((WaitVM(handles['v'][st+1]), -1, -1))
                    s_rd.append((Ins("s_barrier"), -1, -1))
                a, b = tr_v(m)
                s_rd.append((a, lo, lo+1)); s_rd.append((b, lo+1, lo+2))
            if (kt & 3) == 3 and st + 3 < 12:
                L, D = dma_v(st+3)
                handles['v'][st+3] = D[-1]
                s_dma += [(L[0], 0, 2), (L[1], 0, 3)] + [(d, 2+3*i, 4+3*i) for i, d in enumerate(D)]
            if G == 0 and kt < 2:
                sm = softmax_stream(15)
                half = len(sm)//2
                part = sm[:half] if kt == 0 else sm[half:]
                s_x = [(x, 0 if kt else 2, 19) for x in part]
            elif epi and kt >= 1:
                per = -(-len(epi) // 13)
                part = epi[epi_ptr:epi_ptr+per]; epi_ptr += len(part)
                s_x = [(x, 0, len(bb)-1) for x in part]
            P.many(weave(bb, [s_rd, s_dma, s_x], 8))
        assert epi_ptr >= len(epi)
    P.many(o_epilogue(2))

def phase3_setup():
    L = [Ins(f"v_mov_b32 v{ONES+i}, 0x3f803f80") for i in range(4)]
    L.append(Ins(f"s_mul_i32 s{sT0}, s38, {196608-20480}"))
    L.append(Ins(f"s_mul_i32 s{sT1}, s24, 6144"))
    L.append(Ins(f"s_add_u32 s{sT0}, s{sT0}, s{sT1}"))
    L.append(Ins(f"s_add_u32 s{sT0}, s{sT0}, {WS_OF-WS_HF}"))
    for ct in range(4):
        L.append(Ins(f"v_add_u32 v{vHO+ct}, s{sT0}, v{vHO+ct}"))
        if ct: L.append(Ins(f"v_add_u32 v{vHO+ct}, {ct*(196608-20480)}, v{vHO+ct}"))
    return L

def phase1(P, handles):
    NK = 20
    PF = 4
    dmah = handles['wq']
    for ks in range(NK):
        bb = []
        for t in range(12):
            n = 12*ks + t
            ar = RING + (n % 16)*4
            for ct in range(4):
                acc = QACC + (4*t + ct)*4
                b = (ks % 4)*16 + 4*ct
                c = f"v[{acc}:{acc+3}]" if ks > 0 else "0"
                bb.append(Ins(f"v_mfma_f32_16x16x32_bf16 v[{acc}:{acc+3}], a[{ar}:{ar+3}], a[{b}:{b+3}], {c}"))
        s_tr, s_h, s_dma = [], [], []
        for t in range(12):
            n = 12*ks + t + PF
            if n >= 12*NK:
                if OPT.get('p2', False):
                    lo = 4*t
                    if t == 8:
                        s_tr.append((WaitVM(handles['k'][0]), lo-1, lo-1))
                        s_tr.append((Ins("s_barrier"), lo-1, lo-1))
                    s_tr.append((k_frag(n - 12*NK), lo, lo+2))
                continue
            a, b = tr_wq(n)
            lo = 4*t
            if t == 8:
                if OPT['dma'] or ks+1 < 4: s_tr.append((WaitVM(dmah[ks+1]), lo-1, lo-1))
                if OPT['barrier']: s_tr.append((Ins("s_barrier"), lo-1, lo-1))
            if OPT['tr']:
                s_tr.append((a, lo, lo+1)); s_tr.append((b, lo+1, lo+2))
        if ks + 3 < NK and OPT['hload']:
            L, D = load_h(ks+3)
            s_h.append((L[0], 0, 1))
            for i, d in enumerate(D): s_h.append((d, 4*i+2, 4*i+3))
        if not OPT['dma']: pass
        elif ks + 4 < NK:
            L, D = dma_wq(ks+4)
            dmah[ks+4] = D[-1]
            s_dma.append((L[0], 33, 35)); s_dma.append((L[1], 34, 36))
            for i, d in enumerate(D): s_dma.append((d, 36+4*i, 38+4*i))
        elif ks >= 16:
            kt = ks - 16
            L, D = dma_k(kt)
            handles['k'][kt] = D[-1]
            s_dma.append((L[0], 33, 35)); s_dma.append((L[1], 34, 36))
            for i, d in enumerate(D): s_dma.append((d, 36+4*i, 38+4*i))
        s_pf = []
        if OPT.get('pf', 'loop') == 'loop':
            if ks == 1: s_pf = [(x, 2, 47) for x in pf_kv()]
            if ks == 8: s_pf = [(x, 2, 47) for x in pf_weights()]
        P.many(weave(bb, [s_tr, s_h, s_dma, s_pf], 8))

SX = 28
def s_buf(kt): return SX if kt == 0 else SB[kt & 1]

MREG = [2, 3]
def max_stream(vt):
    L = []
    buf = s_buf(vt)
    for cb in range(2):
        Sx = buf + 16*cb; m = MREG[cb]
        if vt == 0:
            L.append(Ins(f"v_max_f32 v{m}, v{Sx}, v{Sx+1}")); rest = range(2, 16, 2)
        else:
            rest = range(0, 16, 2)
        for i in rest: L.append(Ins(f"v_max3_f32 v{m}, v{m}, v{Sx+i}, v{Sx+i+1}"))
    if vt == 15:
        for cb in range(2):
            m = MREG[cb]
            L += [Ins(f"v_mov_b32 v1, v{m}"), Ins("s_nop 1"), Ins(f"v_permlane32_swap_b32 v{m}, v1"), Ins("s_nop 1"), Ins(f"v_max_f32 v{m}, v{m}, v1")]
    return L

def softmax_stream2(kt, vt=None, sub=False):
    global SB
    L = []
    buf = s_buf(kt if vt is None else vt)
    toA = P_reg(kt, 0)[0] == 'a'
    for cb in range(2):
        Sx = buf + 16*cb
        if toA:
            A_ = [Sx+0, Sx+2, Sx+8, Sx+10]; B_ = [Sx+4, Sx+6, Sx+12, Sx+14]
        else:
            pa = P_reg(kt, 2*cb)[1]; pb = P_reg(kt, 2*cb+1)[1]
            A_ = [pa+i for i in range(4)]; B_ = [pb+i for i in range(4)]
        def E(i):
            if sub:
                return [Ins(f"v_sub_f32 v{Sx+i}, v{Sx+i}, v{MREG[cb]}"), Ins(f"v_exp_f32 v{Sx+i}, v{Sx+i}")]
            return [Ins(f"v_exp_f32 v{Sx+i}, v{Sx+i}")]
        C = lambda d, i: [Ins(f"v_cvt_pk_bf16_f32 v{d}, v{Sx+i}, v{Sx+i+1}")]
        SW = lambda i: [Ins(f"v_permlane16_swap_b32 v{A_[i]}, v{B_[i]}")]
        def W(i):
            if not toA: return []
            pa = P_reg(kt, 2*cb)[1]; pb = P_reg(kt, 2*cb+1)[1]
            return [Ins(f"v_accvgpr_write_b32 a{pa+i}, v{A_[i]}"), Ins(f"v_accvgpr_write_b32 a{pb+i}, v{B_[i]}")]
        for x in (E(0), E(1), E(2), E(3), E(4), E(5), C(A_[0], 0), C(A_[1], 2), E(6), E(7), C(B_[0], 4), E(8), E(9), C(B_[1], 6),
                  E(10), E(11), C(A_[2], 8), SW(0), E(12), E(13), SW(1), C(A_[3], 10), E(14), E(15), W(0), C(B_[2], 12), C(B_[3], 14), W(1),
                  SW(2), SW(3)): L += x
        L += W(2) + W(3)
    return L
NEGM = 62

def q_convert_tile(t):
    L = []
    for cb in range(2):
        x = QACC + (4*t + 2*cb)*4; y = x + 4
        d = QF + 8*t + 4*cb
        L += [Ins(f"v_cvt_pk_bf16_f32 v{d}, v{x}, v{x+1}"), Ins(f"v_cvt_pk_bf16_f32 v{d+1}, v{x+2}, v{x+3}"),
              Ins(f"v_cvt_pk_bf16_f32 v{d+2}, v{y}, v{y+1}"), Ins(f"v_cvt_pk_bf16_f32 v{d+3}, v{y+2}, v{y+3}")]
    for cb in range(2):
        d = QF + 8*t + 4*cb
        L += [Ins(f"v_permlane16_swap_b32 v{d}, v{d+2}"), Ins(f"v_permlane16_swap_b32 v{d+1}, v{d+3}")]
    return L

sOK = 100
def main_schedule(P, H, safe=False):
    NK = 20; PF = 4
    NT = 32 if safe else 16
    F_K = 240; F_V = 240 + 12*NT; F_END = F_V + 192
    bb = []
    p1_0 = 0
    for ks in range(NK):
        for t in range(12):
            n = 12*ks + t
            ar = RING + (n % 16)*4
            for ct in range(4):
                acc = QACC + (4*t + ct)*4
                b = (ks % HS())*16 + 4*ct
                c = f"v[{acc}:{acc+3}]" if ks > 0 else "0"
                bb.append(Ins(f"v_mfma_f32_16x16x32_bf16 v[{acc}:{acc+3}], a[{ar}:{ar+3}], a[{b}:{b+3}], {c}"))
    p2_0 = len(bb)
    for kt in range(NT):
        buf = s_buf(kt)
        for s_ in range(12):
            n = 12*kt + s_
            ar = RING + (n % 16)*4
            for cb in range(2):
                d = buf + 16*cb; q = QF + 8*s_ + 4*cb
                c = f"v[{d}:{d+15}]" if s_ > 0 else "0"
                bb.append(Ins(f"v_mfma_f32_32x32x16_bf16 v[{d}:{d+15}], a[{ar}:{ar+3}], v[{q}:{q+3}], {c}"))
    p3_0 = len(bb)
    kstart = {}
    fslot = {}
    lastfrag = {}
    for mi, (G, kt, tp) in enumerate(VSEQ):
        ob = OACC[G & 1]
        if (G, kt) not in kstart: kstart[(G, kt)] = len(bb)
        ar = RING + ((192 + mi) % 16)*4
        fslot[mi] = len(bb)
        for ct in range(4):
            d = ob + (tp*4 + ct)*4; p = P_reg(kt, ct)
            c = f"v[{d}:{d+3}]" if kt > 0 else "0"
            bb.append(Ins(f"v_mfma_f32_16x16x32_bf16 v[{d}:{d+3}], a[{ar}:{ar+3}], {R(p,4)}, {c}"))
        lastfrag[(G, tp)] = len(bb) - 1
        if G == 0 and tp == 3:
            for ct in range(4):
                d = LACC + 4*ct; p = P_reg(kt, ct)
                c = f"v[{d}:{d+3}]" if kt > 0 else "0"
                bb.append(Ins(f"v_mfma_f32_16x16x32_bf16 v[{d}:{d+3}], v[{ONES}:{ONES+3}], {R(p,4)}, {c}"))
    nslots = len(bb)
    def use_slot(f):
        if f < 240: return 4*f
        if f < F_V: return p2_0 + 2*(f-240)
        return fslot[f-F_V]
    def reads(f):
        if f < 240: return tr_wq(f)
        if f < F_V: return [k_frag(f-240)]
        return tr_v(f-F_V)
    grp = []; wq_h = dict(H['wq']); k_h = {}; v_h = {}; h_h = dict(H['h'])
    bar = {}
    def first_read_slot(f): return use_slot(f - PF)
    for ks in range(1, NK): bar[('wq', ks)] = first_read_slot(12*ks) - 1
    for kt in range(NT): bar[('k', kt)] = first_read_slot(240 + 12*kt) - 1
    vfirst = {}
    for mi, (G, kt, tp) in enumerate(VSEQ): vfirst.setdefault(4*G + (kt >> 2), mi)
    for st in range(12): bar[('v', st)] = first_read_slot(F_V + vfirst[st]) - 1
    for ks in range(4, NK):
        L, D = dma_wq(ks); wq_h[ks] = D[-1]
        lo = bar[('wq', ks-3)] + 1 if ks-3 >= 1 else 0
        grp.append((lo, lo + 44, L, D))
    HB = HS() - 1
    for ks in range(3, NK):
        L, D = load_h(ks); h_h[ks] = D[-1]
        lo = max(0, 48*(ks-HB))
        hi = lo + 44 if ks - HB >= 0 else 48*max(ks-3, 0) + 44
        grp.append((lo, hi, L, D))
    for kt in range(NT):
        L, D = dma_k(kt); k_h[kt] = D[-1]
        if kt < 3: lo = 48*(16+kt) + 8; hi = lo + 38
        elif kt == 3: lo = bar[('k', 0)] + 1; hi = lo + 12
        else: lo = bar[('k', kt-3)] + 1; hi = lo + 20
        grp.append((lo, hi, L, D))
    for st in range(12):
        L, D = dma_v(st); v_h[st] = D[-1]
        if st < 3: lo = p2_0 + 24*(NT-4+st) + 1; hi = lo + 20
        else: lo = bar[('v', st-2)] + 1; hi = lo + 40
        grp.append((lo, hi, L, D))
    placed = space_vm(grp, 4, nslots)
    streams_vm = {}
    seen = {}
    for slot, pre, op, gi in placed:
        key = 'h' if op.kind == 'vload' else 'dma'
        if seen.get(key) != gi:
            assert (key, gi) not in seen, "groups interleave"
            seen[(key, gi)] = True; seen[key] = gi
    for slot, pre, op, gi in placed:
        key = 'h' if op.kind == 'vload' else 'dma'
        st_ = streams_vm.setdefault(key, [])
        if OPT.get('novm'): continue
        for x in pre: st_.append((x, slot-3, slot))
        st_.append((op, slot, slot+int(OPT.get('vmslack', 3))))
    s_rd, s_w = [], []
    vopen = {mi: st for st, mi in vfirst.items()}
    last_read = dict(H['tr'])
    for f in range(PF, F_END):
        lo = use_slot(f - PF)
        key = None
        if f < 240 and f % 12 == 0: key = ('wq', f // 12); hh = wq_h[f // 12]
        elif 240 <= f < F_V and (f-240) % 12 == 0: key = ('k', (f-240)//12); hh = k_h[(f-240)//12]
        elif f >= F_V and (f-F_V) in vopen: key = ('v', vopen[f-F_V]); hh = v_h[vopen[f-F_V]]
        if key:
            if not OPT.get('novm'): s_rd.append((WaitVM(hh), lo-1, lo-1))
            if not OPT.get('nobar'): s_rd.append((Ins("s_barrier"), lo-1, lo-1))
        rr = reads(f)
        nxt = use_slot(f - PF + 1) if f - PF + 1 < F_END else lo + 4
        if len(rr) == 2:
            s2 = lo + 1 if nxt - lo >= 2 else lo
            s_rd.append((rr[0], lo, lo)); s_rd.append((rr[1], s2, s2))
        else:
            s_rd.append((rr[0], lo, lo))
        last_read[f] = rr[-1]
    for f in range(F_END):
        u = use_slot(f)
        s_w.append((WaitLGKM(last_read[f]), u-1, u-1))
    s_wh = [(WaitVM(h_h[ks]), 48*ks-1, 48*ks-1) for ks in range(NK)] if not OPT.get('novm') else []
    s_v = []
    s_p3 = [(x, 0, 80) for x in prologue3() + touch_setup()]
    for t in range(12):
        e_ = 48*19 + 4*t + 5
        dl = p2_0 + 2*t - 2
        for x in q_convert_tile(t): s_v.append((x, e_, max(e_, dl)))
    for x in phase3_setup(): s_v.append((x, p2_0 + 4, p2_0 + 20))
    for vt in range(NT):
        e_ = p2_0 + 24*(vt+1) + 1
        dl = e_ + 22 if vt < NT-1 else kstart[(0, 2)]
        if safe and vt < 16: work = max_stream(vt)
        elif safe: work = softmax_stream2(vt-16, vt, sub=True)
        else: work = softmax_stream2(vt)
        for x in work: s_v.append((x, e_, dl))
    for G in range(3):
        if G == 0:
            epi = [Ins(f"v_rcp_f32 v{RINV+ct}, v{LACC+4*ct}") for ct in range(4)]
            if not safe:
                epi.append(Ins(f"s_mov_b64 s[{sOK}:{sOK+1}], -1"))
                for ct in range(4):
                    epi += [Ins(f"v_cmp_le_f32 vcc, 0x1f800000, v{LACC+4*ct}"), Ins(f"s_and_b64 s[{sOK}:{sOK+1}], s[{sOK}:{sOK+1}], vcc"),
                            Ins(f"v_cmp_ge_f32 vcc, 0x62800000, v{LACC+4*ct}"), Ins(f"s_and_b64 s[{sOK}:{sOK+1}], s[{sOK}:{sOK+1}], vcc")]
            epi += o_epilogue(0)
        elif G == 1: epi = o_epilogue(1)
        else: break
        e0 = kstart[(G+1, 0)] + 3; e1 = kstart[(G+1, 15)]
        for j, x in enumerate(epi):
            ee = e0 + (j*(e1-e0))//len(epi)
            s_v.append((x, ee, e1 + 12))
    epi2 = o_epilogue(2)
    half = len(epi2) // 2
    e0 = lastfrag[(2, 1)] + 4; e1 = nslots - 6
    for j_, x in enumerate(epi2[:half]):
        s_v.append((x, e0 + (j_*(e1-e0))//half, nslots - 1))
    s_pf = []
    plan = OPT.get('touchplan')
    if plan is None:
        plan = [('k', 0, 48*2), ('k', 1, 48*4), ('k', 2, 48*6), ('v', 0, 48*8), ('v', 1, 48*10), ('v', 2, 48*12),
                ('wg', 0, 48*14), ('wu', 0, 48*16), ('wd', 0, p2_0 + 24*0),
                ('wo', 0, p2_0 + 24*1), ('wo', 1, p2_0 + 24*2), ('wo', 2, p2_0 + 24*3), ('wo', 3, p2_0 + 24*4),
                ('wo', 4, p2_0 + 24*5), ('wo', 5, p2_0 + 24*6), ('wo', 6, p2_0 + 24*7), ('wo', 7, p2_0 + 24*8)]
    if OPT.get('notouch') or safe: plan = []
    for kind, i, slot in plan:
        for x in touch16(kind, i, 'a191' if slot < p2_0 else 'v1'): s_pf.append((x, slot + 20, slot + 40))
    s_st = []
    if OPT.get('stamps_in') and not safe:
        pts = [48*10, p2_0, p2_0 + 24*8, p3_0, kstart[(1, 0)], kstart[(2, 0)]]
        for i, sl in enumerate(pts): s_st.append((Ins(f"s_memtime s[{sTS+2*(i+2)}:{sTS+2*(i+2)+1}]"), sl-1, sl-1))
    streams = [s_w, s_wh, s_rd] + list(streams_vm.values()) + [s_p3, s_v, s_pf, s_st]
    P.many(weave(bb, streams))
    P.many(epi2[half:])
    P.last_o_store = epi2[-1]
    return p2_0, p3_0

def pf_v():
    return [Ins(f"s_mul_i32 s{sT0}, s25, 24576"), Ins(f"s_mul_i32 s{sT1}, s26, 6144"), Ins(f"s_add_u32 s{sT0}, s{sT0}, s{sT1}"),
            Ins(f"s_add_u32 s{sT0}, s{sT0}, {BIAS}"), Ins(f"v_lshlrev_b32 v{PFA}, 7, v0"), Ins(f"v_add_u32 v{PFA}, s{sT0}, v{PFA}"),
            NT(f"buffer_load_dword a191, v{PFA}, s[{sV}:{sV+3}], 0 offen")]
def pf_k():
    return [Ins(f"s_mul_i32 s{sT0}, s25, 24576"), Ins(f"s_mul_i32 s{sT1}, s26, 6144"), Ins(f"s_add_u32 s{sT0}, s{sT0}, s{sT1}"),
            Ins(f"s_add_u32 s{sT0}, s{sT0}, {BIAS}"), Ins(f"v_lshlrev_b32 v{PFA}, 7, v0"), Ins(f"v_add_u32 v{PFA}, s{sT0}, v{PFA}"),
            NT(f"buffer_load_dword a191, v{PFA}, s[{sK}:{sK+3}], 0 offen")]
def pf_wo2():
    return [Ins(f"s_lshl_b32 s{sT0}, s2, 2"), Ins(f"s_add_u32 s{sT0}, s{sT0}, s26"), Ins(f"s_mul_i32 s{sT1}, s{sT0}, 7680"),
            Ins(f"v_lshlrev_b32 v{PFA}, 7, v0"), Ins(f"v_add_u32 v{PFA}, s{sT1}, v{PFA}"),
            NT(f"buffer_load_dword a191, v{PFA}, s[52:55], 0 offen")]
def pf_w3():
    L = [Ins(f"s_lshl_b32 s{sT0}, s2, 2"), Ins(f"s_add_u32 s{sT0}, s{sT0}, s26"), Ins(f"s_mul_i32 s{sT1}, s{sT0}, 1920"),
         Ins(f"v_lshlrev_b32 v{PFA}, 7, v0"), Ins(f"v_add_u32 v{PFA}, s{sT1}, v{PFA}"),
         Ins(f"v_cmp_gt_u32 vcc, 15, v0"), Ins(f"v_mov_b32 v59, 0x7ff00000"), Ins("s_nop 0"), Ins(f"v_cndmask_b32 v{PFA}, v59, v{PFA}, vcc")]
    for srd_ in (56, 60, 64): L.append(NT(f"buffer_load_dword a191, v{PFA}, s[{srd_}:{srd_+3}], 0 offen"))
    return L
PFA = 27
TOUCH = dict(v=pf_v, k=pf_k, wo=pf_wo2, w3=pf_w3)

def guard_branch(P):
    e = P.e
    e(f"s_cmp_eq_u64 s[{sOK}:{sOK+1}], -1"); e("s_cselect_b32 s3, 0, 1")
    e("s_barrier")
    e("v_mov_b32 v28, s3"); e("s_lshl_b32 s3, s26, 2"); e("v_mov_b32 v29, s3")
    e("ds_write_b32 v29, v28")
    e("s_waitcnt lgkmcnt(0)"); e("s_barrier")
    e("v_mov_b32 v29, 0")
    e("ds_read_b128 v[32:35], v29")
    e("v_or3_b32 v32, v32, v33, v34"); e("v_or_b32 v32, v32, v35")
    e("v_readfirstlane_b32 s3, v32")
    e("s_cmp_eq_u32 s3, 0"); e("s_cbranch_scc0 K2_SAFE")

def safe_entry(P):
    e = P.e
    e("K2_SAFE:")
    e("s_waitcnt vmcnt(0)"); e("s_barrier")
    e("s_lshl_b32 s3, s26, 6"); e("v_add_u32 v0, s3, v0")

def main_pro(P, H, safe=False, mono=False):
    H['wq'] = {}; H['h'] = {}; H['tr'] = {}
    if mono and not safe:
        for ks in range(4):
            L, D = dma_wq(ks)
            P.many(L); P.many(D); H['wq'][ks] = D[-1]
            if ks == 0: prologue2(P)
        r = lambda t: P.e(RAW(t))
        P.e("s_load_dwordx2 s[84:85], s[0:1], 96"); P.e("s_waitcnt lgkmcnt(0)")
        P.e("s_mov_b32 s86, 256"); P.e("s_mov_b32 s87, 0x20000")
        r("s_cmp_lg_u32 s26, 0"); r("s_cbranch_scc1 K2_HB")
        r("s_mov_b64 exec, 1"); r("s_mov_b32 s32, 0"); r("v_mov_b32 v28, 8")
        r("K2_TP:")
        r("buffer_load_dword v29, v28, s[84:87], 0 offen sc1")
        r("s_waitcnt vmcnt(0)")
        r("v_readfirstlane_b32 s33, v29"); r("s_add_u32 s32, s32, 1"); r("s_nop 2")
        r("s_cmp_lg_u32 s33, 0"); r("s_cbranch_scc1 K2_TD")
        r("s_sleep 8")
        r("s_cmp_lt_u32 s32, 0x4000"); r("s_cbranch_scc1 K2_TP")
        r("K2_TD:")
        r(f"s_lshl_b32 s3, s25, 7"); r(f"s_add_u32 s3, s3, {WS_CNT + 16384}"); r("v_mov_b32 v28, s3"); r("s_mov_b32 s32, 0")
        r("K2_HP:")
        r(f"buffer_load_dword v29, v28, s[{sWS}:{sWS+3}], 0 offen sc1")
        r("s_waitcnt vmcnt(0)")
        r("v_readfirstlane_b32 s3, v29"); r("s_add_u32 s32, s32, 1"); r("s_nop 2")
        r("s_cmp_eq_u32 s3, s33"); r("s_cbranch_scc1 K2_HD")
        r("s_sleep 2")
        r("s_cmp_lt_u32 s32, 0x4000"); r("s_cbranch_scc1 K2_HP")
        r("K2_HD:")
        r("s_mov_b64 exec, -1")
        r("K2_HB:")
        P.e("s_barrier")
        for ks in range(3):
            L, D = load_h(ks)
            P.many(L); P.many(D); H['h'][ks] = D[-1]
    else:
      for ks in range(4):
        L, D = dma_wq(ks)
        P.many(L); P.many(D); H['wq'][ks] = D[-1]
        if ks < 3:
            L, D = load_h(ks)
            P.many(L); P.many(D); H['h'][ks] = D[-1]
        if ks == 0: prologue2(P)
    if not safe: code_prefetch(P, 49152)
    P.wait_vm(H['wq'][0])
    P.e("s_barrier")
    for n in range(4):
        rr = tr_wq(n); P.many(rr); H['tr'][n] = rr[-1]

def phase1_pro(P, handles):
    for ks in range(4):
        L, D = dma_wq(ks)
        P.many(L); P.many(D)
        handles['wq'][ks] = D[-1]
        if ks < 3:
            L, D = load_h(ks)
            P.many(L); P.many(D)
    if OPT.get('pf', 'loop') == 'pro':
        P.many(pf_kv()); P.many(pf_weights())
    P.wait_vm(handles['wq'][0])
    P.e("s_barrier")
    for n in range(4):
        P.many(tr_wq(n))

def q_convert(P):
    for t in range(12):
        for cb in range(2):
            x = QACC + (4*t + 2*cb)*4; y = x + 4
            d = QF + 8*t + 4*cb
            P.e(f"v_cvt_pk_bf16_f32 v{d}, v{x}, v{x+1}")
            P.e(f"v_cvt_pk_bf16_f32 v{d+1}, v{x+2}, v{x+3}")
            P.e(f"v_cvt_pk_bf16_f32 v{d+2}, v{y}, v{y+1}")
            P.e(f"v_cvt_pk_bf16_f32 v{d+3}, v{y+2}, v{y+3}")
        for cb in range(2):
            d = QF + 8*t + 4*cb
            P.e(f"v_permlane16_swap_b32 v{d}, v{d+2}")
            P.e(f"v_permlane16_swap_b32 v{d+1}, v{d+3}")

def dump_regs(P, regs, base_off):
    n = len(regs)
    P.e(f"s_lshl_b32 s3, s2, 2"); P.e("s_add_u32 s3, s3, s26")
    P.e(f"s_mul_i32 s3, s3, {n*256}"); P.e(f"s_add_u32 s3, s3, {base_off}")
    P.e(f"v_lshlrev_b32 v{vT0}, 2, v0"); P.e(f"v_add_u32 v{vT0}, s3, v{vT0}")
    for i, r in enumerate(regs):
        if r[0] == 'a':
            P.e(f"v_accvgpr_read_b32 v{vT1}, a{r[1]}")
            src = vT1
        else:
            src = r[1]
        P.e(f"s_mov_b32 s3, {i*256}")
        P.e(f"buffer_store_dword v{src}, v{vT0}, s[{sWS}:{sWS+3}], s3 offen")
        if r[0] == 'a': P.e("s_waitcnt vmcnt(0)")

def stamp(P, idx):
    P.e(f"s_memtime s[{sTS+2*idx}:{sTS+2*idx+1}]")

def write_stamps(P, n):
    P.e("s_waitcnt lgkmcnt(0)")
    P.e(f"s_lshl_b32 s3, s2, 2"); P.e("s_add_u32 s3, s3, s26"); P.e("s_lshl_b32 s3, s3, 6"); P.e(f"s_add_u32 s3, s3, {WS_STAMP}")
    for i in range(n):
        P.e(f"v_mov_b32 v{vT1}, s{sTS+2*i}")
        P.e(f"v_mov_b32 v{vT0}, s3")
        P.e(f"buffer_store_dword v{vT1}, v{vT0}, s[{sWS}:{sWS+3}], 0 offen offset:{4*i}")
        P.e("s_waitcnt vmcnt(0)")

KD = """.section .rodata,"a"
.p2align 6
.amdhsa_kernel {name}
  .amdhsa_next_free_vgpr {vgpr}
  .amdhsa_next_free_sgpr 102
  .amdhsa_accum_offset {acc}
  .amdhsa_group_segment_fixed_size 0
  .amdhsa_kernarg_size 112
  .amdhsa_user_sgpr_count 2
  .amdhsa_user_sgpr_kernarg_segment_ptr 1
  .amdhsa_system_sgpr_workgroup_id_x 1
.end_amdhsa_kernel
"""

def wrap(kernels, launches, tail_text=""):
    s = ""
    for nm, g, b, l in launches:
        s += f"; @launch kernel={nm} grid=({g},1,1) block=({b},1,1) lds={l}\n"
    s += '.amdgcn_target "amdgcn-amd-amdhsa--gfx950"\n.text\n' + MACROS
    for nm, txt, vg, ac in kernels:
        s += f".globl {nm}\n.p2align 8\n.type {nm},@function\n{nm}:\n{txt}"
    s += "K_TEXT_END:\n" + tail_text
    for nm, txt, vg, ac in kernels:
        s += KD.format(name=nm, vgpr=vg, acc=ac)
    return s

def code_prefetch(P, nbytes):
    P.e("s_getpc_b64 s[48:49]")
    P.e(f"v_lshlrev_b32 v{vT0}, 2, v0")
    P.e(f"s_lshl_b32 s3, s26, 8"); P.e(f"v_add_u32 v{vT0}, s3, v{vT0}")
    P.e(f"v_lshlrev_b32 v{vT0}, 4, v{vT0}")
    for off in range(0, nbytes, 16384):
        P.e(NT(f"global_load_dword v{vT1}, v{vT0}, s[48:49]"))
        P.e(f"v_add_u32 v{vT0}, 16384, v{vT0}")

def build_p1(fname):
    P = Prog()
    H = {'wq': {}, 'k': {}, 'v': {}}
    prologue(P, stamps=False)
    if OPT['pfcode']: code_prefetch(P, 16384)
    stamp(P, 0)
    phase1_pro(P, H)
    stamp(P, 1)
    phase1(P, H)
    stamp(P, 2)
    q_convert(P)
    stamp(P, 3)
    P.e("s_waitcnt vmcnt(0)")
    dump_regs(P, [('v', QF+i) for i in range(96)], WS_DBG)
    write_stamps(P, 4)
    P.e("K2_END:")
    P.e("s_endpgm")
    P.finalize()
    print("estimate", P.estimate(), "nops", P.nops, "ninstr", len(P.final))
    open(fname, "w").write(wrap([("k2_kernel", P.text(), 512, 256)], [("k2_kernel", 256, 256, LDS_BYTES)]))

def build_full(fname, dump_p=False):
    OPT.update(dict(dma=True, hload=True, barrier=True, tr=True, pfcode=True, p2=True))
    P = Prog()
    H = {'wq': {}, 'k': {}, 'v': {}}
    prologue(P, stamps=False)
    code_prefetch(P, 49152)
    stamp(P, 0)
    phase1_pro(P, H)
    stamp(P, 1)
    phase1(P, H)
    stamp(P, 2)
    q_convert(P)
    P.many(phase3_setup())
    stamp(P, 3)
    phase2(P, H)
    stamp(P, 4)
    phase3(P, H)
    stamp(P, 5)
    P.e("s_waitcnt vmcnt(0)")
    stamp(P, 6)
    if dump_p:
        regs = []
        for kt in range(16):
            for ct in range(4):
                p = P_reg(kt, ct)
                regs += [(p[0], p[1]+i) for i in range(4)]
        regs += [('v', LACC+i) for i in range(16)]
        dump_regs(P, regs, WS_DBG)
    write_stamps(P, 7)
    P.e("K2_END:")
    P.e("s_endpgm")
    P.finalize()
    print("estimate", P.estimate(), "nops", P.nops, "ninstr", len(P.final))
    open(fname, "w").write(wrap([("k2_kernel", P.text(), 512, 256)], [("k2_kernel", 256, 256, LDS_BYTES)]))

if __name__ == "__main__":
    import sys
    if len(sys.argv) > 1 and sys.argv[1] == "full":
        build_full("k2_full.s", dump_p=True)
        build_full("k2_fast.s", dump_p=False)
        sys.exit(0)
    build_p1("k2_p1.s")
    for nm, o in [("a", dict(dma=False, hload=False, barrier=False)), ("b", dict(dma=False, hload=True, barrier=False)),
                  ("c", dict(dma=True, hload=False, barrier=False)), ("d", dict(dma=True, hload=True, barrier=False)),
                  ("e", dict(dma=False, hload=False, barrier=True)), ("f", dict(dma=True, hload=True, barrier=True, pfcode=True)),
                  ("g", dict(dma=False, hload=False, barrier=False, tr=False))]:
        OPT.update(dict(dma=True, hload=True, barrier=True, tr=True, pfcode=False)); OPT.update(o)
        build_p1(f"k2_p1{nm}.s")
```

```python
from asmgen import *
from k2gen import WS_MOD, WS_HF, WS_OF, WS_PART, WS_X1, WS_H2F, WS_ACT, WS_BYTES, WS_WD, WS_WGU, WS_CNT
C_SCALE = 192**-0.5 * 1.4426950408889634
import struct
def f2u(x): return struct.unpack('<I', struct.pack('<f', x))[0]

NSPLIT = 4

def srd(P, s, lo, hi, nbytes):
    P.e(f"s_mov_b32 s{s}, s{lo}"); P.e(f"s_mov_b32 s{s+1}, s{hi}")
    P.e(f"s_mov_b32 s{s+2}, {nbytes}"); P.e(f"s_mov_b32 s{s+3}, 0x20000")

def pf_role(P, name, nmain, npf, ranges):
    e = P.e
    e(f"{name}_PF:")
    e(f"s_cmp_ge_u32 s2, {nmain+npf}"); e(f"s_cbranch_scc1 {name}_END")
    e(f"s_sub_u32 s20, s2, {nmain}")
    e("v_lshlrev_b32 v1, 4, v0")
    for ri, (ko, boff, nbytes, total) in enumerate(ranges):
        per = -(-nbytes // (npf*4096))*4096
        e(f"s_load_dwordx2 s[4:5], s[0:1], {ko}")
        e("s_waitcnt lgkmcnt(0)")
        e("s_mov_b32 s8, s4"); e("s_mov_b32 s9, s5"); e(f"s_mov_b32 s10, {min(total, boff+nbytes)}"); e("s_mov_b32 s11, 0x20000")
        e(f"s_mul_i32 s21, s20, {per}"); e(f"s_add_u32 s21, s21, {boff}")
        for i in range(per // 4096):
            e(NT(f"buffer_load_dwordx4 v[4:7], v1, s[8:11], s21 offen"))
            e("s_add_u32 s21, s21, 4096")
    e("s_endpgm")

def pf_role_kv(P, name, nmain, npf, kos):
    e = P.e
    parts = npf // 32
    per = 196608 // parts
    e(f"s_sub_u32 s20, s2, {nmain}")
    e("s_and_b32 s22, s20, 31"); e("s_lshr_b32 s23, s20, 5")
    e(f"s_mul_i32 s22, s22, 786432"); e(f"s_mul_i32 s23, s23, {per}"); e("s_add_u32 s22, s22, s23"); e("s_add_u32 s22, s22, 589824")
    for ko in kos:
        e(f"s_load_dwordx2 s[4:5], s[0:1], {ko}")
        e("s_waitcnt lgkmcnt(0)")
        e("s_mov_b32 s8, s4"); e("s_mov_b32 s9, s5"); e(f"s_mov_b32 s10, 25165824"); e("s_mov_b32 s11, 0x20000")
        e("s_mov_b32 s21, s22")
        for i in range(per // 4096):
            e(NT(f"buffer_load_dwordx4 v[4:7], v1, s[8:11], s21 offen"))
            e("s_add_u32 s21, s21, 4096")

def gen_k0(prefetch=True):
    P = Prog(); e = P.e
    NWG = 30*NSPLIT
    e(f"s_cmp_ge_u32 s2, {NWG}"); e("s_cbranch_scc1 K0_PF")
    e("s_load_dwordx4 s[4:7], s[0:1], 72")
    e("s_load_dwordx2 s[16:17], s[0:1], 104")
    e("s_load_dwordx2 s[18:19], s[0:1], 24")
    e(f"s_mul_i32 s3, s2, {(65536+29)//30}"); e("s_lshr_b32 s20, s3, 16")
    e("s_mul_i32 s3, s20, 30"); e("s_sub_u32 s21, s2, s3")
    e("v_and_b32 v1, 15, v0")
    e("v_lshrrev_b32 v2, 4, v0")
    e(f"s_mul_i32 s3, s20, {640//NSPLIT}")
    e("v_add_u32 v3, s3, v2")
    e("v_lshlrev_b32 v4, 1, v3")
    e("s_mov_b32 s22, 7680")
    e("v_mul_lo_u32 v5, v3, s22")
    e("v_lshlrev_b32 v6, 4, v1")
    e("v_add_u32 v5, v5, v6")
    e("s_lshl_b32 s3, s21, 8"); e("v_add_u32 v5, s3, v5")
    e("s_waitcnt lgkmcnt(0)")
    srd(P, 8, 4, 5, 1280); srd(P, 12, 6, 7, 640*3840*2); srd(P, 24, 16, 17, WS_BYTES); srd(P, 28, 18, 19, 7864320)
    NR = 160//16
    for i in range(NR):
        e(f"buffer_load_ushort v{10+i}, v4, s[8:11], 0 offen offset:{32*i}")
    e(f"s_mov_b32 s23, 0")
    for i in range(NR):
        e(f"s_mov_b32 s23, {16*7680*i}")
        e(f"buffer_load_dwordx4 v[{24+4*i}:{27+4*i}], v5, s[12:15], s23 offen")
    for i in range(NR):
        r = 10+i
        e(f"v_lshlrev_b32 v{r}, 16, v{r}")
        e(f"v_mul_f32 v9, {f2u(-1.4426950408889634)}, v{r}")
        e("v_exp_f32 v9, v9")
        e("v_add_f32 v9, 1.0, v9")
        e("v_rcp_f32 v9, v9")
        e(f"v_mul_f32 v{r}, v{r}, v9")
        e(f"v_cvt_pk_bf16_f32 v{r}, v{r}, v{r}")
        e(f"v_and_b32 v{r}, 0xffff0000, v{r}")
    for j in range(8): e(f"v_mov_b32 v{70+j}, 0")
    for i in range(NR):
        for q in range(4):
            w = 24+4*i+q
            e(f"v_lshlrev_b32 v68, 16, v{w}")
            e(f"v_and_b32 v69, 0xffff0000, v{w}")
            e(f"v_fmac_f32 v{70+2*q}, v{10+i}, v68")
            e(f"v_fmac_f32 v{71+2*q}, v{10+i}, v69")
    e("v_lshlrev_b32 v6, 5, v1")
    e("v_lshlrev_b32 v7, 9, v2")
    e("v_add_u32 v6, v6, v7")
    e("ds_write_b128 v6, v[70:73]"); e("ds_write_b128 v6, v[74:77] offset:16")
    e("s_waitcnt lgkmcnt(0)"); e("s_barrier")
    e("v_cmp_gt_u32 vcc, 128, v0")
    e("s_and_saveexec_b64 s[32:33], vcc")
    e("s_cbranch_execz K0_END")
    e("v_lshlrev_b32 v6, 2, v0")
    for r in range(16): e(f"ds_read_b32 v{30+r}, v6 offset:{512*r}")
    for r in range(1, 16): e(f"v_add_f32 v30, v30, v{30+r}")
    e("s_mul_i32 s3, s20, 15360"); e("s_lshl_b32 s23, s21, 9"); e("s_add_u32 s3, s3, s23"); e(f"s_add_u32 s3, s3, {WS_MOD}")
    e("v_add_u32 v6, s3, v6")
    e("buffer_store_dword v30, v6, s[24:27], 0 offen")
    e("K0_END:")
    e("s_endpgm")
    pf_role(P, "K0", NWG, 128, [(24, 0, 7864320, 7864320)])
    P.finalize()
    return P

def load_mod_to_lds(P, idx_list, scale_fn, tid='v0', tbase=20, lds_base=0, store_idx={}):
    e = P.e
    e(f"v_lshlrev_b32 v{tbase}, 4, {tid}")
    r = tbase+4
    for n, idx in enumerate(idx_list):
        for p in range(NSPLIT):
            off = WS_MOD + (p*3840 + idx*640)*4
            e(f"s_mov_b32 s34, {off}")
            e(f"buffer_load_dwordx4 v[{r+(n*NSPLIT+p)*4}:{r+(n*NSPLIT+p)*4+3}], v{tbase}, s[24:27], s34 offen")
    for n, idx in enumerate(idx_list):
        b = r + n*NSPLIT*4
        for p in range(1, NSPLIT):
            for i in range(4): e(f"v_add_f32 v{b+i}, v{b+i}, v{b+4*p+i}")
        for i in range(4):
            e(f"v_cvt_pk_bf16_f32 v{b+i}, v{b+i}, v{b+i}")
            e(f"v_and_b32 v{b+i}, 0xffff0000, v{b+i}")
            scale_fn(P, n, b+i)
        if n in store_idx:
            e(f"s_mov_b32 s34, {store_idx[n]}")
            e(f"buffer_store_dwordx4 v[{b}:{b+3}], v{tbase}, s[24:27], s34 offen")
        else:
            e(f"ds_write_b128 v{tbase}, v[{b}:{b+3}] offset:{lds_base + n*4096}")

def row_reduce(P, val, red_base, tmp, addr_w, addr_r):
    e = P.e
    e(f"ds_write_b32 v{addr_w}, v{val} offset:{red_base}")
    e("s_waitcnt lgkmcnt(0)"); e("s_barrier")
    for q in range(4): e(f"ds_read_b128 v[{tmp+4*q}:{tmp+4*q+3}], v{addr_r} offset:{red_base+16*q}")
    e(f"v_add_f32 v{val}, v{tmp}, v{tmp+1}")
    for i in range(2, 16): e(f"v_add_f32 v{val}, v{val}, v{tmp+i}")

def ln_common(P, X, n, a1_lds, a0_lds, out_regs, w_sgpr, eps=1e-5):
    e = P.e
    RED0, RED1 = 12288, 13312
    e("v_lshlrev_b32 v4, 6, v2"); e("v_lshlrev_b32 v5, 2, v3"); e("v_add_u32 v5, v4, v5")
    e(f"s_lshl_b32 s3, s{w_sgpr}, 4"); e("v_add_u32 v5, s3, v5")
    e(f"v_add_f32 v6, v{X}, v{X+1}")
    for i in range(2, n): e(f"v_add_f32 v6, v6, v{X+i}")
    T = 200
    row_reduce(P, 6, RED0, T, 5, 4)
    e(f"v_mul_f32 v6, {f2u(1/640)}, v6")
    for i in range(n): e(f"v_sub_f32 v{X+i}, v{X+i}, v6")
    e(f"v_mul_f32 v7, v{X}, v{X}")
    for i in range(1, n): e(f"v_fmac_f32 v7, v{X+i}, v{X+i}")
    row_reduce(P, 7, RED1, T, 5, 4)
    e(f"v_mul_f32 v7, {f2u(1/640)}, v7")
    e(f"v_add_f32 v7, {f2u(eps)}, v7")
    e("v_rsq_f32 v7, v7")
    e(f"s_mul_i32 s3, s{w_sgpr}, {5*32*4}")
    e("v_lshlrev_b32 v8, 4, v3"); e("v_add_u32 v8, s3, v8")
    for j in range(5):
        for hh in range(2):
            off = j*128 + hh*64
            e(f"ds_read_b128 v[{T}:{T+3}], v8 offset:{a1_lds+off}")
            e(f"ds_read_b128 v[{T+4}:{T+7}], v8 offset:{a0_lds+off}")
            b = X + j*8 + hh*4
            for i in range(4):
                e(f"v_mul_f32 v{b+i}, v{b+i}, v7")
                e(f"v_fma_f32 v{b+i}, v{b+i}, v{T+i}, v{T+4+i}")
            e(f"v_cvt_pk_bf16_f32 v{out_regs+j*4+hh*2}, v{b}, v{b+1}")
            e(f"v_cvt_pk_bf16_f32 v{out_regs+j*4+hh*2+1}, v{b+2}, v{b+3}")

def load_x_pieces(P, X, raw, srd_x):
    e = P.e
    for j in range(5):
        for hh in range(2):
            e(f"buffer_load_dwordx2 v[{raw+(j*2+hh)*2}:{raw+(j*2+hh)*2+1}], v9, s[{srd_x}:{srd_x+3}], 0 offen offset:{j*64+hh*32}")

def unpack_x(P, X, raw):
    e = P.e
    for j in range(10):
        for q in range(2):
            e(f"v_lshlrev_b32 v{X+j*4+q*2}, 16, v{raw+j*2+q}")
            e(f"v_and_b32 v{X+j*4+q*2+1}, 0xffff0000, v{raw+j*2+q}")

def gen_k1(prefetch=True):
    P = Prog(); e = P.e
    e("s_cmp_ge_u32 s2, 128"); e("s_cbranch_scc1 K1_PF")
    e("s_load_dwordx2 s[4:5], s[0:1], 0")
    e("s_load_dwordx2 s[16:17], s[0:1], 104")
    e("v_lshrrev_b32 v1, 6, v0"); e("v_and_b32 v10, 63, v0")
    e("v_readfirstlane_b32 s20, v1")
    e("v_and_b32 v2, 15, v10"); e("v_lshrrev_b32 v3, 4, v10")
    e("s_lshl_b32 s3, s2, 4"); e("v_add_u32 v9, s3, v2"); e("v_mul_u32_u24 v9, 1280, v9")
    e("v_lshlrev_b32 v11, 3, v3"); e("v_add_u32 v9, v9, v11")
    e("s_mul_i32 s3, s20, 320"); e("v_add_u32 v9, s3, v9")
    e("s_waitcnt lgkmcnt(0)")
    srd(P, 8, 4, 5, 2048*1280); srd(P, 24, 16, 17, WS_BYTES)
    X = 100; RAW = 60
    load_x_pieces(P, X, RAW, 8)
    def sc(P, n, r):
        if n == 0:
            P.e(f"v_mul_f32 v{r}, {f2u(C_SCALE)}, v{r}")
        else:
            P.e(f"v_add_f32 v{r}, 1.0, v{r}")
            P.e(f"v_mul_f32 v{r}, {f2u(C_SCALE)}, v{r}")
    load_mod_to_lds(P, [0, 1], sc)
    unpack_x(P, X, RAW)
    OUT = 160
    ln_common(P, X, 40, 4096, 0, OUT, 20)
    e("s_mul_i32 s3, s2, 20480"); e("s_mul_i32 s21, s20, 5120"); e("s_add_u32 s3, s3, s21"); e(f"s_add_u32 s3, s3, {WS_HF}")
    e("v_lshlrev_b32 v11, 4, v10"); e("v_add_u32 v11, s3, v11")
    for j in range(5):
        e(f"buffer_store_dwordx4 v[{OUT+4*j}:{OUT+4*j+3}], v11, s[24:27], 0 offen offset:{j*1024 if j<4 else 0}" if j < 4 else f"s_mov_b32 s21, 4096")
    e(f"buffer_store_dwordx4 v[{OUT+16}:{OUT+19}], v11, s[24:27], s21 offen")
    e("K1_END:")
    e("s_endpgm")
    e("K1_PF:")
    e("s_cmp_ge_u32 s2, 256"); e("s_cbranch_scc1 K1_END")
    e("v_lshlrev_b32 v1, 4, v0")
    pf_role_kv(P, "K1", 128, 128, [8, 16])
    e("s_endpgm")
    P.finalize()
    return P

def gen_k4(part_bf16=False, nsplit=4):
    P = Prog(); e = P.e
    e("s_cmp_ge_u32 s2, 128"); e("s_cbranch_scc1 K4_PF")
    e("s_load_dwordx2 s[4:5], s[0:1], 0")
    e("s_load_dwordx2 s[16:17], s[0:1], 104")
    e("v_lshrrev_b32 v1, 6, v0"); e("v_and_b32 v10, 63, v0")
    e("v_readfirstlane_b32 s20, v1")
    e("v_and_b32 v2, 15, v10"); e("v_lshrrev_b32 v3, 4, v10")
    e("s_lshl_b32 s3, s2, 4"); e("v_add_u32 v9, s3, v2"); e("v_mul_u32_u24 v9, 1280, v9")
    e("v_lshlrev_b32 v11, 3, v3"); e("v_add_u32 v9, v9, v11")
    e("s_mul_i32 s3, s20, 320"); e("v_add_u32 v9, s3, v9")
    e("s_mul_i32 s3, s2, 20480"); e("s_mul_i32 s21, s20, 5120"); e("s_add_u32 s3, s3, s21"); e(f"s_add_u32 s3, s3, {WS_PART}")
    e("v_lshlrev_b32 v12, 4, v10"); e("v_add_u32 v12, s3, v12")
    e("s_waitcnt lgkmcnt(0)")
    srd(P, 8, 4, 5, 2048*1280); srd(P, 24, 16, 17, WS_BYTES)
    X = 100; RAW = 60; PRAW = 140
    load_x_pieces(P, X, RAW, 8)
    def sc(P, n, r):
        if n == 2: P.e(f"v_add_f32 v{r}, 1.0, v{r}")
    load_mod_to_lds(P, [2, 3, 4, 5], sc, tbase=160, store_idx={3: WS_MOD + 0x20000})
    ACC = 20
    PR = 232 - 80
    for p in range(nsplit):
        for j in range(5):
            o = p*128*20480 + j*1024
            e(f"s_mov_b32 s21, {o}")
            e(f"buffer_load_dwordx4 v[{PRAW+p*20+4*j}:{PRAW+p*20+4*j+3}], v12, s[24:27], s21 offen")
    for p in range(nsplit):
        for q in range(20):
            r = PRAW + p*20 + q
            if p == 0:
                e(f"v_lshlrev_b32 v{ACC+2*q}, 16, v{r}"); e(f"v_and_b32 v{ACC+2*q+1}, 0xffff0000, v{r}")
            else:
                e(f"v_lshlrev_b32 v14, 16, v{r}"); e(f"v_and_b32 v15, 0xffff0000, v{r}")
                e(f"v_add_f32 v{ACC+2*q}, v{ACC+2*q}, v14"); e(f"v_add_f32 v{ACC+2*q+1}, v{ACC+2*q+1}, v15")
    unpack_x(P, X, RAW)
    e("s_waitcnt lgkmcnt(0)"); e("s_barrier")
    e(f"s_mul_i32 s3, s20, 640"); e("v_lshlrev_b32 v8, 4, v3"); e("v_add_u32 v8, s3, v8")
    T = 200
    OUTX = 160
    for j in range(10):
        e(f"ds_read_b128 v[{T}:{T+3}], v8 offset:{j*64}")
        for i in range(4):
            e(f"v_fma_f32 v{X+j*4+i}, v{ACC+j*4+i}, v{T+i}, v{X+j*4+i}")
        e(f"v_cvt_pk_bf16_f32 v{OUTX+j*2}, v{X+j*4}, v{X+j*4+1}")
        e(f"v_cvt_pk_bf16_f32 v{OUTX+j*2+1}, v{X+j*4+2}, v{X+j*4+3}")
        for q in range(2):
            e(f"v_lshlrev_b32 v{X+j*4+q*2}, 16, v{OUTX+j*2+q}")
            e(f"v_and_b32 v{X+j*4+q*2+1}, 0xffff0000, v{OUTX+j*2+q}")
    e("s_mul_i32 s3, s2, 20480"); e("s_mul_i32 s21, s20, 5120"); e("s_add_u32 s3, s3, s21")
    e("v_lshlrev_b32 v11, 4, v10"); e("v_add_u32 v11, s3, v11")
    for j in range(5):
        e(f"s_mov_b32 s21, {WS_X1 + j*1024}")
        e(f"buffer_store_dwordx4 v[{OUTX+4*j}:{OUTX+4*j+3}], v11, s[24:27], s21 offen")
    OUT = 20
    ln_common(P, X, 40, 2*4096, 1*4096, OUT, 20)
    for j in range(5):
        e(f"s_mov_b32 s21, {WS_H2F + j*1024}")
        e(f"buffer_store_dwordx4 v[{OUT+4*j}:{OUT+4*j+3}], v11, s[24:27], s21 offen")
    e("K4_END:")
    e("s_endpgm")
    pf_role(P, "K4", 128, 128, [(48, 0, 1966080, 1966080), (56, 0, 1966080, 1966080), (64, 0, 1966080, 1966080)])
    P.finalize()
    return P

WS_MODF = WS_MOD + 0x10000
NGEMV = 30*NSPLIT
NLN = 128
N01 = NGEMV + NLN

SLEEP = 6
CODE_BYTES = 131072
DIAG = False
def gen_k01(pf=('wq',), npf=256):
    P = Prog(); e = P.e
    e("s_load_dwordx4 s[4:7], s[0:1], 72")
    e("s_load_dwordx4 s[16:19], s[0:1], 96")
    e("s_load_dwordx2 s[38:39], s[0:1], 0")
    e("s_load_dwordx2 s[40:41], s[0:1], 24")
    e("s_cmp_lt_u32 s2, 40"); e("s_cbranch_scc1 K01_GA")
    e("s_cmp_lt_u32 s2, 168"); e("s_cbranch_scc1 K01_LN")
    e("s_cmp_ge_u32 s2, 248"); e("s_cbranch_scc1 K01_END")
    e("s_sub_u32 s3, s2, 168"); e(f"s_mul_i32 s20, s3, {(65536+19)//20}"); e("s_lshr_b32 s20, s20, 16")
    e("s_mul_i32 s21, s20, 20"); e("s_sub_u32 s21, s3, s21"); e("s_add_u32 s21, s21, 10")
    e("s_branch K01_G")
    e("K01_GA:")
    e("s_and_b32 s20, s2, 3"); e("s_lshr_b32 s21, s2, 2")
    e("K01_G:")
    if DIAG: e("s_memrealtime s[60:61]")
    e("v_and_b32 v1, 15, v0"); e("v_lshrrev_b32 v2, 4, v0")
    e(f"s_mul_i32 s3, s20, {640//NSPLIT}")
    e("v_add_u32 v3, s3, v2"); e("v_lshlrev_b32 v4, 1, v3")
    e("s_mov_b32 s22, 7680"); e("v_mul_lo_u32 v5, v3, s22")
    e("v_lshlrev_b32 v6, 4, v1"); e("v_add_u32 v5, v5, v6")
    e("s_lshl_b32 s3, s21, 8"); e("v_add_u32 v5, s3, v5")
    e("s_waitcnt lgkmcnt(0)")
    srd(P, 8, 4, 5, 1280); srd(P, 12, 6, 7, 640*3840*2); srd(P, 24, 18, 19, WS_BYTES); srd(P, 28, 16, 17, 256)
    if DIAG: e("s_memrealtime s[62:63]")
    NR = 160//16
    for i in range(NR):
        e(f"s_mov_b32 s23, {16*7680*i}")
        e(f"buffer_load_dwordx4 v[{24+4*i}:{27+4*i}], v5, s[12:15], s23 offen")
    for i in range(NR):
        e(f"buffer_load_ushort v{10+i}, v4, s[8:11], 0 offen offset:{32*i}")
    for i in range(NR): e(f"v_lshlrev_b32 v{10+i}, 16, v{10+i}")
    for i in range(NR): e(f"v_mul_f32 v{80+i}, {f2u(-1.4426950408889634)}, v{10+i}")
    for i in range(NR): e(f"v_exp_f32 v{80+i}, v{80+i}")
    for i in range(NR): e(f"v_add_f32 v{80+i}, 1.0, v{80+i}")
    for i in range(NR): e(f"v_rcp_f32 v{80+i}, v{80+i}")
    for i in range(NR): e(f"v_mul_f32 v{10+i}, v{10+i}, v{80+i}")
    for i in range(NR): e(f"v_cvt_pk_bf16_f32 v{10+i}, v{10+i}, v{10+i}")
    for i in range(NR): e(f"v_lshrrev_b32 v{80+i}, 16, v{10+i}")
    for i in range(NR): e(f"v_and_b32 v{10+i}, 0xffff0000, v{10+i}")
    for j in range(8): e(f"v_mov_b32 v{70+j}, 0")
    for i in range(NR):
        for q in range(4):
            w = 24+4*i+q
            e(f"v_dot2c_f32_bf16 v{70+2*q}, v{w}, v{80+i}"); e(f"v_dot2c_f32_bf16 v{71+2*q}, v{w}, v{10+i}")
    if DIAG: e("s_memrealtime s[64:65]")
    e("v_lshlrev_b32 v6, 5, v1"); e("v_lshlrev_b32 v7, 9, v2"); e("v_add_u32 v6, v6, v7")
    e("ds_write_b128 v6, v[70:73]"); e("ds_write_b128 v6, v[74:77] offset:16")
    e("s_waitcnt lgkmcnt(0)"); e("s_barrier")
    e("v_cmp_gt_u32 vcc, 64, v0")
    e("s_and_saveexec_b64 s[32:33], vcc")
    e("s_cbranch_execz K01_PF")
    e("v_lshlrev_b32 v6, 3, v0")
    for r in range(16): e(f"ds_read_b64 v[{30+2*r}:{31+2*r}], v6 offset:{512*r}")
    for r in (8, 4, 2, 1):
        for q in range(r): e(f"v_pk_add_f32 v[{30+2*q}:{31+2*q}], v[{30+2*q}:{31+2*q}], v[{30+2*(q+r)}:{31+2*(q+r)}]")
    e("s_mul_i32 s3, s20, 15360"); e("s_lshl_b32 s23, s21, 9"); e("s_add_u32 s3, s3, s23"); e(f"s_add_u32 s3, s3, {WS_MOD}")
    e("v_add_u32 v6, s3, v6")
    e("buffer_store_dwordx2 v[30:31], v6, s[24:27], 0 offen sc1")
    e("s_waitcnt vmcnt(0)")
    if DIAG: e("s_memrealtime s[66:67]")
    e("s_cmp_ge_u32 s21, 10"); e("s_cbranch_scc1 K01_END")
    e("v_cmp_eq_u32 vcc, 0, v0")
    e("s_and_saveexec_b64 s[32:33], vcc")
    e("s_cbranch_execz K01_END")
    e("v_mov_b32 v7, 1"); e("v_mov_b32 v8, 0")
    e("buffer_atomic_add v7, v8, s[28:31], 0 offen sc0 sc1")
    e("s_waitcnt vmcnt(0)")
    if DIAG:
        e("s_memrealtime s[68:69]"); e("s_waitcnt lgkmcnt(0)")
        e("s_lshl_b32 s3, s2, 5"); e(f"s_add_u32 s3, s3, {0x5000000 + 0x80000}")
        for q in range(5): e(f"v_mov_b32 v{40+q}, s{60+2*q}")
        e("v_mov_b32 v46, s3")
        e("buffer_store_dwordx4 v[40:43], v46, s[24:27], 0 offen"); e("buffer_store_dword v44, v46, s[24:27], 0 offen offset:16")
    e("v_readfirstlane_b32 s22, v7"); e("s_nop 3")
    e(f"s_cmp_lg_u32 s22, {10*NSPLIT-1}"); e("s_cbranch_scc1 K01_END")
    e("v_mov_b32 v8, 128"); e("v_mov_b32 v7, 1")
    e("buffer_store_dword v7, v8, s[28:31], 0 offen sc1")
    e("K01_END:")
    e("s_endpgm")
    e("K01_LN:")
    e(f"s_sub_u32 s2, s2, 40")
    e("v_lshrrev_b32 v1, 6, v0"); e("v_and_b32 v10, 63, v0")
    e("v_readfirstlane_b32 s20, v1")
    e("v_and_b32 v2, 15, v10"); e("v_lshrrev_b32 v3, 4, v10")
    e("s_lshl_b32 s3, s2, 4"); e("v_add_u32 v9, s3, v2"); e("v_mul_u32_u24 v9, 1280, v9")
    e("v_lshlrev_b32 v11, 3, v3"); e("v_add_u32 v9, v9, v11")
    e("s_mul_i32 s3, s20, 320"); e("v_add_u32 v9, s3, v9")
    e("s_waitcnt lgkmcnt(0)")
    srd(P, 8, 38, 39, 2048*1280); srd(P, 24, 18, 19, WS_BYTES); srd(P, 28, 16, 17, 256)
    if DIAG: e("s_memrealtime s[60:61]")
    X = 100; RAW = 60; T = 200
    load_x_pieces(P, X, RAW, 8)
    e("s_cmp_lg_u32 s2, 0"); e("s_cbranch_scc1 K01_NOZ")
    e("v_min_u32 v12, 63, v0"); e("v_lshlrev_b32 v12, 7, v12"); e("v_mov_b32 v13, 0"); e(f"s_mov_b32 s21, {WS_CNT}")
    e("buffer_store_dword v13, v12, s[24:27], s21 offen sc1")
    e(f"s_mov_b32 s21, {WS_CNT + 8192}")
    e("buffer_store_dword v13, v12, s[24:27], s21 offen sc1")
    e("K01_NOZ:")
    unpack_x(P, X, RAW)
    RED0, RED1 = 12288, 13312
    e("v_lshlrev_b32 v4, 6, v2"); e("v_lshlrev_b32 v5, 2, v3"); e("v_add_u32 v5, v4, v5")
    e(f"s_lshl_b32 s3, s20, 4"); e("v_add_u32 v5, s3, v5")
    e(f"v_add_f32 v6, v{X}, v{X+1}")
    for i in range(2, 40): e(f"v_add_f32 v6, v6, v{X+i}")
    row_reduce(P, 6, RED0, T, 5, 4)
    e(f"v_mul_f32 v6, {f2u(1/640)}, v6")
    for i in range(40): e(f"v_sub_f32 v{X+i}, v{X+i}, v6")
    e(f"v_mul_f32 v7, v{X}, v{X}")
    for i in range(1, 40): e(f"v_fmac_f32 v7, v{X+i}, v{X+i}")
    row_reduce(P, 7, RED1, T, 5, 4)
    e(f"v_mul_f32 v7, {f2u(1/640)}, v7"); e(f"v_add_f32 v7, {f2u(1e-5)}, v7"); e("v_rsq_f32 v7, v7")
    e("s_nop 0")
    for i in range(40): e(f"v_mul_f32 v{X+i}, v{X+i}, v7")
    if DIAG: e("s_memrealtime s[62:63]")
    e("s_cmp_lg_u32 s20, 0"); e("s_cbranch_scc1 K01_GO")
    e("s_mov_b32 s35, 1")
    e("v_mov_b32 v12, 128"); e("s_mov_b32 s21, 0")
    e("K01_POLL:")
    e("buffer_load_dword v13, v12, s[28:31], 0 offen sc1")
    e("s_waitcnt vmcnt(0)")
    e("v_readfirstlane_b32 s22, v13")
    e("s_add_u32 s21, s21, 1")
    e(f"s_cmp_ge_u32 s22, s35"); e("s_cbranch_scc1 K01_GO")
    e(f"s_sleep {SLEEP}")
    e("s_cmp_lt_u32 s21, 0x4000"); e("s_cbranch_scc1 K01_POLL")
    e("K01_GO:")
    e("s_barrier")
    if DIAG: e("s_memrealtime s[64:65]")
    tb = 20
    e(f"v_lshlrev_b32 v{tb}, 4, v0"); e(f"v_min_u32 v{tb+2}, 2544, v{tb}")
    r = 24
    for n, idx in enumerate([0, 1]):
        for p in range(NSPLIT):
            e(f"s_mov_b32 s34, {WS_MOD + (p*3840 + idx*640)*4}")
            e(f"buffer_load_dwordx4 v[{r+(n*NSPLIT+p)*4}:{r+(n*NSPLIT+p)*4+3}], v{tb+2}, s[24:27], s34 offen sc1")
    for n in range(2):
        b = r + n*NSPLIT*4
        for p in range(1, NSPLIT):
            for i in range(4): e(f"v_add_f32 v{b+i}, v{b+i}, v{b+4*p+i}")
        for i in range(4):
            e(f"v_cvt_pk_bf16_f32 v{b+i}, v{b+i}, v{b+i}"); e(f"v_and_b32 v{b+i}, 0xffff0000, v{b+i}")
            if n == 1: e(f"v_add_f32 v{b+i}, 1.0, v{b+i}")
            e(f"v_mul_f32 v{b+i}, {f2u(C_SCALE)}, v{b+i}")
        e(f"ds_write_b128 v{tb}, v[{b}:{b+3}] offset:{n*4096}")
    e("s_waitcnt lgkmcnt(0)"); e("s_barrier")
    if DIAG: e("s_memrealtime s[66:67]")
    e(f"s_mul_i32 s3, s20, {5*32*4}")
    e("v_lshlrev_b32 v8, 4, v3"); e("v_add_u32 v8, s3, v8")
    OUT = 160
    for j in range(5):
        for hh in range(2):
            off = j*128 + hh*64; k = (j*2+hh) % 2
            t = T + 8*k
            e(f"ds_read_b128 v[{t}:{t+3}], v8 offset:{4096+off}")
            e(f"ds_read_b128 v[{t+4}:{t+7}], v8 offset:{off}")
            b = X + j*8 + hh*4
            for i in range(4): e(f"v_fma_f32 v{b+i}, v{b+i}, v{t+i}, v{t+4+i}")
            e(f"v_cvt_pk_bf16_f32 v{OUT+j*4+hh*2}, v{b}, v{b+1}")
            e(f"v_cvt_pk_bf16_f32 v{OUT+j*4+hh*2+1}, v{b+2}, v{b+3}")
    e("s_mul_i32 s3, s2, 20480"); e("s_mul_i32 s21, s20, 5120"); e("s_add_u32 s3, s3, s21"); e(f"s_add_u32 s3, s3, {WS_HF}")
    e("v_lshlrev_b32 v11, 4, v10"); e("v_add_u32 v11, s3, v11")
    for j in range(5):
        e(f"s_mov_b32 s21, {j*1024}")
        e(f"buffer_store_dwordx4 v[{OUT+4*j}:{OUT+4*j+3}], v11, s[24:27], s21 offen sc1")
    if DIAG:
        e("s_waitcnt vmcnt(0)"); e("s_memrealtime s[68:69]"); e("s_waitcnt lgkmcnt(0)")
        e("s_add_u32 s3, s2, 40"); e("s_lshl_b32 s3, s3, 5"); e(f"s_add_u32 s3, s3, {0x5000000 + 0x80000}")
        for q in range(5): e(f"v_mov_b32 v{40+q}, s{60+2*q}")
        e("v_mov_b32 v46, s3"); e("s_mov_b64 exec, 1")
        e("buffer_store_dwordx4 v[40:43], v46, s[24:27], 0 offen"); e("buffer_store_dword v44, v46, s[24:27], 0 offen offset:16")
    e("s_endpgm")
    e("K01_PF:")
    e("s_mov_b64 exec, -1")
    e("s_and_b32 s21, s2, 7")
    e("s_lshr_b32 s22, s2, 3"); e("s_cmp_lt_u32 s2, 40"); e("s_cselect_b32 s3, 0, 16"); e("s_sub_u32 s22, s22, s3")
    e("v_subrev_u32 v1, 64, v0")
    if 'code' in pf:
        e("s_getpc_b64 s[4:5]")
        e("K01_PC:")
        e("s_add_u32 s4, s4, k2_kernel-K01_PC"); e("s_addc_u32 s5, s5, 0")
        e("s_mul_i32 s3, s22, 9216"); e("v_lshlrev_b32 v2, 4, v1"); e("v_add_u32 v2, s3, v2")
        e("s_mov_b32 s23, K_TEXT_END-k2_kernel-16")
        for r_ in range(3):
            e("v_min_u32 v3, s23, v2")
            e(NT("global_load_dwordx4 v[4:7], v3, s[4:5]"))
            e(f"v_add_u32 v2, 3072, v2")
    if 'repack' in pf:
        e("s_cmp_lt_u32 s2, 40"); e("s_cselect_b32 s3, 0, 128"); e("s_sub_u32 s36, s2, s3")
        e("s_load_dwordx4 s[44:47], s[0:1], 48"); e("s_load_dwordx2 s[48:49], s[0:1], 64"); e("s_waitcnt lgkmcnt(0)")
        e("s_lshl_b32 s37, s36, 10")
        for m, (lo, kind) in enumerate(((48, 'd'), (44, 'g'), (46, 'u'))):
            srd(P, 8, lo, lo+1, 1966080)
            for r_ in range(6):
                e(f"v_add_u32 v10, {r_*192}, v1")
                e("v_cmp_gt_u32 vcc, 1024, v10"); e("v_add_u32 v10, s37, v10")
                e("v_lshlrev_b32 v11, 4, v10"); e("v_mov_b32 v12, 0x7ff00000"); e("v_cndmask_b32 v11, v12, v11, vcc")
                e(f"buffer_load_dwordx4 v[{60+m*24+4*r_}:{63+m*24+4*r_}], v11, s[8:11], 0 offen")
                if kind == 'd':
                    e("s_mov_b32 s3, 53687092"); e("v_mul_hi_u32 v13, v10, s3")
                    e("v_mul_u32_u24 v14, 80, v13"); e("v_sub_u32 v14, v10, v14")
                    e("v_mul_u32_u24 v15, 6554, v14"); e("v_lshrrev_b32 v15, 16, v15")
                    e("v_mul_u32_u24 v16, 10, v15"); e("v_sub_u32 v16, v14, v16")
                    e("v_mul_u32_u24 v15, 245760, v15"); e("v_mul_u32_u24 v13, 160, v13")
                else:
                    e("s_mov_b32 s3, 22369622"); e("v_mul_hi_u32 v13, v10, s3")
                    e("v_mul_u32_u24 v14, 192, v13"); e("v_sub_u32 v14, v10, v14")
                    e("v_mul_u32_u24 v15, 5462, v14"); e("v_lshrrev_b32 v15, 16, v15")
                    e("v_mul_u32_u24 v16, 12, v15"); e("v_sub_u32 v16, v14, v16")
                    e("v_mul_u32_u24 v15, 245760, v15"); e("v_mul_u32_u24 v13, 384, v13")
                e("v_lshlrev_b32 v16, 4, v16"); e("v_add_u32 v15, v15, v13"); e("v_add_u32 v15, v15, v16")
                e(f"v_cndmask_b32 v{20+m*6+r_}, v12, v15, vcc")
        for m, kind in enumerate('dgu'):
            e(f"s_mov_b32 s3, {WS_WD if kind == 'd' else WS_WGU + (192 if kind == 'u' else 0)}")
            for r_ in range(6):
                e(f"buffer_store_dwordx4 v[{60+m*24+4*r_}:{63+m*24+4*r_}], v{20+m*6+r_}, s[24:27], s3 offen sc1")
    if 'wq' in pf:
        srd(P, 8, 40, 41, 7864320)
        e("s_mul_i32 s3, s22, 4224"); e("v_add_u32 v1, s3, v1"); e("s_mul_i32 s23, s21, 1536"); e("s_mov_b32 s24, 22")
        e("K01_PFL:")
        e("v_mul_u32_u24 v2, 682, v1"); e("v_lshrrev_b32 v2, 16, v2")
        e("v_mul_u32_u24 v3, 96, v2"); e("v_sub_u32 v3, v1, v3")
        e("v_cmp_le_i32 vcc, 96, v3"); e("s_nop 1")
        e("v_addc_co_u32 v2, vcc, 0, v2, vcc")
        e("v_mul_u32_u24 v3, 96, v2"); e("v_sub_u32 v3, v1, v3"); e("v_lshlrev_b32 v3, 4, v3")
        e("v_mul_u32_u24 v2, 12288, v2"); e("v_add_u32 v2, v2, v3")
        e(NT("buffer_load_dwordx4 v[4:7], v2, s[8:11], s23 offen"))
        e("v_add_u32 v1, 192, v1")
        e("s_sub_u32 s24, s24, 1"); e("s_cmp_lg_u32 s24, 0"); e("s_cbranch_scc1 K01_PFL")
    e("s_endpgm")
    P.finalize(report_nops=False)
    return P

def prep_roles(P, pf=('code', 'wq'), LB=131072):
    e = P.e
    e("s_load_dwordx4 s[4:7], s[0:1], 72")
    e("s_load_dwordx4 s[16:19], s[0:1], 96")
    e("s_load_dwordx2 s[38:39], s[0:1], 0")
    e("s_load_dwordx2 s[40:41], s[0:1], 24")
    e("s_cmp_lt_u32 s2, 40"); e("s_cbranch_scc1 K01_GA")
    e("s_cmp_lt_u32 s2, 168"); e("s_cbranch_scc1 K01_LN")
    e("s_cmp_ge_u32 s2, 248"); e("s_cbranch_scc1 MONO_K2")
    e("s_sub_u32 s3, s2, 168"); e(f"s_mul_i32 s20, s3, {(65536+19)//20}"); e("s_lshr_b32 s20, s20, 16")
    e("s_mul_i32 s21, s20, 20"); e("s_sub_u32 s21, s3, s21"); e("s_add_u32 s21, s21, 10")
    e("s_branch K01_G")
    e("K01_GA:")
    e("s_and_b32 s20, s2, 3"); e("s_lshr_b32 s21, s2, 2")
    e("s_memrealtime s[42:43]")
    e("K01_G:")
    if DIAG: e("s_memrealtime s[60:61]")
    e("v_and_b32 v1, 15, v0"); e("v_lshrrev_b32 v2, 4, v0")
    e(f"s_mul_i32 s3, s20, {640//NSPLIT}")
    e("v_add_u32 v3, s3, v2"); e("v_lshlrev_b32 v4, 1, v3")
    e("s_mov_b32 s22, 7680"); e("v_mul_lo_u32 v5, v3, s22")
    e("v_lshlrev_b32 v6, 4, v1"); e("v_add_u32 v5, v5, v6")
    e("s_lshl_b32 s3, s21, 8"); e("v_add_u32 v5, s3, v5")
    e("s_waitcnt lgkmcnt(0)")
    srd(P, 8, 4, 5, 1280); srd(P, 12, 6, 7, 640*3840*2); srd(P, 24, 18, 19, WS_BYTES); srd(P, 28, 16, 17, 256)
    e("s_cmp_lg_u32 s2, 0"); e("s_cbranch_scc1 K01_NOT")
    e("s_or_b32 s42, s42, 1"); e("v_mov_b32 v12, 8"); e("v_mov_b32 v13, s42")
    e("buffer_store_dword v13, v12, s[28:31], 0 offen sc1")
    e("K01_NOT:")
    if DIAG: e("s_memrealtime s[62:63]")
    NR = 160//16
    for i in range(NR):
        e(f"s_mov_b32 s23, {16*7680*i}")
        e(f"buffer_load_dwordx4 v[{24+4*i}:{27+4*i}], v5, s[12:15], s23 offen")
    for i in range(NR):
        e(f"buffer_load_ushort v{10+i}, v4, s[8:11], 0 offen offset:{32*i}")
    for i in range(NR): e(f"v_lshlrev_b32 v{10+i}, 16, v{10+i}")
    for i in range(NR): e(f"v_mul_f32 v{80+i}, {f2u(-1.4426950408889634)}, v{10+i}")
    for i in range(NR): e(f"v_exp_f32 v{80+i}, v{80+i}")
    for i in range(NR): e(f"v_add_f32 v{80+i}, 1.0, v{80+i}")
    for i in range(NR): e(f"v_rcp_f32 v{80+i}, v{80+i}")
    for i in range(NR): e(f"v_mul_f32 v{10+i}, v{10+i}, v{80+i}")
    for i in range(NR): e(f"v_cvt_pk_bf16_f32 v{10+i}, v{10+i}, v{10+i}")
    for i in range(NR): e(f"v_and_b32 v{10+i}, 0xffff0000, v{10+i}")
    for j in range(8): e(f"v_mov_b32 v{70+j}, 0")
    for i in range(NR):
        for q in range(4):
            w = 24+4*i+q
            e(f"v_lshlrev_b32 v68, 16, v{w}"); e(f"v_and_b32 v69, 0xffff0000, v{w}")
            e(f"v_fmac_f32 v{70+2*q}, v{10+i}, v68"); e(f"v_fmac_f32 v{71+2*q}, v{10+i}, v69")
    if DIAG: e("s_memrealtime s[64:65]")
    e("v_lshlrev_b32 v6, 5, v1"); e("v_lshlrev_b32 v7, 9, v2"); e("v_add_u32 v6, v6, v7"); e(f"v_add_u32 v6, {LB}, v6")
    e("ds_write_b128 v6, v[70:73]"); e("ds_write_b128 v6, v[74:77] offset:16")
    e("s_waitcnt lgkmcnt(0)"); e("s_barrier")
    e("v_cmp_gt_u32 vcc, 64, v0")
    e("s_and_saveexec_b64 s[32:33], vcc")
    e("s_cbranch_execz K01_PF")
    e("v_lshlrev_b32 v6, 3, v0"); e(f"v_add_u32 v9, {LB}, v6")
    for r in range(16): e(f"ds_read_b64 v[{30+2*r}:{31+2*r}], v9 offset:{512*r}")
    for r in (8, 4, 2, 1):
        for q in range(r): e(f"v_pk_add_f32 v[{30+2*q}:{31+2*q}], v[{30+2*q}:{31+2*q}], v[{30+2*(q+r)}:{31+2*(q+r)}]")
    e("s_mul_i32 s3, s20, 15360"); e("s_lshl_b32 s23, s21, 9"); e("s_add_u32 s3, s3, s23"); e(f"s_add_u32 s3, s3, {WS_MOD}")
    e("v_add_u32 v6, s3, v6")
    e("buffer_store_dwordx2 v[30:31], v6, s[24:27], 0 offen sc1")
    e("s_cmp_lg_u32 s2, 0"); e("s_cbranch_scc1 K01_NOZ")
    e("v_lshlrev_b32 v12, 7, v0"); e("v_mov_b32 v13, 0"); e(f"s_mov_b32 s23, {WS_CNT}")
    e("buffer_store_dword v13, v12, s[24:27], s23 offen sc1")
    e(f"s_mov_b32 s23, {WS_CNT + 8192}")
    e("buffer_store_dword v13, v12, s[24:27], s23 offen sc1")
    e("K01_NOZ:")
    e("s_waitcnt vmcnt(0)")
    if DIAG: e("s_memrealtime s[66:67]")
    e("s_cmp_ge_u32 s21, 10"); e("s_cbranch_scc1 K01_FIN")
    e("v_cmp_eq_u32 vcc, 0, v0")
    e("s_and_saveexec_b64 s[32:33], vcc")
    e("v_mov_b32 v7, 1"); e("v_mov_b32 v8, 0")
    e("buffer_atomic_add v7, v8, s[28:31], 0 offen sc0 sc1")
    e("s_waitcnt vmcnt(0)")
    if DIAG:
        e("s_memrealtime s[68:69]"); e("s_waitcnt lgkmcnt(0)")
        e("s_lshl_b32 s3, s2, 5"); e(f"s_add_u32 s3, s3, {0x5000000 + 0x80000}")
        for q in range(5): e(f"v_mov_b32 v{40+q}, s{60+2*q}")
        e("v_mov_b32 v46, s3")
        e("buffer_store_dwordx4 v[40:43], v46, s[24:27], 0 offen"); e("buffer_store_dword v44, v46, s[24:27], 0 offen offset:16")
    e("v_readfirstlane_b32 s22, v7"); e("s_nop 3")
    e(f"s_cmp_lg_u32 s22, {10*NSPLIT-1}"); e("s_cbranch_scc1 K01_FIN")
    e("v_mov_b32 v8, 128"); e("v_mov_b32 v7, 1")
    e("buffer_store_dword v7, v8, s[28:31], 0 offen sc1")
    e("K01_FIN:")
    e("s_mov_b64 exec, -1")
    e("s_branch MONO_K2")
    e("K01_LN:")
    e(f"s_sub_u32 s2, s2, 40")
    e("v_lshrrev_b32 v1, 6, v0"); e("v_and_b32 v10, 63, v0")
    e("v_readfirstlane_b32 s20, v1")
    e("v_and_b32 v2, 15, v10"); e("v_lshrrev_b32 v3, 4, v10")
    e("s_lshl_b32 s3, s2, 4"); e("v_add_u32 v9, s3, v2"); e("v_mul_u32_u24 v9, 1280, v9")
    e("v_lshlrev_b32 v11, 3, v3"); e("v_add_u32 v9, v9, v11")
    e("s_mul_i32 s3, s20, 320"); e("v_add_u32 v9, s3, v9")
    e("s_waitcnt lgkmcnt(0)")
    srd(P, 8, 38, 39, 2048*1280); srd(P, 24, 18, 19, WS_BYTES); srd(P, 28, 16, 17, 256)
    if DIAG: e("s_memrealtime s[60:61]")
    X = 100; RAW = 60; T = 200
    load_x_pieces(P, X, RAW, 8)
    unpack_x(P, X, RAW)
    RED0, RED1 = 12288, 13312
    e("v_lshlrev_b32 v4, 6, v2"); e("v_lshlrev_b32 v5, 2, v3"); e("v_add_u32 v5, v4, v5")
    e(f"s_lshl_b32 s3, s20, 4"); e("v_add_u32 v5, s3, v5"); e(f"v_add_u32 v5, {LB}, v5"); e(f"v_add_u32 v4, {LB}, v4")
    e(f"v_add_f32 v6, v{X}, v{X+1}")
    for i in range(2, 40): e(f"v_add_f32 v6, v6, v{X+i}")
    row_reduce(P, 6, RED0, T, 5, 4)
    e(f"v_mul_f32 v6, {f2u(1/640)}, v6")
    for i in range(40): e(f"v_sub_f32 v{X+i}, v{X+i}, v6")
    e(f"v_mul_f32 v7, v{X}, v{X}")
    for i in range(1, 40): e(f"v_fmac_f32 v7, v{X+i}, v{X+i}")
    row_reduce(P, 7, RED1, T, 5, 4)
    e(f"v_mul_f32 v7, {f2u(1/640)}, v7"); e(f"v_add_f32 v7, {f2u(1e-5)}, v7"); e("v_rsq_f32 v7, v7")
    e("s_nop 0")
    for i in range(40): e(f"v_mul_f32 v{X+i}, v{X+i}, v7")
    if DIAG: e("s_memrealtime s[62:63]")
    e("s_cmp_lg_u32 s20, 0"); e("s_cbranch_scc1 K01_GO")
    e("s_mov_b32 s35, 1")
    e("v_mov_b32 v12, 128"); e("s_mov_b32 s21, 0")
    e("K01_POLL:")
    e("buffer_load_dword v13, v12, s[28:31], 0 offen sc1")
    e("s_waitcnt vmcnt(0)")
    e("v_readfirstlane_b32 s22, v13")
    e("s_add_u32 s21, s21, 1")
    e(f"s_cmp_ge_u32 s22, s35"); e("s_cbranch_scc1 K01_GO")
    e(f"s_sleep {SLEEP}")
    e("s_cmp_lt_u32 s21, 0x4000"); e("s_cbranch_scc1 K01_POLL")
    e("K01_GO:")
    e("s_barrier")
    if DIAG: e("s_memrealtime s[64:65]")
    tb = 20
    e(f"v_lshlrev_b32 v{tb}, 4, v0"); e(f"v_add_u32 v{tb+1}, {LB}, v{tb}"); e(f"v_min_u32 v{tb+2}, 2544, v{tb}")
    r = 24
    for n, idx in enumerate([0, 1]):
        for p in range(NSPLIT):
            e(f"s_mov_b32 s34, {WS_MOD + (p*3840 + idx*640)*4}")
            e(f"buffer_load_dwordx4 v[{r+(n*NSPLIT+p)*4}:{r+(n*NSPLIT+p)*4+3}], v{tb+2}, s[24:27], s34 offen sc1")
    for n in range(2):
        b = r + n*NSPLIT*4
        for p in range(1, NSPLIT):
            for i in range(4): e(f"v_add_f32 v{b+i}, v{b+i}, v{b+4*p+i}")
        for i in range(4):
            e(f"v_cvt_pk_bf16_f32 v{b+i}, v{b+i}, v{b+i}"); e(f"v_and_b32 v{b+i}, 0xffff0000, v{b+i}")
            if n == 1: e(f"v_add_f32 v{b+i}, 1.0, v{b+i}")
            e(f"v_mul_f32 v{b+i}, {f2u(C_SCALE)}, v{b+i}")
        e(f"ds_write_b128 v{tb+1}, v[{b}:{b+3}] offset:{n*4096}")
    e("s_waitcnt lgkmcnt(0)"); e("s_barrier")
    if DIAG: e("s_memrealtime s[66:67]")
    e(f"s_mul_i32 s3, s20, {5*32*4}")
    e("v_lshlrev_b32 v8, 4, v3"); e("v_add_u32 v8, s3, v8"); e(f"v_add_u32 v8, {LB}, v8")
    OUT = 160
    for j in range(5):
        for hh in range(2):
            off = j*128 + hh*64; k = (j*2+hh) % 2
            t = T + 8*k
            e(f"ds_read_b128 v[{t}:{t+3}], v8 offset:{4096+off}")
            e(f"ds_read_b128 v[{t+4}:{t+7}], v8 offset:{off}")
            b = X + j*8 + hh*4
            for i in range(4): e(f"v_fma_f32 v{b+i}, v{b+i}, v{t+i}, v{t+4+i}")
            e(f"v_cvt_pk_bf16_f32 v{OUT+j*4+hh*2}, v{b}, v{b+1}")
            e(f"v_cvt_pk_bf16_f32 v{OUT+j*4+hh*2+1}, v{b+2}, v{b+3}")
    e("s_mul_i32 s3, s2, 20480"); e("s_mul_i32 s21, s20, 5120"); e("s_add_u32 s3, s3, s21"); e(f"s_add_u32 s3, s3, {WS_HF}")
    e("v_lshlrev_b32 v11, 4, v10"); e("v_add_u32 v11, s3, v11")
    for j in range(5):
        e(f"s_mov_b32 s21, {j*1024}")
        e(f"buffer_store_dwordx4 v[{OUT+4*j}:{OUT+4*j+3}], v11, s[24:27], s21 offen sc1")
    e("s_waitcnt vmcnt(0)"); e("s_barrier")
    e("s_lshr_b32 s21, s2, 4"); e("s_add_u32 s2, s2, 40")
    e("s_cmp_lg_u32 s20, 0"); e("s_cbranch_scc1 MONO_K2")
    e("s_lshl_b32 s3, s21, 7"); e(f"s_add_u32 s3, s3, {WS_CNT + 12288}")
    e("v_mov_b32 v12, s3"); e("v_mov_b32 v13, 1"); e("v_mov_b32 v14, 8"); e("s_mov_b64 exec, 1")
    e("buffer_atomic_add v13, v12, s[24:27], 0 offen sc0 sc1")
    e("buffer_load_dword v15, v14, s[28:31], 0 offen sc1")
    e("s_waitcnt vmcnt(0)")
    e("v_readfirstlane_b32 s22, v13"); e("s_nop 3")
    e("s_cmp_lg_u32 s22, 15"); e("s_cbranch_scc1 K01_NOF")
    e("s_lshl_b32 s3, s21, 7"); e(f"s_add_u32 s3, s3, {WS_CNT + 16384}"); e("v_mov_b32 v12, s3")
    e("buffer_store_dword v15, v12, s[24:27], 0 offen sc1")
    e("K01_NOF:")
    e("s_mov_b64 exec, -1")
    e("s_branch MONO_K2")
    e("K01_PF:")
    e("s_mov_b64 exec, -1")
    e("s_and_b32 s21, s2, 7")
    e("s_lshr_b32 s22, s2, 3"); e("s_cmp_lt_u32 s2, 40"); e("s_cselect_b32 s3, 0, 16"); e("s_sub_u32 s22, s22, s3")
    e("v_subrev_u32 v1, 64, v0")
    if 'code' in pf:
        e("s_getpc_b64 s[4:5]")
        e("K01_PC:")
        e("s_add_u32 s4, s4, MONO_K2-K01_PC"); e("s_addc_u32 s5, s5, 0")
        e("s_mul_i32 s3, s22, 9216"); e("v_lshlrev_b32 v2, 4, v1"); e("v_add_u32 v2, s3, v2")
        e("s_mov_b32 s23, K_TEXT_END-MONO_K2-16")
        for r_ in range(3):
            e("v_min_u32 v3, s23, v2")
            e(NT("global_load_dwordx4 v[4:7], v3, s[4:5]"))
            e(f"v_add_u32 v2, 3072, v2")
    if 'repack' in pf:
        e("s_cmp_lt_u32 s2, 40"); e("s_cselect_b32 s3, 0, 128"); e("s_sub_u32 s36, s2, s3")
        e("s_load_dwordx4 s[44:47], s[0:1], 48"); e("s_load_dwordx2 s[48:49], s[0:1], 64"); e("s_waitcnt lgkmcnt(0)")
        e("s_lshl_b32 s37, s36, 10")
        for m, (lo, kind) in enumerate(((48, 'd'), (44, 'g'), (46, 'u'))):
            srd(P, 8, lo, lo+1, 1966080)
            for r_ in range(6):
                e(f"v_add_u32 v10, {r_*192}, v1")
                e("v_cmp_gt_u32 vcc, 1024, v10"); e("v_add_u32 v10, s37, v10")
                e("v_lshlrev_b32 v11, 4, v10"); e("v_mov_b32 v12, 0x7ff00000"); e("v_cndmask_b32 v11, v12, v11, vcc")
                e(f"buffer_load_dwordx4 v[{60+m*24+4*r_}:{63+m*24+4*r_}], v11, s[8:11], 0 offen")
                if kind == 'd':
                    e("s_mov_b32 s3, 53687092"); e("v_mul_hi_u32 v13, v10, s3")
                    e("v_mul_u32_u24 v14, 80, v13"); e("v_sub_u32 v14, v10, v14")
                    e("v_mul_u32_u24 v15, 6554, v14"); e("v_lshrrev_b32 v15, 16, v15")
                    e("v_mul_u32_u24 v16, 10, v15"); e("v_sub_u32 v16, v14, v16")
                    e("v_mul_u32_u24 v15, 245760, v15"); e("v_mul_u32_u24 v13, 160, v13")
                else:
                    e("s_mov_b32 s3, 22369622"); e("v_mul_hi_u32 v13, v10, s3")
                    e("v_mul_u32_u24 v14, 192, v13"); e("v_sub_u32 v14, v10, v14")
                    e("v_mul_u32_u24 v15, 5462, v14"); e("v_lshrrev_b32 v15, 16, v15")
                    e("v_mul_u32_u24 v16, 12, v15"); e("v_sub_u32 v16, v14, v16")
                    e("v_mul_u32_u24 v15, 245760, v15"); e("v_mul_u32_u24 v13, 384, v13")
                e("v_lshlrev_b32 v16, 4, v16"); e("v_add_u32 v15, v15, v13"); e("v_add_u32 v15, v15, v16")
                e(f"v_cndmask_b32 v{20+m*6+r_}, v12, v15, vcc")
        for m, kind in enumerate('dgu'):
            e(f"s_mov_b32 s3, {WS_WD if kind == 'd' else WS_WGU + (192 if kind == 'u' else 0)}")
            for r_ in range(6):
                e(f"buffer_store_dwordx4 v[{60+m*24+4*r_}:{63+m*24+4*r_}], v{20+m*6+r_}, s[24:27], s3 offen sc1")
    if 'wq' in pf:
        srd(P, 8, 40, 41, 7864320)
        e("s_mul_i32 s3, s22, 4224"); e("v_add_u32 v1, s3, v1"); e("s_mul_i32 s23, s21, 1536"); e("s_mov_b32 s24, 22")
        e("K01_PFL:")
        e("v_mul_u32_u24 v2, 682, v1"); e("v_lshrrev_b32 v2, 16, v2")
        e("v_mul_u32_u24 v3, 96, v2"); e("v_sub_u32 v3, v1, v3")
        e("v_cmp_le_i32 vcc, 96, v3"); e("s_nop 1")
        e("v_addc_co_u32 v2, vcc, 0, v2, vcc")
        e("v_mul_u32_u24 v3, 96, v2"); e("v_sub_u32 v3, v1, v3"); e("v_lshlrev_b32 v3, 4, v3")
        e("v_mul_u32_u24 v2, 12288, v2"); e("v_add_u32 v2, v2, v3")
        e(NT("buffer_load_dwordx4 v[4:7], v2, s[8:11], s23 offen"))
        e("v_add_u32 v1, 192, v1")
        e("s_sub_u32 s24, s24, 1"); e("s_cmp_lg_u32 s24, 0"); e("s_cbranch_scc1 K01_PFL")


def gen_k4b(pf=True, npf=128):
    P = Prog(); e = P.e
    e("s_cmp_ge_u32 s2, 256"); e("s_cbranch_scc1 K4_PF")
    e("s_load_dwordx2 s[4:5], s[0:1], 0")
    e("s_load_dwordx2 s[16:17], s[0:1], 104")
    e("v_lshrrev_b32 v1, 6, v0"); e("v_and_b32 v10, 63, v0")
    e("v_readfirstlane_b32 s20, v1")
    e("v_and_b32 v2, 7, v10")
    e("v_lshrrev_b32 v3, 4, v10")
    e("v_lshrrev_b32 v4, 3, v10"); e("v_and_b32 v4, 1, v4")
    e("s_lshr_b32 s21, s2, 1"); e("s_and_b32 s22, s2, 1")
    e("s_mul_i32 s3, s21, 20480"); e("s_lshl_b32 s23, s20, 12"); e("s_add_u32 s3, s3, s23"); e("s_lshl_b32 s23, s22, 7"); e("s_add_u32 s3, s3, s23")
    e("v_lshlrev_b32 v5, 10, v4"); e("v_lshlrev_b32 v6, 8, v3"); e("v_add_u32 v5, v5, v6"); e("v_lshlrev_b32 v6, 4, v2"); e("v_add_u32 v5, v5, v6")
    e("v_add_u32 v12, s3, v5")
    e("s_lshl_b32 s3, s21, 4"); e("s_lshl_b32 s23, s22, 3"); e("s_add_u32 s3, s3, s23"); e("v_add_u32 v9, s3, v2"); e("v_mul_u32_u24 v9, 1280, v9")
    e("v_lshlrev_b32 v6, 6, v4"); e("v_add_u32 v9, v9, v6"); e("v_lshlrev_b32 v6, 3, v3"); e("v_add_u32 v9, v9, v6")
    e("s_lshl_b32 s3, s20, 8"); e("v_add_u32 v9, s3, v9")
    e("s_waitcnt lgkmcnt(0)")
    srd(P, 8, 4, 5, 2048*1280); srd(P, 24, 16, 17, WS_BYTES)
    PR = 20
    for p in range(4):
        for jj in range(2):
            e(f"s_mov_b32 s21, {WS_PART + p*128*20480 + jj*2048}")
            e(f"buffer_load_dwordx4 v[{PR+p*8+jj*4}:{PR+p*8+jj*4+3}], v12, s[24:27], s21 offen")
    XR = 52
    for jj in range(2):
        for hh in range(2):
            e(f"buffer_load_dwordx2 v[{XR+jj*4+hh*2}:{XR+jj*4+hh*2+1}], v9, s[8:11], 0 offen offset:{jj*128+hh*32}")
    MP = 60
    for i in range(2):
        e(f"v_add_u32 v13, {320*i}, v0")
        e("v_mul_u32_u24 v14, 410, v13"); e("v_lshrrev_b32 v14, 16, v14")
        e("v_mul_u32_u24 v15, 160, v14"); e("v_sub_u32 v15, v13, v15")
        e(f"v_lshlrev_b32 v{18+i}, 4, v15")
        e("v_mul_u32_u24 v15, 2560, v14"); e(f"v_add_u32 v15, v15, v{18+i}")
        for p in range(NSPLIT):
            e(f"s_mov_b32 s21, {WS_MOD + (p*3840 + 2*640)*4}")
            e(f"buffer_load_dwordx4 v[{MP+(i*4+p)*4}:{MP+(i*4+p)*4+3}], v15, s[24:27], s21 offen")
        e(f"v_mul_u32_u24 v14, 5120, v14"); e(f"v_add_u32 v{18+i}, v{18+i}, v14")
    A_ = 92
    for p in range(4):
        for q in range(8):
            r = PR + p*8 + q
            if p == 0:
                e(f"v_lshlrev_b32 v{A_+2*q}, 16, v{r}"); e(f"v_and_b32 v{A_+2*q+1}, 0xffff0000, v{r}")
            else:
                e(f"v_lshlrev_b32 v14, 16, v{r}"); e(f"v_and_b32 v15, 0xffff0000, v{r}")
                e(f"v_add_f32 v{A_+2*q}, v{A_+2*q}, v14"); e(f"v_add_f32 v{A_+2*q+1}, v{A_+2*q+1}, v15")
    X = 108
    for q in range(8):
        e(f"v_lshlrev_b32 v{X+2*q}, 16, v{XR+q}"); e(f"v_and_b32 v{X+2*q+1}, 0xffff0000, v{XR+q}")
    for i in range(2):
        b = MP + i*16
        for p in range(1, NSPLIT):
            for k in range(4): e(f"v_add_f32 v{b+k}, v{b+k}, v{b+4*p+k}")
        e(f"v_subrev_u32 v14, {2*5120}, v{18+i}"); e(f"v_cmp_gt_u32 vcc, 5120, v14"); e("s_nop 1")
        e("v_cndmask_b32 v14, 0, 1.0, vcc")
        for k in range(4):
            e(f"v_cvt_pk_bf16_f32 v{b+k}, v{b+k}, v{b+k}"); e(f"v_and_b32 v{b+k}, 0xffff0000, v{b+k}"); e(f"v_add_f32 v{b+k}, v{b+k}, v14")
        e(f"ds_write_b128 v{18+i}, v[{b}:{b+3}]")
    e("s_cmp_lg_u32 s2, 0"); e("s_cbranch_scc1 K4_NOGB")
    e(f"v_cmp_le_u32 vcc, {3*5120}, v19"); e("s_and_saveexec_b64 s[30:31], vcc"); e("s_cbranch_execz K4_NOGB2")
    e(f"v_subrev_u32 v14, {3*5120}, v19"); e(f"s_mov_b32 s21, {WS_MODF + 5*4096}")
    e(f"buffer_store_dwordx4 v[{MP+16}:{MP+19}], v14, s[24:27], s21 offen")
    e("K4_NOGB2:"); e("s_mov_b64 exec, s[30:31]")
    e("K4_NOGB:")
    e("s_waitcnt lgkmcnt(0)"); e("s_barrier")
    e("v_lshlrev_b32 v8, 7, v4"); e("v_lshlrev_b32 v6, 4, v3"); e("v_add_u32 v8, v8, v6"); e("s_lshl_b32 s3, s20, 9"); e("v_add_u32 v8, s3, v8")
    T = 20; OX = 52
    for jj in range(2):
        for hh in range(2):
            k = jj*2 + hh
            e(f"ds_read_b128 v[{T+4*k}:{T+4*k+3}], v8 offset:{jj*256 + hh*64}")
    for k in range(4):
        for i in range(4): e(f"v_fma_f32 v{X+4*k+i}, v{A_+4*k+i}, v{T+4*k+i}, v{X+4*k+i}")
        e(f"v_cvt_pk_bf16_f32 v{OX+2*k}, v{X+4*k}, v{X+4*k+1}"); e(f"v_cvt_pk_bf16_f32 v{OX+2*k+1}, v{X+4*k+2}, v{X+4*k+3}")
    for q in range(8):
        e(f"v_lshlrev_b32 v{X+2*q}, 16, v{OX+q}"); e(f"v_and_b32 v{X+2*q+1}, 0xffff0000, v{OX+q}")
    for jj in range(2):
        e(f"s_mov_b32 s21, {WS_X1 + jj*2048}")
        e(f"buffer_store_dwordx4 v[{OX+4*jj}:{OX+4*jj+3}], v12, s[24:27], s21 offen sc1")
    for jj in range(2):
        for hh in range(2):
            k = jj*2 + hh
            e(f"ds_read_b128 v[{T+4*k}:{T+4*k+3}], v8 offset:{2*5120 + jj*256 + hh*64}")
            e(f"ds_read_b128 v[{T+16+4*k}:{T+16+4*k+3}], v8 offset:{1*5120 + jj*256 + hh*64}")
    RED0, RED1 = 20480, 22528
    e("v_mul_u32_u24 v16, 192, v2"); e("v_lshlrev_b32 v17, 3, v3"); e("v_lshlrev_b32 v18, 2, v4"); e("v_add_u32 v17, v17, v18")
    e("s_lshl_b32 s3, s20, 5"); e("v_add_u32 v17, s3, v17"); e("v_add_u32 v17, v17, v16")
    def red(val, base):
        e(f"ds_write_b32 v17, v{val} offset:{base}")
        e("s_waitcnt lgkmcnt(0)"); e("s_barrier")
        for q in range(10): e(f"ds_read_b128 v[{60+4*q}:{63+4*q}], v16 offset:{base+16*q}")
        for q in range(5):
            e(f"v_pk_add_f32 v[{60+4*q}:{61+4*q}], v[{60+4*q}:{61+4*q}], v[{80+4*q}:{81+4*q}]")
            e(f"v_pk_add_f32 v[{62+4*q}:{63+4*q}], v[{62+4*q}:{63+4*q}], v[{82+4*q}:{83+4*q}]")
        for q in range(5): e(f"v_pk_add_f32 v[{60+2*q}:{61+2*q}], v[{60+2*q}:{61+2*q}], v[{70+2*q}:{71+2*q}]")
        e("v_pk_add_f32 v[60:61], v[60:61], v[62:63]"); e("v_pk_add_f32 v[64:65], v[64:65], v[66:67]")
        e("v_pk_add_f32 v[60:61], v[60:61], v[64:65]"); e("v_pk_add_f32 v[60:61], v[60:61], v[68:69]")
        e(f"v_add_f32 v{val}, v60, v61")
    e(f"v_pk_add_f32 v[6:7], v[{X}:{X+1}], v[{X+2}:{X+3}]")
    for i in range(2, 8): e(f"v_pk_add_f32 v[6:7], v[6:7], v[{X+2*i}:{X+2*i+1}]")
    e("v_add_f32 v6, v6, v7")
    red(6, RED0)
    e(f"v_mul_f32 v6, {f2u(1/640)}, v6")
    for i in range(16): e(f"v_sub_f32 v{X+i}, v{X+i}, v6")
    e(f"v_mul_f32 v7, v{X}, v{X}")
    for i in range(1, 16): e(f"v_fmac_f32 v7, v{X+i}, v{X+i}")
    red(7, RED1)
    e(f"v_mul_f32 v7, {f2u(1/640)}, v7"); e(f"v_add_f32 v7, {f2u(1e-5)}, v7"); e("v_rsq_f32 v7, v7"); e("s_nop 0")
    for i in range(16):
        e(f"v_mul_f32 v{X+i}, v{X+i}, v7")
        e(f"v_fma_f32 v{X+i}, v{X+i}, v{T+i}, v{T+16+i}")
    for k in range(4):
        e(f"v_cvt_pk_bf16_f32 v{OX+2*k}, v{X+4*k}, v{X+4*k+1}"); e(f"v_cvt_pk_bf16_f32 v{OX+2*k+1}, v{X+4*k+2}, v{X+4*k+3}")
    for jj in range(2):
        e(f"s_mov_b32 s21, {WS_H2F + jj*2048}")
        e(f"buffer_store_dwordx4 v[{OX+4*jj}:{OX+4*jj+3}], v12, s[24:27], s21 offen sc1")
    e("K4_END:")
    e("s_endpgm")
    e("K4_PF:")
    e(f"s_cmp_ge_u32 s2, {256+npf}"); e("s_cbranch_scc1 K4_END")
    e("s_sub_u32 s20, s2, 256")
    e("s_load_dwordx2 s[4:5], s[0:1], 64"); e("s_load_dwordx2 s[16:17], s[0:1], 104"); e("s_waitcnt lgkmcnt(0)")
    srd(P, 8, 4, 5, 1966080); srd(P, 24, 16, 17, WS_BYTES)
    assert npf == 128
    e("s_mul_i32 s21, s20, 15360")
    for r_ in range(3):
        e(f"v_add_u32 v1, {r_*320}, v0")
        e(f"v_lshlrev_b32 v{10+r_}, 4, v1")
        e(f"buffer_load_dwordx4 v[{20+4*r_}:{23+4*r_}], v{10+r_}, s[8:11], s21 offen")
        e("v_mul_u32_u24 v2, 820, v1"); e("v_lshrrev_b32 v2, 16, v2")
        e("v_mul_u32_u24 v3, 80, v2"); e("v_sub_u32 v3, v1, v3")
        e("v_mul_u32_u24 v4, 6554, v3"); e("v_lshrrev_b32 v4, 16, v4")
        e("v_mul_u32_u24 v5, 10, v4"); e("v_sub_u32 v5, v3, v5")
        e("v_mul_u32_u24 v4, 245760, v4"); e("v_mul_u32_u24 v2, 160, v2"); e("v_lshlrev_b32 v5, 4, v5")
        e(f"v_add_u32 v{14+r_}, v4, v2"); e(f"v_add_u32 v{14+r_}, v{14+r_}, v5")
    e("s_mul_i32 s21, s20, 1920"); e(f"s_add_u32 s21, s21, {WS_WD}")
    for r_ in range(3):
        e(f"buffer_store_dwordx4 v[{20+4*r_}:{23+4*r_}], v{14+r_}, s[24:27], s21 offen sc1")
    for m, ko in enumerate((48, 56)):
        e(f"s_load_dwordx2 s[4:5], s[0:1], {ko}"); e("s_waitcnt lgkmcnt(0)")
        srd(P, 8, 4, 5, 1966080)
        e("s_mul_i32 s21, s20, 15360")
        for r_ in range(3):
            e(f"v_add_u32 v1, {r_*320}, v0")
            e(f"v_lshlrev_b32 v{10+r_}, 4, v1")
            e(f"buffer_load_dwordx4 v[{32+m*12+4*r_}:{35+m*12+4*r_}], v{10+r_}, s[8:11], s21 offen")
            e("v_lshrrev_b32 v2, 6, v1"); e("v_mul_u32_u24 v2, 21846, v2"); e("v_lshrrev_b32 v2, 16, v2")
            e("v_mul_u32_u24 v3, 192, v2"); e("v_sub_u32 v3, v1, v3")
            e("v_mul_u32_u24 v4, 5462, v3"); e("v_lshrrev_b32 v4, 16, v4")
            e("v_mul_u32_u24 v5, 12, v4"); e("v_sub_u32 v5, v3, v5")
            e("v_mul_u32_u24 v4, 245760, v4"); e("v_mul_u32_u24 v2, 384, v2"); e("v_lshlrev_b32 v5, 4, v5")
            e(f"v_add_u32 v{56+m*3+r_}, v4, v2"); e(f"v_add_u32 v{56+m*3+r_}, v{56+m*3+r_}, v5")
    for m in range(2):
        e("s_mul_i32 s21, s20, 1920"); e(f"s_add_u32 s21, s21, {WS_WGU + m*192}")
        for r_ in range(3):
            e(f"buffer_store_dwordx4 v[{32+m*12+4*r_}:{35+m*12+4*r_}], v{56+m*3+r_}, s[24:27], s21 offen sc1")
    e("s_endpgm")
    P.finalize(report_nops=False)
    return P

def gen_diag_touch(name, ko, chunk_bytes, xcd_to_off, nwg=256):
    P = Prog(); e = P.e
    e(f"s_cmp_ge_u32 s2, {nwg}"); e(f"s_cbranch_scc1 {name}_END")
    e(f"s_load_dwordx2 s[4:5], s[0:1], {ko}"); e("s_waitcnt lgkmcnt(0)")
    srd(P, 8, 4, 5, 0x7fffffff)
    e("s_and_b32 s21, s2, 7"); e("s_lshr_b32 s22, s2, 3")
    xcd_to_off(e)
    per = chunk_bytes // (nwg // 8)
    e(f"s_mul_i32 s3, s22, {per}"); e("s_add_u32 s23, s23, s3"); e("v_lshlrev_b32 v1, 4, v0")
    for i in range(per // 4096):
        e(NT("buffer_load_dwordx4 v[4:7], v1, s[8:11], s23 offen")); e("s_add_u32 s23, s23, 4096")
    e(f"{name}_END:"); e("s_endpgm")
    P.finalize(report_nops=False)
    return P

if __name__ == "__main__":
    from k2gen import wrap
    k0 = gen_k0(); k1 = gen_k1(); k4 = gen_k4()
    open("k01.s", "w").write(wrap([("k0_kernel", k0.text(), 256, 256), ("k1_kernel", k1.text(), 256, 256)],
                                  [("k0_kernel", 120, 256, 16384), ("k1_kernel", 128, 256, 16384)]))
    open("k4.s", "w").write(wrap([("k4_kernel", k4.text(), 256, 256)], [("k4_kernel", 128, 256, 16384)]))
```

```python
from asmgen import *
import kgemm
from kgemm import gemm_stream, BIAS
from ksmall import srd, f2u, NSPLIT
from k2gen import WS_MOD, WS_HF, WS_OF, WS_PART, WS_X1, WS_H2F, WS_ACT, WS_BYTES, WS_STAMP, WS_CNT, WS_WD, WS_WGU

LDS_V = 122880
LDS_R = LDS_V + 4*5120
LDS_TAIL = LDS_R + 2*1280
SPIN = 0x4000

def gbar(P, idx, hook=None, also=None):
    e = P.e
    r = lambda t: P.e(RAW(t))
    e("s_waitcnt vmcnt(0)")
    e("s_barrier")
    r("s_cmp_lg_u32 s23, 0"); r(f"s_cbranch_scc1 KT_A{idx}")
    r(f"s_lshl_b32 s3, s21, 7"); r(f"s_add_u32 s3, s3, {WS_CNT + idx*2048}")
    r("v_mov_b32 v250, s3"); r("v_mov_b32 v251, 1")
    r("s_mov_b64 exec, 1")
    r("buffer_atomic_add v251, v250, s[12:15], 0 offen sc1")
    r("s_mov_b64 exec, -1")
    r(f"KT_A{idx}:")
    if hook: hook()
    r("s_cmp_lg_u32 s23, 0"); r(f"s_cbranch_scc1 KT_B{idx}")
    if also is not None:
        r("v_lshlrev_b32 v251, 7, v0"); r(f"v_add_u32 v251, {WS_CNT + also*2048}, v251")
        r("v_cmp_eq_u32 vcc, 16, v0"); r("s_nop 1"); r("v_cndmask_b32 v250, v251, v250, vcc")
        r("s_mov_b64 exec, 0x1ffff")
    else:
        r("s_mov_b64 exec, 1")
    r("s_mov_b32 s25, 0")
    r(f"KT_P{idx}:")
    r("buffer_load_dword v251, v250, s[12:15], 0 offen sc1")
    r("s_waitcnt vmcnt(0)")
    r("v_cmp_gt_u32 vcc, 16, v251")
    r("s_add_u32 s25, s25, 1"); r("s_nop 3")
    r("s_and_b64 vcc, vcc, exec")
    r(f"s_cbranch_scc0 KT_D{idx}")
    r("s_sleep 1")
    r(f"s_cmp_lt_u32 s25, {SPIN}"); r(f"s_cbranch_scc1 KT_P{idx}")
    r(f"KT_D{idx}:")
    r("s_mov_b64 exec, -1")
    r(f"KT_B{idx}:")
    e("s_waitcnt lgkmcnt(0)")
    e("s_barrier")

def gen_kt(stamps=False, detail=None, P=None):
    fused = P is not None
    if not fused: P = Prog()
    e = P.e
    st_i = [0]
    def dstamp(tag):
        if detail == tag:
            e(f"s_memtime s[{60+2*st_i[0]}:{61+2*st_i[0]}]"); st_i[0] += 1
    def stamp():
        if stamps and detail is None:
            e(f"s_memtime s[{60+2*st_i[0]}:{61+2*st_i[0]}]"); st_i[0] += 1
    if not fused:
        e("s_cmp_ge_u32 s2, 256"); e("s_cbranch_scc1 KT_END")
    e("s_load_dwordx2 s[40:41], s[0:1], 32")
    e("s_load_dwordx2 s[42:43], s[0:1], 104")
    e("s_load_dwordx2 s[44:45], s[0:1], 0")
    e("s_load_dwordx4 s[48:51], s[0:1], 48")
    e("s_load_dwordx2 s[52:53], s[0:1], 64")
    e("s_load_dwordx2 s[54:55], s[0:1], 88")
    stamp()
    e("s_and_b32 s20, s2, 3")
    e("s_lshr_b32 s3, s2, 2"); e("s_and_b32 s3, s3, 1"); e("s_lshl_b32 s3, s3, 3")
    e("s_lshr_b32 s21, s2, 5"); e("s_add_u32 s21, s21, s3")
    e("s_lshr_b32 s22, s2, 3"); e("s_and_b32 s22, s22, 3")
    e("s_lshl_b32 s56, s20, 2"); e("s_add_u32 s56, s56, s22")
    if fused:
        e("s_mov_b32 s23, s26")
        e("s_lshr_b32 s58, s2, 5"); e("s_lshl_b32 s58, s58, 2"); e("s_and_b32 s3, s2, 7"); e("s_lshr_b32 s3, s3, 1"); e("s_add_u32 s58, s58, s3")
        e("s_lshl_b32 s58, s58, 7"); e(f"s_add_u32 s58, s58, {WS_CNT + 4*2048}")
        e("s_lshr_b32 s59, s21, 1"); e("s_lshl_b32 s59, s59, 2"); e("s_add_u32 s59, s59, s20")
        e("s_lshl_b32 s59, s59, 7"); e(f"s_add_u32 s59, s59, {WS_CNT + 4*2048}")
    else:
        e("v_lshrrev_b32 v1, 6, v0"); e("v_and_b32 v0, 63, v0")
        e("v_readfirstlane_b32 s23, v1")
    NS = 6; ST = 20480
    for i in range(5):
        e(f"v_add_u32 v10, {i*64}, v0")
        e("v_mul_u32_u24 v11, 3277, v10"); e("v_lshrrev_b32 v11, 16, v11")
        e("v_mul_u32_u24 v12, 20, v11"); e("v_sub_u32 v12, v10, v12")
        e("v_lshrrev_b32 v13, 2, v11"); e("v_and_b32 v13, 1, v13"); e("v_lshlrev_b32 v13, 1, v13")
        e("v_xor_b32 v12, v12, v13"); e("v_lshlrev_b32 v12, 4, v12")
        e("v_mul_u32_u24 v11, 1280, v11"); e("v_add_u32 v11, v11, v12")
        e(f"v_add_u32 v{2+i}, {BIAS - (i*1024 if i < 4 else 0)}, v11")
    e("s_mul_i32 s3, s23, 20480")
    for i in range(5): e(f"v_add_u32 v{2+i}, s3, v{2+i}")
    e("s_lshl_b32 s3, s21, 3"); e("s_lshl_b32 s24, s23, 1"); e("s_add_u32 s24, s24, s3")
    e("s_mul_i32 s3, s24, 196608"); e("s_mul_i32 s25, s20, 49152"); e("s_add_u32 s3, s3, s25"); e(f"s_add_u32 s3, s3, {WS_OF}")
    e("v_lshlrev_b32 v10, 4, v0"); e("v_add_u32 v15, s3, v10"); e("v_add_u32 v16, 196608, v15")
    e("s_mul_i32 s26, s23, 5120"); e("s_mul_i32 s27, s20, 1966080")
    e("s_waitcnt lgkmcnt(0)")
    e("s_mul_i32 s3, s22, 320")
    e("s_add_u32 s8, s40, s3"); e("s_addc_u32 s9, s41, 0"); e(f"s_sub_u32 s8, s8, {BIAS}"); e("s_subb_u32 s9, s9, 0")
    e(f"s_sub_u32 s10, {7864320+BIAS}, s3"); e("s_mov_b32 s11, 0x20000")
    srd(P, 12, 42, 43, WS_BYTES)
    ACC = 176; AR = 20; ASL = 12; BR = 68; BS = 6
    def acc3(t, ct): return ACC + (t*2 + ct)*4
    def tr3(n):
        ks, t = divmod(n, 10); st, kk = divmod(ks, 2)
        sett, so = divmod(st % NS, 3)
        areg = [7, 8, 9, 14][sett*2 + (t & 1)]
        off = so*ST + kk*10240 + (t >> 1)*64
        r = AR + (n % ASL)*4
        return [Ins(f"ds_read_b64_tr_b16 v[{r}:{r+1}], v{areg} offset:{off}"),
                Ins(f"ds_read_b64_tr_b16 v[{r+2}:{r+3}], v{areg} offset:{off+5120}")]
    def bl3(ks):
        b = BR + (ks % BS)*8
        return ([Ins(f"s_mov_b32 s28, {ks*1024}")],
                [Ins(f"buffer_load_dwordx4 v[{b+4*ct}:{b+4*ct+3}], v{15+ct}, s[12:15], s28 offen" + (" sc1" if fused else "")) for ct in range(2)])
    def dma3(st):
        L = [Ins(f"s_add_u32 m0, s26, {(st % NS)*ST}"), Ins(f"s_add_u32 s29, s27, {st*81920}")]
        D = [Ins(f"buffer_load_dwordx4 v{2+i}, s[8:11], s29 offen offset:{i*1024} lds") for i in range(4)]
        D.append(Ins(f"s_add_u32 m0, s26, {(st % NS)*ST + 4096}"))
        D.append(Ins(f"buffer_load_dwordx4 v6, s[8:11], s29 offen lds"))
        return L, D
    H = {'b': {}}
    for st in range(3):
        L, D = dma3(st); P.many(L); P.many(D); H[st] = D[-1]
        for ks in ((2*st, 2*st+1) if st < 2 else (4,)) if not fused else ():
            L, D = bl3(ks); P.many(L); P.many(D); H['b'][ks] = D[-1]
        if st == 0:
            e("v_lshrrev_b32 v10, 4, v0")
            e("v_lshrrev_b32 v11, 2, v0"); e("v_and_b32 v11, 3, v11")
            e("v_lshlrev_b32 v12, 2, v10"); e("v_add_u32 v11, v11, v12"); e("v_mul_u32_u24 v11, 320, v11")
            e("v_and_b32 v12, 3, v0"); e("v_lshlrev_b32 v12, 3, v12"); e("v_add_u32 v11, v11, v12")
            e("v_and_b32 v12, 1, v10"); e("v_lshlrev_b32 v12, 5, v12")
            e("v_add_u32 v7, v11, v12"); e("v_xor_b32 v12, 32, v12"); e("v_add_u32 v8, v11, v12")
            e(f"v_add_u32 v9, {3*ST}, v7"); e(f"v_add_u32 v14, {3*ST}, v8")
            e("s_lshl_b32 s3, s20, 7"); e("s_add_u32 s3, s3, s24"); e("s_mul_i32 s3, s3, 20480")
            e("s_mul_i32 s25, s22, 5120"); e("s_add_u32 s3, s3, s25"); e(f"s_add_u32 s3, s3, {WS_PART}")
            e("v_lshlrev_b32 v10, 4, v0"); e("v_add_u32 v17, s3, v10"); e("v_add_u32 v18, 20480, v17")
    srd(P, 16, 44, 45, 2048*1280)
    e("v_and_b32 v120, 7, v0"); e("v_lshrrev_b32 v121, 4, v0"); e("v_lshrrev_b32 v122, 3, v0"); e("v_and_b32 v122, 1, v122")
    e("s_lshl_b32 s30, s21, 3"); e("s_lshr_b32 s3, s56, 1"); e("s_add_u32 s30, s30, s3"); e("s_and_b32 s31, s56, 1")
    e("s_mul_i32 s3, s30, 20480"); e("s_lshl_b32 s25, s31, 7"); e("s_add_u32 s3, s3, s25")
    e("v_lshlrev_b32 v123, 10, v122"); e("v_lshlrev_b32 v124, 8, v121"); e("v_add_u32 v123, v123, v124"); e("v_lshlrev_b32 v124, 4, v120"); e("v_add_u32 v123, v123, v124")
    e("v_add_u32 v123, s3, v123")
    e("s_lshl_b32 s36, s23, 11"); e("s_add_u32 s37, s36, 8192"); e("s_and_b32 s38, s23, 1"); e("s_lshl_b32 s38, s38, 11"); e("s_add_u32 s38, s38, 16384")
    PAIR = [36, 37, 38]
    for j in range(3): e(f"v_add_u32 v{125+j}, s{PAIR[j]}, v123")
    e("s_lshl_b32 s3, s30, 4"); e("s_lshl_b32 s25, s31, 3"); e("s_add_u32 s3, s3, s25"); e("v_add_u32 v128, s3, v120"); e("v_mul_u32_u24 v128, 1280, v128")
    e("v_lshlrev_b32 v124, 6, v122"); e("v_add_u32 v128, v128, v124"); e("v_lshlrev_b32 v124, 3, v121"); e("v_add_u32 v128, v128, v124")
    for j in range(3):
        e(f"s_lshr_b32 s3, s{PAIR[j]}, 4"); e(f"v_add_u32 v{129+j}, s3, v128")
    XR = 132; MP = 160
    for j in range(3):
        for hh in range(2):
            e(f"buffer_load_dwordx2 v[{XR+j*4+hh*2}:{XR+j*4+hh*2+1}], v{129+j}, s[16:19], 0 offen offset:{hh*32}")
    srd(P, 32, 52, 53, 1966080)
    e("s_lshl_b32 s3, s23, 6"); e("v_add_u32 v144, s3, v0"); e("s_mul_i32 s25, s2, 480")
    for r_ in range(2):
        e(f"v_add_u32 v145, {r_*256}, v144")
        e("v_cmp_gt_u32 vcc, 480, v145"); e("v_add_u32 v145, s25, v145")
        e("v_lshlrev_b32 v146, 4, v145"); e("v_mov_b32 v147, 0x7ff00000"); e("v_cndmask_b32 v146, v147, v146, vcc")
        e(f"buffer_load_dwordx4 v[{160+4*r_}:{163+4*r_}], v146, s[32:35], 0 offen")
        e("s_mov_b32 s3, 53687092"); e("v_mul_hi_u32 v146, v145, s3")
        e("v_mul_u32_u24 v157, 80, v146"); e("v_sub_u32 v157, v145, v157")
        e("v_mul_u32_u24 v158, 6554, v157"); e("v_lshrrev_b32 v158, 16, v158")
        e("v_mul_u32_u24 v159, 10, v158"); e("v_sub_u32 v159, v157, v159")
        e("v_mul_u32_u24 v158, 245760, v158"); e("v_mul_u32_u24 v146, 160, v146")
        e("v_lshlrev_b32 v159, 4, v159"); e("v_add_u32 v158, v158, v146"); e("v_add_u32 v158, v158, v159")
        e(f"v_cndmask_b32 v{168+r_}, v147, v158, vcc")
    if fused:
        r = lambda t: P.e(RAW(t))
        e("s_waitcnt vmcnt(0)"); e("s_barrier")
        r("s_cmp_lg_u32 s23, 0"); r("s_cbranch_scc1 KT_OB")
        r("v_mov_b32 v250, s58"); r("v_mov_b32 v251, 1"); r("s_mov_b64 exec, 1")
        r("buffer_atomic_add v251, v250, s[12:15], 0 offen sc1")
        r("v_mov_b32 v250, s59"); r("s_mov_b32 s25, 0")
        r("KT_OP:")
        r("buffer_load_dword v251, v250, s[12:15], 0 offen sc1")
        r("s_waitcnt vmcnt(0)")
        r("v_readfirstlane_b32 s3, v251"); r("s_add_u32 s25, s25, 1"); r("s_nop 2")
        r("s_cmp_ge_u32 s3, 8"); r("s_cbranch_scc1 KT_OD")
        r("s_sleep 1")
        r(f"s_cmp_lt_u32 s25, {SPIN}"); r("s_cbranch_scc1 KT_OP")
        r("KT_OD:")
        r("s_mov_b64 exec, -1")
        r("KT_OB:")
        e("s_barrier")
        for ks in range(5):
            L, D = bl3(ks); P.many(L); P.many(D); H['b'][ks] = D[-1]
    else:
        P.wait_vm(H[0]); e("s_barrier")
    PF = 6
    for n in range(PF):
        rr = tr3(n); P.many(rr); H.setdefault('tr', {})[n] = rr[-1]
    stamp()
    rp = [(Ins(f"s_mov_b32 s57, {WS_WD}"), 40, 60)] + [(Ins(f"buffer_store_dwordx4 v[{160+4*r_}:{163+4*r_}], v{168+r_}, s[12:15], s57 offen sc1"), 42 + 10*r_, 80) for r_ in range(2)]
    gemm_stream(P, 48, 10, 2, 2, acc3, AR, ASL, BR, BS, tr3, bl3, dma3, H, PF, 5, 5, 24, extra=rp)
    stamp()
    for u in range(5):
        e(f"s_mov_b32 s28, {u*1024}")
        for ct in range(2):
            a = acc3(2*u, ct); b = acc3(2*u+1, ct); d = 20 + (u*2+ct)*4
            e(f"v_cvt_pk_bf16_f32 v{d}, v{a}, v{a+1}"); e(f"v_cvt_pk_bf16_f32 v{d+1}, v{a+2}, v{a+3}")
            e(f"v_cvt_pk_bf16_f32 v{d+2}, v{b}, v{b+1}"); e(f"v_cvt_pk_bf16_f32 v{d+3}, v{b+2}, v{b+3}")
            e(f"buffer_store_dwordx4 v[{d}:{d+3}], v{17+ct}, s[12:15], s28 offen sc1")
    def s5_setup():
        for i in range(3):
            e(f"v_add_u32 v110, {i*64}, v0")
            e("v_mul_u32_u24 v111, 5462, v110"); e("v_lshrrev_b32 v111, 16, v111")
            e("v_mul_u32_u24 v112, 12, v111"); e("v_sub_u32 v112, v110, v112")
            e("v_lshrrev_b32 v113, 2, v111"); e("v_and_b32 v113, 1, v113"); e("v_lshlrev_b32 v113, 1, v113")
            e("v_xor_b32 v112, v112, v113"); e("v_lshlrev_b32 v112, 4, v112")
            e("v_mul_u32_u24 v111, 3072, v111"); e("v_add_u32 v111, v111, v112")
            e(f"v_add_u32 v{2+i}, {BIAS - i*1024}, v111")
        e("s_lshr_b32 s3, s23, 1"); e("s_mul_i32 s3, s3, 49152")
        for i in range(3): e(f"v_add_u32 v{2+i}, s3, v{2+i}")
        e("s_and_b32 s3, s23, 1"); e("s_cmp_eq_u32 s3, 0")
        e("s_cselect_b32 s8, s48, s50"); e("s_cselect_b32 s9, s49, s51")
        e("s_mul_i32 s3, s56, 192")
        e("s_add_u32 s8, s8, s3"); e("s_addc_u32 s9, s9, 0"); e(f"s_sub_u32 s8, s8, {BIAS}"); e("s_subb_u32 s9, s9, 0")
        e(f"s_sub_u32 s10, {640*3072+BIAS}, s3"); e("s_mov_b32 s11, 0x20000")
        e("s_mul_i32 s26, s23, 3072")
        e("v_lshrrev_b32 v10, 4, v0")
        e("v_lshrrev_b32 v11, 2, v0"); e("v_mul_u32_u24 v11, 192, v11")
        e("v_and_b32 v12, 3, v0"); e("v_lshlrev_b32 v12, 3, v12"); e("v_add_u32 v11, v11, v12")
        e("v_and_b32 v12, 1, v10"); e("v_lshlrev_b32 v12, 5, v12")
        e("v_add_u32 v7, v11, v12"); e("v_xor_b32 v12, 32, v12"); e("v_add_u32 v8, v11, v12")
        e("v_lshlrev_b32 v10, 4, v0")
        e("s_mul_i32 s3, s24, 20480"); e(f"s_add_u32 s3, s3, {WS_H2F}"); e("v_add_u32 v15, s3, v10"); e("v_add_u32 v16, 20480, v15")
        e("s_mul_i32 s3, s24, 49152"); e("s_mul_i32 s25, s56, 3072"); e("s_add_u32 s3, s3, s25"); e(f"s_add_u32 s3, s3, {WS_ACT}")
        e("v_add_u32 v17, s3, v10"); e("v_add_u32 v18, 49152, v17")
    NS5 = 5; ST5 = 12288
    def dma5(st):
        return ([Ins(f"s_add_u32 m0, s26, {(st % NS5)*ST5}"), Ins(f"s_mov_b32 s29, {st*32*3072}")],
                [Ins(f"buffer_load_dwordx4 v{2+i}, s[8:11], s29 offen offset:{i*1024} lds") for i in range(3)])
    H5 = {'b': {}}
    e("s_lshl_b32 s3, s23, 6"); e("v_add_u32 v144, s3, v0")
    for i in range(3):
        e(f"v_add_u32 v145, {256*i}, v144"); e("v_min_u32 v145, 639, v145")
        e("v_mul_u32_u24 v146, 410, v145"); e("v_lshrrev_b32 v146, 16, v146")
        e("v_mul_u32_u24 v147, 160, v146"); e("v_sub_u32 v147, v145, v147")
        e(f"v_lshlrev_b32 v{148+i}, 4, v147")
        e("v_mul_u32_u24 v147, 2560, v146"); e(f"v_add_u32 v147, v147, v{148+i}")
        for p in range(NSPLIT):
            e(f"s_mov_b32 s25, {WS_MOD + (p*3840 + 2*640)*4}")
            e(f"buffer_load_dwordx4 v[{MP+(i*4+p)*4}:{MP+(i*4+p)*4+3}], v147, s[12:15], s25 offen")
        e(f"v_mul_u32_u24 v146, 5120, v146"); e(f"v_add_u32 v{148+i}, v{148+i}, v146"); e(f"v_add_u32 v{148+i}, {LDS_V}, v{148+i}")
    X = 208
    def hook1():
        s5_setup()
        for i in range(3):
            b = MP + i*16
            for p in range(1, NSPLIT):
                for k in range(4): e(f"v_add_f32 v{b+k}, v{b+k}, v{b+4*p+k}")
            e(f"v_subrev_u32 v146, {LDS_V + 2*5120}, v{148+i}"); e("v_cmp_gt_u32 vcc, 5120, v146"); e("s_nop 1")
            e("v_cndmask_b32 v146, 0, 1.0, vcc")
            for k in range(4):
                e(f"v_cvt_pk_bf16_f32 v{b+k}, v{b+k}, v{b+k}"); e(f"v_and_b32 v{b+k}, 0xffff0000, v{b+k}"); e(f"v_add_f32 v{b+k}, v{b+k}, v146")
            e(f"ds_write_b128 v{148+i}, v[{b}:{b+3}]")
        for q in range(12):
            e(f"v_lshlrev_b32 v{X+2*q}, 16, v{XR+q}"); e(f"v_and_b32 v{X+2*q+1}, 0xffff0000, v{XR+q}")
        e("v_lshlrev_b32 v151, 7, v122"); e("v_lshlrev_b32 v146, 4, v121"); e("v_add_u32 v151, v151, v146"); e(f"v_add_u32 v151, {LDS_V}, v151")
        for j in range(3):
            e(f"s_lshr_b32 s3, s{PAIR[j]}, 3"); e(f"v_add_u32 v{152+j}, s3, v151")
        e("s_cmp_lt_u32 s23, 2"); e("s_cselect_b32 s39, 1.0, 0")
        e("v_mul_u32_u24 v155, 144, v120"); e(f"v_add_u32 v155, {LDS_R}, v155")
        e("v_lshlrev_b32 v156, 3, v121"); e("v_lshlrev_b32 v146, 2, v122"); e("v_add_u32 v156, v156, v146"); e("s_lshl_b32 s3, s23, 5"); e("v_add_u32 v156, s3, v156"); e("v_add_u32 v156, v156, v155")
    stamp()
    gbar(P, 0, hook1)
    stamp()
    dstamp('s4')
    PR = 20
    for p in range(4):
        for j in range(3):
            e(f"s_mov_b32 s25, {WS_PART + p*128*20480}")
            e(f"buffer_load_dwordx4 v[{PR+(p*3+j)*4}:{PR+(p*3+j)*4+3}], v{125+j}, s[12:15], s25 offen sc1")
    T = 20; OX = 100; GA = 160
    for j in range(3):
        for hh in range(2):
            k = j*2 + hh
            e(f"ds_read_b128 v[{GA+4*k}:{GA+4*k+3}], v{152+j} offset:{hh*64}")
    for st in range(4):
        L, D = dma5(st); P.many(L); P.many(D); H5[st] = D[-1]
    dstamp('s4')
    A_ = 72
    e("v_mov_b32 v146, 0x3f80"); e("v_mov_b32 v147, 0x3f800000")
    for q in range(12):
        e(f"v_lshlrev_b32 v{A_+2*q}, 16, v{PR+q}"); e(f"v_and_b32 v{A_+2*q+1}, 0xffff0000, v{PR+q}")
    for p in range(1, 4):
        for q in range(12):
            r = PR + p*12 + q
            e(f"v_dot2c_f32_bf16 v{A_+2*q}, v{r}, v146"); e(f"v_dot2c_f32_bf16 v{A_+2*q+1}, v{r}, v147")
    dstamp('s4')
    for k in range(6):
        for i in (0, 2): e(f"v_pk_fma_f32 v[{X+4*k+i}:{X+4*k+i+1}], v[{A_+4*k+i}:{A_+4*k+i+1}], v[{GA+4*k+i}:{GA+4*k+i+1}], v[{X+4*k+i}:{X+4*k+i+1}]")
        e(f"v_cvt_pk_bf16_f32 v{OX+2*k}, v{X+4*k}, v{X+4*k+1}"); e(f"v_cvt_pk_bf16_f32 v{OX+2*k+1}, v{X+4*k+2}, v{X+4*k+3}")
    for q in range(12):
        e(f"v_lshlrev_b32 v{X+2*q}, 16, v{OX+q}"); e(f"v_and_b32 v{X+2*q+1}, 0xffff0000, v{OX+q}")
    e(f"s_mov_b32 s25, {WS_X1}")
    for j in range(3): e(f"buffer_store_dwordx4 v[{OX+4*j}:{OX+4*j+3}], v{125+j}, s[12:15], s25 offen sc1")
    dstamp('s4')
    for j in range(3):
        for hh in range(2):
            k = j*2 + hh
            e(f"ds_read_b128 v[{T+4*k}:{T+4*k+3}], v{152+j} offset:{2*5120 + hh*64}")
            e(f"ds_read_b128 v[{T+24+4*k}:{T+24+4*k+3}], v{152+j} offset:{1*5120 + hh*64}")
    dstamp('s4')
    def red(val, base):
        e(f"ds_write_b32 v156, v{val} offset:{base}")
        e("s_waitcnt lgkmcnt(0)"); e("s_barrier")
        for q in range(8): e(f"ds_read_b128 v[{160+4*q}:{163+4*q}], v155 offset:{base+16*q}")
        for n in (16, 8, 4, 2):
            for q in range(0, n, 2): e(f"v_pk_add_f32 v[{160+q}:{161+q}], v[{160+q}:{161+q}], v[{160+n+q}:{161+n+q}]")
        e(f"v_add_f32 v{val}, v160, v161")
    e(f"v_pk_add_f32 v[158:159], v[{X}:{X+1}], v[{X+2}:{X+3}]")
    for i in range(2, 8): e(f"v_pk_add_f32 v[158:159], v[158:159], v[{X+2*i}:{X+2*i+1}]")
    e(f"v_pk_add_f32 v[96:97], v[{X+16}:{X+17}], v[{X+18}:{X+19}]")
    for i in range(10, 12): e(f"v_pk_add_f32 v[96:97], v[96:97], v[{X+2*i}:{X+2*i+1}]")
    e("v_add_f32 v158, v158, v159"); e("v_add_f32 v96, v96, v97"); e("v_fma_f32 v158, v96, s39, v158")
    dstamp('s4')
    red(158, 0)
    dstamp('s4')
    e(f"v_mul_f32 v158, {f2u(-1/640)}, v158"); e("v_mov_b32 v159, v158")
    for i in range(0, 24, 2): e(f"v_pk_add_f32 v[{X+i}:{X+i+1}], v[{X+i}:{X+i+1}], v[158:159]")
    e(f"v_pk_mul_f32 v[98:99], v[{X}:{X+1}], v[{X}:{X+1}]")
    for i in range(2, 16, 2): e(f"v_pk_fma_f32 v[98:99], v[{X+i}:{X+i+1}], v[{X+i}:{X+i+1}], v[98:99]")
    e(f"v_pk_mul_f32 v[96:97], v[{X+16}:{X+17}], v[{X+16}:{X+17}]")
    for i in range(18, 24, 2): e(f"v_pk_fma_f32 v[96:97], v[{X+i}:{X+i+1}], v[{X+i}:{X+i+1}], v[96:97]")
    e("v_add_f32 v159, v98, v99"); e("v_add_f32 v96, v96, v97")
    e("v_fma_f32 v159, v96, s39, v159")
    red(159, 1280)
    dstamp('s4')
    e(f"v_mul_f32 v159, {f2u(1/640)}, v159"); e(f"v_add_f32 v159, {f2u(1e-5)}, v159"); e("v_rsq_f32 v159, v159"); e("s_nop 0")
    e("v_mov_b32 v158, v159")
    for i in range(0, 24, 2):
        e(f"v_pk_mul_f32 v[{X+i}:{X+i+1}], v[{X+i}:{X+i+1}], v[158:159]")
    for i in range(0, 24, 2):
        e(f"v_pk_fma_f32 v[{X+i}:{X+i+1}], v[{X+i}:{X+i+1}], v[{T+i}:{T+i+1}], v[{T+24+i}:{T+24+i+1}]")
    for k in range(6):
        e(f"v_cvt_pk_bf16_f32 v{OX+2*k}, v{X+4*k}, v{X+4*k+1}"); e(f"v_cvt_pk_bf16_f32 v{OX+2*k+1}, v{X+4*k+2}, v{X+4*k+3}")
    e(f"s_mov_b32 s25, {WS_H2F}")
    for j in range(3): e(f"buffer_store_dwordx4 v[{OX+4*j}:{OX+4*j+3}], v{125+j}, s[12:15], s25 offen sc1")
    dstamp('s4')
    stamp()
    gbar(P, 1, None, also=0)
    dstamp('s4')
    stamp()
    ACC5 = 160
    def acc5(t, ct): return ACC5 + (t*2 + ct)*4
    def tr5(n):
        ks, t = divmod(n, 12); m_, j = divmod(t, 6)
        off = (ks % NS5)*ST5 + m_*3072 + (j >> 1)*64
        r = AR + (n % ASL)*4
        return [Ins(f"ds_read_b64_tr_b16 v[{r}:{r+1}], v{7 + (j & 1)} offset:{off}"),
                Ins(f"ds_read_b64_tr_b16 v[{r+2}:{r+3}], v{7 + (j & 1)} offset:{off+6144}")]
    def bl5(ks):
        b = BR + (ks % BS)*8
        return ([Ins(f"s_mov_b32 s28, {ks*1024}")],
                [Ins(f"buffer_load_dwordx4 v[{b+4*ct}:{b+4*ct+3}], v{15+ct}, s[12:15], s28 offen sc1") for ct in range(2)])
    for ks in range(5):
        L, D = bl5(ks); P.many(L); P.many(D); H5['b'][ks] = D[-1]
    for n in range(PF):
        rr = tr5(n); P.many(rr); H5.setdefault('tr', {})[n] = rr[-1]
    gemm_stream(P, 20, 12, 2, 1, acc5, AR, ASL, BR, BS, tr5, bl5, dma5, H5, PF, 5, 4, 20)
    stamp()
    for u in range(3):
        e(f"s_mov_b32 s28, {u*1024}")
        for ct in range(2):
            dst = 20 + (u*2 + ct)*4
            for hh in range(2):
                j = 2*u + hh
                g = acc5(j, ct); up = acc5(6+j, ct)
                for i in range(4): e(f"v_max_f32 v{g+i}, 0, v{g+i}")
                for i in range(4): e(f"v_mul_f32 v{g+i}, v{g+i}, v{up+i}")
                e(f"v_cvt_pk_bf16_f32 v{dst+2*hh}, v{g}, v{g+1}"); e(f"v_cvt_pk_bf16_f32 v{dst+2*hh+1}, v{g+2}, v{g+3}")
            e(f"buffer_store_dwordx4 v[{dst}:{dst+3}], v{17+ct}, s[12:15], s28 offen sc1")
    NS6 = 6; ST6 = 5120
    e("s_lshr_b32 s30, s20, 1"); e("s_lshl_b32 s30, s30, 2"); e("s_add_u32 s30, s30, s22")
    e("s_lshl_b32 s31, s21, 1"); e("s_and_b32 s3, s20, 1"); e("s_add_u32 s31, s31, s3")
    e("v_lshlrev_b32 v2, 4, v0"); e("v_add_u32 v6, 4096, v2")
    e("v_lshrrev_b32 v111, 2, v0"); e("v_mul_u32_u24 v111, 160, v111")
    e("v_and_b32 v112, 3, v0"); e("v_lshlrev_b32 v112, 3, v112"); e("v_add_u32 v7, v111, v112")
    e(f"s_mul_i32 s26, s23, {NS6*ST6}"); e("v_add_u32 v7, s26, v7")
    e("s_lshl_b32 s24, s31, 2")
    e("s_mul_i32 s3, s24, 49152"); e("s_mul_i32 s25, s23, 12288"); e("s_add_u32 s3, s3, s25"); e(f"s_add_u32 s3, s3, {WS_ACT}")
    e("v_lshlrev_b32 v10, 4, v0"); e("v_add_u32 v112, s3, v10")
    e("s_mul_i32 s27, s23, 61440"); e("s_mul_i32 s3, s30, 245760"); e("s_add_u32 s27, s27, s3"); e(f"s_add_u32 s27, s27, {WS_WD}")
    srd(P, 32, 54, 55, 2048*1280)
    def dma6(st):
        L = [Ins(f"s_add_u32 m0, s26, {(st % NS6)*ST6}"), Ins(f"s_add_u32 s29, s27, {st*5120}")]
        D = [Ins(f"buffer_load_dwordx4 v2, s[12:15], s29 offen offset:{i*1024} sc1 lds") for i in range(4)]
        D.append(Ins(f"s_add_u32 m0, s26, {(st % NS6)*ST6 + 4096}"))
        D.append(Ins(f"buffer_load_dwordx4 v6, s[12:15], s29 offen sc1 lds"))
        return L, D
    H6 = {'b': {}}
    def hook3():
        for st in range(3):
            L, D = dma6(st); P.many(L); P.many(D); H6[st] = D[-1]
    stamp()
    gbar(P, 2, hook3)
    stamp()
    for ct in range(4): e(f"v_add_u32 v{15+ct}, {ct*49152}, v112")
    ACC6 = 176; AR6 = 20; ASL6 = 8; BR6 = 52; BS6 = 4; XR6 = 116; GB6 = 128
    def acc6(t, ct): return ACC6 + (t*4 + ct)*4
    def tr6(n):
        ks, t = divmod(n, 5)
        off = (ks % NS6)*ST6 + t*32
        r = AR6 + (n % ASL6)*4
        return [Ins(f"ds_read_b64_tr_b16 v[{r}:{r+1}], v7 offset:{off}"),
                Ins(f"ds_read_b64_tr_b16 v[{r+2}:{r+3}], v7 offset:{off+2560}")]
    def bl6(ks):
        b = BR6 + (ks % BS6)*16
        return ([Ins(f"s_mov_b32 s28, {ks*1024}")],
                [Ins(f"buffer_load_dwordx4 v[{b+4*ct}:{b+4*ct+3}], v{15+ct}, s[12:15], s28 offen sc1") for ct in range(4)])
    for ks in range(3):
        L, D = bl6(ks); P.many(L); P.many(D); H6['b'][ks] = D[-1]
    e("s_add_u32 s3, s24, s23"); e("s_mul_i32 s36, s3, 20480"); e(f"s_add_u32 s36, s36, {WS_X1}")
    for t in range(5):
        e(f"s_mul_i32 s3, s30, 5"); e(f"s_add_u32 s3, s3, {t}"); e("s_lshr_b32 s37, s3, 1"); e("s_lshl_b32 s37, s37, 10")
        e("s_and_b32 s3, s3, 1"); e("s_lshl_b32 s3, s3, 3"); e("s_add_u32 s37, s37, s3"); e("s_add_u32 s37, s37, s36")
        e(f"buffer_load_dwordx2 v[{XR6+2*t}:{XR6+2*t+1}], v10, s[12:15], s37 offen sc1")
    e("v_lshrrev_b32 v11, 4, v0"); e("v_lshlrev_b32 v13, 4, v11"); e("s_mul_i32 s3, s30, 320"); e(f"s_add_u32 s3, s3, {LDS_V + 3*5120}"); e("v_add_u32 v13, s3, v13")
    for t in range(5): e(f"ds_read_b128 v[{GB6+4*t}:{GB6+4*t+3}], v13 offset:{t*64}")
    e("v_and_b32 v12, 15, v0"); e("s_lshl_b32 s3, s31, 6"); e("s_lshl_b32 s25, s23, 4"); e("s_add_u32 s3, s3, s25"); e("v_add_u32 v12, s3, v12")
    e("v_mul_u32_u24 v12, 1280, v12"); e("v_lshlrev_b32 v11, 3, v11"); e("v_add_u32 v12, v12, v11")
    e("s_mul_i32 s3, s30, 160"); e("v_add_u32 v14, s3, v12")
    PF6 = 4
    P.wait_vm(H6[0])
    for n in range(PF6):
        rr = tr6(n); P.many(rr); H6.setdefault('tr', {})[n] = rr[-1]
    bar0 = kgemm.GOPT['barrier']; kgemm.GOPT['barrier'] = False
    g0 = kgemm.GAP; kgemm.GAP = 2
    gemm_stream(P, 12, 5, 4, 1, acc6, AR6, ASL6, BR6, BS6, tr6, bl6, dma6, H6, PF6, 3, 4, 12, WG=1)
    kgemm.GAP = g0; kgemm.GOPT['barrier'] = bar0
    stamp()
    e("s_barrier")
    e("s_mul_i32 s3, s23, 20480"); e("v_add_u32 v11, s3, v10")
    for ct in range(4):
        for t in range(5):
            a = acc6(t, ct)
            e(f"ds_write_b128 v11, v[{a}:{a+3}] offset:{(ct*5+t)*1024}")
    e("s_waitcnt lgkmcnt(0)"); e("s_barrier")
    e("s_mul_i32 s3, s23, 5120"); e("v_add_u32 v11, s3, v10"); e("v_add_u32 v13, 40960, v11")
    for sw in range(4):
        for t in range(5):
            r = 20 + (sw*5 + t)*4
            e(f"ds_read_b128 v[{r}:{r+3}], v{11 if sw < 2 else 13} offset:{(sw & 1)*20480 + t*1024}")
    for t in range(5):
        y = 20 + t*4
        for sw in range(1, 4):
            for i in range(4): e(f"v_add_f32 v{y+i}, v{y+i}, v{20+(sw*5+t)*4+i}")
        x = XR6 + 2*t
        e(f"v_lshlrev_b32 v148, 16, v{x}"); e(f"v_and_b32 v149, 0xffff0000, v{x}")
        e(f"v_lshlrev_b32 v150, 16, v{x+1}"); e(f"v_and_b32 v151, 0xffff0000, v{x+1}")
        for i in range(4): e(f"v_fma_f32 v{y+i}, v{y+i}, v{GB6+4*t+i}, v{148+i}")
        e(f"v_cvt_pk_bf16_f32 v{y}, v{y}, v{y+1}"); e(f"v_cvt_pk_bf16_f32 v{y+1}, v{y+2}, v{y+3}")
        e(f"buffer_store_dwordx2 v[{y}:{y+1}], v14, s[32:35], 0 offen offset:{t*32}")
    if stamps:
        e("s_waitcnt vmcnt(0)"); stamp()
        while st_i[0] < 12:
            e(f"s_memtime s[{60+2*st_i[0]}:{61+2*st_i[0]}]"); st_i[0] += 1
        e("s_waitcnt lgkmcnt(0)")
        e(f"s_lshl_b32 s3, s2, 2"); e(f"s_add_u32 s3, s3, s23"); e("s_lshl_b32 s3, s3, 6"); e(f"s_add_u32 s3, s3, {WS_STAMP}")
        for i in range(st_i[0]):
            e(f"v_mov_b32 v1, s{60+2*i}"); e("v_mov_b32 v2, s3")
            e(f"buffer_store_dword v1, v2, s[12:15], 0 offen offset:{4*i}"); e("s_waitcnt vmcnt(0)")
    e("KT_END:")
    e("s_endpgm")
    if not fused: P.finalize(report_nops=False)
    P.nstamps = st_i[0]
    return P

if __name__ == "__main__":
    k = gen_kt(stamps=True)
    print(k.estimate(), len(k.final), k.nstamps)
```

```python
import sys, io, contextlib
import k2gen, ksmall, kgemm, ktail
from asmgen import *
from k2gen import *

HDR = open('adaLN_cond__sliding_block_cached__glu_gated_reglu__prompt.s.ref').read().split('; Override launch')[0]

K2OPT = {}
BOPT = {}
def gen_k2(stamps=False, fuse_tail=False, stk=None, mono=False):
    k2gen.OPT.update(K2OPT)
    k2gen.OPT['mono'] = mono
    P = Prog()
    H = {}
    if mono:
        P.e("s_cmp_ge_u32 s2, 256"); P.e("s_cbranch_scc1 KT_END")
        if K2OPT.get('mstamp'): P.e("s_memrealtime s[88:89]")
        ksmall.prep_roles(P)
        P.e("MONO_K2:")
        if K2OPT.get('mstamp'): P.e("s_memrealtime s[90:91]")
    if stamps: stamp(P, 0); P.e("s_waitcnt lgkmcnt(0)")
    prologue(P, stamps=False, check=not mono)
    main_pro(P, H, mono=mono)
    if K2OPT.get('mstamp'):
        P.e("s_memrealtime s[92:93]"); P.e("s_waitcnt lgkmcnt(0)")
        P.e(f"s_lshl_b32 s3, s2, 2"); P.e("s_add_u32 s3, s3, s26"); P.e("s_lshl_b32 s3, s3, 4"); P.e(f"s_add_u32 s3, s3, {WS_STAMP + 0x90000}")
        for q, sr in enumerate((88, 90, 92)): P.e(f"v_mov_b32 v{28+q}, s{sr}")
        P.e("v_mov_b32 v31, 0"); P.e("v_mov_b32 v32, s3"); P.e("buffer_store_dwordx4 v[28:31], v32, s[20:23], 0 offen")
    if stamps: stamp(P, 1)
    main_schedule(P, H)
    if stamps:
        n = 8 if K2OPT.get('stamps_in') else 2
        stamp(P, n); P.e("s_waitcnt vmcnt(0)"); stamp(P, n+1); write_stamps(P, n+2)
    guard_branch(P)
    if fuse_tail:
        P.e("K2_DONE:")
        ktail.gen_kt(stamps=(stk is not None and stk.startswith('kt')), detail=(stk[3:] if stk and len(stk) > 2 else None), P=P)
        P.items = [x for x in P.items]
        for x in P.items:
            if isinstance(x, Ins) and x.text == "s_cbranch_scc1 K2_END": x.text = "s_cbranch_scc1 KT_END"
    else:
        P.e("K2_END:")
        P.e("s_endpgm")
    P.finalize(report_nops=K2OPT.get('report', False))
    P2 = Prog(); H2 = {}
    safe_entry(P2)
    prologue(P2, stamps=False, check=False)
    main_pro(P2, H2, safe=True)
    main_schedule(P2, H2, safe=True)
    P2.e("s_branch K2_DONE" if fuse_tail else "s_endpgm")
    P2.finalize(report_nops=False)
    P.safe = P2
    return P

def add_rt(P, kidx):
    start = [Ins("s_mov_b32 s83, s2"), Ins("s_memrealtime s[92:93]"), Ins("s_memtime s[90:91]")]
    def end():
        return [Ins("s_mov_b64 exec, 1"), Ins("s_waitcnt vmcnt(0)"), Ins("s_memrealtime s[94:95]"), Ins("s_memtime s[88:89]"), Ins("s_load_dwordx2 s[96:97], s[0:1], 104"), Ins("s_waitcnt lgkmcnt(0)"),
           Ins("s_mov_b32 s84, s96"), Ins("s_mov_b32 s85, s97"), Ins(f"s_mov_b32 s86, {WS_BYTES}"), Ins("s_mov_b32 s87, 0x20000"),
           Ins("s_lshl_b32 s3, s83, 4"), Ins(f"s_add_u32 s3, s3, {WS_STAMP + 0x10000*(kidx+1)}"),
           Ins("v_mov_b32 v4, s92"), Ins("v_mov_b32 v5, s94"), Ins("v_mov_b32 v6, s90"), Ins("v_mov_b32 v7, s88"), Ins("v_mov_b32 v8, s3"),
           Ins("buffer_store_dwordx4 v[4:7], v8, s[84:87], 0 offen"), Ins("s_waitcnt vmcnt(0)")]
    items = list(start)
    for x in P.items:
        if isinstance(x, Ins) and x.op == 's_endpgm': items += end()
        items.append(x)
    P.items = items
    P.finalize(report_nops=False)

def build(fname, rt=False, k2stamps=False, stk=None, diag=None, fused=True, mega=True, mono=False):
    with contextlib.redirect_stdout(io.StringIO()):
        k01 = ksmall.gen_k01(pf=BOPT.get('pf01', ('code', 'wq'))); k2 = gen_k2(stamps=k2stamps, fuse_tail=(fused and mega), stk=stk, mono=(fused and mega and mono)); k3 = kgemm.gen_k3(stamps=(stk == 'k3')); k4 = ksmall.gen_k4b(); k5 = kgemm.gen_k5e(stamps=(stk == 'k5')); k6 = kgemm.gen_k6c(stamps=(stk == 'k6'))
        kt = ktail.gen_kt(stamps=(stk is not None and stk.startswith('kt')), detail=(stk[3:] if stk and len(stk) > 2 else None))
    if fused and mega and mono:
        if rt: add_rt(k2, 0)
        nm = "adaLN_cond__sliding_block_cached__glu_gated_reglu__prompt_kernel"
        s = HDR + wrap([(nm, k2.text(), 512, 256)], [(nm, 256, 256, LDS_BYTES)], k2.safe.text())
        open(fname, "w").write(s); print(fname, len(s), "bytes"); return
    if fused and mega:
        if rt:
            for i, k in enumerate([k01, k2]): add_rt(k, i)
        ks = [("k01_kernel", k01.text(), 256, 256), ("k2_kernel", k2.text(), 512, 256)]
        ls = [("k01_kernel", 248, 256, 16384), ("k2_kernel", 256, 256, LDS_BYTES)]
        s = HDR + wrap(ks, ls, k2.safe.text())
        open(fname, "w").write(s); print(fname, len(s), "bytes"); return
    if fused:
        if rt:
            for i, k in enumerate([k01, k2, kt]): add_rt(k, i)
        ks = [("k01_kernel", k01.text(), 256, 256), ("k2_kernel", k2.text(), 512, 256), ("kt_kernel", kt.text(), 256, 256)]
        ls = [("k01_kernel", 248, 256, 16384), ("k2_kernel", 256, 256, LDS_BYTES), ("kt_kernel", 256, 256, ktail.LDS_TAIL)]
        s = HDR + wrap(ks, ls, k2.safe.text())
        open(fname, "w").write(s); print(fname, len(s), "bytes"); return
    if rt:
        for i, k in enumerate([k01, k2, k3, k4, k5, k6]): add_rt(k, i)
    ks = [("k01_kernel", k01.text(), 256, 256), ("k2_kernel", k2.text(), 512, 256),
          ("k3_kernel", k3.text(), 256, 256), ("k4_kernel", k4.text(), 128, 128), ("k5_kernel", k5.text(), 256, 256), ("k6_kernel", k6.text(), 256, 256)]
    ls = [("k01_kernel", 248, 256, 16384), ("k2_kernel", 256, 256, LDS_BYTES),
          ("k3_kernel", 256, 256, 122880), ("k4_kernel", 256+128, 320, 24576), ("k5_kernel", 256, 256, 61440), ("k6_kernel", 256, 512, 163840)]
    if diag == 'wo':
        d = ksmall.gen_diag_touch("KD", 32, 1966080, lambda e: (e("s_and_b32 s23, s21, 3"), e("s_mul_i32 s23, s23, 1966080")))
        ks.append(("kd_kernel", d.text(), 64, 64)); ls.insert(2, ("kd_kernel", 256, 256, 0))
    if diag == 'wd':
        d = ksmall.gen_diag_touch("KD", 104, 1966080, lambda e: e(f"s_mov_b32 s23, {WS_WD}"))
        ks.append(("kd_kernel", d.text(), 64, 64)); ls.insert(5, ("kd_kernel", 256, 256, 0))
    if diag == 'act':
        d = ksmall.gen_diag_touch("KD", 104, 786432, lambda e: (e("s_mul_i32 s23, s21, 786432"), e(f"s_add_u32 s23, s23, {WS_ACT}")))
        d2 = ksmall.gen_diag_touch("KE", 104, 1966080, lambda e: e(f"s_mov_b32 s23, {WS_WD}"))
        ks.append(("kd_kernel", d.text(), 64, 64)); ls.insert(5, ("kd_kernel", 256, 256, 0))
        ks.append(("ke_kernel", d2.text(), 64, 64)); ls.insert(5, ("ke_kernel", 256, 256, 0))
    if diag == 'h2':
        d = ksmall.gen_diag_touch("KD", 104, 2621440, lambda e: e(f"s_mov_b32 s23, {WS_H2F}"))
        ks.append(("kd_kernel", d.text(), 64, 64)); ls.insert(4, ("kd_kernel", 256, 256, 0))
    s = HDR + wrap(ks, ls, k2.safe.text())
    open(fname, "w").write(s)
    print(fname, len(s), "bytes")

if __name__ == "__main__":
    import os
    build("adaLN_cond__sliding_block_cached__glu_gated_reglu__prompt.s")
    build("all_rt.s", rt=True)
    build("all_skt.s", stk='kt')
    build("all_skts4.s", stk='kt_s4')
    build("all_mono.s", rt=True, mono=True)
    for kv in os.environ.get("K2V", "").split(";"):
        if not kv: continue
        nm, _, o = kv.partition(':')
        opt = dict(x.split('=') for x in o.split(',') if x)
        K2OPT.update(opt); K2OPT['stamps_in'] = 1
        build(f"all_{nm}.s", rt=False, k2stamps=True)
        for k in list(K2OPT): K2OPT.pop(k); k2gen.OPT.pop(k, None)
```

```python
from asmgen import *

WS_MOD  = 0x0
WS_HF   = 0x40000
WS_OF   = 0x400000
WS_PART = 0x2000000
WS_X1   = 0x3800000
WS_H2F  = 0x4000000
WS_ACT  = 0x4400000
WS_WD   = 0x4C00000
WS_WGU  = 0x5800000
WS_CNT  = 0x30000
WS_STAMP= 0x5000000
WS_DBG  = 0x6000000
WS_BYTES = 268435456

WQ_BASE = 0;      WQ_NS = 5;  WQ_ST = 12288
K_BASE  = 36864;  K_NS = 5;   K_ST = 12288
V_BASE  = 98304;  V_NS = 4;   V_ST = 16384
LDS_BYTES = 163840
BIAS = 4096

sWQ, sK, sV, sWS = 8, 12, 16, 20
sHEAD, sRB, sW = 24, 25, 26
sM0WQ, sM0K, sM0V = 27, 28, 29
sOFF = 30
sOFH = 31
sT0, sT1, sT2, sT3 = 32, 33, 34, 35
sSLOW = 36
sTS = 76

vWQD = 1
vKD  = 4
vVD  = 7
vWQT = 11
vKF  = 15
vVT  = 19
vHO  = 23
vT0, vT1, vT2, vT3 = 60, 61, 62, 63
QACC = 64
QF = 64
SB = [160, 192]
RING = 192
OACC = [64, 160]
LACC = 128
RINV = 144

def P_reg(kt, ct):
    if kt < 12: return ('a', kt*16 + ct*4)
    if kt < 14: return ('v', 28 + (kt-12)*16 + ct*4)
    return ('v', 224 + (kt-14)*16 + ct*4)

def prologue(P, stamps=False, check=True):
    e = P.e
    if check:
        e("s_cmp_ge_u32 s2, 256")
        e("s_cbranch_scc1 K2_END")
    e("s_load_dwordx2 s[4:5], s[0:1], 24")
    e("s_load_dwordx2 s[6:7], s[0:1], 104")
    e("s_load_dwordx4 s[44:47], s[0:1], 8")
    e("s_load_dwordx2 s[68:69], s[0:1], 32")
    e("s_load_dwordx4 s[72:75], s[0:1], 48")
    e("s_load_dwordx2 s[70:71], s[0:1], 64")
    e("v_lshrrev_b32 v2, 6, v0")
    e("v_and_b32 v0, 63, v0")
    e("v_readfirstlane_b32 s26, v2")
    e("s_and_b32 s24, s2, 7"); e("s_lshl_b32 s24, s24, 2")
    e("s_lshr_b32 s3, s2, 3"); e("s_and_b32 s3, s3, 3"); e("s_add_u32 s24, s24, s3")
    e("s_lshr_b32 s25, s2, 5")
    e(f"v_lshrrev_b32 v{vT0}, 3, v0")
    e(f"v_and_b32 v{vT1}, 7, v0")
    e(f"v_lshrrev_b32 v{vT2}, 4, v0")
    e(f"v_lshlrev_b32 v{vT3}, 1, v{vT2}")
    e(f"v_xor_b32 v{vT3}, v{vT3}, v{vT1}")
    e(f"v_lshlrev_b32 v{vT3}, 4, v{vT3}")
    e("s_lshl_b32 s3, s26, 3")
    e(f"v_add_u32 v{vWQD}, s3, v{vT0}")
    e("s_mov_b32 s37, 12288")
    e(f"v_mul_lo_u32 v{vWQD}, v{vWQD}, s37")
    e(f"v_add_u32 v{vWQD}, v{vWQD}, v{vT3}")
    e(f"v_add_u32 v{vWQD}, {BIAS}, v{vWQD}")
    e(f"v_add_u32 v{vWQD+1}, {128-1024}, v{vWQD}")
    e(f"v_add_u32 v{vWQD+2}, {256-2048}, v{vWQD}")
    e("s_lshl_b32 s3, s25, 4"); e("s_lshl_b32 s37, s26, 2"); e("s_add_u32 s38, s3, s37")
    e("s_mul_i32 s3, s38, 20480"); e(f"s_add_u32 s3, s3, {WS_HF}")
    e(f"v_lshlrev_b32 v{vHO}, 4, v0")
    e(f"v_add_u32 v{vHO}, s3, v{vHO}")
    for ct in range(1, 4):
        e(f"v_add_u32 v{vHO+ct}, {ct*20480}, v{vHO}")
    e(f"s_mul_i32 s{sM0WQ}, s26, 3072")
    e("s_mul_i32 s3, s24, 384")
    e("s_waitcnt lgkmcnt(0)")
    e(f"s_add_u32 s{sWQ}, s4, s3"); e(f"s_addc_u32 s{sWQ+1}, s5, 0")
    e(f"s_sub_u32 s{sWQ}, s{sWQ}, {BIAS}"); e(f"s_subb_u32 s{sWQ+1}, s{sWQ+1}, 0")
    e(f"s_sub_u32 s{sWQ+2}, {7864320+BIAS}, s3"); e(f"s_mov_b32 s{sWQ+3}, 0x20000")
    e(f"s_mov_b32 s{sWS}, s6"); e(f"s_mov_b32 s{sWS+1}, s7")
    e(f"s_mov_b32 s{sWS+2}, {WS_BYTES}"); e(f"s_mov_b32 s{sWS+3}, 0x20000")

def prologue2(P):
    e = P.e
    e(f"v_lshrrev_b32 v{vT0}, 2, v0"); e(f"v_and_b32 v{vT0}, 3, v{vT0}")
    e(f"v_and_b32 v{vT1}, 3, v0"); e(f"v_lshlrev_b32 v{vT1}, 3, v{vT1}")
    e(f"v_and_b32 v{vWQT}, 1, v{vT2}"); e(f"v_lshlrev_b32 v{vWQT}, 2, v{vWQT}")
    e(f"v_add_u32 v{vWQT}, v{vWQT}, v{vT0}")
    e(f"v_lshrrev_b32 v{vWQT+1}, 1, v{vWQT}")
    e(f"v_lshlrev_b32 v{vWQT}, 7, v{vWQT}")
    e(f"v_lshrrev_b32 v{vWQT+2}, 1, v{vT2}")
    e(f"v_mul_u32_u24 v{vWQT+2}, 3072, v{vWQT+2}")
    e(f"v_add_u32 v{vWQT}, v{vWQT}, v{vWQT+2}")
    e(f"v_add_u32 v{vWQT}, v{vWQT}, v{vT1}")
    e(f"v_lshlrev_b32 v{vWQT+1}, 5, v{vWQT+1}")
    for tp in (3, 2):
        e(f"v_xor_b32 v{vT3}, {tp<<5}, v{vWQT+1}")
        e(f"v_add_u32 v{vWQT+tp}, v{vWQT}, v{vT3}")
    e(f"v_xor_b32 v{vT3}, {1<<5}, v{vWQT+1}")
    e(f"v_add_u32 v{vT3}, v{vWQT}, v{vT3}")
    e(f"v_add_u32 v{vWQT}, v{vWQT}, v{vWQT+1}")
    e(f"v_mov_b32 v{vWQT+1}, v{vT3}")
    e(f"v_lshrrev_b32 v{vVT}, 1, v{vT2}"); e(f"v_lshlrev_b32 v{vVT}, 2, v{vVT}")
    e(f"v_add_u32 v{vVT}, v{vVT}, v{vT0}")
    e(f"v_lshrrev_b32 v{vVT+1}, 1, v{vVT}"); e(f"v_and_b32 v{vVT+1}, 1, v{vVT+1}")
    e(f"v_and_b32 v{vVT+2}, 1, v{vT2}")
    e(f"v_lshlrev_b32 v{vVT+3}, 1, v{vVT+2}")
    e(f"v_or_b32 v{vVT+1}, v{vVT+1}, v{vVT+3}")
    e(f"v_lshlrev_b32 v{vVT+1}, 5, v{vVT+1}")
    e(f"v_lshlrev_b32 v{vVT}, 7, v{vVT}")
    e(f"v_lshlrev_b32 v{vVT+2}, 10, v{vVT+2}")
    e(f"v_add_u32 v{vVT}, v{vVT}, v{vVT+2}")
    e(f"v_add_u32 v{vVT}, v{vVT}, v{vT1}")
    e(f"v_add_u32 v{vVT}, {V_BASE}, v{vVT}")
    for tp in (3, 2):
        e(f"v_xor_b32 v{vT3}, {tp<<5}, v{vVT+1}")
        e(f"v_add_u32 v{vVT+tp}, v{vVT}, v{vT3}")
    e(f"v_xor_b32 v{vT3}, {1<<5}, v{vVT+1}")
    e(f"v_add_u32 v{vT3}, v{vVT}, v{vT3}")
    e(f"v_add_u32 v{vVT}, v{vVT}, v{vVT+1}")
    e(f"v_mov_b32 v{vVT+1}, v{vT3}")
    e(f"s_add_u32 s{sM0K}, s{sM0WQ}, {K_BASE}")
    e(f"s_lshl_b32 s{sM0V}, s26, 12"); e(f"s_add_u32 s{sM0V}, s{sM0V}, {V_BASE}")
    e("s_mul_i32 s3, s24, 786432"); e(f"s_add_u32 s3, s3, {1536*384-BIAS}")
    e(f"s_add_u32 s{sK}, s44, s3"); e(f"s_addc_u32 s{sK+1}, s45, 0")
    e(f"s_mov_b32 s{sK+2}, {512*384+BIAS}"); e(f"s_mov_b32 s{sK+3}, 0x20000")
    e(f"s_add_u32 s{sV}, s46, s3"); e(f"s_addc_u32 s{sV+1}, s47, 0")
    e(f"s_mov_b32 s{sV+2}, {512*384+BIAS}"); e(f"s_mov_b32 s{sV+3}, 0x20000")
    for base, lo, n in ((52, 68, 7864320), (56, 72, 1966080), (60, 74, 1966080), (64, 70, 1966080)):
        e(f"s_mov_b32 s{base}, s{lo}"); e(f"s_mov_b32 s{base+1}, s{lo+1}"); e(f"s_mov_b32 s{base+2}, {n}"); e(f"s_mov_b32 s{base+3}, 0x20000")

def prologue3():
    L = []
    e = lambda t: L.append(Ins(t))
    T0, T1, T2, T3 = 56, 57, 58, 59
    e(f"v_lshrrev_b32 v{T0}, 3, v0"); e(f"v_and_b32 v{T1}, 7, v0"); e(f"v_lshrrev_b32 v{T2}, 4, v0")
    e("s_lshl_b32 s3, s26, 3")
    e(f"v_add_u32 v{vKD}, s3, v{T0}")
    e(f"v_lshrrev_b32 v{T3}, 1, v{vKD}"); e(f"v_and_b32 v{T3}, 7, v{T3}"); e(f"v_xor_b32 v{T3}, v{T3}, v{T1}"); e(f"v_lshlrev_b32 v{T3}, 4, v{T3}")
    e(f"v_mul_u32_u24 v{vKD}, 384, v{vKD}"); e(f"v_add_u32 v{vKD}, v{vKD}, v{T3}"); e(f"v_add_u32 v{vKD}, {BIAS}, v{vKD}")
    e(f"v_add_u32 v{vKD+1}, {128-1024}, v{vKD}"); e(f"v_add_u32 v{vKD+2}, {256-2048}, v{vKD}")
    e(f"v_and_b32 v{T3}, 1, v{T2}"); e(f"v_lshlrev_b32 v{T3}, 1, v{T3}"); e(f"v_xor_b32 v{T3}, v{T3}, v{T1}")
    e("s_lshl_b32 s3, s26, 5")
    e(f"v_add_u32 v{vVD}, s3, v{T0}"); e(f"v_mul_u32_u24 v{vVD}, 384, v{vVD}"); e(f"v_add_u32 v{vVD}, {BIAS}, v{vVD}")
    e(f"v_xor_b32 v{vVD+1}, 4, v{T3}"); e(f"v_lshlrev_b32 v{vVD+1}, 4, v{vVD+1}"); e(f"v_lshlrev_b32 v{T3}, 4, v{T3}")
    e(f"v_add_u32 v{vVD+1}, v{vVD+1}, v{vVD}"); e(f"v_add_u32 v{vVD}, v{vVD}, v{T3}")
    e(f"v_add_u32 v{vVD+2}, {2*3072-2*1024}, v{vVD}"); e(f"v_add_u32 v{vVD+3}, {3*3072-3*1024}, v{vVD+1}"); e(f"v_add_u32 v{vVD+1}, {1*3072-1*1024}, v{vVD+1}")
    e(f"v_and_b32 v{T0}, 31, v0")
    e(f"v_lshrrev_b32 v{T1}, 3, v{T0}"); e(f"v_mul_u32_u24 v{T1}, 3072, v{T1}")
    e(f"v_and_b32 v{T3}, 7, v{T0}"); e(f"v_lshlrev_b32 v{T3}, 7, v{T3}")
    e(f"v_add_u32 v{T1}, v{T1}, v{T3}"); e(f"v_add_u32 v{T1}, {K_BASE}, v{T1}")
    e(f"v_lshrrev_b32 v{T0}, 1, v{T0}"); e(f"v_and_b32 v{T0}, 7, v{T0}")
    e(f"v_lshrrev_b32 v{T3}, 5, v0"); e(f"v_xor_b32 v{T0}, v{T0}, v{T3}")
    for s4 in range(4):
        e(f"v_xor_b32 v{T3}, {2*s4}, v{T0}"); e(f"v_lshlrev_b32 v{T3}, 4, v{T3}"); e(f"v_add_u32 v{vKF+s4}, v{T1}, v{T3}")
    return L

sPFV, sPFO, sPFW, sPFT = 96, 97, 98, 99
def touch_setup():
    return [Ins("v_lshlrev_b32 v27, 7, v0"), Ins("v_mov_b32 v59, 0x7ff00000"), Ins("v_cmp_gt_u32 vcc, 16, v0"), Ins("s_nop 1"),
            Ins("v_cndmask_b32 v27, v59, v27, vcc"),
            Ins(f"s_mul_i32 s{sPFV}, s25, 24576"), Ins(f"s_mul_i32 s{sPFT}, s26, 6144"), Ins(f"s_add_u32 s{sPFV}, s{sPFV}, s{sPFT}"), Ins(f"s_add_u32 s{sPFV}, s{sPFV}, {BIAS}"),
            Ins(f"s_lshl_b32 s{sPFT}, s2, 2"), Ins(f"s_add_u32 s{sPFT}, s{sPFT}, s26"),
            Ins(f"s_mul_i32 s{sPFW}, s{sPFT}, 1920"),
            Ins(f"s_and_b32 s{sPFO}, s2, 3"), Ins(f"s_mul_i32 s{sPFO}, s{sPFO}, 1966080"), Ins(f"s_lshr_b32 s{sPFT}, s2, 3"), Ins(f"s_lshl_b32 s{sPFT}, s{sPFT}, 2"),
            Ins(f"s_add_u32 s{sPFT}, s{sPFT}, s26"), Ins(f"s_mul_i32 s{sPFT}, s{sPFT}, 15360"), Ins(f"s_add_u32 s{sPFO}, s{sPFO}, s{sPFT}")]
def touch16(kind, i, dst='a191'):
    if kind == 'v': base, srd_ = sPFV, sV
    elif kind == 'k': base, srd_ = sPFV, sK
    elif kind == 'wo': base, srd_ = sPFO, 52
    else: base, srd_ = sPFW, {'wg': 56, 'wu': 60, 'wd': 64}[kind]
    return [Ins(f"s_add_u32 s{sPFT}, s{base}, {i*2048}"), NT(f"buffer_load_dword {dst}, v27, s[{srd_}:{srd_+3}], s{sPFT} offen")]

PFS = 64
def pf_kv():
    L = [Ins(f"s_mul_i32 s{sT0}, s25, 24576"), Ins(f"s_mul_i32 s{sT1}, s26, 6144"), Ins(f"s_add_u32 s{sT0}, s{sT0}, s{sT1}"),
         Ins(f"s_add_u32 s{sT0}, s{sT0}, {BIAS}"), Ins(f"v_mul_u32_u24 v29, {PFS}, v0"), Ins(f"v_add_u32 v29, s{sT0}, v29")]
    n = -(-6144 // (64*PFS))
    D = []
    for srd_ in (sK, sV):
        for i in range(n):
            D.append(Ins(f"v_add_u32 v30, {i*64*PFS}, v29"))
            D.append(Ins(f"buffer_load_dword v28, v30, s[{srd_}:{srd_+3}], 0 offen"))
    return L + D

def pf_wo():
    return [Ins(f"s_lshl_b32 s{sT0}, s2, 2"), Ins(f"s_add_u32 s{sT0}, s{sT0}, s26"), Ins(f"s_mul_i32 s{sT1}, s{sT0}, 7680"),
            Ins(f"v_lshlrev_b32 v31, {OPT.get('pfshift', 7)}, v0"), Ins(f"v_add_u32 v31, s{sT1}, v31"),
            NT(f"buffer_load_dword v28, v31, s[52:55], 0 offen")] + ([Ins("v_add_u32 v31, 4096, v31"), NT(f"buffer_load_dword v28, v31, s[52:55], 0 offen")] if OPT.get('pfshift', 7) == 6 else [])

def pf_weights():
    L = [Ins(f"s_lshl_b32 s{sT0}, s2, 2"), Ins(f"s_add_u32 s{sT0}, s{sT0}, s26"),
         Ins(f"v_mul_u32_u24 v31, {PFS}, v0"),
         Ins(f"s_mul_i32 s{sT1}, s{sT0}, 7680"), Ins(f"v_add_u32 v32, s{sT1}, v31")]
    for i in range(-(-7680 // (64*PFS))):
        L.append(Ins(f"v_add_u32 v30, {i*64*PFS}, v32"))
        L.append(Ins(f"buffer_load_dword v28, v30, s[52:55], 0 offen"))
    L += [Ins(f"s_mul_i32 s{sT1}, s{sT0}, 1920"), Ins(f"v_add_u32 v32, s{sT1}, v31")]
    for srd_ in (56, 60, 64):
        L.append(Ins(f"buffer_load_dword v28, v32, s[{srd_}:{srd_+3}], 0 offen"))
    return L

def dma_wq(ks):
    slot = ks % WQ_NS
    L = [Ins(f"s_add_u32 m0, s{sM0WQ}, {WQ_BASE + slot*WQ_ST}"),
         Ins(f"s_mov_b32 s{sOFF}, {ks*32*12288}")]
    D = [Ins(f"buffer_load_dwordx4 v{vWQD+q}, s[{sWQ}:{sWQ+3}], s{sOFF} offen offset:{q*1024} lds") for q in range(3)]
    return L, D

def k_slot(kt): return (kt + 2) % K_NS
def dma_k(kt):
    L = [Ins(f"s_add_u32 m0, s{sM0K}, {k_slot(kt)*K_ST}"),
         Ins(f"s_mov_b32 s{sOFF}, {(kt % 16)*12288}")]
    D = [Ins(f"buffer_load_dwordx4 v{vKD+q}, s[{sK}:{sK+3}], s{sOFF} offen offset:{q*1024} lds") for q in range(3)]
    return L, D

def dma_v(st):
    G, kb = st // 4, st % 4
    L = [Ins(f"s_add_u32 m0, s{sM0V}, {(st % V_NS)*V_ST}"),
         Ins(f"s_mov_b32 s{sOFF}, {kb*128*384 + G*128}")]
    D = [Ins(f"buffer_load_dwordx4 v{vVD+i}, s[{sV}:{sV+3}], s{sOFF} offen offset:{i*1024} lds") for i in range(4)]
    return L, D

def HS(): return int(OPT.get('hsets', 4))
def load_h(ks):
    L = [Ins(f"s_mov_b32 s{sOFH}, {ks*1024}")]
    base = (ks % HS())*16
    D = [Ins(f"buffer_load_dwordx4 a[{base+4*ct}:{base+4*ct+3}], v{vHO+ct}, s[{sWS}:{sWS+3}], s{sOFH} offen" + (" sc1" if OPT.get('mono') else "")) for ct in range(4)]
    return L, D

def tr_wq(n):
    ks, t = divmod(n, 12)
    slot = n % 16
    q, tp = t >> 2, t & 3
    off = WQ_BASE + (ks % WQ_NS)*WQ_ST + q*1024
    r = RING + slot*4
    return [Ins(f"ds_read_b64_tr_b16 a[{r}:{r+1}], v{vWQT+tp} offset:{off}"),
            Ins(f"ds_read_b64_tr_b16 a[{r+2}:{r+3}], v{vWQT+tp} offset:{off+6144}")]

OPT = dict(dma=True, hload=True, barrier=True, tr=True, pfcode=False)
def k_frag(n):
    kt, s_ = divmod(n, 12)
    r = RING + (n % 16)*4
    off = k_slot(kt)*K_ST + (s_ >> 2)*1024
    return Ins(f"ds_read_b128 a[{r}:{r+3}], v{vKF + (s_ & 3)} offset:{off}")

def softmax_stream(kt, mode='exp'):
    L = []
    buf = SB[kt & 1]
    toA = P_reg(kt, 0)[0] == 'a'
    for cb in range(2):
        Sx = buf + 16*cb
        if toA:
            A_ = [Sx+0, Sx+2, Sx+8, Sx+10]; B_ = [Sx+4, Sx+6, Sx+12, Sx+14]
        else:
            pa = P_reg(kt, 2*cb)[1]; pb = P_reg(kt, 2*cb+1)[1]
            A_ = [pa+i for i in range(4)]; B_ = [pb+i for i in range(4)]
        E = lambda i: Ins(f"v_exp_f32 v{Sx+i}, v{Sx+i}")
        C = lambda d, i: Ins(f"v_cvt_pk_bf16_f32 v{d}, v{Sx+i}, v{Sx+i+1}")
        SW = lambda i: Ins(f"v_permlane16_swap_b32 v{A_[i]}, v{B_[i]}")
        def W(i):
            if not toA: return []
            pa = P_reg(kt, 2*cb)[1]; pb = P_reg(kt, 2*cb+1)[1]
            return [Ins(f"v_accvgpr_write_b32 a{pa+i}, v{A_[i]}"), Ins(f"v_accvgpr_write_b32 a{pb+i}, v{B_[i]}")]
        L += [E(0), E(1), E(2), E(3), E(4), E(5), C(A_[0], 0), C(A_[1], 2), E(6), E(7), C(B_[0], 4), E(8), E(9), C(B_[1], 6),
              E(10), E(11), SW(0), C(A_[2], 8), SW(1), E(12), E(13), C(A_[3], 10), E(14), E(15)]
        L += W(0) + [C(B_[2], 12), C(B_[3], 14)] + W(1) + [SW(2), SW(3)]
        L += W(2) + W(3)
    return L

def phase2(P, handles):
    PF = 4
    for kt in range(16):
        bb = []
        buf = SB[kt & 1]
        for s_ in range(12):
            n = 12*kt + s_
            ar = RING + (n % 16)*4
            for cb in range(2):
                d = buf + 16*cb
                q = QF + 8*s_ + 4*cb
                c = f"v[{d}:{d+15}]" if s_ > 0 else "0"
                bb.append(Ins(f"v_mfma_f32_32x32x16_bf16 v[{d}:{d+15}], a[{ar}:{ar+3}], v[{q}:{q+3}], {c}"))
        s_rd, s_dma, s_sm = [], [], []
        for s_ in range(12):
            n = 12*kt + s_ + PF
            lo = 2*s_
            if n < 12*16:
                if s_ == 8:
                    s_rd.append((WaitVM(handles['k'][kt+1]), lo-1, lo-1))
                    s_rd.append((Ins("s_barrier"), lo-1, lo-1))
                s_rd.append((k_frag(n), lo, lo+1))
            else:
                m = n - 192
                if m == 0:
                    s_rd.append((WaitVM(handles['v'][0]), lo-1, lo-1))
                    s_rd.append((Ins("s_barrier"), lo-1, lo-1))
                a, b = tr_v(m)
                s_rd.append((a, lo, lo+1)); s_rd.append((b, lo, lo+1))
        if kt + 4 < 16:
            L, D = dma_k(kt+4)
            handles['k'][kt+4] = D[-1]
            s_dma += [(L[0], 16, 18), (L[1], 16, 18)] + [(d, 17+2*i, 19+2*i) for i, d in enumerate(D)]
        elif kt >= 12 and kt <= 14:
            L, D = dma_v(kt-12)
            handles['v'][kt-12] = D[-1]
            s_dma += [(L[0], 2, 18), (L[1], 2, 18)] + [(d, 4+4*i, 22) for i, d in enumerate(D)]
        if kt > 0:
            sm = softmax_stream(kt-1)
            if kt == 2 and OPT.get('pf') == 'wo': sm = pf_wo() + sm
            n = len(sm)
            for i, x in enumerate(sm):
                s_sm.append((x, 2, 23))
        P.many(weave(bb, [s_rd, s_dma, s_sm], 24, max_mem=1))

def tr_v(m):
    G, rem = divmod(m, 64)
    kt, tp = divmod(rem, 4)
    st = 4*G + (kt >> 2)
    off = (st % V_NS)*V_ST + (kt & 3)*4096
    r = RING + ((192 + m) % 16)*4
    return [Ins(f"ds_read_b64_tr_b16 a[{r}:{r+1}], v{vVT+tp} offset:{off}"),
            Ins(f"ds_read_b64_tr_b16 a[{r+2}:{r+3}], v{vVT+tp} offset:{off+2048}")]

ONES = 60

def o_epilogue(G):
    L = []
    ob = OACC[G & 1]
    for u in range(2):
        L.append(Ins(f"s_mov_b32 s{sOFH}, {(2*G+u)*1024}"))
        for ct in range(4):
            x = ob + ((2*u)*4 + ct)*4; y = ob + ((2*u+1)*4 + ct)*4
            for i in range(4): L.append(Ins(f"v_mul_f32 v{x+i}, v{RINV+ct}, v{x+i}"))
            for i in range(4): L.append(Ins(f"v_mul_f32 v{y+i}, v{RINV+ct}, v{y+i}"))
            L.append(Ins(f"v_cvt_pk_bf16_f32 v{x}, v{x}, v{x+1}"))
            L.append(Ins(f"v_cvt_pk_bf16_f32 v{x+1}, v{x+2}, v{x+3}"))
            L.append(Ins(f"v_cvt_pk_bf16_f32 v{x+2}, v{y}, v{y+1}"))
            L.append(Ins(f"v_cvt_pk_bf16_f32 v{x+3}, v{y+2}, v{y+3}"))
            L.append(Ins(f"buffer_store_dwordx4 v[{x}:{x+3}], v{vHO+ct}, s[{sWS}:{sWS+3}], s{sOFH} offen sc1"))
    return L

def phase3(P, handles):
    PF = 4
    for G in range(3):
        ob = OACC[G & 1]
        pre = []
        epi = []
        if G == 1:
            for ct in range(4): epi.append(Ins(f"v_rcp_f32 v{RINV+ct}, v{LACC+4*ct}"))
        if G >= 1: epi += o_epilogue(G-1)
        nslots_total = 16*16
        epi_ptr = 0
        for kt in range(16):
            bb = []
            for tp in range(4):
                m = 64*G + 4*kt + tp
                ar = RING + ((192 + m) % 16)*4
                for ct in range(4):
                    d = ob + (tp*4 + ct)*4
                    p = P_reg(kt, ct)
                    c = f"v[{d}:{d+3}]" if kt > 0 else "0"
                    bb.append(Ins(f"v_mfma_f32_16x16x32_bf16 v[{d}:{d+3}], a[{ar}:{ar+3}], {R(p,4)}, {c}"))
            if G == 0:
                for ct in range(4):
                    d = LACC + 4*ct
                    p = P_reg(kt, ct)
                    c = f"v[{d}:{d+3}]" if kt > 0 else "0"
                    bb.append(Ins(f"v_mfma_f32_16x16x32_bf16 v[{d}:{d+3}], v[{ONES}:{ONES+3}], {R(p,4)}, {c}"))
            s_rd, s_dma, s_x = [], [], []
            st = 4*G + (kt >> 2)
            for tp in range(4):
                m = 64*G + 4*kt + tp + PF
                if m >= 192: continue
                lo = 4*tp
                if tp == 0 and (kt & 3) == 3:
                    s_rd.append((WaitVM(handles['v'][st+1]), -1, -1))
                    s_rd.append((Ins("s_barrier"), -1, -1))
                a, b = tr_v(m)
                s_rd.append((a, lo, lo+1)); s_rd.append((b, lo+1, lo+2))
            if (kt & 3) == 3 and st + 3 < 12:
                L, D = dma_v(st+3)
                handles['v'][st+3] = D[-1]
                s_dma += [(L[0], 0, 2), (L[1], 0, 3)] + [(d, 2+3*i, 4+3*i) for i, d in enumerate(D)]
            if G == 0 and kt < 2:
                sm = softmax_stream(15)
                half = len(sm)//2
                part = sm[:half] if kt == 0 else sm[half:]
                s_x = [(x, 0 if kt else 2, 19) for x in part]
            elif epi and kt >= 1:
                per = -(-len(epi) // 13)
                part = epi[epi_ptr:epi_ptr+per]; epi_ptr += len(part)
                s_x = [(x, 0, len(bb)-1) for x in part]
            P.many(weave(bb, [s_rd, s_dma, s_x], 8))
        assert epi_ptr >= len(epi)
    P.many(o_epilogue(2))

def phase3_setup():
    L = [Ins(f"v_mov_b32 v{ONES+i}, 0x3f803f80") for i in range(4)]
    L.append(Ins(f"s_mul_i32 s{sT0}, s38, {196608-20480}"))
    L.append(Ins(f"s_mul_i32 s{sT1}, s24, 6144"))
    L.append(Ins(f"s_add_u32 s{sT0}, s{sT0}, s{sT1}"))
    L.append(Ins(f"s_add_u32 s{sT0}, s{sT0}, {WS_OF-WS_HF}"))
    for ct in range(4):
        L.append(Ins(f"v_add_u32 v{vHO+ct}, s{sT0}, v{vHO+ct}"))
        if ct: L.append(Ins(f"v_add_u32 v{vHO+ct}, {ct*(196608-20480)}, v{vHO+ct}"))
    return L

def phase1(P, handles):
    NK = 20
    PF = 4
    dmah = handles['wq']
    for ks in range(NK):
        bb = []
        for t in range(12):
            n = 12*ks + t
            ar = RING + (n % 16)*4
            for ct in range(4):
                acc = QACC + (4*t + ct)*4
                b = (ks % 4)*16 + 4*ct
                c = f"v[{acc}:{acc+3}]" if ks > 0 else "0"
                bb.append(Ins(f"v_mfma_f32_16x16x32_bf16 v[{acc}:{acc+3}], a[{ar}:{ar+3}], a[{b}:{b+3}], {c}"))
        s_tr, s_h, s_dma = [], [], []
        for t in range(12):
            n = 12*ks + t + PF
            if n >= 12*NK:
                if OPT.get('p2', False):
                    lo = 4*t
                    if t == 8:
                        s_tr.append((WaitVM(handles['k'][0]), lo-1, lo-1))
                        s_tr.append((Ins("s_barrier"), lo-1, lo-1))
                    s_tr.append((k_frag(n - 12*NK), lo, lo+2))
                continue
            a, b = tr_wq(n)
            lo = 4*t
            if t == 8:
                if OPT['dma'] or ks+1 < 4: s_tr.append((WaitVM(dmah[ks+1]), lo-1, lo-1))
                if OPT['barrier']: s_tr.append((Ins("s_barrier"), lo-1, lo-1))
            if OPT['tr']:
                s_tr.append((a, lo, lo+1)); s_tr.append((b, lo+1, lo+2))
        if ks + 3 < NK and OPT['hload']:
            L, D = load_h(ks+3)
            s_h.append((L[0], 0, 1))
            for i, d in enumerate(D): s_h.append((d, 4*i+2, 4*i+3))
        if not OPT['dma']: pass
        elif ks + 4 < NK:
            L, D = dma_wq(ks+4)
            dmah[ks+4] = D[-1]
            s_dma.append((L[0], 33, 35)); s_dma.append((L[1], 34, 36))
            for i, d in enumerate(D): s_dma.append((d, 36+4*i, 38+4*i))
        elif ks >= 16:
            kt = ks - 16
            L, D = dma_k(kt)
            handles['k'][kt] = D[-1]
            s_dma.append((L[0], 33, 35)); s_dma.append((L[1], 34, 36))
            for i, d in enumerate(D): s_dma.append((d, 36+4*i, 38+4*i))
        s_pf = []
        if OPT.get('pf', 'loop') == 'loop':
            if ks == 1: s_pf = [(x, 2, 47) for x in pf_kv()]
            if ks == 8: s_pf = [(x, 2, 47) for x in pf_weights()]
        P.many(weave(bb, [s_tr, s_h, s_dma, s_pf], 8))

SX = 28
def s_buf(kt): return SX if kt == 0 else SB[kt & 1]

MREG = [2, 3]
def max_stream(vt):
    L = []
    buf = s_buf(vt)
    for cb in range(2):
        Sx = buf + 16*cb; m = MREG[cb]
        if vt == 0:
            L.append(Ins(f"v_max_f32 v{m}, v{Sx}, v{Sx+1}")); rest = range(2, 16, 2)
        else:
            rest = range(0, 16, 2)
        for i in rest: L.append(Ins(f"v_max3_f32 v{m}, v{m}, v{Sx+i}, v{Sx+i+1}"))
    if vt == 15:
        for cb in range(2):
            m = MREG[cb]
            L += [Ins(f"v_mov_b32 v1, v{m}"), Ins("s_nop 1"), Ins(f"v_permlane32_swap_b32 v{m}, v1"), Ins("s_nop 1"), Ins(f"v_max_f32 v{m}, v{m}, v1")]
    return L

def softmax_stream2(kt, vt=None, sub=False):
    global SB
    L = []
    buf = s_buf(kt if vt is None else vt)
    toA = P_reg(kt, 0)[0] == 'a'
    for cb in range(2):
        Sx = buf + 16*cb
        if toA:
            A_ = [Sx+0, Sx+2, Sx+8, Sx+10]; B_ = [Sx+4, Sx+6, Sx+12, Sx+14]
        else:
            pa = P_reg(kt, 2*cb)[1]; pb = P_reg(kt, 2*cb+1)[1]
            A_ = [pa+i for i in range(4)]; B_ = [pb+i for i in range(4)]
        def E(i):
            if sub:
                return [Ins(f"v_sub_f32 v{Sx+i}, v{Sx+i}, v{MREG[cb]}"), Ins(f"v_exp_f32 v{Sx+i}, v{Sx+i}")]
            return [Ins(f"v_exp_f32 v{Sx+i}, v{Sx+i}")]
        C = lambda d, i: [Ins(f"v_cvt_pk_bf16_f32 v{d}, v{Sx+i}, v{Sx+i+1}")]
        SW = lambda i: [Ins(f"v_permlane16_swap_b32 v{A_[i]}, v{B_[i]}")]
        def W(i):
            if not toA: return []
            pa = P_reg(kt, 2*cb)[1]; pb = P_reg(kt, 2*cb+1)[1]
            return [Ins(f"v_accvgpr_write_b32 a{pa+i}, v{A_[i]}"), Ins(f"v_accvgpr_write_b32 a{pb+i}, v{B_[i]}")]
        for x in (E(0), E(1), E(2), E(3), E(4), E(5), C(A_[0], 0), C(A_[1], 2), E(6), E(7), C(B_[0], 4), E(8), E(9), C(B_[1], 6),
                  E(10), E(11), C(A_[2], 8), SW(0), E(12), E(13), SW(1), C(A_[3], 10), E(14), E(15), W(0), C(B_[2], 12), C(B_[3], 14), W(1),
                  SW(2), SW(3)): L += x
        L += W(2) + W(3)
    return L
NEGM = 62

def q_convert_tile(t):
    L = []
    for cb in range(2):
        x = QACC + (4*t + 2*cb)*4; y = x + 4
        d = QF + 8*t + 4*cb
        L += [Ins(f"v_cvt_pk_bf16_f32 v{d}, v{x}, v{x+1}"), Ins(f"v_cvt_pk_bf16_f32 v{d+1}, v{x+2}, v{x+3}"),
              Ins(f"v_cvt_pk_bf16_f32 v{d+2}, v{y}, v{y+1}"), Ins(f"v_cvt_pk_bf16_f32 v{d+3}, v{y+2}, v{y+3}")]
    for cb in range(2):
        d = QF + 8*t + 4*cb
        L += [Ins(f"v_permlane16_swap_b32 v{d}, v{d+2}"), Ins(f"v_permlane16_swap_b32 v{d+1}, v{d+3}")]
    return L

sOK = 100
def main_schedule(P, H, safe=False):
    NK = 20; PF = 4
    NT = 32 if safe else 16
    F_K = 240; F_V = 240 + 12*NT; F_END = F_V + 192
    bb = []
    p1_0 = 0
    for ks in range(NK):
        for t in range(12):
            n = 12*ks + t
            ar = RING + (n % 16)*4
            for ct in range(4):
                acc = QACC + (4*t + ct)*4
                b = (ks % HS())*16 + 4*ct
                c = f"v[{acc}:{acc+3}]" if ks > 0 else "0"
                bb.append(Ins(f"v_mfma_f32_16x16x32_bf16 v[{acc}:{acc+3}], a[{ar}:{ar+3}], a[{b}:{b+3}], {c}"))
    p2_0 = len(bb)
    for kt in range(NT):
        buf = s_buf(kt)
        for s_ in range(12):
            n = 12*kt + s_
            ar = RING + (n % 16)*4
            for cb in range(2):
                d = buf + 16*cb; q = QF + 8*s_ + 4*cb
                c = f"v[{d}:{d+15}]" if s_ > 0 else "0"
                bb.append(Ins(f"v_mfma_f32_32x32x16_bf16 v[{d}:{d+15}], a[{ar}:{ar+3}], v[{q}:{q+3}], {c}"))
    p3_0 = len(bb)
    kstart = {}
    fslot = {}
    for G in range(3):
        ob = OACC[G & 1]
        for kt in range(16):
            kstart[(G, kt)] = len(bb)
            for tp in range(4):
                m = 64*G + 4*kt + tp
                ar = RING + ((192 + m) % 16)*4
                fslot[m] = len(bb)
                for ct in range(4):
                    d = ob + (tp*4 + ct)*4; p = P_reg(kt, ct)
                    c = f"v[{d}:{d+3}]" if kt > 0 else "0"
                    bb.append(Ins(f"v_mfma_f32_16x16x32_bf16 v[{d}:{d+3}], a[{ar}:{ar+3}], {R(p,4)}, {c}"))
            if G == 0:
                for ct in range(4):
                    d = LACC + 4*ct; p = P_reg(kt, ct)
                    c = f"v[{d}:{d+3}]" if kt > 0 else "0"
                    bb.append(Ins(f"v_mfma_f32_16x16x32_bf16 v[{d}:{d+3}], v[{ONES}:{ONES+3}], {R(p,4)}, {c}"))
    nslots = len(bb)
    def use_slot(f):
        if f < 240: return 4*f
        if f < F_V: return p2_0 + 2*(f-240)
        return fslot[f-F_V]
    def reads(f):
        if f < 240: return tr_wq(f)
        if f < F_V: return [k_frag(f-240)]
        return tr_v(f-F_V)
    grp = []; wq_h = dict(H['wq']); k_h = {}; v_h = {}; h_h = dict(H['h'])
    bar = {}
    def first_read_slot(f): return use_slot(f - PF)
    for ks in range(1, NK): bar[('wq', ks)] = first_read_slot(12*ks) - 1
    for kt in range(NT): bar[('k', kt)] = first_read_slot(240 + 12*kt) - 1
    for st in range(12): bar[('v', st)] = first_read_slot(F_V + 16*st) - 1
    for ks in range(4, NK):
        L, D = dma_wq(ks); wq_h[ks] = D[-1]
        lo = bar[('wq', ks-3)] + 1 if ks-3 >= 1 else 0
        grp.append((lo, lo + 44, L, D))
    HB = HS() - 1
    for ks in range(3, NK):
        L, D = load_h(ks); h_h[ks] = D[-1]
        lo = max(0, 48*(ks-HB))
        hi = lo + 44 if ks - HB >= 0 else 48*max(ks-3, 0) + 44
        grp.append((lo, hi, L, D))
    for kt in range(NT):
        L, D = dma_k(kt); k_h[kt] = D[-1]
        if kt < 3: lo = 48*(16+kt) + 8; hi = lo + 38
        elif kt == 3: lo = bar[('k', 0)] + 1; hi = lo + 12
        else: lo = bar[('k', kt-3)] + 1; hi = lo + 20
        grp.append((lo, hi, L, D))
    for st in range(12):
        L, D = dma_v(st); v_h[st] = D[-1]
        if st < 3: lo = p2_0 + 24*(NT-4+st) + 1; hi = lo + 20
        else: lo = bar[('v', st-2)] + 1; hi = lo + 40
        grp.append((lo, hi, L, D))
    placed = space_vm(grp, 4, nslots)
    streams_vm = {}
    seen = {}
    for slot, pre, op, gi in placed:
        key = 'h' if op.kind == 'vload' else 'dma'
        if seen.get(key) != gi:
            assert (key, gi) not in seen, "groups interleave"
            seen[(key, gi)] = True; seen[key] = gi
    for slot, pre, op, gi in placed:
        key = 'h' if op.kind == 'vload' else 'dma'
        st_ = streams_vm.setdefault(key, [])
        if OPT.get('novm'): continue
        for x in pre: st_.append((x, slot-3, slot))
        st_.append((op, slot, slot+int(OPT.get('vmslack', 3))))
    s_rd, s_w = [], []
    last_read = dict(H['tr'])
    for f in range(PF, F_END):
        lo = use_slot(f - PF)
        key = None
        if f < 240 and f % 12 == 0: key = ('wq', f // 12); hh = wq_h[f // 12]
        elif 240 <= f < F_V and (f-240) % 12 == 0: key = ('k', (f-240)//12); hh = k_h[(f-240)//12]
        elif f >= F_V and (f-F_V) % 16 == 0: key = ('v', (f-F_V)//16); hh = v_h[(f-F_V)//16]
        if key:
            if not OPT.get('novm'): s_rd.append((WaitVM(hh), lo-1, lo-1))
            if not OPT.get('nobar'): s_rd.append((Ins("s_barrier"), lo-1, lo-1))
        rr = reads(f)
        nxt = use_slot(f - PF + 1) if f - PF + 1 < F_END else lo + 4
        if len(rr) == 2:
            s2 = lo + 1 if nxt - lo >= 2 else lo
            s_rd.append((rr[0], lo, lo)); s_rd.append((rr[1], s2, s2))
        else:
            s_rd.append((rr[0], lo, lo))
        last_read[f] = rr[-1]
    for f in range(F_END):
        u = use_slot(f)
        s_w.append((WaitLGKM(last_read[f]), u-1, u-1))
    s_wh = [(WaitVM(h_h[ks]), 48*ks-1, 48*ks-1) for ks in range(NK)] if not OPT.get('novm') else []
    s_v = []
    s_p3 = [(x, 0, 80) for x in prologue3() + touch_setup()]
    for t in range(12):
        e_ = 48*19 + 4*t + 5
        dl = p2_0 + 2*t - 2
        for x in q_convert_tile(t): s_v.append((x, e_, max(e_, dl)))
    for x in phase3_setup(): s_v.append((x, p2_0 + 4, p2_0 + 20))
    for vt in range(NT):
        e_ = p2_0 + 24*(vt+1) + 1
        dl = e_ + 22 if vt < NT-1 else kstart[(0, 2)]
        if safe and vt < 16: work = max_stream(vt)
        elif safe: work = softmax_stream2(vt-16, vt, sub=True)
        else: work = softmax_stream2(vt)
        for x in work: s_v.append((x, e_, dl))
    for G in range(3):
        if G == 0:
            epi = [Ins(f"v_rcp_f32 v{RINV+ct}, v{LACC+4*ct}") for ct in range(4)]
            if not safe:
                epi.append(Ins(f"s_mov_b64 s[{sOK}:{sOK+1}], -1"))
                for ct in range(4):
                    epi += [Ins(f"v_cmp_le_f32 vcc, 0x1f800000, v{LACC+4*ct}"), Ins(f"s_and_b64 s[{sOK}:{sOK+1}], s[{sOK}:{sOK+1}], vcc"),
                            Ins(f"v_cmp_ge_f32 vcc, 0x62800000, v{LACC+4*ct}"), Ins(f"s_and_b64 s[{sOK}:{sOK+1}], s[{sOK}:{sOK+1}], vcc")]
            epi += o_epilogue(0)
        elif G == 1: epi = o_epilogue(1)
        else: break
        e0 = kstart[(G+1, 0)] + 3; e1 = kstart[(G+1, 15)]
        for j, x in enumerate(epi):
            ee = e0 + (j*(e1-e0))//len(epi)
            s_v.append((x, ee, e1 + 12))
    s_pf = []
    plan = OPT.get('touchplan')
    if plan is None:
        plan = [('k', 0, 48*2), ('k', 1, 48*4), ('k', 2, 48*6), ('v', 0, 48*8), ('v', 1, 48*10), ('v', 2, 48*12),
                ('wg', 0, 48*14), ('wu', 0, 48*16), ('wd', 0, p2_0 + 24*0),
                ('wo', 0, p2_0 + 24*1), ('wo', 1, p2_0 + 24*2), ('wo', 2, p2_0 + 24*3), ('wo', 3, p2_0 + 24*4),
                ('wo', 4, p2_0 + 24*5), ('wo', 5, p2_0 + 24*6), ('wo', 6, p2_0 + 24*7), ('wo', 7, p2_0 + 24*8)]
    if OPT.get('notouch') or safe: plan = []
    for kind, i, slot in plan:
        for x in touch16(kind, i, 'a191' if slot < p2_0 else 'v1'): s_pf.append((x, slot + 20, slot + 40))
    s_st = []
    if OPT.get('stamps_in') and not safe:
        pts = [48*10, p2_0, p2_0 + 24*8, p3_0, kstart[(1, 0)], kstart[(2, 0)]]
        for i, sl in enumerate(pts): s_st.append((Ins(f"s_memtime s[{sTS+2*(i+2)}:{sTS+2*(i+2)+1}]"), sl-1, sl-1))
    streams = [s_w, s_wh, s_rd] + list(streams_vm.values()) + [s_p3, s_v, s_pf, s_st]
    P.many(weave(bb, streams))
    P.many(o_epilogue(2))
    return p2_0, p3_0

def pf_v():
    return [Ins(f"s_mul_i32 s{sT0}, s25, 24576"), Ins(f"s_mul_i32 s{sT1}, s26, 6144"), Ins(f"s_add_u32 s{sT0}, s{sT0}, s{sT1}"),
            Ins(f"s_add_u32 s{sT0}, s{sT0}, {BIAS}"), Ins(f"v_lshlrev_b32 v{PFA}, 7, v0"), Ins(f"v_add_u32 v{PFA}, s{sT0}, v{PFA}"),
            NT(f"buffer_load_dword a191, v{PFA}, s[{sV}:{sV+3}], 0 offen")]
def pf_k():
    return [Ins(f"s_mul_i32 s{sT0}, s25, 24576"), Ins(f"s_mul_i32 s{sT1}, s26, 6144"), Ins(f"s_add_u32 s{sT0}, s{sT0}, s{sT1}"),
            Ins(f"s_add_u32 s{sT0}, s{sT0}, {BIAS}"), Ins(f"v_lshlrev_b32 v{PFA}, 7, v0"), Ins(f"v_add_u32 v{PFA}, s{sT0}, v{PFA}"),
            NT(f"buffer_load_dword a191, v{PFA}, s[{sK}:{sK+3}], 0 offen")]
def pf_wo2():
    return [Ins(f"s_lshl_b32 s{sT0}, s2, 2"), Ins(f"s_add_u32 s{sT0}, s{sT0}, s26"), Ins(f"s_mul_i32 s{sT1}, s{sT0}, 7680"),
            Ins(f"v_lshlrev_b32 v{PFA}, 7, v0"), Ins(f"v_add_u32 v{PFA}, s{sT1}, v{PFA}"),
            NT(f"buffer_load_dword a191, v{PFA}, s[52:55], 0 offen")]
def pf_w3():
    L = [Ins(f"s_lshl_b32 s{sT0}, s2, 2"), Ins(f"s_add_u32 s{sT0}, s{sT0}, s26"), Ins(f"s_mul_i32 s{sT1}, s{sT0}, 1920"),
         Ins(f"v_lshlrev_b32 v{PFA}, 7, v0"), Ins(f"v_add_u32 v{PFA}, s{sT1}, v{PFA}"),
         Ins(f"v_cmp_gt_u32 vcc, 15, v0"), Ins(f"v_mov_b32 v59, 0x7ff00000"), Ins("s_nop 0"), Ins(f"v_cndmask_b32 v{PFA}, v59, v{PFA}, vcc")]
    for srd_ in (56, 60, 64): L.append(NT(f"buffer_load_dword a191, v{PFA}, s[{srd_}:{srd_+3}], 0 offen"))
    return L
PFA = 27
TOUCH = dict(v=pf_v, k=pf_k, wo=pf_wo2, w3=pf_w3)

def guard_branch(P):
    e = P.e
    e(f"s_cmp_eq_u64 s[{sOK}:{sOK+1}], -1"); e("s_cselect_b32 s3, 0, 1")
    e("s_barrier")
    e("v_mov_b32 v28, s3"); e("s_lshl_b32 s3, s26, 2"); e("v_mov_b32 v29, s3")
    e("ds_write_b32 v29, v28")
    e("s_waitcnt lgkmcnt(0)"); e("s_barrier")
    e("v_mov_b32 v29, 0")
    e("ds_read_b128 v[32:35], v29")
    e("v_or3_b32 v32, v32, v33, v34"); e("v_or_b32 v32, v32, v35")
    e("v_readfirstlane_b32 s3, v32")
    e("s_cmp_eq_u32 s3, 0"); e("s_cbranch_scc0 K2_SAFE")

def safe_entry(P):
    e = P.e
    e("K2_SAFE:")
    e("s_waitcnt vmcnt(0)"); e("s_barrier")
    e("s_lshl_b32 s3, s26, 6"); e("v_add_u32 v0, s3, v0")

def main_pro(P, H, safe=False, mono=False):
    H['wq'] = {}; H['h'] = {}; H['tr'] = {}
    if mono and not safe:
        for ks in range(4):
            L, D = dma_wq(ks)
            P.many(L); P.many(D); H['wq'][ks] = D[-1]
            if ks == 0: prologue2(P)
        r = lambda t: P.e(RAW(t))
        P.e("s_load_dwordx2 s[84:85], s[0:1], 96"); P.e("s_waitcnt lgkmcnt(0)")
        P.e("s_mov_b32 s86, 256"); P.e("s_mov_b32 s87, 0x20000")
        r("s_cmp_lg_u32 s26, 0"); r("s_cbranch_scc1 K2_HB")
        r("s_mov_b64 exec, 1"); r("s_mov_b32 s32, 0"); r("v_mov_b32 v28, 8")
        r("K2_TP:")
        r("buffer_load_dword v29, v28, s[84:87], 0 offen sc1")
        r("s_waitcnt vmcnt(0)")
        r("v_readfirstlane_b32 s33, v29"); r("s_add_u32 s32, s32, 1"); r("s_nop 2")
        r("s_cmp_lg_u32 s33, 0"); r("s_cbranch_scc1 K2_TD")
        r("s_sleep 8")
        r("s_cmp_lt_u32 s32, 0x4000"); r("s_cbranch_scc1 K2_TP")
        r("K2_TD:")
        r(f"s_lshl_b32 s3, s25, 7"); r(f"s_add_u32 s3, s3, {WS_CNT + 16384}"); r("v_mov_b32 v28, s3"); r("s_mov_b32 s32, 0")
        r("K2_HP:")
        r(f"buffer_load_dword v29, v28, s[{sWS}:{sWS+3}], 0 offen sc1")
        r("s_waitcnt vmcnt(0)")
        r("v_readfirstlane_b32 s3, v29"); r("s_add_u32 s32, s32, 1"); r("s_nop 2")
        r("s_cmp_eq_u32 s3, s33"); r("s_cbranch_scc1 K2_HD")
        r("s_sleep 2")
        r("s_cmp_lt_u32 s32, 0x4000"); r("s_cbranch_scc1 K2_HP")
        r("K2_HD:")
        r("s_mov_b64 exec, -1")
        r("K2_HB:")
        P.e("s_barrier")
        for ks in range(3):
            L, D = load_h(ks)
            P.many(L); P.many(D); H['h'][ks] = D[-1]
    else:
      for ks in range(4):
        L, D = dma_wq(ks)
        P.many(L); P.many(D); H['wq'][ks] = D[-1]
        if ks < 3:
            L, D = load_h(ks)
            P.many(L); P.many(D); H['h'][ks] = D[-1]
        if ks == 0: prologue2(P)
    if not safe: code_prefetch(P, 49152)
    P.wait_vm(H['wq'][0])
    P.e("s_barrier")
    for n in range(4):
        rr = tr_wq(n); P.many(rr); H['tr'][n] = rr[-1]

def phase1_pro(P, handles):
    for ks in range(4):
        L, D = dma_wq(ks)
        P.many(L); P.many(D)
        handles['wq'][ks] = D[-1]
        if ks < 3:
            L, D = load_h(ks)
            P.many(L); P.many(D)
    if OPT.get('pf', 'loop') == 'pro':
        P.many(pf_kv()); P.many(pf_weights())
    P.wait_vm(handles['wq'][0])
    P.e("s_barrier")
    for n in range(4):
        P.many(tr_wq(n))

def q_convert(P):
    for t in range(12):
        for cb in range(2):
            x = QACC + (4*t + 2*cb)*4; y = x + 4
            d = QF + 8*t + 4*cb
            P.e(f"v_cvt_pk_bf16_f32 v{d}, v{x}, v{x+1}")
            P.e(f"v_cvt_pk_bf16_f32 v{d+1}, v{x+2}, v{x+3}")
            P.e(f"v_cvt_pk_bf16_f32 v{d+2}, v{y}, v{y+1}")
            P.e(f"v_cvt_pk_bf16_f32 v{d+3}, v{y+2}, v{y+3}")
        for cb in range(2):
            d = QF + 8*t + 4*cb
            P.e(f"v_permlane16_swap_b32 v{d}, v{d+2}")
            P.e(f"v_permlane16_swap_b32 v{d+1}, v{d+3}")

def dump_regs(P, regs, base_off):
    n = len(regs)
    P.e(f"s_lshl_b32 s3, s2, 2"); P.e("s_add_u32 s3, s3, s26")
    P.e(f"s_mul_i32 s3, s3, {n*256}"); P.e(f"s_add_u32 s3, s3, {base_off}")
    P.e(f"v_lshlrev_b32 v{vT0}, 2, v0"); P.e(f"v_add_u32 v{vT0}, s3, v{vT0}")
    for i, r in enumerate(regs):
        if r[0] == 'a':
            P.e(f"v_accvgpr_read_b32 v{vT1}, a{r[1]}")
            src = vT1
        else:
            src = r[1]
        P.e(f"s_mov_b32 s3, {i*256}")
        P.e(f"buffer_store_dword v{src}, v{vT0}, s[{sWS}:{sWS+3}], s3 offen")
        if r[0] == 'a': P.e("s_waitcnt vmcnt(0)")

def stamp(P, idx):
    P.e(f"s_memtime s[{sTS+2*idx}:{sTS+2*idx+1}]")

def write_stamps(P, n):
    P.e("s_waitcnt lgkmcnt(0)")
    P.e(f"s_lshl_b32 s3, s2, 2"); P.e("s_add_u32 s3, s3, s26"); P.e("s_lshl_b32 s3, s3, 6"); P.e(f"s_add_u32 s3, s3, {WS_STAMP}")
    for i in range(n):
        P.e(f"v_mov_b32 v{vT1}, s{sTS+2*i}")
        P.e(f"v_mov_b32 v{vT0}, s3")
        P.e(f"buffer_store_dword v{vT1}, v{vT0}, s[{sWS}:{sWS+3}], 0 offen offset:{4*i}")
        P.e("s_waitcnt vmcnt(0)")

KD = """.section .rodata,"a"
.p2align 6
.amdhsa_kernel {name}
  .amdhsa_next_free_vgpr {vgpr}
  .amdhsa_next_free_sgpr 102
  .amdhsa_accum_offset {acc}
  .amdhsa_group_segment_fixed_size 0
  .amdhsa_kernarg_size 112
  .amdhsa_user_sgpr_count 2
  .amdhsa_user_sgpr_kernarg_segment_ptr 1
  .amdhsa_system_sgpr_workgroup_id_x 1
.end_amdhsa_kernel
"""

def wrap(kernels, launches, tail_text=""):
    s = ""
    for nm, g, b, l in launches:
        s += f"; @launch kernel={nm} grid=({g},1,1) block=({b},1,1) lds={l}\n"
    s += '.amdgcn_target "amdgcn-amd-amdhsa--gfx950"\n.text\n' + MACROS
    for nm, txt, vg, ac in kernels:
        s += f".globl {nm}\n.p2align 8\n.type {nm},@function\n{nm}:\n{txt}"
    s += "K_TEXT_END:\n" + tail_text
    for nm, txt, vg, ac in kernels:
        s += KD.format(name=nm, vgpr=vg, acc=ac)
    return s

def code_prefetch(P, nbytes):
    P.e("s_getpc_b64 s[48:49]")
    P.e(f"v_lshlrev_b32 v{vT0}, 2, v0")
    P.e(f"s_lshl_b32 s3, s26, 8"); P.e(f"v_add_u32 v{vT0}, s3, v{vT0}")
    P.e(f"v_lshlrev_b32 v{vT0}, 4, v{vT0}")
    for off in range(0, nbytes, 16384):
        P.e(NT(f"global_load_dword v{vT1}, v{vT0}, s[48:49]"))
        P.e(f"v_add_u32 v{vT0}, 16384, v{vT0}")

def build_p1(fname):
    P = Prog()
    H = {'wq': {}, 'k': {}, 'v': {}}
    prologue(P, stamps=False)
    if OPT['pfcode']: code_prefetch(P, 16384)
    stamp(P, 0)
    phase1_pro(P, H)
    stamp(P, 1)
    phase1(P, H)
    stamp(P, 2)
    q_convert(P)
    stamp(P, 3)
    P.e("s_waitcnt vmcnt(0)")
    dump_regs(P, [('v', QF+i) for i in range(96)], WS_DBG)
    write_stamps(P, 4)
    P.e("K2_END:")
    P.e("s_endpgm")
    P.finalize()
    print("estimate", P.estimate(), "nops", P.nops, "ninstr", len(P.final))
    open(fname, "w").write(wrap([("k2_kernel", P.text(), 512, 256)], [("k2_kernel", 256, 256, LDS_BYTES)]))

def build_full(fname, dump_p=False):
    OPT.update(dict(dma=True, hload=True, barrier=True, tr=True, pfcode=True, p2=True))
    P = Prog()
    H = {'wq': {}, 'k': {}, 'v': {}}
    prologue(P, stamps=False)
    code_prefetch(P, 49152)
    stamp(P, 0)
    phase1_pro(P, H)
    stamp(P, 1)
    phase1(P, H)
    stamp(P, 2)
    q_convert(P)
    P.many(phase3_setup())
    stamp(P, 3)
    phase2(P, H)
    stamp(P, 4)
    phase3(P, H)
    stamp(P, 5)
    P.e("s_waitcnt vmcnt(0)")
    stamp(P, 6)
    if dump_p:
        regs = []
        for kt in range(16):
            for ct in range(4):
                p = P_reg(kt, ct)
                regs += [(p[0], p[1]+i) for i in range(4)]
        regs += [('v', LACC+i) for i in range(16)]
        dump_regs(P, regs, WS_DBG)
    write_stamps(P, 7)
    P.e("K2_END:")
    P.e("s_endpgm")
    P.finalize()
    print("estimate", P.estimate(), "nops", P.nops, "ninstr", len(P.final))
    open(fname, "w").write(wrap([("k2_kernel", P.text(), 512, 256)], [("k2_kernel", 256, 256, LDS_BYTES)]))

if __name__ == "__main__":
    import sys
    if len(sys.argv) > 1 and sys.argv[1] == "full":
        build_full("k2_full.s", dump_p=True)
        build_full("k2_fast.s", dump_p=False)
        sys.exit(0)
    build_p1("k2_p1.s")
    for nm, o in [("a", dict(dma=False, hload=False, barrier=False)), ("b", dict(dma=False, hload=True, barrier=False)),
                  ("c", dict(dma=True, hload=False, barrier=False)), ("d", dict(dma=True, hload=True, barrier=False)),
                  ("e", dict(dma=False, hload=False, barrier=True)), ("f", dict(dma=True, hload=True, barrier=True, pfcode=True)),
                  ("g", dict(dma=False, hload=False, barrier=False, tr=False))]:
        OPT.update(dict(dma=True, hload=True, barrier=True, tr=True, pfcode=False)); OPT.update(o)
        build_p1(f"k2_p1{nm}.s")
```

```python
from asmgen import *
from k2gen import WS_MOD, WS_HF, WS_OF, WS_PART, WS_X1, WS_H2F, WS_ACT, WS_BYTES, WS_WD, WS_WGU, WS_CNT
C_SCALE = 192**-0.5 * 1.4426950408889634
import struct
def f2u(x): return struct.unpack('<I', struct.pack('<f', x))[0]

NSPLIT = 4

def srd(P, s, lo, hi, nbytes):
    P.e(f"s_mov_b32 s{s}, s{lo}"); P.e(f"s_mov_b32 s{s+1}, s{hi}")
    P.e(f"s_mov_b32 s{s+2}, {nbytes}"); P.e(f"s_mov_b32 s{s+3}, 0x20000")

def pf_role(P, name, nmain, npf, ranges):
    e = P.e
    e(f"{name}_PF:")
    e(f"s_cmp_ge_u32 s2, {nmain+npf}"); e(f"s_cbranch_scc1 {name}_END")
    e(f"s_sub_u32 s20, s2, {nmain}")
    e("v_lshlrev_b32 v1, 4, v0")
    for ri, (ko, boff, nbytes, total) in enumerate(ranges):
        per = -(-nbytes // (npf*4096))*4096
        e(f"s_load_dwordx2 s[4:5], s[0:1], {ko}")
        e("s_waitcnt lgkmcnt(0)")
        e("s_mov_b32 s8, s4"); e("s_mov_b32 s9, s5"); e(f"s_mov_b32 s10, {min(total, boff+nbytes)}"); e("s_mov_b32 s11, 0x20000")
        e(f"s_mul_i32 s21, s20, {per}"); e(f"s_add_u32 s21, s21, {boff}")
        for i in range(per // 4096):
            e(NT(f"buffer_load_dwordx4 v[4:7], v1, s[8:11], s21 offen"))
            e("s_add_u32 s21, s21, 4096")
    e("s_endpgm")

def pf_role_kv(P, name, nmain, npf, kos):
    e = P.e
    parts = npf // 32
    per = 196608 // parts
    e(f"s_sub_u32 s20, s2, {nmain}")
    e("s_and_b32 s22, s20, 31"); e("s_lshr_b32 s23, s20, 5")
    e(f"s_mul_i32 s22, s22, 786432"); e(f"s_mul_i32 s23, s23, {per}"); e("s_add_u32 s22, s22, s23"); e("s_add_u32 s22, s22, 589824")
    for ko in kos:
        e(f"s_load_dwordx2 s[4:5], s[0:1], {ko}")
        e("s_waitcnt lgkmcnt(0)")
        e("s_mov_b32 s8, s4"); e("s_mov_b32 s9, s5"); e(f"s_mov_b32 s10, 25165824"); e("s_mov_b32 s11, 0x20000")
        e("s_mov_b32 s21, s22")
        for i in range(per // 4096):
            e(NT(f"buffer_load_dwordx4 v[4:7], v1, s[8:11], s21 offen"))
            e("s_add_u32 s21, s21, 4096")

def gen_k0(prefetch=True):
    P = Prog(); e = P.e
    NWG = 30*NSPLIT
    e(f"s_cmp_ge_u32 s2, {NWG}"); e("s_cbranch_scc1 K0_PF")
    e("s_load_dwordx4 s[4:7], s[0:1], 72")
    e("s_load_dwordx2 s[16:17], s[0:1], 104")
    e("s_load_dwordx2 s[18:19], s[0:1], 24")
    e(f"s_mul_i32 s3, s2, {(65536+29)//30}"); e("s_lshr_b32 s20, s3, 16")
    e("s_mul_i32 s3, s20, 30"); e("s_sub_u32 s21, s2, s3")
    e("v_and_b32 v1, 15, v0")
    e("v_lshrrev_b32 v2, 4, v0")
    e(f"s_mul_i32 s3, s20, {640//NSPLIT}")
    e("v_add_u32 v3, s3, v2")
    e("v_lshlrev_b32 v4, 1, v3")
    e("s_mov_b32 s22, 7680")
    e("v_mul_lo_u32 v5, v3, s22")
    e("v_lshlrev_b32 v6, 4, v1")
    e("v_add_u32 v5, v5, v6")
    e("s_lshl_b32 s3, s21, 8"); e("v_add_u32 v5, s3, v5")
    e("s_waitcnt lgkmcnt(0)")
    srd(P, 8, 4, 5, 1280); srd(P, 12, 6, 7, 640*3840*2); srd(P, 24, 16, 17, WS_BYTES); srd(P, 28, 18, 19, 7864320)
    NR = 160//16
    for i in range(NR):
        e(f"buffer_load_ushort v{10+i}, v4, s[8:11], 0 offen offset:{32*i}")
    e(f"s_mov_b32 s23, 0")
    for i in range(NR):
        e(f"s_mov_b32 s23, {16*7680*i}")
        e(f"buffer_load_dwordx4 v[{24+4*i}:{27+4*i}], v5, s[12:15], s23 offen")
    for i in range(NR):
        r = 10+i
        e(f"v_lshlrev_b32 v{r}, 16, v{r}")
        e(f"v_mul_f32 v9, {f2u(-1.4426950408889634)}, v{r}")
        e("v_exp_f32 v9, v9")
        e("v_add_f32 v9, 1.0, v9")
        e("v_rcp_f32 v9, v9")
        e(f"v_mul_f32 v{r}, v{r}, v9")
        e(f"v_cvt_pk_bf16_f32 v{r}, v{r}, v{r}")
        e(f"v_and_b32 v{r}, 0xffff0000, v{r}")
    for j in range(8): e(f"v_mov_b32 v{70+j}, 0")
    for i in range(NR):
        for q in range(4):
            w = 24+4*i+q
            e(f"v_lshlrev_b32 v68, 16, v{w}")
            e(f"v_and_b32 v69, 0xffff0000, v{w}")
            e(f"v_fmac_f32 v{70+2*q}, v{10+i}, v68")
            e(f"v_fmac_f32 v{71+2*q}, v{10+i}, v69")
    e("v_lshlrev_b32 v6, 5, v1")
    e("v_lshlrev_b32 v7, 9, v2")
    e("v_add_u32 v6, v6, v7")
    e("ds_write_b128 v6, v[70:73]"); e("ds_write_b128 v6, v[74:77] offset:16")
    e("s_waitcnt lgkmcnt(0)"); e("s_barrier")
    e("v_cmp_gt_u32 vcc, 128, v0")
    e("s_and_saveexec_b64 s[32:33], vcc")
    e("s_cbranch_execz K0_END")
    e("v_lshlrev_b32 v6, 2, v0")
    for r in range(16): e(f"ds_read_b32 v{30+r}, v6 offset:{512*r}")
    for r in range(1, 16): e(f"v_add_f32 v30, v30, v{30+r}")
    e("s_mul_i32 s3, s20, 15360"); e("s_lshl_b32 s23, s21, 9"); e("s_add_u32 s3, s3, s23"); e(f"s_add_u32 s3, s3, {WS_MOD}")
    e("v_add_u32 v6, s3, v6")
    e("buffer_store_dword v30, v6, s[24:27], 0 offen")
    e("K0_END:")
    e("s_endpgm")
    pf_role(P, "K0", NWG, 128, [(24, 0, 7864320, 7864320)])
    P.finalize()
    return P

def load_mod_to_lds(P, idx_list, scale_fn, tid='v0', tbase=20, lds_base=0, store_idx={}):
    e = P.e
    e(f"v_lshlrev_b32 v{tbase}, 4, {tid}")
    r = tbase+4
    for n, idx in enumerate(idx_list):
        for p in range(NSPLIT):
            off = WS_MOD + (p*3840 + idx*640)*4
            e(f"s_mov_b32 s34, {off}")
            e(f"buffer_load_dwordx4 v[{r+(n*NSPLIT+p)*4}:{r+(n*NSPLIT+p)*4+3}], v{tbase}, s[24:27], s34 offen")
    for n, idx in enumerate(idx_list):
        b = r + n*NSPLIT*4
        for p in range(1, NSPLIT):
            for i in range(4): e(f"v_add_f32 v{b+i}, v{b+i}, v{b+4*p+i}")
        for i in range(4):
            e(f"v_cvt_pk_bf16_f32 v{b+i}, v{b+i}, v{b+i}")
            e(f"v_and_b32 v{b+i}, 0xffff0000, v{b+i}")
            scale_fn(P, n, b+i)
        if n in store_idx:
            e(f"s_mov_b32 s34, {store_idx[n]}")
            e(f"buffer_store_dwordx4 v[{b}:{b+3}], v{tbase}, s[24:27], s34 offen")
        else:
            e(f"ds_write_b128 v{tbase}, v[{b}:{b+3}] offset:{lds_base + n*4096}")

def row_reduce(P, val, red_base, tmp, addr_w, addr_r):
    e = P.e
    e(f"ds_write_b32 v{addr_w}, v{val} offset:{red_base}")
    e("s_waitcnt lgkmcnt(0)"); e("s_barrier")
    for q in range(4): e(f"ds_read_b128 v[{tmp+4*q}:{tmp+4*q+3}], v{addr_r} offset:{red_base+16*q}")
    e(f"v_add_f32 v{val}, v{tmp}, v{tmp+1}")
    for i in range(2, 16): e(f"v_add_f32 v{val}, v{val}, v{tmp+i}")

def ln_common(P, X, n, a1_lds, a0_lds, out_regs, w_sgpr, eps=1e-5):
    e = P.e
    RED0, RED1 = 12288, 13312
    e("v_lshlrev_b32 v4, 6, v2"); e("v_lshlrev_b32 v5, 2, v3"); e("v_add_u32 v5, v4, v5")
    e(f"s_lshl_b32 s3, s{w_sgpr}, 4"); e("v_add_u32 v5, s3, v5")
    e(f"v_add_f32 v6, v{X}, v{X+1}")
    for i in range(2, n): e(f"v_add_f32 v6, v6, v{X+i}")
    T = 200
    row_reduce(P, 6, RED0, T, 5, 4)
    e(f"v_mul_f32 v6, {f2u(1/640)}, v6")
    for i in range(n): e(f"v_sub_f32 v{X+i}, v{X+i}, v6")
    e(f"v_mul_f32 v7, v{X}, v{X}")
    for i in range(1, n): e(f"v_fmac_f32 v7, v{X+i}, v{X+i}")
    row_reduce(P, 7, RED1, T, 5, 4)
    e(f"v_mul_f32 v7, {f2u(1/640)}, v7")
    e(f"v_add_f32 v7, {f2u(eps)}, v7")
    e("v_rsq_f32 v7, v7")
    e(f"s_mul_i32 s3, s{w_sgpr}, {5*32*4}")
    e("v_lshlrev_b32 v8, 4, v3"); e("v_add_u32 v8, s3, v8")
    for j in range(5):
        for hh in range(2):
            off = j*128 + hh*64
            e(f"ds_read_b128 v[{T}:{T+3}], v8 offset:{a1_lds+off}")
            e(f"ds_read_b128 v[{T+4}:{T+7}], v8 offset:{a0_lds+off}")
            b = X + j*8 + hh*4
            for i in range(4):
                e(f"v_mul_f32 v{b+i}, v{b+i}, v7")
                e(f"v_fma_f32 v{b+i}, v{b+i}, v{T+i}, v{T+4+i}")
            e(f"v_cvt_pk_bf16_f32 v{out_regs+j*4+hh*2}, v{b}, v{b+1}")
            e(f"v_cvt_pk_bf16_f32 v{out_regs+j*4+hh*2+1}, v{b+2}, v{b+3}")

def load_x_pieces(P, X, raw, srd_x):
    e = P.e
    for j in range(5):
        for hh in range(2):
            e(f"buffer_load_dwordx2 v[{raw+(j*2+hh)*2}:{raw+(j*2+hh)*2+1}], v9, s[{srd_x}:{srd_x+3}], 0 offen offset:{j*64+hh*32}")

def unpack_x(P, X, raw):
    e = P.e
    for j in range(10):
        for q in range(2):
            e(f"v_lshlrev_b32 v{X+j*4+q*2}, 16, v{raw+j*2+q}")
            e(f"v_and_b32 v{X+j*4+q*2+1}, 0xffff0000, v{raw+j*2+q}")

def gen_k1(prefetch=True):
    P = Prog(); e = P.e
    e("s_cmp_ge_u32 s2, 128"); e("s_cbranch_scc1 K1_PF")
    e("s_load_dwordx2 s[4:5], s[0:1], 0")
    e("s_load_dwordx2 s[16:17], s[0:1], 104")
    e("v_lshrrev_b32 v1, 6, v0"); e("v_and_b32 v10, 63, v0")
    e("v_readfirstlane_b32 s20, v1")
    e("v_and_b32 v2, 15, v10"); e("v_lshrrev_b32 v3, 4, v10")
    e("s_lshl_b32 s3, s2, 4"); e("v_add_u32 v9, s3, v2"); e("v_mul_u32_u24 v9, 1280, v9")
    e("v_lshlrev_b32 v11, 3, v3"); e("v_add_u32 v9, v9, v11")
    e("s_mul_i32 s3, s20, 320"); e("v_add_u32 v9, s3, v9")
    e("s_waitcnt lgkmcnt(0)")
    srd(P, 8, 4, 5, 2048*1280); srd(P, 24, 16, 17, WS_BYTES)
    X = 100; RAW = 60
    load_x_pieces(P, X, RAW, 8)
    def sc(P, n, r):
        if n == 0:
            P.e(f"v_mul_f32 v{r}, {f2u(C_SCALE)}, v{r}")
        else:
            P.e(f"v_add_f32 v{r}, 1.0, v{r}")
            P.e(f"v_mul_f32 v{r}, {f2u(C_SCALE)}, v{r}")
    load_mod_to_lds(P, [0, 1], sc)
    unpack_x(P, X, RAW)
    OUT = 160
    ln_common(P, X, 40, 4096, 0, OUT, 20)
    e("s_mul_i32 s3, s2, 20480"); e("s_mul_i32 s21, s20, 5120"); e("s_add_u32 s3, s3, s21"); e(f"s_add_u32 s3, s3, {WS_HF}")
    e("v_lshlrev_b32 v11, 4, v10"); e("v_add_u32 v11, s3, v11")
    for j in range(5):
        e(f"buffer_store_dwordx4 v[{OUT+4*j}:{OUT+4*j+3}], v11, s[24:27], 0 offen offset:{j*1024 if j<4 else 0}" if j < 4 else f"s_mov_b32 s21, 4096")
    e(f"buffer_store_dwordx4 v[{OUT+16}:{OUT+19}], v11, s[24:27], s21 offen")
    e("K1_END:")
    e("s_endpgm")
    e("K1_PF:")
    e("s_cmp_ge_u32 s2, 256"); e("s_cbranch_scc1 K1_END")
    e("v_lshlrev_b32 v1, 4, v0")
    pf_role_kv(P, "K1", 128, 128, [8, 16])
    e("s_endpgm")
    P.finalize()
    return P

def gen_k4(part_bf16=False, nsplit=4):
    P = Prog(); e = P.e
    e("s_cmp_ge_u32 s2, 128"); e("s_cbranch_scc1 K4_PF")
    e("s_load_dwordx2 s[4:5], s[0:1], 0")
    e("s_load_dwordx2 s[16:17], s[0:1], 104")
    e("v_lshrrev_b32 v1, 6, v0"); e("v_and_b32 v10, 63, v0")
    e("v_readfirstlane_b32 s20, v1")
    e("v_and_b32 v2, 15, v10"); e("v_lshrrev_b32 v3, 4, v10")
    e("s_lshl_b32 s3, s2, 4"); e("v_add_u32 v9, s3, v2"); e("v_mul_u32_u24 v9, 1280, v9")
    e("v_lshlrev_b32 v11, 3, v3"); e("v_add_u32 v9, v9, v11")
    e("s_mul_i32 s3, s20, 320"); e("v_add_u32 v9, s3, v9")
    e("s_mul_i32 s3, s2, 20480"); e("s_mul_i32 s21, s20, 5120"); e("s_add_u32 s3, s3, s21"); e(f"s_add_u32 s3, s3, {WS_PART}")
    e("v_lshlrev_b32 v12, 4, v10"); e("v_add_u32 v12, s3, v12")
    e("s_waitcnt lgkmcnt(0)")
    srd(P, 8, 4, 5, 2048*1280); srd(P, 24, 16, 17, WS_BYTES)
    X = 100; RAW = 60; PRAW = 140
    load_x_pieces(P, X, RAW, 8)
    def sc(P, n, r):
        if n == 2: P.e(f"v_add_f32 v{r}, 1.0, v{r}")
    load_mod_to_lds(P, [2, 3, 4, 5], sc, tbase=160, store_idx={3: WS_MOD + 0x20000})
    ACC = 20
    PR = 232 - 80
    for p in range(nsplit):
        for j in range(5):
            o = p*128*20480 + j*1024
            e(f"s_mov_b32 s21, {o}")
            e(f"buffer_load_dwordx4 v[{PRAW+p*20+4*j}:{PRAW+p*20+4*j+3}], v12, s[24:27], s21 offen")
    for p in range(nsplit):
        for q in range(20):
            r = PRAW + p*20 + q
            if p == 0:
                e(f"v_lshlrev_b32 v{ACC+2*q}, 16, v{r}"); e(f"v_and_b32 v{ACC+2*q+1}, 0xffff0000, v{r}")
            else:
                e(f"v_lshlrev_b32 v14, 16, v{r}"); e(f"v_and_b32 v15, 0xffff0000, v{r}")
                e(f"v_add_f32 v{ACC+2*q}, v{ACC+2*q}, v14"); e(f"v_add_f32 v{ACC+2*q+1}, v{ACC+2*q+1}, v15")
    unpack_x(P, X, RAW)
    e("s_waitcnt lgkmcnt(0)"); e("s_barrier")
    e(f"s_mul_i32 s3, s20, 640"); e("v_lshlrev_b32 v8, 4, v3"); e("v_add_u32 v8, s3, v8")
    T = 200
    OUTX = 160
    for j in range(10):
        e(f"ds_read_b128 v[{T}:{T+3}], v8 offset:{j*64}")
        for i in range(4):
            e(f"v_fma_f32 v{X+j*4+i}, v{ACC+j*4+i}, v{T+i}, v{X+j*4+i}")
        e(f"v_cvt_pk_bf16_f32 v{OUTX+j*2}, v{X+j*4}, v{X+j*4+1}")
        e(f"v_cvt_pk_bf16_f32 v{OUTX+j*2+1}, v{X+j*4+2}, v{X+j*4+3}")
        for q in range(2):
            e(f"v_lshlrev_b32 v{X+j*4+q*2}, 16, v{OUTX+j*2+q}")
            e(f"v_and_b32 v{X+j*4+q*2+1}, 0xffff0000, v{OUTX+j*2+q}")
    e("s_mul_i32 s3, s2, 20480"); e("s_mul_i32 s21, s20, 5120"); e("s_add_u32 s3, s3, s21")
    e("v_lshlrev_b32 v11, 4, v10"); e("v_add_u32 v11, s3, v11")
    for j in range(5):
        e(f"s_mov_b32 s21, {WS_X1 + j*1024}")
        e(f"buffer_store_dwordx4 v[{OUTX+4*j}:{OUTX+4*j+3}], v11, s[24:27], s21 offen")
    OUT = 20
    ln_common(P, X, 40, 2*4096, 1*4096, OUT, 20)
    for j in range(5):
        e(f"s_mov_b32 s21, {WS_H2F + j*1024}")
        e(f"buffer_store_dwordx4 v[{OUT+4*j}:{OUT+4*j+3}], v11, s[24:27], s21 offen")
    e("K4_END:")
    e("s_endpgm")
    pf_role(P, "K4", 128, 128, [(48, 0, 1966080, 1966080), (56, 0, 1966080, 1966080), (64, 0, 1966080, 1966080)])
    P.finalize()
    return P

WS_MODF = WS_MOD + 0x10000
NGEMV = 30*NSPLIT
NLN = 128
N01 = NGEMV + NLN

SLEEP = 6
CODE_BYTES = 131072
DIAG = False
def gen_k01(pf=('wq',), npf=256):
    P = Prog(); e = P.e
    e("s_load_dwordx4 s[4:7], s[0:1], 72")
    e("s_load_dwordx4 s[16:19], s[0:1], 96")
    e("s_load_dwordx2 s[38:39], s[0:1], 0")
    e("s_load_dwordx2 s[40:41], s[0:1], 24")
    e("s_cmp_lt_u32 s2, 40"); e("s_cbranch_scc1 K01_GA")
    e("s_cmp_lt_u32 s2, 168"); e("s_cbranch_scc1 K01_LN")
    e("s_cmp_ge_u32 s2, 248"); e("s_cbranch_scc1 K01_END")
    e("s_sub_u32 s3, s2, 168"); e(f"s_mul_i32 s20, s3, {(65536+19)//20}"); e("s_lshr_b32 s20, s20, 16")
    e("s_mul_i32 s21, s20, 20"); e("s_sub_u32 s21, s3, s21"); e("s_add_u32 s21, s21, 10")
    e("s_branch K01_G")
    e("K01_GA:")
    e("s_and_b32 s20, s2, 3"); e("s_lshr_b32 s21, s2, 2")
    e("K01_G:")
    if DIAG: e("s_memrealtime s[60:61]")
    e("v_and_b32 v1, 15, v0"); e("v_lshrrev_b32 v2, 4, v0")
    e(f"s_mul_i32 s3, s20, {640//NSPLIT}")
    e("v_add_u32 v3, s3, v2"); e("v_lshlrev_b32 v4, 1, v3")
    e("s_mov_b32 s22, 7680"); e("v_mul_lo_u32 v5, v3, s22")
    e("v_lshlrev_b32 v6, 4, v1"); e("v_add_u32 v5, v5, v6")
    e("s_lshl_b32 s3, s21, 8"); e("v_add_u32 v5, s3, v5")
    e("s_waitcnt lgkmcnt(0)")
    srd(P, 8, 4, 5, 1280); srd(P, 12, 6, 7, 640*3840*2); srd(P, 24, 18, 19, WS_BYTES); srd(P, 28, 16, 17, 256)
    if DIAG: e("s_memrealtime s[62:63]")
    NR = 160//16
    for i in range(NR):
        e(f"s_mov_b32 s23, {16*7680*i}")
        e(f"buffer_load_dwordx4 v[{24+4*i}:{27+4*i}], v5, s[12:15], s23 offen")
    for i in range(NR):
        e(f"buffer_load_ushort v{10+i}, v4, s[8:11], 0 offen offset:{32*i}")
    for i in range(NR): e(f"v_lshlrev_b32 v{10+i}, 16, v{10+i}")
    for i in range(NR): e(f"v_mul_f32 v{80+i}, {f2u(-1.4426950408889634)}, v{10+i}")
    for i in range(NR): e(f"v_exp_f32 v{80+i}, v{80+i}")
    for i in range(NR): e(f"v_add_f32 v{80+i}, 1.0, v{80+i}")
    for i in range(NR): e(f"v_rcp_f32 v{80+i}, v{80+i}")
    for i in range(NR): e(f"v_mul_f32 v{10+i}, v{10+i}, v{80+i}")
    for i in range(NR): e(f"v_cvt_pk_bf16_f32 v{10+i}, v{10+i}, v{10+i}")
    for i in range(NR): e(f"v_and_b32 v{10+i}, 0xffff0000, v{10+i}")
    for j in range(8): e(f"v_mov_b32 v{70+j}, 0")
    for i in range(NR):
        for q in range(4):
            w = 24+4*i+q
            e(f"v_lshlrev_b32 v68, 16, v{w}"); e(f"v_and_b32 v69, 0xffff0000, v{w}")
            e(f"v_fmac_f32 v{70+2*q}, v{10+i}, v68"); e(f"v_fmac_f32 v{71+2*q}, v{10+i}, v69")
    if DIAG: e("s_memrealtime s[64:65]")
    e("v_lshlrev_b32 v6, 5, v1"); e("v_lshlrev_b32 v7, 9, v2"); e("v_add_u32 v6, v6, v7")
    e("ds_write_b128 v6, v[70:73]"); e("ds_write_b128 v6, v[74:77] offset:16")
    e("s_waitcnt lgkmcnt(0)"); e("s_barrier")
    e("v_cmp_gt_u32 vcc, 64, v0")
    e("s_and_saveexec_b64 s[32:33], vcc")
    e("s_cbranch_execz K01_PF")
    e("v_lshlrev_b32 v6, 3, v0")
    for r in range(16): e(f"ds_read_b64 v[{30+2*r}:{31+2*r}], v6 offset:{512*r}")
    for r in (8, 4, 2, 1):
        for q in range(r): e(f"v_pk_add_f32 v[{30+2*q}:{31+2*q}], v[{30+2*q}:{31+2*q}], v[{30+2*(q+r)}:{31+2*(q+r)}]")
    e("s_mul_i32 s3, s20, 15360"); e("s_lshl_b32 s23, s21, 9"); e("s_add_u32 s3, s3, s23"); e(f"s_add_u32 s3, s3, {WS_MOD}")
    e("v_add_u32 v6, s3, v6")
    e("buffer_store_dwordx2 v[30:31], v6, s[24:27], 0 offen sc1")
    e("s_waitcnt vmcnt(0)")
    if DIAG: e("s_memrealtime s[66:67]")
    e("s_cmp_ge_u32 s21, 10"); e("s_cbranch_scc1 K01_END")
    e("v_cmp_eq_u32 vcc, 0, v0")
    e("s_and_saveexec_b64 s[32:33], vcc")
    e("s_cbranch_execz K01_END")
    e("v_mov_b32 v7, 1"); e("v_mov_b32 v8, 0")
    e("buffer_atomic_add v7, v8, s[28:31], 0 offen sc0 sc1")
    e("s_waitcnt vmcnt(0)")
    if DIAG:
        e("s_memrealtime s[68:69]"); e("s_waitcnt lgkmcnt(0)")
        e("s_lshl_b32 s3, s2, 5"); e(f"s_add_u32 s3, s3, {0x5000000 + 0x80000}")
        for q in range(5): e(f"v_mov_b32 v{40+q}, s{60+2*q}")
        e("v_mov_b32 v46, s3")
        e("buffer_store_dwordx4 v[40:43], v46, s[24:27], 0 offen"); e("buffer_store_dword v44, v46, s[24:27], 0 offen offset:16")
    e("v_readfirstlane_b32 s22, v7"); e("s_nop 3")
    e(f"s_cmp_lg_u32 s22, {10*NSPLIT-1}"); e("s_cbranch_scc1 K01_END")
    e("v_mov_b32 v8, 128"); e("v_mov_b32 v7, 1")
    e("buffer_store_dword v7, v8, s[28:31], 0 offen sc1")
    e("K01_END:")
    e("s_endpgm")
    e("K01_LN:")
    e(f"s_sub_u32 s2, s2, 40")
    e("v_lshrrev_b32 v1, 6, v0"); e("v_and_b32 v10, 63, v0")
    e("v_readfirstlane_b32 s20, v1")
    e("v_and_b32 v2, 15, v10"); e("v_lshrrev_b32 v3, 4, v10")
    e("s_lshl_b32 s3, s2, 4"); e("v_add_u32 v9, s3, v2"); e("v_mul_u32_u24 v9, 1280, v9")
    e("v_lshlrev_b32 v11, 3, v3"); e("v_add_u32 v9, v9, v11")
    e("s_mul_i32 s3, s20, 320"); e("v_add_u32 v9, s3, v9")
    e("s_waitcnt lgkmcnt(0)")
    srd(P, 8, 38, 39, 2048*1280); srd(P, 24, 18, 19, WS_BYTES); srd(P, 28, 16, 17, 256)
    if DIAG: e("s_memrealtime s[60:61]")
    X = 100; RAW = 60; T = 200
    load_x_pieces(P, X, RAW, 8)
    e("s_cmp_lg_u32 s2, 0"); e("s_cbranch_scc1 K01_NOZ")
    e("v_min_u32 v12, 63, v0"); e("v_lshlrev_b32 v12, 7, v12"); e("v_mov_b32 v13, 0"); e(f"s_mov_b32 s21, {WS_CNT}")
    e("buffer_store_dword v13, v12, s[24:27], s21 offen sc1")
    e(f"s_mov_b32 s21, {WS_CNT + 8192}")
    e("buffer_store_dword v13, v12, s[24:27], s21 offen sc1")
    e("K01_NOZ:")
    unpack_x(P, X, RAW)
    RED0, RED1 = 12288, 13312
    e("v_lshlrev_b32 v4, 6, v2"); e("v_lshlrev_b32 v5, 2, v3"); e("v_add_u32 v5, v4, v5")
    e(f"s_lshl_b32 s3, s20, 4"); e("v_add_u32 v5, s3, v5")
    e(f"v_add_f32 v6, v{X}, v{X+1}")
    for i in range(2, 40): e(f"v_add_f32 v6, v6, v{X+i}")
    row_reduce(P, 6, RED0, T, 5, 4)
    e(f"v_mul_f32 v6, {f2u(1/640)}, v6")
    for i in range(40): e(f"v_sub_f32 v{X+i}, v{X+i}, v6")
    e(f"v_mul_f32 v7, v{X}, v{X}")
    for i in range(1, 40): e(f"v_fmac_f32 v7, v{X+i}, v{X+i}")
    row_reduce(P, 7, RED1, T, 5, 4)
    e(f"v_mul_f32 v7, {f2u(1/640)}, v7"); e(f"v_add_f32 v7, {f2u(1e-5)}, v7"); e("v_rsq_f32 v7, v7")
    e("s_nop 0")
    for i in range(40): e(f"v_mul_f32 v{X+i}, v{X+i}, v7")
    if DIAG: e("s_memrealtime s[62:63]")
    e("s_cmp_lg_u32 s20, 0"); e("s_cbranch_scc1 K01_GO")
    e("s_mov_b32 s35, 1")
    e("v_mov_b32 v12, 128"); e("s_mov_b32 s21, 0")
    e("K01_POLL:")
    e("buffer_load_dword v13, v12, s[28:31], 0 offen sc1")
    e("s_waitcnt vmcnt(0)")
    e("v_readfirstlane_b32 s22, v13")
    e("s_add_u32 s21, s21, 1")
    e(f"s_cmp_ge_u32 s22, s35"); e("s_cbranch_scc1 K01_GO")
    e(f"s_sleep {SLEEP}")
    e("s_cmp_lt_u32 s21, 0x4000"); e("s_cbranch_scc1 K01_POLL")
    e("K01_GO:")
    e("s_barrier")
    if DIAG: e("s_memrealtime s[64:65]")
    tb = 20
    e(f"v_lshlrev_b32 v{tb}, 4, v0")
    r = 24
    for n, idx in enumerate([0, 1]):
        for p in range(NSPLIT):
            e(f"s_mov_b32 s34, {WS_MOD + (p*3840 + idx*640)*4}")
            e(f"buffer_load_dwordx4 v[{r+(n*NSPLIT+p)*4}:{r+(n*NSPLIT+p)*4+3}], v{tb}, s[24:27], s34 offen sc1")
    for n in range(2):
        b = r + n*NSPLIT*4
        for p in range(1, NSPLIT):
            for i in range(4): e(f"v_add_f32 v{b+i}, v{b+i}, v{b+4*p+i}")
        for i in range(4):
            e(f"v_cvt_pk_bf16_f32 v{b+i}, v{b+i}, v{b+i}"); e(f"v_and_b32 v{b+i}, 0xffff0000, v{b+i}")
            if n == 1: e(f"v_add_f32 v{b+i}, 1.0, v{b+i}")
            e(f"v_mul_f32 v{b+i}, {f2u(C_SCALE)}, v{b+i}")
        e(f"ds_write_b128 v{tb}, v[{b}:{b+3}] offset:{n*4096}")
    e("s_waitcnt lgkmcnt(0)"); e("s_barrier")
    if DIAG: e("s_memrealtime s[66:67]")
    e(f"s_mul_i32 s3, s20, {5*32*4}")
    e("v_lshlrev_b32 v8, 4, v3"); e("v_add_u32 v8, s3, v8")
    OUT = 160
    for j in range(5):
        for hh in range(2):
            off = j*128 + hh*64; k = (j*2+hh) % 2
            t = T + 8*k
            e(f"ds_read_b128 v[{t}:{t+3}], v8 offset:{4096+off}")
            e(f"ds_read_b128 v[{t+4}:{t+7}], v8 offset:{off}")
            b = X + j*8 + hh*4
            for i in range(4): e(f"v_fma_f32 v{b+i}, v{b+i}, v{t+i}, v{t+4+i}")
            e(f"v_cvt_pk_bf16_f32 v{OUT+j*4+hh*2}, v{b}, v{b+1}")
            e(f"v_cvt_pk_bf16_f32 v{OUT+j*4+hh*2+1}, v{b+2}, v{b+3}")
    e("s_mul_i32 s3, s2, 20480"); e("s_mul_i32 s21, s20, 5120"); e("s_add_u32 s3, s3, s21"); e(f"s_add_u32 s3, s3, {WS_HF}")
    e("v_lshlrev_b32 v11, 4, v10"); e("v_add_u32 v11, s3, v11")
    for j in range(5):
        e(f"s_mov_b32 s21, {j*1024}")
        e(f"buffer_store_dwordx4 v[{OUT+4*j}:{OUT+4*j+3}], v11, s[24:27], s21 offen sc1")
    if DIAG:
        e("s_waitcnt vmcnt(0)"); e("s_memrealtime s[68:69]"); e("s_waitcnt lgkmcnt(0)")
        e("s_add_u32 s3, s2, 40"); e("s_lshl_b32 s3, s3, 5"); e(f"s_add_u32 s3, s3, {0x5000000 + 0x80000}")
        for q in range(5): e(f"v_mov_b32 v{40+q}, s{60+2*q}")
        e("v_mov_b32 v46, s3"); e("s_mov_b64 exec, 1")
        e("buffer_store_dwordx4 v[40:43], v46, s[24:27], 0 offen"); e("buffer_store_dword v44, v46, s[24:27], 0 offen offset:16")
    e("s_endpgm")
    e("K01_PF:")
    e("s_mov_b64 exec, -1")
    e("s_and_b32 s21, s2, 7")
    e("s_lshr_b32 s22, s2, 3"); e("s_cmp_lt_u32 s2, 40"); e("s_cselect_b32 s3, 0, 16"); e("s_sub_u32 s22, s22, s3")
    e("v_subrev_u32 v1, 64, v0")
    if 'code' in pf:
        e("s_getpc_b64 s[4:5]")
        e("K01_PC:")
        e("s_add_u32 s4, s4, k2_kernel-K01_PC"); e("s_addc_u32 s5, s5, 0")
        e("s_mul_i32 s3, s22, 9216"); e("v_lshlrev_b32 v2, 4, v1"); e("v_add_u32 v2, s3, v2")
        e("s_mov_b32 s23, K_TEXT_END-k2_kernel-16")
        for r_ in range(3):
            e("v_min_u32 v3, s23, v2")
            e(NT("global_load_dwordx4 v[4:7], v3, s[4:5]"))
            e(f"v_add_u32 v2, 3072, v2")
    if 'repack' in pf:
        e("s_cmp_lt_u32 s2, 40"); e("s_cselect_b32 s3, 0, 128"); e("s_sub_u32 s36, s2, s3")
        e("s_load_dwordx4 s[44:47], s[0:1], 48"); e("s_load_dwordx2 s[48:49], s[0:1], 64"); e("s_waitcnt lgkmcnt(0)")
        e("s_lshl_b32 s37, s36, 10")
        for m, (lo, kind) in enumerate(((48, 'd'), (44, 'g'), (46, 'u'))):
            srd(P, 8, lo, lo+1, 1966080)
            for r_ in range(6):
                e(f"v_add_u32 v10, {r_*192}, v1")
                e("v_cmp_gt_u32 vcc, 1024, v10"); e("v_add_u32 v10, s37, v10")
                e("v_lshlrev_b32 v11, 4, v10"); e("v_mov_b32 v12, 0x7ff00000"); e("v_cndmask_b32 v11, v12, v11, vcc")
                e(f"buffer_load_dwordx4 v[{60+m*24+4*r_}:{63+m*24+4*r_}], v11, s[8:11], 0 offen")
                if kind == 'd':
                    e("s_mov_b32 s3, 53687092"); e("v_mul_hi_u32 v13, v10, s3")
                    e("v_mul_u32_u24 v14, 80, v13"); e("v_sub_u32 v14, v10, v14")
                    e("v_mul_u32_u24 v15, 6554, v14"); e("v_lshrrev_b32 v15, 16, v15")
                    e("v_mul_u32_u24 v16, 10, v15"); e("v_sub_u32 v16, v14, v16")
                    e("v_mul_u32_u24 v15, 245760, v15"); e("v_mul_u32_u24 v13, 160, v13")
                else:
                    e("s_mov_b32 s3, 22369622"); e("v_mul_hi_u32 v13, v10, s3")
                    e("v_mul_u32_u24 v14, 192, v13"); e("v_sub_u32 v14, v10, v14")
                    e("v_mul_u32_u24 v15, 5462, v14"); e("v_lshrrev_b32 v15, 16, v15")
                    e("v_mul_u32_u24 v16, 12, v15"); e("v_sub_u32 v16, v14, v16")
                    e("v_mul_u32_u24 v15, 245760, v15"); e("v_mul_u32_u24 v13, 384, v13")
                e("v_lshlrev_b32 v16, 4, v16"); e("v_add_u32 v15, v15, v13"); e("v_add_u32 v15, v15, v16")
                e(f"v_cndmask_b32 v{20+m*6+r_}, v12, v15, vcc")
        for m, kind in enumerate('dgu'):
            e(f"s_mov_b32 s3, {WS_WD if kind == 'd' else WS_WGU + (192 if kind == 'u' else 0)}")
            for r_ in range(6):
                e(f"buffer_store_dwordx4 v[{60+m*24+4*r_}:{63+m*24+4*r_}], v{20+m*6+r_}, s[24:27], s3 offen sc1")
    if 'wq' in pf:
        srd(P, 8, 40, 41, 7864320)
        e("s_mul_i32 s3, s22, 4224"); e("v_add_u32 v1, s3, v1"); e("s_mul_i32 s23, s21, 1536"); e("s_mov_b32 s24, 22")
        e("K01_PFL:")
        e("v_mul_u32_u24 v2, 682, v1"); e("v_lshrrev_b32 v2, 16, v2")
        e("v_mul_u32_u24 v3, 96, v2"); e("v_sub_u32 v3, v1, v3")
        e("v_cmp_le_i32 vcc, 96, v3"); e("s_nop 1")
        e("v_addc_co_u32 v2, vcc, 0, v2, vcc")
        e("v_mul_u32_u24 v3, 96, v2"); e("v_sub_u32 v3, v1, v3"); e("v_lshlrev_b32 v3, 4, v3")
        e("v_mul_u32_u24 v2, 12288, v2"); e("v_add_u32 v2, v2, v3")
        e(NT("buffer_load_dwordx4 v[4:7], v2, s[8:11], s23 offen"))
        e("v_add_u32 v1, 192, v1")
        e("s_sub_u32 s24, s24, 1"); e("s_cmp_lg_u32 s24, 0"); e("s_cbranch_scc1 K01_PFL")
    e("s_endpgm")
    P.finalize(report_nops=False)
    return P

def prep_roles(P, pf=('code', 'wq'), LB=131072):
    e = P.e
    e("s_load_dwordx4 s[4:7], s[0:1], 72")
    e("s_load_dwordx4 s[16:19], s[0:1], 96")
    e("s_load_dwordx2 s[38:39], s[0:1], 0")
    e("s_load_dwordx2 s[40:41], s[0:1], 24")
    e("s_cmp_lt_u32 s2, 40"); e("s_cbranch_scc1 K01_GA")
    e("s_cmp_lt_u32 s2, 168"); e("s_cbranch_scc1 K01_LN")
    e("s_cmp_ge_u32 s2, 248"); e("s_cbranch_scc1 MONO_K2")
    e("s_sub_u32 s3, s2, 168"); e(f"s_mul_i32 s20, s3, {(65536+19)//20}"); e("s_lshr_b32 s20, s20, 16")
    e("s_mul_i32 s21, s20, 20"); e("s_sub_u32 s21, s3, s21"); e("s_add_u32 s21, s21, 10")
    e("s_branch K01_G")
    e("K01_GA:")
    e("s_and_b32 s20, s2, 3"); e("s_lshr_b32 s21, s2, 2")
    e("s_memrealtime s[42:43]")
    e("K01_G:")
    if DIAG: e("s_memrealtime s[60:61]")
    e("v_and_b32 v1, 15, v0"); e("v_lshrrev_b32 v2, 4, v0")
    e(f"s_mul_i32 s3, s20, {640//NSPLIT}")
    e("v_add_u32 v3, s3, v2"); e("v_lshlrev_b32 v4, 1, v3")
    e("s_mov_b32 s22, 7680"); e("v_mul_lo_u32 v5, v3, s22")
    e("v_lshlrev_b32 v6, 4, v1"); e("v_add_u32 v5, v5, v6")
    e("s_lshl_b32 s3, s21, 8"); e("v_add_u32 v5, s3, v5")
    e("s_waitcnt lgkmcnt(0)")
    srd(P, 8, 4, 5, 1280); srd(P, 12, 6, 7, 640*3840*2); srd(P, 24, 18, 19, WS_BYTES); srd(P, 28, 16, 17, 256)
    e("s_cmp_lg_u32 s2, 0"); e("s_cbranch_scc1 K01_NOT")
    e("s_or_b32 s42, s42, 1"); e("v_mov_b32 v12, 8"); e("v_mov_b32 v13, s42")
    e("buffer_store_dword v13, v12, s[28:31], 0 offen sc1")
    e("K01_NOT:")
    if DIAG: e("s_memrealtime s[62:63]")
    NR = 160//16
    for i in range(NR):
        e(f"s_mov_b32 s23, {16*7680*i}")
        e(f"buffer_load_dwordx4 v[{24+4*i}:{27+4*i}], v5, s[12:15], s23 offen")
    for i in range(NR):
        e(f"buffer_load_ushort v{10+i}, v4, s[8:11], 0 offen offset:{32*i}")
    for i in range(NR): e(f"v_lshlrev_b32 v{10+i}, 16, v{10+i}")
    for i in range(NR): e(f"v_mul_f32 v{80+i}, {f2u(-1.4426950408889634)}, v{10+i}")
    for i in range(NR): e(f"v_exp_f32 v{80+i}, v{80+i}")
    for i in range(NR): e(f"v_add_f32 v{80+i}, 1.0, v{80+i}")
    for i in range(NR): e(f"v_rcp_f32 v{80+i}, v{80+i}")
    for i in range(NR): e(f"v_mul_f32 v{10+i}, v{10+i}, v{80+i}")
    for i in range(NR): e(f"v_cvt_pk_bf16_f32 v{10+i}, v{10+i}, v{10+i}")
    for i in range(NR): e(f"v_and_b32 v{10+i}, 0xffff0000, v{10+i}")
    for j in range(8): e(f"v_mov_b32 v{70+j}, 0")
    for i in range(NR):
        for q in range(4):
            w = 24+4*i+q
            e(f"v_lshlrev_b32 v68, 16, v{w}"); e(f"v_and_b32 v69, 0xffff0000, v{w}")
            e(f"v_fmac_f32 v{70+2*q}, v{10+i}, v68"); e(f"v_fmac_f32 v{71+2*q}, v{10+i}, v69")
    if DIAG: e("s_memrealtime s[64:65]")
    e("v_lshlrev_b32 v6, 5, v1"); e("v_lshlrev_b32 v7, 9, v2"); e("v_add_u32 v6, v6, v7"); e(f"v_add_u32 v6, {LB}, v6")
    e("ds_write_b128 v6, v[70:73]"); e("ds_write_b128 v6, v[74:77] offset:16")
    e("s_waitcnt lgkmcnt(0)"); e("s_barrier")
    e("v_cmp_gt_u32 vcc, 64, v0")
    e("s_and_saveexec_b64 s[32:33], vcc")
    e("s_cbranch_execz K01_PF")
    e("v_lshlrev_b32 v6, 3, v0"); e(f"v_add_u32 v9, {LB}, v6")
    for r in range(16): e(f"ds_read_b64 v[{30+2*r}:{31+2*r}], v9 offset:{512*r}")
    for r in (8, 4, 2, 1):
        for q in range(r): e(f"v_pk_add_f32 v[{30+2*q}:{31+2*q}], v[{30+2*q}:{31+2*q}], v[{30+2*(q+r)}:{31+2*(q+r)}]")
    e("s_mul_i32 s3, s20, 15360"); e("s_lshl_b32 s23, s21, 9"); e("s_add_u32 s3, s3, s23"); e(f"s_add_u32 s3, s3, {WS_MOD}")
    e("v_add_u32 v6, s3, v6")
    e("buffer_store_dwordx2 v[30:31], v6, s[24:27], 0 offen sc1")
    e("s_cmp_lg_u32 s2, 0"); e("s_cbranch_scc1 K01_NOZ")
    e("v_lshlrev_b32 v12, 7, v0"); e("v_mov_b32 v13, 0"); e(f"s_mov_b32 s23, {WS_CNT}")
    e("buffer_store_dword v13, v12, s[24:27], s23 offen sc1")
    e(f"s_mov_b32 s23, {WS_CNT + 8192}")
    e("buffer_store_dword v13, v12, s[24:27], s23 offen sc1")
    e("K01_NOZ:")
    e("s_waitcnt vmcnt(0)")
    if DIAG: e("s_memrealtime s[66:67]")
    e("s_cmp_ge_u32 s21, 10"); e("s_cbranch_scc1 K01_FIN")
    e("v_cmp_eq_u32 vcc, 0, v0")
    e("s_and_saveexec_b64 s[32:33], vcc")
    e("v_mov_b32 v7, 1"); e("v_mov_b32 v8, 0")
    e("buffer_atomic_add v7, v8, s[28:31], 0 offen sc0 sc1")
    e("s_waitcnt vmcnt(0)")
    if DIAG:
        e("s_memrealtime s[68:69]"); e("s_waitcnt lgkmcnt(0)")
        e("s_lshl_b32 s3, s2, 5"); e(f"s_add_u32 s3, s3, {0x5000000 + 0x80000}")
        for q in range(5): e(f"v_mov_b32 v{40+q}, s{60+2*q}")
        e("v_mov_b32 v46, s3")
        e("buffer_store_dwordx4 v[40:43], v46, s[24:27], 0 offen"); e("buffer_store_dword v44, v46, s[24:27], 0 offen offset:16")
    e("v_readfirstlane_b32 s22, v7"); e("s_nop 3")
    e(f"s_cmp_lg_u32 s22, {10*NSPLIT-1}"); e("s_cbranch_scc1 K01_FIN")
    e("v_mov_b32 v8, 128"); e("v_mov_b32 v7, 1")
    e("buffer_store_dword v7, v8, s[28:31], 0 offen sc1")
    e("K01_FIN:")
    e("s_mov_b64 exec, -1")
    e("s_branch MONO_K2")
    e("K01_LN:")
    e(f"s_sub_u32 s2, s2, 40")
    e("v_lshrrev_b32 v1, 6, v0"); e("v_and_b32 v10, 63, v0")
    e("v_readfirstlane_b32 s20, v1")
    e("v_and_b32 v2, 15, v10"); e("v_lshrrev_b32 v3, 4, v10")
    e("s_lshl_b32 s3, s2, 4"); e("v_add_u32 v9, s3, v2"); e("v_mul_u32_u24 v9, 1280, v9")
    e("v_lshlrev_b32 v11, 3, v3"); e("v_add_u32 v9, v9, v11")
    e("s_mul_i32 s3, s20, 320"); e("v_add_u32 v9, s3, v9")
    e("s_waitcnt lgkmcnt(0)")
    srd(P, 8, 38, 39, 2048*1280); srd(P, 24, 18, 19, WS_BYTES); srd(P, 28, 16, 17, 256)
    if DIAG: e("s_memrealtime s[60:61]")
    X = 100; RAW = 60; T = 200
    load_x_pieces(P, X, RAW, 8)
    unpack_x(P, X, RAW)
    RED0, RED1 = 12288, 13312
    e("v_lshlrev_b32 v4, 6, v2"); e("v_lshlrev_b32 v5, 2, v3"); e("v_add_u32 v5, v4, v5")
    e(f"s_lshl_b32 s3, s20, 4"); e("v_add_u32 v5, s3, v5"); e(f"v_add_u32 v5, {LB}, v5"); e(f"v_add_u32 v4, {LB}, v4")
    e(f"v_add_f32 v6, v{X}, v{X+1}")
    for i in range(2, 40): e(f"v_add_f32 v6, v6, v{X+i}")
    row_reduce(P, 6, RED0, T, 5, 4)
    e(f"v_mul_f32 v6, {f2u(1/640)}, v6")
    for i in range(40): e(f"v_sub_f32 v{X+i}, v{X+i}, v6")
    e(f"v_mul_f32 v7, v{X}, v{X}")
    for i in range(1, 40): e(f"v_fmac_f32 v7, v{X+i}, v{X+i}")
    row_reduce(P, 7, RED1, T, 5, 4)
    e(f"v_mul_f32 v7, {f2u(1/640)}, v7"); e(f"v_add_f32 v7, {f2u(1e-5)}, v7"); e("v_rsq_f32 v7, v7")
    e("s_nop 0")
    for i in range(40): e(f"v_mul_f32 v{X+i}, v{X+i}, v7")
    if DIAG: e("s_memrealtime s[62:63]")
    e("s_cmp_lg_u32 s20, 0"); e("s_cbranch_scc1 K01_GO")
    e("s_mov_b32 s35, 1")
    e("v_mov_b32 v12, 128"); e("s_mov_b32 s21, 0")
    e("K01_POLL:")
    e("buffer_load_dword v13, v12, s[28:31], 0 offen sc1")
    e("s_waitcnt vmcnt(0)")
    e("v_readfirstlane_b32 s22, v13")
    e("s_add_u32 s21, s21, 1")
    e(f"s_cmp_ge_u32 s22, s35"); e("s_cbranch_scc1 K01_GO")
    e(f"s_sleep {SLEEP}")
    e("s_cmp_lt_u32 s21, 0x4000"); e("s_cbranch_scc1 K01_POLL")
    e("K01_GO:")
    e("s_barrier")
    if DIAG: e("s_memrealtime s[64:65]")
    tb = 20
    e(f"v_lshlrev_b32 v{tb}, 4, v0"); e(f"v_add_u32 v{tb+1}, {LB}, v{tb}")
    r = 24
    for n, idx in enumerate([0, 1]):
        for p in range(NSPLIT):
            e(f"s_mov_b32 s34, {WS_MOD + (p*3840 + idx*640)*4}")
            e(f"buffer_load_dwordx4 v[{r+(n*NSPLIT+p)*4}:{r+(n*NSPLIT+p)*4+3}], v{tb}, s[24:27], s34 offen sc1")
    for n in range(2):
        b = r + n*NSPLIT*4
        for p in range(1, NSPLIT):
            for i in range(4): e(f"v_add_f32 v{b+i}, v{b+i}, v{b+4*p+i}")
        for i in range(4):
            e(f"v_cvt_pk_bf16_f32 v{b+i}, v{b+i}, v{b+i}"); e(f"v_and_b32 v{b+i}, 0xffff0000, v{b+i}")
            if n == 1: e(f"v_add_f32 v{b+i}, 1.0, v{b+i}")
            e(f"v_mul_f32 v{b+i}, {f2u(C_SCALE)}, v{b+i}")
        e(f"ds_write_b128 v{tb+1}, v[{b}:{b+3}] offset:{n*4096}")
    e("s_waitcnt lgkmcnt(0)"); e("s_barrier")
    if DIAG: e("s_memrealtime s[66:67]")
    e(f"s_mul_i32 s3, s20, {5*32*4}")
    e("v_lshlrev_b32 v8, 4, v3"); e("v_add_u32 v8, s3, v8"); e(f"v_add_u32 v8, {LB}, v8")
    OUT = 160
    for j in range(5):
        for hh in range(2):
            off = j*128 + hh*64; k = (j*2+hh) % 2
            t = T + 8*k
            e(f"ds_read_b128 v[{t}:{t+3}], v8 offset:{4096+off}")
            e(f"ds_read_b128 v[{t+4}:{t+7}], v8 offset:{off}")
            b = X + j*8 + hh*4
            for i in range(4): e(f"v_fma_f32 v{b+i}, v{b+i}, v{t+i}, v{t+4+i}")
            e(f"v_cvt_pk_bf16_f32 v{OUT+j*4+hh*2}, v{b}, v{b+1}")
            e(f"v_cvt_pk_bf16_f32 v{OUT+j*4+hh*2+1}, v{b+2}, v{b+3}")
    e("s_mul_i32 s3, s2, 20480"); e("s_mul_i32 s21, s20, 5120"); e("s_add_u32 s3, s3, s21"); e(f"s_add_u32 s3, s3, {WS_HF}")
    e("v_lshlrev_b32 v11, 4, v10"); e("v_add_u32 v11, s3, v11")
    for j in range(5):
        e(f"s_mov_b32 s21, {j*1024}")
        e(f"buffer_store_dwordx4 v[{OUT+4*j}:{OUT+4*j+3}], v11, s[24:27], s21 offen sc1")
    e("s_waitcnt vmcnt(0)"); e("s_barrier")
    e("s_lshr_b32 s21, s2, 4"); e("s_add_u32 s2, s2, 40")
    e("s_cmp_lg_u32 s20, 0"); e("s_cbranch_scc1 MONO_K2")
    e("s_lshl_b32 s3, s21, 7"); e(f"s_add_u32 s3, s3, {WS_CNT + 12288}")
    e("v_mov_b32 v12, s3"); e("v_mov_b32 v13, 1"); e("v_mov_b32 v14, 8"); e("s_mov_b64 exec, 1")
    e("buffer_atomic_add v13, v12, s[24:27], 0 offen sc0 sc1")
    e("buffer_load_dword v15, v14, s[28:31], 0 offen sc1")
    e("s_waitcnt vmcnt(0)")
    e("v_readfirstlane_b32 s22, v13"); e("s_nop 3")
    e("s_cmp_lg_u32 s22, 15"); e("s_cbranch_scc1 K01_NOF")
    e("s_lshl_b32 s3, s21, 7"); e(f"s_add_u32 s3, s3, {WS_CNT + 16384}"); e("v_mov_b32 v12, s3")
    e("buffer_store_dword v15, v12, s[24:27], 0 offen sc1")
    e("K01_NOF:")
    e("s_mov_b64 exec, -1")
    e("s_branch MONO_K2")
    e("K01_PF:")
    e("s_mov_b64 exec, -1")
    e("s_and_b32 s21, s2, 7")
    e("s_lshr_b32 s22, s2, 3"); e("s_cmp_lt_u32 s2, 40"); e("s_cselect_b32 s3, 0, 16"); e("s_sub_u32 s22, s22, s3")
    e("v_subrev_u32 v1, 64, v0")
    if 'code' in pf:
        e("s_getpc_b64 s[4:5]")
        e("K01_PC:")
        e("s_add_u32 s4, s4, MONO_K2-K01_PC"); e("s_addc_u32 s5, s5, 0")
        e("s_mul_i32 s3, s22, 9216"); e("v_lshlrev_b32 v2, 4, v1"); e("v_add_u32 v2, s3, v2")
        e("s_mov_b32 s23, K_TEXT_END-MONO_K2-16")
        for r_ in range(3):
            e("v_min_u32 v3, s23, v2")
            e(NT("global_load_dwordx4 v[4:7], v3, s[4:5]"))
            e(f"v_add_u32 v2, 3072, v2")
    if 'repack' in pf:
        e("s_cmp_lt_u32 s2, 40"); e("s_cselect_b32 s3, 0, 128"); e("s_sub_u32 s36, s2, s3")
        e("s_load_dwordx4 s[44:47], s[0:1], 48"); e("s_load_dwordx2 s[48:49], s[0:1], 64"); e("s_waitcnt lgkmcnt(0)")
        e("s_lshl_b32 s37, s36, 10")
        for m, (lo, kind) in enumerate(((48, 'd'), (44, 'g'), (46, 'u'))):
            srd(P, 8, lo, lo+1, 1966080)
            for r_ in range(6):
                e(f"v_add_u32 v10, {r_*192}, v1")
                e("v_cmp_gt_u32 vcc, 1024, v10"); e("v_add_u32 v10, s37, v10")
                e("v_lshlrev_b32 v11, 4, v10"); e("v_mov_b32 v12, 0x7ff00000"); e("v_cndmask_b32 v11, v12, v11, vcc")
                e(f"buffer_load_dwordx4 v[{60+m*24+4*r_}:{63+m*24+4*r_}], v11, s[8:11], 0 offen")
                if kind == 'd':
                    e("s_mov_b32 s3, 53687092"); e("v_mul_hi_u32 v13, v10, s3")
                    e("v_mul_u32_u24 v14, 80, v13"); e("v_sub_u32 v14, v10, v14")
                    e("v_mul_u32_u24 v15, 6554, v14"); e("v_lshrrev_b32 v15, 16, v15")
                    e("v_mul_u32_u24 v16, 10, v15"); e("v_sub_u32 v16, v14, v16")
                    e("v_mul_u32_u24 v15, 245760, v15"); e("v_mul_u32_u24 v13, 160, v13")
                else:
                    e("s_mov_b32 s3, 22369622"); e("v_mul_hi_u32 v13, v10, s3")
                    e("v_mul_u32_u24 v14, 192, v13"); e("v_sub_u32 v14, v10, v14")
                    e("v_mul_u32_u24 v15, 5462, v14"); e("v_lshrrev_b32 v15, 16, v15")
                    e("v_mul_u32_u24 v16, 12, v15"); e("v_sub_u32 v16, v14, v16")
                    e("v_mul_u32_u24 v15, 245760, v15"); e("v_mul_u32_u24 v13, 384, v13")
                e("v_lshlrev_b32 v16, 4, v16"); e("v_add_u32 v15, v15, v13"); e("v_add_u32 v15, v15, v16")
                e(f"v_cndmask_b32 v{20+m*6+r_}, v12, v15, vcc")
        for m, kind in enumerate('dgu'):
            e(f"s_mov_b32 s3, {WS_WD if kind == 'd' else WS_WGU + (192 if kind == 'u' else 0)}")
            for r_ in range(6):
                e(f"buffer_store_dwordx4 v[{60+m*24+4*r_}:{63+m*24+4*r_}], v{20+m*6+r_}, s[24:27], s3 offen sc1")
    if 'wq' in pf:
        srd(P, 8, 40, 41, 7864320)
        e("s_mul_i32 s3, s22, 4224"); e("v_add_u32 v1, s3, v1"); e("s_mul_i32 s23, s21, 1536"); e("s_mov_b32 s24, 22")
        e("K01_PFL:")
        e("v_mul_u32_u24 v2, 682, v1"); e("v_lshrrev_b32 v2, 16, v2")
        e("v_mul_u32_u24 v3, 96, v2"); e("v_sub_u32 v3, v1, v3")
        e("v_cmp_le_i32 vcc, 96, v3"); e("s_nop 1")
        e("v_addc_co_u32 v2, vcc, 0, v2, vcc")
        e("v_mul_u32_u24 v3, 96, v2"); e("v_sub_u32 v3, v1, v3"); e("v_lshlrev_b32 v3, 4, v3")
        e("v_mul_u32_u24 v2, 12288, v2"); e("v_add_u32 v2, v2, v3")
        e(NT("buffer_load_dwordx4 v[4:7], v2, s[8:11], s23 offen"))
        e("v_add_u32 v1, 192, v1")
        e("s_sub_u32 s24, s24, 1"); e("s_cmp_lg_u32 s24, 0"); e("s_cbranch_scc1 K01_PFL")


def gen_k4b(pf=True, npf=128):
    P = Prog(); e = P.e
    e("s_cmp_ge_u32 s2, 256"); e("s_cbranch_scc1 K4_PF")
    e("s_load_dwordx2 s[4:5], s[0:1], 0")
    e("s_load_dwordx2 s[16:17], s[0:1], 104")
    e("v_lshrrev_b32 v1, 6, v0"); e("v_and_b32 v10, 63, v0")
    e("v_readfirstlane_b32 s20, v1")
    e("v_and_b32 v2, 7, v10")
    e("v_lshrrev_b32 v3, 4, v10")
    e("v_lshrrev_b32 v4, 3, v10"); e("v_and_b32 v4, 1, v4")
    e("s_lshr_b32 s21, s2, 1"); e("s_and_b32 s22, s2, 1")
    e("s_mul_i32 s3, s21, 20480"); e("s_lshl_b32 s23, s20, 12"); e("s_add_u32 s3, s3, s23"); e("s_lshl_b32 s23, s22, 7"); e("s_add_u32 s3, s3, s23")
    e("v_lshlrev_b32 v5, 10, v4"); e("v_lshlrev_b32 v6, 8, v3"); e("v_add_u32 v5, v5, v6"); e("v_lshlrev_b32 v6, 4, v2"); e("v_add_u32 v5, v5, v6")
    e("v_add_u32 v12, s3, v5")
    e("s_lshl_b32 s3, s21, 4"); e("s_lshl_b32 s23, s22, 3"); e("s_add_u32 s3, s3, s23"); e("v_add_u32 v9, s3, v2"); e("v_mul_u32_u24 v9, 1280, v9")
    e("v_lshlrev_b32 v6, 6, v4"); e("v_add_u32 v9, v9, v6"); e("v_lshlrev_b32 v6, 3, v3"); e("v_add_u32 v9, v9, v6")
    e("s_lshl_b32 s3, s20, 8"); e("v_add_u32 v9, s3, v9")
    e("s_waitcnt lgkmcnt(0)")
    srd(P, 8, 4, 5, 2048*1280); srd(P, 24, 16, 17, WS_BYTES)
    PR = 20
    for p in range(4):
        for jj in range(2):
            e(f"s_mov_b32 s21, {WS_PART + p*128*20480 + jj*2048}")
            e(f"buffer_load_dwordx4 v[{PR+p*8+jj*4}:{PR+p*8+jj*4+3}], v12, s[24:27], s21 offen")
    XR = 52
    for jj in range(2):
        for hh in range(2):
            e(f"buffer_load_dwordx2 v[{XR+jj*4+hh*2}:{XR+jj*4+hh*2+1}], v9, s[8:11], 0 offen offset:{jj*128+hh*32}")
    MP = 60
    for i in range(2):
        e(f"v_add_u32 v13, {320*i}, v0")
        e("v_mul_u32_u24 v14, 410, v13"); e("v_lshrrev_b32 v14, 16, v14")
        e("v_mul_u32_u24 v15, 160, v14"); e("v_sub_u32 v15, v13, v15")
        e(f"v_lshlrev_b32 v{18+i}, 4, v15")
        e("v_mul_u32_u24 v15, 2560, v14"); e(f"v_add_u32 v15, v15, v{18+i}")
        for p in range(NSPLIT):
            e(f"s_mov_b32 s21, {WS_MOD + (p*3840 + 2*640)*4}")
            e(f"buffer_load_dwordx4 v[{MP+(i*4+p)*4}:{MP+(i*4+p)*4+3}], v15, s[24:27], s21 offen")
        e(f"v_mul_u32_u24 v14, 5120, v14"); e(f"v_add_u32 v{18+i}, v{18+i}, v14")
    A_ = 92
    for p in range(4):
        for q in range(8):
            r = PR + p*8 + q
            if p == 0:
                e(f"v_lshlrev_b32 v{A_+2*q}, 16, v{r}"); e(f"v_and_b32 v{A_+2*q+1}, 0xffff0000, v{r}")
            else:
                e(f"v_lshlrev_b32 v14, 16, v{r}"); e(f"v_and_b32 v15, 0xffff0000, v{r}")
                e(f"v_add_f32 v{A_+2*q}, v{A_+2*q}, v14"); e(f"v_add_f32 v{A_+2*q+1}, v{A_+2*q+1}, v15")
    X = 108
    for q in range(8):
        e(f"v_lshlrev_b32 v{X+2*q}, 16, v{XR+q}"); e(f"v_and_b32 v{X+2*q+1}, 0xffff0000, v{XR+q}")
    for i in range(2):
        b = MP + i*16
        for p in range(1, NSPLIT):
            for k in range(4): e(f"v_add_f32 v{b+k}, v{b+k}, v{b+4*p+k}")
        e(f"v_subrev_u32 v14, {2*5120}, v{18+i}"); e(f"v_cmp_gt_u32 vcc, 5120, v14"); e("s_nop 1")
        e("v_cndmask_b32 v14, 0, 1.0, vcc")
        for k in range(4):
            e(f"v_cvt_pk_bf16_f32 v{b+k}, v{b+k}, v{b+k}"); e(f"v_and_b32 v{b+k}, 0xffff0000, v{b+k}"); e(f"v_add_f32 v{b+k}, v{b+k}, v14")
        e(f"ds_write_b128 v{18+i}, v[{b}:{b+3}]")
    e("s_cmp_lg_u32 s2, 0"); e("s_cbranch_scc1 K4_NOGB")
    e(f"v_cmp_le_u32 vcc, {3*5120}, v19"); e("s_and_saveexec_b64 s[30:31], vcc"); e("s_cbranch_execz K4_NOGB2")
    e(f"v_subrev_u32 v14, {3*5120}, v19"); e(f"s_mov_b32 s21, {WS_MODF + 5*4096}")
    e(f"buffer_store_dwordx4 v[{MP+16}:{MP+19}], v14, s[24:27], s21 offen")
    e("K4_NOGB2:"); e("s_mov_b64 exec, s[30:31]")
    e("K4_NOGB:")
    e("s_waitcnt lgkmcnt(0)"); e("s_barrier")
    e("v_lshlrev_b32 v8, 7, v4"); e("v_lshlrev_b32 v6, 4, v3"); e("v_add_u32 v8, v8, v6"); e("s_lshl_b32 s3, s20, 9"); e("v_add_u32 v8, s3, v8")
    T = 20; OX = 52
    for jj in range(2):
        for hh in range(2):
            k = jj*2 + hh
            e(f"ds_read_b128 v[{T+4*k}:{T+4*k+3}], v8 offset:{jj*256 + hh*64}")
    for k in range(4):
        for i in range(4): e(f"v_fma_f32 v{X+4*k+i}, v{A_+4*k+i}, v{T+4*k+i}, v{X+4*k+i}")
        e(f"v_cvt_pk_bf16_f32 v{OX+2*k}, v{X+4*k}, v{X+4*k+1}"); e(f"v_cvt_pk_bf16_f32 v{OX+2*k+1}, v{X+4*k+2}, v{X+4*k+3}")
    for q in range(8):
        e(f"v_lshlrev_b32 v{X+2*q}, 16, v{OX+q}"); e(f"v_and_b32 v{X+2*q+1}, 0xffff0000, v{OX+q}")
    for jj in range(2):
        e(f"s_mov_b32 s21, {WS_X1 + jj*2048}")
        e(f"buffer_store_dwordx4 v[{OX+4*jj}:{OX+4*jj+3}], v12, s[24:27], s21 offen sc1")
    for jj in range(2):
        for hh in range(2):
            k = jj*2 + hh
            e(f"ds_read_b128 v[{T+4*k}:{T+4*k+3}], v8 offset:{2*5120 + jj*256 + hh*64}")
            e(f"ds_read_b128 v[{T+16+4*k}:{T+16+4*k+3}], v8 offset:{1*5120 + jj*256 + hh*64}")
    RED0, RED1 = 20480, 22528
    e("v_mul_u32_u24 v16, 192, v2"); e("v_lshlrev_b32 v17, 3, v3"); e("v_lshlrev_b32 v18, 2, v4"); e("v_add_u32 v17, v17, v18")
    e("s_lshl_b32 s3, s20, 5"); e("v_add_u32 v17, s3, v17"); e("v_add_u32 v17, v17, v16")
    def red(val, base):
        e(f"ds_write_b32 v17, v{val} offset:{base}")
        e("s_waitcnt lgkmcnt(0)"); e("s_barrier")
        for q in range(10): e(f"ds_read_b128 v[{60+4*q}:{63+4*q}], v16 offset:{base+16*q}")
        for q in range(5):
            e(f"v_pk_add_f32 v[{60+4*q}:{61+4*q}], v[{60+4*q}:{61+4*q}], v[{80+4*q}:{81+4*q}]")
            e(f"v_pk_add_f32 v[{62+4*q}:{63+4*q}], v[{62+4*q}:{63+4*q}], v[{82+4*q}:{83+4*q}]")
        for q in range(5): e(f"v_pk_add_f32 v[{60+2*q}:{61+2*q}], v[{60+2*q}:{61+2*q}], v[{70+2*q}:{71+2*q}]")
        e("v_pk_add_f32 v[60:61], v[60:61], v[62:63]"); e("v_pk_add_f32 v[64:65], v[64:65], v[66:67]")
        e("v_pk_add_f32 v[60:61], v[60:61], v[64:65]"); e("v_pk_add_f32 v[60:61], v[60:61], v[68:69]")
        e(f"v_add_f32 v{val}, v60, v61")
    e(f"v_pk_add_f32 v[6:7], v[{X}:{X+1}], v[{X+2}:{X+3}]")
    for i in range(2, 8): e(f"v_pk_add_f32 v[6:7], v[6:7], v[{X+2*i}:{X+2*i+1}]")
    e("v_add_f32 v6, v6, v7")
    red(6, RED0)
    e(f"v_mul_f32 v6, {f2u(1/640)}, v6")
    for i in range(16): e(f"v_sub_f32 v{X+i}, v{X+i}, v6")
    e(f"v_mul_f32 v7, v{X}, v{X}")
    for i in range(1, 16): e(f"v_fmac_f32 v7, v{X+i}, v{X+i}")
    red(7, RED1)
    e(f"v_mul_f32 v7, {f2u(1/640)}, v7"); e(f"v_add_f32 v7, {f2u(1e-5)}, v7"); e("v_rsq_f32 v7, v7"); e("s_nop 0")
    for i in range(16):
        e(f"v_mul_f32 v{X+i}, v{X+i}, v7")
        e(f"v_fma_f32 v{X+i}, v{X+i}, v{T+i}, v{T+16+i}")
    for k in range(4):
        e(f"v_cvt_pk_bf16_f32 v{OX+2*k}, v{X+4*k}, v{X+4*k+1}"); e(f"v_cvt_pk_bf16_f32 v{OX+2*k+1}, v{X+4*k+2}, v{X+4*k+3}")
    for jj in range(2):
        e(f"s_mov_b32 s21, {WS_H2F + jj*2048}")
        e(f"buffer_store_dwordx4 v[{OX+4*jj}:{OX+4*jj+3}], v12, s[24:27], s21 offen sc1")
    e("K4_END:")
    e("s_endpgm")
    e("K4_PF:")
    e(f"s_cmp_ge_u32 s2, {256+npf}"); e("s_cbranch_scc1 K4_END")
    e("s_sub_u32 s20, s2, 256")
    e("s_load_dwordx2 s[4:5], s[0:1], 64"); e("s_load_dwordx2 s[16:17], s[0:1], 104"); e("s_waitcnt lgkmcnt(0)")
    srd(P, 8, 4, 5, 1966080); srd(P, 24, 16, 17, WS_BYTES)
    assert npf == 128
    e("s_mul_i32 s21, s20, 15360")
    for r_ in range(3):
        e(f"v_add_u32 v1, {r_*320}, v0")
        e(f"v_lshlrev_b32 v{10+r_}, 4, v1")
        e(f"buffer_load_dwordx4 v[{20+4*r_}:{23+4*r_}], v{10+r_}, s[8:11], s21 offen")
        e("v_mul_u32_u24 v2, 820, v1"); e("v_lshrrev_b32 v2, 16, v2")
        e("v_mul_u32_u24 v3, 80, v2"); e("v_sub_u32 v3, v1, v3")
        e("v_mul_u32_u24 v4, 6554, v3"); e("v_lshrrev_b32 v4, 16, v4")
        e("v_mul_u32_u24 v5, 10, v4"); e("v_sub_u32 v5, v3, v5")
        e("v_mul_u32_u24 v4, 245760, v4"); e("v_mul_u32_u24 v2, 160, v2"); e("v_lshlrev_b32 v5, 4, v5")
        e(f"v_add_u32 v{14+r_}, v4, v2"); e(f"v_add_u32 v{14+r_}, v{14+r_}, v5")
    e("s_mul_i32 s21, s20, 1920"); e(f"s_add_u32 s21, s21, {WS_WD}")
    for r_ in range(3):
        e(f"buffer_store_dwordx4 v[{20+4*r_}:{23+4*r_}], v{14+r_}, s[24:27], s21 offen sc1")
    for m, ko in enumerate((48, 56)):
        e(f"s_load_dwordx2 s[4:5], s[0:1], {ko}"); e("s_waitcnt lgkmcnt(0)")
        srd(P, 8, 4, 5, 1966080)
        e("s_mul_i32 s21, s20, 15360")
        for r_ in range(3):
            e(f"v_add_u32 v1, {r_*320}, v0")
            e(f"v_lshlrev_b32 v{10+r_}, 4, v1")
            e(f"buffer_load_dwordx4 v[{32+m*12+4*r_}:{35+m*12+4*r_}], v{10+r_}, s[8:11], s21 offen")
            e("v_lshrrev_b32 v2, 6, v1"); e("v_mul_u32_u24 v2, 21846, v2"); e("v_lshrrev_b32 v2, 16, v2")
            e("v_mul_u32_u24 v3, 192, v2"); e("v_sub_u32 v3, v1, v3")
            e("v_mul_u32_u24 v4, 5462, v3"); e("v_lshrrev_b32 v4, 16, v4")
            e("v_mul_u32_u24 v5, 12, v4"); e("v_sub_u32 v5, v3, v5")
            e("v_mul_u32_u24 v4, 245760, v4"); e("v_mul_u32_u24 v2, 384, v2"); e("v_lshlrev_b32 v5, 4, v5")
            e(f"v_add_u32 v{56+m*3+r_}, v4, v2"); e(f"v_add_u32 v{56+m*3+r_}, v{56+m*3+r_}, v5")
    for m in range(2):
        e("s_mul_i32 s21, s20, 1920"); e(f"s_add_u32 s21, s21, {WS_WGU + m*192}")
        for r_ in range(3):
            e(f"buffer_store_dwordx4 v[{32+m*12+4*r_}:{35+m*12+4*r_}], v{56+m*3+r_}, s[24:27], s21 offen sc1")
    e("s_endpgm")
    P.finalize(report_nops=False)
    return P

def gen_diag_touch(name, ko, chunk_bytes, xcd_to_off, nwg=256):
    P = Prog(); e = P.e
    e(f"s_cmp_ge_u32 s2, {nwg}"); e(f"s_cbranch_scc1 {name}_END")
    e(f"s_load_dwordx2 s[4:5], s[0:1], {ko}"); e("s_waitcnt lgkmcnt(0)")
    srd(P, 8, 4, 5, 0x7fffffff)
    e("s_and_b32 s21, s2, 7"); e("s_lshr_b32 s22, s2, 3")
    xcd_to_off(e)
    per = chunk_bytes // (nwg // 8)
    e(f"s_mul_i32 s3, s22, {per}"); e("s_add_u32 s23, s23, s3"); e("v_lshlrev_b32 v1, 4, v0")
    for i in range(per // 4096):
        e(NT("buffer_load_dwordx4 v[4:7], v1, s[8:11], s23 offen")); e("s_add_u32 s23, s23, 4096")
    e(f"{name}_END:"); e("s_endpgm")
    P.finalize(report_nops=False)
    return P

if __name__ == "__main__":
    from k2gen import wrap
    k0 = gen_k0(); k1 = gen_k1(); k4 = gen_k4()
    open("k01.s", "w").write(wrap([("k0_kernel", k0.text(), 256, 256), ("k1_kernel", k1.text(), 256, 256)],
                                  [("k0_kernel", 120, 256, 16384), ("k1_kernel", 128, 256, 16384)]))
    open("k4.s", "w").write(wrap([("k4_kernel", k4.text(), 256, 256)], [("k4_kernel", 128, 256, 16384)]))
```

```python
import re

REG_RE = re.compile(r'^(-|\|)?([vas])(\d+)\|?$')
RNG_RE = re.compile(r'^(-)?([vas])\[(\d+):(\d+)\]$')


def parse_regs(tok):
    tok = tok.strip()
    m = REG_RE.match(tok)
    if m:
        return [(m.group(2), int(m.group(3)))]
    m = RNG_RE.match(tok)
    if m:
        return [(m.group(2), i) for i in range(int(m.group(3)), int(m.group(4)) + 1)]
    if tok in ('vcc', 'exec', 'm0', 'scc'):
        return [(tok, 0)]
    if tok in ('vcc_lo', 'vcc_hi'):
        return [('vcc', 0)]
    if tok in ('exec_lo', 'exec_hi'):
        return [('exec', 0)]
    return []


def V(i, n=1):
    return f"v{i}" if n == 1 else f"v[{i}:{i+n-1}]"


def A(i, n=1):
    return f"a{i}" if n == 1 else f"a[{i}:{i+n-1}]"


def S(i, n=1):
    return f"s{i}" if n == 1 else f"s[{i}:{i+n-1}]"


def R(r, n=1):
    return V(r[1], n) if r[0] == 'v' else A(r[1], n)


TRANS = ('v_exp_f32', 'v_log_f32', 'v_rcp_f32', 'v_rsq_f32', 'v_sqrt_f32', 'v_sin_f32', 'v_cos_f32')


class Ins:
    __slots__ = ('text', 'op', 'kind', 'rd', 'wr', 'meta', 'srcc', 'srcab', 'tag')

    def __init__(self, text, tag=None):
        self.text = text
        self.tag = tag
        self.meta = {}
        self.srcc = []
        self.srcab = []
        t = text.split(';')[0].strip()
        if t.endswith(':'):
            self.op = 'label'; self.kind = 'label'; self.rd = []; self.wr = []
            return
        parts = t.split(None, 1)
        op = parts[0]
        self.op = op
        rest = parts[1] if len(parts) > 1 else ''
        ops = []
        cur = ''
        depth = 0
        for ch in rest:
            if ch == '[': depth += 1
            if ch == ']': depth -= 1
            if ch == ',' and depth == 0:
                ops.append(cur.strip()); cur = ''
            else:
                cur += ch
        if cur.strip():
            ops.append(cur.strip())
        mods = ''
        if ops:
            sp = ops[-1].split(None, 1)
            ops[-1] = sp[0]
            mods = sp[1] if len(sp) > 1 else ''
        regs = [parse_regs(o) for o in ops]
        rd, wr = [], []
        kind = None
        if op.startswith('v_mfma'):
            kind = 'mfma32' if '32x32' in op else 'mfma16'
            wr = regs[0]
            self.srcab = regs[1] + regs[2]
            self.srcc = regs[3] if len(regs) > 3 else []
            rd = self.srcab + self.srcc
        elif op.startswith('v_cmp'):
            kind = 'valu'
            wr = regs[0]
            for r in regs[1:]: rd += r
            if op.startswith('v_cmpx'): wr = wr + [('exec', 0)]
        elif op.startswith('v_permlane') and 'swap' in op:
            kind = 'perm'
            wr = regs[0] + regs[1]; rd = regs[0] + regs[1]
        elif op.startswith('v_readfirstlane') or op.startswith('v_readlane'):
            kind = 'valu'; wr = regs[0]
            for r in regs[1:]: rd += r
            self.meta['readlane'] = True
        elif op.startswith('v_'):
            kind = 'trans' if op.replace('_e32', '').replace('_e64', '') in TRANS else 'valu'
            wr = list(regs[0])
            for r in regs[1:]: rd += r
            base = op.replace('_e32', '').replace('_e64', '')
            if base in ('v_fmac_f32', 'v_dot2c_f32_bf16', 'v_pk_fmac_f16', 'v_writelane_b32'):
                rd += regs[0]
            if base in ('v_add_co_u32', 'v_sub_co_u32', 'v_addc_co_u32', 'v_subb_co_u32'):
                wr = regs[0] + regs[1]
                rd = []
                for r in regs[2:]: rd += r
            if base == 'v_cndmask_b32' and len(regs) == 3:
                rd += [('vcc', 0)]
            if 'dpp' in op or 'row_' in mods or 'quad_perm' in mods:
                self.meta['dpp'] = True
                rd += regs[0]
        elif op.startswith('ds_read') or op.startswith('ds_bpermute') or op.startswith('ds_swizzle'):
            kind = 'ds_read'; wr = regs[0]
            for r in regs[1:]: rd += r
        elif op.startswith('ds_write'):
            kind = 'ds_write'
            for r in regs: rd += r
        elif op.startswith('buffer_load') or op.startswith('global_load'):
            if ' lds' in (' ' + mods) or op.startswith('global_load_lds'):
                kind = 'dma'
                for r in regs: rd += r
                rd += [('m0', 0)]
            else:
                kind = 'vload'; wr = regs[0]
                for r in regs[1:]: rd += r
        elif op.startswith('buffer_store') or op.startswith('global_store'):
            kind = 'vstore'
            for r in regs: rd += r
            if op.startswith('buffer_store'):
                self.meta['data'] = regs[0]
            else:
                self.meta['data'] = regs[1]
            self.meta['wide'] = op.endswith('x4') or op.endswith('x3')
        elif op.startswith('buffer_atomic') or op.startswith('global_atomic'):
            kind = 'vstore'
            for r in regs: rd += r
            self.meta['data'] = []
            self.meta['wide'] = False
            if 'sc0' in mods:
                kind = 'vload'; wr = regs[0]
        elif op.startswith('buffer_inv') or op.startswith('buffer_wbl2'):
            kind = 'vstore'; self.meta['data'] = []; self.meta['wide'] = False
        elif op.startswith('s_load') or op.startswith('s_memtime') or op.startswith('s_memrealtime') or op.startswith('s_buffer_load'):
            kind = 'smem'; wr = regs[0]
            for r in regs[1:]: rd += r
        elif op == 's_waitcnt':
            kind = 'wait'
        elif op == 's_barrier':
            kind = 'barrier'
        elif op == 's_nop':
            kind = 'nop'; self.meta['n'] = int(ops[0], 0) + 1
        elif op.startswith('s_cbranch') or op == 's_branch' or op == 's_endpgm' or op.startswith('s_setpc'):
            kind = 'branch'
        elif op.startswith('s_cmp'):
            kind = 'salu'; wr = [('scc', 0)]
            for r in regs: rd += r
        elif op in ('s_setprio', 's_sleep'):
            kind = 'salu'
        elif op.startswith('s_'):
            kind = 'salu'; wr = list(regs[0]) if regs else []
            for r in regs[1:]: rd += r
            if 'saveexec' in op:
                wr += [('exec', 0)]; rd += [('exec', 0)]
            if op in ('s_addk_i32', 's_mulk_i32'):
                rd += regs[0]
        else:
            raise ValueError("unknown op " + text)
        self.kind = kind
        self.rd = rd
        self.wr = wr

    def cost(self):
        k = self.kind
        if k in ('label',): return 0
        if k in ('trans', 'perm'): return 8
        if k in ('mfma16', 'mfma32'): return 8
        if k == 'nop': return 4 * self.meta['n']
        return 4


def RAW(text):
    i = Ins(text); i.meta['raw'] = True
    return i


def NT(text):
    i = Ins(text); i.meta['notrack'] = True
    return i


class WaitVM:
    def __init__(self, h): self.h = h
    kind = 'waitvm'


class WaitLGKM:
    def __init__(self, h): self.h = h
    kind = 'waitlgkm'


MACROS = r"""
.macro xm d,a,b,c
v_mfma_f32_16x16x32_bf16 v[\d:\d+3], \a, \b, \c
.endm
.macro xaa d,a,b
v_mfma_f32_16x16x32_bf16 v[\d:\d+3], a[\a:\a+3], a[\b:\b+3], v[\d:\d+3]
.endm
.macro xav d,a,b
v_mfma_f32_16x16x32_bf16 v[\d:\d+3], a[\a:\a+3], v[\b:\b+3], v[\d:\d+3]
.endm
.macro xvv d,a,b
v_mfma_f32_16x16x32_bf16 v[\d:\d+3], v[\a:\a+3], v[\b:\b+3], v[\d:\d+3]
.endm
.macro xva d,a,b
v_mfma_f32_16x16x32_bf16 v[\d:\d+3], v[\a:\a+3], a[\b:\b+3], v[\d:\d+3]
.endm
.macro yav d,a,b
v_mfma_f32_32x32x16_bf16 v[\d:\d+15], a[\a:\a+3], v[\b:\b+3], v[\d:\d+15]
.endm
.macro yvv d,a,b
v_mfma_f32_32x32x16_bf16 v[\d:\d+15], v[\a:\a+3], v[\b:\b+3], v[\d:\d+15]
.endm
.macro ta d,a,o
ds_read_b64_tr_b16 a[\d:\d+1], v\a offset:\o
.endm
.macro tv d,a,o
ds_read_b64_tr_b16 v[\d:\d+1], v\a offset:\o
.endm
.macro ra d,a,o
ds_read_b128 a[\d:\d+3], v\a offset:\o
.endm
.macro ex r
v_exp_f32 v\r, v\r
.endm
.macro cv d,a,b
v_cvt_pk_bf16_f32 v\d, v\a, v\b
.endm
.macro aw d,a
v_accvgpr_write_b32 a\d, v\a
.endm
.macro sw a,b
v_permlane16_swap_b32 v\a, v\b
.endm
.macro wl n
s_waitcnt lgkmcnt(\n)
.endm
.macro wv n
s_waitcnt vmcnt(\n)
.endm
.macro dm v,s,t,o
buffer_load_dwordx4 v\v, s[\s:\s+3], s\t offen offset:\o lds
.endm
"""
_PATS = [
    (re.compile(r'^v_mfma_f32_16x16x32_bf16 v\[(\d+):\d+\], a\[(\d+):\d+\], a\[(\d+):\d+\], v\[(\d+):\d+\]$'), lambda m: f"xaa {m.group(1)},{m.group(2)},{m.group(3)}" if m.group(1) == m.group(4) else None),
    (re.compile(r'^v_mfma_f32_16x16x32_bf16 v\[(\d+):\d+\], a\[(\d+):\d+\], v\[(\d+):\d+\], v\[(\d+):\d+\]$'), lambda m: f"xav {m.group(1)},{m.group(2)},{m.group(3)}" if m.group(1) == m.group(4) else None),
    (re.compile(r'^v_mfma_f32_16x16x32_bf16 v\[(\d+):\d+\], v\[(\d+):\d+\], v\[(\d+):\d+\], v\[(\d+):\d+\]$'), lambda m: f"xvv {m.group(1)},{m.group(2)},{m.group(3)}" if m.group(1) == m.group(4) else None),
    (re.compile(r'^v_mfma_f32_16x16x32_bf16 v\[(\d+):\d+\], v\[(\d+):\d+\], a\[(\d+):\d+\], v\[(\d+):\d+\]$'), lambda m: f"xva {m.group(1)},{m.group(2)},{m.group(3)}" if m.group(1) == m.group(4) else None),
    (re.compile(r'^v_mfma_f32_32x32x16_bf16 v\[(\d+):\d+\], a\[(\d+):\d+\], v\[(\d+):\d+\], v\[(\d+):\d+\]$'), lambda m: f"yav {m.group(1)},{m.group(2)},{m.group(3)}" if m.group(1) == m.group(4) else None),
    (re.compile(r'^v_mfma_f32_32x32x16_bf16 v\[(\d+):\d+\], v\[(\d+):\d+\], v\[(\d+):\d+\], v\[(\d+):\d+\]$'), lambda m: f"yvv {m.group(1)},{m.group(2)},{m.group(3)}" if m.group(1) == m.group(4) else None),
    (re.compile(r'^ds_read_b64_tr_b16 a\[(\d+):\d+\], v(\d+) offset:(\d+)$'), lambda m: f"ta {m.group(1)},{m.group(2)},{m.group(3)}"),
    (re.compile(r'^ds_read_b64_tr_b16 v\[(\d+):\d+\], v(\d+) offset:(\d+)$'), lambda m: f"tv {m.group(1)},{m.group(2)},{m.group(3)}"),
    (re.compile(r'^ds_read_b128 a\[(\d+):\d+\], v(\d+) offset:(\d+)$'), lambda m: f"ra {m.group(1)},{m.group(2)},{m.group(3)}"),
    (re.compile(r'^v_exp_f32 v(\d+), v(\d+)$'), lambda m: f"ex {m.group(1)}" if m.group(1) == m.group(2) else None),
    (re.compile(r'^v_cvt_pk_bf16_f32 v(\d+), v(\d+), v(\d+)$'), lambda m: f"cv {m.group(1)},{m.group(2)},{m.group(3)}"),
    (re.compile(r'^v_accvgpr_write_b32 a(\d+), v(\d+)$'), lambda m: f"aw {m.group(1)},{m.group(2)}"),
    (re.compile(r'^v_permlane16_swap_b32 v(\d+), v(\d+)$'), lambda m: f"sw {m.group(1)},{m.group(2)}"),
    (re.compile(r'^s_waitcnt lgkmcnt\((\d+)\)$'), lambda m: f"wl {m.group(1)}"),
    (re.compile(r'^s_waitcnt vmcnt\((\d+)\)$'), lambda m: f"wv {m.group(1)}"),
    (re.compile(r'^buffer_load_dwordx4 v(\d+), s\[(\d+):\d+\], s(\d+) offen offset:(\d+) lds$'), lambda m: f"dm {m.group(1)},{m.group(2)},{m.group(3)},{m.group(4)}"),
]


def compress(t):
    for rx, fn in _PATS:
        m = rx.match(t)
        if m:
            r = fn(m)
            if r: return r
    return t


class Prog:
    def __init__(self):
        self.items = []

    def e(self, text, tag=None):
        if isinstance(text, (Ins, WaitVM, WaitLGKM)):
            self.items.append(text); return text
        i = Ins(text, tag)
        self.items.append(i)
        return i

    def many(self, lst):
        for x in lst: self.e(x)

    def wait_vm(self, h):
        self.items.append(WaitVM(h))

    def finalize(self, auto_wait=True, verbose=False, report_nops=True):
        out = []
        vm = []
        lg = []
        smem_out = False
        pend = {}
        nwait = 0
        issued = set()

        def emit_wait(vmn=None, lgn=None):
            nonlocal nwait
            s = []
            if vmn is not None: s.append(f"vmcnt({vmn})")
            if lgn is not None: s.append(f"lgkmcnt({lgn})")
            if not s: return
            out.append(Ins("s_waitcnt " + " ".join(s)))
            nwait += 1

        def retire_vm(n):
            while len(vm) > n:
                o = vm.pop(0)
                for r in o.wr:
                    if pend.get(r, (None, None))[1] is o: del pend[r]

        def retire_lg(n):
            while len(lg) > n:
                o = lg.pop(0)
                for r in o.wr:
                    if pend.get(r, (None, None))[1] is o: del pend[r]

        for it in self.items:
            if isinstance(it, WaitVM):
                h = it.h
                assert id(h) in issued, "WaitVM before its operation was issued: " + h.text
                if h in vm:
                    n = len(vm) - 1 - vm.index(h)
                    assert n <= 63, "vmcnt overflow"
                    emit_wait(vmn=n); retire_vm(n)
                continue
            if isinstance(it, WaitLGKM):
                h = it.h
                assert id(h) in issued, "WaitLGKM before its operation was issued: " + h.text
                if h in lg:
                    n = len(lg) - 1 - lg.index(h)
                    emit_wait(lgn=min(n, 15)); retire_lg(min(n, 15))
                continue
            k = it.kind
            if it.meta.get('raw'):
                out.append(it); continue
            if k == 'label' or k == 'branch':
                if it.meta.get('keep'):
                    out.append(it); continue
                if pend and it.op != 's_endpgm':
                    needv = any(p[0] == 'vm' for p in pend.values())
                    needl = any(p[0] in ('lg', 'sm') for p in pend.values())
                    emit_wait(vmn=0 if needv else None, lgn=0 if needl else None)
                    if needv: retire_vm(0)
                    if needl: retire_lg(0)
                out.append(it)
                continue
            if k == 'wait':
                m = re.search(r'vmcnt\((\d+)\)', it.text)
                if m: retire_vm(int(m.group(1)))
                m = re.search(r'lgkmcnt\((\d+)\)', it.text)
                if m:
                    retire_lg(int(m.group(1)))
                    if int(m.group(1)) == 0: smem_out = False
                out.append(it)
                continue
            if auto_wait and not it.meta.get('notrack'):
                vmn = None; lgn = None
                for r in list(it.rd) + list(it.wr):
                    p = pend.get(r)
                    if p is None: continue
                    if p[0] == 'vm':
                        n = len(vm) - 1 - vm.index(p[1])
                        vmn = n if vmn is None else min(vmn, n)
                    elif p[0] == 'lg':
                        n = len(lg) - 1 - lg.index(p[1])
                        lgn = n if lgn is None else min(lgn, n)
                    elif p[0] == 'sm':
                        lgn = 0
                if vmn is not None or lgn is not None:
                    if vmn is not None: vmn = min(vmn, 63)
                    if lgn is not None:
                        lgn = min(lgn, 15)
                        if smem_out: lgn = 0
                    emit_wait(vmn, lgn)
                    if vmn is not None: retire_vm(vmn)
                    if lgn is not None:
                        retire_lg(lgn)
                        if lgn == 0:
                            smem_out = False
                            for r in [r for r, p in pend.items() if p[0] == 'sm']: del pend[r]
            out.append(it)
            issued.add(id(it))
            if k in ('vload', 'dma', 'vstore'):
                vm.append(it)
                if not it.meta.get('notrack'):
                    for r in it.wr: pend[r] = ('vm', it)
            elif k in ('ds_read', 'ds_write'):
                lg.append(it)
                for r in it.wr: pend[r] = ('lg', it)
            elif k == 'smem':
                smem_out = True
                for r in it.wr: pend[r] = ('sm', it)
        out = self._hazards(out, report_nops)
        self.final = out
        return out

    def _hazards(self, ins, report):
        out = []
        pos = 0
        last_valu_w = {}
        last_trans_w = {}
        last_mfma_w = {}
        last_mfma_c = {}
        last_salu_m0 = -100
        last_valu_sg = {}
        last_store_data = {}
        last_valu_exec = -100
        nops = 0
        for it in ins:
            k = it.kind
            if k == 'label':
                out.append(it); continue
            need = 0

            def req(p, n):
                nonlocal need
                need = max(need, p + n + 1)

            isvalu = k in ('valu', 'trans', 'perm')
            ismfma = k in ('mfma16', 'mfma32')
            ismem = k in ('ds_read', 'ds_write', 'vload', 'dma', 'vstore')
            if ismfma:
                for r in it.rd:
                    if r in last_valu_w: req(last_valu_w[r], 2)
                for r in it.srcab:
                    if r in last_mfma_w:
                        p, ps, d = last_mfma_w[r]; req(p, {4: 8, 8: 12}[ps])
                for r in it.srcc:
                    if r in last_mfma_w:
                        p, ps, d = last_mfma_w[r]
                        mine = 4 if k == 'mfma16' else 8
                        if tuple(it.srcc) == d and ps == mine: pass
                        else: req(p, {4: 6, 8: 10}[ps])
                for r in it.wr:
                    if r in last_mfma_w and r not in it.srcc:
                        p, ps, d = last_mfma_w[r]; req(p, {4: 6, 8: 10}[ps])
                req(last_valu_exec, 4)
            if isvalu or ismem:
                regs = list(it.rd) + list(it.wr)
                for r in regs:
                    if r in last_mfma_w:
                        p, ps, d = last_mfma_w[r]; req(p, {4: 8, 8: 12}[ps])
            if isvalu:
                for r in it.wr:
                    if r in last_mfma_c:
                        p, ps = last_mfma_c[r]; req(p, {4: 3, 8: 7}[ps])
                    if r in last_store_data: req(last_store_data[r], 2)
                if k != 'trans':
                    for r in it.rd:
                        if r in last_trans_w: req(last_trans_w[r], 1)
                if k == 'perm' or it.meta.get('dpp'):
                    for r in it.rd:
                        if r in last_valu_w: req(last_valu_w[r], 2)
                    if it.meta.get('dpp'): req(last_valu_exec, 5)
                if it.meta.get('readlane'):
                    for r in it.rd:
                        if r in last_valu_w: req(last_valu_w[r], 1)
                        if r in last_valu_sg: req(last_valu_sg[r], 4)
                for r in it.rd:
                    if r in last_valu_sg: req(last_valu_sg[r], 2)
            if k in ('vload', 'ds_read'):
                for r in it.wr:
                    if r in last_store_data: req(last_store_data[r], 1)
            if k in ('vload', 'dma', 'vstore'):
                for r in it.rd:
                    if r in last_valu_sg: req(last_valu_sg[r], 5)
                if k == 'dma': req(last_salu_m0, 1)
            if k in ('salu', 'branch'):
                for r in it.rd:
                    if r in last_valu_sg: req(last_valu_sg[r], 4)
                if k == 'branch' and 'vcc' in it.op and ('vcc', 0) in last_valu_sg:
                    req(last_valu_sg[('vcc', 0)], 5)
                if k == 'branch' and 'exec' in it.op:
                    req(last_valu_exec, 5)
            if need > pos:
                n = need - pos
                nops += n
                if report:
                    print(f"  [hazard] inserting {n} nop states before: {it.text}")
                while n > 0:
                    q = min(n, 16)
                    out.append(Ins(f"s_nop {q-1}"))
                    n -= q
                pos = need
            out.append(it)
            if isvalu:
                for r in it.wr:
                    if r[0] in ('v', 'a'):
                        last_valu_w[r] = pos
                        if k == 'trans': last_trans_w[r] = pos
                        else: last_trans_w.pop(r, None)
                        last_mfma_w.pop(r, None)
                    elif r[0] in ('s', 'vcc'):
                        last_valu_sg[r] = pos
                    elif r[0] == 'exec':
                        last_valu_exec = pos
            if ismfma:
                ps = 4 if k == 'mfma16' else 8
                d = tuple(it.wr)
                for r in it.wr:
                    last_mfma_w[r] = (pos, ps, d)
                    last_valu_w.pop(r, None); last_trans_w.pop(r, None)
                for r in it.srcc: last_mfma_c[r] = (pos, ps)
            if k in ('vload', 'ds_read'):
                for r in it.wr:
                    last_valu_w.pop(r, None); last_trans_w.pop(r, None); last_mfma_w.pop(r, None)
            if k == 'salu':
                if ('m0', 0) in it.wr: last_salu_m0 = pos
                for r in it.wr:
                    last_valu_sg.pop(r, None)
            if k == 'smem':
                for r in it.wr: last_valu_sg.pop(r, None)
            if k == 'vstore' and it.meta.get('wide'):
                for r in it.meta['data']: last_store_data[r] = pos
            pos += it.meta['n'] if k == 'nop' else 1
        self.nops = nops
        return out

    def text(self):
        lines = []
        for it in self.final:
            lines.append(it.text if it.kind == 'label' else compress(it.text))
        return "\n".join(lines) + "\n"

    def estimate(self, lo=0, hi=None):
        t = 0; pipe = 0; nm = 0; busy = 0
        for it in self.final[lo:hi]:
            k = it.kind
            if k in ('mfma16', 'mfma32'):
                d = 16 if k == 'mfma16' else 32
                st = max(t, pipe)
                pipe = st + d; t = st + 8; nm += 1; busy += d
            else:
                t += it.cost()
        return max(t, pipe), busy


def cls(ins):
    if not isinstance(ins, Ins): return 'salu'
    k = ins.kind
    if k in ('ds_read', 'ds_write', 'vload', 'vstore', 'dma'): return 'mem'
    if k in ('valu', 'trans', 'perm'): return 'valu'
    return 'salu'


def weave(backbone, streams, budget=None, max_mem=1, reserve=None):
    res = []
    ptr = [0] * len(streams)
    n = len(backbone)
    for i in range(-1, n):
        if i >= 0: res.append(backbone[i])
        if budget is None:
            bud = 8 if (i < 0 or backbone[i].kind == 'mfma16') else 24
            mm = max_mem if (i < 0 or backbone[i].kind == 'mfma16') else max(2, max_mem)
        else:
            bud = budget; mm = max_mem
        if reserve: bud -= reserve.get(i, 0)
        used = 0; nmem = 0; nds = 0; free_salu = 1 if i >= 0 else 0; first = True
        for phase in (0, 1):
            while True:
                best = None
                for si, st in enumerate(streams):
                    if ptr[si] >= len(st): continue
                    ins, e, l = st[ptr[si]]
                    if e > i: continue
                    c = cls(ins)
                    must = l <= i
                    if phase == 0 and c == 'valu': continue
                    if phase == 1 and c != 'valu' and not must: continue
                    cost = ins.cost() if isinstance(ins, Ins) else 4
                    if c == 'salu' and free_salu > 0 and first: cost = 0
                    isds = isinstance(ins, Ins) and ins.kind in ('ds_read', 'ds_write')
                    if not must:
                        if used + cost > bud: continue
                        if c == 'mem' and nmem >= mm: continue
                        if isds and nds >= (1 if bud <= 8 else 2): continue
                    key = (l, 0 if (c == 'salu' and first) else 1, si)
                    if best is None or key < best[0]: best = (key, si, cost, c, isds)
                if best is None: break
                _, si, cost, c, isds = best
                res.append(streams[si][ptr[si]][0]); ptr[si] += 1; used += cost
                if c == 'mem': nmem += 1
                if isds: nds += 1
                if c == 'salu' and cost == 0: free_salu -= 1
                first = False
    for si, st in enumerate(streams):
        while ptr[si] < len(st):
            res.append(st[ptr[si]][0]); ptr[si] += 1
    return res


def space_vm(groups, gap, nslots):
    ops = []
    for gi, (lo, hi, L, D) in enumerate(groups):
        pre = list(L)
        for d in D:
            if cls(d) != 'mem': pre.append(d); continue
            ops.append([lo, hi, gi, pre, d, len(ops)]); pre = []
    placed = []
    remaining = ops[:]
    cur = min((o[0] for o in ops), default=0)
    started = set()
    while remaining:
        cand = [o for o in remaining if o[0] <= cur]
        open_ = {}
        for o in remaining:
            if o[2] in started: open_[o[4].kind] = o[2]
        cand = [o for o in cand if open_.get(o[4].kind, o[2]) == o[2]]
        if not cand:
            cur = max(cur + 1, min(o[0] for o in remaining)); continue
        o = min(cand, key=lambda o: (o[1], o[5]))
        placed.append((cur, o[3], o[4], o[2])); remaining.remove(o); started.add(o[2])
        nxt = cur + gap
        if remaining:
            dl = sorted(x[1] for x in remaining)
            for idx, dd in enumerate(dl[:12]):
                if nxt + idx*gap > dd:
                    nxt = max(cur + 1, min(nxt, dd - idx*gap))
        cur = nxt
    return placed
```

```python
from asmgen import *

WS_MOD  = 0x0
WS_HF   = 0x40000
WS_OF   = 0x400000
WS_PART = 0x2000000
WS_X1   = 0x3800000
WS_H2F  = 0x4000000
WS_ACT  = 0x4400000
WS_WD   = 0x4C00000
WS_WGU  = 0x5800000
WS_CNT  = 0x30000
WS_STAMP= 0x5000000
WS_DBG  = 0x6000000
WS_BYTES = 268435456

WQ_BASE = 0;      WQ_NS = 5;  WQ_ST = 12288
K_BASE  = 36864;  K_NS = 5;   K_ST = 12288
V_BASE  = 98304;  V_NS = 4;   V_ST = 16384
LDS_BYTES = 163840
BIAS = 4096

sWQ, sK, sV, sWS = 8, 12, 16, 20
sHEAD, sRB, sW = 24, 25, 26
sM0WQ, sM0K, sM0V = 27, 28, 29
sOFF = 30
sOFH = 31
sT0, sT1, sT2, sT3 = 32, 33, 34, 35
sSLOW = 36
sTS = 76

vWQD = 1
vKD  = 4
vVD  = 7
vWQT = 11
vKF  = 15
vVT  = 19
vHO  = 23
vT0, vT1, vT2, vT3 = 60, 61, 62, 63
QACC = 64
QF = 64
SB = [160, 192]
RING = 192
OACC = [64, 160]
LACC = 128
RINV = 144

def P_reg(kt, ct):
    if kt < 12: return ('a', kt*16 + ct*4)
    if kt < 14: return ('v', 28 + (kt-12)*16 + ct*4)
    return ('v', 224 + (kt-14)*16 + ct*4)

def prologue(P, stamps=False, check=True):
    e = P.e
    if check:
        e("s_cmp_ge_u32 s2, 256")
        e("s_cbranch_scc1 K2_END")
    e("s_load_dwordx2 s[4:5], s[0:1], 24")
    e("s_load_dwordx2 s[6:7], s[0:1], 104")
    e("s_load_dwordx4 s[44:47], s[0:1], 8")
    e("s_load_dwordx2 s[68:69], s[0:1], 32")
    e("s_load_dwordx4 s[72:75], s[0:1], 48")
    e("s_load_dwordx2 s[70:71], s[0:1], 64")
    e("v_lshrrev_b32 v2, 6, v0")
    e("v_and_b32 v0, 63, v0")
    e("v_readfirstlane_b32 s26, v2")
    e("s_and_b32 s24, s2, 7"); e("s_lshl_b32 s24, s24, 2")
    e("s_lshr_b32 s3, s2, 3"); e("s_and_b32 s3, s3, 3"); e("s_add_u32 s24, s24, s3")
    e("s_lshr_b32 s25, s2, 5")
    e(f"v_lshrrev_b32 v{vT0}, 3, v0")
    e(f"v_and_b32 v{vT1}, 7, v0")
    e(f"v_lshrrev_b32 v{vT2}, 4, v0")
    e(f"v_lshlrev_b32 v{vT3}, 1, v{vT2}")
    e(f"v_xor_b32 v{vT3}, v{vT3}, v{vT1}")
    e(f"v_lshlrev_b32 v{vT3}, 4, v{vT3}")
    e("s_lshl_b32 s3, s26, 3")
    e(f"v_add_u32 v{vWQD}, s3, v{vT0}")
    e("s_mov_b32 s37, 12288")
    e(f"v_mul_lo_u32 v{vWQD}, v{vWQD}, s37")
    e(f"v_add_u32 v{vWQD}, v{vWQD}, v{vT3}")
    e(f"v_add_u32 v{vWQD}, {BIAS}, v{vWQD}")
    e(f"v_add_u32 v{vWQD+1}, {128-1024}, v{vWQD}")
    e(f"v_add_u32 v{vWQD+2}, {256-2048}, v{vWQD}")
    e("s_lshl_b32 s3, s25, 4"); e("s_lshl_b32 s37, s26, 2"); e("s_add_u32 s38, s3, s37")
    e("s_mul_i32 s3, s38, 20480"); e(f"s_add_u32 s3, s3, {WS_HF}")
    e(f"v_lshlrev_b32 v{vHO}, 4, v0")
    e(f"v_add_u32 v{vHO}, s3, v{vHO}")
    for ct in range(1, 4):
        e(f"v_add_u32 v{vHO+ct}, {ct*20480}, v{vHO}")
    e(f"s_mul_i32 s{sM0WQ}, s26, 3072")
    e("s_mul_i32 s3, s24, 384")
    e("s_waitcnt lgkmcnt(0)")
    e(f"s_add_u32 s{sWQ}, s4, s3"); e(f"s_addc_u32 s{sWQ+1}, s5, 0")
    e(f"s_sub_u32 s{sWQ}, s{sWQ}, {BIAS}"); e(f"s_subb_u32 s{sWQ+1}, s{sWQ+1}, 0")
    e(f"s_sub_u32 s{sWQ+2}, {7864320+BIAS}, s3"); e(f"s_mov_b32 s{sWQ+3}, 0x20000")
    e(f"s_mov_b32 s{sWS}, s6"); e(f"s_mov_b32 s{sWS+1}, s7")
    e(f"s_mov_b32 s{sWS+2}, {WS_BYTES}"); e(f"s_mov_b32 s{sWS+3}, 0x20000")

def prologue2(P):
    e = P.e
    e(f"v_lshrrev_b32 v{vT0}, 2, v0"); e(f"v_and_b32 v{vT0}, 3, v{vT0}")
    e(f"v_and_b32 v{vT1}, 3, v0"); e(f"v_lshlrev_b32 v{vT1}, 3, v{vT1}")
    e(f"v_and_b32 v{vWQT}, 1, v{vT2}"); e(f"v_lshlrev_b32 v{vWQT}, 2, v{vWQT}")
    e(f"v_add_u32 v{vWQT}, v{vWQT}, v{vT0}")
    e(f"v_lshrrev_b32 v{vWQT+1}, 1, v{vWQT}")
    e(f"v_lshlrev_b32 v{vWQT}, 7, v{vWQT}")
    e(f"v_lshrrev_b32 v{vWQT+2}, 1, v{vT2}")
    e(f"v_mul_u32_u24 v{vWQT+2}, 3072, v{vWQT+2}")
    e(f"v_add_u32 v{vWQT}, v{vWQT}, v{vWQT+2}")
    e(f"v_add_u32 v{vWQT}, v{vWQT}, v{vT1}")
    e(f"v_lshlrev_b32 v{vWQT+1}, 5, v{vWQT+1}")
    for tp in (3, 2):
        e(f"v_xor_b32 v{vT3}, {tp<<5}, v{vWQT+1}")
        e(f"v_add_u32 v{vWQT+tp}, v{vWQT}, v{vT3}")
    e(f"v_xor_b32 v{vT3}, {1<<5}, v{vWQT+1}")
    e(f"v_add_u32 v{vT3}, v{vWQT}, v{vT3}")
    e(f"v_add_u32 v{vWQT}, v{vWQT}, v{vWQT+1}")
    e(f"v_mov_b32 v{vWQT+1}, v{vT3}")
    e(f"v_lshrrev_b32 v{vVT}, 1, v{vT2}"); e(f"v_lshlrev_b32 v{vVT}, 2, v{vVT}")
    e(f"v_add_u32 v{vVT}, v{vVT}, v{vT0}")
    e(f"v_lshrrev_b32 v{vVT+1}, 1, v{vVT}"); e(f"v_and_b32 v{vVT+1}, 1, v{vVT+1}")
    e(f"v_and_b32 v{vVT+2}, 1, v{vT2}")
    e(f"v_lshlrev_b32 v{vVT+3}, 1, v{vVT+2}")
    e(f"v_or_b32 v{vVT+1}, v{vVT+1}, v{vVT+3}")
    e(f"v_lshlrev_b32 v{vVT+1}, 5, v{vVT+1}")
    e(f"v_lshlrev_b32 v{vVT}, 7, v{vVT}")
    e(f"v_lshlrev_b32 v{vVT+2}, 10, v{vVT+2}")
    e(f"v_add_u32 v{vVT}, v{vVT}, v{vVT+2}")
    e(f"v_add_u32 v{vVT}, v{vVT}, v{vT1}")
    e(f"v_add_u32 v{vVT}, {V_BASE}, v{vVT}")
    for tp in (3, 2):
        e(f"v_xor_b32 v{vT3}, {tp<<5}, v{vVT+1}")
        e(f"v_add_u32 v{vVT+tp}, v{vVT}, v{vT3}")
    e(f"v_xor_b32 v{vT3}, {1<<5}, v{vVT+1}")
    e(f"v_add_u32 v{vT3}, v{vVT}, v{vT3}")
    e(f"v_add_u32 v{vVT}, v{vVT}, v{vVT+1}")
    e(f"v_mov_b32 v{vVT+1}, v{vT3}")
    e(f"s_add_u32 s{sM0K}, s{sM0WQ}, {K_BASE}")
    e(f"s_lshl_b32 s{sM0V}, s26, 12"); e(f"s_add_u32 s{sM0V}, s{sM0V}, {V_BASE}")
    e("s_mul_i32 s3, s24, 786432"); e(f"s_add_u32 s3, s3, {1536*384-BIAS}")
    e(f"s_add_u32 s{sK}, s44, s3"); e(f"s_addc_u32 s{sK+1}, s45, 0")
    e(f"s_mov_b32 s{sK+2}, {512*384+BIAS}"); e(f"s_mov_b32 s{sK+3}, 0x20000")
    e(f"s_add_u32 s{sV}, s46, s3"); e(f"s_addc_u32 s{sV+1}, s47, 0")
    e(f"s_mov_b32 s{sV+2}, {512*384+BIAS}"); e(f"s_mov_b32 s{sV+3}, 0x20000")
    for base, lo, n in ((52, 68, 7864320), (56, 72, 1966080), (60, 74, 1966080), (64, 70, 1966080)):
        e(f"s_mov_b32 s{base}, s{lo}"); e(f"s_mov_b32 s{base+1}, s{lo+1}"); e(f"s_mov_b32 s{base+2}, {n}"); e(f"s_mov_b32 s{base+3}, 0x20000")

def prologue3():
    L = []
    e = lambda t: L.append(Ins(t))
    T0, T1, T2, T3 = 56, 57, 58, 59
    e(f"v_lshrrev_b32 v{T0}, 3, v0"); e(f"v_and_b32 v{T1}, 7, v0"); e(f"v_lshrrev_b32 v{T2}, 4, v0")
    e("s_lshl_b32 s3, s26, 3")
    e(f"v_add_u32 v{vKD}, s3, v{T0}")
    e(f"v_lshrrev_b32 v{T3}, 1, v{vKD}"); e(f"v_and_b32 v{T3}, 7, v{T3}"); e(f"v_xor_b32 v{T3}, v{T3}, v{T1}"); e(f"v_lshlrev_b32 v{T3}, 4, v{T3}")
    e(f"v_mul_u32_u24 v{vKD}, 384, v{vKD}"); e(f"v_add_u32 v{vKD}, v{vKD}, v{T3}"); e(f"v_add_u32 v{vKD}, {BIAS}, v{vKD}")
    e(f"v_add_u32 v{vKD+1}, {128-1024}, v{vKD}"); e(f"v_add_u32 v{vKD+2}, {256-2048}, v{vKD}")
    e(f"v_and_b32 v{T3}, 1, v{T2}"); e(f"v_lshlrev_b32 v{T3}, 1, v{T3}"); e(f"v_xor_b32 v{T3}, v{T3}, v{T1}")
    e("s_lshl_b32 s3, s26, 5")
    e(f"v_add_u32 v{vVD}, s3, v{T0}"); e(f"v_mul_u32_u24 v{vVD}, 384, v{vVD}"); e(f"v_add_u32 v{vVD}, {BIAS}, v{vVD}")
    e(f"v_xor_b32 v{vVD+1}, 4, v{T3}"); e(f"v_lshlrev_b32 v{vVD+1}, 4, v{vVD+1}"); e(f"v_lshlrev_b32 v{T3}, 4, v{T3}")
    e(f"v_add_u32 v{vVD+1}, v{vVD+1}, v{vVD}"); e(f"v_add_u32 v{vVD}, v{vVD}, v{T3}")
    e(f"v_add_u32 v{vVD+2}, {2*3072-2*1024}, v{vVD}"); e(f"v_add_u32 v{vVD+3}, {3*3072-3*1024}, v{vVD+1}"); e(f"v_add_u32 v{vVD+1}, {1*3072-1*1024}, v{vVD+1}")
    e(f"v_and_b32 v{T0}, 31, v0")
    e(f"v_lshrrev_b32 v{T1}, 3, v{T0}"); e(f"v_mul_u32_u24 v{T1}, 3072, v{T1}")
    e(f"v_and_b32 v{T3}, 7, v{T0}"); e(f"v_lshlrev_b32 v{T3}, 7, v{T3}")
    e(f"v_add_u32 v{T1}, v{T1}, v{T3}"); e(f"v_add_u32 v{T1}, {K_BASE}, v{T1}")
    e(f"v_lshrrev_b32 v{T0}, 1, v{T0}"); e(f"v_and_b32 v{T0}, 7, v{T0}")
    e(f"v_lshrrev_b32 v{T3}, 5, v0"); e(f"v_xor_b32 v{T0}, v{T0}, v{T3}")
    for s4 in range(4):
        e(f"v_xor_b32 v{T3}, {2*s4}, v{T0}"); e(f"v_lshlrev_b32 v{T3}, 4, v{T3}"); e(f"v_add_u32 v{vKF+s4}, v{T1}, v{T3}")
    return L

sPFV, sPFO, sPFW, sPFT = 96, 97, 98, 99
def touch_setup():
    return [Ins("v_lshlrev_b32 v27, 7, v0"), Ins("v_mov_b32 v59, 0x7ff00000"), Ins("v_cmp_gt_u32 vcc, 16, v0"), Ins("s_nop 1"),
            Ins("v_cndmask_b32 v27, v59, v27, vcc"),
            Ins(f"s_mul_i32 s{sPFV}, s25, 24576"), Ins(f"s_mul_i32 s{sPFT}, s26, 6144"), Ins(f"s_add_u32 s{sPFV}, s{sPFV}, s{sPFT}"), Ins(f"s_add_u32 s{sPFV}, s{sPFV}, {BIAS}"),
            Ins(f"s_lshl_b32 s{sPFT}, s2, 2"), Ins(f"s_add_u32 s{sPFT}, s{sPFT}, s26"),
            Ins(f"s_mul_i32 s{sPFW}, s{sPFT}, 1920"),
            Ins(f"s_and_b32 s{sPFO}, s2, 3"), Ins(f"s_mul_i32 s{sPFO}, s{sPFO}, 1966080"), Ins(f"s_lshr_b32 s{sPFT}, s2, 3"), Ins(f"s_lshl_b32 s{sPFT}, s{sPFT}, 2"),
            Ins(f"s_add_u32 s{sPFT}, s{sPFT}, s26"), Ins(f"s_mul_i32 s{sPFT}, s{sPFT}, 15360"), Ins(f"s_add_u32 s{sPFO}, s{sPFO}, s{sPFT}")]
def touch32_setup():
    return [Ins("v_lshlrev_b32 v3, 7, v0"), Ins("v_mov_b32 v2, 0x7ff00000"), Ins("v_cmp_gt_u32 vcc, 32, v0"), Ins("s_nop 1"), Ins("v_cndmask_b32 v3, v2, v3, vcc")]
def touch32(kind, i):
    base, srd_ = (sPFO, 52) if kind == 'wo' else (sPFW, {'wg': 56, 'wu': 60, 'wd': 64}[kind])
    return [Ins(f"s_add_u32 s{sPFT}, s{base}, {i*4096}"), NT(f"buffer_load_dword v1, v3, s[{srd_}:{srd_+3}], s{sPFT} offen")]

def touch16(kind, i, dst='a191'):
    if kind == 'v': base, srd_ = sPFV, sV
    elif kind == 'k': base, srd_ = sPFV, sK
    elif kind == 'wo': base, srd_ = sPFO, 52
    else: base, srd_ = sPFW, {'wg': 56, 'wu': 60, 'wd': 64}[kind]
    return [Ins(f"s_add_u32 s{sPFT}, s{base}, {i*2048}"), NT(f"buffer_load_dword {dst}, v27, s[{srd_}:{srd_+3}], s{sPFT} offen")]

PFS = 64
def pf_kv():
    L = [Ins(f"s_mul_i32 s{sT0}, s25, 24576"), Ins(f"s_mul_i32 s{sT1}, s26, 6144"), Ins(f"s_add_u32 s{sT0}, s{sT0}, s{sT1}"),
         Ins(f"s_add_u32 s{sT0}, s{sT0}, {BIAS}"), Ins(f"v_mul_u32_u24 v29, {PFS}, v0"), Ins(f"v_add_u32 v29, s{sT0}, v29")]
    n = -(-6144 // (64*PFS))
    D = []
    for srd_ in (sK, sV):
        for i in range(n):
            D.append(Ins(f"v_add_u32 v30, {i*64*PFS}, v29"))
            D.append(Ins(f"buffer_load_dword v28, v30, s[{srd_}:{srd_+3}], 0 offen"))
    return L + D

def pf_wo():
    return [Ins(f"s_lshl_b32 s{sT0}, s2, 2"), Ins(f"s_add_u32 s{sT0}, s{sT0}, s26"), Ins(f"s_mul_i32 s{sT1}, s{sT0}, 7680"),
            Ins(f"v_lshlrev_b32 v31, {OPT.get('pfshift', 7)}, v0"), Ins(f"v_add_u32 v31, s{sT1}, v31"),
            NT(f"buffer_load_dword v28, v31, s[52:55], 0 offen")] + ([Ins("v_add_u32 v31, 4096, v31"), NT(f"buffer_load_dword v28, v31, s[52:55], 0 offen")] if OPT.get('pfshift', 7) == 6 else [])

def pf_weights():
    L = [Ins(f"s_lshl_b32 s{sT0}, s2, 2"), Ins(f"s_add_u32 s{sT0}, s{sT0}, s26"),
         Ins(f"v_mul_u32_u24 v31, {PFS}, v0"),
         Ins(f"s_mul_i32 s{sT1}, s{sT0}, 7680"), Ins(f"v_add_u32 v32, s{sT1}, v31")]
    for i in range(-(-7680 // (64*PFS))):
        L.append(Ins(f"v_add_u32 v30, {i*64*PFS}, v32"))
        L.append(Ins(f"buffer_load_dword v28, v30, s[52:55], 0 offen"))
    L += [Ins(f"s_mul_i32 s{sT1}, s{sT0}, 1920"), Ins(f"v_add_u32 v32, s{sT1}, v31")]
    for srd_ in (56, 60, 64):
        L.append(Ins(f"buffer_load_dword v28, v32, s[{srd_}:{srd_+3}], 0 offen"))
    return L

def dma_wq(ks):
    slot = ks % WQ_NS
    L = [Ins(f"s_add_u32 m0, s{sM0WQ}, {WQ_BASE + slot*WQ_ST}"),
         Ins(f"s_mov_b32 s{sOFF}, {ks*32*12288}")]
    D = [Ins(f"buffer_load_dwordx4 v{vWQD+q}, s[{sWQ}:{sWQ+3}], s{sOFF} offen offset:{q*1024} lds") for q in range(3)]
    return L, D

def k_slot(kt): return (kt + 2) % K_NS
def dma_k(kt):
    L = [Ins(f"s_add_u32 m0, s{sM0K}, {k_slot(kt)*K_ST}"),
         Ins(f"s_mov_b32 s{sOFF}, {(kt % 16)*12288}")]
    D = [Ins(f"buffer_load_dwordx4 v{vKD+q}, s[{sK}:{sK+3}], s{sOFF} offen offset:{q*1024} lds") for q in range(3)]
    return L, D

def dma_v(st):
    G, kb = st // 4, st % 4
    L = [Ins(f"s_add_u32 m0, s{sM0V}, {(st % V_NS)*V_ST}"),
         Ins(f"s_mov_b32 s{sOFF}, {kb*128*384 + G*128}")]
    D = [Ins(f"buffer_load_dwordx4 v{vVD+i}, s[{sV}:{sV+3}], s{sOFF} offen offset:{i*1024} lds") for i in range(4)]
    return L, D

def HS(): return int(OPT.get('hsets', 4))
def load_h(ks):
    L = [Ins(f"s_mov_b32 s{sOFH}, {ks*1024}")]
    base = (ks % HS())*16
    D = [Ins(f"buffer_load_dwordx4 a[{base+4*ct}:{base+4*ct+3}], v{vHO+ct}, s[{sWS}:{sWS+3}], s{sOFH} offen" + (" sc1" if OPT.get('mono') else "")) for ct in range(4)]
    return L, D

def tr_wq(n):
    ks, t = divmod(n, 12)
    slot = n % 16
    q, tp = t >> 2, t & 3
    off = WQ_BASE + (ks % WQ_NS)*WQ_ST + q*1024
    r = RING + slot*4
    return [Ins(f"ds_read_b64_tr_b16 a[{r}:{r+1}], v{vWQT+tp} offset:{off}"),
            Ins(f"ds_read_b64_tr_b16 a[{r+2}:{r+3}], v{vWQT+tp} offset:{off+6144}")]

OPT = dict(dma=True, hload=True, barrier=True, tr=True, pfcode=False)
def k_frag(n):
    kt, s_ = divmod(n, 12)
    r = RING + (n % 16)*4
    off = k_slot(kt)*K_ST + (s_ >> 2)*1024
    return Ins(f"ds_read_b128 a[{r}:{r+3}], v{vKF + (s_ & 3)} offset:{off}")

def softmax_stream(kt, mode='exp'):
    L = []
    buf = SB[kt & 1]
    toA = P_reg(kt, 0)[0] == 'a'
    for cb in range(2):
        Sx = buf + 16*cb
        if toA:
            A_ = [Sx+0, Sx+2, Sx+8, Sx+10]; B_ = [Sx+4, Sx+6, Sx+12, Sx+14]
        else:
            pa = P_reg(kt, 2*cb)[1]; pb = P_reg(kt, 2*cb+1)[1]
            A_ = [pa+i for i in range(4)]; B_ = [pb+i for i in range(4)]
        E = lambda i: Ins(f"v_exp_f32 v{Sx+i}, v{Sx+i}")
        C = lambda d, i: Ins(f"v_cvt_pk_bf16_f32 v{d}, v{Sx+i}, v{Sx+i+1}")
        SW = lambda i: Ins(f"v_permlane16_swap_b32 v{A_[i]}, v{B_[i]}")
        def W(i):
            if not toA: return []
            pa = P_reg(kt, 2*cb)[1]; pb = P_reg(kt, 2*cb+1)[1]
            return [Ins(f"v_accvgpr_write_b32 a{pa+i}, v{A_[i]}"), Ins(f"v_accvgpr_write_b32 a{pb+i}, v{B_[i]}")]
        L += [E(0), E(1), E(2), E(3), E(4), E(5), C(A_[0], 0), C(A_[1], 2), E(6), E(7), C(B_[0], 4), E(8), E(9), C(B_[1], 6),
              E(10), E(11), SW(0), C(A_[2], 8), SW(1), E(12), E(13), C(A_[3], 10), E(14), E(15)]
        L += W(0) + [C(B_[2], 12), C(B_[3], 14)] + W(1) + [SW(2), SW(3)]
        L += W(2) + W(3)
    return L

def phase2(P, handles):
    PF = 4
    for kt in range(16):
        bb = []
        buf = SB[kt & 1]
        for s_ in range(12):
            n = 12*kt + s_
            ar = RING + (n % 16)*4
            for cb in range(2):
                d = buf + 16*cb
                q = QF + 8*s_ + 4*cb
                c = f"v[{d}:{d+15}]" if s_ > 0 else "0"
                bb.append(Ins(f"v_mfma_f32_32x32x16_bf16 v[{d}:{d+15}], a[{ar}:{ar+3}], v[{q}:{q+3}], {c}"))
        s_rd, s_dma, s_sm = [], [], []
        for s_ in range(12):
            n = 12*kt + s_ + PF
            lo = 2*s_
            if n < 12*16:
                if s_ == 8:
                    s_rd.append((WaitVM(handles['k'][kt+1]), lo-1, lo-1))
                    s_rd.append((Ins("s_barrier"), lo-1, lo-1))
                s_rd.append((k_frag(n), lo, lo+1))
            else:
                m = n - 192
                if m == 0:
                    s_rd.append((WaitVM(handles['v'][0]), lo-1, lo-1))
                    s_rd.append((Ins("s_barrier"), lo-1, lo-1))
                a, b = tr_v(m)
                s_rd.append((a, lo, lo+1)); s_rd.append((b, lo, lo+1))
        if kt + 4 < 16:
            L, D = dma_k(kt+4)
            handles['k'][kt+4] = D[-1]
            s_dma += [(L[0], 16, 18), (L[1], 16, 18)] + [(d, 17+2*i, 19+2*i) for i, d in enumerate(D)]
        elif kt >= 12 and kt <= 14:
            L, D = dma_v(kt-12)
            handles['v'][kt-12] = D[-1]
            s_dma += [(L[0], 2, 18), (L[1], 2, 18)] + [(d, 4+4*i, 22) for i, d in enumerate(D)]
        if kt > 0:
            sm = softmax_stream(kt-1)
            if kt == 2 and OPT.get('pf') == 'wo': sm = pf_wo() + sm
            n = len(sm)
            for i, x in enumerate(sm):
                s_sm.append((x, 2, 23))
        P.many(weave(bb, [s_rd, s_dma, s_sm], 24, max_mem=1))

def v_seq():
    L = [(G, kt, tp) for G in range(2) for kt in range(16) for tp in range(4)]
    L += [(2, kt, tp) for kt in range(8) for tp in range(4)]
    L += [(2, kt, tp) for kt in range(8, 16) for tp in (0, 1)]
    L += [(2, kt, tp) for kt in range(8, 16) for tp in (2, 3)]
    return L
VSEQ = v_seq()

def tr_v(m):
    G, kt, tp = VSEQ[m]
    st = 4*G + (kt >> 2)
    off = (st % V_NS)*V_ST + (kt & 3)*4096
    r = RING + ((192 + m) % 16)*4
    return [Ins(f"ds_read_b64_tr_b16 a[{r}:{r+1}], v{vVT+tp} offset:{off}"),
            Ins(f"ds_read_b64_tr_b16 a[{r+2}:{r+3}], v{vVT+tp} offset:{off+2048}")]

ONES = 60

def o_epilogue(G):
    L = []
    ob = OACC[G & 1]
    for u in range(2):
        L.append(Ins(f"s_mov_b32 s{sOFH}, {(2*G+u)*1024}"))
        for ct in range(4):
            x = ob + ((2*u)*4 + ct)*4; y = ob + ((2*u+1)*4 + ct)*4
            for i in range(4): L.append(Ins(f"v_mul_f32 v{x+i}, v{RINV+ct}, v{x+i}"))
            for i in range(4): L.append(Ins(f"v_mul_f32 v{y+i}, v{RINV+ct}, v{y+i}"))
            L.append(Ins(f"v_cvt_pk_bf16_f32 v{x}, v{x}, v{x+1}"))
            L.append(Ins(f"v_cvt_pk_bf16_f32 v{x+1}, v{x+2}, v{x+3}"))
            L.append(Ins(f"v_cvt_pk_bf16_f32 v{x+2}, v{y}, v{y+1}"))
            L.append(Ins(f"v_cvt_pk_bf16_f32 v{x+3}, v{y+2}, v{y+3}"))
            L.append(Ins(f"buffer_store_dwordx4 v[{x}:{x+3}], v{vHO+ct}, s[{sWS}:{sWS+3}], s{sOFH} offen sc1"))
    return L

def phase3(P, handles):
    PF = 4
    for G in range(3):
        ob = OACC[G & 1]
        pre = []
        epi = []
        if G == 1:
            for ct in range(4): epi.append(Ins(f"v_rcp_f32 v{RINV+ct}, v{LACC+4*ct}"))
        if G >= 1: epi += o_epilogue(G-1)
        nslots_total = 16*16
        epi_ptr = 0
        for kt in range(16):
            bb = []
            for tp in range(4):
                m = 64*G + 4*kt + tp
                ar = RING + ((192 + m) % 16)*4
                for ct in range(4):
                    d = ob + (tp*4 + ct)*4
                    p = P_reg(kt, ct)
                    c = f"v[{d}:{d+3}]" if kt > 0 else "0"
                    bb.append(Ins(f"v_mfma_f32_16x16x32_bf16 v[{d}:{d+3}], a[{ar}:{ar+3}], {R(p,4)}, {c}"))
            if G == 0:
                for ct in range(4):
                    d = LACC + 4*ct
                    p = P_reg(kt, ct)
                    c = f"v[{d}:{d+3}]" if kt > 0 else "0"
                    bb.append(Ins(f"v_mfma_f32_16x16x32_bf16 v[{d}:{d+3}], v[{ONES}:{ONES+3}], {R(p,4)}, {c}"))
            s_rd, s_dma, s_x = [], [], []
            st = 4*G + (kt >> 2)
            for tp in range(4):
                m = 64*G + 4*kt + tp + PF
                if m >= 192: continue
                lo = 4*tp
                if tp == 0 and (kt & 3) == 3:
                    s_rd.append((WaitVM(handles['v'][st+1]), -1, -1))
                    s_rd.append((Ins("s_barrier"), -1, -1))
                a, b = tr_v(m)
                s_rd.append((a, lo, lo+1)); s_rd.append((b, lo+1, lo+2))
            if (kt & 3) == 3 and st + 3 < 12:
                L, D = dma_v(st+3)
                handles['v'][st+3] = D[-1]
                s_dma += [(L[0], 0, 2), (L[1], 0, 3)] + [(d, 2+3*i, 4+3*i) for i, d in enumerate(D)]
            if G == 0 and kt < 2:
                sm = softmax_stream(15)
                half = len(sm)//2
                part = sm[:half] if kt == 0 else sm[half:]
                s_x = [(x, 0 if kt else 2, 19) for x in part]
            elif epi and kt >= 1:
                per = -(-len(epi) // 13)
                part = epi[epi_ptr:epi_ptr+per]; epi_ptr += len(part)
                s_x = [(x, 0, len(bb)-1) for x in part]
            P.many(weave(bb, [s_rd, s_dma, s_x], 8))
        assert epi_ptr >= len(epi)
    P.many(o_epilogue(2))

def phase3_setup():
    L = [Ins(f"v_mov_b32 v{ONES+i}, 0x3f803f80") for i in range(4)]
    L.append(Ins(f"s_mul_i32 s{sT0}, s38, {196608-20480}"))
    L.append(Ins(f"s_mul_i32 s{sT1}, s24, 6144"))
    L.append(Ins(f"s_add_u32 s{sT0}, s{sT0}, s{sT1}"))
    L.append(Ins(f"s_add_u32 s{sT0}, s{sT0}, {WS_OF-WS_HF}"))
    for ct in range(4):
        L.append(Ins(f"v_add_u32 v{vHO+ct}, s{sT0}, v{vHO+ct}"))
        if ct: L.append(Ins(f"v_add_u32 v{vHO+ct}, {ct*(196608-20480)}, v{vHO+ct}"))
    return L

def phase1(P, handles):
    NK = 20
    PF = 4
    dmah = handles['wq']
    for ks in range(NK):
        bb = []
        for t in range(12):
            n = 12*ks + t
            ar = RING + (n % 16)*4
            for ct in range(4):
                acc = QACC + (4*t + ct)*4
                b = (ks % 4)*16 + 4*ct
                c = f"v[{acc}:{acc+3}]" if ks > 0 else "0"
                bb.append(Ins(f"v_mfma_f32_16x16x32_bf16 v[{acc}:{acc+3}], a[{ar}:{ar+3}], a[{b}:{b+3}], {c}"))
        s_tr, s_h, s_dma = [], [], []
        for t in range(12):
            n = 12*ks + t + PF
            if n >= 12*NK:
                if OPT.get('p2', False):
                    lo = 4*t
                    if t == 8:
                        s_tr.append((WaitVM(handles['k'][0]), lo-1, lo-1))
                        s_tr.append((Ins("s_barrier"), lo-1, lo-1))
                    s_tr.append((k_frag(n - 12*NK), lo, lo+2))
                continue
            a, b = tr_wq(n)
            lo = 4*t
            if t == 8:
                if OPT['dma'] or ks+1 < 4: s_tr.append((WaitVM(dmah[ks+1]), lo-1, lo-1))
                if OPT['barrier']: s_tr.append((Ins("s_barrier"), lo-1, lo-1))
            if OPT['tr']:
                s_tr.append((a, lo, lo+1)); s_tr.append((b, lo+1, lo+2))
        if ks + 3 < NK and OPT['hload']:
            L, D = load_h(ks+3)
            s_h.append((L[0], 0, 1))
            for i, d in enumerate(D): s_h.append((d, 4*i+2, 4*i+3))
        if not OPT['dma']: pass
        elif ks + 4 < NK:
            L, D = dma_wq(ks+4)
            dmah[ks+4] = D[-1]
            s_dma.append((L[0], 33, 35)); s_dma.append((L[1], 34, 36))
            for i, d in enumerate(D): s_dma.append((d, 36+4*i, 38+4*i))
        elif ks >= 16:
            kt = ks - 16
            L, D = dma_k(kt)
            handles['k'][kt] = D[-1]
            s_dma.append((L[0], 33, 35)); s_dma.append((L[1], 34, 36))
            for i, d in enumerate(D): s_dma.append((d, 36+4*i, 38+4*i))
        s_pf = []
        if OPT.get('pf', 'loop') == 'loop':
            if ks == 1: s_pf = [(x, 2, 47) for x in pf_kv()]
            if ks == 8: s_pf = [(x, 2, 47) for x in pf_weights()]
        P.many(weave(bb, [s_tr, s_h, s_dma, s_pf], 8))

SX = 28
def s_buf(kt): return SX if kt == 0 else SB[kt & 1]

MREG = [2, 3]
def max_stream(vt):
    L = []
    buf = s_buf(vt)
    for cb in range(2):
        Sx = buf + 16*cb; m = MREG[cb]
        if vt == 0:
            L.append(Ins(f"v_max_f32 v{m}, v{Sx}, v{Sx+1}")); rest = range(2, 16, 2)
        else:
            rest = range(0, 16, 2)
        for i in rest: L.append(Ins(f"v_max3_f32 v{m}, v{m}, v{Sx+i}, v{Sx+i+1}"))
    if vt == 15:
        for cb in range(2):
            m = MREG[cb]
            L += [Ins(f"v_mov_b32 v1, v{m}"), Ins("s_nop 1"), Ins(f"v_permlane32_swap_b32 v{m}, v1"), Ins("s_nop 1"), Ins(f"v_max_f32 v{m}, v{m}, v1")]
    return L

def softmax_stream2(kt, vt=None, sub=False):
    global SB
    L = []
    buf = s_buf(kt if vt is None else vt)
    toA = P_reg(kt, 0)[0] == 'a'
    for cb in range(2):
        Sx = buf + 16*cb
        if toA:
            A_ = [Sx+0, Sx+2, Sx+8, Sx+10]; B_ = [Sx+4, Sx+6, Sx+12, Sx+14]
        else:
            pa = P_reg(kt, 2*cb)[1]; pb = P_reg(kt, 2*cb+1)[1]
            A_ = [pa+i for i in range(4)]; B_ = [pb+i for i in range(4)]
        def E(i):
            if sub:
                return [Ins(f"v_sub_f32 v{Sx+i}, v{Sx+i}, v{MREG[cb]}"), Ins(f"v_exp_f32 v{Sx+i}, v{Sx+i}")]
            if OPT.get('noexp'): return []
            return [Ins(f"v_exp_f32 v{Sx+i}, v{Sx+i}")]
        C = lambda d, i: [Ins(f"v_cvt_pk_bf16_f32 v{d}, v{Sx+i}, v{Sx+i+1}")]
        SW = lambda i: [Ins(f"v_permlane16_swap_b32 v{A_[i]}, v{B_[i]}")] if not OPT.get('noswap') else []
        def W(i):
            if not toA or OPT.get('noaccw'): return []
            pa = P_reg(kt, 2*cb)[1]; pb = P_reg(kt, 2*cb+1)[1]
            return [Ins(f"v_accvgpr_write_b32 a{pa+i}, v{A_[i]}"), Ins(f"v_accvgpr_write_b32 a{pb+i}, v{B_[i]}")]
        for x in (E(0), E(1), E(2), E(3), E(4), E(5), C(A_[0], 0), C(A_[1], 2), E(6), E(7), C(B_[0], 4), E(8), E(9), C(B_[1], 6),
                  E(10), E(11), C(A_[2], 8), SW(0), E(12), E(13), SW(1), C(A_[3], 10), E(14), E(15), W(0), C(B_[2], 12), C(B_[3], 14), W(1),
                  SW(2), SW(3)): L += x
        L += W(2) + W(3)
    return L
NEGM = 62

def q_convert_tile(t):
    L = []
    for cb in range(2):
        x = QACC + (4*t + 2*cb)*4; y = x + 4
        d = QF + 8*t + 4*cb
        L += [Ins(f"v_cvt_pk_bf16_f32 v{d}, v{x}, v{x+1}"), Ins(f"v_cvt_pk_bf16_f32 v{d+1}, v{x+2}, v{x+3}"),
              Ins(f"v_cvt_pk_bf16_f32 v{d+2}, v{y}, v{y+1}"), Ins(f"v_cvt_pk_bf16_f32 v{d+3}, v{y+2}, v{y+3}")]
    for cb in range(2):
        d = QF + 8*t + 4*cb
        L += [Ins(f"v_permlane16_swap_b32 v{d}, v{d+2}"), Ins(f"v_permlane16_swap_b32 v{d+1}, v{d+3}")]
    return L

sOK = 100
def main_schedule(P, H, safe=False):
    NK = 20; PF = 4
    NT = 32 if safe else 16
    F_K = 240; F_V = 240 + 12*NT; F_END = F_V + 192
    bb = []
    p1_0 = 0
    for ks in range(NK):
        for t in range(12):
            n = 12*ks + t
            ar = RING + (n % 16)*4
            for ct in range(4):
                acc = QACC + (4*t + ct)*4
                b = (ks % HS())*16 + 4*ct
                c = f"v[{acc}:{acc+3}]" if ks > 0 else "0"
                bb.append(Ins(f"v_mfma_f32_16x16x32_bf16 v[{acc}:{acc+3}], a[{ar}:{ar+3}], a[{b}:{b+3}], {c}"))
    p2_0 = len(bb)
    for kt in range(NT):
        buf = s_buf(kt)
        for s_ in range(12):
            n = 12*kt + s_
            ar = RING + (n % 16)*4
            for cb in range(2):
                d = buf + 16*cb; q = QF + 8*s_ + 4*cb
                c = f"v[{d}:{d+15}]" if s_ > 0 else "0"
                bb.append(Ins(f"v_mfma_f32_32x32x16_bf16 v[{d}:{d+15}], a[{ar}:{ar+3}], v[{q}:{q+3}], {c}"))
    p3_0 = len(bb)
    kstart = {}
    fslot = {}
    lastfrag = {}
    for mi, (G, kt, tp) in enumerate(VSEQ):
        ob = OACC[G & 1]
        if (G, kt) not in kstart: kstart[(G, kt)] = len(bb)
        ar = RING + ((192 + mi) % 16)*4
        fslot[mi] = len(bb)
        for ct in range(4):
            d = ob + (tp*4 + ct)*4; p = P_reg(kt, ct)
            c = f"v[{d}:{d+3}]" if kt > 0 else "0"
            bb.append(Ins(f"v_mfma_f32_16x16x32_bf16 v[{d}:{d+3}], a[{ar}:{ar+3}], {R(p,4)}, {c}"))
        lastfrag[(G, tp)] = len(bb) - 1
        if G == 0 and tp == 3:
            for ct in range(4):
                d = LACC + 4*ct; p = P_reg(kt, ct)
                c = f"v[{d}:{d+3}]" if kt > 0 else "0"
                bb.append(Ins(f"v_mfma_f32_16x16x32_bf16 v[{d}:{d+3}], v[{ONES}:{ONES+3}], {R(p,4)}, {c}"))
    nslots = len(bb)
    def use_slot(f):
        if f < 240: return 4*f
        if f < F_V: return p2_0 + 2*(f-240)
        return fslot[f-F_V]
    def reads(f):
        if f < 240: return tr_wq(f)
        if f < F_V: return [k_frag(f-240)]
        return tr_v(f-F_V)
    grp = []; wq_h = dict(H['wq']); k_h = {}; v_h = {}; h_h = dict(H['h'])
    bar = {}
    def first_read_slot(f): return use_slot(f - PF)
    for ks in range(1, NK): bar[('wq', ks)] = first_read_slot(12*ks) - 1
    for kt in range(NT): bar[('k', kt)] = first_read_slot(240 + 12*kt) - 1
    vfirst = {}
    for mi, (G, kt, tp) in enumerate(VSEQ): vfirst.setdefault(4*G + (kt >> 2), mi)
    for st in range(12): bar[('v', st)] = first_read_slot(F_V + vfirst[st]) - 1
    for ks in range(4, NK):
        L, D = dma_wq(ks); wq_h[ks] = D[-1]
        lo = bar[('wq', ks-3)] + 1 if ks-3 >= 1 else 0
        grp.append((lo, lo + 44, L, D))
    HB = HS() - 1
    for ks in range(3, NK):
        L, D = load_h(ks); h_h[ks] = D[-1]
        lo = max(0, 48*(ks-HB))
        hi = lo + 44 if ks - HB >= 0 else 48*max(ks-3, 0) + 44
        grp.append((lo, hi, L, D))
    for kt in range(NT):
        L, D = dma_k(kt); k_h[kt] = D[-1]
        if kt < 3: lo = 48*(16+kt) + 8; hi = lo + 38
        elif kt == 3: lo = bar[('k', 0)] + 1; hi = lo + 12
        else: lo = bar[('k', kt-3)] + 1; hi = lo + 20
        grp.append((lo, hi, L, D))
    for st in range(12):
        L, D = dma_v(st); v_h[st] = D[-1]
        if st < 3: lo = p2_0 + 24*(NT-4+st) + 1; hi = lo + 20
        else: lo = bar[('v', st-2)] + 1; hi = lo + 40
        grp.append((lo, hi, L, D))
    placed = space_vm(grp, 4, nslots)
    streams_vm = {}
    seen = {}
    for slot, pre, op, gi in placed:
        key = 'h' if op.kind == 'vload' else 'dma'
        if seen.get(key) != gi:
            assert (key, gi) not in seen, "groups interleave"
            seen[(key, gi)] = True; seen[key] = gi
    for slot, pre, op, gi in placed:
        key = 'h' if op.kind == 'vload' else 'dma'
        st_ = streams_vm.setdefault(key, [])
        if OPT.get('novm'): continue
        for x in pre: st_.append((x, slot-3, slot))
        st_.append((op, slot, slot+int(OPT.get('vmslack', 3))))
    s_rd, s_w = [], []
    vopen = {mi: st for st, mi in vfirst.items()}
    last_read = dict(H['tr'])
    for f in range(PF, F_END):
        lo = use_slot(f - PF)
        key = None
        if f < 240 and f % 12 == 0: key = ('wq', f // 12); hh = wq_h[f // 12]
        elif 240 <= f < F_V and (f-240) % 12 == 0: key = ('k', (f-240)//12); hh = k_h[(f-240)//12]
        elif f >= F_V and (f-F_V) in vopen: key = ('v', vopen[f-F_V]); hh = v_h[vopen[f-F_V]]
        if key:
            if not OPT.get('novm'): s_rd.append((WaitVM(hh), lo-1, lo-1))
            if not OPT.get('nobar'): s_rd.append((Ins("s_barrier"), lo-1, lo-1))
        rr = reads(f)
        nxt = use_slot(f - PF + 1) if f - PF + 1 < F_END else lo + 4
        if len(rr) == 2:
            s2 = lo + 1 if nxt - lo >= 2 else lo
            s_rd.append((rr[0], lo, lo)); s_rd.append((rr[1], s2, s2))
        else:
            s_rd.append((rr[0], lo, lo))
        last_read[f] = rr[-1]
    for f in range(F_END):
        u = use_slot(f)
        s_w.append((WaitLGKM(last_read[f]), u-1, u-1))
    s_wh = [(WaitVM(h_h[ks]), 48*ks-1, 48*ks-1) for ks in range(NK)] if not OPT.get('novm') else []
    s_v = []
    s_p3 = [(x, 0, 80) for x in prologue3() + touch_setup()]
    for t in range(12):
        e_ = 48*19 + 4*t + 5
        dl = p2_0 + 2*t - 2
        for x in q_convert_tile(t): s_v.append((x, e_, max(e_, dl)))
    for x in phase3_setup(): s_v.append((x, p2_0 + 4, p2_0 + 20))
    for vt in range(NT):
        e_ = p2_0 + 24*(vt+1) + 1
        dl = e_ + 22 if vt < NT-1 else kstart[(0, 2)]
        if safe and vt < 16: work = max_stream(vt)
        elif safe: work = softmax_stream2(vt-16, vt, sub=True)
        else: work = softmax_stream2(vt)
        for x in work: s_v.append((x, e_, dl))
    for G in range(3):
        if G == 0:
            epi = [Ins(f"v_rcp_f32 v{RINV+ct}, v{LACC+4*ct}") for ct in range(4)]
            if not safe:
                epi.append(Ins(f"s_mov_b64 s[{sOK}:{sOK+1}], -1"))
                for ct in range(4):
                    epi += [Ins(f"v_cmp_le_f32 vcc, 0x1f800000, v{LACC+4*ct}"), Ins(f"s_and_b64 s[{sOK}:{sOK+1}], s[{sOK}:{sOK+1}], vcc"),
                            Ins(f"v_cmp_ge_f32 vcc, 0x67800000, v{LACC+4*ct}"), Ins(f"s_and_b64 s[{sOK}:{sOK+1}], s[{sOK}:{sOK+1}], vcc")]
            epi += o_epilogue(0)
        elif G == 1: epi = o_epilogue(1)
        else: break
        e0 = kstart[(G+1, 0)] + 3; e1 = kstart[(G+1, 15)]
        for j, x in enumerate(epi):
            ee = e0 + (j*(e1-e0))//len(epi)
            s_v.append((x, ee, e1 + 12))
    epi2 = o_epilogue(2)
    half = len(epi2) // 2
    e0 = lastfrag[(2, 1)] + 4; e1 = nslots - 6
    for j_, x in enumerate(epi2[:half]):
        s_v.append((x, e0 + (j_*(e1-e0))//half, nslots - 1))
    s_pf = []
    if not (OPT.get('notouch') or safe):
        plan = [('k', 0, 48*2), ('k', 1, 48*4), ('k', 2, 48*6), ('v', 0, 48*8), ('v', 1, 48*10), ('v', 2, 48*12),
                ('wg', 0, 48*14), ('wu', 0, 48*16), ('wd', 0, p2_0 + 24*0),
                ('wo', 0, p2_0 + 24*1), ('wo', 1, p2_0 + 24*2), ('wo', 2, p2_0 + 24*3), ('wo', 3, p2_0 + 24*4),
                ('wo', 4, p2_0 + 24*5), ('wo', 5, p2_0 + 24*6), ('wo', 6, p2_0 + 24*7), ('wo', 7, p2_0 + 24*8)]
        for kind, i_, slot in plan:
            for x in touch16(kind, i_, 'a191' if slot < p2_0 else 'v1'): s_pf.append((x, slot + 20, slot + 40))
    s_st = []
    if OPT.get('stamps_in') and not safe:
        pts = [48*10, p2_0, p2_0 + 24*8, p3_0, kstart[(1, 0)], kstart[(2, 0)]]
        for i, sl in enumerate(pts): s_st.append((Ins(f"s_memtime s[{sTS+2*(i+2)}:{sTS+2*(i+2)+1}]"), sl-1, sl-1))
    streams = [s_w, s_wh, s_rd] + list(streams_vm.values()) + [s_p3, s_v, s_pf, s_st]
    P.many(weave(bb, streams))
    P.many(epi2[half:])
    P.last_o_store = epi2[-1]
    return p2_0, p3_0

def pf_v():
    return [Ins(f"s_mul_i32 s{sT0}, s25, 24576"), Ins(f"s_mul_i32 s{sT1}, s26, 6144"), Ins(f"s_add_u32 s{sT0}, s{sT0}, s{sT1}"),
            Ins(f"s_add_u32 s{sT0}, s{sT0}, {BIAS}"), Ins(f"v_lshlrev_b32 v{PFA}, 7, v0"), Ins(f"v_add_u32 v{PFA}, s{sT0}, v{PFA}"),
            NT(f"buffer_load_dword a191, v{PFA}, s[{sV}:{sV+3}], 0 offen")]
def pf_k():
    return [Ins(f"s_mul_i32 s{sT0}, s25, 24576"), Ins(f"s_mul_i32 s{sT1}, s26, 6144"), Ins(f"s_add_u32 s{sT0}, s{sT0}, s{sT1}"),
            Ins(f"s_add_u32 s{sT0}, s{sT0}, {BIAS}"), Ins(f"v_lshlrev_b32 v{PFA}, 7, v0"), Ins(f"v_add_u32 v{PFA}, s{sT0}, v{PFA}"),
            NT(f"buffer_load_dword a191, v{PFA}, s[{sK}:{sK+3}], 0 offen")]
def pf_wo2():
    return [Ins(f"s_lshl_b32 s{sT0}, s2, 2"), Ins(f"s_add_u32 s{sT0}, s{sT0}, s26"), Ins(f"s_mul_i32 s{sT1}, s{sT0}, 7680"),
            Ins(f"v_lshlrev_b32 v{PFA}, 7, v0"), Ins(f"v_add_u32 v{PFA}, s{sT1}, v{PFA}"),
            NT(f"buffer_load_dword a191, v{PFA}, s[52:55], 0 offen")]
def pf_w3():
    L = [Ins(f"s_lshl_b32 s{sT0}, s2, 2"), Ins(f"s_add_u32 s{sT0}, s{sT0}, s26"), Ins(f"s_mul_i32 s{sT1}, s{sT0}, 1920"),
         Ins(f"v_lshlrev_b32 v{PFA}, 7, v0"), Ins(f"v_add_u32 v{PFA}, s{sT1}, v{PFA}"),
         Ins(f"v_cmp_gt_u32 vcc, 15, v0"), Ins(f"v_mov_b32 v59, 0x7ff00000"), Ins("s_nop 0"), Ins(f"v_cndmask_b32 v{PFA}, v59, v{PFA}, vcc")]
    for srd_ in (56, 60, 64): L.append(NT(f"buffer_load_dword a191, v{PFA}, s[{srd_}:{srd_+3}], 0 offen"))
    return L
PFA = 27
TOUCH = dict(v=pf_v, k=pf_k, wo=pf_wo2, w3=pf_w3)

def guard_branch(P):
    e = P.e
    e(f"s_cmp_eq_u64 s[{sOK}:{sOK+1}], -1"); e("s_cselect_b32 s3, 0, 1")
    e("s_barrier")
    e("v_mov_b32 v28, s3"); e("s_lshl_b32 s3, s26, 2"); e("v_mov_b32 v29, s3")
    e("ds_write_b32 v29, v28")
    e("s_waitcnt lgkmcnt(0)"); e("s_barrier")
    e("v_mov_b32 v29, 0")
    e("ds_read_b128 v[32:35], v29")
    e("v_or3_b32 v32, v32, v33, v34"); e("v_or_b32 v32, v32, v35")
    e("v_readfirstlane_b32 s3, v32")
    e("s_cmp_eq_u32 s3, 0"); e("s_cbranch_scc0 K2_SAFE")

def safe_entry(P):
    e = P.e
    e("K2_SAFE:")
    e("s_waitcnt vmcnt(0)"); e("s_barrier")
    e("s_lshl_b32 s3, s26, 6"); e("v_add_u32 v0, s3, v0")

def main_pro(P, H, safe=False, mono=False):
    H['wq'] = {}; H['h'] = {}; H['tr'] = {}
    if mono and not safe:
        for ks in range(4):
            L, D = dma_wq(ks)
            P.many(L); P.many(D); H['wq'][ks] = D[-1]
            if ks == 0: prologue2(P)
        r = lambda t: P.e(RAW(t))
        P.e("s_load_dwordx2 s[84:85], s[0:1], 96"); P.e("s_waitcnt lgkmcnt(0)")
        P.e("s_mov_b32 s86, 256"); P.e("s_mov_b32 s87, 0x20000")
        r("s_cmp_lg_u32 s26, 0"); r("s_cbranch_scc1 K2_HB")
        r("s_mov_b64 exec, 1"); r("s_mov_b32 s32, 0"); r("v_mov_b32 v28, 8")
        r("K2_TP:")
        r("buffer_load_dword v29, v28, s[84:87], 0 offen sc1")
        r("s_waitcnt vmcnt(0)")
        r("v_readfirstlane_b32 s33, v29"); r("s_add_u32 s32, s32, 1"); r("s_nop 2")
        r("s_cmp_lg_u32 s33, 0"); r("s_cbranch_scc1 K2_TD")
        r("s_sleep 8")
        r("s_cmp_lt_u32 s32, 0x4000"); r("s_cbranch_scc1 K2_TP")
        r("K2_TD:")
        r(f"s_lshl_b32 s3, s25, 7"); r(f"s_add_u32 s3, s3, {WS_CNT + 16384}"); r("v_mov_b32 v28, s3"); r("s_mov_b32 s32, 0")
        r("K2_HP:")
        r(f"buffer_load_dword v29, v28, s[{sWS}:{sWS+3}], 0 offen sc1")
        r("s_waitcnt vmcnt(0)")
        r("v_readfirstlane_b32 s3, v29"); r("s_add_u32 s32, s32, 1"); r("s_nop 2")
        r("s_cmp_eq_u32 s3, s33"); r("s_cbranch_scc1 K2_HD")
        r("s_sleep 2")
        r("s_cmp_lt_u32 s32, 0x4000"); r("s_cbranch_scc1 K2_HP")
        r("K2_HD:")
        r("s_mov_b64 exec, -1")
        r("K2_HB:")
        P.e("s_barrier")
        for ks in range(3):
            L, D = load_h(ks)
            P.many(L); P.many(D); H['h'][ks] = D[-1]
    else:
      for ks in range(4):
        L, D = dma_wq(ks)
        P.many(L); P.many(D); H['wq'][ks] = D[-1]
        if ks < 3:
            L, D = load_h(ks)
            P.many(L); P.many(D); H['h'][ks] = D[-1]
        if ks == 0: prologue2(P)
    if not safe: code_prefetch(P, 49152)
    P.wait_vm(H['wq'][0])
    P.e("s_barrier")
    for n in range(4):
        rr = tr_wq(n); P.many(rr); H['tr'][n] = rr[-1]

def phase1_pro(P, handles):
    for ks in range(4):
        L, D = dma_wq(ks)
        P.many(L); P.many(D)
        handles['wq'][ks] = D[-1]
        if ks < 3:
            L, D = load_h(ks)
            P.many(L); P.many(D)
    if OPT.get('pf', 'loop') == 'pro':
        P.many(pf_kv()); P.many(pf_weights())
    P.wait_vm(handles['wq'][0])
    P.e("s_barrier")
    for n in range(4):
        P.many(tr_wq(n))

def q_convert(P):
    for t in range(12):
        for cb in range(2):
            x = QACC + (4*t + 2*cb)*4; y = x + 4
            d = QF + 8*t + 4*cb
            P.e(f"v_cvt_pk_bf16_f32 v{d}, v{x}, v{x+1}")
            P.e(f"v_cvt_pk_bf16_f32 v{d+1}, v{x+2}, v{x+3}")
            P.e(f"v_cvt_pk_bf16_f32 v{d+2}, v{y}, v{y+1}")
            P.e(f"v_cvt_pk_bf16_f32 v{d+3}, v{y+2}, v{y+3}")
        for cb in range(2):
            d = QF + 8*t + 4*cb
            P.e(f"v_permlane16_swap_b32 v{d}, v{d+2}")
            P.e(f"v_permlane16_swap_b32 v{d+1}, v{d+3}")

def dump_regs(P, regs, base_off):
    n = len(regs)
    P.e(f"s_lshl_b32 s3, s2, 2"); P.e("s_add_u32 s3, s3, s26")
    P.e(f"s_mul_i32 s3, s3, {n*256}"); P.e(f"s_add_u32 s3, s3, {base_off}")
    P.e(f"v_lshlrev_b32 v{vT0}, 2, v0"); P.e(f"v_add_u32 v{vT0}, s3, v{vT0}")
    for i, r in enumerate(regs):
        if r[0] == 'a':
            P.e(f"v_accvgpr_read_b32 v{vT1}, a{r[1]}")
            src = vT1
        else:
            src = r[1]
        P.e(f"s_mov_b32 s3, {i*256}")
        P.e(f"buffer_store_dword v{src}, v{vT0}, s[{sWS}:{sWS+3}], s3 offen")
        if r[0] == 'a': P.e("s_waitcnt vmcnt(0)")

def stamp(P, idx):
    P.e(f"s_memtime s[{sTS+2*idx}:{sTS+2*idx+1}]")

def write_stamps(P, n):
    P.e("s_waitcnt lgkmcnt(0)")
    P.e(f"s_lshl_b32 s3, s2, 2"); P.e("s_add_u32 s3, s3, s26"); P.e("s_lshl_b32 s3, s3, 6"); P.e(f"s_add_u32 s3, s3, {WS_STAMP}")
    for i in range(n):
        P.e(f"v_mov_b32 v{vT1}, s{sTS+2*i}")
        P.e(f"v_mov_b32 v{vT0}, s3")
        P.e(f"buffer_store_dword v{vT1}, v{vT0}, s[{sWS}:{sWS+3}], 0 offen offset:{4*i}")
        P.e("s_waitcnt vmcnt(0)")

KD = """.section .rodata,"a"
.p2align 6
.amdhsa_kernel {name}
  .amdhsa_next_free_vgpr {vgpr}
  .amdhsa_next_free_sgpr 102
  .amdhsa_accum_offset {acc}
  .amdhsa_group_segment_fixed_size 0
  .amdhsa_kernarg_size 112
  .amdhsa_user_sgpr_count 2
  .amdhsa_user_sgpr_kernarg_segment_ptr 1
  .amdhsa_system_sgpr_workgroup_id_x 1
.end_amdhsa_kernel
"""

def wrap(kernels, launches, tail_text=""):
    s = ""
    for nm, g, b, l in launches:
        s += f"; @launch kernel={nm} grid=({g},1,1) block=({b},1,1) lds={l}\n"
    s += '.amdgcn_target "amdgcn-amd-amdhsa--gfx950"\n.text\n' + MACROS
    for nm, txt, vg, ac in kernels:
        s += f".globl {nm}\n.p2align 8\n.type {nm},@function\n{nm}:\n{txt}"
    s += "K_TEXT_END:\n" + tail_text
    for nm, txt, vg, ac in kernels:
        s += KD.format(name=nm, vgpr=vg, acc=ac)
    return s

def code_prefetch(P, nbytes):
    P.e("s_getpc_b64 s[48:49]")
    P.e(f"v_lshlrev_b32 v{vT0}, 2, v0")
    P.e(f"s_lshl_b32 s3, s26, 8"); P.e(f"v_add_u32 v{vT0}, s3, v{vT0}")
    P.e(f"v_lshlrev_b32 v{vT0}, 4, v{vT0}")
    for off in range(0, nbytes, 16384):
        P.e(NT(f"global_load_dword v{vT1}, v{vT0}, s[48:49]"))
        P.e(f"v_add_u32 v{vT0}, 16384, v{vT0}")

def build_p1(fname):
    P = Prog()
    H = {'wq': {}, 'k': {}, 'v': {}}
    prologue(P, stamps=False)
    if OPT['pfcode']: code_prefetch(P, 16384)
    stamp(P, 0)
    phase1_pro(P, H)
    stamp(P, 1)
    phase1(P, H)
    stamp(P, 2)
    q_convert(P)
    stamp(P, 3)
    P.e("s_waitcnt vmcnt(0)")
    dump_regs(P, [('v', QF+i) for i in range(96)], WS_DBG)
    write_stamps(P, 4)
    P.e("K2_END:")
    P.e("s_endpgm")
    P.finalize()
    print("estimate", P.estimate(), "nops", P.nops, "ninstr", len(P.final))
    open(fname, "w").write(wrap([("k2_kernel", P.text(), 512, 256)], [("k2_kernel", 256, 256, LDS_BYTES)]))

def build_full(fname, dump_p=False):
    OPT.update(dict(dma=True, hload=True, barrier=True, tr=True, pfcode=True, p2=True))
    P = Prog()
    H = {'wq': {}, 'k': {}, 'v': {}}
    prologue(P, stamps=False)
    code_prefetch(P, 49152)
    stamp(P, 0)
    phase1_pro(P, H)
    stamp(P, 1)
    phase1(P, H)
    stamp(P, 2)
    q_convert(P)
    P.many(phase3_setup())
    stamp(P, 3)
    phase2(P, H)
    stamp(P, 4)
    phase3(P, H)
    stamp(P, 5)
    P.e("s_waitcnt vmcnt(0)")
    stamp(P, 6)
    if dump_p:
        regs = []
        for kt in range(16):
            for ct in range(4):
                p = P_reg(kt, ct)
                regs += [(p[0], p[1]+i) for i in range(4)]
        regs += [('v', LACC+i) for i in range(16)]
        dump_regs(P, regs, WS_DBG)
    write_stamps(P, 7)
    P.e("K2_END:")
    P.e("s_endpgm")
    P.finalize()
    print("estimate", P.estimate(), "nops", P.nops, "ninstr", len(P.final))
    open(fname, "w").write(wrap([("k2_kernel", P.text(), 512, 256)], [("k2_kernel", 256, 256, LDS_BYTES)]))

if __name__ == "__main__":
    import sys
    if len(sys.argv) > 1 and sys.argv[1] == "full":
        build_full("k2_full.s", dump_p=True)
        build_full("k2_fast.s", dump_p=False)
        sys.exit(0)
    build_p1("k2_p1.s")
    for nm, o in [("a", dict(dma=False, hload=False, barrier=False)), ("b", dict(dma=False, hload=True, barrier=False)),
                  ("c", dict(dma=True, hload=False, barrier=False)), ("d", dict(dma=True, hload=True, barrier=False)),
                  ("e", dict(dma=False, hload=False, barrier=True)), ("f", dict(dma=True, hload=True, barrier=True, pfcode=True)),
                  ("g", dict(dma=False, hload=False, barrier=False, tr=False))]:
        OPT.update(dict(dma=True, hload=True, barrier=True, tr=True, pfcode=False)); OPT.update(o)
        build_p1(f"k2_p1{nm}.s")
```

```python
from asmgen import *
from k2gen import WS_MOD, WS_HF, WS_OF, WS_PART, WS_X1, WS_H2F, WS_ACT, WS_BYTES, WS_STAMP, WS_WD, WS_WGU
from ksmall import srd, f2u, NSPLIT
BIAS = 8192

GOPT = dict(dma=True, bload=True, tr=True, barrier=True, waits=True)
def gemm_stream(P, NK, nA, nB, kps, acc_reg, a_ring, a_slots, b_ring, b_sets, tr_fn, bload_fn, dma_fn, H,
                PF, BPF, DPF, nstages, WG=2, extra=None, a_is_agpr=False, b_is_agpr=False, zero_init=True, early=False, mfma_fn=None):
    TRH = H.setdefault('tr', {}); BH = H.setdefault('b', {})
    spk = nA*nB
    bb = []
    for ks in range(NK):
        for t in range(nA):
            n = nA*ks + t
            ar = a_ring + (n % a_slots)*4
            if mfma_fn is not None:
                bb.append(Ins(mfma_fn(ks, t, ar))); continue
            for ct in range(nB):
                acc = acc_reg(t, ct)
                b = b_ring + (ks % b_sets)*4*nB + 4*ct
                c = f"v[{acc}:{acc+3}]" if (ks > 0 or not zero_init) else "0"
                ra = f"a[{ar}:{ar+3}]" if a_is_agpr else f"v[{ar}:{ar+3}]"
                rb = f"a[{b}:{b+3}]" if b_is_agpr else f"v[{b}:{b+3}]"
                bb.append(Ins(f"v_mfma_f32_16x16x32_bf16 v[{acc}:{acc+3}], {ra}, {rb}, {c}"))
    s_tr, s_w, vm = [], [], []
    bar_at = {}
    dmas = {}
    for st in range(nstages):
        if st not in H and GOPT['dma']:
            L, D = dma_fn(st); dmas[st] = (L, D); H[st] = D[-1]
    loads = {}
    for ks in range(NK):
        if ks not in BH and GOPT['bload']:
            L, D = bload_fn(ks); loads[ks] = (L, D); BH[ks] = D[-1]
    for n in range(PF, nA*NK):
        lo = nB*(n - PF)
        nks = n // nA
        if n % nA == 0 and nks % kps == 0:
            stg = nks // kps
            if stg in H and GOPT['waits']: s_tr.append((WaitVM(H[stg]), lo-1, lo-1))
            if GOPT['barrier']: s_tr.append((Ins("s_barrier"), lo-1, lo-1))
            bar_at[stg-1] = lo
        a, b = tr_fn(n)
        TRH[n] = b
        if GOPT['tr']:
            s2 = lo+1 if nB > 1 else lo
            s_tr.append((a, lo, lo)); s_tr.append((b, s2, s2))
    for n in range(0, nA*NK, WG):
        tgt = min(n + WG - 1, nA*NK - 1)
        if GOPT['tr']: s_w.append((WaitLGKM(TRH[tgt]), nB*n-1, nB*n-1))
    s_wb = [(WaitVM(BH[ks]), spk*ks-1, spk*ks-1) for ks in range(NK) if ks in BH and GOPT['waits']]
    items = []
    for st, (L, D) in dmas.items():
        if st - DPF < 0:
            lo = 0; hi = max(bar_at.get(st - 2, spk), spk) - 1
        else:
            lo = bar_at.get(st - DPF, 0)
            hi = bar_at.get(st - DPF + 1, lo + spk*kps) - 1
        items.append((lo, hi, L, D))
    for ks, (L, D) in loads.items():
        lo = max(0, spk*(ks - BPF)); hi = max(lo + spk - 1, 0)
        if ks - BPF < 0: hi = max(spk*(ks - 2), spk) - 1
        items.append((lo, hi, L, D))
    items.sort(key=lambda x: (x[1], x[0]))
    ops = []
    for gi, (lo, hi, L, D) in enumerate(items):
        pre = list(L)
        for d in D:
            if cls(d) != 'mem': pre.append(d); continue
            ops.append([lo, hi, gi, pre, d]); pre = []
    nslots = len(bb)
    gap = max(1, int(GAP))
    placed = []
    t = 0
    remaining = ops[:]
    cur = 0
    started = set()
    while remaining:
        cand = [o for o in remaining if o[0] <= cur]
        open_ = {}
        for o in remaining:
            if o[2] in started: open_[o[4].kind] = o[2]
        cand = [o for o in cand if open_.get(o[4].kind, o[2]) == o[2]]
        if not cand:
            cur = max(cur + 1, min(o[0] for o in remaining)); continue
        o = min(cand, key=lambda o: (o[1], ops.index(o)))
        placed.append((cur, o)); remaining.remove(o); started.add(o[2])
        nxt = cur + gap
        if remaining:
            dl = sorted(x[1] for x in remaining)
            for idx, dd in enumerate(dl):
                if nxt + idx*gap > dd:
                    nxt = max(cur + 1, min(nxt, dd - idx*gap))
        cur = nxt
    per_group = {}
    seen = {}
    for slot, o in placed:
        key = 'd' if o[4].kind == 'dma' else 'b'
        if seen.get(key) != o[2]:
            assert (key, o[2]) not in seen, "groups interleave"
            seen[(key, o[2])] = True; seen[key] = o[2]
    for slot, o in placed:
        st_ = per_group.setdefault(o[2] % 2 if False else ('d' if o[4].kind == 'dma' else 'b'), [])
        for x in o[3]: st_.append((x, slot-2, slot))
        st_.append((o[4], slot, slot))
    streams = [s_w, s_wb, s_tr] + list(per_group.values())
    if extra: streams.append(extra)
    P.many(weave(bb, streams, None if mfma_fn else 8, max_mem=2))

GAP = 4
def gen_k3(stamps=False, auto=True):
    P = Prog(); e = P.e
    NS = 6; ST = 20480
    e("s_cmp_ge_u32 s2, 256"); e("s_cbranch_scc1 K3_END")
    e("s_load_dwordx2 s[4:5], s[0:1], 32")
    e("s_load_dwordx2 s[6:7], s[0:1], 104")
    if stamps: e("s_memtime s[40:41]")
    e("s_and_b32 s20, s2, 3")
    e("s_lshr_b32 s3, s2, 2"); e("s_and_b32 s3, s3, 1"); e("s_lshl_b32 s3, s3, 3")
    e("s_lshr_b32 s21, s2, 5"); e("s_add_u32 s21, s21, s3")
    e("s_lshr_b32 s22, s2, 3"); e("s_and_b32 s22, s22, 3")
    e("v_lshrrev_b32 v1, 6, v0"); e("v_and_b32 v0, 63, v0")
    e("v_readfirstlane_b32 s23, v1")
    for i in range(5):
        e(f"v_add_u32 v10, {i*64}, v0")
        e("v_mul_u32_u24 v11, 3277, v10"); e("v_lshrrev_b32 v11, 16, v11")
        e("v_mul_u32_u24 v12, 20, v11"); e("v_sub_u32 v12, v10, v12")
        e("v_lshrrev_b32 v13, 2, v11"); e("v_and_b32 v13, 1, v13"); e("v_lshlrev_b32 v13, 1, v13")
        e("v_xor_b32 v12, v12, v13")
        e("v_lshlrev_b32 v12, 4, v12")
        e("v_mul_u32_u24 v11, 1280, v11")
        e("v_add_u32 v11, v11, v12")
        e(f"v_add_u32 v{2+i}, {BIAS - i*1024}, v11")
    e("s_mul_i32 s3, s23, 20480")
    for i in range(5): e(f"v_add_u32 v{2+i}, s3, v{2+i}")
    e("v_lshrrev_b32 v10, 4, v0")
    e("v_lshrrev_b32 v11, 2, v0"); e("v_and_b32 v11, 3, v11")
    e("v_lshlrev_b32 v12, 2, v10"); e("v_add_u32 v11, v11, v12")
    e("v_mul_u32_u24 v11, 320, v11")
    e("v_and_b32 v12, 3, v0"); e("v_lshlrev_b32 v12, 3, v12"); e("v_add_u32 v11, v11, v12")
    e("v_and_b32 v12, 1, v10"); e("v_lshlrev_b32 v12, 5, v12")
    e("v_add_u32 v7, v11, v12")
    e("v_xor_b32 v12, 32, v12"); e("v_add_u32 v8, v11, v12")
    e(f"v_add_u32 v9, {3*ST}, v7"); e(f"v_add_u32 v14, {3*ST}, v8")
    e("s_lshl_b32 s3, s21, 3"); e("s_lshl_b32 s24, s23, 1"); e("s_add_u32 s24, s24, s3")
    e("s_mul_i32 s3, s24, 196608"); e("s_mul_i32 s25, s20, 49152"); e("s_add_u32 s3, s3, s25"); e(f"s_add_u32 s3, s3, {WS_OF}")
    e("v_lshlrev_b32 v10, 4, v0"); e("v_add_u32 v15, s3, v10"); e("v_add_u32 v16, 196608, v15")
    e("s_lshl_b32 s3, s20, 7"); e("s_add_u32 s3, s3, s24"); e("s_mul_i32 s3, s3, 20480")
    e("s_mul_i32 s25, s22, 5120"); e("s_add_u32 s3, s3, s25"); e(f"s_add_u32 s3, s3, {WS_PART}")
    e("v_add_u32 v17, s3, v10"); e("v_add_u32 v18, 20480, v17")
    e("s_mul_i32 s26, s23, 5120")
    e("s_mul_i32 s27, s20, 1966080")
    e("s_waitcnt lgkmcnt(0)")
    e("s_mul_i32 s3, s22, 320")
    e("s_add_u32 s8, s4, s3"); e("s_addc_u32 s9, s5, 0"); e(f"s_sub_u32 s8, s8, {BIAS}"); e("s_subb_u32 s9, s9, 0")
    e(f"s_sub_u32 s10, {7864320+BIAS}, s3"); e("s_mov_b32 s11, 0x20000")
    srd(P, 12, 6, 7, WS_BYTES)
    ACC = 176
    AR = 20; ASL = 12
    BR = 68; BS = 6
    def acc_reg(t, ct): return ACC + (t*2 + ct)*4
    def tr_fn(n):
        ks, t = divmod(n, 10)
        st, kk = divmod(ks, 2)
        slot = st % NS
        sett, so = divmod(slot, 3)
        areg = [7, 8, 9, 14][sett*2 + (t & 1)]
        off = so*ST + kk*10240 + (t >> 1)*64
        r = AR + (n % ASL)*4
        return [Ins(f"ds_read_b64_tr_b16 v[{r}:{r+1}], v{areg} offset:{off}"),
                Ins(f"ds_read_b64_tr_b16 v[{r+2}:{r+3}], v{areg} offset:{off+5120}")]
    def bload_fn(ks):
        b = BR + (ks % BS)*8
        return ([Ins(f"s_mov_b32 s28, {ks*1024}")],
                [Ins(f"buffer_load_dwordx4 v[{b+4*ct}:{b+4*ct+3}], v{15+ct}, s[12:15], s28 offen") for ct in range(2)])
    def dma_fn(st):
        return ([Ins(f"s_add_u32 m0, s26, {(st % NS)*ST}"), Ins(f"s_add_u32 s29, s27, {st*81920}")],
                [Ins(f"buffer_load_dwordx4 v{2+i}, s[8:11], s29 offen offset:{i*1024} lds") if i < 4 else None for i in range(5)])
    def dma_fn2(st):
        L = [Ins(f"s_add_u32 m0, s26, {(st % NS)*ST}"), Ins(f"s_add_u32 s29, s27, {st*81920}")]
        D = [Ins(f"buffer_load_dwordx4 v{2+i}, s[8:11], s29 offen offset:{i*1024} lds") for i in range(4)]
        D.append(Ins(f"s_add_u32 m0, s26, {(st % NS)*ST + 4096}"))
        D.append(Ins(f"buffer_load_dwordx4 v6, s[8:11], s29 offen lds"))
        return L, D
    H = {}
    e("v_add_u32 v6, 4096, v6")
    if stamps: e("s_memtime s[42:43]")
    BPF = 5; DPF = 5
    for st in range(DPF):
        L, D = dma_fn2(st); P.many(L); P.many(D); H[st] = D[-1]
        L, D = bload_fn(st); P.many(L); P.many(D); H.setdefault('b', {})[st] = D[-1]
    P.wait_vm(H[0]); e("s_barrier")
    PF = 6
    for n in range(PF):
        rr = tr_fn(n); P.many(rr); H.setdefault('tr', {})[n] = rr[-1]
    if stamps: e("s_memtime s[44:45]"); e("s_waitcnt lgkmcnt(0)")
    gemm_stream(P, 48, 10, 2, 2, acc_reg, AR, ASL, BR, BS, tr_fn, bload_fn, dma_fn2, H, PF, BPF, DPF, 24)
    if stamps: e("s_memtime s[46:47]")
    for u in range(5):
        e(f"s_mov_b32 s28, {u*1024}")
        for ct in range(2):
            a = acc_reg(2*u, ct); b = acc_reg(2*u+1, ct); d = 20 + (u*2+ct)*4
            e(f"v_cvt_pk_bf16_f32 v{d}, v{a}, v{a+1}"); e(f"v_cvt_pk_bf16_f32 v{d+1}, v{a+2}, v{a+3}")
            e(f"v_cvt_pk_bf16_f32 v{d+2}, v{b}, v{b+1}"); e(f"v_cvt_pk_bf16_f32 v{d+3}, v{b+2}, v{b+3}")
            e(f"buffer_store_dwordx4 v[{d}:{d+3}], v{17+ct}, s[12:15], s28 offen sc1")
    if stamps:
        e("s_waitcnt vmcnt(0)"); e("s_memtime s[48:49]")
        write_stamps(P, 5, 23, 12)
    e("K3_END:")
    e("s_endpgm")
    P.finalize(auto_wait=auto)
    return P

WS_GB = WS_MOD + 0x10000 + 5*4096

def gen_k5(stamps=False):
    P = Prog(); e = P.e
    NS = 5; ST = 12288
    e("s_cmp_ge_u32 s2, 256"); e("s_cbranch_scc1 K5_END")
    e("s_load_dwordx4 s[4:7], s[0:1], 48")
    e("s_load_dwordx2 s[16:17], s[0:1], 104")
    if stamps: e("s_memtime s[40:41]")
    e("s_and_b32 s20, s2, 7"); e("s_lshl_b32 s20, s20, 1"); e("s_lshr_b32 s3, s2, 3"); e("s_and_b32 s21, s3, 1"); e("s_add_u32 s20, s20, s21")
    e("s_lshr_b32 s21, s2, 4")
    e("v_lshrrev_b32 v1, 6, v0"); e("v_and_b32 v0, 63, v0")
    e("v_readfirstlane_b32 s23, v1")
    e("v_lshrrev_b32 v10, 2, v0")
    e("s_lshr_b32 s3, s23, 1"); e("s_lshl_b32 s3, s3, 4"); e("v_add_u32 v10, s3, v10")
    e("v_lshrrev_b32 v11, 2, v10"); e("v_and_b32 v11, 1, v11"); e("v_lshlrev_b32 v11, 1, v11")
    e("v_and_b32 v12, 3, v0"); e("v_xor_b32 v11, v11, v12"); e("v_lshlrev_b32 v11, 4, v11")
    e("v_mul_u32_u24 v10, 3072, v10"); e("v_add_u32 v10, v10, v11")
    e(f"v_add_u32 v2, {BIAS}, v10"); e(f"v_add_u32 v3, {BIAS + 64 - 1024}, v10"); e(f"v_add_u32 v4, {BIAS + 128 - 2048}, v10")
    e("v_lshrrev_b32 v10, 4, v0")
    e("v_lshrrev_b32 v11, 2, v0")
    e("v_lshlrev_b32 v11, 6, v11")
    e("v_and_b32 v12, 3, v0"); e("v_lshlrev_b32 v12, 3, v12"); e("v_add_u32 v11, v11, v12")
    e("v_and_b32 v12, 1, v10"); e("v_lshlrev_b32 v12, 5, v12")
    e("v_add_u32 v7, v11, v12"); e("v_xor_b32 v12, 32, v12"); e("v_add_u32 v8, v11, v12")
    e("s_lshl_b32 s3, s21, 3"); e("s_lshl_b32 s24, s23, 1"); e("s_add_u32 s24, s24, s3")
    e("s_mul_i32 s3, s24, 20480"); e(f"s_add_u32 s3, s3, {WS_H2F}")
    e("v_lshlrev_b32 v10, 4, v0"); e("v_add_u32 v15, s3, v10"); e("v_add_u32 v16, 20480, v15")
    e("s_mul_i32 s3, s24, 49152"); e("s_mul_i32 s25, s20, 3072"); e("s_add_u32 s3, s3, s25"); e(f"s_add_u32 s3, s3, {WS_ACT}")
    e("v_add_u32 v17, s3, v10"); e("v_add_u32 v18, 49152, v17")
    e("s_mul_i32 s26, s23, 3072")
    e("s_waitcnt lgkmcnt(0)")
    e("s_and_b32 s3, s23, 1"); e("s_cmp_eq_u32 s3, 0")
    e("s_cselect_b32 s8, s4, s6"); e("s_cselect_b32 s9, s5, s7")
    e("s_mul_i32 s3, s20, 192")
    e("s_add_u32 s8, s8, s3"); e("s_addc_u32 s9, s9, 0"); e(f"s_sub_u32 s8, s8, {BIAS}"); e("s_subb_u32 s9, s9, 0")
    e(f"s_sub_u32 s10, {640*3072+BIAS}, s3"); e("s_mov_b32 s11, 0x20000")
    srd(P, 12, 16, 17, WS_BYTES)
    ACC = 160
    AR = 20; ASL = 12
    BR = 68; BS = 6
    def acc_reg(t, ct): return ACC + (t*2 + ct)*4
    def tr_fn(n):
        ks, t = divmod(n, 12)
        p = 3*(t // 6) + ((t % 6) >> 1)
        off = (ks % NS)*ST + p*1024
        r = AR + (n % ASL)*4
        return [Ins(f"ds_read_b64_tr_b16 v[{r}:{r+1}], v{7 + (t & 1)} offset:{off}"),
                Ins(f"ds_read_b64_tr_b16 v[{r+2}:{r+3}], v{7 + (t & 1)} offset:{off+6144}")]
    def bload_fn(ks):
        b = BR + (ks % BS)*8
        return ([Ins(f"s_mov_b32 s28, {ks*1024}")],
                [Ins(f"buffer_load_dwordx4 v[{b+4*ct}:{b+4*ct+3}], v{15+ct}, s[12:15], s28 offen") for ct in range(2)])
    def dma_fn(st):
        return ([Ins(f"s_add_u32 m0, s26, {(st % NS)*ST}"), Ins(f"s_mov_b32 s29, {st*32*3072}")],
                [Ins(f"buffer_load_dwordx4 v{2+i}, s[8:11], s29 offen offset:{i*1024} lds") for i in range(3)])
    H = {}
    if stamps: e("s_memtime s[42:43]")
    BPF = 4; DPF = 4
    for st in range(DPF):
        L, D = dma_fn(st); P.many(L); P.many(D); H[st] = D[-1]
        L, D = bload_fn(st); P.many(L); P.many(D); H.setdefault('b', {})[st] = D[-1]
    P.wait_vm(H[0]); e("s_barrier")
    PF = 6
    for n in range(PF):
        rr = tr_fn(n); P.many(rr); H.setdefault('tr', {})[n] = rr[-1]
    if stamps: e("s_memtime s[44:45]"); e("s_waitcnt lgkmcnt(0)")
    gemm_stream(P, 20, 12, 2, 1, acc_reg, AR, ASL, BR, BS, tr_fn, bload_fn, dma_fn, H, PF, BPF, DPF, 20)
    if stamps: e("s_memtime s[46:47]")
    for u in range(3):
        e(f"s_mov_b32 s28, {u*1024}")
        for ct in range(2):
            dst = 20 + (u*2 + ct)*4
            for hh in range(2):
                j = 2*u + hh
                g = acc_reg(j, ct); up = acc_reg(6+j, ct)
                for i in range(4): e(f"v_max_f32 v{g+i}, 0, v{g+i}")
                for i in range(4): e(f"v_mul_f32 v{g+i}, v{g+i}, v{up+i}")
                e(f"v_cvt_pk_bf16_f32 v{dst+2*hh}, v{g}, v{g+1}")
                e(f"v_cvt_pk_bf16_f32 v{dst+2*hh+1}, v{g+2}, v{g+3}")
            e(f"buffer_store_dwordx4 v[{dst}:{dst+3}], v{17+ct}, s[12:15], s28 offen sc1")
    if stamps:
        e("s_waitcnt vmcnt(0)"); e("s_memtime s[48:49]")
        write_stamps(P, 5, 23, 12)
    e("K5_END:")
    e("s_endpgm")
    P.finalize()
    return P

def gen_k6(stamps=False):
    P = Prog(); e = P.e
    NS = 6; ST = 5120
    e("s_cmp_ge_u32 s2, 256"); e("s_cbranch_scc1 K6_END")
    e("s_load_dwordx2 s[4:5], s[0:1], 64")
    e("s_load_dwordx2 s[6:7], s[0:1], 88")
    e("s_load_dwordx2 s[16:17], s[0:1], 104")
    if stamps: e("s_memtime s[40:41]")
    e("s_and_b32 s20, s2, 7"); e("s_lshl_b32 s20, s20, 2"); e("s_lshr_b32 s3, s2, 6"); e("s_add_u32 s20, s20, s3")
    e("s_lshr_b32 s21, s2, 3"); e("s_and_b32 s21, s21, 7")
    e("v_lshrrev_b32 v1, 6, v0"); e("v_and_b32 v0, 63, v0")
    e("v_readfirstlane_b32 s23, v1")
    for i in range(5):
        e(f"v_add_u32 v10, {i*64}, v0")
        e("v_mul_u32_u24 v11, 6554, v10"); e("v_lshrrev_b32 v11, 16, v11")
        e("v_mul_u32_u24 v12, 10, v11"); e("v_sub_u32 v12, v10, v12")
        e("v_lshlrev_b32 v12, 4, v12"); e("v_mul_u32_u24 v11, 1280, v11"); e("v_add_u32 v11, v11, v12")
        e(f"v_add_u32 v{2+i}, {BIAS - (i*1024 if i < 4 else 0)}, v11")
    e("v_lshrrev_b32 v11, 2, v0"); e("v_mul_u32_u24 v11, 160, v11")
    e("v_and_b32 v12, 3, v0"); e("v_lshlrev_b32 v12, 3, v12"); e("v_add_u32 v7, v11, v12")
    e(f"s_mul_i32 s26, s23, {NS*ST}"); e("v_add_u32 v7, s26, v7")
    e("s_lshl_b32 s24, s20, 2")
    e("s_mul_i32 s3, s24, 49152"); e("s_mul_i32 s25, s23, 12288"); e("s_add_u32 s3, s3, s25"); e(f"s_add_u32 s3, s3, {WS_ACT}")
    e("v_lshlrev_b32 v10, 4, v0"); e("v_add_u32 v15, s3, v10")
    for ct in range(1, 4): e(f"v_add_u32 v{15+ct}, {ct*49152}, v15")
    e("s_mul_i32 s27, s23, 491520")
    e("s_add_u32 s3, s24, s23"); e("s_mul_i32 s30, s3, 20480"); e(f"s_add_u32 s30, s30, {WS_X1}")
    e("v_add_u32 v8, s30, v10")
    e("v_lshrrev_b32 v11, 4, v0"); e("v_lshlrev_b32 v11, 4, v11"); e("s_mul_i32 s3, s21, 320"); e(f"s_add_u32 s3, s3, {WS_GB}"); e("v_add_u32 v9, s3, v11")
    e("v_and_b32 v12, 15, v0"); e("s_lshl_b32 s3, s20, 6"); e("s_lshl_b32 s25, s23, 4"); e("s_add_u32 s3, s3, s25"); e("v_add_u32 v12, s3, v12")
    e("v_mul_u32_u24 v12, 1280, v12"); e("v_lshrrev_b32 v11, 4, v0"); e("v_lshlrev_b32 v11, 3, v11"); e("v_add_u32 v12, v12, v11")
    e("s_mul_i32 s3, s21, 160"); e("v_add_u32 v14, s3, v12")
    e("s_waitcnt lgkmcnt(0)")
    e("s_mul_i32 s3, s21, 160")
    e("s_add_u32 s8, s4, s3"); e("s_addc_u32 s9, s5, 0"); e(f"s_sub_u32 s8, s8, {BIAS}"); e("s_subb_u32 s9, s9, 0")
    e(f"s_sub_u32 s10, {1536*1280+BIAS}, s3"); e("s_mov_b32 s11, 0x20000")
    srd(P, 12, 16, 17, WS_BYTES); srd(P, 32, 6, 7, 2048*1280)
    ACC = 176
    AR = 20; ASL = 8
    BR = 52; BS = 4
    XR = 116
    def acc_reg(t, ct): return ACC + (t*4 + ct)*4
    def tr_fn(n):
        ks, t = divmod(n, 5)
        off = (ks % NS)*ST + t*32
        r = AR + (n % ASL)*4
        return [Ins(f"ds_read_b64_tr_b16 v[{r}:{r+1}], v7 offset:{off}"),
                Ins(f"ds_read_b64_tr_b16 v[{r+2}:{r+3}], v7 offset:{off+2560}")]
    def bload_fn(ks):
        b = BR + (ks % BS)*16
        return ([Ins(f"s_mov_b32 s28, {ks*1024}")],
                [Ins(f"buffer_load_dwordx4 v[{b+4*ct}:{b+4*ct+3}], v{15+ct}, s[12:15], s28 offen") for ct in range(4)])
    def dma_fn(st):
        L = [Ins(f"s_add_u32 m0, s26, {(st % NS)*ST}"), Ins(f"s_add_u32 s29, s27, {st*32*1280}")]
        D = [Ins(f"buffer_load_dwordx4 v{2+i}, s[8:11], s29 offen offset:{i*1024} lds") for i in range(4)]
        D.append(Ins(f"s_add_u32 m0, s26, {(st % NS)*ST + 4096}"))
        D.append(Ins(f"buffer_load_dwordx4 v6, s[8:11], s29 offen lds"))
        return L, D
    H = {}
    if stamps: e("s_memtime s[42:43]")
    NK = 12; DPF = 4; BPF = 3
    bh = {}
    for st in range(DPF):
        L, D = dma_fn(st); P.many(L); P.many(D); H[st] = D[-1]
        if st < BPF:
            L, D = bload_fn(st); P.many(L); P.many(D); bh[st] = D[-1]
    for t in range(5):
        e(f"s_mul_i32 s3, s21, 5"); e(f"s_add_u32 s3, s3, {t}"); e("s_lshr_b32 s31, s3, 1"); e("s_lshl_b32 s31, s31, 10")
        e("s_and_b32 s3, s3, 1"); e("s_lshl_b32 s3, s3, 3"); e("s_add_u32 s31, s31, s3")
        e(f"buffer_load_dwordx2 v[{XR+2*t}:{XR+2*t+1}], v8, s[12:15], s31 offen")
        e(f"buffer_load_dwordx4 v[{128+4*t}:{131+4*t}], v9, s[12:15], 0 offen offset:{t*64}")
    GOPT_b = GOPT['barrier']; GOPT['barrier'] = False
    H['b'] = bh
    P.wait_vm(H[0])
    PF = 4
    for n in range(PF):
        rr = tr_fn(n); P.many(rr); H.setdefault('tr', {})[n] = rr[-1]
    if stamps: e("s_memtime s[44:45]"); e("s_waitcnt lgkmcnt(0)")
    global GAP
    g0 = GAP; GAP = 2
    gemm_stream(P, NK, 5, 4, 1, acc_reg, AR, ASL, BR, BS, tr_fn, bload_fn, dma_fn, H, PF, BPF, DPF, NK, WG=1)
    GAP = g0; GOPT['barrier'] = GOPT_b
    if stamps: e("s_memtime s[46:47]")
    e("s_barrier")
    e("v_lshlrev_b32 v10, 4, v0")
    e("s_mul_i32 s3, s23, 20480"); e("v_add_u32 v11, s3, v10")
    for ct in range(4):
        for t in range(5):
            a = acc_reg(t, ct)
            e(f"ds_write_b128 v11, v[{a}:{a+3}] offset:{(ct*5+t)*1024}")
    e("s_waitcnt lgkmcnt(0)"); e("s_barrier")
    e("s_mul_i32 s3, s23, 5120"); e("v_add_u32 v11, s3, v10")
    e("v_add_u32 v13, 40960, v11")
    for sw in range(4):
        for t in range(5):
            r = 20 + (sw*5 + t)*4
            e(f"ds_read_b128 v[{r}:{r+3}], v{11 if sw < 2 else 13} offset:{(sw & 1)*20480 + t*1024}")
    for t in range(5):
        y = 20 + t*4
        for sw in range(1, 4):
            for i in range(4): e(f"v_add_f32 v{y+i}, v{y+i}, v{20+(sw*5+t)*4+i}")
        x = XR + 2*t
        e(f"v_lshlrev_b32 v148, 16, v{x}"); e(f"v_and_b32 v149, 0xffff0000, v{x}")
        e(f"v_lshlrev_b32 v150, 16, v{x+1}"); e(f"v_and_b32 v151, 0xffff0000, v{x+1}")
        for i in range(4): e(f"v_fma_f32 v{y+i}, v{y+i}, v{128+4*t+i}, v{148+i}")
        e(f"v_cvt_pk_bf16_f32 v{y}, v{y}, v{y+1}"); e(f"v_cvt_pk_bf16_f32 v{y+1}, v{y+2}, v{y+3}")
        e(f"buffer_store_dwordx2 v[{y}:{y+1}], v14, s[32:35], 0 offen offset:{t*32}")
    if stamps:
        e("s_waitcnt vmcnt(0)"); e("s_memtime s[48:49]")
        write_stamps(P, 5, 23, 12)
    e("K6_END:")
    e("s_endpgm")
    P.finalize()
    return P

def gen_k3b(stamps=False, auto=True):
    P = Prog(); e = P.e
    NS = 5; ST = 24576
    e("s_cmp_ge_u32 s2, 256"); e("s_cbranch_scc1 K3_END")
    e("s_load_dwordx2 s[4:5], s[0:1], 32")
    e("s_load_dwordx2 s[6:7], s[0:1], 104")
    if stamps: e("s_memtime s[40:41]")
    e("s_and_b32 s20, s2, 3")
    e("s_lshr_b32 s3, s2, 2"); e("s_and_b32 s3, s3, 1"); e("s_lshl_b32 s3, s3, 3")
    e("s_lshr_b32 s21, s2, 5"); e("s_add_u32 s21, s21, s3")
    e("s_lshr_b32 s22, s2, 3"); e("s_and_b32 s22, s22, 3")
    e("v_lshrrev_b32 v1, 6, v0"); e("v_and_b32 v0, 63, v0")
    e("v_readfirstlane_b32 s23, v1")
    e("s_and_b32 s30, s23, 3"); e("s_lshr_b32 s31, s23, 2")
    for i in range(3):
        e(f"v_add_u32 v10, {i*64}, v0")
        e("v_mul_u32_u24 v11, 3277, v10"); e("v_lshrrev_b32 v11, 16, v11")
        e("v_mul_u32_u24 v12, 20, v11"); e("v_sub_u32 v12, v10, v12")
        e("v_lshrrev_b32 v13, 2, v11"); e("v_and_b32 v13, 1, v13"); e("v_lshlrev_b32 v13, 1, v13")
        e("v_xor_b32 v12, v12, v13")
        e("v_lshlrev_b32 v12, 4, v12")
        e("v_mul_u32_u24 v11, 1280, v11")
        e("v_add_u32 v11, v11, v12")
        e(f"v_add_u32 v{2+i}, {BIAS - i*1024}, v11")
    e("s_mul_i32 s3, s23, 10240")
    for i in range(3): e(f"v_add_u32 v{2+i}, s3, v{2+i}")
    e("v_cmp_lt_u32 vcc, 31, v0"); e("v_mov_b32 v10, 0x7ff00000")
    e("s_nop 1")
    e("v_cndmask_b32 v4, v4, v10, vcc")
    e("v_lshrrev_b32 v10, 4, v0")
    e("v_lshrrev_b32 v11, 2, v0"); e("v_and_b32 v11, 7, v11")
    e("v_mul_u32_u24 v11, 320, v11")
    e("v_lshrrev_b32 v12, 1, v10"); e("v_mul_u32_u24 v12, 3072, v12"); e("v_add_u32 v11, v11, v12")
    e("v_and_b32 v12, 3, v0"); e("v_lshlrev_b32 v12, 3, v12"); e("v_add_u32 v11, v11, v12")
    e("s_mul_i32 s3, s31, 12288"); e("v_add_u32 v11, s3, v11")
    e("v_and_b32 v12, 1, v10"); e("v_lshlrev_b32 v12, 5, v12")
    e("v_add_u32 v7, v11, v12")
    e("v_xor_b32 v12, 32, v12"); e("v_add_u32 v8, v11, v12")
    e(f"v_add_u32 v9, {2*ST}, v7"); e(f"v_add_u32 v14, {2*ST}, v8")
    e(f"v_add_u32 v5, {4*ST}, v7"); e(f"v_add_u32 v6, {4*ST}, v8")
    e("s_lshl_b32 s3, s21, 3"); e("s_lshl_b32 s24, s30, 1"); e("s_add_u32 s24, s24, s3")
    e("s_mul_i32 s3, s24, 196608"); e("s_mul_i32 s25, s20, 49152"); e("s_add_u32 s3, s3, s25")
    e("s_lshl_b32 s25, s31, 10"); e("s_add_u32 s3, s3, s25"); e(f"s_add_u32 s3, s3, {WS_OF}")
    e("v_lshlrev_b32 v10, 4, v0"); e("v_add_u32 v15, s3, v10"); e("v_add_u32 v16, 196608, v15")
    e("s_lshl_b32 s3, s20, 7"); e("s_add_u32 s3, s3, s24"); e("s_add_u32 s3, s3, s31"); e("s_mul_i32 s3, s3, 20480")
    e("s_mul_i32 s25, s22, 5120"); e("s_add_u32 s3, s3, s25"); e(f"s_add_u32 s3, s3, {WS_PART}")
    e("v_add_u32 v17, s3, v10")
    e("s_mul_i32 s26, s23, 3072")
    e("s_mul_i32 s27, s20, 1966080")
    e("s_waitcnt lgkmcnt(0)")
    e("s_mul_i32 s3, s22, 320")
    e("s_add_u32 s8, s4, s3"); e("s_addc_u32 s9, s5, 0"); e(f"s_sub_u32 s8, s8, {BIAS}"); e("s_subb_u32 s9, s9, 0")
    e(f"s_sub_u32 s10, {7864320+BIAS}, s3"); e("s_mov_b32 s11, 0x20000")
    srd(P, 12, 6, 7, WS_BYTES)
    ACC = 176; AR = 20; ASL = 12; BR = 68; BS = 5
    def acc_reg(t, ct): return ACC + (t*2 + ct)*4
    def tr_fn(n):
        st, t = divmod(n, 10)
        slot = st % NS
        sett, so = divmod(slot, 2)
        areg = [[7, 8], [9, 14], [5, 6]][sett][t & 1]
        off = so*ST + (t >> 1)*64
        r = AR + (n % ASL)*4
        return [Ins(f"ds_read_b64_tr_b16 v[{r}:{r+1}], v{areg} offset:{off}"),
                Ins(f"ds_read_b64_tr_b16 v[{r+2}:{r+3}], v{areg} offset:{off+6144}")]
    def bload_fn(ks):
        b = BR + (ks % BS)*8
        return ([Ins(f"s_mov_b32 s28, {ks*2048}")],
                [Ins(f"buffer_load_dwordx4 v[{b+4*ct}:{b+4*ct+3}], v{15+ct}, s[12:15], s28 offen") for ct in range(2)])
    def dma_fn(st):
        return ([Ins(f"s_add_u32 m0, s26, {(st % NS)*ST}"), Ins(f"s_add_u32 s29, s27, {st*81920}")],
                [Ins(f"buffer_load_dwordx4 v{2+i}, s[8:11], s29 offen offset:{i*1024} lds") for i in range(3)])
    H = {}
    if stamps: e("s_memtime s[42:43]")
    BPF = 4; DPF = 4
    for st in range(2):
        L, D = dma_fn(st); P.many(L); P.many(D); H[st] = D[-1]
        L, D = bload_fn(st); P.many(L); P.many(D); H.setdefault('b', {})[st] = D[-1]
    P.wait_vm(H[0]); e("s_barrier")
    PF = 6
    for n in range(PF):
        rr = tr_fn(n); P.many(rr); H.setdefault('tr', {})[n] = rr[-1]
    if stamps: e("s_memtime s[44:45]"); e("s_waitcnt lgkmcnt(0)")
    gemm_stream(P, 24, 10, 2, 1, acc_reg, AR, ASL, BR, BS, tr_fn, bload_fn, dma_fn, H, PF, BPF, DPF, 24)
    if stamps: e("s_memtime s[46:47]")
    e("s_barrier")
    e("v_lshlrev_b32 v10, 4, v0")
    e("s_mul_i32 s3, s23, 10240"); e("v_add_u32 v11, s3, v10")
    e("s_xor_b32 s3, s23, 4"); e("s_mul_i32 s3, s3, 10240"); e("v_add_u32 v12, s3, v10")
    e("s_cmp_eq_u32 s31, 0"); e("s_cbranch_scc0 K3_KG1")
    for kg in range(2):
        if kg == 1: e("K3_KG1:")
        for t in range(10):
            a = acc_reg(t, 1-kg)
            e(f"ds_write_b128 v11, v[{a}:{a+3}] offset:{t*1024}")
        e("s_waitcnt lgkmcnt(0)"); e("s_barrier")
        for t in range(10):
            e(f"ds_read_b128 v[{20+4*t}:{23+4*t}], v12 offset:{t*1024}")
        for u in range(5):
            for hh in range(2):
                t = 2*u + hh; a = acc_reg(t, kg)
                for i in range(4): e(f"v_add_f32 v{a+i}, v{a+i}, v{20+4*t+i}")
                e(f"v_cvt_pk_bf16_f32 v{64+4*u+2*hh}, v{a}, v{a+1}")
                e(f"v_cvt_pk_bf16_f32 v{64+4*u+2*hh+1}, v{a+2}, v{a+3}")
            e(f"s_mov_b32 s28, {u*1024}")
            e(f"buffer_store_dwordx4 v[{64+4*u}:{67+4*u}], v17, s[12:15], s28 offen sc1")
        if kg == 0: e("s_branch K3_FIN")
    e("K3_FIN:")
    if stamps:
        e("s_waitcnt vmcnt(0)"); e("s_memtime s[48:49]")
        write_stamps(P, 5, 23, 12, 3)
    e("K3_END:")
    e("s_endpgm")
    P.finalize(auto_wait=auto)
    return P

def gen_k5b(stamps=False):
    P = Prog(); e = P.e
    NS = 5; ST = 24576
    e("s_cmp_ge_u32 s2, 256"); e("s_cbranch_scc1 K5_END")
    e("s_load_dwordx4 s[4:7], s[0:1], 48")
    e("s_load_dwordx2 s[16:17], s[0:1], 104")
    if stamps: e("s_memtime s[40:41]")
    e("s_and_b32 s20, s2, 7"); e("s_lshl_b32 s20, s20, 1"); e("s_lshr_b32 s3, s2, 3"); e("s_and_b32 s21, s3, 1"); e("s_add_u32 s20, s20, s21")
    e("s_lshr_b32 s21, s2, 4")
    e("v_lshrrev_b32 v1, 6, v0"); e("v_and_b32 v0, 63, v0")
    e("v_readfirstlane_b32 s23, v1")
    e("s_and_b32 s30, s23, 3"); e("s_lshr_b32 s31, s23, 2")
    e("v_lshrrev_b32 v10, 2, v0")
    e("s_lshr_b32 s3, s23, 1"); e("s_lshl_b32 s3, s3, 4"); e("v_add_u32 v10, s3, v10")
    e("v_lshrrev_b32 v11, 2, v10"); e("v_and_b32 v11, 1, v11"); e("v_lshlrev_b32 v11, 1, v11")
    e("v_and_b32 v12, 3, v0"); e("v_xor_b32 v11, v11, v12"); e("v_lshlrev_b32 v11, 4, v11")
    e("v_mul_u32_u24 v10, 3072, v10"); e("v_add_u32 v10, v10, v11")
    e(f"v_add_u32 v2, {BIAS}, v10"); e(f"v_add_u32 v3, {BIAS + 64 - 1024}, v10"); e(f"v_add_u32 v4, {BIAS + 128 - 2048}, v10")
    e("v_lshrrev_b32 v10, 4, v0")
    e("v_lshrrev_b32 v11, 2, v0"); e("v_lshlrev_b32 v11, 6, v11")
    e("v_and_b32 v12, 3, v0"); e("v_lshlrev_b32 v12, 3, v12"); e("v_add_u32 v11, v11, v12")
    e("s_mul_i32 s3, s31, 12288"); e("v_add_u32 v11, s3, v11")
    e("v_and_b32 v12, 1, v10"); e("v_lshlrev_b32 v12, 5, v12")
    e("v_add_u32 v7, v11, v12"); e("v_xor_b32 v12, 32, v12"); e("v_add_u32 v8, v11, v12")
    e(f"v_add_u32 v9, {2*ST}, v7"); e(f"v_add_u32 v14, {2*ST}, v8")
    e(f"v_add_u32 v5, {4*ST}, v7"); e(f"v_add_u32 v6, {4*ST}, v8")
    e("s_lshl_b32 s3, s21, 3"); e("s_lshl_b32 s24, s30, 1"); e("s_add_u32 s24, s24, s3")
    e("s_mul_i32 s3, s24, 20480"); e("s_lshl_b32 s25, s31, 10"); e("s_add_u32 s3, s3, s25"); e(f"s_add_u32 s3, s3, {WS_H2F}")
    e("v_lshlrev_b32 v10, 4, v0"); e("v_add_u32 v15, s3, v10"); e("v_add_u32 v16, 20480, v15")
    e("s_add_u32 s3, s24, s31"); e("s_mul_i32 s3, s3, 49152"); e("s_mul_i32 s25, s20, 3072"); e("s_add_u32 s3, s3, s25"); e(f"s_add_u32 s3, s3, {WS_ACT}")
    e("v_add_u32 v17, s3, v10")
    e("s_mul_i32 s26, s23, 3072")
    e("s_waitcnt lgkmcnt(0)")
    e("s_and_b32 s3, s23, 1"); e("s_cmp_eq_u32 s3, 0")
    e("s_cselect_b32 s8, s4, s6"); e("s_cselect_b32 s9, s5, s7")
    e("s_mul_i32 s3, s20, 192")
    e("s_add_u32 s8, s8, s3"); e("s_addc_u32 s9, s9, 0"); e(f"s_sub_u32 s8, s8, {BIAS}"); e("s_subb_u32 s9, s9, 0")
    e(f"s_sub_u32 s10, {640*3072+BIAS}, s3"); e("s_mov_b32 s11, 0x20000")
    srd(P, 12, 16, 17, WS_BYTES)
    ACC = 160; AR = 20; ASL = 12; BR = 68; BS = 5
    def acc_reg(t, ct): return ACC + (t*2 + ct)*4
    def tr_fn(n):
        st, t = divmod(n, 12)
        p = 3*(t // 6) + ((t % 6) >> 1)
        sett, so = divmod(st % NS, 2)
        areg = [[7, 8], [9, 14], [5, 6]][sett][t & 1]
        off = so*ST + p*1024
        r = AR + (n % ASL)*4
        return [Ins(f"ds_read_b64_tr_b16 v[{r}:{r+1}], v{areg} offset:{off}"),
                Ins(f"ds_read_b64_tr_b16 v[{r+2}:{r+3}], v{areg} offset:{off+6144}")]
    def bload_fn(ks):
        b = BR + (ks % BS)*8
        return ([Ins(f"s_mov_b32 s28, {ks*2048}")],
                [Ins(f"buffer_load_dwordx4 v[{b+4*ct}:{b+4*ct+3}], v{15+ct}, s[12:15], s28 offen") for ct in range(2)])
    def dma_fn(st):
        return ([Ins(f"s_add_u32 m0, s26, {(st % NS)*ST}"), Ins(f"s_mov_b32 s29, {st*64*3072}")],
                [Ins(f"buffer_load_dwordx4 v{2+i}, s[8:11], s29 offen offset:{i*1024} lds") for i in range(3)])
    H = {}
    if stamps: e("s_memtime s[42:43]")
    BPF = 4; DPF = 4
    for st in range(DPF):
        L, D = dma_fn(st); P.many(L); P.many(D); H[st] = D[-1]
        L, D = bload_fn(st); P.many(L); P.many(D); H.setdefault('b', {})[st] = D[-1]
    P.wait_vm(H[0]); e("s_barrier")
    PF = 6
    for n in range(PF):
        rr = tr_fn(n); P.many(rr); H.setdefault('tr', {})[n] = rr[-1]
    if stamps: e("s_memtime s[44:45]"); e("s_waitcnt lgkmcnt(0)")
    gemm_stream(P, 10, 12, 2, 1, acc_reg, AR, ASL, BR, BS, tr_fn, bload_fn, dma_fn, H, PF, BPF, DPF, 10)
    if stamps: e("s_memtime s[46:47]")
    e("s_barrier")
    e("v_lshlrev_b32 v10, 4, v0")
    e("s_mul_i32 s3, s23, 12288"); e("v_add_u32 v11, s3, v10")
    e("s_xor_b32 s3, s23, 4"); e("s_mul_i32 s3, s3, 12288"); e("v_add_u32 v12, s3, v10")
    e("s_cmp_eq_u32 s31, 0"); e("s_cbranch_scc0 K5_KG1")
    for kg in range(2):
        if kg == 1: e("K5_KG1:")
        for t in range(12):
            a = acc_reg(t, 1-kg)
            e(f"ds_write_b128 v11, v[{a}:{a+3}] offset:{t*1024}")
        e("s_waitcnt lgkmcnt(0)"); e("s_barrier")
        for t in range(12):
            e(f"ds_read_b128 v[{20+4*t}:{23+4*t}], v12 offset:{t*1024}")
        for t in range(12):
            a = acc_reg(t, kg)
            for i in range(4): e(f"v_add_f32 v{a+i}, v{a+i}, v{20+4*t+i}")
        for u in range(3):
            dst = 80 + u*4
            for hh in range(2):
                j = 2*u + hh
                g = acc_reg(j, kg); up = acc_reg(6+j, kg)
                for i in range(4): e(f"v_max_f32 v{g+i}, 0, v{g+i}")
                for i in range(4): e(f"v_mul_f32 v{g+i}, v{g+i}, v{up+i}")
                e(f"v_cvt_pk_bf16_f32 v{dst+2*hh}, v{g}, v{g+1}")
                e(f"v_cvt_pk_bf16_f32 v{dst+2*hh+1}, v{g+2}, v{g+3}")
            e(f"s_mov_b32 s28, {u*1024}")
            e(f"buffer_store_dwordx4 v[{dst}:{dst+3}], v17, s[12:15], s28 offen sc1")
        if kg == 0: e("s_branch K5_FIN")
    e("K5_FIN:")
    if stamps:
        e("s_waitcnt vmcnt(0)"); e("s_memtime s[48:49]")
        write_stamps(P, 5, 23, 12, 3)
    e("K5_END:")
    e("s_endpgm")
    P.finalize()
    return P

def gen_k6b(stamps=False):
    P = Prog(); e = P.e
    NS = 3; ST = 5120
    e("s_cmp_ge_u32 s2, 256"); e("s_cbranch_scc1 K6_END")
    e("s_load_dwordx2 s[4:5], s[0:1], 64")
    e("s_load_dwordx2 s[6:7], s[0:1], 88")
    e("s_load_dwordx2 s[16:17], s[0:1], 104")
    if stamps: e("s_memtime s[40:41]")
    e("s_and_b32 s20, s2, 7"); e("s_lshl_b32 s20, s20, 2"); e("s_lshr_b32 s3, s2, 6"); e("s_add_u32 s20, s20, s3")
    e("s_lshr_b32 s21, s2, 3"); e("s_and_b32 s21, s21, 7")
    e("v_lshrrev_b32 v1, 6, v0"); e("v_and_b32 v0, 63, v0")
    e("v_readfirstlane_b32 s23, v1")
    for i in range(5):
        e(f"v_add_u32 v10, {i*64}, v0")
        e("v_mul_u32_u24 v11, 6554, v10"); e("v_lshrrev_b32 v11, 16, v11")
        e("v_mul_u32_u24 v12, 10, v11"); e("v_sub_u32 v12, v10, v12")
        e("v_lshlrev_b32 v12, 4, v12"); e("v_mul_u32_u24 v11, 1280, v11"); e("v_add_u32 v11, v11, v12")
        e(f"v_add_u32 v{2+i}, {BIAS - (i*1024 if i < 4 else 0)}, v11")
    e("v_lshrrev_b32 v11, 2, v0"); e("v_mul_u32_u24 v11, 160, v11")
    e("v_and_b32 v12, 3, v0"); e("v_lshlrev_b32 v12, 3, v12"); e("v_add_u32 v7, v11, v12")
    e(f"s_mul_i32 s26, s23, {NS*ST}"); e("v_add_u32 v7, s26, v7")
    e("s_lshl_b32 s24, s20, 2")
    e("s_mul_i32 s3, s24, 49152"); e("s_mul_i32 s25, s23, 6144"); e("s_add_u32 s3, s3, s25"); e(f"s_add_u32 s3, s3, {WS_ACT}")
    e("v_lshlrev_b32 v10, 4, v0"); e("v_add_u32 v15, s3, v10")
    for ct in range(1, 4): e(f"v_add_u32 v{15+ct}, {ct*49152}, v15")
    e("s_mul_i32 s27, s23, 245760")
    e("s_lshr_b32 s36, s23, 1"); e("s_and_b32 s37, s23, 1")
    e("s_add_u32 s3, s24, s36"); e("s_mul_i32 s30, s3, 20480"); e(f"s_add_u32 s30, s30, {WS_X1}")
    e("v_add_u32 v8, s30, v10")
    e("v_lshrrev_b32 v11, 4, v0"); e("v_lshlrev_b32 v11, 4, v11"); e("s_mul_i32 s3, s21, 320"); e(f"s_add_u32 s3, s3, {WS_GB}")
    e("s_mul_i32 s25, s37, 192"); e("s_add_u32 s3, s3, s25"); e("v_add_u32 v9, s3, v11")
    e("v_and_b32 v12, 15, v0"); e("s_lshl_b32 s3, s20, 6"); e("s_lshl_b32 s25, s36, 4"); e("s_add_u32 s3, s3, s25"); e("v_add_u32 v12, s3, v12")
    e("v_mul_u32_u24 v12, 1280, v12"); e("v_lshrrev_b32 v11, 4, v0"); e("v_lshlrev_b32 v11, 3, v11"); e("v_add_u32 v12, v12, v11")
    e("s_mul_i32 s3, s21, 160"); e("s_mul_i32 s25, s37, 96"); e("s_add_u32 s3, s3, s25"); e("v_add_u32 v14, s3, v12")
    e("s_waitcnt lgkmcnt(0)")
    e("s_mul_i32 s3, s21, 160")
    e("s_add_u32 s8, s4, s3"); e("s_addc_u32 s9, s5, 0"); e(f"s_sub_u32 s8, s8, {BIAS}"); e("s_subb_u32 s9, s9, 0")
    e(f"s_sub_u32 s10, {1536*1280+BIAS}, s3"); e("s_mov_b32 s11, 0x20000")
    srd(P, 12, 16, 17, WS_BYTES); srd(P, 32, 6, 7, 2048*1280)
    ACC = 176; AR = 20; ASL = 8; BR = 52; BS = 6
    XR = 148; GBR = 156
    def acc_reg(t, ct): return ACC + (t*4 + ct)*4
    def tr_fn(n):
        ks, t = divmod(n, 5)
        off = (ks % NS)*ST + t*32
        r = AR + (n % ASL)*4
        return [Ins(f"ds_read_b64_tr_b16 v[{r}:{r+1}], v7 offset:{off}"),
                Ins(f"ds_read_b64_tr_b16 v[{r+2}:{r+3}], v7 offset:{off+2560}")]
    def bload_fn(ks):
        b = BR + (ks % BS)*16
        return ([Ins(f"s_mov_b32 s28, {ks*1024}")],
                [Ins(f"buffer_load_dwordx4 v[{b+4*ct}:{b+4*ct+3}], v{15+ct}, s[12:15], s28 offen") for ct in range(4)])
    def dma_fn(st):
        L = [Ins(f"s_add_u32 m0, s26, {(st % NS)*ST}"), Ins(f"s_add_u32 s29, s27, {st*32*1280}")]
        D = [Ins(f"buffer_load_dwordx4 v{2+i}, s[8:11], s29 offen offset:{i*1024} lds") for i in range(4)]
        D.append(Ins(f"s_add_u32 m0, s26, {(st % NS)*ST + 4096}"))
        D.append(Ins(f"buffer_load_dwordx4 v6, s[8:11], s29 offen lds"))
        return L, D
    H = {}; bh = {}
    if stamps: e("s_memtime s[42:43]")
    NK = 6
    for st in range(NS):
        L, D = dma_fn(st); P.many(L); P.many(D); H[st] = D[-1]
        L, D = bload_fn(st); P.many(L); P.many(D); bh[st] = D[-1]
    for st in range(NS, NK):
        L, D = bload_fn(st); P.many(L); P.many(D); bh[st] = D[-1]
    for j in range(3):
        e(f"s_mul_i32 s3, s21, 5"); e("s_mul_i32 s38, s37, 3"); e("s_add_u32 s3, s3, s38"); e(f"s_add_u32 s3, s3, {j}")
        e("s_lshr_b32 s31, s3, 1"); e("s_lshl_b32 s31, s31, 10"); e("s_and_b32 s3, s3, 1"); e("s_lshl_b32 s3, s3, 3"); e("s_add_u32 s31, s31, s3")
        e(f"buffer_load_dwordx2 v[{XR+2*j}:{XR+2*j+1}], v8, s[12:15], s31 offen")
        e(f"buffer_load_dwordx4 v[{GBR+4*j}:{GBR+4*j+3}], v9, s[12:15], 0 offen offset:{j*64}")
    H['b'] = bh
    bar0 = GOPT['barrier']; GOPT['barrier'] = False
    P.wait_vm(H[0])
    PF = 4
    for n in range(PF):
        rr = tr_fn(n); P.many(rr); H.setdefault('tr', {})[n] = rr[-1]
    if stamps: e("s_memtime s[44:45]"); e("s_waitcnt lgkmcnt(0)")
    global GAP
    g0 = GAP; GAP = 1
    gemm_stream(P, NK, 5, 4, 1, acc_reg, AR, ASL, BR, BS, tr_fn, bload_fn, dma_fn, H, PF, NK, 2, NK, WG=1)
    GAP = g0; GOPT['barrier'] = bar0
    if stamps: e("s_memtime s[46:47]")
    e("s_barrier")
    e("v_lshlrev_b32 v10, 4, v0")
    e("s_mul_i32 s3, s23, 20480"); e("v_add_u32 v11, s3, v10")
    for ct in range(4):
        for t in range(5):
            a = acc_reg(t, ct)
            e(f"ds_write_b128 v11, v[{a}:{a+3}] offset:{(ct*5+t)*1024}")
    e("s_waitcnt lgkmcnt(0)"); e("s_barrier")
    e("s_mul_i32 s3, s36, 5120"); e("s_mul_i32 s25, s37, 3072"); e("s_add_u32 s3, s3, s25"); e("v_add_u32 v11, s3, v10")
    for q in range(1, 4): e(f"v_add_u32 v{168+q}, {q*40960}, v11")
    def fin(j):
        y = 20 + j*32
        for sw in range(8):
            areg = 11 if sw < 2 else 168 + (sw >> 1)
            e(f"ds_read_b128 v[{y+4*sw}:{y+4*sw+3}], v{areg} offset:{(sw & 1)*20480 + j*1024}")
        for sw in range(1, 8):
            for i in range(4): e(f"v_add_f32 v{y+i}, v{y+i}, v{y+4*sw+i}")
        x = XR + 2*j
        e(f"v_lshlrev_b32 v172, 16, v{x}"); e(f"v_and_b32 v173, 0xffff0000, v{x}")
        e(f"v_lshlrev_b32 v174, 16, v{x+1}"); e(f"v_and_b32 v175, 0xffff0000, v{x+1}")
        for i in range(4): e(f"v_fma_f32 v{y+i}, v{y+i}, v{GBR+4*j+i}, v{172+i}")
        e(f"v_cvt_pk_bf16_f32 v{y}, v{y}, v{y+1}"); e(f"v_cvt_pk_bf16_f32 v{y+1}, v{y+2}, v{y+3}")
        e(f"buffer_store_dwordx2 v[{y}:{y+1}], v14, s[32:35], 0 offen offset:{j*32}")
    fin(0); fin(1)
    e("s_cmp_eq_u32 s37, 0"); e("s_cbranch_scc0 K6_FIN")
    fin(2)
    e("K6_FIN:")
    if stamps:
        e("s_waitcnt vmcnt(0)"); e("s_memtime s[48:49]")
        write_stamps(P, 5, 23, 12, 3)
    e("K6_END:")
    e("s_endpgm")
    P.finalize()
    return P

def gen_k5c(stamps=False, pf_down=True, auto=True):
    P = Prog(); e = P.e
    NS = 5; ST = 24576
    e("s_cmp_ge_u32 s2, 256"); e("s_cbranch_scc1 K5_END")
    e("s_load_dwordx4 s[4:7], s[0:1], 48")
    e("s_load_dwordx2 s[16:17], s[0:1], 104")
    e("s_load_dwordx2 s[18:19], s[0:1], 64")
    if stamps: e("s_memtime s[40:41]")
    e("s_and_b32 s20, s2, 7"); e("s_lshl_b32 s20, s20, 1"); e("s_lshr_b32 s3, s2, 3"); e("s_and_b32 s21, s3, 1"); e("s_add_u32 s20, s20, s21")
    e("s_lshr_b32 s21, s2, 4")
    e("v_lshrrev_b32 v1, 6, v0"); e("v_and_b32 v0, 63, v0")
    e("v_readfirstlane_b32 s23, v1")
    e("v_lshrrev_b32 v10, 2, v0")
    e("s_and_b32 s30, s23, 3"); e("s_lshr_b32 s31, s23, 2")
    e("s_lshr_b32 s3, s23, 1"); e("s_lshl_b32 s3, s3, 4"); e("v_add_u32 v10, s3, v10")
    e("v_lshrrev_b32 v11, 2, v10"); e("v_and_b32 v11, 1, v11"); e("v_lshlrev_b32 v11, 1, v11")
    e("v_and_b32 v12, 3, v0"); e("v_xor_b32 v11, v11, v12"); e("v_lshlrev_b32 v11, 4, v11")
    e("v_mul_u32_u24 v10, 3072, v10"); e("v_add_u32 v10, v10, v11")
    e(f"v_add_u32 v2, {BIAS}, v10"); e(f"v_add_u32 v3, {BIAS + 64 - 1024}, v10"); e(f"v_add_u32 v4, {BIAS + 128 - 2048}, v10")
    e("s_lshl_b32 s3, s21, 3"); e("s_lshl_b32 s24, s30, 1"); e("s_add_u32 s24, s24, s3")
    e("s_mul_i32 s3, s24, 20480"); e(f"s_add_u32 s3, s3, {WS_H2F}")
    e("v_lshlrev_b32 v13, 4, v0"); e("v_add_u32 v15, s3, v13"); e("v_add_u32 v16, 20480, v15")
    e("s_mul_i32 s26, s23, 3072")
    e("s_waitcnt lgkmcnt(0)")
    e("s_and_b32 s3, s23, 1"); e("s_cmp_eq_u32 s3, 0")
    e("s_cselect_b32 s8, s4, s6"); e("s_cselect_b32 s9, s5, s7")
    e("s_mul_i32 s3, s20, 192")
    e("s_add_u32 s8, s8, s3"); e("s_addc_u32 s9, s9, 0"); e(f"s_sub_u32 s8, s8, {BIAS}"); e("s_subb_u32 s9, s9, 0")
    e(f"s_sub_u32 s10, {640*3072+BIAS}, s3"); e("s_mov_b32 s11, 0x20000")
    srd(P, 12, 16, 17, WS_BYTES)
    srd(P, 36, 18, 19, 1966080)
    ACC = 200; AR = 40; ASL = 12; BR = 88; BS = 9
    TA = [[20, 21, 22], [23, 24, 25], [26, 27, 28]]
    def acc_reg(t, ct): return ACC + (t*2 + ct)*4
    def tr_fn(n):
        ks, t = divmod(n, 6)
        st, kk = divmod(ks, 2)
        sett, so = divmod(st % NS, 2)
        off = so*ST + kk*12288 + (3072 if t >= 3 else 0)
        r = AR + (n % ASL)*4; a = TA[sett][t % 3]
        return [Ins(f"ds_read_b64_tr_b16 v[{r}:{r+1}], v{a} offset:{off}"),
                Ins(f"ds_read_b64_tr_b16 v[{r+2}:{r+3}], v{a} offset:{off+6144}")]
    def bload_fn(ks):
        b = BR + (ks % BS)*8
        return ([Ins(f"s_mov_b32 s28, {ks*1024}")],
                [Ins(f"buffer_load_dwordx4 v[{b+4*ct}:{b+4*ct+3}], v{15+ct}, s[12:15], s28 offen") for ct in range(2)])
    def dma_fn(st):
        return ([Ins(f"s_add_u32 m0, s26, {(st % NS)*ST}"), Ins(f"s_mov_b32 s29, {st*64*3072}")],
                [Ins(f"buffer_load_dwordx4 v{2+i}, s[8:11], s29 offen offset:{i*1024} lds") for i in range(3)])
    H = {'b': {}}
    if stamps: e("s_memtime s[42:43]")
    BPF = 8; DPF = 4
    L, D = dma_fn(0); P.many(L); P.many(D); H[0] = D[-1]
    for ks in range(2):
        L, D = bload_fn(ks); P.many(L); P.many(D); H['b'][ks] = D[-1]
    L, D = dma_fn(1); P.many(L); P.many(D); H[1] = D[-1]
    e("v_lshrrev_b32 v10, 4, v0")
    e("v_lshrrev_b32 v11, 2, v0"); e("v_lshlrev_b32 v11, 6, v11")
    e("v_and_b32 v12, 3, v0"); e("v_lshlrev_b32 v12, 3, v12"); e("v_add_u32 v11, v11, v12")
    e("v_and_b32 v12, 1, v10"); e("v_lshlrev_b32 v12, 5, v12")
    e("v_add_u32 v5, v11, v12"); e("v_xor_b32 v12, 32, v12"); e("v_add_u32 v6, v11, v12")
    e("s_lshl_b32 s3, s31, 11"); e("v_add_u32 v20, s3, v5"); e("v_add_u32 v21, s3, v6")
    e("s_cmp_eq_u32 s31, 0"); e("s_cselect_b64 vcc, -1, 0")
    e("v_cndmask_b32 v22, v6, v5, vcc"); e("v_add_u32 v22, 1024, v22")
    for sett in (1, 2):
        for tp in range(3): e(f"v_add_u32 v{TA[sett][tp]}, {2*sett*ST}, v{TA[0][tp]}")
    e("s_mul_i32 s3, s24, 49152"); e("s_mul_i32 s25, s20, 3072"); e("s_add_u32 s3, s3, s25"); e(f"s_add_u32 s3, s3, {WS_ACT}")
    e("v_add_u32 v7, s3, v13"); e("s_lshl_b32 s25, s31, 11"); e("v_add_u32 v17, s25, v7"); e("v_add_u32 v18, 49152, v17")
    e("s_lshl_b32 s25, s31, 3"); e("s_add_u32 s25, s25, 1024"); e("v_add_u32 v7, s25, v7"); e("v_add_u32 v8, 49152, v7")
    P.wait_vm(H[0]); e("s_barrier")
    PF = 6
    for n in range(PF):
        rr = tr_fn(n); P.many(rr); H.setdefault('tr', {})[n] = rr[-1]
    if stamps: e("s_memtime s[44:45]"); e("s_waitcnt lgkmcnt(0)")
    extra = []
    if pf_down:
        extra = [(Ins("s_lshr_b32 s33, s2, 3"), 150, 200), (Ins("s_lshl_b32 s33, s33, 3"), 150, 200), (Ins("s_add_u32 s33, s33, s23"), 150, 200),
                 (Ins("s_mul_i32 s33, s33, 7680"), 150, 200), (Ins("v_lshlrev_b32 v9, 7, v0"), 150, 200), (Ins("v_add_u32 v9, s33, v9"), 150, 200),
                 (NT("buffer_load_dword v14, v9, s[36:39], 0 offen"), 150, 200)]
    gemm_stream(P, 20, 6, 2, 2, acc_reg, AR, ASL, BR, BS, tr_fn, bload_fn, dma_fn, H, PF, BPF, DPF, 10, extra=extra)
    if stamps: e("s_memtime s[46:47]")
    for ct in range(2):
        for tp in range(3):
            g = acc_reg(tp, ct); up = acc_reg(3+tp, ct)
            for i in range(4): e(f"v_max_f32 v{g+i}, 0, v{g+i}")
            for i in range(4): e(f"v_mul_f32 v{g+i}, v{g+i}, v{up+i}")
            d = 40 + ct*8 + 2*tp
            e(f"v_cvt_pk_bf16_f32 v{d}, v{g}, v{g+1}"); e(f"v_cvt_pk_bf16_f32 v{d+1}, v{g+2}, v{g+3}")
        d = 40 + ct*8
        e(f"buffer_store_dwordx4 v[{d}:{d+3}], v{17+ct}, s[12:15], 0 offen sc1")
        e(f"buffer_store_dwordx2 v[{d+4}:{d+5}], v{7+ct}, s[12:15], 0 offen sc1")
    if stamps:
        e("s_waitcnt vmcnt(0)"); e("s_memtime s[48:49]")
        write_stamps(P, 5, 23, 12, 3)
    e("K5_END:")
    e("s_endpgm")
    P.finalize(auto_wait=auto)
    return P

def gen_k6c(stamps=False, auto=True):
    P = Prog(); e = P.e
    NS = 4; ST = 10240
    e("s_cmp_ge_u32 s2, 256"); e("s_cbranch_scc1 K6_END")
    e("s_load_dwordx2 s[4:5], s[0:1], 64")
    e("s_load_dwordx2 s[6:7], s[0:1], 88")
    e("s_load_dwordx2 s[16:17], s[0:1], 104")
    if stamps: e("s_memtime s[40:41]")
    e("s_and_b32 s20, s2, 7"); e("s_lshl_b32 s20, s20, 2"); e("s_lshr_b32 s3, s2, 6"); e("s_add_u32 s20, s20, s3")
    e("s_lshr_b32 s21, s2, 3"); e("s_and_b32 s21, s21, 7")
    e("v_lshrrev_b32 v1, 6, v0"); e("v_and_b32 v0, 63, v0")
    e("v_readfirstlane_b32 s23, v1")
    e("v_lshlrev_b32 v2, 4, v0"); e("v_add_u32 v6, 4096, v2")
    e("s_and_b32 s36, s23, 1"); e("s_lshr_b32 s37, s23, 1")
    e(f"s_mul_i32 s26, s37, {NS*ST}"); e("s_mul_i32 s3, s36, 5120"); e("s_add_u32 s39, s26, s3")
    e("s_mul_i32 s27, s37, 61440"); e("s_mul_i32 s3, s36, 5120"); e("s_add_u32 s27, s27, s3")
    e("s_mul_i32 s3, s21, 245760"); e("s_add_u32 s27, s27, s3"); e(f"s_add_u32 s27, s27, {WS_WD}")
    e("s_lshl_b32 s24, s20, 2"); e("s_lshl_b32 s3, s36, 1"); e("s_add_u32 s24, s24, s3")
    e("s_mul_i32 s3, s24, 49152"); e("s_mul_i32 s25, s37, 12288"); e("s_add_u32 s3, s3, s25"); e(f"s_add_u32 s3, s3, {WS_ACT}")
    e("v_lshlrev_b32 v10, 4, v0"); e("v_add_u32 v15, s3, v10"); e("v_add_u32 v16, 49152, v15")
    e("s_waitcnt lgkmcnt(0)")
    srd(P, 12, 16, 17, WS_BYTES); srd(P, 32, 6, 7, 2048*1280)
    ACC = 200; AR = 20; ASL = 10; BR = 60; BS = 12
    XR = 156; GBR = 164
    def acc_reg(t, ct): return ACC + (t*2 + ct)*4
    def tr_fn(n):
        ks, t = divmod(n, 5)
        st, kk = divmod(ks, 2)
        off = (st % NS)*ST + kk*5120 + t*32
        r = AR + (n % ASL)*4
        return [Ins(f"ds_read_b64_tr_b16 v[{r}:{r+1}], v7 offset:{off}"),
                Ins(f"ds_read_b64_tr_b16 v[{r+2}:{r+3}], v7 offset:{off+2560}")]
    def bload_fn(ks):
        b = BR + (ks % BS)*8
        return ([Ins(f"s_mov_b32 s28, {ks*1024}")],
                [Ins(f"buffer_load_dwordx4 v[{b+4*ct}:{b+4*ct+3}], v{15+ct}, s[12:15], s28 offen") for ct in range(2)])
    def dma_fn(st):
        L = [Ins(f"s_add_u32 m0, s39, {(st % NS)*ST}"), Ins(f"s_add_u32 s29, s27, {st*10240}")]
        D = [Ins(f"buffer_load_dwordx4 v2, s[12:15], s29 offen offset:{i*1024} lds") for i in range(4)]
        D.append(Ins(f"s_add_u32 m0, s39, {(st % NS)*ST + 4096}"))
        D.append(Ins(f"buffer_load_dwordx4 v6, s[12:15], s29 offen lds"))
        return L, D
    H = {'b': {}}
    if stamps: e("s_memtime s[42:43]")
    L, D = dma_fn(0); P.many(L); P.many(D); H[0] = D[-1]
    for ks in range(2):
        L, D = bload_fn(ks); P.many(L); P.many(D); H['b'][ks] = D[-1]
    L, D = dma_fn(1); P.many(L); P.many(D); H[1] = D[-1]
    for ks in range(2, 4):
        L, D = bload_fn(ks); P.many(L); P.many(D); H['b'][ks] = D[-1]
    e("v_lshrrev_b32 v11, 2, v0"); e("v_mul_u32_u24 v11, 160, v11")
    e("v_and_b32 v12, 3, v0"); e("v_lshlrev_b32 v12, 3, v12"); e("v_add_u32 v7, v11, v12"); e("v_add_u32 v7, s26, v7")
    e("s_mul_i32 s38, s37, 3"); e("s_cmp_eq_u32 s37, 3"); e("s_cselect_b32 s38, 8, s38")
    e("v_lshrrev_b32 v11, 4, v0"); e("v_lshlrev_b32 v13, 4, v11")
    e("v_and_b32 v12, 15, v0"); e("v_mul_u32_u24 v12, 1280, v12"); e("v_lshlrev_b32 v11, 3, v11"); e("v_add_u32 v12, v12, v11")
    for j in range(3):
        e(f"s_add_u32 s44, s38, {j}"); e("s_min_u32 s44, s44, 9")
        e("s_lshr_b32 s45, s44, 1"); e("s_and_b32 s46, s44, 1")
        e("s_mul_i32 s3, s21, 5"); e("s_add_u32 s3, s3, s45")
        e("s_add_u32 s47, s24, s46")
        e("s_mul_i32 s48, s47, 20480"); e("s_lshr_b32 s49, s3, 1"); e("s_lshl_b32 s49, s49, 10"); e("s_add_u32 s48, s48, s49")
        e("s_and_b32 s49, s3, 1"); e("s_lshl_b32 s49, s49, 3"); e("s_add_u32 s48, s48, s49"); e(f"s_add_u32 s48, s48, {WS_X1}")
        e(f"buffer_load_dwordx2 v[{XR+2*j}:{XR+2*j+1}], v10, s[12:15], s48 offen")
        e("s_lshl_b32 s49, s3, 6"); e(f"s_add_u32 s49, s49, {WS_GB}")
        e(f"buffer_load_dwordx4 v[{GBR+4*j}:{GBR+4*j+3}], v13, s[12:15], s49 offen")
        e("s_mul_i32 s48, s47, 20480"); e("s_lshl_b32 s49, s3, 5"); e(f"s_add_u32 s{50+j}, s48, s49")
    P.wait_vm(H[0]); e("s_barrier")
    PF = 5
    for n in range(PF):
        rr = tr_fn(n); P.many(rr); H.setdefault('tr', {})[n] = rr[-1]
    if stamps: e("s_memtime s[54:55]"); e("s_waitcnt lgkmcnt(0)"); e("s_mov_b32 s44, s54"); e("s_mov_b32 s45, s55")
    global GAP
    g0 = GAP; GAP = 2
    gemm_stream(P, 12, 5, 2, 2, acc_reg, AR, ASL, BR, BS, tr_fn, bload_fn, dma_fn, H, PF, 8, 3, 6, WG=1, early=True)
    GAP = g0
    if stamps: e("s_memtime s[46:47]")
    e("s_barrier")
    e("s_mul_i32 s3, s23, 10240"); e("v_add_u32 v11, s3, v10")
    for idx in range(10):
        a = ACC + idx*4
        e(f"ds_write_b128 v11, v[{a}:{a+3}] offset:{idx*1024}")
    e("s_waitcnt lgkmcnt(0)"); e("s_barrier")
    e("s_mul_i32 s3, s36, 10240"); e("s_lshl_b32 s25, s38, 10"); e("s_add_u32 s3, s3, s25"); e("v_add_u32 v11, s3, v10"); e("v_add_u32 v14, 40960, v11")
    def fin(j):
        y = 20 + j*16
        for q in range(4):
            e(f"ds_read_b128 v[{y+4*q}:{y+4*q+3}], v{11 if q < 2 else 14} offset:{(q & 1)*20480 + j*1024}")
        for q in range(1, 4):
            for i in range(4): e(f"v_add_f32 v{y+i}, v{y+i}, v{y+4*q+i}")
        x = XR + 2*j
        e(f"v_lshlrev_b32 v176, 16, v{x}"); e(f"v_and_b32 v177, 0xffff0000, v{x}")
        e(f"v_lshlrev_b32 v178, 16, v{x+1}"); e(f"v_and_b32 v179, 0xffff0000, v{x+1}")
        for i in range(4): e(f"v_fma_f32 v{y+i}, v{y+i}, v{GBR+4*j+i}, v{176+i}")
        e(f"v_cvt_pk_bf16_f32 v{y}, v{y}, v{y+1}"); e(f"v_cvt_pk_bf16_f32 v{y+1}, v{y+2}, v{y+3}")
        e(f"buffer_store_dwordx2 v[{y}:{y+1}], v12, s[32:35], s{50+j} offen")
    fin(0); fin(1)
    e("s_cmp_ge_u32 s37, 2"); e("s_cbranch_scc1 K6_FIN")
    fin(2)
    e("K6_FIN:")
    if stamps:
        e("s_waitcnt vmcnt(0)"); e("s_memtime s[48:49]")
        write_stamps(P, 5, 23, 12, 3)
    e("K6_END:")
    e("s_endpgm")
    P.finalize(auto_wait=auto)
    return P


def gen_k5e(stamps=False, auto=True):
    P = Prog(); e = P.e
    NS = 5; ST = 12288
    e("s_cmp_ge_u32 s2, 256"); e("s_cbranch_scc1 K5_END")
    e("s_load_dwordx2 s[16:17], s[0:1], 104")
    if stamps: e("s_memtime s[40:41]")
    e("s_and_b32 s20, s2, 7"); e("s_lshl_b32 s20, s20, 1"); e("s_lshr_b32 s3, s2, 3"); e("s_and_b32 s21, s3, 1"); e("s_add_u32 s20, s20, s21")
    e("s_lshr_b32 s21, s2, 4")
    e("v_lshrrev_b32 v1, 6, v0"); e("v_and_b32 v0, 63, v0")
    e("v_readfirstlane_b32 s23, v1")
    for i in range(3):
        e(f"v_add_u32 v10, {i*64}, v0")
        e("v_mul_u32_u24 v11, 2731, v10"); e("v_lshrrev_b32 v11, 16, v11")
        e("v_lshrrev_b32 v13, 1, v11"); e("v_and_b32 v13, 3, v13"); e("v_lshlrev_b32 v13, 1, v13")
        e("v_mul_u32_u24 v11, 24, v11"); e("v_sub_u32 v12, v10, v11")
        e("v_xor_b32 v12, v12, v13"); e("v_add_u32 v12, v12, v11"); e("v_lshlrev_b32 v12, 4, v12")
        e(f"v_add_u32 v{2+i}, {BIAS - i*1024}, v12")
    e("s_mul_i32 s3, s23, 3072")
    for i in range(3): e(f"v_add_u32 v{2+i}, s3, v{2+i}")
    e("s_lshl_b32 s3, s21, 3"); e("s_lshl_b32 s24, s23, 1"); e("s_add_u32 s24, s24, s3")
    e("s_mul_i32 s3, s24, 20480"); e(f"s_add_u32 s3, s3, {WS_H2F}")
    e("v_lshlrev_b32 v10, 4, v0"); e("v_add_u32 v15, s3, v10"); e("v_add_u32 v16, 20480, v15")
    e("s_mul_i32 s26, s23, 3072")
    e("s_waitcnt lgkmcnt(0)")
    e("s_mul_i32 s27, s20, 245760"); e(f"s_add_u32 s27, s27, {WS_WGU - BIAS}")
    srd(P, 12, 16, 17, WS_BYTES)
    ACC = 160; AR = 20; ASL = 12; BR = 68; BS = 6
    TAD = [5, 6, 7, 8]
    def acc_reg(t, ct): return ACC + (t*2 + ct)*4
    def tr_fn(n):
        ks, t = divmod(n, 12)
        pair = t
        off = (ks % NS)*ST + (pair >> 2)*128
        r = AR + (n % ASL)*4; a = TAD[pair & 3]
        return [Ins(f"ds_read_b64_tr_b16 v[{r}:{r+1}], v{a} offset:{off}"),
                Ins(f"ds_read_b64_tr_b16 v[{r+2}:{r+3}], v{a} offset:{off+6144}")]
    def bload_fn(ks):
        b = BR + (ks % BS)*8
        return ([Ins(f"s_mov_b32 s28, {ks*1024}")],
                [Ins(f"buffer_load_dwordx4 v[{b+4*ct}:{b+4*ct+3}], v{15+ct}, s[12:15], s28 offen") for ct in range(2)])
    def dma_fn(st):
        return ([Ins(f"s_add_u32 m0, s26, {(st % NS)*ST}"), Ins(f"s_add_u32 s29, s27, {st*12288}")],
                [Ins(f"buffer_load_dwordx4 v{2+i}, s[12:15], s29 offen offset:{i*1024} lds") for i in range(3)])
    H = {'b': {}}
    if stamps: e("s_memtime s[42:43]")
    BPF = 5; DPF = 4
    for st in range(2):
        L, D = dma_fn(st); P.many(L); P.many(D); H[st] = D[-1]
        L, D = bload_fn(st); P.many(L); P.many(D); H['b'][st] = D[-1]
    e("v_lshrrev_b32 v11, 2, v0")
    e("v_lshrrev_b32 v12, 1, v11"); e("v_and_b32 v12, 3, v12"); e("v_lshlrev_b32 v12, 5, v12")
    e("v_mul_u32_u24 v11, 384, v11")
    e("v_and_b32 v13, 3, v0"); e("v_lshlrev_b32 v13, 3, v13"); e("v_add_u32 v11, v11, v13")
    for q in range(4):
        e(f"v_xor_b32 v13, {q*32}, v12"); e(f"v_add_u32 v{5+q}, v11, v13")
    e("v_lshlrev_b32 v10, 4, v0")
    e("s_mul_i32 s3, s24, 49152"); e("s_mul_i32 s25, s20, 3072"); e("s_add_u32 s3, s3, s25"); e(f"s_add_u32 s3, s3, {WS_ACT}")
    e("v_add_u32 v17, s3, v10"); e("v_add_u32 v18, 49152, v17")
    P.wait_vm(H[0]); e("s_barrier")
    PF = 6
    for n in range(PF):
        rr = tr_fn(n); P.many(rr); H.setdefault('tr', {})[n] = rr[-1]
    if stamps: e("s_memtime s[44:45]"); e("s_waitcnt lgkmcnt(0)")
    gemm_stream(P, 20, 12, 2, 1, acc_reg, AR, ASL, BR, BS, tr_fn, bload_fn, dma_fn, H, PF, BPF, DPF, 20)
    if stamps: e("s_memtime s[46:47]")
    for u in range(3):
        e(f"s_mov_b32 s28, {u*1024}")
        for ct in range(2):
            dst = 20 + (u*2 + ct)*4
            for hh in range(2):
                j = 2*u + hh
                g = acc_reg(j, ct); up = acc_reg(6+j, ct)
                for i in range(4): e(f"v_max_f32 v{g+i}, 0, v{g+i}")
                for i in range(4): e(f"v_mul_f32 v{g+i}, v{g+i}, v{up+i}")
                e(f"v_cvt_pk_bf16_f32 v{dst+2*hh}, v{g}, v{g+1}")
                e(f"v_cvt_pk_bf16_f32 v{dst+2*hh+1}, v{g+2}, v{g+3}")
            e(f"buffer_store_dwordx4 v[{dst}:{dst+3}], v{17+ct}, s[12:15], s28 offen sc1")
    if stamps:
        e("s_waitcnt vmcnt(0)"); e("s_memtime s[48:49]")
        write_stamps(P, 5, 23, 12)
    e("K5_END:")
    e("s_endpgm")
    P.finalize(auto_wait=auto)
    return P

def write_stamps(P, n, sw, sws, sh=2):
    P.e("s_waitcnt lgkmcnt(0)")
    P.e(f"s_lshl_b32 s3, s2, {sh}"); P.e(f"s_add_u32 s3, s3, s{sw}"); P.e("s_lshl_b32 s3, s3, 6"); P.e(f"s_add_u32 s3, s3, {WS_STAMP}")
    for i in range(n):
        P.e(f"v_mov_b32 v1, s{40+2*i}")
        P.e(f"v_mov_b32 v2, s3")
        P.e(f"buffer_store_dword v1, v2, s[{sws}:{sws+3}], 0 offen offset:{4*i}")
        P.e("s_waitcnt vmcnt(0)")

if __name__ == "__main__":
    from k2gen import wrap
    k3 = gen_k3(stamps=True)
    print("k3 est", k3.estimate(), len(k3.final))
    open("k3.s", "w").write(wrap([("k3_kernel", k3.text(), 256, 256)], [("k3_kernel", 256, 256, 122880)]))
    for nm, fn, lds in (("k3", gen_k3b, 122880), ("k5", gen_k5b, 122880), ("k6", gen_k6b, 163840)):
        k = fn(stamps=True); print(nm, "b est", k.estimate(), len(k.final))
        open(nm + "b.s", "w").write(wrap([(nm + "_kernel", k.text(), 256, 256)], [(nm + "_kernel", 256, 512, lds)]))
    k = gen_k5e(stamps=True); print("k5e est", k.estimate(), len(k.final))
    open("k5e.s", "w").write(wrap([("k5_kernel", k.text(), 256, 256)], [("k5_kernel", 256, 256, 61440)]))
    for nm, fn, lds in (("k5", gen_k5c, 122880), ("k6", gen_k6c, 163840)):
        k = fn(stamps=True); print(nm, "c est", k.estimate(), len(k.final))
        open(nm + "c.s", "w").write(wrap([(nm + "_kernel", k.text(), 256, 256)], [(nm + "_kernel", 256, 512, lds)]))
    for nm, o in [("a", dict(dma=False, waits=False)), ("b", dict(bload=False, waits=False)), ("c", dict(waits=False)), ("d", dict(dma=False, bload=False, waits=False))]:
        GOPT.update(dict(dma=True, bload=True, tr=True, barrier=True, waits=True)); GOPT.update(o)
        k = gen_k6c(stamps=True, auto=False)
        open(f"k6c{nm}.s", "w").write(wrap([("k6_kernel", k.text(), 256, 256)], [("k6_kernel", 256, 512, 163840)]))
        k = gen_k5c(stamps=True, auto=False)
        open(f"k5c{nm}.s", "w").write(wrap([("k5_kernel", k.text(), 256, 256)], [("k5_kernel", 256, 512, 122880)]))
    GOPT.update(dict(dma=True, bload=True, tr=True, barrier=True, waits=True))
    k5 = gen_k5(stamps=True); print("k5 est", k5.estimate(), len(k5.final))
    open("k5.s", "w").write(wrap([("k5_kernel", k5.text(), 256, 256)], [("k5_kernel", 256, 256, 61440)]))
    k6 = gen_k6(stamps=True); print("k6 est", k6.estimate(), len(k6.final))
    open("k6.s", "w").write(wrap([("k6_kernel", k6.text(), 256, 256)], [("k6_kernel", 256, 256, 122880)]))
    for nm, o in [] and [("a", dict(dma=False, waits=False)), ("b", dict(bload=False, waits=False)), ("c", dict(waits=False)), ("d", dict(waits=False, barrier=False)), ("e", dict(waits=False, tr=False))]:
        GOPT.update(dict(dma=True, bload=True, tr=True, barrier=True, waits=True)); GOPT.update(o)
        k = gen_k3(stamps=True, auto=GOPT['waits'])
        open(f"k3{nm}.s", "w").write(wrap([("k3_kernel", k.text(), 256, 256)], [("k3_kernel", 256, 256, 122880)]))
```

```python
from asmgen import *
from k2gen import WS_MOD, WS_HF, WS_OF, WS_PART, WS_X1, WS_H2F, WS_ACT, WS_BYTES, WS_WD, WS_WGU, WS_CNT
C_SCALE = 192**-0.5 * 1.4426950408889634
import struct
def f2u(x): return struct.unpack('<I', struct.pack('<f', x))[0]

NSPLIT = 4

def srd(P, s, lo, hi, nbytes):
    P.e(f"s_mov_b32 s{s}, s{lo}"); P.e(f"s_mov_b32 s{s+1}, s{hi}")
    P.e(f"s_mov_b32 s{s+2}, {nbytes}"); P.e(f"s_mov_b32 s{s+3}, 0x20000")

def pf_role(P, name, nmain, npf, ranges):
    e = P.e
    e(f"{name}_PF:")
    e(f"s_cmp_ge_u32 s2, {nmain+npf}"); e(f"s_cbranch_scc1 {name}_END")
    e(f"s_sub_u32 s20, s2, {nmain}")
    e("v_lshlrev_b32 v1, 4, v0")
    for ri, (ko, boff, nbytes, total) in enumerate(ranges):
        per = -(-nbytes // (npf*4096))*4096
        e(f"s_load_dwordx2 s[4:5], s[0:1], {ko}")
        e("s_waitcnt lgkmcnt(0)")
        e("s_mov_b32 s8, s4"); e("s_mov_b32 s9, s5"); e(f"s_mov_b32 s10, {min(total, boff+nbytes)}"); e("s_mov_b32 s11, 0x20000")
        e(f"s_mul_i32 s21, s20, {per}"); e(f"s_add_u32 s21, s21, {boff}")
        for i in range(per // 4096):
            e(NT(f"buffer_load_dwordx4 v[4:7], v1, s[8:11], s21 offen"))
            e("s_add_u32 s21, s21, 4096")
    e("s_endpgm")

def pf_role_kv(P, name, nmain, npf, kos):
    e = P.e
    parts = npf // 32
    per = 196608 // parts
    e(f"s_sub_u32 s20, s2, {nmain}")
    e("s_and_b32 s22, s20, 31"); e("s_lshr_b32 s23, s20, 5")
    e(f"s_mul_i32 s22, s22, 786432"); e(f"s_mul_i32 s23, s23, {per}"); e("s_add_u32 s22, s22, s23"); e("s_add_u32 s22, s22, 589824")
    for ko in kos:
        e(f"s_load_dwordx2 s[4:5], s[0:1], {ko}")
        e("s_waitcnt lgkmcnt(0)")
        e("s_mov_b32 s8, s4"); e("s_mov_b32 s9, s5"); e(f"s_mov_b32 s10, 25165824"); e("s_mov_b32 s11, 0x20000")
        e("s_mov_b32 s21, s22")
        for i in range(per // 4096):
            e(NT(f"buffer_load_dwordx4 v[4:7], v1, s[8:11], s21 offen"))
            e("s_add_u32 s21, s21, 4096")

def gen_k0(prefetch=True):
    P = Prog(); e = P.e
    NWG = 30*NSPLIT
    e(f"s_cmp_ge_u32 s2, {NWG}"); e("s_cbranch_scc1 K0_PF")
    e("s_load_dwordx4 s[4:7], s[0:1], 72")
    e("s_load_dwordx2 s[16:17], s[0:1], 104")
    e("s_load_dwordx2 s[18:19], s[0:1], 24")
    e(f"s_mul_i32 s3, s2, {(65536+29)//30}"); e("s_lshr_b32 s20, s3, 16")
    e("s_mul_i32 s3, s20, 30"); e("s_sub_u32 s21, s2, s3")
    e("v_and_b32 v1, 15, v0")
    e("v_lshrrev_b32 v2, 4, v0")
    e(f"s_mul_i32 s3, s20, {640//NSPLIT}")
    e("v_add_u32 v3, s3, v2")
    e("v_lshlrev_b32 v4, 1, v3")
    e("s_mov_b32 s22, 7680")
    e("v_mul_lo_u32 v5, v3, s22")
    e("v_lshlrev_b32 v6, 4, v1")
    e("v_add_u32 v5, v5, v6")
    e("s_lshl_b32 s3, s21, 8"); e("v_add_u32 v5, s3, v5")
    e("s_waitcnt lgkmcnt(0)")
    srd(P, 8, 4, 5, 1280); srd(P, 12, 6, 7, 640*3840*2); srd(P, 24, 16, 17, WS_BYTES); srd(P, 28, 18, 19, 7864320)
    NR = 160//16
    for i in range(NR):
        e(f"buffer_load_ushort v{10+i}, v4, s[8:11], 0 offen offset:{32*i}")
    e(f"s_mov_b32 s23, 0")
    for i in range(NR):
        e(f"s_mov_b32 s23, {16*7680*i}")
        e(f"buffer_load_dwordx4 v[{24+4*i}:{27+4*i}], v5, s[12:15], s23 offen")
    for i in range(NR):
        r = 10+i
        e(f"v_lshlrev_b32 v{r}, 16, v{r}")
        e(f"v_mul_f32 v9, {f2u(-1.4426950408889634)}, v{r}")
        e("v_exp_f32 v9, v9")
        e("v_add_f32 v9, 1.0, v9")
        e("v_rcp_f32 v9, v9")
        e(f"v_mul_f32 v{r}, v{r}, v9")
        e(f"v_cvt_pk_bf16_f32 v{r}, v{r}, v{r}")
        e(f"v_and_b32 v{r}, 0xffff0000, v{r}")
    for j in range(8): e(f"v_mov_b32 v{70+j}, 0")
    for i in range(NR):
        for q in range(4):
            w = 24+4*i+q
            e(f"v_lshlrev_b32 v68, 16, v{w}")
            e(f"v_and_b32 v69, 0xffff0000, v{w}")
            e(f"v_fmac_f32 v{70+2*q}, v{10+i}, v68")
            e(f"v_fmac_f32 v{71+2*q}, v{10+i}, v69")
    e("v_lshlrev_b32 v6, 5, v1")
    e("v_lshlrev_b32 v7, 9, v2")
    e("v_add_u32 v6, v6, v7")
    e("ds_write_b128 v6, v[70:73]"); e("ds_write_b128 v6, v[74:77] offset:16")
    e("s_waitcnt lgkmcnt(0)"); e("s_barrier")
    e("v_cmp_gt_u32 vcc, 128, v0")
    e("s_and_saveexec_b64 s[32:33], vcc")
    e("s_cbranch_execz K0_END")
    e("v_lshlrev_b32 v6, 2, v0")
    for r in range(16): e(f"ds_read_b32 v{30+r}, v6 offset:{512*r}")
    for r in range(1, 16): e(f"v_add_f32 v30, v30, v{30+r}")
    e("s_mul_i32 s3, s20, 15360"); e("s_lshl_b32 s23, s21, 9"); e("s_add_u32 s3, s3, s23"); e(f"s_add_u32 s3, s3, {WS_MOD}")
    e("v_add_u32 v6, s3, v6")
    e("buffer_store_dword v30, v6, s[24:27], 0 offen")
    e("K0_END:")
    e("s_endpgm")
    pf_role(P, "K0", NWG, 128, [(24, 0, 7864320, 7864320)])
    P.finalize()
    return P

def load_mod_to_lds(P, idx_list, scale_fn, tid='v0', tbase=20, lds_base=0, store_idx={}):
    e = P.e
    e(f"v_lshlrev_b32 v{tbase}, 4, {tid}")
    r = tbase+4
    for n, idx in enumerate(idx_list):
        for p in range(NSPLIT):
            off = WS_MOD + (p*3840 + idx*640)*4
            e(f"s_mov_b32 s34, {off}")
            e(f"buffer_load_dwordx4 v[{r+(n*NSPLIT+p)*4}:{r+(n*NSPLIT+p)*4+3}], v{tbase}, s[24:27], s34 offen")
    for n, idx in enumerate(idx_list):
        b = r + n*NSPLIT*4
        for p in range(1, NSPLIT):
            for i in range(4): e(f"v_add_f32 v{b+i}, v{b+i}, v{b+4*p+i}")
        for i in range(4):
            e(f"v_cvt_pk_bf16_f32 v{b+i}, v{b+i}, v{b+i}")
            e(f"v_and_b32 v{b+i}, 0xffff0000, v{b+i}")
            scale_fn(P, n, b+i)
        if n in store_idx:
            e(f"s_mov_b32 s34, {store_idx[n]}")
            e(f"buffer_store_dwordx4 v[{b}:{b+3}], v{tbase}, s[24:27], s34 offen")
        else:
            e(f"ds_write_b128 v{tbase}, v[{b}:{b+3}] offset:{lds_base + n*4096}")

def row_reduce(P, val, red_base, tmp, addr_w, addr_r):
    e = P.e
    e(f"ds_write_b32 v{addr_w}, v{val} offset:{red_base}")
    e("s_waitcnt lgkmcnt(0)"); e("s_barrier")
    for q in range(4): e(f"ds_read_b128 v[{tmp+4*q}:{tmp+4*q+3}], v{addr_r} offset:{red_base+16*q}")
    e(f"v_add_f32 v{val}, v{tmp}, v{tmp+1}")
    for i in range(2, 16): e(f"v_add_f32 v{val}, v{val}, v{tmp+i}")

def ln_common(P, X, n, a1_lds, a0_lds, out_regs, w_sgpr, eps=1e-5):
    e = P.e
    RED0, RED1 = 12288, 13312
    e("v_lshlrev_b32 v4, 6, v2"); e("v_lshlrev_b32 v5, 2, v3"); e("v_add_u32 v5, v4, v5")
    e(f"s_lshl_b32 s3, s{w_sgpr}, 4"); e("v_add_u32 v5, s3, v5")
    e(f"v_add_f32 v6, v{X}, v{X+1}")
    for i in range(2, n): e(f"v_add_f32 v6, v6, v{X+i}")
    T = 200
    row_reduce(P, 6, RED0, T, 5, 4)
    e(f"v_mul_f32 v6, {f2u(1/640)}, v6")
    for i in range(n): e(f"v_sub_f32 v{X+i}, v{X+i}, v6")
    e(f"v_mul_f32 v7, v{X}, v{X}")
    for i in range(1, n): e(f"v_fmac_f32 v7, v{X+i}, v{X+i}")
    row_reduce(P, 7, RED1, T, 5, 4)
    e(f"v_mul_f32 v7, {f2u(1/640)}, v7")
    e(f"v_add_f32 v7, {f2u(eps)}, v7")
    e("v_rsq_f32 v7, v7")
    e(f"s_mul_i32 s3, s{w_sgpr}, {5*32*4}")
    e("v_lshlrev_b32 v8, 4, v3"); e("v_add_u32 v8, s3, v8")
    for j in range(5):
        for hh in range(2):
            off = j*128 + hh*64
            e(f"ds_read_b128 v[{T}:{T+3}], v8 offset:{a1_lds+off}")
            e(f"ds_read_b128 v[{T+4}:{T+7}], v8 offset:{a0_lds+off}")
            b = X + j*8 + hh*4
            for i in range(4):
                e(f"v_mul_f32 v{b+i}, v{b+i}, v7")
                e(f"v_fma_f32 v{b+i}, v{b+i}, v{T+i}, v{T+4+i}")
            e(f"v_cvt_pk_bf16_f32 v{out_regs+j*4+hh*2}, v{b}, v{b+1}")
            e(f"v_cvt_pk_bf16_f32 v{out_regs+j*4+hh*2+1}, v{b+2}, v{b+3}")

def load_x_pieces(P, X, raw, srd_x):
    e = P.e
    for j in range(5):
        for hh in range(2):
            e(f"buffer_load_dwordx2 v[{raw+(j*2+hh)*2}:{raw+(j*2+hh)*2+1}], v9, s[{srd_x}:{srd_x+3}], 0 offen offset:{j*64+hh*32}")

def unpack_x(P, X, raw):
    e = P.e
    for j in range(10):
        for q in range(2):
            e(f"v_lshlrev_b32 v{X+j*4+q*2}, 16, v{raw+j*2+q}")
            e(f"v_and_b32 v{X+j*4+q*2+1}, 0xffff0000, v{raw+j*2+q}")

def gen_k1(prefetch=True):
    P = Prog(); e = P.e
    e("s_cmp_ge_u32 s2, 128"); e("s_cbranch_scc1 K1_PF")
    e("s_load_dwordx2 s[4:5], s[0:1], 0")
    e("s_load_dwordx2 s[16:17], s[0:1], 104")
    e("v_lshrrev_b32 v1, 6, v0"); e("v_and_b32 v10, 63, v0")
    e("v_readfirstlane_b32 s20, v1")
    e("v_and_b32 v2, 15, v10"); e("v_lshrrev_b32 v3, 4, v10")
    e("s_lshl_b32 s3, s2, 4"); e("v_add_u32 v9, s3, v2"); e("v_mul_u32_u24 v9, 1280, v9")
    e("v_lshlrev_b32 v11, 3, v3"); e("v_add_u32 v9, v9, v11")
    e("s_mul_i32 s3, s20, 320"); e("v_add_u32 v9, s3, v9")
    e("s_waitcnt lgkmcnt(0)")
    srd(P, 8, 4, 5, 2048*1280); srd(P, 24, 16, 17, WS_BYTES)
    X = 100; RAW = 60
    load_x_pieces(P, X, RAW, 8)
    def sc(P, n, r):
        if n == 0:
            P.e(f"v_mul_f32 v{r}, {f2u(C_SCALE)}, v{r}")
        else:
            P.e(f"v_add_f32 v{r}, 1.0, v{r}")
            P.e(f"v_mul_f32 v{r}, {f2u(C_SCALE)}, v{r}")
    load_mod_to_lds(P, [0, 1], sc)
    unpack_x(P, X, RAW)
    OUT = 160
    ln_common(P, X, 40, 4096, 0, OUT, 20)
    e("s_mul_i32 s3, s2, 20480"); e("s_mul_i32 s21, s20, 5120"); e("s_add_u32 s3, s3, s21"); e(f"s_add_u32 s3, s3, {WS_HF}")
    e("v_lshlrev_b32 v11, 4, v10"); e("v_add_u32 v11, s3, v11")
    for j in range(5):
        e(f"buffer_store_dwordx4 v[{OUT+4*j}:{OUT+4*j+3}], v11, s[24:27], 0 offen offset:{j*1024 if j<4 else 0}" if j < 4 else f"s_mov_b32 s21, 4096")
    e(f"buffer_store_dwordx4 v[{OUT+16}:{OUT+19}], v11, s[24:27], s21 offen")
    e("K1_END:")
    e("s_endpgm")
    e("K1_PF:")
    e("s_cmp_ge_u32 s2, 256"); e("s_cbranch_scc1 K1_END")
    e("v_lshlrev_b32 v1, 4, v0")
    pf_role_kv(P, "K1", 128, 128, [8, 16])
    e("s_endpgm")
    P.finalize()
    return P

def gen_k4(part_bf16=False, nsplit=4):
    P = Prog(); e = P.e
    e("s_cmp_ge_u32 s2, 128"); e("s_cbranch_scc1 K4_PF")
    e("s_load_dwordx2 s[4:5], s[0:1], 0")
    e("s_load_dwordx2 s[16:17], s[0:1], 104")
    e("v_lshrrev_b32 v1, 6, v0"); e("v_and_b32 v10, 63, v0")
    e("v_readfirstlane_b32 s20, v1")
    e("v_and_b32 v2, 15, v10"); e("v_lshrrev_b32 v3, 4, v10")
    e("s_lshl_b32 s3, s2, 4"); e("v_add_u32 v9, s3, v2"); e("v_mul_u32_u24 v9, 1280, v9")
    e("v_lshlrev_b32 v11, 3, v3"); e("v_add_u32 v9, v9, v11")
    e("s_mul_i32 s3, s20, 320"); e("v_add_u32 v9, s3, v9")
    e("s_mul_i32 s3, s2, 20480"); e("s_mul_i32 s21, s20, 5120"); e("s_add_u32 s3, s3, s21"); e(f"s_add_u32 s3, s3, {WS_PART}")
    e("v_lshlrev_b32 v12, 4, v10"); e("v_add_u32 v12, s3, v12")
    e("s_waitcnt lgkmcnt(0)")
    srd(P, 8, 4, 5, 2048*1280); srd(P, 24, 16, 17, WS_BYTES)
    X = 100; RAW = 60; PRAW = 140
    load_x_pieces(P, X, RAW, 8)
    def sc(P, n, r):
        if n == 2: P.e(f"v_add_f32 v{r}, 1.0, v{r}")
    load_mod_to_lds(P, [2, 3, 4, 5], sc, tbase=160, store_idx={3: WS_MOD + 0x20000})
    ACC = 20
    PR = 232 - 80
    for p in range(nsplit):
        for j in range(5):
            o = p*128*20480 + j*1024
            e(f"s_mov_b32 s21, {o}")
            e(f"buffer_load_dwordx4 v[{PRAW+p*20+4*j}:{PRAW+p*20+4*j+3}], v12, s[24:27], s21 offen")
    for p in range(nsplit):
        for q in range(20):
            r = PRAW + p*20 + q
            if p == 0:
                e(f"v_lshlrev_b32 v{ACC+2*q}, 16, v{r}"); e(f"v_and_b32 v{ACC+2*q+1}, 0xffff0000, v{r}")
            else:
                e(f"v_lshlrev_b32 v14, 16, v{r}"); e(f"v_and_b32 v15, 0xffff0000, v{r}")
                e(f"v_add_f32 v{ACC+2*q}, v{ACC+2*q}, v14"); e(f"v_add_f32 v{ACC+2*q+1}, v{ACC+2*q+1}, v15")
    unpack_x(P, X, RAW)
    e("s_waitcnt lgkmcnt(0)"); e("s_barrier")
    e(f"s_mul_i32 s3, s20, 640"); e("v_lshlrev_b32 v8, 4, v3"); e("v_add_u32 v8, s3, v8")
    T = 200
    OUTX = 160
    for j in range(10):
        e(f"ds_read_b128 v[{T}:{T+3}], v8 offset:{j*64}")
        for i in range(4):
            e(f"v_fma_f32 v{X+j*4+i}, v{ACC+j*4+i}, v{T+i}, v{X+j*4+i}")
        e(f"v_cvt_pk_bf16_f32 v{OUTX+j*2}, v{X+j*4}, v{X+j*4+1}")
        e(f"v_cvt_pk_bf16_f32 v{OUTX+j*2+1}, v{X+j*4+2}, v{X+j*4+3}")
        for q in range(2):
            e(f"v_lshlrev_b32 v{X+j*4+q*2}, 16, v{OUTX+j*2+q}")
            e(f"v_and_b32 v{X+j*4+q*2+1}, 0xffff0000, v{OUTX+j*2+q}")
    e("s_mul_i32 s3, s2, 20480"); e("s_mul_i32 s21, s20, 5120"); e("s_add_u32 s3, s3, s21")
    e("v_lshlrev_b32 v11, 4, v10"); e("v_add_u32 v11, s3, v11")
    for j in range(5):
        e(f"s_mov_b32 s21, {WS_X1 + j*1024}")
        e(f"buffer_store_dwordx4 v[{OUTX+4*j}:{OUTX+4*j+3}], v11, s[24:27], s21 offen")
    OUT = 20
    ln_common(P, X, 40, 2*4096, 1*4096, OUT, 20)
    for j in range(5):
        e(f"s_mov_b32 s21, {WS_H2F + j*1024}")
        e(f"buffer_store_dwordx4 v[{OUT+4*j}:{OUT+4*j+3}], v11, s[24:27], s21 offen")
    e("K4_END:")
    e("s_endpgm")
    pf_role(P, "K4", 128, 128, [(48, 0, 1966080, 1966080), (56, 0, 1966080, 1966080), (64, 0, 1966080, 1966080)])
    P.finalize()
    return P

WS_MODF = WS_MOD + 0x10000
NGEMV = 30*NSPLIT
NLN = 128
N01 = NGEMV + NLN

SLEEP = 6
CODE_BYTES = 131072
DIAG = False
DIRECT = False
def gen_k01(pf=('wq',), npf=256):
    P = Prog(); e = P.e
    e("s_load_dwordx4 s[4:7], s[0:1], 72")
    e("s_load_dwordx4 s[16:19], s[0:1], 96")
    e("s_load_dwordx2 s[38:39], s[0:1], 0")
    e("s_load_dwordx2 s[40:41], s[0:1], 24")
    e("s_cmp_lt_u32 s2, 40"); e("s_cbranch_scc1 K01_GA")
    e("s_cmp_lt_u32 s2, 168"); e("s_cbranch_scc1 K01_LN")
    e("s_cmp_ge_u32 s2, 248"); e("s_cbranch_scc1 K01_END")
    e("s_sub_u32 s3, s2, 168"); e(f"s_mul_i32 s20, s3, {(65536+19)//20}"); e("s_lshr_b32 s20, s20, 16")
    e("s_mul_i32 s21, s20, 20"); e("s_sub_u32 s21, s3, s21"); e("s_add_u32 s21, s21, 10")
    e("s_branch K01_G")
    e("K01_GA:")
    e("s_and_b32 s20, s2, 3"); e("s_lshr_b32 s21, s2, 2")
    e("K01_G:")
    if DIAG: e("s_memrealtime s[60:61]")
    e("v_and_b32 v1, 15, v0"); e("v_lshrrev_b32 v2, 4, v0")
    e(f"s_mul_i32 s3, s20, {640//NSPLIT}")
    e("v_add_u32 v3, s3, v2"); e("v_lshlrev_b32 v4, 1, v3")
    e("s_mov_b32 s22, 7680"); e("v_mul_lo_u32 v5, v3, s22")
    e("v_lshlrev_b32 v6, 4, v1"); e("v_add_u32 v5, v5, v6")
    e("s_lshl_b32 s3, s21, 8"); e("v_add_u32 v5, s3, v5")
    e("s_waitcnt lgkmcnt(0)")
    srd(P, 8, 4, 5, 1280); srd(P, 12, 6, 7, 640*3840*2); srd(P, 24, 18, 19, WS_BYTES); srd(P, 28, 16, 17, 256)
    if DIAG: e("s_memrealtime s[62:63]")
    NR = 160//16
    for i in range(NR):
        e(f"s_mov_b32 s23, {16*7680*i}")
        e(f"buffer_load_dwordx4 v[{24+4*i}:{27+4*i}], v5, s[12:15], s23 offen")
    for i in range(NR):
        e(f"buffer_load_ushort v{10+i}, v4, s[8:11], 0 offen offset:{32*i}")
    for i in range(NR): e(f"v_lshlrev_b32 v{10+i}, 16, v{10+i}")
    for i in range(NR): e(f"v_mul_f32 v{80+i}, {f2u(-1.4426950408889634)}, v{10+i}")
    for i in range(NR): e(f"v_exp_f32 v{80+i}, v{80+i}")
    for i in range(NR): e(f"v_add_f32 v{80+i}, 1.0, v{80+i}")
    for i in range(NR): e(f"v_rcp_f32 v{80+i}, v{80+i}")
    for i in range(NR): e(f"v_mul_f32 v{10+i}, v{10+i}, v{80+i}")
    for i in range(NR): e(f"v_cvt_pk_bf16_f32 v{10+i}, v{10+i}, v{10+i}")
    for i in range(NR): e(f"v_lshrrev_b32 v{80+i}, 16, v{10+i}")
    for i in range(NR): e(f"v_and_b32 v{10+i}, 0xffff0000, v{10+i}")
    for j in range(8): e(f"v_mov_b32 v{70+j}, 0")
    for i in range(NR):
        for q in range(4):
            w = 24+4*i+q
            e(f"v_dot2c_f32_bf16 v{70+2*q}, v{w}, v{80+i}"); e(f"v_dot2c_f32_bf16 v{71+2*q}, v{w}, v{10+i}")
    if DIAG: e("s_memrealtime s[64:65]")
    e("v_lshlrev_b32 v6, 5, v1"); e("v_lshlrev_b32 v7, 9, v2"); e("v_add_u32 v6, v6, v7")
    e("ds_write_b128 v6, v[70:73]"); e("ds_write_b128 v6, v[74:77] offset:16")
    e("s_waitcnt lgkmcnt(0)"); e("s_barrier")
    e("v_cmp_gt_u32 vcc, 64, v0")
    e("s_and_saveexec_b64 s[32:33], vcc")
    e("s_cbranch_execz K01_PF")
    e("v_lshlrev_b32 v6, 3, v0")
    for r in range(16): e(f"ds_read_b64 v[{30+2*r}:{31+2*r}], v6 offset:{512*r}")
    for r in (8, 4, 2, 1):
        for q in range(r): e(f"v_pk_add_f32 v[{30+2*q}:{31+2*q}], v[{30+2*q}:{31+2*q}], v[{30+2*(q+r)}:{31+2*(q+r)}]")
    e("s_mul_i32 s3, s20, 15360"); e("s_lshl_b32 s23, s21, 9"); e("s_add_u32 s3, s3, s23"); e(f"s_add_u32 s3, s3, {WS_MOD}")
    e("v_add_u32 v6, s3, v6")
    e("buffer_store_dwordx2 v[30:31], v6, s[24:27], 0 offen sc1")
    e("s_waitcnt vmcnt(0)")
    if DIAG: e("s_memrealtime s[66:67]")
    e("s_cmp_ge_u32 s21, 10"); e("s_cbranch_scc1 K01_END")
    e("v_cmp_eq_u32 vcc, 0, v0")
    e("s_and_saveexec_b64 s[32:33], vcc")
    e("s_cbranch_execz K01_END")
    e("v_mov_b32 v7, 1"); e("v_mov_b32 v8, 0")
    if DIRECT:
        e("buffer_atomic_add v7, v8, s[28:31], 0 offen sc1")
    else:
        e("buffer_atomic_add v7, v8, s[28:31], 0 offen sc0 sc1")
        e("s_waitcnt vmcnt(0)")
        if DIAG:
            e("s_memrealtime s[68:69]"); e("s_waitcnt lgkmcnt(0)")
            e("s_lshl_b32 s3, s2, 5"); e(f"s_add_u32 s3, s3, {0x5000000 + 0x80000}")
            for q in range(5): e(f"v_mov_b32 v{40+q}, s{60+2*q}")
            e("v_mov_b32 v46, s3")
            e("buffer_store_dwordx4 v[40:43], v46, s[24:27], 0 offen"); e("buffer_store_dword v44, v46, s[24:27], 0 offen offset:16")
        e("v_readfirstlane_b32 s22, v7"); e("s_nop 3")
        e(f"s_cmp_lg_u32 s22, {10*NSPLIT-1}"); e("s_cbranch_scc1 K01_END")
        e("v_mov_b32 v8, 128"); e("v_mov_b32 v7, 1")
        e("buffer_store_dword v7, v8, s[28:31], 0 offen sc1")

    e("K01_END:")
    e("s_endpgm")
    e("K01_LN:")
    e(f"s_sub_u32 s2, s2, 40")
    e("v_lshrrev_b32 v1, 6, v0"); e("v_and_b32 v10, 63, v0")
    e("v_readfirstlane_b32 s20, v1")
    e("v_and_b32 v2, 15, v10"); e("v_lshrrev_b32 v3, 4, v10")
    e("s_lshl_b32 s3, s2, 4"); e("v_add_u32 v9, s3, v2"); e("v_mul_u32_u24 v9, 1280, v9")
    e("v_lshlrev_b32 v11, 3, v3"); e("v_add_u32 v9, v9, v11")
    e("s_mul_i32 s3, s20, 320"); e("v_add_u32 v9, s3, v9")
    e("s_waitcnt lgkmcnt(0)")
    srd(P, 8, 38, 39, 2048*1280); srd(P, 24, 18, 19, WS_BYTES); srd(P, 28, 16, 17, 256)
    if DIAG: e("s_memrealtime s[60:61]")
    X = 100; RAW = 60; T = 200
    load_x_pieces(P, X, RAW, 8)
    e("s_cmp_lg_u32 s2, 0"); e("s_cbranch_scc1 K01_NOZ")
    e("v_min_u32 v12, 63, v0"); e("v_lshlrev_b32 v12, 7, v12"); e("v_mov_b32 v13, 0"); e(f"s_mov_b32 s21, {WS_CNT}")
    e("buffer_store_dword v13, v12, s[24:27], s21 offen sc1")
    e(f"s_mov_b32 s21, {WS_CNT + 8192}")
    e("buffer_store_dword v13, v12, s[24:27], s21 offen sc1")
    e("K01_NOZ:")
    unpack_x(P, X, RAW)
    RED0, RED1 = 12288, 13312
    e("v_lshlrev_b32 v4, 6, v2"); e("v_lshlrev_b32 v5, 2, v3"); e("v_add_u32 v5, v4, v5")
    e(f"s_lshl_b32 s3, s20, 4"); e("v_add_u32 v5, s3, v5")
    e(f"v_add_f32 v6, v{X}, v{X+1}")
    for i in range(2, 40): e(f"v_add_f32 v6, v6, v{X+i}")
    row_reduce(P, 6, RED0, T, 5, 4)
    e(f"v_mul_f32 v6, {f2u(1/640)}, v6")
    for i in range(40): e(f"v_sub_f32 v{X+i}, v{X+i}, v6")
    e(f"v_mul_f32 v7, v{X}, v{X}")
    for i in range(1, 40): e(f"v_fmac_f32 v7, v{X+i}, v{X+i}")
    row_reduce(P, 7, RED1, T, 5, 4)
    e(f"v_mul_f32 v7, {f2u(1/640)}, v7"); e(f"v_add_f32 v7, {f2u(1e-5)}, v7"); e("v_rsq_f32 v7, v7")
    e("s_nop 0")
    for i in range(40): e(f"v_mul_f32 v{X+i}, v{X+i}, v7")
    if DIAG: e("s_memrealtime s[62:63]")
    e("s_cmp_lg_u32 s20, 0"); e("s_cbranch_scc1 K01_GO")
    e(f"s_mov_b32 s35, {10*NSPLIT if DIRECT else 1}")
    e(f"v_mov_b32 v12, {0 if DIRECT else 128}"); e("s_mov_b32 s21, 0")
    e("K01_POLL:")
    e("buffer_load_dword v13, v12, s[28:31], 0 offen sc1")
    e("s_waitcnt vmcnt(0)")
    e("v_readfirstlane_b32 s22, v13")
    e("s_add_u32 s21, s21, 1")
    e(f"s_cmp_ge_u32 s22, s35"); e("s_cbranch_scc1 K01_GO")
    e(f"s_sleep {SLEEP}")
    e("s_cmp_lt_u32 s21, 0x4000"); e("s_cbranch_scc1 K01_POLL")
    e("K01_GO:")
    e("s_barrier")
    if DIAG: e("s_memrealtime s[64:65]")
    tb = 20
    e(f"v_lshlrev_b32 v{tb}, 4, v0"); e(f"v_min_u32 v{tb+2}, 2544, v{tb}")
    r = 24
    for n, idx in enumerate([0, 1]):
        for p in range(NSPLIT):
            e(f"s_mov_b32 s34, {WS_MOD + (p*3840 + idx*640)*4}")
            e(f"buffer_load_dwordx4 v[{r+(n*NSPLIT+p)*4}:{r+(n*NSPLIT+p)*4+3}], v{tb+2}, s[24:27], s34 offen sc1")
    for n in range(2):
        b = r + n*NSPLIT*4
        for p in range(1, NSPLIT):
            for i in range(4): e(f"v_add_f32 v{b+i}, v{b+i}, v{b+4*p+i}")
        for i in range(4):
            e(f"v_cvt_pk_bf16_f32 v{b+i}, v{b+i}, v{b+i}"); e(f"v_and_b32 v{b+i}, 0xffff0000, v{b+i}")
            if n == 1: e(f"v_add_f32 v{b+i}, 1.0, v{b+i}")
            e(f"v_mul_f32 v{b+i}, {f2u(C_SCALE)}, v{b+i}")
        e(f"ds_write_b128 v{tb}, v[{b}:{b+3}] offset:{n*4096}")
    e("s_waitcnt lgkmcnt(0)"); e("s_barrier")
    if DIAG: e("s_memrealtime s[66:67]")
    e(f"s_mul_i32 s3, s20, {5*32*4}")
    e("v_lshlrev_b32 v8, 4, v3"); e("v_add_u32 v8, s3, v8")
    OUT = 160
    for j in range(5):
        for hh in range(2):
            off = j*128 + hh*64; k = (j*2+hh) % 2
            t = T + 8*k
            e(f"ds_read_b128 v[{t}:{t+3}], v8 offset:{4096+off}")
            e(f"ds_read_b128 v[{t+4}:{t+7}], v8 offset:{off}")
            b = X + j*8 + hh*4
            for i in range(4): e(f"v_fma_f32 v{b+i}, v{b+i}, v{t+i}, v{t+4+i}")
            e(f"v_cvt_pk_bf16_f32 v{OUT+j*4+hh*2}, v{b}, v{b+1}")
            e(f"v_cvt_pk_bf16_f32 v{OUT+j*4+hh*2+1}, v{b+2}, v{b+3}")
    e("s_mul_i32 s3, s2, 20480"); e("s_mul_i32 s21, s20, 5120"); e("s_add_u32 s3, s3, s21"); e(f"s_add_u32 s3, s3, {WS_HF}")
    e("v_lshlrev_b32 v11, 4, v10"); e("v_add_u32 v11, s3, v11")
    for j in range(5):
        e(f"s_mov_b32 s21, {j*1024}")
        e(f"buffer_store_dwordx4 v[{OUT+4*j}:{OUT+4*j+3}], v11, s[24:27], s21 offen sc1")
    if DIAG:
        e("s_waitcnt vmcnt(0)"); e("s_memrealtime s[68:69]"); e("s_waitcnt lgkmcnt(0)")
        e("s_add_u32 s3, s2, 40"); e("s_lshl_b32 s3, s3, 5"); e(f"s_add_u32 s3, s3, {0x5000000 + 0x80000}")
        for q in range(5): e(f"v_mov_b32 v{40+q}, s{60+2*q}")
        e("v_mov_b32 v46, s3"); e("s_mov_b64 exec, 1")
        e("buffer_store_dwordx4 v[40:43], v46, s[24:27], 0 offen"); e("buffer_store_dword v44, v46, s[24:27], 0 offen offset:16")
    e("s_endpgm")
    e("K01_PF:")
    e("s_mov_b64 exec, -1")
    e("s_and_b32 s21, s2, 7")
    e("s_lshr_b32 s22, s2, 3"); e("s_cmp_lt_u32 s2, 40"); e("s_cselect_b32 s3, 0, 16"); e("s_sub_u32 s22, s22, s3")
    e("v_subrev_u32 v1, 64, v0")
    if 'code' in pf:
        e("s_getpc_b64 s[4:5]")
        e("K01_PC:")
        e("s_add_u32 s4, s4, k2_kernel-K01_PC"); e("s_addc_u32 s5, s5, 0")
        e("s_mul_i32 s3, s22, 9216"); e("v_lshlrev_b32 v2, 4, v1"); e("v_add_u32 v2, s3, v2")
        e("s_mov_b32 s23, K_TEXT_END-k2_kernel-16")
        for r_ in range(3):
            e("v_min_u32 v3, s23, v2")
            e(NT("global_load_dwordx4 v[4:7], v3, s[4:5]"))
            e(f"v_add_u32 v2, 3072, v2")
    if 'repack' in pf:
        e("s_cmp_lt_u32 s2, 40"); e("s_cselect_b32 s3, 0, 128"); e("s_sub_u32 s36, s2, s3")
        e("s_load_dwordx4 s[44:47], s[0:1], 48"); e("s_load_dwordx2 s[48:49], s[0:1], 64"); e("s_waitcnt lgkmcnt(0)")
        e("s_lshl_b32 s37, s36, 10")
        for m, (lo, kind) in enumerate(((48, 'd'), (44, 'g'), (46, 'u'))):
            srd(P, 8, lo, lo+1, 1966080)
            for r_ in range(6):
                e(f"v_add_u32 v10, {r_*192}, v1")
                e("v_cmp_gt_u32 vcc, 1024, v10"); e("v_add_u32 v10, s37, v10")
                e("v_lshlrev_b32 v11, 4, v10"); e("v_mov_b32 v12, 0x7ff00000"); e("v_cndmask_b32 v11, v12, v11, vcc")
                e(f"buffer_load_dwordx4 v[{60+m*24+4*r_}:{63+m*24+4*r_}], v11, s[8:11], 0 offen")
                if kind == 'd':
                    e("s_mov_b32 s3, 53687092"); e("v_mul_hi_u32 v13, v10, s3")
                    e("v_mul_u32_u24 v14, 80, v13"); e("v_sub_u32 v14, v10, v14")
                    e("v_mul_u32_u24 v15, 6554, v14"); e("v_lshrrev_b32 v15, 16, v15")
                    e("v_mul_u32_u24 v16, 10, v15"); e("v_sub_u32 v16, v14, v16")
                    e("v_mul_u32_u24 v15, 245760, v15"); e("v_mul_u32_u24 v13, 160, v13")
                else:
                    e("s_mov_b32 s3, 22369622"); e("v_mul_hi_u32 v13, v10, s3")
                    e("v_mul_u32_u24 v14, 192, v13"); e("v_sub_u32 v14, v10, v14")
                    e("v_mul_u32_u24 v15, 5462, v14"); e("v_lshrrev_b32 v15, 16, v15")
                    e("v_mul_u32_u24 v16, 12, v15"); e("v_sub_u32 v16, v14, v16")
                    e("v_mul_u32_u24 v15, 245760, v15"); e("v_mul_u32_u24 v13, 384, v13")
                e("v_lshlrev_b32 v16, 4, v16"); e("v_add_u32 v15, v15, v13"); e("v_add_u32 v15, v15, v16")
                e(f"v_cndmask_b32 v{20+m*6+r_}, v12, v15, vcc")
        for m, kind in enumerate('dgu'):
            e(f"s_mov_b32 s3, {WS_WD if kind == 'd' else WS_WGU + (192 if kind == 'u' else 0)}")
            for r_ in range(6):
                e(f"buffer_store_dwordx4 v[{60+m*24+4*r_}:{63+m*24+4*r_}], v{20+m*6+r_}, s[24:27], s3 offen sc1")
    if 'wq' in pf:
        srd(P, 8, 40, 41, 7864320)
        e("s_mul_i32 s3, s22, 4224"); e("v_add_u32 v1, s3, v1"); e("s_mul_i32 s23, s21, 1536"); e("s_mov_b32 s24, 22")
        e("K01_PFL:")
        e("v_mul_u32_u24 v2, 682, v1"); e("v_lshrrev_b32 v2, 16, v2")
        e("v_mul_u32_u24 v3, 96, v2"); e("v_sub_u32 v3, v1, v3")
        e("v_cmp_le_i32 vcc, 96, v3"); e("s_nop 1")
        e("v_addc_co_u32 v2, vcc, 0, v2, vcc")
        e("v_mul_u32_u24 v3, 96, v2"); e("v_sub_u32 v3, v1, v3"); e("v_lshlrev_b32 v3, 4, v3")
        e("v_mul_u32_u24 v2, 12288, v2"); e("v_add_u32 v2, v2, v3")
        e(NT("buffer_load_dwordx4 v[4:7], v2, s[8:11], s23 offen"))
        e("v_add_u32 v1, 192, v1")
        e("s_sub_u32 s24, s24, 1"); e("s_cmp_lg_u32 s24, 0"); e("s_cbranch_scc1 K01_PFL")
    if 'k' in pf:
        e("s_load_dwordx2 s[4:5], s[0:1], 8"); e("s_waitcnt lgkmcnt(0)")
        srd(P, 8, 4, 5, 25165824)
        e("v_subrev_u32 v1, 64, v0"); e("s_mul_i32 s3, s22, 3328"); e("v_add_u32 v1, s3, v1")
        e("s_mul_i32 s23, s21, 3145728"); e("s_add_u32 s23, s23, 589824"); e("s_mov_b32 s24, 18")
        e("K01_PFK:")
        e("v_lshrrev_b32 v2, 12, v1"); e("v_mul_u32_u24 v2, 21846, v2"); e("v_lshrrev_b32 v2, 16, v2")
        e("v_mul_u32_u24 v3, 12288, v2"); e("v_sub_u32 v3, v1, v3"); e("v_lshlrev_b32 v3, 4, v3")
        e("s_mov_b32 s3, 786432"); e("v_mul_lo_u32 v2, v2, s3"); e("v_add_u32 v2, v2, v3")
        e(NT("buffer_load_dwordx4 v[4:7], v2, s[8:11], s23 offen"))
        e("v_add_u32 v1, 192, v1")
        e("s_sub_u32 s24, s24, 1"); e("s_cmp_lg_u32 s24, 0"); e("s_cbranch_scc1 K01_PFK")
    e("s_endpgm")
    P.finalize(report_nops=False)
    return P

def prep_roles(P, pf=('code', 'wq'), LB=131072):
    e = P.e
    e("s_load_dwordx4 s[4:7], s[0:1], 72")
    e("s_load_dwordx4 s[16:19], s[0:1], 96")
    e("s_load_dwordx2 s[38:39], s[0:1], 0")
    e("s_load_dwordx2 s[40:41], s[0:1], 24")
    e("s_cmp_lt_u32 s2, 40"); e("s_cbranch_scc1 K01_GA")
    e("s_cmp_lt_u32 s2, 168"); e("s_cbranch_scc1 K01_LN")
    e("s_cmp_ge_u32 s2, 248"); e("s_cbranch_scc1 MONO_K2")
    e("s_sub_u32 s3, s2, 168"); e(f"s_mul_i32 s20, s3, {(65536+19)//20}"); e("s_lshr_b32 s20, s20, 16")
    e("s_mul_i32 s21, s20, 20"); e("s_sub_u32 s21, s3, s21"); e("s_add_u32 s21, s21, 10")
    e("s_branch K01_G")
    e("K01_GA:")
    e("s_and_b32 s20, s2, 3"); e("s_lshr_b32 s21, s2, 2")
    e("s_memrealtime s[42:43]")
    e("K01_G:")
    if DIAG: e("s_memrealtime s[60:61]")
    e("v_and_b32 v1, 15, v0"); e("v_lshrrev_b32 v2, 4, v0")
    e(f"s_mul_i32 s3, s20, {640//NSPLIT}")
    e("v_add_u32 v3, s3, v2"); e("v_lshlrev_b32 v4, 1, v3")
    e("s_mov_b32 s22, 7680"); e("v_mul_lo_u32 v5, v3, s22")
    e("v_lshlrev_b32 v6, 4, v1"); e("v_add_u32 v5, v5, v6")
    e("s_lshl_b32 s3, s21, 8"); e("v_add_u32 v5, s3, v5")
    e("s_waitcnt lgkmcnt(0)")
    srd(P, 8, 4, 5, 1280); srd(P, 12, 6, 7, 640*3840*2); srd(P, 24, 18, 19, WS_BYTES); srd(P, 28, 16, 17, 256)
    e("s_cmp_lg_u32 s2, 0"); e("s_cbranch_scc1 K01_NOT")
    e("s_or_b32 s42, s42, 1"); e("v_mov_b32 v12, 8"); e("v_mov_b32 v13, s42")
    e("buffer_store_dword v13, v12, s[28:31], 0 offen sc1")
    e("K01_NOT:")
    if DIAG: e("s_memrealtime s[62:63]")
    NR = 160//16
    for i in range(NR):
        e(f"s_mov_b32 s23, {16*7680*i}")
        e(f"buffer_load_dwordx4 v[{24+4*i}:{27+4*i}], v5, s[12:15], s23 offen")
    for i in range(NR):
        e(f"buffer_load_ushort v{10+i}, v4, s[8:11], 0 offen offset:{32*i}")
    for i in range(NR): e(f"v_lshlrev_b32 v{10+i}, 16, v{10+i}")
    for i in range(NR): e(f"v_mul_f32 v{80+i}, {f2u(-1.4426950408889634)}, v{10+i}")
    for i in range(NR): e(f"v_exp_f32 v{80+i}, v{80+i}")
    for i in range(NR): e(f"v_add_f32 v{80+i}, 1.0, v{80+i}")
    for i in range(NR): e(f"v_rcp_f32 v{80+i}, v{80+i}")
    for i in range(NR): e(f"v_mul_f32 v{10+i}, v{10+i}, v{80+i}")
    for i in range(NR): e(f"v_cvt_pk_bf16_f32 v{10+i}, v{10+i}, v{10+i}")
    for i in range(NR): e(f"v_and_b32 v{10+i}, 0xffff0000, v{10+i}")
    for j in range(8): e(f"v_mov_b32 v{70+j}, 0")
    for i in range(NR):
        for q in range(4):
            w = 24+4*i+q
            e(f"v_lshlrev_b32 v68, 16, v{w}"); e(f"v_and_b32 v69, 0xffff0000, v{w}")
            e(f"v_fmac_f32 v{70+2*q}, v{10+i}, v68"); e(f"v_fmac_f32 v{71+2*q}, v{10+i}, v69")
    if DIAG: e("s_memrealtime s[64:65]")
    e("v_lshlrev_b32 v6, 5, v1"); e("v_lshlrev_b32 v7, 9, v2"); e("v_add_u32 v6, v6, v7"); e(f"v_add_u32 v6, {LB}, v6")
    e("ds_write_b128 v6, v[70:73]"); e("ds_write_b128 v6, v[74:77] offset:16")
    e("s_waitcnt lgkmcnt(0)"); e("s_barrier")
    e("v_cmp_gt_u32 vcc, 64, v0")
    e("s_and_saveexec_b64 s[32:33], vcc")
    e("s_cbranch_execz K01_PF")
    e("v_lshlrev_b32 v6, 3, v0"); e(f"v_add_u32 v9, {LB}, v6")
    for r in range(16): e(f"ds_read_b64 v[{30+2*r}:{31+2*r}], v9 offset:{512*r}")
    for r in (8, 4, 2, 1):
        for q in range(r): e(f"v_pk_add_f32 v[{30+2*q}:{31+2*q}], v[{30+2*q}:{31+2*q}], v[{30+2*(q+r)}:{31+2*(q+r)}]")
    e("s_mul_i32 s3, s20, 15360"); e("s_lshl_b32 s23, s21, 9"); e("s_add_u32 s3, s3, s23"); e(f"s_add_u32 s3, s3, {WS_MOD}")
    e("v_add_u32 v6, s3, v6")
    e("buffer_store_dwordx2 v[30:31], v6, s[24:27], 0 offen sc1")
    e("s_cmp_lg_u32 s2, 0"); e("s_cbranch_scc1 K01_NOZ")
    e("v_lshlrev_b32 v12, 7, v0"); e("v_mov_b32 v13, 0"); e(f"s_mov_b32 s23, {WS_CNT}")
    e("buffer_store_dword v13, v12, s[24:27], s23 offen sc1")
    e(f"s_mov_b32 s23, {WS_CNT + 8192}")
    e("buffer_store_dword v13, v12, s[24:27], s23 offen sc1")
    e("K01_NOZ:")
    e("s_waitcnt vmcnt(0)")
    if DIAG: e("s_memrealtime s[66:67]")
    e("s_cmp_ge_u32 s21, 10"); e("s_cbranch_scc1 K01_FIN")
    e("v_cmp_eq_u32 vcc, 0, v0")
    e("s_and_saveexec_b64 s[32:33], vcc")
    e("v_mov_b32 v7, 1"); e("v_mov_b32 v8, 0")
    e("buffer_atomic_add v7, v8, s[28:31], 0 offen sc0 sc1")
    e("s_waitcnt vmcnt(0)")
    if DIAG:
        e("s_memrealtime s[68:69]"); e("s_waitcnt lgkmcnt(0)")
        e("s_lshl_b32 s3, s2, 5"); e(f"s_add_u32 s3, s3, {0x5000000 + 0x80000}")
        for q in range(5): e(f"v_mov_b32 v{40+q}, s{60+2*q}")
        e("v_mov_b32 v46, s3")
        e("buffer_store_dwordx4 v[40:43], v46, s[24:27], 0 offen"); e("buffer_store_dword v44, v46, s[24:27], 0 offen offset:16")
    e("v_readfirstlane_b32 s22, v7"); e("s_nop 3")
    e(f"s_cmp_lg_u32 s22, {10*NSPLIT-1}"); e("s_cbranch_scc1 K01_FIN")
    e("v_mov_b32 v8, 128"); e("v_mov_b32 v7, 1")
    e("buffer_store_dword v7, v8, s[28:31], 0 offen sc1")
    e("K01_FIN:")
    e("s_mov_b64 exec, -1")
    e("s_branch MONO_K2")
    e("K01_LN:")
    e(f"s_sub_u32 s2, s2, 40")
    e("v_lshrrev_b32 v1, 6, v0"); e("v_and_b32 v10, 63, v0")
    e("v_readfirstlane_b32 s20, v1")
    e("v_and_b32 v2, 15, v10"); e("v_lshrrev_b32 v3, 4, v10")
    e("s_lshl_b32 s3, s2, 4"); e("v_add_u32 v9, s3, v2"); e("v_mul_u32_u24 v9, 1280, v9")
    e("v_lshlrev_b32 v11, 3, v3"); e("v_add_u32 v9, v9, v11")
    e("s_mul_i32 s3, s20, 320"); e("v_add_u32 v9, s3, v9")
    e("s_waitcnt lgkmcnt(0)")
    srd(P, 8, 38, 39, 2048*1280); srd(P, 24, 18, 19, WS_BYTES); srd(P, 28, 16, 17, 256)
    if DIAG: e("s_memrealtime s[60:61]")
    X = 100; RAW = 60; T = 200
    load_x_pieces(P, X, RAW, 8)
    unpack_x(P, X, RAW)
    RED0, RED1 = 12288, 13312
    e("v_lshlrev_b32 v4, 6, v2"); e("v_lshlrev_b32 v5, 2, v3"); e("v_add_u32 v5, v4, v5")
    e(f"s_lshl_b32 s3, s20, 4"); e("v_add_u32 v5, s3, v5"); e(f"v_add_u32 v5, {LB}, v5"); e(f"v_add_u32 v4, {LB}, v4")
    e(f"v_add_f32 v6, v{X}, v{X+1}")
    for i in range(2, 40): e(f"v_add_f32 v6, v6, v{X+i}")
    row_reduce(P, 6, RED0, T, 5, 4)
    e(f"v_mul_f32 v6, {f2u(1/640)}, v6")
    for i in range(40): e(f"v_sub_f32 v{X+i}, v{X+i}, v6")
    e(f"v_mul_f32 v7, v{X}, v{X}")
    for i in range(1, 40): e(f"v_fmac_f32 v7, v{X+i}, v{X+i}")
    row_reduce(P, 7, RED1, T, 5, 4)
    e(f"v_mul_f32 v7, {f2u(1/640)}, v7"); e(f"v_add_f32 v7, {f2u(1e-5)}, v7"); e("v_rsq_f32 v7, v7")
    e("s_nop 0")
    for i in range(40): e(f"v_mul_f32 v{X+i}, v{X+i}, v7")
    if DIAG: e("s_memrealtime s[62:63]")
    e("s_cmp_lg_u32 s20, 0"); e("s_cbranch_scc1 K01_GO")
    e("s_mov_b32 s35, 1")
    e("v_mov_b32 v12, 128"); e("s_mov_b32 s21, 0")
    e("K01_POLL:")
    e("buffer_load_dword v13, v12, s[28:31], 0 offen sc1")
    e("s_waitcnt vmcnt(0)")
    e("v_readfirstlane_b32 s22, v13")
    e("s_add_u32 s21, s21, 1")
    e(f"s_cmp_ge_u32 s22, s35"); e("s_cbranch_scc1 K01_GO")
    e(f"s_sleep {SLEEP}")
    e("s_cmp_lt_u32 s21, 0x4000"); e("s_cbranch_scc1 K01_POLL")
    e("K01_GO:")
    e("s_barrier")
    if DIAG: e("s_memrealtime s[64:65]")
    tb = 20
    e(f"v_lshlrev_b32 v{tb}, 4, v0"); e(f"v_add_u32 v{tb+1}, {LB}, v{tb}"); e(f"v_min_u32 v{tb+2}, 2544, v{tb}")
    r = 24
    for n, idx in enumerate([0, 1]):
        for p in range(NSPLIT):
            e(f"s_mov_b32 s34, {WS_MOD + (p*3840 + idx*640)*4}")
            e(f"buffer_load_dwordx4 v[{r+(n*NSPLIT+p)*4}:{r+(n*NSPLIT+p)*4+3}], v{tb+2}, s[24:27], s34 offen sc1")
    for n in range(2):
        b = r + n*NSPLIT*4
        for p in range(1, NSPLIT):
            for i in range(4): e(f"v_add_f32 v{b+i}, v{b+i}, v{b+4*p+i}")
        for i in range(4):
            e(f"v_cvt_pk_bf16_f32 v{b+i}, v{b+i}, v{b+i}"); e(f"v_and_b32 v{b+i}, 0xffff0000, v{b+i}")
            if n == 1: e(f"v_add_f32 v{b+i}, 1.0, v{b+i}")
            e(f"v_mul_f32 v{b+i}, {f2u(C_SCALE)}, v{b+i}")
        e(f"ds_write_b128 v{tb+1}, v[{b}:{b+3}] offset:{n*4096}")
    e("s_waitcnt lgkmcnt(0)"); e("s_barrier")
    if DIAG: e("s_memrealtime s[66:67]")
    e(f"s_mul_i32 s3, s20, {5*32*4}")
    e("v_lshlrev_b32 v8, 4, v3"); e("v_add_u32 v8, s3, v8"); e(f"v_add_u32 v8, {LB}, v8")
    OUT = 160
    for j in range(5):
        for hh in range(2):
            off = j*128 + hh*64; k = (j*2+hh) % 2
            t = T + 8*k
            e(f"ds_read_b128 v[{t}:{t+3}], v8 offset:{4096+off}")
            e(f"ds_read_b128 v[{t+4}:{t+7}], v8 offset:{off}")
            b = X + j*8 + hh*4
            for i in range(4): e(f"v_fma_f32 v{b+i}, v{b+i}, v{t+i}, v{t+4+i}")
            e(f"v_cvt_pk_bf16_f32 v{OUT+j*4+hh*2}, v{b}, v{b+1}")
            e(f"v_cvt_pk_bf16_f32 v{OUT+j*4+hh*2+1}, v{b+2}, v{b+3}")
    e("s_mul_i32 s3, s2, 20480"); e("s_mul_i32 s21, s20, 5120"); e("s_add_u32 s3, s3, s21"); e(f"s_add_u32 s3, s3, {WS_HF}")
    e("v_lshlrev_b32 v11, 4, v10"); e("v_add_u32 v11, s3, v11")
    for j in range(5):
        e(f"s_mov_b32 s21, {j*1024}")
        e(f"buffer_store_dwordx4 v[{OUT+4*j}:{OUT+4*j+3}], v11, s[24:27], s21 offen sc1")
    e("s_waitcnt vmcnt(0)"); e("s_barrier")
    e("s_lshr_b32 s21, s2, 4"); e("s_add_u32 s2, s2, 40")
    e("s_cmp_lg_u32 s20, 0"); e("s_cbranch_scc1 MONO_K2")
    e("s_lshl_b32 s3, s21, 7"); e(f"s_add_u32 s3, s3, {WS_CNT + 12288}")
    e("v_mov_b32 v12, s3"); e("v_mov_b32 v13, 1"); e("v_mov_b32 v14, 8"); e("s_mov_b64 exec, 1")
    e("buffer_atomic_add v13, v12, s[24:27], 0 offen sc0 sc1")
    e("buffer_load_dword v15, v14, s[28:31], 0 offen sc1")
    e("s_waitcnt vmcnt(0)")
    e("v_readfirstlane_b32 s22, v13"); e("s_nop 3")
    e("s_cmp_lg_u32 s22, 15"); e("s_cbranch_scc1 K01_NOF")
    e("s_lshl_b32 s3, s21, 7"); e(f"s_add_u32 s3, s3, {WS_CNT + 16384}"); e("v_mov_b32 v12, s3")
    e("buffer_store_dword v15, v12, s[24:27], 0 offen sc1")
    e("K01_NOF:")
    e("s_mov_b64 exec, -1")
    e("s_branch MONO_K2")
    e("K01_PF:")
    e("s_mov_b64 exec, -1")
    e("s_and_b32 s21, s2, 7")
    e("s_lshr_b32 s22, s2, 3"); e("s_cmp_lt_u32 s2, 40"); e("s_cselect_b32 s3, 0, 16"); e("s_sub_u32 s22, s22, s3")
    e("v_subrev_u32 v1, 64, v0")
    if 'code' in pf:
        e("s_getpc_b64 s[4:5]")
        e("K01_PC:")
        e("s_add_u32 s4, s4, MONO_K2-K01_PC"); e("s_addc_u32 s5, s5, 0")
        e("s_mul_i32 s3, s22, 9216"); e("v_lshlrev_b32 v2, 4, v1"); e("v_add_u32 v2, s3, v2")
        e("s_mov_b32 s23, K_TEXT_END-MONO_K2-16")
        for r_ in range(3):
            e("v_min_u32 v3, s23, v2")
            e(NT("global_load_dwordx4 v[4:7], v3, s[4:5]"))
            e(f"v_add_u32 v2, 3072, v2")
    if 'repack' in pf:
        e("s_cmp_lt_u32 s2, 40"); e("s_cselect_b32 s3, 0, 128"); e("s_sub_u32 s36, s2, s3")
        e("s_load_dwordx4 s[44:47], s[0:1], 48"); e("s_load_dwordx2 s[48:49], s[0:1], 64"); e("s_waitcnt lgkmcnt(0)")
        e("s_lshl_b32 s37, s36, 10")
        for m, (lo, kind) in enumerate(((48, 'd'), (44, 'g'), (46, 'u'))):
            srd(P, 8, lo, lo+1, 1966080)
            for r_ in range(6):
                e(f"v_add_u32 v10, {r_*192}, v1")
                e("v_cmp_gt_u32 vcc, 1024, v10"); e("v_add_u32 v10, s37, v10")
                e("v_lshlrev_b32 v11, 4, v10"); e("v_mov_b32 v12, 0x7ff00000"); e("v_cndmask_b32 v11, v12, v11, vcc")
                e(f"buffer_load_dwordx4 v[{60+m*24+4*r_}:{63+m*24+4*r_}], v11, s[8:11], 0 offen")
                if kind == 'd':
                    e("s_mov_b32 s3, 53687092"); e("v_mul_hi_u32 v13, v10, s3")
                    e("v_mul_u32_u24 v14, 80, v13"); e("v_sub_u32 v14, v10, v14")
                    e("v_mul_u32_u24 v15, 6554, v14"); e("v_lshrrev_b32 v15, 16, v15")
                    e("v_mul_u32_u24 v16, 10, v15"); e("v_sub_u32 v16, v14, v16")
                    e("v_mul_u32_u24 v15, 245760, v15"); e("v_mul_u32_u24 v13, 160, v13")
                else:
                    e("s_mov_b32 s3, 22369622"); e("v_mul_hi_u32 v13, v10, s3")
                    e("v_mul_u32_u24 v14, 192, v13"); e("v_sub_u32 v14, v10, v14")
                    e("v_mul_u32_u24 v15, 5462, v14"); e("v_lshrrev_b32 v15, 16, v15")
                    e("v_mul_u32_u24 v16, 12, v15"); e("v_sub_u32 v16, v14, v16")
                    e("v_mul_u32_u24 v15, 245760, v15"); e("v_mul_u32_u24 v13, 384, v13")
                e("v_lshlrev_b32 v16, 4, v16"); e("v_add_u32 v15, v15, v13"); e("v_add_u32 v15, v15, v16")
                e(f"v_cndmask_b32 v{20+m*6+r_}, v12, v15, vcc")
        for m, kind in enumerate('dgu'):
            e(f"s_mov_b32 s3, {WS_WD if kind == 'd' else WS_WGU + (192 if kind == 'u' else 0)}")
            for r_ in range(6):
                e(f"buffer_store_dwordx4 v[{60+m*24+4*r_}:{63+m*24+4*r_}], v{20+m*6+r_}, s[24:27], s3 offen sc1")
    if 'wq' in pf:
        srd(P, 8, 40, 41, 7864320)
        e("s_mul_i32 s3, s22, 4224"); e("v_add_u32 v1, s3, v1"); e("s_mul_i32 s23, s21, 1536"); e("s_mov_b32 s24, 22")
        e("K01_PFL:")
        e("v_mul_u32_u24 v2, 682, v1"); e("v_lshrrev_b32 v2, 16, v2")
        e("v_mul_u32_u24 v3, 96, v2"); e("v_sub_u32 v3, v1, v3")
        e("v_cmp_le_i32 vcc, 96, v3"); e("s_nop 1")
        e("v_addc_co_u32 v2, vcc, 0, v2, vcc")
        e("v_mul_u32_u24 v3, 96, v2"); e("v_sub_u32 v3, v1, v3"); e("v_lshlrev_b32 v3, 4, v3")
        e("v_mul_u32_u24 v2, 12288, v2"); e("v_add_u32 v2, v2, v3")
        e(NT("buffer_load_dwordx4 v[4:7], v2, s[8:11], s23 offen"))
        e("v_add_u32 v1, 192, v1")
        e("s_sub_u32 s24, s24, 1"); e("s_cmp_lg_u32 s24, 0"); e("s_cbranch_scc1 K01_PFL")


def gen_k4b(pf=True, npf=128):
    P = Prog(); e = P.e
    e("s_cmp_ge_u32 s2, 256"); e("s_cbranch_scc1 K4_PF")
    e("s_load_dwordx2 s[4:5], s[0:1], 0")
    e("s_load_dwordx2 s[16:17], s[0:1], 104")
    e("v_lshrrev_b32 v1, 6, v0"); e("v_and_b32 v10, 63, v0")
    e("v_readfirstlane_b32 s20, v1")
    e("v_and_b32 v2, 7, v10")
    e("v_lshrrev_b32 v3, 4, v10")
    e("v_lshrrev_b32 v4, 3, v10"); e("v_and_b32 v4, 1, v4")
    e("s_lshr_b32 s21, s2, 1"); e("s_and_b32 s22, s2, 1")
    e("s_mul_i32 s3, s21, 20480"); e("s_lshl_b32 s23, s20, 12"); e("s_add_u32 s3, s3, s23"); e("s_lshl_b32 s23, s22, 7"); e("s_add_u32 s3, s3, s23")
    e("v_lshlrev_b32 v5, 10, v4"); e("v_lshlrev_b32 v6, 8, v3"); e("v_add_u32 v5, v5, v6"); e("v_lshlrev_b32 v6, 4, v2"); e("v_add_u32 v5, v5, v6")
    e("v_add_u32 v12, s3, v5")
    e("s_lshl_b32 s3, s21, 4"); e("s_lshl_b32 s23, s22, 3"); e("s_add_u32 s3, s3, s23"); e("v_add_u32 v9, s3, v2"); e("v_mul_u32_u24 v9, 1280, v9")
    e("v_lshlrev_b32 v6, 6, v4"); e("v_add_u32 v9, v9, v6"); e("v_lshlrev_b32 v6, 3, v3"); e("v_add_u32 v9, v9, v6")
    e("s_lshl_b32 s3, s20, 8"); e("v_add_u32 v9, s3, v9")
    e("s_waitcnt lgkmcnt(0)")
    srd(P, 8, 4, 5, 2048*1280); srd(P, 24, 16, 17, WS_BYTES)
    PR = 20
    for p in range(4):
        for jj in range(2):
            e(f"s_mov_b32 s21, {WS_PART + p*128*20480 + jj*2048}")
            e(f"buffer_load_dwordx4 v[{PR+p*8+jj*4}:{PR+p*8+jj*4+3}], v12, s[24:27], s21 offen")
    XR = 52
    for jj in range(2):
        for hh in range(2):
            e(f"buffer_load_dwordx2 v[{XR+jj*4+hh*2}:{XR+jj*4+hh*2+1}], v9, s[8:11], 0 offen offset:{jj*128+hh*32}")
    MP = 60
    for i in range(2):
        e(f"v_add_u32 v13, {320*i}, v0")
        e("v_mul_u32_u24 v14, 410, v13"); e("v_lshrrev_b32 v14, 16, v14")
        e("v_mul_u32_u24 v15, 160, v14"); e("v_sub_u32 v15, v13, v15")
        e(f"v_lshlrev_b32 v{18+i}, 4, v15")
        e("v_mul_u32_u24 v15, 2560, v14"); e(f"v_add_u32 v15, v15, v{18+i}")
        for p in range(NSPLIT):
            e(f"s_mov_b32 s21, {WS_MOD + (p*3840 + 2*640)*4}")
            e(f"buffer_load_dwordx4 v[{MP+(i*4+p)*4}:{MP+(i*4+p)*4+3}], v15, s[24:27], s21 offen")
        e(f"v_mul_u32_u24 v14, 5120, v14"); e(f"v_add_u32 v{18+i}, v{18+i}, v14")
    A_ = 92
    for p in range(4):
        for q in range(8):
            r = PR + p*8 + q
            if p == 0:
                e(f"v_lshlrev_b32 v{A_+2*q}, 16, v{r}"); e(f"v_and_b32 v{A_+2*q+1}, 0xffff0000, v{r}")
            else:
                e(f"v_lshlrev_b32 v14, 16, v{r}"); e(f"v_and_b32 v15, 0xffff0000, v{r}")
                e(f"v_add_f32 v{A_+2*q}, v{A_+2*q}, v14"); e(f"v_add_f32 v{A_+2*q+1}, v{A_+2*q+1}, v15")
    X = 108
    for q in range(8):
        e(f"v_lshlrev_b32 v{X+2*q}, 16, v{XR+q}"); e(f"v_and_b32 v{X+2*q+1}, 0xffff0000, v{XR+q}")
    for i in range(2):
        b = MP + i*16
        for p in range(1, NSPLIT):
            for k in range(4): e(f"v_add_f32 v{b+k}, v{b+k}, v{b+4*p+k}")
        e(f"v_subrev_u32 v14, {2*5120}, v{18+i}"); e(f"v_cmp_gt_u32 vcc, 5120, v14"); e("s_nop 1")
        e("v_cndmask_b32 v14, 0, 1.0, vcc")
        for k in range(4):
            e(f"v_cvt_pk_bf16_f32 v{b+k}, v{b+k}, v{b+k}"); e(f"v_and_b32 v{b+k}, 0xffff0000, v{b+k}"); e(f"v_add_f32 v{b+k}, v{b+k}, v14")
        e(f"ds_write_b128 v{18+i}, v[{b}:{b+3}]")
    e("s_cmp_lg_u32 s2, 0"); e("s_cbranch_scc1 K4_NOGB")
    e(f"v_cmp_le_u32 vcc, {3*5120}, v19"); e("s_and_saveexec_b64 s[30:31], vcc"); e("s_cbranch_execz K4_NOGB2")
    e(f"v_subrev_u32 v14, {3*5120}, v19"); e(f"s_mov_b32 s21, {WS_MODF + 5*4096}")
    e(f"buffer_store_dwordx4 v[{MP+16}:{MP+19}], v14, s[24:27], s21 offen")
    e("K4_NOGB2:"); e("s_mov_b64 exec, s[30:31]")
    e("K4_NOGB:")
    e("s_waitcnt lgkmcnt(0)"); e("s_barrier")
    e("v_lshlrev_b32 v8, 7, v4"); e("v_lshlrev_b32 v6, 4, v3"); e("v_add_u32 v8, v8, v6"); e("s_lshl_b32 s3, s20, 9"); e("v_add_u32 v8, s3, v8")
    T = 20; OX = 52
    for jj in range(2):
        for hh in range(2):
            k = jj*2 + hh
            e(f"ds_read_b128 v[{T+4*k}:{T+4*k+3}], v8 offset:{jj*256 + hh*64}")
    for k in range(4):
        for i in range(4): e(f"v_fma_f32 v{X+4*k+i}, v{A_+4*k+i}, v{T+4*k+i}, v{X+4*k+i}")
        e(f"v_cvt_pk_bf16_f32 v{OX+2*k}, v{X+4*k}, v{X+4*k+1}"); e(f"v_cvt_pk_bf16_f32 v{OX+2*k+1}, v{X+4*k+2}, v{X+4*k+3}")
    for q in range(8):
        e(f"v_lshlrev_b32 v{X+2*q}, 16, v{OX+q}"); e(f"v_and_b32 v{X+2*q+1}, 0xffff0000, v{OX+q}")
    for jj in range(2):
        e(f"s_mov_b32 s21, {WS_X1 + jj*2048}")
        e(f"buffer_store_dwordx4 v[{OX+4*jj}:{OX+4*jj+3}], v12, s[24:27], s21 offen sc1")
    for jj in range(2):
        for hh in range(2):
            k = jj*2 + hh
            e(f"ds_read_b128 v[{T+4*k}:{T+4*k+3}], v8 offset:{2*5120 + jj*256 + hh*64}")
            e(f"ds_read_b128 v[{T+16+4*k}:{T+16+4*k+3}], v8 offset:{1*5120 + jj*256 + hh*64}")
    RED0, RED1 = 20480, 22528
    e("v_mul_u32_u24 v16, 192, v2"); e("v_lshlrev_b32 v17, 3, v3"); e("v_lshlrev_b32 v18, 2, v4"); e("v_add_u32 v17, v17, v18")
    e("s_lshl_b32 s3, s20, 5"); e("v_add_u32 v17, s3, v17"); e("v_add_u32 v17, v17, v16")
    def red(val, base):
        e(f"ds_write_b32 v17, v{val} offset:{base}")
        e("s_waitcnt lgkmcnt(0)"); e("s_barrier")
        for q in range(10): e(f"ds_read_b128 v[{60+4*q}:{63+4*q}], v16 offset:{base+16*q}")
        for q in range(5):
            e(f"v_pk_add_f32 v[{60+4*q}:{61+4*q}], v[{60+4*q}:{61+4*q}], v[{80+4*q}:{81+4*q}]")
            e(f"v_pk_add_f32 v[{62+4*q}:{63+4*q}], v[{62+4*q}:{63+4*q}], v[{82+4*q}:{83+4*q}]")
        for q in range(5): e(f"v_pk_add_f32 v[{60+2*q}:{61+2*q}], v[{60+2*q}:{61+2*q}], v[{70+2*q}:{71+2*q}]")
        e("v_pk_add_f32 v[60:61], v[60:61], v[62:63]"); e("v_pk_add_f32 v[64:65], v[64:65], v[66:67]")
        e("v_pk_add_f32 v[60:61], v[60:61], v[64:65]"); e("v_pk_add_f32 v[60:61], v[60:61], v[68:69]")
        e(f"v_add_f32 v{val}, v60, v61")
    e(f"v_pk_add_f32 v[6:7], v[{X}:{X+1}], v[{X+2}:{X+3}]")
    for i in range(2, 8): e(f"v_pk_add_f32 v[6:7], v[6:7], v[{X+2*i}:{X+2*i+1}]")
    e("v_add_f32 v6, v6, v7")
    red(6, RED0)
    e(f"v_mul_f32 v6, {f2u(1/640)}, v6")
    for i in range(16): e(f"v_sub_f32 v{X+i}, v{X+i}, v6")
    e(f"v_mul_f32 v7, v{X}, v{X}")
    for i in range(1, 16): e(f"v_fmac_f32 v7, v{X+i}, v{X+i}")
    red(7, RED1)
    e(f"v_mul_f32 v7, {f2u(1/640)}, v7"); e(f"v_add_f32 v7, {f2u(1e-5)}, v7"); e("v_rsq_f32 v7, v7"); e("s_nop 0")
    for i in range(16):
        e(f"v_mul_f32 v{X+i}, v{X+i}, v7")
        e(f"v_fma_f32 v{X+i}, v{X+i}, v{T+i}, v{T+16+i}")
    for k in range(4):
        e(f"v_cvt_pk_bf16_f32 v{OX+2*k}, v{X+4*k}, v{X+4*k+1}"); e(f"v_cvt_pk_bf16_f32 v{OX+2*k+1}, v{X+4*k+2}, v{X+4*k+3}")
    for jj in range(2):
        e(f"s_mov_b32 s21, {WS_H2F + jj*2048}")
        e(f"buffer_store_dwordx4 v[{OX+4*jj}:{OX+4*jj+3}], v12, s[24:27], s21 offen sc1")
    e("K4_END:")
    e("s_endpgm")
    e("K4_PF:")
    e(f"s_cmp_ge_u32 s2, {256+npf}"); e("s_cbranch_scc1 K4_END")
    e("s_sub_u32 s20, s2, 256")
    e("s_load_dwordx2 s[4:5], s[0:1], 64"); e("s_load_dwordx2 s[16:17], s[0:1], 104"); e("s_waitcnt lgkmcnt(0)")
    srd(P, 8, 4, 5, 1966080); srd(P, 24, 16, 17, WS_BYTES)
    assert npf == 128
    e("s_mul_i32 s21, s20, 15360")
    for r_ in range(3):
        e(f"v_add_u32 v1, {r_*320}, v0")
        e(f"v_lshlrev_b32 v{10+r_}, 4, v1")
        e(f"buffer_load_dwordx4 v[{20+4*r_}:{23+4*r_}], v{10+r_}, s[8:11], s21 offen")
        e("v_mul_u32_u24 v2, 820, v1"); e("v_lshrrev_b32 v2, 16, v2")
        e("v_mul_u32_u24 v3, 80, v2"); e("v_sub_u32 v3, v1, v3")
        e("v_mul_u32_u24 v4, 6554, v3"); e("v_lshrrev_b32 v4, 16, v4")
        e("v_mul_u32_u24 v5, 10, v4"); e("v_sub_u32 v5, v3, v5")
        e("v_mul_u32_u24 v4, 245760, v4"); e("v_mul_u32_u24 v2, 160, v2"); e("v_lshlrev_b32 v5, 4, v5")
        e(f"v_add_u32 v{14+r_}, v4, v2"); e(f"v_add_u32 v{14+r_}, v{14+r_}, v5")
    e("s_mul_i32 s21, s20, 1920"); e(f"s_add_u32 s21, s21, {WS_WD}")
    for r_ in range(3):
        e(f"buffer_store_dwordx4 v[{20+4*r_}:{23+4*r_}], v{14+r_}, s[24:27], s21 offen sc1")
    for m, ko in enumerate((48, 56)):
        e(f"s_load_dwordx2 s[4:5], s[0:1], {ko}"); e("s_waitcnt lgkmcnt(0)")
        srd(P, 8, 4, 5, 1966080)
        e("s_mul_i32 s21, s20, 15360")
        for r_ in range(3):
            e(f"v_add_u32 v1, {r_*320}, v0")
            e(f"v_lshlrev_b32 v{10+r_}, 4, v1")
            e(f"buffer_load_dwordx4 v[{32+m*12+4*r_}:{35+m*12+4*r_}], v{10+r_}, s[8:11], s21 offen")
            e("v_lshrrev_b32 v2, 6, v1"); e("v_mul_u32_u24 v2, 21846, v2"); e("v_lshrrev_b32 v2, 16, v2")
            e("v_mul_u32_u24 v3, 192, v2"); e("v_sub_u32 v3, v1, v3")
            e("v_mul_u32_u24 v4, 5462, v3"); e("v_lshrrev_b32 v4, 16, v4")
            e("v_mul_u32_u24 v5, 12, v4"); e("v_sub_u32 v5, v3, v5")
            e("v_mul_u32_u24 v4, 245760, v4"); e("v_mul_u32_u24 v2, 384, v2"); e("v_lshlrev_b32 v5, 4, v5")
            e(f"v_add_u32 v{56+m*3+r_}, v4, v2"); e(f"v_add_u32 v{56+m*3+r_}, v{56+m*3+r_}, v5")
    for m in range(2):
        e("s_mul_i32 s21, s20, 1920"); e(f"s_add_u32 s21, s21, {WS_WGU + m*192}")
        for r_ in range(3):
            e(f"buffer_store_dwordx4 v[{32+m*12+4*r_}:{35+m*12+4*r_}], v{56+m*3+r_}, s[24:27], s21 offen sc1")
    e("s_endpgm")
    P.finalize(report_nops=False)
    return P

def gen_diag_touch(name, ko, chunk_bytes, xcd_to_off, nwg=256):
    P = Prog(); e = P.e
    e(f"s_cmp_ge_u32 s2, {nwg}"); e(f"s_cbranch_scc1 {name}_END")
    e(f"s_load_dwordx2 s[4:5], s[0:1], {ko}"); e("s_waitcnt lgkmcnt(0)")
    srd(P, 8, 4, 5, 0x7fffffff)
    e("s_and_b32 s21, s2, 7"); e("s_lshr_b32 s22, s2, 3")
    xcd_to_off(e)
    per = chunk_bytes // (nwg // 8)
    e(f"s_mul_i32 s3, s22, {per}"); e("s_add_u32 s23, s23, s3"); e("v_lshlrev_b32 v1, 4, v0")
    for i in range(per // 4096):
        e(NT("buffer_load_dwordx4 v[4:7], v1, s[8:11], s23 offen")); e("s_add_u32 s23, s23, 4096")
    e(f"{name}_END:"); e("s_endpgm")
    P.finalize(report_nops=False)
    return P

if __name__ == "__main__":
    from k2gen import wrap
    k0 = gen_k0(); k1 = gen_k1(); k4 = gen_k4()
    open("k01.s", "w").write(wrap([("k0_kernel", k0.text(), 256, 256), ("k1_kernel", k1.text(), 256, 256)],
                                  [("k0_kernel", 120, 256, 16384), ("k1_kernel", 128, 256, 16384)]))
    open("k4.s", "w").write(wrap([("k4_kernel", k4.text(), 256, 256)], [("k4_kernel", 128, 256, 16384)]))
```

```python
from asmgen import *
import kgemm
from kgemm import gemm_stream, BIAS
from ksmall import srd, f2u, NSPLIT
from k2gen import WS_MOD, WS_HF, WS_OF, WS_PART, WS_X1, WS_H2F, WS_ACT, WS_BYTES, WS_STAMP, WS_CNT, WS_WD, WS_WGU

LDS_V = 122880
LDS_R = LDS_V + 4*5120
LDS_TAIL = LDS_R + 2*1280
SPIN = 0x4000

def gbar(P, idx, hook=None, also=None):
    e = P.e
    r = lambda t: P.e(RAW(t))
    e("s_waitcnt vmcnt(0)")
    e("s_barrier")
    r("s_cmp_lg_u32 s23, 0"); r(f"s_cbranch_scc1 KT_A{idx}")
    r(f"s_lshl_b32 s3, s21, 7"); r(f"s_add_u32 s3, s3, {WS_CNT + idx*2048}")
    r("v_mov_b32 v250, s3"); r("v_mov_b32 v251, 1")
    r("s_mov_b64 exec, 1")
    r("buffer_atomic_add v251, v250, s[12:15], 0 offen sc1")
    r("s_mov_b64 exec, -1")
    r(f"KT_A{idx}:")
    if hook: hook()
    r("s_cmp_lg_u32 s23, 0"); r(f"s_cbranch_scc1 KT_B{idx}")
    if also is not None:
        r("v_lshlrev_b32 v251, 7, v0"); r(f"v_add_u32 v251, {WS_CNT + also*2048}, v251")
        r("v_cmp_eq_u32 vcc, 16, v0"); r("s_nop 1"); r("v_cndmask_b32 v250, v251, v250, vcc")
        r("s_mov_b64 exec, 0x1ffff")
    else:
        r("s_mov_b64 exec, 1")
    r("s_mov_b32 s25, 0")
    r(f"KT_P{idx}:")
    r("buffer_load_dword v251, v250, s[12:15], 0 offen sc1")
    r("s_waitcnt vmcnt(0)")
    r("v_cmp_gt_u32 vcc, 16, v251")
    r("s_add_u32 s25, s25, 1"); r("s_nop 3")
    r("s_and_b64 vcc, vcc, exec")
    r(f"s_cbranch_scc0 KT_D{idx}")
    r("s_sleep 1")
    r(f"s_cmp_lt_u32 s25, {SPIN}"); r(f"s_cbranch_scc1 KT_P{idx}")
    r(f"KT_D{idx}:")
    r("s_mov_b64 exec, -1")
    r(f"KT_B{idx}:")
    e("s_waitcnt lgkmcnt(0)")
    e("s_barrier")

S3M32 = False
def gen_kt(stamps=False, detail=None, P=None):
    fused = P is not None
    if not fused: P = Prog()
    e = P.e
    st_i = [0]
    def dstamp(tag):
        if detail == tag:
            e(f"s_memtime s[{60+2*st_i[0]}:{61+2*st_i[0]}]"); st_i[0] += 1
    def stamp():
        if stamps and detail is None:
            e(f"s_memtime s[{60+2*st_i[0]}:{61+2*st_i[0]}]"); st_i[0] += 1
    if not fused:
        e("s_cmp_ge_u32 s2, 256"); e("s_cbranch_scc1 KT_END")
    e("s_load_dwordx2 s[40:41], s[0:1], 32")
    e("s_load_dwordx2 s[42:43], s[0:1], 104")
    e("s_load_dwordx2 s[44:45], s[0:1], 0")
    e("s_load_dwordx4 s[48:51], s[0:1], 48")
    e("s_load_dwordx2 s[52:53], s[0:1], 64")
    e("s_load_dwordx2 s[54:55], s[0:1], 88")
    stamp()
    e("s_and_b32 s20, s2, 3")
    e("s_lshr_b32 s3, s2, 2"); e("s_and_b32 s3, s3, 1"); e("s_lshl_b32 s3, s3, 3")
    e("s_lshr_b32 s21, s2, 5"); e("s_add_u32 s21, s21, s3")
    e("s_lshr_b32 s22, s2, 3"); e("s_and_b32 s22, s22, 3")
    e("s_lshl_b32 s56, s20, 2"); e("s_add_u32 s56, s56, s22")
    if fused:
        e("s_mov_b32 s23, s26")
        e("s_lshr_b32 s58, s2, 5"); e("s_lshl_b32 s58, s58, 2"); e("s_and_b32 s3, s2, 7"); e("s_lshr_b32 s3, s3, 1"); e("s_add_u32 s58, s58, s3")
        e("s_lshl_b32 s58, s58, 7"); e(f"s_add_u32 s58, s58, {WS_CNT + 4*2048}")
        e("s_lshr_b32 s59, s21, 1"); e("s_lshl_b32 s59, s59, 2"); e("s_add_u32 s59, s59, s20")
        e("s_lshl_b32 s59, s59, 7"); e(f"s_add_u32 s59, s59, {WS_CNT + 4*2048}")
    else:
        e("v_lshrrev_b32 v1, 6, v0"); e("v_and_b32 v0, 63, v0")
        e("v_readfirstlane_b32 s23, v1")
    NS = 6; ST = 20480
    for i in range(5):
        e(f"v_add_u32 v10, {i*64}, v0")
        e("v_mul_u32_u24 v11, 3277, v10"); e("v_lshrrev_b32 v11, 16, v11")
        e("v_mul_u32_u24 v12, 20, v11"); e("v_sub_u32 v12, v10, v12")
        e("v_lshrrev_b32 v13, 2, v11"); e("v_and_b32 v13, 1, v13"); e("v_lshlrev_b32 v13, 1, v13")
        e("v_xor_b32 v12, v12, v13"); e("v_lshlrev_b32 v12, 4, v12")
        e("v_mul_u32_u24 v11, 1280, v11"); e("v_add_u32 v11, v11, v12")
        e(f"v_add_u32 v{2+i}, {BIAS - (i*1024 if i < 4 else 0)}, v11")
    e("s_mul_i32 s3, s23, 20480")
    for i in range(5): e(f"v_add_u32 v{2+i}, s3, v{2+i}")
    e("s_lshl_b32 s3, s21, 3"); e("s_lshl_b32 s24, s23, 1"); e("s_add_u32 s24, s24, s3")
    e("s_mul_i32 s3, s24, 196608"); e("s_mul_i32 s25, s20, 49152"); e("s_add_u32 s3, s3, s25"); e(f"s_add_u32 s3, s3, {WS_OF}")
    if S3M32:
        e("v_lshrrev_b32 v10, 4, v0"); e("v_and_b32 v10, 1, v10"); e("v_mul_u32_u24 v10, 196608, v10")
        e("v_lshrrev_b32 v11, 5, v0"); e("v_lshlrev_b32 v11, 8, v11"); e("v_add_u32 v10, v10, v11")
        e("v_and_b32 v11, 15, v0"); e("v_lshlrev_b32 v11, 4, v11"); e("v_add_u32 v10, v10, v11")
        e("v_add_u32 v15, s3, v10"); e("v_add_u32 v16, 512, v15")
    else:
        e("v_lshlrev_b32 v10, 4, v0"); e("v_add_u32 v15, s3, v10"); e("v_add_u32 v16, 196608, v15")
    e("s_mul_i32 s26, s23, 5120"); e("s_mul_i32 s27, s20, 1966080")
    e("s_waitcnt lgkmcnt(0)")
    e("s_mul_i32 s3, s22, 320")
    e("s_add_u32 s8, s40, s3"); e("s_addc_u32 s9, s41, 0"); e(f"s_sub_u32 s8, s8, {BIAS}"); e("s_subb_u32 s9, s9, 0")
    e(f"s_sub_u32 s10, {7864320+BIAS}, s3"); e("s_mov_b32 s11, 0x20000")
    srd(P, 12, 42, 43, WS_BYTES)
    ACC = 176; AR = 20; ASL = 12; BR = 68; BS = 6
    def acc3(t, ct): return ACC + (t*2 + ct)*4
    def mf3(ks, t, ar):
        T, sp = divmod(t, 2); d = ACC + 16*T; b = BR + (ks % BS)*8 + 4*sp
        c = f"v[{d}:{d+15}]" if (ks > 0 or sp > 0) else "0"
        return f"v_mfma_f32_32x32x16_bf16 v[{d}:{d+15}], v[{ar}:{ar+3}], v[{b}:{b+3}], {c}"
    def tr3(n):
        ks, t = divmod(n, 10); st, kk = divmod(ks, 2)
        sett, so = divmod(st % NS, 3)
        if S3M32:
            T, sp = divmod(t, 2)
            areg = [7, 9][sett]
            off = so*ST + kk*10240 + sp*2560 + T*64
        else:
            areg = [7, 8, 9, 14][sett*2 + (t & 1)]
            off = so*ST + kk*10240 + (t >> 1)*64
        r = AR + (n % ASL)*4
        return [Ins(f"ds_read_b64_tr_b16 v[{r}:{r+1}], v{areg} offset:{off}"),
                Ins(f"ds_read_b64_tr_b16 v[{r+2}:{r+3}], v{areg} offset:{off+5120}")]
    def bl3(ks):
        b = BR + (ks % BS)*8
        return ([Ins(f"s_mov_b32 s28, {ks*1024}")],
                [Ins(f"buffer_load_dwordx4 v[{b+4*ct}:{b+4*ct+3}], v{15+ct}, s[12:15], s28 offen" + (" sc1" if fused else "")) for ct in range(2)])
    def dma3(st):
        L = [Ins(f"s_add_u32 m0, s26, {(st % NS)*ST}"), Ins(f"s_add_u32 s29, s27, {st*81920}")]
        D = [Ins(f"buffer_load_dwordx4 v{2+i}, s[8:11], s29 offen offset:{i*1024} lds") for i in range(4)]
        D.append(Ins(f"s_add_u32 m0, s26, {(st % NS)*ST + 4096}"))
        D.append(Ins(f"buffer_load_dwordx4 v6, s[8:11], s29 offen lds"))
        return L, D
    H = {'b': {}}
    for st in range(3):
        L, D = dma3(st); P.many(L); P.many(D); H[st] = D[-1]
        for ks in ((2*st, 2*st+1) if st < 2 else (4,)) if not fused else ():
            L, D = bl3(ks); P.many(L); P.many(D); H['b'][ks] = D[-1]
        if st == 0:
            e("s_lshl_b32 s3, s20, 7"); e("s_add_u32 s3, s3, s24"); e("s_mul_i32 s3, s3, 20480")
            e("s_mul_i32 s25, s22, 5120"); e("s_add_u32 s3, s3, s25"); e(f"s_add_u32 s3, s3, {WS_PART}")
            if S3M32:
                e("v_lshrrev_b32 v10, 5, v0"); e("v_lshrrev_b32 v11, 2, v0"); e("v_and_b32 v11, 3, v11")
                e("v_lshlrev_b32 v12, 2, v10"); e("v_add_u32 v11, v11, v12"); e("v_mul_u32_u24 v11, 320, v11")
                e("v_and_b32 v12, 3, v0"); e("v_lshlrev_b32 v12, 3, v12"); e("v_add_u32 v11, v11, v12")
                e("v_lshrrev_b32 v12, 4, v0"); e("v_and_b32 v12, 1, v12"); e("v_xor_b32 v12, v12, v10"); e("v_lshlrev_b32 v12, 5, v12")
                e("v_add_u32 v7, v11, v12"); e(f"v_add_u32 v9, {3*ST}, v7")
                e("v_lshrrev_b32 v11, 4, v0"); e("v_and_b32 v11, 1, v11"); e("v_mul_u32_u24 v11, 20480, v11")
                e("v_lshlrev_b32 v12, 8, v10"); e("v_add_u32 v11, v11, v12"); e("v_and_b32 v12, 15, v0"); e("v_lshlrev_b32 v12, 4, v12"); e("v_add_u32 v11, v11, v12")
                e("v_add_u32 v17, s3, v11"); e("v_add_u32 v18, 512, v17")
            else:
                e("v_lshrrev_b32 v10, 4, v0")
                e("v_lshrrev_b32 v11, 2, v0"); e("v_and_b32 v11, 3, v11")
                e("v_lshlrev_b32 v12, 2, v10"); e("v_add_u32 v11, v11, v12"); e("v_mul_u32_u24 v11, 320, v11")
                e("v_and_b32 v12, 3, v0"); e("v_lshlrev_b32 v12, 3, v12"); e("v_add_u32 v11, v11, v12")
                e("v_and_b32 v12, 1, v10"); e("v_lshlrev_b32 v12, 5, v12")
                e("v_add_u32 v7, v11, v12"); e("v_xor_b32 v12, 32, v12"); e("v_add_u32 v8, v11, v12")
                e(f"v_add_u32 v9, {3*ST}, v7"); e(f"v_add_u32 v14, {3*ST}, v8")
                e("v_lshlrev_b32 v10, 4, v0"); e("v_add_u32 v17, s3, v10"); e("v_add_u32 v18, 20480, v17")
    srd(P, 16, 44, 45, 2048*1280)
    e("v_and_b32 v120, 7, v0"); e("v_lshrrev_b32 v121, 4, v0"); e("v_lshrrev_b32 v122, 3, v0"); e("v_and_b32 v122, 1, v122")
    e("s_lshl_b32 s30, s21, 3"); e("s_lshr_b32 s3, s56, 1"); e("s_add_u32 s30, s30, s3"); e("s_and_b32 s31, s56, 1")
    e("s_mul_i32 s3, s30, 20480"); e("s_lshl_b32 s25, s31, 7"); e("s_add_u32 s3, s3, s25")
    e("v_lshlrev_b32 v123, 10, v122"); e("v_lshlrev_b32 v124, 8, v121"); e("v_add_u32 v123, v123, v124"); e("v_lshlrev_b32 v124, 4, v120"); e("v_add_u32 v123, v123, v124")
    e("v_add_u32 v123, s3, v123")
    e("s_lshl_b32 s36, s23, 11"); e("s_add_u32 s37, s36, 8192"); e("s_and_b32 s38, s23, 1"); e("s_lshl_b32 s38, s38, 11"); e("s_add_u32 s38, s38, 16384")
    PAIR = [36, 37, 38]
    for j in range(3): e(f"v_add_u32 v{125+j}, s{PAIR[j]}, v123")
    e("s_lshl_b32 s3, s30, 4"); e("s_lshl_b32 s25, s31, 3"); e("s_add_u32 s3, s3, s25"); e("v_add_u32 v128, s3, v120"); e("v_mul_u32_u24 v128, 1280, v128")
    e("v_lshlrev_b32 v124, 6, v122"); e("v_add_u32 v128, v128, v124"); e("v_lshlrev_b32 v124, 3, v121"); e("v_add_u32 v128, v128, v124")
    for j in range(3):
        e(f"s_lshr_b32 s3, s{PAIR[j]}, 4"); e(f"v_add_u32 v{129+j}, s3, v128")
    XR = 132; MP = 160
    for j in range(3):
        for hh in range(2):
            e(f"buffer_load_dwordx2 v[{XR+j*4+hh*2}:{XR+j*4+hh*2+1}], v{129+j}, s[16:19], 0 offen offset:{hh*32}")
    srd(P, 32, 52, 53, 1966080)
    e("s_lshl_b32 s3, s23, 6"); e("v_add_u32 v144, s3, v0"); e("s_mul_i32 s25, s2, 480")
    for r_ in range(2):
        e(f"v_add_u32 v145, {r_*256}, v144")
        e("v_cmp_gt_u32 vcc, 480, v145"); e("v_add_u32 v145, s25, v145")
        e("v_lshlrev_b32 v146, 4, v145"); e("v_mov_b32 v147, 0x7ff00000"); e("v_cndmask_b32 v146, v147, v146, vcc")
        e(f"buffer_load_dwordx4 v[{160+4*r_}:{163+4*r_}], v146, s[32:35], 0 offen")
        e("s_mov_b32 s3, 53687092"); e("v_mul_hi_u32 v146, v145, s3")
        e("v_mul_u32_u24 v157, 80, v146"); e("v_sub_u32 v157, v145, v157")
        e("v_mul_u32_u24 v158, 6554, v157"); e("v_lshrrev_b32 v158, 16, v158")
        e("v_mul_u32_u24 v159, 10, v158"); e("v_sub_u32 v159, v157, v159")
        e("v_mul_u32_u24 v158, 245760, v158"); e("v_mul_u32_u24 v146, 160, v146")
        e("v_lshlrev_b32 v159, 4, v159"); e("v_add_u32 v158, v158, v146"); e("v_add_u32 v158, v158, v159")
        e(f"v_cndmask_b32 v{168+r_}, v147, v158, vcc")
    if fused:
        r = lambda t: P.e(RAW(t))
        P.wait_vm(P.last_o_store); e("s_barrier")
        r("s_cmp_lg_u32 s23, 0"); r("s_cbranch_scc1 KT_OB")
        r("v_mov_b32 v250, s58"); r("v_mov_b32 v251, 1"); r("s_mov_b64 exec, 1")
        r("buffer_atomic_add v251, v250, s[12:15], 0 offen sc1")
        r("v_mov_b32 v250, s59"); r("s_mov_b32 s25, 0")
        r("KT_OP:")
        r("buffer_load_dword v251, v250, s[12:15], 0 offen sc1")
        r("s_waitcnt vmcnt(0)")
        r("v_readfirstlane_b32 s3, v251"); r("s_add_u32 s25, s25, 1"); r("s_nop 2")
        r("s_cmp_ge_u32 s3, 8"); r("s_cbranch_scc1 KT_OD")
        r("s_sleep 1")
        r(f"s_cmp_lt_u32 s25, {SPIN}"); r("s_cbranch_scc1 KT_OP")
        r("KT_OD:")
        r("s_mov_b64 exec, -1")
        r("KT_OB:")
        P.wait_vm(H[0])
        e("s_barrier")
        for ks in range(5):
            L, D = bl3(ks); P.many(L); P.many(D); H['b'][ks] = D[-1]
    else:
        P.wait_vm(H[0]); e("s_barrier")
    PF = 6
    for n in range(PF):
        rr = tr3(n); P.many(rr); H.setdefault('tr', {})[n] = rr[-1]
    stamp()
    rp = [(Ins(f"s_mov_b32 s57, {WS_WD}"), 40, 60)] + [(Ins(f"buffer_store_dwordx4 v[{160+4*r_}:{163+4*r_}], v{168+r_}, s[12:15], s57 offen sc1"), 42 + 10*r_, 80) for r_ in range(2)]
    if S3M32:
        rp = [(x, a//2, b//2) for x, a, b in rp]
        g0 = kgemm.GAP; kgemm.GAP = 2
        gemm_stream(P, 48, 10, 1, 2, acc3, AR, ASL, BR, BS, tr3, bl3, dma3, H, PF, 5, 5, 24, extra=rp, mfma_fn=mf3)
        kgemm.GAP = g0
    else:
        gemm_stream(P, 48, 10, 2, 2, acc3, AR, ASL, BR, BS, tr3, bl3, dma3, H, PF, 5, 5, 24, extra=rp)
    stamp()
    for u in range(5):
        e(f"s_mov_b32 s28, {u*1024}")
        for ct in range(2):
            d = 20 + (u*2+ct)*4
            if S3M32: a = ACC + 16*u + 4*ct; b = a + 8
            else: a = acc3(2*u, ct); b = acc3(2*u+1, ct)
            e(f"v_cvt_pk_bf16_f32 v{d}, v{a}, v{a+1}"); e(f"v_cvt_pk_bf16_f32 v{d+1}, v{a+2}, v{a+3}")
            e(f"v_cvt_pk_bf16_f32 v{d+2}, v{b}, v{b+1}"); e(f"v_cvt_pk_bf16_f32 v{d+3}, v{b+2}, v{b+3}")
            e(f"buffer_store_dwordx4 v[{d}:{d+3}], v{17+ct}, s[12:15], s28 offen sc1")
    def s5_setup():
        for i in range(3):
            e(f"v_add_u32 v110, {i*64}, v0")
            e("v_mul_u32_u24 v111, 5462, v110"); e("v_lshrrev_b32 v111, 16, v111")
            e("v_mul_u32_u24 v112, 12, v111"); e("v_sub_u32 v112, v110, v112")
            e("v_lshrrev_b32 v113, 2, v111"); e("v_and_b32 v113, 1, v113"); e("v_lshlrev_b32 v113, 1, v113")
            e("v_xor_b32 v112, v112, v113"); e("v_lshlrev_b32 v112, 4, v112")
            e("v_mul_u32_u24 v111, 3072, v111"); e("v_add_u32 v111, v111, v112")
            e(f"v_add_u32 v{2+i}, {BIAS - i*1024}, v111")
        e("s_lshr_b32 s3, s23, 1"); e("s_mul_i32 s3, s3, 49152")
        for i in range(3): e(f"v_add_u32 v{2+i}, s3, v{2+i}")
        e("s_and_b32 s3, s23, 1"); e("s_cmp_eq_u32 s3, 0")
        e("s_cselect_b32 s8, s48, s50"); e("s_cselect_b32 s9, s49, s51")
        e("s_mul_i32 s3, s56, 192")
        e("s_add_u32 s8, s8, s3"); e("s_addc_u32 s9, s9, 0"); e(f"s_sub_u32 s8, s8, {BIAS}"); e("s_subb_u32 s9, s9, 0")
        e(f"s_sub_u32 s10, {640*3072+BIAS}, s3"); e("s_mov_b32 s11, 0x20000")
        e("s_mul_i32 s26, s23, 3072")
        e("v_lshrrev_b32 v10, 4, v0")
        e("v_lshrrev_b32 v11, 2, v0"); e("v_mul_u32_u24 v11, 192, v11")
        e("v_and_b32 v12, 3, v0"); e("v_lshlrev_b32 v12, 3, v12"); e("v_add_u32 v11, v11, v12")
        e("v_and_b32 v12, 1, v10"); e("v_lshlrev_b32 v12, 5, v12")
        e("v_add_u32 v7, v11, v12"); e("v_xor_b32 v12, 32, v12"); e("v_add_u32 v8, v11, v12")
        e("v_lshlrev_b32 v10, 4, v0")
        e("s_mul_i32 s3, s24, 20480"); e(f"s_add_u32 s3, s3, {WS_H2F}"); e("v_add_u32 v15, s3, v10"); e("v_add_u32 v16, 20480, v15")
        e("s_mul_i32 s3, s24, 49152"); e("s_mul_i32 s25, s56, 3072"); e("s_add_u32 s3, s3, s25"); e(f"s_add_u32 s3, s3, {WS_ACT}")
        e("v_add_u32 v17, s3, v10"); e("v_add_u32 v18, 49152, v17")
    NS5 = 5; ST5 = 12288
    def dma5(st):
        return ([Ins(f"s_add_u32 m0, s26, {(st % NS5)*ST5}"), Ins(f"s_mov_b32 s29, {st*32*3072}")],
                [Ins(f"buffer_load_dwordx4 v{2+i}, s[8:11], s29 offen offset:{i*1024} lds") for i in range(3)])
    H5 = {'b': {}}
    e("s_lshl_b32 s3, s23, 6"); e("v_add_u32 v144, s3, v0")
    for i in range(3):
        e(f"v_add_u32 v145, {256*i}, v144"); e("v_min_u32 v145, 639, v145")
        e("v_mul_u32_u24 v146, 410, v145"); e("v_lshrrev_b32 v146, 16, v146")
        e("v_mul_u32_u24 v147, 160, v146"); e("v_sub_u32 v147, v145, v147")
        e(f"v_lshlrev_b32 v{148+i}, 4, v147")
        e("v_mul_u32_u24 v147, 2560, v146"); e(f"v_add_u32 v147, v147, v{148+i}")
        for p in range(NSPLIT):
            e(f"s_mov_b32 s25, {WS_MOD + (p*3840 + 2*640)*4}")
            e(f"buffer_load_dwordx4 v[{MP+(i*4+p)*4}:{MP+(i*4+p)*4+3}], v147, s[12:15], s25 offen sc1")
        e(f"v_mul_u32_u24 v146, 5120, v146"); e(f"v_add_u32 v{148+i}, v{148+i}, v146"); e(f"v_add_u32 v{148+i}, {LDS_V}, v{148+i}")
    X = 208
    def hook1():
        s5_setup()
        for i in range(3):
            b = MP + i*16
            for p in range(1, NSPLIT):
                for k in range(4): e(f"v_add_f32 v{b+k}, v{b+k}, v{b+4*p+k}")
            e(f"v_subrev_u32 v146, {LDS_V + 2*5120}, v{148+i}"); e("v_cmp_gt_u32 vcc, 5120, v146"); e("s_nop 1")
            e("v_cndmask_b32 v146, 0, 1.0, vcc")
            for k in range(4):
                e(f"v_cvt_pk_bf16_f32 v{b+k}, v{b+k}, v{b+k}"); e(f"v_and_b32 v{b+k}, 0xffff0000, v{b+k}"); e(f"v_add_f32 v{b+k}, v{b+k}, v146")
            e(f"ds_write_b128 v{148+i}, v[{b}:{b+3}]")
        for q in range(12):
            e(f"v_lshlrev_b32 v{X+2*q}, 16, v{XR+q}"); e(f"v_and_b32 v{X+2*q+1}, 0xffff0000, v{XR+q}")
        e("v_lshlrev_b32 v151, 7, v122"); e("v_lshlrev_b32 v146, 4, v121"); e("v_add_u32 v151, v151, v146"); e(f"v_add_u32 v151, {LDS_V}, v151")
        for j in range(3):
            e(f"s_lshr_b32 s3, s{PAIR[j]}, 3"); e(f"v_add_u32 v{152+j}, s3, v151")
        e("s_cmp_lt_u32 s23, 2"); e("s_cselect_b32 s39, 1.0, 0")
        e("v_mul_u32_u24 v155, 144, v120"); e(f"v_add_u32 v155, {LDS_R}, v155")
        e("v_lshlrev_b32 v156, 3, v121"); e("v_lshlrev_b32 v146, 2, v122"); e("v_add_u32 v156, v156, v146"); e("s_lshl_b32 s3, s23, 5"); e("v_add_u32 v156, s3, v156"); e("v_add_u32 v156, v156, v155")
    stamp()
    gbar(P, 0, hook1)
    stamp()
    dstamp('s4')
    PR = 20
    for p in range(4):
        for j in range(3):
            e(f"s_mov_b32 s25, {WS_PART + p*128*20480}")
            e(f"buffer_load_dwordx4 v[{PR+(p*3+j)*4}:{PR+(p*3+j)*4+3}], v{125+j}, s[12:15], s25 offen sc1")
    T = 20; OX = 100; GA = 160
    for j in range(3):
        for hh in range(2):
            k = j*2 + hh
            e(f"ds_read_b128 v[{GA+4*k}:{GA+4*k+3}], v{152+j} offset:{hh*64}")
    for st in range(4):
        L, D = dma5(st); P.many(L); P.many(D); H5[st] = D[-1]
    dstamp('s4')
    A_ = 72
    e("v_mov_b32 v146, 0x3f80"); e("v_mov_b32 v147, 0x3f800000")
    for q in range(12):
        e(f"v_lshlrev_b32 v{A_+2*q}, 16, v{PR+q}"); e(f"v_and_b32 v{A_+2*q+1}, 0xffff0000, v{PR+q}")
    for p in range(1, 4):
        for q in range(12):
            r = PR + p*12 + q
            e(f"v_dot2c_f32_bf16 v{A_+2*q}, v{r}, v146"); e(f"v_dot2c_f32_bf16 v{A_+2*q+1}, v{r}, v147")
    dstamp('s4')
    for k in range(6):
        for i in (0, 2): e(f"v_pk_fma_f32 v[{X+4*k+i}:{X+4*k+i+1}], v[{A_+4*k+i}:{A_+4*k+i+1}], v[{GA+4*k+i}:{GA+4*k+i+1}], v[{X+4*k+i}:{X+4*k+i+1}]")
        e(f"v_cvt_pk_bf16_f32 v{OX+2*k}, v{X+4*k}, v{X+4*k+1}"); e(f"v_cvt_pk_bf16_f32 v{OX+2*k+1}, v{X+4*k+2}, v{X+4*k+3}")
    for q in range(12):
        e(f"v_lshlrev_b32 v{X+2*q}, 16, v{OX+q}"); e(f"v_and_b32 v{X+2*q+1}, 0xffff0000, v{OX+q}")
    e(f"s_mov_b32 s25, {WS_X1}")
    for j in range(3): e(f"buffer_store_dwordx4 v[{OX+4*j}:{OX+4*j+3}], v{125+j}, s[12:15], s25 offen sc1")
    dstamp('s4')
    for j in range(3):
        for hh in range(2):
            k = j*2 + hh
            e(f"ds_read_b128 v[{T+4*k}:{T+4*k+3}], v{152+j} offset:{2*5120 + hh*64}")
            e(f"ds_read_b128 v[{T+24+4*k}:{T+24+4*k+3}], v{152+j} offset:{1*5120 + hh*64}")
    dstamp('s4')
    def red(val, base):
        e(f"ds_write_b32 v156, v{val} offset:{base}")
        e("s_waitcnt lgkmcnt(0)"); e("s_barrier")
        for q in range(8): e(f"ds_read_b128 v[{160+4*q}:{163+4*q}], v155 offset:{base+16*q}")
        for n in (16, 8, 4, 2):
            for q in range(0, n, 2): e(f"v_pk_add_f32 v[{160+q}:{161+q}], v[{160+q}:{161+q}], v[{160+n+q}:{161+n+q}]")
        e(f"v_add_f32 v{val}, v160, v161")
    e(f"v_pk_add_f32 v[158:159], v[{X}:{X+1}], v[{X+2}:{X+3}]")
    for i in range(2, 8): e(f"v_pk_add_f32 v[158:159], v[158:159], v[{X+2*i}:{X+2*i+1}]")
    e(f"v_pk_add_f32 v[96:97], v[{X+16}:{X+17}], v[{X+18}:{X+19}]")
    for i in range(10, 12): e(f"v_pk_add_f32 v[96:97], v[96:97], v[{X+2*i}:{X+2*i+1}]")
    e("v_add_f32 v158, v158, v159"); e("v_add_f32 v96, v96, v97"); e("v_fma_f32 v158, v96, s39, v158")
    dstamp('s4')
    red(158, 0)
    dstamp('s4')
    e(f"v_mul_f32 v158, {f2u(-1/640)}, v158"); e("v_mov_b32 v159, v158")
    for i in range(0, 24, 2): e(f"v_pk_add_f32 v[{X+i}:{X+i+1}], v[{X+i}:{X+i+1}], v[158:159]")
    e(f"v_pk_mul_f32 v[98:99], v[{X}:{X+1}], v[{X}:{X+1}]")
    for i in range(2, 16, 2): e(f"v_pk_fma_f32 v[98:99], v[{X+i}:{X+i+1}], v[{X+i}:{X+i+1}], v[98:99]")
    e(f"v_pk_mul_f32 v[96:97], v[{X+16}:{X+17}], v[{X+16}:{X+17}]")
    for i in range(18, 24, 2): e(f"v_pk_fma_f32 v[96:97], v[{X+i}:{X+i+1}], v[{X+i}:{X+i+1}], v[96:97]")
    e("v_add_f32 v159, v98, v99"); e("v_add_f32 v96, v96, v97")
    e("v_fma_f32 v159, v96, s39, v159")
    red(159, 1280)
    dstamp('s4')
    e(f"v_mul_f32 v159, {f2u(1/640)}, v159"); e(f"v_add_f32 v159, {f2u(1e-5)}, v159"); e("v_rsq_f32 v159, v159"); e("s_nop 0")
    e("v_mov_b32 v158, v159")
    for i in range(0, 24, 2):
        e(f"v_pk_mul_f32 v[{X+i}:{X+i+1}], v[{X+i}:{X+i+1}], v[158:159]")
    for i in range(0, 24, 2):
        e(f"v_pk_fma_f32 v[{X+i}:{X+i+1}], v[{X+i}:{X+i+1}], v[{T+i}:{T+i+1}], v[{T+24+i}:{T+24+i+1}]")
    for k in range(6):
        e(f"v_cvt_pk_bf16_f32 v{OX+2*k}, v{X+4*k}, v{X+4*k+1}"); e(f"v_cvt_pk_bf16_f32 v{OX+2*k+1}, v{X+4*k+2}, v{X+4*k+3}")
    e(f"s_mov_b32 s25, {WS_H2F}")
    for j in range(3): e(f"buffer_store_dwordx4 v[{OX+4*j}:{OX+4*j+3}], v{125+j}, s[12:15], s25 offen sc1")
    dstamp('s4')
    stamp()
    gbar(P, 1, None, also=0)
    dstamp('s4')
    stamp()
    ACC5 = 160
    def acc5(t, ct): return ACC5 + (t*2 + ct)*4
    def tr5(n):
        ks, t = divmod(n, 12); m_, j = divmod(t, 6)
        off = (ks % NS5)*ST5 + m_*3072 + (j >> 1)*64
        r = AR + (n % ASL)*4
        return [Ins(f"ds_read_b64_tr_b16 v[{r}:{r+1}], v{7 + (j & 1)} offset:{off}"),
                Ins(f"ds_read_b64_tr_b16 v[{r+2}:{r+3}], v{7 + (j & 1)} offset:{off+6144}")]
    def bl5(ks):
        b = BR + (ks % BS)*8
        return ([Ins(f"s_mov_b32 s28, {ks*1024}")],
                [Ins(f"buffer_load_dwordx4 v[{b+4*ct}:{b+4*ct+3}], v{15+ct}, s[12:15], s28 offen sc1") for ct in range(2)])
    for ks in range(5):
        L, D = bl5(ks); P.many(L); P.many(D); H5['b'][ks] = D[-1]
    for n in range(PF):
        rr = tr5(n); P.many(rr); H5.setdefault('tr', {})[n] = rr[-1]
    gemm_stream(P, 20, 12, 2, 1, acc5, AR, ASL, BR, BS, tr5, bl5, dma5, H5, PF, 5, 4, 20)
    stamp()
    for u in range(3):
        e(f"s_mov_b32 s28, {u*1024}")
        for ct in range(2):
            dst = 20 + (u*2 + ct)*4
            for hh in range(2):
                j = 2*u + hh
                g = acc5(j, ct); up = acc5(6+j, ct)
                for i in range(4): e(f"v_max_f32 v{g+i}, 0, v{g+i}")
                for i in range(4): e(f"v_mul_f32 v{g+i}, v{g+i}, v{up+i}")
                e(f"v_cvt_pk_bf16_f32 v{dst+2*hh}, v{g}, v{g+1}"); e(f"v_cvt_pk_bf16_f32 v{dst+2*hh+1}, v{g+2}, v{g+3}")
            e(f"buffer_store_dwordx4 v[{dst}:{dst+3}], v{17+ct}, s[12:15], s28 offen sc1")
    NS6 = 6; ST6 = 5120
    e("s_lshr_b32 s30, s20, 1"); e("s_lshl_b32 s30, s30, 2"); e("s_add_u32 s30, s30, s22")
    e("s_lshl_b32 s31, s21, 1"); e("s_and_b32 s3, s20, 1"); e("s_add_u32 s31, s31, s3")
    e("v_lshlrev_b32 v2, 4, v0"); e("v_add_u32 v6, 4096, v2")
    e("v_lshrrev_b32 v111, 2, v0"); e("v_mul_u32_u24 v111, 160, v111")
    e("v_and_b32 v112, 3, v0"); e("v_lshlrev_b32 v112, 3, v112"); e("v_add_u32 v7, v111, v112")
    e(f"s_mul_i32 s26, s23, {NS6*ST6}"); e("v_add_u32 v7, s26, v7")
    e("s_lshl_b32 s24, s31, 2")
    e("s_mul_i32 s3, s24, 49152"); e("s_mul_i32 s25, s23, 12288"); e("s_add_u32 s3, s3, s25"); e(f"s_add_u32 s3, s3, {WS_ACT}")
    e("v_lshlrev_b32 v10, 4, v0"); e("v_add_u32 v112, s3, v10")
    e("s_mul_i32 s27, s23, 61440"); e("s_mul_i32 s3, s30, 245760"); e("s_add_u32 s27, s27, s3"); e(f"s_add_u32 s27, s27, {WS_WD}")
    srd(P, 32, 54, 55, 2048*1280)
    def dma6(st):
        L = [Ins(f"s_add_u32 m0, s26, {(st % NS6)*ST6}"), Ins(f"s_add_u32 s29, s27, {st*5120}")]
        D = [Ins(f"buffer_load_dwordx4 v2, s[12:15], s29 offen offset:{i*1024} sc1 lds") for i in range(4)]
        D.append(Ins(f"s_add_u32 m0, s26, {(st % NS6)*ST6 + 4096}"))
        D.append(Ins(f"buffer_load_dwordx4 v6, s[12:15], s29 offen sc1 lds"))
        return L, D
    H6 = {'b': {}}
    def hook3():
        for st in range(3):
            L, D = dma6(st); P.many(L); P.many(D); H6[st] = D[-1]
    stamp()
    gbar(P, 2, hook3)
    stamp()
    for ct in range(4): e(f"v_add_u32 v{15+ct}, {ct*49152}, v112")
    ACC6 = 176; AR6 = 20; ASL6 = 8; BR6 = 52; BS6 = 4; XR6 = 116; GB6 = 128
    def acc6(t, ct): return ACC6 + (t*4 + ct)*4
    def tr6(n):
        ks, t = divmod(n, 5)
        off = (ks % NS6)*ST6 + t*32
        r = AR6 + (n % ASL6)*4
        return [Ins(f"ds_read_b64_tr_b16 v[{r}:{r+1}], v7 offset:{off}"),
                Ins(f"ds_read_b64_tr_b16 v[{r+2}:{r+3}], v7 offset:{off+2560}")]
    def bl6(ks):
        b = BR6 + (ks % BS6)*16
        return ([Ins(f"s_mov_b32 s28, {ks*1024}")],
                [Ins(f"buffer_load_dwordx4 v[{b+4*ct}:{b+4*ct+3}], v{15+ct}, s[12:15], s28 offen sc1") for ct in range(4)])
    for ks in range(3):
        L, D = bl6(ks); P.many(L); P.many(D); H6['b'][ks] = D[-1]
    e("s_add_u32 s3, s24, s23"); e("s_mul_i32 s36, s3, 20480"); e(f"s_add_u32 s36, s36, {WS_X1}")
    for t in range(5):
        e(f"s_mul_i32 s3, s30, 5"); e(f"s_add_u32 s3, s3, {t}"); e("s_lshr_b32 s37, s3, 1"); e("s_lshl_b32 s37, s37, 10")
        e("s_and_b32 s3, s3, 1"); e("s_lshl_b32 s3, s3, 3"); e("s_add_u32 s37, s37, s3"); e("s_add_u32 s37, s37, s36")
        e(f"buffer_load_dwordx2 v[{XR6+2*t}:{XR6+2*t+1}], v10, s[12:15], s37 offen sc1")
    e("v_lshrrev_b32 v11, 4, v0"); e("v_lshlrev_b32 v13, 4, v11"); e("s_mul_i32 s3, s30, 320"); e(f"s_add_u32 s3, s3, {LDS_V + 3*5120}"); e("v_add_u32 v13, s3, v13")
    for t in range(5): e(f"ds_read_b128 v[{GB6+4*t}:{GB6+4*t+3}], v13 offset:{t*64}")
    e("v_and_b32 v12, 15, v0"); e("s_lshl_b32 s3, s31, 6"); e("s_lshl_b32 s25, s23, 4"); e("s_add_u32 s3, s3, s25"); e("v_add_u32 v12, s3, v12")
    e("v_mul_u32_u24 v12, 1280, v12"); e("v_lshlrev_b32 v11, 3, v11"); e("v_add_u32 v12, v12, v11")
    e("s_mul_i32 s3, s30, 160"); e("v_add_u32 v14, s3, v12")
    PF6 = 4
    P.wait_vm(H6[0])
    for n in range(PF6):
        rr = tr6(n); P.many(rr); H6.setdefault('tr', {})[n] = rr[-1]
    bar0 = kgemm.GOPT['barrier']; kgemm.GOPT['barrier'] = False
    g0 = kgemm.GAP; kgemm.GAP = 2
    gemm_stream(P, 12, 5, 4, 1, acc6, AR6, ASL6, BR6, BS6, tr6, bl6, dma6, H6, PF6, 3, 4, 12, WG=1)
    kgemm.GAP = g0; kgemm.GOPT['barrier'] = bar0
    stamp()
    e("s_barrier")
    e("s_mul_i32 s3, s23, 20480"); e("v_add_u32 v11, s3, v10")
    for ct in range(4):
        for t in range(5):
            a = acc6(t, ct)
            e(f"ds_write_b128 v11, v[{a}:{a+3}] offset:{(ct*5+t)*1024}")
    e("s_waitcnt lgkmcnt(0)"); e("s_barrier")
    e("s_mul_i32 s3, s23, 5120"); e("v_add_u32 v11, s3, v10"); e("v_add_u32 v13, 40960, v11")
    for sw in range(4):
        for t in range(5):
            r = 20 + (sw*5 + t)*4
            e(f"ds_read_b128 v[{r}:{r+3}], v{11 if sw < 2 else 13} offset:{(sw & 1)*20480 + t*1024}")
    for t in range(5):
        y = 20 + t*4
        for sw in range(1, 4):
            for i in range(4): e(f"v_add_f32 v{y+i}, v{y+i}, v{20+(sw*5+t)*4+i}")
        x = XR6 + 2*t
        e(f"v_lshlrev_b32 v148, 16, v{x}"); e(f"v_and_b32 v149, 0xffff0000, v{x}")
        e(f"v_lshlrev_b32 v150, 16, v{x+1}"); e(f"v_and_b32 v151, 0xffff0000, v{x+1}")
        for i in range(4): e(f"v_fma_f32 v{y+i}, v{y+i}, v{GB6+4*t+i}, v{148+i}")
        e(f"v_cvt_pk_bf16_f32 v{y}, v{y}, v{y+1}"); e(f"v_cvt_pk_bf16_f32 v{y+1}, v{y+2}, v{y+3}")
        e(f"buffer_store_dwordx2 v[{y}:{y+1}], v14, s[32:35], 0 offen offset:{t*32}")
    if stamps:
        e("s_waitcnt vmcnt(0)"); stamp()
        while st_i[0] < 12:
            e(f"s_memtime s[{60+2*st_i[0]}:{61+2*st_i[0]}]"); st_i[0] += 1
        e("s_waitcnt lgkmcnt(0)")
        e(f"s_lshl_b32 s3, s2, 2"); e(f"s_add_u32 s3, s3, s23"); e("s_lshl_b32 s3, s3, 6"); e(f"s_add_u32 s3, s3, {WS_STAMP}")
        for i in range(st_i[0]):
            e(f"v_mov_b32 v1, s{60+2*i}"); e("v_mov_b32 v2, s3")
            e(f"buffer_store_dword v1, v2, s[12:15], 0 offen offset:{4*i}"); e("s_waitcnt vmcnt(0)")
    e("KT_END:")
    e("s_endpgm")
    if not fused: P.finalize(report_nops=False)
    P.nstamps = st_i[0]
    return P

if __name__ == "__main__":
    k = gen_kt(stamps=True)
    print(k.estimate(), len(k.final), k.nstamps)
```

```python
import sys, io, contextlib
import k2gen, ksmall, kgemm, ktail
from asmgen import *
from k2gen import *

DOC = '''; ---------------------------------------------------------------------------------------------------------------------------
; Launch 2 (k2):  one workgroup per CU (256 rows x 1 head): Q projection, QK^T, exp2, PV (all probabilities stay in registers),
;                 then the same workgroups run the tail: wo GEMM (split-K 4), residual + LayerNorm 2, gate/up GEMM + ReGLU,
;                 down GEMM + residual.  Hand-offs between workgroups: write-through (sc1) stores, drained, then one arrival
; Softmax guard:  exp2 is taken without subtracting the row maximum; every row sum (computed from the same bf16 probabilities)
;                 must lie in [2^-64, 2^80] - otherwise (overflow, underflow, NaN) the workgroup redoes its tile on the safe
; ---------------------------------------------------------------------------------------------------------------------------
'''
HDR0 = open('adaLN_cond__sliding_block_cached__glu_gated_reglu__prompt.s.ref').read().split('; Override launch')[0]
HDR = HDR0 + DOC

K2OPT = {}
BOPT = {}
def gen_k2(stamps=False, fuse_tail=False, stk=None, mono=False):
    k2gen.OPT.update(K2OPT)
    k2gen.OPT['mono'] = mono
    P = Prog()
    H = {}
    if mono:
        P.e("s_cmp_ge_u32 s2, 256"); P.e("s_cbranch_scc1 KT_END")
        if K2OPT.get('mstamp'): P.e("s_memrealtime s[88:89]")
        ksmall.prep_roles(P)
        P.e("MONO_K2:")
        if K2OPT.get('mstamp'): P.e("s_memrealtime s[90:91]")
    if stamps: stamp(P, 0); P.e("s_waitcnt lgkmcnt(0)")
    prologue(P, stamps=False, check=not mono)
    main_pro(P, H, mono=mono)
    if K2OPT.get('mstamp'):
        P.e("s_memrealtime s[92:93]"); P.e("s_waitcnt lgkmcnt(0)")
        P.e(f"s_lshl_b32 s3, s2, 2"); P.e("s_add_u32 s3, s3, s26"); P.e("s_lshl_b32 s3, s3, 4"); P.e(f"s_add_u32 s3, s3, {WS_STAMP + 0x90000}")
        for q, sr in enumerate((88, 90, 92)): P.e(f"v_mov_b32 v{28+q}, s{sr}")
        P.e("v_mov_b32 v31, 0"); P.e("v_mov_b32 v32, s3"); P.e("buffer_store_dwordx4 v[28:31], v32, s[20:23], 0 offen")
    if stamps: stamp(P, 1)
    main_schedule(P, H)
    if stamps:
        n = 8 if K2OPT.get('stamps_in') else 2
        stamp(P, n); P.e("s_waitcnt vmcnt(0)"); stamp(P, n+1); write_stamps(P, n+2)
    guard_branch(P)
    if fuse_tail:
        P.e("K2_DONE:")
        ktail.gen_kt(stamps=(stk is not None and stk.startswith('kt')), detail=(stk[3:] if stk and len(stk) > 2 else None), P=P, mono=mono)
        P.items = [x for x in P.items]
        for x in P.items:
            if isinstance(x, Ins) and x.text == "s_cbranch_scc1 K2_END": x.text = "s_cbranch_scc1 KT_END"
    else:
        P.e("K2_END:")
        P.e("s_endpgm")
    P.finalize(report_nops=K2OPT.get('report', False))
    P2 = Prog(); H2 = {}
    safe_entry(P2)
    prologue(P2, stamps=False, check=False)
    main_pro(P2, H2, safe=True)
    main_schedule(P2, H2, safe=True)
    if fuse_tail: P2.e("s_waitcnt vmcnt(0)")
    P2.e("s_branch K2_DONE" if fuse_tail else "s_endpgm")
    P2.finalize(report_nops=False)
    P.safe = P2
    return P

def add_rt(P, kidx):
    start = [Ins("s_mov_b32 s83, s2"), Ins("s_memrealtime s[92:93]"), Ins("s_memtime s[90:91]")]
    def end():
        return [Ins("s_mov_b64 exec, 1"), Ins("s_waitcnt vmcnt(0)"), Ins("s_memrealtime s[94:95]"), Ins("s_memtime s[88:89]"), Ins("s_load_dwordx2 s[96:97], s[0:1], 104"), Ins("s_waitcnt lgkmcnt(0)"),
           Ins("s_mov_b32 s84, s96"), Ins("s_mov_b32 s85, s97"), Ins(f"s_mov_b32 s86, {WS_BYTES}"), Ins("s_mov_b32 s87, 0x20000"),
           Ins("s_lshl_b32 s3, s83, 4"), Ins(f"s_add_u32 s3, s3, {WS_STAMP + 0x10000*(kidx+1)}"),
           Ins("v_mov_b32 v4, s92"), Ins("v_mov_b32 v5, s94"), Ins("v_mov_b32 v6, s90"), Ins("v_mov_b32 v7, s88"), Ins("v_mov_b32 v8, s3"),
           Ins("buffer_store_dwordx4 v[4:7], v8, s[84:87], 0 offen"), Ins("s_waitcnt vmcnt(0)")]
    items = list(start)
    for x in P.items:
        if isinstance(x, Ins) and x.op == 's_endpgm': items += end()
        items.append(x)
    P.items = items
    P.finalize(report_nops=False)

def build(fname, rt=False, k2stamps=False, stk=None, diag=None, fused=True, mega=True, mono=False):
    with contextlib.redirect_stdout(io.StringIO()):
        k01 = ksmall.gen_k01(pf=BOPT.get('pf01', ('code', 'wq'))); k2 = gen_k2(stamps=k2stamps, fuse_tail=(fused and mega), stk=stk, mono=(fused and mega and mono)); k3 = kgemm.gen_k3(stamps=(stk == 'k3')); k4 = ksmall.gen_k4b(); k5 = kgemm.gen_k5e(stamps=(stk == 'k5')); k6 = kgemm.gen_k6c(stamps=(stk == 'k6'))
        kt = ktail.gen_kt(stamps=(stk is not None and stk.startswith('kt')), detail=(stk[3:] if stk and len(stk) > 2 else None))
    if fused and mega and mono:
        if rt: add_rt(k2, 0)
        nm = "adaLN_cond__sliding_block_cached__glu_gated_reglu__prompt_kernel"
        s = HDR + wrap([(nm, k2.text(), 512, 256)], [(nm, 256, 256, LDS_BYTES)], k2.safe.text())
        open(fname, "w").write(s); print(fname, len(s), "bytes"); return
    if fused and mega:
        if rt:
            for i, k in enumerate([k01, k2]): add_rt(k, i)
        ks = [("k01_kernel", k01.text(), 256, 256), ("k2_kernel", k2.text(), 512, 256)]
        ls = [("k01_kernel", 248, 256, 16384), ("k2_kernel", 256, 256, LDS_BYTES)]
        s = HDR + wrap(ks, ls, k2.safe.text())
        open(fname, "w").write(s); print(fname, len(s), "bytes"); return
    if fused:
        if rt:
            for i, k in enumerate([k01, k2, kt]): add_rt(k, i)
        ks = [("k01_kernel", k01.text(), 256, 256), ("k2_kernel", k2.text(), 512, 256), ("kt_kernel", kt.text(), 256, 256)]
        ls = [("k01_kernel", 248, 256, 16384), ("k2_kernel", 256, 256, LDS_BYTES), ("kt_kernel", 256, 256, ktail.LDS_TAIL)]
        s = HDR + wrap(ks, ls, k2.safe.text())
        open(fname, "w").write(s); print(fname, len(s), "bytes"); return
    if rt:
        for i, k in enumerate([k01, k2, k3, k4, k5, k6]): add_rt(k, i)
    ks = [("k01_kernel", k01.text(), 256, 256), ("k2_kernel", k2.text(), 512, 256),
          ("k3_kernel", k3.text(), 256, 256), ("k4_kernel", k4.text(), 128, 128), ("k5_kernel", k5.text(), 256, 256), ("k6_kernel", k6.text(), 256, 256)]
    ls = [("k01_kernel", 248, 256, 16384), ("k2_kernel", 256, 256, LDS_BYTES),
          ("k3_kernel", 256, 256, 122880), ("k4_kernel", 256+128, 320, 24576), ("k5_kernel", 256, 256, 61440), ("k6_kernel", 256, 512, 163840)]
    if diag == 'wo':
        d = ksmall.gen_diag_touch("KD", 32, 1966080, lambda e: (e("s_and_b32 s23, s21, 3"), e("s_mul_i32 s23, s23, 1966080")))
        ks.append(("kd_kernel", d.text(), 64, 64)); ls.insert(2, ("kd_kernel", 256, 256, 0))
    if diag == 'wd':
        d = ksmall.gen_diag_touch("KD", 104, 1966080, lambda e: e(f"s_mov_b32 s23, {WS_WD}"))
        ks.append(("kd_kernel", d.text(), 64, 64)); ls.insert(5, ("kd_kernel", 256, 256, 0))
    if diag == 'act':
        d = ksmall.gen_diag_touch("KD", 104, 786432, lambda e: (e("s_mul_i32 s23, s21, 786432"), e(f"s_add_u32 s23, s23, {WS_ACT}")))
        d2 = ksmall.gen_diag_touch("KE", 104, 1966080, lambda e: e(f"s_mov_b32 s23, {WS_WD}"))
        ks.append(("kd_kernel", d.text(), 64, 64)); ls.insert(5, ("kd_kernel", 256, 256, 0))
        ks.append(("ke_kernel", d2.text(), 64, 64)); ls.insert(5, ("ke_kernel", 256, 256, 0))
    if diag == 'h2':
        d = ksmall.gen_diag_touch("KD", 104, 2621440, lambda e: e(f"s_mov_b32 s23, {WS_H2F}"))
        ks.append(("kd_kernel", d.text(), 64, 64)); ls.insert(4, ("kd_kernel", 256, 256, 0))
    s = HDR + wrap(ks, ls, k2.safe.text())
    open(fname, "w").write(s)
    print(fname, len(s), "bytes")

if __name__ == "__main__":
    import os
    build("adaLN_cond__sliding_block_cached__glu_gated_reglu__prompt.s")
    build("all_rt.s", rt=True)
    build("all_skt.s", stk='kt')
    build("all_skts4.s", stk='kt_s4')
    build("all_mono.s", rt=True, mono=True)
    for kv in os.environ.get("K2V", "").split(";"):
        if not kv: continue
        nm, _, o = kv.partition(':')
        opt = dict(x.split('=') for x in o.split(',') if x)
        K2OPT.update(opt); K2OPT['stamps_in'] = 1
        build(f"all_{nm}.s", rt=False, k2stamps=True)
        for k in list(K2OPT): K2OPT.pop(k); k2gen.OPT.pop(k, None)
```

```python
from asmgen import *

WS_MOD  = 0x0
WS_HF   = 0x40000
WS_OF   = 0x400000
WS_PART = 0x2000000
WS_X1   = 0x3800000
WS_H2F  = 0x4000000
WS_ACT  = 0x4400000
WS_WD   = 0x4C00000
WS_WGU  = 0x5800000
WS_CNT  = 0x30000
WS_STAMP= 0x5000000
WS_DBG  = 0x6000000
WS_BYTES = 268435456

WQ_BASE = 0;      WQ_NS = 5;  WQ_ST = 12288
K_BASE  = 36864;  K_NS = 5;   K_ST = 12288
V_BASE  = 98304;  V_NS = 4;   V_ST = 16384
LDS_BYTES = 163840
BIAS = 4096

sWQ, sK, sV, sWS = 8, 12, 16, 20
sHEAD, sRB, sW = 24, 25, 26
sM0WQ, sM0K, sM0V = 27, 28, 29
sOFF = 30
sOFH = 31
sT0, sT1, sT2, sT3 = 32, 33, 34, 35
sSLOW = 36
sTS = 76

vWQD = 1
vKD  = 4
vVD  = 7
vWQT = 11
vKF  = 15
vVT  = 19
vHO  = 23
vT0, vT1, vT2, vT3 = 60, 61, 62, 63
QACC = 64
QF = 64
SB = [160, 192]
RING = 192
OACC = [64, 160]
LACC = 128
RINV = 144

def P_reg(kt, ct):
    if kt < 12: return ('a', kt*16 + ct*4)
    if kt < 14: return ('v', 28 + (kt-12)*16 + ct*4)
    return ('v', 224 + (kt-14)*16 + ct*4)

def prologue(P, stamps=False, check=True):
    e = P.e
    if check:
        e("s_cmp_ge_u32 s2, 256")
        e("s_cbranch_scc1 K2_END")
    e("s_load_dwordx2 s[4:5], s[0:1], 24")
    e("s_load_dwordx2 s[6:7], s[0:1], 104")
    e("s_load_dwordx4 s[44:47], s[0:1], 8")
    e("s_load_dwordx2 s[68:69], s[0:1], 32")
    e("s_load_dwordx4 s[72:75], s[0:1], 48")
    e("s_load_dwordx2 s[70:71], s[0:1], 64")
    e("v_lshrrev_b32 v2, 6, v0")
    e("v_and_b32 v0, 63, v0")
    e("v_readfirstlane_b32 s26, v2")
    e("s_and_b32 s24, s2, 7"); e("s_lshl_b32 s24, s24, 2")
    e("s_lshr_b32 s3, s2, 3"); e("s_and_b32 s3, s3, 3"); e("s_add_u32 s24, s24, s3")
    e("s_lshr_b32 s25, s2, 5")
    e(f"v_lshrrev_b32 v{vT0}, 3, v0")
    e(f"v_and_b32 v{vT1}, 7, v0")
    e(f"v_lshrrev_b32 v{vT2}, 4, v0")
    e(f"v_lshlrev_b32 v{vT3}, 1, v{vT2}")
    e(f"v_xor_b32 v{vT3}, v{vT3}, v{vT1}")
    e(f"v_lshlrev_b32 v{vT3}, 4, v{vT3}")
    e("s_lshl_b32 s3, s26, 3")
    e(f"v_add_u32 v{vWQD}, s3, v{vT0}")
    e("s_mov_b32 s37, 12288")
    e(f"v_mul_lo_u32 v{vWQD}, v{vWQD}, s37")
    e(f"v_add_u32 v{vWQD}, v{vWQD}, v{vT3}")
    e(f"v_add_u32 v{vWQD}, {BIAS}, v{vWQD}")
    e(f"v_add_u32 v{vWQD+1}, {128-1024}, v{vWQD}")
    e(f"v_add_u32 v{vWQD+2}, {256-2048}, v{vWQD}")
    e("s_lshl_b32 s3, s25, 4"); e("s_lshl_b32 s37, s26, 2"); e("s_add_u32 s38, s3, s37")
    e("s_mul_i32 s3, s38, 20480"); e(f"s_add_u32 s3, s3, {WS_HF}")
    e(f"v_lshlrev_b32 v{vHO}, 4, v0")
    e(f"v_add_u32 v{vHO}, s3, v{vHO}")
    for ct in range(1, 4):
        e(f"v_add_u32 v{vHO+ct}, {ct*20480}, v{vHO}")
    e(f"s_mul_i32 s{sM0WQ}, s26, 3072")
    e("s_mul_i32 s3, s24, 384")
    e("s_waitcnt lgkmcnt(0)")
    e(f"s_add_u32 s{sWQ}, s4, s3"); e(f"s_addc_u32 s{sWQ+1}, s5, 0")
    e(f"s_sub_u32 s{sWQ}, s{sWQ}, {BIAS}"); e(f"s_subb_u32 s{sWQ+1}, s{sWQ+1}, 0")
    e(f"s_sub_u32 s{sWQ+2}, {7864320+BIAS}, s3"); e(f"s_mov_b32 s{sWQ+3}, 0x20000")
    e(f"s_mov_b32 s{sWS}, s6"); e(f"s_mov_b32 s{sWS+1}, s7")
    e(f"s_mov_b32 s{sWS+2}, {WS_BYTES}"); e(f"s_mov_b32 s{sWS+3}, 0x20000")

def prologue2(P):
    e = P.e
    e(f"v_lshrrev_b32 v{vT0}, 2, v0"); e(f"v_and_b32 v{vT0}, 3, v{vT0}")
    e(f"v_and_b32 v{vT1}, 3, v0"); e(f"v_lshlrev_b32 v{vT1}, 3, v{vT1}")
    e(f"v_and_b32 v{vWQT}, 1, v{vT2}"); e(f"v_lshlrev_b32 v{vWQT}, 2, v{vWQT}")
    e(f"v_add_u32 v{vWQT}, v{vWQT}, v{vT0}")
    e(f"v_lshrrev_b32 v{vWQT+1}, 1, v{vWQT}")
    e(f"v_lshlrev_b32 v{vWQT}, 7, v{vWQT}")
    e(f"v_lshrrev_b32 v{vWQT+2}, 1, v{vT2}")
    e(f"v_mul_u32_u24 v{vWQT+2}, 3072, v{vWQT+2}")
    e(f"v_add_u32 v{vWQT}, v{vWQT}, v{vWQT+2}")
    e(f"v_add_u32 v{vWQT}, v{vWQT}, v{vT1}")
    e(f"v_lshlrev_b32 v{vWQT+1}, 5, v{vWQT+1}")
    for tp in (3, 2):
        e(f"v_xor_b32 v{vT3}, {tp<<5}, v{vWQT+1}")
        e(f"v_add_u32 v{vWQT+tp}, v{vWQT}, v{vT3}")
    e(f"v_xor_b32 v{vT3}, {1<<5}, v{vWQT+1}")
    e(f"v_add_u32 v{vT3}, v{vWQT}, v{vT3}")
    e(f"v_add_u32 v{vWQT}, v{vWQT}, v{vWQT+1}")
    e(f"v_mov_b32 v{vWQT+1}, v{vT3}")
    e(f"v_lshrrev_b32 v{vVT}, 1, v{vT2}"); e(f"v_lshlrev_b32 v{vVT}, 2, v{vVT}")
    e(f"v_add_u32 v{vVT}, v{vVT}, v{vT0}")
    e(f"v_lshrrev_b32 v{vVT+1}, 1, v{vVT}"); e(f"v_and_b32 v{vVT+1}, 1, v{vVT+1}")
    e(f"v_and_b32 v{vVT+2}, 1, v{vT2}")
    e(f"v_lshlrev_b32 v{vVT+3}, 1, v{vVT+2}")
    e(f"v_or_b32 v{vVT+1}, v{vVT+1}, v{vVT+3}")
    e(f"v_lshlrev_b32 v{vVT+1}, 5, v{vVT+1}")
    e(f"v_lshlrev_b32 v{vVT}, 7, v{vVT}")
    e(f"v_lshlrev_b32 v{vVT+2}, 10, v{vVT+2}")
    e(f"v_add_u32 v{vVT}, v{vVT}, v{vVT+2}")
    e(f"v_add_u32 v{vVT}, v{vVT}, v{vT1}")
    e(f"v_add_u32 v{vVT}, {V_BASE}, v{vVT}")
    for tp in (3, 2):
        e(f"v_xor_b32 v{vT3}, {tp<<5}, v{vVT+1}")
        e(f"v_add_u32 v{vVT+tp}, v{vVT}, v{vT3}")
    e(f"v_xor_b32 v{vT3}, {1<<5}, v{vVT+1}")
    e(f"v_add_u32 v{vT3}, v{vVT}, v{vT3}")
    e(f"v_add_u32 v{vVT}, v{vVT}, v{vVT+1}")
    e(f"v_mov_b32 v{vVT+1}, v{vT3}")
    e(f"s_add_u32 s{sM0K}, s{sM0WQ}, {K_BASE}")
    e(f"s_lshl_b32 s{sM0V}, s26, 12"); e(f"s_add_u32 s{sM0V}, s{sM0V}, {V_BASE}")
    e("s_mul_i32 s3, s24, 786432"); e(f"s_add_u32 s3, s3, {1536*384-BIAS}")
    e(f"s_add_u32 s{sK}, s44, s3"); e(f"s_addc_u32 s{sK+1}, s45, 0")
    e(f"s_mov_b32 s{sK+2}, {512*384+BIAS}"); e(f"s_mov_b32 s{sK+3}, 0x20000")
    e(f"s_add_u32 s{sV}, s46, s3"); e(f"s_addc_u32 s{sV+1}, s47, 0")
    e(f"s_mov_b32 s{sV+2}, {512*384+BIAS}"); e(f"s_mov_b32 s{sV+3}, 0x20000")
    for base, lo, n in ((52, 68, 7864320), (56, 72, 1966080), (60, 74, 1966080), (64, 70, 1966080)):
        e(f"s_mov_b32 s{base}, s{lo}"); e(f"s_mov_b32 s{base+1}, s{lo+1}"); e(f"s_mov_b32 s{base+2}, {n}"); e(f"s_mov_b32 s{base+3}, 0x20000")

def prologue3():
    L = []
    e = lambda t: L.append(Ins(t))
    T0, T1, T2, T3 = 56, 57, 58, 59
    e(f"v_lshrrev_b32 v{T0}, 3, v0"); e(f"v_and_b32 v{T1}, 7, v0"); e(f"v_lshrrev_b32 v{T2}, 4, v0")
    e("s_lshl_b32 s3, s26, 3")
    e(f"v_add_u32 v{vKD}, s3, v{T0}")
    e(f"v_lshrrev_b32 v{T3}, 1, v{vKD}"); e(f"v_and_b32 v{T3}, 7, v{T3}"); e(f"v_xor_b32 v{T3}, v{T3}, v{T1}"); e(f"v_lshlrev_b32 v{T3}, 4, v{T3}")
    e(f"v_mul_u32_u24 v{vKD}, 384, v{vKD}"); e(f"v_add_u32 v{vKD}, v{vKD}, v{T3}"); e(f"v_add_u32 v{vKD}, {BIAS}, v{vKD}")
    e(f"v_add_u32 v{vKD+1}, {128-1024}, v{vKD}"); e(f"v_add_u32 v{vKD+2}, {256-2048}, v{vKD}")
    e(f"v_and_b32 v{T3}, 1, v{T2}"); e(f"v_lshlrev_b32 v{T3}, 1, v{T3}"); e(f"v_xor_b32 v{T3}, v{T3}, v{T1}")
    e("s_lshl_b32 s3, s26, 5")
    e(f"v_add_u32 v{vVD}, s3, v{T0}"); e(f"v_mul_u32_u24 v{vVD}, 384, v{vVD}"); e(f"v_add_u32 v{vVD}, {BIAS}, v{vVD}")
    e(f"v_xor_b32 v{vVD+1}, 4, v{T3}"); e(f"v_lshlrev_b32 v{vVD+1}, 4, v{vVD+1}"); e(f"v_lshlrev_b32 v{T3}, 4, v{T3}")
    e(f"v_add_u32 v{vVD+1}, v{vVD+1}, v{vVD}"); e(f"v_add_u32 v{vVD}, v{vVD}, v{T3}")
    e(f"v_add_u32 v{vVD+2}, {2*3072-2*1024}, v{vVD}"); e(f"v_add_u32 v{vVD+3}, {3*3072-3*1024}, v{vVD+1}"); e(f"v_add_u32 v{vVD+1}, {1*3072-1*1024}, v{vVD+1}")
    e(f"v_and_b32 v{T0}, 31, v0")
    e(f"v_lshrrev_b32 v{T1}, 3, v{T0}"); e(f"v_mul_u32_u24 v{T1}, 3072, v{T1}")
    e(f"v_and_b32 v{T3}, 7, v{T0}"); e(f"v_lshlrev_b32 v{T3}, 7, v{T3}")
    e(f"v_add_u32 v{T1}, v{T1}, v{T3}"); e(f"v_add_u32 v{T1}, {K_BASE}, v{T1}")
    e(f"v_lshrrev_b32 v{T0}, 1, v{T0}"); e(f"v_and_b32 v{T0}, 7, v{T0}")
    e(f"v_lshrrev_b32 v{T3}, 5, v0"); e(f"v_xor_b32 v{T0}, v{T0}, v{T3}")
    for s4 in range(4):
        e(f"v_xor_b32 v{T3}, {2*s4}, v{T0}"); e(f"v_lshlrev_b32 v{T3}, 4, v{T3}"); e(f"v_add_u32 v{vKF+s4}, v{T1}, v{T3}")
    return L

sPFV, sPFO, sPFW, sPFT = 96, 97, 98, 99
def touch_setup():
    return [Ins("v_lshlrev_b32 v27, 7, v0"), Ins("v_mov_b32 v59, 0x7ff00000"), Ins("v_cmp_gt_u32 vcc, 16, v0"), Ins("s_nop 1"),
            Ins("v_cndmask_b32 v27, v59, v27, vcc"),
            Ins(f"s_mul_i32 s{sPFV}, s25, 24576"), Ins(f"s_mul_i32 s{sPFT}, s26, 6144"), Ins(f"s_add_u32 s{sPFV}, s{sPFV}, s{sPFT}"), Ins(f"s_add_u32 s{sPFV}, s{sPFV}, {BIAS}"),
            Ins(f"s_lshl_b32 s{sPFT}, s2, 2"), Ins(f"s_add_u32 s{sPFT}, s{sPFT}, s26"),
            Ins(f"s_mul_i32 s{sPFW}, s{sPFT}, 1920"),
            Ins(f"s_and_b32 s{sPFO}, s2, 3"), Ins(f"s_mul_i32 s{sPFO}, s{sPFO}, 1966080"), Ins(f"s_lshr_b32 s{sPFT}, s2, 3"), Ins(f"s_lshl_b32 s{sPFT}, s{sPFT}, 2"),
            Ins(f"s_add_u32 s{sPFT}, s{sPFT}, s26"), Ins(f"s_mul_i32 s{sPFT}, s{sPFT}, 15360"), Ins(f"s_add_u32 s{sPFO}, s{sPFO}, s{sPFT}")]
def touch32_setup():
    return [Ins("v_lshlrev_b32 v3, 7, v0"), Ins("v_mov_b32 v2, 0x7ff00000"), Ins("v_cmp_gt_u32 vcc, 32, v0"), Ins("s_nop 1"), Ins("v_cndmask_b32 v3, v2, v3, vcc")]
def touch32(kind, i):
    base, srd_ = (sPFO, 52) if kind == 'wo' else (sPFW, {'wg': 56, 'wu': 60, 'wd': 64}[kind])
    return [Ins(f"s_add_u32 s{sPFT}, s{base}, {i*4096}"), NT(f"buffer_load_dword v1, v3, s[{srd_}:{srd_+3}], s{sPFT} offen")]

def touch16(kind, i, dst='a191'):
    if kind == 'v': base, srd_ = sPFV, sV
    elif kind == 'k': base, srd_ = sPFV, sK
    elif kind == 'wo': base, srd_ = sPFO, 52
    else: base, srd_ = sPFW, {'wg': 56, 'wu': 60, 'wd': 64}[kind]
    return [Ins(f"s_add_u32 s{sPFT}, s{base}, {i*2048}"), NT(f"buffer_load_dword {dst}, v27, s[{srd_}:{srd_+3}], s{sPFT} offen")]

PFS = 64
def pf_kv():
    L = [Ins(f"s_mul_i32 s{sT0}, s25, 24576"), Ins(f"s_mul_i32 s{sT1}, s26, 6144"), Ins(f"s_add_u32 s{sT0}, s{sT0}, s{sT1}"),
         Ins(f"s_add_u32 s{sT0}, s{sT0}, {BIAS}"), Ins(f"v_mul_u32_u24 v29, {PFS}, v0"), Ins(f"v_add_u32 v29, s{sT0}, v29")]
    n = -(-6144 // (64*PFS))
    D = []
    for srd_ in (sK, sV):
        for i in range(n):
            D.append(Ins(f"v_add_u32 v30, {i*64*PFS}, v29"))
            D.append(Ins(f"buffer_load_dword v28, v30, s[{srd_}:{srd_+3}], 0 offen"))
    return L + D

def pf_wo():
    return [Ins(f"s_lshl_b32 s{sT0}, s2, 2"), Ins(f"s_add_u32 s{sT0}, s{sT0}, s26"), Ins(f"s_mul_i32 s{sT1}, s{sT0}, 7680"),
            Ins(f"v_lshlrev_b32 v31, {OPT.get('pfshift', 7)}, v0"), Ins(f"v_add_u32 v31, s{sT1}, v31"),
            NT(f"buffer_load_dword v28, v31, s[52:55], 0 offen")] + ([Ins("v_add_u32 v31, 4096, v31"), NT(f"buffer_load_dword v28, v31, s[52:55], 0 offen")] if OPT.get('pfshift', 7) == 6 else [])

def pf_weights():
    L = [Ins(f"s_lshl_b32 s{sT0}, s2, 2"), Ins(f"s_add_u32 s{sT0}, s{sT0}, s26"),
         Ins(f"v_mul_u32_u24 v31, {PFS}, v0"),
         Ins(f"s_mul_i32 s{sT1}, s{sT0}, 7680"), Ins(f"v_add_u32 v32, s{sT1}, v31")]
    for i in range(-(-7680 // (64*PFS))):
        L.append(Ins(f"v_add_u32 v30, {i*64*PFS}, v32"))
        L.append(Ins(f"buffer_load_dword v28, v30, s[52:55], 0 offen"))
    L += [Ins(f"s_mul_i32 s{sT1}, s{sT0}, 1920"), Ins(f"v_add_u32 v32, s{sT1}, v31")]
    for srd_ in (56, 60, 64):
        L.append(Ins(f"buffer_load_dword v28, v32, s[{srd_}:{srd_+3}], 0 offen"))
    return L

def dma_wq(ks):
    slot = ks % WQ_NS
    L = [Ins(f"s_add_u32 m0, s{sM0WQ}, {WQ_BASE + slot*WQ_ST}"),
         Ins(f"s_mov_b32 s{sOFF}, {ks*32*12288}")]
    D = [Ins(f"buffer_load_dwordx4 v{vWQD+q}, s[{sWQ}:{sWQ+3}], s{sOFF} offen offset:{q*1024} lds") for q in range(3)]
    return L, D

def k_slot(kt): return (kt + 2) % K_NS
def dma_k(kt):
    L = [Ins(f"s_add_u32 m0, s{sM0K}, {k_slot(kt)*K_ST}"),
         Ins(f"s_mov_b32 s{sOFF}, {(kt % 16)*12288}")]
    D = [Ins(f"buffer_load_dwordx4 v{vKD+q}, s[{sK}:{sK+3}], s{sOFF} offen offset:{q*1024} lds") for q in range(3)]
    return L, D

def dma_v(st):
    G, kb = st // 4, st % 4
    L = [Ins(f"s_add_u32 m0, s{sM0V}, {(st % V_NS)*V_ST}"),
         Ins(f"s_mov_b32 s{sOFF}, {kb*128*384 + G*128}")]
    D = [Ins(f"buffer_load_dwordx4 v{vVD+i}, s[{sV}:{sV+3}], s{sOFF} offen offset:{i*1024} lds") for i in range(4)]
    return L, D

def HS(): return int(OPT.get('hsets', 4))
def load_h(ks):
    L = [Ins(f"s_mov_b32 s{sOFH}, {ks*1024}")]
    base = (ks % HS())*16
    D = [Ins(f"buffer_load_dwordx4 a[{base+4*ct}:{base+4*ct+3}], v{vHO+ct}, s[{sWS}:{sWS+3}], s{sOFH} offen" + (" sc1" if OPT.get('mono') else "")) for ct in range(4)]
    return L, D

def tr_wq(n):
    ks, t = divmod(n, 12)
    slot = n % 16
    q, tp = t >> 2, t & 3
    off = WQ_BASE + (ks % WQ_NS)*WQ_ST + q*1024
    r = RING + slot*4
    return [Ins(f"ds_read_b64_tr_b16 a[{r}:{r+1}], v{vWQT+tp} offset:{off}"),
            Ins(f"ds_read_b64_tr_b16 a[{r+2}:{r+3}], v{vWQT+tp} offset:{off+6144}")]

OPT = dict(dma=True, hload=True, barrier=True, tr=True, pfcode=False)
def k_frag(n):
    kt, s_ = divmod(n, 12)
    r = RING + (n % 16)*4
    off = k_slot(kt)*K_ST + (s_ >> 2)*1024
    return Ins(f"ds_read_b128 a[{r}:{r+3}], v{vKF + (s_ & 3)} offset:{off}")

def softmax_stream(kt, mode='exp'):
    L = []
    buf = SB[kt & 1]
    toA = P_reg(kt, 0)[0] == 'a'
    for cb in range(2):
        Sx = buf + 16*cb
        if toA:
            A_ = [Sx+0, Sx+2, Sx+8, Sx+10]; B_ = [Sx+4, Sx+6, Sx+12, Sx+14]
        else:
            pa = P_reg(kt, 2*cb)[1]; pb = P_reg(kt, 2*cb+1)[1]
            A_ = [pa+i for i in range(4)]; B_ = [pb+i for i in range(4)]
        E = lambda i: Ins(f"v_exp_f32 v{Sx+i}, v{Sx+i}")
        C = lambda d, i: Ins(f"v_cvt_pk_bf16_f32 v{d}, v{Sx+i}, v{Sx+i+1}")
        SW = lambda i: Ins(f"v_permlane16_swap_b32 v{A_[i]}, v{B_[i]}")
        def W(i):
            if not toA: return []
            pa = P_reg(kt, 2*cb)[1]; pb = P_reg(kt, 2*cb+1)[1]
            return [Ins(f"v_accvgpr_write_b32 a{pa+i}, v{A_[i]}"), Ins(f"v_accvgpr_write_b32 a{pb+i}, v{B_[i]}")]
        L += [E(0), E(1), E(2), E(3), E(4), E(5), C(A_[0], 0), C(A_[1], 2), E(6), E(7), C(B_[0], 4), E(8), E(9), C(B_[1], 6),
              E(10), E(11), SW(0), C(A_[2], 8), SW(1), E(12), E(13), C(A_[3], 10), E(14), E(15)]
        L += W(0) + [C(B_[2], 12), C(B_[3], 14)] + W(1) + [SW(2), SW(3)]
        L += W(2) + W(3)
    return L

def phase2(P, handles):
    PF = 4
    for kt in range(16):
        bb = []
        buf = SB[kt & 1]
        for s_ in range(12):
            n = 12*kt + s_
            ar = RING + (n % 16)*4
            for cb in range(2):
                d = buf + 16*cb
                q = QF + 8*s_ + 4*cb
                c = f"v[{d}:{d+15}]" if s_ > 0 else "0"
                bb.append(Ins(f"v_mfma_f32_32x32x16_bf16 v[{d}:{d+15}], a[{ar}:{ar+3}], v[{q}:{q+3}], {c}"))
        s_rd, s_dma, s_sm = [], [], []
        for s_ in range(12):
            n = 12*kt + s_ + PF
            lo = 2*s_
            if n < 12*16:
                if s_ == 8:
                    s_rd.append((WaitVM(handles['k'][kt+1]), lo-1, lo-1))
                    s_rd.append((Ins("s_barrier"), lo-1, lo-1))
                s_rd.append((k_frag(n), lo, lo+1))
            else:
                m = n - 192
                if m == 0:
                    s_rd.append((WaitVM(handles['v'][0]), lo-1, lo-1))
                    s_rd.append((Ins("s_barrier"), lo-1, lo-1))
                a, b = tr_v(m)
                s_rd.append((a, lo, lo+1)); s_rd.append((b, lo, lo+1))
        if kt + 4 < 16:
            L, D = dma_k(kt+4)
            handles['k'][kt+4] = D[-1]
            s_dma += [(L[0], 16, 18), (L[1], 16, 18)] + [(d, 17+2*i, 19+2*i) for i, d in enumerate(D)]
        elif kt >= 12 and kt <= 14:
            L, D = dma_v(kt-12)
            handles['v'][kt-12] = D[-1]
            s_dma += [(L[0], 2, 18), (L[1], 2, 18)] + [(d, 4+4*i, 22) for i, d in enumerate(D)]
        if kt > 0:
            sm = softmax_stream(kt-1)
            if kt == 2 and OPT.get('pf') == 'wo': sm = pf_wo() + sm
            n = len(sm)
            for i, x in enumerate(sm):
                s_sm.append((x, 2, 23))
        P.many(weave(bb, [s_rd, s_dma, s_sm], 24, max_mem=1))

def v_seq():
    L = [(G, kt, tp) for G in range(2) for kt in range(16) for tp in range(4)]
    L += [(2, kt, tp) for kt in range(8) for tp in range(4)]
    L += [(2, kt, tp) for kt in range(8, 16) for tp in (0, 1)]
    L += [(2, kt, tp) for kt in range(8, 16) for tp in (2, 3)]
    return L
VSEQ = v_seq()

def tr_v(m):
    G, kt, tp = VSEQ[m]
    st = 4*G + (kt >> 2)
    off = (st % V_NS)*V_ST + (kt & 3)*4096
    r = RING + ((192 + m) % 16)*4
    return [Ins(f"ds_read_b64_tr_b16 a[{r}:{r+1}], v{vVT+tp} offset:{off}"),
            Ins(f"ds_read_b64_tr_b16 a[{r+2}:{r+3}], v{vVT+tp} offset:{off+2048}")]

ONES = 60

def o_epilogue(G):
    L = []
    ob = OACC[G & 1]
    for u in range(2):
        L.append(Ins(f"s_mov_b32 s{sOFH}, {(2*G+u)*1024}"))
        for ct in range(4):
            x = ob + ((2*u)*4 + ct)*4; y = ob + ((2*u+1)*4 + ct)*4
            for i in range(4): L.append(Ins(f"v_mul_f32 v{x+i}, v{RINV+ct}, v{x+i}"))
            for i in range(4): L.append(Ins(f"v_mul_f32 v{y+i}, v{RINV+ct}, v{y+i}"))
            L.append(Ins(f"v_cvt_pk_bf16_f32 v{x}, v{x}, v{x+1}"))
            L.append(Ins(f"v_cvt_pk_bf16_f32 v{x+1}, v{x+2}, v{x+3}"))
            L.append(Ins(f"v_cvt_pk_bf16_f32 v{x+2}, v{y}, v{y+1}"))
            L.append(Ins(f"v_cvt_pk_bf16_f32 v{x+3}, v{y+2}, v{y+3}"))
            L.append(Ins(f"buffer_store_dwordx4 v[{x}:{x+3}], v{vHO+ct}, s[{sWS}:{sWS+3}], s{sOFH} offen sc1"))
    return L

def phase3(P, handles):
    PF = 4
    for G in range(3):
        ob = OACC[G & 1]
        pre = []
        epi = []
        if G == 1:
            for ct in range(4): epi.append(Ins(f"v_rcp_f32 v{RINV+ct}, v{LACC+4*ct}"))
        if G >= 1: epi += o_epilogue(G-1)
        nslots_total = 16*16
        epi_ptr = 0
        for kt in range(16):
            bb = []
            for tp in range(4):
                m = 64*G + 4*kt + tp
                ar = RING + ((192 + m) % 16)*4
                for ct in range(4):
                    d = ob + (tp*4 + ct)*4
                    p = P_reg(kt, ct)
                    c = f"v[{d}:{d+3}]" if kt > 0 else "0"
                    bb.append(Ins(f"v_mfma_f32_16x16x32_bf16 v[{d}:{d+3}], a[{ar}:{ar+3}], {R(p,4)}, {c}"))
            if G == 0:
                for ct in range(4):
                    d = LACC + 4*ct
                    p = P_reg(kt, ct)
                    c = f"v[{d}:{d+3}]" if kt > 0 else "0"
                    bb.append(Ins(f"v_mfma_f32_16x16x32_bf16 v[{d}:{d+3}], v[{ONES}:{ONES+3}], {R(p,4)}, {c}"))
            s_rd, s_dma, s_x = [], [], []
            st = 4*G + (kt >> 2)
            for tp in range(4):
                m = 64*G + 4*kt + tp + PF
                if m >= 192: continue
                lo = 4*tp
                if tp == 0 and (kt & 3) == 3:
                    s_rd.append((WaitVM(handles['v'][st+1]), -1, -1))
                    s_rd.append((Ins("s_barrier"), -1, -1))
                a, b = tr_v(m)
                s_rd.append((a, lo, lo+1)); s_rd.append((b, lo+1, lo+2))
            if (kt & 3) == 3 and st + 3 < 12:
                L, D = dma_v(st+3)
                handles['v'][st+3] = D[-1]
                s_dma += [(L[0], 0, 2), (L[1], 0, 3)] + [(d, 2+3*i, 4+3*i) for i, d in enumerate(D)]
            if G == 0 and kt < 2:
                sm = softmax_stream(15)
                half = len(sm)//2
                part = sm[:half] if kt == 0 else sm[half:]
                s_x = [(x, 0 if kt else 2, 19) for x in part]
            elif epi and kt >= 1:
                per = -(-len(epi) // 13)
                part = epi[epi_ptr:epi_ptr+per]; epi_ptr += len(part)
                s_x = [(x, 0, len(bb)-1) for x in part]
            P.many(weave(bb, [s_rd, s_dma, s_x], 8))
        assert epi_ptr >= len(epi)
    P.many(o_epilogue(2))

def phase3_setup():
    L = [Ins(f"v_mov_b32 v{ONES+i}, 0x3f803f80") for i in range(4)]
    L.append(Ins(f"s_mul_i32 s{sT0}, s38, {196608-20480}"))
    L.append(Ins(f"s_mul_i32 s{sT1}, s24, 6144"))
    L.append(Ins(f"s_add_u32 s{sT0}, s{sT0}, s{sT1}"))
    L.append(Ins(f"s_add_u32 s{sT0}, s{sT0}, {WS_OF-WS_HF}"))
    for ct in range(4):
        L.append(Ins(f"v_add_u32 v{vHO+ct}, s{sT0}, v{vHO+ct}"))
        if ct: L.append(Ins(f"v_add_u32 v{vHO+ct}, {ct*(196608-20480)}, v{vHO+ct}"))
    return L

def phase1(P, handles):
    NK = 20
    PF = 4
    dmah = handles['wq']
    for ks in range(NK):
        bb = []
        for t in range(12):
            n = 12*ks + t
            ar = RING + (n % 16)*4
            for ct in range(4):
                acc = QACC + (4*t + ct)*4
                b = (ks % 4)*16 + 4*ct
                c = f"v[{acc}:{acc+3}]" if ks > 0 else "0"
                bb.append(Ins(f"v_mfma_f32_16x16x32_bf16 v[{acc}:{acc+3}], a[{ar}:{ar+3}], a[{b}:{b+3}], {c}"))
        s_tr, s_h, s_dma = [], [], []
        for t in range(12):
            n = 12*ks + t + PF
            if n >= 12*NK:
                if OPT.get('p2', False):
                    lo = 4*t
                    if t == 8:
                        s_tr.append((WaitVM(handles['k'][0]), lo-1, lo-1))
                        s_tr.append((Ins("s_barrier"), lo-1, lo-1))
                    s_tr.append((k_frag(n - 12*NK), lo, lo+2))
                continue
            a, b = tr_wq(n)
            lo = 4*t
            if t == 8:
                if OPT['dma'] or ks+1 < 4: s_tr.append((WaitVM(dmah[ks+1]), lo-1, lo-1))
                if OPT['barrier']: s_tr.append((Ins("s_barrier"), lo-1, lo-1))
            if OPT['tr']:
                s_tr.append((a, lo, lo+1)); s_tr.append((b, lo+1, lo+2))
        if ks + 3 < NK and OPT['hload']:
            L, D = load_h(ks+3)
            s_h.append((L[0], 0, 1))
            for i, d in enumerate(D): s_h.append((d, 4*i+2, 4*i+3))
        if not OPT['dma']: pass
        elif ks + 4 < NK:
            L, D = dma_wq(ks+4)
            dmah[ks+4] = D[-1]
            s_dma.append((L[0], 33, 35)); s_dma.append((L[1], 34, 36))
            for i, d in enumerate(D): s_dma.append((d, 36+4*i, 38+4*i))
        elif ks >= 16:
            kt = ks - 16
            L, D = dma_k(kt)
            handles['k'][kt] = D[-1]
            s_dma.append((L[0], 33, 35)); s_dma.append((L[1], 34, 36))
            for i, d in enumerate(D): s_dma.append((d, 36+4*i, 38+4*i))
        s_pf = []
        if OPT.get('pf', 'loop') == 'loop':
            if ks == 1: s_pf = [(x, 2, 47) for x in pf_kv()]
            if ks == 8: s_pf = [(x, 2, 47) for x in pf_weights()]
        P.many(weave(bb, [s_tr, s_h, s_dma, s_pf], 8))

SX = 28
def s_buf(kt): return SX if kt == 0 else SB[kt & 1]

MREG = [2, 3]
def max_stream(vt):
    L = []
    buf = s_buf(vt)
    for cb in range(2):
        Sx = buf + 16*cb; m = MREG[cb]
        if vt == 0:
            L.append(Ins(f"v_max_f32 v{m}, v{Sx}, v{Sx+1}")); rest = range(2, 16, 2)
        else:
            rest = range(0, 16, 2)
        for i in rest: L.append(Ins(f"v_max3_f32 v{m}, v{m}, v{Sx+i}, v{Sx+i+1}"))
    if vt == 15:
        for cb in range(2):
            m = MREG[cb]
            L += [Ins(f"v_mov_b32 v1, v{m}"), Ins("s_nop 1"), Ins(f"v_permlane32_swap_b32 v{m}, v1"), Ins("s_nop 1"), Ins(f"v_max_f32 v{m}, v{m}, v1")]
    return L

def softmax_stream2(kt, vt=None, sub=False):
    global SB
    L = []
    buf = s_buf(kt if vt is None else vt)
    toA = P_reg(kt, 0)[0] == 'a'
    for cb in range(2):
        Sx = buf + 16*cb
        if toA:
            A_ = [Sx+0, Sx+2, Sx+8, Sx+10]; B_ = [Sx+4, Sx+6, Sx+12, Sx+14]
        else:
            pa = P_reg(kt, 2*cb)[1]; pb = P_reg(kt, 2*cb+1)[1]
            A_ = [pa+i for i in range(4)]; B_ = [pb+i for i in range(4)]
        def E(i):
            if sub:
                return [Ins(f"v_sub_f32 v{Sx+i}, v{Sx+i}, v{MREG[cb]}"), Ins(f"v_exp_f32 v{Sx+i}, v{Sx+i}")]
            if OPT.get('noexp'): return []
            return [Ins(f"v_exp_f32 v{Sx+i}, v{Sx+i}")]
        C = lambda d, i: [Ins(f"v_cvt_pk_bf16_f32 v{d}, v{Sx+i}, v{Sx+i+1}")]
        SW = lambda i: [Ins(f"v_permlane16_swap_b32 v{A_[i]}, v{B_[i]}")] if not OPT.get('noswap') else []
        def W(i):
            if not toA or OPT.get('noaccw'): return []
            pa = P_reg(kt, 2*cb)[1]; pb = P_reg(kt, 2*cb+1)[1]
            return [Ins(f"v_accvgpr_write_b32 a{pa+i}, v{A_[i]}"), Ins(f"v_accvgpr_write_b32 a{pb+i}, v{B_[i]}")]
        for x in (E(0), E(1), E(2), E(3), E(4), E(5), C(A_[0], 0), C(A_[1], 2), E(6), E(7), C(B_[0], 4), E(8), E(9), C(B_[1], 6),
                  E(10), E(11), C(A_[2], 8), SW(0), E(12), E(13), SW(1), C(A_[3], 10), E(14), E(15), W(0), C(B_[2], 12), C(B_[3], 14), W(1),
                  SW(2), SW(3)): L += x
        L += W(2) + W(3)
    return L
NEGM = 62

def q_convert_tile(t):
    L = []
    for cb in range(2):
        x = QACC + (4*t + 2*cb)*4; y = x + 4
        d = QF + 8*t + 4*cb
        L += [Ins(f"v_cvt_pk_bf16_f32 v{d}, v{x}, v{x+1}"), Ins(f"v_cvt_pk_bf16_f32 v{d+1}, v{x+2}, v{x+3}"),
              Ins(f"v_cvt_pk_bf16_f32 v{d+2}, v{y}, v{y+1}"), Ins(f"v_cvt_pk_bf16_f32 v{d+3}, v{y+2}, v{y+3}")]
    for cb in range(2):
        d = QF + 8*t + 4*cb
        L += [Ins(f"v_permlane16_swap_b32 v{d}, v{d+2}"), Ins(f"v_permlane16_swap_b32 v{d+1}, v{d+3}")]
    return L

sOK = 100
def main_schedule(P, H, safe=False):
    NK = 20; PF = 4
    NT = 32 if safe else 16
    F_K = 240; F_V = 240 + 12*NT; F_END = F_V + 192
    bb = []
    p1_0 = 0
    for ks in range(NK):
        for t in range(12):
            n = 12*ks + t
            ar = RING + (n % 16)*4
            for ct in range(4):
                acc = QACC + (4*t + ct)*4
                b = (ks % HS())*16 + 4*ct
                c = f"v[{acc}:{acc+3}]" if ks > 0 else "0"
                bb.append(Ins(f"v_mfma_f32_16x16x32_bf16 v[{acc}:{acc+3}], a[{ar}:{ar+3}], a[{b}:{b+3}], {c}"))
    p2_0 = len(bb)
    for kt in range(NT):
        buf = s_buf(kt)
        for s_ in range(12):
            n = 12*kt + s_
            ar = RING + (n % 16)*4
            for cb in range(2):
                d = buf + 16*cb; q = QF + 8*s_ + 4*cb
                c = f"v[{d}:{d+15}]" if s_ > 0 else "0"
                bb.append(Ins(f"v_mfma_f32_32x32x16_bf16 v[{d}:{d+15}], a[{ar}:{ar+3}], v[{q}:{q+3}], {c}"))
    p3_0 = len(bb)
    kstart = {}
    fslot = {}
    lastfrag = {}
    for mi, (G, kt, tp) in enumerate(VSEQ):
        ob = OACC[G & 1]
        if (G, kt) not in kstart: kstart[(G, kt)] = len(bb)
        ar = RING + ((192 + mi) % 16)*4
        fslot[mi] = len(bb)
        for ct in range(4):
            d = ob + (tp*4 + ct)*4; p = P_reg(kt, ct)
            c = f"v[{d}:{d+3}]" if kt > 0 else "0"
            bb.append(Ins(f"v_mfma_f32_16x16x32_bf16 v[{d}:{d+3}], a[{ar}:{ar+3}], {R(p,4)}, {c}"))
        lastfrag[(G, tp)] = len(bb) - 1
        if G == 0 and tp == 3:
            for ct in range(4):
                d = LACC + 4*ct; p = P_reg(kt, ct)
                c = f"v[{d}:{d+3}]" if kt > 0 else "0"
                bb.append(Ins(f"v_mfma_f32_16x16x32_bf16 v[{d}:{d+3}], v[{ONES}:{ONES+3}], {R(p,4)}, {c}"))
    nslots = len(bb)
    def use_slot(f):
        if f < 240: return 4*f
        if f < F_V: return p2_0 + 2*(f-240)
        return fslot[f-F_V]
    def reads(f):
        if f < 240: return tr_wq(f)
        if f < F_V: return [k_frag(f-240)]
        return tr_v(f-F_V)
    grp = []; wq_h = dict(H['wq']); k_h = {}; v_h = {}; h_h = dict(H['h'])
    bar = {}
    def first_read_slot(f): return use_slot(f - PF)
    for ks in range(1, NK): bar[('wq', ks)] = first_read_slot(12*ks) - 1
    for kt in range(NT): bar[('k', kt)] = first_read_slot(240 + 12*kt) - 1
    vfirst = {}
    for mi, (G, kt, tp) in enumerate(VSEQ): vfirst.setdefault(4*G + (kt >> 2), mi)
    for st in range(12): bar[('v', st)] = first_read_slot(F_V + vfirst[st]) - 1
    for ks in range(4, NK):
        L, D = dma_wq(ks); wq_h[ks] = D[-1]
        lo = bar[('wq', ks-3)] + 1 if ks-3 >= 1 else 0
        grp.append((lo, lo + 44, L, D))
    HB = HS() - 1
    for ks in range(3, NK):
        L, D = load_h(ks); h_h[ks] = D[-1]
        lo = max(0, 48*(ks-HB))
        hi = lo + 44 if ks - HB >= 0 else 48*max(ks-3, 0) + 44
        grp.append((lo, hi, L, D))
    for kt in range(NT):
        L, D = dma_k(kt); k_h[kt] = D[-1]
        if kt < 3: lo = 48*(16+kt) + 8; hi = lo + 38
        elif kt == 3: lo = bar[('k', 0)] + 1; hi = lo + 12
        else: lo = bar[('k', kt-3)] + 1; hi = lo + 20
        grp.append((lo, hi, L, D))
    for st in range(12):
        L, D = dma_v(st); v_h[st] = D[-1]
        if st < 3: lo = p2_0 + 24*(NT-4+st) + 1; hi = lo + 20
        else: lo = bar[('v', st-2)] + 1; hi = lo + 40
        grp.append((lo, hi, L, D))
    placed = space_vm(grp, 4, nslots)
    streams_vm = {}
    seen = {}
    for slot, pre, op, gi in placed:
        key = 'h' if op.kind == 'vload' else 'dma'
        if seen.get(key) != gi:
            assert (key, gi) not in seen, "groups interleave"
            seen[(key, gi)] = True; seen[key] = gi
    for slot, pre, op, gi in placed:
        key = 'h' if op.kind == 'vload' else 'dma'
        st_ = streams_vm.setdefault(key, [])
        if OPT.get('novm'): continue
        for x in pre: st_.append((x, slot-3, slot))
        st_.append((op, slot, slot+int(OPT.get('vmslack', 3))))
    s_rd, s_w = [], []
    vopen = {mi: st for st, mi in vfirst.items()}
    last_read = dict(H['tr'])
    for f in range(PF, F_END):
        lo = use_slot(f - PF)
        key = None
        if f < 240 and f % 12 == 0: key = ('wq', f // 12); hh = wq_h[f // 12]
        elif 240 <= f < F_V and (f-240) % 12 == 0: key = ('k', (f-240)//12); hh = k_h[(f-240)//12]
        elif f >= F_V and (f-F_V) in vopen: key = ('v', vopen[f-F_V]); hh = v_h[vopen[f-F_V]]
        if key:
            if not OPT.get('novm'): s_rd.append((WaitVM(hh), lo-1, lo-1))
            if not OPT.get('nobar'): s_rd.append((Ins("s_barrier"), lo-1, lo-1))
        rr = reads(f)
        nxt = use_slot(f - PF + 1) if f - PF + 1 < F_END else lo + 4
        if len(rr) == 2:
            s2 = lo + 1 if nxt - lo >= 2 else lo
            s_rd.append((rr[0], lo, lo)); s_rd.append((rr[1], s2, s2))
        else:
            s_rd.append((rr[0], lo, lo))
        last_read[f] = rr[-1]
    for f in range(F_END):
        u = use_slot(f)
        s_w.append((WaitLGKM(last_read[f]), u-1, u-1))
    s_wh = [(WaitVM(h_h[ks]), 48*ks-1, 48*ks-1) for ks in range(NK)] if not OPT.get('novm') else []
    s_v = []
    s_p3 = [(x, 0, 80) for x in prologue3() + touch_setup()]
    for t in range(12):
        e_ = 48*19 + 4*t + 5
        dl = p2_0 + 2*t - 2
        for x in q_convert_tile(t): s_v.append((x, e_, max(e_, dl)))
    for x in phase3_setup(): s_v.append((x, p2_0 + 4, p2_0 + 20))
    for vt in range(NT):
        e_ = p2_0 + 24*(vt+1) + 1
        dl = e_ + 22 if vt < NT-1 else kstart[(0, 2)]
        if safe and vt < 16: work = max_stream(vt)
        elif safe: work = softmax_stream2(vt-16, vt, sub=True)
        else: work = softmax_stream2(vt)
        for x in work: s_v.append((x, e_, dl))
    for G in range(3):
        if G == 0:
            epi = [Ins(f"v_rcp_f32 v{RINV+ct}, v{LACC+4*ct}") for ct in range(4)]
            if not safe:
                epi.append(Ins(f"s_mov_b64 s[{sOK}:{sOK+1}], -1"))
                for ct in range(4):
                    epi += [Ins(f"v_cmp_le_f32 vcc, 0x1f800000, v{LACC+4*ct}"), Ins(f"s_and_b64 s[{sOK}:{sOK+1}], s[{sOK}:{sOK+1}], vcc"),
                            Ins(f"v_cmp_ge_f32 vcc, 0x67800000, v{LACC+4*ct}"), Ins(f"s_and_b64 s[{sOK}:{sOK+1}], s[{sOK}:{sOK+1}], vcc")]
            epi += o_epilogue(0)
        elif G == 1: epi = o_epilogue(1)
        else: break
        e0 = kstart[(G+1, 0)] + 3; e1 = kstart[(G+1, 15)]
        for j, x in enumerate(epi):
            ee = e0 + (j*(e1-e0))//len(epi)
            s_v.append((x, ee, e1 + 12))
    epi2 = o_epilogue(2)
    half = len(epi2) // 2
    e0 = lastfrag[(2, 1)] + 4; e1 = nslots - 6
    for j_, x in enumerate(epi2[:half]):
        s_v.append((x, e0 + (j_*(e1-e0))//half, nslots - 1))
    s_pf = []
    if not (OPT.get('notouch') or safe):
        plan = [('k', 0, 48*2), ('k', 1, 48*4), ('k', 2, 48*6), ('v', 0, 48*8), ('v', 1, 48*10), ('v', 2, 48*12),
                ('wg', 0, 48*14), ('wu', 0, 48*16), ('wd', 0, p2_0 + 24*0),
                ('wo', 0, p2_0 + 24*1), ('wo', 1, p2_0 + 24*2), ('wo', 2, p2_0 + 24*3), ('wo', 3, p2_0 + 24*4),
                ('wo', 4, p2_0 + 24*5), ('wo', 5, p2_0 + 24*6), ('wo', 6, p2_0 + 24*7), ('wo', 7, p2_0 + 24*8)]
        skip = OPT.get('skiptouch', ())
        plan = [t for t in plan if t[0] not in skip]
        for kind, i_, slot in plan:
            t0_, t1_ = (int(OPT.get('tlo', 20)), int(OPT.get('thi', 40))) if slot < p2_0 else (int(OPT.get('tlo2', 20)), int(OPT.get('thi2', 40)))
            for x in touch16(kind, i_, 'a191' if slot < p2_0 else 'v1'): s_pf.append((x, slot + t0_, slot + t1_))
    s_st = []
    if OPT.get('stamps_in') and not safe:
        pts = [48*10, p2_0, p2_0 + 24*8, p3_0, kstart[(1, 0)], kstart[(2, 0)]]
        for i, sl in enumerate(pts): s_st.append((Ins(f"s_memtime s[{sTS+2*(i+2)}:{sTS+2*(i+2)+1}]"), sl-1, sl-1))
    streams = [s_w, s_wh, s_rd] + list(streams_vm.values()) + [s_p3, s_v, s_pf, s_st]
    P.many(weave(bb, streams))
    P.many(epi2[half:])
    P.last_o_store = epi2[-1]
    return p2_0, p3_0

def pf_v():
    return [Ins(f"s_mul_i32 s{sT0}, s25, 24576"), Ins(f"s_mul_i32 s{sT1}, s26, 6144"), Ins(f"s_add_u32 s{sT0}, s{sT0}, s{sT1}"),
            Ins(f"s_add_u32 s{sT0}, s{sT0}, {BIAS}"), Ins(f"v_lshlrev_b32 v{PFA}, 7, v0"), Ins(f"v_add_u32 v{PFA}, s{sT0}, v{PFA}"),
            NT(f"buffer_load_dword a191, v{PFA}, s[{sV}:{sV+3}], 0 offen")]
def pf_k():
    return [Ins(f"s_mul_i32 s{sT0}, s25, 24576"), Ins(f"s_mul_i32 s{sT1}, s26, 6144"), Ins(f"s_add_u32 s{sT0}, s{sT0}, s{sT1}"),
            Ins(f"s_add_u32 s{sT0}, s{sT0}, {BIAS}"), Ins(f"v_lshlrev_b32 v{PFA}, 7, v0"), Ins(f"v_add_u32 v{PFA}, s{sT0}, v{PFA}"),
            NT(f"buffer_load_dword a191, v{PFA}, s[{sK}:{sK+3}], 0 offen")]
def pf_wo2():
    return [Ins(f"s_lshl_b32 s{sT0}, s2, 2"), Ins(f"s_add_u32 s{sT0}, s{sT0}, s26"), Ins(f"s_mul_i32 s{sT1}, s{sT0}, 7680"),
            Ins(f"v_lshlrev_b32 v{PFA}, 7, v0"), Ins(f"v_add_u32 v{PFA}, s{sT1}, v{PFA}"),
            NT(f"buffer_load_dword a191, v{PFA}, s[52:55], 0 offen")]
def pf_w3():
    L = [Ins(f"s_lshl_b32 s{sT0}, s2, 2"), Ins(f"s_add_u32 s{sT0}, s{sT0}, s26"), Ins(f"s_mul_i32 s{sT1}, s{sT0}, 1920"),
         Ins(f"v_lshlrev_b32 v{PFA}, 7, v0"), Ins(f"v_add_u32 v{PFA}, s{sT1}, v{PFA}"),
         Ins(f"v_cmp_gt_u32 vcc, 15, v0"), Ins(f"v_mov_b32 v59, 0x7ff00000"), Ins("s_nop 0"), Ins(f"v_cndmask_b32 v{PFA}, v59, v{PFA}, vcc")]
    for srd_ in (56, 60, 64): L.append(NT(f"buffer_load_dword a191, v{PFA}, s[{srd_}:{srd_+3}], 0 offen"))
    return L
PFA = 27
TOUCH = dict(v=pf_v, k=pf_k, wo=pf_wo2, w3=pf_w3)

def guard_branch(P):
    e = P.e
    e(f"s_cmp_eq_u64 s[{sOK}:{sOK+1}], -1"); e("s_cselect_b32 s3, 0, 1")
    e("s_barrier")
    e("v_mov_b32 v28, s3"); e("s_lshl_b32 s3, s26, 2"); e("v_mov_b32 v29, s3")
    e("ds_write_b32 v29, v28")
    e("s_waitcnt lgkmcnt(0)"); e("s_barrier")
    e("v_mov_b32 v29, 0")
    e("ds_read_b128 v[32:35], v29")
    e("v_or3_b32 v32, v32, v33, v34"); e("v_or_b32 v32, v32, v35")
    e("v_readfirstlane_b32 s3, v32")
    e("s_cmp_eq_u32 s3, 0"); e("s_cbranch_scc0 K2_SAFE")

def safe_entry(P):
    e = P.e
    e("K2_SAFE:")
    e("s_waitcnt vmcnt(0)"); e("s_barrier")
    e("s_lshl_b32 s3, s26, 6"); e("v_add_u32 v0, s3, v0")

def main_pro(P, H, safe=False, mono=False):
    H['wq'] = {}; H['h'] = {}; H['tr'] = {}
    if mono and not safe:
        for ks in range(4):
            L, D = dma_wq(ks)
            P.many(L); P.many(D); H['wq'][ks] = D[-1]
            if ks == 0: prologue2(P)
        r = lambda t: P.e(RAW(t))
        P.e("s_load_dwordx2 s[84:85], s[0:1], 96"); P.e("s_waitcnt lgkmcnt(0)")
        P.e("s_mov_b32 s86, 256"); P.e("s_mov_b32 s87, 0x20000")
        r("s_cmp_lg_u32 s26, 0"); r("s_cbranch_scc1 K2_HB")
        r("v_mul_u32_u24 v28, 184, v0"); r("v_add_u32 v28, 8, v28"); r("s_mov_b64 exec, 3"); r("s_mov_b32 s32, 0")
        r("K2_TP:")
        r("buffer_load_dword v29, v28, s[84:87], 0 offen sc1")
        r("s_waitcnt vmcnt(0)")
        r("v_readlane_b32 s33, v29, 0"); r("v_readlane_b32 s34, v29, 1"); r("s_add_u32 s32, s32, 1"); r("s_nop 2")
        r("s_cmp_lt_u32 s34, 80"); r("s_cselect_b32 s34, 0, s33")
        r("s_cmp_lg_u32 s34, 0"); r("s_cbranch_scc1 K2_TD")
        r("s_sleep 8")
        r("s_cmp_lt_u32 s32, 0x4000"); r("s_cbranch_scc1 K2_TP")
        r("K2_TD:")
        r("s_mov_b64 exec, 1")
        r(f"s_lshl_b32 s3, s25, 7"); r(f"s_add_u32 s3, s3, {WS_CNT + 16384}"); r("v_mov_b32 v28, s3"); r("s_mov_b32 s32, 0")
        r("K2_HP:")
        r(f"buffer_load_dword v29, v28, s[{sWS}:{sWS+3}], 0 offen sc1")
        r("s_waitcnt vmcnt(0)")
        r("v_readfirstlane_b32 s3, v29"); r("s_add_u32 s32, s32, 1"); r("s_nop 2")
        r("s_cmp_eq_u32 s3, s33"); r("s_cbranch_scc1 K2_HD")
        r("s_sleep 2")
        r("s_cmp_lt_u32 s32, 0x4000"); r("s_cbranch_scc1 K2_HP")
        r("K2_HD:")
        r("s_mov_b64 exec, -1")
        r("K2_HB:")
        P.e("s_barrier")
        for ks in range(3):
            L, D = load_h(ks)
            P.many(L); P.many(D); H['h'][ks] = D[-1]
    else:
      for ks in range(4):
        if ks == 0 and OPT.get('hfirst', True):
            L, D = load_h(ks)
            P.many(L); P.many(D); H['h'][ks] = D[-1]
        L, D = dma_wq(ks)
        P.many(L); P.many(D); H['wq'][ks] = D[-1]
        if ks < 3 and not (ks == 0 and OPT.get('hfirst', True)):
            L, D = load_h(ks)
            P.many(L); P.many(D); H['h'][ks] = D[-1]
        if ks == 0: prologue2(P)
    if not safe: code_prefetch(P, 49152)
    P.wait_vm(H['wq'][0])
    P.e("s_barrier")
    for n in range(4):
        rr = tr_wq(n); P.many(rr); H['tr'][n] = rr[-1]

def phase1_pro(P, handles):
    for ks in range(4):
        L, D = dma_wq(ks)
        P.many(L); P.many(D)
        handles['wq'][ks] = D[-1]
        if ks < 3:
            L, D = load_h(ks)
            P.many(L); P.many(D)
    if OPT.get('pf', 'loop') == 'pro':
        P.many(pf_kv()); P.many(pf_weights())
    P.wait_vm(handles['wq'][0])
    P.e("s_barrier")
    for n in range(4):
        P.many(tr_wq(n))

def q_convert(P):
    for t in range(12):
        for cb in range(2):
            x = QACC + (4*t + 2*cb)*4; y = x + 4
            d = QF + 8*t + 4*cb
            P.e(f"v_cvt_pk_bf16_f32 v{d}, v{x}, v{x+1}")
            P.e(f"v_cvt_pk_bf16_f32 v{d+1}, v{x+2}, v{x+3}")
            P.e(f"v_cvt_pk_bf16_f32 v{d+2}, v{y}, v{y+1}")
            P.e(f"v_cvt_pk_bf16_f32 v{d+3}, v{y+2}, v{y+3}")
        for cb in range(2):
            d = QF + 8*t + 4*cb
            P.e(f"v_permlane16_swap_b32 v{d}, v{d+2}")
            P.e(f"v_permlane16_swap_b32 v{d+1}, v{d+3}")

def dump_regs(P, regs, base_off):
    n = len(regs)
    P.e(f"s_lshl_b32 s3, s2, 2"); P.e("s_add_u32 s3, s3, s26")
    P.e(f"s_mul_i32 s3, s3, {n*256}"); P.e(f"s_add_u32 s3, s3, {base_off}")
    P.e(f"v_lshlrev_b32 v{vT0}, 2, v0"); P.e(f"v_add_u32 v{vT0}, s3, v{vT0}")
    for i, r in enumerate(regs):
        if r[0] == 'a':
            P.e(f"v_accvgpr_read_b32 v{vT1}, a{r[1]}")
            src = vT1
        else:
            src = r[1]
        P.e(f"s_mov_b32 s3, {i*256}")
        P.e(f"buffer_store_dword v{src}, v{vT0}, s[{sWS}:{sWS+3}], s3 offen")
        if r[0] == 'a': P.e("s_waitcnt vmcnt(0)")

def stamp(P, idx):
    P.e(f"s_memtime s[{sTS+2*idx}:{sTS+2*idx+1}]")

def write_stamps(P, n):
    P.e("s_waitcnt lgkmcnt(0)")
    P.e(f"s_lshl_b32 s3, s2, 2"); P.e("s_add_u32 s3, s3, s26"); P.e("s_lshl_b32 s3, s3, 6"); P.e(f"s_add_u32 s3, s3, {WS_STAMP}")
    for i in range(n):
        P.e(f"v_mov_b32 v{vT1}, s{sTS+2*i}")
        P.e(f"v_mov_b32 v{vT0}, s3")
        P.e(f"buffer_store_dword v{vT1}, v{vT0}, s[{sWS}:{sWS+3}], 0 offen offset:{4*i}")
        P.e("s_waitcnt vmcnt(0)")

KD = """.section .rodata,"a"
.p2align 6
.amdhsa_kernel {name}
  .amdhsa_next_free_vgpr {vgpr}
  .amdhsa_next_free_sgpr 102
  .amdhsa_accum_offset {acc}
  .amdhsa_group_segment_fixed_size 0
  .amdhsa_kernarg_size 112
  .amdhsa_user_sgpr_count 2
  .amdhsa_user_sgpr_kernarg_segment_ptr 1
  .amdhsa_system_sgpr_workgroup_id_x 1
.end_amdhsa_kernel
"""

def wrap(kernels, launches, tail_text=""):
    s = ""
    for nm, g, b, l in launches:
        s += f"; @launch kernel={nm} grid=({g},1,1) block=({b},1,1) lds={l}\n"
    s += '.amdgcn_target "amdgcn-amd-amdhsa--gfx950"\n.text\n' + MACROS
    for nm, txt, vg, ac in kernels:
        s += f".globl {nm}\n.p2align 8\n.type {nm},@function\n{nm}:\n{txt}"
    s += "K_TEXT_END:\n" + tail_text
    for nm, txt, vg, ac in kernels:
        s += KD.format(name=nm, vgpr=vg, acc=ac)
    return s

def code_prefetch(P, nbytes):
    P.e("s_getpc_b64 s[48:49]")
    P.e(f"v_lshlrev_b32 v{vT0}, 2, v0")
    P.e(f"s_lshl_b32 s3, s26, 8"); P.e(f"v_add_u32 v{vT0}, s3, v{vT0}")
    P.e(f"v_lshlrev_b32 v{vT0}, 4, v{vT0}")
    for off in range(0, nbytes, 16384):
        P.e(NT(f"global_load_dword v{vT1}, v{vT0}, s[48:49]"))
        P.e(f"v_add_u32 v{vT0}, 16384, v{vT0}")

def build_p1(fname):
    P = Prog()
    H = {'wq': {}, 'k': {}, 'v': {}}
    prologue(P, stamps=False)
    if OPT['pfcode']: code_prefetch(P, 16384)
    stamp(P, 0)
    phase1_pro(P, H)
    stamp(P, 1)
    phase1(P, H)
    stamp(P, 2)
    q_convert(P)
    stamp(P, 3)
    P.e("s_waitcnt vmcnt(0)")
    dump_regs(P, [('v', QF+i) for i in range(96)], WS_DBG)
    write_stamps(P, 4)
    P.e("K2_END:")
    P.e("s_endpgm")
    P.finalize()
    print("estimate", P.estimate(), "nops", P.nops, "ninstr", len(P.final))
    open(fname, "w").write(wrap([("k2_kernel", P.text(), 512, 256)], [("k2_kernel", 256, 256, LDS_BYTES)]))

def build_full(fname, dump_p=False):
    OPT.update(dict(dma=True, hload=True, barrier=True, tr=True, pfcode=True, p2=True))
    P = Prog()
    H = {'wq': {}, 'k': {}, 'v': {}}
    prologue(P, stamps=False)
    code_prefetch(P, 49152)
    stamp(P, 0)
    phase1_pro(P, H)
    stamp(P, 1)
    phase1(P, H)
    stamp(P, 2)
    q_convert(P)
    P.many(phase3_setup())
    stamp(P, 3)
    phase2(P, H)
    stamp(P, 4)
    phase3(P, H)
    stamp(P, 5)
    P.e("s_waitcnt vmcnt(0)")
    stamp(P, 6)
    if dump_p:
        regs = []
        for kt in range(16):
            for ct in range(4):
                p = P_reg(kt, ct)
                regs += [(p[0], p[1]+i) for i in range(4)]
        regs += [('v', LACC+i) for i in range(16)]
        dump_regs(P, regs, WS_DBG)
    write_stamps(P, 7)
    P.e("K2_END:")
    P.e("s_endpgm")
    P.finalize()
    print("estimate", P.estimate(), "nops", P.nops, "ninstr", len(P.final))
    open(fname, "w").write(wrap([("k2_kernel", P.text(), 512, 256)], [("k2_kernel", 256, 256, LDS_BYTES)]))

if __name__ == "__main__":
    import sys
    if len(sys.argv) > 1 and sys.argv[1] == "full":
        build_full("k2_full.s", dump_p=True)
        build_full("k2_fast.s", dump_p=False)
        sys.exit(0)
    build_p1("k2_p1.s")
    for nm, o in [("a", dict(dma=False, hload=False, barrier=False)), ("b", dict(dma=False, hload=True, barrier=False)),
                  ("c", dict(dma=True, hload=False, barrier=False)), ("d", dict(dma=True, hload=True, barrier=False)),
                  ("e", dict(dma=False, hload=False, barrier=True)), ("f", dict(dma=True, hload=True, barrier=True, pfcode=True)),
                  ("g", dict(dma=False, hload=False, barrier=False, tr=False))]:
        OPT.update(dict(dma=True, hload=True, barrier=True, tr=True, pfcode=False)); OPT.update(o)
        build_p1(f"k2_p1{nm}.s")
```

```python
from asmgen import *
from k2gen import WS_MOD, WS_HF, WS_OF, WS_PART, WS_X1, WS_H2F, WS_ACT, WS_BYTES, WS_WD, WS_WGU, WS_CNT
C_SCALE = 192**-0.5 * 1.4426950408889634
import struct
def f2u(x): return struct.unpack('<I', struct.pack('<f', x))[0]

NSPLIT = 4

def srd(P, s, lo, hi, nbytes):
    P.e(f"s_mov_b32 s{s}, s{lo}"); P.e(f"s_mov_b32 s{s+1}, s{hi}")
    P.e(f"s_mov_b32 s{s+2}, {nbytes}"); P.e(f"s_mov_b32 s{s+3}, 0x20000")

def pf_role(P, name, nmain, npf, ranges):
    e = P.e
    e(f"{name}_PF:")
    e(f"s_cmp_ge_u32 s2, {nmain+npf}"); e(f"s_cbranch_scc1 {name}_END")
    e(f"s_sub_u32 s20, s2, {nmain}")
    e("v_lshlrev_b32 v1, 4, v0")
    for ri, (ko, boff, nbytes, total) in enumerate(ranges):
        per = -(-nbytes // (npf*4096))*4096
        e(f"s_load_dwordx2 s[4:5], s[0:1], {ko}")
        e("s_waitcnt lgkmcnt(0)")
        e("s_mov_b32 s8, s4"); e("s_mov_b32 s9, s5"); e(f"s_mov_b32 s10, {min(total, boff+nbytes)}"); e("s_mov_b32 s11, 0x20000")
        e(f"s_mul_i32 s21, s20, {per}"); e(f"s_add_u32 s21, s21, {boff}")
        for i in range(per // 4096):
            e(NT(f"buffer_load_dwordx4 v[4:7], v1, s[8:11], s21 offen"))
            e("s_add_u32 s21, s21, 4096")
    e("s_endpgm")

def pf_role_kv(P, name, nmain, npf, kos):
    e = P.e
    parts = npf // 32
    per = 196608 // parts
    e(f"s_sub_u32 s20, s2, {nmain}")
    e("s_and_b32 s22, s20, 31"); e("s_lshr_b32 s23, s20, 5")
    e(f"s_mul_i32 s22, s22, 786432"); e(f"s_mul_i32 s23, s23, {per}"); e("s_add_u32 s22, s22, s23"); e("s_add_u32 s22, s22, 589824")
    for ko in kos:
        e(f"s_load_dwordx2 s[4:5], s[0:1], {ko}")
        e("s_waitcnt lgkmcnt(0)")
        e("s_mov_b32 s8, s4"); e("s_mov_b32 s9, s5"); e(f"s_mov_b32 s10, 25165824"); e("s_mov_b32 s11, 0x20000")
        e("s_mov_b32 s21, s22")
        for i in range(per // 4096):
            e(NT(f"buffer_load_dwordx4 v[4:7], v1, s[8:11], s21 offen"))
            e("s_add_u32 s21, s21, 4096")

def gen_k0(prefetch=True):
    P = Prog(); e = P.e
    NWG = 30*NSPLIT
    e(f"s_cmp_ge_u32 s2, {NWG}"); e("s_cbranch_scc1 K0_PF")
    e("s_load_dwordx4 s[4:7], s[0:1], 72")
    e("s_load_dwordx2 s[16:17], s[0:1], 104")
    e("s_load_dwordx2 s[18:19], s[0:1], 24")
    e(f"s_mul_i32 s3, s2, {(65536+29)//30}"); e("s_lshr_b32 s20, s3, 16")
    e("s_mul_i32 s3, s20, 30"); e("s_sub_u32 s21, s2, s3")
    e("v_and_b32 v1, 15, v0")
    e("v_lshrrev_b32 v2, 4, v0")
    e(f"s_mul_i32 s3, s20, {640//NSPLIT}")
    e("v_add_u32 v3, s3, v2")
    e("v_lshlrev_b32 v4, 1, v3")
    e("s_mov_b32 s22, 7680")
    e("v_mul_lo_u32 v5, v3, s22")
    e("v_lshlrev_b32 v6, 4, v1")
    e("v_add_u32 v5, v5, v6")
    e("s_lshl_b32 s3, s21, 8"); e("v_add_u32 v5, s3, v5")
    e("s_waitcnt lgkmcnt(0)")
    srd(P, 8, 4, 5, 1280); srd(P, 12, 6, 7, 640*3840*2); srd(P, 24, 16, 17, WS_BYTES); srd(P, 28, 18, 19, 7864320)
    NR = 160//16
    for i in range(NR):
        e(f"buffer_load_ushort v{10+i}, v4, s[8:11], 0 offen offset:{32*i}")
    e(f"s_mov_b32 s23, 0")
    for i in range(NR):
        e(f"s_mov_b32 s23, {16*7680*i}")
        e(f"buffer_load_dwordx4 v[{24+4*i}:{27+4*i}], v5, s[12:15], s23 offen")
    for i in range(NR):
        r = 10+i
        e(f"v_lshlrev_b32 v{r}, 16, v{r}")
        e(f"v_mul_f32 v9, {f2u(-1.4426950408889634)}, v{r}")
        e("v_exp_f32 v9, v9")
        e("v_add_f32 v9, 1.0, v9")
        e("v_rcp_f32 v9, v9")
        e(f"v_mul_f32 v{r}, v{r}, v9")
        e(f"v_cvt_pk_bf16_f32 v{r}, v{r}, v{r}")
        e(f"v_and_b32 v{r}, 0xffff0000, v{r}")
    for j in range(8): e(f"v_mov_b32 v{70+j}, 0")
    for i in range(NR):
        for q in range(4):
            w = 24+4*i+q
            e(f"v_lshlrev_b32 v68, 16, v{w}")
            e(f"v_and_b32 v69, 0xffff0000, v{w}")
            e(f"v_fmac_f32 v{70+2*q}, v{10+i}, v68")
            e(f"v_fmac_f32 v{71+2*q}, v{10+i}, v69")
    e("v_lshlrev_b32 v6, 5, v1")
    e("v_lshlrev_b32 v7, 9, v2")
    e("v_add_u32 v6, v6, v7")
    e("ds_write_b128 v6, v[70:73]"); e("ds_write_b128 v6, v[74:77] offset:16")
    e("s_waitcnt lgkmcnt(0)"); e("s_barrier")
    e("v_cmp_gt_u32 vcc, 128, v0")
    e("s_and_saveexec_b64 s[32:33], vcc")
    e("s_cbranch_execz K0_END")
    e("v_lshlrev_b32 v6, 2, v0")
    for r in range(16): e(f"ds_read_b32 v{30+r}, v6 offset:{512*r}")
    for r in range(1, 16): e(f"v_add_f32 v30, v30, v{30+r}")
    e("s_mul_i32 s3, s20, 15360"); e("s_lshl_b32 s23, s21, 9"); e("s_add_u32 s3, s3, s23"); e(f"s_add_u32 s3, s3, {WS_MOD}")
    e("v_add_u32 v6, s3, v6")
    e("buffer_store_dword v30, v6, s[24:27], 0 offen")
    e("K0_END:")
    e("s_endpgm")
    pf_role(P, "K0", NWG, 128, [(24, 0, 7864320, 7864320)])
    P.finalize()
    return P

def load_mod_to_lds(P, idx_list, scale_fn, tid='v0', tbase=20, lds_base=0, store_idx={}):
    e = P.e
    e(f"v_lshlrev_b32 v{tbase}, 4, {tid}")
    r = tbase+4
    for n, idx in enumerate(idx_list):
        for p in range(NSPLIT):
            off = WS_MOD + (p*3840 + idx*640)*4
            e(f"s_mov_b32 s34, {off}")
            e(f"buffer_load_dwordx4 v[{r+(n*NSPLIT+p)*4}:{r+(n*NSPLIT+p)*4+3}], v{tbase}, s[24:27], s34 offen")
    for n, idx in enumerate(idx_list):
        b = r + n*NSPLIT*4
        for p in range(1, NSPLIT):
            for i in range(4): e(f"v_add_f32 v{b+i}, v{b+i}, v{b+4*p+i}")
        for i in range(4):
            e(f"v_cvt_pk_bf16_f32 v{b+i}, v{b+i}, v{b+i}")
            e(f"v_and_b32 v{b+i}, 0xffff0000, v{b+i}")
            scale_fn(P, n, b+i)
        if n in store_idx:
            e(f"s_mov_b32 s34, {store_idx[n]}")
            e(f"buffer_store_dwordx4 v[{b}:{b+3}], v{tbase}, s[24:27], s34 offen")
        else:
            e(f"ds_write_b128 v{tbase}, v[{b}:{b+3}] offset:{lds_base + n*4096}")

def row_reduce(P, val, red_base, tmp, addr_w, addr_r):
    e = P.e
    e(f"ds_write_b32 v{addr_w}, v{val} offset:{red_base}")
    e("s_waitcnt lgkmcnt(0)"); e("s_barrier")
    for q in range(4): e(f"ds_read_b128 v[{tmp+4*q}:{tmp+4*q+3}], v{addr_r} offset:{red_base+16*q}")
    e(f"v_add_f32 v{val}, v{tmp}, v{tmp+1}")
    for i in range(2, 16): e(f"v_add_f32 v{val}, v{val}, v{tmp+i}")

def ln_common(P, X, n, a1_lds, a0_lds, out_regs, w_sgpr, eps=1e-5):
    e = P.e
    RED0, RED1 = 12288, 13312
    e("v_lshlrev_b32 v4, 6, v2"); e("v_lshlrev_b32 v5, 2, v3"); e("v_add_u32 v5, v4, v5")
    e(f"s_lshl_b32 s3, s{w_sgpr}, 4"); e("v_add_u32 v5, s3, v5")
    e(f"v_add_f32 v6, v{X}, v{X+1}")
    for i in range(2, n): e(f"v_add_f32 v6, v6, v{X+i}")
    T = 200
    row_reduce(P, 6, RED0, T, 5, 4)
    e(f"v_mul_f32 v6, {f2u(1/640)}, v6")
    for i in range(n): e(f"v_sub_f32 v{X+i}, v{X+i}, v6")
    e(f"v_mul_f32 v7, v{X}, v{X}")
    for i in range(1, n): e(f"v_fmac_f32 v7, v{X+i}, v{X+i}")
    row_reduce(P, 7, RED1, T, 5, 4)
    e(f"v_mul_f32 v7, {f2u(1/640)}, v7")
    e(f"v_add_f32 v7, {f2u(eps)}, v7")
    e("v_rsq_f32 v7, v7")
    e(f"s_mul_i32 s3, s{w_sgpr}, {5*32*4}")
    e("v_lshlrev_b32 v8, 4, v3"); e("v_add_u32 v8, s3, v8")
    for j in range(5):
        for hh in range(2):
            off = j*128 + hh*64
            e(f"ds_read_b128 v[{T}:{T+3}], v8 offset:{a1_lds+off}")
            e(f"ds_read_b128 v[{T+4}:{T+7}], v8 offset:{a0_lds+off}")
            b = X + j*8 + hh*4
            for i in range(4):
                e(f"v_mul_f32 v{b+i}, v{b+i}, v7")
                e(f"v_fma_f32 v{b+i}, v{b+i}, v{T+i}, v{T+4+i}")
            e(f"v_cvt_pk_bf16_f32 v{out_regs+j*4+hh*2}, v{b}, v{b+1}")
            e(f"v_cvt_pk_bf16_f32 v{out_regs+j*4+hh*2+1}, v{b+2}, v{b+3}")

def load_x_pieces(P, X, raw, srd_x):
    e = P.e
    for j in range(5):
        for hh in range(2):
            e(f"buffer_load_dwordx2 v[{raw+(j*2+hh)*2}:{raw+(j*2+hh)*2+1}], v9, s[{srd_x}:{srd_x+3}], 0 offen offset:{j*64+hh*32}")

def unpack_x(P, X, raw):
    e = P.e
    for j in range(10):
        for q in range(2):
            e(f"v_lshlrev_b32 v{X+j*4+q*2}, 16, v{raw+j*2+q}")
            e(f"v_and_b32 v{X+j*4+q*2+1}, 0xffff0000, v{raw+j*2+q}")

def gen_k1(prefetch=True):
    P = Prog(); e = P.e
    e("s_cmp_ge_u32 s2, 128"); e("s_cbranch_scc1 K1_PF")
    e("s_load_dwordx2 s[4:5], s[0:1], 0")
    e("s_load_dwordx2 s[16:17], s[0:1], 104")
    e("v_lshrrev_b32 v1, 6, v0"); e("v_and_b32 v10, 63, v0")
    e("v_readfirstlane_b32 s20, v1")
    e("v_and_b32 v2, 15, v10"); e("v_lshrrev_b32 v3, 4, v10")
    e("s_lshl_b32 s3, s2, 4"); e("v_add_u32 v9, s3, v2"); e("v_mul_u32_u24 v9, 1280, v9")
    e("v_lshlrev_b32 v11, 3, v3"); e("v_add_u32 v9, v9, v11")
    e("s_mul_i32 s3, s20, 320"); e("v_add_u32 v9, s3, v9")
    e("s_waitcnt lgkmcnt(0)")
    srd(P, 8, 4, 5, 2048*1280); srd(P, 24, 16, 17, WS_BYTES)
    X = 100; RAW = 60
    load_x_pieces(P, X, RAW, 8)
    def sc(P, n, r):
        if n == 0:
            P.e(f"v_mul_f32 v{r}, {f2u(C_SCALE)}, v{r}")
        else:
            P.e(f"v_add_f32 v{r}, 1.0, v{r}")
            P.e(f"v_mul_f32 v{r}, {f2u(C_SCALE)}, v{r}")
    load_mod_to_lds(P, [0, 1], sc)
    unpack_x(P, X, RAW)
    OUT = 160
    ln_common(P, X, 40, 4096, 0, OUT, 20)
    e("s_mul_i32 s3, s2, 20480"); e("s_mul_i32 s21, s20, 5120"); e("s_add_u32 s3, s3, s21"); e(f"s_add_u32 s3, s3, {WS_HF}")
    e("v_lshlrev_b32 v11, 4, v10"); e("v_add_u32 v11, s3, v11")
    for j in range(5):
        e(f"buffer_store_dwordx4 v[{OUT+4*j}:{OUT+4*j+3}], v11, s[24:27], 0 offen offset:{j*1024 if j<4 else 0}" if j < 4 else f"s_mov_b32 s21, 4096")
    e(f"buffer_store_dwordx4 v[{OUT+16}:{OUT+19}], v11, s[24:27], s21 offen")
    e("K1_END:")
    e("s_endpgm")
    e("K1_PF:")
    e("s_cmp_ge_u32 s2, 256"); e("s_cbranch_scc1 K1_END")
    e("v_lshlrev_b32 v1, 4, v0")
    pf_role_kv(P, "K1", 128, 128, [8, 16])
    e("s_endpgm")
    P.finalize()
    return P

def gen_k4(part_bf16=False, nsplit=4):
    P = Prog(); e = P.e
    e("s_cmp_ge_u32 s2, 128"); e("s_cbranch_scc1 K4_PF")
    e("s_load_dwordx2 s[4:5], s[0:1], 0")
    e("s_load_dwordx2 s[16:17], s[0:1], 104")
    e("v_lshrrev_b32 v1, 6, v0"); e("v_and_b32 v10, 63, v0")
    e("v_readfirstlane_b32 s20, v1")
    e("v_and_b32 v2, 15, v10"); e("v_lshrrev_b32 v3, 4, v10")
    e("s_lshl_b32 s3, s2, 4"); e("v_add_u32 v9, s3, v2"); e("v_mul_u32_u24 v9, 1280, v9")
    e("v_lshlrev_b32 v11, 3, v3"); e("v_add_u32 v9, v9, v11")
    e("s_mul_i32 s3, s20, 320"); e("v_add_u32 v9, s3, v9")
    e("s_mul_i32 s3, s2, 20480"); e("s_mul_i32 s21, s20, 5120"); e("s_add_u32 s3, s3, s21"); e(f"s_add_u32 s3, s3, {WS_PART}")
    e("v_lshlrev_b32 v12, 4, v10"); e("v_add_u32 v12, s3, v12")
    e("s_waitcnt lgkmcnt(0)")
    srd(P, 8, 4, 5, 2048*1280); srd(P, 24, 16, 17, WS_BYTES)
    X = 100; RAW = 60; PRAW = 140
    load_x_pieces(P, X, RAW, 8)
    def sc(P, n, r):
        if n == 2: P.e(f"v_add_f32 v{r}, 1.0, v{r}")
    load_mod_to_lds(P, [2, 3, 4, 5], sc, tbase=160, store_idx={3: WS_MOD + 0x20000})
    ACC = 20
    PR = 232 - 80
    for p in range(nsplit):
        for j in range(5):
            o = p*128*20480 + j*1024
            e(f"s_mov_b32 s21, {o}")
            e(f"buffer_load_dwordx4 v[{PRAW+p*20+4*j}:{PRAW+p*20+4*j+3}], v12, s[24:27], s21 offen")
    for p in range(nsplit):
        for q in range(20):
            r = PRAW + p*20 + q
            if p == 0:
                e(f"v_lshlrev_b32 v{ACC+2*q}, 16, v{r}"); e(f"v_and_b32 v{ACC+2*q+1}, 0xffff0000, v{r}")
            else:
                e(f"v_lshlrev_b32 v14, 16, v{r}"); e(f"v_and_b32 v15, 0xffff0000, v{r}")
                e(f"v_add_f32 v{ACC+2*q}, v{ACC+2*q}, v14"); e(f"v_add_f32 v{ACC+2*q+1}, v{ACC+2*q+1}, v15")
    unpack_x(P, X, RAW)
    e("s_waitcnt lgkmcnt(0)"); e("s_barrier")
    e(f"s_mul_i32 s3, s20, 640"); e("v_lshlrev_b32 v8, 4, v3"); e("v_add_u32 v8, s3, v8")
    T = 200
    OUTX = 160
    for j in range(10):
        e(f"ds_read_b128 v[{T}:{T+3}], v8 offset:{j*64}")
        for i in range(4):
            e(f"v_fma_f32 v{X+j*4+i}, v{ACC+j*4+i}, v{T+i}, v{X+j*4+i}")
        e(f"v_cvt_pk_bf16_f32 v{OUTX+j*2}, v{X+j*4}, v{X+j*4+1}")
        e(f"v_cvt_pk_bf16_f32 v{OUTX+j*2+1}, v{X+j*4+2}, v{X+j*4+3}")
        for q in range(2):
            e(f"v_lshlrev_b32 v{X+j*4+q*2}, 16, v{OUTX+j*2+q}")
            e(f"v_and_b32 v{X+j*4+q*2+1}, 0xffff0000, v{OUTX+j*2+q}")
    e("s_mul_i32 s3, s2, 20480"); e("s_mul_i32 s21, s20, 5120"); e("s_add_u32 s3, s3, s21")
    e("v_lshlrev_b32 v11, 4, v10"); e("v_add_u32 v11, s3, v11")
    for j in range(5):
        e(f"s_mov_b32 s21, {WS_X1 + j*1024}")
        e(f"buffer_store_dwordx4 v[{OUTX+4*j}:{OUTX+4*j+3}], v11, s[24:27], s21 offen")
    OUT = 20
    ln_common(P, X, 40, 2*4096, 1*4096, OUT, 20)
    for j in range(5):
        e(f"s_mov_b32 s21, {WS_H2F + j*1024}")
        e(f"buffer_store_dwordx4 v[{OUT+4*j}:{OUT+4*j+3}], v11, s[24:27], s21 offen")
    e("K4_END:")
    e("s_endpgm")
    pf_role(P, "K4", 128, 128, [(48, 0, 1966080, 1966080), (56, 0, 1966080, 1966080), (64, 0, 1966080, 1966080)])
    P.finalize()
    return P

WS_MODF = WS_MOD + 0x10000
NGEMV = 30*NSPLIT
NLN = 128
N01 = NGEMV + NLN

SLEEP = 6
CODE_BYTES = 131072
DIAG = False
DIRECT = False
def gen_k01(pf=('wq',), npf=256):
    P = Prog(); e = P.e
    e("s_load_dwordx4 s[4:7], s[0:1], 72")
    e("s_load_dwordx4 s[16:19], s[0:1], 96")
    e("s_load_dwordx2 s[38:39], s[0:1], 0")
    e("s_load_dwordx2 s[40:41], s[0:1], 24")
    e("s_cmp_lt_u32 s2, 40"); e("s_cbranch_scc1 K01_GA")
    e("s_cmp_lt_u32 s2, 168"); e("s_cbranch_scc1 K01_LN")
    e("s_cmp_ge_u32 s2, 248"); e("s_cbranch_scc1 K01_END")
    e("s_sub_u32 s3, s2, 168"); e(f"s_mul_i32 s20, s3, {(65536+19)//20}"); e("s_lshr_b32 s20, s20, 16")
    e("s_mul_i32 s21, s20, 20"); e("s_sub_u32 s21, s3, s21"); e("s_add_u32 s21, s21, 10")
    e("s_branch K01_G")
    e("K01_GA:")
    e("s_and_b32 s20, s2, 3"); e("s_lshr_b32 s21, s2, 2")
    e("K01_G:")
    if DIAG: e("s_memrealtime s[60:61]")
    e("v_and_b32 v1, 15, v0"); e("v_lshrrev_b32 v2, 4, v0")
    e(f"s_mul_i32 s3, s20, {640//NSPLIT}")
    e("v_add_u32 v3, s3, v2"); e("v_lshlrev_b32 v4, 1, v3")
    e("s_mov_b32 s22, 7680"); e("v_mul_lo_u32 v5, v3, s22")
    e("v_lshlrev_b32 v6, 4, v1"); e("v_add_u32 v5, v5, v6")
    e("s_lshl_b32 s3, s21, 8"); e("v_add_u32 v5, s3, v5")
    e("s_waitcnt lgkmcnt(0)")
    srd(P, 8, 4, 5, 1280); srd(P, 12, 6, 7, 640*3840*2); srd(P, 24, 18, 19, WS_BYTES); srd(P, 28, 16, 17, 256)
    if DIAG: e("s_memrealtime s[62:63]")
    NR = 160//16
    for i in range(NR):
        e(f"s_mov_b32 s23, {16*7680*i}")
        e(f"buffer_load_dwordx4 v[{24+4*i}:{27+4*i}], v5, s[12:15], s23 offen")
    for i in range(NR):
        e(f"buffer_load_ushort v{10+i}, v4, s[8:11], 0 offen offset:{32*i}")
    for i in range(NR): e(f"v_lshlrev_b32 v{10+i}, 16, v{10+i}")
    for i in range(NR): e(f"v_mul_f32 v{80+i}, {f2u(-1.4426950408889634)}, v{10+i}")
    for i in range(NR): e(f"v_exp_f32 v{80+i}, v{80+i}")
    for i in range(NR): e(f"v_add_f32 v{80+i}, 1.0, v{80+i}")
    for i in range(NR): e(f"v_rcp_f32 v{80+i}, v{80+i}")
    for i in range(NR): e(f"v_mul_f32 v{10+i}, v{10+i}, v{80+i}")
    for i in range(NR): e(f"v_cvt_pk_bf16_f32 v{10+i}, v{10+i}, v{10+i}")
    for i in range(NR): e(f"v_lshrrev_b32 v{80+i}, 16, v{10+i}")
    for i in range(NR): e(f"v_and_b32 v{10+i}, 0xffff0000, v{10+i}")
    for j in range(8): e(f"v_mov_b32 v{70+j}, 0")
    for i in range(NR):
        for q in range(4):
            w = 24+4*i+q
            e(f"v_dot2c_f32_bf16 v{70+2*q}, v{w}, v{80+i}"); e(f"v_dot2c_f32_bf16 v{71+2*q}, v{w}, v{10+i}")
    if DIAG: e("s_memrealtime s[64:65]")
    e("v_lshlrev_b32 v6, 5, v1"); e("v_lshlrev_b32 v7, 9, v2"); e("v_add_u32 v6, v6, v7")
    e("ds_write_b128 v6, v[70:73]"); e("ds_write_b128 v6, v[74:77] offset:16")
    e("s_waitcnt lgkmcnt(0)"); e("s_barrier")
    e("v_cmp_gt_u32 vcc, 64, v0")
    e("s_and_saveexec_b64 s[32:33], vcc")
    e("s_cbranch_execz K01_PF")
    e("v_lshlrev_b32 v6, 3, v0")
    for r in range(16): e(f"ds_read_b64 v[{30+2*r}:{31+2*r}], v6 offset:{512*r}")
    for r in (8, 4, 2, 1):
        for q in range(r): e(f"v_pk_add_f32 v[{30+2*q}:{31+2*q}], v[{30+2*q}:{31+2*q}], v[{30+2*(q+r)}:{31+2*(q+r)}]")
    e("s_mul_i32 s3, s20, 15360"); e("s_lshl_b32 s23, s21, 9"); e("s_add_u32 s3, s3, s23"); e(f"s_add_u32 s3, s3, {WS_MOD}")
    e("v_add_u32 v6, s3, v6")
    e("buffer_store_dwordx2 v[30:31], v6, s[24:27], 0 offen sc1")
    e("s_waitcnt vmcnt(0)")
    if DIAG: e("s_memrealtime s[66:67]")
    e("s_cmp_ge_u32 s21, 10"); e("s_cbranch_scc1 K01_END")
    e("v_cmp_eq_u32 vcc, 0, v0")
    e("s_and_saveexec_b64 s[32:33], vcc")
    e("s_cbranch_execz K01_END")
    e("v_mov_b32 v7, 1"); e("v_mov_b32 v8, 0")
    if DIRECT:
        e("buffer_atomic_add v7, v8, s[28:31], 0 offen sc1")
    else:
        e("buffer_atomic_add v7, v8, s[28:31], 0 offen sc0 sc1")
        e("s_waitcnt vmcnt(0)")
        if DIAG:
            e("s_memrealtime s[68:69]"); e("s_waitcnt lgkmcnt(0)")
            e("s_lshl_b32 s3, s2, 5"); e(f"s_add_u32 s3, s3, {0x5000000 + 0x80000}")
            for q in range(5): e(f"v_mov_b32 v{40+q}, s{60+2*q}")
            e("v_mov_b32 v46, s3")
            e("buffer_store_dwordx4 v[40:43], v46, s[24:27], 0 offen"); e("buffer_store_dword v44, v46, s[24:27], 0 offen offset:16")
        e("v_readfirstlane_b32 s22, v7"); e("s_nop 3")
        e(f"s_cmp_lg_u32 s22, {10*NSPLIT-1}"); e("s_cbranch_scc1 K01_END")
        e("v_mov_b32 v8, 128"); e("v_mov_b32 v7, 1")
        e("buffer_store_dword v7, v8, s[28:31], 0 offen sc1")

    e("K01_END:")
    e("s_endpgm")
    e("K01_LN:")
    e(f"s_sub_u32 s2, s2, 40")
    e("v_lshrrev_b32 v1, 6, v0"); e("v_and_b32 v10, 63, v0")
    e("v_readfirstlane_b32 s20, v1")
    e("v_and_b32 v2, 15, v10"); e("v_lshrrev_b32 v3, 4, v10")
    e("s_lshl_b32 s3, s2, 4"); e("v_add_u32 v9, s3, v2"); e("v_mul_u32_u24 v9, 1280, v9")
    e("v_lshlrev_b32 v11, 3, v3"); e("v_add_u32 v9, v9, v11")
    e("s_mul_i32 s3, s20, 320"); e("v_add_u32 v9, s3, v9")
    e("s_waitcnt lgkmcnt(0)")
    srd(P, 8, 38, 39, 2048*1280); srd(P, 24, 18, 19, WS_BYTES); srd(P, 28, 16, 17, 256)
    if DIAG: e("s_memrealtime s[60:61]")
    X = 100; RAW = 60; T = 200
    load_x_pieces(P, X, RAW, 8)
    e("s_cmp_lg_u32 s2, 0"); e("s_cbranch_scc1 K01_NOZ")
    e("v_min_u32 v12, 63, v0"); e("v_lshlrev_b32 v12, 7, v12"); e("v_mov_b32 v13, 0"); e(f"s_mov_b32 s21, {WS_CNT}")
    e("buffer_store_dword v13, v12, s[24:27], s21 offen sc1")
    e(f"s_mov_b32 s21, {WS_CNT + 8192}")
    e("buffer_store_dword v13, v12, s[24:27], s21 offen sc1")
    e("K01_NOZ:")
    unpack_x(P, X, RAW)
    RED0, RED1 = 12288, 13312
    e("v_lshlrev_b32 v4, 6, v2"); e("v_lshlrev_b32 v5, 2, v3"); e("v_add_u32 v5, v4, v5")
    e(f"s_lshl_b32 s3, s20, 4"); e("v_add_u32 v5, s3, v5")
    e(f"v_add_f32 v6, v{X}, v{X+1}")
    for i in range(2, 40): e(f"v_add_f32 v6, v6, v{X+i}")
    row_reduce(P, 6, RED0, T, 5, 4)
    e(f"v_mul_f32 v6, {f2u(1/640)}, v6")
    for i in range(40): e(f"v_sub_f32 v{X+i}, v{X+i}, v6")
    e(f"v_mul_f32 v7, v{X}, v{X}")
    for i in range(1, 40): e(f"v_fmac_f32 v7, v{X+i}, v{X+i}")
    row_reduce(P, 7, RED1, T, 5, 4)
    e(f"v_mul_f32 v7, {f2u(1/640)}, v7"); e(f"v_add_f32 v7, {f2u(1e-5)}, v7"); e("v_rsq_f32 v7, v7")
    e("s_nop 0")
    for i in range(40): e(f"v_mul_f32 v{X+i}, v{X+i}, v7")
    if DIAG: e("s_memrealtime s[62:63]")
    e("s_cmp_lg_u32 s20, 0"); e("s_cbranch_scc1 K01_GO")
    e(f"s_mov_b32 s35, {10*NSPLIT if DIRECT else 1}")
    e(f"v_mov_b32 v12, {0 if DIRECT else 128}"); e("s_mov_b32 s21, 0")
    e("K01_POLL:")
    e("buffer_load_dword v13, v12, s[28:31], 0 offen sc1")
    e("s_waitcnt vmcnt(0)")
    e("v_readfirstlane_b32 s22, v13")
    e("s_add_u32 s21, s21, 1")
    e(f"s_cmp_ge_u32 s22, s35"); e("s_cbranch_scc1 K01_GO")
    e(f"s_sleep {SLEEP}")
    e("s_cmp_lt_u32 s21, 0x4000"); e("s_cbranch_scc1 K01_POLL")
    e("K01_GO:")
    e("s_barrier")
    if DIAG: e("s_memrealtime s[64:65]")
    tb = 20
    e(f"v_lshlrev_b32 v{tb}, 4, v0"); e(f"v_min_u32 v{tb+2}, 2544, v{tb}")
    r = 24
    for n, idx in enumerate([0, 1]):
        for p in range(NSPLIT):
            e(f"s_mov_b32 s34, {WS_MOD + (p*3840 + idx*640)*4}")
            e(f"buffer_load_dwordx4 v[{r+(n*NSPLIT+p)*4}:{r+(n*NSPLIT+p)*4+3}], v{tb+2}, s[24:27], s34 offen sc1")
    for n in range(2):
        b = r + n*NSPLIT*4
        for p in range(1, NSPLIT):
            for i in range(4): e(f"v_add_f32 v{b+i}, v{b+i}, v{b+4*p+i}")
        for i in range(4):
            e(f"v_cvt_pk_bf16_f32 v{b+i}, v{b+i}, v{b+i}"); e(f"v_and_b32 v{b+i}, 0xffff0000, v{b+i}")
            if n == 1: e(f"v_add_f32 v{b+i}, 1.0, v{b+i}")
            e(f"v_mul_f32 v{b+i}, {f2u(C_SCALE)}, v{b+i}")
        e(f"ds_write_b128 v{tb}, v[{b}:{b+3}] offset:{n*4096}")
    e("s_waitcnt lgkmcnt(0)"); e("s_barrier")
    if DIAG: e("s_memrealtime s[66:67]")
    e(f"s_mul_i32 s3, s20, {5*32*4}")
    e("v_lshlrev_b32 v8, 4, v3"); e("v_add_u32 v8, s3, v8")
    OUT = 160
    for j in range(5):
        for hh in range(2):
            off = j*128 + hh*64; k = (j*2+hh) % 2
            t = T + 8*k
            e(f"ds_read_b128 v[{t}:{t+3}], v8 offset:{4096+off}")
            e(f"ds_read_b128 v[{t+4}:{t+7}], v8 offset:{off}")
            b = X + j*8 + hh*4
            for i in range(4): e(f"v_fma_f32 v{b+i}, v{b+i}, v{t+i}, v{t+4+i}")
            e(f"v_cvt_pk_bf16_f32 v{OUT+j*4+hh*2}, v{b}, v{b+1}")
            e(f"v_cvt_pk_bf16_f32 v{OUT+j*4+hh*2+1}, v{b+2}, v{b+3}")
    e("s_mul_i32 s3, s2, 20480"); e("s_mul_i32 s21, s20, 5120"); e("s_add_u32 s3, s3, s21"); e(f"s_add_u32 s3, s3, {WS_HF}")
    e("v_lshlrev_b32 v11, 4, v10"); e("v_add_u32 v11, s3, v11")
    for j in range(5):
        e(f"s_mov_b32 s21, {j*1024}")
        e(f"buffer_store_dwordx4 v[{OUT+4*j}:{OUT+4*j+3}], v11, s[24:27], s21 offen sc1")
    if DIAG:
        e("s_waitcnt vmcnt(0)"); e("s_memrealtime s[68:69]"); e("s_waitcnt lgkmcnt(0)")
        e("s_add_u32 s3, s2, 40"); e("s_lshl_b32 s3, s3, 5"); e(f"s_add_u32 s3, s3, {0x5000000 + 0x80000}")
        for q in range(5): e(f"v_mov_b32 v{40+q}, s{60+2*q}")
        e("v_mov_b32 v46, s3"); e("s_mov_b64 exec, 1")
        e("buffer_store_dwordx4 v[40:43], v46, s[24:27], 0 offen"); e("buffer_store_dword v44, v46, s[24:27], 0 offen offset:16")
    e("s_endpgm")
    e("K01_PF:")
    e("s_mov_b64 exec, -1")
    e("s_and_b32 s21, s2, 7")
    e("s_lshr_b32 s22, s2, 3"); e("s_cmp_lt_u32 s2, 40"); e("s_cselect_b32 s3, 0, 16"); e("s_sub_u32 s22, s22, s3")
    e("v_subrev_u32 v1, 64, v0")
    if 'code' in pf:
        e("s_getpc_b64 s[4:5]")
        e("K01_PC:")
        e("s_add_u32 s4, s4, k2_kernel-K01_PC"); e("s_addc_u32 s5, s5, 0")
        e("s_mul_i32 s3, s22, 9216"); e("v_lshlrev_b32 v2, 4, v1"); e("v_add_u32 v2, s3, v2")
        e("s_mov_b32 s23, K_TEXT_END-k2_kernel-16")
        for r_ in range(3):
            e("v_min_u32 v3, s23, v2")
            e(NT("global_load_dwordx4 v[4:7], v3, s[4:5]"))
            e(f"v_add_u32 v2, 3072, v2")
    if 'repack' in pf:
        e("s_cmp_lt_u32 s2, 40"); e("s_cselect_b32 s3, 0, 128"); e("s_sub_u32 s36, s2, s3")
        e("s_load_dwordx4 s[44:47], s[0:1], 48"); e("s_load_dwordx2 s[48:49], s[0:1], 64"); e("s_waitcnt lgkmcnt(0)")
        e("s_lshl_b32 s37, s36, 10")
        for m, (lo, kind) in enumerate(((48, 'd'), (44, 'g'), (46, 'u'))):
            srd(P, 8, lo, lo+1, 1966080)
            for r_ in range(6):
                e(f"v_add_u32 v10, {r_*192}, v1")
                e("v_cmp_gt_u32 vcc, 1024, v10"); e("v_add_u32 v10, s37, v10")
                e("v_lshlrev_b32 v11, 4, v10"); e("v_mov_b32 v12, 0x7ff00000"); e("v_cndmask_b32 v11, v12, v11, vcc")
                e(f"buffer_load_dwordx4 v[{60+m*24+4*r_}:{63+m*24+4*r_}], v11, s[8:11], 0 offen")
                if kind == 'd':
                    e("s_mov_b32 s3, 53687092"); e("v_mul_hi_u32 v13, v10, s3")
                    e("v_mul_u32_u24 v14, 80, v13"); e("v_sub_u32 v14, v10, v14")
                    e("v_mul_u32_u24 v15, 6554, v14"); e("v_lshrrev_b32 v15, 16, v15")
                    e("v_mul_u32_u24 v16, 10, v15"); e("v_sub_u32 v16, v14, v16")
                    e("v_mul_u32_u24 v15, 245760, v15"); e("v_mul_u32_u24 v13, 160, v13")
                else:
                    e("s_mov_b32 s3, 22369622"); e("v_mul_hi_u32 v13, v10, s3")
                    e("v_mul_u32_u24 v14, 192, v13"); e("v_sub_u32 v14, v10, v14")
                    e("v_mul_u32_u24 v15, 5462, v14"); e("v_lshrrev_b32 v15, 16, v15")
                    e("v_mul_u32_u24 v16, 12, v15"); e("v_sub_u32 v16, v14, v16")
                    e("v_mul_u32_u24 v15, 245760, v15"); e("v_mul_u32_u24 v13, 384, v13")
                e("v_lshlrev_b32 v16, 4, v16"); e("v_add_u32 v15, v15, v13"); e("v_add_u32 v15, v15, v16")
                e(f"v_cndmask_b32 v{20+m*6+r_}, v12, v15, vcc")
        for m, kind in enumerate('dgu'):
            e(f"s_mov_b32 s3, {WS_WD if kind == 'd' else WS_WGU + (192 if kind == 'u' else 0)}")
            for r_ in range(6):
                e(f"buffer_store_dwordx4 v[{60+m*24+4*r_}:{63+m*24+4*r_}], v{20+m*6+r_}, s[24:27], s3 offen sc1")
    if 'wq' in pf:
        srd(P, 8, 40, 41, 7864320)
        e("s_mul_i32 s3, s22, 4224"); e("v_add_u32 v1, s3, v1"); e("s_mul_i32 s23, s21, 1536"); e("s_mov_b32 s24, 22")
        e("K01_PFL:")
        e("v_mul_u32_u24 v2, 682, v1"); e("v_lshrrev_b32 v2, 16, v2")
        e("v_mul_u32_u24 v3, 96, v2"); e("v_sub_u32 v3, v1, v3")
        e("v_cmp_le_i32 vcc, 96, v3"); e("s_nop 1")
        e("v_addc_co_u32 v2, vcc, 0, v2, vcc")
        e("v_mul_u32_u24 v3, 96, v2"); e("v_sub_u32 v3, v1, v3"); e("v_lshlrev_b32 v3, 4, v3")
        e("v_mul_u32_u24 v2, 12288, v2"); e("v_add_u32 v2, v2, v3")
        e(NT("buffer_load_dwordx4 v[4:7], v2, s[8:11], s23 offen"))
        e("v_add_u32 v1, 192, v1")
        e("s_sub_u32 s24, s24, 1"); e("s_cmp_lg_u32 s24, 0"); e("s_cbranch_scc1 K01_PFL")
    if 'k' in pf:
        e("s_load_dwordx2 s[4:5], s[0:1], 8"); e("s_waitcnt lgkmcnt(0)")
        srd(P, 8, 4, 5, 25165824)
        e("v_subrev_u32 v1, 64, v0"); e("s_mul_i32 s3, s22, 3328"); e("v_add_u32 v1, s3, v1")
        e("s_mul_i32 s23, s21, 3145728"); e("s_add_u32 s23, s23, 589824"); e("s_mov_b32 s24, 18")
        e("K01_PFK:")
        e("v_lshrrev_b32 v2, 12, v1"); e("v_mul_u32_u24 v2, 21846, v2"); e("v_lshrrev_b32 v2, 16, v2")
        e("v_mul_u32_u24 v3, 12288, v2"); e("v_sub_u32 v3, v1, v3"); e("v_lshlrev_b32 v3, 4, v3")
        e("s_mov_b32 s3, 786432"); e("v_mul_lo_u32 v2, v2, s3"); e("v_add_u32 v2, v2, v3")
        e(NT("buffer_load_dwordx4 v[4:7], v2, s[8:11], s23 offen"))
        e("v_add_u32 v1, 192, v1")
        e("s_sub_u32 s24, s24, 1"); e("s_cmp_lg_u32 s24, 0"); e("s_cbranch_scc1 K01_PFK")
    if 'v' in pf:
        e("s_load_dwordx2 s[4:5], s[0:1], 16"); e("s_waitcnt lgkmcnt(0)")
        srd(P, 8, 4, 5, 25165824)
        e("v_subrev_u32 v1, 64, v0"); e("s_mul_i32 s3, s22, 3328"); e("v_add_u32 v1, s3, v1")
        e("s_mul_i32 s23, s21, 3145728"); e("s_add_u32 s23, s23, 589824"); e("s_mov_b32 s24, 18")
        e("K01_PFV:")
        e("v_lshrrev_b32 v2, 12, v1"); e("v_mul_u32_u24 v2, 21846, v2"); e("v_lshrrev_b32 v2, 16, v2")
        e("v_mul_u32_u24 v3, 12288, v2"); e("v_sub_u32 v3, v1, v3"); e("v_lshlrev_b32 v3, 4, v3")
        e("s_mov_b32 s3, 786432"); e("v_mul_lo_u32 v2, v2, s3"); e("v_add_u32 v2, v2, v3")
        e(NT("buffer_load_dwordx4 v[4:7], v2, s[8:11], s23 offen"))
        e("v_add_u32 v1, 192, v1")
        e("s_sub_u32 s24, s24, 1"); e("s_cmp_lg_u32 s24, 0"); e("s_cbranch_scc1 K01_PFV")
    for nm, ko, nbytes in (('wo', 32, 7864320), ('wg', 48, 1966080), ('wu', 56, 1966080), ('wd', 64, 1966080)):
        if nm not in pf: continue
        per = -(-nbytes // (120*3072))*3072
        e(f"s_load_dwordx2 s[4:5], s[0:1], {ko}"); e("s_waitcnt lgkmcnt(0)")
        srd(P, 8, 4, 5, nbytes)
        e("s_lshl_b32 s3, s22, 3"); e("s_add_u32 s3, s3, s21"); e(f"s_mul_i32 s23, s3, {per}")
        e("v_subrev_u32 v1, 64, v0"); e("v_lshlrev_b32 v1, 4, v1"); e(f"s_mov_b32 s24, {per//3072}")
        e(f"K01_PF{nm}:")
        e(NT("buffer_load_dwordx4 v[4:7], v1, s[8:11], s23 offen"))
        e("s_add_u32 s23, s23, 3072")
        e("s_sub_u32 s24, s24, 1"); e("s_cmp_lg_u32 s24, 0"); e(f"s_cbranch_scc1 K01_PF{nm}")
    e("s_endpgm")
    P.finalize(report_nops=False)
    return P

def prep_roles(P, pf=('code', 'wq'), LB=131072):
    e = P.e
    e("s_load_dwordx4 s[4:7], s[0:1], 72")
    e("s_load_dwordx4 s[16:19], s[0:1], 96")
    e("s_load_dwordx2 s[38:39], s[0:1], 0")
    e("s_load_dwordx2 s[40:41], s[0:1], 24")
    e("s_cmp_lt_u32 s2, 40"); e("s_cbranch_scc1 K01_GA")
    e("s_cmp_lt_u32 s2, 168"); e("s_cbranch_scc1 K01_LN")
    e("s_cmp_ge_u32 s2, 248"); e("s_cbranch_scc1 MONO_K2")
    e("s_sub_u32 s3, s2, 168"); e(f"s_mul_i32 s20, s3, {(65536+19)//20}"); e("s_lshr_b32 s20, s20, 16")
    e("s_mul_i32 s21, s20, 20"); e("s_sub_u32 s21, s3, s21"); e("s_add_u32 s21, s21, 10")
    e("s_branch K01_G")
    e("K01_GA:")
    e("s_and_b32 s20, s2, 3"); e("s_lshr_b32 s21, s2, 2")
    e("s_memrealtime s[42:43]")
    e("K01_G:")
    if DIAG: e("s_memrealtime s[60:61]")
    e("v_and_b32 v1, 15, v0"); e("v_lshrrev_b32 v2, 4, v0")
    e(f"s_mul_i32 s3, s20, {640//NSPLIT}")
    e("v_add_u32 v3, s3, v2"); e("v_lshlrev_b32 v4, 1, v3")
    e("s_mov_b32 s22, 7680"); e("v_mul_lo_u32 v5, v3, s22")
    e("v_lshlrev_b32 v6, 4, v1"); e("v_add_u32 v5, v5, v6")
    e("s_lshl_b32 s3, s21, 8"); e("v_add_u32 v5, s3, v5")
    e("s_waitcnt lgkmcnt(0)")
    srd(P, 8, 4, 5, 1280); srd(P, 12, 6, 7, 640*3840*2); srd(P, 24, 18, 19, WS_BYTES); srd(P, 28, 16, 17, 256)
    e("s_cmp_lg_u32 s2, 0"); e("s_cbranch_scc1 K01_NOT")
    e("s_or_b32 s42, s42, 1"); e("v_mov_b32 v12, 8"); e("v_mov_b32 v13, s42")
    e("buffer_store_dword v13, v12, s[28:31], 0 offen sc1")
    e("K01_NOT:")
    if DIAG: e("s_memrealtime s[62:63]")
    NR = 160//16
    for i in range(NR):
        e(f"s_mov_b32 s23, {16*7680*i}")
        e(f"buffer_load_dwordx4 v[{24+4*i}:{27+4*i}], v5, s[12:15], s23 offen")
    for i in range(NR):
        e(f"buffer_load_ushort v{10+i}, v4, s[8:11], 0 offen offset:{32*i}")
    for i in range(NR): e(f"v_lshlrev_b32 v{10+i}, 16, v{10+i}")
    for i in range(NR): e(f"v_mul_f32 v{80+i}, {f2u(-1.4426950408889634)}, v{10+i}")
    for i in range(NR): e(f"v_exp_f32 v{80+i}, v{80+i}")
    for i in range(NR): e(f"v_add_f32 v{80+i}, 1.0, v{80+i}")
    for i in range(NR): e(f"v_rcp_f32 v{80+i}, v{80+i}")
    for i in range(NR): e(f"v_mul_f32 v{10+i}, v{10+i}, v{80+i}")
    for i in range(NR): e(f"v_cvt_pk_bf16_f32 v{10+i}, v{10+i}, v{10+i}")
    for i in range(NR): e(f"v_and_b32 v{10+i}, 0xffff0000, v{10+i}")
    for j in range(8): e(f"v_mov_b32 v{70+j}, 0")
    for i in range(NR):
        for q in range(4):
            w = 24+4*i+q
            e(f"v_lshlrev_b32 v68, 16, v{w}"); e(f"v_and_b32 v69, 0xffff0000, v{w}")
            e(f"v_fmac_f32 v{70+2*q}, v{10+i}, v68"); e(f"v_fmac_f32 v{71+2*q}, v{10+i}, v69")
    if DIAG: e("s_memrealtime s[64:65]")
    e("v_lshlrev_b32 v6, 5, v1"); e("v_lshlrev_b32 v7, 9, v2"); e("v_add_u32 v6, v6, v7"); e(f"v_add_u32 v6, {LB}, v6")
    e("ds_write_b128 v6, v[70:73]"); e("ds_write_b128 v6, v[74:77] offset:16")
    e("s_waitcnt lgkmcnt(0)"); e("s_barrier")
    e("v_cmp_gt_u32 vcc, 64, v0")
    e("s_and_saveexec_b64 s[32:33], vcc")
    e("s_cbranch_execz K01_PF")
    e("v_lshlrev_b32 v6, 3, v0"); e(f"v_add_u32 v9, {LB}, v6")
    for r in range(16): e(f"ds_read_b64 v[{30+2*r}:{31+2*r}], v9 offset:{512*r}")
    for r in (8, 4, 2, 1):
        for q in range(r): e(f"v_pk_add_f32 v[{30+2*q}:{31+2*q}], v[{30+2*q}:{31+2*q}], v[{30+2*(q+r)}:{31+2*(q+r)}]")
    e("s_mul_i32 s3, s20, 15360"); e("s_lshl_b32 s23, s21, 9"); e("s_add_u32 s3, s3, s23"); e(f"s_add_u32 s3, s3, {WS_MOD}")
    e("v_add_u32 v6, s3, v6")
    e("buffer_store_dwordx2 v[30:31], v6, s[24:27], 0 offen sc1")
    e("s_cmp_lg_u32 s2, 0"); e("s_cbranch_scc1 K01_NOZ")
    e("v_lshlrev_b32 v12, 7, v0"); e("v_mov_b32 v13, 0"); e(f"s_mov_b32 s23, {WS_CNT}")
    e("buffer_store_dword v13, v12, s[24:27], s23 offen sc1")
    e(f"s_mov_b32 s23, {WS_CNT + 8192}")
    e("buffer_store_dword v13, v12, s[24:27], s23 offen sc1")
    e("K01_NOZ:")
    e("s_waitcnt vmcnt(0)")
    if DIAG: e("s_memrealtime s[66:67]")
    e("s_cmp_lt_u32 s21, 10"); e("s_cbranch_scc1 K01_GAS")
    e("v_mov_b32 v7, 1"); e("v_mov_b32 v8, 192"); e("s_mov_b64 exec, 1")
    e("buffer_atomic_add v7, v8, s[28:31], 0 offen sc1")
    e("s_branch K01_FIN")
    e("K01_GAS:")
    e("v_cmp_eq_u32 vcc, 0, v0")
    e("s_and_saveexec_b64 s[32:33], vcc")
    e("v_mov_b32 v7, 1"); e("v_mov_b32 v8, 0")
    e("buffer_atomic_add v7, v8, s[28:31], 0 offen sc0 sc1")
    e("s_waitcnt vmcnt(0)")
    if DIAG:
        e("s_memrealtime s[68:69]"); e("s_waitcnt lgkmcnt(0)")
        e("s_lshl_b32 s3, s2, 5"); e(f"s_add_u32 s3, s3, {0x5000000 + 0x80000}")
        for q in range(5): e(f"v_mov_b32 v{40+q}, s{60+2*q}")
        e("v_mov_b32 v46, s3")
        e("buffer_store_dwordx4 v[40:43], v46, s[24:27], 0 offen"); e("buffer_store_dword v44, v46, s[24:27], 0 offen offset:16")
    e("v_readfirstlane_b32 s22, v7"); e("s_nop 3")
    e(f"s_cmp_lg_u32 s22, {10*NSPLIT-1}"); e("s_cbranch_scc1 K01_FIN")
    e("v_mov_b32 v8, 128"); e("v_mov_b32 v7, 1")
    e("buffer_store_dword v7, v8, s[28:31], 0 offen sc1")
    e("K01_FIN:")
    e("s_mov_b64 exec, -1")
    e("s_branch MONO_K2")
    e("K01_LN:")
    e(f"s_sub_u32 s2, s2, 40")
    e("v_lshrrev_b32 v1, 6, v0"); e("v_and_b32 v10, 63, v0")
    e("v_readfirstlane_b32 s20, v1")
    e("v_and_b32 v2, 15, v10"); e("v_lshrrev_b32 v3, 4, v10")
    e("s_lshl_b32 s3, s2, 4"); e("v_add_u32 v9, s3, v2"); e("v_mul_u32_u24 v9, 1280, v9")
    e("v_lshlrev_b32 v11, 3, v3"); e("v_add_u32 v9, v9, v11")
    e("s_mul_i32 s3, s20, 320"); e("v_add_u32 v9, s3, v9")
    e("s_waitcnt lgkmcnt(0)")
    srd(P, 8, 38, 39, 2048*1280); srd(P, 24, 18, 19, WS_BYTES); srd(P, 28, 16, 17, 256)
    if DIAG: e("s_memrealtime s[60:61]")
    X = 100; RAW = 60; T = 200
    load_x_pieces(P, X, RAW, 8)
    unpack_x(P, X, RAW)
    RED0, RED1 = 12288, 13312
    e("v_lshlrev_b32 v4, 6, v2"); e("v_lshlrev_b32 v5, 2, v3"); e("v_add_u32 v5, v4, v5")
    e(f"s_lshl_b32 s3, s20, 4"); e("v_add_u32 v5, s3, v5"); e(f"v_add_u32 v5, {LB}, v5"); e(f"v_add_u32 v4, {LB}, v4")
    e(f"v_add_f32 v6, v{X}, v{X+1}")
    for i in range(2, 40): e(f"v_add_f32 v6, v6, v{X+i}")
    row_reduce(P, 6, RED0, T, 5, 4)
    e(f"v_mul_f32 v6, {f2u(1/640)}, v6")
    for i in range(40): e(f"v_sub_f32 v{X+i}, v{X+i}, v6")
    e(f"v_mul_f32 v7, v{X}, v{X}")
    for i in range(1, 40): e(f"v_fmac_f32 v7, v{X+i}, v{X+i}")
    row_reduce(P, 7, RED1, T, 5, 4)
    e(f"v_mul_f32 v7, {f2u(1/640)}, v7"); e(f"v_add_f32 v7, {f2u(1e-5)}, v7"); e("v_rsq_f32 v7, v7")
    e("s_nop 0")
    for i in range(40): e(f"v_mul_f32 v{X+i}, v{X+i}, v7")
    if DIAG: e("s_memrealtime s[62:63]")
    e("s_cmp_lg_u32 s20, 0"); e("s_cbranch_scc1 K01_GO")
    e("s_mov_b32 s35, 1")
    e("v_mov_b32 v12, 128"); e("s_mov_b32 s21, 0")
    e("K01_POLL:")
    e("buffer_load_dword v13, v12, s[28:31], 0 offen sc1")
    e("s_waitcnt vmcnt(0)")
    e("v_readfirstlane_b32 s22, v13")
    e("s_add_u32 s21, s21, 1")
    e(f"s_cmp_ge_u32 s22, s35"); e("s_cbranch_scc1 K01_GO")
    e(f"s_sleep {SLEEP}")
    e("s_cmp_lt_u32 s21, 0x4000"); e("s_cbranch_scc1 K01_POLL")
    e("K01_GO:")
    e("s_barrier")
    if DIAG: e("s_memrealtime s[64:65]")
    tb = 20
    e(f"v_lshlrev_b32 v{tb}, 4, v0"); e(f"v_add_u32 v{tb+1}, {LB}, v{tb}"); e(f"v_min_u32 v{tb+2}, 2544, v{tb}")
    r = 24
    for n, idx in enumerate([0, 1]):
        for p in range(NSPLIT):
            e(f"s_mov_b32 s34, {WS_MOD + (p*3840 + idx*640)*4}")
            e(f"buffer_load_dwordx4 v[{r+(n*NSPLIT+p)*4}:{r+(n*NSPLIT+p)*4+3}], v{tb+2}, s[24:27], s34 offen sc1")
    for n in range(2):
        b = r + n*NSPLIT*4
        for p in range(1, NSPLIT):
            for i in range(4): e(f"v_add_f32 v{b+i}, v{b+i}, v{b+4*p+i}")
        for i in range(4):
            e(f"v_cvt_pk_bf16_f32 v{b+i}, v{b+i}, v{b+i}"); e(f"v_and_b32 v{b+i}, 0xffff0000, v{b+i}")
            if n == 1: e(f"v_add_f32 v{b+i}, 1.0, v{b+i}")
            e(f"v_mul_f32 v{b+i}, {f2u(C_SCALE)}, v{b+i}")
        e(f"ds_write_b128 v{tb+1}, v[{b}:{b+3}] offset:{n*4096}")
    e("s_waitcnt lgkmcnt(0)"); e("s_barrier")
    if DIAG: e("s_memrealtime s[66:67]")
    e(f"s_mul_i32 s3, s20, {5*32*4}")
    e("v_lshlrev_b32 v8, 4, v3"); e("v_add_u32 v8, s3, v8"); e(f"v_add_u32 v8, {LB}, v8")
    OUT = 160
    for j in range(5):
        for hh in range(2):
            off = j*128 + hh*64; k = (j*2+hh) % 2
            t = T + 8*k
            e(f"ds_read_b128 v[{t}:{t+3}], v8 offset:{4096+off}")
            e(f"ds_read_b128 v[{t+4}:{t+7}], v8 offset:{off}")
            b = X + j*8 + hh*4
            for i in range(4): e(f"v_fma_f32 v{b+i}, v{b+i}, v{t+i}, v{t+4+i}")
            e(f"v_cvt_pk_bf16_f32 v{OUT+j*4+hh*2}, v{b}, v{b+1}")
            e(f"v_cvt_pk_bf16_f32 v{OUT+j*4+hh*2+1}, v{b+2}, v{b+3}")
    e("s_mul_i32 s3, s2, 20480"); e("s_mul_i32 s21, s20, 5120"); e("s_add_u32 s3, s3, s21"); e(f"s_add_u32 s3, s3, {WS_HF}")
    e("v_lshlrev_b32 v11, 4, v10"); e("v_add_u32 v11, s3, v11")
    for j in range(5):
        e(f"s_mov_b32 s21, {j*1024}")
        e(f"buffer_store_dwordx4 v[{OUT+4*j}:{OUT+4*j+3}], v11, s[24:27], s21 offen sc1")
    e("s_waitcnt vmcnt(0)"); e("s_barrier")
    e("s_lshr_b32 s21, s2, 4"); e("s_add_u32 s2, s2, 40")
    e("s_cmp_lg_u32 s20, 0"); e("s_cbranch_scc1 MONO_K2")
    e("s_lshl_b32 s3, s21, 7"); e(f"s_add_u32 s3, s3, {WS_CNT + 12288}")
    e("v_mov_b32 v12, s3"); e("v_mov_b32 v13, 1"); e("v_mov_b32 v14, 8"); e("s_mov_b64 exec, 1")
    e("buffer_atomic_add v13, v12, s[24:27], 0 offen sc0 sc1")
    e("buffer_load_dword v15, v14, s[28:31], 0 offen sc1")
    e("s_waitcnt vmcnt(0)")
    e("v_readfirstlane_b32 s22, v13"); e("s_nop 3")
    e("s_cmp_lg_u32 s22, 15"); e("s_cbranch_scc1 K01_NOF")
    e("s_lshl_b32 s3, s21, 7"); e(f"s_add_u32 s3, s3, {WS_CNT + 16384}"); e("v_mov_b32 v12, s3")
    e("buffer_store_dword v15, v12, s[24:27], 0 offen sc1")
    e("K01_NOF:")
    e("s_mov_b64 exec, -1")
    e("s_branch MONO_K2")
    e("K01_PF:")
    e("s_mov_b64 exec, -1")
    e("s_and_b32 s21, s2, 7")
    e("s_lshr_b32 s22, s2, 3"); e("s_cmp_lt_u32 s2, 40"); e("s_cselect_b32 s3, 0, 16"); e("s_sub_u32 s22, s22, s3")
    e("v_subrev_u32 v1, 64, v0")
    if 'code' in pf:
        e("s_getpc_b64 s[4:5]")
        e("K01_PC:")
        e("s_add_u32 s4, s4, MONO_K2-K01_PC"); e("s_addc_u32 s5, s5, 0")
        e("s_mul_i32 s3, s22, 9216"); e("v_lshlrev_b32 v2, 4, v1"); e("v_add_u32 v2, s3, v2")
        e("s_mov_b32 s23, K_TEXT_END-MONO_K2-16")
        for r_ in range(3):
            e("v_min_u32 v3, s23, v2")
            e(NT("global_load_dwordx4 v[4:7], v3, s[4:5]"))
            e(f"v_add_u32 v2, 3072, v2")
    if 'repack' in pf:
        e("s_cmp_lt_u32 s2, 40"); e("s_cselect_b32 s3, 0, 128"); e("s_sub_u32 s36, s2, s3")
        e("s_load_dwordx4 s[44:47], s[0:1], 48"); e("s_load_dwordx2 s[48:49], s[0:1], 64"); e("s_waitcnt lgkmcnt(0)")
        e("s_lshl_b32 s37, s36, 10")
        for m, (lo, kind) in enumerate(((48, 'd'), (44, 'g'), (46, 'u'))):
            srd(P, 8, lo, lo+1, 1966080)
            for r_ in range(6):
                e(f"v_add_u32 v10, {r_*192}, v1")
                e("v_cmp_gt_u32 vcc, 1024, v10"); e("v_add_u32 v10, s37, v10")
                e("v_lshlrev_b32 v11, 4, v10"); e("v_mov_b32 v12, 0x7ff00000"); e("v_cndmask_b32 v11, v12, v11, vcc")
                e(f"buffer_load_dwordx4 v[{60+m*24+4*r_}:{63+m*24+4*r_}], v11, s[8:11], 0 offen")
                if kind == 'd':
                    e("s_mov_b32 s3, 53687092"); e("v_mul_hi_u32 v13, v10, s3")
                    e("v_mul_u32_u24 v14, 80, v13"); e("v_sub_u32 v14, v10, v14")
                    e("v_mul_u32_u24 v15, 6554, v14"); e("v_lshrrev_b32 v15, 16, v15")
                    e("v_mul_u32_u24 v16, 10, v15"); e("v_sub_u32 v16, v14, v16")
                    e("v_mul_u32_u24 v15, 245760, v15"); e("v_mul_u32_u24 v13, 160, v13")
                else:
                    e("s_mov_b32 s3, 22369622"); e("v_mul_hi_u32 v13, v10, s3")
                    e("v_mul_u32_u24 v14, 192, v13"); e("v_sub_u32 v14, v10, v14")
                    e("v_mul_u32_u24 v15, 5462, v14"); e("v_lshrrev_b32 v15, 16, v15")
                    e("v_mul_u32_u24 v16, 12, v15"); e("v_sub_u32 v16, v14, v16")
                    e("v_mul_u32_u24 v15, 245760, v15"); e("v_mul_u32_u24 v13, 384, v13")
                e("v_lshlrev_b32 v16, 4, v16"); e("v_add_u32 v15, v15, v13"); e("v_add_u32 v15, v15, v16")
                e(f"v_cndmask_b32 v{20+m*6+r_}, v12, v15, vcc")
        for m, kind in enumerate('dgu'):
            e(f"s_mov_b32 s3, {WS_WD if kind == 'd' else WS_WGU + (192 if kind == 'u' else 0)}")
            for r_ in range(6):
                e(f"buffer_store_dwordx4 v[{60+m*24+4*r_}:{63+m*24+4*r_}], v{20+m*6+r_}, s[24:27], s3 offen sc1")
    if 'wq' in pf:
        srd(P, 8, 40, 41, 7864320)
        e("s_mul_i32 s3, s22, 4224"); e("v_add_u32 v1, s3, v1"); e("s_mul_i32 s23, s21, 1536"); e("s_mov_b32 s24, 22")
        e("K01_PFL:")
        e("v_mul_u32_u24 v2, 682, v1"); e("v_lshrrev_b32 v2, 16, v2")
        e("v_mul_u32_u24 v3, 96, v2"); e("v_sub_u32 v3, v1, v3")
        e("v_cmp_le_i32 vcc, 96, v3"); e("s_nop 1")
        e("v_addc_co_u32 v2, vcc, 0, v2, vcc")
        e("v_mul_u32_u24 v3, 96, v2"); e("v_sub_u32 v3, v1, v3"); e("v_lshlrev_b32 v3, 4, v3")
        e("v_mul_u32_u24 v2, 12288, v2"); e("v_add_u32 v2, v2, v3")
        e(NT("buffer_load_dwordx4 v[4:7], v2, s[8:11], s23 offen"))
        e("v_add_u32 v1, 192, v1")
        e("s_sub_u32 s24, s24, 1"); e("s_cmp_lg_u32 s24, 0"); e("s_cbranch_scc1 K01_PFL")


def gen_k4b(pf=True, npf=128):
    P = Prog(); e = P.e
    e("s_cmp_ge_u32 s2, 256"); e("s_cbranch_scc1 K4_PF")
    e("s_load_dwordx2 s[4:5], s[0:1], 0")
    e("s_load_dwordx2 s[16:17], s[0:1], 104")
    e("v_lshrrev_b32 v1, 6, v0"); e("v_and_b32 v10, 63, v0")
    e("v_readfirstlane_b32 s20, v1")
    e("v_and_b32 v2, 7, v10")
    e("v_lshrrev_b32 v3, 4, v10")
    e("v_lshrrev_b32 v4, 3, v10"); e("v_and_b32 v4, 1, v4")
    e("s_lshr_b32 s21, s2, 1"); e("s_and_b32 s22, s2, 1")
    e("s_mul_i32 s3, s21, 20480"); e("s_lshl_b32 s23, s20, 12"); e("s_add_u32 s3, s3, s23"); e("s_lshl_b32 s23, s22, 7"); e("s_add_u32 s3, s3, s23")
    e("v_lshlrev_b32 v5, 10, v4"); e("v_lshlrev_b32 v6, 8, v3"); e("v_add_u32 v5, v5, v6"); e("v_lshlrev_b32 v6, 4, v2"); e("v_add_u32 v5, v5, v6")
    e("v_add_u32 v12, s3, v5")
    e("s_lshl_b32 s3, s21, 4"); e("s_lshl_b32 s23, s22, 3"); e("s_add_u32 s3, s3, s23"); e("v_add_u32 v9, s3, v2"); e("v_mul_u32_u24 v9, 1280, v9")
    e("v_lshlrev_b32 v6, 6, v4"); e("v_add_u32 v9, v9, v6"); e("v_lshlrev_b32 v6, 3, v3"); e("v_add_u32 v9, v9, v6")
    e("s_lshl_b32 s3, s20, 8"); e("v_add_u32 v9, s3, v9")
    e("s_waitcnt lgkmcnt(0)")
    srd(P, 8, 4, 5, 2048*1280); srd(P, 24, 16, 17, WS_BYTES)
    PR = 20
    for p in range(4):
        for jj in range(2):
            e(f"s_mov_b32 s21, {WS_PART + p*128*20480 + jj*2048}")
            e(f"buffer_load_dwordx4 v[{PR+p*8+jj*4}:{PR+p*8+jj*4+3}], v12, s[24:27], s21 offen")
    XR = 52
    for jj in range(2):
        for hh in range(2):
            e(f"buffer_load_dwordx2 v[{XR+jj*4+hh*2}:{XR+jj*4+hh*2+1}], v9, s[8:11], 0 offen offset:{jj*128+hh*32}")
    MP = 60
    for i in range(2):
        e(f"v_add_u32 v13, {320*i}, v0")
        e("v_mul_u32_u24 v14, 410, v13"); e("v_lshrrev_b32 v14, 16, v14")
        e("v_mul_u32_u24 v15, 160, v14"); e("v_sub_u32 v15, v13, v15")
        e(f"v_lshlrev_b32 v{18+i}, 4, v15")
        e("v_mul_u32_u24 v15, 2560, v14"); e(f"v_add_u32 v15, v15, v{18+i}")
        for p in range(NSPLIT):
            e(f"s_mov_b32 s21, {WS_MOD + (p*3840 + 2*640)*4}")
            e(f"buffer_load_dwordx4 v[{MP+(i*4+p)*4}:{MP+(i*4+p)*4+3}], v15, s[24:27], s21 offen")
        e(f"v_mul_u32_u24 v14, 5120, v14"); e(f"v_add_u32 v{18+i}, v{18+i}, v14")
    A_ = 92
    for p in range(4):
        for q in range(8):
            r = PR + p*8 + q
            if p == 0:
                e(f"v_lshlrev_b32 v{A_+2*q}, 16, v{r}"); e(f"v_and_b32 v{A_+2*q+1}, 0xffff0000, v{r}")
            else:
                e(f"v_lshlrev_b32 v14, 16, v{r}"); e(f"v_and_b32 v15, 0xffff0000, v{r}")
                e(f"v_add_f32 v{A_+2*q}, v{A_+2*q}, v14"); e(f"v_add_f32 v{A_+2*q+1}, v{A_+2*q+1}, v15")
    X = 108
    for q in range(8):
        e(f"v_lshlrev_b32 v{X+2*q}, 16, v{XR+q}"); e(f"v_and_b32 v{X+2*q+1}, 0xffff0000, v{XR+q}")
    for i in range(2):
        b = MP + i*16
        for p in range(1, NSPLIT):
            for k in range(4): e(f"v_add_f32 v{b+k}, v{b+k}, v{b+4*p+k}")
        e(f"v_subrev_u32 v14, {2*5120}, v{18+i}"); e(f"v_cmp_gt_u32 vcc, 5120, v14"); e("s_nop 1")
        e("v_cndmask_b32 v14, 0, 1.0, vcc")
        for k in range(4):
            e(f"v_cvt_pk_bf16_f32 v{b+k}, v{b+k}, v{b+k}"); e(f"v_and_b32 v{b+k}, 0xffff0000, v{b+k}"); e(f"v_add_f32 v{b+k}, v{b+k}, v14")
        e(f"ds_write_b128 v{18+i}, v[{b}:{b+3}]")
    e("s_cmp_lg_u32 s2, 0"); e("s_cbranch_scc1 K4_NOGB")
    e(f"v_cmp_le_u32 vcc, {3*5120}, v19"); e("s_and_saveexec_b64 s[30:31], vcc"); e("s_cbranch_execz K4_NOGB2")
    e(f"v_subrev_u32 v14, {3*5120}, v19"); e(f"s_mov_b32 s21, {WS_MODF + 5*4096}")
    e(f"buffer_store_dwordx4 v[{MP+16}:{MP+19}], v14, s[24:27], s21 offen")
    e("K4_NOGB2:"); e("s_mov_b64 exec, s[30:31]")
    e("K4_NOGB:")
    e("s_waitcnt lgkmcnt(0)"); e("s_barrier")
    e("v_lshlrev_b32 v8, 7, v4"); e("v_lshlrev_b32 v6, 4, v3"); e("v_add_u32 v8, v8, v6"); e("s_lshl_b32 s3, s20, 9"); e("v_add_u32 v8, s3, v8")
    T = 20; OX = 52
    for jj in range(2):
        for hh in range(2):
            k = jj*2 + hh
            e(f"ds_read_b128 v[{T+4*k}:{T+4*k+3}], v8 offset:{jj*256 + hh*64}")
    for k in range(4):
        for i in range(4): e(f"v_fma_f32 v{X+4*k+i}, v{A_+4*k+i}, v{T+4*k+i}, v{X+4*k+i}")
        e(f"v_cvt_pk_bf16_f32 v{OX+2*k}, v{X+4*k}, v{X+4*k+1}"); e(f"v_cvt_pk_bf16_f32 v{OX+2*k+1}, v{X+4*k+2}, v{X+4*k+3}")
    for q in range(8):
        e(f"v_lshlrev_b32 v{X+2*q}, 16, v{OX+q}"); e(f"v_and_b32 v{X+2*q+1}, 0xffff0000, v{OX+q}")
    for jj in range(2):
        e(f"s_mov_b32 s21, {WS_X1 + jj*2048}")
        e(f"buffer_store_dwordx4 v[{OX+4*jj}:{OX+4*jj+3}], v12, s[24:27], s21 offen sc1")
    for jj in range(2):
        for hh in range(2):
            k = jj*2 + hh
            e(f"ds_read_b128 v[{T+4*k}:{T+4*k+3}], v8 offset:{2*5120 + jj*256 + hh*64}")
            e(f"ds_read_b128 v[{T+16+4*k}:{T+16+4*k+3}], v8 offset:{1*5120 + jj*256 + hh*64}")
    RED0, RED1 = 20480, 22528
    e("v_mul_u32_u24 v16, 192, v2"); e("v_lshlrev_b32 v17, 3, v3"); e("v_lshlrev_b32 v18, 2, v4"); e("v_add_u32 v17, v17, v18")
    e("s_lshl_b32 s3, s20, 5"); e("v_add_u32 v17, s3, v17"); e("v_add_u32 v17, v17, v16")
    def red(val, base):
        e(f"ds_write_b32 v17, v{val} offset:{base}")
        e("s_waitcnt lgkmcnt(0)"); e("s_barrier")
        for q in range(10): e(f"ds_read_b128 v[{60+4*q}:{63+4*q}], v16 offset:{base+16*q}")
        for q in range(5):
            e(f"v_pk_add_f32 v[{60+4*q}:{61+4*q}], v[{60+4*q}:{61+4*q}], v[{80+4*q}:{81+4*q}]")
            e(f"v_pk_add_f32 v[{62+4*q}:{63+4*q}], v[{62+4*q}:{63+4*q}], v[{82+4*q}:{83+4*q}]")
        for q in range(5): e(f"v_pk_add_f32 v[{60+2*q}:{61+2*q}], v[{60+2*q}:{61+2*q}], v[{70+2*q}:{71+2*q}]")
        e("v_pk_add_f32 v[60:61], v[60:61], v[62:63]"); e("v_pk_add_f32 v[64:65], v[64:65], v[66:67]")
        e("v_pk_add_f32 v[60:61], v[60:61], v[64:65]"); e("v_pk_add_f32 v[60:61], v[60:61], v[68:69]")
        e(f"v_add_f32 v{val}, v60, v61")
    e(f"v_pk_add_f32 v[6:7], v[{X}:{X+1}], v[{X+2}:{X+3}]")
    for i in range(2, 8): e(f"v_pk_add_f32 v[6:7], v[6:7], v[{X+2*i}:{X+2*i+1}]")
    e("v_add_f32 v6, v6, v7")
    red(6, RED0)
    e(f"v_mul_f32 v6, {f2u(1/640)}, v6")
    for i in range(16): e(f"v_sub_f32 v{X+i}, v{X+i}, v6")
    e(f"v_mul_f32 v7, v{X}, v{X}")
    for i in range(1, 16): e(f"v_fmac_f32 v7, v{X+i}, v{X+i}")
    red(7, RED1)
    e(f"v_mul_f32 v7, {f2u(1/640)}, v7"); e(f"v_add_f32 v7, {f2u(1e-5)}, v7"); e("v_rsq_f32 v7, v7"); e("s_nop 0")
    for i in range(16):
        e(f"v_mul_f32 v{X+i}, v{X+i}, v7")
        e(f"v_fma_f32 v{X+i}, v{X+i}, v{T+i}, v{T+16+i}")
    for k in range(4):
        e(f"v_cvt_pk_bf16_f32 v{OX+2*k}, v{X+4*k}, v{X+4*k+1}"); e(f"v_cvt_pk_bf16_f32 v{OX+2*k+1}, v{X+4*k+2}, v{X+4*k+3}")
    for jj in range(2):
        e(f"s_mov_b32 s21, {WS_H2F + jj*2048}")
        e(f"buffer_store_dwordx4 v[{OX+4*jj}:{OX+4*jj+3}], v12, s[24:27], s21 offen sc1")
    e("K4_END:")
    e("s_endpgm")
    e("K4_PF:")
    e(f"s_cmp_ge_u32 s2, {256+npf}"); e("s_cbranch_scc1 K4_END")
    e("s_sub_u32 s20, s2, 256")
    e("s_load_dwordx2 s[4:5], s[0:1], 64"); e("s_load_dwordx2 s[16:17], s[0:1], 104"); e("s_waitcnt lgkmcnt(0)")
    srd(P, 8, 4, 5, 1966080); srd(P, 24, 16, 17, WS_BYTES)
    assert npf == 128
    e("s_mul_i32 s21, s20, 15360")
    for r_ in range(3):
        e(f"v_add_u32 v1, {r_*320}, v0")
        e(f"v_lshlrev_b32 v{10+r_}, 4, v1")
        e(f"buffer_load_dwordx4 v[{20+4*r_}:{23+4*r_}], v{10+r_}, s[8:11], s21 offen")
        e("v_mul_u32_u24 v2, 820, v1"); e("v_lshrrev_b32 v2, 16, v2")
        e("v_mul_u32_u24 v3, 80, v2"); e("v_sub_u32 v3, v1, v3")
        e("v_mul_u32_u24 v4, 6554, v3"); e("v_lshrrev_b32 v4, 16, v4")
        e("v_mul_u32_u24 v5, 10, v4"); e("v_sub_u32 v5, v3, v5")
        e("v_mul_u32_u24 v4, 245760, v4"); e("v_mul_u32_u24 v2, 160, v2"); e("v_lshlrev_b32 v5, 4, v5")
        e(f"v_add_u32 v{14+r_}, v4, v2"); e(f"v_add_u32 v{14+r_}, v{14+r_}, v5")
    e("s_mul_i32 s21, s20, 1920"); e(f"s_add_u32 s21, s21, {WS_WD}")
    for r_ in range(3):
        e(f"buffer_store_dwordx4 v[{20+4*r_}:{23+4*r_}], v{14+r_}, s[24:27], s21 offen sc1")
    for m, ko in enumerate((48, 56)):
        e(f"s_load_dwordx2 s[4:5], s[0:1], {ko}"); e("s_waitcnt lgkmcnt(0)")
        srd(P, 8, 4, 5, 1966080)
        e("s_mul_i32 s21, s20, 15360")
        for r_ in range(3):
            e(f"v_add_u32 v1, {r_*320}, v0")
            e(f"v_lshlrev_b32 v{10+r_}, 4, v1")
            e(f"buffer_load_dwordx4 v[{32+m*12+4*r_}:{35+m*12+4*r_}], v{10+r_}, s[8:11], s21 offen")
            e("v_lshrrev_b32 v2, 6, v1"); e("v_mul_u32_u24 v2, 21846, v2"); e("v_lshrrev_b32 v2, 16, v2")
            e("v_mul_u32_u24 v3, 192, v2"); e("v_sub_u32 v3, v1, v3")
            e("v_mul_u32_u24 v4, 5462, v3"); e("v_lshrrev_b32 v4, 16, v4")
            e("v_mul_u32_u24 v5, 12, v4"); e("v_sub_u32 v5, v3, v5")
            e("v_mul_u32_u24 v4, 245760, v4"); e("v_mul_u32_u24 v2, 384, v2"); e("v_lshlrev_b32 v5, 4, v5")
            e(f"v_add_u32 v{56+m*3+r_}, v4, v2"); e(f"v_add_u32 v{56+m*3+r_}, v{56+m*3+r_}, v5")
    for m in range(2):
        e("s_mul_i32 s21, s20, 1920"); e(f"s_add_u32 s21, s21, {WS_WGU + m*192}")
        for r_ in range(3):
            e(f"buffer_store_dwordx4 v[{32+m*12+4*r_}:{35+m*12+4*r_}], v{56+m*3+r_}, s[24:27], s21 offen sc1")
    e("s_endpgm")
    P.finalize(report_nops=False)
    return P

def gen_diag_touch(name, ko, chunk_bytes, xcd_to_off, nwg=256):
    P = Prog(); e = P.e
    e(f"s_cmp_ge_u32 s2, {nwg}"); e(f"s_cbranch_scc1 {name}_END")
    e(f"s_load_dwordx2 s[4:5], s[0:1], {ko}"); e("s_waitcnt lgkmcnt(0)")
    srd(P, 8, 4, 5, 0x7fffffff)
    e("s_and_b32 s21, s2, 7"); e("s_lshr_b32 s22, s2, 3")
    xcd_to_off(e)
    per = chunk_bytes // (nwg // 8)
    e(f"s_mul_i32 s3, s22, {per}"); e("s_add_u32 s23, s23, s3"); e("v_lshlrev_b32 v1, 4, v0")
    for i in range(per // 4096):
        e(NT("buffer_load_dwordx4 v[4:7], v1, s[8:11], s23 offen")); e("s_add_u32 s23, s23, 4096")
    e(f"{name}_END:"); e("s_endpgm")
    P.finalize(report_nops=False)
    return P

if __name__ == "__main__":
    from k2gen import wrap
    k0 = gen_k0(); k1 = gen_k1(); k4 = gen_k4()
    open("k01.s", "w").write(wrap([("k0_kernel", k0.text(), 256, 256), ("k1_kernel", k1.text(), 256, 256)],
                                  [("k0_kernel", 120, 256, 16384), ("k1_kernel", 128, 256, 16384)]))
    open("k4.s", "w").write(wrap([("k4_kernel", k4.text(), 256, 256)], [("k4_kernel", 128, 256, 16384)]))
```

```python
from asmgen import *
import kgemm
from kgemm import gemm_stream, BIAS
from ksmall import srd, f2u, NSPLIT
from k2gen import WS_MOD, WS_HF, WS_OF, WS_PART, WS_X1, WS_H2F, WS_ACT, WS_BYTES, WS_STAMP, WS_CNT, WS_WD, WS_WGU

LDS_V = 122880
LDS_R = LDS_V + 4*5120
LDS_TAIL = LDS_R + 2*1280
SPIN = 0x4000

def gbar(P, idx, hook=None, also=None):
    e = P.e
    r = lambda t: P.e(RAW(t))
    e("s_waitcnt vmcnt(0)")
    e("s_barrier")
    r("s_cmp_lg_u32 s23, 0"); r(f"s_cbranch_scc1 KT_A{idx}")
    r(f"s_lshl_b32 s3, s21, 7"); r(f"s_add_u32 s3, s3, {WS_CNT + idx*2048}")
    r("v_mov_b32 v250, s3"); r("v_mov_b32 v251, 1")
    r("s_mov_b64 exec, 1")
    r("buffer_atomic_add v251, v250, s[12:15], 0 offen sc1")
    r("s_mov_b64 exec, -1")
    r(f"KT_A{idx}:")
    if hook: hook()
    r("s_cmp_lg_u32 s23, 0"); r(f"s_cbranch_scc1 KT_B{idx}")
    if also is not None:
        r("v_lshlrev_b32 v251, 7, v0"); r(f"v_add_u32 v251, {WS_CNT + also*2048}, v251")
        r("v_cmp_eq_u32 vcc, 16, v0"); r("s_nop 1"); r("v_cndmask_b32 v250, v251, v250, vcc")
        r("s_mov_b64 exec, 0x1ffff")
    else:
        r("s_mov_b64 exec, 1")
    r("s_mov_b32 s25, 0")
    r(f"KT_P{idx}:")
    r("buffer_load_dword v251, v250, s[12:15], 0 offen sc1")
    r("s_waitcnt vmcnt(0)")
    r("v_cmp_gt_u32 vcc, 16, v251")
    r("s_add_u32 s25, s25, 1"); r("s_nop 3")
    r("s_and_b64 vcc, vcc, exec")
    r(f"s_cbranch_scc0 KT_D{idx}")
    r("s_sleep 1")
    r(f"s_cmp_lt_u32 s25, {SPIN}"); r(f"s_cbranch_scc1 KT_P{idx}")
    r(f"KT_D{idx}:")
    r("s_mov_b64 exec, -1")
    r(f"KT_B{idx}:")
    e("s_waitcnt lgkmcnt(0)")
    e("s_barrier")

S3M32 = False
AGB = False
BPF3, BPF5, BPF6 = 9, 9, 8
NB3, ND3, NB5 = 3, 4, 3
def gen_kt(stamps=False, detail=None, P=None, mono=False):
    fused = P is not None
    if not fused: P = Prog()
    e = P.e
    st_i = [0]
    def dstamp(tag):
        if detail == tag:
            e(f"s_memtime s[{60+2*st_i[0]}:{61+2*st_i[0]}]"); st_i[0] += 1
    def stamp():
        if stamps and detail is None:
            e(f"s_memtime s[{60+2*st_i[0]}:{61+2*st_i[0]}]"); st_i[0] += 1
    if not fused:
        e("s_cmp_ge_u32 s2, 256"); e("s_cbranch_scc1 KT_END")
    e("s_load_dwordx2 s[40:41], s[0:1], 32")
    e("s_load_dwordx2 s[42:43], s[0:1], 104")
    e("s_load_dwordx2 s[44:45], s[0:1], 0")
    e("s_load_dwordx4 s[48:51], s[0:1], 48")
    e("s_load_dwordx2 s[52:53], s[0:1], 64")
    e("s_load_dwordx2 s[54:55], s[0:1], 88")
    stamp()
    e("s_and_b32 s20, s2, 3")
    e("s_lshr_b32 s3, s2, 2"); e("s_and_b32 s3, s3, 1"); e("s_lshl_b32 s3, s3, 3")
    e("s_lshr_b32 s21, s2, 5"); e("s_add_u32 s21, s21, s3")
    e("s_lshr_b32 s22, s2, 3"); e("s_and_b32 s22, s22, 3")
    e("s_lshl_b32 s56, s20, 2"); e("s_add_u32 s56, s56, s22")
    if fused:
        e("s_mov_b32 s23, s26")
        e("s_lshr_b32 s58, s2, 5"); e("s_lshl_b32 s58, s58, 2"); e("s_and_b32 s3, s2, 7"); e("s_lshr_b32 s3, s3, 1"); e("s_add_u32 s58, s58, s3")
        e("s_lshl_b32 s58, s58, 7"); e(f"s_add_u32 s58, s58, {WS_CNT + 4*2048}")
        e("s_lshr_b32 s59, s21, 1"); e("s_lshl_b32 s59, s59, 2"); e("s_add_u32 s59, s59, s20")
        e("s_lshl_b32 s59, s59, 7"); e(f"s_add_u32 s59, s59, {WS_CNT + 4*2048}")
    else:
        e("v_lshrrev_b32 v1, 6, v0"); e("v_and_b32 v0, 63, v0")
        e("v_readfirstlane_b32 s23, v1")
    NS = 6; ST = 20480
    for i in range(5):
        e(f"v_add_u32 v10, {i*64}, v0")
        e("v_mul_u32_u24 v11, 3277, v10"); e("v_lshrrev_b32 v11, 16, v11")
        e("v_mul_u32_u24 v12, 20, v11"); e("v_sub_u32 v12, v10, v12")
        e("v_lshrrev_b32 v13, 2, v11"); e("v_and_b32 v13, 1, v13"); e("v_lshlrev_b32 v13, 1, v13")
        e("v_xor_b32 v12, v12, v13"); e("v_lshlrev_b32 v12, 4, v12")
        e("v_mul_u32_u24 v11, 1280, v11"); e("v_add_u32 v11, v11, v12")
        e(f"v_add_u32 v{2+i}, {BIAS - (i*1024 if i < 4 else 0)}, v11")
    e("s_mul_i32 s3, s23, 20480")
    for i in range(5): e(f"v_add_u32 v{2+i}, s3, v{2+i}")
    e("s_lshl_b32 s3, s21, 3"); e("s_lshl_b32 s24, s23, 1"); e("s_add_u32 s24, s24, s3")
    e("s_mul_i32 s3, s24, 196608"); e("s_mul_i32 s25, s20, 49152"); e("s_add_u32 s3, s3, s25"); e(f"s_add_u32 s3, s3, {WS_OF}")
    if S3M32:
        e("v_lshrrev_b32 v10, 4, v0"); e("v_and_b32 v10, 1, v10"); e("v_mul_u32_u24 v10, 196608, v10")
        e("v_lshrrev_b32 v11, 5, v0"); e("v_lshlrev_b32 v11, 8, v11"); e("v_add_u32 v10, v10, v11")
        e("v_and_b32 v11, 15, v0"); e("v_lshlrev_b32 v11, 4, v11"); e("v_add_u32 v10, v10, v11")
        e("v_add_u32 v15, s3, v10"); e("v_add_u32 v16, 512, v15")
    else:
        e("v_lshlrev_b32 v10, 4, v0"); e("v_add_u32 v15, s3, v10"); e("v_add_u32 v16, 196608, v15")
    e("s_mul_i32 s26, s23, 5120"); e("s_mul_i32 s27, s20, 1966080")
    e("s_waitcnt lgkmcnt(0)")
    e("s_mul_i32 s3, s22, 320")
    e("s_add_u32 s8, s40, s3"); e("s_addc_u32 s9, s41, 0"); e(f"s_sub_u32 s8, s8, {BIAS}"); e("s_subb_u32 s9, s9, 0")
    e(f"s_sub_u32 s10, {7864320+BIAS}, s3"); e("s_mov_b32 s11, 0x20000")
    srd(P, 12, 42, 43, WS_BYTES)
    ACC = 176; AR = 20; ASL = 12; BR = 68; BS = 6
    agb = AGB and fused
    if agb: BR = 0; BS = 12
    RB = (lambda b: f"a[{b}:{b+3}]") if agb else (lambda b: f"v[{b}:{b+3}]")
    def acc3(t, ct): return ACC + (t*2 + ct)*4
    def mf3(ks, t, ar):
        T, sp = divmod(t, 2); d = ACC + 16*T; b = BR + (ks % BS)*8 + 4*sp
        c = f"v[{d}:{d+15}]" if (ks > 0 or sp > 0) else "0"
        return f"v_mfma_f32_32x32x16_bf16 v[{d}:{d+15}], v[{ar}:{ar+3}], v[{b}:{b+3}], {c}"
    def tr3(n):
        ks, t = divmod(n, 10); st, kk = divmod(ks, 2)
        sett, so = divmod(st % NS, 3)
        if S3M32:
            T, sp = divmod(t, 2)
            areg = [7, 9][sett]
            off = so*ST + kk*10240 + sp*2560 + T*64
        else:
            areg = [7, 8, 9, 14][sett*2 + (t & 1)]
            off = so*ST + kk*10240 + (t >> 1)*64
        r = AR + (n % ASL)*4
        return [Ins(f"ds_read_b64_tr_b16 v[{r}:{r+1}], v{areg} offset:{off}"),
                Ins(f"ds_read_b64_tr_b16 v[{r+2}:{r+3}], v{areg} offset:{off+5120}")]
    def bl3(ks):
        b = BR + (ks % BS)*8
        return ([Ins(f"s_mov_b32 s28, {ks*1024}")],
                [Ins(f"buffer_load_dwordx4 {RB(b+4*ct)}, v{15+ct}, s[12:15], s28 offen" + (" sc1" if fused else "")) for ct in range(2)])
    def dma3(st):
        L = [Ins(f"s_add_u32 m0, s26, {(st % NS)*ST}"), Ins(f"s_add_u32 s29, s27, {st*81920}")]
        D = [Ins(f"buffer_load_dwordx4 v{2+i}, s[8:11], s29 offen offset:{i*1024} lds") for i in range(4)]
        D.append(Ins(f"s_add_u32 m0, s26, {(st % NS)*ST + 4096}"))
        D.append(Ins(f"buffer_load_dwordx4 v6, s[8:11], s29 offen lds"))
        return L, D
    H = {'b': {}}
    for st in range(3):
        L, D = dma3(st); P.many(L); P.many(D); H[st] = D[-1]
        for ks in ((2*st, 2*st+1) if st < 2 else (4,)) if not fused else ():
            L, D = bl3(ks); P.many(L); P.many(D); H['b'][ks] = D[-1]
        if st == 0:
            e("s_lshl_b32 s3, s20, 7"); e("s_add_u32 s3, s3, s24"); e("s_mul_i32 s3, s3, 20480")
            e("s_mul_i32 s25, s22, 5120"); e("s_add_u32 s3, s3, s25"); e(f"s_add_u32 s3, s3, {WS_PART}")
            if S3M32:
                e("v_lshrrev_b32 v10, 5, v0"); e("v_lshrrev_b32 v11, 2, v0"); e("v_and_b32 v11, 3, v11")
                e("v_lshlrev_b32 v12, 2, v10"); e("v_add_u32 v11, v11, v12"); e("v_mul_u32_u24 v11, 320, v11")
                e("v_and_b32 v12, 3, v0"); e("v_lshlrev_b32 v12, 3, v12"); e("v_add_u32 v11, v11, v12")
                e("v_lshrrev_b32 v12, 4, v0"); e("v_and_b32 v12, 1, v12"); e("v_xor_b32 v12, v12, v10"); e("v_lshlrev_b32 v12, 5, v12")
                e("v_add_u32 v7, v11, v12"); e(f"v_add_u32 v9, {3*ST}, v7")
                e("v_lshrrev_b32 v11, 4, v0"); e("v_and_b32 v11, 1, v11"); e("v_mul_u32_u24 v11, 20480, v11")
                e("v_lshlrev_b32 v12, 8, v10"); e("v_add_u32 v11, v11, v12"); e("v_and_b32 v12, 15, v0"); e("v_lshlrev_b32 v12, 4, v12"); e("v_add_u32 v11, v11, v12")
                e("v_add_u32 v17, s3, v11"); e("v_add_u32 v18, 512, v17")
            else:
                e("v_lshrrev_b32 v10, 4, v0")
                e("v_lshrrev_b32 v11, 2, v0"); e("v_and_b32 v11, 3, v11")
                e("v_lshlrev_b32 v12, 2, v10"); e("v_add_u32 v11, v11, v12"); e("v_mul_u32_u24 v11, 320, v11")
                e("v_and_b32 v12, 3, v0"); e("v_lshlrev_b32 v12, 3, v12"); e("v_add_u32 v11, v11, v12")
                e("v_and_b32 v12, 1, v10"); e("v_lshlrev_b32 v12, 5, v12")
                e("v_add_u32 v7, v11, v12"); e("v_xor_b32 v12, 32, v12"); e("v_add_u32 v8, v11, v12")
                e(f"v_add_u32 v9, {3*ST}, v7"); e(f"v_add_u32 v14, {3*ST}, v8")
                e("v_lshlrev_b32 v10, 4, v0"); e("v_add_u32 v17, s3, v10"); e("v_add_u32 v18, 20480, v17")
    srd(P, 16, 44, 45, 2048*1280)
    e("v_and_b32 v120, 7, v0"); e("v_lshrrev_b32 v121, 4, v0"); e("v_lshrrev_b32 v122, 3, v0"); e("v_and_b32 v122, 1, v122")
    e("s_lshl_b32 s30, s21, 3"); e("s_lshr_b32 s3, s56, 1"); e("s_add_u32 s30, s30, s3"); e("s_and_b32 s31, s56, 1")
    e("s_mul_i32 s3, s30, 20480"); e("s_lshl_b32 s25, s31, 7"); e("s_add_u32 s3, s3, s25")
    e("v_lshlrev_b32 v123, 10, v122"); e("v_lshlrev_b32 v124, 8, v121"); e("v_add_u32 v123, v123, v124"); e("v_lshlrev_b32 v124, 4, v120"); e("v_add_u32 v123, v123, v124")
    e("v_add_u32 v123, s3, v123")
    e("s_lshl_b32 s36, s23, 11"); e("s_add_u32 s37, s36, 8192"); e("s_and_b32 s38, s23, 1"); e("s_lshl_b32 s38, s38, 11"); e("s_add_u32 s38, s38, 16384")
    PAIR = [36, 37, 38]
    for j in range(3): e(f"v_add_u32 v{125+j}, s{PAIR[j]}, v123")
    e("s_lshl_b32 s3, s30, 4"); e("s_lshl_b32 s25, s31, 3"); e("s_add_u32 s3, s3, s25"); e("v_add_u32 v128, s3, v120"); e("v_mul_u32_u24 v128, 1280, v128")
    e("v_lshlrev_b32 v124, 6, v122"); e("v_add_u32 v128, v128, v124"); e("v_lshlrev_b32 v124, 3, v121"); e("v_add_u32 v128, v128, v124")
    for j in range(3):
        e(f"s_lshr_b32 s3, s{PAIR[j]}, 4"); e(f"v_add_u32 v{129+j}, s3, v128")
    XR = 132; MP = 160
    for j in range(3):
        for hh in range(2):
            e(f"buffer_load_dwordx2 v[{XR+j*4+hh*2}:{XR+j*4+hh*2+1}], v{129+j}, s[16:19], 0 offen offset:{hh*32}")
    srd(P, 32, 52, 53, 1966080)
    e("s_lshl_b32 s3, s23, 6"); e("v_add_u32 v144, s3, v0"); e("s_mul_i32 s25, s2, 480")
    for r_ in range(2):
        e(f"v_add_u32 v145, {r_*256}, v144")
        e("v_cmp_gt_u32 vcc, 480, v145"); e("v_add_u32 v145, s25, v145")
        e("v_lshlrev_b32 v146, 4, v145"); e("v_mov_b32 v147, 0x7ff00000"); e("v_cndmask_b32 v146, v147, v146, vcc")
        e(f"buffer_load_dwordx4 v[{160+4*r_}:{163+4*r_}], v146, s[32:35], 0 offen")
        e("s_mov_b32 s3, 53687092"); e("v_mul_hi_u32 v146, v145, s3")
        e("v_mul_u32_u24 v157, 80, v146"); e("v_sub_u32 v157, v145, v157")
        e("v_mul_u32_u24 v158, 6554, v157"); e("v_lshrrev_b32 v158, 16, v158")
        e("v_mul_u32_u24 v159, 10, v158"); e("v_sub_u32 v159, v157, v159")
        e("v_mul_u32_u24 v158, 245760, v158"); e("v_mul_u32_u24 v146, 160, v146")
        e("v_lshlrev_b32 v159, 4, v159"); e("v_add_u32 v158, v158, v146"); e("v_add_u32 v158, v158, v159")
        e(f"v_cndmask_b32 v{168+r_}, v147, v158, vcc")
    if fused:
        r = lambda t: P.e(RAW(t))
        P.wait_vm(P.last_o_store); e("s_barrier")
        r("s_cmp_lg_u32 s23, 0"); r("s_cbranch_scc1 KT_OB")
        r("v_mov_b32 v250, s58"); r("v_mov_b32 v251, 1"); r("s_mov_b64 exec, 1")
        r("buffer_atomic_add v251, v250, s[12:15], 0 offen sc1")
        r("v_mov_b32 v250, s59"); r("s_mov_b32 s25, 0")
        r("KT_OP:")
        r("buffer_load_dword v251, v250, s[12:15], 0 offen sc1")
        r("s_waitcnt vmcnt(0)")
        r("v_readfirstlane_b32 s3, v251"); r("s_add_u32 s25, s25, 1"); r("s_nop 2")
        r("s_cmp_ge_u32 s3, 8"); r("s_cbranch_scc1 KT_OD")
        r("s_sleep 1")
        r(f"s_cmp_lt_u32 s25, {SPIN}"); r("s_cbranch_scc1 KT_OP")
        r("KT_OD:")
        r("s_mov_b64 exec, -1")
        r("KT_OB:")
        P.wait_vm(H[0])
        e("s_barrier")
        for ks in range(5):
            L, D = bl3(ks); P.many(L); P.many(D); H['b'][ks] = D[-1]
    else:
        P.wait_vm(H[0]); e("s_barrier")
    PF = 6
    for n in range(PF):
        rr = tr3(n); P.many(rr); H.setdefault('tr', {})[n] = rr[-1]
    stamp()
    rp = [(Ins(f"s_mov_b32 s57, {WS_WD}"), 40, 60)] + [(Ins(f"buffer_store_dwordx4 v[{160+4*r_}:{163+4*r_}], v{168+r_}, s[12:15], s57 offen sc1"), 42 + 10*r_, 80) for r_ in range(2)]
    if S3M32:
        rp = [(x, a//2, b//2) for x, a, b in rp]
        g0 = kgemm.GAP; kgemm.GAP = 2
        gemm_stream(P, 48, 10, 1, 2, acc3, AR, ASL, BR, BS, tr3, bl3, dma3, H, PF, 5, 5, 24, extra=rp, mfma_fn=mf3)
        kgemm.GAP = g0
    else:
        gemm_stream(P, 48, 10, 2, 2, acc3, AR, ASL, BR, BS, tr3, bl3, dma3, H, PF, BPF3 if agb else NB3, ND3, 24, extra=rp, b_is_agpr=agb)
    stamp()
    for u in range(5):
        e(f"s_mov_b32 s28, {u*1024}")
        for ct in range(2):
            d = 20 + (u*2+ct)*4
            if S3M32: a = ACC + 16*u + 4*ct; b = a + 8
            else: a = acc3(2*u, ct); b = acc3(2*u+1, ct)
            e(f"v_cvt_pk_bf16_f32 v{d}, v{a}, v{a+1}"); e(f"v_cvt_pk_bf16_f32 v{d+1}, v{a+2}, v{a+3}")
            e(f"v_cvt_pk_bf16_f32 v{d+2}, v{b}, v{b+1}"); e(f"v_cvt_pk_bf16_f32 v{d+3}, v{b+2}, v{b+3}")
            e(f"buffer_store_dwordx4 v[{d}:{d+3}], v{17+ct}, s[12:15], s28 offen sc1")
    def s5_setup():
        for i in range(3):
            e(f"v_add_u32 v110, {i*64}, v0")
            e("v_mul_u32_u24 v111, 5462, v110"); e("v_lshrrev_b32 v111, 16, v111")
            e("v_mul_u32_u24 v112, 12, v111"); e("v_sub_u32 v112, v110, v112")
            e("v_lshrrev_b32 v113, 2, v111"); e("v_and_b32 v113, 1, v113"); e("v_lshlrev_b32 v113, 1, v113")
            e("v_xor_b32 v112, v112, v113"); e("v_lshlrev_b32 v112, 4, v112")
            e("v_mul_u32_u24 v111, 3072, v111"); e("v_add_u32 v111, v111, v112")
            e(f"v_add_u32 v{2+i}, {BIAS - i*1024}, v111")
        e("s_lshr_b32 s3, s23, 1"); e("s_mul_i32 s3, s3, 49152")
        for i in range(3): e(f"v_add_u32 v{2+i}, s3, v{2+i}")
        e("s_and_b32 s3, s23, 1"); e("s_cmp_eq_u32 s3, 0")
        e("s_cselect_b32 s8, s48, s50"); e("s_cselect_b32 s9, s49, s51")
        e("s_mul_i32 s3, s56, 192")
        e("s_add_u32 s8, s8, s3"); e("s_addc_u32 s9, s9, 0"); e(f"s_sub_u32 s8, s8, {BIAS}"); e("s_subb_u32 s9, s9, 0")
        e(f"s_sub_u32 s10, {640*3072+BIAS}, s3"); e("s_mov_b32 s11, 0x20000")
        e("s_mul_i32 s26, s23, 3072")
        e("v_lshrrev_b32 v10, 4, v0")
        e("v_lshrrev_b32 v11, 2, v0"); e("v_mul_u32_u24 v11, 192, v11")
        e("v_and_b32 v12, 3, v0"); e("v_lshlrev_b32 v12, 3, v12"); e("v_add_u32 v11, v11, v12")
        e("v_and_b32 v12, 1, v10"); e("v_lshlrev_b32 v12, 5, v12")
        e("v_add_u32 v7, v11, v12"); e("v_xor_b32 v12, 32, v12"); e("v_add_u32 v8, v11, v12")
        e("v_lshlrev_b32 v10, 4, v0")
        e("s_mul_i32 s3, s24, 20480"); e(f"s_add_u32 s3, s3, {WS_H2F}"); e("v_add_u32 v15, s3, v10"); e("v_add_u32 v16, 20480, v15")
        e("s_mul_i32 s3, s24, 49152"); e("s_mul_i32 s25, s56, 3072"); e("s_add_u32 s3, s3, s25"); e(f"s_add_u32 s3, s3, {WS_ACT}")
        e("v_add_u32 v17, s3, v10"); e("v_add_u32 v18, 49152, v17")
    NS5 = 5; ST5 = 12288
    def dma5(st):
        return ([Ins(f"s_add_u32 m0, s26, {(st % NS5)*ST5}"), Ins(f"s_mov_b32 s29, {st*32*3072}")],
                [Ins(f"buffer_load_dwordx4 v{2+i}, s[8:11], s29 offen offset:{i*1024} lds") for i in range(3)])
    H5 = {'b': {}}
    e("s_lshl_b32 s3, s23, 6"); e("v_add_u32 v144, s3, v0")
    for i in range(3):
        e(f"v_add_u32 v145, {256*i}, v144"); e("v_min_u32 v145, 639, v145")
        e("v_mul_u32_u24 v146, 410, v145"); e("v_lshrrev_b32 v146, 16, v146")
        e("v_mul_u32_u24 v147, 160, v146"); e("v_sub_u32 v147, v145, v147")
        e(f"v_lshlrev_b32 v{148+i}, 4, v147")
        e("v_mul_u32_u24 v147, 2560, v146"); e(f"v_add_u32 v147, v147, v{148+i}")
        for p in range(NSPLIT):
            e(f"s_mov_b32 s25, {WS_MOD + (p*3840 + 2*640)*4}")
            e(f"buffer_load_dwordx4 v[{MP+(i*4+p)*4}:{MP+(i*4+p)*4+3}], v147, s[12:15], s25 offen sc1")
        e(f"v_mul_u32_u24 v146, 5120, v146"); e(f"v_add_u32 v{148+i}, v{148+i}, v146"); e(f"v_add_u32 v{148+i}, {LDS_V}, v{148+i}")
    X = 208
    def hook1():
        s5_setup()
        for i in range(3):
            b = MP + i*16
            for p in range(1, NSPLIT):
                for k in range(4): e(f"v_add_f32 v{b+k}, v{b+k}, v{b+4*p+k}")
            e(f"v_subrev_u32 v146, {LDS_V + 2*5120}, v{148+i}"); e("v_cmp_gt_u32 vcc, 5120, v146"); e("s_nop 1")
            e("v_cndmask_b32 v146, 0, 1.0, vcc")
            for k in range(4):
                e(f"v_cvt_pk_bf16_f32 v{b+k}, v{b+k}, v{b+k}"); e(f"v_and_b32 v{b+k}, 0xffff0000, v{b+k}"); e(f"v_add_f32 v{b+k}, v{b+k}, v146")
            e(f"ds_write_b128 v{148+i}, v[{b}:{b+3}]")
        for q in range(12):
            e(f"v_lshlrev_b32 v{X+2*q}, 16, v{XR+q}"); e(f"v_and_b32 v{X+2*q+1}, 0xffff0000, v{XR+q}")
        e("v_lshlrev_b32 v151, 7, v122"); e("v_lshlrev_b32 v146, 4, v121"); e("v_add_u32 v151, v151, v146"); e(f"v_add_u32 v151, {LDS_V}, v151")
        for j in range(3):
            e(f"s_lshr_b32 s3, s{PAIR[j]}, 3"); e(f"v_add_u32 v{152+j}, s3, v151")
        e("s_cmp_lt_u32 s23, 2"); e("s_cselect_b32 s39, 1.0, 0")
        e("v_mul_u32_u24 v155, 144, v120"); e(f"v_add_u32 v155, {LDS_R}, v155")
        e("v_lshlrev_b32 v156, 3, v121"); e("v_lshlrev_b32 v146, 2, v122"); e("v_add_u32 v156, v156, v146"); e("s_lshl_b32 s3, s23, 5"); e("v_add_u32 v156, s3, v156"); e("v_add_u32 v156, v156, v155")
    stamp()
    gbar(P, 0, hook1)
    stamp()
    dstamp('s4')
    PR = 20
    for p in range(4):
        for j in range(3):
            e(f"s_mov_b32 s25, {WS_PART + p*128*20480}")
            e(f"buffer_load_dwordx4 v[{PR+(p*3+j)*4}:{PR+(p*3+j)*4+3}], v{125+j}, s[12:15], s25 offen sc1")
    T = 20; OX = 100; GA = 160
    for j in range(3):
        for hh in range(2):
            k = j*2 + hh
            e(f"ds_read_b128 v[{GA+4*k}:{GA+4*k+3}], v{152+j} offset:{hh*64}")
    for st in range(4):
        L, D = dma5(st); P.many(L); P.many(D); H5[st] = D[-1]
    dstamp('s4')
    A_ = 72
    e("v_mov_b32 v146, 0x3f80"); e("v_mov_b32 v147, 0x3f800000")
    for q in range(12):
        e(f"v_lshlrev_b32 v{A_+2*q}, 16, v{PR+q}"); e(f"v_and_b32 v{A_+2*q+1}, 0xffff0000, v{PR+q}")
    for p in range(1, 4):
        for q in range(12):
            r = PR + p*12 + q
            e(f"v_dot2c_f32_bf16 v{A_+2*q}, v{r}, v146"); e(f"v_dot2c_f32_bf16 v{A_+2*q+1}, v{r}, v147")
    dstamp('s4')
    for k in range(6):
        for i in (0, 2): e(f"v_pk_fma_f32 v[{X+4*k+i}:{X+4*k+i+1}], v[{A_+4*k+i}:{A_+4*k+i+1}], v[{GA+4*k+i}:{GA+4*k+i+1}], v[{X+4*k+i}:{X+4*k+i+1}]")
        e(f"v_cvt_pk_bf16_f32 v{OX+2*k}, v{X+4*k}, v{X+4*k+1}"); e(f"v_cvt_pk_bf16_f32 v{OX+2*k+1}, v{X+4*k+2}, v{X+4*k+3}")
    for q in range(12):
        e(f"v_lshlrev_b32 v{X+2*q}, 16, v{OX+q}"); e(f"v_and_b32 v{X+2*q+1}, 0xffff0000, v{OX+q}")
    e(f"s_mov_b32 s25, {WS_X1}")
    for j in range(3): e(f"buffer_store_dwordx4 v[{OX+4*j}:{OX+4*j+3}], v{125+j}, s[12:15], s25 offen sc1")
    dstamp('s4')
    for j in range(3):
        for hh in range(2):
            k = j*2 + hh
            e(f"ds_read_b128 v[{T+4*k}:{T+4*k+3}], v{152+j} offset:{2*5120 + hh*64}")
            e(f"ds_read_b128 v[{T+24+4*k}:{T+24+4*k+3}], v{152+j} offset:{1*5120 + hh*64}")
    dstamp('s4')
    def red(val, base):
        e(f"ds_write_b32 v156, v{val} offset:{base}")
        e("s_waitcnt lgkmcnt(0)"); e("s_barrier")
        for q in range(8): e(f"ds_read_b128 v[{160+4*q}:{163+4*q}], v155 offset:{base+16*q}")
        for n in (16, 8, 4, 2):
            for q in range(0, n, 2): e(f"v_pk_add_f32 v[{160+q}:{161+q}], v[{160+q}:{161+q}], v[{160+n+q}:{161+n+q}]")
        e(f"v_add_f32 v{val}, v160, v161")
    e(f"v_pk_add_f32 v[158:159], v[{X}:{X+1}], v[{X+2}:{X+3}]")
    for i in range(2, 8): e(f"v_pk_add_f32 v[158:159], v[158:159], v[{X+2*i}:{X+2*i+1}]")
    e(f"v_pk_add_f32 v[96:97], v[{X+16}:{X+17}], v[{X+18}:{X+19}]")
    for i in range(10, 12): e(f"v_pk_add_f32 v[96:97], v[96:97], v[{X+2*i}:{X+2*i+1}]")
    e("v_add_f32 v158, v158, v159"); e("v_add_f32 v96, v96, v97"); e("v_fma_f32 v158, v96, s39, v158")
    dstamp('s4')
    red(158, 0)
    dstamp('s4')
    e(f"v_mul_f32 v158, {f2u(-1/640)}, v158"); e("v_mov_b32 v159, v158")
    for i in range(0, 24, 2): e(f"v_pk_add_f32 v[{X+i}:{X+i+1}], v[{X+i}:{X+i+1}], v[158:159]")
    e(f"v_pk_mul_f32 v[98:99], v[{X}:{X+1}], v[{X}:{X+1}]")
    for i in range(2, 16, 2): e(f"v_pk_fma_f32 v[98:99], v[{X+i}:{X+i+1}], v[{X+i}:{X+i+1}], v[98:99]")
    e(f"v_pk_mul_f32 v[96:97], v[{X+16}:{X+17}], v[{X+16}:{X+17}]")
    for i in range(18, 24, 2): e(f"v_pk_fma_f32 v[96:97], v[{X+i}:{X+i+1}], v[{X+i}:{X+i+1}], v[96:97]")
    e("v_add_f32 v159, v98, v99"); e("v_add_f32 v96, v96, v97")
    e("v_fma_f32 v159, v96, s39, v159")
    red(159, 1280)
    dstamp('s4')
    e(f"v_mul_f32 v159, {f2u(1/640)}, v159"); e(f"v_add_f32 v159, {f2u(1e-5)}, v159"); e("v_rsq_f32 v159, v159"); e("s_nop 0")
    e("v_mov_b32 v158, v159")
    for i in range(0, 24, 2):
        e(f"v_pk_mul_f32 v[{X+i}:{X+i+1}], v[{X+i}:{X+i+1}], v[158:159]")
    for i in range(0, 24, 2):
        e(f"v_pk_fma_f32 v[{X+i}:{X+i+1}], v[{X+i}:{X+i+1}], v[{T+i}:{T+i+1}], v[{T+24+i}:{T+24+i+1}]")
    for k in range(6):
        e(f"v_cvt_pk_bf16_f32 v{OX+2*k}, v{X+4*k}, v{X+4*k+1}"); e(f"v_cvt_pk_bf16_f32 v{OX+2*k+1}, v{X+4*k+2}, v{X+4*k+3}")
    e(f"s_mov_b32 s25, {WS_H2F}")
    for j in range(3): e(f"buffer_store_dwordx4 v[{OX+4*j}:{OX+4*j+3}], v{125+j}, s[12:15], s25 offen sc1")
    dstamp('s4')
    stamp()
    gbar(P, 1, None, also=0)
    dstamp('s4')
    stamp()
    ACC5 = 160
    def acc5(t, ct): return ACC5 + (t*2 + ct)*4
    def tr5(n):
        ks, t = divmod(n, 12); m_, j = divmod(t, 6)
        off = (ks % NS5)*ST5 + m_*3072 + (j >> 1)*64
        r = AR + (n % ASL)*4
        return [Ins(f"ds_read_b64_tr_b16 v[{r}:{r+1}], v{7 + (j & 1)} offset:{off}"),
                Ins(f"ds_read_b64_tr_b16 v[{r+2}:{r+3}], v{7 + (j & 1)} offset:{off+6144}")]
    def bl5(ks):
        b = BR + (ks % BS)*8
        return ([Ins(f"s_mov_b32 s28, {ks*1024}")],
                [Ins(f"buffer_load_dwordx4 {RB(b+4*ct)}, v{15+ct}, s[12:15], s28 offen sc1") for ct in range(2)])
    for ks in range(5):
        L, D = bl5(ks); P.many(L); P.many(D); H5['b'][ks] = D[-1]
    for n in range(PF):
        rr = tr5(n); P.many(rr); H5.setdefault('tr', {})[n] = rr[-1]
    gemm_stream(P, 20, 12, 2, 1, acc5, AR, ASL, BR, BS, tr5, bl5, dma5, H5, PF, BPF5 if agb else NB5, 4, 20, b_is_agpr=agb)
    stamp()
    for u in range(3):
        e(f"s_mov_b32 s28, {u*1024}")
        for ct in range(2):
            dst = 20 + (u*2 + ct)*4
            for hh in range(2):
                j = 2*u + hh
                g = acc5(j, ct); up = acc5(6+j, ct)
                for i in range(4): e(f"v_max_f32 v{g+i}, 0, v{g+i}")
                for i in range(4): e(f"v_mul_f32 v{g+i}, v{g+i}, v{up+i}")
                e(f"v_cvt_pk_bf16_f32 v{dst+2*hh}, v{g}, v{g+1}"); e(f"v_cvt_pk_bf16_f32 v{dst+2*hh+1}, v{g+2}, v{g+3}")
            e(f"buffer_store_dwordx4 v[{dst}:{dst+3}], v{17+ct}, s[12:15], s28 offen sc1")
    NS6 = 6; ST6 = 5120
    e("s_lshr_b32 s30, s20, 1"); e("s_lshl_b32 s30, s30, 2"); e("s_add_u32 s30, s30, s22")
    e("s_lshl_b32 s31, s21, 1"); e("s_and_b32 s3, s20, 1"); e("s_add_u32 s31, s31, s3")
    e("v_lshlrev_b32 v2, 4, v0"); e("v_add_u32 v6, 4096, v2")
    e("v_lshrrev_b32 v111, 2, v0"); e("v_mul_u32_u24 v111, 160, v111")
    e("v_and_b32 v112, 3, v0"); e("v_lshlrev_b32 v112, 3, v112"); e("v_add_u32 v7, v111, v112")
    e(f"s_mul_i32 s26, s23, {NS6*ST6}"); e("v_add_u32 v7, s26, v7")
    e("s_lshl_b32 s24, s31, 2")
    e("s_mul_i32 s3, s24, 49152"); e("s_mul_i32 s25, s23, 12288"); e("s_add_u32 s3, s3, s25"); e(f"s_add_u32 s3, s3, {WS_ACT}")
    e("v_lshlrev_b32 v10, 4, v0"); e("v_add_u32 v112, s3, v10")
    e("s_mul_i32 s27, s23, 61440"); e("s_mul_i32 s3, s30, 245760"); e("s_add_u32 s27, s27, s3"); e(f"s_add_u32 s27, s27, {WS_WD}")
    srd(P, 32, 54, 55, 2048*1280)
    def dma6(st):
        L = [Ins(f"s_add_u32 m0, s26, {(st % NS6)*ST6}"), Ins(f"s_add_u32 s29, s27, {st*5120}")]
        D = [Ins(f"buffer_load_dwordx4 v2, s[12:15], s29 offen offset:{i*1024} sc1 lds") for i in range(4)]
        D.append(Ins(f"s_add_u32 m0, s26, {(st % NS6)*ST6 + 4096}"))
        D.append(Ins(f"buffer_load_dwordx4 v6, s[12:15], s29 offen sc1 lds"))
        return L, D
    H6 = {'b': {}}
    def hook3():
        for st in range(3):
            L, D = dma6(st); P.many(L); P.many(D); H6[st] = D[-1]
    stamp()
    gbar(P, 2, hook3)
    stamp()
    for ct in range(4): e(f"v_add_u32 v{15+ct}, {ct*49152}, v112")
    ACC6 = 176; AR6 = 20; ASL6 = 8; BR6 = 52; BS6 = 4; XR6 = 116; GB6 = 128
    if agb: BR6 = 0; BS6 = 12
    def acc6(t, ct): return ACC6 + (t*4 + ct)*4
    def tr6(n):
        ks, t = divmod(n, 5)
        off = (ks % NS6)*ST6 + t*32
        r = AR6 + (n % ASL6)*4
        return [Ins(f"ds_read_b64_tr_b16 v[{r}:{r+1}], v7 offset:{off}"),
                Ins(f"ds_read_b64_tr_b16 v[{r+2}:{r+3}], v7 offset:{off+2560}")]
    def bl6(ks):
        b = BR6 + (ks % BS6)*16
        return ([Ins(f"s_mov_b32 s28, {ks*1024}")],
                [Ins(f"buffer_load_dwordx4 {RB(b+4*ct)}, v{15+ct}, s[12:15], s28 offen sc1") for ct in range(4)])
    for ks in range(3):
        L, D = bl6(ks); P.many(L); P.many(D); H6['b'][ks] = D[-1]
    e("s_add_u32 s3, s24, s23"); e("s_mul_i32 s36, s3, 20480"); e(f"s_add_u32 s36, s36, {WS_X1}")
    for t in range(5):
        e(f"s_mul_i32 s3, s30, 5"); e(f"s_add_u32 s3, s3, {t}"); e("s_lshr_b32 s37, s3, 1"); e("s_lshl_b32 s37, s37, 10")
        e("s_and_b32 s3, s3, 1"); e("s_lshl_b32 s3, s3, 3"); e("s_add_u32 s37, s37, s3"); e("s_add_u32 s37, s37, s36")
        e(f"buffer_load_dwordx2 v[{XR6+2*t}:{XR6+2*t+1}], v10, s[12:15], s37 offen sc1")
    e("v_lshrrev_b32 v11, 4, v0"); e("v_lshlrev_b32 v13, 4, v11"); e("s_mul_i32 s3, s30, 320"); e(f"s_add_u32 s3, s3, {LDS_V + 3*5120}"); e("v_add_u32 v13, s3, v13")
    for t in range(5): e(f"ds_read_b128 v[{GB6+4*t}:{GB6+4*t+3}], v13 offset:{t*64}")
    e("v_and_b32 v12, 15, v0"); e("s_lshl_b32 s3, s31, 6"); e("s_lshl_b32 s25, s23, 4"); e("s_add_u32 s3, s3, s25"); e("v_add_u32 v12, s3, v12")
    e("v_mul_u32_u24 v12, 1280, v12"); e("v_lshlrev_b32 v11, 3, v11"); e("v_add_u32 v12, v12, v11")
    e("s_mul_i32 s3, s30, 160"); e("v_add_u32 v14, s3, v12")
    PF6 = 4
    P.wait_vm(H6[0])
    for n in range(PF6):
        rr = tr6(n); P.many(rr); H6.setdefault('tr', {})[n] = rr[-1]
    bar0 = kgemm.GOPT['barrier']; kgemm.GOPT['barrier'] = False
    g0 = kgemm.GAP; kgemm.GAP = 2
    gemm_stream(P, 12, 5, 4, 1, acc6, AR6, ASL6, BR6, BS6, tr6, bl6, dma6, H6, PF6, BPF6 if agb else 3, 4, 12, WG=1, b_is_agpr=agb)
    kgemm.GAP = g0; kgemm.GOPT['barrier'] = bar0
    stamp()
    e("s_barrier")
    e("s_mul_i32 s3, s23, 20480"); e("v_add_u32 v11, s3, v10")
    for ct in range(4):
        for t in range(5):
            a = acc6(t, ct)
            e(f"ds_write_b128 v11, v[{a}:{a+3}] offset:{(ct*5+t)*1024}")
    e("s_waitcnt lgkmcnt(0)"); e("s_barrier")
    e("s_mul_i32 s3, s23, 5120"); e("v_add_u32 v11, s3, v10"); e("v_add_u32 v13, 40960, v11")
    for sw in range(4):
        for t in range(5):
            r = 20 + (sw*5 + t)*4
            e(f"ds_read_b128 v[{r}:{r+3}], v{11 if sw < 2 else 13} offset:{(sw & 1)*20480 + t*1024}")
    for t in range(5):
        y = 20 + t*4
        for sw in range(1, 4):
            for i in range(4): e(f"v_add_f32 v{y+i}, v{y+i}, v{20+(sw*5+t)*4+i}")
        x = XR6 + 2*t
        e(f"v_lshlrev_b32 v148, 16, v{x}"); e(f"v_and_b32 v149, 0xffff0000, v{x}")
        e(f"v_lshlrev_b32 v150, 16, v{x+1}"); e(f"v_and_b32 v151, 0xffff0000, v{x+1}")
        for i in range(4): e(f"v_fma_f32 v{y+i}, v{y+i}, v{GB6+4*t+i}, v{148+i}")
        e(f"v_cvt_pk_bf16_f32 v{y}, v{y}, v{y+1}"); e(f"v_cvt_pk_bf16_f32 v{y+1}, v{y+2}, v{y+3}")
        e(f"buffer_store_dwordx2 v[{y}:{y+1}], v14, s[32:35], 0 offen offset:{t*32}")
    if stamps:
        e("s_waitcnt vmcnt(0)"); stamp()
        while st_i[0] < 12:
            e(f"s_memtime s[{60+2*st_i[0]}:{61+2*st_i[0]}]"); st_i[0] += 1
        e("s_waitcnt lgkmcnt(0)")
        e(f"s_lshl_b32 s3, s2, 2"); e(f"s_add_u32 s3, s3, s23"); e("s_lshl_b32 s3, s3, 6"); e(f"s_add_u32 s3, s3, {WS_STAMP}")
        for i in range(st_i[0]):
            e(f"v_mov_b32 v1, s{60+2*i}"); e("v_mov_b32 v2, s3")
            e(f"buffer_store_dword v1, v2, s[12:15], 0 offen offset:{4*i}"); e("s_waitcnt vmcnt(0)")
    e("KT_END:")
    e("s_endpgm")
    if not fused: P.finalize(report_nops=False)
    P.nstamps = st_i[0]
    return P

if __name__ == "__main__":
    k = gen_kt(stamps=True)
    print(k.estimate(), len(k.final), k.nstamps)
```

```python
from asmgen import *

WS_MOD  = 0x0
WS_HF   = 0x40000
WS_OF   = 0x400000
WS_PART = 0x2000000
WS_X1   = 0x3800000
WS_H2F  = 0x4000000
WS_ACT  = 0x4400000
WS_WD   = 0x4C00000
WS_WGU  = 0x5800000
WS_CNT  = 0x30000
WS_STAMP= 0x5000000
WS_DBG  = 0x6000000
WS_BYTES = 268435456

WQ_BASE = 0;      WQ_NS = 5;  WQ_ST = 12288
K_BASE  = 36864;  K_NS = 5;   K_ST = 12288
V_BASE  = 98304;  V_NS = 4;   V_ST = 16384
LDS_BYTES = 163840
BIAS = 4096

sWQ, sK, sV, sWS = 8, 12, 16, 20
sHEAD, sRB, sW = 24, 25, 26
sM0WQ, sM0K, sM0V = 27, 28, 29
sOFF = 30
sOFH = 31
sT0, sT1, sT2, sT3 = 32, 33, 34, 35
sSLOW = 36
sTS = 76

vWQD = 1
vKD  = 4
vVD  = 7
vWQT = 11
vKF  = 15
vVT  = 19
vHO  = 23
vT0, vT1, vT2, vT3 = 60, 61, 62, 63
QACC = 64
QF = 64
SB = [160, 192]
RING = 192
OACC = [64, 160]
LACC = 128
RINV = 144

def P_reg(kt, ct):
    if kt < 12: return ('a', kt*16 + ct*4)
    if kt < 14: return ('v', 28 + (kt-12)*16 + ct*4)
    return ('v', 224 + (kt-14)*16 + ct*4)

def prologue(P, stamps=False, check=True):
    e = P.e
    if check:
        e("s_cmp_ge_u32 s2, 256")
        e("s_cbranch_scc1 K2_END")
    e("s_load_dwordx2 s[4:5], s[0:1], 24")
    e("s_load_dwordx2 s[6:7], s[0:1], 104")
    e("s_load_dwordx4 s[44:47], s[0:1], 8")
    e("s_load_dwordx2 s[68:69], s[0:1], 32")
    e("s_load_dwordx4 s[72:75], s[0:1], 48")
    e("s_load_dwordx2 s[70:71], s[0:1], 64")
    e("v_lshrrev_b32 v2, 6, v0")
    e("v_and_b32 v0, 63, v0")
    e("v_readfirstlane_b32 s26, v2")
    e("s_and_b32 s24, s2, 7"); e("s_lshl_b32 s24, s24, 2")
    e("s_lshr_b32 s3, s2, 3"); e("s_and_b32 s3, s3, 3"); e("s_add_u32 s24, s24, s3")
    e("s_lshr_b32 s25, s2, 5")
    e(f"v_lshrrev_b32 v{vT0}, 3, v0")
    e(f"v_and_b32 v{vT1}, 7, v0")
    e(f"v_lshrrev_b32 v{vT2}, 4, v0")
    e(f"v_lshlrev_b32 v{vT3}, 1, v{vT2}")
    e(f"v_xor_b32 v{vT3}, v{vT3}, v{vT1}")
    e(f"v_lshlrev_b32 v{vT3}, 4, v{vT3}")
    e("s_lshl_b32 s3, s26, 3")
    e(f"v_add_u32 v{vWQD}, s3, v{vT0}")
    e("s_mov_b32 s37, 12288")
    e(f"v_mul_lo_u32 v{vWQD}, v{vWQD}, s37")
    e(f"v_add_u32 v{vWQD}, v{vWQD}, v{vT3}")
    e(f"v_add_u32 v{vWQD}, {BIAS}, v{vWQD}")
    e(f"v_add_u32 v{vWQD+1}, {128-1024}, v{vWQD}")
    e(f"v_add_u32 v{vWQD+2}, {256-2048}, v{vWQD}")
    e("s_lshl_b32 s3, s25, 4"); e("s_lshl_b32 s37, s26, 2"); e("s_add_u32 s38, s3, s37")
    e("s_mul_i32 s3, s38, 20480"); e(f"s_add_u32 s3, s3, {WS_HF}")
    e(f"v_lshlrev_b32 v{vHO}, 4, v0")
    e(f"v_add_u32 v{vHO}, s3, v{vHO}")
    for ct in range(1, 4):
        e(f"v_add_u32 v{vHO+ct}, {ct*20480}, v{vHO}")
    e(f"s_mul_i32 s{sM0WQ}, s26, 3072")
    e("s_mul_i32 s3, s24, 384")
    e("s_waitcnt lgkmcnt(0)")
    e(f"s_add_u32 s{sWQ}, s4, s3"); e(f"s_addc_u32 s{sWQ+1}, s5, 0")
    e(f"s_sub_u32 s{sWQ}, s{sWQ}, {BIAS}"); e(f"s_subb_u32 s{sWQ+1}, s{sWQ+1}, 0")
    e(f"s_sub_u32 s{sWQ+2}, {7864320+BIAS}, s3"); e(f"s_mov_b32 s{sWQ+3}, 0x20000")
    e(f"s_mov_b32 s{sWS}, s6"); e(f"s_mov_b32 s{sWS+1}, s7")
    e(f"s_mov_b32 s{sWS+2}, {WS_BYTES}"); e(f"s_mov_b32 s{sWS+3}, 0x20000")

def prologue2(P):
    e = P.e
    e(f"v_lshrrev_b32 v{vT0}, 2, v0"); e(f"v_and_b32 v{vT0}, 3, v{vT0}")
    e(f"v_and_b32 v{vT1}, 3, v0"); e(f"v_lshlrev_b32 v{vT1}, 3, v{vT1}")
    e(f"v_and_b32 v{vWQT}, 1, v{vT2}"); e(f"v_lshlrev_b32 v{vWQT}, 2, v{vWQT}")
    e(f"v_add_u32 v{vWQT}, v{vWQT}, v{vT0}")
    e(f"v_lshrrev_b32 v{vWQT+1}, 1, v{vWQT}")
    e(f"v_lshlrev_b32 v{vWQT}, 7, v{vWQT}")
    e(f"v_lshrrev_b32 v{vWQT+2}, 1, v{vT2}")
    e(f"v_mul_u32_u24 v{vWQT+2}, 3072, v{vWQT+2}")
    e(f"v_add_u32 v{vWQT}, v{vWQT}, v{vWQT+2}")
    e(f"v_add_u32 v{vWQT}, v{vWQT}, v{vT1}")
    e(f"v_lshlrev_b32 v{vWQT+1}, 5, v{vWQT+1}")
    for tp in (3, 2):
        e(f"v_xor_b32 v{vT3}, {tp<<5}, v{vWQT+1}")
        e(f"v_add_u32 v{vWQT+tp}, v{vWQT}, v{vT3}")
    e(f"v_xor_b32 v{vT3}, {1<<5}, v{vWQT+1}")
    e(f"v_add_u32 v{vT3}, v{vWQT}, v{vT3}")
    e(f"v_add_u32 v{vWQT}, v{vWQT}, v{vWQT+1}")
    e(f"v_mov_b32 v{vWQT+1}, v{vT3}")
    e(f"v_lshrrev_b32 v{vVT}, 1, v{vT2}"); e(f"v_lshlrev_b32 v{vVT}, 2, v{vVT}")
    e(f"v_add_u32 v{vVT}, v{vVT}, v{vT0}")
    e(f"v_lshrrev_b32 v{vVT+1}, 1, v{vVT}"); e(f"v_and_b32 v{vVT+1}, 1, v{vVT+1}")
    e(f"v_and_b32 v{vVT+2}, 1, v{vT2}")
    e(f"v_lshlrev_b32 v{vVT+3}, 1, v{vVT+2}")
    e(f"v_or_b32 v{vVT+1}, v{vVT+1}, v{vVT+3}")
    e(f"v_lshlrev_b32 v{vVT+1}, 5, v{vVT+1}")
    e(f"v_lshlrev_b32 v{vVT}, 7, v{vVT}")
    e(f"v_lshlrev_b32 v{vVT+2}, 10, v{vVT+2}")
    e(f"v_add_u32 v{vVT}, v{vVT}, v{vVT+2}")
    e(f"v_add_u32 v{vVT}, v{vVT}, v{vT1}")
    e(f"v_add_u32 v{vVT}, {V_BASE}, v{vVT}")
    for tp in (3, 2):
        e(f"v_xor_b32 v{vT3}, {tp<<5}, v{vVT+1}")
        e(f"v_add_u32 v{vVT+tp}, v{vVT}, v{vT3}")
    e(f"v_xor_b32 v{vT3}, {1<<5}, v{vVT+1}")
    e(f"v_add_u32 v{vT3}, v{vVT}, v{vT3}")
    e(f"v_add_u32 v{vVT}, v{vVT}, v{vVT+1}")
    e(f"v_mov_b32 v{vVT+1}, v{vT3}")
    e(f"s_add_u32 s{sM0K}, s{sM0WQ}, {K_BASE}")
    e(f"s_lshl_b32 s{sM0V}, s26, 12"); e(f"s_add_u32 s{sM0V}, s{sM0V}, {V_BASE}")
    e("s_mul_i32 s3, s24, 786432"); e(f"s_add_u32 s3, s3, {1536*384-BIAS}")
    e(f"s_add_u32 s{sK}, s44, s3"); e(f"s_addc_u32 s{sK+1}, s45, 0")
    e(f"s_mov_b32 s{sK+2}, {512*384+BIAS}"); e(f"s_mov_b32 s{sK+3}, 0x20000")
    e(f"s_add_u32 s{sV}, s46, s3"); e(f"s_addc_u32 s{sV+1}, s47, 0")
    e(f"s_mov_b32 s{sV+2}, {512*384+BIAS}"); e(f"s_mov_b32 s{sV+3}, 0x20000")
    for base, lo, n in ((52, 68, 7864320), (56, 72, 1966080), (60, 74, 1966080), (64, 70, 1966080)):
        e(f"s_mov_b32 s{base}, s{lo}"); e(f"s_mov_b32 s{base+1}, s{lo+1}"); e(f"s_mov_b32 s{base+2}, {n}"); e(f"s_mov_b32 s{base+3}, 0x20000")

def prologue3():
    L = []
    e = lambda t: L.append(Ins(t))
    T0, T1, T2, T3 = 56, 57, 58, 59
    e(f"v_lshrrev_b32 v{T0}, 3, v0"); e(f"v_and_b32 v{T1}, 7, v0"); e(f"v_lshrrev_b32 v{T2}, 4, v0")
    e("s_lshl_b32 s3, s26, 3")
    e(f"v_add_u32 v{vKD}, s3, v{T0}")
    e(f"v_lshrrev_b32 v{T3}, 1, v{vKD}"); e(f"v_and_b32 v{T3}, 7, v{T3}"); e(f"v_xor_b32 v{T3}, v{T3}, v{T1}"); e(f"v_lshlrev_b32 v{T3}, 4, v{T3}")
    e(f"v_mul_u32_u24 v{vKD}, 384, v{vKD}"); e(f"v_add_u32 v{vKD}, v{vKD}, v{T3}"); e(f"v_add_u32 v{vKD}, {BIAS}, v{vKD}")
    e(f"v_add_u32 v{vKD+1}, {128-1024}, v{vKD}"); e(f"v_add_u32 v{vKD+2}, {256-2048}, v{vKD}")
    e(f"v_and_b32 v{T3}, 1, v{T2}"); e(f"v_lshlrev_b32 v{T3}, 1, v{T3}"); e(f"v_xor_b32 v{T3}, v{T3}, v{T1}")
    e("s_lshl_b32 s3, s26, 5")
    e(f"v_add_u32 v{vVD}, s3, v{T0}"); e(f"v_mul_u32_u24 v{vVD}, 384, v{vVD}"); e(f"v_add_u32 v{vVD}, {BIAS}, v{vVD}")
    e(f"v_xor_b32 v{vVD+1}, 4, v{T3}"); e(f"v_lshlrev_b32 v{vVD+1}, 4, v{vVD+1}"); e(f"v_lshlrev_b32 v{T3}, 4, v{T3}")
    e(f"v_add_u32 v{vVD+1}, v{vVD+1}, v{vVD}"); e(f"v_add_u32 v{vVD}, v{vVD}, v{T3}")
    e(f"v_add_u32 v{vVD+2}, {2*3072-2*1024}, v{vVD}"); e(f"v_add_u32 v{vVD+3}, {3*3072-3*1024}, v{vVD+1}"); e(f"v_add_u32 v{vVD+1}, {1*3072-1*1024}, v{vVD+1}")
    e(f"v_and_b32 v{T0}, 31, v0")
    e(f"v_lshrrev_b32 v{T1}, 3, v{T0}"); e(f"v_mul_u32_u24 v{T1}, 3072, v{T1}")
    e(f"v_and_b32 v{T3}, 7, v{T0}"); e(f"v_lshlrev_b32 v{T3}, 7, v{T3}")
    e(f"v_add_u32 v{T1}, v{T1}, v{T3}"); e(f"v_add_u32 v{T1}, {K_BASE}, v{T1}")
    e(f"v_lshrrev_b32 v{T0}, 1, v{T0}"); e(f"v_and_b32 v{T0}, 7, v{T0}")
    e(f"v_lshrrev_b32 v{T3}, 5, v0"); e(f"v_xor_b32 v{T0}, v{T0}, v{T3}")
    for s4 in range(4):
        e(f"v_xor_b32 v{T3}, {2*s4}, v{T0}"); e(f"v_lshlrev_b32 v{T3}, 4, v{T3}"); e(f"v_add_u32 v{vKF+s4}, v{T1}, v{T3}")
    return L

sPFV, sPFO, sPFW, sPFT = 96, 97, 98, 99
def touch_setup():
    return [Ins("v_lshlrev_b32 v27, 7, v0"), Ins("v_mov_b32 v59, 0x7ff00000"), Ins("v_cmp_gt_u32 vcc, 16, v0"), Ins("s_nop 1"),
            Ins("v_cndmask_b32 v27, v59, v27, vcc"),
            Ins(f"s_mul_i32 s{sPFV}, s25, 24576"), Ins(f"s_mul_i32 s{sPFT}, s26, 6144"), Ins(f"s_add_u32 s{sPFV}, s{sPFV}, s{sPFT}"), Ins(f"s_add_u32 s{sPFV}, s{sPFV}, {BIAS}"),
            Ins(f"s_lshl_b32 s{sPFT}, s2, 2"), Ins(f"s_add_u32 s{sPFT}, s{sPFT}, s26"),
            Ins(f"s_mul_i32 s{sPFW}, s{sPFT}, 1920"),
            Ins(f"s_and_b32 s{sPFO}, s2, 3"), Ins(f"s_mul_i32 s{sPFO}, s{sPFO}, 1966080"), Ins(f"s_lshr_b32 s{sPFT}, s2, 3"), Ins(f"s_lshl_b32 s{sPFT}, s{sPFT}, 2"),
            Ins(f"s_add_u32 s{sPFT}, s{sPFT}, s26"), Ins(f"s_mul_i32 s{sPFT}, s{sPFT}, 15360"), Ins(f"s_add_u32 s{sPFO}, s{sPFO}, s{sPFT}")]
def touch32_setup():
    return [Ins("v_lshlrev_b32 v3, 7, v0"), Ins("v_mov_b32 v2, 0x7ff00000"), Ins("v_cmp_gt_u32 vcc, 32, v0"), Ins("s_nop 1"), Ins("v_cndmask_b32 v3, v2, v3, vcc")]
def touch32(kind, i):
    base, srd_ = (sPFO, 52) if kind == 'wo' else (sPFW, {'wg': 56, 'wu': 60, 'wd': 64}[kind])
    return [Ins(f"s_add_u32 s{sPFT}, s{base}, {i*4096}"), NT(f"buffer_load_dword v1, v3, s[{srd_}:{srd_+3}], s{sPFT} offen")]

def touch16(kind, i, dst='a191'):
    if kind == 'v': base, srd_ = sPFV, sV
    elif kind == 'k': base, srd_ = sPFV, sK
    elif kind == 'wo': base, srd_ = sPFO, 52
    else: base, srd_ = sPFW, {'wg': 56, 'wu': 60, 'wd': 64}[kind]
    return [Ins(f"s_add_u32 s{sPFT}, s{base}, {i*2048}"), NT(f"buffer_load_dword {dst}, v27, s[{srd_}:{srd_+3}], s{sPFT} offen")]

PFS = 64
def pf_kv():
    L = [Ins(f"s_mul_i32 s{sT0}, s25, 24576"), Ins(f"s_mul_i32 s{sT1}, s26, 6144"), Ins(f"s_add_u32 s{sT0}, s{sT0}, s{sT1}"),
         Ins(f"s_add_u32 s{sT0}, s{sT0}, {BIAS}"), Ins(f"v_mul_u32_u24 v29, {PFS}, v0"), Ins(f"v_add_u32 v29, s{sT0}, v29")]
    n = -(-6144 // (64*PFS))
    D = []
    for srd_ in (sK, sV):
        for i in range(n):
            D.append(Ins(f"v_add_u32 v30, {i*64*PFS}, v29"))
            D.append(Ins(f"buffer_load_dword v28, v30, s[{srd_}:{srd_+3}], 0 offen"))
    return L + D

def pf_wo():
    return [Ins(f"s_lshl_b32 s{sT0}, s2, 2"), Ins(f"s_add_u32 s{sT0}, s{sT0}, s26"), Ins(f"s_mul_i32 s{sT1}, s{sT0}, 7680"),
            Ins(f"v_lshlrev_b32 v31, {OPT.get('pfshift', 7)}, v0"), Ins(f"v_add_u32 v31, s{sT1}, v31"),
            NT(f"buffer_load_dword v28, v31, s[52:55], 0 offen")] + ([Ins("v_add_u32 v31, 4096, v31"), NT(f"buffer_load_dword v28, v31, s[52:55], 0 offen")] if OPT.get('pfshift', 7) == 6 else [])

def pf_weights():
    L = [Ins(f"s_lshl_b32 s{sT0}, s2, 2"), Ins(f"s_add_u32 s{sT0}, s{sT0}, s26"),
         Ins(f"v_mul_u32_u24 v31, {PFS}, v0"),
         Ins(f"s_mul_i32 s{sT1}, s{sT0}, 7680"), Ins(f"v_add_u32 v32, s{sT1}, v31")]
    for i in range(-(-7680 // (64*PFS))):
        L.append(Ins(f"v_add_u32 v30, {i*64*PFS}, v32"))
        L.append(Ins(f"buffer_load_dword v28, v30, s[52:55], 0 offen"))
    L += [Ins(f"s_mul_i32 s{sT1}, s{sT0}, 1920"), Ins(f"v_add_u32 v32, s{sT1}, v31")]
    for srd_ in (56, 60, 64):
        L.append(Ins(f"buffer_load_dword v28, v32, s[{srd_}:{srd_+3}], 0 offen"))
    return L

def dma_wq(ks):
    slot = ks % WQ_NS
    L = [Ins(f"s_add_u32 m0, s{sM0WQ}, {WQ_BASE + slot*WQ_ST}"),
         Ins(f"s_mov_b32 s{sOFF}, {ks*32*12288}")]
    D = [Ins(f"buffer_load_dwordx4 v{vWQD+q}, s[{sWQ}:{sWQ+3}], s{sOFF} offen offset:{q*1024} lds") for q in range(3)]
    return L, D

def k_slot(kt): return (kt + 2) % K_NS
def dma_k(kt):
    L = [Ins(f"s_add_u32 m0, s{sM0K}, {k_slot(kt)*K_ST}"),
         Ins(f"s_mov_b32 s{sOFF}, {(kt % 16)*12288}")]
    D = [Ins(f"buffer_load_dwordx4 v{vKD+q}, s[{sK}:{sK+3}], s{sOFF} offen offset:{q*1024} lds") for q in range(3)]
    return L, D

def dma_v(st):
    G, kb = st // 4, st % 4
    L = [Ins(f"s_add_u32 m0, s{sM0V}, {(st % V_NS)*V_ST}"),
         Ins(f"s_mov_b32 s{sOFF}, {kb*128*384 + G*128}")]
    D = [Ins(f"buffer_load_dwordx4 v{vVD+i}, s[{sV}:{sV+3}], s{sOFF} offen offset:{i*1024} lds") for i in range(4)]
    return L, D

def HS(): return int(OPT.get('hsets', 3))
def load_h(ks):
    L = [Ins(f"s_mov_b32 s{sOFH}, {ks*1024}")]
    base = (ks % HS())*16
    D = [Ins(f"buffer_load_dwordx4 a[{base+4*ct}:{base+4*ct+3}], v{vHO+ct}, s[{sWS}:{sWS+3}], s{sOFH} offen" + (" sc1" if OPT.get('mono') else "")) for ct in range(4)]
    return L, D

def tr_wq(n):
    ks, t = divmod(n, 12)
    slot = n % 16
    q, tp = t >> 2, t & 3
    off = WQ_BASE + (ks % WQ_NS)*WQ_ST + q*1024
    r = RING + slot*4
    return [Ins(f"ds_read_b64_tr_b16 a[{r}:{r+1}], v{vWQT+tp} offset:{off}"),
            Ins(f"ds_read_b64_tr_b16 a[{r+2}:{r+3}], v{vWQT+tp} offset:{off+6144}")]

OPT = dict(dma=True, hload=True, barrier=True, tr=True, pfcode=False)
def k_frag(n):
    kt, s_ = divmod(n, 12)
    r = RING + (n % 16)*4
    off = k_slot(kt)*K_ST + (s_ >> 2)*1024
    return Ins(f"ds_read_b128 a[{r}:{r+3}], v{vKF + (s_ & 3)} offset:{off}")

def softmax_stream(kt, mode='exp'):
    L = []
    buf = SB[kt & 1]
    toA = P_reg(kt, 0)[0] == 'a'
    for cb in range(2):
        Sx = buf + 16*cb
        if toA:
            A_ = [Sx+0, Sx+2, Sx+8, Sx+10]; B_ = [Sx+4, Sx+6, Sx+12, Sx+14]
        else:
            pa = P_reg(kt, 2*cb)[1]; pb = P_reg(kt, 2*cb+1)[1]
            A_ = [pa+i for i in range(4)]; B_ = [pb+i for i in range(4)]
        E = lambda i: Ins(f"v_exp_f32 v{Sx+i}, v{Sx+i}")
        C = lambda d, i: Ins(f"v_cvt_pk_bf16_f32 v{d}, v{Sx+i}, v{Sx+i+1}")
        SW = lambda i: Ins(f"v_permlane16_swap_b32 v{A_[i]}, v{B_[i]}")
        def W(i):
            if not toA: return []
            pa = P_reg(kt, 2*cb)[1]; pb = P_reg(kt, 2*cb+1)[1]
            return [Ins(f"v_accvgpr_write_b32 a{pa+i}, v{A_[i]}"), Ins(f"v_accvgpr_write_b32 a{pb+i}, v{B_[i]}")]
        L += [E(0), E(1), E(2), E(3), E(4), E(5), C(A_[0], 0), C(A_[1], 2), E(6), E(7), C(B_[0], 4), E(8), E(9), C(B_[1], 6),
              E(10), E(11), SW(0), C(A_[2], 8), SW(1), E(12), E(13), C(A_[3], 10), E(14), E(15)]
        L += W(0) + [C(B_[2], 12), C(B_[3], 14)] + W(1) + [SW(2), SW(3)]
        L += W(2) + W(3)
    return L

def phase2(P, handles):
    PF = 4
    for kt in range(16):
        bb = []
        buf = SB[kt & 1]
        for s_ in range(12):
            n = 12*kt + s_
            ar = RING + (n % 16)*4
            for cb in range(2):
                d = buf + 16*cb
                q = QF + 8*s_ + 4*cb
                c = f"v[{d}:{d+15}]" if s_ > 0 else "0"
                bb.append(Ins(f"v_mfma_f32_32x32x16_bf16 v[{d}:{d+15}], a[{ar}:{ar+3}], v[{q}:{q+3}], {c}"))
        s_rd, s_dma, s_sm = [], [], []
        for s_ in range(12):
            n = 12*kt + s_ + PF
            lo = 2*s_
            if n < 12*16:
                if s_ == 8:
                    s_rd.append((WaitVM(handles['k'][kt+1]), lo-1, lo-1))
                    s_rd.append((Ins("s_barrier"), lo-1, lo-1))
                s_rd.append((k_frag(n), lo, lo+1))
            else:
                m = n - 192
                if m == 0:
                    s_rd.append((WaitVM(handles['v'][0]), lo-1, lo-1))
                    s_rd.append((Ins("s_barrier"), lo-1, lo-1))
                a, b = tr_v(m)
                s_rd.append((a, lo, lo+1)); s_rd.append((b, lo, lo+1))
        if kt + 4 < 16:
            L, D = dma_k(kt+4)
            handles['k'][kt+4] = D[-1]
            s_dma += [(L[0], 16, 18), (L[1], 16, 18)] + [(d, 17+2*i, 19+2*i) for i, d in enumerate(D)]
        elif kt >= 12 and kt <= 14:
            L, D = dma_v(kt-12)
            handles['v'][kt-12] = D[-1]
            s_dma += [(L[0], 2, 18), (L[1], 2, 18)] + [(d, 4+4*i, 22) for i, d in enumerate(D)]
        if kt > 0:
            sm = softmax_stream(kt-1)
            if kt == 2 and OPT.get('pf') == 'wo': sm = pf_wo() + sm
            n = len(sm)
            for i, x in enumerate(sm):
                s_sm.append((x, 2, 23))
        P.many(weave(bb, [s_rd, s_dma, s_sm], 24, max_mem=1))

def v_seq():
    L = [(G, kt, tp) for G in range(2) for kt in range(16) for tp in range(4)]
    L += [(2, kt, tp) for kt in range(8) for tp in range(4)]
    L += [(2, kt, tp) for kt in range(8, 16) for tp in (0, 1)]
    L += [(2, kt, tp) for kt in range(8, 16) for tp in (2, 3)]
    return L
VSEQ = v_seq()

def tr_v(m):
    G, kt, tp = VSEQ[m]
    st = 4*G + (kt >> 2)
    off = (st % V_NS)*V_ST + (kt & 3)*4096
    r = RING + ((192 + m) % 16)*4
    return [Ins(f"ds_read_b64_tr_b16 a[{r}:{r+1}], v{vVT+tp} offset:{off}"),
            Ins(f"ds_read_b64_tr_b16 a[{r+2}:{r+3}], v{vVT+tp} offset:{off+2048}")]

ONES = 60

def o_epilogue(G):
    L = []
    ob = OACC[G & 1]
    for u in range(2):
        L.append(Ins(f"s_mov_b32 s{sOFH}, {(2*G+u)*1024}"))
        for ct in range(4):
            x = ob + ((2*u)*4 + ct)*4; y = ob + ((2*u+1)*4 + ct)*4
            for i in range(4): L.append(Ins(f"v_mul_f32 v{x+i}, v{RINV+ct}, v{x+i}"))
            for i in range(4): L.append(Ins(f"v_mul_f32 v{y+i}, v{RINV+ct}, v{y+i}"))
            L.append(Ins(f"v_cvt_pk_bf16_f32 v{x}, v{x}, v{x+1}"))
            L.append(Ins(f"v_cvt_pk_bf16_f32 v{x+1}, v{x+2}, v{x+3}"))
            L.append(Ins(f"v_cvt_pk_bf16_f32 v{x+2}, v{y}, v{y+1}"))
            L.append(Ins(f"v_cvt_pk_bf16_f32 v{x+3}, v{y+2}, v{y+3}"))
            L.append(Ins(f"buffer_store_dwordx4 v[{x}:{x+3}], v{vHO+ct}, s[{sWS}:{sWS+3}], s{sOFH} offen sc1"))
    return L

def phase3(P, handles):
    PF = 4
    for G in range(3):
        ob = OACC[G & 1]
        pre = []
        epi = []
        if G == 1:
            for ct in range(4): epi.append(Ins(f"v_rcp_f32 v{RINV+ct}, v{LACC+4*ct}"))
        if G >= 1: epi += o_epilogue(G-1)
        nslots_total = 16*16
        epi_ptr = 0
        for kt in range(16):
            bb = []
            for tp in range(4):
                m = 64*G + 4*kt + tp
                ar = RING + ((192 + m) % 16)*4
                for ct in range(4):
                    d = ob + (tp*4 + ct)*4
                    p = P_reg(kt, ct)
                    c = f"v[{d}:{d+3}]" if kt > 0 else "0"
                    bb.append(Ins(f"v_mfma_f32_16x16x32_bf16 v[{d}:{d+3}], a[{ar}:{ar+3}], {R(p,4)}, {c}"))
            if G == 0:
                for ct in range(4):
                    d = LACC + 4*ct
                    p = P_reg(kt, ct)
                    c = f"v[{d}:{d+3}]" if kt > 0 else "0"
                    bb.append(Ins(f"v_mfma_f32_16x16x32_bf16 v[{d}:{d+3}], v[{ONES}:{ONES+3}], {R(p,4)}, {c}"))
            s_rd, s_dma, s_x = [], [], []
            st = 4*G + (kt >> 2)
            for tp in range(4):
                m = 64*G + 4*kt + tp + PF
                if m >= 192: continue
                lo = 4*tp
                if tp == 0 and (kt & 3) == 3:
                    s_rd.append((WaitVM(handles['v'][st+1]), -1, -1))
                    s_rd.append((Ins("s_barrier"), -1, -1))
                a, b = tr_v(m)
                s_rd.append((a, lo, lo+1)); s_rd.append((b, lo+1, lo+2))
            if (kt & 3) == 3 and st + 3 < 12:
                L, D = dma_v(st+3)
                handles['v'][st+3] = D[-1]
                s_dma += [(L[0], 0, 2), (L[1], 0, 3)] + [(d, 2+3*i, 4+3*i) for i, d in enumerate(D)]
            if G == 0 and kt < 2:
                sm = softmax_stream(15)
                half = len(sm)//2
                part = sm[:half] if kt == 0 else sm[half:]
                s_x = [(x, 0 if kt else 2, 19) for x in part]
            elif epi and kt >= 1:
                per = -(-len(epi) // 13)
                part = epi[epi_ptr:epi_ptr+per]; epi_ptr += len(part)
                s_x = [(x, 0, len(bb)-1) for x in part]
            P.many(weave(bb, [s_rd, s_dma, s_x], 8))
        assert epi_ptr >= len(epi)
    P.many(o_epilogue(2))

def phase3_setup():
    L = [Ins(f"v_mov_b32 v{ONES+i}, 0x3f803f80") for i in range(4)]
    L.append(Ins(f"s_mul_i32 s{sT0}, s38, {196608-20480}"))
    L.append(Ins(f"s_mul_i32 s{sT1}, s24, 6144"))
    L.append(Ins(f"s_add_u32 s{sT0}, s{sT0}, s{sT1}"))
    L.append(Ins(f"s_add_u32 s{sT0}, s{sT0}, {WS_OF-WS_HF}"))
    for ct in range(4):
        L.append(Ins(f"v_add_u32 v{vHO+ct}, s{sT0}, v{vHO+ct}"))
        if ct: L.append(Ins(f"v_add_u32 v{vHO+ct}, {ct*(196608-20480)}, v{vHO+ct}"))
    return L

def phase1(P, handles):
    NK = 20
    PF = 4
    dmah = handles['wq']
    for ks in range(NK):
        bb = []
        for t in range(12):
            n = 12*ks + t
            ar = RING + (n % 16)*4
            for ct in range(4):
                acc = QACC + (4*t + ct)*4
                b = (ks % 4)*16 + 4*ct
                c = f"v[{acc}:{acc+3}]" if ks > 0 else "0"
                bb.append(Ins(f"v_mfma_f32_16x16x32_bf16 v[{acc}:{acc+3}], a[{ar}:{ar+3}], a[{b}:{b+3}], {c}"))
        s_tr, s_h, s_dma = [], [], []
        for t in range(12):
            n = 12*ks + t + PF
            if n >= 12*NK:
                if OPT.get('p2', False):
                    lo = 4*t
                    if t == 8:
                        s_tr.append((WaitVM(handles['k'][0]), lo-1, lo-1))
                        s_tr.append((Ins("s_barrier"), lo-1, lo-1))
                    s_tr.append((k_frag(n - 12*NK), lo, lo+2))
                continue
            a, b = tr_wq(n)
            lo = 4*t
            if t == 8:
                if OPT['dma'] or ks+1 < 4: s_tr.append((WaitVM(dmah[ks+1]), lo-1, lo-1))
                if OPT['barrier']: s_tr.append((Ins("s_barrier"), lo-1, lo-1))
            if OPT['tr']:
                s_tr.append((a, lo, lo+1)); s_tr.append((b, lo+1, lo+2))
        if ks + 3 < NK and OPT['hload']:
            L, D = load_h(ks+3)
            s_h.append((L[0], 0, 1))
            for i, d in enumerate(D): s_h.append((d, 4*i+2, 4*i+3))
        if not OPT['dma']: pass
        elif ks + 4 < NK:
            L, D = dma_wq(ks+4)
            dmah[ks+4] = D[-1]
            s_dma.append((L[0], 33, 35)); s_dma.append((L[1], 34, 36))
            for i, d in enumerate(D): s_dma.append((d, 36+4*i, 38+4*i))
        elif ks >= 16:
            kt = ks - 16
            L, D = dma_k(kt)
            handles['k'][kt] = D[-1]
            s_dma.append((L[0], 33, 35)); s_dma.append((L[1], 34, 36))
            for i, d in enumerate(D): s_dma.append((d, 36+4*i, 38+4*i))
        s_pf = []
        if OPT.get('pf', 'loop') == 'loop':
            if ks == 1: s_pf = [(x, 2, 47) for x in pf_kv()]
            if ks == 8: s_pf = [(x, 2, 47) for x in pf_weights()]
        P.many(weave(bb, [s_tr, s_h, s_dma, s_pf], 8))

SX = 28
def s_buf(kt): return SX if kt == 0 else SB[kt & 1]

MREG = [2, 3]
def max_stream(vt):
    L = []
    buf = s_buf(vt)
    for cb in range(2):
        Sx = buf + 16*cb; m = MREG[cb]
        if vt == 0:
            L.append(Ins(f"v_max_f32 v{m}, v{Sx}, v{Sx+1}")); rest = range(2, 16, 2)
        else:
            rest = range(0, 16, 2)
        for i in rest: L.append(Ins(f"v_max3_f32 v{m}, v{m}, v{Sx+i}, v{Sx+i+1}"))
    if vt == 15:
        for cb in range(2):
            m = MREG[cb]
            L += [Ins(f"v_mov_b32 v1, v{m}"), Ins("s_nop 1"), Ins(f"v_permlane32_swap_b32 v{m}, v1"), Ins("s_nop 1"), Ins(f"v_max_f32 v{m}, v{m}, v1")]
    return L

def softmax_stream2(kt, vt=None, sub=False):
    global SB
    L = []
    buf = s_buf(kt if vt is None else vt)
    toA = P_reg(kt, 0)[0] == 'a'
    for cb in range(2):
        Sx = buf + 16*cb
        if toA:
            A_ = [Sx+0, Sx+2, Sx+8, Sx+10]; B_ = [Sx+4, Sx+6, Sx+12, Sx+14]
        else:
            pa = P_reg(kt, 2*cb)[1]; pb = P_reg(kt, 2*cb+1)[1]
            A_ = [pa+i for i in range(4)]; B_ = [pb+i for i in range(4)]
        def E(i):
            if sub:
                return [Ins(f"v_sub_f32 v{Sx+i}, v{Sx+i}, v{MREG[cb]}"), Ins(f"v_exp_f32 v{Sx+i}, v{Sx+i}")]
            if OPT.get('noexp'): return []
            return [Ins(f"v_exp_f32 v{Sx+i}, v{Sx+i}")]
        C = lambda d, i: [Ins(f"v_cvt_pk_bf16_f32 v{d}, v{Sx+i}, v{Sx+i+1}")]
        SW = lambda i: [Ins(f"v_permlane16_swap_b32 v{A_[i]}, v{B_[i]}")] if not OPT.get('noswap') else []
        def W(i):
            if not toA or OPT.get('noaccw'): return []
            pa = P_reg(kt, 2*cb)[1]; pb = P_reg(kt, 2*cb+1)[1]
            return [Ins(f"v_accvgpr_write_b32 a{pa+i}, v{A_[i]}"), Ins(f"v_accvgpr_write_b32 a{pb+i}, v{B_[i]}")]
        for x in (E(0), E(1), E(2), E(3), E(4), E(5), C(A_[0], 0), C(A_[1], 2), E(6), E(7), C(B_[0], 4), E(8), E(9), C(B_[1], 6),
                  E(10), E(11), C(A_[2], 8), SW(0), E(12), E(13), SW(1), C(A_[3], 10), E(14), E(15), W(0), C(B_[2], 12), C(B_[3], 14), W(1),
                  SW(2), SW(3)): L += x
        L += W(2) + W(3)
    return L
NEGM = 62

def q_convert_tile(t):
    L = []
    for cb in range(2):
        x = QACC + (4*t + 2*cb)*4; y = x + 4
        d = QF + 8*t + 4*cb
        L += [Ins(f"v_cvt_pk_bf16_f32 v{d}, v{x}, v{x+1}"), Ins(f"v_cvt_pk_bf16_f32 v{d+1}, v{x+2}, v{x+3}"),
              Ins(f"v_cvt_pk_bf16_f32 v{d+2}, v{y}, v{y+1}"), Ins(f"v_cvt_pk_bf16_f32 v{d+3}, v{y+2}, v{y+3}")]
    for cb in range(2):
        d = QF + 8*t + 4*cb
        L += [Ins(f"v_permlane16_swap_b32 v{d}, v{d+2}"), Ins(f"v_permlane16_swap_b32 v{d+1}, v{d+3}")]
    return L

sOK = 100
def main_schedule(P, H, safe=False):
    NK = 20; PF = 4
    NT = 32 if safe else 16
    F_K = 240; F_V = 240 + 12*NT; F_END = F_V + 192
    bb = []
    p1_0 = 0
    for ks in range(NK):
        for t in range(12):
            n = 12*ks + t
            ar = RING + (n % 16)*4
            for ct in range(4):
                acc = QACC + (4*t + ct)*4
                b = (ks % HS())*16 + 4*ct
                c = f"v[{acc}:{acc+3}]" if ks > 0 else "0"
                bb.append(Ins(f"v_mfma_f32_16x16x32_bf16 v[{acc}:{acc+3}], a[{ar}:{ar+3}], a[{b}:{b+3}], {c}"))
    p2_0 = len(bb)
    for kt in range(NT):
        buf = s_buf(kt)
        for s_ in range(12):
            n = 12*kt + s_
            ar = RING + (n % 16)*4
            for cb in range(2):
                d = buf + 16*cb; q = QF + 8*s_ + 4*cb
                c = f"v[{d}:{d+15}]" if s_ > 0 else "0"
                bb.append(Ins(f"v_mfma_f32_32x32x16_bf16 v[{d}:{d+15}], a[{ar}:{ar+3}], v[{q}:{q+3}], {c}"))
    p3_0 = len(bb)
    kstart = {}
    fslot = {}
    lastfrag = {}
    for mi, (G, kt, tp) in enumerate(VSEQ):
        ob = OACC[G & 1]
        if (G, kt) not in kstart: kstart[(G, kt)] = len(bb)
        ar = RING + ((192 + mi) % 16)*4
        fslot[mi] = len(bb)
        for ct in range(4):
            d = ob + (tp*4 + ct)*4; p = P_reg(kt, ct)
            c = f"v[{d}:{d+3}]" if kt > 0 else "0"
            bb.append(Ins(f"v_mfma_f32_16x16x32_bf16 v[{d}:{d+3}], a[{ar}:{ar+3}], {R(p,4)}, {c}"))
        lastfrag[(G, tp)] = len(bb) - 1
        if G == 0 and tp == 3:
            for ct in range(4):
                d = LACC + 4*ct; p = P_reg(kt, ct)
                c = f"v[{d}:{d+3}]" if kt > 0 else "0"
                bb.append(Ins(f"v_mfma_f32_16x16x32_bf16 v[{d}:{d+3}], v[{ONES}:{ONES+3}], {R(p,4)}, {c}"))
    nslots = len(bb)
    def use_slot(f):
        if f < 240: return 4*f
        if f < F_V: return p2_0 + 2*(f-240)
        return fslot[f-F_V]
    def reads(f):
        if f < 240: return tr_wq(f)
        if f < F_V: return [k_frag(f-240)]
        return tr_v(f-F_V)
    grp = []; wq_h = dict(H['wq']); k_h = {}; v_h = {}; h_h = dict(H['h'])
    bar = {}
    def first_read_slot(f): return use_slot(f - PF)
    for ks in range(1, NK): bar[('wq', ks)] = first_read_slot(12*ks) - 1
    for kt in range(NT): bar[('k', kt)] = first_read_slot(240 + 12*kt) - 1
    vfirst = {}
    for mi, (G, kt, tp) in enumerate(VSEQ): vfirst.setdefault(4*G + (kt >> 2), mi)
    for st in range(12): bar[('v', st)] = first_read_slot(F_V + vfirst[st]) - 1
    for ks in range(len(wq_h), NK):
        L, D = dma_wq(ks); wq_h[ks] = D[-1]
        lo = bar[('wq', ks-3)] + 1 if ks >= 5 else (bar[('wq', ks-3)] + 1 if ks == 4 else 0)
        grp.append((lo, lo + 44, L, D))
    HB = HS() - 1
    for ks in range(len(h_h), NK):
        L, D = load_h(ks); h_h[ks] = D[-1]
        lo = max(0, 48*(ks-HB))
        hi = lo + 44 if ks - HB >= 0 else 48*max(ks-3, 0) + 44
        grp.append((lo, hi, L, D))
    for kt in range(NT):
        L, D = dma_k(kt); k_h[kt] = D[-1]
        if kt < 3: lo = 48*(16+kt) + 8; hi = lo + 38
        elif kt == 3: lo = bar[('k', 0)] + 1; hi = lo + 12
        else: lo = bar[('k', kt-3)] + 1; hi = lo + 20
        grp.append((lo, hi, L, D))
    for st in range(12):
        L, D = dma_v(st); v_h[st] = D[-1]
        if st < 3: lo = p2_0 + 24*(NT-4+st) + 1; hi = lo + 20
        else: lo = bar[('v', st-2)] + 1; hi = lo + 40
        grp.append((lo, hi, L, D))
    placed = space_vm(grp, 4, nslots)
    streams_vm = {}
    seen = {}
    for slot, pre, op, gi in placed:
        key = 'h' if op.kind == 'vload' else 'dma'
        if seen.get(key) != gi:
            assert (key, gi) not in seen, "groups interleave"
            seen[(key, gi)] = True; seen[key] = gi
    for slot, pre, op, gi in placed:
        key = 'h' if op.kind == 'vload' else 'dma'
        st_ = streams_vm.setdefault(key, [])
        if OPT.get('novm'): continue
        for x in pre: st_.append((x, slot-3, slot))
        st_.append((op, slot, slot+int(OPT.get('vmslack', 3))))
    s_rd, s_w = [], []
    vopen = {mi: st for st, mi in vfirst.items()}
    last_read = dict(H['tr'])
    for f in range(PF, F_END):
        lo = use_slot(f - PF)
        key = None
        if f < 240 and f % 12 == 0: key = ('wq', f // 12); hh = wq_h[f // 12]
        elif 240 <= f < F_V and (f-240) % 12 == 0: key = ('k', (f-240)//12); hh = k_h[(f-240)//12]
        elif f >= F_V and (f-F_V) in vopen: key = ('v', vopen[f-F_V]); hh = v_h[vopen[f-F_V]]
        if key:
            if not OPT.get('novm'): s_rd.append((WaitVM(hh), lo-1, lo-1))
            if not OPT.get('nobar'): s_rd.append((Ins("s_barrier"), lo-1, lo-1))
        rr = reads(f)
        nxt = use_slot(f - PF + 1) if f - PF + 1 < F_END else lo + 4
        if len(rr) == 2:
            s2 = lo + 1 if nxt - lo >= 2 else lo
            s_rd.append((rr[0], lo, lo)); s_rd.append((rr[1], s2, s2))
        else:
            s_rd.append((rr[0], lo, lo))
        last_read[f] = rr[-1]
    for f in range(F_END):
        u = use_slot(f)
        s_w.append((WaitLGKM(last_read[f]), u-1, u-1))
    s_wh = [(WaitVM(h_h[ks]), 48*ks-1, 48*ks-1) for ks in range(NK)] if not OPT.get('novm') else []
    s_v = []
    s_p3 = [(x, 0, 80) for x in prologue3() + touch_setup()]
    for t in range(12):
        e_ = 48*19 + 4*t + 5
        dl = p2_0 + 2*t - 2
        for x in q_convert_tile(t): s_v.append((x, e_, max(e_, dl)))
    for x in phase3_setup(): s_v.append((x, p2_0 + 4, p2_0 + 20))
    for vt in range(NT):
        e_ = p2_0 + 24*(vt+1) + 1
        dl = e_ + 22 if vt < NT-1 else kstart[(0, 2)]
        if safe and vt < 16: work = max_stream(vt)
        elif safe: work = softmax_stream2(vt-16, vt, sub=True)
        else: work = softmax_stream2(vt)
        for x in work: s_v.append((x, e_, dl))
    for G in range(3):
        if G == 0:
            epi = [Ins(f"v_rcp_f32 v{RINV+ct}, v{LACC+4*ct}") for ct in range(4)]
            if not safe:
                epi.append(Ins(f"s_mov_b64 s[{sOK}:{sOK+1}], -1"))
                for ct in range(4):
                    epi += [Ins(f"v_cmp_le_f32 vcc, 0x1f800000, v{LACC+4*ct}"), Ins(f"s_and_b64 s[{sOK}:{sOK+1}], s[{sOK}:{sOK+1}], vcc"),
                            Ins(f"v_cmp_ge_f32 vcc, 0x67800000, v{LACC+4*ct}"), Ins(f"s_and_b64 s[{sOK}:{sOK+1}], s[{sOK}:{sOK+1}], vcc")]
            epi += o_epilogue(0)
        elif G == 1: epi = o_epilogue(1)
        else: break
        e0 = kstart[(G+1, 0)] + 3; e1 = kstart[(G+1, 15)]
        for j, x in enumerate(epi):
            ee = e0 + (j*(e1-e0))//len(epi)
            s_v.append((x, ee, e1 + 12))
    epi2 = o_epilogue(2)
    half = len(epi2) // 2
    e0 = lastfrag[(2, 1)] + 4; e1 = nslots - 6
    for j_, x in enumerate(epi2[:half]):
        s_v.append((x, e0 + (j_*(e1-e0))//half, nslots - 1))
    s_pf = []
    if not (OPT.get('notouch') or safe):
        plan = [('k', 0, 48*2), ('k', 1, 48*4), ('k', 2, 48*6), ('v', 0, 48*8), ('v', 1, 48*10), ('v', 2, 48*12),
                ('wg', 0, 48*14), ('wu', 0, 48*16), ('wd', 0, p2_0 + 24*0),
                ('wo', 0, p2_0 + 24*1), ('wo', 1, p2_0 + 24*2), ('wo', 2, p2_0 + 24*3), ('wo', 3, p2_0 + 24*4),
                ('wo', 4, p2_0 + 24*5), ('wo', 5, p2_0 + 24*6), ('wo', 6, p2_0 + 24*7), ('wo', 7, p2_0 + 24*8)]
        skip = OPT.get('skiptouch', ())
        plan = [t for t in plan if t[0] not in skip]
        for kind, i_, slot in plan:
            t0_, t1_ = (int(OPT.get('tlo', 20)), int(OPT.get('thi', 40))) if slot < p2_0 else (int(OPT.get('tlo2', 20)), int(OPT.get('thi2', 40)))
            for x in touch16(kind, i_, 'a191' if slot < p2_0 else 'v1'): s_pf.append((x, slot + t0_, slot + t1_))
    s_st = []
    if OPT.get('stamps_in') and not safe:
        pts = [48*10, p2_0, p2_0 + 24*8, p3_0, kstart[(1, 0)], kstart[(2, 0)]]
        for i, sl in enumerate(pts): s_st.append((Ins(f"s_memtime s[{sTS+2*(i+2)}:{sTS+2*(i+2)+1}]"), sl-1, sl-1))
    streams = [s_w, s_wh, s_rd] + list(streams_vm.values()) + [s_p3, s_v, s_pf, s_st]
    P.many(weave(bb, streams))
    P.many(epi2[half:])
    P.last_o_store = epi2[-1]
    return p2_0, p3_0

def pf_v():
    return [Ins(f"s_mul_i32 s{sT0}, s25, 24576"), Ins(f"s_mul_i32 s{sT1}, s26, 6144"), Ins(f"s_add_u32 s{sT0}, s{sT0}, s{sT1}"),
            Ins(f"s_add_u32 s{sT0}, s{sT0}, {BIAS}"), Ins(f"v_lshlrev_b32 v{PFA}, 7, v0"), Ins(f"v_add_u32 v{PFA}, s{sT0}, v{PFA}"),
            NT(f"buffer_load_dword a191, v{PFA}, s[{sV}:{sV+3}], 0 offen")]
def pf_k():
    return [Ins(f"s_mul_i32 s{sT0}, s25, 24576"), Ins(f"s_mul_i32 s{sT1}, s26, 6144"), Ins(f"s_add_u32 s{sT0}, s{sT0}, s{sT1}"),
            Ins(f"s_add_u32 s{sT0}, s{sT0}, {BIAS}"), Ins(f"v_lshlrev_b32 v{PFA}, 7, v0"), Ins(f"v_add_u32 v{PFA}, s{sT0}, v{PFA}"),
            NT(f"buffer_load_dword a191, v{PFA}, s[{sK}:{sK+3}], 0 offen")]
def pf_wo2():
    return [Ins(f"s_lshl_b32 s{sT0}, s2, 2"), Ins(f"s_add_u32 s{sT0}, s{sT0}, s26"), Ins(f"s_mul_i32 s{sT1}, s{sT0}, 7680"),
            Ins(f"v_lshlrev_b32 v{PFA}, 7, v0"), Ins(f"v_add_u32 v{PFA}, s{sT1}, v{PFA}"),
            NT(f"buffer_load_dword a191, v{PFA}, s[52:55], 0 offen")]
def pf_w3():
    L = [Ins(f"s_lshl_b32 s{sT0}, s2, 2"), Ins(f"s_add_u32 s{sT0}, s{sT0}, s26"), Ins(f"s_mul_i32 s{sT1}, s{sT0}, 1920"),
         Ins(f"v_lshlrev_b32 v{PFA}, 7, v0"), Ins(f"v_add_u32 v{PFA}, s{sT1}, v{PFA}"),
         Ins(f"v_cmp_gt_u32 vcc, 15, v0"), Ins(f"v_mov_b32 v59, 0x7ff00000"), Ins("s_nop 0"), Ins(f"v_cndmask_b32 v{PFA}, v59, v{PFA}, vcc")]
    for srd_ in (56, 60, 64): L.append(NT(f"buffer_load_dword a191, v{PFA}, s[{srd_}:{srd_+3}], 0 offen"))
    return L
PFA = 27
TOUCH = dict(v=pf_v, k=pf_k, wo=pf_wo2, w3=pf_w3)

def guard_branch(P):
    e = P.e
    e(f"s_cmp_eq_u64 s[{sOK}:{sOK+1}], -1"); e("s_cselect_b32 s3, 0, 1")
    e("s_barrier")
    e("v_mov_b32 v28, s3"); e("s_lshl_b32 s3, s26, 2"); e("v_mov_b32 v29, s3")
    e("ds_write_b32 v29, v28")
    e("s_waitcnt lgkmcnt(0)"); e("s_barrier")
    e("v_mov_b32 v29, 0")
    e("ds_read_b128 v[32:35], v29")
    e("v_or3_b32 v32, v32, v33, v34"); e("v_or_b32 v32, v32, v35")
    e("v_readfirstlane_b32 s3, v32")
    e("s_cmp_eq_u32 s3, 0"); e("s_cbranch_scc0 K2_SAFE")

def safe_entry(P):
    e = P.e
    e("K2_SAFE:")
    e("s_waitcnt vmcnt(0)"); e("s_barrier")
    e("s_lshl_b32 s3, s26, 6"); e("v_add_u32 v0, s3, v0")

def main_pro(P, H, safe=False, mono=False):
    H['wq'] = {}; H['h'] = {}; H['tr'] = {}
    if mono and not safe:
        for ks in range(4):
            L, D = dma_wq(ks)
            P.many(L); P.many(D); H['wq'][ks] = D[-1]
            if ks == 0: prologue2(P)
        r = lambda t: P.e(RAW(t))
        P.e("s_load_dwordx2 s[84:85], s[0:1], 96"); P.e("s_waitcnt lgkmcnt(0)")
        P.e("s_mov_b32 s86, 256"); P.e("s_mov_b32 s87, 0x20000")
        r("s_cmp_lg_u32 s26, 0"); r("s_cbranch_scc1 K2_HB")
        r("v_mul_u32_u24 v28, 184, v0"); r("v_add_u32 v28, 8, v28"); r("s_mov_b64 exec, 3"); r("s_mov_b32 s32, 0")
        r("K2_TP:")
        r("buffer_load_dword v29, v28, s[84:87], 0 offen sc1")
        r("s_waitcnt vmcnt(0)")
        r("v_readlane_b32 s33, v29, 0"); r("v_readlane_b32 s34, v29, 1"); r("s_add_u32 s32, s32, 1"); r("s_nop 2")
        r("s_cmp_lt_u32 s34, 80"); r("s_cselect_b32 s34, 0, s33")
        r("s_cmp_lg_u32 s34, 0"); r("s_cbranch_scc1 K2_TD")
        r("s_sleep 8")
        r("s_cmp_lt_u32 s32, 0x4000"); r("s_cbranch_scc1 K2_TP")
        r("K2_TD:")
        r("s_mov_b64 exec, 1")
        r(f"s_lshl_b32 s3, s25, 7"); r(f"s_add_u32 s3, s3, {WS_CNT + 16384}"); r("v_mov_b32 v28, s3"); r("s_mov_b32 s32, 0")
        r("K2_HP:")
        r(f"buffer_load_dword v29, v28, s[{sWS}:{sWS+3}], 0 offen sc1")
        r("s_waitcnt vmcnt(0)")
        r("v_readfirstlane_b32 s3, v29"); r("s_add_u32 s32, s32, 1"); r("s_nop 2")
        r("s_cmp_eq_u32 s3, s33"); r("s_cbranch_scc1 K2_HD")
        r("s_sleep 2")
        r("s_cmp_lt_u32 s32, 0x4000"); r("s_cbranch_scc1 K2_HP")
        r("K2_HD:")
        r("s_mov_b64 exec, -1")
        r("K2_HB:")
        P.e("s_barrier")
        for ks in range(3):
            L, D = load_h(ks)
            P.many(L); P.many(D); H['h'][ks] = D[-1]
    else:
      for ks in range(int(OPT.get('pre', 4))):
        if ks == 0 and OPT.get('hfirst', True):
            L, D = load_h(ks)
            P.many(L); P.many(D); H['h'][ks] = D[-1]
        L, D = dma_wq(ks)
        P.many(L); P.many(D); H['wq'][ks] = D[-1]
        if ks < min(3, HS()-1) and not (ks == 0 and OPT.get('hfirst', True)):
            L, D = load_h(ks)
            P.many(L); P.many(D); H['h'][ks] = D[-1]
        if ks == 0: prologue2(P)
    if not safe: code_prefetch(P, 49152)
    P.wait_vm(H['wq'][0])
    P.e("s_barrier")
    for n in range(4):
        rr = tr_wq(n); P.many(rr); H['tr'][n] = rr[-1]

def phase1_pro(P, handles):
    for ks in range(4):
        L, D = dma_wq(ks)
        P.many(L); P.many(D)
        handles['wq'][ks] = D[-1]
        if ks < 3:
            L, D = load_h(ks)
            P.many(L); P.many(D)
    if OPT.get('pf', 'loop') == 'pro':
        P.many(pf_kv()); P.many(pf_weights())
    P.wait_vm(handles['wq'][0])
    P.e("s_barrier")
    for n in range(4):
        P.many(tr_wq(n))

def q_convert(P):
    for t in range(12):
        for cb in range(2):
            x = QACC + (4*t + 2*cb)*4; y = x + 4
            d = QF + 8*t + 4*cb
            P.e(f"v_cvt_pk_bf16_f32 v{d}, v{x}, v{x+1}")
            P.e(f"v_cvt_pk_bf16_f32 v{d+1}, v{x+2}, v{x+3}")
            P.e(f"v_cvt_pk_bf16_f32 v{d+2}, v{y}, v{y+1}")
            P.e(f"v_cvt_pk_bf16_f32 v{d+3}, v{y+2}, v{y+3}")
        for cb in range(2):
            d = QF + 8*t + 4*cb
            P.e(f"v_permlane16_swap_b32 v{d}, v{d+2}")
            P.e(f"v_permlane16_swap_b32 v{d+1}, v{d+3}")

def dump_regs(P, regs, base_off):
    n = len(regs)
    P.e(f"s_lshl_b32 s3, s2, 2"); P.e("s_add_u32 s3, s3, s26")
    P.e(f"s_mul_i32 s3, s3, {n*256}"); P.e(f"s_add_u32 s3, s3, {base_off}")
    P.e(f"v_lshlrev_b32 v{vT0}, 2, v0"); P.e(f"v_add_u32 v{vT0}, s3, v{vT0}")
    for i, r in enumerate(regs):
        if r[0] == 'a':
            P.e(f"v_accvgpr_read_b32 v{vT1}, a{r[1]}")
            src = vT1
        else:
            src = r[1]
        P.e(f"s_mov_b32 s3, {i*256}")
        P.e(f"buffer_store_dword v{src}, v{vT0}, s[{sWS}:{sWS+3}], s3 offen")
        if r[0] == 'a': P.e("s_waitcnt vmcnt(0)")

def stamp(P, idx):
    P.e(f"s_memtime s[{sTS+2*idx}:{sTS+2*idx+1}]")

def write_stamps(P, n):
    P.e("s_waitcnt lgkmcnt(0)")
    P.e(f"s_lshl_b32 s3, s2, 2"); P.e("s_add_u32 s3, s3, s26"); P.e("s_lshl_b32 s3, s3, 6"); P.e(f"s_add_u32 s3, s3, {WS_STAMP}")
    for i in range(n):
        P.e(f"v_mov_b32 v{vT1}, s{sTS+2*i}")
        P.e(f"v_mov_b32 v{vT0}, s3")
        P.e(f"buffer_store_dword v{vT1}, v{vT0}, s[{sWS}:{sWS+3}], 0 offen offset:{4*i}")
        P.e("s_waitcnt vmcnt(0)")

KD = """.section .rodata,"a"
.p2align 6
.amdhsa_kernel {name}
  .amdhsa_next_free_vgpr {vgpr}
  .amdhsa_next_free_sgpr 102
  .amdhsa_accum_offset {acc}
  .amdhsa_group_segment_fixed_size 0
  .amdhsa_kernarg_size 112
  .amdhsa_user_sgpr_count 2
  .amdhsa_user_sgpr_kernarg_segment_ptr 1
  .amdhsa_system_sgpr_workgroup_id_x 1
.end_amdhsa_kernel
"""

def wrap(kernels, launches, tail_text=""):
    s = ""
    for nm, g, b, l in launches:
        s += f"; @launch kernel={nm} grid=({g},1,1) block=({b},1,1) lds={l}\n"
    s += '.amdgcn_target "amdgcn-amd-amdhsa--gfx950"\n.text\n' + MACROS
    for nm, txt, vg, ac in kernels:
        s += f".globl {nm}\n.p2align 8\n.type {nm},@function\n{nm}:\n{txt}"
    s += "K_TEXT_END:\n" + tail_text
    for nm, txt, vg, ac in kernels:
        s += KD.format(name=nm, vgpr=vg, acc=ac)
    return s

def code_prefetch(P, nbytes):
    P.e("s_getpc_b64 s[48:49]")
    P.e(f"v_lshlrev_b32 v{vT0}, 2, v0")
    P.e(f"s_lshl_b32 s3, s26, 8"); P.e(f"v_add_u32 v{vT0}, s3, v{vT0}")
    P.e(f"v_lshlrev_b32 v{vT0}, 4, v{vT0}")
    for off in range(0, nbytes, 16384):
        P.e(NT(f"global_load_dword v{vT1}, v{vT0}, s[48:49]"))
        P.e(f"v_add_u32 v{vT0}, 16384, v{vT0}")

def build_p1(fname):
    P = Prog()
    H = {'wq': {}, 'k': {}, 'v': {}}
    prologue(P, stamps=False)
    if OPT['pfcode']: code_prefetch(P, 16384)
    stamp(P, 0)
    phase1_pro(P, H)
    stamp(P, 1)
    phase1(P, H)
    stamp(P, 2)
    q_convert(P)
    stamp(P, 3)
    P.e("s_waitcnt vmcnt(0)")
    dump_regs(P, [('v', QF+i) for i in range(96)], WS_DBG)
    write_stamps(P, 4)
    P.e("K2_END:")
    P.e("s_endpgm")
    P.finalize()
    print("estimate", P.estimate(), "nops", P.nops, "ninstr", len(P.final))
    open(fname, "w").write(wrap([("k2_kernel", P.text(), 512, 256)], [("k2_kernel", 256, 256, LDS_BYTES)]))

def build_full(fname, dump_p=False):
    OPT.update(dict(dma=True, hload=True, barrier=True, tr=True, pfcode=True, p2=True))
    P = Prog()
    H = {'wq': {}, 'k': {}, 'v': {}}
    prologue(P, stamps=False)
    code_prefetch(P, 49152)
    stamp(P, 0)
    phase1_pro(P, H)
    stamp(P, 1)
    phase1(P, H)
    stamp(P, 2)
    q_convert(P)
    P.many(phase3_setup())
    stamp(P, 3)
    phase2(P, H)
    stamp(P, 4)
    phase3(P, H)
    stamp(P, 5)
    P.e("s_waitcnt vmcnt(0)")
    stamp(P, 6)
    if dump_p:
        regs = []
        for kt in range(16):
            for ct in range(4):
                p = P_reg(kt, ct)
                regs += [(p[0], p[1]+i) for i in range(4)]
        regs += [('v', LACC+i) for i in range(16)]
        dump_regs(P, regs, WS_DBG)
    write_stamps(P, 7)
    P.e("K2_END:")
    P.e("s_endpgm")
    P.finalize()
    print("estimate", P.estimate(), "nops", P.nops, "ninstr", len(P.final))
    open(fname, "w").write(wrap([("k2_kernel", P.text(), 512, 256)], [("k2_kernel", 256, 256, LDS_BYTES)]))

if __name__ == "__main__":
    import sys
    if len(sys.argv) > 1 and sys.argv[1] == "full":
        build_full("k2_full.s", dump_p=True)
        build_full("k2_fast.s", dump_p=False)
        sys.exit(0)
    build_p1("k2_p1.s")
    for nm, o in [("a", dict(dma=False, hload=False, barrier=False)), ("b", dict(dma=False, hload=True, barrier=False)),
                  ("c", dict(dma=True, hload=False, barrier=False)), ("d", dict(dma=True, hload=True, barrier=False)),
                  ("e", dict(dma=False, hload=False, barrier=True)), ("f", dict(dma=True, hload=True, barrier=True, pfcode=True)),
                  ("g", dict(dma=False, hload=False, barrier=False, tr=False))]:
        OPT.update(dict(dma=True, hload=True, barrier=True, tr=True, pfcode=False)); OPT.update(o)
        build_p1(f"k2_p1{nm}.s")
```

```python
from asmgen import *
import kgemm
from kgemm import gemm_stream, BIAS
from ksmall import srd, f2u, NSPLIT
from k2gen import WS_MOD, WS_HF, WS_OF, WS_PART, WS_X1, WS_H2F, WS_ACT, WS_BYTES, WS_STAMP, WS_CNT, WS_WD, WS_WGU

LDS_V = 122880
LDS_R = LDS_V + 4*5120
LDS_TAIL = LDS_R + 2*1280
SPIN = 0x4000

def gbar(P, idx, hook=None, also=None):
    e = P.e
    r = lambda t: P.e(RAW(t))
    e("s_waitcnt vmcnt(0)")
    e("s_barrier")
    r("s_cmp_lg_u32 s23, 0"); r(f"s_cbranch_scc1 KT_A{idx}")
    r(f"s_lshl_b32 s3, s21, 7"); r(f"s_add_u32 s3, s3, {WS_CNT + idx*2048}")
    r("v_mov_b32 v250, s3"); r("v_mov_b32 v251, 1")
    r("s_mov_b64 exec, 1")
    r("buffer_atomic_add v251, v250, s[12:15], 0 offen sc1")
    r("s_mov_b64 exec, -1")
    r(f"KT_A{idx}:")
    if hook: hook()
    r("s_cmp_lg_u32 s23, 0"); r(f"s_cbranch_scc1 KT_B{idx}")
    if also is not None:
        r("v_lshlrev_b32 v251, 7, v0"); r(f"v_add_u32 v251, {WS_CNT + also*2048}, v251")
        r("v_cmp_eq_u32 vcc, 16, v0"); r("s_nop 1"); r("v_cndmask_b32 v250, v251, v250, vcc")
        r("s_mov_b64 exec, 0x1ffff")
    else:
        r("s_mov_b64 exec, 1")
    r("s_mov_b32 s25, 0")
    r(f"KT_P{idx}:")
    r("buffer_load_dword v251, v250, s[12:15], 0 offen sc1")
    r("s_waitcnt vmcnt(0)")
    r("v_cmp_gt_u32 vcc, 16, v251")
    r("s_add_u32 s25, s25, 1"); r("s_nop 3")
    r("s_and_b64 vcc, vcc, exec")
    r(f"s_cbranch_scc0 KT_D{idx}")
    r("s_sleep 1")
    r(f"s_cmp_lt_u32 s25, {SPIN}"); r(f"s_cbranch_scc1 KT_P{idx}")
    r(f"KT_D{idx}:")
    r("s_mov_b64 exec, -1")
    r(f"KT_B{idx}:")
    e("s_waitcnt lgkmcnt(0)")
    e("s_barrier")

S3M32 = False
AGB = False
BPF3, BPF5, BPF6 = 9, 9, 8
NB3, ND3, NB5 = 3, 4, 3
ND5, NB6, ND6, G6 = 4, 2, 4, 2
def gen_kt(stamps=False, detail=None, P=None, mono=False):
    fused = P is not None
    if not fused: P = Prog()
    e = P.e
    st_i = [0]
    def dstamp(tag):
        if detail == tag:
            e(f"s_memtime s[{60+2*st_i[0]}:{61+2*st_i[0]}]"); st_i[0] += 1
    def stamp():
        if stamps and detail is None:
            e(f"s_memtime s[{60+2*st_i[0]}:{61+2*st_i[0]}]"); st_i[0] += 1
    if not fused:
        e("s_cmp_ge_u32 s2, 256"); e("s_cbranch_scc1 KT_END")
    e("s_load_dwordx2 s[40:41], s[0:1], 32")
    e("s_load_dwordx2 s[42:43], s[0:1], 104")
    e("s_load_dwordx2 s[44:45], s[0:1], 0")
    e("s_load_dwordx4 s[48:51], s[0:1], 48")
    e("s_load_dwordx2 s[52:53], s[0:1], 64")
    e("s_load_dwordx2 s[54:55], s[0:1], 88")
    stamp()
    e("s_and_b32 s20, s2, 3")
    e("s_lshr_b32 s3, s2, 2"); e("s_and_b32 s3, s3, 1"); e("s_lshl_b32 s3, s3, 3")
    e("s_lshr_b32 s21, s2, 5"); e("s_add_u32 s21, s21, s3")
    e("s_lshr_b32 s22, s2, 3"); e("s_and_b32 s22, s22, 3")
    e("s_lshl_b32 s56, s20, 2"); e("s_add_u32 s56, s56, s22")
    if fused:
        e("s_mov_b32 s23, s26")
        e("s_lshr_b32 s58, s2, 5"); e("s_lshl_b32 s58, s58, 2"); e("s_and_b32 s3, s2, 7"); e("s_lshr_b32 s3, s3, 1"); e("s_add_u32 s58, s58, s3")
        e("s_lshl_b32 s58, s58, 7"); e(f"s_add_u32 s58, s58, {WS_CNT + 4*2048}")
        e("s_lshr_b32 s59, s21, 1"); e("s_lshl_b32 s59, s59, 2"); e("s_add_u32 s59, s59, s20")
        e("s_lshl_b32 s59, s59, 7"); e(f"s_add_u32 s59, s59, {WS_CNT + 4*2048}")
    else:
        e("v_lshrrev_b32 v1, 6, v0"); e("v_and_b32 v0, 63, v0")
        e("v_readfirstlane_b32 s23, v1")
    NS = 6; ST = 20480
    for i in range(5):
        e(f"v_add_u32 v10, {i*64}, v0")
        e("v_mul_u32_u24 v11, 3277, v10"); e("v_lshrrev_b32 v11, 16, v11")
        e("v_mul_u32_u24 v12, 20, v11"); e("v_sub_u32 v12, v10, v12")
        e("v_lshrrev_b32 v13, 2, v11"); e("v_and_b32 v13, 1, v13"); e("v_lshlrev_b32 v13, 1, v13")
        e("v_xor_b32 v12, v12, v13"); e("v_lshlrev_b32 v12, 4, v12")
        e("v_mul_u32_u24 v11, 1280, v11"); e("v_add_u32 v11, v11, v12")
        e(f"v_add_u32 v{2+i}, {BIAS - (i*1024 if i < 4 else 0)}, v11")
    e("s_mul_i32 s3, s23, 20480")
    for i in range(5): e(f"v_add_u32 v{2+i}, s3, v{2+i}")
    e("s_lshl_b32 s3, s21, 3"); e("s_lshl_b32 s24, s23, 1"); e("s_add_u32 s24, s24, s3")
    e("s_mul_i32 s3, s24, 196608"); e("s_mul_i32 s25, s20, 49152"); e("s_add_u32 s3, s3, s25"); e(f"s_add_u32 s3, s3, {WS_OF}")
    if S3M32:
        e("v_lshrrev_b32 v10, 4, v0"); e("v_and_b32 v10, 1, v10"); e("v_mul_u32_u24 v10, 196608, v10")
        e("v_lshrrev_b32 v11, 5, v0"); e("v_lshlrev_b32 v11, 8, v11"); e("v_add_u32 v10, v10, v11")
        e("v_and_b32 v11, 15, v0"); e("v_lshlrev_b32 v11, 4, v11"); e("v_add_u32 v10, v10, v11")
        e("v_add_u32 v15, s3, v10"); e("v_add_u32 v16, 512, v15")
    else:
        e("v_lshlrev_b32 v10, 4, v0"); e("v_add_u32 v15, s3, v10"); e("v_add_u32 v16, 196608, v15")
    e("s_mul_i32 s26, s23, 5120"); e("s_mul_i32 s27, s20, 1966080")
    e("s_waitcnt lgkmcnt(0)")
    e("s_mul_i32 s3, s22, 320")
    e("s_add_u32 s8, s40, s3"); e("s_addc_u32 s9, s41, 0"); e(f"s_sub_u32 s8, s8, {BIAS}"); e("s_subb_u32 s9, s9, 0")
    e(f"s_sub_u32 s10, {7864320+BIAS}, s3"); e("s_mov_b32 s11, 0x20000")
    srd(P, 12, 42, 43, WS_BYTES)
    ACC = 176; AR = 20; ASL = 12; BR = 68; BS = 6
    agb = AGB and fused
    if agb: BR = 0; BS = 12
    RB = (lambda b: f"a[{b}:{b+3}]") if agb else (lambda b: f"v[{b}:{b+3}]")
    def acc3(t, ct): return ACC + (t*2 + ct)*4
    def mf3(ks, t, ar):
        T, sp = divmod(t, 2); d = ACC + 16*T; b = BR + (ks % BS)*8 + 4*sp
        c = f"v[{d}:{d+15}]" if (ks > 0 or sp > 0) else "0"
        return f"v_mfma_f32_32x32x16_bf16 v[{d}:{d+15}], v[{ar}:{ar+3}], v[{b}:{b+3}], {c}"
    def tr3(n):
        ks, t = divmod(n, 10); st, kk = divmod(ks, 2)
        sett, so = divmod(st % NS, 3)
        if S3M32:
            T, sp = divmod(t, 2)
            areg = [7, 9][sett]
            off = so*ST + kk*10240 + sp*2560 + T*64
        else:
            areg = [7, 8, 9, 14][sett*2 + (t & 1)]
            off = so*ST + kk*10240 + (t >> 1)*64
        r = AR + (n % ASL)*4
        return [Ins(f"ds_read_b64_tr_b16 v[{r}:{r+1}], v{areg} offset:{off}"),
                Ins(f"ds_read_b64_tr_b16 v[{r+2}:{r+3}], v{areg} offset:{off+5120}")]
    def bl3(ks):
        b = BR + (ks % BS)*8
        return ([Ins(f"s_mov_b32 s28, {ks*1024}")],
                [Ins(f"buffer_load_dwordx4 {RB(b+4*ct)}, v{15+ct}, s[12:15], s28 offen" + (" sc1" if fused else "")) for ct in range(2)])
    def dma3(st):
        L = [Ins(f"s_add_u32 m0, s26, {(st % NS)*ST}"), Ins(f"s_add_u32 s29, s27, {st*81920}")]
        D = [Ins(f"buffer_load_dwordx4 v{2+i}, s[8:11], s29 offen offset:{i*1024} lds") for i in range(4)]
        D.append(Ins(f"s_add_u32 m0, s26, {(st % NS)*ST + 4096}"))
        D.append(Ins(f"buffer_load_dwordx4 v6, s[8:11], s29 offen lds"))
        return L, D
    H = {'b': {}}
    for st in range(3):
        L, D = dma3(st); P.many(L); P.many(D); H[st] = D[-1]
        for ks in ((2*st, 2*st+1) if st < 2 else (4,)) if not fused else ():
            L, D = bl3(ks); P.many(L); P.many(D); H['b'][ks] = D[-1]
        if st == 0:
            e("s_lshl_b32 s3, s20, 7"); e("s_add_u32 s3, s3, s24"); e("s_mul_i32 s3, s3, 20480")
            e("s_mul_i32 s25, s22, 5120"); e("s_add_u32 s3, s3, s25"); e(f"s_add_u32 s3, s3, {WS_PART}")
            if S3M32:
                e("v_lshrrev_b32 v10, 5, v0"); e("v_lshrrev_b32 v11, 2, v0"); e("v_and_b32 v11, 3, v11")
                e("v_lshlrev_b32 v12, 2, v10"); e("v_add_u32 v11, v11, v12"); e("v_mul_u32_u24 v11, 320, v11")
                e("v_and_b32 v12, 3, v0"); e("v_lshlrev_b32 v12, 3, v12"); e("v_add_u32 v11, v11, v12")
                e("v_lshrrev_b32 v12, 4, v0"); e("v_and_b32 v12, 1, v12"); e("v_xor_b32 v12, v12, v10"); e("v_lshlrev_b32 v12, 5, v12")
                e("v_add_u32 v7, v11, v12"); e(f"v_add_u32 v9, {3*ST}, v7")
                e("v_lshrrev_b32 v11, 4, v0"); e("v_and_b32 v11, 1, v11"); e("v_mul_u32_u24 v11, 20480, v11")
                e("v_lshlrev_b32 v12, 8, v10"); e("v_add_u32 v11, v11, v12"); e("v_and_b32 v12, 15, v0"); e("v_lshlrev_b32 v12, 4, v12"); e("v_add_u32 v11, v11, v12")
                e("v_add_u32 v17, s3, v11"); e("v_add_u32 v18, 512, v17")
            else:
                e("v_lshrrev_b32 v10, 4, v0")
                e("v_lshrrev_b32 v11, 2, v0"); e("v_and_b32 v11, 3, v11")
                e("v_lshlrev_b32 v12, 2, v10"); e("v_add_u32 v11, v11, v12"); e("v_mul_u32_u24 v11, 320, v11")
                e("v_and_b32 v12, 3, v0"); e("v_lshlrev_b32 v12, 3, v12"); e("v_add_u32 v11, v11, v12")
                e("v_and_b32 v12, 1, v10"); e("v_lshlrev_b32 v12, 5, v12")
                e("v_add_u32 v7, v11, v12"); e("v_xor_b32 v12, 32, v12"); e("v_add_u32 v8, v11, v12")
                e(f"v_add_u32 v9, {3*ST}, v7"); e(f"v_add_u32 v14, {3*ST}, v8")
                e("v_lshlrev_b32 v10, 4, v0"); e("v_add_u32 v17, s3, v10"); e("v_add_u32 v18, 20480, v17")
    srd(P, 16, 44, 45, 2048*1280)
    e("v_and_b32 v120, 7, v0"); e("v_lshrrev_b32 v121, 4, v0"); e("v_lshrrev_b32 v122, 3, v0"); e("v_and_b32 v122, 1, v122")
    e("s_lshl_b32 s30, s21, 3"); e("s_lshr_b32 s3, s56, 1"); e("s_add_u32 s30, s30, s3"); e("s_and_b32 s31, s56, 1")
    e("s_mul_i32 s3, s30, 20480"); e("s_lshl_b32 s25, s31, 7"); e("s_add_u32 s3, s3, s25")
    e("v_lshlrev_b32 v123, 10, v122"); e("v_lshlrev_b32 v124, 8, v121"); e("v_add_u32 v123, v123, v124"); e("v_lshlrev_b32 v124, 4, v120"); e("v_add_u32 v123, v123, v124")
    e("v_add_u32 v123, s3, v123")
    e("s_lshl_b32 s36, s23, 11"); e("s_add_u32 s37, s36, 8192"); e("s_and_b32 s38, s23, 1"); e("s_lshl_b32 s38, s38, 11"); e("s_add_u32 s38, s38, 16384")
    PAIR = [36, 37, 38]
    for j in range(3): e(f"v_add_u32 v{125+j}, s{PAIR[j]}, v123")
    e("s_lshl_b32 s3, s30, 4"); e("s_lshl_b32 s25, s31, 3"); e("s_add_u32 s3, s3, s25"); e("v_add_u32 v128, s3, v120"); e("v_mul_u32_u24 v128, 1280, v128")
    e("v_lshlrev_b32 v124, 6, v122"); e("v_add_u32 v128, v128, v124"); e("v_lshlrev_b32 v124, 3, v121"); e("v_add_u32 v128, v128, v124")
    for j in range(3):
        e(f"s_lshr_b32 s3, s{PAIR[j]}, 4"); e(f"v_add_u32 v{129+j}, s3, v128")
    XR = 132; MP = 160
    for j in range(3):
        for hh in range(2):
            e(f"buffer_load_dwordx2 v[{XR+j*4+hh*2}:{XR+j*4+hh*2+1}], v{129+j}, s[16:19], 0 offen offset:{hh*32}")
    srd(P, 32, 52, 53, 1966080)
    e("s_lshl_b32 s3, s23, 6"); e("v_add_u32 v144, s3, v0"); e("s_mul_i32 s25, s2, 480")
    for r_ in range(2):
        e(f"v_add_u32 v145, {r_*256}, v144")
        e("v_cmp_gt_u32 vcc, 480, v145"); e("v_add_u32 v145, s25, v145")
        e("v_lshlrev_b32 v146, 4, v145"); e("v_mov_b32 v147, 0x7ff00000"); e("v_cndmask_b32 v146, v147, v146, vcc")
        e(f"buffer_load_dwordx4 v[{160+4*r_}:{163+4*r_}], v146, s[32:35], 0 offen")
        e("s_mov_b32 s3, 53687092"); e("v_mul_hi_u32 v146, v145, s3")
        e("v_mul_u32_u24 v157, 80, v146"); e("v_sub_u32 v157, v145, v157")
        e("v_mul_u32_u24 v158, 6554, v157"); e("v_lshrrev_b32 v158, 16, v158")
        e("v_mul_u32_u24 v159, 10, v158"); e("v_sub_u32 v159, v157, v159")
        e("v_mul_u32_u24 v158, 245760, v158"); e("v_mul_u32_u24 v146, 160, v146")
        e("v_lshlrev_b32 v159, 4, v159"); e("v_add_u32 v158, v158, v146"); e("v_add_u32 v158, v158, v159")
        e(f"v_cndmask_b32 v{168+r_}, v147, v158, vcc")
    if fused:
        r = lambda t: P.e(RAW(t))
        P.wait_vm(P.last_o_store); e("s_barrier")
        r("s_cmp_lg_u32 s23, 0"); r("s_cbranch_scc1 KT_OB")
        r("v_mov_b32 v250, s58"); r("v_mov_b32 v251, 1"); r("s_mov_b64 exec, 1")
        r("buffer_atomic_add v251, v250, s[12:15], 0 offen sc1")
        r("v_mov_b32 v250, s59"); r("s_mov_b32 s25, 0")
        r("KT_OP:")
        r("buffer_load_dword v251, v250, s[12:15], 0 offen sc1")
        r("s_waitcnt vmcnt(0)")
        r("v_readfirstlane_b32 s3, v251"); r("s_add_u32 s25, s25, 1"); r("s_nop 2")
        r("s_cmp_ge_u32 s3, 8"); r("s_cbranch_scc1 KT_OD")
        r("s_sleep 1")
        r(f"s_cmp_lt_u32 s25, {SPIN}"); r("s_cbranch_scc1 KT_OP")
        r("KT_OD:")
        r("s_mov_b64 exec, -1")
        r("KT_OB:")
        P.wait_vm(H[0])
        e("s_barrier")
        for ks in range(min(5, NB3 + 1)):
            L, D = bl3(ks); P.many(L); P.many(D); H['b'][ks] = D[-1]
    else:
        P.wait_vm(H[0]); e("s_barrier")
    PF = 6
    for n in range(PF):
        rr = tr3(n); P.many(rr); H.setdefault('tr', {})[n] = rr[-1]
    stamp()
    rp = [(Ins(f"s_mov_b32 s57, {WS_WD}"), 40, 60)] + [(Ins(f"buffer_store_dwordx4 v[{160+4*r_}:{163+4*r_}], v{168+r_}, s[12:15], s57 offen sc1"), 42 + 10*r_, 80) for r_ in range(2)]
    if S3M32:
        rp = [(x, a//2, b//2) for x, a, b in rp]
        g0 = kgemm.GAP; kgemm.GAP = 2
        gemm_stream(P, 48, 10, 1, 2, acc3, AR, ASL, BR, BS, tr3, bl3, dma3, H, PF, 5, 5, 24, extra=rp, mfma_fn=mf3)
        kgemm.GAP = g0
    else:
        gemm_stream(P, 48, 10, 2, 2, acc3, AR, ASL, BR, BS, tr3, bl3, dma3, H, PF, BPF3 if agb else NB3, ND3, 24, extra=rp, b_is_agpr=agb)
    stamp()
    for u in range(5):
        e(f"s_mov_b32 s28, {u*1024}")
        for ct in range(2):
            d = 20 + (u*2+ct)*4
            if S3M32: a = ACC + 16*u + 4*ct; b = a + 8
            else: a = acc3(2*u, ct); b = acc3(2*u+1, ct)
            e(f"v_cvt_pk_bf16_f32 v{d}, v{a}, v{a+1}"); e(f"v_cvt_pk_bf16_f32 v{d+1}, v{a+2}, v{a+3}")
            e(f"v_cvt_pk_bf16_f32 v{d+2}, v{b}, v{b+1}"); e(f"v_cvt_pk_bf16_f32 v{d+3}, v{b+2}, v{b+3}")
            e(f"buffer_store_dwordx4 v[{d}:{d+3}], v{17+ct}, s[12:15], s28 offen sc1")
    def s5_setup():
        for i in range(3):
            e(f"v_add_u32 v110, {i*64}, v0")
            e("v_mul_u32_u24 v111, 5462, v110"); e("v_lshrrev_b32 v111, 16, v111")
            e("v_mul_u32_u24 v112, 12, v111"); e("v_sub_u32 v112, v110, v112")
            e("v_lshrrev_b32 v113, 2, v111"); e("v_and_b32 v113, 1, v113"); e("v_lshlrev_b32 v113, 1, v113")
            e("v_xor_b32 v112, v112, v113"); e("v_lshlrev_b32 v112, 4, v112")
            e("v_mul_u32_u24 v111, 3072, v111"); e("v_add_u32 v111, v111, v112")
            e(f"v_add_u32 v{2+i}, {BIAS - i*1024}, v111")
        e("s_lshr_b32 s3, s23, 1"); e("s_mul_i32 s3, s3, 49152")
        for i in range(3): e(f"v_add_u32 v{2+i}, s3, v{2+i}")
        e("s_and_b32 s3, s23, 1"); e("s_cmp_eq_u32 s3, 0")
        e("s_cselect_b32 s8, s48, s50"); e("s_cselect_b32 s9, s49, s51")
        e("s_mul_i32 s3, s56, 192")
        e("s_add_u32 s8, s8, s3"); e("s_addc_u32 s9, s9, 0"); e(f"s_sub_u32 s8, s8, {BIAS}"); e("s_subb_u32 s9, s9, 0")
        e(f"s_sub_u32 s10, {640*3072+BIAS}, s3"); e("s_mov_b32 s11, 0x20000")
        e("s_mul_i32 s26, s23, 3072")
        e("v_lshrrev_b32 v10, 4, v0")
        e("v_lshrrev_b32 v11, 2, v0"); e("v_mul_u32_u24 v11, 192, v11")
        e("v_and_b32 v12, 3, v0"); e("v_lshlrev_b32 v12, 3, v12"); e("v_add_u32 v11, v11, v12")
        e("v_and_b32 v12, 1, v10"); e("v_lshlrev_b32 v12, 5, v12")
        e("v_add_u32 v7, v11, v12"); e("v_xor_b32 v12, 32, v12"); e("v_add_u32 v8, v11, v12")
        e("v_lshlrev_b32 v10, 4, v0")
        e("s_mul_i32 s3, s24, 20480"); e(f"s_add_u32 s3, s3, {WS_H2F}"); e("v_add_u32 v15, s3, v10"); e("v_add_u32 v16, 20480, v15")
        e("s_mul_i32 s3, s24, 49152"); e("s_mul_i32 s25, s56, 3072"); e("s_add_u32 s3, s3, s25"); e(f"s_add_u32 s3, s3, {WS_ACT}")
        e("v_add_u32 v17, s3, v10"); e("v_add_u32 v18, 49152, v17")
    NS5 = 5; ST5 = 12288
    def dma5(st):
        return ([Ins(f"s_add_u32 m0, s26, {(st % NS5)*ST5}"), Ins(f"s_mov_b32 s29, {st*32*3072}")],
                [Ins(f"buffer_load_dwordx4 v{2+i}, s[8:11], s29 offen offset:{i*1024} lds") for i in range(3)])
    H5 = {'b': {}}
    e("s_lshl_b32 s3, s23, 6"); e("v_add_u32 v144, s3, v0")
    for i in range(3):
        e(f"v_add_u32 v145, {256*i}, v144"); e("v_min_u32 v145, 639, v145")
        e("v_mul_u32_u24 v146, 410, v145"); e("v_lshrrev_b32 v146, 16, v146")
        e("v_mul_u32_u24 v147, 160, v146"); e("v_sub_u32 v147, v145, v147")
        e(f"v_lshlrev_b32 v{148+i}, 4, v147")
        e("v_mul_u32_u24 v147, 2560, v146"); e(f"v_add_u32 v147, v147, v{148+i}")
        for p in range(NSPLIT):
            e(f"s_mov_b32 s25, {WS_MOD + (p*3840 + 2*640)*4}")
            e(f"buffer_load_dwordx4 v[{MP+(i*4+p)*4}:{MP+(i*4+p)*4+3}], v147, s[12:15], s25 offen sc1")
        e(f"v_mul_u32_u24 v146, 5120, v146"); e(f"v_add_u32 v{148+i}, v{148+i}, v146"); e(f"v_add_u32 v{148+i}, {LDS_V}, v{148+i}")
    X = 208
    def hook1():
        s5_setup()
        for i in range(3):
            b = MP + i*16
            for p in range(1, NSPLIT):
                for k in range(4): e(f"v_add_f32 v{b+k}, v{b+k}, v{b+4*p+k}")
            e(f"v_subrev_u32 v146, {LDS_V + 2*5120}, v{148+i}"); e("v_cmp_gt_u32 vcc, 5120, v146"); e("s_nop 1")
            e("v_cndmask_b32 v146, 0, 1.0, vcc")
            for k in range(4):
                e(f"v_cvt_pk_bf16_f32 v{b+k}, v{b+k}, v{b+k}"); e(f"v_and_b32 v{b+k}, 0xffff0000, v{b+k}"); e(f"v_add_f32 v{b+k}, v{b+k}, v146")
            e(f"ds_write_b128 v{148+i}, v[{b}:{b+3}]")
        for q in range(12):
            e(f"v_lshlrev_b32 v{X+2*q}, 16, v{XR+q}"); e(f"v_and_b32 v{X+2*q+1}, 0xffff0000, v{XR+q}")
        e("v_lshlrev_b32 v151, 7, v122"); e("v_lshlrev_b32 v146, 4, v121"); e("v_add_u32 v151, v151, v146"); e(f"v_add_u32 v151, {LDS_V}, v151")
        for j in range(3):
            e(f"s_lshr_b32 s3, s{PAIR[j]}, 3"); e(f"v_add_u32 v{152+j}, s3, v151")
        e("s_cmp_lt_u32 s23, 2"); e("s_cselect_b32 s39, 1.0, 0")
        e("v_mul_u32_u24 v155, 144, v120"); e(f"v_add_u32 v155, {LDS_R}, v155")
        e("v_lshlrev_b32 v156, 3, v121"); e("v_lshlrev_b32 v146, 2, v122"); e("v_add_u32 v156, v156, v146"); e("s_lshl_b32 s3, s23, 5"); e("v_add_u32 v156, s3, v156"); e("v_add_u32 v156, v156, v155")
    stamp()
    gbar(P, 0, hook1)
    stamp()
    dstamp('s4')
    PR = 20
    for p in range(4):
        for j in range(3):
            e(f"s_mov_b32 s25, {WS_PART + p*128*20480}")
            e(f"buffer_load_dwordx4 v[{PR+(p*3+j)*4}:{PR+(p*3+j)*4+3}], v{125+j}, s[12:15], s25 offen sc1")
    T = 20; OX = 100; GA = 160
    for j in range(3):
        for hh in range(2):
            k = j*2 + hh
            e(f"ds_read_b128 v[{GA+4*k}:{GA+4*k+3}], v{152+j} offset:{hh*64}")
    for st in range(4):
        L, D = dma5(st); P.many(L); P.many(D); H5[st] = D[-1]
    dstamp('s4')
    A_ = 72
    e("v_mov_b32 v146, 0x3f80"); e("v_mov_b32 v147, 0x3f800000")
    for q in range(12):
        e(f"v_lshlrev_b32 v{A_+2*q}, 16, v{PR+q}"); e(f"v_and_b32 v{A_+2*q+1}, 0xffff0000, v{PR+q}")
    for p in range(1, 4):
        for q in range(12):
            r = PR + p*12 + q
            e(f"v_dot2c_f32_bf16 v{A_+2*q}, v{r}, v146"); e(f"v_dot2c_f32_bf16 v{A_+2*q+1}, v{r}, v147")
    dstamp('s4')
    for k in range(6):
        for i in (0, 2): e(f"v_pk_fma_f32 v[{X+4*k+i}:{X+4*k+i+1}], v[{A_+4*k+i}:{A_+4*k+i+1}], v[{GA+4*k+i}:{GA+4*k+i+1}], v[{X+4*k+i}:{X+4*k+i+1}]")
        e(f"v_cvt_pk_bf16_f32 v{OX+2*k}, v{X+4*k}, v{X+4*k+1}"); e(f"v_cvt_pk_bf16_f32 v{OX+2*k+1}, v{X+4*k+2}, v{X+4*k+3}")
    for q in range(12):
        e(f"v_lshlrev_b32 v{X+2*q}, 16, v{OX+q}"); e(f"v_and_b32 v{X+2*q+1}, 0xffff0000, v{OX+q}")
    e(f"s_mov_b32 s25, {WS_X1}")
    for j in range(3): e(f"buffer_store_dwordx4 v[{OX+4*j}:{OX+4*j+3}], v{125+j}, s[12:15], s25 offen sc1")
    dstamp('s4')
    for j in range(3):
        for hh in range(2):
            k = j*2 + hh
            e(f"ds_read_b128 v[{T+4*k}:{T+4*k+3}], v{152+j} offset:{2*5120 + hh*64}")
            e(f"ds_read_b128 v[{T+24+4*k}:{T+24+4*k+3}], v{152+j} offset:{1*5120 + hh*64}")
    dstamp('s4')
    def red(val, base):
        e(f"ds_write_b32 v156, v{val} offset:{base}")
        e("s_waitcnt lgkmcnt(0)"); e("s_barrier")
        for q in range(8): e(f"ds_read_b128 v[{160+4*q}:{163+4*q}], v155 offset:{base+16*q}")
        for n in (16, 8, 4, 2):
            for q in range(0, n, 2): e(f"v_pk_add_f32 v[{160+q}:{161+q}], v[{160+q}:{161+q}], v[{160+n+q}:{161+n+q}]")
        e(f"v_add_f32 v{val}, v160, v161")
    e(f"v_pk_add_f32 v[158:159], v[{X}:{X+1}], v[{X+2}:{X+3}]")
    for i in range(2, 8): e(f"v_pk_add_f32 v[158:159], v[158:159], v[{X+2*i}:{X+2*i+1}]")
    e(f"v_pk_add_f32 v[96:97], v[{X+16}:{X+17}], v[{X+18}:{X+19}]")
    for i in range(10, 12): e(f"v_pk_add_f32 v[96:97], v[96:97], v[{X+2*i}:{X+2*i+1}]")
    e("v_add_f32 v158, v158, v159"); e("v_add_f32 v96, v96, v97"); e("v_fma_f32 v158, v96, s39, v158")
    dstamp('s4')
    red(158, 0)
    dstamp('s4')
    e(f"v_mul_f32 v158, {f2u(-1/640)}, v158"); e("v_mov_b32 v159, v158")
    for i in range(0, 24, 2): e(f"v_pk_add_f32 v[{X+i}:{X+i+1}], v[{X+i}:{X+i+1}], v[158:159]")
    e(f"v_pk_mul_f32 v[98:99], v[{X}:{X+1}], v[{X}:{X+1}]")
    for i in range(2, 16, 2): e(f"v_pk_fma_f32 v[98:99], v[{X+i}:{X+i+1}], v[{X+i}:{X+i+1}], v[98:99]")
    e(f"v_pk_mul_f32 v[96:97], v[{X+16}:{X+17}], v[{X+16}:{X+17}]")
    for i in range(18, 24, 2): e(f"v_pk_fma_f32 v[96:97], v[{X+i}:{X+i+1}], v[{X+i}:{X+i+1}], v[96:97]")
    e("v_add_f32 v159, v98, v99"); e("v_add_f32 v96, v96, v97")
    e("v_fma_f32 v159, v96, s39, v159")
    red(159, 1280)
    dstamp('s4')
    e(f"v_mul_f32 v159, {f2u(1/640)}, v159"); e(f"v_add_f32 v159, {f2u(1e-5)}, v159"); e("v_rsq_f32 v159, v159"); e("s_nop 0")
    e("v_mov_b32 v158, v159")
    for i in range(0, 24, 2):
        e(f"v_pk_mul_f32 v[{X+i}:{X+i+1}], v[{X+i}:{X+i+1}], v[158:159]")
    for i in range(0, 24, 2):
        e(f"v_pk_fma_f32 v[{X+i}:{X+i+1}], v[{X+i}:{X+i+1}], v[{T+i}:{T+i+1}], v[{T+24+i}:{T+24+i+1}]")
    for k in range(6):
        e(f"v_cvt_pk_bf16_f32 v{OX+2*k}, v{X+4*k}, v{X+4*k+1}"); e(f"v_cvt_pk_bf16_f32 v{OX+2*k+1}, v{X+4*k+2}, v{X+4*k+3}")
    e(f"s_mov_b32 s25, {WS_H2F}")
    for j in range(3): e(f"buffer_store_dwordx4 v[{OX+4*j}:{OX+4*j+3}], v{125+j}, s[12:15], s25 offen sc1")
    dstamp('s4')
    stamp()
    gbar(P, 1, None, also=0)
    dstamp('s4')
    stamp()
    ACC5 = 160
    def acc5(t, ct): return ACC5 + (t*2 + ct)*4
    def tr5(n):
        ks, t = divmod(n, 12); m_, j = divmod(t, 6)
        off = (ks % NS5)*ST5 + m_*3072 + (j >> 1)*64
        r = AR + (n % ASL)*4
        return [Ins(f"ds_read_b64_tr_b16 v[{r}:{r+1}], v{7 + (j & 1)} offset:{off}"),
                Ins(f"ds_read_b64_tr_b16 v[{r+2}:{r+3}], v{7 + (j & 1)} offset:{off+6144}")]
    def bl5(ks):
        b = BR + (ks % BS)*8
        return ([Ins(f"s_mov_b32 s28, {ks*1024}")],
                [Ins(f"buffer_load_dwordx4 {RB(b+4*ct)}, v{15+ct}, s[12:15], s28 offen sc1") for ct in range(2)])
    for ks in range(min(5, NB5 + 1)):
        L, D = bl5(ks); P.many(L); P.many(D); H5['b'][ks] = D[-1]
    for n in range(PF):
        rr = tr5(n); P.many(rr); H5.setdefault('tr', {})[n] = rr[-1]
    gemm_stream(P, 20, 12, 2, 1, acc5, AR, ASL, BR, BS, tr5, bl5, dma5, H5, PF, BPF5 if agb else NB5, ND5, 20, b_is_agpr=agb)
    stamp()
    for u in range(3):
        e(f"s_mov_b32 s28, {u*1024}")
        for ct in range(2):
            dst = 20 + (u*2 + ct)*4
            for hh in range(2):
                j = 2*u + hh
                g = acc5(j, ct); up = acc5(6+j, ct)
                for i in range(4): e(f"v_max_f32 v{g+i}, 0, v{g+i}")
                for i in range(4): e(f"v_mul_f32 v{g+i}, v{g+i}, v{up+i}")
                e(f"v_cvt_pk_bf16_f32 v{dst+2*hh}, v{g}, v{g+1}"); e(f"v_cvt_pk_bf16_f32 v{dst+2*hh+1}, v{g+2}, v{g+3}")
            e(f"buffer_store_dwordx4 v[{dst}:{dst+3}], v{17+ct}, s[12:15], s28 offen sc1")
    NS6 = 6; ST6 = 5120
    e("s_lshr_b32 s30, s20, 1"); e("s_lshl_b32 s30, s30, 2"); e("s_add_u32 s30, s30, s22")
    e("s_lshl_b32 s31, s21, 1"); e("s_and_b32 s3, s20, 1"); e("s_add_u32 s31, s31, s3")
    e("v_lshlrev_b32 v2, 4, v0"); e("v_add_u32 v6, 4096, v2")
    e("v_lshrrev_b32 v111, 2, v0"); e("v_mul_u32_u24 v111, 160, v111")
    e("v_and_b32 v112, 3, v0"); e("v_lshlrev_b32 v112, 3, v112"); e("v_add_u32 v7, v111, v112")
    e(f"s_mul_i32 s26, s23, {NS6*ST6}"); e("v_add_u32 v7, s26, v7")
    e("s_lshl_b32 s24, s31, 2")
    e("s_mul_i32 s3, s24, 49152"); e("s_mul_i32 s25, s23, 12288"); e("s_add_u32 s3, s3, s25"); e(f"s_add_u32 s3, s3, {WS_ACT}")
    e("v_lshlrev_b32 v10, 4, v0"); e("v_add_u32 v112, s3, v10")
    e("s_mul_i32 s27, s23, 61440"); e("s_mul_i32 s3, s30, 245760"); e("s_add_u32 s27, s27, s3"); e(f"s_add_u32 s27, s27, {WS_WD}")
    srd(P, 32, 54, 55, 2048*1280)
    def dma6(st):
        L = [Ins(f"s_add_u32 m0, s26, {(st % NS6)*ST6}"), Ins(f"s_add_u32 s29, s27, {st*5120}")]
        D = [Ins(f"buffer_load_dwordx4 v2, s[12:15], s29 offen offset:{i*1024} sc1 lds") for i in range(4)]
        D.append(Ins(f"s_add_u32 m0, s26, {(st % NS6)*ST6 + 4096}"))
        D.append(Ins(f"buffer_load_dwordx4 v6, s[12:15], s29 offen sc1 lds"))
        return L, D
    H6 = {'b': {}}
    def hook3():
        for st in range(3):
            L, D = dma6(st); P.many(L); P.many(D); H6[st] = D[-1]
    stamp()
    gbar(P, 2, hook3)
    stamp()
    for ct in range(4): e(f"v_add_u32 v{15+ct}, {ct*49152}, v112")
    ACC6 = 176; AR6 = 20; ASL6 = 8; BR6 = 52; BS6 = 4; XR6 = 116; GB6 = 128
    if agb: BR6 = 0; BS6 = 12
    def acc6(t, ct): return ACC6 + (t*4 + ct)*4
    def tr6(n):
        ks, t = divmod(n, 5)
        off = (ks % NS6)*ST6 + t*32
        r = AR6 + (n % ASL6)*4
        return [Ins(f"ds_read_b64_tr_b16 v[{r}:{r+1}], v7 offset:{off}"),
                Ins(f"ds_read_b64_tr_b16 v[{r+2}:{r+3}], v7 offset:{off+2560}")]
    def bl6(ks):
        b = BR6 + (ks % BS6)*16
        return ([Ins(f"s_mov_b32 s28, {ks*1024}")],
                [Ins(f"buffer_load_dwordx4 {RB(b+4*ct)}, v{15+ct}, s[12:15], s28 offen sc1") for ct in range(4)])
    for ks in range(3):
        L, D = bl6(ks); P.many(L); P.many(D); H6['b'][ks] = D[-1]
    e("s_add_u32 s3, s24, s23"); e("s_mul_i32 s36, s3, 20480"); e(f"s_add_u32 s36, s36, {WS_X1}")
    for t in range(5):
        e(f"s_mul_i32 s3, s30, 5"); e(f"s_add_u32 s3, s3, {t}"); e("s_lshr_b32 s37, s3, 1"); e("s_lshl_b32 s37, s37, 10")
        e("s_and_b32 s3, s3, 1"); e("s_lshl_b32 s3, s3, 3"); e("s_add_u32 s37, s37, s3"); e("s_add_u32 s37, s37, s36")
        e(f"buffer_load_dwordx2 v[{XR6+2*t}:{XR6+2*t+1}], v10, s[12:15], s37 offen sc1")
    e("v_lshrrev_b32 v11, 4, v0"); e("v_lshlrev_b32 v13, 4, v11"); e("s_mul_i32 s3, s30, 320"); e(f"s_add_u32 s3, s3, {LDS_V + 3*5120}"); e("v_add_u32 v13, s3, v13")
    for t in range(5): e(f"ds_read_b128 v[{GB6+4*t}:{GB6+4*t+3}], v13 offset:{t*64}")
    e("v_and_b32 v12, 15, v0"); e("s_lshl_b32 s3, s31, 6"); e("s_lshl_b32 s25, s23, 4"); e("s_add_u32 s3, s3, s25"); e("v_add_u32 v12, s3, v12")
    e("v_mul_u32_u24 v12, 1280, v12"); e("v_lshlrev_b32 v11, 3, v11"); e("v_add_u32 v12, v12, v11")
    e("s_mul_i32 s3, s30, 160"); e("v_add_u32 v14, s3, v12")
    PF6 = 4
    P.wait_vm(H6[0])
    for n in range(PF6):
        rr = tr6(n); P.many(rr); H6.setdefault('tr', {})[n] = rr[-1]
    bar0 = kgemm.GOPT['barrier']; kgemm.GOPT['barrier'] = False
    g0 = kgemm.GAP; kgemm.GAP = G6
    gemm_stream(P, 12, 5, 4, 1, acc6, AR6, ASL6, BR6, BS6, tr6, bl6, dma6, H6, PF6, BPF6 if agb else NB6, ND6, 12, WG=1, b_is_agpr=agb)
    kgemm.GAP = g0; kgemm.GOPT['barrier'] = bar0
    stamp()
    e("s_barrier")
    e("s_mul_i32 s3, s23, 20480"); e("v_add_u32 v11, s3, v10")
    for ct in range(4):
        for t in range(5):
            a = acc6(t, ct)
            e(f"ds_write_b128 v11, v[{a}:{a+3}] offset:{(ct*5+t)*1024}")
    e("s_waitcnt lgkmcnt(0)"); e("s_barrier")
    e("s_mul_i32 s3, s23, 5120"); e("v_add_u32 v11, s3, v10"); e("v_add_u32 v13, 40960, v11")
    for sw in range(4):
        for t in range(5):
            r = 20 + (sw*5 + t)*4
            e(f"ds_read_b128 v[{r}:{r+3}], v{11 if sw < 2 else 13} offset:{(sw & 1)*20480 + t*1024}")
    for t in range(5):
        y = 20 + t*4
        for sw in range(1, 4):
            for i in range(4): e(f"v_add_f32 v{y+i}, v{y+i}, v{20+(sw*5+t)*4+i}")
        x = XR6 + 2*t
        e(f"v_lshlrev_b32 v148, 16, v{x}"); e(f"v_and_b32 v149, 0xffff0000, v{x}")
        e(f"v_lshlrev_b32 v150, 16, v{x+1}"); e(f"v_and_b32 v151, 0xffff0000, v{x+1}")
        for i in range(4): e(f"v_fma_f32 v{y+i}, v{y+i}, v{GB6+4*t+i}, v{148+i}")
        e(f"v_cvt_pk_bf16_f32 v{y}, v{y}, v{y+1}"); e(f"v_cvt_pk_bf16_f32 v{y+1}, v{y+2}, v{y+3}")
        e(f"buffer_store_dwordx2 v[{y}:{y+1}], v14, s[32:35], 0 offen offset:{t*32}")
    if stamps:
        e("s_waitcnt vmcnt(0)"); stamp()
        while st_i[0] < 12:
            e(f"s_memtime s[{60+2*st_i[0]}:{61+2*st_i[0]}]"); st_i[0] += 1
        e("s_waitcnt lgkmcnt(0)")
        e(f"s_lshl_b32 s3, s2, 2"); e(f"s_add_u32 s3, s3, s23"); e("s_lshl_b32 s3, s3, 6"); e(f"s_add_u32 s3, s3, {WS_STAMP}")
        for i in range(st_i[0]):
            e(f"v_mov_b32 v1, s{60+2*i}"); e("v_mov_b32 v2, s3")
            e(f"buffer_store_dword v1, v2, s[12:15], 0 offen offset:{4*i}"); e("s_waitcnt vmcnt(0)")
    e("KT_END:")
    e("s_endpgm")
    if not fused: P.finalize(report_nops=False)
    P.nstamps = st_i[0]
    return P

if __name__ == "__main__":
    k = gen_kt(stamps=True)
    print(k.estimate(), len(k.final), k.nstamps)
```
